```python
import torch

def _softmax(x, axis=-1):
    return torch.softmax(x, dim=axis)

def _gelu(x):
    return torch.nn.functional.gelu(x, approximate='tanh')

def _silu(x):
    return torch.nn.functional.silu(x)

def _sigmoid(x):
    return torch.sigmoid(x)

def _layernorm(x, axis=-1, eps=1e-05):
    m = x.mean(dim=axis, keepdim=True)
    v = x.var(dim=axis, keepdim=True, unbiased=False)
    return (x - m) / torch.sqrt(v + eps)

def _scatter_add(tgt, idx, src, axis=0):
    return tgt.clone().index_add_(axis, idx, src)

def _segment_sum(src, seg, n):
    out = torch.zeros((n,) + src.shape[1:], dtype=src.dtype)
    return out.index_add_(0, seg, src)

def _pad(x, pw):
    flat = tuple((v for pair in reversed(pw) for v in pair))
    return torch.nn.functional.pad(x, flat)
kernel_name = 'interleave_layers__softmax_full_mha__memory_aug_recurrent_mem_tr__prompt'

def setup_inputs():

    _w = lambda a: (lambda t: t.to(torch.bfloat16) if t.is_floating_point() else t)(torch.as_tensor(a))

    def _A_setup():
        B, S, D = (1, 2048, 512)
        return {'x': _w((lambda *s: torch.randn(*s, dtype=torch.bfloat16) * 0.05)(B, S, D)), 'wqkv': _w((lambda *s: torch.randn(*s, dtype=torch.bfloat16) * 0.05)(D, 3 * D)), 'wo': _w((lambda *s: torch.randn(*s, dtype=torch.bfloat16) * 0.05)(D, D))}
    _A_in = _A_setup()

    def _B_setup():
        B, S, Dm = (1, 2048, 512)
        H, Dh = (32, 128)
        M, seg = (8, 32)
        seg = min(seg, S)
        S = S // seg * seg
        return {'x': _w((lambda *s: torch.randn(*s, dtype=torch.bfloat16) * 0.05)(B, S, Dm)), 'mem0': _w((lambda *s: torch.randn(*s, dtype=torch.bfloat16) * 0.8)(B, M, Dm)), 'Wq': _w((lambda *s: torch.randn(*s, dtype=torch.bfloat16) * 1.6)(Dm, H, Dh) * Dm ** (-0.5)), 'Wk': _w((lambda *s: torch.randn(*s, dtype=torch.bfloat16) * 1.6)(Dm, H, Dh) * Dm ** (-0.5)), 'Wv': _w((lambda *s: torch.randn(*s, dtype=torch.bfloat16) * 0.8)(Dm, H, Dh) * Dm ** (-0.5)), 'Wo': _w((lambda *s: torch.randn(*s, dtype=torch.bfloat16) * 0.8)(H, Dh, Dm) * (H * Dh) ** (-0.5)), 'seg_len': seg}
    _B_in = _B_setup()
    return {'A_x': _A_in['x'], 'A_wqkv': _A_in['wqkv'], 'A_wo': _A_in['wo'], 'B_x': _B_in['x'], 'B_mem0': _B_in['mem0'], 'B_Wq': _B_in['Wq'], 'B_Wk': _B_in['Wk'], 'B_Wv': _B_in['Wv'], 'B_Wo': _B_in['Wo'], 'B_seg_len': _B_in['seg_len']}

def reference(A_x, A_wqkv, A_wo, B_x, B_mem0, B_Wq, B_Wk, B_Wv, B_Wo, B_seg_len):

    def _A_ref(x, wqkv, wo):
        B, S, D = x.shape
        H = 32
        Dh = D // H
        qkv = (lambda x, *d: x.permute(*d))((x @ wqkv).reshape(B, S, 3, H, Dh), 2, 0, 3, 1, 4)
        q, k, v = (qkv[0], qkv[1], qkv[2])
        scale = Dh ** (-0.5)
        scores = torch.einsum('bhqd,bhkd->bhqk', q, k) * scale
        p = _softmax(scores, axis=-1)
        o = torch.einsum('bhqk,bhkd->bhqd', p, v)
        return (lambda x, *d: x.permute(*d))(o, 0, 2, 1, 3).reshape(B, S, D) @ wo

    def _B_ref(x, mem0, Wq, Wk, Wv, Wo, seg_len):
        B, S, Dm = x.shape
        H, Dh = (Wq.shape[1], Wq.shape[2])
        M = mem0.shape[1]
        scale = Dh ** (-0.5)
        n_seg = S // seg_len
        L = M + seg_len
        idx = torch.arange(L)
        mask = (idx[:, None] < M) | (idx[:, None] >= idx[None, :])
        mem = mem0
        outs = []
        for s in range(n_seg):
            xs = x[:, s * seg_len:(s + 1) * seg_len, :].clone()
            h = torch.concatenate([mem, xs], axis=1)
            q = torch.einsum('btd,dhe->bhte', h, Wq)
            k = torch.einsum('btd,dhe->bhte', h, Wk)
            v = torch.einsum('btd,dhe->bhte', h, Wv)
            scores = torch.einsum('bhqe,bhke->bhqk', q, k) * scale
            scores = torch.where(mask[None, None], scores, -1000000000.0)
            p = _softmax(scores, axis=-1)
            o = torch.einsum('bhqk,bhke->bhqe', p, v)
            o = torch.einsum('bhte,hed->btd', o, Wo)
            mem = o[:, :M, :].clone()
            outs.append(o[:, M:, :])
        return torch.concatenate(outs, axis=1)
    x = A_x
    x = x + _A_ref(_layernorm(x, axis=-1), A_wqkv, A_wo)
    x = x + _B_ref(_layernorm(x, axis=-1), B_mem0, B_Wq, B_Wk, B_Wv, B_Wo, B_seg_len)
    x = x + _A_ref(_layernorm(x, axis=-1), A_wqkv, A_wo)
    x = x + _B_ref(_layernorm(x, axis=-1), B_mem0, B_Wq, B_Wk, B_Wv, B_Wo, B_seg_len)
    return x
```

```python
import re

REG_RE = re.compile(r'^(-|\|)?(abs\()?([vas])(\d+|\[(\d+):(\d+)\])\)?\|?$')

def regs_of(op):
    op = op.strip()
    if op in ('vcc',): return {('s', 'vcc')}
    if op in ('exec',): return {('s', 'exec')}
    if op in ('m0',): return {('s', 'm0')}
    if op in ('vcc_lo', 'vcc_hi'): return {('s', 'vcc')}
    if op in ('exec_lo', 'exec_hi'): return {('s', 'exec')}
    m = REG_RE.match(op)
    if not m: return set()
    k = m.group(3)
    if m.group(5) is not None:
        return {(k, i) for i in range(int(m.group(5)), int(m.group(6)) + 1)}
    return {(k, int(m.group(4)))}

TRANS = ('v_exp_f32', 'v_log_f32', 'v_rcp_f32', 'v_rsq_f32', 'v_sqrt_f32', 'v_sin_f32', 'v_cos_f32')

class Ins:
    __slots__ = ('text', 'mn', 'ops', 'defs', 'uses', 'cls', 'passes', 'srcc', 'ab', 'mods', 'wide_store', 'dpp')
    def __init__(self, text):
        self.text = text
        t = text.split(';')[0].strip()
        parts = t.split(None, 1)
        self.mn = mn = parts[0]
        rest = parts[1] if len(parts) > 1 else ''
        ops = []; cur = ''; depth = 0
        for ch in rest:
            if ch in '[(': depth += 1
            if ch in '])': depth -= 1
            if ch == ',' and depth == 0: ops.append(cur.strip()); cur = ''
            else: cur += ch
        if cur.strip(): ops.append(cur.strip())
        mods = ''
        if ops:
            l = ops[-1].split(None, 1)
            ops[-1] = l[0]
            mods = l[1] if len(l) > 1 else ''
        self.ops = ops; self.mods = mods
        self.passes = 0; self.srcc = set(); self.ab = set(); self.wide_store = False
        self.dpp = ('dpp' in mn) or ('quad_perm' in mods) or ('row_' in mods)
        R = [regs_of(o) for o in ops]
        U = lambda l: set().union(*l) if l else set()
        if mn.startswith('v_mfma') or mn.startswith('v_smfmac'):
            self.cls = 'mfma'
            self.passes = 8 if '32x32' in mn else 4
            self.defs = R[0]
            if mn.startswith('v_smfmac'):
                self.srcc = set(R[0]); self.ab = R[1] | R[2] | R[3]
            else:
                self.srcc = set(R[3]); self.ab = R[1] | R[2]
            self.uses = self.srcc | self.ab
        elif mn.startswith('v_'):
            self.cls = 'valu'
            if mn.startswith('v_cmp'):
                self.defs = R[0]; self.uses = U(R[1:])
            elif mn.startswith('v_permlane') and 'swap' in mn:
                self.defs = R[0] | R[1]; self.uses = R[0] | R[1]
            elif mn.startswith(('v_add_co', 'v_sub_co', 'v_addc_co', 'v_subb_co', 'v_mad_u64', 'v_div_scale')):
                self.defs = R[0] | R[1]; self.uses = U(R[2:])
            elif mn.startswith(('v_fmac', 'v_pk_fmac', 'v_dot2c', 'v_writelane')):
                self.defs = R[0]; self.uses = U(R)
            elif mn == 'v_nop':
                self.defs = set(); self.uses = set()
            else:
                self.defs = R[0]; self.uses = U(R[1:])
                if self.dpp: self.uses |= R[0]
        elif mn.startswith(('global_', 'buffer_', 'flat_')):
            self.cls = 'vmem'
            if 'store' in mn:
                self.defs = set(); self.uses = U(R)
                self.wide_store = mn.endswith(('x3', 'x4'))
            elif 'atomic' in mn:
                if 'sc0' in mods and mn.startswith('global_'):
                    self.defs = R[0]; self.uses = U(R[1:])
                elif 'sc0' in mods:
                    self.defs = R[0]; self.uses = U(R)
                else:
                    self.defs = set(); self.uses = U(R)
            elif mn in ('buffer_wbl2', 'buffer_inv'):
                self.defs = set(); self.uses = set()
            elif ' lds' in (' ' + mods) or '_lds_' in mn:
                self.defs = set(); self.uses = U(R) | {('s', 'm0')}
            else:
                self.defs = R[0]; self.uses = U(R[1:])
                if 'd16' in mn: self.uses |= R[0]
        elif mn.startswith('ds_'):
            self.cls = 'ds'
            if mn.startswith(('ds_write', 'ds_add', 'ds_max', 'ds_min')) and 'rtn' not in mn:
                self.defs = set(); self.uses = U(R)
            else:
                self.defs = R[0]; self.uses = U(R[1:])
        elif mn.startswith('s_'):
            if mn.startswith(('s_load', 's_memtime', 's_memrealtime', 's_buffer_load', 's_atomic')):
                self.cls = 'smem'; self.defs = R[0]; self.uses = U(R[1:])
            else:
                self.cls = 'salu'
                if mn.startswith(('s_cmp', 's_cbranch', 's_branch', 's_waitcnt', 's_nop', 's_barrier', 's_endpgm', 's_sleep', 's_setprio', 's_bitcmp', 's_setpc')):
                    self.defs = set(); self.uses = U(R)
                else:
                    self.defs = R[0] if R else set(); self.uses = U(R[1:])
                    if mn.startswith('s_bitset'): self.uses = U(R)
                    if 'saveexec' in mn: self.defs = self.defs | {('s', 'exec')}
        else:
            raise ValueError('unknown instr ' + text)

    def states(self):
        if self.mn == 's_nop': return int(self.ops[0], 0) + 1
        return 1

def isv(rs): return {r for r in rs if r[0] in 'va'}
def iss(rs): return {r for r in rs if r[0] == 's'}

def need(p, c):
    n = 0
    if p.cls == 'valu':
        pv = isv(p.defs); ps = iss(p.defs)
        if c.cls == 'mfma' and pv & c.uses: n = max(n, 2)
        if c.cls == 'valu':
            if c.dpp and pv & c.uses: n = max(n, 2)
            if c.mn.startswith('v_permlane') and pv & c.uses: n = max(n, 2)
            if c.mn.startswith(('v_readlane', 'v_readfirstlane')) and pv & c.uses: n = max(n, 1)
            if p.mn.startswith(TRANS) and (pv & c.uses) : n = max(n, 1)
            if ps & c.uses: n = max(n, 4 if c.mn.startswith(('v_readlane', 'v_writelane', 'v_div_fmas')) else 2)
            if ('s', 'vcc') in ps and c.mn.startswith('v_div_fmas'): n = max(n, 4)
            if ('sdwa' in p.mn or ('op_sel' in p.mods and not p.mn.startswith('v_pk_'))) and pv & (c.uses | c.defs): n = max(n, 1)
        if c.cls == 'vmem' and ps & c.uses: n = max(n, 5)
        if c.cls in ('salu', 'smem') and ps & c.uses and not c.mn.startswith('s_cbranch'): n = max(n, 1)
    if p.cls == 'mfma':
        big = {4: 8, 8: 12}[p.passes]; mid = {4: 6, 8: 10}[p.passes]; war = {4: 3, 8: 7}[p.passes]
        if c.cls == 'mfma':
            if p.defs & c.ab: n = max(n, big)
            if p.defs & c.srcc and not (p.defs == c.srcc and p.passes == c.passes): n = max(n, mid)
            if p.defs & c.defs and not (p.defs == c.srcc and p.passes == c.passes): n = max(n, mid)
        elif c.cls == 'valu':
            if p.defs & (c.uses | c.defs): n = max(n, big)
            if p.srcc & c.defs: n = max(n, war)
        elif c.cls in ('vmem', 'ds'):
            if p.defs & (c.uses | c.defs): n = max(n, big)
            if p.srcc & c.defs: n = max(n, war)
    if p.cls == 'vmem' and p.wide_store:
        data = regs_of(p.ops[1]) if p.mn.startswith('global') else regs_of(p.ops[0])
        if data & c.defs: n = max(n, 2 if c.cls in ('valu', 'mfma') else 1)
    if p.cls == 'salu' and ('s', 'm0') in p.defs and ('s', 'm0') in c.uses and c.cls != 'salu': n = max(n, 1)
    return n

class Asm:
    def __init__(self):
        self.lines = []
        self._lbl = 0
    def __call__(self, text):
        for l in text.split('\n'):
            l = l.strip()
            if l: self.lines.append(l)
    def label(self, name): self.lines.append(name + ':')
    def newlabel(self, p='L'):
        self._lbl += 1
        return f'{p}_{self._lbl}'
    def comment(self, t): self.lines.append('; ' + t)

def is_instr(l):
    return not (l.startswith(';') or l.startswith('.') or l.endswith(':') or re.match(r'^[\w.$]+:\s*(;.*)?$', l))

def _gap(seq):
    t = 0; free = 0
    for i, x in enumerate(seq):
        if x.cls == 'mfma':
            t = max(t, free); free = t + x.passes
        t += x.states()
    return t, free

def _required(win, c):
    req = 0
    n = len(win)
    for i in range(n - 1, max(-1, n - 22), -1):
        p = win[i]
        k = need(p, c)
        if k:
            t, free = _gap(win[i:])
            tc = max(t, free) if c.cls == 'mfma' else t
            if tc < k + 1:
                req = max(req, k + 1 - t)
    return req

def fix_hazards(lines, report=None):
    out = []
    win = []
    for l in lines:
        if not is_instr(l):
            out.append((None, l)); continue
        c = Ins(l)
        req = _required(win, c)
        if req > 0:
            if report is not None: report.append((req, l))
            nop = Ins(f's_nop {req-1}')
            out.append((nop, nop.text)); win.append(nop)
        out.append((c, l)); win.append(c)
        if c.mn in ('s_branch', 's_endpgm', 's_setpc_b64'): win = []
        if len(win) > 48: win = win[-24:]
    labels = {}
    for i, (c, l) in enumerate(out):
        if c is None and re.match(r'^[\w.$]+:', l): labels[l.split(':')[0]] = i
    fixes = []
    for i, (c, l) in enumerate(out):
        if c is not None and c.mn.startswith(('s_cbranch', 's_branch')) and c.ops and c.ops[0] in labels:
            pre = []; j = i
            while j >= 0 and len(pre) < 22:
                if out[j][0] is not None:
                    if j != i and out[j][0].mn in ('s_branch', 's_endpgm'): break
                    pre.insert(0, out[j][0])
                j -= 1
            j = labels[c.ops[0]]; cnt = 0; worst = 0
            while j < len(out) and cnt < 14:
                cc = out[j][0]
                if cc is not None:
                    worst = max(worst, _required(pre, cc))
                    pre = pre + [cc]; cnt += 1
                    if cc.mn in ('s_branch', 's_endpgm'): break
                j += 1
            if worst > 0: fixes.append((i, worst))
    for i, w in reversed(fixes):
        if report is not None: report.append((w, 'branch edge: ' + out[i][1]))
        out.insert(i, (Ins(f's_nop {w-1}'), f's_nop {w-1}'))
    return [l for _, l in out]

def check_waits(lines, name=''):
    vm = []; lg = []
    errs = []
    for l in lines:
        if not is_instr(l): continue
        c = Ins(l)
        if c.mn == 's_waitcnt':
            t = l
            m = re.search(r'vmcnt\((\d+)\)', t)
            if m:
                n = int(m.group(1)); vm = vm[len(vm)-n:] if n < len(vm) and n > 0 else ([] if n == 0 else vm)
            m = re.search(r'lgkmcnt\((\d+)\)', t)
            if m:
                n = int(m.group(1))
                if n == 0: lg = []
                else:
                    sm = [x for x in lg if x[2]]; dl = [x for x in lg if not x[2]]
                    lg = sm + (dl[len(dl)-n:] if n < len(dl) else dl)
            continue
        if c.mn in ('s_branch', 's_endpgm'):
            vm = []; lg = []; continue
        touch = c.uses | c.defs
        if 'nowaitcheck' not in l:
            for d, t, _ in vm + lg:
                if d & touch and not (c.cls in ('vmem','ds') and not (d & c.uses) and ((c.cls=='vmem') == (t.startswith(('global','buffer'))))):
                    errs.append(f'{name}: "{l}" touches regs of outstanding "{t}"')
        if c.cls == 'vmem': vm.append((c.defs, l, False))
        elif c.cls == 'ds': lg.append((c.defs, l, False))
        elif c.cls == 'smem': lg.append((c.defs, l, True))
        if len(vm) > 63: errs.append(f'{name}: vmcnt overflow at "{l}"'); vm = vm[1:]
    return errs

class RegAlloc:
    def __init__(self, kind='v', start=0, limit=256):
        self.kind = kind; self.next = start; self.limit = limit; self.names = {}
    def alloc(self, n=1, align=1, name=None):
        if n > 1 and align == 1: align = 2
        self.next = (self.next + align - 1) // align * align
        r = self.next; self.next += n
        assert self.next <= self.limit, f'out of {self.kind} regs ({name})'
        if name: self.names[name] = (r, n)
        return r

def vr(r, n=1, k='v'):
    return f'{k}{r}' if n == 1 else f'{k}[{r}:{r+n-1}]'
def sr(r, n=1): return vr(r, n, 's')
def ar(r, n=1): return vr(r, n, 'a')

KHDR = """.globl {name}
.p2align 8
.type {name},@function
{name}:
"""
KDESC = """.p2align 6
.amdhsa_kernel {name}
  .amdhsa_next_free_vgpr {vgpr}
  .amdhsa_next_free_sgpr 102
  .amdhsa_accum_offset {acc}
  .amdhsa_group_segment_fixed_size 0
  .amdhsa_kernarg_size 104
  .amdhsa_user_sgpr_count 2
  .amdhsa_user_sgpr_kernarg_segment_ptr 1
  .amdhsa_system_sgpr_workgroup_id_x 1
.end_amdhsa_kernel
"""
def assemble_file(header_comments, launches, kernels):
    t = header_comments
    for name, g, b, lds in launches:
        t += f'; @launch kernel={name} grid=({g},1,1) block=({b},1,1) lds={lds}\n'
    t += '.amdgcn_target "amdgcn-amd-amdhsa--gfx950"\n.text\n'
    for name, lines, vg, acc in kernels:
        t += KHDR.format(name=name)
        t += '\n'.join(lines) + '\n'
    t += '.section .rodata,"a"\n'
    for name, lines, vg, acc in kernels:
        t += KDESC.format(name=name, vgpr=vg, acc=acc)
    return t
```

```python
from asmlib import *
from layout import *
import math, struct

def f2u(f): return struct.unpack('<I', struct.pack('<f', f))[0]

LW = 0
LM = 144 * 1024
LS = 152 * 1024
DELTA = [0, 1, 8, 9, 2, 3, 10, 11]
DELTA2 = [0, 1, 16, 17, 2, 3, 18, 19]

class ChainRegs:
    def __init__(self):
        v = RegAlloc('v', 0, 256)
        self.M = v.alloc(32, 4); self.R = v.alloc(32, 4); self.A = v.alloc(32, 4)
        self.KX = v.alloc(8, 4); self.VX = v.alloc(8, 4)
        self.VM = v.alloc(4)
        self.idx = self.VM + 1; self.aMst = self.VM + 3
        self.PZ = v.alloc(2)
        self.Z = v.alloc(2)
        self.I = v.alloc(2); self.E = v.alloc(4); self.One = v.alloc(4)
        self.aPst = v.alloc(); self.aMw = v.alloc()
        self.x1 = v.alloc(); self.x2 = v.alloc(); self.x3 = v.alloc(); self.aOw = v.alloc(); self.aW = v.alloc()
        self.aK = v.alloc(); self.aV = v.alloc(); self.aKm = v.alloc(); self.aVm = v.alloc(); self.aOr = v.alloc()
        self.aT = v.alloc(); self.tD = v.alloc(); self.tP = self.tD
        self.t0 = self.A + 28; self.t1 = self.A + 29
        assert v.next <= 144, v.next
        self.WV = 144
        self.place = {}
        lds = [('q', 1, s) for s in range(8)] + [('q', 0, 6), ('q', 0, 7)] + [('o', t, k) for t in (0, 1, 6, 7) for k in range(2)]
        for i, b in enumerate(lds): self.place[b] = ('l', i * 2048)
        rest = [(m, t, s) for m in 'qkv' for t in range(2) for s in range(8)] + [('o', t, k) for t in range(8) for k in range(2)]
        rest = [b for b in rest if b not in self.place]
        assert len(rest) == 46
        for i, b in enumerate(rest):
            self.place[b] = ('a', 8 * i) if i < 32 else ('v', self.WV + 8 * (i - 32))
    def blk(self, b):
        k, r = self.place[b]; assert k != 'l'
        return vr(r, 8, k)

S_WS = 4
S_H = 6; S_W = 7
S_SRD = 8
S_CP0 = 12
S_CP1 = 14
S_CPR = 16
S_CM = 18
S_HB = 20
S_CML = 22
S_CML2 = 24
S_BW = 26
S_BR = 50
S_GS = 49
S_XF = 58
S_XE = 78
S_XP = 80
S_EP = 28; S_EM = 29; S_STEP = 30; S_C = 31; S_SPIN = 32
S_PLO = 33; S_PHI = 34; S_T = 35; S_T2 = 36; S_T3 = 37
S_XH1 = 38
S_XH0 = 40
S_XR = 42
S_DBG = 44
S_TMP = 46
S_STAMP = 60

def add64(a, dst, base, off):
    a(f's_add_u32 s{dst}, s{base}, {off}')
    a(f's_addc_u32 s{dst+1}, s{base+1}, 0')

def chain_setup(a, r):
    L = r.tD; N = r.x3; G = r.aT; L16 = r.aOr
    T = r.R
    a(f'v_lshrrev_b32 v{T}, 6, v0')
    a(f'v_and_b32 v{L}, 63, v0')
    a(f'v_readfirstlane_b32 s{S_W}, v{T}')
    a(f'v_and_b32 v{N}, 15, v{L}')
    a(f'v_lshrrev_b32 v{G}, 4, v{L}')
    a(f's_mov_b32 s{S_PLO}, 0x05040100'); a(f's_mov_b32 s{S_PHI}, 0x07060302')
    a(f's_mov_b32 s{S_XH1}, 0xcccccccc'); a(f's_mov_b32 s{S_XH1+1}, 0xcccccccc')
    a(f's_mov_b32 s{S_XH0}, 0x33333333'); a(f's_mov_b32 s{S_XH0+1}, 0x33333333')
    a(f's_mov_b32 s{S_XR}, 0x000f000f'); a(f's_mov_b32 s{S_XR+1}, 0')
    a(f's_mov_b32 s{S_C}, {f2u(math.log2(math.e) / math.sqrt(128.0)):#x}')
    a(f'v_lshlrev_b32 v{L16}, 4, v{L}')
    a(f's_mul_i32 s{S_T}, s{S_W}, 36864'); a(f'v_add_u32 v{r.aW}, s{S_T}, v{L16}')
    KBG = r.aK; VO = r.aV
    a(f'v_lshrrev_b32 v{T}, 1, v{G}'); a(f'v_lshlrev_b32 v{T}, 4, v{T}')
    a(f'v_and_b32 v{T+1}, 1, v{G}'); a(f'v_lshl_add_u32 v{KBG}, v{T+1}, 2, v{T}')
    a(f's_lshl_b32 s{S_T}, s{S_H}, 8'); a(f's_lshl_b32 s{S_T2}, s{S_W}, 6'); a(f's_add_u32 s{S_T}, s{S_T}, s{S_T2}')
    a(f'v_lshlrev_b32 v{VO}, 14, v{KBG}'); a(f'v_lshl_add_u32 v{VO}, v{N}, 2, v{VO}'); a(f'v_add_u32 v{VO}, s{S_T}, v{VO}')
    a(f's_mov_b32 s{S_SRD+2}, {4*MB}'); a(f's_mov_b32 s{S_SRD+3}, 0x20000')
    NB = 11
    PK = 88
    groups = []
    for m in 'kvq':
        for s in range(8):
            for rg in range(2): groups.append((m, s, rg))
    def put(block, rg, i, src_hi, src_lo, sel, pend):
        k, base = r.place[block]
        if k == 'v': a(f'v_perm_b32 v{base+4*rg+i}, v{src_hi}, v{src_lo}, s{sel}')
        elif k == 'a':
            a(f'v_perm_b32 v{pend+i}, v{src_hi}, v{src_lo}, s{sel}')
            a(f'v_accvgpr_write_b32 a{base+4*rg+i}, v{pend+i}')
        else:
            a(f'v_perm_b32 v{pend+i}, v{src_hi}, v{src_lo}, s{sel}')
            if i == 3:
                a(f'ds_write_b128 v{r.aW}, {vr(pend,4)} offset:{base+1024*rg}')
                a('s_waitcnt lgkmcnt(0)')
    DEPTH = 6
    kaoff = {'q': KA_WQ, 'k': KA_WK, 'v': KA_WV}
    cur = None
    def issue(gi):
        nonlocal cur
        m, s, rg = groups[gi]
        if cur != m:
            a(f's_load_dwordx2 s[{S_SRD}:{S_SRD+1}], s[0:1], {kaoff[m]}'); a('s_waitcnt lgkmcnt(0)'); cur = m
        if rg == 0:
            a(f's_xor_b32 s{S_T3}, s{S_W}, {s&3}'); a(f's_lshl_b32 s{S_T3}, s{S_T3}, 20')
        b = (gi % NB) * 8
        for jj in range(8):
            a(f's_add_u32 s{S_T}, s{S_T3}, {(4*(s>>2)+64*rg+DELTA2[jj])*8192}')
            a(f'buffer_load_dword v{b+jj}, v{VO}, s[{S_SRD}:{S_SRD+3}], s{S_T} offen')
    def consume(gi):
        m, s, rg = groups[gi]; b = (gi % NB) * 8
        for t in range(2):
            for i in range(4):
                put((m, t, s), rg, i, b+2*i+1, b+2*i, S_PHI if t else S_PLO, PK + 4*t)
    for gi in range(len(groups) + DEPTH):
        if gi < len(groups): issue(gi)
        if gi >= DEPTH:
            left = min(len(groups), gi + 1) - (gi - DEPTH) - 1
            a(f's_waitcnt vmcnt({8*left})')
            consume(gi - DEPTH)
    a(f's_load_dwordx2 s[{S_SRD}:{S_SRD+1}], s[0:1], {KA_WO}')
    a(f's_lshl_b32 s{S_T}, s{S_H}, 17'); a(f's_lshl_b32 s{S_T2}, s{S_W}, 8'); a(f's_add_u32 s{S_T}, s{S_T}, s{S_T2}')
    a(f'v_lshlrev_b32 v{VO}, 10, v{KBG}'); a(f'v_lshl_add_u32 v{VO}, v{N}, 4, v{VO}'); a(f'v_add_u32 v{VO}, s{S_T}, v{VO}')
    a('s_waitcnt lgkmcnt(0)')
    og = [(k, rg) for k in range(2) for rg in range(2)]
    def oissue(gi):
        k, rg = og[gi]; b = (gi % 2) * 32
        for jj in range(8):
            a(f's_mov_b32 s{S_T}, {(64*k+32*rg+DELTA[jj])*1024}')
            a(f'buffer_load_dwordx4 {vr(b+4*jj,4)}, v{VO}, s[{S_SRD}:{S_SRD+3}], s{S_T} offen')
    def ocons(gi):
        k, rg = og[gi]; b = (gi % 2) * 32
        for t in range(8):
            for i in range(4):
                put(('o', t, k), rg, i, b+4*(2*i+1)+(t>>1), b+4*(2*i)+(t>>1), S_PHI if t & 1 else S_PLO, PK + 4*(t&1))
    oissue(0); oissue(1)
    for gi in range(4):
        a(f's_waitcnt vmcnt({8 if gi < 3 else 0})')
        ocons(gi)
        if gi + 2 < 4: oissue(gi + 2)
    T = r.R
    a(f'v_bfe_u32 v{T}, v{N}, 1, 1')
    a(f'v_mul_u32_u24 v{r.idx}, 0xaaaa, v{T}'); a(f'v_add_u32 v{r.idx}, 0x4444, v{r.idx}')
    a(f'v_lshlrev_b32 v{T}, 2, v{G}'); a(f'v_sub_u32 v{T}, v{N}, v{T}')
    a(f'v_mov_b32 v{T+1}, 0x3f80'); a(f'v_mov_b32 v{T+2}, 0x3f800000')
    def onehot(dst, nregs):
        for i in range(nregs):
            a(f'v_cmp_eq_u32 vcc, {2*i}, v{T}'); a(f'v_cndmask_b32 v{dst+i}, 0, v{T+1}, vcc')
            a(f'v_cmp_eq_u32 vcc, {2*i+1}, v{T}'); a(f'v_cndmask_b32 v{dst+i}, v{dst+i}, v{T+2}, vcc')
    onehot(r.I, 2)
    a(f'v_mov_b32 v{T}, v{N}'); onehot(r.E, 4)
    for i in range(4): a(f'v_mov_b32 v{r.One+i}, 0x3f803f80')
    a(f'v_mov_b32 v{r.PZ+1}, 0'); a(f'v_mov_b32 v{r.Z}, 0'); a(f'v_mov_b32 v{r.Z+1}, 0')
    a(f'v_lshrrev_b32 v{T}, 2, v{L}'); a(f'v_lshlrev_b32 v{T}, 11, v{T}'); a(f'v_and_b32 v{T+1}, 3, v{L}')
    a(f'v_lshl_add_u32 v{r.aPst}, v{T+1}, 4, v{T}')
    a(f's_lshl_b32 s{S_T}, s{S_W}, 15'); a(f's_lshl_b32 s{S_T2}, s{S_H}, 6'); a(f's_add_u32 s{S_T}, s{S_T}, s{S_T2}')
    a(f's_add_u32 s{S_T}, s{S_T}, {W.CP}'); add64(a, S_CP0, S_WS, f's{S_T}'); add64(a, S_CP1, S_CP0, 64 * 2048)
    a(f's_lshr_b32 s{S_T}, s{S_W}, 1'); a(f's_lshl_b32 s{S_T}, s{S_T}, 6'); a(f's_lshl_b32 s{S_T2}, s{S_H}, 1'); a(f's_add_u32 s{S_T}, s{S_T}, s{S_T2}')
    a(f's_and_b32 s{S_T2}, s{S_W}, 1'); a(f's_add_u32 s{S_T}, s{S_T}, s{S_T2}')
    assert W.CP >= LM and W.CM >= LM
    a(f's_lshl_b32 s{S_T2}, s{S_T}, 11'); a(f's_add_u32 s{S_T2}, s{S_T2}, {W.CP - LM}'); add64(a, S_CPR, S_WS, f's{S_T2}')
    add64(a, S_CM, S_WS, W.CM); add64(a, S_CML, S_WS, W.CM - LM); add64(a, S_CML2, S_WS, W.CM - LM + 4096)
    a(f's_lshr_b32 s{S_T2}, s{S_T}, 4'); a(f's_lshl_b32 s{S_T2}, s{S_T2}, 10')
    a(f's_and_b32 s{S_T3}, s{S_T}, 3'); a(f's_lshl_b32 s{S_T3}, s{S_T3}, 8'); a(f's_add_u32 s{S_T2}, s{S_T2}, s{S_T3}')
    a(f's_bfe_u32 s{S_T3}, s{S_T}, 0x20002'); a(f's_lshl_b32 s{S_T3}, s{S_T3}, 6'); a(f's_add_u32 s{S_T2}, s{S_T2}, s{S_T3}')
    a(f'v_bfe_u32 v{T}, v{L}, 1, 1'); a(f'v_lshlrev_b32 v{T}, 5, v{T}')
    a(f'v_and_b32 v{T+1}, 1, v{L}'); a(f'v_lshl_add_u32 v{T}, v{T+1}, 3, v{T}')
    a(f'v_and_b32 v{T+1}, 1, v{G}'); a(f'v_lshl_add_u32 v{T}, v{T+1}, 4, v{T}')
    a(f'v_add_u32 v{r.aMst}, s{S_T2}, v{T}')
    a(f's_bfe_u32 s{S_T2}, s{S_T}, 0x20002'); a(f's_lshl_b32 s{S_T2}, s{S_T2}, 11')
    a(f's_bfe_u32 s{S_T3}, s{S_T}, 0x20004'); a(f's_lshl_b32 s{S_T3}, s{S_T3}, 8'); a(f's_add_u32 s{S_T2}, s{S_T2}, s{S_T3}')
    a(f's_and_b32 s{S_T3}, s{S_T}, 3'); a(f's_lshl_b32 s{S_T3}, s{S_T3}, 6'); a(f's_add_u32 s{S_T2}, s{S_T2}, s{S_T3}')
    a(f's_lshr_b32 s{S_T3}, s{S_T}, 6'); a(f's_lshl_b32 s{S_T3}, s{S_T3}, 3'); a(f's_add_u32 s48, s{S_T2}, s{S_T3}')
    a(f's_lshl_b32 s{S_T}, s{S_W}, 10'); a(f's_add_u32 s{S_T}, s{S_T}, {LM}'); a(f'v_add_u32 v{r.aMw}, s{S_T}, v{L16}')
    a(f'v_lshrrev_b32 v{T}, 1, v{G}'); a(f'v_lshlrev_b32 v{T}, 8, v{T}'); a(f'v_and_b32 v{T+1}, 1, v{G}')
    a(f'v_lshl_add_u32 v{T}, v{T+1}, 5, v{T}'); a(f'v_lshl_add_u32 v{T}, v{N}, 4, v{T}')
    a(f's_lshl_b32 s{S_T}, s{S_W}, 9'); a(f's_add_u32 s{S_T}, s{S_T}, {LM}'); a(f'v_add_u32 v{r.aOw}, s{S_T}, v{T}')
    a(f'v_lshrrev_b32 v{T}, 3, v{N}'); a(f'v_lshlrev_b32 v{T}, 8, v{T}'); a(f'v_and_b32 v{T+1}, 7, v{N}'); a(f'v_lshl_add_u32 v{T}, v{T+1}, 4, v{T}')
    a(f'v_lshl_add_u32 v{T}, v{G}, 9, v{T}')
    a(f's_lshl_b32 s{S_T}, s{S_W}, 11'); a(f's_add_u32 s{S_T2}, s{S_T}, {HB_REC+HB_K}'); a(f'v_add_u32 v{r.aK}, s{S_T2}, v{T}')
    a(f'v_lshlrev_b32 v{T}, 4, v{N}'); a(f'v_lshl_add_u32 v{T}, v{G}, 9, v{T}')
    a(f's_add_u32 s{S_T2}, s{S_T}, {HB_REC+HB_V}'); a(f'v_add_u32 v{r.aV}, s{S_T2}, v{T}')
    a(f'v_lshrrev_b32 v{T}, 2, v{N}'); a(f'v_lshlrev_b32 v{T}, 5, v{T}'); a(f'v_and_b32 v{T+1}, 1, v{N}'); a(f'v_lshl_add_u32 v{T}, v{T+1}, 4, v{T}')
    a(f'v_lshl_add_u32 v{T}, v{G}, 7, v{T}')
    a(f's_lshl_b32 s{S_T}, s{S_W}, 9'); a(f's_add_u32 s{S_T2}, s{S_T}, {HB_KM}'); a(f'v_add_u32 v{r.aKm}, s{S_T2}, v{T}')
    a(f'v_lshlrev_b32 v{T}, 3, v{L}'); a(f's_add_u32 s{S_T2}, s{S_T}, {HB_VM}'); a(f'v_add_u32 v{r.aVm}, s{S_T2}, v{T}')
    a(f's_lshl_b32 s{S_T}, s{S_W}, 12'); a(f's_add_u32 s{S_T}, s{S_T}, {2*HB_REC}')
    a(f'v_and_b32 v{T}, 31, v{L}'); a(f'v_lshlrev_b32 v{T}, 7, v{T}'); a(f'v_add_u32 v{r.aT}, s{S_T}, v{T}')
    a(f'v_and_b32 v{T}, 2, v{L}'); a(f'v_cmp_eq_u32 vcc, 0, v{T}')
    a(f'v_add_u32 v{T}, 4096, v{r.aMw}'); a(f'v_and_b32 v{T+1}, 1, v{G}'); a(f'v_lshlrev_b32 v{T+1}, 5, v{T+1}'); a(f'v_xor_b32 v{T}, v{T}, v{T+1}')
    a(f'v_cndmask_b32 v{r.aOw}, v{T}, v{r.aOw}, vcc')
    a(f'v_add_u32 v{r.aOr}, {LM}, v{L16}')
    for k, x in ((1, r.x1), (2, r.x2), (3, r.x3)): a(f'v_xor_b32 v{x}, {1024*k}, v{r.aMw}')
    a(f's_cmp_eq_u32 s{S_W}, 0'); a(f's_cselect_b32 s{S_XF}, 0xff, 0'); a(f's_mov_b32 s{S_XF+1}, 0')
    a(f's_cmp_eq_u32 s{S_W}, 1'); a(f's_cselect_b32 s{S_XP}, -1, 0'); a(f's_mov_b32 s{S_XP+1}, 0')
    a(f's_cmp_lt_u32 s{S_W}, 2'); a(f's_cselect_b64 s[{S_XE}:{S_XE+1}], -1, 0')

def kv_loads_k(a, r, f='sc1'):
    a(f'global_load_dwordx4 {vr(r.KX,4)}, v{r.aK}, s[{S_HB}:{S_HB+1}] {f}')
    a(f'global_load_dwordx4 {vr(r.KX+4,4)}, v{r.aK}, s[{S_HB}:{S_HB+1}] offset:128 {f}')
def kv_loads_v(a, r, f='sc1'):
    a(f'global_load_dwordx4 {vr(r.VX,4)}, v{r.aV}, s[{S_HB}:{S_HB+1}] {f}')
    a(f'global_load_dwordx4 {vr(r.VX+4,4)}, v{r.aV}, s[{S_HB}:{S_HB+1}] offset:256 {f}')

def ring_prefetch(a, r):
    for e in range(4):
        o = r.place[('q', 1, e)][1]
        a(f'ds_read_b128 {vr(r.R+8*e,4)}, v{r.aW} offset:{o}')
        a(f'ds_read_b128 {vr(r.R+8*e+4,4)}, v{r.aW} offset:{o+1024}')

def zero_regs(a, base, n):
    for i in range(n): a(f'v_mov_b32 v{base+i}, 0')

DPPQ = 'quad_perm:[2,3,0,1] row_mask:0xf bank_mask:0xf'

def chain_half(a, r, half, stf, fail, stamps=False, p1e=1, ds1=0, d1e=0, d1l=96, d2e=64, es=48, lpos=1, bk1=1, bkg=0, nomax=0,
               nokv=0, nopub=0, notouch=0, pubf='sc1', tf='sc1', kvf='sc1', stampsel=None, trace=None, nocomm=0):
    H = W.H[half]
    R, A, M = r.R, r.A, r.M
    Aq = [A, A+4]; Ak = [A+8, A+12]; Av = [A+16, A+20]
    ACC = {'q': Aq, 'k': Ak, 'v': Av}
    ns = [0]; sid = [0]
    def st(name=None):
        if name is None:
            name = sid[0]; sid[0] += 1
        if stamps and ((stampsel is None and isinstance(name, int)) or (stampsel is not None and name in stampsel)):
            a(f's_memtime s[{S_STAMP+2*ns[0]}:{S_STAMP+2*ns[0]+1}]'); ns[0] += 1
    def tr(k):
        if trace is not None: a(f's_memtime s[{S_STAMP+2*k}:{S_STAMP+2*k+1}]')
    def smf(acc, aop, b): a(f'v_smfmac_f32_16x16x64_bf16 {vr(acc,4)}, {vr(aop,4)}, {b}, v{r.idx}')
    def m32(d, x, y, c): a(f'v_mfma_f32_16x16x32_bf16 {vr(d,4)}, {vr(x,4)}, {vr(y,4)}, {vr(d,4) if c else 0}')
    def m16(d, x, y, c): a(f'v_mfma_f32_16x16x16_bf16 {vr(d,4)}, {vr(x,2)}, {vr(y,2)}, {vr(d,4) if c else 0}')
    def ldh(dst, b, hh):
        a(f'ds_read_b128 {vr(dst+4*hh,4)}, v{r.aW} offset:{r.place[b][1]+1024*hh}')
    def nops(c):
        n = c // 4
        while n > 0:
            k = min(n, 16); a(f's_nop {k-1}'); n -= k
    def add0(c): a(f'v_add_f32 v{c}, v{c}, v{c+2}')
    def add1(c): a(f'v_add_f32 v{c+1}, v{c+1}, v{c+3}')
    def cvt(d, x, y): a(f'v_cvt_pk_bf16_f32 v{d}, v{x}, v{y}')
    def pka(d, x, y): a(f'v_pk_add_f32 {vr(d,2)}, {vr(x,2)}, {vr(y,2)}')
    XR = [r.aMw, r.x1, r.x2, r.x3]
    def e_load(j): a(f'global_load_dwordx4 {vr(M+4*j,4)}, v{XR[j]}, s[{S_CML}:{S_CML+1}] sc1')
    def e_loads(gap=0):
        for j in range(4):
            e_load(j)
            if j < 3: nops(gap)
    def l_load(): a(f'global_load_dwordx4 {vr(M+16,4)}, v{r.aMw}, s[{S_CML2}:{S_CML2+1}] sc1')
    PL = [M+24, M+16]; PD = A+24
    def p_loads(k=0):
        a(f'global_load_dwordx4 {vr(PL[k],4)}, v{r.aOr}, s[{S_CPR}:{S_CPR+1}] sc1')
        a(f'global_load_dwordx4 {vr(PL[k]+4,4)}, v{r.aOr}, s[{S_CPR}:{S_CPR+1}] offset:1024 sc1')
    X0 = f's_mov_b64 exec, s[{S_XH0}:{S_XH0+1}]'; XA = 's_mov_b64 exec, -1'
    a(f's_lshl_b32 s{S_T}, s{S_H}, 21'); a(f's_add_u32 s{S_T}, s{S_T}, {H.HB - HB_REC}'); add64(a, S_HB, S_WS, f's{S_T}')
    a(f's_mov_b32 s{S_STEP}, 0')
    kv_loads_k(a, r); kv_loads_v(a, r)
    add64(a, S_HB, S_HB, HB_REC)
    LA = a.newlabel('Lc_A'); Ldone = a.newlabel('Lc_done'); Llate = a.newlabel('Lc_late')
    Lr = [a.newlabel('Lc_rE') for _ in range(5)]; Lc = [a.newlabel('Lc_cE') for _ in range(5)]
    if stamps:
        for k in range(16): a(f's_mov_b32 s{84+k}, 0')
    a(f's_mov_b32 s{S_SPIN}, 0')
    zero_regs(a, A, 24); ring_prefetch(a, r)
    e_loads()
    a('.p2align 6')
    a.label(LA)
    ringof = {('q',1,0):0, ('q',1,1):1, ('q',1,2):2, ('q',1,3):3, ('q',1,4):0, ('q',1,5):1, ('q',1,6):2, ('q',0,6):3, ('q',1,7):0, ('q',0,7):1}
    def S(m, t, s):
        b = (m, t, s)
        smf(ACC[m][t], M+4*s, vr(R+8*ringof[b], 8) if b in ringof else r.blk(b))
    t0 = A+28
    def chk(j):
        return [f'v_bitop3_b32 v{t0}, v{M+4*j}, v{M+4*j+2}, s{S_EM} bitop3:0x7e', f'v_and_b32 v{t0}, 1, v{t0}', f'v_cmp_ne_u32 vcc, 0, v{t0}']
    a('s_waitcnt vmcnt(3) lgkmcnt(0)')
    for l in chk(0): a(l)
    a(f's_cbranch_vccnz {Lr[0]}')
    a.label(Lc[0])
    st()
    tr(5)
    order = (('q',1),('q',0),('k',0),('k',1),('v',0),('v',1))
    dsq = {1: [(R, ('q',1,4), 0), (R, ('q',1,4), 1)], 2: [(R+8, ('q',1,5), 0), (R+8, ('q',1,5), 1)]}
    cnt = 0
    for sl in range(3):
        c = chk(sl+1)
        for i, (m, t) in enumerate(order):
            S(m, t, sl)
            if cnt == lpos: l_load()
            cnt += 1
            if i == 1: a(f's_waitcnt vmcnt({(2-sl) + (1 if cnt > lpos else 0)})')
            if i in (1, 2, 3): a(c[i-1])
            if i in (0, 4) and sl in dsq: ldh(*dsq[sl][i//4])
        a(f's_cbranch_vccnz {Lr[sl+1]}')
        a.label(Lc[sl+1])
    assert lpos < 14
    c = chk(4)
    S('q',1,3)
    a('s_waitcnt vmcnt(0)')
    a(f'ds_write_b128 v{r.aMw}, {vr(M+16,4)}')
    a(c[0])
    S('q',0,3); a(c[1])
    S('k',0,3); a(c[2])
    S('k',1,3); ldh(R+24, ('q',0,6), 0)
    S('v',0,3); ldh(R+24, ('q',0,6), 1)
    a(f's_cbranch_vccnz {Lr[4]}')
    a.label(Lc[4])
    a('s_waitcnt lgkmcnt(2)'); a('s_barrier')
    tr(6)
    a(f'ds_read_b128 {vr(M+20,4)}, v{XR[1]}')
    S('v',1,3); a(f'ds_read_b128 {vr(M+24,4)}, v{XR[2]}')
    S('q',1,4); a(f'ds_read_b128 {vr(M+28,4)}, v{XR[3]}')
    S('q',0,4); ldh(R+16, ('q',1,6), 0)
    S('k',0,4); ldh(R+16, ('q',1,6), 1)
    S('k',1,4); ldh(R+0, ('q',1,7), 0)
    a('s_waitcnt lgkmcnt(5)')
    S('q',1,5); ldh(R+0, ('q',1,7), 1)
    S('q',0,5); ldh(R+8, ('q',0,7), 0)
    S('k',0,5); ldh(R+8, ('q',0,7), 1)
    a('s_waitcnt lgkmcnt(6)')
    S('k',0,6); ldh(M, ('o',0,0), 0)
    S('k',0,7); ldh(M, ('o',0,0), 1)
    S('q',0,6); ldh(M+8, ('o',0,1), 0)
    if not notouch:
        a(f's_mov_b32 exec_hi, 0')
        a(f'global_load_dword v{r.tD}, v{r.aT}, s[{S_HB}:{S_HB+1}] {tf}')
        a(f's_mov_b32 exec_hi, -1')
    S('k',1,5); ldh(M+8, ('o',0,1), 1)
    a('s_waitcnt lgkmcnt(4)')
    TA = [R+24, R+26]; TD = [R+28, R+8]; T = R+12; SX = [R+16, R+20]; SM = R+0
    S('q',0,7); add0(Ak[0]); add1(Ak[0])
    S('k',1,6); cvt(TA[0], Ak[0], Ak[0]+1)
    S('k',1,7); add0(Aq[0])
    S('q',1,6); add1(Aq[0])
    S('q',1,7); cvt(TA[0]+1, Aq[0], Aq[0]+1)
    st()
    vq = [(t, s) for s in range(4, 8) for t in range(2)]
    def V(n=1):
        for _ in range(n):
            t, s = vq.pop(0); S('v', t, s)
    add0(Ak[1]); add1(Ak[1])
    m16(TD[0], TA[0], r.I, 0)
    cvt(TA[1], Ak[1], Ak[1]+1)
    add0(Aq[1]); add1(Aq[1])
    cvt(TA[1]+1, Aq[1], Aq[1]+1)
    a(f's_mov_b64 vcc, s[{S_XH1}:{S_XH1+1}]')
    m16(TD[1], TA[1], r.I, 0)
    V(1)
    for i in range(4): cvt(T+i, TD[0]+i, TD[1]+i)
    m32(SX[0], r.KX, T, 0); m32(SX[1], r.KX+4, T, 0); m32(SM, T, T, 0)
    V(1)
    for i in range(4): a(f'v_cndmask_b32_dpp v{SX[1]+i}, v{SX[0]+i}, v{SX[1]+i}, vcc {DPPQ}')
    SO = SX[1]; SMO = SM+1
    a(f'ds_write_b128 v{r.aMw}, {vr(SO,4)} offset:{LS-LM}')
    a(f'v_cndmask_b32_dpp v{SMO}, v{SM}, v{SM+1}, vcc {DPPQ}')
    a(f'ds_write_b32 v{r.aMw}, v{SMO} offset:{LS-LM+4096}')
    V(1)
    if not nopub:
        a(X0); a(f'global_store_dwordx4 v{r.aKm}, {vr(T,4)}, s[{S_HB}:{S_HB+1}] {pubf}'); a(XA)
    V(1)
    if not nokv: kv_loads_k(a, r, kvf)
    V(1)
    a('s_waitcnt lgkmcnt(0)'); a('s_barrier')
    st()
    tr(7)
    RD = [R+4, R+8, R+24]; RM = R+28
    for j in range(3): a(f'ds_read_b128 {vr(RD[j],4)}, v{XR[j+1]} offset:{LS-LM}')
    for j in range(3): a(f'ds_read_b32 v{RM+j}, v{XR[j+1]} offset:{LS-LM+4096}')
    V(3)
    assert not vq
    P = R+16; MX = R+2; TM = R+3
    a('s_waitcnt lgkmcnt(4)')
    for i in range(4): a(f'v_add_f32 v{SO+i}, v{SO+i}, v{RD[0]+i}')
    a('s_waitcnt lgkmcnt(0)')
    pka(RD[1], RD[1], RD[2]); pka(RD[1]+2, RD[1]+2, RD[2]+2)
    a(f'v_add_f32 v{SMO}, v{SMO}, v{RM}'); a(f'v_add_f32 v{RM+1}, v{RM+1}, v{RM+2}')
    pka(SO, SO, RD[1]); pka(SO+2, SO+2, RD[1]+2)
    a(f'v_add_f32 v{SMO}, v{SMO}, v{RM+1}')
    E = [SMO, SO, SO+1, SO+2, SO+3]
    if not nomax:
        a(f'v_max3_f32 v{MX}, v{SO}, v{SO+1}, v{SO+2}')
        a(f'v_max3_f32 v{MX}, v{MX}, v{SO+3}, v{SMO}')
        pka(Av[0], Av[0], Av[0]+2); pka(Av[1], Av[1], Av[1]+2)
        a(f'v_max_f32_dpp v{MX}, v{MX}, v{MX} {DPPQ}')
        a(f'v_mov_b32 v{TM}, v{MX}')
        cvt(r.VM, Av[0], Av[0]+1); cvt(r.VM+2, Av[1], Av[1]+1)
        a(f'v_permlane16_swap_b32 v{MX}, v{TM}')
        a(f'v_max_f32 v{MX}, v{MX}, v{TM}')
        a(f'v_mov_b32 v{TM}, v{MX}')
        a(f'v_permlane32_swap_b32 v{MX}, v{TM}')
        a(f'v_max_f32 v{MX}, v{MX}, v{TM}')
        a(f'v_mul_f32 v{MX}, s{S_C}, v{MX}')
        for e in E: a(f'v_fma_f32 v{e}, v{e}, s{S_C}, -v{MX}')
    else:
        for e in E: a(f'v_mul_f32 v{e}, s{S_C}, v{e}')
        pka(Av[0], Av[0], Av[0]+2); pka(Av[1], Av[1], Av[1]+2)
        cvt(r.VM, Av[0], Av[0]+1); cvt(r.VM+2, Av[1], Av[1]+1)
    D = [R+8, R+12]; SUM = R+24
    for e in E[:3]: a(f'v_exp_f32 v{e}, v{e}')
    a(f'v_mov_b32_dpp v{TM}, v{SMO} {DPPQ}')
    cvt(P, SO, SO+1)
    cvt(r.PZ, SMO, TM)
    a(f'v_exp_f32 v{E[3]}, v{E[3]}')
    a(f'v_mov_b32_dpp v{P+2}, v{P} {DPPQ}')
    m16(SUM, r.One, r.PZ, 0)
    a(f'v_exp_f32 v{E[4]}, v{E[4]}')
    m16(D[0], r.VM, r.PZ, 0)
    cvt(P+1, SO+2, SO+3)
    a(f's_cmp_eq_u32 s{S_STEP}, 63')
    m16(D[1], r.VM+2, r.PZ, 0)
    a(f'v_mov_b32_dpp v{P+3}, v{P+1} {DPPQ}')
    a(f's_cbranch_scc1 {Ldone}')
    st()
    ldh(M+16, ('o',1,0), 0)
    m32(SUM, r.One, P, 1); ldh(M+16, ('o',1,0), 1)
    m32(D[0], r.VX, P, 1); ldh(M+24, ('o',1,1), 0)
    m32(D[1], r.VX+4, P, 1); ldh(M+24, ('o',1,1), 1)
    a(f'v_rcp_f32 v{SUM}, v{SUM}')
    a(f'v_mov_b32 v{R+4}, v{r.VM}'); a(f'v_mov_b32 v{R+5}, v{r.VM+2}')
    for t in range(2):
        for i in range(4): a(f'v_mul_f32 v{D[t]+i}, v{D[t]+i}, v{SUM}')
    OP = R+0
    for i in range(4): cvt(OP+i, D[0]+i, D[1]+i)
    a(f'ds_write_b128 v{r.aOw}, {vr(OP,4)}')
    a(f'v_mfma_f32_32x32x8_bf16 {vr(A,16)}, {vr(r.Z,2)}, {vr(r.Z,2)}, 0')
    ldh(R+8, ('o',6,1), 0); ldh(R+8, ('o',6,1), 1); ldh(R+16, ('o',7,0), 0); ldh(R+16, ('o',7,0), 1)
    a(f'v_mfma_f32_32x32x8_bf16 {vr(A+16,16)}, {vr(r.Z,2)}, {vr(r.Z,2)}, 0')
    a('s_waitcnt lgkmcnt(4)'); a('s_barrier')
    st()
    if trace is not None:
        lt = a.newlabel('Lc_t'); a(f's_cmp_lg_u32 s{S_STEP}, {trace}'); a(f's_cbranch_scc1 {lt}')
        _ = [a(f's_mov_b32 s{84+k}, s{S_STAMP+2*k}') for k in range(8)]
        a.label(lt)
    tr(0)
    O = R+24
    a(f'ds_read_b128 {vr(O,4)}, v{r.aOr}'); a(f'ds_read_b128 {vr(O+4,4)}, v{r.aOr} offset:1024')
    if not nopub: a(f'global_store_dwordx2 v{r.aVm}, {vr(R+4,2)}, s[{S_HB}:{S_HB+1}] {pubf}')
    if not nokv: kv_loads_v(a, r, kvf)
    add64(a, S_HB, S_HB, HB_REC)
    a(f's_xor_b32 s{S_EM}, s{S_EM}, 1'); a(f's_add_u32 s{S_STEP}, s{S_STEP}, 1'); a(f's_mov_b32 s{S_SPIN}, 0')
    land = {('o',0,0): M, ('o',0,1): M+8, ('o',1,0): M+16, ('o',1,1): M+24, ('o',6,0): R, ('o',6,1): R+8, ('o',7,0): R+16, ('o',7,1): M}
    def ob(b): return vr(land[b], 8) if b in land else r.blk(b)
    def tp(t):
        c = A+4*t
        return [f'v_add_f32 v{c}, v{c}, v{c+2}', f'v_add_f32 v{c+1}, v{c+1}, v{c+3}']
    def c01(u):
        c = A+16*u
        return [f'v_cvt_pk_bf16_f32 v{c+2}, v{c+1}, v{c+5}', f'v_cvt_pk_bf16_f32 v{c}, v{c}, v{c+4}', f'v_and_or_b32 v{c}, v{c}, -2, s{S_EP}']
    def c23(u):
        c = A+16*u
        return [f'v_cvt_pk_bf16_f32 v{c+3}, v{c+9}, v{c+13}', f'v_cvt_pk_bf16_f32 v{c+1}, v{c+8}, v{c+12}',
                f'global_store_dwordx4 v{r.aPst}, {vr(c,4)}, s[{(S_CP0,S_CP1)[u]}:{(S_CP0,S_CP1)[u]+1}] {stf}']
    after = {3: tp(0)[:1], 4: tp(0)[1:], 5: tp(1)[:1], 6: tp(1)[1:], 7: c01(0)[:2] + tp(2)[:1], 8: tp(2)[1:] + c01(0)[2:] + tp(3) + c23(0),
             11: tp(4)[:1], 12: tp(4)[1:], 13: tp(5)[:1], 14: tp(5)[1:],
             15: c01(1) + tp(6) + tp(7) + c23(1)}
    lq = [(R, ('o',6,0), 0), (R, ('o',6,0), 1), (M, ('o',7,1), 0), (M, ('o',7,1), 1)]
    a(f's_cmp_ge_u32 s{S_W}, 2')
    a('s_waitcnt lgkmcnt(0)')
    for t in range(8):
        for k in range(2):
            i = 2*t+k
            if i == 12: a('s_waitcnt lgkmcnt(1)')
            if i == 15: a('s_waitcnt lgkmcnt(0)')
            smf(A+4*t, O+4*k, ob(('o', t, k)))
            al = after.get(i, [])
            for j, l in enumerate(al):
                if i == 15 and j == len(al) - p1e:
                    a(f's_mov_b64 exec, s[{S_XE}:{S_XE+1}]'); nops(d1e); p_loads(); a(XA); nops(ds1)
                a(l)
                if i == 8 and j == len(al) - 1: tr(2)
            if lq and i in (0, 1, 2, 9): ldh(*lq.pop(0))
    if nocomm: ns[0] = 9
    st()
    tr(1)
    def acc_stamps():
        if stamps and ns[0]:
            a('s_waitcnt lgkmcnt(0)')
            n = ns[0]
            for k in range(1, n):
                a(f's_sub_u32 s{S_T}, s{S_STAMP+2*k}, s{S_STAMP+2*k-2}'); a(f's_add_u32 s{84+k}, s{84+k}, s{S_T}')
            a(f's_sub_u32 s{S_T}, s{S_STAMP}, s83'); a(f's_mov_b32 s83, s{S_STAMP+2*(n-1)}')
            a(f's_cmp_eq_u32 s{S_STEP}, 1'); a(f's_cselect_b32 s{S_T}, 0, s{S_T}'); a(f's_add_u32 s84, s84, s{S_T}')
    retr = []
    def red_head(k):
        m32(PD, r.E, PL[k], 0)
        a(f'v_bitop3_b32 v{t0}, v{PL[k]}, v{PL[k]+4}, s{S_EP} bitop3:0x7e')
        a(f'v_and_b32 v{t0}, 1, v{t0}')
        m32(PD, r.E, PL[k]+4, 1)
        a(f'v_cmp_ne_u32 vcc, 0, v{t0}')
    def reduce(late, younger):
        Lok = a.newlabel('Lc_p1'); Lr1 = a.newlabel('Lc_r1'); retr.append((Lr1, Lok, late))
        a(f's_waitcnt vmcnt({younger})')
        tr(3)
        red_head(0)
        if late: e_loads()
        a(f's_cbranch_vccnz {Lr1}')
        a.label(Lok)
        for ror in (8, 4):
            for i in range(4):
                a(f'v_add_f32_dpp v{PD+i}, v{PD+i}, v{PD+i} row_ror:{ror} row_mask:0xf bank_mask:0xf')
        cvt(PD, PD, PD+1); cvt(PD+1, PD+2, PD+3)
        a(f'v_and_or_b32 v{PD}, v{PD}, -2, s{S_EM}')
        a(f's_mov_b64 exec, s[{S_XR}:{S_XR+1}]')
        a(f'global_store_dwordx2 v{r.aMst}, {vr(PD,2)}, s[{S_CM}:{S_CM+1}] {stf}')
        a(XA)
        tr(4)
        a(f's_xor_b32 s{S_EP}, s{S_EP}, 1')
    a(f's_cbranch_scc1 {Llate}')
    if p1e == 0: nops(d1e); p_loads()
    ring_prefetch(a, r)
    if bk1: nops(bkg); p_loads(1)
    zero_regs(a, A, 24); acc_stamps()
    reduce(False, (1 if p1e else 0) + (2 if bk1 else 0))
    nops(d2e)
    e_loads(es)
    a(f's_branch {LA}')
    a.label(Llate)
    ring_prefetch(a, r)
    nops(d1l)
    p_loads()
    zero_regs(a, A, 24); acc_stamps()
    if bk1: p_loads(1)
    reduce(True, 2 if bk1 else 0)
    a(f's_branch {LA}')
    def spin_or_fail():
        a(f's_add_u32 s{S_SPIN}, s{S_SPIN}, 1'); a(f's_cmp_lt_u32 s{S_SPIN}, 0x40000'); a(f's_cbranch_scc0 {fail}')
    for lr, lok, late in retr:
        a.label(lr)
        lk2 = a.newlabel('Lc_ok2')
        if stamps: a(f's_add_u32 s94, s94, 1')
        if bk1:
            l2 = a.newlabel('Lc_r2')
            p_loads(0); a(f's_waitcnt vmcnt({6 if late else 2})'); red_head(1); a(f's_cbranch_vccz {lk2}')
            a.label(l2)
            spin_or_fail()
            p_loads(1); a('s_waitcnt vmcnt(2)'); red_head(0); a(f's_cbranch_vccz {lk2}')
            p_loads(0); a('s_waitcnt vmcnt(2)'); red_head(1); a(f's_cbranch_vccnz {l2}')
        else:
            spin_or_fail()
            p_loads(0); a('s_waitcnt vmcnt(0)'); red_head(0); a(f's_cbranch_vccnz {lr}')
        a.label(lk2)
        if late: e_loads()
        a(f's_branch {lok}')
    for j in range(5):
        a.label(Lr[j])
        if stamps: a(f's_add_u32 s{95 if j == 0 else 93}, s{95 if j == 0 else 93}, {1 if j == 0 else 63}')
        n = 0
        if j < 4:
            for jj in range(j, 4): e_load(jj); n += 1
        if j == 4 or 6*j > lpos: l_load(); n += 1
        spin_or_fail()
        a(f's_waitcnt vmcnt({n-1})')
        for l in chk(j): a(l)
        if j == 4: a(f'ds_write_b128 v{r.aMw}, {vr(M+16,4)}')
        a(f's_cbranch_vccnz {Lr[j]}')
        if j == 4: a('s_waitcnt lgkmcnt(0)')
        a(f's_branch {Lc[j]}')
    a.label(Ldone)
    if not nopub:
        a(f'v_mov_b32 v{R+4}, v{r.VM}'); a(f'v_mov_b32 v{R+5}, v{r.VM+2}')
        a(f'global_store_dwordx2 v{r.aVm}, {vr(R+4,2)}, s[{S_HB}:{S_HB+1}] {pubf}')

def chain_init_comm(a, r, stf):
    T = r.R
    a(f's_load_dwordx2 s[{S_TMP}:{S_TMP+1}], s[0:1], {KA_MEM0}')
    a(f'v_and_b32 v{T}, 0x30, v{r.aOr}'); a(f'v_bfe_u32 v{T+1}, v{r.aOr}, 8, 1'); a(f'v_lshl_add_u32 v{T}, v{T+1}, 10, v{T}')
    a(f'v_add_u32 v{T}, s48, v{T}')
    a(f's_xor_b32 s{S_T}, s{S_EP}, 1')
    for i in range(4): a(f'v_mov_b32 v{T+4+i}, s{S_T}')
    a('s_waitcnt lgkmcnt(0)')
    a(f'global_load_dwordx2 {vr(T+2,2)}, v{T}, s[{S_TMP}:{S_TMP+1}]')
    a(f'global_store_dwordx4 v{r.aOr}, {vr(T+4,4)}, s[{S_CPR}:{S_CPR+1}] {stf}')
    a(f'global_store_dwordx4 v{r.aOr}, {vr(T+4,4)}, s[{S_CPR}:{S_CPR+1}] offset:1024 {stf}')
    a('s_waitcnt vmcnt(0)')
    a(f'v_and_or_b32 v{T+2}, v{T+2}, -2, s{S_EM}')
    a(f's_mov_b64 exec, s[{S_XR}:{S_XR+1}]')
    a(f'global_store_dwordx2 v{r.aMst}, {vr(T+2,2)}, s[{S_CM}:{S_CM+1}] {stf}')
    a('s_mov_b64 exec, -1')
    a('s_waitcnt vmcnt(0)')

def group_barrier(a, r, dbg_off, count, fail):
    T = r.R
    l1 = a.newlabel('Lgb'); l2 = a.newlabel('Lgb'); l3 = a.newlabel('Lgb')
    a('s_barrier')
    a(f'v_mov_b32 v{T}, {dbg_off}'); a(f'v_mov_b32 v{T+1}, 1')
    a(f's_cmp_lg_u32 s{S_W}, 0'); a(f's_cbranch_scc1 {l1}')
    a('s_mov_b64 exec, 1')
    a(f'global_atomic_add v{T}, v{T+1}, s[{S_DBG}:{S_DBG+1}] sc1')
    a('s_mov_b64 exec, -1')
    a.label(l1)
    a(f's_mov_b32 s{S_SPIN}, 0')
    a.label(l2)
    a(f'global_load_dword v{T+2}, v{T}, s[{S_DBG}:{S_DBG+1}] sc1')
    a('s_waitcnt vmcnt(0)')
    a(f'v_readfirstlane_b32 s{S_T}, v{T+2}')
    a(f's_cmp_ge_u32 s{S_T}, {count}'); a(f's_cbranch_scc1 {l3}')
    a('s_sleep 2')
    a(f's_add_u32 s{S_SPIN}, s{S_SPIN}, 1'); a(f's_cmp_lt_u32 s{S_SPIN}, 0x40000'); a(f's_cbranch_scc1 {l2}')
    a(f's_branch {fail}')
    a.label(l3)

def chain_kernel_standalone(half, stamps=False, **kw):
    a = Asm(); a._lbl = 1000 * (half + 1); r = ChainRegs()
    end = a.newlabel('Lc_end')
    a(f's_load_dwordx2 s[{S_WS}:{S_WS+1}], s[0:1], {KA_WS}')
    a(f's_load_dwordx2 s[{S_DBG}:{S_DBG+1}], s[0:1], {KA_DBG}')
    a(f's_getreg_b32 s{S_T}, hwreg(HW_REG_XCC_ID, 0, 4)')
    a('s_waitcnt lgkmcnt(0)')
    a(f's_cmp_lg_u32 s{S_T}, 0'); a(f's_cbranch_scc1 {end}')
    l0 = a.newlabel('Lc')
    a('v_mov_b32 v1, 0'); a('v_mov_b32 v2, 1'); a('v_cmp_eq_u32 vcc, 0, v0')
    a('s_and_saveexec_b64 s[12:13], vcc'); a(f's_cbranch_execz {l0}')
    a(f'global_atomic_add v3, v1, v2, s[{S_DBG}:{S_DBG+1}] sc0 sc1'); a('s_waitcnt vmcnt(0)')
    a('ds_write_b32 v1, v3'); a('s_waitcnt lgkmcnt(0)')
    a.label(l0)
    a('s_mov_b64 exec, s[12:13]'); a('s_barrier')
    a('ds_read_b32 v3, v1'); a('s_waitcnt lgkmcnt(0)'); a(f'v_readfirstlane_b32 s{S_H}, v3'); a('s_barrier')
    a(f's_cmp_ge_u32 s{S_H}, 32'); a(f's_cbranch_scc1 {end}')
    if stamps: a('s_memtime s[56:57]')
    chain_setup(a, r)
    a(f's_mov_b32 s{S_EP}, 0'); a(f's_mov_b32 s{S_EM}, 0'); a(f's_mov_b32 s{S_GS}, 0')
    chain_init_comm(a, r, '')
    group_barrier(a, r, 4, 32, end)
    if stamps: a('s_memtime s[52:53]')
    chain_half(a, r, half, '', end, stamps, **kw)
    if stamps:
        a('s_memtime s[54:55]'); a('s_waitcnt lgkmcnt(0)')
        a('s_sub_u32 s96, s52, s56'); a('s_sub_u32 s97, s54, s52')
        for k in range(16): a(f'v_mov_b32 v{k}, s{84+k}')
        a(f's_lshl_b32 s{S_T}, s{S_H}, 2'); a(f's_add_u32 s{S_T}, s{S_T}, s{S_W}'); a(f's_lshl_b32 s{S_T}, s{S_T}, 6')
        a(f's_add_u32 s{S_T}, s{S_T}, {W.FLAGS + 32768}')
        a(f'v_mov_b32 v16, s{S_T}')
        for k in range(4): a(f'global_store_dwordx4 v16, {vr(4*k,4)}, s[{S_WS}:{S_WS+1}] offset:{16*k}')
    a.label(end)
    a('s_waitcnt vmcnt(0)'); a('s_endpgm')
    return a.lines

if __name__ == '__main__':
    import sys
    rep = []
    lines = chain_kernel_standalone(0, stamps=True)
    lines = fix_hazards(lines, rep)
    for e in check_waits(lines, 'chain'): print(e)
    for x in rep: print(x)
    t = assemble_file('', [('chain0_kernel', 256, 256, 163840)], [('chain0_kernel', lines, 512, 256)])
    open('chain_test.s', 'w').write(t)
    print(len(lines))

def autostamp(lines, start, stride, n=9):
    out = []; inb = False; idx = 0; k = 0; names = []
    for l in lines:
        if l == '; BODY_BEGIN': inb = True
        if l == '; BODY_END':
            while k < n:
                out.append(f's_memtime s[{S_STAMP+2*k}:{S_STAMP+2*k+1}]'); k += 1
            inb = False
        if l.startswith('s_cbranch_vccnz'): l = 's_cbranch_vccnz ' + f'Lnx_{len(out)}\nLnx_{len(out)}:'
        if inb and is_instr(l.split('\n')[0]):
            if k < n and idx == start + k * stride:
                out.append(f's_memtime s[{S_STAMP+2*k}:{S_STAMP+2*k+1}]'); k += 1
            names.append(l.split('\n')[0]); idx += 1
        out += l.split('\n')
    return out, names
```

```python
MB = 1 << 20
class WS: pass
W = WS()
off = 0
def _a(n):
    global off
    r = off; off += (n + 4095) // 4096 * 4096
    return r
W.FLAGS = _a(256 * 1024)
W.CP = _a(256 * 1024)
W.CM = _a(8 * 1024)
W.CB = _a(4 * 1024)
W.X0 = _a(2 * MB)
W.H = []
for hf in range(2):
    h = WS()
    h.XNA = _a(2 * MB); h.XNB = _a(2 * MB); h.YA = _a(2 * MB)
    h.QA = _a(2 * MB); h.KA = _a(2 * MB); h.VA = _a(2 * MB); h.OA = _a(2 * MB); h.X1 = _a(2 * MB)
    h.PT = _a(16 * MB)
    h.X2 = _a(2 * MB)
    W.H.append(h)
off = (off + 2 * MB - 1) // (2 * MB) * (2 * MB)
for hf in range(2):
    W.H[hf].HB = _a(64 * MB)
HB_K, HB_V, HB_Q, HB_KM, HB_VM, HB_REC = 0, 8192, 16384, 24576, 26624, 32768
W.END = off
assert off <= 256 * MB
KA_X, KA_WQKV, KA_WOA, KA_BX, KA_MEM0, KA_WQ, KA_WK, KA_WV, KA_WO, KA_SEG, KA_OUT, KA_DBG, KA_WS = [8 * i for i in range(13)]
```

```python
from asmlib import *
from layout import *
import math, struct
def f2u(f): return struct.unpack('<I', struct.pack('<f', f))[0]

S_WS = 4; S_W = 7; S_SRD = 8; S_WSRD = 12
S_T = 16; S_T2 = 17; S_T3 = 18; S_OFF = 19
S_OUT = 20
S_IN = 22
S_TASK = 24; S_A = 25; S_B = 26; S_CNT = 27; S_XO = 28; S_BUF = 29; S_K0 = 30; S_K1 = 31
S_P = 32
S_M = 34

def add64(a, dst, base, off):
    a(f's_add_u32 s{dst}, s{base}, {off}'); a(f's_addc_u32 s{dst+1}, s{base+1}, 0')

def common_prologue(a, L, L16):
    a(f's_load_dwordx2 s[{S_WS}:{S_WS+1}], s[0:1], {KA_WS}')
    a(f'v_lshrrev_b32 v{L16}, 6, v0'); a(f'v_and_b32 v{L}, 63, v0')
    a(f'v_readfirstlane_b32 s{S_W}, v{L16}')
    a(f'v_lshlrev_b32 v{L16}, 4, v{L}')
    a('s_waitcnt lgkmcnt(0)')
    a(f's_mov_b32 s{S_WSRD}, s{S_WS}'); a(f's_mov_b32 s{S_WSRD+1}, s{S_WS+1}'); a(f's_mov_b32 s{S_WSRD+2}, {256*MB}'); a(f's_mov_b32 s{S_WSRD+3}, 0x20000')

def pi_of(a, dst, src, t):
    a(f'v_and_b32 v{dst}, 0x13, v{src}')
    a(f'v_bfe_u32 v{t}, v{src}, 2, 1'); a(f'v_lshl_or_b32 v{dst}, v{t}, 3, v{dst}')
    a(f'v_bfe_u32 v{t}, v{src}, 3, 1'); a(f'v_lshl_or_b32 v{dst}, v{t}, 2, v{dst}')

def vpos16(a, dst, f, hh_src, t):
    a(f'v_and_b32 v{t}, 1, v{f}'); a(f'v_lshrrev_b32 v{dst}, 1, v{f}'); a(f'v_lshl_or_b32 v{dst}, v{t}, 4, v{dst}')
    a(f'v_lshlrev_b32 v{dst}, 4, v{dst}'); a(f'v_lshrrev_b32 v{t}, 5, v{hh_src}'); a(f'v_lshl_or_b32 v{dst}, v{t}, 9, v{dst}')

def load_wslices(a, mats, stride, L, t0, t1, t2):
    a(f'v_bfe_u32 v{t0}, v{L}, 2, 2'); a(f's_mov_b32 s{S_T}, {stride}'); a(f'v_mul_lo_u32 v{t0}, v{t0}, s{S_T}')
    a(f'v_lshrrev_b32 v{t2}, 4, v{L}'); a(f'v_lshl_add_u32 v{t0}, v{t2}, 6, v{t0}')
    a(f'v_and_b32 v{t2}, 3, v{L}'); a(f'v_lshl_add_u32 v{t0}, v{t2}, 4, v{t0}')
    a(f'v_lshrrev_b32 v{t1}, 5, v{L}'); a(f'v_lshlrev_b32 v{t1}, 11, v{t1}')
    a(f'v_bfe_u32 v{t2}, v{L}, 2, 2'); a(f'v_lshl_add_u32 v{t1}, v{t2}, 6, v{t1}')
    a(f'v_bfe_u32 v{t2}, v{L}, 4, 1'); a(f'v_lshl_add_u32 v{t1}, v{t2}, 5, v{t1}')
    a(f'v_and_b32 v{t2}, 1, v{L}'); a(f'v_lshl_add_u32 v{t1}, v{t2}, 4, v{t1}')
    a(f'v_bfe_u32 v{t2}, v{L}, 1, 1'); a(f'v_lshl_add_u32 v{t1}, v{t2}, 3, v{t1}')
    a(f's_lshl_b32 s{S_T}, s{S_W}, 8'); a(f'v_add_u32 v{t1}, s{S_T}, v{t1}'); a(f'v_add_u32 v{t2}, 65536, v{t1}')
    a(f's_mul_i32 s{S_K0}, s{S_W}, {64*stride}'); a(f's_add_u32 s{S_K0}, s{S_K0}, s{S_OFF}')
    a(f's_lshl_b32 s{S_K1}, s{S_W}, 14')
    a(f's_mov_b32 s{S_SRD+3}, 0x20000')
    chunks = [(m, c) for m in range(len(mats)) for c in range(2)]
    cur = [None]
    def issue(ci):
        m, c = chunks[ci]; ka, nb, const, _, _ = mats[m]
        if cur[0] != ka:
            a(f's_load_dwordx2 s[{S_SRD}:{S_SRD+1}], s[0:1], {ka}'); a(f's_mov_b32 s{S_SRD+2}, {nb}'); a('s_waitcnt lgkmcnt(0)'); cur[0] = ka
        for i in range(16):
            a(f's_add_u32 m0, s{S_K1}, {(ci&1)*65536 + i*1024}')
            a(f's_add_u32 s{S_T}, s{S_K0}, {const + (256*c + 4*i)*stride}')
            a(f'buffer_load_dwordx4 v{t0}, s[{S_SRD}:{S_SRD+3}], s{S_T} offen lds')
    issue(0)
    for ci in range(len(chunks)):
        if ci + 1 < len(chunks):
            issue(ci + 1); a('s_waitcnt vmcnt(16)')
        else: a('s_waitcnt vmcnt(0)')
        a('s_barrier')
        m, c = chunks[ci]; _, _, _, kind, base = mats[m]
        n = 0
        for kb in range(16):
            for half in range(2):
                r = base + 4*(16*c+kb) + 2*half
                a(f'ds_read_b64_tr_b16 {vr(r,2,kind)}, v{t2 if ci&1 else t1} offset:{(4*kb+half)*1024}')
                n += 1
                if n % 12 == 0: a('s_waitcnt lgkmcnt(4)')
        a('s_waitcnt lgkmcnt(0)'); a('s_barrier')

def dma_x(a, L16, soff_sgpr, buf_sgpr, flags=''):
    a(f's_lshl_b32 s{S_T2}, s{S_W}, 13'); a(f's_add_u32 s{S_T3}, s{S_T2}, s{soff_sgpr}'); a(f's_add_u32 s{S_T2}, s{S_T2}, s{buf_sgpr}')
    for i in range(8):
        if i % 4 == 0:
            a(f's_add_u32 m0, s{S_T2}, {i*1024}'); a(f's_add_u32 s{S_T}, s{S_T3}, {i*1024}')
        a(f'buffer_load_dwordx4 v{L16}, s[{S_WSRD}:{S_WSRD+3}], s{S_T} offen offset:{(i%4)*1024} {flags} lds')

def mf(d, x, y, c): return f'v_mfma_f32_32x32x16_bf16 {vr(d,16)}, {x}, {y}, {c}'

def gemm_core(a, xaddr, XR, tiles, hooks={}):
    for kb in range(3): a(f'ds_read_b128 {vr(XR+4*kb,4)}, v{xaddr} offset:{kb*1024}')
    for kb in range(32):
        if kb + 3 < 32: a(f'ds_read_b128 {vr(XR+4*((kb+3)%4),4)}, v{xaddr} offset:{(kb+3)*1024}')
        a(f's_waitcnt lgkmcnt({min(3, 31-kb)})')
        x = vr(XR+4*(kb%4), 4)
        for acc, kind, wb, swap in tiles:
            w = vr(wb+4*kb, 4, kind)
            a(mf(acc, x if swap else w, w if swap else x, vr(acc,16) if kb else 0))
        if kb in hooks: hooks[kb]()

def pack_store(a, acc, addr, base, flags='', scale=None, offs=(0, 1024)):
    for j in range(2):
        if scale is not None:
            for i in range(8): a(f'v_mul_f32 v{acc+8*j+i}, s{scale}, v{acc+8*j+i}')
        for i in range(4): a(f'v_cvt_pk_bf16_f32 v{acc+8*j+i}, v{acc+8*j+2*i}, v{acc+8*j+2*i+1}')
        a(f'global_store_dwordx4 v{addr}, {vr(acc+8*j,4)}, s[{base}:{base+1}] offset:{offs[j]} {flags}')

def proj_kernel(half, isB, nwg=256):
    a = Asm(); a._lbl = 2000 + 100*half + 50*isB
    H = W.H[half]
    L, L16, t0, t1, t2, vq, vk, vv, xa = range(1, 10)
    XR = 12; ACC = 28; WV = 128
    end = a.newlabel('Lp_end')
    a(f's_cmp_ge_u32 s2, {nwg}'); a(f's_cbranch_scc1 {end}')
    common_prologue(a, L, L16)
    nsl = 32 if isB else 4
    ngr = nwg // nsl
    a(f's_and_b32 s{S_A}, s2, {nsl-1}'); a(f's_lshr_b32 s{S_B}, s2, {int(math.log2(nsl))}')
    a(f's_lshl_b32 s{S_OFF}, s{S_A}, 8')
    xn = H.XNB if isB else H.XNA
    a(f's_lshl_b32 s{S_XO}, s{S_B}, 15'); a(f's_add_u32 s{S_XO}, s{S_XO}, {xn}'); a(f's_mov_b32 s{S_BUF}, {128*1024}')
    dma_x(a, L16, S_XO, S_BUF)
    if isB: mats = [(KA_WK, 4*MB, 0, 'a', 128), (KA_WV, 4*MB, 0, 'v', WV), (KA_WQ, 4*MB, 0, 'a', 0)]; stride = 8192
    else: mats = [(KA_WQKV, 1536*1024, 1024, 'a', 128), (KA_WQKV, 1536*1024, 2048, 'v', WV), (KA_WQKV, 1536*1024, 0, 'a', 0)]; stride = 3072
    load_wslices(a, mats, stride, L, t0, t1, t2)
    ro = (HB_Q, HB_K, HB_V) if isB else (0, H.KA - H.QA, H.VA - H.QA)
    a(f's_lshl_b32 s{S_T}, s{S_W}, 11')
    a(f's_add_u32 s{S_T2}, s{S_T}, {ro[0]}'); a(f'v_add_u32 v{vq}, s{S_T2}, v{L16}')
    a(f's_add_u32 s{S_T2}, s{S_T}, {ro[1]}'); a(f'v_add_u32 v{vk}, s{S_T2}, v{L16}')
    pi_of(a, t0, L, t1); vpos16(a, vv, t0, L, t1)
    a(f's_add_u32 s{S_T2}, s{S_T}, {ro[2]}'); a(f'v_add_u32 v{vv}, s{S_T2}, v{vv}')
    a(f's_lshl_b32 s{S_T}, s{S_A}, {21 if isB else 13}'); a(f's_lshl_b32 s{S_T2}, s{S_B}, 15'); a(f's_add_u32 s{S_T}, s{S_T}, s{S_T2}')
    a(f's_add_u32 s{S_T}, s{S_T}, {H.HB if isB else H.QA}'); add64(a, S_OUT, S_WS, f's{S_T}')
    a(f's_mov_b32 s{S_M}, {f2u(0.25*math.log2(math.e)):#x}')
    lp = a.newlabel('Lp_loop'); nod = a.newlabel('Lp_nod')
    a.label(lp)
    a(f'v_add_u32 v{xa}, s{S_BUF}, v{L16}')
    a(f's_add_u32 s{S_B}, s{S_B}, {ngr}'); a(f's_xor_b32 s{S_BUF}, s{S_BUF}, {128*1024}')
    a(f's_add_u32 s{S_XO}, s{S_XO}, {ngr*32768}')
    a(f's_cmp_ge_u32 s{S_B}, 64'); a(f's_cbranch_scc1 {nod}')
    dma_x(a, L16, S_XO, S_BUF)
    a.label(nod)
    gemm_core(a, xa, XR, [(ACC+16, 'a', 128, False), (ACC+32, 'v', WV, True), (ACC, 'a', 0, False)])
    a('s_waitcnt vmcnt(0)'); a('s_barrier')
    pack_store(a, ACC+16, vk, S_OUT); pack_store(a, ACC+32, vv, S_OUT); pack_store(a, ACC, vq, S_OUT, scale=None if isB else S_M)
    add64(a, S_OUT, S_OUT, ngr*32768)
    a(f's_cmp_lt_u32 s{S_B}, 64'); a(f's_cbranch_scc1 {lp}')
    a.label(end); a('s_endpgm')
    return a.lines

def woa_kernel(half, nwg=256):
    a = Asm(); a._lbl = 3000 + 100*half
    H = W.H[half]
    L, L16, t0, t1, t2, vo, xa = range(1, 8)
    XR = 12; ACC = 28; WV = 128
    end = a.newlabel('Lw_end')
    a(f's_cmp_ge_u32 s2, {nwg}'); a(f's_cbranch_scc1 {end}')
    common_prologue(a, L, L16)
    a(f's_and_b32 s{S_A}, s2, 3'); a(f's_lshr_b32 s{S_B}, s2, 2')
    a(f's_lshl_b32 s{S_OFF}, s{S_A}, 8')
    a(f's_lshl_b32 s{S_XO}, s{S_B}, 15'); a(f's_add_u32 s{S_XO}, s{S_XO}, {H.OA}'); a(f's_mov_b32 s{S_BUF}, {128*1024}')
    dma_x(a, L16, S_XO, S_BUF)
    load_wslices(a, [(KA_WOA, 512*1024, 0, 'v', WV)], 1024, L, t0, t1, t2)
    a(f's_lshl_b32 s{S_T}, s{S_W}, 11'); a(f'v_add_u32 v{vo}, s{S_T}, v{L16}')
    a(f's_lshl_b32 s{S_T}, s{S_A}, 13'); a(f's_lshl_b32 s{S_T2}, s{S_B}, 15'); a(f's_add_u32 s{S_T}, s{S_T}, s{S_T2}')
    a(f's_add_u32 s{S_T}, s{S_T}, {H.YA}'); add64(a, S_OUT, S_WS, f's{S_T}')
    a(f'v_add_u32 v{xa}, s{S_BUF}, v{L16}')
    gemm_core(a, xa, XR, [(ACC, 'v', WV, False)])
    pack_store(a, ACC, vo, S_OUT)
    a.label(end); a('s_endpgm')
    return a.lines

def rb_body(a, npart, xin, xin_rm, part, pstride, segstride, xout, xout_rm, xn, ldf='', stf=''):
    L, L16, af, ar, t0, t1, t2, t3, sm, la = range(1, 11)
    X = 12; F = 20; P = 36
    a(f'v_lshrrev_b32 v{t0}, 3, v{L}'); a(f'v_and_b32 v{t1}, 7, v{L}')
    a(f'v_lshlrev_b32 v{af}, 9, v{t0}'); a(f'v_lshl_add_u32 v{af}, v{t1}, 4, v{af}')
    a(f's_lshl_b32 s{S_T}, s{S_W}, 13'); a(f's_lshl_b32 s{S_T2}, s{S_B}, 7'); a(f's_add_u32 s{S_T}, s{S_T}, s{S_T2}'); a(f's_add_u32 s{S_T}, s{S_T}, 2048')
    a(f'v_add_u32 v{af}, s{S_T}, v{af}')
    a(f'v_lshlrev_b32 v{ar}, 10, v{t1}'); a(f'v_lshl_add_u32 v{ar}, v{t0}, 4, v{ar}')
    a(f's_lshl_b32 s{S_T}, s{S_A}, 15'); a(f's_lshl_b32 s{S_T2}, s{S_B}, 13'); a(f's_add_u32 s{S_T}, s{S_T}, s{S_T2}'); a(f's_lshl_b32 s{S_T2}, s{S_W}, 8'); a(f's_add_u32 s{S_T}, s{S_T}, s{S_T2}')
    a(f'v_add_u32 v{ar}, s{S_T}, v{ar}')
    a(f'v_lshlrev_b32 v{la}, 4, v{t1}')
    a(f's_lshl_b32 s{S_T3}, s{S_A}, 15')
    if xin_rm:
        a(f's_load_dwordx2 s[{S_IN}:{S_IN+1}], s[0:1], {xin}'); a('s_waitcnt lgkmcnt(0)')
        for i in range(2): a(f'global_load_dwordx4 {vr(X+4*i,4)}, v{ar}, s[{S_IN}:{S_IN+1}] offset:{128*i}')
    else:
        a(f's_add_u32 s{S_T}, s{S_T3}, {xin}'); add64(a, S_IN, S_WS, f's{S_T}')
        for i in range(2): a(f'global_load_dwordx4 {vr(X+4*i,4)}, v{af}, s[{S_IN}:{S_IN+1}] offset:{4096*i-2048} {ldf}')
    if npart:
        a(f's_mul_i32 s{S_T}, s{S_A}, {segstride}'); a(f's_add_u32 s{S_T}, s{S_T}, {part}'); add64(a, S_P, S_WS, f's{S_T}')
        for p in range(npart):
            for i in range(2): a(f'global_load_dwordx4 {vr(P+8*p+4*i,4)}, v{af}, s[{S_P}:{S_P+1}] offset:{4096*i-2048} {ldf}')
            if p + 1 < npart: add64(a, S_P, S_P, pstride)
        a(f's_mov_b32 s{S_M}, 0xffff0000')
        for p in range(npart):
            a(f's_waitcnt vmcnt({2*(npart-1-p)})')
            for d in range(8):
                r = P+8*p+d
                if p == 0:
                    a(f'v_lshlrev_b32 v{F+2*d}, 16, v{r}'); a(f'v_and_b32 v{F+2*d+1}, s{S_M}, v{r}')
                else:
                    a(f'v_lshlrev_b32 v{t0}, 16, v{r}'); a(f'v_and_b32 v{r}, s{S_M}, v{r}')
                    a(f'v_add_f32 v{F+2*d}, v{F+2*d}, v{t0}'); a(f'v_add_f32 v{F+2*d+1}, v{F+2*d+1}, v{r}')
        for d in range(8):
            if npart > 1:
                a(f'v_cvt_pk_bf16_f32 v{t1}, v{F+2*d}, v{F+2*d+1}')
                a(f'v_lshlrev_b32 v{F+2*d}, 16, v{t1}'); a(f'v_and_b32 v{F+2*d+1}, s{S_M}, v{t1}')
            a(f'v_lshlrev_b32 v{t0}, 16, v{X+d}'); a(f'v_and_b32 v{t1}, s{S_M}, v{X+d}')
            a(f'v_add_f32 v{t0}, v{t0}, v{F+2*d}'); a(f'v_add_f32 v{t1}, v{t1}, v{F+2*d+1}')
            a(f'v_cvt_pk_bf16_f32 v{X+d}, v{t0}, v{t1}')
    else:
        a(f's_mov_b32 s{S_M}, 0xffff0000'); a('s_waitcnt vmcnt(0)')
    if xout_rm:
        a(f's_load_dwordx2 s[{S_OUT}:{S_OUT+1}], s[0:1], {xout}'); a('s_waitcnt lgkmcnt(0)')
        for i in range(2): a(f'global_store_dwordx4 v{ar}, {vr(X+4*i,4)}, s[{S_OUT}:{S_OUT+1}] offset:{128*i}')
    else:
        a(f's_add_u32 s{S_T}, s{S_T3}, {xout}'); add64(a, S_OUT, S_WS, f's{S_T}')
        for i in range(2): a(f'global_store_dwordx4 v{af}, {vr(X+4*i,4)}, s[{S_OUT}:{S_OUT+1}] offset:{4096*i-2048} {stf}')
    if xn is None: return
    for d in range(8):
        a(f'v_lshlrev_b32 v{F+2*d}, 16, v{X+d}'); a(f'v_and_b32 v{F+2*d+1}, s{S_M}, v{X+d}')
    def rowsum(off):
        a(f'v_add_f32_dpp v{sm}, v{sm}, v{sm} row_ror:8 row_mask:0xf bank_mask:0xf')
        for sw in ('16', '32'):
            a(f'v_mov_b32 v{t0}, v{sm}'); a(f'v_permlane{sw}_swap_b32 v{sm}, v{t0}'); a(f'v_add_f32 v{sm}, v{sm}, v{t0}')
        a(f's_lshl_b32 s{S_T}, s{S_W}, 2'); a(f'v_add_u32 v{t0}, s{S_T}, v{la}')
        a(f'ds_write_b32 v{t0}, v{sm} offset:{off}'); a('s_waitcnt lgkmcnt(0)'); a('s_barrier')
        a(f'ds_read_b128 {vr(P,4)}, v{la} offset:{off}'); a('s_waitcnt lgkmcnt(0)')
        a(f'v_add_f32 v{P}, v{P}, v{P+1}'); a(f'v_add_f32 v{P+2}, v{P+2}, v{P+3}'); a(f'v_add_f32 v{sm}, v{P}, v{P+2}')
        a(f'v_mul_f32 v{sm}, {f2u(1/512):#x}, v{sm}')
    def rbf(r):
        a(f'v_cvt_pk_bf16_f32 v{r}, v{r}, v{r}'); a(f'v_and_b32 v{r}, s{S_M}, v{r}')
    a(f'v_add_f32 v{sm}, v{F}, v{F+1}')
    for i in range(2, 16): a(f'v_add_f32 v{sm}, v{sm}, v{F+i}')
    rowsum(0)
    a(f'v_mov_b32 v{t3}, v{sm}')
    a(f'v_sub_f32 v{t0}, v{F}, v{t3}'); a(f'v_mul_f32 v{sm}, v{t0}, v{t0}')
    for i in range(1, 16):
        a(f'v_sub_f32 v{t0}, v{F+i}, v{t3}'); a(f'v_fmac_f32 v{sm}, v{t0}, v{t0}')
    rowsum(128)
    rbf(sm); a(f'v_add_f32 v{sm}, {f2u(1e-5):#x}, v{sm}'); rbf(sm)
    a(f'v_sqrt_f32 v{sm}, v{sm}'); rbf(sm); a(f'v_rcp_f32 v{sm}, v{sm}')
    rbf(t3)
    for d in range(8):
        a(f'v_sub_f32 v{t0}, v{F+2*d}, v{t3}'); a(f'v_sub_f32 v{t1}, v{F+2*d+1}, v{t3}')
        a(f'v_cvt_pk_bf16_f32 v{t1}, v{t0}, v{t1}')
        a(f'v_lshlrev_b32 v{t0}, 16, v{t1}'); a(f'v_and_b32 v{t1}, s{S_M}, v{t1}')
        a(f'v_mul_f32 v{t0}, v{t0}, v{sm}'); a(f'v_mul_f32 v{t1}, v{t1}, v{sm}')
        a(f'v_cvt_pk_bf16_f32 v{P+d}, v{t0}, v{t1}')
    a(f's_add_u32 s{S_T}, s{S_T3}, {xn}'); add64(a, S_OUT, S_WS, f's{S_T}')
    for i in range(2): a(f'global_store_dwordx4 v{af}, {vr(P+4*i,4)}, s[{S_OUT}:{S_OUT+1}] offset:{4096*i-2048} {stf}')

def rb_kernel(kind, half):
    a = Asm(); a._lbl = 4000 + 100*half + 10*kind
    H = W.H[half]
    end = a.newlabel('Lr_end')
    a(f's_cmp_ge_u32 s2, 256'); a(f's_cbranch_scc1 {end}')
    common_prologue(a, 1, 2)
    a(f's_lshr_b32 s{S_A}, s2, 2'); a(f's_and_b32 s{S_B}, s2, 3')
    xprev = W.X0 if half == 0 else W.H[0].X2
    if kind == 0: rb_body(a, 0, KA_X, True, 0, 0, 0, W.X0, False, H.XNA)
    elif kind == 1: rb_body(a, 1, xprev, False, H.YA, 0, 32768, H.X1, False, H.XNB)
    elif half == 0: rb_body(a, 8, H.X1, False, H.PT, 32768, 8*32768, H.X2, False, W.H[1].XNA)
    else: rb_body(a, 8, H.X1, False, H.PT, 32768, 8*32768, KA_OUT, True, None)
    a.label(end); a('s_endpgm')
    return a.lines

def att_kernel(half, nwg=256):
    a = Asm(); a._lbl = 5000 + 100*half
    H = W.H[half]
    L, L16, t0, t1, t2, ak, av, idx, lw, mx = range(1, 11)
    Q = 12; QN = 16; K0 = 20; C = 24; O = 40; D = [56, 72, 88]; KF = 104
    MG = 168
    end = a.newlabel('La_end')
    a(f's_cmp_ge_u32 s2, {nwg}'); a(f's_cbranch_scc1 {end}')
    common_prologue(a, L, L16)
    npg = nwg // 32
    a(f's_and_b32 s{S_A}, s2, 31'); a(f's_lshr_b32 s{S_B}, s2, 5')
    pi_of(a, t0, L, t1)
    a(f'v_and_b32 v{t1}, 32, v{L}'); a(f'v_add_u32 v{ak}, v{t0}, v{t1}'); a(f'v_lshlrev_b32 v{ak}, 4, v{ak}')
    a(f'v_and_b32 v{t0}, 15, v{t0}'); a(f's_and_b32 s{S_T}, s{S_A}, 1'); a(f's_lshl_b32 s{S_T}, s{S_T}, 4'); a(f'v_add_u32 v{t0}, s{S_T}, v{t0}')
    vpos16(a, av, t0, L, t1)
    a(f'v_mov_b32 v{idx}, 0xdddd')
    a(f's_mul_i32 s{S_T}, s{S_W}, 3072'); a(f'v_add_u32 v{lw}, s{S_T}, v{L16}')
    a(f's_lshl_b32 s{S_T}, s{S_A}, 10'); a(f's_lshl_b32 s{S_T2}, s{S_B}, 15'); a(f's_add_u32 s{S_T2}, s{S_T2}, s{S_T}')
    a(f's_add_u32 s{S_T3}, s{S_T2}, {H.QA}'); add64(a, S_IN, S_WS, f's{S_T3}')
    a(f's_add_u32 s{S_T3}, s{S_T2}, {H.OA}'); add64(a, S_OUT, S_WS, f's{S_T3}')
    a(f'global_load_dwordx4 {vr(QN,4)}, v{L16}, s[{S_IN}:{S_IN+1}]')
    a(f's_add_u32 s{S_K0}, s{S_T}, {H.KA}')
    a(f'buffer_load_dwordx4 {vr(K0,4)}, v{ak}, s[{S_WSRD}:{S_WSRD+3}], s{S_K0} offen')
    a(f's_lshl_b32 s{S_T2}, s{S_W}, 19'); a(f's_add_u32 s{S_K0}, s{S_K0}, s{S_T2}')
    a(f's_lshr_b32 s{S_K1}, s{S_A}, 1'); a(f's_lshl_b32 s{S_K1}, s{S_K1}, 11'); a(f's_add_u32 s{S_K1}, s{S_K1}, s{S_T2}'); a(f's_add_u32 s{S_K1}, s{S_K1}, {H.VA}')
    a(f'v_mov_b32 v{t0}, 0x3f803f80')
    for i in range(128): a(f'v_accvgpr_write_b32 a{i}, v{t0}')
    a(f's_mov_b32 s{S_M}, 0x0000ffff'); a(f's_mov_b32 s{S_M+1}, 0x0000ffff')
    for t in range(16):
        a(f's_add_u32 s{S_T}, s{S_K0}, {t*32768}')
        a(f'buffer_load_dwordx4 {vr(KF+4*t,4)}, v{ak}, s[{S_WSRD}:{S_WSRD+3}], s{S_T} offen')
        a(f's_add_u32 s{S_T}, s{S_K1}, {t*32768}')
        a(f's_mov_b64 exec, s[{S_M}:{S_M+1}]')
        for b in range(2): a(f'buffer_load_dwordx4 {vr(8*t+4*b,4,"a")}, v{av}, s[{S_WSRD}:{S_WSRD+3}], s{S_T} offen offset:{1024*b}')
        a('s_mov_b64 exec, -1')
    a(f's_mov_b32 s{S_BUF}, 0'); a(f's_mov_b32 s{S_CNT}, 0')
    lp = a.newlabel('La_loop'); run = a.newlabel('La_run'); slow = a.newlabel('La_slow'); nom = a.newlabel('La_nom'); noq = a.newlabel('La_noq')
    def rowmax(src, first):
        if first: a(f'v_max3_f32 v{mx}, v{src}, v{src+1}, v{src+2}'); rest = list(range(3, 16))
        else: rest = list(range(16))
        while len(rest) >= 2:
            a(f'v_max3_f32 v{mx}, v{mx}, v{src+rest[0]}, v{src+rest[1]}'); rest = rest[2:]
        if rest: a(f'v_max_f32 v{mx}, v{mx}, v{src+rest[0]}')
    def halfmax():
        a(f'v_mov_b32 v{t0}, v{mx}'); a(f'v_permlane32_swap_b32 v{mx}, v{t0}'); a(f'v_max_f32 v{mx}, v{mx}, v{t0}')
    a.label(lp)
    a('s_waitcnt vmcnt(0)')
    for i in range(4): a(f'v_mov_b32 v{Q+i}, v{QN+i}')
    a(f's_add_u32 s{S_B}, s{S_B}, {npg}'); add64(a, S_IN, S_IN, npg*32768)
    a(f's_cmp_ge_u32 s{S_B}, 64'); a(f's_cbranch_scc1 {noq}')
    a(f'global_load_dwordx4 {vr(QN,4)}, v{L16}, s[{S_IN}:{S_IN+1}]')
    a.label(noq)
    a(mf(D[0], vr(K0,4), vr(Q,4), 0))
    rowmax(D[0], True); halfmax()
    a(f's_mov_b32 s{S_XO}, 0')
    a.label(run)
    for i in range(16): a(f'v_sub_f32 v{C+i}, 0, v{mx}')
    for i in range(16): a(f'v_mov_b32 v{O+i}, 0')
    a(mf(D[0], vr(KF,4), vr(Q,4), vr(C,16)))
    a(mf(D[1], vr(KF+4,4), vr(Q,4), vr(C,16)))
    def pv(t, b): a(f'v_smfmac_f32_32x32x32_bf16 {vr(O,16)}, {vr(8*t+4*b,4,"a")}, {vr(D[t%3]+8*b,8)}, v{idx}')
    for t in range(16):
        d = D[t % 3]
        for i in range(16):
            a(f'v_exp_f32 v{d+i}, v{d+i}')
            if i == 2 and t > 0: pv(t-1, 1)
            if i == 6 and t + 2 < 16: a(mf(D[(t+2)%3], vr(KF+4*(t+2),4), vr(Q,4), vr(C,16)))
            if i == 11: pv(t, 0)
    pv(15, 1)
    a(f'v_add_u32 v{t1}, s{S_BUF}, v{lw}')
    for j in range(3): a(f'ds_write_b128 v{t1}, {vr(O+4*j,4)} offset:{1024*j}')
    a('s_waitcnt lgkmcnt(0)'); a('s_barrier')
    a(f'v_add_u32 v{t1}, s{S_BUF}, v{L16}')
    for w in range(4): a(f'ds_read_b32 v{MG+w}, v{t1} offset:{3072*w+2048}')
    a('s_waitcnt lgkmcnt(0)')
    a(f'v_add_f32 v{MG}, v{MG}, v{MG+1}'); a(f'v_add_f32 v{MG+2}, v{MG+2}, v{MG+3}'); a(f'v_add_f32 v{t2}, v{MG}, v{MG+2}')
    a(f's_xor_b32 s{S_BUF}, s{S_BUF}, 16384')
    a(f'v_cmp_nge_f32 vcc, {f2u(2.0**90):#x}, v{t2}')
    a(f's_cbranch_vccnz {slow}')
    fin = a.newlabel('La_fin'); a.label(fin)
    a(f's_and_b32 s{S_T}, s{S_CNT}, 3'); a(f's_add_u32 s{S_CNT}, s{S_CNT}, 1')
    a(f's_cmp_lg_u32 s{S_T}, s{S_W}'); a(f's_cbranch_scc1 {nom}')
    for w in range(4):
        for j in range(2): a(f'ds_read_b128 {vr(MG+8*w+4*j,4)}, v{t1} offset:{3072*w+1024*j}')
    a(f'v_rcp_f32 v{t2}, v{t2}')
    a('s_waitcnt lgkmcnt(0)')
    for i in range(8):
        a(f'v_add_f32 v{MG+i}, v{MG+i}, v{MG+8+i}'); a(f'v_add_f32 v{MG+16+i}, v{MG+16+i}, v{MG+24+i}')
        a(f'v_add_f32 v{MG+i}, v{MG+i}, v{MG+16+i}'); a(f'v_mul_f32 v{MG+i}, v{MG+i}, v{t2}')
    for i in range(4): a(f'v_cvt_pk_bf16_f32 v{MG+i}, v{MG+2*i}, v{MG+2*i+1}')
    a(f'global_store_dwordx4 v{L16}, {vr(MG,4)}, s[{S_OUT}:{S_OUT+1}]')
    a.label(nom)
    add64(a, S_OUT, S_OUT, npg*32768)
    a(f's_cmp_lt_u32 s{S_B}, 64'); a(f's_cbranch_scc1 {lp}')
    a(f's_branch {end}')
    a.label(slow)
    a(f's_cmp_lg_u32 s{S_XO}, 0'); a(f's_cbranch_scc1 {fin}')
    a(f's_mov_b32 s{S_XO}, 1')
    for t in range(16):
        a(mf(D[t%2], vr(KF+4*t,4), vr(Q,4), 0))
        rowmax(D[t%2], t == 0)
    halfmax()
    a(f'ds_write_b32 v{lw}, v{mx} offset:32768'); a('s_waitcnt lgkmcnt(0)'); a('s_barrier')
    for w in range(4): a(f'ds_read_b32 v{MG+w}, v{L16} offset:{32768+3072*w}')
    a('s_waitcnt lgkmcnt(0)')
    a(f'v_max3_f32 v{mx}, v{MG}, v{MG+1}, v{MG+2}'); a(f'v_max_f32 v{mx}, v{mx}, v{MG+3}')
    a(f's_branch {run}')
    a.label(end); a('s_endpgm')
    return a.lines

def tb_kernel(half, nwg=256):
    a = Asm(); a._lbl = 6000 + 100*half
    H = W.H[half]
    L, L16, t0, t1, t2, akm, av, avm, vo, xw, mx = range(1, 12)
    XR = 12; CM = 28; SX = 44; SM = 60; Q = 76; K = 108; KM = 140; V = 172; VM = 204; P = 212; PM = 220; ACC = 224
    OT = Q
    end = a.newlabel('Lt_end')
    a(f's_cmp_ge_u32 s2, {nwg}'); a(f's_cbranch_scc1 {end}')
    common_prologue(a, L, L16)
    ngr = nwg // 32
    a(f's_and_b32 s{S_A}, s2, 31'); a(f's_lshr_b32 s{S_B}, s2, 5')
    a(f's_lshr_b32 s{S_T}, s{S_A}, 2'); a(f's_lshl_b32 s{S_T}, s{S_T}, 19'); a(f's_and_b32 s{S_T2}, s{S_A}, 3'); a(f's_lshl_b32 s{S_T2}, s{S_T2}, 8')
    a(f's_add_u32 s{S_OFF}, s{S_T}, s{S_T2}')
    load_wslices(a, [(KA_WO, 4*MB, 0, 'a', 0)], 1024, L, t0, t1, t2)
    a(f'v_and_b32 v{t0}, 7, v{L}'); a(f'v_lshlrev_b32 v{akm}, 4, v{t0}'); a(f'v_lshrrev_b32 v{t0}, 5, v{L}'); a(f'v_lshl_add_u32 v{akm}, v{t0}, 7, v{akm}')
    a(f'v_add_u32 v{akm}, {HB_KM}, v{akm}')
    pi_of(a, t0, L, t1); vpos16(a, av, t0, L, t1); a(f'v_add_u32 v{av}, {HB_V}, v{av}')
    a(f'v_lshlrev_b32 v{avm}, 2, v{t0}'); a(f'v_lshrrev_b32 v{t1}, 5, v{L}'); a(f'v_lshl_add_u32 v{avm}, v{t1}, 8, v{avm}'); a(f'v_add_u32 v{avm}, {HB_VM}, v{avm}')
    a(f's_lshl_b32 s{S_T}, s{S_W}, 11'); a(f'v_add_u32 v{vo}, s{S_T}, v{L16}')
    a(f's_lshl_b32 s{S_T}, s{S_W}, 13'); a(f'v_add_u32 v{xw}, s{S_T}, v{L16}')
    a(f'v_and_b32 v{t0}, 31, v{L}'); a(f'v_lshrrev_b32 v{t1}, 5, v{L}'); a(f'v_lshlrev_b32 v{t1}, 2, v{t1}'); a(f'v_sub_u32 v{t0}, v{t0}, v{t1}')
    a(f'v_mov_b32 v{t1}, {f2u(-1e30):#x}')
    for i in range(16):
        a(f'v_cmp_le_i32 vcc, {8*(i>>2)+(i&3)}, v{t0}'); a(f'v_cndmask_b32 v{CM+i}, v{t1}, 0, vcc')
    a(f's_and_b32 s{S_T}, s{S_A}, 28'); a(f's_add_u32 s{S_T}, s{S_T}, s{S_W}'); a(f's_lshl_b32 s{S_T}, s{S_T}, 21')
    a(f's_lshl_b32 s{S_T2}, s{S_B}, 15'); a(f's_add_u32 s{S_XO}, s{S_T}, s{S_T2}'); a(f's_add_u32 s{S_XO}, s{S_XO}, {H.HB}')
    a(f's_lshl_b32 s{S_T}, s{S_B}, 18'); a(f's_lshl_b32 s{S_T2}, s{S_A}, 13'); a(f's_add_u32 s{S_T}, s{S_T}, s{S_T2}'); a(f's_add_u32 s{S_T}, s{S_T}, {H.PT}')
    add64(a, S_OUT, S_WS, f's{S_T}')
    a(f's_mov_b32 s{S_M}, {f2u(math.log2(math.e)/math.sqrt(128.0)):#x}')
    lp = a.newlabel('Lt_loop')
    a.label(lp)
    def bl(n, dst, va, so, off): a(f'buffer_load_dword{n} {vr(dst, 4 if n else 1)}, v{va}, s[{S_WSRD}:{S_WSRD+3}], s{so} offen offset:{off}')
    a(f's_add_u32 s{S_T}, s{S_XO}, 4096'); a(f's_add_u32 s{S_T2}, s{S_XO}, {HB_Q}'); a(f's_add_u32 s{S_T3}, s{S_XO}, {HB_Q+4096}')
    for kb in range(8):
        bl('x4', K+4*kb, L16, S_XO if kb < 4 else S_T, (kb%4)*1024)
        bl('x4', Q+4*kb, L16, S_T2 if kb < 4 else S_T3, (kb%4)*1024)
    for kb in range(8): bl('x4', KM+4*kb, akm, S_XO, kb*256)
    for f in range(8): bl('x4', V+4*f, av, S_XO if f < 4 else S_T, (f%4)*1024)
    for t in range(4):
        for e in range(2): bl('', VM+2*t+e, avm, S_XO, t*512 + e*128)
    for kb in range(8):
        a(f's_waitcnt vmcnt({24 + 14 - 2*kb})')
        a(mf(SX, vr(K+4*kb,4), vr(Q+4*kb,4), vr(SX,16) if kb else vr(CM,16)))
    a('s_waitcnt vmcnt(16)')
    for kb in range(8): a(mf(SM, vr(KM+4*kb,4), vr(Q+4*kb,4), vr(SM,16) if kb else 0))
    E = [SX+i for i in range(16)] + [SM+i for i in range(4)]
    a(f'v_max3_f32 v{mx}, v{E[0]}, v{E[1]}, v{E[2]}')
    for i in range(3, 19, 2): a(f'v_max3_f32 v{mx}, v{mx}, v{E[i]}, v{E[i+1]}')
    a(f'v_max_f32 v{mx}, v{mx}, v{E[19]}')
    a(f'v_mov_b32 v{t0}, v{mx}'); a(f'v_permlane32_swap_b32 v{mx}, v{t0}'); a(f'v_max_f32 v{mx}, v{mx}, v{t0}')
    a(f'v_mul_f32 v{mx}, s{S_M}, v{mx}')
    for e in E: a(f'v_fma_f32 v{e}, v{e}, s{S_M}, -v{mx}')
    for e in E: a(f'v_exp_f32 v{e}, v{e}')
    a(f'v_add_f32 v{t1}, v{E[0]}, v{E[1]}')
    for e in E[2:]: a(f'v_add_f32 v{t1}, v{t1}, v{e}')
    a(f'v_mov_b32 v{t0}, v{t1}'); a(f'v_permlane32_swap_b32 v{t1}, v{t0}'); a(f'v_add_f32 v{t1}, v{t1}, v{t0}')
    a(f'v_rcp_f32 v{t1}, v{t1}')
    for e in E: a(f'v_mul_f32 v{e}, v{e}, v{t1}')
    for i in range(8): a(f'v_cvt_pk_bf16_f32 v{P+i}, v{SX+2*i}, v{SX+2*i+1}')
    for i in range(2): a(f'v_cvt_pk_bf16_f32 v{PM+i}, v{SM+2*i}, v{SM+2*i+1}')
    a('s_waitcnt vmcnt(0)')
    for t in range(4):
        o = OT+16*t
        a(f'v_mfma_f32_32x32x8_bf16 {vr(o,16)}, {vr(VM+2*t,2)}, {vr(PM,2)}, 0')
        for j in range(2): a(mf(o, vr(V+8*t+4*j,4), vr(P+4*j,4), vr(o,16)))
    a('s_barrier')
    for t in range(4):
        for j in range(2):
            o = OT+16*t+8*j
            for i in range(4): a(f'v_cvt_pk_bf16_f32 v{o+i}, v{o+2*i}, v{o+2*i+1}')
            a(f'ds_write_b128 v{xw}, {vr(o,4)} offset:{(2*t+j)*1024}')
    a('s_waitcnt lgkmcnt(0)'); a('s_barrier')
    gemm_core(a, L16, XR, [(ACC, 'a', 0, False)])
    pack_store(a, ACC, vo, S_OUT)
    add64(a, S_OUT, S_OUT, ngr*8*32768); a(f's_add_u32 s{S_XO}, s{S_XO}, {ngr*32768}')
    a(f's_add_u32 s{S_B}, s{S_B}, {ngr}'); a(f's_cmp_lt_u32 s{S_B}, 64'); a(f's_cbranch_scc1 {lp}')
    a.label(end); a('s_endpgm')
    return a.lines
```

```python
import sys
from asmlib import *
import work, chain
NAME = 'interleave_layers__softmax_full_mha__memory_aug_recurrent_mem_tr__prompt'
def build(chain_kw={}, verbose=False):
    ks = []; launches = []
    def add(n, lines, vg, acc, lds):
        rep = []
        l = fix_hazards(lines, rep)
        for e in check_waits(l, n): print(e)
        if verbose: print(n, len(l), len(rep))
        ks.append((n, l, vg, acc)); launches.append((n, 256, 256, lds))
    add('rb00_kernel', work.rb_kernel(0, 0), 104, 104, 512)
    for h in range(2):
        add(f'pa{h}_kernel', work.proj_kernel(h, 0), 512, 256, 163840)
        add(f'att{h}_kernel', work.att_kernel(h), 384, 256, 49152)
        add(f'woa{h}_kernel', work.woa_kernel(h), 256, 256, 163840)
        add(f'rb1{h}_kernel', work.rb_kernel(1, h), 104, 104, 512)
        add(f'pb{h}_kernel', work.proj_kernel(h, 1), 512, 256, 163840)
        add(f'chain{h}_kernel', chain.chain_kernel_standalone(h, **chain_kw), 512, 256, 163840)
        add(f'tb{h}_kernel', work.tb_kernel(h), 384, 256, 131072)
        add(f'rb8{h}_kernel', work.rb_kernel(2, h), 104, 104, 512)
    hdr = ''.join(l for l in open(f'cdna_kernels/{NAME}.s.ref').readlines()[:14] if '@launch' not in l)
    return assemble_file(hdr, launches, ks)
if __name__ == '__main__':
    t = build(dict(d1l=128, d2e=128, lpos=5), True)
    open(f'cdna_kernels/{NAME}.s', 'w').write(t)
    print(len(t))
```

```python
from asmlib import *
from layout import *
import math, struct

def f2u(f): return struct.unpack('<I', struct.pack('<f', f))[0]

LW = 0
LM = 144 * 1024
LS = 152 * 1024
DELTA = [0, 1, 8, 9, 2, 3, 10, 11]
DELTA2 = [0, 1, 16, 17, 2, 3, 18, 19]

class ChainRegs:
    def __init__(self):
        v = RegAlloc('v', 0, 256)
        self.M = v.alloc(32, 4); self.R = v.alloc(32, 4); self.A = v.alloc(32, 4)
        self.KX = v.alloc(8, 4); self.VX = v.alloc(8, 4)
        self.VM = v.alloc(4)
        self.idx = self.VM + 1; self.aMst = self.VM + 3
        self.PZ = v.alloc(2)
        self.Z = v.alloc(2)
        self.I = v.alloc(2); self.E = v.alloc(4); self.One = v.alloc(4)
        self.aPst = v.alloc(); self.aMw = v.alloc()
        self.x1 = v.alloc(); self.x2 = v.alloc(); self.x3 = v.alloc(); self.aOw = v.alloc(); self.aW = v.alloc()
        self.aK = v.alloc(); self.aV = v.alloc(); self.aKm = v.alloc(); self.aVm = v.alloc(); self.aOr = v.alloc()
        self.PG = v.alloc(2); self.aT = self.PG; self.tD = self.PG + 1
        self.t0 = self.A + 28; self.t1 = self.A + 29
        assert v.next <= 144, v.next
        self.WV = 144
        self.place = {}
        lds = [('q', 1, s) for s in range(8)] + [('q', 0, s) for s in range(4, 8)] + [('o', t, k) for t in (0, 6, 7) for k in range(2)]
        for i, b in enumerate(lds): self.place[b] = ('l', i * 2048)
        rest = [(m, t, s) for m in 'qkv' for t in range(2) for s in range(8)] + [('o', t, k) for t in range(8) for k in range(2)]
        rest = [b for b in rest if b not in self.place]
        assert len(rest) == 46
        for i, b in enumerate(rest):
            self.place[b] = ('a', 8 * i) if i < 32 else ('v', self.WV + 8 * (i - 32))
    def blk(self, b):
        k, r = self.place[b]; assert k != 'l'
        return vr(r, 8, k)

S_WS = 4
S_H = 6; S_W = 7
S_SRD = 8
S_CP0 = 12
S_CP1 = 14
S_CPR = 16
S_CM = 18
S_HB = 20
S_CML = 22
S_CML2 = 24
S_FH = 26
S_FW = 50
S_RDY = 49
S_XF = 58
S_XE = 78
S_EP = 28; S_EM = 29; S_STEP = 30; S_C = 31; S_SPIN = 32
S_PLO = 33; S_PHI = 34; S_T = 35; S_T2 = 36; S_T3 = 37
S_XH1 = 38
S_XH0 = 40
S_XR = 42
S_DBG = 44
S_TMP = 46
S_STAMP = 60

def add64(a, dst, base, off):
    a(f's_add_u32 s{dst}, s{base}, {off}')
    a(f's_addc_u32 s{dst+1}, s{base+1}, 0')

def chain_setup(a, r):
    L = r.tD; N = r.x3; G = r.aT; L16 = r.aOr
    T = r.R
    a(f'v_lshrrev_b32 v{T}, 6, v0')
    a(f'v_and_b32 v{L}, 63, v0')
    a(f'v_readfirstlane_b32 s{S_W}, v{T}')
    a(f'v_and_b32 v{N}, 15, v{L}')
    a(f'v_lshrrev_b32 v{G}, 4, v{L}')
    a(f's_mov_b32 s{S_PLO}, 0x05040100'); a(f's_mov_b32 s{S_PHI}, 0x07060302')
    a(f's_mov_b32 s{S_XH1}, 0xcccccccc'); a(f's_mov_b32 s{S_XH1+1}, 0xcccccccc')
    a(f's_mov_b32 s{S_XH0}, 0x33333333'); a(f's_mov_b32 s{S_XH0+1}, 0x33333333')
    a(f's_mov_b32 s{S_XR}, 0x000f000f'); a(f's_mov_b32 s{S_XR+1}, 0')
    a(f's_mov_b32 s{S_C}, {f2u(math.log2(math.e) / math.sqrt(128.0)):#x}')
    a(f'v_lshlrev_b32 v{L16}, 4, v{L}')
    a(f's_mul_i32 s{S_T}, s{S_W}, 36864'); a(f'v_add_u32 v{r.aW}, s{S_T}, v{L16}')
    KBG = r.aK; VO = r.aV
    a(f'v_lshrrev_b32 v{T}, 1, v{G}'); a(f'v_lshlrev_b32 v{T}, 4, v{T}')
    a(f'v_and_b32 v{T+1}, 1, v{G}'); a(f'v_lshl_add_u32 v{KBG}, v{T+1}, 2, v{T}')
    a(f's_lshl_b32 s{S_T}, s{S_H}, 8'); a(f's_lshl_b32 s{S_T2}, s{S_W}, 6'); a(f's_add_u32 s{S_T}, s{S_T}, s{S_T2}')
    a(f'v_lshlrev_b32 v{VO}, 14, v{KBG}'); a(f'v_lshl_add_u32 v{VO}, v{N}, 2, v{VO}'); a(f'v_add_u32 v{VO}, s{S_T}, v{VO}')
    a(f's_mov_b32 s{S_SRD+2}, {4*MB}'); a(f's_mov_b32 s{S_SRD+3}, 0x20000')
    NB = 11
    PK = 88
    groups = []
    for m in 'kvq':
        for s in range(8):
            for rg in range(2): groups.append((m, s, rg))
    def put(block, rg, i, src_hi, src_lo, sel, pend):
        k, base = r.place[block]
        if k == 'v': a(f'v_perm_b32 v{base+4*rg+i}, v{src_hi}, v{src_lo}, s{sel}')
        elif k == 'a':
            a(f'v_perm_b32 v{pend+i}, v{src_hi}, v{src_lo}, s{sel}')
            a(f'v_accvgpr_write_b32 a{base+4*rg+i}, v{pend+i}')
        else:
            a(f'v_perm_b32 v{pend+i}, v{src_hi}, v{src_lo}, s{sel}')
            if i == 3:
                a(f'ds_write_b128 v{r.aW}, {vr(pend,4)} offset:{base+1024*rg}')
                a('s_waitcnt lgkmcnt(0)')
    DEPTH = 6
    kaoff = {'q': KA_WQ, 'k': KA_WK, 'v': KA_WV}
    cur = None
    def issue(gi):
        nonlocal cur
        m, s, rg = groups[gi]
        if cur != m:
            a(f's_load_dwordx2 s[{S_SRD}:{S_SRD+1}], s[0:1], {kaoff[m]}'); a('s_waitcnt lgkmcnt(0)'); cur = m
        if rg == 0:
            a(f's_xor_b32 s{S_T3}, s{S_W}, {s&3}'); a(f's_lshl_b32 s{S_T3}, s{S_T3}, 20')
        b = (gi % NB) * 8
        for jj in range(8):
            a(f's_add_u32 s{S_T}, s{S_T3}, {(4*(s>>2)+64*rg+DELTA2[jj])*8192}')
            a(f'buffer_load_dword v{b+jj}, v{VO}, s[{S_SRD}:{S_SRD+3}], s{S_T} offen')
    def consume(gi):
        m, s, rg = groups[gi]; b = (gi % NB) * 8
        for t in range(2):
            for i in range(4):
                put((m, t, s), rg, i, b+2*i+1, b+2*i, S_PHI if t else S_PLO, PK + 4*t)
    for gi in range(len(groups) + DEPTH):
        if gi < len(groups): issue(gi)
        if gi >= DEPTH:
            left = min(len(groups), gi + 1) - (gi - DEPTH) - 1
            a(f's_waitcnt vmcnt({8*left})')
            consume(gi - DEPTH)
    a(f's_load_dwordx2 s[{S_SRD}:{S_SRD+1}], s[0:1], {KA_WO}')
    a(f's_lshl_b32 s{S_T}, s{S_H}, 17'); a(f's_lshl_b32 s{S_T2}, s{S_W}, 8'); a(f's_add_u32 s{S_T}, s{S_T}, s{S_T2}')
    a(f'v_lshlrev_b32 v{VO}, 10, v{KBG}'); a(f'v_lshl_add_u32 v{VO}, v{N}, 4, v{VO}'); a(f'v_add_u32 v{VO}, s{S_T}, v{VO}')
    a('s_waitcnt lgkmcnt(0)')
    og = [(k, rg) for k in range(2) for rg in range(2)]
    def oissue(gi):
        k, rg = og[gi]; b = (gi % 2) * 32
        for jj in range(8):
            a(f's_mov_b32 s{S_T}, {(64*k+32*rg+DELTA[jj])*1024}')
            a(f'buffer_load_dwordx4 {vr(b+4*jj,4)}, v{VO}, s[{S_SRD}:{S_SRD+3}], s{S_T} offen')
    def ocons(gi):
        k, rg = og[gi]; b = (gi % 2) * 32
        for t in range(8):
            for i in range(4):
                put(('o', t, k), rg, i, b+4*(2*i+1)+(t>>1), b+4*(2*i)+(t>>1), S_PHI if t & 1 else S_PLO, PK + 4*(t&1))
    oissue(0); oissue(1)
    for gi in range(4):
        a(f's_waitcnt vmcnt({8 if gi < 3 else 0})')
        ocons(gi)
        if gi + 2 < 4: oissue(gi + 2)
    T = r.R
    a(f'v_bfe_u32 v{T}, v{N}, 1, 1')
    a(f'v_mul_u32_u24 v{r.idx}, 0xaaaa, v{T}'); a(f'v_add_u32 v{r.idx}, 0x4444, v{r.idx}')
    a(f'v_lshlrev_b32 v{T}, 2, v{G}'); a(f'v_sub_u32 v{T}, v{N}, v{T}')
    a(f'v_mov_b32 v{T+1}, 0x3f80'); a(f'v_mov_b32 v{T+2}, 0x3f800000')
    def onehot(dst, nregs):
        for i in range(nregs):
            a(f'v_cmp_eq_u32 vcc, {2*i}, v{T}'); a(f'v_cndmask_b32 v{dst+i}, 0, v{T+1}, vcc')
            a(f'v_cmp_eq_u32 vcc, {2*i+1}, v{T}'); a(f'v_cndmask_b32 v{dst+i}, v{dst+i}, v{T+2}, vcc')
    onehot(r.I, 2)
    a(f'v_mov_b32 v{T}, v{N}'); onehot(r.E, 4)
    for i in range(4): a(f'v_mov_b32 v{r.One+i}, 0x3f803f80')
    a(f'v_mov_b32 v{r.PZ+1}, 0'); a(f'v_mov_b32 v{r.Z}, 0'); a(f'v_mov_b32 v{r.Z+1}, 0')
    a(f'v_lshrrev_b32 v{T}, 2, v{L}'); a(f'v_lshlrev_b32 v{T}, 11, v{T}'); a(f'v_and_b32 v{T+1}, 3, v{L}')
    a(f'v_lshl_add_u32 v{r.aPst}, v{T+1}, 4, v{T}')
    a(f's_lshl_b32 s{S_T}, s{S_W}, 15'); a(f's_lshl_b32 s{S_T2}, s{S_H}, 6'); a(f's_add_u32 s{S_T}, s{S_T}, s{S_T2}')
    a(f's_add_u32 s{S_T}, s{S_T}, {W.CP}'); add64(a, S_CP0, S_WS, f's{S_T}'); add64(a, S_CP1, S_CP0, 64 * 2048)
    a(f's_lshr_b32 s{S_T}, s{S_W}, 1'); a(f's_lshl_b32 s{S_T}, s{S_T}, 6'); a(f's_lshl_b32 s{S_T2}, s{S_H}, 1'); a(f's_add_u32 s{S_T}, s{S_T}, s{S_T2}')
    a(f's_and_b32 s{S_T2}, s{S_W}, 1'); a(f's_add_u32 s{S_T}, s{S_T}, s{S_T2}')
    assert W.CP >= LM and W.CM >= LM
    a(f's_lshl_b32 s{S_T2}, s{S_T}, 11'); a(f's_add_u32 s{S_T2}, s{S_T2}, {W.CP - LM}'); add64(a, S_CPR, S_WS, f's{S_T2}')
    add64(a, S_CM, S_WS, W.CM); add64(a, S_CML, S_WS, W.CM - LM); add64(a, S_CML2, S_WS, W.CM - LM + 4096)
    a(f's_lshr_b32 s{S_T2}, s{S_T}, 4'); a(f's_lshl_b32 s{S_T2}, s{S_T2}, 10')
    a(f's_and_b32 s{S_T3}, s{S_T}, 3'); a(f's_lshl_b32 s{S_T3}, s{S_T3}, 8'); a(f's_add_u32 s{S_T2}, s{S_T2}, s{S_T3}')
    a(f's_bfe_u32 s{S_T3}, s{S_T}, 0x20002'); a(f's_lshl_b32 s{S_T3}, s{S_T3}, 6'); a(f's_add_u32 s{S_T2}, s{S_T2}, s{S_T3}')
    a(f'v_bfe_u32 v{T}, v{L}, 1, 1'); a(f'v_lshlrev_b32 v{T}, 5, v{T}')
    a(f'v_and_b32 v{T+1}, 1, v{L}'); a(f'v_lshl_add_u32 v{T}, v{T+1}, 3, v{T}')
    a(f'v_and_b32 v{T+1}, 1, v{G}'); a(f'v_lshl_add_u32 v{T}, v{T+1}, 4, v{T}')
    a(f'v_add_u32 v{r.aMst}, s{S_T2}, v{T}')
    a(f's_bfe_u32 s{S_T2}, s{S_T}, 0x20002'); a(f's_lshl_b32 s{S_T2}, s{S_T2}, 11')
    a(f's_bfe_u32 s{S_T3}, s{S_T}, 0x20004'); a(f's_lshl_b32 s{S_T3}, s{S_T3}, 8'); a(f's_add_u32 s{S_T2}, s{S_T2}, s{S_T3}')
    a(f's_and_b32 s{S_T3}, s{S_T}, 3'); a(f's_lshl_b32 s{S_T3}, s{S_T3}, 6'); a(f's_add_u32 s{S_T2}, s{S_T2}, s{S_T3}')
    a(f's_lshr_b32 s{S_T3}, s{S_T}, 6'); a(f's_lshl_b32 s{S_T3}, s{S_T3}, 3'); a(f's_add_u32 s48, s{S_T2}, s{S_T3}')
    a(f's_lshl_b32 s{S_T}, s{S_W}, 10'); a(f's_add_u32 s{S_T}, s{S_T}, {LM}'); a(f'v_add_u32 v{r.aMw}, s{S_T}, v{L16}')
    a(f'v_lshrrev_b32 v{T}, 1, v{G}'); a(f'v_lshlrev_b32 v{T}, 8, v{T}'); a(f'v_and_b32 v{T+1}, 1, v{G}')
    a(f'v_lshl_add_u32 v{T}, v{T+1}, 5, v{T}'); a(f'v_lshl_add_u32 v{T}, v{N}, 4, v{T}')
    a(f's_lshl_b32 s{S_T}, s{S_W}, 9'); a(f's_add_u32 s{S_T}, s{S_T}, {LM}'); a(f'v_add_u32 v{r.aOw}, s{S_T}, v{T}')
    a(f'v_lshrrev_b32 v{T}, 3, v{N}'); a(f'v_lshlrev_b32 v{T}, 8, v{T}'); a(f'v_and_b32 v{T+1}, 7, v{N}'); a(f'v_lshl_add_u32 v{T}, v{T+1}, 4, v{T}')
    a(f'v_lshl_add_u32 v{T}, v{G}, 9, v{T}')
    a(f's_lshl_b32 s{S_T}, s{S_W}, 11'); a(f's_add_u32 s{S_T2}, s{S_T}, {HB_REC+HB_K}'); a(f'v_add_u32 v{r.aK}, s{S_T2}, v{T}')
    a(f'v_lshlrev_b32 v{T}, 4, v{N}'); a(f'v_lshl_add_u32 v{T}, v{G}, 9, v{T}')
    a(f's_add_u32 s{S_T2}, s{S_T}, {HB_REC+HB_V}'); a(f'v_add_u32 v{r.aV}, s{S_T2}, v{T}')
    a(f'v_lshrrev_b32 v{T}, 2, v{N}'); a(f'v_lshlrev_b32 v{T}, 5, v{T}'); a(f'v_and_b32 v{T+1}, 1, v{N}'); a(f'v_lshl_add_u32 v{T}, v{T+1}, 4, v{T}')
    a(f'v_lshl_add_u32 v{T}, v{G}, 7, v{T}')
    a(f's_lshl_b32 s{S_T}, s{S_W}, 9'); a(f's_add_u32 s{S_T2}, s{S_T}, {HB_KM}'); a(f'v_add_u32 v{r.aKm}, s{S_T2}, v{T}')
    a(f'v_lshlrev_b32 v{T}, 3, v{L}'); a(f's_add_u32 s{S_T2}, s{S_T}, {HB_VM}'); a(f'v_add_u32 v{r.aVm}, s{S_T2}, v{T}')
    a(f'v_and_b32 v{T}, 2, v{L}'); a(f'v_cmp_eq_u32 vcc, 0, v{T}')
    a(f'v_add_u32 v{T}, 4096, v{r.aMw}'); a(f'v_and_b32 v{T+1}, 1, v{G}'); a(f'v_lshlrev_b32 v{T+1}, 5, v{T+1}'); a(f'v_xor_b32 v{T}, v{T}, v{T+1}')
    a(f'v_cndmask_b32 v{r.aOw}, v{T}, v{r.aOw}, vcc')
    a(f'v_add_u32 v{r.aOr}, {LM}, v{L16}')
    for k, x in ((1, r.x1), (2, r.x2), (3, r.x3)): a(f'v_xor_b32 v{x}, {1024*k}, v{r.aMw}')
    a(f's_cmp_lt_u32 s{S_W}, 2'); a(f's_cselect_b64 s[{S_XE}:{S_XE+1}], -1, 0')

def kv_load(a, r, i, dst):
    ad, off = ((r.aK, 0), (r.aK, 128), (r.aV, 0), (r.aV, 256))[i]
    a(f'global_load_dwordx4 {vr(dst+4*i,4)}, v{ad}, s[{S_HB}:{S_HB+1}] offset:{off} sc1')

def ring_prefetch(a, r):
    for e in range(4):
        o = r.place[('q', 1, e)][1]
        a(f'ds_read_b128 {vr(r.R+8*e,4)}, v{r.aW} offset:{o}')
        a(f'ds_read_b128 {vr(r.R+8*e+4,4)}, v{r.aW} offset:{o+1024}')

def zero_regs(a, base, n):
    for i in range(n): a(f'v_mov_b32 v{base+i}, 0')

DPPQ = 'quad_perm:[2,3,0,1] row_mask:0xf bank_mask:0xf'

def chain_half(a, r, half, stf, fail, stamps=False, p1e=1, ds1=0, d1e=0, d1l=96, d2e=64, es=48, lpos=1, bk1=1, bkg=0, nomax=0,
               nokv=0, nopub=0, pubf='sc1', fused=0, started=None, stampsel=None, trace=None, nocomm=0):
    H = W.H[half]
    R, A, M = r.R, r.A, r.M
    Aq = [A, A+4]; Ak = [A+8, A+12]; Av = [A+16, A+20]
    ACC = {'q': Aq, 'k': Ak, 'v': Av}
    ns = [0]; sid = [0]
    def st(name=None):
        if name is None:
            name = sid[0]; sid[0] += 1
        if stamps and ((stampsel is None and isinstance(name, int)) or (stampsel is not None and name in stampsel)):
            a(f's_memtime s[{S_STAMP+2*ns[0]}:{S_STAMP+2*ns[0]+1}]'); ns[0] += 1
    def tr(k):
        if trace is not None: a(f's_memtime s[{S_STAMP+2*k}:{S_STAMP+2*k+1}]')
    def smf(acc, aop, b): a(f'v_smfmac_f32_16x16x64_bf16 {vr(acc,4)}, {vr(aop,4)}, {b}, v{r.idx}')
    def m32(d, x, y, c): a(f'v_mfma_f32_16x16x32_bf16 {vr(d,4)}, {vr(x,4)}, {vr(y,4)}, {vr(d,4) if c else 0}')
    def m16(d, x, y, c): a(f'v_mfma_f32_16x16x16_bf16 {vr(d,4)}, {vr(x,2)}, {vr(y,2)}, {vr(d,4) if c else 0}')
    def ldh(dst, b, hh):
        a(f'ds_read_b128 {vr(dst+4*hh,4)}, v{r.aW} offset:{r.place[b][1]+1024*hh}')
    def nops(c):
        n = c // 4
        while n > 0:
            k = min(n, 16); a(f's_nop {k-1}'); n -= k
    def add0(c): a(f'v_add_f32 v{c}, v{c}, v{c+2}')
    def add1(c): a(f'v_add_f32 v{c+1}, v{c+1}, v{c+3}')
    def cvt(d, x, y): a(f'v_cvt_pk_bf16_f32 v{d}, v{x}, v{y}')
    def pka(d, x, y): a(f'v_pk_add_f32 {vr(d,2)}, {vr(x,2)}, {vr(y,2)}')
    XR = [r.aMw, r.x1, r.x2, r.x3]
    def e_load(j): a(f'global_load_dwordx4 {vr(M+4*j,4)}, v{XR[j]}, s[{S_CML}:{S_CML+1}] sc1')
    def e_loads(gap=0):
        for j in range(4):
            e_load(j)
            if j < 3: nops(gap)
    def l_load(): a(f'global_load_dwordx4 {vr(M+16,4)}, v{r.aMw}, s[{S_CML2}:{S_CML2+1}] sc1')
    PL = [M+24, M+16]; PD = A+24
    def p_loads(k=0):
        a(f'global_load_dwordx4 {vr(PL[k],4)}, v{r.aOr}, s[{S_CPR}:{S_CPR+1}] sc1')
        a(f'global_load_dwordx4 {vr(PL[k]+4,4)}, v{r.aOr}, s[{S_CPR}:{S_CPR+1}] offset:1024 sc1')
    X0 = f's_mov_b64 exec, s[{S_XH0}:{S_XH0+1}]'; XA = 's_mov_b64 exec, -1'
    a(f's_lshl_b32 s{S_T}, s{S_H}, 21'); a(f's_add_u32 s{S_T}, s{S_T}, {H.HB - HB_REC}'); add64(a, S_HB, S_WS, f's{S_T}')
    a(f's_mov_b32 s{S_STEP}, 0')
    def prog_load(): a(f'global_load_dwordx2 {vr(r.PG,2)}, v{r.Z}, s[{S_FH}:{S_FH+1}] sc1')
    def prog_eval():
        a(f'v_readfirstlane_b32 s{S_T}, v{r.PG}'); a(f'v_readfirstlane_b32 s{S_T2}, v{r.PG+1}')
        a(f's_lshl_b32 s{S_T}, s{S_T}, 1'); a(f's_lshl_b32 s{S_T2}, s{S_T2}, 1'); a(f's_or_b32 s{S_T2}, s{S_T2}, 1'); a(f's_min_u32 s{S_RDY}, s{S_T}, s{S_T2}')
    def prog_block(lbl, back, need_sgpr):
        a.label(lbl)
        prog_load(); a('s_waitcnt vmcnt(0)'); prog_eval()
        a(f's_cmp_gt_u32 s{S_RDY}, s{need_sgpr}'); a(f's_cbranch_scc1 {back}')
        a('s_sleep 1')
        a(f's_add_u32 s{S_SPIN}, s{S_SPIN}, 1'); a(f's_cmp_lt_u32 s{S_SPIN}, 0x40000'); a(f's_cbranch_scc1 {lbl}')
        a(f's_branch {fail}')
    if fused:
        a(f's_lshl_b32 s{S_T}, s{S_H}, 7'); a(f's_add_u32 s{S_T}, s{S_T}, {FL(half, "HEAD")}'); add64(a, S_FH, S_WS, f's{S_T}')
        add64(a, S_FW, S_FH, FL(half, "CHP") - FL(half, "HEAD"))
        a(f's_cmp_eq_u32 s{S_W}, 3'); a(f's_cselect_b64 s[{S_XF}:{S_XF+1}], 1, 0')
        a(f's_mov_b32 s{S_SPIN}, 0')
        l1 = a.newlabel('Lc_w'); l2 = a.newlabel('Lc_w'); prog_block(l1, l2, S_STEP); a.label(l2)
        if started: started()
    for i in range(4): kv_load(a, r, i, r.KX)
    add64(a, S_HB, S_HB, HB_REC)
    LA = a.newlabel('Lc_A'); Ldone = a.newlabel('Lc_done'); Llate = a.newlabel('Lc_late')
    Lr = [a.newlabel('Lc_rE') for _ in range(5)]; Lc = [a.newlabel('Lc_cE') for _ in range(5)]
    if stamps:
        for k in range(16): a(f's_mov_b32 s{84+k}, 0')
    a(f's_mov_b32 s{S_SPIN}, 0')
    zero_regs(a, A, 24); ring_prefetch(a, r)
    e_loads()
    a('.p2align 6')
    a.label(LA)
    ringof = {('q',1,0):0, ('q',1,1):1, ('q',1,2):2, ('q',1,3):3, ('q',1,4):0, ('q',0,4):1, ('q',1,5):2, ('q',0,5):3, ('q',0,6):0, ('q',0,7):1, ('q',1,6):2, ('q',1,7):3}
    def S(m, t, s):
        b = (m, t, s)
        smf(ACC[m][t], M+4*s, vr(R+8*ringof[b], 8) if b in ringof else r.blk(b))
    t0 = A+28
    def chk(j):
        return [f'v_bitop3_b32 v{t0}, v{M+4*j}, v{M+4*j+2}, s{S_EM} bitop3:0x7e', f'v_and_b32 v{t0}, 1, v{t0}', f'v_cmp_ne_u32 vcc, 0, v{t0}']
    a('s_waitcnt vmcnt(3) lgkmcnt(0)')
    for l in chk(0): a(l)
    a(f's_cbranch_vccnz {Lr[0]}')
    a.label(Lc[0])
    st()
    tr(5)
    order = (('q',1),('q',0),('k',0),('k',1),('v',0),('v',1))
    dsq = {0: [(R, ('q',1,4), 0), (R, ('q',1,4), 1)], 1: [(R+8, ('q',0,4), 0), (R+8, ('q',0,4), 1)], 2: [(R+16, ('q',1,5), 0), (R+16, ('q',1,5), 1)]}
    cnt = 0
    for sl in range(3):
        c = chk(sl+1)
        for i, (m, t) in enumerate(order):
            S(m, t, sl)
            if cnt == lpos: l_load()
            cnt += 1
            if i == 1: a(f's_waitcnt vmcnt({(2-sl) + (1 if cnt > lpos else 0)})')
            if i in (1, 2, 3): a(c[i-1])
            if i in (0, 4) and sl in dsq: ldh(*dsq[sl][i//4])
        a(f's_cbranch_vccnz {Lr[sl+1]}')
        a.label(Lc[sl+1])
    assert lpos < 14
    c = chk(4)
    S('q',1,3)
    a('s_waitcnt vmcnt(0)')
    a(f'ds_write_b128 v{r.aMw}, {vr(M+16,4)}')
    a(c[0])
    S('q',0,3); a(c[1])
    S('k',0,3); a(c[2])
    S('k',1,3); ldh(R+24, ('q',0,5), 0)
    S('v',0,3); ldh(R+24, ('q',0,5), 1)
    a(f's_cbranch_vccnz {Lr[4]}')
    a.label(Lc[4])
    a('s_waitcnt lgkmcnt(2)'); a('s_barrier')
    tr(6)
    Lhk = a.newlabel('Lc_hk'); Lhb = a.newlabel('Lc_hb'); Lnl = a.newlabel('Lc_nl')
    a(f'ds_read_b128 {vr(M+20,4)}, v{XR[1]}')
    S('v',1,3); a(f'ds_read_b128 {vr(M+24,4)}, v{XR[2]}')
    S('q',1,4); a(f'ds_read_b128 {vr(M+28,4)}, v{XR[3]}')
    S('q',0,4); ldh(R+0, ('q',0,6), 0)
    S('k',0,4); ldh(R+0, ('q',0,6), 1)
    S('k',1,4); ldh(R+8, ('q',0,7), 0)
    a('s_waitcnt lgkmcnt(5)')
    S('q',1,5); ldh(R+8, ('q',0,7), 1)
    S('q',0,5); ldh(R+16, ('q',1,6), 0)
    S('k',0,5); ldh(R+16, ('q',1,6), 1)
    a('s_waitcnt lgkmcnt(6)')
    S('k',0,6); ldh(R+24, ('q',1,7), 0)
    S('k',0,7); ldh(R+24, ('q',1,7), 1)
    if fused:
        prog_eval()
        a(f'v_mov_b32 v{t0}, s{S_STEP}')
        a(f's_add_u32 s{S_T3}, s{S_STEP}, 1'); a(f's_min_u32 s{S_T3}, s{S_T3}, 62')
        a(f's_cmp_gt_u32 s{S_RDY}, s{S_T3}'); a(f's_cbranch_scc0 {Lhb}')
        a.label(Lhk)
    a('s_waitcnt lgkmcnt(6)')
    S('q',0,6)
    if fused:
        a(f's_mov_b64 exec, s[{S_XF}:{S_XF+1}]')
        a(f'global_store_dword v{r.Z}, v{t0}, s[{S_FW}:{S_FW+1}] sc1')
        a(f's_cmp_lt_u32 s{S_RDY}, 63'); a('s_cselect_b64 exec, 1, 0')
        prog_load()
        a(f's_cmp_lt_u32 s{S_STEP}, 62'); a('s_cselect_b64 exec, -1, 0')
    if not nokv: kv_load(a, r, 0, M); kv_load(a, r, 1, M)
    if not fused: S('k',1,5)
    if not nokv: kv_load(a, r, 2, M); kv_load(a, r, 3, M)
    if fused: a(XA); S('k',1,5)
    a('s_waitcnt lgkmcnt(4)')
    TA = [R+0, R+2]; TD = [R+4, R+8]; T = R+12; SX = [R+16, R+20]; SM = R+24
    S('q',0,7); add0(Ak[0])
    S('k',1,6); add1(Ak[0])
    S('k',1,7); cvt(TA[0], Ak[0], Ak[0]+1)
    a('s_waitcnt lgkmcnt(0)')
    S('q',1,6); add0(Aq[0]); add1(Aq[0])
    S('q',1,7); cvt(TA[0]+1, Aq[0], Aq[0]+1)
    st()
    vq = [(t, s) for s in range(4, 8) for t in range(2)]
    def V(n=1):
        for _ in range(n):
            t, s = vq.pop(0); S('v', t, s)
    add0(Ak[1]); add1(Ak[1])
    m16(TD[0], TA[0], r.I, 0)
    cvt(TA[1], Ak[1], Ak[1]+1)
    add0(Aq[1]); add1(Aq[1])
    cvt(TA[1]+1, Aq[1], Aq[1]+1)
    a(f's_mov_b64 vcc, s[{S_XH1}:{S_XH1+1}]')
    m16(TD[1], TA[1], r.I, 0)
    V(1)
    for i in range(4): cvt(T+i, TD[0]+i, TD[1]+i)
    m32(SX[0], r.KX, T, 0); m32(SX[1], r.KX+4, T, 0); m32(SM, T, T, 0)
    V(1)
    for i in range(4): a(f'v_cndmask_b32_dpp v{SX[1]+i}, v{SX[0]+i}, v{SX[1]+i}, vcc {DPPQ}')
    SO = SX[1]; SMO = SM+1
    a(f'ds_write_b128 v{r.aMw}, {vr(SO,4)} offset:{LS-LM}')
    a(f'v_cndmask_b32_dpp v{SMO}, v{SM}, v{SM+1}, vcc {DPPQ}')
    a(f'ds_write_b32 v{r.aMw}, v{SMO} offset:{LS-LM+4096}')
    V(1)
    if not nopub:
        a(X0); a(f'global_store_dwordx4 v{r.aKm}, {vr(T,4)}, s[{S_HB}:{S_HB+1}] {pubf}'); a(XA)
    V(2)
    a('s_waitcnt lgkmcnt(0)'); a('s_barrier')
    st()
    tr(7)
    RD = [R+0, R+4, R+8]; RM = R+28
    for j in range(3): a(f'ds_read_b128 {vr(RD[j],4)}, v{XR[j+1]} offset:{LS-LM}')
    for j in range(3): a(f'ds_read_b32 v{RM+j}, v{XR[j+1]} offset:{LS-LM+4096}')
    V(3)
    assert not vq
    P = R+16; MX = R+26; TM = R+27
    a('s_waitcnt lgkmcnt(4)')
    for i in range(4): a(f'v_add_f32 v{SO+i}, v{SO+i}, v{RD[0]+i}')
    a('s_waitcnt lgkmcnt(0)')
    pka(RD[1], RD[1], RD[2]); pka(RD[1]+2, RD[1]+2, RD[2]+2)
    a(f'v_add_f32 v{SMO}, v{SMO}, v{RM}'); a(f'v_add_f32 v{RM+1}, v{RM+1}, v{RM+2}')
    pka(SO, SO, RD[1]); pka(SO+2, SO+2, RD[1]+2)
    a(f'v_add_f32 v{SMO}, v{SMO}, v{RM+1}')
    E = [SMO, SO, SO+1, SO+2, SO+3]
    if not nomax:
        a(f'v_max3_f32 v{MX}, v{SO}, v{SO+1}, v{SO+2}')
        a(f'v_max3_f32 v{MX}, v{MX}, v{SO+3}, v{SMO}')
        pka(Av[0], Av[0], Av[0]+2); pka(Av[1], Av[1], Av[1]+2)
        a(f'v_max_f32_dpp v{MX}, v{MX}, v{MX} {DPPQ}')
        a(f'v_mov_b32 v{TM}, v{MX}')
        cvt(r.VM, Av[0], Av[0]+1); cvt(r.VM+2, Av[1], Av[1]+1)
        a(f'v_permlane16_swap_b32 v{MX}, v{TM}')
        a(f'v_max_f32 v{MX}, v{MX}, v{TM}')
        a(f'v_mov_b32 v{TM}, v{MX}')
        a(f'v_permlane32_swap_b32 v{MX}, v{TM}')
        a(f'v_max_f32 v{MX}, v{MX}, v{TM}')
        a(f'v_mul_f32 v{MX}, s{S_C}, v{MX}')
        for e in E: a(f'v_fma_f32 v{e}, v{e}, s{S_C}, -v{MX}')
    else:
        for e in E: a(f'v_mul_f32 v{e}, s{S_C}, v{e}')
        pka(Av[0], Av[0], Av[0]+2); pka(Av[1], Av[1], Av[1]+2)
        cvt(r.VM, Av[0], Av[0]+1); cvt(r.VM+2, Av[1], Av[1]+1)
    D = [R+8, R+12]; SUM = R+28
    a(f'v_mov_b32 v{R+4}, v{r.VM}'); a(f'v_mov_b32 v{R+5}, v{r.VM+2}')
    if not nopub: a(f'global_store_dwordx2 v{r.aVm}, {vr(R+4,2)}, s[{S_HB}:{S_HB+1}] {pubf}')
    for e in E[:3]: a(f'v_exp_f32 v{e}, v{e}')
    a(f'v_mov_b32_dpp v{TM}, v{SMO} {DPPQ}')
    cvt(P, SO, SO+1)
    cvt(r.PZ, SMO, TM)
    a(f'v_exp_f32 v{E[3]}, v{E[3]}')
    a(f'v_mov_b32_dpp v{P+2}, v{P} {DPPQ}')
    m16(SUM, r.One, r.PZ, 0)
    a(f'v_exp_f32 v{E[4]}, v{E[4]}')
    m16(D[0], r.VM, r.PZ, 0)
    cvt(P+1, SO+2, SO+3)
    a(f's_cmp_eq_u32 s{S_STEP}, 63')
    m16(D[1], r.VM+2, r.PZ, 0)
    a(f'v_mov_b32_dpp v{P+3}, v{P+1} {DPPQ}')
    a(f's_cbranch_scc1 {Ldone}')
    st()
    ldh(M+16, ('o',0,0), 0)
    m32(SUM, r.One, P, 1); ldh(M+16, ('o',0,0), 1)
    m32(D[0], r.VX, P, 1); ldh(M+24, ('o',0,1), 0)
    m32(D[1], r.VX+4, P, 1); ldh(M+24, ('o',0,1), 1)
    a(f'v_rcp_f32 v{SUM}, v{SUM}')
    for t in range(2):
        for i in range(4): a(f'v_mul_f32 v{D[t]+i}, v{D[t]+i}, v{SUM}')
    OP = R+0
    for i in range(4): cvt(OP+i, D[0]+i, D[1]+i)
    a(f'ds_write_b128 v{r.aOw}, {vr(OP,4)}')
    a(f'v_mfma_f32_32x32x8_bf16 {vr(A,16)}, {vr(r.Z,2)}, {vr(r.Z,2)}, 0')
    ldh(R+8, ('o',6,0), 0); ldh(R+8, ('o',6,0), 1); ldh(R+16, ('o',6,1), 0); ldh(R+16, ('o',6,1), 1)
    a(f'v_mfma_f32_32x32x8_bf16 {vr(A+16,16)}, {vr(r.Z,2)}, {vr(r.Z,2)}, 0')
    a('s_waitcnt lgkmcnt(4)'); a('s_barrier')
    st()
    if trace is not None:
        lt = a.newlabel('Lc_t'); a(f's_cmp_lg_u32 s{S_STEP}, {trace}'); a(f's_cbranch_scc1 {lt}')
        _ = [a(f's_mov_b32 s{84+k}, s{S_STAMP+2*k}') for k in range(8)]
        a.label(lt)
    tr(0)
    O = R+24
    a(f'ds_read_b128 {vr(O,4)}, v{r.aOr}'); a(f'ds_read_b128 {vr(O+4,4)}, v{r.aOr} offset:1024')
    add64(a, S_HB, S_HB, HB_REC)
    a(f's_xor_b32 s{S_EM}, s{S_EM}, 1'); a(f's_add_u32 s{S_STEP}, s{S_STEP}, 1'); a(f's_mov_b32 s{S_SPIN}, 0')
    land = {('o',0,0): M+16, ('o',0,1): M+24, ('o',6,0): R+8, ('o',6,1): R+16, ('o',7,0): R, ('o',7,1): M+16}
    def ob(b): return vr(land[b], 8) if b in land else r.blk(b)
    def tp(t):
        c = A+4*t
        return [f'v_add_f32 v{c}, v{c}, v{c+2}', f'v_add_f32 v{c+1}, v{c+1}, v{c+3}']
    def c01(u):
        c = A+16*u
        return [f'v_cvt_pk_bf16_f32 v{c+2}, v{c+1}, v{c+5}', f'v_cvt_pk_bf16_f32 v{c}, v{c}, v{c+4}', f'v_and_or_b32 v{c}, v{c}, -2, s{S_EP}']
    def c23(u):
        c = A+16*u
        return [f'v_cvt_pk_bf16_f32 v{c+3}, v{c+9}, v{c+13}', f'v_cvt_pk_bf16_f32 v{c+1}, v{c+8}, v{c+12}',
                f'global_store_dwordx4 v{r.aPst}, {vr(c,4)}, s[{(S_CP0,S_CP1)[u]}:{(S_CP0,S_CP1)[u]+1}] {stf}']
    after = {3: tp(0)[:1], 4: tp(0)[1:], 5: tp(1)[:1], 6: tp(1)[1:], 7: c01(0)[:2] + tp(2)[:1], 8: tp(2)[1:] + c01(0)[2:] + tp(3) + c23(0),
             11: tp(4)[:1], 12: tp(4)[1:], 13: tp(5)[:1], 14: tp(5)[1:],
             15: c01(1) + tp(6) + tp(7) + c23(1)}
    lq = [(R, ('o',7,0), 0), (R, ('o',7,0), 1), (M+16, ('o',7,1), 0), (M+16, ('o',7,1), 1)]
    a(f's_cmp_ge_u32 s{S_W}, 2')
    a('s_waitcnt lgkmcnt(0)')
    for t in range(8):
        for k in range(2):
            i = 2*t+k
            if i == 14: a('s_waitcnt lgkmcnt(1)')
            if i == 15: a('s_waitcnt lgkmcnt(0)')
            smf(A+4*t, O+4*k, ob(('o', t, k)))
            al = after.get(i, [])
            for j, l in enumerate(al):
                if i == 15 and j == len(al) - p1e:
                    a(f's_mov_b64 exec, s[{S_XE}:{S_XE+1}]'); nops(d1e); p_loads(); a(XA); nops(ds1)
                a(l)
                if i == 8 and j == len(al) - 1: tr(2)
            if lq and i in (0, 1, 2, 9): ldh(*lq.pop(0))
    if nocomm: ns[0] = 9
    st()
    tr(1)
    def acc_stamps():
        if stamps and ns[0]:
            a('s_waitcnt lgkmcnt(0)')
            n = ns[0]
            for k in range(1, n):
                a(f's_sub_u32 s{S_T}, s{S_STAMP+2*k}, s{S_STAMP+2*k-2}'); a(f's_add_u32 s{84+k}, s{84+k}, s{S_T}')
            a(f's_sub_u32 s{S_T}, s{S_STAMP}, s83'); a(f's_mov_b32 s83, s{S_STAMP+2*(n-1)}')
            a(f's_cmp_eq_u32 s{S_STEP}, 1'); a(f's_cselect_b32 s{S_T}, 0, s{S_T}'); a(f's_add_u32 s84, s84, s{S_T}')
    def kv_copy(younger):
        a(f's_waitcnt vmcnt({younger})')
        for i in range(16): a(f'v_mov_b32 v{r.KX+i}, v{M+i}')
    retr = []
    def red_head(k):
        m32(PD, r.E, PL[k], 0)
        a(f'v_bitop3_b32 v{t0}, v{PL[k]}, v{PL[k]+4}, s{S_EP} bitop3:0x7e')
        a(f'v_and_b32 v{t0}, 1, v{t0}')
        m32(PD, r.E, PL[k]+4, 1)
        a(f'v_cmp_ne_u32 vcc, 0, v{t0}')
    def reduce(late, younger):
        Lok = a.newlabel('Lc_p1'); Lr1 = a.newlabel('Lc_r1'); retr.append((Lr1, Lok, late))
        a(f's_waitcnt vmcnt({younger})')
        tr(3)
        red_head(0)
        if late: e_loads()
        a(f's_cbranch_vccnz {Lr1}')
        a.label(Lok)
        for ror in (8, 4):
            for i in range(4):
                a(f'v_add_f32_dpp v{PD+i}, v{PD+i}, v{PD+i} row_ror:{ror} row_mask:0xf bank_mask:0xf')
        cvt(PD, PD, PD+1); cvt(PD+1, PD+2, PD+3)
        a(f'v_and_or_b32 v{PD}, v{PD}, -2, s{S_EM}')
        a(f's_mov_b64 exec, s[{S_XR}:{S_XR+1}]')
        a(f'global_store_dwordx2 v{r.aMst}, {vr(PD,2)}, s[{S_CM}:{S_CM+1}] {stf}')
        a(XA)
        tr(4)
        a(f's_xor_b32 s{S_EP}, s{S_EP}, 1')
    a(f's_cbranch_scc1 {Llate}')
    if p1e == 0: nops(d1e); p_loads()
    ring_prefetch(a, r)
    if bk1: nops(bkg); p_loads(1)
    kv_copy((0 if nopub else 2) + 2 + 2 + (2 if bk1 else 0))
    zero_regs(a, A, 24); acc_stamps()
    reduce(False, (1 if p1e else 0) + (2 if bk1 else 0))
    nops(d2e)
    e_loads(es)
    a(f's_branch {LA}')
    a.label(Llate)
    ring_prefetch(a, r)
    kv_copy((0 if nopub else 2) + 2)
    nops(d1l)
    p_loads()
    zero_regs(a, A, 24); acc_stamps()
    if bk1: p_loads(1)
    reduce(True, 2 if bk1 else 0)
    a(f's_branch {LA}')
    def spin_or_fail():
        a(f's_add_u32 s{S_SPIN}, s{S_SPIN}, 1'); a(f's_cmp_lt_u32 s{S_SPIN}, 0x40000'); a(f's_cbranch_scc0 {fail}')
    for lr, lok, late in retr:
        a.label(lr)
        lk2 = a.newlabel('Lc_ok2')
        if stamps: a(f's_add_u32 s94, s94, 1')
        if bk1:
            l2 = a.newlabel('Lc_r2')
            p_loads(0); a(f's_waitcnt vmcnt({6 if late else 2})'); red_head(1); a(f's_cbranch_vccz {lk2}')
            a.label(l2)
            spin_or_fail()
            p_loads(1); a('s_waitcnt vmcnt(2)'); red_head(0); a(f's_cbranch_vccz {lk2}')
            p_loads(0); a('s_waitcnt vmcnt(2)'); red_head(1); a(f's_cbranch_vccnz {l2}')
        else:
            spin_or_fail()
            p_loads(0); a('s_waitcnt vmcnt(0)'); red_head(0); a(f's_cbranch_vccnz {lr}')
        a.label(lk2)
        if late: e_loads()
        a(f's_branch {lok}')
    for j in range(5):
        a.label(Lr[j])
        if stamps: a(f's_add_u32 s{95 if j == 0 else 93}, s{95 if j == 0 else 93}, {1 if j == 0 else 63}')
        n = 0
        if j < 4:
            for jj in range(j, 4): e_load(jj); n += 1
        if j == 4 or 6*j > lpos: l_load(); n += 1
        spin_or_fail()
        a(f's_waitcnt vmcnt({n-1})')
        for l in chk(j): a(l)
        if j == 4: a(f'ds_write_b128 v{r.aMw}, {vr(M+16,4)}')
        a(f's_cbranch_vccnz {Lr[j]}')
        if j == 4: a('s_waitcnt lgkmcnt(0)')
        a(f's_branch {Lc[j]}')
    if fused: prog_block(Lhb, Lhk, S_T3)
    a.label(Ldone)
    a('s_waitcnt vmcnt(0)')
    if fused:
        a('s_barrier'); a(f'v_mov_b32 v{t0}, 64'); a(f's_mov_b64 exec, s[{S_XF}:{S_XF+1}]')
        a(f'global_store_dword v{r.Z}, v{t0}, s[{S_FW}:{S_FW+1}] sc1'); a(XA)

def chain_init_comm(a, r, stf):
    T = r.R
    a(f's_load_dwordx2 s[{S_TMP}:{S_TMP+1}], s[0:1], {KA_MEM0}')
    a(f'v_and_b32 v{T}, 0x30, v{r.aOr}'); a(f'v_bfe_u32 v{T+1}, v{r.aOr}, 8, 1'); a(f'v_lshl_add_u32 v{T}, v{T+1}, 10, v{T}')
    a(f'v_add_u32 v{T}, s48, v{T}')
    a(f's_xor_b32 s{S_T}, s{S_EP}, 1')
    for i in range(4): a(f'v_mov_b32 v{T+4+i}, s{S_T}')
    a('s_waitcnt lgkmcnt(0)')
    a(f'global_load_dwordx2 {vr(T+2,2)}, v{T}, s[{S_TMP}:{S_TMP+1}]')
    a(f'global_store_dwordx4 v{r.aOr}, {vr(T+4,4)}, s[{S_CPR}:{S_CPR+1}] {stf}')
    a(f'global_store_dwordx4 v{r.aOr}, {vr(T+4,4)}, s[{S_CPR}:{S_CPR+1}] offset:1024 {stf}')
    a('s_waitcnt vmcnt(0)')
    a(f'v_and_or_b32 v{T+2}, v{T+2}, -2, s{S_EM}')
    a(f's_mov_b64 exec, s[{S_XR}:{S_XR+1}]')
    a(f'global_store_dwordx2 v{r.aMst}, {vr(T+2,2)}, s[{S_CM}:{S_CM+1}] {stf}')
    a('s_mov_b64 exec, -1')
    a('s_waitcnt vmcnt(0)')

def group_barrier(a, r, dbg_off, count, fail):
    T = r.R
    l1 = a.newlabel('Lgb'); l2 = a.newlabel('Lgb'); l3 = a.newlabel('Lgb')
    a('s_barrier')
    a(f'v_mov_b32 v{T}, {dbg_off}'); a(f'v_mov_b32 v{T+1}, 1')
    a(f's_cmp_lg_u32 s{S_W}, 0'); a(f's_cbranch_scc1 {l1}')
    a('s_mov_b64 exec, 1')
    a(f'global_atomic_add v{T}, v{T+1}, s[{S_DBG}:{S_DBG+1}] sc1')
    a('s_mov_b64 exec, -1')
    a.label(l1)
    a(f's_mov_b32 s{S_SPIN}, 0')
    a.label(l2)
    a(f'global_load_dword v{T+2}, v{T}, s[{S_DBG}:{S_DBG+1}] sc1')
    a('s_waitcnt vmcnt(0)')
    a(f'v_readfirstlane_b32 s{S_T}, v{T+2}')
    a(f's_cmp_ge_u32 s{S_T}, {count}'); a(f's_cbranch_scc1 {l3}')
    a('s_sleep 2')
    a(f's_add_u32 s{S_SPIN}, s{S_SPIN}, 1'); a(f's_cmp_lt_u32 s{S_SPIN}, 0x40000'); a(f's_cbranch_scc1 {l2}')
    a(f's_branch {fail}')
    a.label(l3)

def chain_kernel_standalone(half, stamps=False, **kw):
    a = Asm(); a._lbl = 1000 * (half + 1); r = ChainRegs()
    end = a.newlabel('Lc_end')
    a(f's_load_dwordx2 s[{S_WS}:{S_WS+1}], s[0:1], {KA_WS}')
    a(f's_load_dwordx2 s[{S_DBG}:{S_DBG+1}], s[0:1], {KA_DBG}')
    a(f's_getreg_b32 s{S_T}, hwreg(HW_REG_XCC_ID, 0, 4)')
    a('s_waitcnt lgkmcnt(0)')
    a(f's_cmp_lg_u32 s{S_T}, 0'); a(f's_cbranch_scc1 {end}')
    l0 = a.newlabel('Lc')
    a('v_mov_b32 v1, 0'); a('v_mov_b32 v2, 1'); a('v_cmp_eq_u32 vcc, 0, v0')
    a('s_and_saveexec_b64 s[12:13], vcc'); a(f's_cbranch_execz {l0}')
    a(f'global_atomic_add v3, v1, v2, s[{S_DBG}:{S_DBG+1}] sc0 sc1'); a('s_waitcnt vmcnt(0)')
    a('ds_write_b32 v1, v3'); a('s_waitcnt lgkmcnt(0)')
    a.label(l0)
    a('s_mov_b64 exec, s[12:13]'); a('s_barrier')
    a('ds_read_b32 v3, v1'); a('s_waitcnt lgkmcnt(0)'); a(f'v_readfirstlane_b32 s{S_H}, v3'); a('s_barrier')
    a(f's_cmp_ge_u32 s{S_H}, 32'); a(f's_cbranch_scc1 {end}')
    if stamps: a('s_memtime s[56:57]')
    chain_setup(a, r)
    a(f's_mov_b32 s{S_EP}, 0'); a(f's_mov_b32 s{S_EM}, 0')
    chain_init_comm(a, r, '')
    group_barrier(a, r, 4, 32, end)
    if stamps: a('s_memtime s[52:53]')
    chain_half(a, r, half, '', end, stamps, **kw)
    if stamps:
        a('s_memtime s[54:55]'); a('s_waitcnt lgkmcnt(0)')
        a('s_sub_u32 s96, s52, s56'); a('s_sub_u32 s97, s54, s52')
        for k in range(16): a(f'v_mov_b32 v{k}, s{84+k}')
        a(f's_lshl_b32 s{S_T}, s{S_H}, 2'); a(f's_add_u32 s{S_T}, s{S_T}, s{S_W}'); a(f's_lshl_b32 s{S_T}, s{S_T}, 6')
        a(f's_add_u32 s{S_T}, s{S_T}, {STAMP_OFF}')
        a(f'v_mov_b32 v16, s{S_T}')
        for k in range(4): a(f'global_store_dwordx4 v16, {vr(4*k,4)}, s[{S_WS}:{S_WS+1}] offset:{16*k}')
    a.label(end)
    a('s_waitcnt vmcnt(0)'); a('s_endpgm')
    return a.lines

if __name__ == '__main__':
    import sys
    rep = []
    lines = chain_kernel_standalone(0, stamps=True)
    lines = fix_hazards(lines, rep)
    for e in check_waits(lines, 'chain'): print(e)
    for x in rep: print(x)
    t = assemble_file('', [('chain0_kernel', 256, 256, 163840)], [('chain0_kernel', lines, 512, 256)])
    open('chain_test.s', 'w').write(t)
    print(len(lines))

def autostamp(lines, start, stride, n=9):
    out = []; inb = False; idx = 0; k = 0; names = []
    for l in lines:
        if l == '; BODY_BEGIN': inb = True
        if l == '; BODY_END':
            while k < n:
                out.append(f's_memtime s[{S_STAMP+2*k}:{S_STAMP+2*k+1}]'); k += 1
            inb = False
        if l.startswith('s_cbranch_vccnz'): l = 's_cbranch_vccnz ' + f'Lnx_{len(out)}\nLnx_{len(out)}:'
        if inb and is_instr(l.split('\n')[0]):
            if k < n and idx == start + k * stride:
                out.append(f's_memtime s[{S_STAMP+2*k}:{S_STAMP+2*k+1}]'); k += 1
            names.append(l.split('\n')[0]); idx += 1
        out += l.split('\n')
    return out, names
```

```python
MB = 1 << 20
class WS: pass
W = WS()
off = 0
def _a(n):
    global off
    r = off; off += (n + 4095) // 4096 * 4096
    return r
W.FLAGS = _a(256 * 1024)
W.CP = _a(256 * 1024)
W.CM = _a(8 * 1024)
W.CB = _a(4 * 1024)
W.X0 = _a(2 * MB)
W.H = []
for hf in range(2):
    h = WS()
    h.XNA = _a(2 * MB); h.XNB = _a(2 * MB); h.YA = _a(2 * MB)
    h.QA = _a(2 * MB); h.KA = _a(2 * MB); h.VA = _a(2 * MB); h.OA = _a(2 * MB); h.X1 = _a(2 * MB)
    h.PT = _a(16 * MB)
    h.X2 = _a(2 * MB)
    W.H.append(h)
off = (off + 2 * MB - 1) // (2 * MB) * (2 * MB)
for hf in range(2):
    W.H[hf].HB = _a(64 * MB)
HB_K, HB_V, HB_Q, HB_KM, HB_VM, HB_REC = 0, 8192, 16384, 24576, 26624, 32768
W.END = off
assert off <= 256 * MB
KA_X, KA_WQKV, KA_WOA, KA_BX, KA_MEM0, KA_WQ, KA_WK, KA_WV, KA_WO, KA_SEG, KA_OUT, KA_DBG, KA_WS = [8 * i for i in range(13)]

def FL(half, kind, idx=0):
    base = W.FLAGS + half * 65536
    o = {'XNA': 0, 'OA': 8192, 'YA': 16384, 'XNB': 24576, 'PT': 32768, 'QKVA': 40960, 'HEAD': 45056, 'CHP': 49152}[kind]
    return base + o + idx * 128
FLAG_BYTES = 131072
STAMP_OFF = W.FLAGS + 131072
```

```python
from asmlib import *
from layout import *
import math
import chain as C
from work import *

S_DBG = 44; S_SLOT = 36; S_TK = 37; S_SPIN = 38; S_PF = 39; S_FO = 40; S_N = 41; S_X = 42
L, L16 = 1, 2
VZ = 10; VF = 11
SPIN_MAX = 0x60000

class Mega:
    def __init__(self, stamps=False, chain_kw={}):
        self.a = Asm(); self.stamps = stamps; self.chain_kw = chain_kw
        self.end = 'Lm_end'
        self.tbsleep = chain_kw.pop('tbsleep', 8); self.wsleep = chain_kw.pop('wsleep', 4)
    def stamp(self, k):
        if not self.stamps: return
        a = self.a; l = a.newlabel('Lst')
        a(f's_cmp_lg_u32 s{S_W}, 0'); a(f's_cbranch_scc1 {l}')
        a('s_memrealtime s[96:97]'); a(f's_lshl_b32 s98, s99, 7'); a(f's_add_u32 s98, s98, {STAMP_OFF + 4*k}'); a('s_waitcnt lgkmcnt(0)')
        a('s_mov_b64 exec, 1'); a(f'v_writelane_b32 v{self.sv}, s96, 0'); a(f'v_writelane_b32 v{self.sv+1}, s98, 0')
        a(f'v_mov_b32 v{self.sv+1}, s98')
        a(f'global_store_dword v{self.sv+1}, v{self.sv}, s[{S_WS}:{S_WS+1}]'); a('s_waitcnt vmcnt(0)'); a('s_mov_b64 exec, -1')
        a.label(l)
    def flag_off(self, base, idx_sgpr):
        self.a(f's_lshl_b32 s{S_FO}, s{idx_sgpr}, 7'); self.a(f's_add_u32 s{S_FO}, s{S_FO}, {base}')
    def flag_issue(self):
        self.a(f'v_mov_b32 v{VZ}, s{S_FO}'); self.a(f'global_load_dword v{VF}, v{VZ}, s[{S_WS}:{S_WS+1}] sc1')
    def wait(self, n, sleep=None):
        a = self.a; l1 = a.newlabel('Lw'); l2 = a.newlabel('Lw')
        a(f's_mov_b32 s{S_SPIN}, 0'); a(f'v_mov_b32 v{VZ}, s{S_FO}')
        a.label(l1)
        a(f'global_load_dword v{VF}, v{VZ}, s[{S_WS}:{S_WS+1}] sc1'); a('s_waitcnt vmcnt(0)')
        a(f'v_readfirstlane_b32 s{S_X}, v{VF}'); a(f's_cmp_ge_u32 s{S_X}, {n}'); a(f's_cbranch_scc1 {l2}')
        a(f's_sleep {sleep or self.wsleep}')
        a(f's_add_u32 s{S_SPIN}, s{S_SPIN}, 1'); a(f's_cmp_lt_u32 s{S_SPIN}, {SPIN_MAX}'); a(f's_cbranch_scc1 {l1}')
        a(f's_branch {self.end}')
        a.label(l2)
    def signal(self, barrier=True, store=None):
        a = self.a; l = a.newlabel('Ls')
        a('s_waitcnt vmcnt(0)')
        if barrier:
            a('s_barrier'); a(f's_cmp_lg_u32 s{S_W}, 0'); a(f's_cbranch_scc1 {l}')
        a(f'v_mov_b32 v{VZ}, s{S_FO}'); a(f'v_mov_b32 v{VF}, {"1" if store is None else "s%d" % store}')
        a('s_mov_b64 exec, 1')
        if store is None: a(f'global_atomic_add v{VZ}, v{VF}, s[{S_WS}:{S_WS+1}] sc1')
        else: a(f'global_store_dword v{VZ}, v{VF}, s[{S_WS}:{S_WS+1}] sc1')
        a('s_mov_b64 exec, -1')
        a.label(l)

    def stream(self, ngr, xsrc, inflag, nin, tiles, epilogue, outflag):
        a = self.a; xa = 9; XR = 12
        lp = a.newlabel('Lg_loop'); done = a.newlabel('Lg_done')
        a(f's_lshl_b32 s{S_XO}, s{S_B}, 15'); a(f's_add_u32 s{S_XO}, s{S_XO}, {xsrc}'); a(f's_mov_b32 s{S_BUF}, {128*1024}')
        a(f's_mov_b32 s{S_PF}, 0'); a(f's_mov_b32 s{S_N}, 0')
        a('s_barrier')
        a.label(lp)
        have = a.newlabel('Lg_have')
        a(f's_cmp_lg_u32 s{S_PF}, 0'); a(f's_cbranch_scc1 {have}')
        if inflag is not None:
            self.flag_off(inflag, S_B); self.wait(nin)
        dma_x(a, L16, S_XO, S_BUF, 'sc1')
        a.label(have)
        a('s_waitcnt vmcnt(0)'); a('s_barrier')
        a(f'v_add_u32 v{xa}, s{S_BUF}, v{L16}')
        a(f's_add_u32 s{S_TK}, s{S_B}, {ngr}'); a(f's_xor_b32 s{S_BUF}, s{S_BUF}, {128*1024}'); a(f's_add_u32 s{S_XO}, s{S_XO}, {ngr*32768}')
        if inflag is not None:
            a(f's_min_u32 s{S_T}, s{S_TK}, 63'); self.flag_off(inflag, S_T); self.flag_issue()
        def pref():
            sk = a.newlabel('Lg_sk')
            a(f's_mov_b32 s{S_PF}, 0')
            a(f's_cmp_ge_u32 s{S_TK}, 64'); a(f's_cbranch_scc1 {sk}')
            if inflag is not None:
                a('s_waitcnt vmcnt(0)'); a(f'v_readfirstlane_b32 s{S_X}, v{VF}'); a(f's_cmp_lt_u32 s{S_X}, {nin}'); a(f's_cbranch_scc1 {sk}')
            dma_x(a, L16, S_XO, S_BUF, 'sc1'); a(f's_mov_b32 s{S_PF}, 1')
            a.label(sk)
        gemm_core(a, xa, XR, tiles, {(14 if len(tiles) > 1 else 30) if inflag is not None else 0: pref})
        epilogue()
        outflag()
        add64(a, S_OUT, S_OUT, ngr*32768)
        a(f's_mov_b32 s{S_B}, s{S_TK}')
        a(f's_cmp_lt_u32 s{S_B}, 64'); a(f's_cbranch_scc1 {lp}')

    def proj_weights(self, isB):
        a = self.a
        a(f's_lshl_b32 s{S_OFF}, s{S_A}, 8')
        if isB: mats = [(KA_WK, 4*MB, 0, 'a', 128), (KA_WV, 4*MB, 0, 'v', 128), (KA_WQ, 4*MB, 0, 'a', 0)]; stride = 8192
        else: mats = [(KA_WQKV, 1536*1024, 1024, 'a', 128), (KA_WQKV, 1536*1024, 2048, 'v', 128), (KA_WQKV, 1536*1024, 0, 'a', 0)]; stride = 3072
        load_wslices(a, mats, stride, L, 3, 4, 5)
    def proj_run(self, half, isB, ngr, nowait=False):
        a = self.a; H = W.H[half]
        t0, t1, vq, vk, vv = 3, 4, 6, 7, 8; ACC = 28
        ro = (HB_Q, HB_K, HB_V) if isB else (0, H.KA - H.QA, H.VA - H.QA)
        a(f's_lshl_b32 s{S_T}, s{S_W}, 11')
        a(f's_add_u32 s{S_T2}, s{S_T}, {ro[0]}'); a(f'v_add_u32 v{vq}, s{S_T2}, v{L16}')
        a(f's_add_u32 s{S_T2}, s{S_T}, {ro[1]}'); a(f'v_add_u32 v{vk}, s{S_T2}, v{L16}')
        pi_of(a, t0, L, t1); vpos16(a, vv, t0, L, t1)
        a(f's_add_u32 s{S_T2}, s{S_T}, {ro[2]}'); a(f'v_add_u32 v{vv}, s{S_T2}, v{vv}')
        a(f's_lshl_b32 s{S_T}, s{S_A}, {21 if isB else 13}'); a(f's_lshl_b32 s{S_T2}, s{S_B}, 15'); a(f's_add_u32 s{S_T}, s{S_T}, s{S_T2}')
        a(f's_add_u32 s{S_T}, s{S_T}, {H.HB if isB else H.QA}'); add64(a, S_OUT, S_WS, f's{S_T}')
        a(f's_mov_b32 s{S_M}, {f2u(0.25*math.log2(math.e)):#x}')
        def epi():
            pack_store(a, ACC+16, vk, S_OUT, 'sc1'); pack_store(a, ACC+32, vv, S_OUT, 'sc1'); pack_store(a, ACC, vq, S_OUT, 'sc1', scale=None if isB else S_M)
        def outf():
            if isB:
                self.flag_off(FL(half, 'HEAD'), S_A); a(f's_and_b32 s{S_T}, s{S_B}, 1'); a(f's_lshl_b32 s{S_T}, s{S_T}, 2'); a(f's_add_u32 s{S_FO}, s{S_FO}, s{S_T}')
                a(f's_add_u32 s{S_N}, s{S_N}, 1'); self.signal(store=S_N)
            else:
                self.flag_off(FL(half, 'QKVA'), S_A); self.signal()
        self.stream(ngr, H.XNB if isB else H.XNA, None if nowait else FL(half, 'XNB' if isB else 'XNA'), 4,
                    [(ACC+16, 'a', 128, False), (ACC+32, 'v', 128, True), (ACC, 'a', 0, False)], epi, outf)
    def woa_run(self, half, ngr):
        a = self.a; H = W.H[half]; vo = 6; ACC = 28
        a(f's_lshl_b32 s{S_T}, s{S_W}, 11'); a(f'v_add_u32 v{vo}, s{S_T}, v{L16}')
        a(f's_lshl_b32 s{S_T}, s{S_A}, 13'); a(f's_lshl_b32 s{S_T2}, s{S_B}, 15'); a(f's_add_u32 s{S_T}, s{S_T}, s{S_T2}')
        a(f's_add_u32 s{S_T}, s{S_T}, {H.YA}'); add64(a, S_OUT, S_WS, f's{S_T}')
        def outf(): self.flag_off(FL(half, 'YA'), S_B); self.signal()
        self.stream(ngr, H.OA, FL(half, 'OA'), 32, [(ACC, 'v', 128, False)], lambda: pack_store(a, ACC, vo, S_OUT, 'sc1'), outf)
    def rb_run(self, half, kind, ngr):
        a = self.a; H = W.H[half]
        lp = a.newlabel('Lr_loop'); a.label(lp)
        self.flag_off(FL(half, 'YA' if kind == 1 else 'PT'), S_A); self.wait(4 if kind == 1 else 32)
        xprev = W.X0 if half == 0 else W.H[0].X2
        if kind == 1: rb_body(a, 1, xprev, False, H.YA, 0, 32768, H.X1, False, H.XNB, 'sc1', 'sc1')
        elif half == 0: rb_body(a, 8, H.X1, False, H.PT, 32768, 8*32768, H.X2, False, W.H[1].XNA, 'sc1', 'sc1')
        else: rb_body(a, 8, H.X1, False, H.PT, 32768, 8*32768, KA_OUT, True, None, 'sc1', 'sc1')
        if kind == 1 or half == 0:
            self.flag_off(FL(half, 'XNB') if kind == 1 else FL(1, 'XNA'), S_A); self.signal()
        a(f's_add_u32 s{S_A}, s{S_A}, {ngr}'); a(f's_cmp_lt_u32 s{S_A}, 64'); a(f's_cbranch_scc1 {lp}')

    def att_run(self, half, npg):
        a = self.a; H = W.H[half]
        t0, t1, t2, ak, av, idx, lw = range(3, 10); mx = 204
        Q = 12; QN = 16; K0 = 20; Cc = 24; O = 40; D = [56, 72, 88]; KF = 104; MG = 168
        pi_of(a, t0, L, t1)
        a(f'v_and_b32 v{t1}, 32, v{L}'); a(f'v_add_u32 v{ak}, v{t0}, v{t1}'); a(f'v_lshlrev_b32 v{ak}, 4, v{ak}')
        a(f'v_and_b32 v{t0}, 15, v{t0}'); a(f's_and_b32 s{S_T}, s{S_A}, 1'); a(f's_lshl_b32 s{S_T}, s{S_T}, 4'); a(f'v_add_u32 v{t0}, s{S_T}, v{t0}')
        vpos16(a, av, t0, L, t1)
        a(f'v_mov_b32 v{idx}, 0xdddd')
        a(f's_mul_i32 s{S_T}, s{S_W}, 3072'); a(f'v_add_u32 v{lw}, s{S_T}, v{L16}')
        a(f'v_mov_b32 v{t0}, 0x3f803f80')
        for i in range(128): a(f'v_accvgpr_write_b32 a{i}, v{t0}')
        a(f's_lshr_b32 s{S_T}, s{S_A}, 3'); self.flag_off(FL(half, 'QKVA'), S_T); self.wait(64, sleep=2)
        self.stamp(2 + 8*half)
        a(f's_lshl_b32 s{S_T}, s{S_A}, 10'); a(f's_lshl_b32 s{S_T2}, s{S_B}, 15'); a(f's_add_u32 s{S_T2}, s{S_T2}, s{S_T}')
        a(f's_add_u32 s{S_T3}, s{S_T2}, {H.QA}'); add64(a, S_IN, S_WS, f's{S_T3}')
        a(f's_add_u32 s{S_T3}, s{S_T2}, {H.OA}'); add64(a, S_OUT, S_WS, f's{S_T3}')
        a(f'global_load_dwordx4 {vr(QN,4)}, v{L16}, s[{S_IN}:{S_IN+1}] sc1')
        a(f's_add_u32 s{S_K0}, s{S_T}, {H.KA}')
        a(f'buffer_load_dwordx4 {vr(K0,4)}, v{ak}, s[{S_WSRD}:{S_WSRD+3}], s{S_K0} offen sc1')
        a(f's_lshl_b32 s{S_T2}, s{S_W}, 19'); a(f's_add_u32 s{S_K0}, s{S_K0}, s{S_T2}')
        a(f's_lshr_b32 s{S_K1}, s{S_A}, 1'); a(f's_lshl_b32 s{S_K1}, s{S_K1}, 11'); a(f's_add_u32 s{S_K1}, s{S_K1}, s{S_T2}'); a(f's_add_u32 s{S_K1}, s{S_K1}, {H.VA}')
        a(f's_mov_b32 s{S_M}, 0x0000ffff'); a(f's_mov_b32 s{S_M+1}, 0x0000ffff')
        for t in range(16):
            a(f's_add_u32 s{S_T}, s{S_K0}, {t*32768}')
            a(f'buffer_load_dwordx4 {vr(KF+4*t,4)}, v{ak}, s[{S_WSRD}:{S_WSRD+3}], s{S_T} offen sc1')
            a(f's_add_u32 s{S_T}, s{S_K1}, {t*32768}')
            a(f's_mov_b64 exec, s[{S_M}:{S_M+1}]')
            for b in range(2): a(f'buffer_load_dwordx4 {vr(8*t+4*b,4,"a")}, v{av}, s[{S_WSRD}:{S_WSRD+3}], s{S_T} offen offset:{1024*b} sc1')
            a('s_mov_b64 exec, -1')
        a(f's_mov_b32 s{S_BUF}, 0'); a(f's_mov_b32 s{S_CNT}, 0'); a(f's_mov_b32 s{S_PF}, 0')
        a('s_barrier')
        lp = a.newlabel('La_loop'); run = a.newlabel('La_run'); slow = a.newlabel('La_slow'); nom = a.newlabel('La_nom'); noq = a.newlabel('La_noq'); out = a.newlabel('La_out')
        def rowmax(src, first):
            if first: a(f'v_max3_f32 v{mx}, v{src}, v{src+1}, v{src+2}'); rest = list(range(3, 16))
            else: rest = list(range(16))
            while len(rest) >= 2:
                a(f'v_max3_f32 v{mx}, v{mx}, v{src+rest[0]}, v{src+rest[1]}'); rest = rest[2:]
            if rest: a(f'v_max_f32 v{mx}, v{mx}, v{src+rest[0]}')
        def halfmax():
            a(f'v_mov_b32 v{t0}, v{mx}'); a(f'v_permlane32_swap_b32 v{mx}, v{t0}'); a(f'v_max_f32 v{mx}, v{mx}, v{t0}')
        def pending():
            l = a.newlabel('La_p'); a(f's_cmp_eq_u32 s{S_PF}, 0'); a(f's_cbranch_scc1 {l}')
            self.signal(barrier=False); a(f's_mov_b32 s{S_PF}, 0'); a.label(l)
        a('s_waitcnt vmcnt(0)')
        a.label(lp)
        for i in range(4): a(f'v_mov_b32 v{Q+i}, v{QN+i}')
        a(f's_add_u32 s{S_TK}, s{S_B}, {npg}'); add64(a, S_IN, S_IN, npg*32768)
        a(f's_cmp_ge_u32 s{S_TK}, 64'); a(f's_cbranch_scc1 {noq}')
        a(f'global_load_dwordx4 {vr(QN,4)}, v{L16}, s[{S_IN}:{S_IN+1}] sc1')
        a.label(noq)
        a(mf(D[0], vr(K0,4), vr(Q,4), 0))
        rowmax(D[0], True); halfmax()
        a(f's_mov_b32 s{S_XO}, 0')
        a.label(run)
        for i in range(16): a(f'v_sub_f32 v{Cc+i}, 0, v{mx}')
        for i in range(16): a(f'v_mov_b32 v{O+i}, 0')
        a(mf(D[0], vr(KF,4), vr(Q,4), vr(Cc,16)))
        a(mf(D[1], vr(KF+4,4), vr(Q,4), vr(Cc,16)))
        def pv(t, b): a(f'v_smfmac_f32_32x32x32_bf16 {vr(O,16)}, {vr(8*t+4*b,4,"a")}, {vr(D[t%3]+8*b,8)}, v{idx}')
        for t in range(16):
            d = D[t % 3]
            for i in range(16):
                a(f'v_exp_f32 v{d+i}, v{d+i}')
                if i == 2 and t > 0: pv(t-1, 1)
                if i == 6 and t + 2 < 16: a(mf(D[(t+2)%3], vr(KF+4*(t+2),4), vr(Q,4), vr(Cc,16)))
                if i == 11: pv(t, 0)
            if t == 5: pending()
        pv(15, 1)
        a(f'v_add_u32 v{t1}, s{S_BUF}, v{lw}')
        for j in range(3): a(f'ds_write_b128 v{t1}, {vr(O+4*j,4)} offset:{1024*j}')
        a('s_waitcnt vmcnt(0) lgkmcnt(0)'); a('s_barrier')
        a(f'v_add_u32 v{t1}, s{S_BUF}, v{L16}')
        for w in range(4): a(f'ds_read_b32 v{MG+w}, v{t1} offset:{3072*w+2048}')
        a('s_waitcnt lgkmcnt(0)')
        a(f'v_add_f32 v{MG}, v{MG}, v{MG+1}'); a(f'v_add_f32 v{MG+2}, v{MG+2}, v{MG+3}'); a(f'v_add_f32 v{t2}, v{MG}, v{MG+2}')
        a(f's_xor_b32 s{S_BUF}, s{S_BUF}, 16384')
        a(f'v_cmp_nge_f32 vcc, {f2u(2.0**90):#x}, v{t2}')
        a(f's_cbranch_vccnz {slow}')
        fin = a.newlabel('La_fin'); a.label(fin)
        a(f's_and_b32 s{S_T}, s{S_CNT}, 3'); a(f's_add_u32 s{S_CNT}, s{S_CNT}, 1')
        a(f's_cmp_lg_u32 s{S_T}, s{S_W}'); a(f's_cbranch_scc1 {nom}')
        for w in range(4):
            for j in range(2): a(f'ds_read_b128 {vr(MG+8*w+4*j,4)}, v{t1} offset:{3072*w+1024*j}')
        a(f'v_rcp_f32 v{t2}, v{t2}')
        a('s_waitcnt lgkmcnt(0)')
        for i in range(8):
            a(f'v_add_f32 v{MG+i}, v{MG+i}, v{MG+8+i}'); a(f'v_add_f32 v{MG+16+i}, v{MG+16+i}, v{MG+24+i}')
            a(f'v_add_f32 v{MG+i}, v{MG+i}, v{MG+16+i}'); a(f'v_mul_f32 v{MG+i}, v{MG+i}, v{t2}')
        for i in range(4): a(f'v_cvt_pk_bf16_f32 v{MG+i}, v{MG+2*i}, v{MG+2*i+1}')
        a(f'global_store_dwordx4 v{L16}, {vr(MG,4)}, s[{S_OUT}:{S_OUT+1}] sc1')
        self.flag_off(FL(half, 'OA'), S_B); a(f's_mov_b32 s{S_PF}, 1')
        a.label(nom)
        add64(a, S_OUT, S_OUT, npg*32768)
        a(f's_mov_b32 s{S_B}, s{S_TK}')
        a(f's_cmp_lt_u32 s{S_B}, 64'); a(f's_cbranch_scc1 {lp}')
        pending()
        a(f's_branch {out}')
        a.label(slow)
        a(f's_cmp_lg_u32 s{S_XO}, 0'); a(f's_cbranch_scc1 {fin}')
        a(f's_mov_b32 s{S_XO}, 1')
        for t in range(16):
            a(mf(D[t%2], vr(KF+4*t,4), vr(Q,4), 0))
            rowmax(D[t%2], t == 0)
        halfmax()
        a(f'ds_write_b32 v{lw}, v{mx} offset:32768'); a('s_waitcnt lgkmcnt(0)'); a('s_barrier')
        for w in range(4): a(f'ds_read_b32 v{MG+w}, v{L16} offset:{32768+3072*w}')
        a('s_waitcnt lgkmcnt(0)')
        a(f'v_max3_f32 v{mx}, v{MG}, v{MG+1}, v{MG+2}'); a(f'v_max_f32 v{mx}, v{mx}, v{MG+3}')
        a(f's_branch {run}')
        a.label(out)
        a('s_barrier')

    def tb_weights(self):
        a = self.a
        a(f's_lshr_b32 s{S_T}, s{S_A}, 2'); a(f's_lshl_b32 s{S_T}, s{S_T}, 19'); a(f's_and_b32 s{S_T2}, s{S_A}, 3'); a(f's_lshl_b32 s{S_T2}, s{S_T2}, 8')
        a(f's_add_u32 s{S_OFF}, s{S_T}, s{S_T2}')
        load_wslices(a, [(KA_WO, 4*MB, 0, 'a', 128)], 1024, L, 3, 4, 5)
    def tb_run(self, half, ngr):
        a = self.a; H = W.H[half]
        t0, t1, akm, av, avm, vo, xw = range(3, 10); mx = 240; FG = 244
        XR = 12; CM = 28; SX = 44; SM = 60; Q = 76; K = 108; KM = 140; V = 172; VM = 204; P = 212; PM = 220; ACC = 224
        OT = Q
        a(f'v_and_b32 v{t0}, 7, v{L}'); a(f'v_lshlrev_b32 v{akm}, 4, v{t0}'); a(f'v_lshrrev_b32 v{t0}, 5, v{L}'); a(f'v_lshl_add_u32 v{akm}, v{t0}, 7, v{akm}')
        a(f'v_add_u32 v{akm}, {HB_KM}, v{akm}')
        pi_of(a, t0, L, t1); vpos16(a, av, t0, L, t1); a(f'v_add_u32 v{av}, {HB_V}, v{av}')
        a(f'v_lshlrev_b32 v{avm}, 2, v{t0}'); a(f'v_lshrrev_b32 v{t1}, 5, v{L}'); a(f'v_lshl_add_u32 v{avm}, v{t1}, 8, v{avm}'); a(f'v_add_u32 v{avm}, {HB_VM}, v{avm}')
        a(f's_lshl_b32 s{S_T}, s{S_W}, 11'); a(f'v_add_u32 v{vo}, s{S_T}, v{L16}')
        a(f's_lshl_b32 s{S_T}, s{S_W}, 13'); a(f'v_add_u32 v{xw}, s{S_T}, v{L16}')
        a(f'v_and_b32 v{t0}, 31, v{L}'); a(f'v_lshrrev_b32 v{t1}, 5, v{L}'); a(f'v_lshlrev_b32 v{t1}, 2, v{t1}'); a(f'v_sub_u32 v{t0}, v{t0}, v{t1}')
        a(f'v_mov_b32 v{t1}, {f2u(-1e30):#x}')
        for i in range(16):
            a(f'v_cmp_le_i32 vcc, {8*(i>>2)+(i&3)}, v{t0}'); a(f'v_cndmask_b32 v{CM+i}, v{t1}, 0, vcc')
        a(f's_and_b32 s{S_T}, s{S_A}, 28'); a(f's_add_u32 s{S_T}, s{S_T}, s{S_W}')
        a(f's_lshl_b32 s{S_K0}, s{S_T}, 7'); a(f's_add_u32 s{S_K0}, s{S_K0}, {FL(half, "HEAD")}')
        a(f's_lshl_b32 s{S_T}, s{S_T}, 21')
        a(f's_lshl_b32 s{S_T2}, s{S_B}, 15'); a(f's_add_u32 s{S_XO}, s{S_T}, s{S_T2}'); a(f's_add_u32 s{S_XO}, s{S_XO}, {H.HB}')
        a(f's_lshl_b32 s{S_T}, s{S_B}, 18'); a(f's_lshl_b32 s{S_T2}, s{S_A}, 13'); a(f's_add_u32 s{S_T}, s{S_T}, s{S_T2}'); a(f's_add_u32 s{S_T}, s{S_T}, {H.PT}')
        add64(a, S_OUT, S_WS, f's{S_T}')
        a(f's_mov_b32 s{S_M}, {f2u(math.log2(math.e)/math.sqrt(128.0)):#x}')
        a(f's_mov_b32 s{S_N}, 0'); a(f's_mov_b32 s{S_K1}, 0')
        def bl(n, dst, va, so, off): a(f'buffer_load_dword{n} {vr(dst, 4 if n else 1)}, v{va}, s[{S_WSRD}:{S_WSRD+3}], s{so} offen offset:{off} sc1')
        def poll(which):
            l1 = a.newlabel('Lt_p'); l2 = a.newlabel('Lt_p'); l3 = a.newlabel('Lt_p')
            a(f's_mov_b32 s{S_SPIN}, 0'); a(f's_branch {l3}')
            a.label(l1)
            if which == S_N:
                a(f'v_mov_b32 v{VZ}, s{S_K0}')
                a(f'global_load_dwordx2 {vr(FG,2)}, v{VZ}, s[{S_WS}:{S_WS+1}] sc1'); a('s_waitcnt vmcnt(0)')
                a(f'v_lshlrev_b32 v{FG}, 1, v{FG}'); a(f'v_lshl_or_b32 v{FG+1}, v{FG+1}, 1, 1'); a(f'v_min_u32 v{FG}, v{FG}, v{FG+1}')
            else:
                a(f's_add_u32 s{S_X}, s{S_K0}, {FL(half, "CHP") - FL(half, "HEAD")}'); a(f'v_mov_b32 v{VZ}, s{S_X}')
                a(f'global_load_dword v{FG}, v{VZ}, s[{S_WS}:{S_WS+1}] sc1'); a('s_waitcnt vmcnt(0)')
            a(f'v_readfirstlane_b32 s{which}, v{FG}')
            a(f's_cmp_gt_u32 s{which}, s{S_B}'); a(f's_cbranch_scc1 {l2}')
            a(f's_sleep {self.tbsleep}')
            a(f's_add_u32 s{S_SPIN}, s{S_SPIN}, 1'); a(f's_cmp_ge_u32 s{S_SPIN}, {SPIN_MAX}'); a(f's_cbranch_scc1 {self.end}')
            a.label(l3)
            a(f's_cmp_gt_u32 s{which}, s{S_B}'); a(f's_cbranch_scc0 {l1}')
            a.label(l2)
        lp = a.newlabel('Lt_loop')
        a.label(lp)
        poll(S_N)
        a(f's_add_u32 s{S_T}, s{S_XO}, 4096'); a(f's_add_u32 s{S_T2}, s{S_XO}, {HB_Q}'); a(f's_add_u32 s{S_T3}, s{S_XO}, {HB_Q+4096}')
        for kb in range(8):
            bl('x4', K+4*kb, L16, S_XO if kb < 4 else S_T, (kb%4)*1024)
            bl('x4', Q+4*kb, L16, S_T2 if kb < 4 else S_T3, (kb%4)*1024)
        for f in range(8): bl('x4', V+4*f, av, S_XO if f < 4 else S_T, (f%4)*1024)
        poll(S_K1)
        for kb in range(8): bl('x4', KM+4*kb, akm, S_XO, kb*256)
        for t in range(4):
            for e in range(2): bl('', VM+2*t+e, avm, S_XO, t*512 + e*128)
        for kb in range(8):
            a(f's_waitcnt vmcnt({24 + 14 - 2*kb})')
            a(mf(SX, vr(K+4*kb,4), vr(Q+4*kb,4), vr(SX,16) if kb else vr(CM,16)))
        a('s_waitcnt vmcnt(8)')
        for kb in range(8): a(mf(SM, vr(KM+4*kb,4), vr(Q+4*kb,4), vr(SM,16) if kb else 0))
        E = [SX+i for i in range(16)] + [SM+i for i in range(4)]
        a(f'v_max3_f32 v{mx}, v{E[0]}, v{E[1]}, v{E[2]}')
        for i in range(3, 19, 2): a(f'v_max3_f32 v{mx}, v{mx}, v{E[i]}, v{E[i+1]}')
        a(f'v_max_f32 v{mx}, v{mx}, v{E[19]}')
        a(f'v_mov_b32 v{t0}, v{mx}'); a(f'v_permlane32_swap_b32 v{mx}, v{t0}'); a(f'v_max_f32 v{mx}, v{mx}, v{t0}')
        a(f'v_mul_f32 v{mx}, s{S_M}, v{mx}')
        for e in E: a(f'v_fma_f32 v{e}, v{e}, s{S_M}, -v{mx}')
        for e in E: a(f'v_exp_f32 v{e}, v{e}')
        a(f'v_add_f32 v{t1}, v{E[0]}, v{E[1]}')
        for e in E[2:]: a(f'v_add_f32 v{t1}, v{t1}, v{e}')
        a(f'v_mov_b32 v{t0}, v{t1}'); a(f'v_permlane32_swap_b32 v{t1}, v{t0}'); a(f'v_add_f32 v{t1}, v{t1}, v{t0}')
        a(f'v_rcp_f32 v{t1}, v{t1}')
        for e in E: a(f'v_mul_f32 v{e}, v{e}, v{t1}')
        for i in range(8): a(f'v_cvt_pk_bf16_f32 v{P+i}, v{SX+2*i}, v{SX+2*i+1}')
        for i in range(2): a(f'v_cvt_pk_bf16_f32 v{PM+i}, v{SM+2*i}, v{SM+2*i+1}')
        a('s_waitcnt vmcnt(0)')
        for t in range(4):
            o = OT+16*t
            a(f'v_mfma_f32_32x32x8_bf16 {vr(o,16)}, {vr(VM+2*t,2)}, {vr(PM,2)}, 0')
            for j in range(2): a(mf(o, vr(V+8*t+4*j,4), vr(P+4*j,4), vr(o,16)))
        for t in range(4):
            for j in range(2):
                o = OT+16*t+8*j
                for i in range(4): a(f'v_cvt_pk_bf16_f32 v{o+i}, v{o+2*i}, v{o+2*i+1}')
                a(f'ds_write_b128 v{xw}, {vr(o,4)} offset:{(2*t+j)*1024}')
        a('s_waitcnt lgkmcnt(0)'); a('s_barrier')
        gemm_core(a, L16, XR, [(ACC, 'a', 128, False)])
        pack_store(a, ACC, vo, S_OUT, 'sc1')
        self.flag_off(FL(half, 'PT'), S_B); self.signal()
        add64(a, S_OUT, S_OUT, ngr*8*32768); a(f's_add_u32 s{S_XO}, s{S_XO}, {ngr*32768}')
        a(f's_add_u32 s{S_B}, s{S_B}, {ngr}'); a(f's_cmp_lt_u32 s{S_B}, 64'); a(f's_cbranch_scc1 {lp}')

    def build(self):
        a = self.a; end = self.end
        a(f's_cmp_ge_u32 s2, 256'); a(f's_cbranch_scc1 {end}')
        a(f's_load_dwordx2 s[{S_DBG}:{S_DBG+1}], s[0:1], {KA_DBG}')
        common_prologue(a, L, L16)
        lw = a.newlabel('Le'); lo = a.newlabel('Le'); ls = a.newlabel('Le'); lg = a.newlabel('Le')
        a(f's_cmp_lg_u32 s{S_W}, 0'); a(f's_cbranch_scc1 {lw}')
        a(f's_getreg_b32 s{S_X}, hwreg(HW_REG_XCC_ID, 0, 3)')
        a('s_mov_b64 exec, 1')
        a(f's_lshl_b32 s{S_T}, s{S_X}, 2'); a(f'v_mov_b32 v3, s{S_T}'); a('v_mov_b32 v4, 1'); a('v_mov_b32 v6, 32')
        a(f'global_atomic_add v5, v3, v4, s[{S_DBG}:{S_DBG+1}] sc0 sc1'); a('s_waitcnt vmcnt(0)')
        a(f'global_atomic_add v6, v4, s[{S_DBG}:{S_DBG+1}] sc1')
        a(f'v_readfirstlane_b32 s{S_TK}, v5')
        a(f's_lshl_b32 s{S_SLOT}, s{S_X}, 5'); a(f's_add_u32 s{S_SLOT}, s{S_SLOT}, s{S_TK}')
        a(f's_cmp_lt_u32 s{S_TK}, 32'); a(f's_cbranch_scc1 {lg}')
        a('v_mov_b32 v3, 36'); a(f'global_atomic_add v5, v3, v4, s[{S_DBG}:{S_DBG+1}] sc0 sc1'); a('s_waitcnt vmcnt(0)')
        a(f'v_readfirstlane_b32 s{S_TK}, v5'); a(f's_mov_b32 s{S_SPIN}, 0'); a('v_mov_b32 v3, 0')
        a.label(lo)
        a(f'global_load_dword v5, v6, s[{S_DBG}:{S_DBG+1}] sc1'); a('s_waitcnt vmcnt(0)'); a(f'v_readfirstlane_b32 s{S_T}, v5')
        a(f's_cmp_ge_u32 s{S_T}, 256'); a(f's_cbranch_scc1 {ls}')
        a('s_sleep 4'); a(f's_add_u32 s{S_SPIN}, s{S_SPIN}, 1'); a(f's_cmp_lt_u32 s{S_SPIN}, {SPIN_MAX}'); a(f's_cbranch_scc1 {lo}')
        a.label(ls)
        a(f'global_load_dwordx4 v[12:15], v3, s[{S_DBG}:{S_DBG+1}] sc1'); a(f'global_load_dwordx4 v[16:19], v3, s[{S_DBG}:{S_DBG+1}] offset:16 sc1'); a('s_waitcnt vmcnt(0)')
        for x in range(8):
            a(f'v_readfirstlane_b32 s{S_T}, v{12+x}'); a(f's_min_u32 s{S_T}, s{S_T}, 32')
            a(f's_add_u32 s{S_SLOT}, s{S_T}, s{S_TK}'); a(f's_add_u32 s{S_SLOT}, s{S_SLOT}, {32*x}')
            a(f's_sub_u32 s{S_T}, 32, s{S_T}'); a(f's_cmp_lt_u32 s{S_TK}, s{S_T}'); a(f's_cbranch_scc1 {lg}')
            a(f's_sub_u32 s{S_TK}, s{S_TK}, s{S_T}')
        a(f's_mov_b32 s{S_SLOT}, 256')
        a.label(lg)
        a(f'v_mov_b32 v3, 0'); a(f'v_mov_b32 v4, s{S_SLOT}'); a('ds_write_b32 v3, v4'); a('s_waitcnt lgkmcnt(0)')
        a('s_mov_b64 exec, -1')
        a.label(lw)
        a('s_barrier'); a('v_mov_b32 v3, 0'); a('ds_read_b32 v4, v3'); a('s_waitcnt lgkmcnt(0)'); a(f'v_readfirstlane_b32 s{S_SLOT}, v4'); a('s_barrier')
        if self.stamps: a(f's_mov_b32 s99, s{S_SLOT}')
        self.sv = 10
        self.stamp(0)
        Lch, Lpb, Lgw, Lms, Lpa = [a.newlabel(n) for n in ('Lchain', 'Lpb', 'Lgw', 'Lms', 'Lpa')]
        a(f's_cmp_lt_u32 s{S_SLOT}, 32'); a(f's_cbranch_scc0 Lnot_chain')
        self.jump(Lch)
        a.label('Lnot_chain')
        a(f's_cmp_lt_u32 s{S_SLOT}, 96'); a(f's_cbranch_scc1 {Lpb}')
        a(f's_cmp_lt_u32 s{S_SLOT}, 224'); a(f's_cbranch_scc1 {Lgw}')
        a(f's_cmp_lt_u32 s{S_SLOT}, 240'); a(f's_cbranch_scc1 {Lms}')
        a(f's_cmp_lt_u32 s{S_SLOT}, 256'); a(f's_cbranch_scc1 {Lpa}')
        a.label(end); a('s_endpgm')
        a.label(Lms)
        a(f's_and_b32 s{S_A}, s{S_SLOT}, 3'); a(f's_lshl_b32 s{S_OFF}, s{S_A}, 8')
        load_wslices(a, [(KA_WOA, 512*1024, 0, 'v', 128)], 1024, L, 3, 4, 5)
        for half in range(2):
            a(f's_bfe_u32 s{S_B}, s{S_SLOT}, 0x20002'); self.woa_run(half, 4); self.stamp(3 + 8*half)
        a('s_endpgm')
        a.label(Lpa)
        a(f's_and_b32 s{S_A}, s{S_SLOT}, 3'); self.proj_weights(False)
        for half in range(2):
            a(f's_bfe_u32 s{S_A}, s{S_SLOT}, 0x20002'); a(f's_and_b32 s{S_B}, s{S_SLOT}, 3'); self.rb_run(half, 1, 4); self.stamp(3 + 8*half)
            if half == 0:
                a(f's_and_b32 s{S_A}, s{S_SLOT}, 3'); a(f's_bfe_u32 s{S_B}, s{S_SLOT}, 0x20002'); self.proj_run(1, False, 4); self.stamp(4)
        a('s_endpgm')
        a.label(Lpb)
        def pb_ids():
            a(f's_sub_u32 s{S_T}, s{S_SLOT}, 32'); a(f's_lshr_b32 s{S_A}, s{S_T}, 5'); a(f's_lshl_b32 s{S_A}, s{S_A}, 4'); a(f's_and_b32 s{S_T2}, s{S_T}, 15')
            a(f's_add_u32 s{S_A}, s{S_A}, s{S_T2}'); a(f's_bfe_u32 s{S_B}, s{S_T}, 0x10004')
        pb_ids(); self.proj_weights(True); self.stamp(1)
        for half in range(2):
            pb_ids(); self.proj_run(half, True, 2); self.stamp(3 + 8*half)
            a(f's_sub_u32 s{S_T}, s{S_SLOT}, 32'); a(f's_lshr_b32 s{S_A}, s{S_T}, 2'); a(f's_and_b32 s{S_B}, s{S_T}, 3')
            self.rb_run(half, 2, 16); self.stamp(4 + 8*half)
        a('s_endpgm')
        a.label(Lgw)
        self.end = 'Lm_end2'
        a(f's_sub_u32 s{S_T}, s{S_SLOT}, 96'); a(f's_lshr_b32 s{S_A}, s{S_T}, 5'); a(f's_and_b32 s{S_B}, s{S_T}, 31')
        self.proj_weights(False); self.proj_run(0, False, 32, nowait=True); self.stamp(1)
        def gw_ids():
            a(f's_sub_u32 s{S_T}, s{S_SLOT}, 96'); a(f's_lshr_b32 s{S_A}, s{S_T}, 5'); a(f's_lshl_b32 s{S_A}, s{S_A}, 3'); a(f's_and_b32 s{S_T2}, s{S_T}, 7')
            a(f's_add_u32 s{S_A}, s{S_A}, s{S_T2}'); a(f's_bfe_u32 s{S_B}, s{S_T}, 0x20003')
        for half in range(2):
            gw_ids(); self.att_run(half, 4); self.stamp(3 + 8*half)
            gw_ids()
            if half == 0: self.tb_weights()
            self.tb_run(half, 4); self.stamp(4 + 8*half)
        a.label('Lm_end2'); a('s_endpgm')
        a.label(Lch)
        self.end = 'Lm_end3'; end = self.end
        r = C.ChainRegs(); self.sv = r.R
        a(f's_mov_b32 s{C.S_H}, s{S_SLOT}')
        C.chain_setup(a, r)
        self.stamp(1)
        T = r.R; l1 = a.newlabel('Lcd'); lslow = a.newlabel('Lcslow'); lfast = a.newlabel('Lcfast')
        a(f's_mov_b32 s{C.S_SPIN}, 0'); a(f'v_mov_b32 v{T}, 0')
        a.label(l1)
        a(f'global_load_dword v{T+2}, v{T}, s[{S_DBG}:{S_DBG+1}] offset:32 sc1'); a('s_waitcnt vmcnt(0)')
        a(f'global_load_dword v{T+1}, v{T}, s[{S_DBG}:{S_DBG+1}] sc1'); a('s_waitcnt vmcnt(0)')
        a(f'v_readfirstlane_b32 s{C.S_T}, v{T+1}'); a(f'v_readfirstlane_b32 s{C.S_T2}, v{T+2}')
        if self.chain_kw.get('force_slow'): a(f's_mov_b32 s{C.S_T}, 0')
        a(f's_cmp_ge_u32 s{C.S_T}, 32'); a(f's_cbranch_scc1 {lfast}')
        a(f's_cmp_ge_u32 s{C.S_T2}, 256'); a(f's_cbranch_scc1 {lslow}')
        a('s_sleep 4'); a(f's_add_u32 s{C.S_SPIN}, s{C.S_SPIN}, 1'); a(f's_cmp_lt_u32 s{C.S_SPIN}, {SPIN_MAX}'); a(f's_cbranch_scc1 {l1}')
        a.label(end); a('s_endpgm')
        kw = {k: v for k, v in self.chain_kw.items() if k != 'force_slow'}
        for lbl, stf in ((lfast, ''), (lslow, 'sc1')):
            a.label(lbl)
            a(f's_mov_b32 s{C.S_EP}, 0'); a(f's_mov_b32 s{C.S_EM}, 0')
            for half in range(2):
                if half: C.group_barrier(a, r, 44, 32, end)
                C.chain_init_comm(a, r, stf)
                C.group_barrier(a, r, 40 + 8*half, 32, end)
                self.stamp(2 + 8*half)
                C.chain_half(a, r, half, stf, end, fused=1, started=(lambda h=half: self.stamp(3 + 8*h)), **kw)
                self.stamp(4 + 8*half)
            a('s_endpgm')
        return a.lines
    def jump(self, label):
        a = self.a; l = a.newlabel('Lj')
        a('s_getpc_b64 s[46:47]'); a.label(l)
        a(f's_add_u32 s46, s46, {label}-{l}'); a('s_addc_u32 s47, s47, 0'); a('s_setpc_b64 s[46:47]')

def init_kernel():
    a = Asm(); a._lbl = 9000
    a('s_cmp_ge_u32 s2, 256'); a('s_cbranch_scc1 Li_end')
    common_prologue(a, 1, 2)
    a('v_lshlrev_b32 v3, 2, v0'); a(f's_lshl_b32 s{S_T}, s2, 10'); a(f's_add_u32 s{S_T}, s{S_T}, {W.FLAGS}'); a(f'v_add_u32 v3, s{S_T}, v3'); a('v_mov_b32 v4, 0')
    a(f'global_store_dword v3, v4, s[{S_WS}:{S_WS+1}]')
    a(f's_lshr_b32 s{S_A}, s2, 2'); a(f's_and_b32 s{S_B}, s2, 3')
    rb_body(a, 0, KA_X, True, 0, 0, 0, W.X0, False, W.H[0].XNA)
    a.label('Li_end'); a('s_endpgm')
    return a.lines

NAME = 'interleave_layers__softmax_full_mha__memory_aug_recurrent_mem_tr__prompt'
def build(stamps=False, chain_kw={}, verbose=False):
    ks = []
    for n, lines, vg, acc in (('init_kernel', init_kernel(), 104, 104), (NAME + '_kernel', Mega(stamps, chain_kw).build(), 512, 256)):
        rep = []
        l = fix_hazards(lines, rep)
        for e in check_waits(l, n[:8]): print(e)
        if verbose: print(n, len(l), len(rep))
        ks.append((n, l, vg, acc))
    hdr = ''.join(l for l in open(f'cdna_kernels/{NAME}.s.ref').readlines()[:14] if '@launch' not in l)
    return assemble_file(hdr, [('init_kernel', 256, 256, 512), (NAME + '_kernel', 256, 256, 163840)], ks)

if __name__ == '__main__':
    import sys
    kw = eval(sys.argv[2]) if len(sys.argv) > 2 else dict(d1l=64, d2e=128, lpos=5)
    st = len(sys.argv) > 3
    t = build(st, kw, True)
    open(sys.argv[1] if len(sys.argv) > 1 else f'cdna_kernels/{NAME}.s', 'w').write(t)
    print(len(t))
```

```python
from asmlib import *
from layout import *
import math, struct

def f2u(f): return struct.unpack('<I', struct.pack('<f', f))[0]

LW = 0
LM = 144 * 1024
LS = 148 * 1024
DELTA = [0, 1, 8, 9, 2, 3, 10, 11]
DELTA2 = [0, 1, 32, 33, 8, 9, 40, 41]

class ChainRegs:
    def __init__(self):
        v = RegAlloc('v', 0, 256)
        self.M = v.alloc(32, 4); self.R = v.alloc(32, 4); self.A = v.alloc(32, 4)
        self.KX = v.alloc(8, 4); self.VX = v.alloc(8, 4)
        self.T = v.alloc(4, 4)
        self.VM = v.alloc(4)
        self.idx = self.VM + 1; self.aMst = self.VM + 3
        self.PZ = v.alloc(2)
        self.Z = v.alloc(2)
        self.I = v.alloc(2); self.E = v.alloc(4); self.One = v.alloc(4)
        self.PG = v.alloc(2)
        self.aPst = v.alloc(); self.aOw = v.alloc(); self.aW = v.alloc()
        self.aK = v.alloc(); self.aV = v.alloc(); self.aKm = v.alloc(); self.aVm = v.alloc(); self.aL = v.alloc()
        assert v.next <= 144, v.next
        self.WV = 144
        self.place = {}
        lds = [('q', 1, s) for s in range(8)] + [('q', 0, s) for s in range(4, 8)] + [('o', t, k) for t in (0, 6, 7) for k in range(2)]
        for i, b in enumerate(lds): self.place[b] = ('l', i * 2048)
        rest = [(m, t, s) for m in 'qkv' for t in range(2) for s in range(8)] + [('o', t, k) for t in range(8) for k in range(2)]
        rest = [b for b in rest if b not in self.place]
        assert len(rest) == 46
        for i, b in enumerate(rest):
            self.place[b] = ('a', 8 * i) if i < 32 else ('v', self.WV + 8 * (i - 32))
    def blk(self, b):
        k, r = self.place[b]; assert k != 'l'
        return vr(r, 8, k)

S_WS = 4; S_H = 6; S_W = 7
S_SRD = 8
S_CP = 12
S_HB = 20
S_KV = 22
S_CML = 24
S_XP = 26
S_EP = 28; S_EM = 29; S_STEP = 30; S_C = 31; S_SPIN = 32
S_PLO = 33; S_PHI = 34; S_T = 35; S_T2 = 36; S_T3 = 37
S_XH1 = 38; S_XH0 = 40; S_XR = 42
S_DBG = 44; S_TMP = 46; S_M0 = 48; S_RDY = 49
S_FH = 50; S_FW = 52; S_CPR = 54; S_CM = 56; S_HALF = 58; S_FB = 59
S_STAMP = 60
S_BW = 8
S_BR = 10
S_GS = 49

def add64(a, dst, base, off):
    a(f's_add_u32 s{dst}, s{base}, {off}'); a(f's_addc_u32 s{dst+1}, s{base+1}, 0')

def frag_of(w, j): return (j ^ (w & 1)) if j < 4 else 4 + (w ^ (j - 4))

def chain_setup(a, r):
    L = r.T; N = r.T+1; G = r.T+2; L16 = r.aL
    T = r.R
    a(f'v_lshrrev_b32 v{T}, 6, v0'); a(f'v_and_b32 v{L}, 63, v0'); a(f'v_readfirstlane_b32 s{S_W}, v{T}')
    a(f'v_and_b32 v{N}, 15, v{L}'); a(f'v_lshrrev_b32 v{G}, 4, v{L}')
    a(f's_mov_b32 s{S_PLO}, 0x05040100'); a(f's_mov_b32 s{S_PHI}, 0x07060302')
    a(f's_mov_b32 s{S_XH1}, 0xcccccccc'); a(f's_mov_b32 s{S_XH1+1}, 0xcccccccc')
    a(f's_mov_b32 s{S_XH0}, 0x33333333'); a(f's_mov_b32 s{S_XH0+1}, 0x33333333')
    a(f's_mov_b32 s{S_XR}, 0x000f000f'); a(f's_mov_b32 s{S_XR+1}, 0')
    a(f's_mov_b32 s{S_C}, {f2u(math.log2(math.e) / math.sqrt(128.0)):#x}')
    a(f'v_lshlrev_b32 v{L16}, 4, v{L}')
    a(f's_mul_i32 s{S_T}, s{S_W}, 36864'); a(f'v_add_u32 v{r.aW}, s{S_T}, v{L16}')
    KBG = r.aK; VO = r.aV
    a(f'v_lshrrev_b32 v{T}, 1, v{G}'); a(f'v_lshlrev_b32 v{T}, 4, v{T}')
    a(f'v_and_b32 v{T+1}, 1, v{G}'); a(f'v_lshl_add_u32 v{KBG}, v{T+1}, 2, v{T}')
    a(f's_lshl_b32 s{S_T}, s{S_H}, 8'); a(f's_lshl_b32 s{S_T2}, s{S_W}, 6'); a(f's_add_u32 s{S_T}, s{S_T}, s{S_T2}')
    a(f'v_lshlrev_b32 v{VO}, 15, v{KBG}'); a(f'v_lshl_add_u32 v{VO}, v{N}, 2, v{VO}'); a(f'v_add_u32 v{VO}, s{S_T}, v{VO}')
    a(f's_mov_b32 s{S_SRD+2}, {4*MB}'); a(f's_mov_b32 s{S_SRD+3}, 0x20000')
    NB = 11; PK = 88; U = 96
    groups = [(m, s, rg) for m in 'kvq' for s in range(8) for rg in range(2)]
    def put(block, rg, i, emit, pend):
        k, base = r.place[block]
        if k == 'v': emit(base+4*rg+i)
        elif k == 'a':
            emit(pend+i); a(f'v_accvgpr_write_b32 a{base+4*rg+i}, v{pend+i}')
        else:
            emit(pend+i)
            if i == 3:
                a(f'ds_write_b128 v{r.aW}, {vr(pend,4)} offset:{base+1024*rg}'); a('s_waitcnt lgkmcnt(0)')
    DEPTH = 6
    kaoff = {'q': KA_WQ, 'k': KA_WK, 'v': KA_WV}
    cur = [None]
    def issue(gi):
        m, s, rg = groups[gi]
        if cur[0] != m:
            a(f's_load_dwordx2 s[{S_SRD}:{S_SRD+1}], s[0:1], {kaoff[m]}'); a('s_waitcnt lgkmcnt(0)'); cur[0] = m
        if rg == 0:
            if s < 4: a(f's_and_b32 s{S_T2}, s{S_W}, 1'); a(f's_xor_b32 s{S_T2}, s{S_T2}, {s}')
            else: a(f's_xor_b32 s{S_T2}, s{S_W}, {s}')
            a(f's_and_b32 s{S_T3}, s{S_T2}, 1'); a(f's_lshl_b32 s{S_T3}, s{S_T3}, 21'); a(f's_and_b32 s{S_T2}, s{S_T2}, 6'); a(f's_lshl_b32 s{S_T2}, s{S_T2}, 13')
            a(f's_add_u32 s{S_T3}, s{S_T3}, s{S_T2}')
        b = (gi % NB) * 8
        for jj in range(8):
            a(f's_add_u32 s{S_T}, s{S_T3}, {(128*rg+DELTA2[jj])*8192}')
            a(f'buffer_load_dword v{b+jj}, v{VO}, s[{S_SRD}:{S_SRD+3}], s{S_T} offen')
    def consume(gi):
        m, s, rg = groups[gi]; b = (gi % NB) * 8
        for t in range(2):
            for i in range(4):
                lo, hi = b+2*i, b+2*i+1
                if m == 'q':
                    def emit(d, lo=lo, hi=hi, t=t):
                        if t == 0: a(f'v_lshlrev_b32 v{U}, 16, v{lo}'); a(f'v_lshlrev_b32 v{U+1}, 16, v{hi}')
                        else: a(f'v_and_b32 v{U}, 0xffff0000, v{lo}'); a(f'v_and_b32 v{U+1}, 0xffff0000, v{hi}')
                        a(f'v_mul_f32 v{U}, s{S_C}, v{U}'); a(f'v_mul_f32 v{U+1}, s{S_C}, v{U+1}'); a(f'v_cvt_pk_bf16_f32 v{d}, v{U}, v{U+1}')
                else:
                    def emit(d, lo=lo, hi=hi, t=t): a(f'v_perm_b32 v{d}, v{hi}, v{lo}, s{S_PHI if t else S_PLO}')
                put((m, t, s), rg, i, emit, PK + 4*t)
    for gi in range(len(groups) + DEPTH):
        if gi < len(groups): issue(gi)
        if gi >= DEPTH:
            left = min(len(groups), gi + 1) - (gi - DEPTH) - 1
            a(f's_waitcnt vmcnt({8*left})'); consume(gi - DEPTH)
    a(f's_load_dwordx2 s[{S_SRD}:{S_SRD+1}], s[0:1], {KA_WO}')
    a(f's_lshl_b32 s{S_T}, s{S_H}, 17'); a(f's_lshl_b32 s{S_T2}, s{S_W}, 8'); a(f's_add_u32 s{S_T}, s{S_T}, s{S_T2}')
    a(f'v_lshlrev_b32 v{VO}, 10, v{KBG}'); a(f'v_lshl_add_u32 v{VO}, v{N}, 4, v{VO}'); a(f'v_add_u32 v{VO}, s{S_T}, v{VO}')
    a('s_waitcnt lgkmcnt(0)')
    og = [(k, rg) for k in range(2) for rg in range(2)]
    def oissue(gi):
        k, rg = og[gi]; b = (gi % 2) * 32
        for jj in range(8):
            a(f's_mov_b32 s{S_T}, {(64*k+32*rg+DELTA[jj])*1024}')
            a(f'buffer_load_dwordx4 {vr(b+4*jj,4)}, v{VO}, s[{S_SRD}:{S_SRD+3}], s{S_T} offen')
    def ocons(gi):
        k, rg = og[gi]; b = (gi % 2) * 32
        for t in range(8):
            for i in range(4):
                def emit(d, hi=b+4*(2*i+1)+(t>>1), lo=b+4*(2*i)+(t>>1), t=t): a(f'v_perm_b32 v{d}, v{hi}, v{lo}, s{S_PHI if t & 1 else S_PLO}')
                put(('o', t, k), rg, i, emit, PK + 4*(t&1))
    oissue(0); oissue(1)
    for gi in range(4):
        a(f's_waitcnt vmcnt({8 if gi < 3 else 0})'); ocons(gi)
        if gi + 2 < 4: oissue(gi + 2)
    a(f'v_bfe_u32 v{T}, v{N}, 1, 1')
    a(f'v_mul_u32_u24 v{r.idx}, 0xaaaa, v{T}'); a(f'v_add_u32 v{r.idx}, 0x4444, v{r.idx}')
    a(f'v_lshlrev_b32 v{T}, 2, v{G}'); a(f'v_sub_u32 v{T}, v{N}, v{T}')
    a(f'v_mov_b32 v{T+1}, 0x3f80'); a(f'v_mov_b32 v{T+2}, 0x3f800000')
    def onehot(dst, nregs):
        for i in range(nregs):
            a(f'v_cmp_eq_u32 vcc, {2*i}, v{T}'); a(f'v_cndmask_b32 v{dst+i}, 0, v{T+1}, vcc')
            a(f'v_cmp_eq_u32 vcc, {2*i+1}, v{T}'); a(f'v_cndmask_b32 v{dst+i}, v{dst+i}, v{T+2}, vcc')
    onehot(r.I, 2)
    a(f'v_and_b32 v{T}, 9, v{N}'); a(f'v_bfe_u32 v{T+3}, v{N}, 1, 1'); a(f'v_lshl_or_b32 v{T}, v{T+3}, 2, v{T}')
    a(f'v_bfe_u32 v{T+3}, v{N}, 2, 1'); a(f'v_lshl_or_b32 v{T}, v{T+3}, 1, v{T}')
    onehot(r.E, 4)
    for i in range(4): a(f'v_mov_b32 v{r.One+i}, 0x3f803f80')
    a(f'v_mov_b32 v{r.PZ+1}, 0'); a(f'v_mov_b32 v{r.Z}, 0'); a(f'v_mov_b32 v{r.Z+1}, 0')
    a(f'v_lshrrev_b32 v{T}, 3, v{L}'); a(f'v_lshlrev_b32 v{T}, 11, v{T}'); a(f'v_and_b32 v{T+1}, 7, v{L}')
    a(f'v_lshl_add_u32 v{r.aPst}, v{T+1}, 3, v{T}')
    a(f's_lshl_b32 s{S_T}, s{S_W}, 14'); a(f's_lshl_b32 s{S_T2}, s{S_H}, 6'); a(f's_add_u32 s{S_T}, s{S_T}, s{S_T2}')
    a(f's_add_u32 s{S_T}, s{S_T}, {W.CP}'); add64(a, S_CP, S_WS, f's{S_T}')
    for p in range(1, 4): add64(a, S_CP+2*p, S_CP, p * 65536)
    assert W.CP >= LM and W.CM >= LM
    a(f's_lshl_b32 s{S_T}, s{S_W}, 16'); a(f's_lshl_b32 s{S_T2}, s{S_H}, 11'); a(f's_add_u32 s{S_T}, s{S_T}, s{S_T2}')
    a(f's_add_u32 s{S_T}, s{S_T}, {W.CP - LM}'); add64(a, S_CPR, S_WS, f's{S_T}')
    add64(a, S_CM, S_WS, W.CM); add64(a, S_CML, S_WS, W.CM - LM + 4096)
    a(f's_lshl_b32 s{S_T2}, s{S_W}, 11'); a(f's_lshr_b32 s{S_T3}, s{S_H}, 3'); a(f's_lshl_b32 s{S_T3}, s{S_T3}, 9'); a(f's_add_u32 s{S_T2}, s{S_T2}, s{S_T3}')
    a(f's_and_b32 s{S_T3}, s{S_H}, 1'); a(f's_lshl_b32 s{S_T3}, s{S_T3}, 8'); a(f's_add_u32 s{S_T2}, s{S_T2}, s{S_T3}')
    a(f's_bfe_u32 s{S_T3}, s{S_H}, 0x20001'); a(f's_lshl_b32 s{S_T3}, s{S_T3}, 6'); a(f's_add_u32 s{S_T2}, s{S_T2}, s{S_T3}')
    a(f'v_bfe_u32 v{T}, v{L}, 1, 1'); a(f'v_lshlrev_b32 v{T}, 5, v{T}')
    a(f'v_and_b32 v{T+1}, 1, v{L}'); a(f'v_lshl_add_u32 v{T}, v{T+1}, 3, v{T}')
    a(f'v_and_b32 v{T+1}, 1, v{G}'); a(f'v_lshl_add_u32 v{T}, v{T+1}, 4, v{T}')
    a(f'v_add_u32 v{r.aMst}, s{S_T2}, v{T}')
    a(f's_bfe_u32 s{S_T2}, s{S_H}, 0x20001'); a(f's_lshl_b32 s{S_T2}, s{S_T2}, 11')
    a(f's_lshr_b32 s{S_T3}, s{S_H}, 3'); a(f's_lshl_b32 s{S_T3}, s{S_T3}, 8'); a(f's_add_u32 s{S_T2}, s{S_T2}, s{S_T3}')
    a(f's_and_b32 s{S_T3}, s{S_H}, 1'); a(f's_lshl_b32 s{S_T3}, s{S_T3}, 7'); a(f's_add_u32 s{S_T2}, s{S_T2}, s{S_T3}')
    a(f's_lshl_b32 s{S_T3}, s{S_W}, 2'); a(f's_add_u32 s{S_M0}, s{S_T2}, s{S_T3}')
    a(f'v_lshrrev_b32 v{T}, 1, v{G}'); a(f'v_lshlrev_b32 v{T}, 8, v{T}'); a(f'v_and_b32 v{T+1}, 1, v{G}')
    a(f'v_lshl_add_u32 v{T}, v{T+1}, 5, v{T}'); a(f'v_lshl_add_u32 v{T}, v{N}, 4, v{T}')
    a(f's_lshl_b32 s{S_T}, s{S_W}, 9'); a(f's_add_u32 s{S_T}, s{S_T}, {LM}'); a(f'v_add_u32 v{r.aOw}, s{S_T}, v{T}')
    a(f'v_and_b32 v{T}, 2, v{L}'); a(f'v_cmp_eq_u32 vcc, 0, v{T}')
    a(f's_lshl_b32 s{S_T}, s{S_W}, 10'); a(f's_add_u32 s{S_T}, s{S_T}, {LM+12288}'); a(f'v_add_u32 v{T}, s{S_T}, v{L16}')
    a(f'v_and_b32 v{T+1}, 1, v{G}'); a(f'v_lshlrev_b32 v{T+1}, 5, v{T+1}'); a(f'v_xor_b32 v{T}, v{T}, v{T+1}')
    a(f'v_cndmask_b32 v{r.aOw}, v{T}, v{r.aOw}, vcc')
    a(f'v_lshrrev_b32 v{T}, 3, v{N}'); a(f'v_lshlrev_b32 v{T}, 8, v{T}'); a(f'v_and_b32 v{T+1}, 7, v{N}'); a(f'v_lshl_add_u32 v{T}, v{T+1}, 4, v{T}')
    a(f'v_lshl_add_u32 v{T}, v{G}, 9, v{T}')
    a(f's_lshl_b32 s{S_T}, s{S_W}, 11'); a(f's_add_u32 s{S_T2}, s{S_T}, {HB_K}'); a(f'v_add_u32 v{r.aK}, s{S_T2}, v{T}')
    a(f'v_lshlrev_b32 v{T}, 4, v{N}'); a(f'v_lshl_add_u32 v{T}, v{G}, 9, v{T}')
    a(f's_add_u32 s{S_T2}, s{S_T}, {HB_V}'); a(f'v_add_u32 v{r.aV}, s{S_T2}, v{T}')
    a(f'v_lshrrev_b32 v{T}, 2, v{N}'); a(f'v_lshlrev_b32 v{T}, 5, v{T}'); a(f'v_and_b32 v{T+1}, 1, v{N}'); a(f'v_lshl_add_u32 v{T}, v{T+1}, 4, v{T}')
    a(f'v_lshl_add_u32 v{T}, v{G}, 7, v{T}')
    a(f's_lshl_b32 s{S_T}, s{S_W}, 9'); a(f's_add_u32 s{S_T2}, s{S_T}, {HB_KM}'); a(f'v_add_u32 v{r.aKm}, s{S_T2}, v{T}')
    a(f'v_lshlrev_b32 v{T}, 3, v{L}'); a(f's_add_u32 s{S_T2}, s{S_T}, {HB_VM}'); a(f'v_add_u32 v{r.aVm}, s{S_T2}, v{T}')
    a(f'v_add_u32 v{r.aL}, {LM}, v{L16}')
    a(f'v_lshlrev_b32 v{T}, 2, v{L}'); a(f'v_add_u32 v{r.PG+1}, {LS+4096}, v{T}')
    a(f's_mov_b32 s{S_XP}, 0x01010101'); a(f's_mov_b32 s{S_XP+1}, 0x01010101')

def board_setup(a, r, stf):
    a(f's_lshl_b32 s{S_T}, s{S_H}, 2'); a(f's_add_u32 s{S_T}, s{S_T}, s{S_W}'); a(f's_lshl_b32 s{S_T}, s{S_T}, 4'); a(f's_add_u32 s{S_T}, s{S_T}, {W.CB}')
    add64(a, S_BW, S_WS, f's{S_T}'); add64(a, S_BR, S_WS, W.CB - LM); a(f's_mov_b32 s{S_GS}, 0')
    a(f'global_store_dword v{r.Z}, v{r.Z}, s[{S_BW}:{S_BW+1}] {stf}')

def chain_init_comm(a, r, stf, first):
    T = r.R
    a(f's_load_dwordx2 s[{S_TMP}:{S_TMP+1}], s[0:1], {KA_MEM0}')
    a(f'v_and_b32 v{T}, 0x30, v{r.aL}'); a(f'v_lshlrev_b32 v{T}, 1, v{T}'); a(f'v_bfe_u32 v{T+1}, v{r.aL}, 8, 1'); a(f'v_lshl_add_u32 v{T}, v{T+1}, 10, v{T}')
    a(f'v_add_u32 v{T}, s{S_M0}, v{T}')
    a(f's_xor_b32 s{S_T}, s{S_EP}, 1')
    for i in range(4): a(f'v_mov_b32 v{T+4+i}, s{S_T}')
    a('s_waitcnt lgkmcnt(0)')
    a(f'global_load_dword v{T+2}, v{T}, s[{S_TMP}:{S_TMP+1}]'); a(f'global_load_dword v{T+3}, v{T}, s[{S_TMP}:{S_TMP+1}] offset:16')
    if first:
        board_setup(a, r, stf)
        a(f'global_store_dwordx4 v{r.aL}, {vr(T+4,4)}, s[{S_CPR}:{S_CPR+1}] {stf}')
        a(f'global_store_dwordx4 v{r.aL}, {vr(T+4,4)}, s[{S_CPR}:{S_CPR+1}] offset:1024 {stf}')
    a('s_waitcnt vmcnt(0)')
    a(f'v_and_or_b32 v{T+2}, v{T+2}, -2, s{S_EM}')
    a(f's_mov_b64 exec, s[{S_XR}:{S_XR+1}]')
    a(f'global_store_dwordx2 v{r.aMst}, {vr(T+2,2)}, s[{S_CM}:{S_CM+1}] {stf}')
    a('s_mov_b64 exec, -1'); a('s_waitcnt vmcnt(0)')

def group_barrier(a, r, off_sgpr, count, fail):
    T = r.R
    l1 = a.newlabel('Lgb'); l2 = a.newlabel('Lgb'); l3 = a.newlabel('Lgb')
    a('s_barrier')
    a(f'v_mov_b32 v{T}, s{off_sgpr}'); a(f'v_mov_b32 v{T+1}, 1')
    a(f's_cmp_lg_u32 s{S_W}, 0'); a(f's_cbranch_scc1 {l1}')
    a('s_mov_b64 exec, 1'); a(f'global_atomic_add v{T}, v{T+1}, s[{S_DBG}:{S_DBG+1}] sc1'); a('s_mov_b64 exec, -1')
    a.label(l1)
    a(f's_mov_b32 s{S_SPIN}, 0')
    a.label(l2)
    a(f'global_load_dword v{T+2}, v{T}, s[{S_DBG}:{S_DBG+1}] sc1'); a('s_waitcnt vmcnt(0)')
    a(f'v_readfirstlane_b32 s{S_T}, v{T+2}')
    a(f's_cmp_ge_u32 s{S_T}, {count}'); a(f's_cbranch_scc1 {l3}')
    a('s_sleep 2')
    a(f's_add_u32 s{S_SPIN}, s{S_SPIN}, 1'); a(f's_cmp_lt_u32 s{S_SPIN}, 0x60000'); a(f's_cbranch_scc1 {l2}')
    a(f's_branch {fail}')
    a.label(l3)

DPPQ = 'quad_perm:[2,3,0,1] row_mask:0xf bank_mask:0xf'
XA = 's_mov_b64 exec, -1'

def prog_load(a, r): a(f'global_load_dword v{r.PG}, v{r.PG+1}, s[{S_FH}:{S_FH+1}] sc1')
def prog_block(a, r, lbl, back, need_sgpr, fail):
    a.label(lbl)
    prog_load(a, r); a('s_waitcnt vmcnt(0)')
    a(f'v_cmp_ge_u32 s[{S_TMP}:{S_TMP+1}], s{need_sgpr}, v{r.PG}'); a(f's_and_b64 s[{S_TMP}:{S_TMP+1}], s[{S_TMP}:{S_TMP+1}], s[{S_XP}:{S_XP+1}]'); a(f's_cbranch_scc0 {back}')
    a('s_sleep 1')
    a(f's_add_u32 s{S_SPIN}, s{S_SPIN}, 1'); a(f's_cmp_lt_u32 s{S_SPIN}, 0x60000'); a(f's_cbranch_scc1 {lbl}')
    a(f's_branch {fail}')
def kv_load(a, r, i, dst):
    ad, off = ((r.aK, 0), (r.aK, 128), (r.aV, 0), (r.aV, 256))[i]
    a(f'global_load_dwordx4 {vr(dst+4*i,4)}, v{ad}, s[{S_KV}:{S_KV+1}] offset:{off} sc1')

def chain_start(a, r, fail, fused, started=None):
    HS = W.H[1].HB - W.H[0].HB
    a(f's_mul_i32 s{S_T2}, s{S_HALF}, {HS}'); a(f's_lshl_b32 s{S_T}, s{S_H}, 21'); a(f's_add_u32 s{S_T}, s{S_T}, s{S_T2}')
    a(f's_add_u32 s{S_T}, s{S_T}, {W.H[0].HB}'); add64(a, S_KV, S_WS, f's{S_T}'); a(f's_mov_b64 s[{S_HB}:{S_HB+1}], s[{S_KV}:{S_KV+1}]')
    a(f's_mov_b32 s{S_STEP}, 0'); a(f's_mov_b32 s{S_SPIN}, 0')
    a(f's_lshl_b32 s{S_T}, s{S_H}, 8'); a(f's_lshl_b32 s{S_T2}, s{S_HALF}, 17'); a(f's_add_u32 s{S_T}, s{S_T}, s{S_T2}')
    a(f's_add_u32 s{S_T}, s{S_T}, {FL(0, "CHP")}'); add64(a, S_FW, S_WS, f's{S_T}')
    a(f's_sub_u32 s{S_FH}, s{S_FW}, {FL(0, "CHP") - FL(0, "HEAD") + LS + 4096}'); a(f's_subb_u32 s{S_FH+1}, s{S_FW+1}, 0')
    if fused:
        l1 = a.newlabel('Lc_w'); l2 = a.newlabel('Lc_w'); prog_block(a, r, l1, l2, S_STEP, fail); a.label(l2)
        if started: started()
    for i in range(4): kv_load(a, r, i, r.KX)
    add64(a, S_KV, S_KV, HB_REC)

def chain_wave(a, r, w, stf, fail, done, fused=1, pat=(15, 16, 16, 16), d1=(20, 60, 160, 260), d2=(260, 240, 180, 20), e23=(64, 64, 84, 64), lpos=4, nb=2, bk=120, e3late=1, kimm=0, es=64, bx=None, bp=(10, 13, 16, 19, 21), c1=(40, 40, 40, 40), ef='sc1', rt=None,
               nomax=1, stamps=False, stampsel=None, nocomm=0, nohk=0):
    R, A, M, T = r.R, r.A, r.M, r.T
    if isinstance(nb, tuple): nb = nb[w]
    if isinstance(bk, tuple): bk = bk[w]
    Aq = [A, A+4]; Ak = [A+8, A+12]; Av = [A+16, A+20]
    ACC = {'q': Aq, 'k': Ak, 'v': Av}
    ns = [0]; sid = [0]
    def st(name=None):
        if name is None:
            name = sid[0]; sid[0] += 1
        if stamps and ((stampsel is None and isinstance(name, int)) or (stampsel is not None and name in stampsel)):
            a(f's_memtime s[{S_STAMP+2*ns[0]}:{S_STAMP+2*ns[0]+1}]'); ns[0] += 1
    def tr(k):
        if rt is not None: a(f's_memtime s[{S_STAMP+2*k}:{S_STAMP+2*k+1}]')
    def smf(acc, aop, b): a(f'v_smfmac_f32_16x16x64_bf16 {vr(acc,4)}, {vr(aop,4)}, {b}, v{r.idx}')
    def m32(d, x, y, c): a(f'v_mfma_f32_16x16x32_bf16 {vr(d,4)}, {vr(x,4)}, {vr(y,4)}, {vr(d,4) if c else 0}')
    def m16(d, x, y, c): a(f'v_mfma_f32_16x16x16_bf16 {vr(d,4)}, {vr(x,2)}, {vr(y,2)}, {vr(d,4) if c else 0}')
    def ldh(dst, b, hh): a(f'ds_read_b128 {vr(dst+4*hh,4)}, v{r.aW} offset:{r.place[b][1]+1024*hh}')
    def nops(c):
        n = c // 4
        while n > 0:
            k = min(n, 16); a(f's_nop {k-1}'); n -= k
    def add0(c): a(f'v_add_f32 v{c}, v{c}, v{c+2}')
    def add1(c): a(f'v_add_f32 v{c+1}, v{c+1}, v{c+3}')
    def cvt(d, x, y): a(f'v_cvt_pk_bf16_f32 v{d}, v{x}, v{y}')
    def pka(d, x, y): a(f'v_pk_add_f32 {vr(d,2)}, {vr(x,2)}, {vr(y,2)}')
    def e_load(j, f='sc1'):
        a(f'global_load_dwordx4 {vr(M+4*j,4)}, v{r.aL}, s[{S_CML}:{S_CML+1}] offset:{1024*frag_of(w,j)-4096} {f}')
    PL = [M+24, R+24, M+16, R+16]; PD = A+24; t0 = A+28; t1 = A+29
    def p_loads(k=0):
        a(f'global_load_dwordx4 {vr(PL[k],4)}, v{r.aL}, s[{S_CPR}:{S_CPR+1}] sc1')
        a(f'global_load_dwordx4 {vr(PL[k]+4,4)}, v{r.aL}, s[{S_CPR}:{S_CPR+1}] offset:1024 sc1')
    def ring_prefetch():
        for e in range(4):
            for hh in range(2): ldh(R+8*e, ('q', 1, e), hh)
    def zero(base, n):
        for i in range(n): a(f'v_mov_b32 v{base+i}, 0')
    def spin_or_fail():
        a(f's_add_u32 s{S_SPIN}, s{S_SPIN}, 1'); a(f's_cmp_lt_u32 s{S_SPIN}, 0x60000'); a(f's_cbranch_scc0 {fail}')
    LA = a.newlabel('Lc_A'); Ldone = a.newlabel('Lc_done')
    Lr = [a.newlabel('Lc_rE') for _ in range(5)]; Lc = [a.newlabel('Lc_cE') for _ in range(5)]
    Lhk = a.newlabel('Lc_hk'); Lhb = a.newlabel('Lc_hb'); Lexp = a.newlabel('Lc_exp'); Lfb = a.newlabel('Lc_fb'); Lnofb = a.newlabel('Lc_nofb')
    if stamps: _ = [a(f's_mov_b32 s{84+k}, 0') for k in range(12)]
    zero(A, 24); ring_prefetch()
    a(f's_add_u32 s{S_GS}, s{S_GS}, 1'); a(f'v_mov_b32 v{r.PZ}, s{S_GS}')
    for j in range(4): e_load(j)
    a('s_waitcnt vmcnt(0)')
    a('.p2align 6')
    a.label(LA)
    e3 = (w == 3 and not e3late); ex = 1 if e3 else 0
    ringof = {('q',1,0):0, ('q',1,1):1, ('q',1,2):2, ('q',1,3):3, ('q',1,4):0, ('q',0,4):1, ('q',1,5):2, ('q',0,5):3, ('q',0,6):0, ('q',0,7):1, ('q',1,6):2, ('q',1,7):3}
    def S(m, t, s):
        b = (m, t, s)
        smf(ACC[m][t], M+4*s, vr(R+8*ringof[b], 8) if b in ringof else r.blk(b))
    def chk(j):
        return [f'v_bitop3_b32 v{t0}, v{M+4*j}, v{M+4*j+2}, s{S_EM} bitop3:0x7e', f'v_and_b32 v{t0}, 1, v{t0}', f'v_cmp_ne_u32 vcc, 0, v{t0}']
    a(f's_waitcnt vmcnt({3+ex}) lgkmcnt(0)')
    tr(7)
    for l in chk(0): a(l)
    a(f's_cbranch_vccnz {Lr[0]}')
    a.label(Lc[0])
    st()
    tr(8)
    order = (('q',1),('q',0),('k',0),('k',1),('v',0),('v',1))
    dsq = [(R+24, ('q',1,3), 0), (R+24, ('q',1,3), 1), (R, ('q',1,4), 0), (R, ('q',1,4), 1), (R+16, ('q',1,2), 0), (R+16, ('q',1,2), 1),
           None, (R+8, ('q',0,4), 0), (R+8, ('q',0,4), 1), None, None, None,
           None, (R+16, ('q',1,5), 0), (R+16, ('q',1,5), 1), None, None, None]
    cnt = 0
    vm = ['E0', 'E1'] + (['x'] if ex else []) + ['E2', 'E3']
    def after_of(n): return len(vm) - 1 - vm.index(n)
    issued_at = {}
    def probe():
        a(f'global_load_dword v{r.PG}, v{r.aL}, s[{S_BR}:{S_BR+1}] sc1'); a(f'global_load_dword v{t1}, v{r.aL}, s[{S_BR}:{S_BR+1}] offset:1024 sc1')
    def extras(cnt):
        if cnt == lpos: e_load(4); vm.append('E4')
        if bx is not None and cnt == bx: a(f'global_store_dword v{r.Z}, v{r.PZ}, s[{S_BW}:{S_BW+1}] {stf}'); vm.append('b')
        if bx is not None and w == 0 and cnt in bp: probe(); vm.extend(['p', 'p'])
    for sl in range(3):
        c = chk(sl+1)
        for i, (m, t) in enumerate(order):
            S(m, t, sl)
            if dsq[cnt]: ldh(*dsq[cnt])
            extras(cnt)
            if cnt == 0: a(f's_mov_b32 s{S_FB}, 0')
            if cnt == 11: a('s_waitcnt lgkmcnt(2)')
            cnt += 1
            if i == 1: a(f's_waitcnt vmcnt({after_of("E%d" % (sl+1))})')
            if i in (1, 2, 3): a(c[i-1])
            if fused and w == 2 and cnt == 5:
                a(f's_add_u32 s{S_T3}, s{S_STEP}, 1'); a(f's_min_u32 s{S_T3}, s{S_T3}, 63'); a(f'v_cmp_ge_u32 s[{S_TMP}:{S_TMP+1}], s{S_T3}, v{r.PG}')
        a(f's_cbranch_vccnz {Lr[sl+1]}')
        issued_at[sl+1] = list(vm)
        a.label(Lc[sl+1])
    assert lpos < 14
    c = chk(4)
    a('s_waitcnt lgkmcnt(4)')
    S('q',1,3)
    a(f's_waitcnt vmcnt({after_of("E4")})')
    a(f'ds_write_b128 v{r.aL}, {vr(M+16,4)} offset:{1024*w}')
    a(c[0])
    S('q',0,3); ldh(R+24, ('q',0,5), 0); extras(19); a(c[1])
    S('k',0,3); ldh(R+24, ('q',0,5), 1); extras(20); a(c[2])
    S('k',1,3); extras(21)
    Lbs = a.newlabel('Lc_bs'); Lbg = a.newlabel('Lc_bg')
    bchk = [f'v_bitop3_b32 v{t0}, v{r.PG}, v{t1}, s{S_GS} bitop3:0x7e ; nowaitcheck', f'v_cmp_ne_u32 s[{S_TMP}:{S_TMP+1}], 0, v{t0}']
    if bx is not None and w == 0: a(bchk[0]); a(bchk[1])
    if fused and w == 2:
        a(f's_and_b64 s[{S_TMP}:{S_TMP+1}], s[{S_TMP}:{S_TMP+1}], s[{S_XP}:{S_XP+1}]'); a(f's_cbranch_scc1 {Lhb}'); a.label(Lhk)
    S('v',0,3)
    a(f's_cbranch_vccnz {Lr[4]}')
    a.label(Lc[4])
    if bx is not None and w == 0:
        a(f's_cmp_lg_u64 s[{S_TMP}:{S_TMP+1}], 0'); a(f's_cbranch_scc1 {Lbs}'); a.label(Lbg)
    tr(9)
    a('s_waitcnt lgkmcnt(2)'); a('s_barrier')
    tr(10)
    def rdm(j): a(f'ds_read_b128 {vr(M+16+4*j,4)}, v{r.aL} offset:{1024*(w^j)}')
    def pub_k(): a(f's_mov_b64 exec, s[{S_XH0}:{S_XH0+1}]'); a(f'global_store_dwordx4 v{r.aKm}, {vr(T,4)}, s[{S_HB}:{S_HB+1}] offset:{2048 if kimm else 0} sc1'); a(XA)
    def pub_v(): a(f'global_store_dwordx2 v{r.aVm}, {vr(A+30,2)}, s[{S_HB}:{S_HB+1}] sc1')
    hk = []
    if not nohk:
        hk = [lambda i=i: kv_load(a, r, i, M) for i in range(4)]
        if fused and w == 3: hk.append(lambda: (a('s_mov_b64 exec, 1'), a(f'global_store_dword v{r.Z}, v{t1}, s[{S_FW}:{S_FW+1}] sc1'), a(XA)))
        if fused and w == 2: hk.append(lambda: prog_load(a, r))
        if w < 2 or not fused: hk.append(lambda: None)
        hk += [pub_v, pub_k]
    def H():
        if hk: hk.pop(0)()
    rdm(1)
    S('v',1,3); rdm(2); rdm(3)
    S('q',1,4); H()
    S('q',0,4); ldh(R+0, ('q',0,6), 0); H()
    S('k',0,4); ldh(R+0, ('q',0,6), 1); H()
    S('k',1,4); ldh(R+8, ('q',0,7), 0); H(); a('s_waitcnt lgkmcnt(5)')
    S('q',1,5); ldh(R+8, ('q',0,7), 1)
    S('q',0,5); ldh(R+16, ('q',1,6), 0)
    S('k',0,5); ldh(R+16, ('q',1,6), 1); a('s_waitcnt lgkmcnt(6)')
    S('k',0,6); ldh(R+24, ('q',1,7), 0)
    S('k',0,7); ldh(R+24, ('q',1,7), 1); a('s_waitcnt lgkmcnt(4)')
    S('q',0,6); H()
    TA = [R+0, R+2]; TD = [R+4, R+8]; SX = [R+16, R+20]; SM = R+24
    S('q',0,7); H(); add0(Ak[0])
    S('k',1,5); H(); add1(Ak[0])
    assert not hk
    S('k',1,6); cvt(TA[0], Ak[0], Ak[0]+1)
    S('k',1,7); a('s_waitcnt lgkmcnt(0)'); add0(Aq[0])
    S('q',1,6); a(f's_mov_b64 vcc, s[{S_XH1}:{S_XH1+1}]'); add1(Aq[0])
    S('q',1,7); cvt(TA[0]+1, Aq[0], Aq[0]+1)
    st()
    vq = [(t, s) for s in range(4, 8) for t in range(2)]
    def V(n=1):
        for _ in range(n):
            t, s = vq.pop(0); S('v', t, s)
    add0(Ak[1]); add1(Ak[1])
    m16(TD[0], TA[0], r.I, 0)
    cvt(TA[1], Ak[1], Ak[1]+1)
    add0(Aq[1]); add1(Aq[1])
    cvt(TA[1]+1, Aq[1], Aq[1]+1)
    m16(TD[1], TA[1], r.I, 0)
    V(1)
    a(f's_cmp_lg_u32 s{S_STEP}, 0'); a(f's_cselect_b32 s{S_T}, {HB_REC}, 0'); add64(a, S_HB, S_HB, f's{S_T}')
    for i in range(4): cvt(T+i, TD[0]+i, TD[1]+i)
    m32(SX[0], r.KX, T, 0)
    a(f's_cmp_lt_u32 s{S_STEP}, 62'); a(f's_cselect_b32 s{S_T}, {HB_REC}, 0')
    m32(SX[1], r.KX+4, T, 0)
    add64(a, S_KV, S_KV, f's{S_T}')
    m32(SM, T, T, 0)
    V(1)
    for i in range(4): a(f'v_cndmask_b32_dpp v{SX[1]+i}, v{SX[0]+i}, v{SX[1]+i}, vcc {DPPQ}')
    SO = SX[1]; SMO = SM+1
    a(f'v_cndmask_b32_dpp v{SMO}, v{SM}, v{SM+1}, vcc {DPPQ}')
    V(1)
    a(f'ds_write_b128 v{r.aL}, {vr(SO,4)} offset:{LS-LM+1024*w}')
    a(f'ds_write_b32 v{r.PG+1}, v{SMO} offset:{256*w}')
    V(2)
    a(f's_waitcnt vmcnt({0 if nohk else 6 + (1 if (fused and w >= 2) else 0)}) lgkmcnt(0)'); a('s_barrier')
    st()
    tr(11)
    RD = [R+0, R+4, R+8]; RM = R+28
    o4 = (LS-LM+4096)//256
    for j in range(3): a(f'ds_read_b128 {vr(RD[j],4)}, v{r.aL} offset:{LS-LM+1024*(w^(j+1))}')
    V(1)
    a(f'ds_read2st64_b32 {vr(RM,2)}, v{r.PG+1} offset0:{w^1} offset1:{w^2}')
    a(f'ds_read_b32 v{RM+2}, v{r.PG+1} offset:{256*(w^3)}')
    V(2)
    assert not vq
    P = R+16; MX = R+26; TM = R+27
    D = [R+8, R+12]; SUM = R+28; X = R+0
    a('s_waitcnt lgkmcnt(2)')
    for i in range(4): a(f'v_add_f32 v{SO+i}, v{SO+i}, v{RD[0]+i}')
    pka(RD[1], RD[1], RD[2]); pka(RD[1]+2, RD[1]+2, RD[2]+2)
    a('s_waitcnt lgkmcnt(0)')
    a(f'v_add_f32 v{SMO}, v{SMO}, v{RM+2}'); a(f'v_add_f32 v{RM}, v{RM}, v{RM+1}')
    pka(SO, SO, RD[1]); pka(SO+2, SO+2, RD[1]+2)
    a(f'v_add_f32 v{SMO}, v{SMO}, v{RM}')
    pka(Av[0], Av[0], Av[0]+2); pka(Av[1], Av[1], Av[1]+2)
    def submax():
        a(f'v_max3_f32 v{MX}, v{SO}, v{SO+1}, v{SO+2}'); a(f'v_max3_f32 v{MX}, v{MX}, v{SO+3}, v{SMO}')
        a(f'v_max_f32_dpp v{MX}, v{MX}, v{MX} {DPPQ}')
        for sw in ('16', '32'):
            a(f'v_mov_b32 v{TM}, v{MX}'); a(f'v_permlane{sw}_swap_b32 v{MX}, v{TM}'); a(f'v_max_f32 v{MX}, v{MX}, v{TM}')
        for e in (SMO, SO, SO+1, SO+2, SO+3): a(f'v_sub_f32 v{e}, v{e}, v{MX}')
    if not nomax: submax()
    a.label(Lexp)
    a(f'v_exp_f32 v{X+4}, v{SMO}')
    cvt(r.VM, Av[0], Av[0]+1)
    a(f'v_exp_f32 v{X}, v{SO}')
    cvt(r.VM+2, Av[1], Av[1]+1)
    a(f'v_mov_b32_dpp v{TM}, v{X+4} {DPPQ}')
    a(f'v_exp_f32 v{X+1}, v{SO+1}')
    cvt(r.PZ, X+4, TM)
    a(f'v_exp_f32 v{X+2}, v{SO+2}')
    cvt(P, X, X+1)
    m16(SUM, r.One, r.PZ, 0); ldh(M+16, ('o',0,0), 0)
    a(f'v_exp_f32 v{X+3}, v{SO+3}')
    m16(D[0], r.VM, r.PZ, 0); ldh(M+16, ('o',0,0), 1)
    a(f'v_mov_b32_dpp v{P+2}, v{P} {DPPQ}')
    cvt(P+1, X+2, X+3)
    m16(D[1], r.VM+2, r.PZ, 0)
    a(f's_cmp_eq_u32 s{S_STEP}, 63')
    a(f'v_mov_b32_dpp v{P+3}, v{P+1} {DPPQ}')
    a(f's_cbranch_scc1 {Ldone}')
    st()
    m32(SUM, r.One, P, 1); ldh(M+24, ('o',0,1), 0)
    m32(D[0], r.VX, P, 1); ldh(M+24, ('o',0,1), 1)
    m32(D[1], r.VX+4, P, 1)
    a(f'v_rcp_f32 v{SUM+2}, v{SUM}')
    for i in range(4): a(f'v_mul_f32 v{D[0]+i}, v{D[0]+i}, v{SUM+2}')
    for i in range(2): a(f'v_pk_mul_f32 {vr(D[1]+2*i,2)}, {vr(D[1]+2*i,2)}, {vr(SUM+2,2)} op_sel_hi:[1,0]')
    OP = R+0
    for i in range(4): cvt(OP+i, D[0]+i, D[1]+i)
    a(f'ds_write_b128 v{r.aOw}, {vr(OP,4)}')
    a(f'v_mfma_f32_32x32x8_bf16 {vr(A,16)}, {vr(r.Z,2)}, {vr(r.Z,2)}, 0')
    ldh(R+8, ('o',6,0), 0); ldh(R+8, ('o',6,0), 1)
    if nomax:
        a(f'v_max_f32 v{SUM}, v{SUM}, v{SUM+2}'); a(f'v_cmp_nge_f32 vcc, {f2u(2.0**60):#x}, v{SUM}')
        a(f's_cbranch_vccnz {Lfb}'); a.label(Lnofb)
    a('s_waitcnt lgkmcnt(2)'); a('s_barrier')
    st()
    if rt is not None:
        lt = a.newlabel('Lc_t'); a('s_waitcnt lgkmcnt(0)'); a(f's_cmp_lg_u32 s{S_STEP}, {rt}'); a(f's_cbranch_scc1 {lt}')
        _ = [a(f's_mov_b32 s{84+k}, s{S_STAMP+2*k}') for k in range(12)]
        a.label(lt)
    tr(0)
    O = R+24
    a(f'ds_read_b128 {vr(O,4)}, v{r.aL}'); a(f'ds_read_b128 {vr(O+4,4)}, v{r.aL} offset:1024')
    a(f'v_mfma_f32_32x32x8_bf16 {vr(A+16,16)}, {vr(r.Z,2)}, {vr(r.Z,2)}, 0')
    a(f's_xor_b32 s{S_EM}, s{S_EM}, 1'); a(f's_add_u32 s{S_STEP}, s{S_STEP}, 1'); a(f's_mov_b32 s{S_SPIN}, 0')
    land = {('o',0,0): M+16, ('o',0,1): M+24, ('o',6,0): R+8, ('o',6,1): R+16, ('o',7,0): R, ('o',7,1): M+16}
    def ob(b): return vr(land[b], 8) if b in land else r.blk(b)
    def ad(t, e): c = A+4*t+e; return f'v_add_f32 v{c}, v{c}, v{c+2}'
    def fin(p):
        c = A+8*p
        return [ad(2*p+1, 0), ad(2*p+1, 1), f'v_cvt_pk_bf16_f32 v{c}, v{c}, v{c+4}', f'v_cvt_pk_bf16_f32 v{c+1}, v{c+1}, v{c+5}', f'v_and_or_b32 v{c}, v{c}, -2, s{S_EP}']
    def sto(p): return f'global_store_dwordx2 v{r.aPst}, {vr(A+8*p,2)}, s[{S_CP+2*p}:{S_CP+2*p+1}] {stf}'
    after = {3: [ad(0,0)], 4: [ad(0,1)], 5: fin(0), 6: [sto(0)], 7: [ad(2,0)], 8: [ad(2,1)], 9: fin(1)[:2], 10: fin(1)[2:], 11: [sto(1), ad(4,0), ad(4,1)],
             13: fin(2)[:2], 14: fin(2)[2:], 15: [sto(2), ad(6,0), ad(6,1)] + fin(3) + [sto(3)]}
    lq = [(R+16, ('o',6,1), 0), (R+16, ('o',6,1), 1), (R, ('o',7,0), 0), (R, ('o',7,0), 1), (M+16, ('o',7,1), 0), (M+16, ('o',7,1), 1)]
    a('s_waitcnt lgkmcnt(1)')
    younger = 0; issued = False; nst = 0
    for t in range(8):
        for k in range(2):
            i = 2*t+k
            smf(A+4*t, O+4*k, ob(('o', t, k)))
            if i == 0: a('s_waitcnt lgkmcnt(0)')
            if i in (1, 2, 3, 4, 5, 7): ldh(*lq.pop(0))
            if i == 12: a('s_waitcnt lgkmcnt(0)')
            if i == pat[w]: p_loads(); issued = True; tr(3)
            for l in after.get(i, []):
                if l.startswith('global_store') and nst == 3 and pat[w] == 15.5: p_loads(); issued = True; tr(3)
                a(l)
                if l.startswith('global_store'):
                    if issued: younger += 1
                    if nst in (0, 3): tr(1 if nst == 0 else 2)
                    nst += 1
    if nocomm: ns[0] = 9
    st()
    chores = []
    chores += [f's_waitcnt vmcnt({4 + (2 if issued else 0)})'] + [f'v_mov_b32 v{r.KX+i}, v{M+i}' for i in range(16)]
    chores += [f'ds_read_b128 {vr(R+8*e+4*hh,4)}, v{r.aW} offset:{r.place[("q",1,e)][1]+1024*hh}' for e in range(2) for hh in range(2)]
    chores += [f'v_mov_b32 v{A+i}, 0' for i in range(24)]
    chores += [f'v_mov_b32 v{A+30}, v{r.VM}', f'v_mov_b32 v{A+31}, v{r.VM+2}', f's_add_u32 s{S_GS}, s{S_GS}, 1', f'v_mov_b32 v{r.PZ}, s{S_GS}']
    nch = len(chores)
    def do_chores(cyc, pad=True):
        n = cyc // 4
        while n > 0 and chores: a(chores.pop(0)); n -= 1
        if pad: nops(4*n)
    def then(cyc, need):
        do_chores(cyc); do_chores(4*max(0, need - (nch - len(chores))))
    if not issued:
        do_chores(max(d1[w], 4)); p_loads(); tr(3)
    for k in range(1, nb):
        do_chores(bk if (k > 1 or not issued) else max(4, bk - 40)); p_loads(k); younger += 2
    do_chores(max(min(c1[w], 4*len(chores)), 4), False)
    if e3: then(0, 17)
    if stamps and ns[0]:
        a('s_waitcnt lgkmcnt(0)')
        n = ns[0]
        for k in range(1, n):
            a(f's_sub_u32 s{S_T}, s{S_STAMP+2*k}, s{S_STAMP+2*k-2}'); a(f's_add_u32 s{84+k}, s{84+k}, s{S_T}')
        a(f's_sub_u32 s{S_T}, s{S_STAMP}, s83'); a(f's_mov_b32 s83, s{S_STAMP+2*(n-1)}')
        a(f's_cmp_eq_u32 s{S_STEP}, 1'); a(f's_cselect_b32 s{S_T}, 0, s{S_T}'); a(f's_add_u32 s84, s84, s{S_T}')
    def red_head(k):
        m32(PD, r.E, PL[k], 0)
        a(f'v_bitop3_b32 v{t0}, v{PL[k]}, v{PL[k]+2}, s{S_EP} bitop3:0x7e')
        a(f'v_bitop3_b32 v{t1}, v{PL[k]+4}, v{PL[k]+6}, s{S_EP} bitop3:0x7e')
        m32(PD, r.E, PL[k]+4, 1)
        a(f'v_bitop3_b32 v{t0}, v{t0}, v{t1}, 1 bitop3:0xa8')
        a(f'v_cmp_ne_u32 vcc, 0, v{t0}')
    Lok = a.newlabel('Lc_p1'); Lr1 = a.newlabel('Lc_r1')
    a(f's_waitcnt vmcnt({younger})')
    tr(4)
    red_head(0)
    if e3: e_load(0, ef); e_load(1, ef); tr(6)
    a(f's_cbranch_vccnz {Lr1}')
    a.label(Lok)
    for ror in (8, 4):
        for i in range(4): a(f'v_add_f32_dpp v{PD+i}, v{PD+i}, v{PD+i} row_ror:{ror} row_mask:0xf bank_mask:0xf')
    a(f's_mov_b64 exec, s[{S_XR}:{S_XR+1}]')
    cvt(PD, PD, PD+1); cvt(PD+1, PD+2, PD+3)
    a(f'v_and_or_b32 v{PD}, v{PD}, -2, s{S_EM}')
    a(f'global_store_dwordx2 v{r.aMst}, {vr(PD,2)}, s[{S_CM}:{S_CM+1}] {stf}')
    a(XA)
    tr(5)
    a(f's_xor_b32 s{S_EP}, s{S_EP}, 1')
    if not e3:
        then(d2[w], 5); e_load(0, ef); tr(6); then(es, 9); e_load(1, ef)
    if fused and w == 3: a(f's_sub_u32 s{S_T}, s{S_STEP}, 1'); a(f'v_mov_b32 v{t1}, s{S_T}')
    then(e23[w], 13); e_load(2, ef); then(es, 17); e_load(3, ef)
    do_chores(4*len(chores))
    a(f's_branch {LA}')
    a.label(Lr1)
    lk2 = a.newlabel('Lc_ok2')
    if stamps and rt is None: a(f's_add_u32 s94, s94, 1')
    l2 = a.newlabel('Lc_r2')
    for k in range(1, nb):
        p_loads(k-1); a(f's_waitcnt vmcnt({2*(nb-1) + (2 if e3 else 0)})'); red_head(k); a(f's_cbranch_vccz {lk2}')
    a.label(l2)
    spin_or_fail()
    for k in range(nb):
        p_loads((k-1) % nb); a(f's_waitcnt vmcnt({2*(nb-1)})'); red_head(k)
        a(f's_cbranch_vccz {lk2}' if k < nb-1 else f's_cbranch_vccnz {l2}')
    a.label(lk2)
    if e3: e_load(0); e_load(1)
    a(f's_branch {Lok}')
    for j in range(5):
        a.label(Lr[j])
        if stamps and rt is None: a(f's_add_u32 s{95 if j == 0 else 93}, s{95 if j == 0 else 93}, {1 if j == 0 else 63}')
        n = 0
        seq = (['E0', 'E1'] + (['x'] if ex else []) + ['E2', 'E3']) if j == 0 else (issued_at[j] if j < 4 else ['E4'])
        for nm in seq[seq.index('E%d' % j):]:
            if nm[0] == 'E': e_load(int(nm[1]))
            else: a(f'global_load_dword v{A+24}, v{r.aL}, s[{S_CPR}:{S_CPR+1}] sc1')
            n += 1
        spin_or_fail()
        a(f's_waitcnt vmcnt({n-1})')
        for l in chk(j): a(l)
        if j == 4: a(f'ds_write_b128 v{r.aL}, {vr(M+16,4)} offset:{1024*w}')
        a(f's_cbranch_vccnz {Lr[j]}')
        if j == 4: a('s_waitcnt lgkmcnt(0)')
        a(f's_branch {Lc[j]}')
    if fused and w == 2:
        if stamps and rt is None:
            lb = a.newlabel('Lc_hb2'); a.label(Lhb); a('s_add_u32 s92, s92, 63'); Lhb = lb
        prog_block(a, r, Lhb, Lhk, S_T3, fail)
    if bx is not None and w == 0:
        a.label(Lbs)
        if stamps and rt is None: a('s_add_u32 s92, s92, 63')
        lb2 = a.newlabel('Lc_bs2'); a.label(lb2)
        for k in range(4):
            a(bchk[0]); a(f'v_cmp_ne_u32 vcc, 0, v{t0}'); probe(); a(f's_cbranch_vccz {Lbg}')
        spin_or_fail(); a(f's_branch {lb2}')
    if nomax:
        a.label(Lfb)
        a(f's_cmp_lg_u32 s{S_FB}, 0'); a(f's_cbranch_scc1 {Lnofb}')
        a(f's_mov_b32 s{S_FB}, 1'); a('s_waitcnt lgkmcnt(0)')
        submax()
        a(f's_branch {Lexp}')
    a.label(Ldone)
    if not nohk:
        a(f'v_mov_b32 v{A+30}, v{r.VM}'); a(f'v_mov_b32 v{A+31}, v{r.VM+2}')
        a(f's_mov_b64 exec, s[{S_XH0}:{S_XH0+1}]'); a(f'global_store_dwordx4 v{r.aKm}, {vr(T,4)}, s[{S_HB}:{S_HB+1}] sc1'); a(XA)
        a(f'global_store_dwordx2 v{r.aVm}, {vr(A+30,2)}, s[{S_HB}:{S_HB+1}] sc1')
    a('s_waitcnt vmcnt(0)'); a('s_barrier')
    if fused and w == 3:
        a(f'v_mov_b32 v{t0}, 64'); a('s_mov_b64 exec, 1'); a(f'global_store_dword v{r.Z}, v{t0}, s[{S_FW}:{S_FW+1}] sc1'); a(XA)
    a(f's_branch {done}')

def chain_all_waves(a, r, stf, fail, **kw):
    done = a.newlabel('Lc_alldone'); lw = [a.newlabel('Lc_wave') for _ in range(4)]
    a(f'v_mov_b32 v{r.A+29}, 0')
    for w in range(1, 4):
        a(f's_cmp_eq_u32 s{S_W}, {w}'); a(f's_cbranch_scc1 {lw[w]}')
    for w in range(4):
        a.label(lw[w]); chain_wave(a, r, w, stf, fail, done, **kw)
    a.label(done)

def chain_kernel_standalone(half, stamps=False, **kw):
    a = Asm(); a._lbl = 1000 * (half + 1); r = ChainRegs()
    end = a.newlabel('Lc_end')
    a(f's_load_dwordx2 s[{S_WS}:{S_WS+1}], s[0:1], {KA_WS}')
    a(f's_load_dwordx2 s[{S_DBG}:{S_DBG+1}], s[0:1], {KA_DBG}')
    a(f's_getreg_b32 s{S_T}, hwreg(HW_REG_XCC_ID, 0, 4)')
    a('s_waitcnt lgkmcnt(0)')
    a(f's_cmp_lg_u32 s{S_T}, 0'); a(f's_cbranch_scc1 {end}')
    l0 = a.newlabel('Lc')
    a('v_mov_b32 v1, 0'); a('v_mov_b32 v2, 1'); a('v_cmp_eq_u32 vcc, 0, v0')
    a('s_and_saveexec_b64 s[12:13], vcc'); a(f's_cbranch_execz {l0}')
    a(f'global_atomic_add v3, v1, v2, s[{S_DBG}:{S_DBG+1}] sc0 sc1'); a('s_waitcnt vmcnt(0)')
    a('ds_write_b32 v1, v3'); a('s_waitcnt lgkmcnt(0)')
    a.label(l0)
    a('s_mov_b64 exec, s[12:13]'); a('s_barrier')
    a('ds_read_b32 v3, v1'); a('s_waitcnt lgkmcnt(0)'); a(f'v_readfirstlane_b32 s{S_H}, v3'); a('s_barrier')
    a(f's_cmp_ge_u32 s{S_H}, 32'); a(f's_cbranch_scc1 {end}')
    if stamps: a('s_memtime s[98:99]')
    chain_setup(a, r)
    a(f's_mov_b32 s{S_EP}, 0'); a(f's_mov_b32 s{S_EM}, 0'); a(f's_mov_b32 s{S_HALF}, {half}')
    chain_init_comm(a, r, '', True)
    a(f's_mov_b32 s{S_T2}, 4'); group_barrier(a, r, S_T2, 32, end)
    if kw.get('rt') is not None:
        a('s_memrealtime s[60:61]'); a('s_waitcnt lgkmcnt(0)'); a('s_add_u32 s62, s60, 2048'); a('s_and_b32 s62, s62, 0xfffff000'); a('s_add_u32 s62, s62, 4096')
        a('s_mov_b32 s63, 0'); a('s_mov_b32 s99, 0'); a('s_mov_b32 s98, 0')
        a.label('Lcal')
        a('s_memrealtime s[60:61]'); a('s_memtime s[64:65]'); a('s_waitcnt lgkmcnt(0)'); a('s_sub_u32 s61, s60, s62'); a('s_cmp_lt_i32 s61, 0'); a('s_cbranch_scc1 Lcal')
        a('s_cmp_eq_u32 s63, 0'); a('s_cselect_b32 s99, s64, s99'); a('s_sub_u32 s64, s64, s99'); a('s_add_u32 s98, s98, s64')
        a('s_add_u32 s62, s62, 44'); a('s_add_u32 s63, s63, 1'); a('s_cmp_lt_u32 s63, 32'); a('s_cbranch_scc1 Lcal')
        a('s_lshr_b32 s98, s98, 5'); a('s_add_u32 s99, s99, s98'); a('s_mov_b32 s98, s62')
    if stamps: a('s_memtime s[100:101]')
    chain_start(a, r, end, 0)
    chain_all_waves(a, r, '', end, fused=0, stamps=stamps, **kw)
    if stamps:
        a('s_memtime s[60:61]'); a('s_waitcnt lgkmcnt(0)')
        a('s_sub_u32 s96, s100, s98'); a('s_sub_u32 s97, s60, s100')
        for k in range(16): a(f'v_mov_b32 v{k}, s{84+k}')
        a(f's_lshl_b32 s{S_T}, s{S_H}, 2'); a(f's_add_u32 s{S_T}, s{S_T}, s{S_W}'); a(f's_lshl_b32 s{S_T}, s{S_T}, 6')
        a(f's_add_u32 s{S_T}, s{S_T}, {STAMP_OFF}')
        a(f'v_mov_b32 v16, s{S_T}')
        for k in range(4): a(f'global_store_dwordx4 v16, {vr(4*k,4)}, s[{S_WS}:{S_WS+1}] offset:{16*k}')
    a.label(end)
    a('s_waitcnt vmcnt(0)'); a('s_endpgm')
    return a.lines

def autostamp(lines, start, stride, n=9):
    out = []; inb = False; idx = 0; k = 0; names = []; first = True
    for l in lines:
        if l == '; BODY_BEGIN': inb = True; idx = 0; k = 0
        if l == '; BODY_END':
            while k < n:
                out.append(f's_memtime s[{S_STAMP+2*k}:{S_STAMP+2*k+1}]'); k += 1
            inb = False; first = False
        if l.startswith('s_cbranch_vccnz'): l = 's_cbranch_vccnz ' + f'Lnx_{len(out)}\nLnx_{len(out)}:'
        if inb and is_instr(l.split('\n')[0]):
            if k < n and idx == start + k * stride:
                out.append(f's_memtime s[{S_STAMP+2*k}:{S_STAMP+2*k+1}]'); k += 1
            if first: names.append(l.split('\n')[0])
            idx += 1
        out += l.split('\n')
    return out, names

if __name__ == '__main__':
    rep = []
    lines = fix_hazards(chain_kernel_standalone(0, stamps=True), rep)
    for e in check_waits(lines, 'chain'): print(e)
    for x in rep[14:32]: print(x)
    t = assemble_file('', [('chain0_kernel', 256, 256, 163840)], [('chain0_kernel', lines, 512, 256)])
    open('chain_test.s', 'w').write(t)
    print(len(lines))
```

```python
MB = 1 << 20
class WS: pass
W = WS()
off = 0
def _a(n):
    global off
    r = off; off += (n + 4095) // 4096 * 4096
    return r
W.FLAGS = _a(512 * 1024)
W.CP = _a(256 * 1024)
W.CM = _a(2 * 72 * 8192)
W.CB = _a(4 * 1024)
W.X0 = _a(2 * MB)
W.H = []
for hf in range(2):
    h = WS()
    h.XNA = _a(2 * MB); h.XNB = _a(2 * MB); h.YA = _a(2 * MB)
    h.QA = _a(2 * MB); h.KA = _a(2 * MB); h.VA = _a(2 * MB); h.OA = _a(2 * MB); h.X1 = _a(2 * MB)
    h.PT = _a(16 * MB)
    h.X2 = _a(2 * MB)
    W.H.append(h)
off = (off + 2 * MB - 1) // (2 * MB) * (2 * MB)
for hf in range(2):
    W.H[hf].HB = _a(64 * MB)
HB_K, HB_V, HB_Q, HB_KM, HB_VM, HB_REC = 0, 8192, 16384, 24576, 26624, 32768
W.END = off
assert off <= 256 * MB
KA_X, KA_WQKV, KA_WOA, KA_BX, KA_MEM0, KA_WQ, KA_WK, KA_WV, KA_WO, KA_SEG, KA_OUT, KA_DBG, KA_WS = [8 * i for i in range(13)]

def FL(half, kind):
    base = W.FLAGS + half * 131072
    return base + {'XNA': 0, 'OA': 8192, 'YA': 16384, 'XNB': 24576, 'PT': 32768, 'HEAD': 40960, 'CHP': 49152, 'EL': 57344, 'QKVA': 65536}[kind]
FLAG_BYTES = 262144
STAMP_OFF = W.FLAGS + 262144
```

```python
from asmlib import *
from layout import *
import math, struct
def f2u(f): return struct.unpack('<I', struct.pack('<f', f))[0]

S_WS = 4; S_W = 7; S_SRD = 8; S_WSRD = 12
S_T = 16; S_T2 = 17; S_T3 = 18; S_OFF = 19
S_OUT = 20
S_IN = 22
S_TASK = 24; S_A = 25; S_B = 26; S_CNT = 27; S_XO = 28; S_BUF = 29; S_K0 = 30; S_K1 = 31
S_P = 32
S_M = 34

def add64(a, dst, base, off):
    a(f's_add_u32 s{dst}, s{base}, {off}'); a(f's_addc_u32 s{dst+1}, s{base+1}, 0')

def common_prologue(a, L, L16):
    a(f's_load_dwordx2 s[{S_WS}:{S_WS+1}], s[0:1], {KA_WS}')
    a(f'v_lshrrev_b32 v{L16}, 6, v0'); a(f'v_and_b32 v{L}, 63, v0')
    a(f'v_readfirstlane_b32 s{S_W}, v{L16}')
    a(f'v_lshlrev_b32 v{L16}, 4, v{L}')
    a('s_waitcnt lgkmcnt(0)')
    a(f's_mov_b32 s{S_WSRD}, s{S_WS}'); a(f's_mov_b32 s{S_WSRD+1}, s{S_WS+1}'); a(f's_mov_b32 s{S_WSRD+2}, {256*MB}'); a(f's_mov_b32 s{S_WSRD+3}, 0x20000')

def pi_of(a, dst, src, t):
    a(f'v_and_b32 v{dst}, 0x13, v{src}')
    a(f'v_bfe_u32 v{t}, v{src}, 2, 1'); a(f'v_lshl_or_b32 v{dst}, v{t}, 3, v{dst}')
    a(f'v_bfe_u32 v{t}, v{src}, 3, 1'); a(f'v_lshl_or_b32 v{dst}, v{t}, 2, v{dst}')

def vpos16(a, dst, f, hh_src, t):
    a(f'v_and_b32 v{t}, 1, v{f}'); a(f'v_lshrrev_b32 v{dst}, 1, v{f}'); a(f'v_lshl_or_b32 v{dst}, v{t}, 4, v{dst}')
    a(f'v_lshlrev_b32 v{dst}, 4, v{dst}'); a(f'v_lshrrev_b32 v{t}, 5, v{hh_src}'); a(f'v_lshl_or_b32 v{dst}, v{t}, 9, v{dst}')

def load_wslices(a, mats, stride, L, t0, t1, t2, share=None):
    a(f'v_bfe_u32 v{t0}, v{L}, 2, 2'); a(f's_mov_b32 s{S_T}, {stride}'); a(f'v_mul_lo_u32 v{t0}, v{t0}, s{S_T}')
    a(f'v_lshrrev_b32 v{t2}, 4, v{L}'); a(f'v_lshl_add_u32 v{t0}, v{t2}, 6, v{t0}')
    a(f'v_and_b32 v{t2}, 3, v{L}'); a(f'v_lshl_add_u32 v{t0}, v{t2}, 4, v{t0}')
    a(f'v_lshrrev_b32 v{t1}, 5, v{L}'); a(f'v_lshlrev_b32 v{t1}, 11, v{t1}')
    a(f'v_bfe_u32 v{t2}, v{L}, 2, 2'); a(f'v_lshl_add_u32 v{t1}, v{t2}, 6, v{t1}')
    a(f'v_bfe_u32 v{t2}, v{L}, 4, 1'); a(f'v_lshl_add_u32 v{t1}, v{t2}, 5, v{t1}')
    a(f'v_and_b32 v{t2}, 1, v{L}'); a(f'v_lshl_add_u32 v{t1}, v{t2}, 4, v{t1}')
    a(f'v_bfe_u32 v{t2}, v{L}, 1, 1'); a(f'v_lshl_add_u32 v{t1}, v{t2}, 3, v{t1}')
    a(f's_lshl_b32 s{S_T}, s{S_W}, 8'); a(f'v_add_u32 v{t1}, s{S_T}, v{t1}'); a(f'v_add_u32 v{t2}, 65536, v{t1}')
    a(f's_mul_i32 s{S_K0}, s{S_W}, {64*stride}'); a(f's_add_u32 s{S_K0}, s{S_K0}, s{S_OFF}')
    a(f's_lshl_b32 s{S_K1}, s{S_W}, 14')
    a(f's_mov_b32 s{S_SRD+3}, 0x20000')
    chunks = [(m, c) for m in range(len(mats)) for c in range(2)]
    cur = [None]
    if share is not None:
        rank, n = share; rows = 512 // n; tp = t2 + 1
        a(f's_lshl_b32 s{S_T}, s{S_W}, 6'); a(f'v_add_u32 v{tp}, s{S_T}, v{L}')
        a(f'v_and_b32 v{tp+1}, 1, v{tp}'); a(f'v_lshrrev_b32 v{tp}, 1, v{tp}'); a(f'v_and_b32 v{tp}, {min(rows,128)-1}, v{tp}')
        a(f's_mov_b32 s{S_T}, {stride}'); a(f'v_mul_lo_u32 v{tp}, v{tp}, s{S_T}'); a(f'v_lshl_add_u32 v{tp}, v{tp+1}, 7, v{tp}')
        a(f's_mul_i32 s{S_T2}, s{rank}, {rows*stride}'); a(f's_add_u32 s{S_T2}, s{S_T2}, s{S_OFF}')
        for ka, nb, const, _, _ in mats:
            if cur[0] != ka:
                a(f's_load_dwordx2 s[{S_SRD}:{S_SRD+1}], s[0:1], {ka}'); a(f's_mov_b32 s{S_SRD+2}, {nb}'); a('s_waitcnt lgkmcnt(0)'); cur[0] = ka
            for r0 in range(0, rows, 128):
                a(f's_add_u32 s{S_T}, s{S_T2}, {const + r0*stride}')
                a(f'buffer_load_dword v{tp+1}, v{tp}, s[{S_SRD}:{S_SRD+3}], s{S_T} offen')
    def issue(ci):
        m, c = chunks[ci]; ka, nb, const, _, _ = mats[m]
        if cur[0] != ka:
            a(f's_load_dwordx2 s[{S_SRD}:{S_SRD+1}], s[0:1], {ka}'); a(f's_mov_b32 s{S_SRD+2}, {nb}'); a('s_waitcnt lgkmcnt(0)'); cur[0] = ka
        for i in range(16):
            a(f's_add_u32 m0, s{S_K1}, {(ci&1)*65536 + i*1024}')
            a(f's_add_u32 s{S_T}, s{S_K0}, {const + (256*c + 4*i)*stride}')
            a(f'buffer_load_dwordx4 v{t0}, s[{S_SRD}:{S_SRD+3}], s{S_T} offen lds')
    issue(0)
    for ci in range(len(chunks)):
        if ci + 1 < len(chunks):
            issue(ci + 1); a('s_waitcnt vmcnt(16)')
        else: a('s_waitcnt vmcnt(0)')
        a('s_barrier')
        m, c = chunks[ci]; _, _, _, kind, base = mats[m]
        n = 0
        for kb in range(16):
            for half in range(2):
                r = base + 4*(16*c+kb) + 2*half
                a(f'ds_read_b64_tr_b16 {vr(r,2,kind)}, v{t2 if ci&1 else t1} offset:{(4*kb+half)*1024}')
                n += 1
                if n % 12 == 0: a('s_waitcnt lgkmcnt(4)')
        a('s_waitcnt lgkmcnt(0)'); a('s_barrier')

def dma_x(a, L16, soff_sgpr, buf_sgpr, flags=''):
    a(f's_lshl_b32 s{S_T2}, s{S_W}, 13'); a(f's_add_u32 s{S_T3}, s{S_T2}, s{soff_sgpr}'); a(f's_add_u32 s{S_T2}, s{S_T2}, s{buf_sgpr}')
    for i in range(8):
        if i % 4 == 0:
            a(f's_add_u32 m0, s{S_T2}, {i*1024}'); a(f's_add_u32 s{S_T}, s{S_T3}, {i*1024}')
        a(f'buffer_load_dwordx4 v{L16}, s[{S_WSRD}:{S_WSRD+3}], s{S_T} offen offset:{(i%4)*1024} {flags} lds')

def mf(d, x, y, c): return f'v_mfma_f32_32x32x16_bf16 {vr(d,16)}, {x}, {y}, {c}'

def gemm_core(a, xaddr, XR, tiles, hooks={}):
    for kb in range(3): a(f'ds_read_b128 {vr(XR+4*kb,4)}, v{xaddr} offset:{kb*1024}')
    for kb in range(32):
        if kb + 3 < 32: a(f'ds_read_b128 {vr(XR+4*((kb+3)%4),4)}, v{xaddr} offset:{(kb+3)*1024}')
        a(f's_waitcnt lgkmcnt({min(3, 31-kb)})')
        x = vr(XR+4*(kb%4), 4)
        for acc, kind, wb, swap in tiles:
            w = vr(wb+4*kb, 4, kind)
            a(mf(acc, x if swap else w, w if swap else x, vr(acc,16) if kb else 0))
        if kb in hooks: hooks[kb]()

def pack_store(a, acc, addr, base, flags='', scale=None, offs=(0, 1024)):
    for j in range(2):
        if scale is not None:
            for i in range(8): a(f'v_mul_f32 v{acc+8*j+i}, s{scale}, v{acc+8*j+i}')
        for i in range(4): a(f'v_cvt_pk_bf16_f32 v{acc+8*j+i}, v{acc+8*j+2*i}, v{acc+8*j+2*i+1}')
        a(f'global_store_dwordx4 v{addr}, {vr(acc+8*j,4)}, s[{base}:{base+1}] offset:{offs[j]} {flags}')

def proj_kernel(half, isB, nwg=256):
    a = Asm(); a._lbl = 2000 + 100*half + 50*isB
    H = W.H[half]
    L, L16, t0, t1, t2, vq, vk, vv, xa = range(1, 10)
    XR = 12; ACC = 28; WV = 128
    end = a.newlabel('Lp_end')
    a(f's_cmp_ge_u32 s2, {nwg}'); a(f's_cbranch_scc1 {end}')
    common_prologue(a, L, L16)
    nsl = 32 if isB else 4
    ngr = nwg // nsl
    a(f's_and_b32 s{S_A}, s2, {nsl-1}'); a(f's_lshr_b32 s{S_B}, s2, {int(math.log2(nsl))}')
    a(f's_lshl_b32 s{S_OFF}, s{S_A}, 8')
    xn = H.XNB if isB else H.XNA
    a(f's_lshl_b32 s{S_XO}, s{S_B}, 15'); a(f's_add_u32 s{S_XO}, s{S_XO}, {xn}'); a(f's_mov_b32 s{S_BUF}, {128*1024}')
    dma_x(a, L16, S_XO, S_BUF)
    if isB: mats = [(KA_WK, 4*MB, 0, 'a', 128), (KA_WV, 4*MB, 0, 'v', WV), (KA_WQ, 4*MB, 0, 'a', 0)]; stride = 8192
    else: mats = [(KA_WQKV, 1536*1024, 1024, 'a', 128), (KA_WQKV, 1536*1024, 2048, 'v', WV), (KA_WQKV, 1536*1024, 0, 'a', 0)]; stride = 3072
    load_wslices(a, mats, stride, L, t0, t1, t2)
    ro = (HB_Q, HB_K, HB_V) if isB else (0, H.KA - H.QA, H.VA - H.QA)
    a(f's_lshl_b32 s{S_T}, s{S_W}, 11')
    a(f's_add_u32 s{S_T2}, s{S_T}, {ro[0]}'); a(f'v_add_u32 v{vq}, s{S_T2}, v{L16}')
    a(f's_add_u32 s{S_T2}, s{S_T}, {ro[1]}'); a(f'v_add_u32 v{vk}, s{S_T2}, v{L16}')
    pi_of(a, t0, L, t1); vpos16(a, vv, t0, L, t1)
    a(f's_add_u32 s{S_T2}, s{S_T}, {ro[2]}'); a(f'v_add_u32 v{vv}, s{S_T2}, v{vv}')
    a(f's_lshl_b32 s{S_T}, s{S_A}, {21 if isB else 13}'); a(f's_lshl_b32 s{S_T2}, s{S_B}, 15'); a(f's_add_u32 s{S_T}, s{S_T}, s{S_T2}')
    a(f's_add_u32 s{S_T}, s{S_T}, {H.HB if isB else H.QA}'); add64(a, S_OUT, S_WS, f's{S_T}')
    a(f's_mov_b32 s{S_M}, {f2u(0.25*math.log2(math.e)):#x}')
    lp = a.newlabel('Lp_loop'); nod = a.newlabel('Lp_nod')
    a.label(lp)
    a(f'v_add_u32 v{xa}, s{S_BUF}, v{L16}')
    a(f's_add_u32 s{S_B}, s{S_B}, {ngr}'); a(f's_xor_b32 s{S_BUF}, s{S_BUF}, {128*1024}')
    a(f's_add_u32 s{S_XO}, s{S_XO}, {ngr*32768}')
    a(f's_cmp_ge_u32 s{S_B}, 64'); a(f's_cbranch_scc1 {nod}')
    dma_x(a, L16, S_XO, S_BUF)
    a.label(nod)
    gemm_core(a, xa, XR, [(ACC+16, 'a', 128, False), (ACC+32, 'v', WV, True), (ACC, 'a', 0, False)])
    a('s_waitcnt vmcnt(0)'); a('s_barrier')
    pack_store(a, ACC+16, vk, S_OUT); pack_store(a, ACC+32, vv, S_OUT); pack_store(a, ACC, vq, S_OUT, scale=None if isB else S_M)
    add64(a, S_OUT, S_OUT, ngr*32768)
    a(f's_cmp_lt_u32 s{S_B}, 64'); a(f's_cbranch_scc1 {lp}')
    a.label(end); a('s_endpgm')
    return a.lines

def woa_kernel(half, nwg=256):
    a = Asm(); a._lbl = 3000 + 100*half
    H = W.H[half]
    L, L16, t0, t1, t2, vo, xa = range(1, 8)
    XR = 12; ACC = 28; WV = 128
    end = a.newlabel('Lw_end')
    a(f's_cmp_ge_u32 s2, {nwg}'); a(f's_cbranch_scc1 {end}')
    common_prologue(a, L, L16)
    a(f's_and_b32 s{S_A}, s2, 3'); a(f's_lshr_b32 s{S_B}, s2, 2')
    a(f's_lshl_b32 s{S_OFF}, s{S_A}, 8')
    a(f's_lshl_b32 s{S_XO}, s{S_B}, 15'); a(f's_add_u32 s{S_XO}, s{S_XO}, {H.OA}'); a(f's_mov_b32 s{S_BUF}, {128*1024}')
    dma_x(a, L16, S_XO, S_BUF)
    load_wslices(a, [(KA_WOA, 512*1024, 0, 'v', WV)], 1024, L, t0, t1, t2)
    a(f's_lshl_b32 s{S_T}, s{S_W}, 11'); a(f'v_add_u32 v{vo}, s{S_T}, v{L16}')
    a(f's_lshl_b32 s{S_T}, s{S_A}, 13'); a(f's_lshl_b32 s{S_T2}, s{S_B}, 15'); a(f's_add_u32 s{S_T}, s{S_T}, s{S_T2}')
    a(f's_add_u32 s{S_T}, s{S_T}, {H.YA}'); add64(a, S_OUT, S_WS, f's{S_T}')
    a(f'v_add_u32 v{xa}, s{S_BUF}, v{L16}')
    gemm_core(a, xa, XR, [(ACC, 'v', WV, False)])
    pack_store(a, ACC, vo, S_OUT)
    a.label(end); a('s_endpgm')
    return a.lines

def rb_body(a, npart, xin, xin_rm, part, pstride, segstride, xout, xout_rm, xn, ldf='', stf='', ready=None):
    L, L16, af, ar, t0, t1, t2, t3, sm = range(1, 10); la = 100
    X = 12; F = 20; P = 36
    a(f'v_lshrrev_b32 v{t0}, 3, v{L}'); a(f'v_and_b32 v{t1}, 7, v{L}')
    a(f'v_lshlrev_b32 v{af}, 9, v{t0}'); a(f'v_lshl_add_u32 v{af}, v{t1}, 4, v{af}')
    a(f's_lshl_b32 s{S_T}, s{S_W}, 13'); a(f's_lshl_b32 s{S_T2}, s{S_B}, 7'); a(f's_add_u32 s{S_T}, s{S_T}, s{S_T2}'); a(f's_add_u32 s{S_T}, s{S_T}, 2048')
    a(f'v_add_u32 v{af}, s{S_T}, v{af}')
    a(f'v_lshlrev_b32 v{ar}, 10, v{t1}'); a(f'v_lshl_add_u32 v{ar}, v{t0}, 4, v{ar}')
    a(f's_lshl_b32 s{S_T}, s{S_A}, 15'); a(f's_lshl_b32 s{S_T2}, s{S_B}, 13'); a(f's_add_u32 s{S_T}, s{S_T}, s{S_T2}'); a(f's_lshl_b32 s{S_T2}, s{S_W}, 8'); a(f's_add_u32 s{S_T}, s{S_T}, s{S_T2}')
    a(f'v_add_u32 v{ar}, s{S_T}, v{ar}')
    a(f'v_lshlrev_b32 v{la}, 4, v{t1}')
    a(f's_lshl_b32 s{S_T3}, s{S_A}, 15')
    if ready: ready()
    if xin_rm:
        a(f's_load_dwordx2 s[{S_IN}:{S_IN+1}], s[0:1], {xin}'); a('s_waitcnt lgkmcnt(0)')
        for i in range(2): a(f'global_load_dwordx4 {vr(X+4*i,4)}, v{ar}, s[{S_IN}:{S_IN+1}] offset:{128*i}')
    else:
        a(f's_add_u32 s{S_T}, s{S_T3}, {xin}'); add64(a, S_IN, S_WS, f's{S_T}')
        for i in range(2): a(f'global_load_dwordx4 {vr(X+4*i,4)}, v{af}, s[{S_IN}:{S_IN+1}] offset:{4096*i-2048} {ldf}')
    if npart:
        a(f's_mul_i32 s{S_T}, s{S_A}, {segstride}'); a(f's_add_u32 s{S_T}, s{S_T}, {part}'); add64(a, S_P, S_WS, f's{S_T}')
        for p in range(npart):
            for i in range(2): a(f'global_load_dwordx4 {vr(P+8*p+4*i,4)}, v{af}, s[{S_P}:{S_P+1}] offset:{4096*i-2048} {ldf}')
            if p + 1 < npart: add64(a, S_P, S_P, pstride)
        a(f's_mov_b32 s{S_M}, 0xffff0000'); a(f'v_mov_b32 v{t2}, 0x3f80'); a(f'v_mov_b32 v{t3}, 0x3f800000')
        for p in range(npart):
            a(f's_waitcnt vmcnt({2*(npart-1-p)})')
            for d in range(8):
                r = P+8*p+d
                if p == 0:
                    a(f'v_lshlrev_b32 v{F+2*d}, 16, v{r}'); a(f'v_and_b32 v{F+2*d+1}, s{S_M}, v{r}')
                else:
                    a(f'v_dot2c_f32_bf16 v{F+2*d}, v{r}, v{t2}'); a(f'v_dot2c_f32_bf16 v{F+2*d+1}, v{r}, v{t3}')
        a('s_nop 2')
        for d in range(8):
            if npart > 1:
                a(f'v_cvt_pk_bf16_f32 v{t1}, v{F+2*d}, v{F+2*d+1}')
                a(f'v_lshlrev_b32 v{F+2*d}, 16, v{t1}'); a(f'v_and_b32 v{F+2*d+1}, s{S_M}, v{t1}')
            a(f'v_lshlrev_b32 v{t0}, 16, v{X+d}'); a(f'v_and_b32 v{t1}, s{S_M}, v{X+d}')
            a(f'v_add_f32 v{t0}, v{t0}, v{F+2*d}'); a(f'v_add_f32 v{t1}, v{t1}, v{F+2*d+1}')
            a(f'v_cvt_pk_bf16_f32 v{X+d}, v{t0}, v{t1}')
    else:
        a(f's_mov_b32 s{S_M}, 0xffff0000'); a('s_waitcnt vmcnt(0)')
    def store_x():
        if xout_rm:
            a(f's_load_dwordx2 s[{S_OUT}:{S_OUT+1}], s[0:1], {xout}'); a('s_waitcnt lgkmcnt(0)')
            for i in range(2): a(f'global_store_dwordx4 v{ar}, {vr(X+4*i,4)}, s[{S_OUT}:{S_OUT+1}] offset:{128*i}')
        else:
            a(f's_add_u32 s{S_T}, s{S_T3}, {xout}'); add64(a, S_OUT, S_WS, f's{S_T}')
            for i in range(2): a(f'global_store_dwordx4 v{af}, {vr(X+4*i,4)}, s[{S_OUT}:{S_OUT+1}] offset:{4096*i-2048} {stf}')
    if xn is None:
        store_x(); return
    for d in range(8):
        a(f'v_lshlrev_b32 v{F+2*d}, 16, v{X+d}'); a(f'v_and_b32 v{F+2*d+1}, s{S_M}, v{X+d}')
    def rbf(r):
        a(f'v_cvt_pk_bf16_f32 v{r}, v{r}, v{r}'); a(f'v_and_b32 v{r}, s{S_M}, v{r}')
    a(f'v_add_f32 v{t3}, v{F}, v{F+1}'); a(f'v_mul_f32 v{sm}, v{F}, v{F}'); a(f'v_fmac_f32 v{sm}, v{F+1}, v{F+1}')
    for i in range(2, 16):
        a(f'v_add_f32 v{t3}, v{t3}, v{F+i}'); a(f'v_fmac_f32 v{sm}, v{F+i}, v{F+i}')
    for x in (t3, sm): a(f'v_add_f32_dpp v{x}, v{x}, v{x} row_ror:8 row_mask:0xf bank_mask:0xf')
    for sw in ('16', '32'):
        a(f'v_mov_b32 v{t0}, v{t3}'); a(f'v_mov_b32 v{t1}, v{sm}')
        a(f'v_permlane{sw}_swap_b32 v{t3}, v{t0}'); a(f'v_permlane{sw}_swap_b32 v{sm}, v{t1}')
        a(f'v_add_f32 v{t3}, v{t3}, v{t0}'); a(f'v_add_f32 v{sm}, v{sm}, v{t1}')
    a(f's_lshl_b32 s{S_T}, s{S_W}, 2'); a(f'v_add_u32 v{t0}, s{S_T}, v{la}')
    a(f'ds_write2_b32 v{t0}, v{t3}, v{sm} offset0:0 offset1:32'); a('s_waitcnt lgkmcnt(0)'); a('s_barrier')
    a(f'ds_read_b128 {vr(P,4)}, v{la}'); a(f'ds_read_b128 {vr(P+4,4)}, v{la} offset:128')
    store_x()
    a('s_waitcnt lgkmcnt(0)')
    for x, b in ((t3, P), (sm, P+4)):
        a(f'v_add_f32 v{b}, v{b}, v{b+1}'); a(f'v_add_f32 v{b+2}, v{b+2}, v{b+3}'); a(f'v_add_f32 v{x}, v{b}, v{b+2}')
        a(f'v_mul_f32 v{x}, {f2u(1/512):#x}, v{x}')
    a(f'v_fma_f32 v{sm}, -v{t3}, v{t3}, v{sm}'); a(f'v_max_f32 v{sm}, 0, v{sm}')
    rbf(sm); a(f'v_add_f32 v{sm}, {f2u(1e-5):#x}, v{sm}'); rbf(sm)
    a(f'v_sqrt_f32 v{sm}, v{sm}'); rbf(sm); a(f'v_rcp_f32 v{sm}, v{sm}')
    rbf(t3)
    for d in range(8):
        a(f'v_sub_f32 v{t0}, v{F+2*d}, v{t3}'); a(f'v_sub_f32 v{t1}, v{F+2*d+1}, v{t3}')
        a(f'v_cvt_pk_bf16_f32 v{t1}, v{t0}, v{t1}')
        a(f'v_lshlrev_b32 v{t0}, 16, v{t1}'); a(f'v_and_b32 v{t1}, s{S_M}, v{t1}')
        a(f'v_mul_f32 v{t0}, v{t0}, v{sm}'); a(f'v_mul_f32 v{t1}, v{t1}, v{sm}')
        a(f'v_cvt_pk_bf16_f32 v{P+d}, v{t0}, v{t1}')
    a(f's_add_u32 s{S_T}, s{S_T3}, {xn}'); add64(a, S_OUT, S_WS, f's{S_T}')
    for i in range(2): a(f'global_store_dwordx4 v{af}, {vr(P+4*i,4)}, s[{S_OUT}:{S_OUT+1}] offset:{4096*i-2048} {stf}')

def rb_kernel(kind, half):
    a = Asm(); a._lbl = 4000 + 100*half + 10*kind
    H = W.H[half]
    end = a.newlabel('Lr_end')
    a(f's_cmp_ge_u32 s2, 256'); a(f's_cbranch_scc1 {end}')
    common_prologue(a, 1, 2)
    a(f's_lshr_b32 s{S_A}, s2, 2'); a(f's_and_b32 s{S_B}, s2, 3')
    xprev = W.X0 if half == 0 else W.H[0].X2
    if kind == 0: rb_body(a, 0, KA_X, True, 0, 0, 0, W.X0, False, H.XNA)
    elif kind == 1: rb_body(a, 1, xprev, False, H.YA, 0, 32768, H.X1, False, H.XNB)
    elif half == 0: rb_body(a, 8, H.X1, False, H.PT, 32768, 8*32768, H.X2, False, W.H[1].XNA)
    else: rb_body(a, 8, H.X1, False, H.PT, 32768, 8*32768, KA_OUT, True, None)
    a.label(end); a('s_endpgm')
    return a.lines

def att_kernel(half, nwg=256):
    a = Asm(); a._lbl = 5000 + 100*half
    H = W.H[half]
    L, L16, t0, t1, t2, ak, av, idx, lw, mx = range(1, 11)
    Q = 12; QN = 16; K0 = 20; C = 24; O = 40; D = [56, 72, 88]; KF = 104
    MG = 168
    end = a.newlabel('La_end')
    a(f's_cmp_ge_u32 s2, {nwg}'); a(f's_cbranch_scc1 {end}')
    common_prologue(a, L, L16)
    npg = nwg // 32
    a(f's_and_b32 s{S_A}, s2, 31'); a(f's_lshr_b32 s{S_B}, s2, 5')
    pi_of(a, t0, L, t1)
    a(f'v_and_b32 v{t1}, 32, v{L}'); a(f'v_add_u32 v{ak}, v{t0}, v{t1}'); a(f'v_lshlrev_b32 v{ak}, 4, v{ak}')
    a(f'v_and_b32 v{t0}, 15, v{t0}'); a(f's_and_b32 s{S_T}, s{S_A}, 1'); a(f's_lshl_b32 s{S_T}, s{S_T}, 4'); a(f'v_add_u32 v{t0}, s{S_T}, v{t0}')
    vpos16(a, av, t0, L, t1)
    a(f'v_mov_b32 v{idx}, 0xdddd')
    a(f's_mul_i32 s{S_T}, s{S_W}, 3072'); a(f'v_add_u32 v{lw}, s{S_T}, v{L16}')
    a(f's_lshl_b32 s{S_T}, s{S_A}, 10'); a(f's_lshl_b32 s{S_T2}, s{S_B}, 15'); a(f's_add_u32 s{S_T2}, s{S_T2}, s{S_T}')
    a(f's_add_u32 s{S_T3}, s{S_T2}, {H.QA}'); add64(a, S_IN, S_WS, f's{S_T3}')
    a(f's_add_u32 s{S_T3}, s{S_T2}, {H.OA}'); add64(a, S_OUT, S_WS, f's{S_T3}')
    a(f'global_load_dwordx4 {vr(QN,4)}, v{L16}, s[{S_IN}:{S_IN+1}]')
    a(f's_add_u32 s{S_K0}, s{S_T}, {H.KA}')
    a(f'buffer_load_dwordx4 {vr(K0,4)}, v{ak}, s[{S_WSRD}:{S_WSRD+3}], s{S_K0} offen')
    a(f's_lshl_b32 s{S_T2}, s{S_W}, 19'); a(f's_add_u32 s{S_K0}, s{S_K0}, s{S_T2}')
    a(f's_lshr_b32 s{S_K1}, s{S_A}, 1'); a(f's_lshl_b32 s{S_K1}, s{S_K1}, 11'); a(f's_add_u32 s{S_K1}, s{S_K1}, s{S_T2}'); a(f's_add_u32 s{S_K1}, s{S_K1}, {H.VA}')
    a(f'v_mov_b32 v{t0}, 0x3f803f80')
    for i in range(128): a(f'v_accvgpr_write_b32 a{i}, v{t0}')
    a(f's_mov_b32 s{S_M}, 0x0000ffff'); a(f's_mov_b32 s{S_M+1}, 0x0000ffff')
    for t in range(16):
        a(f's_add_u32 s{S_T}, s{S_K0}, {t*32768}')
        a(f'buffer_load_dwordx4 {vr(KF+4*t,4)}, v{ak}, s[{S_WSRD}:{S_WSRD+3}], s{S_T} offen')
        a(f's_add_u32 s{S_T}, s{S_K1}, {t*32768}')
        a(f's_mov_b64 exec, s[{S_M}:{S_M+1}]')
        for b in range(2): a(f'buffer_load_dwordx4 {vr(8*t+4*b,4,"a")}, v{av}, s[{S_WSRD}:{S_WSRD+3}], s{S_T} offen offset:{1024*b}')
        a('s_mov_b64 exec, -1')
    a(f's_mov_b32 s{S_BUF}, 0'); a(f's_mov_b32 s{S_CNT}, 0')
    lp = a.newlabel('La_loop'); run = a.newlabel('La_run'); slow = a.newlabel('La_slow'); nom = a.newlabel('La_nom'); noq = a.newlabel('La_noq')
    def rowmax(src, first):
        if first: a(f'v_max3_f32 v{mx}, v{src}, v{src+1}, v{src+2}'); rest = list(range(3, 16))
        else: rest = list(range(16))
        while len(rest) >= 2:
            a(f'v_max3_f32 v{mx}, v{mx}, v{src+rest[0]}, v{src+rest[1]}'); rest = rest[2:]
        if rest: a(f'v_max_f32 v{mx}, v{mx}, v{src+rest[0]}')
    def halfmax():
        a(f'v_mov_b32 v{t0}, v{mx}'); a(f'v_permlane32_swap_b32 v{mx}, v{t0}'); a(f'v_max_f32 v{mx}, v{mx}, v{t0}')
    a.label(lp)
    a('s_waitcnt vmcnt(0)')
    for i in range(4): a(f'v_mov_b32 v{Q+i}, v{QN+i}')
    a(f's_add_u32 s{S_B}, s{S_B}, {npg}'); add64(a, S_IN, S_IN, npg*32768)
    a(f's_cmp_ge_u32 s{S_B}, 64'); a(f's_cbranch_scc1 {noq}')
    a(f'global_load_dwordx4 {vr(QN,4)}, v{L16}, s[{S_IN}:{S_IN+1}]')
    a.label(noq)
    a(mf(D[0], vr(K0,4), vr(Q,4), 0))
    rowmax(D[0], True); halfmax()
    a(f's_mov_b32 s{S_XO}, 0')
    a.label(run)
    for i in range(16): a(f'v_sub_f32 v{C+i}, 0, v{mx}')
    for i in range(16): a(f'v_mov_b32 v{O+i}, 0')
    a(mf(D[0], vr(KF,4), vr(Q,4), vr(C,16)))
    a(mf(D[1], vr(KF+4,4), vr(Q,4), vr(C,16)))
    def pv(t, b): a(f'v_smfmac_f32_32x32x32_bf16 {vr(O,16)}, {vr(8*t+4*b,4,"a")}, {vr(D[t%3]+8*b,8)}, v{idx}')
    for t in range(16):
        d = D[t % 3]
        for i in range(16):
            a(f'v_exp_f32 v{d+i}, v{d+i}')
            if i == 2 and t > 0: pv(t-1, 1)
            if i == 6 and t + 2 < 16: a(mf(D[(t+2)%3], vr(KF+4*(t+2),4), vr(Q,4), vr(C,16)))
            if i == 11: pv(t, 0)
    pv(15, 1)
    a(f'v_add_u32 v{t1}, s{S_BUF}, v{lw}')
    for j in range(3): a(f'ds_write_b128 v{t1}, {vr(O+4*j,4)} offset:{1024*j}')
    a('s_waitcnt lgkmcnt(0)'); a('s_barrier')
    a(f'v_add_u32 v{t1}, s{S_BUF}, v{L16}')
    for w in range(4): a(f'ds_read_b32 v{MG+w}, v{t1} offset:{3072*w+2048}')
    a('s_waitcnt lgkmcnt(0)')
    a(f'v_add_f32 v{MG}, v{MG}, v{MG+1}'); a(f'v_add_f32 v{MG+2}, v{MG+2}, v{MG+3}'); a(f'v_add_f32 v{t2}, v{MG}, v{MG+2}')
    a(f's_xor_b32 s{S_BUF}, s{S_BUF}, 16384')
    a(f'v_cmp_nge_f32 vcc, {f2u(2.0**90):#x}, v{t2}')
    a(f's_cbranch_vccnz {slow}')
    fin = a.newlabel('La_fin'); a.label(fin)
    a(f's_and_b32 s{S_T}, s{S_CNT}, 3'); a(f's_add_u32 s{S_CNT}, s{S_CNT}, 1')
    a(f's_cmp_lg_u32 s{S_T}, s{S_W}'); a(f's_cbranch_scc1 {nom}')
    for w in range(4):
        for j in range(2): a(f'ds_read_b128 {vr(MG+8*w+4*j,4)}, v{t1} offset:{3072*w+1024*j}')
    a(f'v_rcp_f32 v{t2}, v{t2}')
    a('s_waitcnt lgkmcnt(0)')
    for i in range(8):
        a(f'v_add_f32 v{MG+i}, v{MG+i}, v{MG+8+i}'); a(f'v_add_f32 v{MG+16+i}, v{MG+16+i}, v{MG+24+i}')
        a(f'v_add_f32 v{MG+i}, v{MG+i}, v{MG+16+i}'); a(f'v_mul_f32 v{MG+i}, v{MG+i}, v{t2}')
    for i in range(4): a(f'v_cvt_pk_bf16_f32 v{MG+i}, v{MG+2*i}, v{MG+2*i+1}')
    a(f'global_store_dwordx4 v{L16}, {vr(MG,4)}, s[{S_OUT}:{S_OUT+1}]')
    a.label(nom)
    add64(a, S_OUT, S_OUT, npg*32768)
    a(f's_cmp_lt_u32 s{S_B}, 64'); a(f's_cbranch_scc1 {lp}')
    a(f's_branch {end}')
    a.label(slow)
    a(f's_cmp_lg_u32 s{S_XO}, 0'); a(f's_cbranch_scc1 {fin}')
    a(f's_mov_b32 s{S_XO}, 1')
    for t in range(16):
        a(mf(D[t%2], vr(KF+4*t,4), vr(Q,4), 0))
        rowmax(D[t%2], t == 0)
    halfmax()
    a(f'ds_write_b32 v{lw}, v{mx} offset:32768'); a('s_waitcnt lgkmcnt(0)'); a('s_barrier')
    for w in range(4): a(f'ds_read_b32 v{MG+w}, v{L16} offset:{32768+3072*w}')
    a('s_waitcnt lgkmcnt(0)')
    a(f'v_max3_f32 v{mx}, v{MG}, v{MG+1}, v{MG+2}'); a(f'v_max_f32 v{mx}, v{mx}, v{MG+3}')
    a(f's_branch {run}')
    a.label(end); a('s_endpgm')
    return a.lines

def tb_kernel(half, nwg=256):
    a = Asm(); a._lbl = 6000 + 100*half
    H = W.H[half]
    L, L16, t0, t1, t2, akm, av, avm, vo, xw, mx = range(1, 12)
    XR = 12; CM = 28; SX = 44; SM = 60; Q = 76; K = 108; KM = 140; V = 172; VM = 204; P = 212; PM = 220; ACC = 224
    OT = Q
    end = a.newlabel('Lt_end')
    a(f's_cmp_ge_u32 s2, {nwg}'); a(f's_cbranch_scc1 {end}')
    common_prologue(a, L, L16)
    ngr = nwg // 32
    a(f's_and_b32 s{S_A}, s2, 31'); a(f's_lshr_b32 s{S_B}, s2, 5')
    a(f's_lshr_b32 s{S_T}, s{S_A}, 2'); a(f's_lshl_b32 s{S_T}, s{S_T}, 19'); a(f's_and_b32 s{S_T2}, s{S_A}, 3'); a(f's_lshl_b32 s{S_T2}, s{S_T2}, 8')
    a(f's_add_u32 s{S_OFF}, s{S_T}, s{S_T2}')
    load_wslices(a, [(KA_WO, 4*MB, 0, 'a', 0)], 1024, L, t0, t1, t2)
    a(f'v_and_b32 v{t0}, 7, v{L}'); a(f'v_lshlrev_b32 v{akm}, 4, v{t0}'); a(f'v_lshrrev_b32 v{t0}, 5, v{L}'); a(f'v_lshl_add_u32 v{akm}, v{t0}, 7, v{akm}')
    a(f'v_add_u32 v{akm}, {HB_KM}, v{akm}')
    pi_of(a, t0, L, t1); vpos16(a, av, t0, L, t1); a(f'v_add_u32 v{av}, {HB_V}, v{av}')
    a(f'v_lshlrev_b32 v{avm}, 2, v{t0}'); a(f'v_lshrrev_b32 v{t1}, 5, v{L}'); a(f'v_lshl_add_u32 v{avm}, v{t1}, 8, v{avm}'); a(f'v_add_u32 v{avm}, {HB_VM}, v{avm}')
    a(f's_lshl_b32 s{S_T}, s{S_W}, 11'); a(f'v_add_u32 v{vo}, s{S_T}, v{L16}')
    a(f's_lshl_b32 s{S_T}, s{S_W}, 13'); a(f'v_add_u32 v{xw}, s{S_T}, v{L16}')
    a(f'v_and_b32 v{t0}, 31, v{L}'); a(f'v_lshrrev_b32 v{t1}, 5, v{L}'); a(f'v_lshlrev_b32 v{t1}, 2, v{t1}'); a(f'v_sub_u32 v{t0}, v{t0}, v{t1}')
    a(f'v_mov_b32 v{t1}, {f2u(-1e30):#x}')
    for i in range(16):
        a(f'v_cmp_le_i32 vcc, {8*(i>>2)+(i&3)}, v{t0}'); a(f'v_cndmask_b32 v{CM+i}, v{t1}, 0, vcc')
    a(f's_and_b32 s{S_T}, s{S_A}, 28'); a(f's_add_u32 s{S_T}, s{S_T}, s{S_W}'); a(f's_lshl_b32 s{S_T}, s{S_T}, 21')
    a(f's_lshl_b32 s{S_T2}, s{S_B}, 15'); a(f's_add_u32 s{S_XO}, s{S_T}, s{S_T2}'); a(f's_add_u32 s{S_XO}, s{S_XO}, {H.HB}')
    a(f's_lshl_b32 s{S_T}, s{S_B}, 18'); a(f's_lshl_b32 s{S_T2}, s{S_A}, 13'); a(f's_add_u32 s{S_T}, s{S_T}, s{S_T2}'); a(f's_add_u32 s{S_T}, s{S_T}, {H.PT}')
    add64(a, S_OUT, S_WS, f's{S_T}')
    a(f's_mov_b32 s{S_M}, {f2u(math.log2(math.e)/math.sqrt(128.0)):#x}')
    lp = a.newlabel('Lt_loop')
    a.label(lp)
    def bl(n, dst, va, so, off): a(f'buffer_load_dword{n} {vr(dst, 4 if n else 1)}, v{va}, s[{S_WSRD}:{S_WSRD+3}], s{so} offen offset:{off}')
    a(f's_add_u32 s{S_T}, s{S_XO}, 4096'); a(f's_add_u32 s{S_T2}, s{S_XO}, {HB_Q}'); a(f's_add_u32 s{S_T3}, s{S_XO}, {HB_Q+4096}')
    for kb in range(8):
        bl('x4', K+4*kb, L16, S_XO if kb < 4 else S_T, (kb%4)*1024)
        bl('x4', Q+4*kb, L16, S_T2 if kb < 4 else S_T3, (kb%4)*1024)
    for kb in range(8): bl('x4', KM+4*kb, akm, S_XO, kb*256)
    for f in range(8): bl('x4', V+4*f, av, S_XO if f < 4 else S_T, (f%4)*1024)
    for t in range(4):
        for e in range(2): bl('', VM+2*t+e, avm, S_XO, t*512 + e*128)
    for kb in range(8):
        a(f's_waitcnt vmcnt({24 + 14 - 2*kb})')
        a(mf(SX, vr(K+4*kb,4), vr(Q+4*kb,4), vr(SX,16) if kb else vr(CM,16)))
    a('s_waitcnt vmcnt(16)')
    for kb in range(8): a(mf(SM, vr(KM+4*kb,4), vr(Q+4*kb,4), vr(SM,16) if kb else 0))
    E = [SX+i for i in range(16)] + [SM+i for i in range(4)]
    a(f'v_max3_f32 v{mx}, v{E[0]}, v{E[1]}, v{E[2]}')
    for i in range(3, 19, 2): a(f'v_max3_f32 v{mx}, v{mx}, v{E[i]}, v{E[i+1]}')
    a(f'v_max_f32 v{mx}, v{mx}, v{E[19]}')
    a(f'v_mov_b32 v{t0}, v{mx}'); a(f'v_permlane32_swap_b32 v{mx}, v{t0}'); a(f'v_max_f32 v{mx}, v{mx}, v{t0}')
    a(f'v_mul_f32 v{mx}, s{S_M}, v{mx}')
    for e in E: a(f'v_fma_f32 v{e}, v{e}, s{S_M}, -v{mx}')
    for e in E: a(f'v_exp_f32 v{e}, v{e}')
    a(f'v_add_f32 v{t1}, v{E[0]}, v{E[1]}')
    for e in E[2:]: a(f'v_add_f32 v{t1}, v{t1}, v{e}')
    a(f'v_mov_b32 v{t0}, v{t1}'); a(f'v_permlane32_swap_b32 v{t1}, v{t0}'); a(f'v_add_f32 v{t1}, v{t1}, v{t0}')
    a(f'v_rcp_f32 v{t1}, v{t1}')
    for e in E: a(f'v_mul_f32 v{e}, v{e}, v{t1}')
    for i in range(8): a(f'v_cvt_pk_bf16_f32 v{P+i}, v{SX+2*i}, v{SX+2*i+1}')
    for i in range(2): a(f'v_cvt_pk_bf16_f32 v{PM+i}, v{SM+2*i}, v{SM+2*i+1}')
    a('s_waitcnt vmcnt(0)')
    for t in range(4):
        o = OT+16*t
        a(f'v_mfma_f32_32x32x8_bf16 {vr(o,16)}, {vr(VM+2*t,2)}, {vr(PM,2)}, 0')
        for j in range(2): a(mf(o, vr(V+8*t+4*j,4), vr(P+4*j,4), vr(o,16)))
    a('s_barrier')
    for t in range(4):
        for j in range(2):
            o = OT+16*t+8*j
            for i in range(4): a(f'v_cvt_pk_bf16_f32 v{o+i}, v{o+2*i}, v{o+2*i+1}')
            a(f'ds_write_b128 v{xw}, {vr(o,4)} offset:{(2*t+j)*1024}')
    a('s_waitcnt lgkmcnt(0)'); a('s_barrier')
    gemm_core(a, L16, XR, [(ACC, 'a', 0, False)])
    pack_store(a, ACC, vo, S_OUT)
    add64(a, S_OUT, S_OUT, ngr*8*32768); a(f's_add_u32 s{S_XO}, s{S_XO}, {ngr*32768}')
    a(f's_add_u32 s{S_B}, s{S_B}, {ngr}'); a(f's_cmp_lt_u32 s{S_B}, 64'); a(f's_cbranch_scc1 {lp}')
    a.label(end); a('s_endpgm')
    return a.lines
```

```python
from asmlib import *
from layout import *
import math
import chain2 as C
from work import *

S_DBG = 44; S_SLOT = 36; S_TK = 37; S_SPIN = 38; S_PF = 39; S_FO = 40; S_N = 41; S_X = 42; S_SO = 43; S_SV = 46; S_PD = 47
L, L16 = 1, 2
VZ = 10; VF = 11
SPIN_MAX = 0x60000

class Mega:
    def __init__(self, stamps=False, chain_kw={}):
        self.a = Asm(); self.stamps = stamps; self.chain_kw = chain_kw
        self.end = 'Lm_end'
        self.tbsleep = chain_kw.pop('tbsleep', 8); self.wsleep = chain_kw.pop('wsleep', 2); self.perm = chain_kw.pop('perm', 0x65423170)
    def stamp(self, k, hs=None):
        if not self.stamps: return
        a = self.a; l = a.newlabel('Lst')
        a(f's_cmp_lg_u32 s{S_W}, 0'); a(f's_cbranch_scc1 {l}')
        a('s_memrealtime s[96:97]'); a(f's_lshl_b32 s98, s99, 7'); a(f's_add_u32 s98, s98, {STAMP_OFF + 4*k}'); a('s_waitcnt lgkmcnt(0)')
        if hs is not None: a(f's_lshl_b32 s97, s{hs}, 5'); a('s_add_u32 s98, s98, s97')
        a('s_mov_b64 exec, 1'); a(f'v_writelane_b32 v{self.sv}, s96, 0'); a(f'v_writelane_b32 v{self.sv+1}, s98, 0')
        a(f'v_mov_b32 v{self.sv+1}, s98')
        a(f'global_store_dword v{self.sv+1}, v{self.sv}, s[{S_WS}:{S_WS+1}]'); a('s_waitcnt vmcnt(0)'); a('s_mov_b64 exec, -1')
        a.label(l)
    def mark(self, k, sgpr, val):
        if not self.stamps: return
        a = self.a; l = a.newlabel('Lmk')
        a(f's_cmp_lg_u32 s{sgpr}, {val}'); a(f's_cbranch_scc1 {l}')
        a('s_memrealtime s[96:97]'); a('s_waitcnt lgkmcnt(0)'); a(f's_mov_b32 s{70+k}, s96')
        a.label(l)
    def dump_marks(self):
        if not self.stamps: return
        a = self.a
        for k in range(16): a(f'v_mov_b32 v{16+k}, s{70+k}')
        a(f's_lshl_b32 s98, s99, 7'); a(f's_add_u32 s98, s98, {STAMP_OFF + 64}'); a('v_mov_b32 v12, s98')
        l = a.newlabel('Lmk'); a(f's_cmp_lg_u32 s{S_W}, 0'); a(f's_cbranch_scc1 {l}')
        for k in range(4): a(f'global_store_dwordx4 v12, {vr(16+4*k,4)}, s[{S_WS}:{S_WS+1}] offset:{16*k}')
        a.label(l)
    def flag_off(self, base, idx_sgpr, sh=2):
        self.a(f's_lshl_b32 s{S_FO}, s{idx_sgpr}, {sh}'); self.a(f's_add_u32 s{S_FO}, s{S_FO}, {base}')
    def flag_issue(self, n):
        a = self.a
        a(f'v_min_u32 v{VZ}, {n-1}, v{L}'); a(f'v_lshl_add_u32 v{VZ}, v{VZ}, 8, s{S_FO}'); a(f'global_load_dword v{VF}, v{VZ}, s[{S_WS}:{S_WS+1}] sc1')
    def wait(self, n, sleep=None, mask=None, sh=8):
        a = self.a; l1 = a.newlabel('Lw'); l2 = a.newlabel('Lw')
        a(f's_mov_b32 s{S_SPIN}, 0')
        a(f'v_min_u32 v{VZ}, {n-1}, v{L}'); a(f'v_lshl_add_u32 v{VZ}, v{VZ}, {sh}, s{S_FO}')
        a.label(l1)
        a(f'global_load_dword v{VF}, v{VZ}, s[{S_WS}:{S_WS+1}] sc1'); a('s_waitcnt vmcnt(0)')
        a(f'v_cmp_eq_u32 vcc, 0, v{VF}')
        if mask is None: a(f's_cbranch_vccz {l2}')
        else: a(f's_and_b64 vcc, vcc, s[{mask}:{mask+1}]'); a(f's_cbranch_scc0 {l2}')
        a(f's_sleep {sleep or self.wsleep}')
        a(f's_add_u32 s{S_SPIN}, s{S_SPIN}, 1'); a(f's_cmp_lt_u32 s{S_SPIN}, {SPIN_MAX}'); a(f's_cbranch_scc1 {l1}')
        a(f's_branch {self.end}')
        a.label(l2)
    def set_word(self, base, line_sgpr, word_sgpr, s1=2, s2=8):
        a = self.a
        a(f's_lshl_b32 s{S_SO}, s{line_sgpr}, {s1}'); a(f's_lshl_b32 s{S_X}, s{word_sgpr}, {s2}'); a(f's_add_u32 s{S_SO}, s{S_SO}, s{S_X}'); a(f's_add_u32 s{S_SO}, s{S_SO}, {base}')
    def wsignal(self, val=None):
        a = self.a
        a(f'v_mov_b32 v{VZ}, s{S_SO}'); a(f'v_mov_b32 v{VF}, {"s%d" % val if val else "1"}')
        a('s_mov_b64 exec, 1'); a(f'global_store_dword v{VZ}, v{VF}, s[{S_WS}:{S_WS+1}] sc1'); a('s_mov_b64 exec, -1')
    def signal_wg(self):
        a = self.a; l = a.newlabel('Ls')
        a('s_waitcnt vmcnt(0)'); a('s_barrier'); a(f's_cmp_lg_u32 s{S_W}, 0'); a(f's_cbranch_scc1 {l}')
        self.wsignal(); a.label(l)

    def stream(self, ngr, xsrc, inflag, nin, tiles, epilogue, nst, outflag, store, mk=None):
        a = self.a; xa = 9; XR = 12
        lp = a.newlabel('Lg_loop'); have = a.newlabel('Lg_have'); go = a.newlabel('Lg_go'); fetch = a.newlabel('Lg_fetch'); done = a.newlabel('Lg_done')
        a(f's_lshl_b32 s{S_XO}, s{S_B}, 15'); a(f's_add_u32 s{S_XO}, s{S_XO}, {xsrc}'); a(f's_mov_b32 s{S_BUF}, {128*1024}')
        a('s_barrier')
        a.label(fetch)
        a(f's_mov_b32 s{S_PD}, 0')
        if inflag is not None:
            self.flag_off(inflag, S_B); self.wait(nin)
        if mk: self.mark(mk[0], S_B, mk[1])
        dma_x(a, L16, S_XO, S_BUF, 'sc1')
        a('s_waitcnt vmcnt(0)')
        a.label(go)
        a('s_barrier')
        if mk: self.mark(mk[0]+1, S_B, mk[1])
        a(f'v_add_u32 v{xa}, s{S_BUF}, v{L16}')
        a(f's_add_u32 s{S_TK}, s{S_B}, {ngr}'); a(f's_xor_b32 s{S_BUF}, s{S_BUF}, {128*1024}'); a(f's_add_u32 s{S_XO}, s{S_XO}, {ngr*32768}')
        if inflag is not None:
            a(f's_min_u32 s{S_T}, s{S_TK}, 63'); self.flag_off(inflag, S_T); self.flag_issue(nin)
        def pref():
            sk = a.newlabel('Lg_sk'); np_ = a.newlabel('Lg_np')
            a('s_waitcnt vmcnt(0)')
            if inflag is not None: a(f'v_cmp_eq_u32 vcc, 0, v{VF}')
            a(f's_cmp_eq_u32 s{S_PD}, 0'); a(f's_cbranch_scc1 {np_}')
            self.wsignal(S_SV if store else None)
            a.label(np_)
            a(f's_mov_b32 s{S_PF}, 0')
            a(f's_cmp_ge_u32 s{S_TK}, 64'); a(f's_cbranch_scc1 {sk}')
            if inflag is not None:
                a(f's_cbranch_vccnz {sk}')
            dma_x(a, L16, S_XO, S_BUF, 'sc1'); a(f's_mov_b32 s{S_PF}, 1')
            a.label(sk)
        gemm_core(a, xa, XR, tiles, {(14 if len(tiles) > 1 else 30): pref})
        epilogue()
        if mk: self.mark(mk[0]+2, S_B, mk[1])
        outflag()
        add64(a, S_OUT, S_OUT, ngr*32768)
        a(f's_mov_b32 s{S_B}, s{S_TK}')
        a(f's_cmp_eq_u32 s{S_PF}, 0'); a(f's_cbranch_scc1 {have}')
        first = a.newlabel('Lg_first')
        a(f's_cmp_lt_u32 s{S_B}, {2*ngr}'); a(f's_cbranch_scc1 {first}')
        a(f's_mov_b32 s{S_PD}, 1'); a(f's_waitcnt vmcnt({nst})'); a(f's_branch {go}')
        a.label(first)
        a('s_waitcnt vmcnt(0)'); self.wsignal(S_SV if store else None)
        if mk: self.mark(mk[0]+3, S_B, mk[1]+ngr)
        a(f's_mov_b32 s{S_PD}, 0'); a(f's_branch {go}')
        a.label(have)
        a('s_waitcnt vmcnt(0)'); self.wsignal(S_SV if store else None)
        if mk: self.mark(mk[0]+3, S_B, mk[1]+ngr)
        a(f's_cmp_lt_u32 s{S_B}, 64'); a(f's_cbranch_scc1 {fetch}')
        a('s_barrier')

    def proj_weights(self, isB, share=None):
        a = self.a
        a(f's_lshl_b32 s{S_OFF}, s{S_A}, 8')
        if isB: mats = [(KA_WK, 4*MB, 0, 'a', 128), (KA_WV, 4*MB, 0, 'v', 128), (KA_WQ, 4*MB, 0, 'a', 0)]; stride = 8192
        else: mats = [(KA_WQKV, 1536*1024, 1024, 'a', 128), (KA_WQKV, 1536*1024, 2048, 'v', 128), (KA_WQKV, 1536*1024, 0, 'a', 0)]; stride = 3072
        load_wslices(a, mats, stride, L, 3, 4, 5, share)
    def proj_run(self, half, isB, ngr, nowait=False):
        a = self.a; H = W.H[half]
        t0, t1, vq, vk, vv = 3, 4, 6, 7, 8; ACC = 28
        ro = (HB_Q, HB_K, HB_V) if isB else (0, H.KA - H.QA, H.VA - H.QA)
        a(f's_lshl_b32 s{S_T}, s{S_W}, 11')
        a(f's_add_u32 s{S_T2}, s{S_T}, {ro[0]}'); a(f'v_add_u32 v{vq}, s{S_T2}, v{L16}')
        a(f's_add_u32 s{S_T2}, s{S_T}, {ro[1]}'); a(f'v_add_u32 v{vk}, s{S_T2}, v{L16}')
        pi_of(a, t0, L, t1); vpos16(a, vv, t0, L, t1)
        a(f's_add_u32 s{S_T2}, s{S_T}, {ro[2]}'); a(f'v_add_u32 v{vv}, s{S_T2}, v{vv}')
        a(f's_lshl_b32 s{S_T}, s{S_A}, {21 if isB else 13}'); a(f's_lshl_b32 s{S_T2}, s{S_B}, 15'); a(f's_add_u32 s{S_T}, s{S_T}, s{S_T2}')
        a(f's_add_u32 s{S_T}, s{S_T}, {H.HB if isB else H.QA}'); add64(a, S_OUT, S_WS, f's{S_T}')
        a(f's_mov_b32 s{S_M}, {f2u(0.25*math.log2(math.e)):#x}')
        def epi():
            pack_store(a, ACC+16, vk, S_OUT, 'sc1'); pack_store(a, ACC+32, vv, S_OUT, 'sc1'); pack_store(a, ACC, vq, S_OUT, 'sc1', scale=None if isB else S_M)
        def outf():
            if isB:
                a(f's_and_b32 s{S_T}, s{S_B}, 1'); a(f's_lshl_b32 s{S_T}, s{S_T}, 2'); a(f's_add_u32 s{S_T}, s{S_T}, s{S_W}')
                self.set_word(FL(half, "HEAD"), S_A, S_T, 8, 5); a(f's_mov_b32 s{S_SV}, s{S_TK}')
            else:
                a(f's_lshl_b32 s{S_T}, s{S_A}, 2'); a(f's_add_u32 s{S_T}, s{S_T}, s{S_W}'); self.set_word(FL(half, "QKVA"), S_T, S_B, 11, 5)
        self.stream(ngr, H.XNB if isB else H.XNA, None if nowait else FL(half, 'XNB' if isB else 'XNA'), 4,
                    [(ACC+16, 'a', 128, False), (ACC+32, 'v', 128, True), (ACC, 'a', 0, False)], epi, 6, outf, isB, mk=(0, 0 if isB else 63) if half == 1 else None)
    def woa_run(self, half, ngr):
        a = self.a; H = W.H[half]; vo = 6; ACC = 28
        a(f's_lshl_b32 s{S_T}, s{S_W}, 11'); a(f'v_add_u32 v{vo}, s{S_T}, v{L16}')
        a(f's_lshl_b32 s{S_T}, s{S_A}, 13'); a(f's_lshl_b32 s{S_T2}, s{S_B}, 15'); a(f's_add_u32 s{S_T}, s{S_T}, s{S_T2}')
        a(f's_add_u32 s{S_T}, s{S_T}, {H.YA}'); add64(a, S_OUT, S_WS, f's{S_T}')
        def outf(): a(f's_lshl_b32 s{S_T}, s{S_A}, 2'); a(f's_add_u32 s{S_T}, s{S_T}, s{S_W}'); self.set_word(FL(half, "YA"), S_B, S_T)
        self.stream(ngr, H.OA, FL(half, 'OA'), 32, [(ACC, 'v', 128, False)], lambda: pack_store(a, ACC, vo, S_OUT, 'sc1'), 2, outf, False, mk=(0, 0) if half == 1 else None)
    def rb_run(self, half, kind, ngr):
        a = self.a; H = W.H[half]
        lp = a.newlabel('Lr_loop'); a.label(lp)
        mk = (4, 0) if (kind == 1 and half == 1) else ((4, 63) if (kind == 2 and half == 0) else None)
        def ready():
            self.flag_off(FL(half, 'YA' if kind == 1 else 'PT'), S_A); self.wait(16 if kind == 1 else 32)
            if mk: self.mark(mk[0], S_A, mk[1])
        xprev = W.X0 if half == 0 else W.H[0].X2
        if kind == 1: rb_body(a, 1, xprev, False, H.YA, 0, 32768, H.X1, False, H.XNB, 'sc1', 'sc1', ready)
        elif half == 0: rb_body(a, 8, H.X1, False, H.PT, 32768, 8*32768, H.X2, False, W.H[1].XNA, 'sc1', 'sc1', ready)
        else: rb_body(a, 8, H.X1, False, H.PT, 32768, 8*32768, KA_OUT, True, None, 'sc1', 'sc1', ready)
        if kind == 1 or half == 0:
            if mk: self.mark(mk[0]+2, S_A, mk[1])
            self.set_word(FL(half, 'XNB') if kind == 1 else FL(1, 'XNA'), S_A, S_B); self.signal_wg()
            if mk: self.mark(mk[0]+3, S_A, mk[1])
        a(f's_add_u32 s{S_A}, s{S_A}, {ngr}'); a(f's_cmp_lt_u32 s{S_A}, 64'); a(f's_cbranch_scc1 {lp}')

    def att_run(self, half, npg):
        a = self.a; H = W.H[half]
        t0, t1, t2, ak, av, idx, lw = range(3, 10); mx = 204
        Q = 12; QN = 16; K0 = 20; Cc = 24; O = 40; D = [56, 72, 88]; KF = 104; MG = 168
        pi_of(a, t0, L, t1)
        a(f'v_and_b32 v{t1}, 32, v{L}'); a(f'v_add_u32 v{ak}, v{t0}, v{t1}'); a(f'v_lshlrev_b32 v{ak}, 4, v{ak}')
        a(f'v_and_b32 v{t0}, 15, v{t0}'); a(f's_and_b32 s{S_T}, s{S_A}, 1'); a(f's_lshl_b32 s{S_T}, s{S_T}, 4'); a(f'v_add_u32 v{t0}, s{S_T}, v{t0}')
        vpos16(a, av, t0, L, t1)
        a(f'v_mov_b32 v{idx}, 0xdddd')
        a(f's_mul_i32 s{S_T}, s{S_W}, 3072'); a(f'v_add_u32 v{lw}, s{S_T}, v{L16}')
        if half == 0:
            a(f'v_mov_b32 v{t0}, 0x3f803f80')
            for i in range(128): a(f'v_accvgpr_write_b32 a{i}, v{t0}')
        a(f's_lshr_b32 s{S_T}, s{S_A}, 1'); self.flag_off(FL(half, 'QKVA'), S_T, 11); self.wait(56, sh=5)
        self.stamp(2 + 8*half)
        a(f's_lshl_b32 s{S_T}, s{S_A}, 10'); a(f's_lshl_b32 s{S_T2}, s{S_B}, 15'); a(f's_add_u32 s{S_T2}, s{S_T2}, s{S_T}')
        a(f's_add_u32 s{S_T3}, s{S_T2}, {H.QA}'); add64(a, S_IN, S_WS, f's{S_T3}')
        a(f's_add_u32 s{S_T3}, s{S_T2}, {H.OA}'); add64(a, S_OUT, S_WS, f's{S_T3}')
        a(f'global_load_dwordx4 {vr(QN,4)}, v{L16}, s[{S_IN}:{S_IN+1}] sc1')
        a(f's_add_u32 s{S_K0}, s{S_T}, {H.KA}')
        a(f'buffer_load_dwordx4 {vr(K0,4)}, v{ak}, s[{S_WSRD}:{S_WSRD+3}], s{S_K0} offen sc1')
        a(f's_lshl_b32 s{S_T2}, s{S_W}, 15'); a(f's_add_u32 s{S_K0}, s{S_K0}, s{S_T2}')
        a(f's_lshr_b32 s{S_K1}, s{S_A}, 1'); a(f's_lshl_b32 s{S_K1}, s{S_K1}, 11'); a(f's_add_u32 s{S_K1}, s{S_K1}, s{S_T2}'); a(f's_add_u32 s{S_K1}, s{S_K1}, {H.VA}')
        a(f's_mov_b32 s{S_M}, 0x0000ffff'); a(f's_mov_b32 s{S_M+1}, 0x0000ffff')
        def kv_tile(t):
            a(f's_add_u32 s{S_T}, s{S_K0}, {t*131072}')
            a(f'buffer_load_dwordx4 {vr(KF+4*t,4)}, v{ak}, s[{S_WSRD}:{S_WSRD+3}], s{S_T} offen sc1')
            a(f's_add_u32 s{S_T}, s{S_K1}, {t*131072}')
            a(f's_mov_b64 exec, s[{S_M}:{S_M+1}]')
            for b in range(2): a(f'buffer_load_dwordx4 {vr(8*t+4*b,4,"a")}, v{av}, s[{S_WSRD}:{S_WSRD+3}], s{S_T} offen offset:{1024*b} sc1')
            a('s_mov_b64 exec, -1')
        def late_tile(t):
            l = a.newlabel('La_lt'); a(f's_cmp_eq_u32 s{S_PD}, 0'); a(f's_cbranch_scc1 {l}')
            a(f's_add_u32 s{S_T}, s{S_W}, {4*t}'); a(f's_lshl_b64 s[{S_P}:{S_P+1}], 1, s{S_T}')
            self.wait(64, mask=S_P, sh=5)
            if half and t == 15: self.mark(0, S_B, 0)
            kv_tile(t); a('s_waitcnt vmcnt(0)')
            if t == 15: a(f's_mov_b32 s{S_PD}, 0')
            a.label(l)
        for t in range(14): kv_tile(t)
        a(f's_mov_b32 s{S_PD}, 1')
        a(f's_mov_b32 s{S_BUF}, 0'); a(f's_mov_b32 s{S_CNT}, 0'); a(f's_mov_b32 s{S_PF}, 0')
        a('s_barrier')
        lp = a.newlabel('La_loop'); run = a.newlabel('La_run'); slow = a.newlabel('La_slow'); nom = a.newlabel('La_nom'); noq = a.newlabel('La_noq'); out = a.newlabel('La_out')
        def rowmax(src, first):
            if first: a(f'v_max3_f32 v{mx}, v{src}, v{src+1}, v{src+2}'); rest = list(range(3, 16))
            else: rest = list(range(16))
            while len(rest) >= 2:
                a(f'v_max3_f32 v{mx}, v{mx}, v{src+rest[0]}, v{src+rest[1]}'); rest = rest[2:]
            if rest: a(f'v_max_f32 v{mx}, v{mx}, v{src+rest[0]}')
        def halfmax():
            a(f'v_mov_b32 v{t0}, v{mx}'); a(f'v_permlane32_swap_b32 v{mx}, v{t0}'); a(f'v_max_f32 v{mx}, v{mx}, v{t0}')
        def pending():
            l = a.newlabel('La_p'); a(f's_cmp_eq_u32 s{S_PF}, 0'); a(f's_cbranch_scc1 {l}')
            a('s_waitcnt vmcnt(0)'); self.wsignal(); a(f's_mov_b32 s{S_PF}, 0')
            if half: self.mark(3, S_B, 0)
            a.label(l)
        a('s_waitcnt vmcnt(0)')
        if half: self.mark(1, S_B, 0)
        a.label(lp)
        for i in range(4): a(f'v_mov_b32 v{Q+i}, v{QN+i}')
        a(f's_add_u32 s{S_TK}, s{S_B}, {npg}'); add64(a, S_IN, S_IN, npg*32768)
        a(f's_cmp_ge_u32 s{S_TK}, 64'); a(f's_cbranch_scc1 {noq}')
        a(f'global_load_dwordx4 {vr(QN,4)}, v{L16}, s[{S_IN}:{S_IN+1}] sc1')
        a.label(noq)
        a(mf(D[0], vr(K0,4), vr(Q,4), 0))
        rowmax(D[0], True); halfmax()
        a(f's_mov_b32 s{S_XO}, 0')
        a.label(run)
        for i in range(16): a(f'v_sub_f32 v{Cc+i}, 0, v{mx}')
        for i in range(16): a(f'v_mov_b32 v{O+i}, 0')
        a(mf(D[0], vr(KF,4), vr(Q,4), vr(Cc,16)))
        a(mf(D[1], vr(KF+4,4), vr(Q,4), vr(Cc,16)))
        def pv(t, b): a(f'v_smfmac_f32_32x32x32_bf16 {vr(O,16)}, {vr(8*t+4*b,4,"a")}, {vr(D[t%3]+8*b,8)}, v{idx}')
        for t in range(16):
            d = D[t % 3]
            for i in range(16):
                a(f'v_exp_f32 v{d+i}, v{d+i}')
                if i == 2 and t > 0: pv(t-1, 1)
                if i == 6 and t + 2 >= 14 and t + 2 < 16: late_tile(t+2)
                if i == 6 and t + 2 < 16: a(mf(D[(t+2)%3], vr(KF+4*(t+2),4), vr(Q,4), vr(Cc,16)))
                if i == 11: pv(t, 0)
            if t == 5: pending()
        pv(15, 1)
        a(f'v_add_u32 v{t1}, s{S_BUF}, v{lw}')
        for j in range(3): a(f'ds_write_b128 v{t1}, {vr(O+4*j,4)} offset:{1024*j}')
        a('s_waitcnt vmcnt(0) lgkmcnt(0)'); a('s_barrier')
        a(f'v_add_u32 v{t1}, s{S_BUF}, v{L16}')
        for w in range(4): a(f'ds_read_b32 v{MG+w}, v{t1} offset:{3072*w+2048}')
        a('s_waitcnt lgkmcnt(0)')
        a(f'v_add_f32 v{MG}, v{MG}, v{MG+1}'); a(f'v_add_f32 v{MG+2}, v{MG+2}, v{MG+3}'); a(f'v_add_f32 v{t2}, v{MG}, v{MG+2}')
        a(f's_xor_b32 s{S_BUF}, s{S_BUF}, 16384')
        a(f'v_cmp_nge_f32 vcc, {f2u(2.0**90):#x}, v{t2}')
        a(f's_cbranch_vccnz {slow}')
        fin = a.newlabel('La_fin'); a.label(fin)
        a(f's_and_b32 s{S_T}, s{S_CNT}, 3'); a(f's_add_u32 s{S_CNT}, s{S_CNT}, 1')
        a(f's_cmp_lg_u32 s{S_T}, s{S_W}'); a(f's_cbranch_scc1 {nom}')
        for w in range(4):
            for j in range(2): a(f'ds_read_b128 {vr(MG+8*w+4*j,4)}, v{t1} offset:{3072*w+1024*j}')
        a(f'v_rcp_f32 v{t2}, v{t2}')
        a('s_waitcnt lgkmcnt(0)')
        for i in range(8):
            a(f'v_add_f32 v{MG+i}, v{MG+i}, v{MG+8+i}'); a(f'v_add_f32 v{MG+16+i}, v{MG+16+i}, v{MG+24+i}')
            a(f'v_add_f32 v{MG+i}, v{MG+i}, v{MG+16+i}'); a(f'v_mul_f32 v{MG+i}, v{MG+i}, v{t2}')
        for i in range(4): a(f'v_cvt_pk_bf16_f32 v{MG+i}, v{MG+2*i}, v{MG+2*i+1}')
        a(f'global_store_dwordx4 v{L16}, {vr(MG,4)}, s[{S_OUT}:{S_OUT+1}] sc1')
        self.set_word(FL(half, 'OA'), S_B, S_A); a(f's_mov_b32 s{S_PF}, 1')
        if half: self.mark(2, S_B, 0)
        a(f's_cmp_ge_u32 s{S_B}, {npg}'); a(f's_cbranch_scc1 {nom}')
        pending()
        a.label(nom)
        add64(a, S_OUT, S_OUT, npg*32768)
        a(f's_mov_b32 s{S_B}, s{S_TK}')
        a(f's_cmp_lt_u32 s{S_B}, 64'); a(f's_cbranch_scc1 {lp}')
        pending()
        a(f's_branch {out}')
        a.label(slow)
        a(f's_cmp_lg_u32 s{S_XO}, 0'); a(f's_cbranch_scc1 {fin}')
        a(f's_mov_b32 s{S_XO}, 1')
        for t in range(16):
            a(mf(D[t%2], vr(KF+4*t,4), vr(Q,4), 0))
            rowmax(D[t%2], t == 0)
        halfmax()
        a(f'ds_write_b32 v{lw}, v{mx} offset:32768'); a('s_waitcnt lgkmcnt(0)'); a('s_barrier')
        for w in range(4): a(f'ds_read_b32 v{MG+w}, v{L16} offset:{32768+3072*w}')
        a('s_waitcnt lgkmcnt(0)')
        a(f'v_max3_f32 v{mx}, v{MG}, v{MG+1}, v{MG+2}'); a(f'v_max_f32 v{mx}, v{mx}, v{MG+3}')
        a(f's_branch {run}')
        a.label(out)
        a('s_barrier')

    def tb_weights(self):
        a = self.a
        a(f's_lshr_b32 s{S_T}, s{S_A}, 2'); a(f's_lshl_b32 s{S_T}, s{S_T}, 19'); a(f's_and_b32 s{S_T2}, s{S_A}, 3'); a(f's_lshl_b32 s{S_T2}, s{S_T2}, 8')
        a(f's_add_u32 s{S_OFF}, s{S_T}, s{S_T2}')
        load_wslices(a, [(KA_WO, 4*MB, 0, 'a', 128)], 1024, L, 3, 4, 5)
    def tb_run(self, half, ngr):
        a = self.a; H = W.H[half]
        t0, t1, akm, av, avm, vo, xw = range(3, 10); mx = 240; FG = 244
        XR = 12; CM = 28; SX = 44; SM = 60; Q = 76; K = 108; KM = 140; V = 172; VM = 204; P = 212; PM = 220; ACC = 224
        OT = Q
        a(f'v_and_b32 v{t0}, 7, v{L}'); a(f'v_lshlrev_b32 v{akm}, 4, v{t0}'); a(f'v_lshrrev_b32 v{t0}, 5, v{L}'); a(f'v_lshl_add_u32 v{akm}, v{t0}, 7, v{akm}')
        a(f'v_add_u32 v{akm}, {HB_KM}, v{akm}')
        pi_of(a, t0, L, t1); vpos16(a, av, t0, L, t1); a(f'v_add_u32 v{av}, {HB_V}, v{av}')
        a(f'v_lshlrev_b32 v{avm}, 2, v{t0}'); a(f'v_lshrrev_b32 v{t1}, 5, v{L}'); a(f'v_lshl_add_u32 v{avm}, v{t1}, 8, v{avm}'); a(f'v_add_u32 v{avm}, {HB_VM}, v{avm}')
        a(f's_lshl_b32 s{S_T}, s{S_W}, 11'); a(f'v_add_u32 v{vo}, s{S_T}, v{L16}')
        a(f's_lshl_b32 s{S_T}, s{S_W}, 13'); a(f'v_add_u32 v{xw}, s{S_T}, v{L16}')
        a(f'v_and_b32 v{t0}, 31, v{L}'); a(f'v_lshrrev_b32 v{t1}, 5, v{L}'); a(f'v_lshlrev_b32 v{t1}, 2, v{t1}'); a(f'v_sub_u32 v{t0}, v{t0}, v{t1}')
        a(f'v_mov_b32 v{t1}, {f2u(-1e30):#x}')
        for i in range(16):
            a(f'v_cmp_le_i32 vcc, {8*(i>>2)+(i&3)}, v{t0}'); a(f'v_cndmask_b32 v{CM+i}, v{t1}, 0, vcc')
        a(f's_and_b32 s{S_T}, s{S_A}, 28'); a(f's_add_u32 s{S_T}, s{S_T}, s{S_W}')
        a(f's_lshl_b32 s{S_K0}, s{S_T}, 8'); a(f's_add_u32 s{S_K0}, s{S_K0}, {FL(half, "HEAD")}')
        a(f's_lshl_b32 s{S_T}, s{S_T}, 21')
        a(f's_lshl_b32 s{S_T2}, s{S_B}, 15'); a(f's_add_u32 s{S_XO}, s{S_T}, s{S_T2}'); a(f's_add_u32 s{S_XO}, s{S_XO}, {H.HB}')
        a(f's_lshl_b32 s{S_T}, s{S_B}, 18'); a(f's_lshl_b32 s{S_T2}, s{S_A}, 13'); a(f's_add_u32 s{S_T}, s{S_T}, s{S_T2}'); a(f's_add_u32 s{S_T}, s{S_T}, {H.PT}')
        add64(a, S_OUT, S_WS, f's{S_T}')
        a(f's_mov_b32 s{S_M}, {f2u(math.log2(math.e)/math.sqrt(128.0)):#x}')
        a(f's_mov_b32 s{S_N}, 0'); a(f's_mov_b32 s{S_K1}, 0')
        def bl(n, dst, va, so, off): a(f'buffer_load_dword{n} {vr(dst, 4 if n else 1)}, v{va}, s[{S_WSRD}:{S_WSRD+3}], s{so} offen offset:{off} sc1')
        def poll(which):
            l1 = a.newlabel('Lt_p'); l2 = a.newlabel('Lt_p'); l3 = a.newlabel('Lt_p')
            a(f's_mov_b32 s{S_SPIN}, 0'); a(f's_branch {l3}')
            a.label(l1)
            if which == S_N:
                a(f'v_mov_b32 v{VZ}, s{S_K0}')
                _ = [a(f'global_load_dword v{FG+i}, v{VZ}, s[{S_WS}:{S_WS+1}] offset:{32*i} sc1') for i in range(8)]; a('s_waitcnt vmcnt(0)')
                a(f'v_min3_u32 v{FG}, v{FG}, v{FG+1}, v{FG+2}'); a(f'v_min3_u32 v{FG}, v{FG}, v{FG+3}, v{FG+4}'); a(f'v_min3_u32 v{FG}, v{FG}, v{FG+5}, v{FG+6}'); a(f'v_min_u32 v{FG}, v{FG}, v{FG+7}')
            else:
                a(f's_add_u32 s{S_X}, s{S_K0}, {FL(half, "CHP") - FL(half, "HEAD")}'); a(f'v_mov_b32 v{VZ}, s{S_X}')
                a(f'global_load_dword v{FG}, v{VZ}, s[{S_WS}:{S_WS+1}] sc1'); a('s_waitcnt vmcnt(0)')
            a(f'v_readfirstlane_b32 s{which}, v{FG}')
            a(f's_cmp_gt_u32 s{which}, s{S_B}'); a(f's_cbranch_scc1 {l2}')
            a(f's_sleep {self.tbsleep}')
            a(f's_add_u32 s{S_SPIN}, s{S_SPIN}, 1'); a(f's_cmp_ge_u32 s{S_SPIN}, {SPIN_MAX}'); a(f's_cbranch_scc1 {self.end}')
            a.label(l3)
            a(f's_cmp_gt_u32 s{which}, s{S_B}'); a(f's_cbranch_scc0 {l1}')
            a.label(l2)
        lp = a.newlabel('Lt_loop')
        a.label(lp)
        poll(S_N)
        a(f's_add_u32 s{S_T}, s{S_XO}, 4096'); a(f's_add_u32 s{S_T2}, s{S_XO}, {HB_Q}'); a(f's_add_u32 s{S_T3}, s{S_XO}, {HB_Q+4096}')
        for kb in range(8):
            bl('x4', K+4*kb, L16, S_XO if kb < 4 else S_T, (kb%4)*1024)
            bl('x4', Q+4*kb, L16, S_T2 if kb < 4 else S_T3, (kb%4)*1024)
        for f in range(8): bl('x4', V+4*f, av, S_XO if f < 4 else S_T, (f%4)*1024)
        poll(S_K1)
        if half == 0: self.mark(4, S_B, 63)
        for kb in range(8): bl('x4', KM+4*kb, akm, S_XO, kb*256)
        for t in range(4):
            for e in range(2): bl('', VM+2*t+e, avm, S_XO, t*512 + e*128)
        for kb in range(8):
            a(f's_waitcnt vmcnt({24 + 14 - 2*kb})')
            a(mf(SX, vr(K+4*kb,4), vr(Q+4*kb,4), vr(SX,16) if kb else vr(CM,16)))
        a('s_waitcnt vmcnt(8)')
        if half == 0: self.mark(5, S_B, 63)
        for kb in range(8): a(mf(SM, vr(KM+4*kb,4), vr(Q+4*kb,4), vr(SM,16) if kb else 0))
        E = [SX+i for i in range(16)] + [SM+i for i in range(4)]
        a(f'v_max3_f32 v{mx}, v{E[0]}, v{E[1]}, v{E[2]}')
        for i in range(3, 19, 2): a(f'v_max3_f32 v{mx}, v{mx}, v{E[i]}, v{E[i+1]}')
        a(f'v_max_f32 v{mx}, v{mx}, v{E[19]}')
        a(f'v_mov_b32 v{t0}, v{mx}'); a(f'v_permlane32_swap_b32 v{mx}, v{t0}'); a(f'v_max_f32 v{mx}, v{mx}, v{t0}')
        a(f'v_mul_f32 v{mx}, s{S_M}, v{mx}')
        for e in E: a(f'v_fma_f32 v{e}, v{e}, s{S_M}, -v{mx}')
        for e in E: a(f'v_exp_f32 v{e}, v{e}')
        a(f'v_add_f32 v{t1}, v{E[0]}, v{E[1]}')
        for e in E[2:]: a(f'v_add_f32 v{t1}, v{t1}, v{e}')
        a(f'v_mov_b32 v{t0}, v{t1}'); a(f'v_permlane32_swap_b32 v{t1}, v{t0}'); a(f'v_add_f32 v{t1}, v{t1}, v{t0}')
        a(f'v_rcp_f32 v{t1}, v{t1}')
        for e in E: a(f'v_mul_f32 v{e}, v{e}, v{t1}')
        for i in range(8): a(f'v_cvt_pk_bf16_f32 v{P+i}, v{SX+2*i}, v{SX+2*i+1}')
        for i in range(2): a(f'v_cvt_pk_bf16_f32 v{PM+i}, v{SM+2*i}, v{SM+2*i+1}')
        a('s_waitcnt vmcnt(0)')
        for t in range(4):
            o = OT+16*t
            a(f'v_mfma_f32_32x32x8_bf16 {vr(o,16)}, {vr(VM+2*t,2)}, {vr(PM,2)}, 0')
            for j in range(2): a(mf(o, vr(V+8*t+4*j,4), vr(P+4*j,4), vr(o,16)))
        for t in range(4):
            for j in range(2):
                o = OT+16*t+8*j
                for i in range(4): a(f'v_cvt_pk_bf16_f32 v{o+i}, v{o+2*i}, v{o+2*i+1}')
                a(f'ds_write_b128 v{xw}, {vr(o,4)} offset:{(2*t+j)*1024}')
        a('s_waitcnt lgkmcnt(0)'); a('s_barrier')
        gemm_core(a, L16, XR, [(ACC, 'a', 128, False)])
        pack_store(a, ACC, vo, S_OUT, 'sc1')
        if half == 0: self.mark(6, S_B, 63)
        self.set_word(FL(half, 'PT'), S_B, S_A); self.signal_wg()
        if half == 0: self.mark(7, S_B, 63)
        add64(a, S_OUT, S_OUT, ngr*8*32768); a(f's_add_u32 s{S_XO}, s{S_XO}, {ngr*32768}')
        a(f's_add_u32 s{S_B}, s{S_B}, {ngr}'); a(f's_cmp_lt_u32 s{S_B}, 64'); a(f's_cbranch_scc1 {lp}')

    def build(self):
        a = self.a; end = self.end
        a(f's_cmp_ge_u32 s2, 256'); a(f's_cbranch_scc1 {end}')
        common_prologue(a, L, L16)
        add64(a, S_DBG, S_WS, FL(0, 'EL'))
        lw = a.newlabel('Le'); lo = a.newlabel('Le'); ls = a.newlabel('Le'); lg = a.newlabel('Le')
        a(f's_cmp_lg_u32 s{S_W}, 0'); a(f's_cbranch_scc1 {lw}')
        a(f's_getreg_b32 s{S_X}, hwreg(HW_REG_XCC_ID, 0, 3)')
        a('s_mov_b64 exec, 1')
        a(f's_lshl_b32 s{S_T}, s{S_X}, 7'); a(f'v_mov_b32 v3, s{S_T}'); a('v_mov_b32 v4, 1'); a('v_mov_b32 v6, 1024')
        a(f'global_atomic_add v5, v3, v4, s[{S_DBG}:{S_DBG+1}] sc0 sc1'); a('s_waitcnt vmcnt(0)')
        a(f'global_atomic_add v6, v4, s[{S_DBG}:{S_DBG+1}] sc1')
        a(f'v_readfirstlane_b32 s{S_TK}, v5')
        a(f's_lshl_b32 s{S_SLOT}, s{S_X}, 5'); a(f's_add_u32 s{S_SLOT}, s{S_SLOT}, s{S_TK}')
        a(f's_cmp_lt_u32 s{S_TK}, 32'); a(f's_cbranch_scc1 {lg}')
        a('v_mov_b32 v3, 1152'); a(f'global_atomic_add v5, v3, v4, s[{S_DBG}:{S_DBG+1}] sc0 sc1'); a('s_waitcnt vmcnt(0)')
        a(f'v_readfirstlane_b32 s{S_TK}, v5'); a(f's_mov_b32 s{S_SPIN}, 0'); a('v_mov_b32 v3, 0')
        a.label(lo)
        a(f'global_load_dword v5, v6, s[{S_DBG}:{S_DBG+1}] sc1'); a('s_waitcnt vmcnt(0)'); a(f'v_readfirstlane_b32 s{S_T}, v5')
        a(f's_cmp_ge_u32 s{S_T}, 256'); a(f's_cbranch_scc1 {ls}')
        a('s_sleep 4'); a(f's_add_u32 s{S_SPIN}, s{S_SPIN}, 1'); a(f's_cmp_lt_u32 s{S_SPIN}, {SPIN_MAX}'); a(f's_cbranch_scc1 {lo}')
        a.label(ls)
        _ = [a(f'global_load_dword v{12+x}, v3, s[{S_DBG}:{S_DBG+1}] offset:{128*x} sc1') for x in range(8)]; a('s_waitcnt vmcnt(0)')
        for x in range(8):
            a(f'v_readfirstlane_b32 s{S_T}, v{12+x}'); a(f's_min_u32 s{S_T}, s{S_T}, 32')
            a(f's_add_u32 s{S_SLOT}, s{S_T}, s{S_TK}'); a(f's_add_u32 s{S_SLOT}, s{S_SLOT}, {32*x}')
            a(f's_sub_u32 s{S_T}, 32, s{S_T}'); a(f's_cmp_lt_u32 s{S_TK}, s{S_T}'); a(f's_cbranch_scc1 {lg}')
            a(f's_sub_u32 s{S_TK}, s{S_TK}, s{S_T}')
        a(f's_mov_b32 s{S_SLOT}, 256')
        a.label(lg)
        a(f'v_mov_b32 v3, 0'); a(f'v_mov_b32 v4, s{S_SLOT}'); a('ds_write_b32 v3, v4'); a('s_waitcnt lgkmcnt(0)')
        a('s_mov_b64 exec, -1')
        a.label(lw)
        a('s_barrier'); a('v_mov_b32 v3, 0'); a('ds_read_b32 v4, v3'); a('s_waitcnt lgkmcnt(0)'); a(f'v_readfirstlane_b32 s{S_SLOT}, v4'); a('s_barrier')
        a(f's_lshr_b32 s{S_T}, s{S_SLOT}, 5'); a(f's_lshl_b32 s{S_T2}, s{S_T}, 2'); a(f's_lshr_b32 s{S_T2}, {self.perm:#x}, s{S_T2}'); a(f's_and_b32 s{S_T2}, s{S_T2}, 7')
        a(f's_cmp_lt_u32 s{S_T}, 8'); a(f's_cselect_b32 s{S_T2}, s{S_T2}, 8'); a(f's_and_b32 s{S_SLOT}, s{S_SLOT}, 31'); a(f's_lshl_b32 s{S_T2}, s{S_T2}, 5'); a(f's_add_u32 s{S_SLOT}, s{S_SLOT}, s{S_T2}')
        if self.stamps: a(f's_mov_b32 s99, s{S_SLOT}')
        self.sv = 10
        if self.stamps: _ = [a(f's_mov_b32 s{70+k}, 0') for k in range(16)]
        self.stamp(0)
        Lch, Lpb, Lgw, Lms, Lpa = [a.newlabel(n) for n in ('Lchain', 'Lpb', 'Lgw', 'Lms', 'Lpa')]
        a(f's_cmp_lt_u32 s{S_SLOT}, 32'); a(f's_cbranch_scc0 Lnot_chain')
        self.jump(Lch)
        a.label('Lnot_chain')
        a(f's_cmp_lt_u32 s{S_SLOT}, 96'); a(f's_cbranch_scc1 {Lpb}')
        a(f's_cmp_lt_u32 s{S_SLOT}, 224'); a(f's_cbranch_scc1 {Lgw}')
        a(f's_cmp_lt_u32 s{S_SLOT}, 240'); a(f's_cbranch_scc1 {Lms}')
        a(f's_cmp_lt_u32 s{S_SLOT}, 256'); a(f's_cbranch_scc1 {Lpa}')
        a.label(end); a('s_endpgm')
        a.label(Lms)
        a(f's_and_b32 s{S_A}, s{S_SLOT}, 3'); a(f's_lshl_b32 s{S_OFF}, s{S_A}, 8')
        load_wslices(a, [(KA_WOA, 512*1024, 0, 'v', 128)], 1024, L, 3, 4, 5)
        for half in range(2):
            a(f's_and_b32 s{S_A}, s{S_SLOT}, 3'); a(f's_bfe_u32 s{S_B}, s{S_SLOT}, 0x20002'); self.woa_run(half, 4); self.stamp(3 + 8*half)
            a(f's_bfe_u32 s{S_A}, s{S_SLOT}, 0x20002'); a(f's_and_b32 s{S_B}, s{S_SLOT}, 3')
            self.rb_run(half, 2, 4); self.stamp(4 + 8*half)
        self.dump_marks(); a('s_endpgm')
        a.label(Lpa)
        a(f's_and_b32 s{S_A}, s{S_SLOT}, 3'); self.proj_weights(False)
        for half in range(2):
            a(f's_bfe_u32 s{S_A}, s{S_SLOT}, 0x20002'); a(f's_and_b32 s{S_B}, s{S_SLOT}, 3'); self.rb_run(half, 1, 4); self.stamp(3 + 8*half)
            if half == 0:
                a(f's_and_b32 s{S_A}, s{S_SLOT}, 3'); a(f's_bfe_u32 s{S_B}, s{S_SLOT}, 0x20002'); self.proj_run(1, False, 4); self.stamp(4)
        self.dump_marks(); a('s_endpgm')
        a.label(Lpb)
        def pb_ids():
            a(f's_sub_u32 s{S_T}, s{S_SLOT}, 32'); a(f's_lshr_b32 s{S_A}, s{S_T}, 5'); a(f's_lshl_b32 s{S_A}, s{S_A}, 4'); a(f's_and_b32 s{S_T2}, s{S_T}, 15')
            a(f's_add_u32 s{S_A}, s{S_A}, s{S_T2}'); a(f's_bfe_u32 s{S_B}, s{S_T}, 0x10004')
        pb_ids(); self.proj_weights(True); self.stamp(1)
        for half in range(2):
            pb_ids(); self.proj_run(half, True, 2); self.stamp(3 + 8*half)
        self.dump_marks(); a('s_endpgm')
        a.label(Lgw)
        self.end = 'Lm_end2'
        a(f's_sub_u32 s{S_T}, s{S_SLOT}, 96'); a(f's_lshr_b32 s{S_A}, s{S_T}, 5'); a(f's_and_b32 s{S_B}, s{S_T}, 31')
        self.proj_weights(False, (S_B, 32)); self.proj_run(0, False, 32, nowait=True); self.stamp(1)
        def gw_ids():
            a(f's_sub_u32 s{S_T}, s{S_SLOT}, 96'); a(f's_lshr_b32 s{S_A}, s{S_T}, 5'); a(f's_lshl_b32 s{S_A}, s{S_A}, 3'); a(f's_and_b32 s{S_T2}, s{S_T}, 7')
            a(f's_add_u32 s{S_A}, s{S_A}, s{S_T2}'); a(f's_bfe_u32 s{S_B}, s{S_T}, 0x20003')
        for half in range(2):
            gw_ids(); self.att_run(half, 4); self.stamp(3 + 8*half)
            gw_ids()
            if half == 0: self.tb_weights()
            self.tb_run(half, 4); self.stamp(4 + 8*half)
        self.dump_marks()
        a.label('Lm_end2'); a('s_endpgm')
        a.label(Lch)
        self.end = 'Lm_end3'; end = self.end
        r = C.ChainRegs(); self.sv = r.R
        a(f's_mov_b32 s{C.S_H}, s{S_SLOT}')
        C.chain_setup(a, r)
        self.stamp(1)
        T = r.R; l1 = a.newlabel('Lcd'); lslow = a.newlabel('Lcslow'); lfast = a.newlabel('Lcfast')
        a(f's_mov_b32 s{C.S_SPIN}, 0'); a(f'v_mov_b32 v{T}, 0')
        a.label(l1)
        a(f'global_load_dword v{T+2}, v{T}, s[{S_DBG}:{S_DBG+1}] offset:1024 sc1'); a('s_waitcnt vmcnt(0)')
        a(f'global_load_dword v{T+1}, v{T}, s[{S_DBG}:{S_DBG+1}] sc1'); a('s_waitcnt vmcnt(0)')
        a(f'v_readfirstlane_b32 s{C.S_T}, v{T+1}'); a(f'v_readfirstlane_b32 s{C.S_T2}, v{T+2}')
        if self.chain_kw.get('force_slow'): a(f's_mov_b32 s{C.S_T}, 0')
        a(f's_cmp_ge_u32 s{C.S_T}, 32'); a(f's_cbranch_scc1 {lfast}')
        a(f's_cmp_ge_u32 s{C.S_T2}, 256'); a(f's_cbranch_scc1 {lslow}')
        a('s_sleep 4'); a(f's_add_u32 s{C.S_SPIN}, s{C.S_SPIN}, 1'); a(f's_cmp_lt_u32 s{C.S_SPIN}, {SPIN_MAX}'); a(f's_cbranch_scc1 {l1}')
        a.label(end); a('s_endpgm')
        kw = {k: v for k, v in self.chain_kw.items() if k != 'force_slow'}
        for lbl, stf in ((lfast, ''), (lslow, 'sc1')):
            a.label(lbl)
            a(f's_mov_b32 s{C.S_EP}, 0'); a(f's_mov_b32 s{C.S_EM}, 0'); a(f's_mov_b32 s{C.S_HALF}, 0')
            C.chain_init_comm(a, r, stf, True)
            a(f's_mov_b32 s{C.S_T2}, 1280'); C.group_barrier(a, r, C.S_T2, 32, end)
            lh = a.newlabel('Lch_half'); a.label(lh)
            self.stamp(2, C.S_HALF)
            C.chain_start(a, r, end, 1, started=lambda: self.stamp(3, C.S_HALF))
            C.chain_all_waves(a, r, stf, end, fused=1, **(dict(kw, ef='sc1') if stf else kw))
            self.stamp(4, C.S_HALF)
            if kw.get('stamps'):
                for k in range(12): a(f'v_mov_b32 v{k}, s{84+k}')
                a(f's_lshl_b32 s{C.S_T}, s{C.S_H}, 2'); a(f's_add_u32 s{C.S_T}, s{C.S_T}, s{C.S_W}'); a(f's_lshl_b32 s{C.S_T}, s{C.S_T}, 6')
                a(f's_lshl_b32 s{C.S_T2}, s{C.S_HALF}, 13'); a(f's_add_u32 s{C.S_T}, s{C.S_T}, s{C.S_T2}')
                a(f's_add_u32 s{C.S_T}, s{C.S_T}, {STAMP_OFF + 32768}'); a(f'v_mov_b32 v16, s{C.S_T}')
                for k in range(3): a(f'global_store_dwordx4 v16, {vr(4*k,4)}, s[{S_WS}:{S_WS+1}] offset:{16*k}')
                a('s_waitcnt vmcnt(0)')
            a(f's_cmp_lg_u32 s{C.S_HALF}, 0'); a(f's_cbranch_scc1 {end}')
            a(f's_mov_b32 s{C.S_HALF}, 1'); a(f's_mov_b32 s{C.S_T2}, 1408'); C.group_barrier(a, r, C.S_T2, 32, end)
            a(f's_xor_b32 s{C.S_EM}, s{C.S_EM}, 1'); C.chain_init_comm(a, r, stf, False)
            a(f's_branch {lh}')
        return a.lines
    def jump(self, label):
        a = self.a; l = a.newlabel('Lj')
        a('s_getpc_b64 s[48:49]'); a.label(l)
        a(f's_add_u32 s48, s48, {label}-{l}'); a('s_addc_u32 s49, s49, 0'); a('s_setpc_b64 s[48:49]')

def init_kernel():
    a = Asm(); a._lbl = 9000
    a('s_cmp_ge_u32 s2, 256'); a('s_cbranch_scc1 Li_end')
    common_prologue(a, 1, 2)
    a('v_lshlrev_b32 v3, 2, v0'); a(f's_lshl_b32 s{S_T}, s2, 10'); a(f's_add_u32 s{S_T}, s{S_T}, {W.FLAGS}'); a(f'v_add_u32 v3, s{S_T}, v3'); a('v_mov_b32 v4, 0')
    a(f'global_store_dword v3, v4, s[{S_WS}:{S_WS+1}]')
    a(f's_lshr_b32 s{S_A}, s2, 2'); a(f's_and_b32 s{S_B}, s2, 3')
    rb_body(a, 0, KA_X, True, 0, 0, 0, W.X0, False, W.H[0].XNA)
    a.label('Li_end'); a('s_endpgm')
    return a.lines

NAME = 'interleave_layers__softmax_full_mha__memory_aug_recurrent_mem_tr__prompt'
def build(stamps=False, chain_kw={}, verbose=False):
    ks = []
    for n, lines, vg, acc in (('init_kernel', init_kernel(), 104, 104), (NAME + '_kernel', Mega(stamps, chain_kw).build(), 512, 256)):
        rep = []
        l = fix_hazards(lines, rep)
        for e in check_waits(l, n[:8]): print(e)
        if verbose: print(n, len(l), len(rep))
        ks.append((n, l, vg, acc))
    hdr = ''.join(l for l in open(f'cdna_kernels/{NAME}.s.ref').readlines()[:14] if '@launch' not in l)
    return assemble_file(hdr, [('init_kernel', 256, 256, 512), (NAME + '_kernel', 256, 256, 163840)], ks)

if __name__ == '__main__':
    import sys
    kw = eval(sys.argv[2]) if len(sys.argv) > 2 else dict()
    st = len(sys.argv) > 3
    t = build(st, kw, True)
    open(sys.argv[1] if len(sys.argv) > 1 else f'cdna_kernels/{NAME}.s', 'w').write(t)
    print(len(t))
```

```python
from asmlib import *
from layout import *
import math
import chain2 as C
from work import *

S_DBG = 44; S_SLOT = 36; S_TK = 37; S_SPIN = 38; S_PF = 39; S_FO = 40; S_N = 41; S_X = 42; S_SO = 43; S_SV = 46; S_PD = 47
L, L16 = 1, 2
VZ = 10; VF = 11
SPIN_MAX = 0x60000

class Mega:
    def __init__(self, stamps=False, chain_kw={}):
        self.a = Asm(); self.stamps = stamps; self.chain_kw = chain_kw
        self.end = 'Lm_end'
        self.tbsleep = chain_kw.pop('tbsleep', 8); self.wsleep = chain_kw.pop('wsleep', 2); self.perm = chain_kw.pop('perm', 0x65423170)
    def stamp(self, k, hs=None):
        if not self.stamps: return
        a = self.a; l = a.newlabel('Lst')
        if self.stamps == 2:
            kk = self.dmap.get((self.role, k))
            if kk is None: return
            a(f's_cmp_lg_u32 s{S_W}, 0'); a(f's_cbranch_scc1 {l}')
            a('s_memrealtime s[96:97]'); a(f's_load_dwordx2 s[100:101], s[0:1], {KA_DBG}'); a('s_waitcnt lgkmcnt(0)'); a('s_sub_u32 s96, s96, s99')
            a(f's_mov_b32 s98, {4*kk}')
            if hs is not None: a(f's_mul_i32 s97, s{hs}, 12'); a('s_add_u32 s98, s98, s97')
            a('s_mov_b64 exec, 1'); a(f'v_mov_b32 v{self.sv}, s96'); a(f'v_mov_b32 v{self.sv+1}, s98')
            a(f'global_atomic_umax v{self.sv+1}, v{self.sv}, s[100:101] sc1'); a('s_waitcnt vmcnt(0)'); a('s_mov_b64 exec, -1')
            a.label(l); return
        a(f's_cmp_lg_u32 s{S_W}, 0'); a(f's_cbranch_scc1 {l}')
        a('s_memrealtime s[96:97]'); a(f's_lshl_b32 s98, s99, 7'); a(f's_add_u32 s98, s98, {STAMP_OFF + 4*k}'); a('s_waitcnt lgkmcnt(0)')
        if hs is not None: a(f's_lshl_b32 s97, s{hs}, 5'); a('s_add_u32 s98, s98, s97')
        a('s_mov_b64 exec, 1'); a(f'v_writelane_b32 v{self.sv}, s96, 0'); a(f'v_writelane_b32 v{self.sv+1}, s98, 0')
        a(f'v_mov_b32 v{self.sv+1}, s98')
        a(f'global_store_dword v{self.sv+1}, v{self.sv}, s[{S_WS}:{S_WS+1}]'); a('s_waitcnt vmcnt(0)'); a('s_mov_b64 exec, -1')
        a.label(l)
    def mark(self, k, sgpr, val):
        if self.stamps is not True: return
        a = self.a; l = a.newlabel('Lmk')
        a(f's_cmp_lg_u32 s{sgpr}, {val}'); a(f's_cbranch_scc1 {l}')
        a('s_memrealtime s[96:97]'); a('s_waitcnt lgkmcnt(0)'); a(f's_mov_b32 s{70+k}, s96')
        a.label(l)
    def dump_marks(self):
        if self.stamps is not True: return
        a = self.a
        for k in range(16): a(f'v_mov_b32 v{16+k}, s{70+k}')
        a(f's_lshl_b32 s98, s99, 7'); a(f's_add_u32 s98, s98, {STAMP_OFF + 64}'); a('v_mov_b32 v12, s98')
        l = a.newlabel('Lmk'); a(f's_cmp_lg_u32 s{S_W}, 0'); a(f's_cbranch_scc1 {l}')
        for k in range(4): a(f'global_store_dwordx4 v12, {vr(16+4*k,4)}, s[{S_WS}:{S_WS+1}] offset:{16*k}')
        a.label(l)
    def flag_off(self, base, idx_sgpr, sh=2):
        self.a(f's_lshl_b32 s{S_FO}, s{idx_sgpr}, {sh}'); self.a(f's_add_u32 s{S_FO}, s{S_FO}, {base}')
    def flag_issue(self, n):
        a = self.a
        a(f'v_min_u32 v{VZ}, {n-1}, v{L}'); a(f'v_lshl_add_u32 v{VZ}, v{VZ}, 8, s{S_FO}'); a(f'global_load_dword v{VF}, v{VZ}, s[{S_WS}:{S_WS+1}] sc1')
    def wait(self, n, sleep=None, mask=None, sh=8):
        a = self.a; l1 = a.newlabel('Lw'); l2 = a.newlabel('Lw')
        a(f's_mov_b32 s{S_SPIN}, 0')
        a(f'v_min_u32 v{VZ}, {n-1}, v{L}'); a(f'v_lshl_add_u32 v{VZ}, v{VZ}, {sh}, s{S_FO}')
        a.label(l1)
        a(f'global_load_dword v{VF}, v{VZ}, s[{S_WS}:{S_WS+1}] sc1'); a('s_waitcnt vmcnt(0)')
        a(f'v_cmp_eq_u32 vcc, 0, v{VF}')
        if mask is None: a(f's_cbranch_vccz {l2}')
        else: a(f's_and_b64 vcc, vcc, s[{mask}:{mask+1}]'); a(f's_cbranch_scc0 {l2}')
        a(f's_sleep {sleep or self.wsleep}')
        a(f's_add_u32 s{S_SPIN}, s{S_SPIN}, 1'); a(f's_cmp_lt_u32 s{S_SPIN}, {SPIN_MAX}'); a(f's_cbranch_scc1 {l1}')
        a(f's_branch {self.end}')
        a.label(l2)
    def set_word(self, base, line_sgpr, word_sgpr, s1=2, s2=8):
        a = self.a
        a(f's_lshl_b32 s{S_SO}, s{line_sgpr}, {s1}'); a(f's_lshl_b32 s{S_X}, s{word_sgpr}, {s2}'); a(f's_add_u32 s{S_SO}, s{S_SO}, s{S_X}'); a(f's_add_u32 s{S_SO}, s{S_SO}, {base}')
    def wsignal(self, val=None):
        a = self.a
        a(f'v_mov_b32 v{VZ}, s{S_SO}'); a(f'v_mov_b32 v{VF}, {"s%d" % val if val else "1"}')
        a('s_mov_b64 exec, 1'); a(f'global_store_dword v{VZ}, v{VF}, s[{S_WS}:{S_WS+1}] sc1'); a('s_mov_b64 exec, -1')
    def signal_wg(self):
        a = self.a; l = a.newlabel('Ls')
        a('s_waitcnt vmcnt(0)'); a('s_barrier'); a(f's_cmp_lg_u32 s{S_W}, 0'); a(f's_cbranch_scc1 {l}')
        self.wsignal(); a.label(l)

    def stream(self, ngr, xsrc, inflag, nin, tiles, epilogue, nst, outflag, store, mk=None):
        a = self.a; xa = 9; XR = 12
        lp = a.newlabel('Lg_loop'); have = a.newlabel('Lg_have'); go = a.newlabel('Lg_go'); fetch = a.newlabel('Lg_fetch'); done = a.newlabel('Lg_done')
        a(f's_lshl_b32 s{S_XO}, s{S_B}, 15'); a(f's_add_u32 s{S_XO}, s{S_XO}, {xsrc}'); a(f's_mov_b32 s{S_BUF}, {128*1024}')
        a('s_barrier')
        a.label(fetch)
        a(f's_mov_b32 s{S_PD}, 0')
        if inflag is not None:
            self.flag_off(inflag, S_B); self.wait(nin)
        if mk: self.mark(mk[0], S_B, mk[1])
        dma_x(a, L16, S_XO, S_BUF, 'sc1')
        a('s_waitcnt vmcnt(0)')
        a.label(go)
        a('s_barrier')
        if mk: self.mark(mk[0]+1, S_B, mk[1])
        a(f'v_add_u32 v{xa}, s{S_BUF}, v{L16}')
        a(f's_add_u32 s{S_TK}, s{S_B}, {ngr}'); a(f's_xor_b32 s{S_BUF}, s{S_BUF}, {128*1024}'); a(f's_add_u32 s{S_XO}, s{S_XO}, {ngr*32768}')
        if inflag is not None:
            a(f's_min_u32 s{S_T}, s{S_TK}, 63'); self.flag_off(inflag, S_T); self.flag_issue(nin)
        def pref():
            sk = a.newlabel('Lg_sk'); np_ = a.newlabel('Lg_np')
            a('s_waitcnt vmcnt(0)')
            if inflag is not None: a(f'v_cmp_eq_u32 vcc, 0, v{VF}')
            a(f's_cmp_eq_u32 s{S_PD}, 0'); a(f's_cbranch_scc1 {np_}')
            self.wsignal(S_SV if store else None)
            a.label(np_)
            a(f's_mov_b32 s{S_PF}, 0')
            a(f's_cmp_ge_u32 s{S_TK}, 64'); a(f's_cbranch_scc1 {sk}')
            if inflag is not None:
                a(f's_cbranch_vccnz {sk}')
            dma_x(a, L16, S_XO, S_BUF, 'sc1'); a(f's_mov_b32 s{S_PF}, 1')
            a.label(sk)
        gemm_core(a, xa, XR, tiles, {(14 if len(tiles) > 1 else 30): pref})
        epilogue()
        if mk: self.mark(mk[0]+2, S_B, mk[1])
        outflag()
        add64(a, S_OUT, S_OUT, ngr*32768)
        a(f's_mov_b32 s{S_B}, s{S_TK}')
        a(f's_cmp_eq_u32 s{S_PF}, 0'); a(f's_cbranch_scc1 {have}')
        first = a.newlabel('Lg_first')
        a(f's_cmp_lt_u32 s{S_B}, {2*ngr}'); a(f's_cbranch_scc1 {first}')
        a(f's_mov_b32 s{S_PD}, 1'); a(f's_waitcnt vmcnt({nst})'); a(f's_branch {go}')
        a.label(first)
        a('s_waitcnt vmcnt(0)'); self.wsignal(S_SV if store else None)
        if mk: self.mark(mk[0]+3, S_B, mk[1]+ngr)
        a(f's_mov_b32 s{S_PD}, 0'); a(f's_branch {go}')
        a.label(have)
        a('s_waitcnt vmcnt(0)'); self.wsignal(S_SV if store else None)
        if mk: self.mark(mk[0]+3, S_B, mk[1]+ngr)
        a(f's_cmp_lt_u32 s{S_B}, 64'); a(f's_cbranch_scc1 {fetch}')
        a('s_barrier')

    def proj_weights(self, isB, share=None):
        a = self.a
        a(f's_lshl_b32 s{S_OFF}, s{S_A}, 8')
        if isB: mats = [(KA_WK, 4*MB, 0, 'a', 128), (KA_WV, 4*MB, 0, 'v', 128), (KA_WQ, 4*MB, 0, 'a', 0)]; stride = 8192
        else: mats = [(KA_WQKV, 1536*1024, 1024, 'a', 128), (KA_WQKV, 1536*1024, 2048, 'v', 128), (KA_WQKV, 1536*1024, 0, 'a', 0)]; stride = 3072
        load_wslices(a, mats, stride, L, 3, 4, 5, share)
    def proj_run(self, half, isB, ngr, nowait=False):
        a = self.a; H = W.H[half]
        t0, t1, vq, vk, vv = 3, 4, 6, 7, 8; ACC = 28
        ro = (HB_Q, HB_K, HB_V) if isB else (0, H.KA - H.QA, H.VA - H.QA)
        a(f's_lshl_b32 s{S_T}, s{S_W}, 11')
        a(f's_add_u32 s{S_T2}, s{S_T}, {ro[0]}'); a(f'v_add_u32 v{vq}, s{S_T2}, v{L16}')
        a(f's_add_u32 s{S_T2}, s{S_T}, {ro[1]}'); a(f'v_add_u32 v{vk}, s{S_T2}, v{L16}')
        pi_of(a, t0, L, t1); vpos16(a, vv, t0, L, t1)
        a(f's_add_u32 s{S_T2}, s{S_T}, {ro[2]}'); a(f'v_add_u32 v{vv}, s{S_T2}, v{vv}')
        a(f's_lshl_b32 s{S_T}, s{S_A}, {21 if isB else 13}'); a(f's_lshl_b32 s{S_T2}, s{S_B}, 15'); a(f's_add_u32 s{S_T}, s{S_T}, s{S_T2}')
        a(f's_add_u32 s{S_T}, s{S_T}, {H.HB if isB else H.QA}'); add64(a, S_OUT, S_WS, f's{S_T}')
        a(f's_mov_b32 s{S_M}, {f2u(0.25*math.log2(math.e)):#x}')
        def epi():
            pack_store(a, ACC+16, vk, S_OUT, 'sc1'); pack_store(a, ACC+32, vv, S_OUT, 'sc1'); pack_store(a, ACC, vq, S_OUT, 'sc1', scale=None if isB else S_M)
        def outf():
            if isB:
                a(f's_and_b32 s{S_T}, s{S_B}, 1'); a(f's_lshl_b32 s{S_T}, s{S_T}, 2'); a(f's_add_u32 s{S_T}, s{S_T}, s{S_W}')
                self.set_word(FL(half, "HEAD"), S_A, S_T, 8, 5); a(f's_mov_b32 s{S_SV}, s{S_TK}')
            else:
                a(f's_lshl_b32 s{S_T}, s{S_A}, 2'); a(f's_add_u32 s{S_T}, s{S_T}, s{S_W}'); self.set_word(FL(half, "QKVA"), S_T, S_B, 11, 5)
        self.stream(ngr, H.XNB if isB else H.XNA, None if nowait else FL(half, 'XNB' if isB else 'XNA'), 4,
                    [(ACC+16, 'a', 128, False), (ACC+32, 'v', 128, True), (ACC, 'a', 0, False)], epi, 6, outf, isB, mk=(0, 0 if isB else 63) if half == 1 else None)
    def woa_run(self, half, ngr):
        a = self.a; H = W.H[half]; vo = 6; ACC = 28
        a(f's_lshl_b32 s{S_T}, s{S_W}, 11'); a(f'v_add_u32 v{vo}, s{S_T}, v{L16}')
        a(f's_lshl_b32 s{S_T}, s{S_A}, 13'); a(f's_lshl_b32 s{S_T2}, s{S_B}, 15'); a(f's_add_u32 s{S_T}, s{S_T}, s{S_T2}')
        a(f's_add_u32 s{S_T}, s{S_T}, {H.YA}'); add64(a, S_OUT, S_WS, f's{S_T}')
        def outf(): a(f's_lshl_b32 s{S_T}, s{S_A}, 2'); a(f's_add_u32 s{S_T}, s{S_T}, s{S_W}'); self.set_word(FL(half, "YA"), S_B, S_T)
        self.stream(ngr, H.OA, FL(half, 'OA'), 32, [(ACC, 'v', 128, False)], lambda: pack_store(a, ACC, vo, S_OUT, 'sc1'), 2, outf, False, mk=(0, 0) if half == 1 else None)
    def rb_run(self, half, kind, ngr):
        a = self.a; H = W.H[half]
        lp = a.newlabel('Lr_loop'); a.label(lp)
        mk = (4, 0) if (kind == 1 and half == 1) else ((4, 63) if (kind == 2 and half == 0) else None)
        def ready():
            self.flag_off(FL(half, 'YA' if kind == 1 else 'PT'), S_A); self.wait(16 if kind == 1 else 32)
            if mk: self.mark(mk[0], S_A, mk[1])
        xprev = W.X0 if half == 0 else W.H[0].X2
        if kind == 1: rb_body(a, 1, xprev, False, H.YA, 0, 32768, H.X1, False, H.XNB, 'sc1', 'sc1', ready)
        elif half == 0: rb_body(a, 8, H.X1, False, H.PT, 32768, 8*32768, H.X2, False, W.H[1].XNA, 'sc1', 'sc1', ready)
        else: rb_body(a, 8, H.X1, False, H.PT, 32768, 8*32768, KA_OUT, True, None, 'sc1', 'sc1', ready)
        if kind == 1 or half == 0:
            if mk: self.mark(mk[0]+2, S_A, mk[1])
            self.set_word(FL(half, 'XNB') if kind == 1 else FL(1, 'XNA'), S_A, S_B); self.signal_wg()
            if mk: self.mark(mk[0]+3, S_A, mk[1])
        a(f's_add_u32 s{S_A}, s{S_A}, {ngr}'); a(f's_cmp_lt_u32 s{S_A}, 64'); a(f's_cbranch_scc1 {lp}')

    def att_run(self, half, npg):
        a = self.a; H = W.H[half]
        t0, t1, t2, ak, av, idx, lw = range(3, 10); mx = 204
        Q = 12; QN = 16; K0 = 20; Cc = 24; O = 40; D = [56, 72, 88]; KF = 104; MG = 168
        pi_of(a, t0, L, t1)
        a(f'v_and_b32 v{t1}, 32, v{L}'); a(f'v_add_u32 v{ak}, v{t0}, v{t1}'); a(f'v_lshlrev_b32 v{ak}, 4, v{ak}')
        a(f'v_and_b32 v{t0}, 15, v{t0}'); a(f's_and_b32 s{S_T}, s{S_A}, 1'); a(f's_lshl_b32 s{S_T}, s{S_T}, 4'); a(f'v_add_u32 v{t0}, s{S_T}, v{t0}')
        vpos16(a, av, t0, L, t1)
        a(f'v_mov_b32 v{idx}, 0xdddd')
        a(f's_mul_i32 s{S_T}, s{S_W}, 3072'); a(f'v_add_u32 v{lw}, s{S_T}, v{L16}')
        if half == 0:
            a(f'v_mov_b32 v{t0}, 0x3f803f80')
            for i in range(128): a(f'v_accvgpr_write_b32 a{i}, v{t0}')
        a(f's_lshr_b32 s{S_T}, s{S_A}, 1'); self.flag_off(FL(half, 'QKVA'), S_T, 11); self.wait(56, sh=5)
        self.stamp(2 + 8*half)
        a(f's_lshl_b32 s{S_T}, s{S_A}, 10'); a(f's_lshl_b32 s{S_T2}, s{S_B}, 15'); a(f's_add_u32 s{S_T2}, s{S_T2}, s{S_T}')
        a(f's_add_u32 s{S_T3}, s{S_T2}, {H.QA}'); add64(a, S_IN, S_WS, f's{S_T3}')
        a(f's_add_u32 s{S_T3}, s{S_T2}, {H.OA}'); add64(a, S_OUT, S_WS, f's{S_T3}')
        a(f'global_load_dwordx4 {vr(QN,4)}, v{L16}, s[{S_IN}:{S_IN+1}] sc1')
        a(f's_add_u32 s{S_K0}, s{S_T}, {H.KA}')
        a(f'buffer_load_dwordx4 {vr(K0,4)}, v{ak}, s[{S_WSRD}:{S_WSRD+3}], s{S_K0} offen sc1')
        a(f's_lshl_b32 s{S_T2}, s{S_W}, 15'); a(f's_add_u32 s{S_K0}, s{S_K0}, s{S_T2}')
        a(f's_lshr_b32 s{S_K1}, s{S_A}, 1'); a(f's_lshl_b32 s{S_K1}, s{S_K1}, 11'); a(f's_add_u32 s{S_K1}, s{S_K1}, s{S_T2}'); a(f's_add_u32 s{S_K1}, s{S_K1}, {H.VA}')
        a(f's_mov_b32 s{S_M}, 0x0000ffff'); a(f's_mov_b32 s{S_M+1}, 0x0000ffff')
        def kv_tile(t):
            a(f's_add_u32 s{S_T}, s{S_K0}, {t*131072}')
            a(f'buffer_load_dwordx4 {vr(KF+4*t,4)}, v{ak}, s[{S_WSRD}:{S_WSRD+3}], s{S_T} offen sc1')
            a(f's_add_u32 s{S_T}, s{S_K1}, {t*131072}')
            a(f's_mov_b64 exec, s[{S_M}:{S_M+1}]')
            for b in range(2): a(f'buffer_load_dwordx4 {vr(8*t+4*b,4,"a")}, v{av}, s[{S_WSRD}:{S_WSRD+3}], s{S_T} offen offset:{1024*b} sc1')
            a('s_mov_b64 exec, -1')
        def late_tile(t):
            l = a.newlabel('La_lt'); a(f's_cmp_eq_u32 s{S_PD}, 0'); a(f's_cbranch_scc1 {l}')
            a(f's_add_u32 s{S_T}, s{S_W}, {4*t}'); a(f's_lshl_b64 s[{S_P}:{S_P+1}], 1, s{S_T}')
            self.wait(64, mask=S_P, sh=5)
            if half and t == 15: self.mark(0, S_B, 0)
            kv_tile(t); a('s_waitcnt vmcnt(0)')
            if t == 15: a(f's_mov_b32 s{S_PD}, 0')
            a.label(l)
        for t in range(14): kv_tile(t)
        a(f's_mov_b32 s{S_PD}, 1')
        a(f's_mov_b32 s{S_BUF}, 0'); a(f's_mov_b32 s{S_CNT}, 0'); a(f's_mov_b32 s{S_PF}, 0')
        a('s_barrier')
        lp = a.newlabel('La_loop'); run = a.newlabel('La_run'); slow = a.newlabel('La_slow'); nom = a.newlabel('La_nom'); noq = a.newlabel('La_noq'); out = a.newlabel('La_out')
        def rowmax(src, first):
            if first: a(f'v_max3_f32 v{mx}, v{src}, v{src+1}, v{src+2}'); rest = list(range(3, 16))
            else: rest = list(range(16))
            while len(rest) >= 2:
                a(f'v_max3_f32 v{mx}, v{mx}, v{src+rest[0]}, v{src+rest[1]}'); rest = rest[2:]
            if rest: a(f'v_max_f32 v{mx}, v{mx}, v{src+rest[0]}')
        def halfmax():
            a(f'v_mov_b32 v{t0}, v{mx}'); a(f'v_permlane32_swap_b32 v{mx}, v{t0}'); a(f'v_max_f32 v{mx}, v{mx}, v{t0}')
        def pending():
            l = a.newlabel('La_p'); a(f's_cmp_eq_u32 s{S_PF}, 0'); a(f's_cbranch_scc1 {l}')
            a('s_waitcnt vmcnt(0)'); self.wsignal(); a(f's_mov_b32 s{S_PF}, 0')
            if half: self.mark(3, S_B, 0)
            a.label(l)
        a('s_waitcnt vmcnt(0)')
        if half: self.mark(1, S_B, 0)
        a.label(lp)
        for i in range(4): a(f'v_mov_b32 v{Q+i}, v{QN+i}')
        a(f's_add_u32 s{S_TK}, s{S_B}, {npg}'); add64(a, S_IN, S_IN, npg*32768)
        a(f's_cmp_ge_u32 s{S_TK}, 64'); a(f's_cbranch_scc1 {noq}')
        a(f'global_load_dwordx4 {vr(QN,4)}, v{L16}, s[{S_IN}:{S_IN+1}] sc1')
        a.label(noq)
        a(mf(D[0], vr(K0,4), vr(Q,4), 0))
        rowmax(D[0], True); halfmax()
        a(f's_mov_b32 s{S_XO}, 0')
        a.label(run)
        for i in range(16): a(f'v_sub_f32 v{Cc+i}, 0, v{mx}')
        for i in range(16): a(f'v_mov_b32 v{O+i}, 0')
        a(mf(D[0], vr(KF,4), vr(Q,4), vr(Cc,16)))
        a(mf(D[1], vr(KF+4,4), vr(Q,4), vr(Cc,16)))
        def pv(t, b): a(f'v_smfmac_f32_32x32x32_bf16 {vr(O,16)}, {vr(8*t+4*b,4,"a")}, {vr(D[t%3]+8*b,8)}, v{idx}')
        for t in range(16):
            d = D[t % 3]
            for i in range(16):
                a(f'v_exp_f32 v{d+i}, v{d+i}')
                if i == 2 and t > 0: pv(t-1, 1)
                if i == 6 and t + 2 >= 14 and t + 2 < 16: late_tile(t+2)
                if i == 6 and t + 2 < 16: a(mf(D[(t+2)%3], vr(KF+4*(t+2),4), vr(Q,4), vr(Cc,16)))
                if i == 11: pv(t, 0)
            if t == 5: pending()
        pv(15, 1)
        a(f'v_add_u32 v{t1}, s{S_BUF}, v{lw}')
        for j in range(3): a(f'ds_write_b128 v{t1}, {vr(O+4*j,4)} offset:{1024*j}')
        a('s_waitcnt vmcnt(0) lgkmcnt(0)'); a('s_barrier')
        a(f'v_add_u32 v{t1}, s{S_BUF}, v{L16}')
        for w in range(4): a(f'ds_read_b32 v{MG+w}, v{t1} offset:{3072*w+2048}')
        a('s_waitcnt lgkmcnt(0)')
        a(f'v_add_f32 v{MG}, v{MG}, v{MG+1}'); a(f'v_add_f32 v{MG+2}, v{MG+2}, v{MG+3}'); a(f'v_add_f32 v{t2}, v{MG}, v{MG+2}')
        a(f's_xor_b32 s{S_BUF}, s{S_BUF}, 16384')
        a(f'v_cmp_nge_f32 vcc, {f2u(2.0**90):#x}, v{t2}')
        a(f's_cbranch_vccnz {slow}')
        fin = a.newlabel('La_fin'); a.label(fin)
        a(f's_and_b32 s{S_T}, s{S_CNT}, 3'); a(f's_add_u32 s{S_CNT}, s{S_CNT}, 1')
        a(f's_cmp_lg_u32 s{S_T}, s{S_W}'); a(f's_cbranch_scc1 {nom}')
        for w in range(4):
            for j in range(2): a(f'ds_read_b128 {vr(MG+8*w+4*j,4)}, v{t1} offset:{3072*w+1024*j}')
        a(f'v_rcp_f32 v{t2}, v{t2}')
        a('s_waitcnt lgkmcnt(0)')
        for i in range(8):
            a(f'v_add_f32 v{MG+i}, v{MG+i}, v{MG+8+i}'); a(f'v_add_f32 v{MG+16+i}, v{MG+16+i}, v{MG+24+i}')
            a(f'v_add_f32 v{MG+i}, v{MG+i}, v{MG+16+i}'); a(f'v_mul_f32 v{MG+i}, v{MG+i}, v{t2}')
        for i in range(4): a(f'v_cvt_pk_bf16_f32 v{MG+i}, v{MG+2*i}, v{MG+2*i+1}')
        a(f'global_store_dwordx4 v{L16}, {vr(MG,4)}, s[{S_OUT}:{S_OUT+1}] sc1')
        self.set_word(FL(half, 'OA'), S_B, S_A); a(f's_mov_b32 s{S_PF}, 1')
        if half: self.mark(2, S_B, 0)
        a(f's_cmp_ge_u32 s{S_B}, {npg}'); a(f's_cbranch_scc1 {nom}')
        pending()
        a.label(nom)
        add64(a, S_OUT, S_OUT, npg*32768)
        a(f's_mov_b32 s{S_B}, s{S_TK}')
        a(f's_cmp_lt_u32 s{S_B}, 64'); a(f's_cbranch_scc1 {lp}')
        pending()
        a(f's_branch {out}')
        a.label(slow)
        a(f's_cmp_lg_u32 s{S_XO}, 0'); a(f's_cbranch_scc1 {fin}')
        a(f's_mov_b32 s{S_XO}, 1')
        for t in range(16):
            a(mf(D[t%2], vr(KF+4*t,4), vr(Q,4), 0))
            rowmax(D[t%2], t == 0)
        halfmax()
        a(f'ds_write_b32 v{lw}, v{mx} offset:32768'); a('s_waitcnt lgkmcnt(0)'); a('s_barrier')
        for w in range(4): a(f'ds_read_b32 v{MG+w}, v{L16} offset:{32768+3072*w}')
        a('s_waitcnt lgkmcnt(0)')
        a(f'v_max3_f32 v{mx}, v{MG}, v{MG+1}, v{MG+2}'); a(f'v_max_f32 v{mx}, v{mx}, v{MG+3}')
        a(f's_branch {run}')
        a.label(out)
        a('s_barrier')

    def tb_weights(self):
        a = self.a
        a(f's_lshr_b32 s{S_T}, s{S_A}, 2'); a(f's_lshl_b32 s{S_T}, s{S_T}, 19'); a(f's_and_b32 s{S_T2}, s{S_A}, 3'); a(f's_lshl_b32 s{S_T2}, s{S_T2}, 8')
        a(f's_add_u32 s{S_OFF}, s{S_T}, s{S_T2}')
        load_wslices(a, [(KA_WO, 4*MB, 0, 'a', 128)], 1024, L, 3, 4, 5)
    def tb_run(self, half, ngr):
        a = self.a; H = W.H[half]
        t0, t1, akm, av, avm, vo, xw = range(3, 10); mx = 240; FG = 244
        XR = 12; CM = 28; SX = 44; SM = 60; Q = 76; K = 108; KM = 140; V = 172; VM = 204; P = 212; PM = 220; ACC = 224
        OT = Q
        a(f'v_and_b32 v{t0}, 7, v{L}'); a(f'v_lshlrev_b32 v{akm}, 4, v{t0}'); a(f'v_lshrrev_b32 v{t0}, 5, v{L}'); a(f'v_lshl_add_u32 v{akm}, v{t0}, 7, v{akm}')
        a(f'v_add_u32 v{akm}, {HB_KM}, v{akm}')
        pi_of(a, t0, L, t1); vpos16(a, av, t0, L, t1); a(f'v_add_u32 v{av}, {HB_V}, v{av}')
        a(f'v_lshlrev_b32 v{avm}, 2, v{t0}'); a(f'v_lshrrev_b32 v{t1}, 5, v{L}'); a(f'v_lshl_add_u32 v{avm}, v{t1}, 8, v{avm}'); a(f'v_add_u32 v{avm}, {HB_VM}, v{avm}')
        a(f's_lshl_b32 s{S_T}, s{S_W}, 11'); a(f'v_add_u32 v{vo}, s{S_T}, v{L16}')
        a(f's_lshl_b32 s{S_T}, s{S_W}, 13'); a(f'v_add_u32 v{xw}, s{S_T}, v{L16}')
        a(f'v_and_b32 v{t0}, 31, v{L}'); a(f'v_lshrrev_b32 v{t1}, 5, v{L}'); a(f'v_lshlrev_b32 v{t1}, 2, v{t1}'); a(f'v_sub_u32 v{t0}, v{t0}, v{t1}')
        a(f'v_mov_b32 v{t1}, {f2u(-1e30):#x}')
        for i in range(16):
            a(f'v_cmp_le_i32 vcc, {8*(i>>2)+(i&3)}, v{t0}'); a(f'v_cndmask_b32 v{CM+i}, v{t1}, 0, vcc')
        a(f's_and_b32 s{S_T}, s{S_A}, 28'); a(f's_add_u32 s{S_T}, s{S_T}, s{S_W}')
        a(f's_lshl_b32 s{S_K0}, s{S_T}, 8'); a(f's_add_u32 s{S_K0}, s{S_K0}, {FL(half, "HEAD")}')
        a(f's_lshl_b32 s{S_T}, s{S_T}, 21')
        a(f's_lshl_b32 s{S_T2}, s{S_B}, 15'); a(f's_add_u32 s{S_XO}, s{S_T}, s{S_T2}'); a(f's_add_u32 s{S_XO}, s{S_XO}, {H.HB}')
        a(f's_lshl_b32 s{S_T}, s{S_B}, 18'); a(f's_lshl_b32 s{S_T2}, s{S_A}, 13'); a(f's_add_u32 s{S_T}, s{S_T}, s{S_T2}'); a(f's_add_u32 s{S_T}, s{S_T}, {H.PT}')
        add64(a, S_OUT, S_WS, f's{S_T}')
        a(f's_mov_b32 s{S_M}, {f2u(math.log2(math.e)/math.sqrt(128.0)):#x}')
        a(f's_mov_b32 s{S_N}, 0'); a(f's_mov_b32 s{S_K1}, 0')
        def bl(n, dst, va, so, off): a(f'buffer_load_dword{n} {vr(dst, 4 if n else 1)}, v{va}, s[{S_WSRD}:{S_WSRD+3}], s{so} offen offset:{off} sc1')
        def poll(which):
            l1 = a.newlabel('Lt_p'); l2 = a.newlabel('Lt_p'); l3 = a.newlabel('Lt_p')
            a(f's_mov_b32 s{S_SPIN}, 0'); a(f's_branch {l3}')
            a.label(l1)
            if which == S_N:
                a(f'v_mov_b32 v{VZ}, s{S_K0}')
                _ = [a(f'global_load_dword v{FG+i}, v{VZ}, s[{S_WS}:{S_WS+1}] offset:{32*i} sc1') for i in range(8)]; a('s_waitcnt vmcnt(0)')
                a(f'v_min3_u32 v{FG}, v{FG}, v{FG+1}, v{FG+2}'); a(f'v_min3_u32 v{FG}, v{FG}, v{FG+3}, v{FG+4}'); a(f'v_min3_u32 v{FG}, v{FG}, v{FG+5}, v{FG+6}'); a(f'v_min_u32 v{FG}, v{FG}, v{FG+7}')
            else:
                a(f's_add_u32 s{S_X}, s{S_K0}, {FL(half, "CHP") - FL(half, "HEAD")}'); a(f'v_mov_b32 v{VZ}, s{S_X}')
                a(f'global_load_dword v{FG}, v{VZ}, s[{S_WS}:{S_WS+1}] sc1'); a('s_waitcnt vmcnt(0)')
            a(f'v_readfirstlane_b32 s{which}, v{FG}')
            a(f's_cmp_gt_u32 s{which}, s{S_B}'); a(f's_cbranch_scc1 {l2}')
            a(f's_sleep {self.tbsleep}')
            a(f's_add_u32 s{S_SPIN}, s{S_SPIN}, 1'); a(f's_cmp_ge_u32 s{S_SPIN}, {SPIN_MAX}'); a(f's_cbranch_scc1 {self.end}')
            a.label(l3)
            a(f's_cmp_gt_u32 s{which}, s{S_B}'); a(f's_cbranch_scc0 {l1}')
            a.label(l2)
        lp = a.newlabel('Lt_loop')
        a.label(lp)
        poll(S_N)
        a(f's_add_u32 s{S_T}, s{S_XO}, 4096'); a(f's_add_u32 s{S_T2}, s{S_XO}, {HB_Q}'); a(f's_add_u32 s{S_T3}, s{S_XO}, {HB_Q+4096}')
        for kb in range(8):
            bl('x4', K+4*kb, L16, S_XO if kb < 4 else S_T, (kb%4)*1024)
            bl('x4', Q+4*kb, L16, S_T2 if kb < 4 else S_T3, (kb%4)*1024)
        for f in range(8): bl('x4', V+4*f, av, S_XO if f < 4 else S_T, (f%4)*1024)
        poll(S_K1)
        if half == 0: self.mark(4, S_B, 63)
        for kb in range(8): bl('x4', KM+4*kb, akm, S_XO, kb*256)
        for t in range(4):
            for e in range(2): bl('', VM+2*t+e, avm, S_XO, t*512 + e*128)
        for kb in range(8):
            a(f's_waitcnt vmcnt({24 + 14 - 2*kb})')
            a(mf(SX, vr(K+4*kb,4), vr(Q+4*kb,4), vr(SX,16) if kb else vr(CM,16)))
        a('s_waitcnt vmcnt(8)')
        if half == 0: self.mark(5, S_B, 63)
        for kb in range(8): a(mf(SM, vr(KM+4*kb,4), vr(Q+4*kb,4), vr(SM,16) if kb else 0))
        E = [SX+i for i in range(16)] + [SM+i for i in range(4)]
        a(f'v_max3_f32 v{mx}, v{E[0]}, v{E[1]}, v{E[2]}')
        for i in range(3, 19, 2): a(f'v_max3_f32 v{mx}, v{mx}, v{E[i]}, v{E[i+1]}')
        a(f'v_max_f32 v{mx}, v{mx}, v{E[19]}')
        a(f'v_mov_b32 v{t0}, v{mx}'); a(f'v_permlane32_swap_b32 v{mx}, v{t0}'); a(f'v_max_f32 v{mx}, v{mx}, v{t0}')
        a(f'v_mul_f32 v{mx}, s{S_M}, v{mx}')
        for e in E: a(f'v_fma_f32 v{e}, v{e}, s{S_M}, -v{mx}')
        for e in E: a(f'v_exp_f32 v{e}, v{e}')
        a(f'v_add_f32 v{t1}, v{E[0]}, v{E[1]}')
        for e in E[2:]: a(f'v_add_f32 v{t1}, v{t1}, v{e}')
        a(f'v_mov_b32 v{t0}, v{t1}'); a(f'v_permlane32_swap_b32 v{t1}, v{t0}'); a(f'v_add_f32 v{t1}, v{t1}, v{t0}')
        a(f'v_rcp_f32 v{t1}, v{t1}')
        for e in E: a(f'v_mul_f32 v{e}, v{e}, v{t1}')
        for i in range(8): a(f'v_cvt_pk_bf16_f32 v{P+i}, v{SX+2*i}, v{SX+2*i+1}')
        for i in range(2): a(f'v_cvt_pk_bf16_f32 v{PM+i}, v{SM+2*i}, v{SM+2*i+1}')
        a('s_waitcnt vmcnt(0)')
        for t in range(4):
            o = OT+16*t
            a(f'v_mfma_f32_32x32x8_bf16 {vr(o,16)}, {vr(VM+2*t,2)}, {vr(PM,2)}, 0')
            for j in range(2): a(mf(o, vr(V+8*t+4*j,4), vr(P+4*j,4), vr(o,16)))
        for t in range(4):
            for j in range(2):
                o = OT+16*t+8*j
                for i in range(4): a(f'v_cvt_pk_bf16_f32 v{o+i}, v{o+2*i}, v{o+2*i+1}')
                a(f'ds_write_b128 v{xw}, {vr(o,4)} offset:{(2*t+j)*1024}')
        a('s_waitcnt lgkmcnt(0)'); a('s_barrier')
        gemm_core(a, L16, XR, [(ACC, 'a', 128, False)])
        pack_store(a, ACC, vo, S_OUT, 'sc1')
        if half == 0: self.mark(6, S_B, 63)
        self.set_word(FL(half, 'PT'), S_B, S_A); self.signal_wg()
        if half == 0: self.mark(7, S_B, 63)
        add64(a, S_OUT, S_OUT, ngr*8*32768); a(f's_add_u32 s{S_XO}, s{S_XO}, {ngr*32768}')
        a(f's_add_u32 s{S_B}, s{S_B}, {ngr}'); a(f's_cmp_lt_u32 s{S_B}, 64'); a(f's_cbranch_scc1 {lp}')

    def build(self):
        a = self.a; end = self.end
        a(f's_cmp_ge_u32 s2, 256'); a(f's_cbranch_scc1 {end}')
        common_prologue(a, L, L16)
        add64(a, S_DBG, S_WS, FL(0, 'EL'))
        lw = a.newlabel('Le'); lo = a.newlabel('Le'); ls = a.newlabel('Le'); lg = a.newlabel('Le')
        a(f's_cmp_lg_u32 s{S_W}, 0'); a(f's_cbranch_scc1 {lw}')
        a(f's_getreg_b32 s{S_X}, hwreg(HW_REG_XCC_ID, 0, 3)')
        a('s_mov_b64 exec, 1')
        a(f's_lshl_b32 s{S_T}, s{S_X}, 7'); a(f'v_mov_b32 v3, s{S_T}'); a('v_mov_b32 v4, 1'); a('v_mov_b32 v6, 1024')
        a(f'global_atomic_add v5, v3, v4, s[{S_DBG}:{S_DBG+1}] sc0 sc1'); a('s_waitcnt vmcnt(0)')
        a(f'global_atomic_add v6, v4, s[{S_DBG}:{S_DBG+1}] sc1')
        a(f'v_readfirstlane_b32 s{S_TK}, v5')
        a(f's_lshl_b32 s{S_SLOT}, s{S_X}, 5'); a(f's_add_u32 s{S_SLOT}, s{S_SLOT}, s{S_TK}')
        a(f's_cmp_lt_u32 s{S_TK}, 32'); a(f's_cbranch_scc1 {lg}')
        a('v_mov_b32 v3, 1152'); a(f'global_atomic_add v5, v3, v4, s[{S_DBG}:{S_DBG+1}] sc0 sc1'); a('s_waitcnt vmcnt(0)')
        a(f'v_readfirstlane_b32 s{S_TK}, v5'); a(f's_mov_b32 s{S_SPIN}, 0'); a('v_mov_b32 v3, 0')
        a.label(lo)
        a(f'global_load_dword v5, v6, s[{S_DBG}:{S_DBG+1}] sc1'); a('s_waitcnt vmcnt(0)'); a(f'v_readfirstlane_b32 s{S_T}, v5')
        a(f's_cmp_ge_u32 s{S_T}, 256'); a(f's_cbranch_scc1 {ls}')
        a('s_sleep 4'); a(f's_add_u32 s{S_SPIN}, s{S_SPIN}, 1'); a(f's_cmp_lt_u32 s{S_SPIN}, {SPIN_MAX}'); a(f's_cbranch_scc1 {lo}')
        a.label(ls)
        _ = [a(f'global_load_dword v{12+x}, v3, s[{S_DBG}:{S_DBG+1}] offset:{128*x} sc1') for x in range(8)]; a('s_waitcnt vmcnt(0)')
        for x in range(8):
            a(f'v_readfirstlane_b32 s{S_T}, v{12+x}'); a(f's_min_u32 s{S_T}, s{S_T}, 32')
            a(f's_add_u32 s{S_SLOT}, s{S_T}, s{S_TK}'); a(f's_add_u32 s{S_SLOT}, s{S_SLOT}, {32*x}')
            a(f's_sub_u32 s{S_T}, 32, s{S_T}'); a(f's_cmp_lt_u32 s{S_TK}, s{S_T}'); a(f's_cbranch_scc1 {lg}')
            a(f's_sub_u32 s{S_TK}, s{S_TK}, s{S_T}')
        a(f's_mov_b32 s{S_SLOT}, 256')
        a.label(lg)
        a(f'v_mov_b32 v3, 0'); a(f'v_mov_b32 v4, s{S_SLOT}'); a('ds_write_b32 v3, v4'); a('s_waitcnt lgkmcnt(0)')
        a('s_mov_b64 exec, -1')
        a.label(lw)
        a('s_barrier'); a('v_mov_b32 v3, 0'); a('ds_read_b32 v4, v3'); a('s_waitcnt lgkmcnt(0)'); a(f'v_readfirstlane_b32 s{S_SLOT}, v4'); a('s_barrier')
        a(f's_lshr_b32 s{S_T}, s{S_SLOT}, 5'); a(f's_lshl_b32 s{S_T2}, s{S_T}, 2'); a(f's_lshr_b32 s{S_T2}, {self.perm:#x}, s{S_T2}'); a(f's_and_b32 s{S_T2}, s{S_T2}, 7')
        a(f's_cmp_lt_u32 s{S_T}, 8'); a(f's_cselect_b32 s{S_T2}, s{S_T2}, 8'); a(f's_and_b32 s{S_SLOT}, s{S_SLOT}, 31'); a(f's_lshl_b32 s{S_T2}, s{S_T2}, 5'); a(f's_add_u32 s{S_SLOT}, s{S_SLOT}, s{S_T2}')
        if self.stamps: a(f's_mov_b32 s99, s{S_SLOT}')
        self.role = 'all'
        self.dmap = {('all',0):0, ('ch',1):1, ('ch',2):2, ('ch',3):3, ('ch',4):4, ('gw',1):8, ('gw',2):9, ('gw',3):10, ('pb',1):11, ('ms',12):12, ('gw',4):13, ('pb',3):14}
        if self.stamps == 2:
            a(f's_add_u32 s96, s{S_WS}, {STAMP_OFF}'); a(f's_addc_u32 s97, s{S_WS+1}, 0'); a('s_load_dword s99, s[96:97], 0'); a('s_waitcnt lgkmcnt(0)')
        self.sv = 10
        if self.stamps: _ = [a(f's_mov_b32 s{70+k}, 0') for k in range(16)]
        self.stamp(0)
        Lch, Lpb, Lgw, Lms, Lpa = [a.newlabel(n) for n in ('Lchain', 'Lpb', 'Lgw', 'Lms', 'Lpa')]
        a(f's_cmp_lt_u32 s{S_SLOT}, 32'); a(f's_cbranch_scc0 Lnot_chain')
        self.jump(Lch)
        a.label('Lnot_chain')
        a(f's_cmp_lt_u32 s{S_SLOT}, 96'); a(f's_cbranch_scc1 {Lpb}')
        a(f's_cmp_lt_u32 s{S_SLOT}, 224'); a(f's_cbranch_scc1 {Lgw}')
        a(f's_cmp_lt_u32 s{S_SLOT}, 240'); a(f's_cbranch_scc1 {Lms}')
        a(f's_cmp_lt_u32 s{S_SLOT}, 256'); a(f's_cbranch_scc1 {Lpa}')
        a.label(end); a('s_endpgm')
        a.label(Lms); self.role = 'ms'
        a(f's_and_b32 s{S_A}, s{S_SLOT}, 3'); a(f's_lshl_b32 s{S_OFF}, s{S_A}, 8')
        load_wslices(a, [(KA_WOA, 512*1024, 0, 'v', 128)], 1024, L, 3, 4, 5)
        for half in range(2):
            a(f's_and_b32 s{S_A}, s{S_SLOT}, 3'); a(f's_bfe_u32 s{S_B}, s{S_SLOT}, 0x20002'); self.woa_run(half, 4); self.stamp(3 + 8*half)
            a(f's_bfe_u32 s{S_A}, s{S_SLOT}, 0x20002'); a(f's_and_b32 s{S_B}, s{S_SLOT}, 3')
            self.rb_run(half, 2, 4); self.stamp(4 + 8*half)
        self.dump_marks(); a('s_endpgm')
        a.label(Lpa); self.role = 'pa'
        a(f's_and_b32 s{S_A}, s{S_SLOT}, 3'); self.proj_weights(False)
        for half in range(2):
            a(f's_bfe_u32 s{S_A}, s{S_SLOT}, 0x20002'); a(f's_and_b32 s{S_B}, s{S_SLOT}, 3'); self.rb_run(half, 1, 4); self.stamp(3 + 8*half)
            if half == 0:
                a(f's_and_b32 s{S_A}, s{S_SLOT}, 3'); a(f's_bfe_u32 s{S_B}, s{S_SLOT}, 0x20002'); self.proj_run(1, False, 4); self.stamp(4)
        self.dump_marks(); a('s_endpgm')
        a.label(Lpb); self.role = 'pb'
        def pb_ids():
            a(f's_sub_u32 s{S_T}, s{S_SLOT}, 32'); a(f's_lshr_b32 s{S_A}, s{S_T}, 5'); a(f's_lshl_b32 s{S_A}, s{S_A}, 4'); a(f's_and_b32 s{S_T2}, s{S_T}, 15')
            a(f's_add_u32 s{S_A}, s{S_A}, s{S_T2}'); a(f's_bfe_u32 s{S_B}, s{S_T}, 0x10004')
        pb_ids(); self.proj_weights(True); self.stamp(1)
        for half in range(2):
            pb_ids(); self.proj_run(half, True, 2); self.stamp(3 + 8*half)
        self.dump_marks(); a('s_endpgm')
        a.label(Lgw); self.role = 'gw'
        self.end = 'Lm_end2'
        a(f's_sub_u32 s{S_T}, s{S_SLOT}, 96'); a(f's_lshr_b32 s{S_A}, s{S_T}, 5'); a(f's_and_b32 s{S_B}, s{S_T}, 31')
        self.proj_weights(False, (S_B, 32)); self.proj_run(0, False, 32, nowait=True); self.stamp(1)
        def gw_ids():
            a(f's_sub_u32 s{S_T}, s{S_SLOT}, 96'); a(f's_lshr_b32 s{S_A}, s{S_T}, 5'); a(f's_lshl_b32 s{S_A}, s{S_A}, 3'); a(f's_and_b32 s{S_T2}, s{S_T}, 7')
            a(f's_add_u32 s{S_A}, s{S_A}, s{S_T2}'); a(f's_bfe_u32 s{S_B}, s{S_T}, 0x20003')
        for half in range(2):
            gw_ids(); self.att_run(half, 4); self.stamp(3 + 8*half)
            gw_ids()
            if half == 0: self.tb_weights()
            self.tb_run(half, 4); self.stamp(4 + 8*half)
        self.dump_marks()
        a.label('Lm_end2'); a('s_endpgm')
        a.label(Lch); self.role = 'ch'
        self.end = 'Lm_end3'; end = self.end
        r = C.ChainRegs(); self.sv = r.R
        a(f's_mov_b32 s{C.S_H}, s{S_SLOT}')
        C.chain_setup(a, r)
        self.stamp(1)
        T = r.R; l1 = a.newlabel('Lcd'); lslow = a.newlabel('Lcslow'); lfast = a.newlabel('Lcfast')
        a(f's_mov_b32 s{C.S_SPIN}, 0'); a(f'v_mov_b32 v{T}, 0')
        a.label(l1)
        a(f'global_load_dword v{T+2}, v{T}, s[{S_DBG}:{S_DBG+1}] offset:1024 sc1'); a('s_waitcnt vmcnt(0)')
        a(f'global_load_dword v{T+1}, v{T}, s[{S_DBG}:{S_DBG+1}] sc1'); a('s_waitcnt vmcnt(0)')
        a(f'v_readfirstlane_b32 s{C.S_T}, v{T+1}'); a(f'v_readfirstlane_b32 s{C.S_T2}, v{T+2}')
        if self.chain_kw.get('force_slow'): a(f's_mov_b32 s{C.S_T}, 0')
        a(f's_cmp_ge_u32 s{C.S_T}, 32'); a(f's_cbranch_scc1 {lfast}')
        a(f's_cmp_ge_u32 s{C.S_T2}, 256'); a(f's_cbranch_scc1 {lslow}')
        a('s_sleep 4'); a(f's_add_u32 s{C.S_SPIN}, s{C.S_SPIN}, 1'); a(f's_cmp_lt_u32 s{C.S_SPIN}, {SPIN_MAX}'); a(f's_cbranch_scc1 {l1}')
        a.label(end); a('s_endpgm')
        kw = {k: v for k, v in self.chain_kw.items() if k != 'force_slow'}
        for lbl, stf in ((lfast, ''), (lslow, 'sc1')):
            a.label(lbl)
            a(f's_mov_b32 s{C.S_EP}, 0'); a(f's_mov_b32 s{C.S_EM}, 0'); a(f's_mov_b32 s{C.S_HALF}, 0')
            C.chain_init_comm(a, r, stf, True)
            a(f's_mov_b32 s{C.S_T2}, 1280'); C.group_barrier(a, r, C.S_T2, 32, end)
            lh = a.newlabel('Lch_half'); a.label(lh)
            self.stamp(2, C.S_HALF)
            C.chain_start(a, r, end, 1, started=lambda: self.stamp(3, C.S_HALF))
            C.chain_all_waves(a, r, stf, end, fused=1, **(dict(kw, ef='sc1') if stf else kw))
            self.stamp(4, C.S_HALF)
            if kw.get('stamps'):
                for k in range(12): a(f'v_mov_b32 v{k}, s{84+k}')
                a(f's_lshl_b32 s{C.S_T}, s{C.S_H}, 2'); a(f's_add_u32 s{C.S_T}, s{C.S_T}, s{C.S_W}'); a(f's_lshl_b32 s{C.S_T}, s{C.S_T}, 6')
                a(f's_lshl_b32 s{C.S_T2}, s{C.S_HALF}, 13'); a(f's_add_u32 s{C.S_T}, s{C.S_T}, s{C.S_T2}')
                a(f's_add_u32 s{C.S_T}, s{C.S_T}, {STAMP_OFF + 32768}'); a(f'v_mov_b32 v16, s{C.S_T}')
                for k in range(3): a(f'global_store_dwordx4 v16, {vr(4*k,4)}, s[{S_WS}:{S_WS+1}] offset:{16*k}')
                a('s_waitcnt vmcnt(0)')
            a(f's_cmp_lg_u32 s{C.S_HALF}, 0'); a(f's_cbranch_scc1 {end}')
            a(f's_mov_b32 s{C.S_HALF}, 1'); a(f's_mov_b32 s{C.S_T2}, 1408'); C.group_barrier(a, r, C.S_T2, 32, end)
            a(f's_xor_b32 s{C.S_EM}, s{C.S_EM}, 1'); C.chain_init_comm(a, r, stf, False)
            a(f's_branch {lh}')
        return a.lines
    def jump(self, label):
        a = self.a; l = a.newlabel('Lj')
        a('s_getpc_b64 s[48:49]'); a.label(l)
        a(f's_add_u32 s48, s48, {label}-{l}'); a('s_addc_u32 s49, s49, 0'); a('s_setpc_b64 s[48:49]')

def init_kernel(stamps=False):
    a = Asm(); a._lbl = 9000
    a('s_cmp_ge_u32 s2, 256'); a('s_cbranch_scc1 Li_end')
    if stamps == 2: a('s_memrealtime s[96:97]')
    common_prologue(a, 1, 2)
    if stamps == 2:
        a('s_cmp_lg_u32 s2, 0'); a('s_cbranch_scc1 Li_ns'); a('v_mov_b32 v4, s96'); a(f'v_mov_b32 v3, {STAMP_OFF}'); a(f'global_store_dword v3, v4, s[{S_WS}:{S_WS+1}]'); a.label('Li_ns')
    a('v_lshlrev_b32 v3, 2, v0'); a(f's_lshl_b32 s{S_T}, s2, 10'); a(f's_add_u32 s{S_T}, s{S_T}, {W.FLAGS}'); a(f'v_add_u32 v3, s{S_T}, v3'); a('v_mov_b32 v4, 0')
    a(f'global_store_dword v3, v4, s[{S_WS}:{S_WS+1}]')
    a(f's_lshr_b32 s{S_A}, s2, 2'); a(f's_and_b32 s{S_B}, s2, 3')
    rb_body(a, 0, KA_X, True, 0, 0, 0, W.X0, False, W.H[0].XNA)
    a.label('Li_end'); a('s_endpgm')
    return a.lines

NAME = 'interleave_layers__softmax_full_mha__memory_aug_recurrent_mem_tr__prompt'
def build(stamps=False, chain_kw={}, verbose=False):
    ks = []
    for n, lines, vg, acc in (('init_kernel', init_kernel(stamps), 104, 104), (NAME + '_kernel', Mega(stamps, chain_kw).build(), 512, 256)):
        rep = []
        l = fix_hazards(lines, rep)
        for e in check_waits(l, n[:8]): print(e)
        if verbose: print(n, len(l), len(rep))
        ks.append((n, l, vg, acc))
    hdr = ''.join(l for l in open(f'cdna_kernels/{NAME}.s.ref').readlines()[:14] if '@launch' not in l)
    return assemble_file(hdr, [('init_kernel', 256, 256, 512), (NAME + '_kernel', 256, 256, 163840)], ks)

if __name__ == '__main__':
    import sys
    kw = eval(sys.argv[2]) if len(sys.argv) > 2 else dict()
    st = (True if sys.argv[3] == '1' else 2) if len(sys.argv) > 3 else False
    t = build(st, kw, True)
    open(sys.argv[1] if len(sys.argv) > 1 else f'cdna_kernels/{NAME}.s', 'w').write(t)
    print(len(t))
```

```python
from asmlib import *
from layout import *
import math, struct
def f2u(f): return struct.unpack('<I', struct.pack('<f', f))[0]

S_WS = 4; S_W = 7; S_SRD = 8; S_WSRD = 12
S_T = 16; S_T2 = 17; S_T3 = 18; S_OFF = 19
S_OUT = 20
S_IN = 22
S_TASK = 24; S_A = 25; S_B = 26; S_CNT = 27; S_XO = 28; S_BUF = 29; S_K0 = 30; S_K1 = 31
S_P = 32
S_M = 34

def add64(a, dst, base, off):
    a(f's_add_u32 s{dst}, s{base}, {off}'); a(f's_addc_u32 s{dst+1}, s{base+1}, 0')

def common_prologue(a, L, L16):
    a(f's_load_dwordx2 s[{S_WS}:{S_WS+1}], s[0:1], {KA_WS}')
    a(f'v_lshrrev_b32 v{L16}, 6, v0'); a(f'v_and_b32 v{L}, 63, v0')
    a(f'v_readfirstlane_b32 s{S_W}, v{L16}')
    a(f'v_lshlrev_b32 v{L16}, 4, v{L}')
    a('s_waitcnt lgkmcnt(0)')
    a(f's_mov_b32 s{S_WSRD}, s{S_WS}'); a(f's_mov_b32 s{S_WSRD+1}, s{S_WS+1}'); a(f's_mov_b32 s{S_WSRD+2}, {256*MB}'); a(f's_mov_b32 s{S_WSRD+3}, 0x20000')

def pi_of(a, dst, src, t):
    a(f'v_and_b32 v{dst}, 0x13, v{src}')
    a(f'v_bfe_u32 v{t}, v{src}, 2, 1'); a(f'v_lshl_or_b32 v{dst}, v{t}, 3, v{dst}')
    a(f'v_bfe_u32 v{t}, v{src}, 3, 1'); a(f'v_lshl_or_b32 v{dst}, v{t}, 2, v{dst}')

def vpos16(a, dst, f, hh_src, t):
    a(f'v_and_b32 v{t}, 1, v{f}'); a(f'v_lshrrev_b32 v{dst}, 1, v{f}'); a(f'v_lshl_or_b32 v{dst}, v{t}, 4, v{dst}')
    a(f'v_lshlrev_b32 v{dst}, 4, v{dst}'); a(f'v_lshrrev_b32 v{t}, 5, v{hh_src}'); a(f'v_lshl_or_b32 v{dst}, v{t}, 9, v{dst}')

def load_wslices(a, mats, stride, L, t0, t1, t2, share=None, early=None):
    a(f'v_bfe_u32 v{t0}, v{L}, 2, 2'); a(f's_mov_b32 s{S_T}, {stride}'); a(f'v_mul_lo_u32 v{t0}, v{t0}, s{S_T}')
    a(f'v_lshrrev_b32 v{t2}, 4, v{L}'); a(f'v_lshl_add_u32 v{t0}, v{t2}, 6, v{t0}')
    a(f'v_and_b32 v{t2}, 3, v{L}'); a(f'v_lshl_add_u32 v{t0}, v{t2}, 4, v{t0}')
    a(f'v_lshrrev_b32 v{t1}, 5, v{L}'); a(f'v_lshlrev_b32 v{t1}, 11, v{t1}')
    a(f'v_bfe_u32 v{t2}, v{L}, 2, 2'); a(f'v_lshl_add_u32 v{t1}, v{t2}, 6, v{t1}')
    a(f'v_bfe_u32 v{t2}, v{L}, 4, 1'); a(f'v_lshl_add_u32 v{t1}, v{t2}, 5, v{t1}')
    a(f'v_and_b32 v{t2}, 1, v{L}'); a(f'v_lshl_add_u32 v{t1}, v{t2}, 4, v{t1}')
    a(f'v_bfe_u32 v{t2}, v{L}, 1, 1'); a(f'v_lshl_add_u32 v{t1}, v{t2}, 3, v{t1}')
    a(f's_lshl_b32 s{S_T}, s{S_W}, 8'); a(f'v_add_u32 v{t1}, s{S_T}, v{t1}'); a(f'v_add_u32 v{t2}, 65536, v{t1}')
    a(f's_mul_i32 s{S_K0}, s{S_W}, {64*stride}'); a(f's_add_u32 s{S_K0}, s{S_K0}, s{S_OFF}')
    a(f's_lshl_b32 s{S_K1}, s{S_W}, 14')
    a(f's_mov_b32 s{S_SRD+3}, 0x20000')
    chunks = [(m, c) for m in range(len(mats)) for c in range(2)]
    cur = [None]
    if share is not None:
        rank, n = share; rows = 512 // n; tp = t2 + 1
        a(f's_lshl_b32 s{S_T}, s{S_W}, 6'); a(f'v_add_u32 v{tp}, s{S_T}, v{L}')
        a(f'v_and_b32 v{tp+1}, 1, v{tp}'); a(f'v_lshrrev_b32 v{tp}, 1, v{tp}'); a(f'v_and_b32 v{tp}, {min(rows,128)-1}, v{tp}')
        a(f's_mov_b32 s{S_T}, {stride}'); a(f'v_mul_lo_u32 v{tp}, v{tp}, s{S_T}'); a(f'v_lshl_add_u32 v{tp}, v{tp+1}, 7, v{tp}')
        a(f's_mul_i32 s{S_T2}, s{rank}, {rows*stride}'); a(f's_add_u32 s{S_T2}, s{S_T2}, s{S_OFF}')
        for ka, nb, const, _, _ in mats:
            if cur[0] != ka:
                a(f's_load_dwordx2 s[{S_SRD}:{S_SRD+1}], s[0:1], {ka}'); a(f's_mov_b32 s{S_SRD+2}, {nb}'); a('s_waitcnt lgkmcnt(0)'); cur[0] = ka
            for r0 in range(0, rows, 128):
                a(f's_add_u32 s{S_T}, s{S_T2}, {const + r0*stride}')
                a(f'buffer_load_dword v{tp+1}, v{tp}, s[{S_SRD}:{S_SRD+3}], s{S_T} offen')
    def issue(ci):
        m, c = chunks[ci]; ka, nb, const, _, _ = mats[m]
        if cur[0] != ka:
            a(f's_load_dwordx2 s[{S_SRD}:{S_SRD+1}], s[0:1], {ka}'); a(f's_mov_b32 s{S_SRD+2}, {nb}'); a('s_waitcnt lgkmcnt(0)'); cur[0] = ka
        for i in range(16):
            a(f's_add_u32 m0, s{S_K1}, {(ci&1)*65536 + i*1024}')
            a(f's_add_u32 s{S_T}, s{S_K0}, {const + (256*c + 4*i)*stride}')
            a(f'buffer_load_dwordx4 v{t0}, s[{S_SRD}:{S_SRD+3}], s{S_T} offen lds')
    issue(0)
    for ci in range(len(chunks)):
        if ci + 1 < len(chunks):
            issue(ci + 1)
            if ci == 0 and early: early()
            a('s_waitcnt vmcnt(16)')
        else: a('s_waitcnt vmcnt(0)')
        a('s_barrier')
        m, c = chunks[ci]; _, _, _, kind, base = mats[m]
        n = 0
        for kb in range(16):
            for half in range(2):
                r = base + 4*(16*c+kb) + 2*half
                a(f'ds_read_b64_tr_b16 {vr(r,2,kind)}, v{t2 if ci&1 else t1} offset:{(4*kb+half)*1024}')
                n += 1
                if n % 12 == 0: a('s_waitcnt lgkmcnt(4)')
        a('s_waitcnt lgkmcnt(0)'); a('s_barrier')

def dma_x(a, L16, soff_sgpr, buf_sgpr, flags=''):
    a(f's_lshl_b32 s{S_T2}, s{S_W}, 13'); a(f's_add_u32 s{S_T3}, s{S_T2}, s{soff_sgpr}'); a(f's_add_u32 s{S_T2}, s{S_T2}, s{buf_sgpr}')
    for i in range(8):
        if i % 4 == 0:
            a(f's_add_u32 m0, s{S_T2}, {i*1024}'); a(f's_add_u32 s{S_T}, s{S_T3}, {i*1024}')
        a(f'buffer_load_dwordx4 v{L16}, s[{S_WSRD}:{S_WSRD+3}], s{S_T} offen offset:{(i%4)*1024} {flags} lds')

def mf(d, x, y, c): return f'v_mfma_f32_32x32x16_bf16 {vr(d,16)}, {x}, {y}, {c}'

def gemm_core(a, xaddr, XR, tiles, hooks={}):
    for kb in range(3): a(f'ds_read_b128 {vr(XR+4*kb,4)}, v{xaddr} offset:{kb*1024}')
    for kb in range(32):
        if kb + 3 < 32: a(f'ds_read_b128 {vr(XR+4*((kb+3)%4),4)}, v{xaddr} offset:{(kb+3)*1024}')
        a(f's_waitcnt lgkmcnt({min(3, 31-kb)})')
        x = vr(XR+4*(kb%4), 4)
        for acc, kind, wb, swap in tiles:
            w = vr(wb+4*kb, 4, kind)
            a(mf(acc, x if swap else w, w if swap else x, vr(acc,16) if kb else 0))
        if kb in hooks: hooks[kb]()

def pack_store(a, acc, addr, base, flags='', scale=None, offs=(0, 1024)):
    for j in range(2):
        if scale is not None:
            for i in range(8): a(f'v_mul_f32 v{acc+8*j+i}, s{scale}, v{acc+8*j+i}')
        for i in range(4): a(f'v_cvt_pk_bf16_f32 v{acc+8*j+i}, v{acc+8*j+2*i}, v{acc+8*j+2*i+1}')
        a(f'global_store_dwordx4 v{addr}, {vr(acc+8*j,4)}, s[{base}:{base+1}] offset:{offs[j]} {flags}')

def proj_kernel(half, isB, nwg=256):
    a = Asm(); a._lbl = 2000 + 100*half + 50*isB
    H = W.H[half]
    L, L16, t0, t1, t2, vq, vk, vv, xa = range(1, 10)
    XR = 12; ACC = 28; WV = 128
    end = a.newlabel('Lp_end')
    a(f's_cmp_ge_u32 s2, {nwg}'); a(f's_cbranch_scc1 {end}')
    common_prologue(a, L, L16)
    nsl = 32 if isB else 4
    ngr = nwg // nsl
    a(f's_and_b32 s{S_A}, s2, {nsl-1}'); a(f's_lshr_b32 s{S_B}, s2, {int(math.log2(nsl))}')
    a(f's_lshl_b32 s{S_OFF}, s{S_A}, 8')
    xn = H.XNB if isB else H.XNA
    a(f's_lshl_b32 s{S_XO}, s{S_B}, 15'); a(f's_add_u32 s{S_XO}, s{S_XO}, {xn}'); a(f's_mov_b32 s{S_BUF}, {128*1024}')
    dma_x(a, L16, S_XO, S_BUF)
    if isB: mats = [(KA_WK, 4*MB, 0, 'a', 128), (KA_WV, 4*MB, 0, 'v', WV), (KA_WQ, 4*MB, 0, 'a', 0)]; stride = 8192
    else: mats = [(KA_WQKV, 1536*1024, 1024, 'a', 128), (KA_WQKV, 1536*1024, 2048, 'v', WV), (KA_WQKV, 1536*1024, 0, 'a', 0)]; stride = 3072
    load_wslices(a, mats, stride, L, t0, t1, t2)
    ro = (HB_Q, HB_K, HB_V) if isB else (0, H.KA - H.QA, H.VA - H.QA)
    a(f's_lshl_b32 s{S_T}, s{S_W}, 11')
    a(f's_add_u32 s{S_T2}, s{S_T}, {ro[0]}'); a(f'v_add_u32 v{vq}, s{S_T2}, v{L16}')
    a(f's_add_u32 s{S_T2}, s{S_T}, {ro[1]}'); a(f'v_add_u32 v{vk}, s{S_T2}, v{L16}')
    pi_of(a, t0, L, t1); vpos16(a, vv, t0, L, t1)
    a(f's_add_u32 s{S_T2}, s{S_T}, {ro[2]}'); a(f'v_add_u32 v{vv}, s{S_T2}, v{vv}')
    a(f's_lshl_b32 s{S_T}, s{S_A}, {21 if isB else 13}'); a(f's_lshl_b32 s{S_T2}, s{S_B}, 15'); a(f's_add_u32 s{S_T}, s{S_T}, s{S_T2}')
    a(f's_add_u32 s{S_T}, s{S_T}, {H.HB if isB else H.QA}'); add64(a, S_OUT, S_WS, f's{S_T}')
    a(f's_mov_b32 s{S_M}, {f2u(0.25*math.log2(math.e)):#x}')
    lp = a.newlabel('Lp_loop'); nod = a.newlabel('Lp_nod')
    a.label(lp)
    a(f'v_add_u32 v{xa}, s{S_BUF}, v{L16}')
    a(f's_add_u32 s{S_B}, s{S_B}, {ngr}'); a(f's_xor_b32 s{S_BUF}, s{S_BUF}, {128*1024}')
    a(f's_add_u32 s{S_XO}, s{S_XO}, {ngr*32768}')
    a(f's_cmp_ge_u32 s{S_B}, 64'); a(f's_cbranch_scc1 {nod}')
    dma_x(a, L16, S_XO, S_BUF)
    a.label(nod)
    gemm_core(a, xa, XR, [(ACC+16, 'a', 128, False), (ACC+32, 'v', WV, True), (ACC, 'a', 0, False)])
    a('s_waitcnt vmcnt(0)'); a('s_barrier')
    pack_store(a, ACC+16, vk, S_OUT); pack_store(a, ACC+32, vv, S_OUT); pack_store(a, ACC, vq, S_OUT, scale=None if isB else S_M)
    add64(a, S_OUT, S_OUT, ngr*32768)
    a(f's_cmp_lt_u32 s{S_B}, 64'); a(f's_cbranch_scc1 {lp}')
    a.label(end); a('s_endpgm')
    return a.lines

def woa_kernel(half, nwg=256):
    a = Asm(); a._lbl = 3000 + 100*half
    H = W.H[half]
    L, L16, t0, t1, t2, vo, xa = range(1, 8)
    XR = 12; ACC = 28; WV = 128
    end = a.newlabel('Lw_end')
    a(f's_cmp_ge_u32 s2, {nwg}'); a(f's_cbranch_scc1 {end}')
    common_prologue(a, L, L16)
    a(f's_and_b32 s{S_A}, s2, 3'); a(f's_lshr_b32 s{S_B}, s2, 2')
    a(f's_lshl_b32 s{S_OFF}, s{S_A}, 8')
    a(f's_lshl_b32 s{S_XO}, s{S_B}, 15'); a(f's_add_u32 s{S_XO}, s{S_XO}, {H.OA}'); a(f's_mov_b32 s{S_BUF}, {128*1024}')
    dma_x(a, L16, S_XO, S_BUF)
    load_wslices(a, [(KA_WOA, 512*1024, 0, 'v', WV)], 1024, L, t0, t1, t2)
    a(f's_lshl_b32 s{S_T}, s{S_W}, 11'); a(f'v_add_u32 v{vo}, s{S_T}, v{L16}')
    a(f's_lshl_b32 s{S_T}, s{S_A}, 13'); a(f's_lshl_b32 s{S_T2}, s{S_B}, 15'); a(f's_add_u32 s{S_T}, s{S_T}, s{S_T2}')
    a(f's_add_u32 s{S_T}, s{S_T}, {H.YA}'); add64(a, S_OUT, S_WS, f's{S_T}')
    a(f'v_add_u32 v{xa}, s{S_BUF}, v{L16}')
    gemm_core(a, xa, XR, [(ACC, 'v', WV, False)])
    pack_store(a, ACC, vo, S_OUT)
    a.label(end); a('s_endpgm')
    return a.lines

def rb_body(a, npart, xin, xin_rm, part, pstride, segstride, xout, xout_rm, xn, ldf='', stf='', ready=None, ldsoff=0, vb=0):
    L, L16 = 1, 2; af, ar, t0, t1, t2, t3, sm = range(3+vb, 10+vb); la = 100+vb
    X = 12+vb; F = 20+vb; P = 36+vb
    a(f'v_lshrrev_b32 v{t0}, 3, v{L}'); a(f'v_and_b32 v{t1}, 7, v{L}')
    a(f'v_lshlrev_b32 v{af}, 9, v{t0}'); a(f'v_lshl_add_u32 v{af}, v{t1}, 4, v{af}')
    a(f's_lshl_b32 s{S_T}, s{S_W}, 13'); a(f's_lshl_b32 s{S_T2}, s{S_B}, 7'); a(f's_add_u32 s{S_T}, s{S_T}, s{S_T2}'); a(f's_add_u32 s{S_T}, s{S_T}, 2048')
    a(f'v_add_u32 v{af}, s{S_T}, v{af}')
    a(f'v_lshlrev_b32 v{ar}, 10, v{t1}'); a(f'v_lshl_add_u32 v{ar}, v{t0}, 4, v{ar}')
    a(f's_lshl_b32 s{S_T}, s{S_A}, 15'); a(f's_lshl_b32 s{S_T2}, s{S_B}, 13'); a(f's_add_u32 s{S_T}, s{S_T}, s{S_T2}'); a(f's_lshl_b32 s{S_T2}, s{S_W}, 8'); a(f's_add_u32 s{S_T}, s{S_T}, s{S_T2}')
    a(f'v_add_u32 v{ar}, s{S_T}, v{ar}')
    a(f'v_lshlrev_b32 v{la}, 4, v{t1}')
    if ldsoff: a(f'v_add_u32 v{la}, {ldsoff}, v{la}')
    a(f's_lshl_b32 s{S_T3}, s{S_A}, 15')
    if ready: ready()
    if xin_rm:
        a(f's_load_dwordx2 s[{S_IN}:{S_IN+1}], s[0:1], {xin}'); a('s_waitcnt lgkmcnt(0)')
        for i in range(2): a(f'global_load_dwordx4 {vr(X+4*i,4)}, v{ar}, s[{S_IN}:{S_IN+1}] offset:{128*i}')
    else:
        a(f's_add_u32 s{S_T}, s{S_T3}, {xin}'); add64(a, S_IN, S_WS, f's{S_T}')
        for i in range(2): a(f'global_load_dwordx4 {vr(X+4*i,4)}, v{af}, s[{S_IN}:{S_IN+1}] offset:{4096*i-2048} {ldf}')
    if npart:
        a(f's_mul_i32 s{S_T}, s{S_A}, {segstride}'); a(f's_add_u32 s{S_T}, s{S_T}, {part}'); add64(a, S_P, S_WS, f's{S_T}')
        for p in range(npart):
            for i in range(2): a(f'global_load_dwordx4 {vr(P+8*p+4*i,4)}, v{af}, s[{S_P}:{S_P+1}] offset:{4096*i-2048} {ldf}')
            if p + 1 < npart: add64(a, S_P, S_P, pstride)
        a(f's_mov_b32 s{S_M}, 0xffff0000'); a(f'v_mov_b32 v{t2}, 0x3f80'); a(f'v_mov_b32 v{t3}, 0x3f800000')
        for p in range(npart):
            a(f's_waitcnt vmcnt({2*(npart-1-p)})')
            for d in range(8):
                r = P+8*p+d
                if p == 0:
                    a(f'v_lshlrev_b32 v{F+2*d}, 16, v{r}'); a(f'v_and_b32 v{F+2*d+1}, s{S_M}, v{r}')
                else:
                    a(f'v_dot2c_f32_bf16 v{F+2*d}, v{r}, v{t2}'); a(f'v_dot2c_f32_bf16 v{F+2*d+1}, v{r}, v{t3}')
        a('s_nop 2')
        for d in range(8):
            if npart > 1:
                a(f'v_cvt_pk_bf16_f32 v{t1}, v{F+2*d}, v{F+2*d+1}')
                a(f'v_lshlrev_b32 v{F+2*d}, 16, v{t1}'); a(f'v_and_b32 v{F+2*d+1}, s{S_M}, v{t1}')
            a(f'v_lshlrev_b32 v{t0}, 16, v{X+d}'); a(f'v_and_b32 v{t1}, s{S_M}, v{X+d}')
            a(f'v_add_f32 v{t0}, v{t0}, v{F+2*d}'); a(f'v_add_f32 v{t1}, v{t1}, v{F+2*d+1}')
            a(f'v_cvt_pk_bf16_f32 v{X+d}, v{t0}, v{t1}')
    else:
        a(f's_mov_b32 s{S_M}, 0xffff0000'); a('s_waitcnt vmcnt(0)')
    def store_x():
        if xout is None: return
        if xout_rm:
            a(f's_load_dwordx2 s[{S_OUT}:{S_OUT+1}], s[0:1], {xout}'); a('s_waitcnt lgkmcnt(0)')
            for i in range(2): a(f'global_store_dwordx4 v{ar}, {vr(X+4*i,4)}, s[{S_OUT}:{S_OUT+1}] offset:{128*i}')
        else:
            a(f's_add_u32 s{S_T}, s{S_T3}, {xout}'); add64(a, S_OUT, S_WS, f's{S_T}')
            for i in range(2): a(f'global_store_dwordx4 v{af}, {vr(X+4*i,4)}, s[{S_OUT}:{S_OUT+1}] offset:{4096*i-2048} {stf}')
    if xn is None:
        store_x(); return
    for d in range(8):
        a(f'v_lshlrev_b32 v{F+2*d}, 16, v{X+d}'); a(f'v_and_b32 v{F+2*d+1}, s{S_M}, v{X+d}')
    def rbf(r):
        a(f'v_cvt_pk_bf16_f32 v{r}, v{r}, v{r}'); a(f'v_and_b32 v{r}, s{S_M}, v{r}')
    a(f'v_add_f32 v{t3}, v{F}, v{F+1}'); a(f'v_mul_f32 v{sm}, v{F}, v{F}'); a(f'v_fmac_f32 v{sm}, v{F+1}, v{F+1}')
    for i in range(2, 16):
        a(f'v_add_f32 v{t3}, v{t3}, v{F+i}'); a(f'v_fmac_f32 v{sm}, v{F+i}, v{F+i}')
    for x in (t3, sm): a(f'v_add_f32_dpp v{x}, v{x}, v{x} row_ror:8 row_mask:0xf bank_mask:0xf')
    for sw in ('16', '32'):
        a(f'v_mov_b32 v{t0}, v{t3}'); a(f'v_mov_b32 v{t1}, v{sm}')
        a(f'v_permlane{sw}_swap_b32 v{t3}, v{t0}'); a(f'v_permlane{sw}_swap_b32 v{sm}, v{t1}')
        a(f'v_add_f32 v{t3}, v{t3}, v{t0}'); a(f'v_add_f32 v{sm}, v{sm}, v{t1}')
    a(f's_lshl_b32 s{S_T}, s{S_W}, 2'); a(f'v_add_u32 v{t0}, s{S_T}, v{la}')
    a(f'ds_write2_b32 v{t0}, v{t3}, v{sm} offset0:0 offset1:32'); a('s_waitcnt lgkmcnt(0)'); a('s_barrier')
    a(f'ds_read_b128 {vr(P,4)}, v{la}'); a(f'ds_read_b128 {vr(P+4,4)}, v{la} offset:128')
    store_x()
    a('s_waitcnt lgkmcnt(0)')
    for x, b in ((t3, P), (sm, P+4)):
        a(f'v_add_f32 v{b}, v{b}, v{b+1}'); a(f'v_add_f32 v{b+2}, v{b+2}, v{b+3}'); a(f'v_add_f32 v{x}, v{b}, v{b+2}')
        a(f'v_mul_f32 v{x}, {f2u(1/512):#x}, v{x}')
    a(f'v_fma_f32 v{sm}, -v{t3}, v{t3}, v{sm}'); a(f'v_max_f32 v{sm}, 0, v{sm}')
    rbf(sm); a(f'v_add_f32 v{sm}, {f2u(1e-5):#x}, v{sm}'); rbf(sm)
    a(f'v_sqrt_f32 v{sm}, v{sm}'); rbf(sm); a(f'v_rcp_f32 v{sm}, v{sm}')
    rbf(t3)
    for d in range(8):
        a(f'v_sub_f32 v{t0}, v{F+2*d}, v{t3}'); a(f'v_sub_f32 v{t1}, v{F+2*d+1}, v{t3}')
        a(f'v_cvt_pk_bf16_f32 v{t1}, v{t0}, v{t1}')
        a(f'v_lshlrev_b32 v{t0}, 16, v{t1}'); a(f'v_and_b32 v{t1}, s{S_M}, v{t1}')
        a(f'v_mul_f32 v{t0}, v{t0}, v{sm}'); a(f'v_mul_f32 v{t1}, v{t1}, v{sm}')
        a(f'v_cvt_pk_bf16_f32 v{P+d}, v{t0}, v{t1}')
    a(f's_add_u32 s{S_T}, s{S_T3}, {xn}'); add64(a, S_OUT, S_WS, f's{S_T}')
    for i in range(2): a(f'global_store_dwordx4 v{af}, {vr(P+4*i,4)}, s[{S_OUT}:{S_OUT+1}] offset:{4096*i-2048} {stf}')

def rb_kernel(kind, half):
    a = Asm(); a._lbl = 4000 + 100*half + 10*kind
    H = W.H[half]
    end = a.newlabel('Lr_end')
    a(f's_cmp_ge_u32 s2, 256'); a(f's_cbranch_scc1 {end}')
    common_prologue(a, 1, 2)
    a(f's_lshr_b32 s{S_A}, s2, 2'); a(f's_and_b32 s{S_B}, s2, 3')
    xprev = W.X0 if half == 0 else W.H[0].X2
    if kind == 0: rb_body(a, 0, KA_X, True, 0, 0, 0, W.X0, False, H.XNA)
    elif kind == 1: rb_body(a, 1, xprev, False, H.YA, 0, 32768, H.X1, False, H.XNB)
    elif half == 0: rb_body(a, 8, H.X1, False, H.PT, 32768, 8*32768, H.X2, False, W.H[1].XNA)
    else: rb_body(a, 8, H.X1, False, H.PT, 32768, 8*32768, KA_OUT, True, None)
    a.label(end); a('s_endpgm')
    return a.lines

def att_kernel(half, nwg=256):
    a = Asm(); a._lbl = 5000 + 100*half
    H = W.H[half]
    L, L16, t0, t1, t2, ak, av, idx, lw, mx = range(1, 11)
    Q = 12; QN = 16; K0 = 20; C = 24; O = 40; D = [56, 72, 88]; KF = 104
    MG = 168
    end = a.newlabel('La_end')
    a(f's_cmp_ge_u32 s2, {nwg}'); a(f's_cbranch_scc1 {end}')
    common_prologue(a, L, L16)
    npg = nwg // 32
    a(f's_and_b32 s{S_A}, s2, 31'); a(f's_lshr_b32 s{S_B}, s2, 5')
    pi_of(a, t0, L, t1)
    a(f'v_and_b32 v{t1}, 32, v{L}'); a(f'v_add_u32 v{ak}, v{t0}, v{t1}'); a(f'v_lshlrev_b32 v{ak}, 4, v{ak}')
    a(f'v_and_b32 v{t0}, 15, v{t0}'); a(f's_and_b32 s{S_T}, s{S_A}, 1'); a(f's_lshl_b32 s{S_T}, s{S_T}, 4'); a(f'v_add_u32 v{t0}, s{S_T}, v{t0}')
    vpos16(a, av, t0, L, t1)
    a(f'v_mov_b32 v{idx}, 0xdddd')
    a(f's_mul_i32 s{S_T}, s{S_W}, 3072'); a(f'v_add_u32 v{lw}, s{S_T}, v{L16}')
    a(f's_lshl_b32 s{S_T}, s{S_A}, 10'); a(f's_lshl_b32 s{S_T2}, s{S_B}, 15'); a(f's_add_u32 s{S_T2}, s{S_T2}, s{S_T}')
    a(f's_add_u32 s{S_T3}, s{S_T2}, {H.QA}'); add64(a, S_IN, S_WS, f's{S_T3}')
    a(f's_add_u32 s{S_T3}, s{S_T2}, {H.OA}'); add64(a, S_OUT, S_WS, f's{S_T3}')
    a(f'global_load_dwordx4 {vr(QN,4)}, v{L16}, s[{S_IN}:{S_IN+1}]')
    a(f's_add_u32 s{S_K0}, s{S_T}, {H.KA}')
    a(f'buffer_load_dwordx4 {vr(K0,4)}, v{ak}, s[{S_WSRD}:{S_WSRD+3}], s{S_K0} offen')
    a(f's_lshl_b32 s{S_T2}, s{S_W}, 19'); a(f's_add_u32 s{S_K0}, s{S_K0}, s{S_T2}')
    a(f's_lshr_b32 s{S_K1}, s{S_A}, 1'); a(f's_lshl_b32 s{S_K1}, s{S_K1}, 11'); a(f's_add_u32 s{S_K1}, s{S_K1}, s{S_T2}'); a(f's_add_u32 s{S_K1}, s{S_K1}, {H.VA}')
    a(f'v_mov_b32 v{t0}, 0x3f803f80')
    for i in range(128): a(f'v_accvgpr_write_b32 a{i}, v{t0}')
    a(f's_mov_b32 s{S_M}, 0x0000ffff'); a(f's_mov_b32 s{S_M+1}, 0x0000ffff')
    for t in range(16):
        a(f's_add_u32 s{S_T}, s{S_K0}, {t*32768}')
        a(f'buffer_load_dwordx4 {vr(KF+4*t,4)}, v{ak}, s[{S_WSRD}:{S_WSRD+3}], s{S_T} offen')
        a(f's_add_u32 s{S_T}, s{S_K1}, {t*32768}')
        a(f's_mov_b64 exec, s[{S_M}:{S_M+1}]')
        for b in range(2): a(f'buffer_load_dwordx4 {vr(8*t+4*b,4,"a")}, v{av}, s[{S_WSRD}:{S_WSRD+3}], s{S_T} offen offset:{1024*b}')
        a('s_mov_b64 exec, -1')
    a(f's_mov_b32 s{S_BUF}, 0'); a(f's_mov_b32 s{S_CNT}, 0')
    lp = a.newlabel('La_loop'); run = a.newlabel('La_run'); slow = a.newlabel('La_slow'); nom = a.newlabel('La_nom'); noq = a.newlabel('La_noq')
    def rowmax(src, first):
        if first: a(f'v_max3_f32 v{mx}, v{src}, v{src+1}, v{src+2}'); rest = list(range(3, 16))
        else: rest = list(range(16))
        while len(rest) >= 2:
            a(f'v_max3_f32 v{mx}, v{mx}, v{src+rest[0]}, v{src+rest[1]}'); rest = rest[2:]
        if rest: a(f'v_max_f32 v{mx}, v{mx}, v{src+rest[0]}')
    def halfmax():
        a(f'v_mov_b32 v{t0}, v{mx}'); a(f'v_permlane32_swap_b32 v{mx}, v{t0}'); a(f'v_max_f32 v{mx}, v{mx}, v{t0}')
    a.label(lp)
    a('s_waitcnt vmcnt(0)')
    for i in range(4): a(f'v_mov_b32 v{Q+i}, v{QN+i}')
    a(f's_add_u32 s{S_B}, s{S_B}, {npg}'); add64(a, S_IN, S_IN, npg*32768)
    a(f's_cmp_ge_u32 s{S_B}, 64'); a(f's_cbranch_scc1 {noq}')
    a(f'global_load_dwordx4 {vr(QN,4)}, v{L16}, s[{S_IN}:{S_IN+1}]')
    a.label(noq)
    a(mf(D[0], vr(K0,4), vr(Q,4), 0))
    rowmax(D[0], True); halfmax()
    a(f's_mov_b32 s{S_XO}, 0')
    a.label(run)
    for i in range(16): a(f'v_sub_f32 v{C+i}, 0, v{mx}')
    for i in range(16): a(f'v_mov_b32 v{O+i}, 0')
    a(mf(D[0], vr(KF,4), vr(Q,4), vr(C,16)))
    a(mf(D[1], vr(KF+4,4), vr(Q,4), vr(C,16)))
    def pv(t, b): a(f'v_smfmac_f32_32x32x32_bf16 {vr(O,16)}, {vr(8*t+4*b,4,"a")}, {vr(D[t%3]+8*b,8)}, v{idx}')
    for t in range(16):
        d = D[t % 3]
        for i in range(16):
            a(f'v_exp_f32 v{d+i}, v{d+i}')
            if i == 2 and t > 0: pv(t-1, 1)
            if i == 6 and t + 2 < 16: a(mf(D[(t+2)%3], vr(KF+4*(t+2),4), vr(Q,4), vr(C,16)))
            if i == 11: pv(t, 0)
    pv(15, 1)
    a(f'v_add_u32 v{t1}, s{S_BUF}, v{lw}')
    for j in range(3): a(f'ds_write_b128 v{t1}, {vr(O+4*j,4)} offset:{1024*j}')
    a('s_waitcnt lgkmcnt(0)'); a('s_barrier')
    a(f'v_add_u32 v{t1}, s{S_BUF}, v{L16}')
    for w in range(4): a(f'ds_read_b32 v{MG+w}, v{t1} offset:{3072*w+2048}')
    a('s_waitcnt lgkmcnt(0)')
    a(f'v_add_f32 v{MG}, v{MG}, v{MG+1}'); a(f'v_add_f32 v{MG+2}, v{MG+2}, v{MG+3}'); a(f'v_add_f32 v{t2}, v{MG}, v{MG+2}')
    a(f's_xor_b32 s{S_BUF}, s{S_BUF}, 16384')
    a(f'v_cmp_nge_f32 vcc, {f2u(2.0**90):#x}, v{t2}')
    a(f's_cbranch_vccnz {slow}')
    fin = a.newlabel('La_fin'); a.label(fin)
    a(f's_and_b32 s{S_T}, s{S_CNT}, 3'); a(f's_add_u32 s{S_CNT}, s{S_CNT}, 1')
    a(f's_cmp_lg_u32 s{S_T}, s{S_W}'); a(f's_cbranch_scc1 {nom}')
    for w in range(4):
        for j in range(2): a(f'ds_read_b128 {vr(MG+8*w+4*j,4)}, v{t1} offset:{3072*w+1024*j}')
    a(f'v_rcp_f32 v{t2}, v{t2}')
    a('s_waitcnt lgkmcnt(0)')
    for i in range(8):
        a(f'v_add_f32 v{MG+i}, v{MG+i}, v{MG+8+i}'); a(f'v_add_f32 v{MG+16+i}, v{MG+16+i}, v{MG+24+i}')
        a(f'v_add_f32 v{MG+i}, v{MG+i}, v{MG+16+i}'); a(f'v_mul_f32 v{MG+i}, v{MG+i}, v{t2}')
    for i in range(4): a(f'v_cvt_pk_bf16_f32 v{MG+i}, v{MG+2*i}, v{MG+2*i+1}')
    a(f'global_store_dwordx4 v{L16}, {vr(MG,4)}, s[{S_OUT}:{S_OUT+1}]')
    a.label(nom)
    add64(a, S_OUT, S_OUT, npg*32768)
    a(f's_cmp_lt_u32 s{S_B}, 64'); a(f's_cbranch_scc1 {lp}')
    a(f's_branch {end}')
    a.label(slow)
    a(f's_cmp_lg_u32 s{S_XO}, 0'); a(f's_cbranch_scc1 {fin}')
    a(f's_mov_b32 s{S_XO}, 1')
    for t in range(16):
        a(mf(D[t%2], vr(KF+4*t,4), vr(Q,4), 0))
        rowmax(D[t%2], t == 0)
    halfmax()
    a(f'ds_write_b32 v{lw}, v{mx} offset:32768'); a('s_waitcnt lgkmcnt(0)'); a('s_barrier')
    for w in range(4): a(f'ds_read_b32 v{MG+w}, v{L16} offset:{32768+3072*w}')
    a('s_waitcnt lgkmcnt(0)')
    a(f'v_max3_f32 v{mx}, v{MG}, v{MG+1}, v{MG+2}'); a(f'v_max_f32 v{mx}, v{mx}, v{MG+3}')
    a(f's_branch {run}')
    a.label(end); a('s_endpgm')
    return a.lines

def tb_kernel(half, nwg=256):
    a = Asm(); a._lbl = 6000 + 100*half
    H = W.H[half]
    L, L16, t0, t1, t2, akm, av, avm, vo, xw, mx = range(1, 12)
    XR = 12; CM = 28; SX = 44; SM = 60; Q = 76; K = 108; KM = 140; V = 172; VM = 204; P = 212; PM = 220; ACC = 224
    OT = Q
    end = a.newlabel('Lt_end')
    a(f's_cmp_ge_u32 s2, {nwg}'); a(f's_cbranch_scc1 {end}')
    common_prologue(a, L, L16)
    ngr = nwg // 32
    a(f's_and_b32 s{S_A}, s2, 31'); a(f's_lshr_b32 s{S_B}, s2, 5')
    a(f's_lshr_b32 s{S_T}, s{S_A}, 2'); a(f's_lshl_b32 s{S_T}, s{S_T}, 19'); a(f's_and_b32 s{S_T2}, s{S_A}, 3'); a(f's_lshl_b32 s{S_T2}, s{S_T2}, 8')
    a(f's_add_u32 s{S_OFF}, s{S_T}, s{S_T2}')
    load_wslices(a, [(KA_WO, 4*MB, 0, 'a', 0)], 1024, L, t0, t1, t2)
    a(f'v_and_b32 v{t0}, 7, v{L}'); a(f'v_lshlrev_b32 v{akm}, 4, v{t0}'); a(f'v_lshrrev_b32 v{t0}, 5, v{L}'); a(f'v_lshl_add_u32 v{akm}, v{t0}, 7, v{akm}')
    a(f'v_add_u32 v{akm}, {HB_KM}, v{akm}')
    pi_of(a, t0, L, t1); vpos16(a, av, t0, L, t1); a(f'v_add_u32 v{av}, {HB_V}, v{av}')
    a(f'v_lshlrev_b32 v{avm}, 2, v{t0}'); a(f'v_lshrrev_b32 v{t1}, 5, v{L}'); a(f'v_lshl_add_u32 v{avm}, v{t1}, 8, v{avm}'); a(f'v_add_u32 v{avm}, {HB_VM}, v{avm}')
    a(f's_lshl_b32 s{S_T}, s{S_W}, 11'); a(f'v_add_u32 v{vo}, s{S_T}, v{L16}')
    a(f's_lshl_b32 s{S_T}, s{S_W}, 13'); a(f'v_add_u32 v{xw}, s{S_T}, v{L16}')
    a(f'v_and_b32 v{t0}, 31, v{L}'); a(f'v_lshrrev_b32 v{t1}, 5, v{L}'); a(f'v_lshlrev_b32 v{t1}, 2, v{t1}'); a(f'v_sub_u32 v{t0}, v{t0}, v{t1}')
    a(f'v_mov_b32 v{t1}, {f2u(-1e30):#x}')
    for i in range(16):
        a(f'v_cmp_le_i32 vcc, {8*(i>>2)+(i&3)}, v{t0}'); a(f'v_cndmask_b32 v{CM+i}, v{t1}, 0, vcc')
    a(f's_and_b32 s{S_T}, s{S_A}, 28'); a(f's_add_u32 s{S_T}, s{S_T}, s{S_W}'); a(f's_lshl_b32 s{S_T}, s{S_T}, 21')
    a(f's_lshl_b32 s{S_T2}, s{S_B}, 15'); a(f's_add_u32 s{S_XO}, s{S_T}, s{S_T2}'); a(f's_add_u32 s{S_XO}, s{S_XO}, {H.HB}')
    a(f's_lshl_b32 s{S_T}, s{S_B}, 18'); a(f's_lshl_b32 s{S_T2}, s{S_A}, 13'); a(f's_add_u32 s{S_T}, s{S_T}, s{S_T2}'); a(f's_add_u32 s{S_T}, s{S_T}, {H.PT}')
    add64(a, S_OUT, S_WS, f's{S_T}')
    a(f's_mov_b32 s{S_M}, {f2u(math.log2(math.e)/math.sqrt(128.0)):#x}')
    lp = a.newlabel('Lt_loop')
    a.label(lp)
    def bl(n, dst, va, so, off): a(f'buffer_load_dword{n} {vr(dst, 4 if n else 1)}, v{va}, s[{S_WSRD}:{S_WSRD+3}], s{so} offen offset:{off}')
    a(f's_add_u32 s{S_T}, s{S_XO}, 4096'); a(f's_add_u32 s{S_T2}, s{S_XO}, {HB_Q}'); a(f's_add_u32 s{S_T3}, s{S_XO}, {HB_Q+4096}')
    for kb in range(8):
        bl('x4', K+4*kb, L16, S_XO if kb < 4 else S_T, (kb%4)*1024)
        bl('x4', Q+4*kb, L16, S_T2 if kb < 4 else S_T3, (kb%4)*1024)
    for kb in range(8): bl('x4', KM+4*kb, akm, S_XO, kb*256)
    for f in range(8): bl('x4', V+4*f, av, S_XO if f < 4 else S_T, (f%4)*1024)
    for t in range(4):
        for e in range(2): bl('', VM+2*t+e, avm, S_XO, t*512 + e*128)
    for kb in range(8):
        a(f's_waitcnt vmcnt({24 + 14 - 2*kb})')
        a(mf(SX, vr(K+4*kb,4), vr(Q+4*kb,4), vr(SX,16) if kb else vr(CM,16)))
    a('s_waitcnt vmcnt(16)')
    for kb in range(8): a(mf(SM, vr(KM+4*kb,4), vr(Q+4*kb,4), vr(SM,16) if kb else 0))
    E = [SX+i for i in range(16)] + [SM+i for i in range(4)]
    a(f'v_max3_f32 v{mx}, v{E[0]}, v{E[1]}, v{E[2]}')
    for i in range(3, 19, 2): a(f'v_max3_f32 v{mx}, v{mx}, v{E[i]}, v{E[i+1]}')
    a(f'v_max_f32 v{mx}, v{mx}, v{E[19]}')
    a(f'v_mov_b32 v{t0}, v{mx}'); a(f'v_permlane32_swap_b32 v{mx}, v{t0}'); a(f'v_max_f32 v{mx}, v{mx}, v{t0}')
    a(f'v_mul_f32 v{mx}, s{S_M}, v{mx}')
    for e in E: a(f'v_fma_f32 v{e}, v{e}, s{S_M}, -v{mx}')
    for e in E: a(f'v_exp_f32 v{e}, v{e}')
    a(f'v_add_f32 v{t1}, v{E[0]}, v{E[1]}')
    for e in E[2:]: a(f'v_add_f32 v{t1}, v{t1}, v{e}')
    a(f'v_mov_b32 v{t0}, v{t1}'); a(f'v_permlane32_swap_b32 v{t1}, v{t0}'); a(f'v_add_f32 v{t1}, v{t1}, v{t0}')
    a(f'v_rcp_f32 v{t1}, v{t1}')
    for e in E: a(f'v_mul_f32 v{e}, v{e}, v{t1}')
    for i in range(8): a(f'v_cvt_pk_bf16_f32 v{P+i}, v{SX+2*i}, v{SX+2*i+1}')
    for i in range(2): a(f'v_cvt_pk_bf16_f32 v{PM+i}, v{SM+2*i}, v{SM+2*i+1}')
    a('s_waitcnt vmcnt(0)')
    for t in range(4):
        o = OT+16*t
        a(f'v_mfma_f32_32x32x8_bf16 {vr(o,16)}, {vr(VM+2*t,2)}, {vr(PM,2)}, 0')
        for j in range(2): a(mf(o, vr(V+8*t+4*j,4), vr(P+4*j,4), vr(o,16)))
    a('s_barrier')
    for t in range(4):
        for j in range(2):
            o = OT+16*t+8*j
            for i in range(4): a(f'v_cvt_pk_bf16_f32 v{o+i}, v{o+2*i}, v{o+2*i+1}')
            a(f'ds_write_b128 v{xw}, {vr(o,4)} offset:{(2*t+j)*1024}')
    a('s_waitcnt lgkmcnt(0)'); a('s_barrier')
    gemm_core(a, L16, XR, [(ACC, 'a', 0, False)])
    pack_store(a, ACC, vo, S_OUT)
    add64(a, S_OUT, S_OUT, ngr*8*32768); a(f's_add_u32 s{S_XO}, s{S_XO}, {ngr*32768}')
    a(f's_add_u32 s{S_B}, s{S_B}, {ngr}'); a(f's_cmp_lt_u32 s{S_B}, 64'); a(f's_cbranch_scc1 {lp}')
    a.label(end); a('s_endpgm')
    return a.lines
```

```python
from asmlib import *
from layout import *
import math
import chain2 as C
from work import *

S_DBG = 44; S_SLOT = 36; S_TK = 37; S_SPIN = 38; S_PF = 39; S_FO = 40; S_N = 41; S_X = 42; S_SO = 43; S_SV = 46; S_PD = 47
L, L16 = 1, 2
VZ = 10; VF = 11
SPIN_MAX = 0x60000

class Mega:
    def __init__(self, stamps=False, chain_kw={}):
        self.a = Asm(); self.stamps = stamps; self.chain_kw = chain_kw
        self.end = 'Lm_end'; self.TO = 128 if stamps == 2 else 0
        self.tbsleep = chain_kw.pop('tbsleep', 8); self.wsleep = chain_kw.pop('wsleep', 2); self.perm = chain_kw.pop('perm', 0x65423170)
    def stamp(self, k, hs=None):
        if not self.stamps: return
        a = self.a; l = a.newlabel('Lst')
        if self.stamps == 2:
            kk = self.dmap.get((self.role, k))
            if kk is None: return
            a(f's_cmp_lg_u32 s{S_W}, 0'); a(f's_cbranch_scc1 {l}')
            a('s_memrealtime s[96:97]'); a(f's_load_dwordx2 s[100:101], s[0:1], {KA_DBG}'); a('s_waitcnt lgkmcnt(0)'); a('s_sub_u32 s96, s96, s99')
            a(f's_mov_b32 s98, {4*kk}')
            if hs is not None: a(f's_mul_i32 s97, s{hs}, 12'); a('s_add_u32 s98, s98, s97')
            a('s_mov_b64 exec, 1'); a(f'v_mov_b32 v{self.sv}, s96'); a(f'v_mov_b32 v{self.sv+1}, s98')
            a(f'global_atomic_umax v{self.sv+1}, v{self.sv}, s[100:101] sc1'); a('s_waitcnt vmcnt(0)'); a('s_mov_b64 exec, -1')
            a.label(l); return
        a(f's_cmp_lg_u32 s{S_W}, 0'); a(f's_cbranch_scc1 {l}')
        a('s_memrealtime s[96:97]'); a(f's_lshl_b32 s98, s99, 7'); a(f's_add_u32 s98, s98, {STAMP_OFF + 4*k}'); a('s_waitcnt lgkmcnt(0)')
        if hs is not None: a(f's_lshl_b32 s97, s{hs}, 5'); a('s_add_u32 s98, s98, s97')
        a('s_mov_b64 exec, 1'); a(f'v_writelane_b32 v{self.sv}, s96, 0'); a(f'v_writelane_b32 v{self.sv+1}, s98, 0')
        a(f'v_mov_b32 v{self.sv+1}, s98')
        a(f'global_store_dword v{self.sv+1}, v{self.sv}, s[{S_WS}:{S_WS+1}]'); a('s_waitcnt vmcnt(0)'); a('s_mov_b64 exec, -1')
        a.label(l)
    def mark(self, k, sgpr, val):
        if self.stamps is not True: return
        a = self.a; l = a.newlabel('Lmk')
        a(f's_cmp_lg_u32 s{sgpr}, {val}'); a(f's_cbranch_scc1 {l}')
        a('s_memrealtime s[96:97]'); a('s_waitcnt lgkmcnt(0)'); a(f's_mov_b32 s{70+k}, s96')
        a.label(l)
    def dump_marks(self):
        if self.stamps is not True: return
        a = self.a
        for k in range(16): a(f'v_mov_b32 v{16+k}, s{70+k}')
        a(f's_lshl_b32 s98, s99, 7'); a(f's_add_u32 s98, s98, {STAMP_OFF + 64}'); a('v_mov_b32 v12, s98')
        l = a.newlabel('Lmk'); a(f's_cmp_lg_u32 s{S_W}, 0'); a(f's_cbranch_scc1 {l}')
        for k in range(4): a(f'global_store_dwordx4 v12, {vr(16+4*k,4)}, s[{S_WS}:{S_WS+1}] offset:{16*k}')
        a.label(l)
    def count_wait(self, off, v, fail, st, sp):
        a = self.a; l1 = a.newlabel('Lcw'); l2 = a.newlabel('Lcw')
        a(f's_mov_b32 s{sp}, 0'); a(f'v_mov_b32 v{v+8}, 0')
        a.label(l1)
        for x in range(8): a(f'global_load_dword v{v+x}, v{v+8}, s[{S_DBG}:{S_DBG+1}] offset:{off+16*x} sc1')
        a('s_waitcnt vmcnt(0)')
        a(f'v_add3_u32 v{v+9}, v{v}, v{v+1}, v{v+2}'); a(f'v_add3_u32 v{v+9}, v{v+9}, v{v+3}, v{v+4}'); a(f'v_add3_u32 v{v+9}, v{v+9}, v{v+5}, v{v+6}'); a(f'v_add_u32 v{v+9}, v{v+9}, v{v+7}')
        a(f'v_readfirstlane_b32 s{st}, v{v+9}'); a(f's_cmp_ge_u32 s{st}, 256'); a(f's_cbranch_scc1 {l2}')
        a('s_sleep 4'); a(f's_add_u32 s{sp}, s{sp}, 1'); a(f's_cmp_lt_u32 s{sp}, {SPIN_MAX}'); a(f's_cbranch_scc1 {l1}')
        a(f's_branch {fail}')
        a.label(l2)
    def flags_ready(self): self.count_wait(132, 12, self.end, S_T, S_SPIN)
    def flag_off(self, base, idx_sgpr, sh=2):
        self.a(f's_lshl_b32 s{S_FO}, s{idx_sgpr}, {sh}'); self.a(f's_add_u32 s{S_FO}, s{S_FO}, {base}')
    def flag_issue(self, n):
        a = self.a
        a(f'v_min_u32 v{VZ}, {n-1}, v{L}'); a(f'v_lshl_add_u32 v{VZ}, v{VZ}, 8, s{S_FO}'); a(f'global_load_dword v{VF}, v{VZ}, s[{S_WS}:{S_WS+1}] sc1')
    def wait(self, n, sleep=None, mask=None, sh=8):
        a = self.a; l1 = a.newlabel('Lw'); l2 = a.newlabel('Lw')
        a(f's_mov_b32 s{S_SPIN}, 0')
        a(f'v_min_u32 v{VZ}, {n-1}, v{L}'); a(f'v_lshl_add_u32 v{VZ}, v{VZ}, {sh}, s{S_FO}')
        a.label(l1)
        a(f'global_load_dword v{VF}, v{VZ}, s[{S_WS}:{S_WS+1}] sc1'); a('s_waitcnt vmcnt(0)')
        a(f'v_cmp_eq_u32 vcc, 0, v{VF}')
        if mask is None: a(f's_cbranch_vccz {l2}')
        else: a(f's_and_b64 vcc, vcc, s[{mask}:{mask+1}]'); a(f's_cbranch_scc0 {l2}')
        a(f's_sleep {sleep or self.wsleep}')
        a(f's_add_u32 s{S_SPIN}, s{S_SPIN}, 1'); a(f's_cmp_lt_u32 s{S_SPIN}, {SPIN_MAX}'); a(f's_cbranch_scc1 {l1}')
        a(f's_branch {self.end}')
        a.label(l2)
    def set_word(self, base, line_sgpr, word_sgpr, s1=2, s2=8):
        a = self.a
        a(f's_lshl_b32 s{S_SO}, s{line_sgpr}, {s1}'); a(f's_lshl_b32 s{S_X}, s{word_sgpr}, {s2}'); a(f's_add_u32 s{S_SO}, s{S_SO}, s{S_X}'); a(f's_add_u32 s{S_SO}, s{S_SO}, {base}')
    def wsignal(self, val=None):
        a = self.a
        a(f'v_mov_b32 v{VZ}, s{S_SO}'); a(f'v_mov_b32 v{VF}, {"s%d" % val if val else "1"}')
        a('s_mov_b64 exec, 1'); a(f'global_store_dword v{VZ}, v{VF}, s[{S_WS}:{S_WS+1}] sc1'); a('s_mov_b64 exec, -1')
    def signal_wg(self):
        a = self.a; l = a.newlabel('Ls')
        a('s_waitcnt vmcnt(0)'); a('s_barrier'); a(f's_cmp_lg_u32 s{S_W}, 0'); a(f's_cbranch_scc1 {l}')
        self.wsignal(); a.label(l)

    def stream(self, ngr, xsrc, inflag, nin, tiles, epilogue, nst, outflag, store, mk=None):
        a = self.a; xa = 9; XR = 12
        lp = a.newlabel('Lg_loop'); have = a.newlabel('Lg_have'); go = a.newlabel('Lg_go'); fetch = a.newlabel('Lg_fetch'); done = a.newlabel('Lg_done')
        a(f's_lshl_b32 s{S_XO}, s{S_B}, 15'); a(f's_add_u32 s{S_XO}, s{S_XO}, {xsrc}'); a(f's_mov_b32 s{S_BUF}, {128*1024}')
        a('s_barrier')
        a.label(fetch)
        a(f's_mov_b32 s{S_PD}, 0')
        if inflag is not None:
            self.flag_off(inflag, S_B); self.wait(nin)
        if mk: self.mark(mk[0], S_B, mk[1])
        dma_x(a, L16, S_XO, S_BUF, 'sc1')
        a('s_waitcnt vmcnt(0)')
        a.label(go)
        a('s_barrier')
        if mk: self.mark(mk[0]+1, S_B, mk[1])
        a(f'v_add_u32 v{xa}, s{S_BUF}, v{L16}')
        a(f's_add_u32 s{S_TK}, s{S_B}, {ngr}'); a(f's_xor_b32 s{S_BUF}, s{S_BUF}, {128*1024}'); a(f's_add_u32 s{S_XO}, s{S_XO}, {ngr*32768}')
        if inflag is not None:
            a(f's_min_u32 s{S_T}, s{S_TK}, 63'); self.flag_off(inflag, S_T); self.flag_issue(nin)
        def pref():
            sk = a.newlabel('Lg_sk'); np_ = a.newlabel('Lg_np')
            a('s_waitcnt vmcnt(0)')
            if inflag is not None: a(f'v_cmp_eq_u32 vcc, 0, v{VF}')
            a(f's_cmp_eq_u32 s{S_PD}, 0'); a(f's_cbranch_scc1 {np_}')
            self.wsignal(S_SV if store else None)
            a.label(np_)
            a(f's_mov_b32 s{S_PF}, 0')
            a(f's_cmp_ge_u32 s{S_TK}, 64'); a(f's_cbranch_scc1 {sk}')
            if inflag is not None:
                a(f's_cbranch_vccnz {sk}')
            dma_x(a, L16, S_XO, S_BUF, 'sc1'); a(f's_mov_b32 s{S_PF}, 1')
            a.label(sk)
        gemm_core(a, xa, XR, tiles, {(14 if len(tiles) > 1 else 30): pref})
        epilogue()
        if mk: self.mark(mk[0]+2, S_B, mk[1])
        outflag()
        add64(a, S_OUT, S_OUT, ngr*32768)
        a(f's_mov_b32 s{S_B}, s{S_TK}')
        a(f's_cmp_eq_u32 s{S_PF}, 0'); a(f's_cbranch_scc1 {have}')
        first = a.newlabel('Lg_first')
        a(f's_cmp_lt_u32 s{S_B}, {2*ngr}'); a(f's_cbranch_scc1 {first}')
        a(f's_mov_b32 s{S_PD}, 1'); a(f's_waitcnt vmcnt({nst})'); a(f's_branch {go}')
        a.label(first)
        a('s_waitcnt vmcnt(0)'); self.wsignal(S_SV if store else None)
        if mk: self.mark(mk[0]+3, S_B, mk[1]+ngr)
        a(f's_mov_b32 s{S_PD}, 0'); a(f's_branch {go}')
        a.label(have)
        a('s_waitcnt vmcnt(0)'); self.wsignal(S_SV if store else None)
        if mk: self.mark(mk[0]+3, S_B, mk[1]+ngr)
        a(f's_cmp_lt_u32 s{S_B}, 64'); a(f's_cbranch_scc1 {fetch}')
        a('s_barrier')

    def proj_weights(self, isB, share=None, early=None):
        a = self.a
        a(f's_lshl_b32 s{S_OFF}, s{S_A}, 8')
        if isB: mats = [(KA_WK, 4*MB, 0, 'a', 128), (KA_WV, 4*MB, 0, 'v', 128), (KA_WQ, 4*MB, 0, 'a', 0)]; stride = 8192
        else: mats = [(KA_WQKV, 1536*1024, 1024, 'a', 128), (KA_WQKV, 1536*1024, 2048, 'v', 128), (KA_WQKV, 1536*1024, 0, 'a', 0)]; stride = 3072
        load_wslices(a, mats, stride, L, 3, 4, 5, share, early)
    def proj_run(self, half, isB, ngr, nowait=False):
        a = self.a; H = W.H[half]
        t0, t1, vq, vk, vv = 3, 4, 6, 7, 8; ACC = 28
        ro = (HB_Q, HB_K, HB_V) if isB else (0, H.KA - H.QA, H.VA - H.QA)
        a(f's_lshl_b32 s{S_T}, s{S_W}, 11')
        a(f's_add_u32 s{S_T2}, s{S_T}, {ro[0]}'); a(f'v_add_u32 v{vq}, s{S_T2}, v{L16}')
        a(f's_add_u32 s{S_T2}, s{S_T}, {ro[1]}'); a(f'v_add_u32 v{vk}, s{S_T2}, v{L16}')
        pi_of(a, t0, L, t1); vpos16(a, vv, t0, L, t1)
        a(f's_add_u32 s{S_T2}, s{S_T}, {ro[2]}'); a(f'v_add_u32 v{vv}, s{S_T2}, v{vv}')
        a(f's_lshl_b32 s{S_T}, s{S_A}, {21 if isB else 13}'); a(f's_lshl_b32 s{S_T2}, s{S_B}, 15'); a(f's_add_u32 s{S_T}, s{S_T}, s{S_T2}')
        a(f's_add_u32 s{S_T}, s{S_T}, {H.HB if isB else H.QA}'); add64(a, S_OUT, S_WS, f's{S_T}')
        a(f's_mov_b32 s{S_M}, {f2u(0.25*math.log2(math.e)):#x}')
        def epi():
            pack_store(a, ACC+16, vk, S_OUT, 'sc1'); pack_store(a, ACC+32, vv, S_OUT, 'sc1'); pack_store(a, ACC, vq, S_OUT, 'sc1', scale=None if isB else S_M)
        def outf():
            if isB:
                a(f's_and_b32 s{S_T}, s{S_B}, 1'); a(f's_lshl_b32 s{S_T}, s{S_T}, 2'); a(f's_add_u32 s{S_T}, s{S_T}, s{S_W}')
                self.set_word(FL(half, "HEAD"), S_A, S_T, 8, 5); a(f's_mov_b32 s{S_SV}, s{S_TK}')
            else:
                a(f's_lshl_b32 s{S_T}, s{S_A}, 2'); a(f's_add_u32 s{S_T}, s{S_T}, s{S_W}'); self.set_word(FL(half, "QKVA"), S_T, S_B, 11, 5)
        self.stream(ngr, H.XNB if isB else H.XNA, None if nowait else FL(half, 'XNB' if isB else 'XNA'), 4,
                    [(ACC+16, 'a', 128, False), (ACC+32, 'v', 128, True), (ACC, 'a', 0, False)], epi, 6, outf, isB, mk=(0, 0 if isB else 63) if half == 1 else None)
    def woa_run(self, half, ngr):
        a = self.a; H = W.H[half]; vo = 6; ACC = 28
        a(f's_lshl_b32 s{S_T}, s{S_W}, 11'); a(f'v_add_u32 v{vo}, s{S_T}, v{L16}')
        a(f's_lshl_b32 s{S_T}, s{S_A}, 13'); a(f's_lshl_b32 s{S_T2}, s{S_B}, 15'); a(f's_add_u32 s{S_T}, s{S_T}, s{S_T2}')
        a(f's_add_u32 s{S_T}, s{S_T}, {H.YA}'); add64(a, S_OUT, S_WS, f's{S_T}')
        def outf(): a(f's_lshl_b32 s{S_T}, s{S_A}, 2'); a(f's_add_u32 s{S_T}, s{S_T}, s{S_W}'); self.set_word(FL(half, "YA"), S_B, S_T)
        self.stream(ngr, H.OA, FL(half, 'OA'), 32, [(ACC, 'v', 128, False)], lambda: pack_store(a, ACC, vo, S_OUT, 'sc1'), 2, outf, False, mk=(0, 0) if half == 1 else None)
    def rb_run(self, half, kind, ngr):
        a = self.a; H = W.H[half]
        lp = a.newlabel('Lr_loop'); a.label(lp)
        mk = (4, 0) if (kind == 1 and half == 1) else ((4, 63) if (kind == 2 and half == 0) else None)
        def ready():
            self.flag_off(FL(half, 'YA' if kind == 1 else 'PT'), S_A); self.wait(16 if kind == 1 else 32)
            if mk: self.mark(mk[0], S_A, mk[1])
        xprev = KA_X if half == 0 else W.H[0].X2
        if kind == 1: rb_body(a, 1, xprev, half == 0, H.YA, 0, 32768, H.X1, False, H.XNB, 'sc1', 'sc1', ready)
        elif half == 0: rb_body(a, 8, H.X1, False, H.PT, 32768, 8*32768, H.X2, False, W.H[1].XNA, 'sc1', 'sc1', ready)
        else: rb_body(a, 8, H.X1, False, H.PT, 32768, 8*32768, KA_OUT, True, None, 'sc1', 'sc1', ready)
        if kind == 1 or half == 0:
            if mk: self.mark(mk[0]+2, S_A, mk[1])
            self.set_word(FL(half, 'XNB') if kind == 1 else FL(1, 'XNA'), S_A, S_B); self.signal_wg()
            if mk: self.mark(mk[0]+3, S_A, mk[1])
        a(f's_add_u32 s{S_A}, s{S_A}, {ngr}'); a(f's_cmp_lt_u32 s{S_A}, 64'); a(f's_cbranch_scc1 {lp}')

    def att_run(self, half, npg):
        a = self.a; H = W.H[half]
        t0, t1, t2, ak, av, idx, lw = range(3, 10); mx = 204
        Q = 12; QN = 16; K0 = 20; Cc = 24; O = 40; D = [56, 72, 88]; KF = 104; MG = 168
        pi_of(a, t0, L, t1)
        a(f'v_and_b32 v{t1}, 32, v{L}'); a(f'v_add_u32 v{ak}, v{t0}, v{t1}'); a(f'v_lshlrev_b32 v{ak}, 4, v{ak}')
        a(f'v_and_b32 v{t0}, 15, v{t0}'); a(f's_and_b32 s{S_T}, s{S_A}, 1'); a(f's_lshl_b32 s{S_T}, s{S_T}, 4'); a(f'v_add_u32 v{t0}, s{S_T}, v{t0}')
        vpos16(a, av, t0, L, t1)
        a(f'v_mov_b32 v{idx}, 0xdddd')
        a(f's_mul_i32 s{S_T}, s{S_W}, 3072'); a(f'v_add_u32 v{lw}, s{S_T}, v{L16}')
        if half == 0:
            a(f'v_mov_b32 v{t0}, 0x3f803f80')
            for i in range(128): a(f'v_accvgpr_write_b32 a{i}, v{t0}')
        a(f's_lshr_b32 s{S_T}, s{S_A}, 1'); self.flag_off(FL(half, 'QKVA'), S_T, 11); self.wait(56, sh=5)
        self.stamp(2 + 8*half)
        a(f's_lshl_b32 s{S_T}, s{S_A}, 10'); a(f's_lshl_b32 s{S_T2}, s{S_B}, 15'); a(f's_add_u32 s{S_T2}, s{S_T2}, s{S_T}')
        a(f's_add_u32 s{S_T3}, s{S_T2}, {H.QA}'); add64(a, S_IN, S_WS, f's{S_T3}')
        a(f's_add_u32 s{S_T3}, s{S_T2}, {H.OA}'); add64(a, S_OUT, S_WS, f's{S_T3}')
        a(f'global_load_dwordx4 {vr(QN,4)}, v{L16}, s[{S_IN}:{S_IN+1}] sc1')
        a(f's_add_u32 s{S_K0}, s{S_T}, {H.KA}')
        a(f'buffer_load_dwordx4 {vr(K0,4)}, v{ak}, s[{S_WSRD}:{S_WSRD+3}], s{S_K0} offen sc1')
        a(f's_lshl_b32 s{S_T2}, s{S_W}, 15'); a(f's_add_u32 s{S_K0}, s{S_K0}, s{S_T2}')
        a(f's_lshr_b32 s{S_K1}, s{S_A}, 1'); a(f's_lshl_b32 s{S_K1}, s{S_K1}, 11'); a(f's_add_u32 s{S_K1}, s{S_K1}, s{S_T2}'); a(f's_add_u32 s{S_K1}, s{S_K1}, {H.VA}')
        a(f's_mov_b32 s{S_M}, 0x0000ffff'); a(f's_mov_b32 s{S_M+1}, 0x0000ffff')
        def kv_tile(t):
            a(f's_add_u32 s{S_T}, s{S_K0}, {t*131072}')
            a(f'buffer_load_dwordx4 {vr(KF+4*t,4)}, v{ak}, s[{S_WSRD}:{S_WSRD+3}], s{S_T} offen sc1')
            a(f's_add_u32 s{S_T}, s{S_K1}, {t*131072}')
            a(f's_mov_b64 exec, s[{S_M}:{S_M+1}]')
            for b in range(2): a(f'buffer_load_dwordx4 {vr(8*t+4*b,4,"a")}, v{av}, s[{S_WSRD}:{S_WSRD+3}], s{S_T} offen offset:{1024*b} sc1')
            a('s_mov_b64 exec, -1')
        def late_tile(t):
            l = a.newlabel('La_lt'); a(f's_cmp_eq_u32 s{S_PD}, 0'); a(f's_cbranch_scc1 {l}')
            a(f's_add_u32 s{S_T}, s{S_W}, {4*t}'); a(f's_lshl_b64 s[{S_P}:{S_P+1}], 1, s{S_T}')
            self.wait(64, mask=S_P, sh=5)
            if half and t == 15: self.mark(0, S_B, 0)
            kv_tile(t); a('s_waitcnt vmcnt(0)')
            if t == 15: a(f's_mov_b32 s{S_PD}, 0')
            a.label(l)
        for t in range(14): kv_tile(t)
        a(f's_mov_b32 s{S_PD}, 1')
        a(f's_mov_b32 s{S_BUF}, 0'); a(f's_mov_b32 s{S_CNT}, 0'); a(f's_mov_b32 s{S_PF}, 0')
        a('s_barrier')
        lp = a.newlabel('La_loop'); run = a.newlabel('La_run'); slow = a.newlabel('La_slow'); nom = a.newlabel('La_nom'); noq = a.newlabel('La_noq'); out = a.newlabel('La_out')
        def rowmax(src, first):
            if first: a(f'v_max3_f32 v{mx}, v{src}, v{src+1}, v{src+2}'); rest = list(range(3, 16))
            else: rest = list(range(16))
            while len(rest) >= 2:
                a(f'v_max3_f32 v{mx}, v{mx}, v{src+rest[0]}, v{src+rest[1]}'); rest = rest[2:]
            if rest: a(f'v_max_f32 v{mx}, v{mx}, v{src+rest[0]}')
        def halfmax():
            a(f'v_mov_b32 v{t0}, v{mx}'); a(f'v_permlane32_swap_b32 v{mx}, v{t0}'); a(f'v_max_f32 v{mx}, v{mx}, v{t0}')
        def pending():
            l = a.newlabel('La_p'); a(f's_cmp_eq_u32 s{S_PF}, 0'); a(f's_cbranch_scc1 {l}')
            a('s_waitcnt vmcnt(0)'); self.wsignal(); a(f's_mov_b32 s{S_PF}, 0')
            if half: self.mark(3, S_B, 0)
            a.label(l)
        a('s_waitcnt vmcnt(0)')
        if half: self.mark(1, S_B, 0)
        a.label(lp)
        for i in range(4): a(f'v_mov_b32 v{Q+i}, v{QN+i}')
        a(f's_add_u32 s{S_TK}, s{S_B}, {npg}'); add64(a, S_IN, S_IN, npg*32768)
        a(f's_cmp_ge_u32 s{S_TK}, 64'); a(f's_cbranch_scc1 {noq}')
        a(f'global_load_dwordx4 {vr(QN,4)}, v{L16}, s[{S_IN}:{S_IN+1}] sc1')
        a.label(noq)
        a(mf(D[0], vr(K0,4), vr(Q,4), 0))
        rowmax(D[0], True); halfmax()
        a(f's_mov_b32 s{S_XO}, 0')
        a.label(run)
        for i in range(16): a(f'v_sub_f32 v{Cc+i}, 0, v{mx}')
        for i in range(16): a(f'v_mov_b32 v{O+i}, 0')
        a(mf(D[0], vr(KF,4), vr(Q,4), vr(Cc,16)))
        a(mf(D[1], vr(KF+4,4), vr(Q,4), vr(Cc,16)))
        def pv(t, b): a(f'v_smfmac_f32_32x32x32_bf16 {vr(O,16)}, {vr(8*t+4*b,4,"a")}, {vr(D[t%3]+8*b,8)}, v{idx}')
        for t in range(16):
            d = D[t % 3]
            for i in range(16):
                a(f'v_exp_f32 v{d+i}, v{d+i}')
                if i == 2 and t > 0: pv(t-1, 1)
                if i == 6 and t + 2 >= 14 and t + 2 < 16: late_tile(t+2)
                if i == 6 and t + 2 < 16: a(mf(D[(t+2)%3], vr(KF+4*(t+2),4), vr(Q,4), vr(Cc,16)))
                if i == 11: pv(t, 0)
            if t == 5: pending()
        pv(15, 1)
        a(f'v_add_u32 v{t1}, s{S_BUF}, v{lw}')
        for j in range(3): a(f'ds_write_b128 v{t1}, {vr(O+4*j,4)} offset:{1024*j}')
        a('s_waitcnt vmcnt(0) lgkmcnt(0)'); a('s_barrier')
        a(f'v_add_u32 v{t1}, s{S_BUF}, v{L16}')
        for w in range(4): a(f'ds_read_b32 v{MG+w}, v{t1} offset:{3072*w+2048}')
        a('s_waitcnt lgkmcnt(0)')
        a(f'v_add_f32 v{MG}, v{MG}, v{MG+1}'); a(f'v_add_f32 v{MG+2}, v{MG+2}, v{MG+3}'); a(f'v_add_f32 v{t2}, v{MG}, v{MG+2}')
        a(f's_xor_b32 s{S_BUF}, s{S_BUF}, 16384')
        a(f'v_cmp_nge_f32 vcc, {f2u(2.0**90):#x}, v{t2}')
        a(f's_cbranch_vccnz {slow}')
        fin = a.newlabel('La_fin'); a.label(fin)
        a(f's_and_b32 s{S_T}, s{S_CNT}, 3'); a(f's_add_u32 s{S_CNT}, s{S_CNT}, 1')
        a(f's_cmp_lg_u32 s{S_T}, s{S_W}'); a(f's_cbranch_scc1 {nom}')
        for w in range(4):
            for j in range(2): a(f'ds_read_b128 {vr(MG+8*w+4*j,4)}, v{t1} offset:{3072*w+1024*j}')
        a(f'v_rcp_f32 v{t2}, v{t2}')
        a('s_waitcnt lgkmcnt(0)')
        for i in range(8):
            a(f'v_add_f32 v{MG+i}, v{MG+i}, v{MG+8+i}'); a(f'v_add_f32 v{MG+16+i}, v{MG+16+i}, v{MG+24+i}')
            a(f'v_add_f32 v{MG+i}, v{MG+i}, v{MG+16+i}'); a(f'v_mul_f32 v{MG+i}, v{MG+i}, v{t2}')
        for i in range(4): a(f'v_cvt_pk_bf16_f32 v{MG+i}, v{MG+2*i}, v{MG+2*i+1}')
        a(f'global_store_dwordx4 v{L16}, {vr(MG,4)}, s[{S_OUT}:{S_OUT+1}] sc1')
        self.set_word(FL(half, 'OA'), S_B, S_A); a(f's_mov_b32 s{S_PF}, 1')
        if half: self.mark(2, S_B, 0)
        a(f's_cmp_ge_u32 s{S_B}, {npg}'); a(f's_cbranch_scc1 {nom}')
        pending()
        a.label(nom)
        add64(a, S_OUT, S_OUT, npg*32768)
        a(f's_mov_b32 s{S_B}, s{S_TK}')
        a(f's_cmp_lt_u32 s{S_B}, 64'); a(f's_cbranch_scc1 {lp}')
        pending()
        a(f's_branch {out}')
        a.label(slow)
        a(f's_cmp_lg_u32 s{S_XO}, 0'); a(f's_cbranch_scc1 {fin}')
        a(f's_mov_b32 s{S_XO}, 1')
        for t in range(16):
            a(mf(D[t%2], vr(KF+4*t,4), vr(Q,4), 0))
            rowmax(D[t%2], t == 0)
        halfmax()
        a(f'ds_write_b32 v{lw}, v{mx} offset:32768'); a('s_waitcnt lgkmcnt(0)'); a('s_barrier')
        for w in range(4): a(f'ds_read_b32 v{MG+w}, v{L16} offset:{32768+3072*w}')
        a('s_waitcnt lgkmcnt(0)')
        a(f'v_max3_f32 v{mx}, v{MG}, v{MG+1}, v{MG+2}'); a(f'v_max_f32 v{mx}, v{mx}, v{MG+3}')
        a(f's_branch {run}')
        a.label(out)
        a('s_barrier')

    def tb_weights(self):
        a = self.a
        a(f's_lshr_b32 s{S_T}, s{S_A}, 2'); a(f's_lshl_b32 s{S_T}, s{S_T}, 19'); a(f's_and_b32 s{S_T2}, s{S_A}, 3'); a(f's_lshl_b32 s{S_T2}, s{S_T2}, 8')
        a(f's_add_u32 s{S_OFF}, s{S_T}, s{S_T2}')
        load_wslices(a, [(KA_WO, 4*MB, 0, 'a', 128)], 1024, L, 3, 4, 5)
    def tb_run(self, half, ngr):
        a = self.a; H = W.H[half]
        t0, t1, akm, av, avm, vo, xw = range(3, 10); mx = 240; FG = 244
        XR = 12; CM = 28; SX = 44; SM = 60; Q = 76; K = 108; KM = 140; V = 172; VM = 204; P = 212; PM = 220; ACC = 224
        OT = Q
        a(f'v_and_b32 v{t0}, 7, v{L}'); a(f'v_lshlrev_b32 v{akm}, 4, v{t0}'); a(f'v_lshrrev_b32 v{t0}, 5, v{L}'); a(f'v_lshl_add_u32 v{akm}, v{t0}, 7, v{akm}')
        a(f'v_add_u32 v{akm}, {HB_KM}, v{akm}')
        pi_of(a, t0, L, t1); vpos16(a, av, t0, L, t1); a(f'v_add_u32 v{av}, {HB_V}, v{av}')
        a(f'v_lshlrev_b32 v{avm}, 2, v{t0}'); a(f'v_lshrrev_b32 v{t1}, 5, v{L}'); a(f'v_lshl_add_u32 v{avm}, v{t1}, 8, v{avm}'); a(f'v_add_u32 v{avm}, {HB_VM}, v{avm}')
        a(f's_lshl_b32 s{S_T}, s{S_W}, 11'); a(f'v_add_u32 v{vo}, s{S_T}, v{L16}')
        a(f's_lshl_b32 s{S_T}, s{S_W}, 13'); a(f'v_add_u32 v{xw}, s{S_T}, v{L16}')
        a(f'v_and_b32 v{t0}, 31, v{L}'); a(f'v_lshrrev_b32 v{t1}, 5, v{L}'); a(f'v_lshlrev_b32 v{t1}, 2, v{t1}'); a(f'v_sub_u32 v{t0}, v{t0}, v{t1}')
        a(f'v_mov_b32 v{t1}, {f2u(-1e30):#x}')
        for i in range(16):
            a(f'v_cmp_le_i32 vcc, {8*(i>>2)+(i&3)}, v{t0}'); a(f'v_cndmask_b32 v{CM+i}, v{t1}, 0, vcc')
        a(f's_and_b32 s{S_T}, s{S_A}, 28'); a(f's_add_u32 s{S_T}, s{S_T}, s{S_W}')
        a(f's_lshl_b32 s{S_K0}, s{S_T}, 8'); a(f's_add_u32 s{S_K0}, s{S_K0}, {FL(half, "HEAD")}')
        a(f's_lshl_b32 s{S_T}, s{S_T}, 21')
        a(f's_lshl_b32 s{S_T2}, s{S_B}, 15'); a(f's_add_u32 s{S_XO}, s{S_T}, s{S_T2}'); a(f's_add_u32 s{S_XO}, s{S_XO}, {H.HB}')
        a(f's_lshl_b32 s{S_T}, s{S_B}, 18'); a(f's_lshl_b32 s{S_T2}, s{S_A}, 13'); a(f's_add_u32 s{S_T}, s{S_T}, s{S_T2}'); a(f's_add_u32 s{S_T}, s{S_T}, {H.PT}')
        add64(a, S_OUT, S_WS, f's{S_T}')
        a(f's_mov_b32 s{S_M}, {f2u(math.log2(math.e)/math.sqrt(128.0)):#x}')
        a(f's_mov_b32 s{S_N}, 0'); a(f's_mov_b32 s{S_K1}, 0')
        def bl(n, dst, va, so, off): a(f'buffer_load_dword{n} {vr(dst, 4 if n else 1)}, v{va}, s[{S_WSRD}:{S_WSRD+3}], s{so} offen offset:{off} sc1')
        def poll(which):
            l1 = a.newlabel('Lt_p'); l2 = a.newlabel('Lt_p'); l3 = a.newlabel('Lt_p')
            a(f's_mov_b32 s{S_SPIN}, 0'); a(f's_branch {l3}')
            a.label(l1)
            if which == S_N:
                a(f'v_mov_b32 v{VZ}, s{S_K0}')
                _ = [a(f'global_load_dword v{FG+i}, v{VZ}, s[{S_WS}:{S_WS+1}] offset:{32*i} sc1') for i in range(8)]; a('s_waitcnt vmcnt(0)')
                a(f'v_min3_u32 v{FG}, v{FG}, v{FG+1}, v{FG+2}'); a(f'v_min3_u32 v{FG}, v{FG}, v{FG+3}, v{FG+4}'); a(f'v_min3_u32 v{FG}, v{FG}, v{FG+5}, v{FG+6}'); a(f'v_min_u32 v{FG}, v{FG}, v{FG+7}')
            else:
                a(f's_add_u32 s{S_X}, s{S_K0}, {FL(half, "CHP") - FL(half, "HEAD")}'); a(f'v_mov_b32 v{VZ}, s{S_X}')
                a(f'global_load_dword v{FG}, v{VZ}, s[{S_WS}:{S_WS+1}] sc1'); a('s_waitcnt vmcnt(0)')
            a(f'v_readfirstlane_b32 s{which}, v{FG}')
            a(f's_cmp_gt_u32 s{which}, s{S_B}'); a(f's_cbranch_scc1 {l2}')
            a(f's_sleep {self.tbsleep}')
            a(f's_add_u32 s{S_SPIN}, s{S_SPIN}, 1'); a(f's_cmp_ge_u32 s{S_SPIN}, {SPIN_MAX}'); a(f's_cbranch_scc1 {self.end}')
            a.label(l3)
            a(f's_cmp_gt_u32 s{which}, s{S_B}'); a(f's_cbranch_scc0 {l1}')
            a.label(l2)
        lp = a.newlabel('Lt_loop')
        a.label(lp)
        poll(S_N)
        a(f's_add_u32 s{S_T}, s{S_XO}, 4096'); a(f's_add_u32 s{S_T2}, s{S_XO}, {HB_Q}'); a(f's_add_u32 s{S_T3}, s{S_XO}, {HB_Q+4096}')
        for kb in range(8):
            bl('x4', K+4*kb, L16, S_XO if kb < 4 else S_T, (kb%4)*1024)
            bl('x4', Q+4*kb, L16, S_T2 if kb < 4 else S_T3, (kb%4)*1024)
        for f in range(8): bl('x4', V+4*f, av, S_XO if f < 4 else S_T, (f%4)*1024)
        poll(S_K1)
        if half == 0: self.mark(4, S_B, 63)
        for kb in range(8): bl('x4', KM+4*kb, akm, S_XO, kb*256)
        for t in range(4):
            for e in range(2): bl('', VM+2*t+e, avm, S_XO, t*512 + e*128)
        for kb in range(8):
            a(f's_waitcnt vmcnt({24 + 14 - 2*kb})')
            a(mf(SX, vr(K+4*kb,4), vr(Q+4*kb,4), vr(SX,16) if kb else vr(CM,16)))
        a('s_waitcnt vmcnt(8)')
        if half == 0: self.mark(5, S_B, 63)
        for kb in range(8): a(mf(SM, vr(KM+4*kb,4), vr(Q+4*kb,4), vr(SM,16) if kb else 0))
        E = [SX+i for i in range(16)] + [SM+i for i in range(4)]
        a(f'v_max3_f32 v{mx}, v{E[0]}, v{E[1]}, v{E[2]}')
        for i in range(3, 19, 2): a(f'v_max3_f32 v{mx}, v{mx}, v{E[i]}, v{E[i+1]}')
        a(f'v_max_f32 v{mx}, v{mx}, v{E[19]}')
        a(f'v_mov_b32 v{t0}, v{mx}'); a(f'v_permlane32_swap_b32 v{mx}, v{t0}'); a(f'v_max_f32 v{mx}, v{mx}, v{t0}')
        a(f'v_mul_f32 v{mx}, s{S_M}, v{mx}')
        for e in E: a(f'v_fma_f32 v{e}, v{e}, s{S_M}, -v{mx}')
        for e in E: a(f'v_exp_f32 v{e}, v{e}')
        a(f'v_add_f32 v{t1}, v{E[0]}, v{E[1]}')
        for e in E[2:]: a(f'v_add_f32 v{t1}, v{t1}, v{e}')
        a(f'v_mov_b32 v{t0}, v{t1}'); a(f'v_permlane32_swap_b32 v{t1}, v{t0}'); a(f'v_add_f32 v{t1}, v{t1}, v{t0}')
        a(f'v_rcp_f32 v{t1}, v{t1}')
        for e in E: a(f'v_mul_f32 v{e}, v{e}, v{t1}')
        for i in range(8): a(f'v_cvt_pk_bf16_f32 v{P+i}, v{SX+2*i}, v{SX+2*i+1}')
        for i in range(2): a(f'v_cvt_pk_bf16_f32 v{PM+i}, v{SM+2*i}, v{SM+2*i+1}')
        a('s_waitcnt vmcnt(0)')
        for t in range(4):
            o = OT+16*t
            a(f'v_mfma_f32_32x32x8_bf16 {vr(o,16)}, {vr(VM+2*t,2)}, {vr(PM,2)}, 0')
            for j in range(2): a(mf(o, vr(V+8*t+4*j,4), vr(P+4*j,4), vr(o,16)))
        for t in range(4):
            for j in range(2):
                o = OT+16*t+8*j
                for i in range(4): a(f'v_cvt_pk_bf16_f32 v{o+i}, v{o+2*i}, v{o+2*i+1}')
                a(f'ds_write_b128 v{xw}, {vr(o,4)} offset:{(2*t+j)*1024}')
        a('s_waitcnt lgkmcnt(0)'); a('s_barrier')
        gemm_core(a, L16, XR, [(ACC, 'a', 128, False)])
        pack_store(a, ACC, vo, S_OUT, 'sc1')
        if half == 0: self.mark(6, S_B, 63)
        self.set_word(FL(half, 'PT'), S_B, S_A); self.signal_wg()
        if half == 0: self.mark(7, S_B, 63)
        add64(a, S_OUT, S_OUT, ngr*8*32768); a(f's_add_u32 s{S_XO}, s{S_XO}, {ngr*32768}')
        a(f's_add_u32 s{S_B}, s{S_B}, {ngr}'); a(f's_cmp_lt_u32 s{S_B}, 64'); a(f's_cbranch_scc1 {lp}')

    def build(self):
        a = self.a; end = self.end
        a(f's_cmp_ge_u32 s2, 256'); a(f's_cbranch_scc1 {end}')
        if self.stamps == 2: a('s_memrealtime s[96:97]')
        a(f's_load_dwordx2 s[{S_DBG}:{S_DBG+1}], s[0:1], {KA_DBG}')
        common_prologue(a, L, L16)
        lw = a.newlabel('Le'); lo = a.newlabel('Le'); ls = a.newlabel('Le'); lg = a.newlabel('Le'); lz = a.newlabel('Le')
        a(f's_getreg_b32 s{S_X}, hwreg(HW_REG_XCC_ID, 0, 3)')
        a(f's_lshl_b32 s{S_T}, s{S_X}, 4'); a(f'v_mov_b32 v3, s{S_T}'); a('v_mov_b32 v4, 1')
        a(f's_cmp_eq_u32 s{S_W}, 0'); a(f's_cbranch_scc1 {lz}')
        a(f's_cmp_lg_u32 s{S_W}, 1'); a(f's_cbranch_scc1 {lw}')
        a(f's_lshl_b32 s{S_T}, s2, 10'); a(f's_add_u32 s{S_T}, s{S_T}, {W.FLAGS}'); a(f'v_add_u32 v5, s{S_T}, v{L16}')
        for i in range(4): a(f'v_mov_b32 v{12+i}, 0')
        a(f'global_store_dwordx4 v5, v[12:15], s[{S_WS}:{S_WS+1}] sc1'); a('s_waitcnt vmcnt(0)')
        a('s_mov_b64 exec, 1'); a(f'global_atomic_add v3, v4, s[{S_DBG}:{S_DBG+1}] offset:132 sc1'); a('s_mov_b64 exec, -1')
        a(f's_branch {lw}')
        a.label(lz)
        a('s_mov_b64 exec, 1')
        a(f'global_atomic_add v5, v3, v4, s[{S_DBG}:{S_DBG+1}] offset:{self.TO} sc0 sc1'); a('s_waitcnt vmcnt(0)')
        a(f'v_readfirstlane_b32 s{S_TK}, v5')
        a(f's_lshl_b32 s{S_SLOT}, s{S_X}, 5'); a(f's_add_u32 s{S_SLOT}, s{S_SLOT}, s{S_TK}')
        a(f's_cmp_lt_u32 s{S_TK}, 32'); a(f's_cbranch_scc1 {lg}')
        a('v_mov_b32 v3, 136'); a(f'global_atomic_add v5, v3, v4, s[{S_DBG}:{S_DBG+1}] sc0 sc1'); a('s_waitcnt vmcnt(0)')
        a(f'v_readfirstlane_b32 s{S_TK}, v5')
        self.count_wait(self.TO, 12, ls, S_T, S_SPIN)
        a.label(ls)
        for x in range(8):
            a(f'v_readfirstlane_b32 s{S_T}, v{12+x}'); a(f's_min_u32 s{S_T}, s{S_T}, 32')
            a(f's_add_u32 s{S_SLOT}, s{S_T}, s{S_TK}'); a(f's_add_u32 s{S_SLOT}, s{S_SLOT}, {32*x}')
            a(f's_sub_u32 s{S_T}, 32, s{S_T}'); a(f's_cmp_lt_u32 s{S_TK}, s{S_T}'); a(f's_cbranch_scc1 {lg}')
            a(f's_sub_u32 s{S_TK}, s{S_TK}, s{S_T}')
        a(f's_mov_b32 s{S_SLOT}, 256')
        a.label(lg)
        a(f'v_mov_b32 v3, 0'); a(f'v_mov_b32 v4, s{S_SLOT}'); a('ds_write_b32 v3, v4'); a('s_waitcnt lgkmcnt(0)')
        a('s_mov_b64 exec, -1')
        a.label(lw)
        a('s_barrier'); a('v_mov_b32 v3, 0'); a('ds_read_b32 v4, v3'); a('s_waitcnt lgkmcnt(0)'); a(f'v_readfirstlane_b32 s{S_SLOT}, v4'); a('s_barrier')
        a(f's_lshr_b32 s{S_T}, s{S_SLOT}, 5'); a(f's_lshl_b32 s{S_T2}, s{S_T}, 2'); a(f's_lshr_b32 s{S_T2}, {self.perm:#x}, s{S_T2}'); a(f's_and_b32 s{S_T2}, s{S_T2}, 7')
        a(f's_cmp_lt_u32 s{S_T}, 8'); a(f's_cselect_b32 s{S_T2}, s{S_T2}, 8'); a(f's_and_b32 s{S_SLOT}, s{S_SLOT}, 31'); a(f's_lshl_b32 s{S_T2}, s{S_T2}, 5'); a(f's_add_u32 s{S_SLOT}, s{S_SLOT}, s{S_T2}')
        if self.stamps: a(f's_mov_b32 s99, s{S_SLOT}')
        self.role = 'all'
        self.dmap = {('all',0):0, ('ch',1):1, ('ch',2):2, ('ch',3):3, ('ch',4):4, ('gw',1):8, ('gw',2):9, ('gw',3):10, ('pb',1):11, ('ms',12):12, ('gw',4):13, ('pb',3):14}
        if self.stamps == 2:
            a('s_and_b32 s99, s96, 0xfff00000')
        self.sv = 10
        if self.stamps: _ = [a(f's_mov_b32 s{70+k}, 0') for k in range(16)]
        self.stamp(0)
        Lch, Lpb, Lgw, Lms, Lpa = [a.newlabel(n) for n in ('Lchain', 'Lpb', 'Lgw', 'Lms', 'Lpa')]
        a(f's_cmp_lt_u32 s{S_SLOT}, 32'); a(f's_cbranch_scc0 Lnot_chain')
        self.jump(Lch)
        a.label('Lnot_chain')
        a(f's_cmp_lt_u32 s{S_SLOT}, 96'); a(f's_cbranch_scc1 {Lpb}')
        a(f's_cmp_lt_u32 s{S_SLOT}, 224'); a(f's_cbranch_scc1 {Lgw}')
        a(f's_cmp_lt_u32 s{S_SLOT}, 240'); a(f's_cbranch_scc1 {Lms}')
        a(f's_cmp_lt_u32 s{S_SLOT}, 256'); a(f's_cbranch_scc1 {Lpa}')
        a.label(end); a('s_endpgm')
        a.label(Lms); self.role = 'ms'
        a(f's_and_b32 s{S_A}, s{S_SLOT}, 3'); a(f's_lshl_b32 s{S_OFF}, s{S_A}, 8')
        load_wslices(a, [(KA_WOA, 512*1024, 0, 'v', 128)], 1024, L, 3, 4, 5)
        self.flags_ready()
        for half in range(2):
            a(f's_and_b32 s{S_A}, s{S_SLOT}, 3'); a(f's_bfe_u32 s{S_B}, s{S_SLOT}, 0x20002'); self.woa_run(half, 4); self.stamp(3 + 8*half)
            a(f's_bfe_u32 s{S_A}, s{S_SLOT}, 0x20002'); a(f's_and_b32 s{S_B}, s{S_SLOT}, 3')
            self.rb_run(half, 2, 4); self.stamp(4 + 8*half)
        self.dump_marks(); a('s_endpgm')
        a.label(Lpa); self.role = 'pa'
        a(f's_and_b32 s{S_A}, s{S_SLOT}, 3'); self.proj_weights(False); self.flags_ready()
        for half in range(2):
            a(f's_bfe_u32 s{S_A}, s{S_SLOT}, 0x20002'); a(f's_and_b32 s{S_B}, s{S_SLOT}, 3'); self.rb_run(half, 1, 4); self.stamp(3 + 8*half)
            if half == 0:
                a(f's_and_b32 s{S_A}, s{S_SLOT}, 3'); a(f's_bfe_u32 s{S_B}, s{S_SLOT}, 0x20002'); self.proj_run(1, False, 4); self.stamp(4)
        self.dump_marks(); a('s_endpgm')
        a.label(Lpb); self.role = 'pb'
        def pb_ids():
            a(f's_sub_u32 s{S_T}, s{S_SLOT}, 32'); a(f's_lshr_b32 s{S_A}, s{S_T}, 5'); a(f's_lshl_b32 s{S_A}, s{S_A}, 4'); a(f's_and_b32 s{S_T2}, s{S_T}, 15')
            a(f's_add_u32 s{S_A}, s{S_A}, s{S_T2}'); a(f's_bfe_u32 s{S_B}, s{S_T}, 0x10004')
        pb_ids(); self.proj_weights(True); self.flags_ready(); self.stamp(1)
        for half in range(2):
            pb_ids(); self.proj_run(half, True, 2); self.stamp(3 + 8*half)
        self.dump_marks(); a('s_endpgm')
        a.label(Lgw); self.role = 'gw'
        self.end = 'Lm_end2'
        def pa_ids(): a(f's_sub_u32 s{S_T}, s{S_SLOT}, 96'); a(f's_lshr_b32 s{S_A}, s{S_T}, 5'); a(f's_and_b32 s{S_B}, s{S_T}, 31')
        def first_ln():
            for k in range(2):
                a(f's_sub_u32 s{S_T}, s{S_SLOT}, 96'); a(f's_lshr_b32 s{S_B}, s{S_T}, 5'); a(f's_and_b32 s{S_A}, s{S_T}, 31'); a(f's_add_u32 s{S_A}, s{S_A}, {32*k}')
                rb_body(a, 0, KA_X, True, 0, 0, 0, None, False, W.H[0].XNA, '', 'sc1', ldsoff=144*1024 + 512*k, vb=20)
            self.flags_ready()
            a('s_barrier')
            l = a.newlabel('Lfl'); a(f's_cmp_ge_u32 s{S_W}, 2'); a(f's_cbranch_scc1 {l}')
            a(f's_lshl_b32 s{S_T}, s{S_W}, 5'); a(f's_sub_u32 s{S_A}, s{S_A}, s{S_T}'); self.set_word(FL(0, 'XNA'), S_A, S_B); self.wsignal()
            a.label(l)
            pa_ids()
        pa_ids(); self.proj_weights(False, (S_B, 32), first_ln); self.proj_run(0, False, 32); self.stamp(1)
        def gw_ids():
            a(f's_sub_u32 s{S_T}, s{S_SLOT}, 96'); a(f's_lshr_b32 s{S_A}, s{S_T}, 5'); a(f's_lshl_b32 s{S_A}, s{S_A}, 3'); a(f's_and_b32 s{S_T2}, s{S_T}, 7')
            a(f's_add_u32 s{S_A}, s{S_A}, s{S_T2}'); a(f's_bfe_u32 s{S_B}, s{S_T}, 0x20003')
        for half in range(2):
            gw_ids(); self.att_run(half, 4); self.stamp(3 + 8*half)
            gw_ids()
            if half == 0: self.tb_weights()
            self.tb_run(half, 4); self.stamp(4 + 8*half)
        self.dump_marks()
        a.label('Lm_end2'); a('s_endpgm')
        a.label(Lch); self.role = 'ch'
        self.end = 'Lm_end3'; end = self.end
        r = C.ChainRegs(); self.sv = r.R
        a(f's_mov_b32 s{C.S_H}, s{S_SLOT}')
        C.chain_setup(a, r)
        self.stamp(1)
        T = r.R; lslow = a.newlabel('Lcslow'); lfast = a.newlabel('Lcfast')
        self.count_wait(132, T, end, C.S_T, C.S_SPIN); self.count_wait(self.TO, T, end, C.S_T, C.S_SPIN)
        a(f'v_readfirstlane_b32 s{C.S_T}, v{T}')
        add64(a, S_DBG, S_WS, FL(0, 'EL'))
        if self.chain_kw.get('force_slow'): a(f's_mov_b32 s{C.S_T}, 0')
        a(f's_cmp_ge_u32 s{C.S_T}, 32'); a(f's_cbranch_scc1 {lfast}')
        a(f's_branch {lslow}')
        a.label(end); a('s_endpgm')
        kw = {k: v for k, v in self.chain_kw.items() if k != 'force_slow'}
        for lbl, stf in ((lfast, ''), (lslow, 'sc1')):
            a.label(lbl)
            a(f's_mov_b32 s{C.S_EP}, 0'); a(f's_mov_b32 s{C.S_EM}, 0'); a(f's_mov_b32 s{C.S_HALF}, 0')
            C.chain_init_comm(a, r, stf, True)
            a(f's_mov_b32 s{C.S_T2}, 1280'); C.group_barrier(a, r, C.S_T2, 32, end)
            lh = a.newlabel('Lch_half'); a.label(lh)
            self.stamp(2, C.S_HALF)
            C.chain_start(a, r, end, 1, started=lambda: self.stamp(3, C.S_HALF))
            C.chain_all_waves(a, r, stf, end, fused=1, **(dict(kw, ef='sc1') if stf else kw))
            self.stamp(4, C.S_HALF)
            if kw.get('stamps'):
                for k in range(12): a(f'v_mov_b32 v{k}, s{84+k}')
                a(f's_lshl_b32 s{C.S_T}, s{C.S_H}, 2'); a(f's_add_u32 s{C.S_T}, s{C.S_T}, s{C.S_W}'); a(f's_lshl_b32 s{C.S_T}, s{C.S_T}, 6')
                a(f's_lshl_b32 s{C.S_T2}, s{C.S_HALF}, 13'); a(f's_add_u32 s{C.S_T}, s{C.S_T}, s{C.S_T2}')
                a(f's_add_u32 s{C.S_T}, s{C.S_T}, {STAMP_OFF + 32768}'); a(f'v_mov_b32 v16, s{C.S_T}')
                for k in range(3): a(f'global_store_dwordx4 v16, {vr(4*k,4)}, s[{S_WS}:{S_WS+1}] offset:{16*k}')
                a('s_waitcnt vmcnt(0)')
            a(f's_cmp_lg_u32 s{C.S_HALF}, 0'); a(f's_cbranch_scc1 {end}')
            a(f's_mov_b32 s{C.S_HALF}, 1'); a(f's_mov_b32 s{C.S_T2}, 1408'); C.group_barrier(a, r, C.S_T2, 32, end)
            a(f's_xor_b32 s{C.S_EM}, s{C.S_EM}, 1'); C.chain_init_comm(a, r, stf, False)
            a(f's_branch {lh}')
        return a.lines
    def jump(self, label):
        a = self.a; l = a.newlabel('Lj')
        a('s_getpc_b64 s[48:49]'); a.label(l)
        a(f's_add_u32 s48, s48, {label}-{l}'); a('s_addc_u32 s49, s49, 0'); a('s_setpc_b64 s[48:49]')

NAME = 'interleave_layers__softmax_full_mha__memory_aug_recurrent_mem_tr__prompt'
def build(stamps=False, chain_kw={}, verbose=False, aslist=True):
    ks = []
    for n, lines, vg, acc in ((NAME + '_kernel', Mega(stamps, chain_kw).build(), 512, 256),):
        rep = []
        l = fix_hazards(lines, rep)
        for e in check_waits(l, n[:8]): print(e)
        if verbose: print(n, len(l), len(rep))
        ks.append((n, l, vg, acc))
    hdr = ''.join(l for l in open(f'cdna_kernels/{NAME}.s.ref').readlines()[:14] if '@launch' not in l)
    t = assemble_file(hdr, [(NAME + '_kernel', 256, 256, 163840)], ks)
    return t if aslist else t.replace(f'@launch kernel={NAME}_kernel ', '@launch ')

if __name__ == '__main__':
    import sys
    kw = eval(sys.argv[2]) if len(sys.argv) > 2 else dict()
    st = (True if sys.argv[3] == '1' else 2) if len(sys.argv) > 3 else False
    t = build(st, kw, True, aslist=(st is True))
    open(sys.argv[1] if len(sys.argv) > 1 else f'cdna_kernels/{NAME}.s', 'w').write(t)
    print(len(t))
```

```python
from asmlib import *
from layout import *
import math, struct

def f2u(f): return struct.unpack('<I', struct.pack('<f', f))[0]

LW = 0
LM = 144 * 1024
LS = 148 * 1024
DELTA = [0, 1, 8, 9, 2, 3, 10, 11]
DELTA2 = [0, 1, 32, 33, 8, 9, 40, 41]

class ChainRegs:
    def __init__(self):
        v = RegAlloc('v', 0, 256)
        self.M = v.alloc(32, 4); self.R = v.alloc(32, 4); self.A = v.alloc(32, 4)
        self.KX = v.alloc(8, 4); self.VX = v.alloc(8, 4)
        self.T = v.alloc(4, 4)
        self.VM = v.alloc(4)
        self.idx = self.VM + 1; self.aMst = self.VM + 3
        self.PZ = v.alloc(2)
        self.Z = v.alloc(2)
        self.I = v.alloc(2); self.E = v.alloc(4); self.One = v.alloc(4)
        self.PG = v.alloc(2)
        self.aPst = v.alloc(); self.aOw = v.alloc(); self.aW = v.alloc()
        self.aK = v.alloc(); self.aV = v.alloc(); self.aKm = v.alloc(); self.aVm = v.alloc(); self.aL = v.alloc()
        assert v.next <= 144, v.next
        self.WV = 144
        self.place = {}
        lds = [('q', 1, s) for s in range(8)] + [('q', 0, s) for s in range(4, 8)] + [('o', t, k) for t in (0, 6, 7) for k in range(2)]
        for i, b in enumerate(lds): self.place[b] = ('l', i * 2048)
        rest = [(m, t, s) for m in 'qkv' for t in range(2) for s in range(8)] + [('o', t, k) for t in range(8) for k in range(2)]
        rest = [b for b in rest if b not in self.place]
        assert len(rest) == 46
        for i, b in enumerate(rest):
            self.place[b] = ('a', 8 * i) if i < 32 else ('v', self.WV + 8 * (i - 32))
    def blk(self, b):
        k, r = self.place[b]; assert k != 'l'
        return vr(r, 8, k)

S_WS = 4; S_H = 6; S_W = 7
S_SRD = 8
S_CP = 12
S_HB = 20
S_KV = 22
S_CML = 24
S_XP = 26
S_EP = 28; S_EM = 29; S_STEP = 30; S_C = 31; S_SPIN = 32
S_PLO = 33; S_PHI = 34; S_T = 35; S_T2 = 36; S_T3 = 37
S_XH1 = 38; S_XH0 = 40; S_XR = 42
S_DBG = 44; S_TMP = 46; S_M0 = 48; S_RDY = 49
S_FH = 50; S_FW = 52; S_CPR = 54; S_CM = 56; S_HALF = 58; S_FB = 59
S_STAMP = 60
S_BW = 8
S_BR = 10
S_GS = 49
S_CME = 80
REP = 8192
S_SP = 31

def add64(a, dst, base, off):
    a(f's_add_u32 s{dst}, s{base}, {off}'); a(f's_addc_u32 s{dst+1}, s{base+1}, 0')

def frag_of(w, j): return (j ^ (w & 1)) if j < 4 else 4 + (w ^ (j - 4))

def chain_setup(a, r, mid=None):
    L = r.T; N = r.T+1; G = r.T+2; L16 = r.aL
    T = r.R
    a(f'v_lshrrev_b32 v{T}, 6, v0'); a(f'v_and_b32 v{L}, 63, v0'); a(f'v_readfirstlane_b32 s{S_W}, v{T}')
    a(f'v_and_b32 v{N}, 15, v{L}'); a(f'v_lshrrev_b32 v{G}, 4, v{L}')
    a(f's_mov_b32 s{S_PLO}, 0x05040100'); a(f's_mov_b32 s{S_PHI}, 0x07060302')
    a(f's_mov_b32 s{S_XH1}, 0xcccccccc'); a(f's_mov_b32 s{S_XH1+1}, 0xcccccccc')
    a(f's_mov_b32 s{S_XH0}, 0x33333333'); a(f's_mov_b32 s{S_XH0+1}, 0x33333333')
    a(f's_mov_b32 s{S_XR}, 0x000f000f'); a(f's_mov_b32 s{S_XR+1}, 0')
    a(f's_mov_b32 s{S_C}, {f2u(math.log2(math.e) / math.sqrt(128.0)):#x}')
    a(f'v_lshlrev_b32 v{L16}, 4, v{L}')
    a(f's_mul_i32 s{S_T}, s{S_W}, 36864'); a(f'v_add_u32 v{r.aW}, s{S_T}, v{L16}')
    a(f'v_bfe_u32 v{T}, v{N}, 1, 1')
    a(f'v_mul_u32_u24 v{r.idx}, 0xaaaa, v{T}'); a(f'v_bfe_u32 v{T}, v{N}, 2, 1'); a(f'v_mul_u32_u24 v{T}, 0xaaaa, v{T}'); a(f'v_lshl_add_u32 v{r.idx}, v{T}, 16, v{r.idx}'); a(f'v_add_u32 v{r.idx}, 0x44444444, v{r.idx}')
    a(f'v_lshlrev_b32 v{T}, 2, v{G}'); a(f'v_sub_u32 v{T}, v{N}, v{T}')
    a(f'v_mov_b32 v{T+1}, 0x3f80'); a(f'v_mov_b32 v{T+2}, 0x3f800000')
    def onehot(dst, nregs):
        for i in range(nregs):
            a(f'v_cmp_eq_u32 vcc, {2*i}, v{T}'); a(f'v_cndmask_b32 v{dst+i}, 0, v{T+1}, vcc')
            a(f'v_cmp_eq_u32 vcc, {2*i+1}, v{T}'); a(f'v_cndmask_b32 v{dst+i}, v{dst+i}, v{T+2}, vcc')
    onehot(r.I, 2)
    a(f'v_and_b32 v{T}, 11, v{N}')
    onehot(r.E, 2)
    a(f'v_mov_b32 v{r.E+2}, v{r.E}'); a(f'v_mov_b32 v{r.E+3}, v{r.E+1}')
    for i in range(4): a(f'v_mov_b32 v{r.One+i}, 0x3f803f80')
    a(f'v_mov_b32 v{r.PZ+1}, 0'); a(f'v_mov_b32 v{r.Z}, 0'); a(f'v_mov_b32 v{r.Z+1}, 0')
    a(f'v_lshrrev_b32 v{T}, 3, v{L}'); a(f'v_lshlrev_b32 v{T}, 11, v{T}'); a(f'v_and_b32 v{T+1}, 7, v{L}')
    a(f'v_lshl_add_u32 v{r.aPst}, v{T+1}, 3, v{T}')
    a(f's_lshl_b32 s{S_T}, s{S_W}, 14'); a(f's_lshl_b32 s{S_T2}, s{S_H}, 6'); a(f's_add_u32 s{S_T}, s{S_T}, s{S_T2}')
    a(f's_add_u32 s{S_T}, s{S_T}, {W.CP}'); add64(a, S_CP, S_WS, f's{S_T}')
    for p in range(1, 4): add64(a, S_CP+2*p, S_CP, p * 65536)
    assert W.CP >= LM and W.CM >= LM
    a(f's_lshl_b32 s{S_T}, s{S_W}, 16'); a(f's_lshl_b32 s{S_T2}, s{S_H}, 11'); a(f's_add_u32 s{S_T}, s{S_T}, s{S_T2}')
    a(f's_add_u32 s{S_T}, s{S_T}, {W.CP - LM}'); add64(a, S_CPR, S_WS, f's{S_T}')
    add64(a, S_CM, S_WS, W.CM); add64(a, S_CML, S_WS, W.CM - LM + 4096)
    a(f's_lshl_b32 s{S_T2}, s{S_W}, 11'); a(f's_lshr_b32 s{S_T3}, s{S_H}, 3'); a(f's_lshl_b32 s{S_T3}, s{S_T3}, 9'); a(f's_add_u32 s{S_T2}, s{S_T2}, s{S_T3}')
    a(f's_and_b32 s{S_T3}, s{S_H}, 1'); a(f's_lshl_b32 s{S_T3}, s{S_T3}, 8'); a(f's_add_u32 s{S_T2}, s{S_T2}, s{S_T3}')
    a(f's_bfe_u32 s{S_T3}, s{S_H}, 0x20001'); a(f's_lshl_b32 s{S_T3}, s{S_T3}, 6'); a(f's_add_u32 s{S_T2}, s{S_T2}, s{S_T3}')
    a(f'v_bfe_u32 v{T}, v{L}, 1, 1'); a(f'v_lshlrev_b32 v{T}, 5, v{T}')
    a(f'v_and_b32 v{T+1}, 1, v{L}'); a(f'v_lshl_add_u32 v{T}, v{T+1}, 3, v{T}')
    a(f'v_and_b32 v{T+1}, 1, v{G}'); a(f'v_lshl_add_u32 v{T}, v{T+1}, 4, v{T}')
    a(f'v_add_u32 v{r.aMst}, s{S_T2}, v{T}')
    a(f's_cmp_lt_u32 s{S_W}, 2'); a(f's_cselect_b32 s{S_XR}, -1, s{S_XR}'); a(f's_cselect_b32 s{S_T3}, {REP}, 0')
    a(f'v_bfe_u32 v{T}, v{L}, 2, 2'); a(f'v_mul_lo_u32 v{T}, v{T}, s{S_T3}'); a(f'v_add_u32 v{r.aMst}, v{r.aMst}, v{T}')
    a(f's_mul_i32 s{S_T3}, s{S_W}, {REP}'); add64(a, S_CME, S_CML, f's{S_T3}')
    a(f's_bfe_u32 s{S_T2}, s{S_H}, 0x20001'); a(f's_lshl_b32 s{S_T2}, s{S_T2}, 11')
    a(f's_lshr_b32 s{S_T3}, s{S_H}, 3'); a(f's_lshl_b32 s{S_T3}, s{S_T3}, 8'); a(f's_add_u32 s{S_T2}, s{S_T2}, s{S_T3}')
    a(f's_and_b32 s{S_T3}, s{S_H}, 1'); a(f's_lshl_b32 s{S_T3}, s{S_T3}, 7'); a(f's_add_u32 s{S_T2}, s{S_T2}, s{S_T3}')
    a(f's_lshl_b32 s{S_T3}, s{S_W}, 2'); a(f's_add_u32 s{S_M0}, s{S_T2}, s{S_T3}')
    a(f'v_lshrrev_b32 v{T}, 1, v{G}'); a(f'v_lshlrev_b32 v{T}, 8, v{T}'); a(f'v_and_b32 v{T+1}, 1, v{G}')
    a(f'v_lshl_add_u32 v{T}, v{T+1}, 5, v{T}'); a(f'v_lshl_add_u32 v{T}, v{N}, 4, v{T}')
    a(f's_lshl_b32 s{S_T}, s{S_W}, 9'); a(f's_add_u32 s{S_T}, s{S_T}, {LM}'); a(f'v_add_u32 v{r.aOw}, s{S_T}, v{T}')
    a(f'v_and_b32 v{T}, 2, v{L}'); a(f'v_cmp_eq_u32 vcc, 0, v{T}')
    a(f's_lshl_b32 s{S_T}, s{S_W}, 10'); a(f's_add_u32 s{S_T}, s{S_T}, {LM+12288}'); a(f'v_add_u32 v{T}, s{S_T}, v{L16}')
    a(f'v_and_b32 v{T+1}, 1, v{G}'); a(f'v_lshlrev_b32 v{T+1}, 5, v{T+1}'); a(f'v_xor_b32 v{T}, v{T}, v{T+1}')
    a(f'v_cndmask_b32 v{r.aOw}, v{T}, v{r.aOw}, vcc')
    a(f'v_lshrrev_b32 v{T}, 3, v{N}'); a(f'v_lshlrev_b32 v{T}, 8, v{T}'); a(f'v_and_b32 v{T+1}, 7, v{N}'); a(f'v_lshl_add_u32 v{T}, v{T+1}, 4, v{T}')
    a(f'v_lshl_add_u32 v{T}, v{G}, 9, v{T}')
    a(f's_lshl_b32 s{S_T}, s{S_W}, 11'); a(f's_add_u32 s{S_T2}, s{S_T}, {HB_K}'); a(f'v_add_u32 v{r.aK}, s{S_T2}, v{T}')
    a(f'v_lshlrev_b32 v{T}, 4, v{N}'); a(f'v_lshl_add_u32 v{T}, v{G}, 9, v{T}')
    a(f's_add_u32 s{S_T2}, s{S_T}, {HB_V}'); a(f'v_add_u32 v{r.aV}, s{S_T2}, v{T}')
    a(f'v_lshrrev_b32 v{T}, 2, v{N}'); a(f'v_lshlrev_b32 v{T}, 5, v{T}'); a(f'v_and_b32 v{T+1}, 1, v{N}'); a(f'v_lshl_add_u32 v{T}, v{T+1}, 4, v{T}')
    a(f'v_lshl_add_u32 v{T}, v{G}, 7, v{T}')
    a(f's_lshl_b32 s{S_T}, s{S_W}, 9'); a(f's_add_u32 s{S_T2}, s{S_T}, {HB_KM}'); a(f'v_add_u32 v{r.aKm}, s{S_T2}, v{T}')
    a(f'v_lshlrev_b32 v{T}, 3, v{L}'); a(f's_add_u32 s{S_T2}, s{S_T}, {HB_VM}'); a(f'v_add_u32 v{r.aVm}, s{S_T2}, v{T}')
    a(f'v_add_u32 v{r.aL}, {LM}, v{L16}')
    a(f'v_lshlrev_b32 v{T}, 2, v{L}'); a(f'v_add_u32 v{r.PG+1}, {LS+4096}, v{T}')
    a(f's_mov_b32 s{S_XP}, 0x01010101'); a(f's_mov_b32 s{S_XP+1}, 0x01010101')
    KBG = r.T+3; VO = r.VX
    a(f'v_lshrrev_b32 v{T}, 1, v{G}'); a(f'v_lshlrev_b32 v{T}, 4, v{T}')
    a(f'v_and_b32 v{T+1}, 1, v{G}'); a(f'v_lshl_add_u32 v{KBG}, v{T+1}, 2, v{T}')
    a(f's_lshl_b32 s{S_T}, s{S_H}, 8'); a(f's_lshl_b32 s{S_T2}, s{S_W}, 6'); a(f's_add_u32 s{S_T}, s{S_T}, s{S_T2}')
    a(f'v_lshlrev_b32 v{VO}, 15, v{KBG}'); a(f'v_lshl_add_u32 v{VO}, v{N}, 2, v{VO}'); a(f'v_add_u32 v{VO}, s{S_T}, v{VO}')
    a(f's_mov_b32 s{S_SRD+2}, {4*MB}'); a(f's_mov_b32 s{S_SRD+3}, 0x20000')
    NB = 11; PK = 88; U = 96
    groups = [(m, s, rg) for m in 'kvq' for s in range(8) for rg in range(2)]
    def put(block, rg, i, emit, pend):
        k, base = r.place[block]
        if k == 'v': emit(base+4*rg+i)
        elif k == 'a':
            emit(pend+i); a(f'v_accvgpr_write_b32 a{base+4*rg+i}, v{pend+i}')
        else:
            emit(pend+i)
            if i == 3:
                a(f'ds_write_b128 v{r.aW}, {vr(pend,4)} offset:{base+1024*rg}'); a('s_waitcnt lgkmcnt(0)')
    DEPTH = 6
    kaoff = {'q': KA_WQ, 'k': KA_WK, 'v': KA_WV}
    cur = [None]
    def issue(gi):
        m, s, rg = groups[gi]
        if cur[0] != m:
            a(f's_load_dwordx2 s[{S_SRD}:{S_SRD+1}], s[0:1], {kaoff[m]}'); a('s_waitcnt lgkmcnt(0)'); cur[0] = m
        if rg == 0:
            if s < 4: a(f's_and_b32 s{S_T2}, s{S_W}, 1'); a(f's_xor_b32 s{S_T2}, s{S_T2}, {s}')
            else: a(f's_xor_b32 s{S_T2}, s{S_W}, {s}')
            a(f's_and_b32 s{S_T3}, s{S_T2}, 1'); a(f's_lshl_b32 s{S_T3}, s{S_T3}, 21'); a(f's_and_b32 s{S_T2}, s{S_T2}, 6'); a(f's_lshl_b32 s{S_T2}, s{S_T2}, 13')
            a(f's_add_u32 s{S_T3}, s{S_T3}, s{S_T2}')
        b = (gi % NB) * 8
        for jj in range(8):
            a(f's_add_u32 s{S_T}, s{S_T3}, {(128*rg+DELTA2[jj])*8192}')
            a(f'buffer_load_dword v{b+jj}, v{VO}, s[{S_SRD}:{S_SRD+3}], s{S_T} offen')
    def consume(gi):
        m, s, rg = groups[gi]; b = (gi % NB) * 8
        for t in range(2):
            for i in range(4):
                lo, hi = b+2*i, b+2*i+1
                if m == 'q':
                    def emit(d, lo=lo, hi=hi, t=t):
                        if t == 0: a(f'v_lshlrev_b32 v{U}, 16, v{lo}'); a(f'v_lshlrev_b32 v{U+1}, 16, v{hi}')
                        else: a(f'v_and_b32 v{U}, 0xffff0000, v{lo}'); a(f'v_and_b32 v{U+1}, 0xffff0000, v{hi}')
                        a(f'v_mul_f32 v{U}, s{S_C}, v{U}'); a(f'v_mul_f32 v{U+1}, s{S_C}, v{U+1}'); a(f'v_cvt_pk_bf16_f32 v{d}, v{U}, v{U+1}')
                else:
                    def emit(d, lo=lo, hi=hi, t=t): a(f'v_perm_b32 v{d}, v{hi}, v{lo}, s{S_PHI if t else S_PLO}')
                put((m, t, s), rg, i, emit, PK + 4*t)
    for gi in range(len(groups) + DEPTH):
        if gi < len(groups): issue(gi)
        if gi == 14 and mid: a('s_waitcnt vmcnt(40)'); mid(None)
        if gi >= DEPTH:
            left = min(len(groups), gi + 1) - (gi - DEPTH) - 1
            a(f's_waitcnt vmcnt({8*left})'); consume(gi - DEPTH)
    a(f's_load_dwordx2 s[{S_SRD}:{S_SRD+1}], s[0:1], {KA_WO}')
    a(f's_lshl_b32 s{S_T}, s{S_H}, 17'); a(f's_lshl_b32 s{S_T2}, s{S_W}, 8'); a(f's_add_u32 s{S_T}, s{S_T}, s{S_T2}')
    a(f'v_lshlrev_b32 v{VO}, 10, v{KBG}'); a(f'v_lshl_add_u32 v{VO}, v{N}, 4, v{VO}'); a(f'v_add_u32 v{VO}, s{S_T}, v{VO}')
    a('s_waitcnt lgkmcnt(0)')
    og = [(k, rg) for k in range(2) for rg in range(2)]
    def oissue(gi):
        k, rg = og[gi]; b = (gi % 2) * 32
        for jj in range(8):
            a(f's_mov_b32 s{S_T}, {(64*k+32*rg+DELTA[jj])*1024}')
            a(f'buffer_load_dwordx4 {vr(b+4*jj,4)}, v{VO}, s[{S_SRD}:{S_SRD+3}], s{S_T} offen')
    def ocons(gi):
        k, rg = og[gi]; b = (gi % 2) * 32
        for t in range(8):
            for i in range(4):
                def emit(d, hi=b+4*(2*i+1)+(t>>1), lo=b+4*(2*i)+(t>>1), t=t): a(f'v_perm_b32 v{d}, v{hi}, v{lo}, s{S_PHI if t & 1 else S_PLO}')
                put(('o', t, k), rg, i, emit, PK + 4*(t&1))
    oissue(0); oissue(1)
    for gi in range(4):
        a(f's_waitcnt vmcnt({8 if gi < 3 else 0})'); ocons(gi)
        if gi + 2 < 4: oissue(gi + 2)

def board_setup(a, r, stf):
    a(f's_lshl_b32 s{S_T}, s{S_H}, 2'); a(f's_add_u32 s{S_T}, s{S_T}, {W.CB - LM}')
    add64(a, S_BW, S_WS, f's{S_T}'); add64(a, S_BR, S_WS, W.CB - LS - 4096); a(f's_mov_b32 s{S_GS}, 0')
    a('s_mov_b64 exec, 0x101'); a(f'global_store_dword v{r.aL}, v{r.Z}, s[{S_BW}:{S_BW+1}] {stf}'); a('s_mov_b64 exec, -1')

def chain_init_comm(a, r, stf, first, T=None):
    T = r.R if T is None else T
    a(f's_load_dwordx2 s[{S_TMP}:{S_TMP+1}], s[0:1], {KA_MEM0}')
    a(f'v_and_b32 v{T}, 0x30, v{r.aL}'); a(f'v_lshlrev_b32 v{T}, 1, v{T}'); a(f'v_bfe_u32 v{T+1}, v{r.aL}, 8, 1'); a(f'v_lshl_add_u32 v{T}, v{T+1}, 10, v{T}')
    a(f'v_add_u32 v{T}, s{S_M0}, v{T}')
    a(f's_xor_b32 s{S_T}, s{S_EP}, 1')
    for i in range(4): a(f'v_mov_b32 v{T+4+i}, s{S_T}')
    a('s_waitcnt lgkmcnt(0)')
    a(f'global_load_dword v{T+2}, v{T}, s[{S_TMP}:{S_TMP+1}]'); a(f'global_load_dword v{T+3}, v{T}, s[{S_TMP}:{S_TMP+1}] offset:16')
    if first:
        a(f'global_store_dwordx4 v{r.aL}, {vr(T+4,4)}, s[{S_CPR}:{S_CPR+1}] {stf}')
        a(f'global_store_dwordx4 v{r.aL}, {vr(T+4,4)}, s[{S_CPR}:{S_CPR+1}] offset:1024 {stf}')
    a('s_waitcnt vmcnt(0)')
    a(f'v_and_or_b32 v{T+2}, v{T+2}, -2, s{S_EM}')
    a(f's_mov_b64 exec, s[{S_XR}:{S_XR+1}]')
    a(f'global_store_dwordx2 v{r.aMst}, {vr(T+2,2)}, s[{S_CM}:{S_CM+1}] {stf}')
    a('s_mov_b64 exec, -1'); a('s_waitcnt vmcnt(0)')

def group_arrive(a, T, off):
    l1 = a.newlabel('Lgb')
    a('s_barrier')
    a(f'v_mov_b32 v{T}, {off}'); a(f'v_mov_b32 v{T+1}, 1')
    a(f's_cmp_lg_u32 s{S_W}, 0'); a(f's_cbranch_scc1 {l1}')
    a('s_mov_b64 exec, 1'); a(f'global_atomic_add v{T}, v{T+1}, s[{S_DBG}:{S_DBG+1}] sc1'); a('s_waitcnt vmcnt(0)'); a('s_mov_b64 exec, -1')
    a.label(l1)
def group_wait(a, T, off, count, fail):
    l2 = a.newlabel('Lgb'); l3 = a.newlabel('Lgb')
    a(f's_mov_b32 s{S_SPIN}, 0'); a(f'v_mov_b32 v{T}, {off}')
    a.label(l2)
    a(f'global_load_dword v{T+2}, v{T}, s[{S_DBG}:{S_DBG+1}] sc1'); a('s_waitcnt vmcnt(0)')
    a(f'v_readfirstlane_b32 s{S_T}, v{T+2}')
    a(f's_cmp_ge_u32 s{S_T}, {count}'); a(f's_cbranch_scc1 {l3}')
    a('s_sleep 2')
    a(f's_add_u32 s{S_SPIN}, s{S_SPIN}, 1'); a(f's_cmp_lt_u32 s{S_SPIN}, 0x60000'); a(f's_cbranch_scc1 {l2}')
    a(f's_branch {fail}')
    a.label(l3)

DPPQ = 'quad_perm:[2,3,0,1] row_mask:0xf bank_mask:0xf'
XA = 's_mov_b64 exec, -1'

def prog_load(a, r): a(f'global_load_dword v{r.PG}, v{r.PG+1}, s[{S_FH}:{S_FH+1}] sc1')
def prog_block(a, r, lbl, back, need_sgpr, fail):
    a.label(lbl)
    prog_load(a, r); a('s_waitcnt vmcnt(0)')
    a(f'v_cmp_ge_u32 s[{S_TMP}:{S_TMP+1}], s{need_sgpr}, v{r.PG}'); a(f's_and_b64 s[{S_TMP}:{S_TMP+1}], s[{S_TMP}:{S_TMP+1}], s[{S_XP}:{S_XP+1}]'); a(f's_cbranch_scc0 {back}')
    a('s_sleep 1')
    a(f's_add_u32 s{S_SPIN}, s{S_SPIN}, 1'); a(f's_cmp_lt_u32 s{S_SPIN}, 0x60000'); a(f's_cbranch_scc1 {lbl}')
    a(f's_branch {fail}')
def kv_load(a, r, i, dst, base=None):
    base = base or S_KV
    ad, off = ((r.aK, 0), (r.aK, 128), (r.aV, 0), (r.aV, 256))[i]
    a(f'global_load_dwordx4 {vr(dst+4*i,4)}, v{ad}, s[{base}:{base+1}] offset:{off} sc1')

def chain_start(a, r, fail, fused, started=None):
    HS = W.H[1].HB - W.H[0].HB
    a(f's_mul_i32 s{S_T2}, s{S_HALF}, {HS}'); a(f's_lshl_b32 s{S_T}, s{S_H}, 21'); a(f's_add_u32 s{S_T}, s{S_T}, s{S_T2}')
    a(f's_add_u32 s{S_T}, s{S_T}, {W.H[0].HB}'); add64(a, S_KV, S_WS, f's{S_T}'); a(f's_mov_b64 s[{S_HB}:{S_HB+1}], s[{S_KV}:{S_KV+1}]')
    a(f's_mov_b32 s{S_STEP}, 0'); a(f's_mov_b32 s{S_SPIN}, 0')
    a(f's_lshl_b32 s{S_T}, s{S_H}, 8'); a(f's_lshl_b32 s{S_T2}, s{S_HALF}, 17'); a(f's_add_u32 s{S_T}, s{S_T}, s{S_T2}')
    a(f's_add_u32 s{S_T}, s{S_T}, {FL(0, "CHP")}'); add64(a, S_FW, S_WS, f's{S_T}')
    a(f's_sub_u32 s{S_FH}, s{S_FW}, {FL(0, "CHP") - FL(0, "HEAD") + LS + 4096}'); a(f's_subb_u32 s{S_FH+1}, s{S_FW+1}, 0')
    a(f'v_mov_b32 v{r.PG}, 0'); a(f's_mov_b32 s{S_SP}, 0')
    for i in range(2): a(f'global_load_dwordx4 {vr(r.M+24+4*i,4)}, v{r.aL}, s[{S_CPR}:{S_CPR+1}] offset:{1024*i} sc1')
    add64(a, S_KV, S_KV, HB_REC)

def chain_wave(a, r, w, stf, fail, done, fused=1, pat=(13, 16, 16, 16), d1=(100, 140, 280, 320), d2=(220, 200, 0, 0), e23=(100, 80, 60, 60), lpos=4, nb=(2, 2, 1, 2), bk=(120, 100, 100, 120), es=80, eb=None, e3in=1, cp=1, rep=1, bx=None, bp=(18, 19, 21, 23, 24, 25), bg=16, c1=(40, 40, 40, 40), ef='sc1', rt=None, started=None,
               nomax=1, stamps=False, stampsel=None, nocomm=0, nohk=0):
    R, A, M, T = r.R, r.A, r.M, r.T
    if isinstance(nb, tuple): nb = nb[w]
    if isinstance(bk, tuple): bk = bk[w]
    Aq = [A, A+4]; Ak = [A+8, A+12]; Av = [A+16, A+20]
    ACC = {'q': Aq, 'k': Ak, 'v': Av}
    ns = [0]; sid = [0]
    def st(name=None):
        if name is None:
            name = sid[0]; sid[0] += 1
        if stamps and ((stampsel is None and isinstance(name, int)) or (stampsel is not None and name in stampsel)):
            a(f's_memtime s[{S_STAMP+2*ns[0]}:{S_STAMP+2*ns[0]+1}]'); ns[0] += 1
    def tr(k):
        if rt is not None: a(f's_memtime s[{(S_STAMP+2*k) if k != 10 else 96}:{((S_STAMP+2*k) if k != 10 else 96)+1}]')
    pos = [None]
    def hook():
        if pos[0] is None or bx is None: return
        if w == 1 and pos[0] == bx: a('s_mov_b64 exec, 0x101'); a(f'global_store_dword v{r.aL}, v{r.PZ}, s[{S_BW}:{S_BW+1}] {stf}'); a(XA)
        if w == 0 and pos[0] in bp: a(f'global_load_dword v{r.PG}, v{r.PG+1}, s[{S_BR}:{S_BR+1}] sc1')
        pos[0] += 1
    def smf(acc, aop, b): a(f'v_smfmac_f32_16x16x64_bf16 {vr(acc,4)}, {vr(aop,4)}, {b}, v{r.idx}'); hook()
    def m32(d, x, y, c): a(f'v_mfma_f32_16x16x32_bf16 {vr(d,4)}, {vr(x,4)}, {vr(y,4)}, {vr(d,4) if c else 0}'); hook()
    def m16(d, x, y, c): a(f'v_mfma_f32_16x16x16_bf16 {vr(d,4)}, {vr(x,2)}, {vr(y,2)}, {vr(d,4) if c else 0}'); hook()
    def ldh(dst, b, hh): a(f'ds_read_b128 {vr(dst+4*hh,4)}, v{r.aW} offset:{r.place[b][1]+1024*hh}')
    def nops(c):
        n = c // 4
        while n > 0:
            k = min(n, 16); a(f's_nop {k-1}'); n -= k
    def add0(c): a(f'v_add_f32 v{c}, v{c}, v{c+2}')
    def add1(c): a(f'v_add_f32 v{c+1}, v{c+1}, v{c+3}')
    def cvt(d, x, y): a(f'v_cvt_pk_bf16_f32 v{d}, v{x}, v{y}')
    def pka(d, x, y): a(f'v_pk_add_f32 {vr(d,2)}, {vr(x,2)}, {vr(y,2)}')
    def e_load(j, f='sc1'):
        b = S_CME if (j < 4 and rep) else S_CML
        a(f'global_load_dwordx4 {vr(M+4*j,4)}, v{r.aL}, s[{b}:{b+1}] offset:{1024*frag_of(w,j)-4096} {f}')
    PL = [M+24, R+24, M+16, R+16]; PD = A+24; t0 = A+28; t1 = A+29
    def p_loads(k=0):
        a(f'global_load_dwordx4 {vr(PL[k],4)}, v{r.aL}, s[{S_CPR}:{S_CPR+1}] sc1')
        a(f'global_load_dwordx4 {vr(PL[k]+4,4)}, v{r.aL}, s[{S_CPR}:{S_CPR+1}] offset:1024 sc1')
    def ring_prefetch():
        for e in range(4):
            for hh in range(2): ldh(R+8*e, ('q', 1, e), hh)
    def zero(base, n):
        for i in range(n): a(f'v_mov_b32 v{base+i}, 0')
    def spin_or_fail():
        a(f's_add_u32 s{S_SPIN}, s{S_SPIN}, 1'); a(f's_cmp_lt_u32 s{S_SPIN}, 0x60000'); a(f's_cbranch_scc0 {fail}')
    LA = a.newlabel('Lc_A'); Ldone = a.newlabel('Lc_done')
    Lr = [a.newlabel('Lc_rE') for _ in range(5)]; Lc = [a.newlabel('Lc_cE') for _ in range(5)]
    Lhk = a.newlabel('Lc_hk'); Lhb = a.newlabel('Lc_hb'); Lexp = a.newlabel('Lc_exp'); Lfb = a.newlabel('Lc_fb'); Lnofb = a.newlabel('Lc_nofb'); Lsp = a.newlabel('Lc_sp'); Lspb = a.newlabel('Lc_spb')
    if stamps: _ = [a(f's_mov_b32 s{84+k}, 0') for k in range(12)]
    zero(A, 24); ring_prefetch()
    a(f's_add_u32 s{S_GS}, s{S_GS}, 1'); a(f'v_mov_b32 v{r.PZ}, s{S_GS}')
    for j in range(4): e_load(j)
    a('s_waitcnt vmcnt(0)')
    a('.p2align 6')
    a.label(LA)
    e3 = False; ex = 1 if eb is not None else 0
    ringof = {('q',1,0):0, ('q',1,1):1, ('q',1,2):2, ('q',1,3):3, ('q',1,4):0, ('q',0,4):1, ('q',1,5):2, ('q',0,5):3, ('q',0,6):0, ('q',0,7):1, ('q',1,6):2, ('q',1,7):3}
    def S(m, t, s):
        b = (m, t, s)
        smf(ACC[m][t], M+4*s, vr(R+8*ringof[b], 8) if b in ringof else r.blk(b))
    def chk(j):
        return [f'v_bitop3_b32 v{t0}, v{M+4*j}, v{M+4*j+2}, s{S_EM} bitop3:0x7e', f'v_and_b32 v{t0}, 1, v{t0}', f'v_cmp_ne_u32 vcc, 0, v{t0}']
    vm0 = ['E0', 'E1'] + (['x'] if ex else []) + ['E2'] + ([] if e3in else ['E3'])
    a(f's_waitcnt vmcnt({len(vm0)-1}) lgkmcnt(0)')
    tr(7)
    for l in chk(0): a(l)
    a.label(Lc[0])
    st()
    tr(8)
    order = (('q',1),('q',0),('k',0),('k',1),('v',0),('v',1))
    dsq = [(R+24, ('q',1,3), 0), (R+24, ('q',1,3), 1), (R, ('q',1,4), 0), (R, ('q',1,4), 1), (R+16, ('q',1,2), 0), (R+16, ('q',1,2), 1),
           None, (R+8, ('q',0,4), 0), (R+8, ('q',0,4), 1), None, None, None,
           None, (R+16, ('q',1,5), 0), (R+16, ('q',1,5), 1), None, None, None]
    cnt = 0
    vm = list(vm0)
    def after_of(n): return len(vm) - 1 - vm.index(n)
    issued_at = {}
    def probe():
        a(f'global_load_dword v{r.PG}, v{r.PG+1}, s[{S_BR}:{S_BR+1}] sc1')
    def extras(cnt):
        if e3in and cnt == 2: e_load(3); vm.append('E3')
        if cnt == lpos: e_load(4); vm.append('E4')
    for sl in range(3):
        c = chk(sl+1)
        for i, (m, t) in enumerate(order):
            S(m, t, sl)
            if dsq[cnt]: ldh(*dsq[cnt])
            extras(cnt)
            if cnt == 0: a(f's_mov_b32 s{S_FB}, 0')
            if cnt == 11: a('s_waitcnt lgkmcnt(2)')
            if cnt == 1: a(f's_cbranch_vccnz {Lr[0]}')
            cnt += 1
            if i == cp: a(f's_waitcnt vmcnt({after_of("E%d" % (sl+1))})')
            if cp <= i < cp + 3: a(c[i-cp])
            if fused and w == 2 and cnt == 7:
                a(f's_add_u32 s{S_T3}, s{S_STEP}, 1'); a(f's_min_u32 s{S_T3}, s{S_T3}, 63'); a(f'v_cmp_ge_u32 s[{S_TMP}:{S_TMP+1}], s{S_T3}, v{r.PG}')
        a(f's_cbranch_vccnz {Lr[sl+1]}')
        issued_at[sl+1] = list(vm)
        a.label(Lc[sl+1])
    assert 2 <= lpos < 14
    c = chk(4)
    a('s_waitcnt lgkmcnt(4)')
    S('q',1,3)
    a(f's_waitcnt vmcnt({after_of("E4")})')
    a(f'ds_write_b128 v{r.aL}, {vr(M+16,4)} offset:{1024*w}')
    a(c[0])
    S('q',0,3); ldh(R+24, ('q',0,5), 0); extras(19); a(c[1])
    S('k',0,3); ldh(R+24, ('q',0,5), 1); extras(20); a(c[2])
    S('k',1,3); extras(21)
    Lbs = a.newlabel('Lc_bs'); Lbg = a.newlabel('Lc_bg')
    if fused and w == 2:
        a(f's_and_b64 s[{S_TMP}:{S_TMP+1}], s[{S_TMP}:{S_TMP+1}], s[{S_XP}:{S_XP+1}]'); a(f's_cbranch_scc1 {Lhb}'); a.label(Lhk)
    S('v',0,3)
    a(f's_cbranch_vccnz {Lr[4]}')
    a.label(Lc[4])
    tr(9)
    a('s_waitcnt lgkmcnt(2)'); a('s_barrier')
    tr(10)
    pos[0] = 0
    def rdm(j): a(f'ds_read_b128 {vr(M+16+4*j,4)}, v{r.aL} offset:{1024*(w^j)}')
    def pub_k(): a(f's_mov_b64 exec, s[{S_XH0}:{S_XH0+1}]'); a(f'global_store_dwordx4 v{r.aKm}, {vr(T,4)}, s[{S_HB}:{S_HB+1}] sc1'); a(XA)
    def pub_v(): a(f'global_store_dwordx2 v{r.aVm}, {vr(A+30,2)}, s[{S_HB}:{S_HB+1}] sc1')
    hk = []
    if not nohk:
        hk = [lambda i=i: kv_load(a, r, i, M) for i in range(4)]
        if fused and w == 3: hk.append(lambda: (a('s_mov_b64 exec, 1'), a(f'global_store_dword v{r.Z}, v{t1}, s[{S_FW}:{S_FW+1}] sc1'), a(XA)))
        if fused and w == 2: hk.append(lambda: prog_load(a, r))
        if w < 2 or not fused: hk.append(lambda: None)
    def H():
        if hk: hk.pop(0)()
    rdm(1)
    S('v',1,3); rdm(2); rdm(3)
    Lk0 = a.newlabel('Lc_k0'); Lk0b = a.newlabel('Lc_k0b')
    S('q',1,4); a(f's_cmp_eq_u32 s{S_STEP}, 0'); a(f's_cbranch_scc1 {Lk0}'); a.label(Lk0b); H()
    S('q',0,4); ldh(R+0, ('q',0,6), 0); H()
    S('k',0,4); ldh(R+0, ('q',0,6), 1); H()
    S('k',1,4); ldh(R+8, ('q',0,7), 0); H(); a('s_waitcnt lgkmcnt(5)')
    S('q',1,5); ldh(R+8, ('q',0,7), 1)
    S('q',0,5); ldh(R+16, ('q',1,6), 0)
    S('k',0,5); ldh(R+16, ('q',1,6), 1); a('s_waitcnt lgkmcnt(6)')
    S('k',0,6); ldh(R+24, ('q',1,7), 0)
    S('k',0,7); ldh(R+24, ('q',1,7), 1); a('s_waitcnt lgkmcnt(4)')
    S('q',0,6); H()
    TA = [R+0, R+2]; TD = [R+4, R+8]; SX = [R+16, R+20]; SM = R+24
    S('q',0,7); add0(Ak[0])
    S('k',1,5); add1(Ak[0])
    assert not hk
    S('k',1,6); cvt(TA[0], Ak[0], Ak[0]+1)
    S('k',1,7); a('s_waitcnt lgkmcnt(0)'); add0(Aq[0])
    S('q',1,6); a(f's_mov_b64 vcc, s[{S_XH1}:{S_XH1+1}]'); add1(Aq[0])
    S('q',1,7); cvt(TA[0]+1, Aq[0], Aq[0]+1)
    st()
    vq = [(t, s) for s in range(4, 8) for t in range(2)]
    def V(n=1):
        for _ in range(n):
            t, s = vq.pop(0); S('v', t, s)
    add0(Ak[1]); add1(Ak[1])
    m16(TD[0], TA[0], r.I, 0)
    cvt(TA[1], Ak[1], Ak[1]+1)
    add0(Aq[1]); add1(Aq[1])
    cvt(TA[1]+1, Aq[1], Aq[1]+1)
    m16(TD[1], TA[1], r.I, 0)
    a(f's_cmp_lg_u32 s{S_STEP}, 0'); a(f's_cselect_b32 s{S_T}, {HB_REC}, 0')
    V(1)
    if not nohk: pub_v()
    add64(a, S_HB, S_HB, f's{S_T}')
    for i in range(4): cvt(T+i, TD[0]+i, TD[1]+i)
    a(f's_cmp_eq_u32 s{S_STEP}, s{S_SP}'); a(f's_cbranch_scc1 {Lsp}')
    a.label(Lspb)
    m32(SX[0], r.KX, T, 0)
    a(f's_cmp_lt_u32 s{S_STEP}, 62'); a(f's_cselect_b32 s{S_T}, {HB_REC}, 0')
    m32(SX[1], r.KX+4, T, 0)
    add64(a, S_KV, S_KV, f's{S_T}')
    m32(SM, T, T, 0)
    vrest = list(vq)
    V(1)
    for i in range(4): a(f'v_cndmask_b32_dpp v{SX[1]+i}, v{SX[0]+i}, v{SX[1]+i}, vcc {DPPQ}')
    SO = SX[1]; SMO = SM+1
    a(f'v_cndmask_b32_dpp v{SMO}, v{SM}, v{SM+1}, vcc {DPPQ}')
    V(1)
    a(f'ds_write_b128 v{r.aL}, {vr(SO,4)} offset:{LS-LM+1024*w}')
    a(f'ds_write_b32 v{r.PG+1}, v{SMO} offset:{256*w}')
    V(1)
    if bx is not None and w == 0: a(f'v_cmp_ne_u32 vcc, s{S_GS}, v{r.PG} ; nowaitcheck')
    V(1)
    pos[0] = None
    if bx is not None and w == 0:
        a(f's_cbranch_vccnz {Lbs}'); a.label(Lbg); a('s_waitcnt lgkmcnt(0)'); a('s_barrier')
    elif bx is not None and w == 1: a('s_waitcnt lgkmcnt(0)'); a('s_barrier')
    else: a(f's_waitcnt vmcnt({0 if nohk else 5 + (1 if (fused and w >= 2) else 0)}) lgkmcnt(0)'); a('s_barrier')
    st()
    tr(11)
    RD = [R+0, R+4, R+8]; RM = R+28
    o4 = (LS-LM+4096)//256
    for j in range(3): a(f'ds_read_b128 {vr(RD[j],4)}, v{r.aL} offset:{LS-LM+1024*(w^(j+1))}')
    V(1)
    a(f'ds_read2st64_b32 {vr(RM,2)}, v{r.PG+1} offset0:{w^1} offset1:{w^2}')
    a(f'ds_read_b32 v{RM+2}, v{r.PG+1} offset:{256*(w^3)}')
    V(2)
    if not nohk: pub_k()
    assert not vq
    P = R+16; MX = R+26; TM = R+27
    D = [R+8, R+12]; SUM = R+28; X = R+0
    a('s_waitcnt lgkmcnt(2)')
    for i in range(4): a(f'v_add_f32 v{SO+i}, v{SO+i}, v{RD[0]+i}')
    pka(RD[1], RD[1], RD[2]); pka(RD[1]+2, RD[1]+2, RD[2]+2)
    a('s_waitcnt lgkmcnt(0)')
    a(f'v_add_f32 v{SMO}, v{SMO}, v{RM+2}'); a(f'v_add_f32 v{RM}, v{RM}, v{RM+1}')
    pka(SO, SO, RD[1]); pka(SO+2, SO+2, RD[1]+2)
    a(f'v_add_f32 v{SMO}, v{SMO}, v{RM}')
    pka(Av[0], Av[0], Av[0]+2); pka(Av[1], Av[1], Av[1]+2)
    def submax():
        a(f'v_max3_f32 v{MX}, v{SO}, v{SO+1}, v{SO+2}'); a(f'v_max3_f32 v{MX}, v{MX}, v{SO+3}, v{SMO}')
        a(f'v_max_f32_dpp v{MX}, v{MX}, v{MX} {DPPQ}')
        for sw in ('16', '32'):
            a(f'v_mov_b32 v{TM}, v{MX}'); a(f'v_permlane{sw}_swap_b32 v{MX}, v{TM}'); a(f'v_max_f32 v{MX}, v{MX}, v{TM}')
        for e in (SMO, SO, SO+1, SO+2, SO+3): a(f'v_sub_f32 v{e}, v{e}, v{MX}')
    if not nomax: submax()
    a.label(Lexp)
    a(f'v_exp_f32 v{X+4}, v{SMO}')
    cvt(r.VM, Av[0], Av[0]+1)
    a(f'v_exp_f32 v{X}, v{SO}')
    cvt(r.VM+2, Av[1], Av[1]+1)
    a(f'v_mov_b32_dpp v{TM}, v{X+4} {DPPQ}')
    a(f'v_exp_f32 v{X+1}, v{SO+1}')
    cvt(r.PZ, X+4, TM)
    a(f'v_exp_f32 v{X+2}, v{SO+2}')
    cvt(P, X, X+1)
    m16(SUM, r.One, r.PZ, 0); ldh(M+16, ('o',0,0), 0)
    a(f'v_exp_f32 v{X+3}, v{SO+3}')
    m16(D[0], r.VM, r.PZ, 0); ldh(M+16, ('o',0,0), 1)
    a(f'v_mov_b32_dpp v{P+2}, v{P} {DPPQ}')
    cvt(P+1, X+2, X+3)
    m16(D[1], r.VM+2, r.PZ, 0)
    a(f'v_mov_b32_dpp v{P+3}, v{P+1} {DPPQ}')
    st()
    m32(SUM, r.One, P, 1); ldh(M+24, ('o',0,1), 0)
    m32(D[0], r.VX, P, 1); ldh(M+24, ('o',0,1), 1)
    m32(D[1], r.VX+4, P, 1)
    a(f'v_rcp_f32 v{SUM+2}, v{SUM}')
    for i in range(4): a(f'v_mul_f32 v{D[0]+i}, v{D[0]+i}, v{SUM+2}')
    for i in range(2): a(f'v_pk_mul_f32 {vr(D[1]+2*i,2)}, {vr(D[1]+2*i,2)}, {vr(SUM+2,2)} op_sel_hi:[1,0]')
    OP = R+0
    for i in range(4): cvt(OP+i, D[0]+i, D[1]+i)
    a(f'ds_write_b128 v{r.aOw}, {vr(OP,4)}')
    a(f'v_mfma_f32_32x32x8_bf16 {vr(A,16)}, {vr(r.Z,2)}, {vr(r.Z,2)}, 0')
    ldh(R+8, ('o',6,0), 0); ldh(R+8, ('o',6,0), 1)
    if nomax:
        a(f'v_max_f32 v{SUM}, v{SUM}, v{SUM+2}'); a(f'v_cmp_nge_f32 vcc, {f2u(2.0**60):#x}, v{SUM}')
        a(f's_cbranch_vccnz {Lfb}'); a.label(Lnofb)
    a('s_waitcnt lgkmcnt(2)'); a('s_barrier')
    st()
    if rt is not None:
        lt = a.newlabel('Lc_t'); a('s_waitcnt lgkmcnt(0)'); a(f's_cmp_lg_u32 s{S_STEP}, {rt}'); a(f's_cbranch_scc1 {lt}')
        _ = [a(f's_mov_b32 s{84+k}, s{(S_STAMP+2*k) if k != 10 else 96}') for k in range(12)]
        a.label(lt)
    tr(0)
    O = R+24
    a(f'ds_read_b128 {vr(O,4)}, v{r.aL}'); a(f'ds_read_b128 {vr(O+4,4)}, v{r.aL} offset:1024')
    a(f'v_mfma_f32_32x32x8_bf16 {vr(A+16,16)}, {vr(r.Z,2)}, {vr(r.Z,2)}, 0')
    a(f's_xor_b32 s{S_EM}, s{S_EM}, 1'); a(f's_add_u32 s{S_STEP}, s{S_STEP}, 1'); a(f's_mov_b32 s{S_SPIN}, 0')
    land = {('o',0,0): M+16, ('o',0,1): M+24, ('o',6,0): R+8, ('o',6,1): R+16, ('o',7,0): R, ('o',7,1): M+16}
    def ob(b): return vr(land[b], 8) if b in land else r.blk(b)
    def ad(t, e): c = A+4*t+e; return f'v_add_f32 v{c}, v{c}, v{c+2}'
    def fin(p):
        c = A+8*p
        return [ad(2*p+1, 0), ad(2*p+1, 1), f'v_cvt_pk_bf16_f32 v{c}, v{c}, v{c+4}', f'v_cvt_pk_bf16_f32 v{c+1}, v{c+1}, v{c+5}', f'v_and_or_b32 v{c}, v{c}, -2, s{S_EP}']
    def sto(p): return f'global_store_dwordx2 v{r.aPst}, {vr(A+8*p,2)}, s[{S_CP+2*p}:{S_CP+2*p+1}] {stf}'
    after = {3: [ad(0,0)], 4: [ad(0,1)], 5: fin(0), 6: [sto(0)], 7: [ad(2,0)], 8: [ad(2,1)], 9: fin(1)[:2], 10: fin(1)[2:], 11: [sto(1), ad(4,0), ad(4,1)],
             13: fin(2)[:2], 14: fin(2)[2:], 15: [sto(2), ad(6,0), ad(6,1)] + fin(3) + [sto(3)]}
    lq = [(R+16, ('o',6,1), 0), (R+16, ('o',6,1), 1), (R, ('o',7,0), 0), (R, ('o',7,0), 1), (M+16, ('o',7,1), 0), (M+16, ('o',7,1), 1)]
    a('s_waitcnt lgkmcnt(1)')
    younger = 0; issued = False; nst = 0
    for t in range(8):
        for k in range(2):
            i = 2*t+k
            smf(A+4*t, O+4*k, ob(('o', t, k)))
            if i == 0: a('s_waitcnt lgkmcnt(0)')
            if i in (1, 2, 3, 4, 5, 7): ldh(*lq.pop(0))
            if i == 12: a('s_waitcnt lgkmcnt(0)')
            if i == pat[w]: p_loads(); issued = True; tr(3)
            for l in after.get(i, []):
                if l.startswith('global_store') and nst == 3 and pat[w] == 15.5: p_loads(); issued = True; tr(3)
                a(l)
                if l.startswith('global_store'):
                    if issued: younger += 1
                    if nst in (0, 3): tr(1 if nst == 0 else 2)
                    nst += 1
    if nocomm: ns[0] = 9
    st()
    chores = []
    chores += [f's_waitcnt vmcnt({4 + (2 if issued else 0) + (0 if nohk else 2 + (1 if (fused and w >= 2) else 0))})\n' + '\n'.join(f'v_mov_b32 v{PD+i}, 0' for i in (2, 3, 0, 1))] + [f'v_mov_b32 v{r.KX+i}, v{M+i}' for i in range(16)]
    chores += [f'ds_read_b128 {vr(R+8*e+4*hh,4)}, v{r.aW} offset:{r.place[("q",1,e)][1]+1024*hh}' for e in range(2) for hh in range(2)]
    chores += [f'v_mov_b32 v{A+i}, 0' for i in range(24)]
    chores += [f'v_mov_b32 v{A+30}, v{r.VM}', f'v_mov_b32 v{A+31}, v{r.VM+2}', f's_add_u32 s{S_GS}, s{S_GS}, 1', f'v_mov_b32 v{r.PZ}, s{S_GS}']
    nch = len(chores)
    def do_chores(cyc, pad=True):
        n = cyc // 4
        while n > 0 and chores: a(chores.pop(0)); n -= 1
        if pad: nops(4*n)
    def then(cyc, need):
        do_chores(cyc); do_chores(4*max(0, need - (nch - len(chores))))
    if not issued:
        do_chores(max(d1[w], 4)); p_loads(); tr(3)
    for k in range(1, nb):
        do_chores(bk if (k > 1 or not issued) else max(4, bk - 40)); p_loads(k); younger += 2
    do_chores(max(min(c1[w], 4*len(chores)), 4), False)
    if e3: then(0, 17)
    if stamps and ns[0]:
        a('s_waitcnt lgkmcnt(0)')
        n = ns[0]
        for k in range(1, n):
            a(f's_sub_u32 s{S_T}, s{S_STAMP+2*k}, s{S_STAMP+2*k-2}'); a(f's_add_u32 s{84+k}, s{84+k}, s{S_T}')
        a(f's_sub_u32 s{S_T}, s{S_STAMP}, s83'); a(f's_mov_b32 s83, s{S_STAMP+2*(n-1)}')
        a(f's_cmp_eq_u32 s{S_STEP}, 1'); a(f's_cselect_b32 s{S_T}, 0, s{S_T}'); a(f's_add_u32 s84, s84, s{S_T}')
    def reduce(k, failto, early=None):
        a(f'v_smfmac_f32_16x16x64_bf16 {vr(PD,4)}, {vr(r.E,4)}, {vr(PL[k],8)}, v{r.idx} abid:1')
        if early: early()
        a(f'v_bitop3_b32 v{t0}, v{PL[k]}, v{PL[k]+2}, s{S_EP} bitop3:0x7e')
        a(f'v_bitop3_b32 v{t1}, v{PL[k]+4}, v{PL[k]+6}, s{S_EP} bitop3:0x7e')
        a(f'v_bitop3_b32 v{t0}, v{t0}, v{t1}, 1 bitop3:0xa8')
        a(f'v_cmp_ne_u32 vcc, 0, v{t0}')
        for ror in (8, 4):
            for i in range(4):
                a(f'v_add_f32_dpp v{PD+i}, v{PD+i}, v{PD+i} row_ror:{ror} row_mask:0xf bank_mask:0xf')
                if ror == 8 and i == 2: a(f's_cbranch_vccnz {failto}')
        a(f's_mov_b64 exec, s[{S_XR}:{S_XR+1}]')
        cvt(PD, PD, PD+1); cvt(PD+1, PD+2, PD+3)
        a(f'v_and_or_b32 v{PD}, v{PD}, -2, s{S_EM}')
        a(f'global_store_dwordx2 v{r.aMst}, {vr(PD,2)}, s[{S_CM}:{S_CM+1}] {stf}')
        a(XA)
    assert not e3
    Lok = a.newlabel('Lc_p1'); Lq = [a.newlabel('Lc_r1') for _ in range(nb)]
    a(f's_waitcnt vmcnt({younger})')
    tr(4)
    reduce(0, Lq[1 % nb])
    a.label(Lok)
    tr(5)
    a(f's_xor_b32 s{S_EP}, s{S_EP}, 1')
    EB = M+28
    then(d2[w], 5); e_load(0, ef); tr(6); then(es, 9); e_load(1, ef)
    if eb is not None:
        then(eb, 0); a(f'global_load_dwordx4 {vr(EB,4)}, v{r.aL}, s[{S_CML}:{S_CML+1}] offset:{1024*frag_of(w,0)-4096} sc1')
    if fused and w == 3: a(f's_sub_u32 s{S_T}, s{S_STEP}, 1'); a(f'v_mov_b32 v{t1}, s{S_T}')
    then(e23[w], 13); e_load(2, ef)
    if not e3in: then(es, 17); e_load(3, ef)
    do_chores(4*len(chores))
    a(f's_branch {LA}')
    for k in list(range(1, nb)) + [0]:
        a.label(Lq[k])
        p_loads((k-1) % nb); zero(PD, 4)
        if stamps and rt is None: a(f's_add_u32 s94, s94, 1')
        if k == 0: spin_or_fail()
        a(f's_waitcnt vmcnt({2*(nb-1)})')
        reduce(k, Lq[(k+1) % nb])
        a(f's_branch {Lok}')
    if eb is not None:
        Lr0 = Lr[0]; Lr[0] = a.newlabel('Lc_rE0')
        a.label(Lr0)
        if stamps and rt is None: a('s_add_u32 s92, s92, 63')
        a('s_nop 4'); zero(A, 8)
        a(f's_waitcnt vmcnt({1 if e3in else 2})')
        for i in range(4): a(f'v_mov_b32 v{M+i}, v{EB+i}')
        for l in chk(0): a(l)
        a(f's_cbranch_vccz {Lc[0]}')
    for j in range(5):
        a.label(Lr[j])
        if stamps and rt is None: a(f's_add_u32 s{95 if j == 0 else 93}, s{95 if j == 0 else 93}, {1 if j == 0 else 63}')
        n = 0
        seq = vm0 if j == 0 else (issued_at[j] if j < 4 else ['E4'])
        for nm in seq[seq.index('E%d' % j):]:
            if nm[0] == 'E': e_load(int(nm[1]))
            else: a(f'global_load_dword v{A+24}, v{r.aL}, s[{S_CPR}:{S_CPR+1}] sc1')
            n += 1
        spin_or_fail()
        if j == 0: a('s_nop 4'); zero(A, 8)
        a(f's_waitcnt vmcnt({n-1})')
        for l in chk(j): a(l)
        if j == 4: a(f'ds_write_b128 v{r.aL}, {vr(M+16,4)} offset:{1024*w}')
        a(f's_cbranch_vccnz {Lr[j]}')
        if j == 4: a('s_waitcnt lgkmcnt(0)')
        a(f's_branch {Lc[j]}')
    if fused and w == 2:
        if stamps and rt is None:
            lb = a.newlabel('Lc_hb2'); a.label(Lhb); a('s_add_u32 s92, s92, 63'); Lhb = lb
        prog_block(a, r, Lhb, Lhk, S_T3, fail)
    if bx is not None and w == 0:
        a.label(Lbs)
        if stamps and rt is None: a('s_add_u32 s92, s92, 63')
        lb2 = a.newlabel('Lc_bs2'); a.label(lb2)
        for k in range(4):
            a(f'v_cmp_ne_u32 vcc, s{S_GS}, v{r.PG} ; nowaitcheck'); probe(); nops(bg); a(f's_cbranch_vccz {Lbg}')
        spin_or_fail(); a(f's_branch {lb2}')
    if nomax:
        a.label(Lfb)
        a(f's_cmp_lg_u32 s{S_FB}, 0'); a(f's_cbranch_scc1 {Lnofb}')
        a(f's_mov_b32 s{S_FB}, 1'); a('s_waitcnt lgkmcnt(0)')
        submax()
        a(f's_branch {Lexp}')
    a.label(Lsp)
    a(f's_cmp_eq_u32 s{S_STEP}, 63'); a(f's_cbranch_scc1 {Ldone}')
    a(f's_mov_b32 s{S_SP}, 63')
    a('s_waitcnt vmcnt(0)'); a(f's_branch {Lspb}')
    a.label(Lk0)
    if started: started(A+26)
    for i in range(4): kv_load(a, r, i, r.KX, S_HB)
    a(f's_branch {Lk0b}')
    a.label(Ldone)
    if not nohk: pub_k()
    for t, sl in vrest: S('v', t, sl)
    if not nohk:
        for t in range(2):
            add0(Av[t]); add1(Av[t]); cvt(A+30+t, Av[t], Av[t]+1)
        pub_v()
    a('s_waitcnt vmcnt(0)'); a('s_barrier')
    if fused and w == 3:
        a(f'v_mov_b32 v{t0}, 64'); a('s_mov_b64 exec, 1'); a(f'global_store_dword v{r.Z}, v{t0}, s[{S_FW}:{S_FW+1}] sc1'); a(XA)
    a(f's_branch {done}')

def chain_all_waves(a, r, stf, fail, **kw):
    done = a.newlabel('Lc_alldone'); lw = [a.newlabel('Lc_wave') for _ in range(4)]
    a(f'v_mov_b32 v{r.A+29}, 0')
    for w in range(1, 4):
        a(f's_cmp_eq_u32 s{S_W}, {w}'); a(f's_cbranch_scc1 {lw[w]}')
    for w in range(4):
        a.label(lw[w]); chain_wave(a, r, w, stf, fail, done, **kw)
    a.label(done)

def chain_kernel_standalone(half, stamps=False, **kw):
    a = Asm(); a._lbl = 1000 * (half + 1); r = ChainRegs()
    end = a.newlabel('Lc_end')
    a(f's_load_dwordx2 s[{S_WS}:{S_WS+1}], s[0:1], {KA_WS}')
    a(f's_load_dwordx2 s[{S_DBG}:{S_DBG+1}], s[0:1], {KA_DBG}')
    a(f's_getreg_b32 s{S_T}, hwreg(HW_REG_XCC_ID, 0, 4)')
    a('s_waitcnt lgkmcnt(0)')
    a(f's_cmp_lg_u32 s{S_T}, 0'); a(f's_cbranch_scc1 {end}')
    l0 = a.newlabel('Lc')
    a('v_mov_b32 v1, 0'); a('v_mov_b32 v2, 1'); a('v_cmp_eq_u32 vcc, 0, v0')
    a('s_and_saveexec_b64 s[12:13], vcc'); a(f's_cbranch_execz {l0}')
    a(f'global_atomic_add v3, v1, v2, s[{S_DBG}:{S_DBG+1}] sc0 sc1'); a('s_waitcnt vmcnt(0)')
    a('ds_write_b32 v1, v3'); a('s_waitcnt lgkmcnt(0)')
    a.label(l0)
    a('s_mov_b64 exec, s[12:13]'); a('s_barrier')
    a('ds_read_b32 v3, v1'); a('s_waitcnt lgkmcnt(0)'); a(f'v_readfirstlane_b32 s{S_H}, v3'); a('s_barrier')
    a(f's_cmp_ge_u32 s{S_H}, 32'); a(f's_cbranch_scc1 {end}')
    if stamps: a('s_memtime s[98:99]')
    chain_setup(a, r)
    a(f's_mov_b32 s{S_EP}, 0'); a(f's_mov_b32 s{S_EM}, 0'); a(f's_mov_b32 s{S_HALF}, {half}')
    chain_init_comm(a, r, '', True)
    group_arrive(a, r.R, 4); group_wait(a, r.R, 4, 32, end)
    if kw.get('rt') is not None:
        a('s_memrealtime s[60:61]'); a('s_waitcnt lgkmcnt(0)'); a('s_add_u32 s62, s60, 2048'); a('s_and_b32 s62, s62, 0xfffff000'); a('s_add_u32 s62, s62, 4096')
        a('s_mov_b32 s63, 0'); a('s_mov_b32 s99, 0'); a('s_mov_b32 s98, 0')
        a.label('Lcal')
        a('s_memrealtime s[60:61]'); a('s_memtime s[64:65]'); a('s_waitcnt lgkmcnt(0)'); a('s_sub_u32 s61, s60, s62'); a('s_cmp_lt_i32 s61, 0'); a('s_cbranch_scc1 Lcal')
        a('s_cmp_eq_u32 s63, 0'); a('s_cselect_b32 s99, s64, s99'); a('s_sub_u32 s64, s64, s99'); a('s_add_u32 s98, s98, s64')
        a('s_add_u32 s62, s62, 44'); a('s_add_u32 s63, s63, 1'); a('s_cmp_lt_u32 s63, 32'); a('s_cbranch_scc1 Lcal')
        a('s_lshr_b32 s98, s98, 5'); a('s_add_u32 s99, s99, s98'); a('s_mov_b32 s98, s62')
    if stamps: a('s_memtime s[100:101]')
    chain_start(a, r, end, 0)
    chain_all_waves(a, r, '', end, fused=0, stamps=stamps, **kw)
    if stamps:
        a('s_memtime s[60:61]'); a('s_waitcnt lgkmcnt(0)')
        a('s_sub_u32 s96, s100, s98'); a('s_sub_u32 s97, s60, s100')
        for k in range(16): a(f'v_mov_b32 v{k}, s{84+k}')
        a(f's_lshl_b32 s{S_T}, s{S_H}, 2'); a(f's_add_u32 s{S_T}, s{S_T}, s{S_W}'); a(f's_lshl_b32 s{S_T}, s{S_T}, 6')
        a(f's_add_u32 s{S_T}, s{S_T}, {STAMP_OFF}')
        a(f'v_mov_b32 v16, s{S_T}')
        for k in range(4): a(f'global_store_dwordx4 v16, {vr(4*k,4)}, s[{S_WS}:{S_WS+1}] offset:{16*k}')
    a.label(end)
    a('s_waitcnt vmcnt(0)'); a('s_endpgm')
    return a.lines

def autostamp(lines, start, stride, n=9):
    out = []; inb = False; idx = 0; k = 0; names = []; first = True
    for l in lines:
        if l == '; BODY_BEGIN': inb = True; idx = 0; k = 0
        if l == '; BODY_END':
            while k < n:
                out.append(f's_memtime s[{S_STAMP+2*k}:{S_STAMP+2*k+1}]'); k += 1
            inb = False; first = False
        if l.startswith('s_cbranch_vccnz'): l = 's_cbranch_vccnz ' + f'Lnx_{len(out)}\nLnx_{len(out)}:'
        if inb and is_instr(l.split('\n')[0]):
            if k < n and idx == start + k * stride:
                out.append(f's_memtime s[{S_STAMP+2*k}:{S_STAMP+2*k+1}]'); k += 1
            if first: names.append(l.split('\n')[0])
            idx += 1
        out += l.split('\n')
    return out, names

if __name__ == '__main__':
    rep = []
    lines = fix_hazards(chain_kernel_standalone(0, stamps=True), rep)
    for e in check_waits(lines, 'chain'): print(e)
    for x in rep[14:32]: print(x)
    t = assemble_file('', [('chain0_kernel', 256, 256, 163840)], [('chain0_kernel', lines, 512, 256)])
    open('chain_test.s', 'w').write(t)
    print(len(lines))
```

```python
from asmlib import *
from layout import *
import math, struct
def f2u(f): return struct.unpack('<I', struct.pack('<f', f))[0]

S_WS = 4; S_W = 7; S_SRD = 8; S_WSRD = 12
S_T = 16; S_T2 = 17; S_T3 = 18; S_OFF = 19
S_OUT = 20
S_IN = 22
S_TASK = 24; S_A = 25; S_B = 26; S_CNT = 27; S_XO = 28; S_BUF = 29; S_K0 = 30; S_K1 = 31
S_P = 32
S_M = 34

def add64(a, dst, base, off):
    a(f's_add_u32 s{dst}, s{base}, {off}'); a(f's_addc_u32 s{dst+1}, s{base+1}, 0')

def common_prologue(a, L, L16):
    a(f's_load_dwordx2 s[{S_WS}:{S_WS+1}], s[0:1], {KA_WS}')
    a(f'v_lshrrev_b32 v{L16}, 6, v0'); a(f'v_and_b32 v{L}, 63, v0')
    a(f'v_readfirstlane_b32 s{S_W}, v{L16}')
    a(f'v_lshlrev_b32 v{L16}, 4, v{L}')
    a('s_waitcnt lgkmcnt(0)')
    a(f's_mov_b32 s{S_WSRD}, s{S_WS}'); a(f's_mov_b32 s{S_WSRD+1}, s{S_WS+1}'); a(f's_mov_b32 s{S_WSRD+2}, {256*MB}'); a(f's_mov_b32 s{S_WSRD+3}, 0x20000')

def pi_of(a, dst, src, t):
    a(f'v_and_b32 v{dst}, 0x13, v{src}')
    a(f'v_bfe_u32 v{t}, v{src}, 2, 1'); a(f'v_lshl_or_b32 v{dst}, v{t}, 3, v{dst}')
    a(f'v_bfe_u32 v{t}, v{src}, 3, 1'); a(f'v_lshl_or_b32 v{dst}, v{t}, 2, v{dst}')

def vpos16(a, dst, f, hh_src, t):
    a(f'v_and_b32 v{t}, 1, v{f}'); a(f'v_lshrrev_b32 v{dst}, 1, v{f}'); a(f'v_lshl_or_b32 v{dst}, v{t}, 4, v{dst}')
    a(f'v_lshlrev_b32 v{dst}, 4, v{dst}'); a(f'v_lshrrev_b32 v{t}, 5, v{hh_src}'); a(f'v_lshl_or_b32 v{dst}, v{t}, 9, v{dst}')

def load_wslices(a, mats, stride, L, t0, t1, t2, share=None, early=None):
    a(f'v_bfe_u32 v{t0}, v{L}, 2, 2'); a(f's_mov_b32 s{S_T}, {stride}'); a(f'v_mul_lo_u32 v{t0}, v{t0}, s{S_T}')
    a(f'v_lshrrev_b32 v{t2}, 4, v{L}'); a(f'v_lshl_add_u32 v{t0}, v{t2}, 6, v{t0}')
    a(f'v_and_b32 v{t2}, 3, v{L}'); a(f'v_lshl_add_u32 v{t0}, v{t2}, 4, v{t0}')
    a(f'v_lshrrev_b32 v{t1}, 5, v{L}'); a(f'v_lshlrev_b32 v{t1}, 11, v{t1}')
    a(f'v_bfe_u32 v{t2}, v{L}, 2, 2'); a(f'v_lshl_add_u32 v{t1}, v{t2}, 6, v{t1}')
    a(f'v_bfe_u32 v{t2}, v{L}, 4, 1'); a(f'v_lshl_add_u32 v{t1}, v{t2}, 5, v{t1}')
    a(f'v_and_b32 v{t2}, 1, v{L}'); a(f'v_lshl_add_u32 v{t1}, v{t2}, 4, v{t1}')
    a(f'v_bfe_u32 v{t2}, v{L}, 1, 1'); a(f'v_lshl_add_u32 v{t1}, v{t2}, 3, v{t1}')
    a(f's_lshl_b32 s{S_T}, s{S_W}, 8'); a(f'v_add_u32 v{t1}, s{S_T}, v{t1}'); a(f'v_add_u32 v{t2}, 65536, v{t1}')
    a(f's_mul_i32 s{S_K0}, s{S_W}, {64*stride}'); a(f's_add_u32 s{S_K0}, s{S_K0}, s{S_OFF}')
    a(f's_lshl_b32 s{S_K1}, s{S_W}, 14')
    a(f's_mov_b32 s{S_SRD+3}, 0x20000')
    chunks = [(m, c) for m in range(len(mats)) for c in range(2)]
    cur = [None]
    if share is not None:
        rank, n = share; rows = 512 // n; tp = t2 + 1
        a(f's_lshl_b32 s{S_T}, s{S_W}, 6'); a(f'v_add_u32 v{tp}, s{S_T}, v{L}')
        a(f'v_and_b32 v{tp+1}, 1, v{tp}'); a(f'v_lshrrev_b32 v{tp}, 1, v{tp}'); a(f'v_and_b32 v{tp}, {min(rows,128)-1}, v{tp}')
        a(f's_mov_b32 s{S_T}, {stride}'); a(f'v_mul_lo_u32 v{tp}, v{tp}, s{S_T}'); a(f'v_lshl_add_u32 v{tp}, v{tp+1}, 7, v{tp}')
        a(f's_mul_i32 s{S_T2}, s{rank}, {rows*stride}'); a(f's_add_u32 s{S_T2}, s{S_T2}, s{S_OFF}')
        for ka, nb, const, _, _ in mats:
            if cur[0] != ka:
                a(f's_load_dwordx2 s[{S_SRD}:{S_SRD+1}], s[0:1], {ka}'); a(f's_mov_b32 s{S_SRD+2}, {nb}'); a('s_waitcnt lgkmcnt(0)'); cur[0] = ka
            for r0 in range(0, rows, 128):
                a(f's_add_u32 s{S_T}, s{S_T2}, {const + r0*stride}')
                a(f'buffer_load_dword v{tp+1}, v{tp}, s[{S_SRD}:{S_SRD+3}], s{S_T} offen')
    def issue(ci):
        m, c = chunks[ci]; ka, nb, const, _, _ = mats[m]
        if cur[0] != ka:
            a(f's_load_dwordx2 s[{S_SRD}:{S_SRD+1}], s[0:1], {ka}'); a(f's_mov_b32 s{S_SRD+2}, {nb}'); a('s_waitcnt lgkmcnt(0)'); cur[0] = ka
        for i in range(16):
            a(f's_add_u32 m0, s{S_K1}, {(ci&1)*65536 + i*1024}')
            a(f's_add_u32 s{S_T}, s{S_K0}, {const + (256*c + 4*i)*stride}')
            a(f'buffer_load_dwordx4 v{t0}, s[{S_SRD}:{S_SRD+3}], s{S_T} offen lds')
    issue(0)
    for ci in range(len(chunks)):
        if ci == len(chunks) - 2 and early: early()
        if ci + 1 < len(chunks):
            issue(ci + 1)
            a('s_waitcnt vmcnt(16)')
        else: a('s_waitcnt vmcnt(0)')
        a('s_barrier')
        m, c = chunks[ci]; _, _, _, kind, base = mats[m]
        n = 0
        for kb in range(16):
            for half in range(2):
                r = base + 4*(16*c+kb) + 2*half
                a(f'ds_read_b64_tr_b16 {vr(r,2,kind)}, v{t2 if ci&1 else t1} offset:{(4*kb+half)*1024}')
                n += 1
                if n % 12 == 0: a('s_waitcnt lgkmcnt(4)')
        a('s_waitcnt lgkmcnt(0)'); a('s_barrier')

def dma_x(a, L16, soff_sgpr, buf_sgpr, flags=''):
    a(f's_lshl_b32 s{S_T2}, s{S_W}, 13'); a(f's_add_u32 s{S_T3}, s{S_T2}, s{soff_sgpr}'); a(f's_add_u32 s{S_T2}, s{S_T2}, s{buf_sgpr}')
    for i in range(8):
        if i % 4 == 0:
            a(f's_add_u32 m0, s{S_T2}, {i*1024}'); a(f's_add_u32 s{S_T}, s{S_T3}, {i*1024}')
        a(f'buffer_load_dwordx4 v{L16}, s[{S_WSRD}:{S_WSRD+3}], s{S_T} offen offset:{(i%4)*1024} {flags} lds')

def mf(d, x, y, c): return f'v_mfma_f32_32x32x16_bf16 {vr(d,16)}, {x}, {y}, {c}'

def gemm_core(a, xaddr, XR, tiles, hooks={}):
    for kb in range(3): a(f'ds_read_b128 {vr(XR+4*kb,4)}, v{xaddr} offset:{kb*1024}')
    for kb in range(32):
        if kb + 3 < 32: a(f'ds_read_b128 {vr(XR+4*((kb+3)%4),4)}, v{xaddr} offset:{(kb+3)*1024}')
        a(f's_waitcnt lgkmcnt({min(3, 31-kb)})')
        x = vr(XR+4*(kb%4), 4)
        for acc, kind, wb, swap in tiles:
            w = vr(wb+4*kb, 4, kind)
            a(mf(acc, x if swap else w, w if swap else x, vr(acc,16) if kb else 0))
        if kb in hooks: hooks[kb]()

def pack_store(a, acc, addr, base, flags='', scale=None, offs=(0, 1024)):
    for j in range(2):
        if scale is not None:
            for i in range(8): a(f'v_mul_f32 v{acc+8*j+i}, s{scale}, v{acc+8*j+i}')
        for i in range(4): a(f'v_cvt_pk_bf16_f32 v{acc+8*j+i}, v{acc+8*j+2*i}, v{acc+8*j+2*i+1}')
        a(f'global_store_dwordx4 v{addr}, {vr(acc+8*j,4)}, s[{base}:{base+1}] offset:{offs[j]} {flags}')

def proj_kernel(half, isB, nwg=256):
    a = Asm(); a._lbl = 2000 + 100*half + 50*isB
    H = W.H[half]
    L, L16, t0, t1, t2, vq, vk, vv, xa = range(1, 10)
    XR = 12; ACC = 28; WV = 128
    end = a.newlabel('Lp_end')
    a(f's_cmp_ge_u32 s2, {nwg}'); a(f's_cbranch_scc1 {end}')
    common_prologue(a, L, L16)
    nsl = 32 if isB else 4
    ngr = nwg // nsl
    a(f's_and_b32 s{S_A}, s2, {nsl-1}'); a(f's_lshr_b32 s{S_B}, s2, {int(math.log2(nsl))}')
    a(f's_lshl_b32 s{S_OFF}, s{S_A}, 8')
    xn = H.XNB if isB else H.XNA
    a(f's_lshl_b32 s{S_XO}, s{S_B}, 15'); a(f's_add_u32 s{S_XO}, s{S_XO}, {xn}'); a(f's_mov_b32 s{S_BUF}, {128*1024}')
    dma_x(a, L16, S_XO, S_BUF)
    if isB: mats = [(KA_WK, 4*MB, 0, 'a', 128), (KA_WV, 4*MB, 0, 'v', WV), (KA_WQ, 4*MB, 0, 'a', 0)]; stride = 8192
    else: mats = [(KA_WQKV, 1536*1024, 1024, 'a', 128), (KA_WQKV, 1536*1024, 2048, 'v', WV), (KA_WQKV, 1536*1024, 0, 'a', 0)]; stride = 3072
    load_wslices(a, mats, stride, L, t0, t1, t2)
    ro = (HB_Q, HB_K, HB_V) if isB else (0, H.KA - H.QA, H.VA - H.QA)
    a(f's_lshl_b32 s{S_T}, s{S_W}, 11')
    a(f's_add_u32 s{S_T2}, s{S_T}, {ro[0]}'); a(f'v_add_u32 v{vq}, s{S_T2}, v{L16}')
    a(f's_add_u32 s{S_T2}, s{S_T}, {ro[1]}'); a(f'v_add_u32 v{vk}, s{S_T2}, v{L16}')
    pi_of(a, t0, L, t1); vpos16(a, vv, t0, L, t1)
    a(f's_add_u32 s{S_T2}, s{S_T}, {ro[2]}'); a(f'v_add_u32 v{vv}, s{S_T2}, v{vv}')
    a(f's_lshl_b32 s{S_T}, s{S_A}, {21 if isB else 13}'); a(f's_lshl_b32 s{S_T2}, s{S_B}, 15'); a(f's_add_u32 s{S_T}, s{S_T}, s{S_T2}')
    a(f's_add_u32 s{S_T}, s{S_T}, {H.HB if isB else H.QA}'); add64(a, S_OUT, S_WS, f's{S_T}')
    a(f's_mov_b32 s{S_M}, {f2u(0.25*math.log2(math.e)):#x}')
    lp = a.newlabel('Lp_loop'); nod = a.newlabel('Lp_nod')
    a.label(lp)
    a(f'v_add_u32 v{xa}, s{S_BUF}, v{L16}')
    a(f's_add_u32 s{S_B}, s{S_B}, {ngr}'); a(f's_xor_b32 s{S_BUF}, s{S_BUF}, {128*1024}')
    a(f's_add_u32 s{S_XO}, s{S_XO}, {ngr*32768}')
    a(f's_cmp_ge_u32 s{S_B}, 64'); a(f's_cbranch_scc1 {nod}')
    dma_x(a, L16, S_XO, S_BUF)
    a.label(nod)
    gemm_core(a, xa, XR, [(ACC+16, 'a', 128, False), (ACC+32, 'v', WV, True), (ACC, 'a', 0, False)])
    a('s_waitcnt vmcnt(0)'); a('s_barrier')
    pack_store(a, ACC+16, vk, S_OUT); pack_store(a, ACC+32, vv, S_OUT); pack_store(a, ACC, vq, S_OUT, scale=None if isB else S_M)
    add64(a, S_OUT, S_OUT, ngr*32768)
    a(f's_cmp_lt_u32 s{S_B}, 64'); a(f's_cbranch_scc1 {lp}')
    a.label(end); a('s_endpgm')
    return a.lines

def woa_kernel(half, nwg=256):
    a = Asm(); a._lbl = 3000 + 100*half
    H = W.H[half]
    L, L16, t0, t1, t2, vo, xa = range(1, 8)
    XR = 12; ACC = 28; WV = 128
    end = a.newlabel('Lw_end')
    a(f's_cmp_ge_u32 s2, {nwg}'); a(f's_cbranch_scc1 {end}')
    common_prologue(a, L, L16)
    a(f's_and_b32 s{S_A}, s2, 3'); a(f's_lshr_b32 s{S_B}, s2, 2')
    a(f's_lshl_b32 s{S_OFF}, s{S_A}, 8')
    a(f's_lshl_b32 s{S_XO}, s{S_B}, 15'); a(f's_add_u32 s{S_XO}, s{S_XO}, {H.OA}'); a(f's_mov_b32 s{S_BUF}, {128*1024}')
    dma_x(a, L16, S_XO, S_BUF)
    load_wslices(a, [(KA_WOA, 512*1024, 0, 'v', WV)], 1024, L, t0, t1, t2)
    a(f's_lshl_b32 s{S_T}, s{S_W}, 11'); a(f'v_add_u32 v{vo}, s{S_T}, v{L16}')
    a(f's_lshl_b32 s{S_T}, s{S_A}, 13'); a(f's_lshl_b32 s{S_T2}, s{S_B}, 15'); a(f's_add_u32 s{S_T}, s{S_T}, s{S_T2}')
    a(f's_add_u32 s{S_T}, s{S_T}, {H.YA}'); add64(a, S_OUT, S_WS, f's{S_T}')
    a(f'v_add_u32 v{xa}, s{S_BUF}, v{L16}')
    gemm_core(a, xa, XR, [(ACC, 'v', WV, False)])
    pack_store(a, ACC, vo, S_OUT)
    a.label(end); a('s_endpgm')
    return a.lines

def rb_body(a, npart, xin, xin_rm, part, pstride, segstride, xout, xout_rm, xn, ldf='', stf='', ready=None, ldsoff=0, vb=0, xwait=None):
    L, L16 = 1, 2; af, ar, t0, t1, t2, t3, sm = range(3+vb, 10+vb); la = 100+vb
    X = 12+vb; F = 20+vb; P = 36+vb
    a(f'v_lshrrev_b32 v{t0}, 3, v{L}'); a(f'v_and_b32 v{t1}, 7, v{L}')
    a(f'v_lshlrev_b32 v{af}, 9, v{t0}'); a(f'v_lshl_add_u32 v{af}, v{t1}, 4, v{af}')
    a(f's_lshl_b32 s{S_T}, s{S_W}, 13'); a(f's_lshl_b32 s{S_T2}, s{S_B}, 7'); a(f's_add_u32 s{S_T}, s{S_T}, s{S_T2}'); a(f's_add_u32 s{S_T}, s{S_T}, 2048')
    a(f'v_add_u32 v{af}, s{S_T}, v{af}')
    a(f'v_lshlrev_b32 v{ar}, 10, v{t1}'); a(f'v_lshl_add_u32 v{ar}, v{t0}, 4, v{ar}')
    a(f's_lshl_b32 s{S_T}, s{S_A}, 15'); a(f's_lshl_b32 s{S_T2}, s{S_B}, 13'); a(f's_add_u32 s{S_T}, s{S_T}, s{S_T2}'); a(f's_lshl_b32 s{S_T2}, s{S_W}, 8'); a(f's_add_u32 s{S_T}, s{S_T}, s{S_T2}')
    a(f'v_add_u32 v{ar}, s{S_T}, v{ar}')
    a(f'v_lshlrev_b32 v{la}, 4, v{t1}')
    if ldsoff: a(f'v_add_u32 v{la}, {ldsoff}, v{la}')
    a(f's_lshl_b32 s{S_T3}, s{S_A}, 15')
    if ready: ready()
    if xin_rm:
        a(f's_load_dwordx2 s[{S_IN}:{S_IN+1}], s[0:1], {xin}'); a('s_waitcnt lgkmcnt(0)')
        for i in range(2): a(f'global_load_dwordx4 {vr(X+4*i,4)}, v{ar}, s[{S_IN}:{S_IN+1}] offset:{128*i}')
    else:
        a(f's_add_u32 s{S_T}, s{S_T3}, {xin}'); add64(a, S_IN, S_WS, f's{S_T}')
        for i in range(2): a(f'global_load_dwordx4 {vr(X+4*i,4)}, v{af}, s[{S_IN}:{S_IN+1}] offset:{4096*i-2048} {ldf}')
    if npart:
        a(f's_mul_i32 s{S_T}, s{S_A}, {segstride}'); a(f's_add_u32 s{S_T}, s{S_T}, {part}'); add64(a, S_P, S_WS, f's{S_T}')
        for p in range(npart):
            for i in range(2): a(f'global_load_dwordx4 {vr(P+8*p+4*i,4)}, v{af}, s[{S_P}:{S_P+1}] offset:{4096*i-2048} {ldf}')
            if p + 1 < npart: add64(a, S_P, S_P, pstride)
        a(f's_mov_b32 s{S_M}, 0xffff0000'); a(f'v_mov_b32 v{t2}, 0x3f80'); a(f'v_mov_b32 v{t3}, 0x3f800000')
        for p in range(npart):
            a(f's_waitcnt vmcnt({2*(npart-1-p)})')
            for d in range(8):
                r = P+8*p+d
                if p == 0:
                    a(f'v_lshlrev_b32 v{F+2*d}, 16, v{r}'); a(f'v_and_b32 v{F+2*d+1}, s{S_M}, v{r}')
                else:
                    a(f'v_dot2c_f32_bf16 v{F+2*d}, v{r}, v{t2}'); a(f'v_dot2c_f32_bf16 v{F+2*d+1}, v{r}, v{t3}')
        a('s_nop 2')
        for d in range(8):
            if npart > 1:
                a(f'v_cvt_pk_bf16_f32 v{t1}, v{F+2*d}, v{F+2*d+1}')
                a(f'v_lshlrev_b32 v{F+2*d}, 16, v{t1}'); a(f'v_and_b32 v{F+2*d+1}, s{S_M}, v{t1}')
            a(f'v_lshlrev_b32 v{t0}, 16, v{X+d}'); a(f'v_and_b32 v{t1}, s{S_M}, v{X+d}')
            a(f'v_add_f32 v{t0}, v{t0}, v{F+2*d}'); a(f'v_add_f32 v{t1}, v{t1}, v{F+2*d+1}')
            a(f'v_cvt_pk_bf16_f32 v{X+d}, v{t0}, v{t1}')
    else:
        a(f's_mov_b32 s{S_M}, 0xffff0000')
        if xwait: xwait()
        else: a('s_waitcnt vmcnt(0)')
    def store_x():
        if xout is None: return
        if xout_rm:
            a(f's_load_dwordx2 s[{S_OUT}:{S_OUT+1}], s[0:1], {xout}'); a('s_waitcnt lgkmcnt(0)')
            for i in range(2): a(f'global_store_dwordx4 v{ar}, {vr(X+4*i,4)}, s[{S_OUT}:{S_OUT+1}] offset:{128*i}')
        else:
            a(f's_add_u32 s{S_T}, s{S_T3}, {xout}'); add64(a, S_OUT, S_WS, f's{S_T}')
            for i in range(2): a(f'global_store_dwordx4 v{af}, {vr(X+4*i,4)}, s[{S_OUT}:{S_OUT+1}] offset:{4096*i-2048} {stf}')
    if xn is None:
        store_x(); return
    for d in range(8):
        a(f'v_lshlrev_b32 v{F+2*d}, 16, v{X+d}'); a(f'v_and_b32 v{F+2*d+1}, s{S_M}, v{X+d}')
    def rbf(r):
        a(f'v_cvt_pk_bf16_f32 v{r}, v{r}, v{r}'); a(f'v_and_b32 v{r}, s{S_M}, v{r}')
    a(f'v_add_f32 v{t3}, v{F}, v{F+1}'); a(f'v_mul_f32 v{sm}, v{F}, v{F}'); a(f'v_fmac_f32 v{sm}, v{F+1}, v{F+1}')
    for i in range(2, 16):
        a(f'v_add_f32 v{t3}, v{t3}, v{F+i}'); a(f'v_fmac_f32 v{sm}, v{F+i}, v{F+i}')
    for x in (t3, sm): a(f'v_add_f32_dpp v{x}, v{x}, v{x} row_ror:8 row_mask:0xf bank_mask:0xf')
    for sw in ('16', '32'):
        a(f'v_mov_b32 v{t0}, v{t3}'); a(f'v_mov_b32 v{t1}, v{sm}')
        a(f'v_permlane{sw}_swap_b32 v{t3}, v{t0}'); a(f'v_permlane{sw}_swap_b32 v{sm}, v{t1}')
        a(f'v_add_f32 v{t3}, v{t3}, v{t0}'); a(f'v_add_f32 v{sm}, v{sm}, v{t1}')
    a(f's_lshl_b32 s{S_T}, s{S_W}, 2'); a(f'v_add_u32 v{t0}, s{S_T}, v{la}')
    a(f'ds_write2_b32 v{t0}, v{t3}, v{sm} offset0:0 offset1:32'); a('s_waitcnt lgkmcnt(0)'); a('s_barrier')
    a(f'ds_read_b128 {vr(P,4)}, v{la}'); a(f'ds_read_b128 {vr(P+4,4)}, v{la} offset:128')
    store_x()
    a('s_waitcnt lgkmcnt(0)')
    for x, b in ((t3, P), (sm, P+4)):
        a(f'v_add_f32 v{b}, v{b}, v{b+1}'); a(f'v_add_f32 v{b+2}, v{b+2}, v{b+3}'); a(f'v_add_f32 v{x}, v{b}, v{b+2}')
        a(f'v_mul_f32 v{x}, {f2u(1/512):#x}, v{x}')
    a(f'v_fma_f32 v{sm}, -v{t3}, v{t3}, v{sm}'); a(f'v_max_f32 v{sm}, 0, v{sm}')
    rbf(sm); a(f'v_add_f32 v{sm}, {f2u(1e-5):#x}, v{sm}'); rbf(sm)
    a(f'v_sqrt_f32 v{sm}, v{sm}'); rbf(sm); a(f'v_rcp_f32 v{sm}, v{sm}')
    rbf(t3)
    for d in range(8):
        a(f'v_sub_f32 v{t0}, v{F+2*d}, v{t3}'); a(f'v_sub_f32 v{t1}, v{F+2*d+1}, v{t3}')
        a(f'v_cvt_pk_bf16_f32 v{t1}, v{t0}, v{t1}')
        a(f'v_lshlrev_b32 v{t0}, 16, v{t1}'); a(f'v_and_b32 v{t1}, s{S_M}, v{t1}')
        a(f'v_mul_f32 v{t0}, v{t0}, v{sm}'); a(f'v_mul_f32 v{t1}, v{t1}, v{sm}')
        a(f'v_cvt_pk_bf16_f32 v{P+d}, v{t0}, v{t1}')
    a(f's_add_u32 s{S_T}, s{S_T3}, {xn}'); add64(a, S_OUT, S_WS, f's{S_T}')
    for i in range(2): a(f'global_store_dwordx4 v{af}, {vr(P+4*i,4)}, s[{S_OUT}:{S_OUT+1}] offset:{4096*i-2048} {stf}')

def rb_kernel(kind, half):
    a = Asm(); a._lbl = 4000 + 100*half + 10*kind
    H = W.H[half]
    end = a.newlabel('Lr_end')
    a(f's_cmp_ge_u32 s2, 256'); a(f's_cbranch_scc1 {end}')
    common_prologue(a, 1, 2)
    a(f's_lshr_b32 s{S_A}, s2, 2'); a(f's_and_b32 s{S_B}, s2, 3')
    xprev = W.X0 if half == 0 else W.H[0].X2
    if kind == 0: rb_body(a, 0, KA_X, True, 0, 0, 0, W.X0, False, H.XNA)
    elif kind == 1: rb_body(a, 1, xprev, False, H.YA, 0, 32768, H.X1, False, H.XNB)
    elif half == 0: rb_body(a, 8, H.X1, False, H.PT, 32768, 8*32768, H.X2, False, W.H[1].XNA)
    else: rb_body(a, 8, H.X1, False, H.PT, 32768, 8*32768, KA_OUT, True, None)
    a.label(end); a('s_endpgm')
    return a.lines

def att_kernel(half, nwg=256):
    a = Asm(); a._lbl = 5000 + 100*half
    H = W.H[half]
    L, L16, t0, t1, t2, ak, av, idx, lw, mx = range(1, 11)
    Q = 12; QN = 16; K0 = 20; C = 24; O = 40; D = [56, 72, 88]; KF = 104
    MG = 168
    end = a.newlabel('La_end')
    a(f's_cmp_ge_u32 s2, {nwg}'); a(f's_cbranch_scc1 {end}')
    common_prologue(a, L, L16)
    npg = nwg // 32
    a(f's_and_b32 s{S_A}, s2, 31'); a(f's_lshr_b32 s{S_B}, s2, 5')
    pi_of(a, t0, L, t1)
    a(f'v_and_b32 v{t1}, 32, v{L}'); a(f'v_add_u32 v{ak}, v{t0}, v{t1}'); a(f'v_lshlrev_b32 v{ak}, 4, v{ak}')
    a(f'v_and_b32 v{t0}, 15, v{t0}'); a(f's_and_b32 s{S_T}, s{S_A}, 1'); a(f's_lshl_b32 s{S_T}, s{S_T}, 4'); a(f'v_add_u32 v{t0}, s{S_T}, v{t0}')
    vpos16(a, av, t0, L, t1)
    a(f'v_mov_b32 v{idx}, 0xdddd')
    a(f's_mul_i32 s{S_T}, s{S_W}, 3072'); a(f'v_add_u32 v{lw}, s{S_T}, v{L16}')
    a(f's_lshl_b32 s{S_T}, s{S_A}, 10'); a(f's_lshl_b32 s{S_T2}, s{S_B}, 15'); a(f's_add_u32 s{S_T2}, s{S_T2}, s{S_T}')
    a(f's_add_u32 s{S_T3}, s{S_T2}, {H.QA}'); add64(a, S_IN, S_WS, f's{S_T3}')
    a(f's_add_u32 s{S_T3}, s{S_T2}, {H.OA}'); add64(a, S_OUT, S_WS, f's{S_T3}')
    a(f'global_load_dwordx4 {vr(QN,4)}, v{L16}, s[{S_IN}:{S_IN+1}]')
    a(f's_add_u32 s{S_K0}, s{S_T}, {H.KA}')
    a(f'buffer_load_dwordx4 {vr(K0,4)}, v{ak}, s[{S_WSRD}:{S_WSRD+3}], s{S_K0} offen')
    a(f's_lshl_b32 s{S_T2}, s{S_W}, 19'); a(f's_add_u32 s{S_K0}, s{S_K0}, s{S_T2}')
    a(f's_lshr_b32 s{S_K1}, s{S_A}, 1'); a(f's_lshl_b32 s{S_K1}, s{S_K1}, 11'); a(f's_add_u32 s{S_K1}, s{S_K1}, s{S_T2}'); a(f's_add_u32 s{S_K1}, s{S_K1}, {H.VA}')
    a(f'v_mov_b32 v{t0}, 0x3f803f80')
    for i in range(128): a(f'v_accvgpr_write_b32 a{i}, v{t0}')
    a(f's_mov_b32 s{S_M}, 0x0000ffff'); a(f's_mov_b32 s{S_M+1}, 0x0000ffff')
    for t in range(16):
        a(f's_add_u32 s{S_T}, s{S_K0}, {t*32768}')
        a(f'buffer_load_dwordx4 {vr(KF+4*t,4)}, v{ak}, s[{S_WSRD}:{S_WSRD+3}], s{S_T} offen')
        a(f's_add_u32 s{S_T}, s{S_K1}, {t*32768}')
        a(f's_mov_b64 exec, s[{S_M}:{S_M+1}]')
        for b in range(2): a(f'buffer_load_dwordx4 {vr(8*t+4*b,4,"a")}, v{av}, s[{S_WSRD}:{S_WSRD+3}], s{S_T} offen offset:{1024*b}')
        a('s_mov_b64 exec, -1')
    a(f's_mov_b32 s{S_BUF}, 0'); a(f's_mov_b32 s{S_CNT}, 0')
    lp = a.newlabel('La_loop'); run = a.newlabel('La_run'); slow = a.newlabel('La_slow'); nom = a.newlabel('La_nom'); noq = a.newlabel('La_noq')
    def rowmax(src, first):
        if first: a(f'v_max3_f32 v{mx}, v{src}, v{src+1}, v{src+2}'); rest = list(range(3, 16))
        else: rest = list(range(16))
        while len(rest) >= 2:
            a(f'v_max3_f32 v{mx}, v{mx}, v{src+rest[0]}, v{src+rest[1]}'); rest = rest[2:]
        if rest: a(f'v_max_f32 v{mx}, v{mx}, v{src+rest[0]}')
    def halfmax():
        a(f'v_mov_b32 v{t0}, v{mx}'); a(f'v_permlane32_swap_b32 v{mx}, v{t0}'); a(f'v_max_f32 v{mx}, v{mx}, v{t0}')
    a.label(lp)
    a('s_waitcnt vmcnt(0)')
    for i in range(4): a(f'v_mov_b32 v{Q+i}, v{QN+i}')
    a(f's_add_u32 s{S_B}, s{S_B}, {npg}'); add64(a, S_IN, S_IN, npg*32768)
    a(f's_cmp_ge_u32 s{S_B}, 64'); a(f's_cbranch_scc1 {noq}')
    a(f'global_load_dwordx4 {vr(QN,4)}, v{L16}, s[{S_IN}:{S_IN+1}]')
    a.label(noq)
    a(mf(D[0], vr(K0,4), vr(Q,4), 0))
    rowmax(D[0], True); halfmax()
    a(f's_mov_b32 s{S_XO}, 0')
    a.label(run)
    for i in range(16): a(f'v_sub_f32 v{C+i}, 0, v{mx}')
    for i in range(16): a(f'v_mov_b32 v{O+i}, 0')
    a(mf(D[0], vr(KF,4), vr(Q,4), vr(C,16)))
    a(mf(D[1], vr(KF+4,4), vr(Q,4), vr(C,16)))
    def pv(t, b): a(f'v_smfmac_f32_32x32x32_bf16 {vr(O,16)}, {vr(8*t+4*b,4,"a")}, {vr(D[t%3]+8*b,8)}, v{idx}')
    for t in range(16):
        d = D[t % 3]
        for i in range(16):
            a(f'v_exp_f32 v{d+i}, v{d+i}')
            if i == 2 and t > 0: pv(t-1, 1)
            if i == 6 and t + 2 < 16: a(mf(D[(t+2)%3], vr(KF+4*(t+2),4), vr(Q,4), vr(C,16)))
            if i == 11: pv(t, 0)
    pv(15, 1)
    a(f'v_add_u32 v{t1}, s{S_BUF}, v{lw}')
    for j in range(3): a(f'ds_write_b128 v{t1}, {vr(O+4*j,4)} offset:{1024*j}')
    a('s_waitcnt lgkmcnt(0)'); a('s_barrier')
    a(f'v_add_u32 v{t1}, s{S_BUF}, v{L16}')
    for w in range(4): a(f'ds_read_b32 v{MG+w}, v{t1} offset:{3072*w+2048}')
    a('s_waitcnt lgkmcnt(0)')
    a(f'v_add_f32 v{MG}, v{MG}, v{MG+1}'); a(f'v_add_f32 v{MG+2}, v{MG+2}, v{MG+3}'); a(f'v_add_f32 v{t2}, v{MG}, v{MG+2}')
    a(f's_xor_b32 s{S_BUF}, s{S_BUF}, 16384')
    a(f'v_cmp_nge_f32 vcc, {f2u(2.0**90):#x}, v{t2}')
    a(f's_cbranch_vccnz {slow}')
    fin = a.newlabel('La_fin'); a.label(fin)
    a(f's_and_b32 s{S_T}, s{S_CNT}, 3'); a(f's_add_u32 s{S_CNT}, s{S_CNT}, 1')
    a(f's_cmp_lg_u32 s{S_T}, s{S_W}'); a(f's_cbranch_scc1 {nom}')
    for w in range(4):
        for j in range(2): a(f'ds_read_b128 {vr(MG+8*w+4*j,4)}, v{t1} offset:{3072*w+1024*j}')
    a(f'v_rcp_f32 v{t2}, v{t2}')
    a('s_waitcnt lgkmcnt(0)')
    for i in range(8):
        a(f'v_add_f32 v{MG+i}, v{MG+i}, v{MG+8+i}'); a(f'v_add_f32 v{MG+16+i}, v{MG+16+i}, v{MG+24+i}')
        a(f'v_add_f32 v{MG+i}, v{MG+i}, v{MG+16+i}'); a(f'v_mul_f32 v{MG+i}, v{MG+i}, v{t2}')
    for i in range(4): a(f'v_cvt_pk_bf16_f32 v{MG+i}, v{MG+2*i}, v{MG+2*i+1}')
    a(f'global_store_dwordx4 v{L16}, {vr(MG,4)}, s[{S_OUT}:{S_OUT+1}]')
    a.label(nom)
    add64(a, S_OUT, S_OUT, npg*32768)
    a(f's_cmp_lt_u32 s{S_B}, 64'); a(f's_cbranch_scc1 {lp}')
    a(f's_branch {end}')
    a.label(slow)
    a(f's_cmp_lg_u32 s{S_XO}, 0'); a(f's_cbranch_scc1 {fin}')
    a(f's_mov_b32 s{S_XO}, 1')
    for t in range(16):
        a(mf(D[t%2], vr(KF+4*t,4), vr(Q,4), 0))
        rowmax(D[t%2], t == 0)
    halfmax()
    a(f'ds_write_b32 v{lw}, v{mx} offset:32768'); a('s_waitcnt lgkmcnt(0)'); a('s_barrier')
    for w in range(4): a(f'ds_read_b32 v{MG+w}, v{L16} offset:{32768+3072*w}')
    a('s_waitcnt lgkmcnt(0)')
    a(f'v_max3_f32 v{mx}, v{MG}, v{MG+1}, v{MG+2}'); a(f'v_max_f32 v{mx}, v{mx}, v{MG+3}')
    a(f's_branch {run}')
    a.label(end); a('s_endpgm')
    return a.lines

def tb_kernel(half, nwg=256):
    a = Asm(); a._lbl = 6000 + 100*half
    H = W.H[half]
    L, L16, t0, t1, t2, akm, av, avm, vo, xw, mx = range(1, 12)
    XR = 12; CM = 28; SX = 44; SM = 60; Q = 76; K = 108; KM = 140; V = 172; VM = 204; P = 212; PM = 220; ACC = 224
    OT = Q
    end = a.newlabel('Lt_end')
    a(f's_cmp_ge_u32 s2, {nwg}'); a(f's_cbranch_scc1 {end}')
    common_prologue(a, L, L16)
    ngr = nwg // 32
    a(f's_and_b32 s{S_A}, s2, 31'); a(f's_lshr_b32 s{S_B}, s2, 5')
    a(f's_lshr_b32 s{S_T}, s{S_A}, 2'); a(f's_lshl_b32 s{S_T}, s{S_T}, 19'); a(f's_and_b32 s{S_T2}, s{S_A}, 3'); a(f's_lshl_b32 s{S_T2}, s{S_T2}, 8')
    a(f's_add_u32 s{S_OFF}, s{S_T}, s{S_T2}')
    load_wslices(a, [(KA_WO, 4*MB, 0, 'a', 0)], 1024, L, t0, t1, t2)
    a(f'v_and_b32 v{t0}, 7, v{L}'); a(f'v_lshlrev_b32 v{akm}, 4, v{t0}'); a(f'v_lshrrev_b32 v{t0}, 5, v{L}'); a(f'v_lshl_add_u32 v{akm}, v{t0}, 7, v{akm}')
    a(f'v_add_u32 v{akm}, {HB_KM}, v{akm}')
    pi_of(a, t0, L, t1); vpos16(a, av, t0, L, t1); a(f'v_add_u32 v{av}, {HB_V}, v{av}')
    a(f'v_lshlrev_b32 v{avm}, 2, v{t0}'); a(f'v_lshrrev_b32 v{t1}, 5, v{L}'); a(f'v_lshl_add_u32 v{avm}, v{t1}, 8, v{avm}'); a(f'v_add_u32 v{avm}, {HB_VM}, v{avm}')
    a(f's_lshl_b32 s{S_T}, s{S_W}, 11'); a(f'v_add_u32 v{vo}, s{S_T}, v{L16}')
    a(f's_lshl_b32 s{S_T}, s{S_W}, 13'); a(f'v_add_u32 v{xw}, s{S_T}, v{L16}')
    a(f'v_and_b32 v{t0}, 31, v{L}'); a(f'v_lshrrev_b32 v{t1}, 5, v{L}'); a(f'v_lshlrev_b32 v{t1}, 2, v{t1}'); a(f'v_sub_u32 v{t0}, v{t0}, v{t1}')
    a(f'v_mov_b32 v{t1}, {f2u(-1e30):#x}')
    for i in range(16):
        a(f'v_cmp_le_i32 vcc, {8*(i>>2)+(i&3)}, v{t0}'); a(f'v_cndmask_b32 v{CM+i}, v{t1}, 0, vcc')
    a(f's_and_b32 s{S_T}, s{S_A}, 28'); a(f's_add_u32 s{S_T}, s{S_T}, s{S_W}'); a(f's_lshl_b32 s{S_T}, s{S_T}, 21')
    a(f's_lshl_b32 s{S_T2}, s{S_B}, 15'); a(f's_add_u32 s{S_XO}, s{S_T}, s{S_T2}'); a(f's_add_u32 s{S_XO}, s{S_XO}, {H.HB}')
    a(f's_lshl_b32 s{S_T}, s{S_B}, 18'); a(f's_lshl_b32 s{S_T2}, s{S_A}, 13'); a(f's_add_u32 s{S_T}, s{S_T}, s{S_T2}'); a(f's_add_u32 s{S_T}, s{S_T}, {H.PT}')
    add64(a, S_OUT, S_WS, f's{S_T}')
    a(f's_mov_b32 s{S_M}, {f2u(math.log2(math.e)/math.sqrt(128.0)):#x}')
    lp = a.newlabel('Lt_loop')
    a.label(lp)
    def bl(n, dst, va, so, off): a(f'buffer_load_dword{n} {vr(dst, 4 if n else 1)}, v{va}, s[{S_WSRD}:{S_WSRD+3}], s{so} offen offset:{off}')
    a(f's_add_u32 s{S_T}, s{S_XO}, 4096'); a(f's_add_u32 s{S_T2}, s{S_XO}, {HB_Q}'); a(f's_add_u32 s{S_T3}, s{S_XO}, {HB_Q+4096}')
    for kb in range(8):
        bl('x4', K+4*kb, L16, S_XO if kb < 4 else S_T, (kb%4)*1024)
        bl('x4', Q+4*kb, L16, S_T2 if kb < 4 else S_T3, (kb%4)*1024)
    for kb in range(8): bl('x4', KM+4*kb, akm, S_XO, kb*256)
    for f in range(8): bl('x4', V+4*f, av, S_XO if f < 4 else S_T, (f%4)*1024)
    for t in range(4):
        for e in range(2): bl('', VM+2*t+e, avm, S_XO, t*512 + e*128)
    for kb in range(8):
        a(f's_waitcnt vmcnt({24 + 14 - 2*kb})')
        a(mf(SX, vr(K+4*kb,4), vr(Q+4*kb,4), vr(SX,16) if kb else vr(CM,16)))
    a('s_waitcnt vmcnt(16)')
    for kb in range(8): a(mf(SM, vr(KM+4*kb,4), vr(Q+4*kb,4), vr(SM,16) if kb else 0))
    E = [SX+i for i in range(16)] + [SM+i for i in range(4)]
    a(f'v_max3_f32 v{mx}, v{E[0]}, v{E[1]}, v{E[2]}')
    for i in range(3, 19, 2): a(f'v_max3_f32 v{mx}, v{mx}, v{E[i]}, v{E[i+1]}')
    a(f'v_max_f32 v{mx}, v{mx}, v{E[19]}')
    a(f'v_mov_b32 v{t0}, v{mx}'); a(f'v_permlane32_swap_b32 v{mx}, v{t0}'); a(f'v_max_f32 v{mx}, v{mx}, v{t0}')
    a(f'v_mul_f32 v{mx}, s{S_M}, v{mx}')
    for e in E: a(f'v_fma_f32 v{e}, v{e}, s{S_M}, -v{mx}')
    for e in E: a(f'v_exp_f32 v{e}, v{e}')
    a(f'v_add_f32 v{t1}, v{E[0]}, v{E[1]}')
    for e in E[2:]: a(f'v_add_f32 v{t1}, v{t1}, v{e}')
    a(f'v_mov_b32 v{t0}, v{t1}'); a(f'v_permlane32_swap_b32 v{t1}, v{t0}'); a(f'v_add_f32 v{t1}, v{t1}, v{t0}')
    a(f'v_rcp_f32 v{t1}, v{t1}')
    for e in E: a(f'v_mul_f32 v{e}, v{e}, v{t1}')
    for i in range(8): a(f'v_cvt_pk_bf16_f32 v{P+i}, v{SX+2*i}, v{SX+2*i+1}')
    for i in range(2): a(f'v_cvt_pk_bf16_f32 v{PM+i}, v{SM+2*i}, v{SM+2*i+1}')
    a('s_waitcnt vmcnt(0)')
    for t in range(4):
        o = OT+16*t
        a(f'v_mfma_f32_32x32x8_bf16 {vr(o,16)}, {vr(VM+2*t,2)}, {vr(PM,2)}, 0')
        for j in range(2): a(mf(o, vr(V+8*t+4*j,4), vr(P+4*j,4), vr(o,16)))
    a('s_barrier')
    for t in range(4):
        for j in range(2):
            o = OT+16*t+8*j
            for i in range(4): a(f'v_cvt_pk_bf16_f32 v{o+i}, v{o+2*i}, v{o+2*i+1}')
            a(f'ds_write_b128 v{xw}, {vr(o,4)} offset:{(2*t+j)*1024}')
    a('s_waitcnt lgkmcnt(0)'); a('s_barrier')
    gemm_core(a, L16, XR, [(ACC, 'a', 0, False)])
    pack_store(a, ACC, vo, S_OUT)
    add64(a, S_OUT, S_OUT, ngr*8*32768); a(f's_add_u32 s{S_XO}, s{S_XO}, {ngr*32768}')
    a(f's_add_u32 s{S_B}, s{S_B}, {ngr}'); a(f's_cmp_lt_u32 s{S_B}, 64'); a(f's_cbranch_scc1 {lp}')
    a.label(end); a('s_endpgm')
    return a.lines
```

```python
from asmlib import *
from layout import *
import math
import chain2 as C
from work import *

S_DBG = 44; S_SLOT = 36; S_TK = 37; S_SPIN = 38; S_PF = 39; S_FO = 40; S_N = 41; S_X = 42; S_SO = 43; S_SV = 46; S_PD = 47
L, L16 = 1, 2
VZ = 10; VF = 11
SPIN_MAX = 0x60000

class Mega:
    def __init__(self, stamps=False, chain_kw={}):
        self.a = Asm(); self.stamps = stamps; self.chain_kw = chain_kw
        self.end = 'Lm_end'; self.TO = 128 if stamps == 2 else 0
        self.tbsleep = chain_kw.pop('tbsleep', 8); self.wsleep = chain_kw.pop('wsleep', 2); self.kvpos = chain_kw.pop('kvpos', 26); self.perm = chain_kw.pop('perm', 0x65423170)
    def stamp(self, k, hs=None):
        if not self.stamps: return
        a = self.a; l = a.newlabel('Lst')
        if self.stamps == 2:
            kk = self.dmap.get((self.role, k))
            if kk is None: return
            a(f's_cmp_lg_u32 s{S_W}, 0'); a(f's_cbranch_scc1 {l}')
            a('s_memrealtime s[96:97]'); a(f's_load_dwordx2 s[100:101], s[0:1], {KA_DBG}'); a('s_waitcnt lgkmcnt(0)'); a('s_sub_u32 s96, s96, s99')
            a(f's_mov_b32 s98, {4*kk}')
            if hs is not None: a(f's_mul_i32 s97, s{hs}, 12'); a('s_add_u32 s98, s98, s97')
            a('s_mov_b64 exec, 1'); a(f'v_mov_b32 v{self.sv}, s96'); a(f'v_mov_b32 v{self.sv+1}, s98')
            a(f'global_atomic_umax v{self.sv+1}, v{self.sv}, s[100:101] sc1'); a('s_waitcnt vmcnt(0)'); a('s_mov_b64 exec, -1')
            a.label(l); return
        a(f's_cmp_lg_u32 s{S_W}, 0'); a(f's_cbranch_scc1 {l}')
        a('s_memrealtime s[96:97]'); a(f's_lshl_b32 s98, s99, 7'); a(f's_add_u32 s98, s98, {STAMP_OFF + 4*k}'); a('s_waitcnt lgkmcnt(0)')
        if hs is not None: a(f's_lshl_b32 s97, s{hs}, 5'); a('s_add_u32 s98, s98, s97')
        a('s_mov_b64 exec, 1'); a(f'v_writelane_b32 v{self.sv}, s96, 0'); a(f'v_writelane_b32 v{self.sv+1}, s98, 0')
        a(f'v_mov_b32 v{self.sv+1}, s98')
        a(f'global_store_dword v{self.sv+1}, v{self.sv}, s[{S_WS}:{S_WS+1}]'); a('s_waitcnt vmcnt(0)'); a('s_mov_b64 exec, -1')
        a.label(l)
    def mark(self, k, sgpr, val):
        if self.stamps is not True: return
        a = self.a; l = a.newlabel('Lmk')
        a(f's_cmp_lg_u32 s{sgpr}, {val}'); a(f's_cbranch_scc1 {l}')
        a('s_memrealtime s[96:97]'); a('s_waitcnt lgkmcnt(0)'); a(f's_mov_b32 s{70+k}, s96')
        a.label(l)
    def dump_marks(self):
        if self.stamps is not True: return
        a = self.a
        for k in range(16): a(f'v_mov_b32 v{16+k}, s{70+k}')
        a(f's_lshl_b32 s98, s99, 7'); a(f's_add_u32 s98, s98, {STAMP_OFF + 64}'); a('v_mov_b32 v12, s98')
        l = a.newlabel('Lmk'); a(f's_cmp_lg_u32 s{S_W}, 0'); a(f's_cbranch_scc1 {l}')
        for k in range(4): a(f'global_store_dwordx4 v12, {vr(16+4*k,4)}, s[{S_WS}:{S_WS+1}] offset:{16*k}')
        a.label(l)
    def count_wait(self, off, v, fail, st, sp):
        a = self.a; l1 = a.newlabel('Lcw'); l2 = a.newlabel('Lcw')
        a(f's_mov_b32 s{sp}, 0'); a(f'v_mov_b32 v{v+8}, 0')
        a.label(l1)
        for x in range(8): a(f'global_load_dword v{v+x}, v{v+8}, s[{S_DBG}:{S_DBG+1}] offset:{off+16*x} sc1')
        a('s_waitcnt vmcnt(0)')
        a(f'v_add3_u32 v{v+9}, v{v}, v{v+1}, v{v+2}'); a(f'v_add3_u32 v{v+9}, v{v+9}, v{v+3}, v{v+4}'); a(f'v_add3_u32 v{v+9}, v{v+9}, v{v+5}, v{v+6}'); a(f'v_add_u32 v{v+9}, v{v+9}, v{v+7}')
        a(f'v_readfirstlane_b32 s{st}, v{v+9}'); a(f's_cmp_ge_u32 s{st}, 256'); a(f's_cbranch_scc1 {l2}')
        a('s_sleep 4'); a(f's_add_u32 s{sp}, s{sp}, 1'); a(f's_cmp_lt_u32 s{sp}, {SPIN_MAX}'); a(f's_cbranch_scc1 {l1}')
        a(f's_branch {fail}')
        a.label(l2)
    def flags_ready(self): self.count_wait(132, 12, self.end, S_T, S_SPIN)
    def flag_off(self, base, idx_sgpr, sh=2):
        self.a(f's_lshl_b32 s{S_FO}, s{idx_sgpr}, {sh}'); self.a(f's_add_u32 s{S_FO}, s{S_FO}, {base}')
    def flag_issue(self, n):
        a = self.a
        a(f'v_min_u32 v{VZ}, {n-1}, v{L}'); a(f'v_lshl_add_u32 v{VZ}, v{VZ}, 8, s{S_FO}'); a(f'global_load_dword v{VF}, v{VZ}, s[{S_WS}:{S_WS+1}] sc1')
    def wait(self, n, sleep=None, mask=None, sh=8, thr=None):
        a = self.a; l1 = a.newlabel('Lw'); l2 = a.newlabel('Lw')
        a(f's_mov_b32 s{S_SPIN}, 0')
        a(f'v_min_u32 v{VZ}, {n-1}, v{L}'); a(f'v_lshl_add_u32 v{VZ}, v{VZ}, {sh}, s{S_FO}')
        a.label(l1)
        a(f'global_load_dword v{VF}, v{VZ}, s[{S_WS}:{S_WS+1}] sc1'); a('s_waitcnt vmcnt(0)')
        a(f'v_cmp_eq_u32 vcc, 0, v{VF}' if thr is None else f'v_cmp_gt_u32 vcc, {thr}, v{VF}')
        if mask is None: a(f's_cbranch_vccz {l2}')
        else: a(f's_and_b64 vcc, vcc, s[{mask}:{mask+1}]'); a(f's_cbranch_scc0 {l2}')
        a(f's_sleep {sleep or self.wsleep}')
        a(f's_add_u32 s{S_SPIN}, s{S_SPIN}, 1'); a(f's_cmp_lt_u32 s{S_SPIN}, {SPIN_MAX}'); a(f's_cbranch_scc1 {l1}')
        a(f's_branch {self.end}')
        a.label(l2)
    def set_word(self, base, line_sgpr, word_sgpr, s1=2, s2=8):
        a = self.a
        a(f's_lshl_b32 s{S_SO}, s{line_sgpr}, {s1}'); a(f's_lshl_b32 s{S_X}, s{word_sgpr}, {s2}'); a(f's_add_u32 s{S_SO}, s{S_SO}, s{S_X}'); a(f's_add_u32 s{S_SO}, s{S_SO}, {base}')
    def wsignal(self, val=None):
        a = self.a
        a(f'v_mov_b32 v{VZ}, s{S_SO}'); a(f'v_mov_b32 v{VF}, {"s%d" % val if val else "1"}')
        a('s_mov_b64 exec, 1'); a(f'global_store_dword v{VZ}, v{VF}, s[{S_WS}:{S_WS+1}] sc1'); a('s_mov_b64 exec, -1')
    def signal_wg(self):
        a = self.a; l = a.newlabel('Ls')
        a('s_waitcnt vmcnt(0)'); a('s_barrier'); a(f's_cmp_lg_u32 s{S_W}, 0'); a(f's_cbranch_scc1 {l}')
        self.wsignal(); a.label(l)

    def stream(self, ngr, xsrc, inflag, nin, tiles, epilogue, nst, outflag, store, mk=None):
        a = self.a; xa = 9; XR = 12
        lp = a.newlabel('Lg_loop'); have = a.newlabel('Lg_have'); go = a.newlabel('Lg_go'); fetch = a.newlabel('Lg_fetch'); done = a.newlabel('Lg_done')
        a(f's_lshl_b32 s{S_XO}, s{S_B}, 15'); a(f's_add_u32 s{S_XO}, s{S_XO}, {xsrc}'); a(f's_mov_b32 s{S_BUF}, {128*1024}')
        a('s_barrier')
        a.label(fetch)
        a(f's_mov_b32 s{S_PD}, 0')
        if inflag is not None:
            self.flag_off(inflag, S_B); self.wait(nin)
        if mk: self.mark(mk[0], S_B, mk[1])
        dma_x(a, L16, S_XO, S_BUF, 'sc1')
        a('s_waitcnt vmcnt(0)')
        a.label(go)
        a('s_barrier')
        if mk: self.mark(mk[0]+1, S_B, mk[1])
        a(f'v_add_u32 v{xa}, s{S_BUF}, v{L16}')
        a(f's_add_u32 s{S_TK}, s{S_B}, {ngr}'); a(f's_xor_b32 s{S_BUF}, s{S_BUF}, {128*1024}'); a(f's_add_u32 s{S_XO}, s{S_XO}, {ngr*32768}')
        if inflag is not None:
            a(f's_min_u32 s{S_T}, s{S_TK}, 63'); self.flag_off(inflag, S_T); self.flag_issue(nin)
        def pref():
            sk = a.newlabel('Lg_sk'); np_ = a.newlabel('Lg_np')
            a('s_waitcnt vmcnt(0)')
            if inflag is not None: a(f'v_cmp_eq_u32 vcc, 0, v{VF}')
            a(f's_cmp_eq_u32 s{S_PD}, 0'); a(f's_cbranch_scc1 {np_}')
            self.wsignal(S_SV if store else None)
            a.label(np_)
            a(f's_mov_b32 s{S_PF}, 0')
            a(f's_cmp_ge_u32 s{S_TK}, 64'); a(f's_cbranch_scc1 {sk}')
            if inflag is not None:
                a(f's_cbranch_vccnz {sk}')
            dma_x(a, L16, S_XO, S_BUF, 'sc1'); a(f's_mov_b32 s{S_PF}, 1')
            a.label(sk)
        gemm_core(a, xa, XR, tiles, {(14 if len(tiles) > 1 else 30): pref})
        epilogue()
        if mk: self.mark(mk[0]+2, S_B, mk[1])
        outflag()
        add64(a, S_OUT, S_OUT, ngr*32768)
        a(f's_mov_b32 s{S_B}, s{S_TK}')
        a(f's_cmp_eq_u32 s{S_PF}, 0'); a(f's_cbranch_scc1 {have}')
        first = a.newlabel('Lg_first')
        a(f's_cmp_lt_u32 s{S_B}, {2*ngr}'); a(f's_cbranch_scc1 {first}')
        a(f's_mov_b32 s{S_PD}, 1'); a(f's_waitcnt vmcnt({nst})'); a(f's_branch {go}')
        a.label(first)
        a('s_waitcnt vmcnt(0)'); self.wsignal(S_SV if store else None)
        if mk: self.mark(mk[0]+3, S_B, mk[1]+ngr)
        a(f's_mov_b32 s{S_PD}, 0'); a(f's_branch {go}')
        a.label(have)
        a('s_waitcnt vmcnt(0)'); self.wsignal(S_SV if store else None)
        if mk: self.mark(mk[0]+3, S_B, mk[1]+ngr)
        a(f's_cmp_lt_u32 s{S_B}, 64'); a(f's_cbranch_scc1 {fetch}')
        a('s_barrier')

    def proj_weights(self, isB, share=None, early=None):
        a = self.a
        a(f's_lshl_b32 s{S_OFF}, s{S_A}, 8')
        if isB: mats = [(KA_WK, 4*MB, 0, 'a', 128), (KA_WV, 4*MB, 0, 'v', 128), (KA_WQ, 4*MB, 0, 'a', 0)]; stride = 8192
        else: mats = [(KA_WQKV, 1536*1024, 1024, 'a', 128), (KA_WQKV, 1536*1024, 2048, 'v', 128), (KA_WQKV, 1536*1024, 0, 'a', 0)]; stride = 3072
        load_wslices(a, mats, stride, L, 3, 4, 5, share, early)
    def proj_run(self, half, isB, ngr, nowait=False):
        a = self.a; H = W.H[half]
        t0, t1, vq, vk, vv = 3, 4, 6, 7, 8; ACC = 28
        ro = (HB_Q, HB_K, HB_V) if isB else (0, H.KA - H.QA, H.VA - H.QA)
        a(f's_lshl_b32 s{S_T}, s{S_W}, 11')
        a(f's_add_u32 s{S_T2}, s{S_T}, {ro[0]}'); a(f'v_add_u32 v{vq}, s{S_T2}, v{L16}')
        a(f's_add_u32 s{S_T2}, s{S_T}, {ro[1]}'); a(f'v_add_u32 v{vk}, s{S_T2}, v{L16}')
        pi_of(a, t0, L, t1); vpos16(a, vv, t0, L, t1)
        a(f's_add_u32 s{S_T2}, s{S_T}, {ro[2]}'); a(f'v_add_u32 v{vv}, s{S_T2}, v{vv}')
        a(f's_lshl_b32 s{S_T}, s{S_A}, {21 if isB else 13}'); a(f's_lshl_b32 s{S_T2}, s{S_B}, 15'); a(f's_add_u32 s{S_T}, s{S_T}, s{S_T2}')
        a(f's_add_u32 s{S_T}, s{S_T}, {H.HB if isB else H.QA}'); add64(a, S_OUT, S_WS, f's{S_T}')
        a(f's_mov_b32 s{S_M}, {f2u(0.25*math.log2(math.e)):#x}')
        xa = 9; XR = 12; inflag = FL(half, 'XNB' if isB else 'XNA'); mk = (0, 0 if isB else 63) if half == 1 else ((8, 0) if isB else None)
        go = a.newlabel('Lp_go'); fetch = a.newlabel('Lp_fetch'); have = a.newlabel('Lp_have')
        a(f's_lshl_b32 s{S_XO}, s{S_B}, 15'); a(f's_add_u32 s{S_XO}, s{S_XO}, {H.XNB if isB else H.XNA}'); a(f's_mov_b32 s{S_BUF}, {128*1024}')
        a(f's_mov_b32 s{S_PD}, 0')
        a('s_barrier')
        if nowait: a(f's_branch {go}')
        a.label(fetch)
        self.flag_off(inflag, S_B); self.wait(4)
        if mk: self.mark(mk[0], S_B, mk[1])
        dma_x(a, L16, S_XO, S_BUF, 'sc1')
        a('s_waitcnt vmcnt(0)')
        a.label(go)
        a('s_barrier')
        if mk: self.mark(mk[0]+1, S_B, mk[1])
        a(f'v_add_u32 v{xa}, s{S_BUF}, v{L16}')
        a(f's_add_u32 s{S_TK}, s{S_B}, {ngr}'); a(f's_xor_b32 s{S_BUF}, s{S_BUF}, {128*1024}'); a(f's_add_u32 s{S_XO}, s{S_XO}, {ngr*32768}')
        if not nowait: a(f's_min_u32 s{S_T}, s{S_TK}, 63'); self.flag_off(inflag, S_T); self.flag_issue(4)
        def qdone():
            l = a.newlabel('Lp_q'); a(f's_cmp_eq_u32 s{S_PD}, 0'); a(f's_cbranch_scc1 {l}')
            a(f's_mov_b32 s{S_SV}, 2'); self.wsignal(S_SV); a(f's_mov_b32 s{S_PD}, 0'); a.label(l)
        def pref():
            sk = a.newlabel('Lp_sk')
            a('s_waitcnt vmcnt(0)'); a(f'v_cmp_eq_u32 vcc, 0, v{VF}')
            if not isB: qdone()
            a(f's_mov_b32 s{S_PF}, 0')
            a(f's_cmp_ge_u32 s{S_TK}, 64'); a(f's_cbranch_scc1 {sk}')
            if not nowait: a(f's_cbranch_vccnz {sk}')
            dma_x(a, L16, S_XO, S_BUF, 'sc1'); a(f's_mov_b32 s{S_PF}, 1')
            a.label(sk)
        gemm_core(a, xa, XR, [(ACC+16, 'a', 128, False), (ACC+32, 'v', 128, True)], {18: pref})
        def half_store(acc, ad, j):
            for i in range(4): a(f'v_cvt_pk_bf16_f32 v{acc+8*j+i}, v{acc+8*j+2*i}, v{acc+8*j+2*i+1}')
            a(f'global_store_dwordx4 v{ad}, {vr(acc+8*j,4)}, s[{S_OUT}:{S_OUT+1}] offset:{1024*j} sc1')
        def kvsig():
            if mk: self.mark(mk[0]+2, S_B, mk[1])
            if isB:
                a(f's_and_b32 s{S_T}, s{S_B}, 1'); a(f's_lshl_b32 s{S_T}, s{S_T}, 2'); a(f's_add_u32 s{S_T}, s{S_T}, s{S_W}')
                self.set_word(FL(half, "HEAD"), S_A, S_T, 8, 5)
            else:
                a(f's_lshl_b32 s{S_T}, s{S_A}, 2'); a(f's_add_u32 s{S_T}, s{S_T}, s{S_W}'); self.set_word(FL(half, "QKVA"), S_T, S_B, 11, 5)
            a('s_waitcnt vmcnt(0)'); self.wsignal(S_TK if isB else None)
            if mk: self.mark(mk[0]+3, S_B, mk[1])
        gemm_core(a, xa, XR, [(ACC, 'a', 0, False)], {0: lambda: half_store(ACC+16, vk, 0), 1: lambda: half_store(ACC+16, vk, 1), 2: lambda: half_store(ACC+32, vv, 0),
                                                      3: lambda: half_store(ACC+32, vv, 1), self.kvpos: kvsig})
        pack_store(a, ACC, vq, S_OUT, 'sc1', scale=None if isB else S_M)
        add64(a, S_OUT, S_OUT, ngr*32768)
        a(f's_mov_b32 s{S_B}, s{S_TK}'); a(f's_mov_b32 s{S_PD}, 1')
        a(f's_cmp_lg_u32 s{S_PF}, 0'); a(f's_cbranch_scc1 {go}')
        if not isB: a('s_waitcnt vmcnt(0)'); qdone()
        a(f's_cmp_lt_u32 s{S_B}, 64'); a(f's_cbranch_scc1 {fetch}')
        if isB:
            a('s_waitcnt vmcnt(0)'); a(f's_add_u32 s{S_SV}, s{S_B}, 2'); self.wsignal(S_SV)
        a('s_barrier')
    def woa_run(self, half, ngr):
        a = self.a; H = W.H[half]; vo = 6; ACC = 28
        a(f's_lshl_b32 s{S_T}, s{S_W}, 11'); a(f'v_add_u32 v{vo}, s{S_T}, v{L16}')
        a(f's_lshl_b32 s{S_T}, s{S_A}, 13'); a(f's_lshl_b32 s{S_T2}, s{S_B}, 15'); a(f's_add_u32 s{S_T}, s{S_T}, s{S_T2}')
        a(f's_add_u32 s{S_T}, s{S_T}, {H.YA}'); add64(a, S_OUT, S_WS, f's{S_T}')
        def outf(): a(f's_lshl_b32 s{S_T}, s{S_A}, 2'); a(f's_add_u32 s{S_T}, s{S_T}, s{S_W}'); self.set_word(FL(half, "YA"), S_B, S_T)
        self.stream(ngr, H.OA, FL(half, 'OA'), 32, [(ACC, 'v', 128, False)], lambda: pack_store(a, ACC, vo, S_OUT, 'sc1'), 2, outf, False, mk=(0, 0) if half == 1 else (8, 0))
    def rb_run(self, half, kind, ngr):
        a = self.a; H = W.H[half]
        lp = a.newlabel('Lr_loop'); a.label(lp)
        mk = (4, 0) if (kind == 1 and half == 1) else ((4, 63) if (kind == 2 and half == 0) else ((8, 0) if kind == 1 else None))
        def ready():
            self.flag_off(FL(half, 'YA' if kind == 1 else 'PT'), S_A); self.wait(16 if kind == 1 else 32)
            if mk: self.mark(mk[0], S_A, mk[1])
        xprev = KA_X if half == 0 else W.H[0].X2
        if kind == 1: rb_body(a, 1, xprev, half == 0, H.YA, 0, 32768, H.X1, False, H.XNB, 'sc1', 'sc1', ready)
        elif half == 0: rb_body(a, 8, H.X1, False, H.PT, 32768, 8*32768, H.X2, False, W.H[1].XNA, 'sc1', 'sc1', ready)
        else: rb_body(a, 8, H.X1, False, H.PT, 32768, 8*32768, KA_OUT, True, None, 'sc1', 'sc1', ready)
        if kind == 1 or half == 0:
            if mk: self.mark(mk[0]+2, S_A, mk[1])
            self.set_word(FL(half, 'XNB') if kind == 1 else FL(1, 'XNA'), S_A, S_B); self.signal_wg()
            if mk: self.mark(mk[0]+3, S_A, mk[1])
        a(f's_add_u32 s{S_A}, s{S_A}, {ngr}'); a(f's_cmp_lt_u32 s{S_A}, 64'); a(f's_cbranch_scc1 {lp}')

    def att_run(self, half, npg):
        a = self.a; H = W.H[half]
        t0, t1, t2, ak, av, idx, lw = range(3, 10); mx = 204
        Q = 12; QN = 16; K0 = 20; Cc = 24; O = 40; D = [56, 72, 88]; KF = 104; MG = 168
        pi_of(a, t0, L, t1)
        a(f'v_and_b32 v{t1}, 32, v{L}'); a(f'v_add_u32 v{ak}, v{t0}, v{t1}'); a(f'v_lshlrev_b32 v{ak}, 4, v{ak}')
        a(f'v_and_b32 v{t0}, 15, v{t0}'); a(f's_and_b32 s{S_T}, s{S_A}, 1'); a(f's_lshl_b32 s{S_T}, s{S_T}, 4'); a(f'v_add_u32 v{t0}, s{S_T}, v{t0}')
        vpos16(a, av, t0, L, t1)
        a(f'v_mov_b32 v{idx}, 0xdddd')
        a(f's_mul_i32 s{S_T}, s{S_W}, 3072'); a(f'v_add_u32 v{lw}, s{S_T}, v{L16}')
        if half == 0:
            a(f'v_mov_b32 v{t0}, 0x3f803f80')
            for i in range(128): a(f'v_accvgpr_write_b32 a{i}, v{t0}')
        a(f's_lshr_b32 s{S_T}, s{S_A}, 1'); self.flag_off(FL(half, 'QKVA'), S_T, 11)
        a(f'v_cmp_gt_u32 vcc, 8, v{L}'); a(f'v_cndmask_b32 v{t2}, 1, 2, vcc'); self.wait(56, sh=5, thr=f'v{t2}')
        self.stamp(2 + 8*half)
        a(f's_lshl_b32 s{S_T}, s{S_A}, 10'); a(f's_lshl_b32 s{S_T2}, s{S_B}, 15'); a(f's_add_u32 s{S_T2}, s{S_T2}, s{S_T}')
        a(f's_add_u32 s{S_T3}, s{S_T2}, {H.QA}'); add64(a, S_IN, S_WS, f's{S_T3}')
        a(f's_add_u32 s{S_T3}, s{S_T2}, {H.OA}'); add64(a, S_OUT, S_WS, f's{S_T3}')
        a(f'global_load_dwordx4 {vr(QN,4)}, v{L16}, s[{S_IN}:{S_IN+1}] sc1')
        a(f's_add_u32 s{S_K0}, s{S_T}, {H.KA}')
        a(f'buffer_load_dwordx4 {vr(K0,4)}, v{ak}, s[{S_WSRD}:{S_WSRD+3}], s{S_K0} offen sc1')
        a(f's_lshl_b32 s{S_T2}, s{S_W}, 15'); a(f's_add_u32 s{S_K0}, s{S_K0}, s{S_T2}')
        a(f's_lshr_b32 s{S_K1}, s{S_A}, 1'); a(f's_lshl_b32 s{S_K1}, s{S_K1}, 11'); a(f's_add_u32 s{S_K1}, s{S_K1}, s{S_T2}'); a(f's_add_u32 s{S_K1}, s{S_K1}, {H.VA}')
        a(f's_mov_b32 s{S_M}, 0x0000ffff'); a(f's_mov_b32 s{S_M+1}, 0x0000ffff')
        def kv_tile(t):
            a(f's_add_u32 s{S_T}, s{S_K0}, {t*131072}')
            a(f'buffer_load_dwordx4 {vr(KF+4*t,4)}, v{ak}, s[{S_WSRD}:{S_WSRD+3}], s{S_T} offen sc1')
            a(f's_add_u32 s{S_T}, s{S_K1}, {t*131072}')
            a(f's_mov_b64 exec, s[{S_M}:{S_M+1}]')
            for b in range(2): a(f'buffer_load_dwordx4 {vr(8*t+4*b,4,"a")}, v{av}, s[{S_WSRD}:{S_WSRD+3}], s{S_T} offen offset:{1024*b} sc1')
            a('s_mov_b64 exec, -1')
        def late_tile(t):
            l = a.newlabel('La_lt'); a(f's_cmp_eq_u32 s{S_PD}, 0'); a(f's_cbranch_scc1 {l}')
            a(f's_add_u32 s{S_T}, s{S_W}, {4*t}'); a(f's_lshl_b64 s[{S_P}:{S_P+1}], 1, s{S_T}')
            self.wait(64, mask=S_P, sh=5)
            if half and t == 15: self.mark(0, S_B, 0)
            kv_tile(t); a('s_waitcnt vmcnt(0)')
            if t == 15: a(f's_mov_b32 s{S_PD}, 0')
            a.label(l)
        for t in range(14): kv_tile(t)
        a(f's_mov_b32 s{S_PD}, 1')
        a(f's_mov_b32 s{S_BUF}, 0'); a(f's_mov_b32 s{S_CNT}, 0'); a(f's_mov_b32 s{S_PF}, 0')
        a('s_barrier')
        lp = a.newlabel('La_loop'); run = a.newlabel('La_run'); slow = a.newlabel('La_slow'); nom = a.newlabel('La_nom'); noq = a.newlabel('La_noq'); out = a.newlabel('La_out')
        def rowmax(src, first):
            if first: a(f'v_max3_f32 v{mx}, v{src}, v{src+1}, v{src+2}'); rest = list(range(3, 16))
            else: rest = list(range(16))
            while len(rest) >= 2:
                a(f'v_max3_f32 v{mx}, v{mx}, v{src+rest[0]}, v{src+rest[1]}'); rest = rest[2:]
            if rest: a(f'v_max_f32 v{mx}, v{mx}, v{src+rest[0]}')
        def halfmax():
            a(f'v_mov_b32 v{t0}, v{mx}'); a(f'v_permlane32_swap_b32 v{mx}, v{t0}'); a(f'v_max_f32 v{mx}, v{mx}, v{t0}')
        def pending():
            l = a.newlabel('La_p'); a(f's_cmp_eq_u32 s{S_PF}, 0'); a(f's_cbranch_scc1 {l}')
            a('s_waitcnt vmcnt(0)'); self.wsignal(); a(f's_mov_b32 s{S_PF}, 0')
            if half: self.mark(3, S_B, 0)
            a.label(l)
        a(f's_waitcnt vmcnt({3*14})')
        self.mark(1 if half else 11, S_B, 0)
        a.label(lp)
        for i in range(4): a(f'v_mov_b32 v{Q+i}, v{QN+i}')
        a(f's_add_u32 s{S_TK}, s{S_B}, {npg}'); add64(a, S_IN, S_IN, npg*32768)
        a(f's_cmp_ge_u32 s{S_TK}, 64'); a(f's_cbranch_scc1 {noq}')
        lq = a.newlabel('La_q'); a(f's_cmp_lg_u32 s{S_CNT}, 1'); a(f's_cbranch_scc1 {lq}')
        self.wait(64, sh=5, thr=2)
        a.label(lq)
        a(f'global_load_dwordx4 {vr(QN,4)}, v{L16}, s[{S_IN}:{S_IN+1}] sc1')
        a.label(noq)
        a(mf(D[0], vr(K0,4), vr(Q,4), 0))
        rowmax(D[0], True); halfmax()
        a(f's_mov_b32 s{S_XO}, 0')
        a.label(run)
        for i in range(16): a(f'v_sub_f32 v{Cc+i}, 0, v{mx}')
        for i in range(16): a(f'v_mov_b32 v{O+i}, 0')
        a(f's_waitcnt vmcnt({3*12+1})')
        a(mf(D[0], vr(KF,4), vr(Q,4), vr(Cc,16)))
        a(mf(D[1], vr(KF+4,4), vr(Q,4), vr(Cc,16)))
        def pv(t, b): a(f'v_smfmac_f32_32x32x32_bf16 {vr(O,16)}, {vr(8*t+4*b,4,"a")}, {vr(D[t%3]+8*b,8)}, v{idx}')
        for t in range(16):
            d = D[t % 3]
            for i in range(16):
                a(f'v_exp_f32 v{d+i}, v{d+i}')
                if i == 2 and t > 0: pv(t-1, 1)
                if i == 6 and t + 2 >= 14 and t + 2 < 16: late_tile(t+2)
                if i == 6 and t + 2 < 14: a(f's_waitcnt vmcnt({3*(13-(t+2))+1})')
                if i == 6 and t + 2 < 16: a(mf(D[(t+2)%3], vr(KF+4*(t+2),4), vr(Q,4), vr(Cc,16)))
                if i == 11: pv(t, 0)
            if t == 5: pending()
        pv(15, 1)
        a(f'v_add_u32 v{t1}, s{S_BUF}, v{lw}')
        for j in range(3): a(f'ds_write_b128 v{t1}, {vr(O+4*j,4)} offset:{1024*j}')
        a('s_waitcnt vmcnt(0) lgkmcnt(0)'); a('s_barrier')
        a(f'v_add_u32 v{t1}, s{S_BUF}, v{L16}')
        for w in range(4): a(f'ds_read_b32 v{MG+w}, v{t1} offset:{3072*w+2048}')
        a('s_waitcnt lgkmcnt(0)')
        a(f'v_add_f32 v{MG}, v{MG}, v{MG+1}'); a(f'v_add_f32 v{MG+2}, v{MG+2}, v{MG+3}'); a(f'v_add_f32 v{t2}, v{MG}, v{MG+2}')
        a(f's_xor_b32 s{S_BUF}, s{S_BUF}, 16384')
        a(f'v_cmp_nge_f32 vcc, {f2u(2.0**90):#x}, v{t2}')
        a(f's_cbranch_vccnz {slow}')
        fin = a.newlabel('La_fin'); a.label(fin)
        a(f's_and_b32 s{S_T}, s{S_CNT}, 3'); a(f's_add_u32 s{S_CNT}, s{S_CNT}, 1')
        a(f's_cmp_lg_u32 s{S_T}, s{S_W}'); a(f's_cbranch_scc1 {nom}')
        for w in range(4):
            for j in range(2): a(f'ds_read_b128 {vr(MG+8*w+4*j,4)}, v{t1} offset:{3072*w+1024*j}')
        a(f'v_rcp_f32 v{t2}, v{t2}')
        a('s_waitcnt lgkmcnt(0)')
        for i in range(8):
            a(f'v_add_f32 v{MG+i}, v{MG+i}, v{MG+8+i}'); a(f'v_add_f32 v{MG+16+i}, v{MG+16+i}, v{MG+24+i}')
            a(f'v_add_f32 v{MG+i}, v{MG+i}, v{MG+16+i}'); a(f'v_mul_f32 v{MG+i}, v{MG+i}, v{t2}')
        for i in range(4): a(f'v_cvt_pk_bf16_f32 v{MG+i}, v{MG+2*i}, v{MG+2*i+1}')
        a(f'global_store_dwordx4 v{L16}, {vr(MG,4)}, s[{S_OUT}:{S_OUT+1}] sc1')
        self.set_word(FL(half, 'OA'), S_B, S_A); a(f's_mov_b32 s{S_PF}, 1')
        self.mark(2 if half else 12, S_B, 0)
        a(f's_cmp_ge_u32 s{S_B}, {npg}'); a(f's_cbranch_scc1 {nom}')
        pending()
        a.label(nom)
        add64(a, S_OUT, S_OUT, npg*32768)
        a(f's_mov_b32 s{S_B}, s{S_TK}')
        a(f's_cmp_lt_u32 s{S_B}, 64'); a(f's_cbranch_scc1 {lp}')
        pending()
        a(f's_branch {out}')
        a.label(slow)
        a(f's_cmp_lg_u32 s{S_XO}, 0'); a(f's_cbranch_scc1 {fin}')
        a(f's_mov_b32 s{S_XO}, 1')
        for t in range(16):
            a(mf(D[t%2], vr(KF+4*t,4), vr(Q,4), 0))
            rowmax(D[t%2], t == 0)
        halfmax()
        a(f'ds_write_b32 v{lw}, v{mx} offset:32768'); a('s_waitcnt lgkmcnt(0)'); a('s_barrier')
        for w in range(4): a(f'ds_read_b32 v{MG+w}, v{L16} offset:{32768+3072*w}')
        a('s_waitcnt lgkmcnt(0)')
        a(f'v_max3_f32 v{mx}, v{MG}, v{MG+1}, v{MG+2}'); a(f'v_max_f32 v{mx}, v{mx}, v{MG+3}')
        a(f's_branch {run}')
        a.label(out)
        a('s_barrier')

    def tb_weights(self):
        a = self.a
        a(f's_lshr_b32 s{S_T}, s{S_A}, 2'); a(f's_lshl_b32 s{S_T}, s{S_T}, 19'); a(f's_and_b32 s{S_T2}, s{S_A}, 3'); a(f's_lshl_b32 s{S_T2}, s{S_T2}, 8')
        a(f's_add_u32 s{S_OFF}, s{S_T}, s{S_T2}')
        load_wslices(a, [(KA_WO, 4*MB, 0, 'a', 128)], 1024, L, 3, 4, 5)
    def tb_run(self, half, ngr):
        a = self.a; H = W.H[half]
        t0, t1, akm, av, avm, vo, xw = range(3, 10); mx = 240; FG = 244
        XR = 12; CM = 28; SX = 44; SM = 60; Q = 76; K = 108; KM = 140; V = 172; VM = 204; P = 212; PM = 220; ACC = 224
        OT = Q
        a(f'v_and_b32 v{t0}, 7, v{L}'); a(f'v_lshlrev_b32 v{akm}, 4, v{t0}'); a(f'v_lshrrev_b32 v{t0}, 5, v{L}'); a(f'v_lshl_add_u32 v{akm}, v{t0}, 7, v{akm}')
        a(f'v_add_u32 v{akm}, {HB_KM}, v{akm}')
        pi_of(a, t0, L, t1); vpos16(a, av, t0, L, t1); a(f'v_add_u32 v{av}, {HB_V}, v{av}')
        a(f'v_lshlrev_b32 v{avm}, 2, v{t0}'); a(f'v_lshrrev_b32 v{t1}, 5, v{L}'); a(f'v_lshl_add_u32 v{avm}, v{t1}, 8, v{avm}'); a(f'v_add_u32 v{avm}, {HB_VM}, v{avm}')
        a(f's_lshl_b32 s{S_T}, s{S_W}, 11'); a(f'v_add_u32 v{vo}, s{S_T}, v{L16}')
        a(f's_lshl_b32 s{S_T}, s{S_W}, 13'); a(f'v_add_u32 v{xw}, s{S_T}, v{L16}')
        a(f'v_and_b32 v{t0}, 31, v{L}'); a(f'v_lshrrev_b32 v{t1}, 5, v{L}'); a(f'v_lshlrev_b32 v{t1}, 2, v{t1}'); a(f'v_sub_u32 v{t0}, v{t0}, v{t1}')
        a(f'v_mov_b32 v{t1}, {f2u(-1e30):#x}')
        for i in range(16):
            a(f'v_cmp_le_i32 vcc, {8*(i>>2)+(i&3)}, v{t0}'); a(f'v_cndmask_b32 v{CM+i}, v{t1}, 0, vcc')
        a(f's_and_b32 s{S_T}, s{S_A}, 28'); a(f's_add_u32 s{S_T}, s{S_T}, s{S_W}')
        a(f's_lshl_b32 s{S_K0}, s{S_T}, 8'); a(f's_add_u32 s{S_K0}, s{S_K0}, {FL(half, "HEAD")}')
        a(f's_lshl_b32 s{S_T}, s{S_T}, 21')
        a(f's_lshl_b32 s{S_T2}, s{S_B}, 15'); a(f's_add_u32 s{S_XO}, s{S_T}, s{S_T2}'); a(f's_add_u32 s{S_XO}, s{S_XO}, {H.HB}')
        a(f's_lshl_b32 s{S_T}, s{S_B}, 18'); a(f's_lshl_b32 s{S_T2}, s{S_A}, 13'); a(f's_add_u32 s{S_T}, s{S_T}, s{S_T2}'); a(f's_add_u32 s{S_T}, s{S_T}, {H.PT}')
        add64(a, S_OUT, S_WS, f's{S_T}')
        a(f's_mov_b32 s{S_M}, {f2u(math.log2(math.e)/math.sqrt(128.0)):#x}')
        a(f's_mov_b32 s{S_N}, 0'); a(f's_mov_b32 s{S_K1}, 0')
        def bl(n, dst, va, so, off): a(f'buffer_load_dword{n} {vr(dst, 4 if n else 1)}, v{va}, s[{S_WSRD}:{S_WSRD+3}], s{so} offen offset:{off} sc1')
        def poll(which):
            l1 = a.newlabel('Lt_p'); l2 = a.newlabel('Lt_p'); l3 = a.newlabel('Lt_p')
            a(f's_mov_b32 s{S_SPIN}, 0'); a(f's_branch {l3}')
            a.label(l1)
            if which == S_N:
                a(f'v_mov_b32 v{VZ}, s{S_K0}')
                _ = [a(f'global_load_dword v{FG+i}, v{VZ}, s[{S_WS}:{S_WS+1}] offset:{32*i} sc1') for i in range(8)]; a('s_waitcnt vmcnt(0)')
                a(f'v_min3_u32 v{FG}, v{FG}, v{FG+1}, v{FG+2}'); a(f'v_min3_u32 v{FG}, v{FG}, v{FG+3}, v{FG+4}'); a(f'v_min3_u32 v{FG}, v{FG}, v{FG+5}, v{FG+6}'); a(f'v_min_u32 v{FG}, v{FG}, v{FG+7}')
            else:
                a(f's_add_u32 s{S_X}, s{S_K0}, {FL(half, "CHP") - FL(half, "HEAD")}'); a(f'v_mov_b32 v{VZ}, s{S_X}')
                a(f'global_load_dword v{FG}, v{VZ}, s[{S_WS}:{S_WS+1}] sc1'); a('s_waitcnt vmcnt(0)')
            a(f'v_readfirstlane_b32 s{which}, v{FG}')
            if which == S_N: a(f's_max_u32 s{S_N}, s{S_N}, 2'); a(f's_sub_u32 s{S_N}, s{S_N}, 2')
            a(f's_cmp_gt_u32 s{which}, s{S_B}'); a(f's_cbranch_scc1 {l2}')
            a(f's_sleep {self.tbsleep}')
            a(f's_add_u32 s{S_SPIN}, s{S_SPIN}, 1'); a(f's_cmp_ge_u32 s{S_SPIN}, {SPIN_MAX}'); a(f's_cbranch_scc1 {self.end}')
            a.label(l3)
            a(f's_cmp_gt_u32 s{which}, s{S_B}'); a(f's_cbranch_scc0 {l1}')
            a.label(l2)
        lp = a.newlabel('Lt_loop')
        a.label(lp)
        poll(S_N)
        a(f's_add_u32 s{S_T}, s{S_XO}, 4096'); a(f's_add_u32 s{S_T2}, s{S_XO}, {HB_Q}'); a(f's_add_u32 s{S_T3}, s{S_XO}, {HB_Q+4096}')
        for kb in range(8):
            bl('x4', K+4*kb, L16, S_XO if kb < 4 else S_T, (kb%4)*1024)
            bl('x4', Q+4*kb, L16, S_T2 if kb < 4 else S_T3, (kb%4)*1024)
        for f in range(8): bl('x4', V+4*f, av, S_XO if f < 4 else S_T, (f%4)*1024)
        poll(S_K1)
        if half == 0: self.mark(4, S_B, 63)
        for kb in range(8): bl('x4', KM+4*kb, akm, S_XO, kb*256)
        for t in range(4):
            for e in range(2): bl('', VM+2*t+e, avm, S_XO, t*512 + e*128)
        for kb in range(8):
            a(f's_waitcnt vmcnt({24 + 14 - 2*kb})')
            a(mf(SX, vr(K+4*kb,4), vr(Q+4*kb,4), vr(SX,16) if kb else vr(CM,16)))
        a('s_waitcnt vmcnt(8)')
        if half == 0: self.mark(5, S_B, 63)
        for kb in range(8): a(mf(SM, vr(KM+4*kb,4), vr(Q+4*kb,4), vr(SM,16) if kb else 0))
        E = [SX+i for i in range(16)] + [SM+i for i in range(4)]
        a(f'v_max3_f32 v{mx}, v{E[0]}, v{E[1]}, v{E[2]}')
        for i in range(3, 19, 2): a(f'v_max3_f32 v{mx}, v{mx}, v{E[i]}, v{E[i+1]}')
        a(f'v_max_f32 v{mx}, v{mx}, v{E[19]}')
        a(f'v_mov_b32 v{t0}, v{mx}'); a(f'v_permlane32_swap_b32 v{mx}, v{t0}'); a(f'v_max_f32 v{mx}, v{mx}, v{t0}')
        a(f'v_mul_f32 v{mx}, s{S_M}, v{mx}')
        for e in E: a(f'v_fma_f32 v{e}, v{e}, s{S_M}, -v{mx}')
        for e in E: a(f'v_exp_f32 v{e}, v{e}')
        a(f'v_add_f32 v{t1}, v{E[0]}, v{E[1]}')
        for e in E[2:]: a(f'v_add_f32 v{t1}, v{t1}, v{e}')
        a(f'v_mov_b32 v{t0}, v{t1}'); a(f'v_permlane32_swap_b32 v{t1}, v{t0}'); a(f'v_add_f32 v{t1}, v{t1}, v{t0}')
        a(f'v_rcp_f32 v{t1}, v{t1}')
        for e in E: a(f'v_mul_f32 v{e}, v{e}, v{t1}')
        for i in range(8): a(f'v_cvt_pk_bf16_f32 v{P+i}, v{SX+2*i}, v{SX+2*i+1}')
        for i in range(2): a(f'v_cvt_pk_bf16_f32 v{PM+i}, v{SM+2*i}, v{SM+2*i+1}')
        a('s_waitcnt vmcnt(0)')
        for t in range(4):
            o = OT+16*t
            a(f'v_mfma_f32_32x32x8_bf16 {vr(o,16)}, {vr(VM+2*t,2)}, {vr(PM,2)}, 0')
            for j in range(2): a(mf(o, vr(V+8*t+4*j,4), vr(P+4*j,4), vr(o,16)))
        for t in range(4):
            for j in range(2):
                o = OT+16*t+8*j
                for i in range(4): a(f'v_cvt_pk_bf16_f32 v{o+i}, v{o+2*i}, v{o+2*i+1}')
                a(f'ds_write_b128 v{xw}, {vr(o,4)} offset:{(2*t+j)*1024}')
        a('s_waitcnt lgkmcnt(0)'); a('s_barrier')
        gemm_core(a, L16, XR, [(ACC, 'a', 128, False)])
        pack_store(a, ACC, vo, S_OUT, 'sc1')
        if half == 0: self.mark(6, S_B, 63)
        self.set_word(FL(half, 'PT'), S_B, S_A); self.signal_wg()
        if half == 0: self.mark(7, S_B, 63)
        add64(a, S_OUT, S_OUT, ngr*8*32768); a(f's_add_u32 s{S_XO}, s{S_XO}, {ngr*32768}')
        a(f's_add_u32 s{S_B}, s{S_B}, {ngr}'); a(f's_cmp_lt_u32 s{S_B}, 64'); a(f's_cbranch_scc1 {lp}')

    def build(self):
        a = self.a; end = self.end
        a(f's_cmp_ge_u32 s2, 256'); a(f's_cbranch_scc1 {end}')
        if self.stamps == 2: a('s_memrealtime s[96:97]')
        a(f's_load_dwordx2 s[{S_DBG}:{S_DBG+1}], s[0:1], {KA_DBG}')
        common_prologue(a, L, L16)
        lw = a.newlabel('Le'); lo = a.newlabel('Le'); ls = a.newlabel('Le'); lg = a.newlabel('Le'); lz = a.newlabel('Le')
        a(f's_getreg_b32 s{S_X}, hwreg(HW_REG_XCC_ID, 0, 3)')
        a(f's_lshl_b32 s{S_T}, s{S_X}, 4'); a(f'v_mov_b32 v3, s{S_T}'); a('v_mov_b32 v4, 1')
        def xwait():
            l1 = a.newlabel('Le'); l2 = a.newlabel('Le')
            a(f's_lshl_b32 s{S_T}, s2, 10'); a(f's_add_u32 s{S_T}, s{S_T}, {W.FLAGS}'); a(f'v_lshl_add_u32 v6, v0, 2, s{S_T}'); a('v_mov_b32 v7, 0')
            a(f'global_store_dword v6, v7, s[{S_WS}:{S_WS+1}] sc1')
            a(f's_cmp_lg_u32 s{S_W}, 0'); a(f's_cbranch_scc1 {l1}')
            a('s_mov_b64 exec, 1'); a(f'global_atomic_add v5, v3, v4, s[{S_DBG}:{S_DBG+1}] offset:{self.TO} sc0 sc1'); a('s_mov_b64 exec, -1')
            a('s_waitcnt vmcnt(2)'); a(f's_branch {l2}')
            a.label(l1); a('s_waitcnt vmcnt(1)'); a.label(l2)
        a(f's_lshr_b32 s{S_A}, s2, 2'); a(f's_and_b32 s{S_B}, s2, 3')
        rb_body(a, 0, KA_X, True, 0, 0, 0, None, False, W.H[0].XNA, '', 'sc1', ldsoff=1024, vb=20, xwait=xwait)
        a(f's_cmp_lg_u32 s{S_W}, 0'); a(f's_cbranch_scc1 {lw}')
        a('s_mov_b64 exec, 1'); a('s_waitcnt vmcnt(2)')
        a(f'v_readfirstlane_b32 s{S_TK}, v5')
        a(f's_lshl_b32 s{S_SLOT}, s{S_X}, 5'); a(f's_add_u32 s{S_SLOT}, s{S_SLOT}, s{S_TK}')
        a(f's_cmp_lt_u32 s{S_TK}, 32'); a(f's_cbranch_scc1 {lg}')
        a('v_mov_b32 v3, 136'); a(f'global_atomic_add v5, v3, v4, s[{S_DBG}:{S_DBG+1}] sc0 sc1'); a('s_waitcnt vmcnt(0)')
        a(f'v_readfirstlane_b32 s{S_TK}, v5')
        self.count_wait(self.TO, 12, ls, S_T, S_SPIN)
        a.label(ls)
        for x in range(8):
            a(f'v_readfirstlane_b32 s{S_T}, v{12+x}'); a(f's_min_u32 s{S_T}, s{S_T}, 32')
            a(f's_add_u32 s{S_SLOT}, s{S_T}, s{S_TK}'); a(f's_add_u32 s{S_SLOT}, s{S_SLOT}, {32*x}')
            a(f's_sub_u32 s{S_T}, 32, s{S_T}'); a(f's_cmp_lt_u32 s{S_TK}, s{S_T}'); a(f's_cbranch_scc1 {lg}')
            a(f's_sub_u32 s{S_TK}, s{S_TK}, s{S_T}')
        a(f's_mov_b32 s{S_SLOT}, 256')
        a.label(lg)
        a(f'v_mov_b32 v3, 0'); a(f'v_mov_b32 v4, s{S_SLOT}'); a('ds_write_b32 v3, v4'); a('s_waitcnt lgkmcnt(0)')
        a('s_mov_b64 exec, -1')
        a.label(lw)
        a('s_waitcnt vmcnt(0)'); a('s_barrier')
        a(f's_cmp_eq_u32 s{S_W}, 1'); a('s_cselect_b64 exec, 1, 0')
        a(f'global_atomic_add v3, v4, s[{S_DBG}:{S_DBG+1}] offset:132 sc1')
        a('s_mov_b64 exec, -1')
        a('v_mov_b32 v3, 0'); a('ds_read_b32 v4, v3'); a('s_waitcnt lgkmcnt(0)'); a(f'v_readfirstlane_b32 s{S_SLOT}, v4'); a('s_barrier')
        a(f's_lshr_b32 s{S_T}, s{S_SLOT}, 5'); a(f's_lshl_b32 s{S_T2}, s{S_T}, 2'); a(f's_lshr_b32 s{S_T2}, {self.perm:#x}, s{S_T2}'); a(f's_and_b32 s{S_T2}, s{S_T2}, 7')
        a(f's_cmp_lt_u32 s{S_T}, 8'); a(f's_cselect_b32 s{S_T2}, s{S_T2}, 8'); a(f's_and_b32 s{S_SLOT}, s{S_SLOT}, 31'); a(f's_lshl_b32 s{S_T2}, s{S_T2}, 5'); a(f's_add_u32 s{S_SLOT}, s{S_SLOT}, s{S_T2}')
        if self.stamps: a(f's_mov_b32 s99, s{S_SLOT}')
        self.role = 'all'
        self.dmap = {('all',0):0, ('ch',1):1, ('ch',2):2, ('ch',3):3, ('ch',4):4, ('gw',1):8, ('gw',2):9, ('gw',3):10, ('pb',1):11, ('ms',12):12, ('gw',4):13, ('pb',3):14}
        if self.stamps == 2:
            a('s_and_b32 s99, s96, 0xfff00000')
        self.sv = 10
        if self.stamps: _ = [a(f's_mov_b32 s{70+k}, 0') for k in range(16)]
        self.stamp(0)
        Lch, Lpb, Lgw, Lms, Lpa = [a.newlabel(n) for n in ('Lchain', 'Lpb', 'Lgw', 'Lms', 'Lpa')]
        a(f's_cmp_lt_u32 s{S_SLOT}, 32'); a(f's_cbranch_scc0 Lnot_chain')
        self.jump(Lch)
        a.label('Lnot_chain')
        a(f's_cmp_lt_u32 s{S_SLOT}, 96'); a(f's_cbranch_scc1 {Lpb}')
        a(f's_cmp_lt_u32 s{S_SLOT}, 224'); a(f's_cbranch_scc1 {Lgw}')
        a(f's_cmp_lt_u32 s{S_SLOT}, 240'); a(f's_cbranch_scc1 {Lms}')
        a(f's_cmp_lt_u32 s{S_SLOT}, 256'); a(f's_cbranch_scc1 {Lpa}')
        a.label(end); a('s_endpgm')
        a.label(Lms); self.role = 'ms'
        a(f's_and_b32 s{S_A}, s{S_SLOT}, 3'); a(f's_lshl_b32 s{S_OFF}, s{S_A}, 8')
        load_wslices(a, [(KA_WOA, 512*1024, 0, 'v', 128)], 1024, L, 3, 4, 5)
        self.flags_ready()
        for half in range(2):
            a(f's_and_b32 s{S_A}, s{S_SLOT}, 3'); a(f's_bfe_u32 s{S_B}, s{S_SLOT}, 0x20002'); self.woa_run(half, 4); self.stamp(3 + 8*half)
            a(f's_bfe_u32 s{S_A}, s{S_SLOT}, 0x20002'); a(f's_and_b32 s{S_B}, s{S_SLOT}, 3')
            self.rb_run(half, 2, 4); self.stamp(4 + 8*half)
        self.dump_marks(); a('s_endpgm')
        a.label(Lpa); self.role = 'pa'
        a(f's_and_b32 s{S_A}, s{S_SLOT}, 3'); self.proj_weights(False); self.flags_ready()
        for half in range(2):
            a(f's_bfe_u32 s{S_A}, s{S_SLOT}, 0x20002'); a(f's_and_b32 s{S_B}, s{S_SLOT}, 3'); self.rb_run(half, 1, 4); self.stamp(3 + 8*half)
            if half == 0:
                a(f's_and_b32 s{S_A}, s{S_SLOT}, 3'); a(f's_bfe_u32 s{S_B}, s{S_SLOT}, 0x20002'); self.proj_run(1, False, 4); self.stamp(4)
        self.dump_marks(); a('s_endpgm')
        a.label(Lpb); self.role = 'pb'
        def pb_ids():
            a(f's_sub_u32 s{S_T}, s{S_SLOT}, 32'); a(f's_lshr_b32 s{S_A}, s{S_T}, 5'); a(f's_lshl_b32 s{S_A}, s{S_A}, 4'); a(f's_and_b32 s{S_T2}, s{S_T}, 15')
            a(f's_add_u32 s{S_A}, s{S_A}, s{S_T2}'); a(f's_bfe_u32 s{S_B}, s{S_T}, 0x10004')
        pb_ids(); self.proj_weights(True); self.flags_ready(); self.stamp(1)
        for half in range(2):
            pb_ids(); self.proj_run(half, True, 2); self.stamp(3 + 8*half)
        self.dump_marks(); a('s_endpgm')
        a.label(Lgw); self.role = 'gw'
        self.end = 'Lm_end2'
        def pa_ids(): a(f's_sub_u32 s{S_T}, s{S_SLOT}, 96'); a(f's_lshr_b32 s{S_A}, s{S_T}, 5'); a(f's_and_b32 s{S_B}, s{S_T}, 31')
        def first_x():
            self.flags_ready(); self.mark(9, S_W, 0)
            a(f's_lshl_b32 s{S_XO}, s{S_B}, 15'); a(f's_add_u32 s{S_XO}, s{S_XO}, {W.H[0].XNA}'); a(f's_mov_b32 s{S_BUF}, {128*1024}')
            dma_x(a, L16, S_XO, S_BUF, 'sc1')
        pa_ids(); self.proj_weights(False, (S_B, 32), first_x); self.mark(10, S_W, 0); self.proj_run(0, False, 32, nowait=True); self.stamp(1)
        def gw_ids():
            a(f's_sub_u32 s{S_T}, s{S_SLOT}, 96'); a(f's_lshr_b32 s{S_A}, s{S_T}, 5'); a(f's_lshl_b32 s{S_A}, s{S_A}, 3'); a(f's_and_b32 s{S_T2}, s{S_T}, 7')
            a(f's_add_u32 s{S_A}, s{S_A}, s{S_T2}'); a(f's_bfe_u32 s{S_B}, s{S_T}, 0x20003')
        for half in range(2):
            gw_ids(); self.att_run(half, 4); self.stamp(3 + 8*half)
            gw_ids()
            if half == 0: self.tb_weights()
            self.tb_run(half, 4); self.stamp(4 + 8*half)
        self.dump_marks()
        a.label('Lm_end2'); a('s_endpgm')
        a.label(Lch); self.role = 'ch'
        self.end = 'Lm_end3'; end = self.end
        r = C.ChainRegs(); self.sv = r.R
        a(f's_mov_b32 s{C.S_H}, s{S_SLOT}')
        lslow = a.newlabel('Lcslow'); lfast = a.newlabel('Lcfast')
        def mid(T):
            l1 = a.newlabel('Lcm'); l2 = a.newlabel('Lcm')
            T = r.WV + 64
            self.count_wait(132, T, end, C.S_T, C.S_SPIN); self.count_wait(self.TO, T, end, C.S_T, C.S_SPIN)
            a(f'v_readfirstlane_b32 s{C.S_T}, v{T}')
            add64(a, S_DBG, S_WS, FL(0, 'EL'))
            if self.chain_kw.get('force_slow'): a(f's_mov_b32 s{C.S_T}, 0')
            a(f's_mov_b32 s{C.S_EP}, 0'); a(f's_mov_b32 s{C.S_EM}, 0'); a(f's_mov_b32 s{C.S_HALF}, 0')
            a(f's_cmp_ge_u32 s{C.S_T}, 32'); a(f's_cselect_b32 s{C.S_FB}, 1, 0'); a(f's_cbranch_scc1 {l1}')
            C.chain_init_comm(a, r, 'sc1', True, T); a(f's_branch {l2}')
            a.label(l1); C.chain_init_comm(a, r, '', True, T)
            a.label(l2); C.group_arrive(a, T, 1280)
        C.chain_setup(a, r, mid)
        self.stamp(1)
        C.group_wait(a, r.R, 1280, 32, end)
        a(f's_cmp_eq_u32 s{C.S_FB}, 1'); a(f's_cbranch_scc1 {lfast}')
        a(f's_branch {lslow}')
        a.label(end); a('s_endpgm')
        kw = {k: v for k, v in self.chain_kw.items() if k != 'force_slow'}
        for lbl, stf in ((lfast, ''), (lslow, 'sc1')):
            a.label(lbl)
            lh = a.newlabel('Lch_half'); a.label(lh)
            self.stamp(2, C.S_HALF)
            C.chain_start(a, r, end, 1)
            def started(sv):
                self.sv = sv; self.stamp(3, C.S_HALF); self.sv = r.R
            kw['started'] = started
            C.chain_all_waves(a, r, stf, end, fused=1, **(dict(kw, ef='sc1') if stf else kw))
            self.stamp(4, C.S_HALF)
            if kw.get('stamps'):
                for k in range(12): a(f'v_mov_b32 v{k}, s{84+k}')
                a(f's_lshl_b32 s{C.S_T}, s{C.S_H}, 2'); a(f's_add_u32 s{C.S_T}, s{C.S_T}, s{C.S_W}'); a(f's_lshl_b32 s{C.S_T}, s{C.S_T}, 6')
                a(f's_lshl_b32 s{C.S_T2}, s{C.S_HALF}, 13'); a(f's_add_u32 s{C.S_T}, s{C.S_T}, s{C.S_T2}')
                a(f's_add_u32 s{C.S_T}, s{C.S_T}, {STAMP_OFF + 32768}'); a(f'v_mov_b32 v16, s{C.S_T}')
                for k in range(3): a(f'global_store_dwordx4 v16, {vr(4*k,4)}, s[{S_WS}:{S_WS+1}] offset:{16*k}')
                a('s_waitcnt vmcnt(0)')
            a(f's_cmp_lg_u32 s{C.S_HALF}, 0'); a(f's_cbranch_scc1 {end}')
            a(f's_mov_b32 s{C.S_HALF}, 1'); C.group_arrive(a, r.R, 1408); C.group_wait(a, r.R, 1408, 32, end)
            a(f's_xor_b32 s{C.S_EM}, s{C.S_EM}, 1'); C.chain_init_comm(a, r, stf, False)
            a(f's_branch {lh}')
        return a.lines
    def jump(self, label):
        a = self.a; l = a.newlabel('Lj')
        a('s_getpc_b64 s[48:49]'); a.label(l)
        a(f's_add_u32 s48, s48, {label}-{l}'); a('s_addc_u32 s49, s49, 0'); a('s_setpc_b64 s[48:49]')

NAME = 'interleave_layers__softmax_full_mha__memory_aug_recurrent_mem_tr__prompt'
def build(stamps=False, chain_kw={}, verbose=False, aslist=True):
    ks = []
    for n, lines, vg, acc in ((NAME + '_kernel', Mega(stamps, chain_kw).build(), 512, 256),):
        rep = []
        l = fix_hazards(lines, rep)
        for e in check_waits(l, n[:8]): print(e)
        if verbose: print(n, len(l), len(rep))
        ks.append((n, l, vg, acc))
    hdr = ''.join(l for l in open(f'cdna_kernels/{NAME}.s.ref').readlines()[:14] if '@launch' not in l)
    t = assemble_file(hdr, [(NAME + '_kernel', 256, 256, 163840)], ks)
    return t if aslist else t.replace(f'@launch kernel={NAME}_kernel ', '@launch ')

if __name__ == '__main__':
    import sys
    kw = eval(sys.argv[2]) if len(sys.argv) > 2 else dict()
    st = (True if sys.argv[3] == '1' else 2) if len(sys.argv) > 3 else False
    t = build(st, kw, True, aslist=(st is True))
    open(sys.argv[1] if len(sys.argv) > 1 else f'cdna_kernels/{NAME}.s', 'w').write(t)
    print(len(t))
```

```python
from asmlib import *
from layout import *
import math, struct

def f2u(f): return struct.unpack('<I', struct.pack('<f', f))[0]

LW = 0
LM = 144 * 1024
LS = 148 * 1024
DELTA = [0, 1, 8, 9, 2, 3, 10, 11]
DELTA2 = [0, 1, 32, 33, 8, 9, 40, 41]

class ChainRegs:
    def __init__(self):
        v = RegAlloc('v', 0, 256)
        self.M = v.alloc(32, 4); self.R = v.alloc(32, 4); self.A = v.alloc(32, 4)
        self.KX = v.alloc(8, 4); self.VX = v.alloc(8, 4)
        self.T = v.alloc(4, 4)
        self.VM = v.alloc(4)
        self.idx = self.VM + 1; self.aMst = self.VM + 3
        self.PZ = v.alloc(2)
        self.Z = v.alloc(2)
        self.I = v.alloc(2); self.E = v.alloc(4); self.One = v.alloc(4)
        self.PG = v.alloc(2)
        self.aPst = v.alloc(); self.aOw = v.alloc(); self.aW = v.alloc()
        self.aK = v.alloc(); self.aV = v.alloc(); self.aKm = v.alloc(); self.aVm = v.alloc(); self.aL = v.alloc()
        assert v.next <= 144, v.next
        self.WV = 144
        self.place = {}
        lds = [('q', 1, s) for s in range(8)] + [('q', 0, s) for s in range(4, 8)] + [('o', t, k) for t in (0, 6, 7) for k in range(2)]
        for i, b in enumerate(lds): self.place[b] = ('l', i * 2048)
        rest = [(m, t, s) for m in 'qkv' for t in range(2) for s in range(8)] + [('o', t, k) for t in range(8) for k in range(2)]
        rest = [b for b in rest if b not in self.place]
        assert len(rest) == 46
        for i, b in enumerate(rest):
            self.place[b] = ('a', 8 * i) if i < 32 else ('v', self.WV + 8 * (i - 32))
    def blk(self, b):
        k, r = self.place[b]; assert k != 'l'
        return vr(r, 8, k)

S_WS = 4; S_H = 6; S_W = 7
S_SRD = 8
S_CP = 12
S_HB = 20
S_KV = 22
S_CML = 24
S_XP = 26
S_EP = 28; S_EM = 29; S_STEP = 30; S_C = 31; S_SPIN = 32
S_PLO = 33; S_PHI = 34; S_T = 35; S_T2 = 36; S_T3 = 37
S_XH1 = 38; S_XH0 = 40; S_XR = 42
S_DBG = 44; S_TMP = 46; S_M0 = 48; S_RDY = 49
S_FH = 50; S_FW = 52; S_CPR = 54; S_CM = 56; S_HALF = 58; S_FB = 59
S_STAMP = 60
S_BW = 8
S_BR = 10
S_GS = 49
S_CME = 80
REP = 8192
S_SP = 31

def add64(a, dst, base, off):
    a(f's_add_u32 s{dst}, s{base}, {off}'); a(f's_addc_u32 s{dst+1}, s{base+1}, 0')

def frag_of(w, j): return (j ^ (w & 1)) if j < 4 else 4 + (w ^ (j - 4))

def chain_setup(a, r, mid=None, ahead=0):
    L = r.T; N = r.T+1; G = r.T+2; L16 = r.aL
    T = r.R
    a(f'v_lshrrev_b32 v{T}, 6, v0'); a(f'v_and_b32 v{L}, 63, v0'); a(f'v_readfirstlane_b32 s{S_W}, v{T}')
    a(f'v_and_b32 v{N}, 15, v{L}'); a(f'v_lshrrev_b32 v{G}, 4, v{L}')
    a(f's_mov_b32 s{S_PLO}, 0x05040100'); a(f's_mov_b32 s{S_PHI}, 0x07060302')
    a(f's_mov_b32 s{S_XH1}, 0xcccccccc'); a(f's_mov_b32 s{S_XH1+1}, 0xcccccccc')
    a(f's_mov_b32 s{S_XH0}, 0x33333333'); a(f's_mov_b32 s{S_XH0+1}, 0x33333333')
    a(f's_mov_b32 s{S_XR}, 0x000f000f'); a(f's_mov_b32 s{S_XR+1}, 0')
    a(f's_mov_b32 s{S_C}, {f2u(math.log2(math.e) / math.sqrt(128.0)):#x}')
    a(f'v_lshlrev_b32 v{L16}, 4, v{L}')
    a(f's_mul_i32 s{S_T}, s{S_W}, 36864'); a(f'v_add_u32 v{r.aW}, s{S_T}, v{L16}')
    a(f'v_bfe_u32 v{T}, v{N}, 1, 1')
    a(f'v_mul_u32_u24 v{r.idx}, 0xaaaa, v{T}'); a(f'v_bfe_u32 v{T}, v{N}, 2, 1'); a(f'v_mul_u32_u24 v{T}, 0xaaaa, v{T}'); a(f'v_lshl_add_u32 v{r.idx}, v{T}, 16, v{r.idx}'); a(f'v_add_u32 v{r.idx}, 0x44444444, v{r.idx}')
    a(f'v_lshlrev_b32 v{T}, 2, v{G}'); a(f'v_sub_u32 v{T}, v{N}, v{T}')
    a(f'v_mov_b32 v{T+1}, 0x3f80'); a(f'v_mov_b32 v{T+2}, 0x3f800000')
    def onehot(dst, nregs):
        for i in range(nregs):
            a(f'v_cmp_eq_u32 vcc, {2*i}, v{T}'); a(f'v_cndmask_b32 v{dst+i}, 0, v{T+1}, vcc')
            a(f'v_cmp_eq_u32 vcc, {2*i+1}, v{T}'); a(f'v_cndmask_b32 v{dst+i}, v{dst+i}, v{T+2}, vcc')
    onehot(r.I, 2)
    a(f'v_and_b32 v{T}, 11, v{N}')
    onehot(r.E, 2)
    a(f'v_mov_b32 v{r.E+2}, v{r.E}'); a(f'v_mov_b32 v{r.E+3}, v{r.E+1}')
    for i in range(4): a(f'v_mov_b32 v{r.One+i}, 0x3f803f80')
    a(f'v_mov_b32 v{r.PZ+1}, 0'); a(f'v_mov_b32 v{r.Z}, 0'); a(f'v_mov_b32 v{r.Z+1}, 0')
    a(f'v_lshrrev_b32 v{T}, 3, v{L}'); a(f'v_lshlrev_b32 v{T}, 11, v{T}'); a(f'v_and_b32 v{T+1}, 7, v{L}')
    a(f'v_lshl_add_u32 v{r.aPst}, v{T+1}, 3, v{T}')
    a(f's_lshl_b32 s{S_T}, s{S_W}, 14'); a(f's_lshl_b32 s{S_T2}, s{S_H}, 6'); a(f's_add_u32 s{S_T}, s{S_T}, s{S_T2}')
    a(f's_add_u32 s{S_T}, s{S_T}, {W.CP}'); add64(a, S_CP, S_WS, f's{S_T}')
    for p in range(1, 4): add64(a, S_CP+2*p, S_CP, p * 65536)
    assert W.CP >= LM and W.CM >= LM
    a(f's_lshl_b32 s{S_T}, s{S_W}, 16'); a(f's_lshl_b32 s{S_T2}, s{S_H}, 11'); a(f's_add_u32 s{S_T}, s{S_T}, s{S_T2}')
    a(f's_add_u32 s{S_T}, s{S_T}, {W.CP - LM}'); add64(a, S_CPR, S_WS, f's{S_T}')
    add64(a, S_CM, S_WS, W.CM); add64(a, S_CML, S_WS, W.CM - LM + 4096)
    a(f's_lshl_b32 s{S_T2}, s{S_W}, 11'); a(f's_lshr_b32 s{S_T3}, s{S_H}, 3'); a(f's_lshl_b32 s{S_T3}, s{S_T3}, 9'); a(f's_add_u32 s{S_T2}, s{S_T2}, s{S_T3}')
    a(f's_and_b32 s{S_T3}, s{S_H}, 1'); a(f's_lshl_b32 s{S_T3}, s{S_T3}, 8'); a(f's_add_u32 s{S_T2}, s{S_T2}, s{S_T3}')
    a(f's_bfe_u32 s{S_T3}, s{S_H}, 0x20001'); a(f's_lshl_b32 s{S_T3}, s{S_T3}, 6'); a(f's_add_u32 s{S_T2}, s{S_T2}, s{S_T3}')
    a(f'v_bfe_u32 v{T}, v{L}, 1, 1'); a(f'v_lshlrev_b32 v{T}, 5, v{T}')
    a(f'v_and_b32 v{T+1}, 1, v{L}'); a(f'v_lshl_add_u32 v{T}, v{T+1}, 3, v{T}')
    a(f'v_and_b32 v{T+1}, 1, v{G}'); a(f'v_lshl_add_u32 v{T}, v{T+1}, 4, v{T}')
    a(f'v_add_u32 v{r.aMst}, s{S_T2}, v{T}')
    a(f's_cmp_lt_u32 s{S_W}, 2'); a(f's_cselect_b32 s{S_XR}, -1, s{S_XR}'); a(f's_cselect_b32 s{S_T3}, {REP}, 0')
    a(f'v_bfe_u32 v{T}, v{L}, 2, 2'); a(f'v_mul_lo_u32 v{T}, v{T}, s{S_T3}'); a(f'v_add_u32 v{r.aMst}, v{r.aMst}, v{T}')
    a(f's_mul_i32 s{S_T3}, s{S_W}, {REP}'); add64(a, S_CME, S_CML, f's{S_T3}')
    a(f's_bfe_u32 s{S_T2}, s{S_H}, 0x20001'); a(f's_lshl_b32 s{S_T2}, s{S_T2}, 11')
    a(f's_lshr_b32 s{S_T3}, s{S_H}, 3'); a(f's_lshl_b32 s{S_T3}, s{S_T3}, 8'); a(f's_add_u32 s{S_T2}, s{S_T2}, s{S_T3}')
    a(f's_and_b32 s{S_T3}, s{S_H}, 1'); a(f's_lshl_b32 s{S_T3}, s{S_T3}, 7'); a(f's_add_u32 s{S_T2}, s{S_T2}, s{S_T3}')
    a(f's_lshl_b32 s{S_T3}, s{S_W}, 2'); a(f's_add_u32 s{S_M0}, s{S_T2}, s{S_T3}')
    a(f'v_lshrrev_b32 v{T}, 1, v{G}'); a(f'v_lshlrev_b32 v{T}, 8, v{T}'); a(f'v_and_b32 v{T+1}, 1, v{G}')
    a(f'v_lshl_add_u32 v{T}, v{T+1}, 5, v{T}'); a(f'v_lshl_add_u32 v{T}, v{N}, 4, v{T}')
    a(f's_lshl_b32 s{S_T}, s{S_W}, 9'); a(f's_add_u32 s{S_T}, s{S_T}, {LM}'); a(f'v_add_u32 v{r.aOw}, s{S_T}, v{T}')
    a(f'v_and_b32 v{T}, 2, v{L}'); a(f'v_cmp_eq_u32 vcc, 0, v{T}')
    a(f's_lshl_b32 s{S_T}, s{S_W}, 10'); a(f's_add_u32 s{S_T}, s{S_T}, {LM+12288}'); a(f'v_add_u32 v{T}, s{S_T}, v{L16}')
    a(f'v_and_b32 v{T+1}, 1, v{G}'); a(f'v_lshlrev_b32 v{T+1}, 5, v{T+1}'); a(f'v_xor_b32 v{T}, v{T}, v{T+1}')
    a(f'v_cndmask_b32 v{r.aOw}, v{T}, v{r.aOw}, vcc')
    a(f'v_lshrrev_b32 v{T}, 3, v{N}'); a(f'v_lshlrev_b32 v{T}, 8, v{T}'); a(f'v_and_b32 v{T+1}, 7, v{N}'); a(f'v_lshl_add_u32 v{T}, v{T+1}, 4, v{T}')
    a(f'v_lshl_add_u32 v{T}, v{G}, 9, v{T}')
    a(f's_lshl_b32 s{S_T}, s{S_W}, 11'); a(f's_add_u32 s{S_T2}, s{S_T}, {HB_K}'); a(f'v_add_u32 v{r.aK}, s{S_T2}, v{T}')
    a(f'v_lshlrev_b32 v{T}, 4, v{N}'); a(f'v_lshl_add_u32 v{T}, v{G}, 9, v{T}')
    a(f's_add_u32 s{S_T2}, s{S_T}, {HB_V}'); a(f'v_add_u32 v{r.aV}, s{S_T2}, v{T}')
    a(f'v_lshrrev_b32 v{T}, 2, v{N}'); a(f'v_lshlrev_b32 v{T}, 5, v{T}'); a(f'v_and_b32 v{T+1}, 1, v{N}'); a(f'v_lshl_add_u32 v{T}, v{T+1}, 4, v{T}')
    a(f'v_lshl_add_u32 v{T}, v{G}, 7, v{T}')
    a(f's_lshl_b32 s{S_T}, s{S_W}, 9'); a(f's_add_u32 s{S_T2}, s{S_T}, {HB_KM}'); a(f'v_add_u32 v{r.aKm}, s{S_T2}, v{T}')
    a(f'v_lshlrev_b32 v{T}, 3, v{L}'); a(f's_add_u32 s{S_T2}, s{S_T}, {HB_VM}'); a(f'v_add_u32 v{r.aVm}, s{S_T2}, v{T}')
    a(f'v_add_u32 v{r.aL}, {LM}, v{L16}')
    a(f'v_lshlrev_b32 v{T}, 2, v{L}'); a(f'v_add_u32 v{r.PG+1}, {LS+4096}, v{T}')
    a(f's_mov_b32 s{S_XP}, 0x01010101'); a(f's_mov_b32 s{S_XP+1}, 0x01010101')
    KBG = r.T+3; VO = r.VX
    a(f'v_lshrrev_b32 v{T}, 1, v{G}'); a(f'v_lshlrev_b32 v{T}, 4, v{T}')
    a(f'v_and_b32 v{T+1}, 1, v{G}'); a(f'v_lshl_add_u32 v{KBG}, v{T+1}, 2, v{T}')
    a(f's_lshl_b32 s{S_T}, s{S_H}, 8'); a(f's_lshl_b32 s{S_T2}, s{S_W}, 6'); a(f's_add_u32 s{S_T}, s{S_T}, s{S_T2}')
    a(f'v_lshlrev_b32 v{VO}, 15, v{KBG}'); a(f'v_lshl_add_u32 v{VO}, v{N}, 2, v{VO}'); a(f'v_add_u32 v{VO}, s{S_T}, v{VO}')
    a(f's_mov_b32 s{S_SRD+2}, {4*MB}'); a(f's_mov_b32 s{S_SRD+3}, 0x20000')
    NB = 11; PK = 88; U = 96
    groups = [(m, s, rg) for m in 'kvq' for rg in range(2) for s in range(8)]
    TQ = r.VX+1; TO = r.VX+2; TD_ = r.VX+3
    a(f'v_lshrrev_b32 v{TQ}, 1, v0'); a(f'v_lshlrev_b32 v{TQ}, 13, v{TQ}'); a(f'v_and_b32 v{TO}, 1, v0'); a(f'v_lshl_add_u32 v{TQ}, v{TO}, 7, v{TQ}')
    a(f's_lshl_b32 s{S_T}, s{S_H}, 8'); a(f'v_add_u32 v{TQ}, s{S_T}, v{TQ}')
    a(f's_lshl_b32 s{S_T}, s{S_H}, 17'); a(f'v_lshl_add_u32 v{TO}, v0, 7, s{S_T}')
    for i, ka in enumerate((KA_WK, KA_WV, KA_WQ, KA_WO)): a(f's_load_dwordx2 s[{60+2*i}:{61+2*i}], s[0:1], {ka}')
    a('s_waitcnt lgkmcnt(0)')
    def touch(hm):
        if hm >= 8 or not ahead: return 0
        for i in range(2):
            off = ((128*(hm&1) + 256*i) * 8192) if hm < 6 else (65536*(hm&1) + 32768*i)
            add64(a, S_TMP, 60 + 2*(hm >> 1), off)
            a(f'global_load_dword v{TD_}, v{TQ if hm < 6 else TO}, s[{S_TMP}:{S_TMP+1}]')
        return 2
    def put(block, rg, i, emit, pend):
        k, base = r.place[block]
        if k == 'v': emit(base+4*rg+i)
        elif k == 'a':
            emit(pend+i); a(f'v_accvgpr_write_b32 a{base+4*rg+i}, v{pend+i}')
        else:
            emit(pend+i)
            if i == 3:
                a(f'ds_write_b128 v{r.aW}, {vr(pend,4)} offset:{base+1024*rg}'); a('s_waitcnt lgkmcnt(0)')
    DEPTH = 6
    kaoff = {'q': KA_WQ, 'k': KA_WK, 'v': KA_WV}
    cur = [None]
    def issue(gi):
        m, s, rg = groups[gi]
        if cur[0] != m:
            a(f's_load_dwordx2 s[{S_SRD}:{S_SRD+1}], s[0:1], {kaoff[m]}'); a('s_waitcnt lgkmcnt(0)'); cur[0] = m
        if True:
            if s < 4: a(f's_and_b32 s{S_T2}, s{S_W}, 1'); a(f's_xor_b32 s{S_T2}, s{S_T2}, {s}')
            else: a(f's_xor_b32 s{S_T2}, s{S_W}, {s}')
            a(f's_and_b32 s{S_T3}, s{S_T2}, 1'); a(f's_lshl_b32 s{S_T3}, s{S_T3}, 21'); a(f's_and_b32 s{S_T2}, s{S_T2}, 6'); a(f's_lshl_b32 s{S_T2}, s{S_T2}, 13')
            a(f's_add_u32 s{S_T3}, s{S_T3}, s{S_T2}')
        b = (gi % NB) * 8
        for jj in range(8):
            a(f's_add_u32 s{S_T}, s{S_T3}, {(128*rg+DELTA2[jj])*8192}')
            a(f'buffer_load_dword v{b+jj}, v{VO}, s[{S_SRD}:{S_SRD+3}], s{S_T} offen')
    def consume(gi):
        m, s, rg = groups[gi]; b = (gi % NB) * 8
        for t in range(2):
            for i in range(4):
                lo, hi = b+2*i, b+2*i+1
                if m == 'q':
                    def emit(d, lo=lo, hi=hi, t=t):
                        if t == 0: a(f'v_lshlrev_b32 v{U}, 16, v{lo}'); a(f'v_lshlrev_b32 v{U+1}, 16, v{hi}')
                        else: a(f'v_and_b32 v{U}, 0xffff0000, v{lo}'); a(f'v_and_b32 v{U+1}, 0xffff0000, v{hi}')
                        a(f'v_mul_f32 v{U}, s{S_C}, v{U}'); a(f'v_mul_f32 v{U+1}, s{S_C}, v{U+1}'); a(f'v_cvt_pk_bf16_f32 v{d}, v{U}, v{U+1}')
                else:
                    def emit(d, lo=lo, hi=hi, t=t): a(f'v_perm_b32 v{d}, v{hi}, v{lo}, s{S_PHI if t else S_PLO}')
                put((m, t, s), rg, i, emit, PK + 4*t)
    ops = []
    for hm in range(ahead): touch(hm)
    for gi in range(len(groups) + DEPTH):
        if gi < len(groups):
            n = touch(gi // 8 + ahead) if gi % 8 == 0 else 0
            issue(gi); ops.append(n + 8)
        if gi == 14 and mid: a('s_waitcnt vmcnt(40)'); mid(None)
        if gi >= DEPTH:
            a(f's_waitcnt vmcnt({sum(ops[gi-DEPTH+1:])})'); consume(gi - DEPTH)
    for hm in range(6 + ahead, 8): touch(hm)
    a(f's_load_dwordx2 s[{S_SRD}:{S_SRD+1}], s[0:1], {KA_WO}')
    a(f's_lshl_b32 s{S_T}, s{S_H}, 17'); a(f's_lshl_b32 s{S_T2}, s{S_W}, 8'); a(f's_add_u32 s{S_T}, s{S_T}, s{S_T2}')
    a(f'v_lshlrev_b32 v{VO}, 10, v{KBG}'); a(f'v_lshl_add_u32 v{VO}, v{N}, 4, v{VO}'); a(f'v_add_u32 v{VO}, s{S_T}, v{VO}')
    a('s_waitcnt lgkmcnt(0)')
    og = [(k, rg) for k in range(2) for rg in range(2)]
    def oissue(gi):
        k, rg = og[gi]; b = (gi % 2) * 32
        for jj in range(8):
            a(f's_mov_b32 s{S_T}, {(64*k+32*rg+DELTA[jj])*1024}')
            a(f'buffer_load_dwordx4 {vr(b+4*jj,4)}, v{VO}, s[{S_SRD}:{S_SRD+3}], s{S_T} offen')
    def ocons(gi):
        k, rg = og[gi]; b = (gi % 2) * 32
        for t in range(8):
            for i in range(4):
                def emit(d, hi=b+4*(2*i+1)+(t>>1), lo=b+4*(2*i)+(t>>1), t=t): a(f'v_perm_b32 v{d}, v{hi}, v{lo}, s{S_PHI if t & 1 else S_PLO}')
                put(('o', t, k), rg, i, emit, PK + 4*(t&1))
    oissue(0); oissue(1)
    for gi in range(4):
        a(f's_waitcnt vmcnt({8 if gi < 3 else 0})'); ocons(gi)
        if gi + 2 < 4: oissue(gi + 2)

def board_setup(a, r, stf):
    a(f's_lshl_b32 s{S_T}, s{S_H}, 2'); a(f's_add_u32 s{S_T}, s{S_T}, {W.CB - LM}')
    add64(a, S_BW, S_WS, f's{S_T}'); add64(a, S_BR, S_WS, W.CB - LS - 4096); a(f's_mov_b32 s{S_GS}, 0')
    a('s_mov_b64 exec, 0x101'); a(f'global_store_dword v{r.aL}, v{r.Z}, s[{S_BW}:{S_BW+1}] {stf}'); a('s_mov_b64 exec, -1')

def chain_init_comm(a, r, stf, first, T=None):
    T = r.R if T is None else T
    a(f's_load_dwordx2 s[{S_TMP}:{S_TMP+1}], s[0:1], {KA_MEM0}')
    a(f'v_and_b32 v{T}, 0x30, v{r.aL}'); a(f'v_lshlrev_b32 v{T}, 1, v{T}'); a(f'v_bfe_u32 v{T+1}, v{r.aL}, 8, 1'); a(f'v_lshl_add_u32 v{T}, v{T+1}, 10, v{T}')
    a(f'v_add_u32 v{T}, s{S_M0}, v{T}')
    a(f's_xor_b32 s{S_T}, s{S_EP}, 1')
    for i in range(4): a(f'v_mov_b32 v{T+4+i}, s{S_T}')
    a('s_waitcnt lgkmcnt(0)')
    a(f'global_load_dword v{T+2}, v{T}, s[{S_TMP}:{S_TMP+1}]'); a(f'global_load_dword v{T+3}, v{T}, s[{S_TMP}:{S_TMP+1}] offset:16')
    if first:
        a(f'global_store_dwordx4 v{r.aL}, {vr(T+4,4)}, s[{S_CPR}:{S_CPR+1}] {stf}')
        a(f'global_store_dwordx4 v{r.aL}, {vr(T+4,4)}, s[{S_CPR}:{S_CPR+1}] offset:1024 {stf}')
    a('s_waitcnt vmcnt(0)')
    a(f'v_and_or_b32 v{T+2}, v{T+2}, -2, s{S_EM}')
    a(f's_mov_b64 exec, s[{S_XR}:{S_XR+1}]')
    a(f'global_store_dwordx2 v{r.aMst}, {vr(T+2,2)}, s[{S_CM}:{S_CM+1}] {stf}')
    a('s_mov_b64 exec, -1'); a('s_waitcnt vmcnt(0)')

def group_arrive(a, T, off):
    l1 = a.newlabel('Lgb')
    a('s_barrier')
    a(f'v_mov_b32 v{T}, {off}'); a(f'v_mov_b32 v{T+1}, 1')
    a(f's_cmp_lg_u32 s{S_W}, 0'); a(f's_cbranch_scc1 {l1}')
    a('s_mov_b64 exec, 1'); a(f'global_atomic_add v{T}, v{T+1}, s[{S_DBG}:{S_DBG+1}] sc1'); a('s_waitcnt vmcnt(0)'); a('s_mov_b64 exec, -1')
    a.label(l1)
def group_wait(a, T, off, count, fail):
    l2 = a.newlabel('Lgb'); l3 = a.newlabel('Lgb')
    a(f's_mov_b32 s{S_SPIN}, 0'); a(f'v_mov_b32 v{T}, {off}')
    a.label(l2)
    a(f'global_load_dword v{T+2}, v{T}, s[{S_DBG}:{S_DBG+1}] sc1'); a('s_waitcnt vmcnt(0)')
    a(f'v_readfirstlane_b32 s{S_T}, v{T+2}')
    a(f's_cmp_ge_u32 s{S_T}, {count}'); a(f's_cbranch_scc1 {l3}')
    a('s_sleep 2')
    a(f's_add_u32 s{S_SPIN}, s{S_SPIN}, 1'); a(f's_cmp_lt_u32 s{S_SPIN}, 0x60000'); a(f's_cbranch_scc1 {l2}')
    a(f's_branch {fail}')
    a.label(l3)

DPPQ = 'quad_perm:[2,3,0,1] row_mask:0xf bank_mask:0xf'
XA = 's_mov_b64 exec, -1'

def prog_load(a, r): a(f'global_load_dword v{r.PG}, v{r.PG+1}, s[{S_FH}:{S_FH+1}] sc1')
def prog_block(a, r, lbl, back, need_sgpr, fail):
    a.label(lbl)
    prog_load(a, r); a('s_waitcnt vmcnt(0)')
    a(f'v_cmp_ge_u32 s[{S_TMP}:{S_TMP+1}], s{need_sgpr}, v{r.PG}'); a(f's_and_b64 s[{S_TMP}:{S_TMP+1}], s[{S_TMP}:{S_TMP+1}], s[{S_XP}:{S_XP+1}]'); a(f's_cbranch_scc0 {back}')
    a('s_sleep 1')
    a(f's_add_u32 s{S_SPIN}, s{S_SPIN}, 1'); a(f's_cmp_lt_u32 s{S_SPIN}, 0x60000'); a(f's_cbranch_scc1 {lbl}')
    a(f's_branch {fail}')
def kv_load(a, r, i, dst, base=None):
    base = base or S_KV
    ad, off = ((r.aK, 0), (r.aK, 128), (r.aV, 0), (r.aV, 256))[i]
    a(f'global_load_dwordx4 {vr(dst+4*i,4)}, v{ad}, s[{base}:{base+1}] offset:{off} sc1')

def chain_start(a, r, fail, fused, started=None):
    HS = W.H[1].HB - W.H[0].HB
    a(f's_mul_i32 s{S_T2}, s{S_HALF}, {HS}'); a(f's_lshl_b32 s{S_T}, s{S_H}, 21'); a(f's_add_u32 s{S_T}, s{S_T}, s{S_T2}')
    a(f's_add_u32 s{S_T}, s{S_T}, {W.H[0].HB}'); add64(a, S_KV, S_WS, f's{S_T}'); a(f's_mov_b64 s[{S_HB}:{S_HB+1}], s[{S_KV}:{S_KV+1}]')
    a(f's_mov_b32 s{S_STEP}, 0'); a(f's_mov_b32 s{S_SPIN}, 0')
    a(f's_lshl_b32 s{S_T}, s{S_H}, 8'); a(f's_lshl_b32 s{S_T2}, s{S_HALF}, 17'); a(f's_add_u32 s{S_T}, s{S_T}, s{S_T2}')
    a(f's_add_u32 s{S_T}, s{S_T}, {FL(0, "CHP")}'); add64(a, S_FW, S_WS, f's{S_T}')
    a(f's_sub_u32 s{S_FH}, s{S_FW}, {FL(0, "CHP") - FL(0, "HEAD") + LS + 4096}'); a(f's_subb_u32 s{S_FH+1}, s{S_FW+1}, 0')
    a(f'v_mov_b32 v{r.PG}, 0'); a(f's_mov_b32 s{S_SP}, 0')
    for i in range(2): a(f'global_load_dwordx4 {vr(r.M+24+4*i,4)}, v{r.aL}, s[{S_CPR}:{S_CPR+1}] offset:{1024*i} sc1')
    add64(a, S_KV, S_KV, HB_REC)

def chain_wave(a, r, w, stf, fail, done, fused=1, pat=(13, 16, 16, 16), d1=(100, 140, 280, 320), d2=(220, 200, 0, 0), e23=(100, 80, 60, 60), lpos=4, nb=(2, 2, 1, 2), bk=(120, 100, 100, 120), es=80, eb=None, e3in=1, cp=1, rep=1, ack1=(None, None, 0, 0), ack2=(0, 0, 0, 0), bx=None, bp=(18, 19, 21, 23, 24, 25), bg=16, c1=(40, 40, 40, 40), ef='sc1', rt=None, started=None,
               nomax=1, stamps=False, stampsel=None, nocomm=0, nohk=0):
    R, A, M, T = r.R, r.A, r.M, r.T
    if isinstance(nb, tuple): nb = nb[w]
    if isinstance(bk, tuple): bk = bk[w]
    Aq = [A, A+4]; Ak = [A+8, A+12]; Av = [A+16, A+20]
    ACC = {'q': Aq, 'k': Ak, 'v': Av}
    ns = [0]; sid = [0]
    def st(name=None):
        if name is None:
            name = sid[0]; sid[0] += 1
        if stamps and ((stampsel is None and isinstance(name, int)) or (stampsel is not None and name in stampsel)):
            a(f's_memtime s[{S_STAMP+2*ns[0]}:{S_STAMP+2*ns[0]+1}]'); ns[0] += 1
    def tr(k):
        if rt is not None: a(f's_memtime s[{(S_STAMP+2*k) if k != 10 else 96}:{((S_STAMP+2*k) if k != 10 else 96)+1}]')
    pos = [None]
    def hook():
        if pos[0] is None or bx is None: return
        if w == 1 and pos[0] == bx: a('s_mov_b64 exec, 0x101'); a(f'global_store_dword v{r.aL}, v{r.PZ}, s[{S_BW}:{S_BW+1}] {stf}'); a(XA)
        if w == 0 and pos[0] in bp: a(f'global_load_dword v{r.PG}, v{r.PG+1}, s[{S_BR}:{S_BR+1}] sc1')
        pos[0] += 1
    def smf(acc, aop, b): a(f'v_smfmac_f32_16x16x64_bf16 {vr(acc,4)}, {vr(aop,4)}, {b}, v{r.idx}'); hook()
    def m32(d, x, y, c): a(f'v_mfma_f32_16x16x32_bf16 {vr(d,4)}, {vr(x,4)}, {vr(y,4)}, {vr(d,4) if c else 0}'); hook()
    def m16(d, x, y, c): a(f'v_mfma_f32_16x16x16_bf16 {vr(d,4)}, {vr(x,2)}, {vr(y,2)}, {vr(d,4) if c else 0}'); hook()
    def ldh(dst, b, hh): a(f'ds_read_b128 {vr(dst+4*hh,4)}, v{r.aW} offset:{r.place[b][1]+1024*hh}')
    def nops(c):
        n = c // 4
        while n > 0:
            k = min(n, 16); a(f's_nop {k-1}'); n -= k
    def add0(c): a(f'v_add_f32 v{c}, v{c}, v{c+2}')
    def add1(c): a(f'v_add_f32 v{c+1}, v{c+1}, v{c+3}')
    def cvt(d, x, y): a(f'v_cvt_pk_bf16_f32 v{d}, v{x}, v{y}')
    def pka(d, x, y): a(f'v_pk_add_f32 {vr(d,2)}, {vr(x,2)}, {vr(y,2)}')
    def e_load(j, f='sc1'):
        b = S_CME if (j < 4 and rep) else S_CML
        a(f'global_load_dwordx4 {vr(M+4*j,4)}, v{r.aL}, s[{b}:{b+1}] offset:{1024*frag_of(w,j)-4096} {f}')
    PL = [M+24, R+24, M+16, R+16]; PD = A+24; t0 = A+28; t1 = A+29
    def p_loads(k=0):
        a(f'global_load_dwordx4 {vr(PL[k],4)}, v{r.aL}, s[{S_CPR}:{S_CPR+1}] sc1')
        a(f'global_load_dwordx4 {vr(PL[k]+4,4)}, v{r.aL}, s[{S_CPR}:{S_CPR+1}] offset:1024 sc1')
    def ring_prefetch():
        for e in range(4):
            for hh in range(2): ldh(R+8*e, ('q', 1, e), hh)
    def zero(base, n):
        for i in range(n): a(f'v_mov_b32 v{base+i}, 0')
    def spin_or_fail():
        a(f's_add_u32 s{S_SPIN}, s{S_SPIN}, 1'); a(f's_cmp_lt_u32 s{S_SPIN}, 0x60000'); a(f's_cbranch_scc0 {fail}')
    LA = a.newlabel('Lc_A'); Ldone = a.newlabel('Lc_done')
    Lr = [a.newlabel('Lc_rE') for _ in range(5)]; Lc = [a.newlabel('Lc_cE') for _ in range(5)]
    Lhk = a.newlabel('Lc_hk'); Lhb = a.newlabel('Lc_hb'); Lexp = a.newlabel('Lc_exp'); Lfb = a.newlabel('Lc_fb'); Lnofb = a.newlabel('Lc_nofb'); Lsp = a.newlabel('Lc_sp'); Lspb = a.newlabel('Lc_spb')
    if stamps: _ = [a(f's_mov_b32 s{84+k}, 0') for k in range(12)]
    zero(A, 24); ring_prefetch()
    a(f's_add_u32 s{S_GS}, s{S_GS}, 1'); a(f'v_mov_b32 v{r.PZ}, s{S_GS}')
    for j in range(4): e_load(j)
    a('s_waitcnt vmcnt(0)')
    a('.p2align 6')
    a.label(LA)
    e3 = False; ex = 1 if eb is not None else 0
    ringof = {('q',1,0):0, ('q',1,1):1, ('q',1,2):2, ('q',1,3):3, ('q',1,4):0, ('q',0,4):1, ('q',1,5):2, ('q',0,5):3, ('q',0,6):0, ('q',0,7):1, ('q',1,6):2, ('q',1,7):3}
    def S(m, t, s):
        b = (m, t, s)
        smf(ACC[m][t], M+4*s, vr(R+8*ringof[b], 8) if b in ringof else r.blk(b))
    def chk(j):
        return [f'v_bitop3_b32 v{t0}, v{M+4*j}, v{M+4*j+2}, s{S_EM} bitop3:0x7e', f'v_and_b32 v{t0}, 1, v{t0}', f'v_cmp_ne_u32 vcc, 0, v{t0}']
    vm0 = ['E0', 'E1'] + (['x'] if ex else []) + ['E2'] + ([] if e3in else ['E3'])
    a(f's_waitcnt vmcnt({len(vm0)-1}) lgkmcnt(0)')
    tr(7)
    for l in chk(0): a(l)
    a.label(Lc[0])
    st()
    tr(8)
    order = (('q',1),('q',0),('k',0),('k',1),('v',0),('v',1))
    dsq = [(R+24, ('q',1,3), 0), (R+24, ('q',1,3), 1), (R, ('q',1,4), 0), (R, ('q',1,4), 1), (R+16, ('q',1,2), 0), (R+16, ('q',1,2), 1),
           None, (R+8, ('q',0,4), 0), (R+8, ('q',0,4), 1), None, None, None,
           None, (R+16, ('q',1,5), 0), (R+16, ('q',1,5), 1), None, None, None]
    cnt = 0
    vm = list(vm0)
    def after_of(n): return len(vm) - 1 - vm.index(n)
    issued_at = {}
    def probe():
        a(f'global_load_dword v{r.PG}, v{r.PG+1}, s[{S_BR}:{S_BR+1}] sc1')
    def extras(cnt):
        if e3in and cnt == 2: e_load(3); vm.append('E3')
        if cnt == lpos: e_load(4); vm.append('E4')
    for sl in range(3):
        c = chk(sl+1)
        for i, (m, t) in enumerate(order):
            S(m, t, sl)
            if dsq[cnt]: ldh(*dsq[cnt])
            extras(cnt)
            if cnt == 0: a(f's_mov_b32 s{S_FB}, 0')
            if cnt == 11: a('s_waitcnt lgkmcnt(2)')
            if cnt == 1: a(f's_cbranch_vccnz {Lr[0]}')
            cnt += 1
            if i == cp: a(f's_waitcnt vmcnt({after_of("E%d" % (sl+1))})')
            if cp <= i < cp + 3: a(c[i-cp])
            if fused and w == 2 and cnt == 7:
                a(f's_add_u32 s{S_T3}, s{S_STEP}, 1'); a(f's_min_u32 s{S_T3}, s{S_T3}, 63'); a(f'v_cmp_ge_u32 s[{S_TMP}:{S_TMP+1}], s{S_T3}, v{r.PG}')
        a(f's_cbranch_vccnz {Lr[sl+1]}')
        issued_at[sl+1] = list(vm)
        a.label(Lc[sl+1])
    assert 2 <= lpos < 14
    c = chk(4)
    a('s_waitcnt lgkmcnt(4)')
    S('q',1,3)
    a(f's_waitcnt vmcnt({after_of("E4")})')
    a(f'ds_write_b128 v{r.aL}, {vr(M+16,4)} offset:{1024*w}')
    a(c[0])
    S('q',0,3); ldh(R+24, ('q',0,5), 0); extras(19); a(c[1])
    S('k',0,3); ldh(R+24, ('q',0,5), 1); extras(20); a(c[2])
    S('k',1,3); extras(21)
    Lbs = a.newlabel('Lc_bs'); Lbg = a.newlabel('Lc_bg')
    if fused and w == 2:
        a(f's_and_b64 s[{S_TMP}:{S_TMP+1}], s[{S_TMP}:{S_TMP+1}], s[{S_XP}:{S_XP+1}]'); a(f's_cbranch_scc1 {Lhb}'); a.label(Lhk)
    S('v',0,3)
    a(f's_cbranch_vccnz {Lr[4]}')
    a.label(Lc[4])
    tr(9)
    a('s_waitcnt lgkmcnt(2)'); a('s_barrier')
    tr(10)
    pos[0] = 0
    def rdm(j): a(f'ds_read_b128 {vr(M+16+4*j,4)}, v{r.aL} offset:{1024*(w^j)}')
    def pub_k(): a(f's_mov_b64 exec, s[{S_XH0}:{S_XH0+1}]'); a(f'global_store_dwordx4 v{r.aKm}, {vr(T,4)}, s[{S_HB}:{S_HB+1}] sc1'); a(XA)
    def pub_v(): a(f'global_store_dwordx2 v{r.aVm}, {vr(A+30,2)}, s[{S_HB}:{S_HB+1}] sc1')
    hk = []
    if not nohk:
        hk = [lambda i=i: kv_load(a, r, i, M) for i in range(4)]
        if fused and w == 3: hk.append(lambda: (a('s_mov_b64 exec, 1'), a(f'global_store_dword v{r.Z}, v{t1}, s[{S_FW}:{S_FW+1}] sc1'), a(XA)))
        if fused and w == 2: hk.append(lambda: prog_load(a, r))
        if w < 2 or not fused: hk.append(lambda: None)
    def H():
        if hk: hk.pop(0)()
    rdm(1)
    S('v',1,3); rdm(2); rdm(3)
    Lk0 = a.newlabel('Lc_k0'); Lk0b = a.newlabel('Lc_k0b')
    S('q',1,4); a(f's_cmp_eq_u32 s{S_STEP}, 0'); a(f's_cbranch_scc1 {Lk0}'); a.label(Lk0b); H()
    S('q',0,4); ldh(R+0, ('q',0,6), 0); H()
    S('k',0,4); ldh(R+0, ('q',0,6), 1); H()
    S('k',1,4); ldh(R+8, ('q',0,7), 0); H(); a('s_waitcnt lgkmcnt(5)')
    S('q',1,5); ldh(R+8, ('q',0,7), 1)
    S('q',0,5); ldh(R+16, ('q',1,6), 0)
    S('k',0,5); ldh(R+16, ('q',1,6), 1); a('s_waitcnt lgkmcnt(6)')
    S('k',0,6); ldh(R+24, ('q',1,7), 0)
    S('k',0,7); ldh(R+24, ('q',1,7), 1); a('s_waitcnt lgkmcnt(4)')
    S('q',0,6); H()
    TA = [R+0, R+2]; TD = [R+4, R+8]; SX = [R+16, R+20]; SM = R+24
    S('q',0,7); add0(Ak[0])
    S('k',1,5); add1(Ak[0])
    assert not hk
    S('k',1,6); cvt(TA[0], Ak[0], Ak[0]+1)
    S('k',1,7); a('s_waitcnt lgkmcnt(0)'); add0(Aq[0])
    S('q',1,6); a(f's_mov_b64 vcc, s[{S_XH1}:{S_XH1+1}]'); add1(Aq[0])
    S('q',1,7); cvt(TA[0]+1, Aq[0], Aq[0]+1)
    st()
    vq = [(t, s) for s in range(4, 8) for t in range(2)]
    def V(n=1):
        for _ in range(n):
            t, s = vq.pop(0); S('v', t, s)
    add0(Ak[1]); add1(Ak[1])
    m16(TD[0], TA[0], r.I, 0)
    cvt(TA[1], Ak[1], Ak[1]+1)
    add0(Aq[1]); add1(Aq[1])
    cvt(TA[1]+1, Aq[1], Aq[1]+1)
    m16(TD[1], TA[1], r.I, 0)
    a(f's_cmp_lg_u32 s{S_STEP}, 0'); a(f's_cselect_b32 s{S_T}, {HB_REC}, 0')
    V(1)
    if not nohk: pub_v()
    add64(a, S_HB, S_HB, f's{S_T}')
    for i in range(4): cvt(T+i, TD[0]+i, TD[1]+i)
    a(f's_cmp_eq_u32 s{S_STEP}, s{S_SP}'); a(f's_cbranch_scc1 {Lsp}')
    a.label(Lspb)
    m32(SX[0], r.KX, T, 0)
    a(f's_cmp_lt_u32 s{S_STEP}, 62'); a(f's_cselect_b32 s{S_T}, {HB_REC}, 0')
    m32(SX[1], r.KX+4, T, 0)
    add64(a, S_KV, S_KV, f's{S_T}')
    m32(SM, T, T, 0)
    vrest = list(vq)
    V(1)
    for i in range(4): a(f'v_cndmask_b32_dpp v{SX[1]+i}, v{SX[0]+i}, v{SX[1]+i}, vcc {DPPQ}')
    SO = SX[1]; SMO = SM+1
    a(f'v_cndmask_b32_dpp v{SMO}, v{SM}, v{SM+1}, vcc {DPPQ}')
    V(1)
    a(f'ds_write_b128 v{r.aL}, {vr(SO,4)} offset:{LS-LM+1024*w}')
    a(f'ds_write_b32 v{r.PG+1}, v{SMO} offset:{256*w}')
    V(1)
    if bx is not None and w == 0: a(f'v_cmp_ne_u32 vcc, s{S_GS}, v{r.PG} ; nowaitcheck')
    V(1)
    pos[0] = None
    if bx is not None and w == 0:
        a(f's_cbranch_vccnz {Lbs}'); a.label(Lbg); a('s_waitcnt lgkmcnt(0)'); a('s_barrier')
    elif bx is not None and w == 1: a('s_waitcnt lgkmcnt(0)'); a('s_barrier')
    else: a(f's_waitcnt vmcnt({0 if nohk else 5 + (1 if (fused and w >= 2) else 0)}) lgkmcnt(0)'); a('s_barrier')
    st()
    tr(11)
    RD = [R+0, R+4, R+8]; RM = R+28
    o4 = (LS-LM+4096)//256
    for j in range(3): a(f'ds_read_b128 {vr(RD[j],4)}, v{r.aL} offset:{LS-LM+1024*(w^(j+1))}')
    V(1)
    a(f'ds_read2st64_b32 {vr(RM,2)}, v{r.PG+1} offset0:{w^1} offset1:{w^2}')
    a(f'ds_read_b32 v{RM+2}, v{r.PG+1} offset:{256*(w^3)}')
    V(2)
    if not nohk: pub_k()
    assert not vq
    P = R+16; MX = R+26; TM = R+27
    D = [R+8, R+12]; SUM = R+28; X = R+0
    a('s_waitcnt lgkmcnt(2)')
    for i in range(4): a(f'v_add_f32 v{SO+i}, v{SO+i}, v{RD[0]+i}')
    pka(RD[1], RD[1], RD[2]); pka(RD[1]+2, RD[1]+2, RD[2]+2)
    a('s_waitcnt lgkmcnt(0)')
    a(f'v_add_f32 v{SMO}, v{SMO}, v{RM+2}'); a(f'v_add_f32 v{RM}, v{RM}, v{RM+1}')
    pka(SO, SO, RD[1]); pka(SO+2, SO+2, RD[1]+2)
    a(f'v_add_f32 v{SMO}, v{SMO}, v{RM}')
    pka(Av[0], Av[0], Av[0]+2); pka(Av[1], Av[1], Av[1]+2)
    def submax():
        a(f'v_max3_f32 v{MX}, v{SO}, v{SO+1}, v{SO+2}'); a(f'v_max3_f32 v{MX}, v{MX}, v{SO+3}, v{SMO}')
        a(f'v_max_f32_dpp v{MX}, v{MX}, v{MX} {DPPQ}')
        for sw in ('16', '32'):
            a(f'v_mov_b32 v{TM}, v{MX}'); a(f'v_permlane{sw}_swap_b32 v{MX}, v{TM}'); a(f'v_max_f32 v{MX}, v{MX}, v{TM}')
        for e in (SMO, SO, SO+1, SO+2, SO+3): a(f'v_sub_f32 v{e}, v{e}, v{MX}')
    if not nomax: submax()
    a.label(Lexp)
    a(f'v_exp_f32 v{X+4}, v{SMO}')
    cvt(r.VM, Av[0], Av[0]+1)
    a(f'v_exp_f32 v{X}, v{SO}')
    cvt(r.VM+2, Av[1], Av[1]+1)
    a(f'v_mov_b32_dpp v{TM}, v{X+4} {DPPQ}')
    a(f'v_exp_f32 v{X+1}, v{SO+1}')
    cvt(r.PZ, X+4, TM)
    a(f'v_exp_f32 v{X+2}, v{SO+2}')
    cvt(P, X, X+1)
    m16(SUM, r.One, r.PZ, 0); ldh(M+16, ('o',0,0), 0)
    a(f'v_exp_f32 v{X+3}, v{SO+3}')
    m16(D[0], r.VM, r.PZ, 0); ldh(M+16, ('o',0,0), 1)
    a(f'v_mov_b32_dpp v{P+2}, v{P} {DPPQ}')
    cvt(P+1, X+2, X+3)
    m16(D[1], r.VM+2, r.PZ, 0)
    a(f'v_mov_b32_dpp v{P+3}, v{P+1} {DPPQ}')
    st()
    m32(SUM, r.One, P, 1); ldh(M+24, ('o',0,1), 0)
    m32(D[0], r.VX, P, 1); ldh(M+24, ('o',0,1), 1)
    m32(D[1], r.VX+4, P, 1)
    a(f'v_rcp_f32 v{SUM+2}, v{SUM}')
    for i in range(4): a(f'v_mul_f32 v{D[0]+i}, v{D[0]+i}, v{SUM+2}')
    for i in range(2): a(f'v_pk_mul_f32 {vr(D[1]+2*i,2)}, {vr(D[1]+2*i,2)}, {vr(SUM+2,2)} op_sel_hi:[1,0]')
    OP = R+0
    for i in range(4): cvt(OP+i, D[0]+i, D[1]+i)
    a(f'ds_write_b128 v{r.aOw}, {vr(OP,4)}')
    a(f'v_mfma_f32_32x32x8_bf16 {vr(A,16)}, {vr(r.Z,2)}, {vr(r.Z,2)}, 0')
    ldh(R+8, ('o',6,0), 0); ldh(R+8, ('o',6,0), 1)
    if nomax:
        a(f'v_max_f32 v{SUM}, v{SUM}, v{SUM+2}'); a(f'v_cmp_nge_f32 vcc, {f2u(2.0**60):#x}, v{SUM}')
        a(f's_cbranch_vccnz {Lfb}'); a.label(Lnofb)
    a('s_waitcnt lgkmcnt(2)'); a('s_barrier')
    st()
    if rt is not None:
        lt = a.newlabel('Lc_t'); a('s_waitcnt lgkmcnt(0)'); a(f's_cmp_lg_u32 s{S_STEP}, {rt}'); a(f's_cbranch_scc1 {lt}')
        _ = [a(f's_mov_b32 s{84+k}, s{(S_STAMP+2*k) if k != 10 else 96}') for k in range(12)]
        a.label(lt)
    tr(0)
    O = R+24
    a(f'ds_read_b128 {vr(O,4)}, v{r.aL}'); a(f'ds_read_b128 {vr(O+4,4)}, v{r.aL} offset:1024')
    a(f'v_mfma_f32_32x32x8_bf16 {vr(A+16,16)}, {vr(r.Z,2)}, {vr(r.Z,2)}, 0')
    a(f's_xor_b32 s{S_EM}, s{S_EM}, 1'); a(f's_add_u32 s{S_STEP}, s{S_STEP}, 1'); a(f's_mov_b32 s{S_SPIN}, 0')
    land = {('o',0,0): M+16, ('o',0,1): M+24, ('o',6,0): R+8, ('o',6,1): R+16, ('o',7,0): R, ('o',7,1): M+16}
    def ob(b): return vr(land[b], 8) if b in land else r.blk(b)
    def ad(t, e): c = A+4*t+e; return f'v_add_f32 v{c}, v{c}, v{c+2}'
    def fin(p):
        c = A+8*p
        return [ad(2*p+1, 0), ad(2*p+1, 1), f'v_cvt_pk_bf16_f32 v{c}, v{c}, v{c+4}', f'v_cvt_pk_bf16_f32 v{c+1}, v{c+1}, v{c+5}', f'v_and_or_b32 v{c}, v{c}, -2, s{S_EP}']
    def sto(p): return f'global_store_dwordx2 v{r.aPst}, {vr(A+8*p,2)}, s[{S_CP+2*p}:{S_CP+2*p+1}] {stf}'
    after = {3: [ad(0,0)], 4: [ad(0,1)], 5: fin(0), 6: [sto(0)], 7: [ad(2,0)], 8: [ad(2,1)], 9: fin(1)[:2], 10: fin(1)[2:], 11: [sto(1), ad(4,0), ad(4,1)],
             13: fin(2)[:2], 14: fin(2)[2:], 15: [sto(2), ad(6,0), ad(6,1)] + fin(3) + [sto(3)]}
    lq = [(R+16, ('o',6,1), 0), (R+16, ('o',6,1), 1), (R, ('o',7,0), 0), (R, ('o',7,0), 1), (M+16, ('o',7,1), 0), (M+16, ('o',7,1), 1)]
    a('s_waitcnt lgkmcnt(1)')
    younger = 0; issued = False; nst = 0
    for t in range(8):
        for k in range(2):
            i = 2*t+k
            smf(A+4*t, O+4*k, ob(('o', t, k)))
            if i == 0: a('s_waitcnt lgkmcnt(0)')
            if i in (1, 2, 3, 4, 5, 7): ldh(*lq.pop(0))
            if i == 12: a('s_waitcnt lgkmcnt(0)')
            if i == pat[w]: p_loads(); issued = True; tr(3)
            for l in after.get(i, []):
                if l.startswith('global_store') and nst == 3 and pat[w] == 15.5: p_loads(); issued = True; tr(3)
                a(l)
                if l.startswith('global_store'):
                    if issued: younger += 1
                    if nst in (0, 3): tr(1 if nst == 0 else 2)
                    nst += 1
    if nocomm: ns[0] = 9
    st()
    chores = []
    chores += [f's_waitcnt vmcnt({4 + (2 if issued else 0) + (0 if nohk else 2 + (1 if (fused and w >= 2) else 0))})\n' + '\n'.join(f'v_mov_b32 v{PD+i}, 0' for i in (2, 3, 0, 1))] + [f'v_mov_b32 v{r.KX+i}, v{M+i}' for i in range(16)]
    chores += [f'ds_read_b128 {vr(R+8*e+4*hh,4)}, v{r.aW} offset:{r.place[("q",1,e)][1]+1024*hh}' for e in range(2) for hh in range(2)]
    chores += [f'v_mov_b32 v{A+i}, 0' for i in range(24)]
    chores += [f'v_mov_b32 v{A+30}, v{r.VM}', f'v_mov_b32 v{A+31}, v{r.VM+2}', f's_add_u32 s{S_GS}, s{S_GS}, 1', f'v_mov_b32 v{r.PZ}, s{S_GS}']
    nch = len(chores)
    def do_chores(cyc, pad=True):
        n = cyc // 4
        while n > 0 and chores: a(chores.pop(0)); n -= 1
        if pad: nops(4*n)
    def then(cyc, need):
        do_chores(cyc); do_chores(4*max(0, need - (nch - len(chores))))
    if not issued:
        if ack1[w] is not None: do_chores(240, False); a(f's_waitcnt vmcnt({ack1[w]})')
        else: do_chores(max(d1[w], 4))
        p_loads(); tr(3)
    for k in range(1, nb):
        do_chores(bk if (k > 1 or not issued) else max(4, bk - 40)); p_loads(k); younger += 2
    do_chores(max(min(c1[w], 4*len(chores)), 4), False)
    if e3: then(0, 17)
    if stamps and ns[0]:
        a('s_waitcnt lgkmcnt(0)')
        n = ns[0]
        for k in range(1, n):
            a(f's_sub_u32 s{S_T}, s{S_STAMP+2*k}, s{S_STAMP+2*k-2}'); a(f's_add_u32 s{84+k}, s{84+k}, s{S_T}')
        a(f's_sub_u32 s{S_T}, s{S_STAMP}, s83'); a(f's_mov_b32 s83, s{S_STAMP+2*(n-1)}')
        a(f's_cmp_eq_u32 s{S_STEP}, 1'); a(f's_cselect_b32 s{S_T}, 0, s{S_T}'); a(f's_add_u32 s84, s84, s{S_T}')
    def reduce(k, failto, early=None):
        a(f'v_smfmac_f32_16x16x64_bf16 {vr(PD,4)}, {vr(r.E,4)}, {vr(PL[k],8)}, v{r.idx} abid:1')
        if early: early()
        a(f'v_bitop3_b32 v{t0}, v{PL[k]}, v{PL[k]+2}, s{S_EP} bitop3:0x7e')
        a(f'v_bitop3_b32 v{t1}, v{PL[k]+4}, v{PL[k]+6}, s{S_EP} bitop3:0x7e')
        a(f'v_bitop3_b32 v{t0}, v{t0}, v{t1}, 1 bitop3:0xa8')
        a(f'v_cmp_ne_u32 vcc, 0, v{t0}')
        for ror in (8, 4):
            for i in range(4):
                a(f'v_add_f32_dpp v{PD+i}, v{PD+i}, v{PD+i} row_ror:{ror} row_mask:0xf bank_mask:0xf')
                if ror == 8 and i == 2: a(f's_cbranch_vccnz {failto}')
        a(f's_mov_b64 exec, s[{S_XR}:{S_XR+1}]')
        cvt(PD, PD, PD+1); cvt(PD+1, PD+2, PD+3)
        a(f'v_and_or_b32 v{PD}, v{PD}, -2, s{S_EM}')
        a(f'global_store_dwordx2 v{r.aMst}, {vr(PD,2)}, s[{S_CM}:{S_CM+1}] {stf}')
        a(XA)
    assert not e3
    Lok = a.newlabel('Lc_p1'); Lq = [a.newlabel('Lc_r1') for _ in range(nb)]
    a(f's_waitcnt vmcnt({younger})')
    tr(4)
    reduce(0, Lq[1 % nb])
    a.label(Lok)
    tr(5)
    a(f's_xor_b32 s{S_EP}, s{S_EP}, 1')
    EB = M+28
    if ack2[w]: do_chores(200, False); a('s_waitcnt vmcnt(0)')
    then(0 if ack2[w] else d2[w], 5); e_load(0, ef); tr(6); then(es, 9); e_load(1, ef)
    if eb is not None:
        then(eb, 0); a(f'global_load_dwordx4 {vr(EB,4)}, v{r.aL}, s[{S_CML}:{S_CML+1}] offset:{1024*frag_of(w,0)-4096} sc1')
    if fused and w == 3: a(f's_sub_u32 s{S_T}, s{S_STEP}, 1'); a(f'v_mov_b32 v{t1}, s{S_T}')
    then(e23[w], 13); e_load(2, ef)
    if not e3in: then(es, 17); e_load(3, ef)
    do_chores(4*len(chores))
    a(f's_branch {LA}')
    for k in list(range(1, nb)) + [0]:
        a.label(Lq[k])
        p_loads((k-1) % nb); zero(PD, 4)
        if stamps and rt is None: a(f's_add_u32 s94, s94, 1')
        if k == 0: spin_or_fail()
        a(f's_waitcnt vmcnt({2*(nb-1)})')
        reduce(k, Lq[(k+1) % nb])
        a(f's_branch {Lok}')
    if eb is not None:
        Lr0 = Lr[0]; Lr[0] = a.newlabel('Lc_rE0')
        a.label(Lr0)
        if stamps and rt is None: a('s_add_u32 s92, s92, 63')
        a('s_nop 4'); zero(A, 8)
        a(f's_waitcnt vmcnt({1 if e3in else 2})')
        for i in range(4): a(f'v_mov_b32 v{M+i}, v{EB+i}')
        for l in chk(0): a(l)
        a(f's_cbranch_vccz {Lc[0]}')
    for j in range(5):
        a.label(Lr[j])
        if stamps and rt is None: a(f's_add_u32 s{95 if j == 0 else 93}, s{95 if j == 0 else 93}, {1 if j == 0 else 63}')
        n = 0
        seq = vm0 if j == 0 else (issued_at[j] if j < 4 else ['E4'])
        for nm in seq[seq.index('E%d' % j):]:
            if nm[0] == 'E': e_load(int(nm[1]))
            else: a(f'global_load_dword v{A+24}, v{r.aL}, s[{S_CPR}:{S_CPR+1}] sc1')
            n += 1
        spin_or_fail()
        if j == 0: a('s_nop 4'); zero(A, 8)
        a(f's_waitcnt vmcnt({n-1})')
        for l in chk(j): a(l)
        if j == 4: a(f'ds_write_b128 v{r.aL}, {vr(M+16,4)} offset:{1024*w}')
        a(f's_cbranch_vccnz {Lr[j]}')
        if j == 4: a('s_waitcnt lgkmcnt(0)')
        a(f's_branch {Lc[j]}')
    if fused and w == 2:
        if stamps and rt is None:
            lb = a.newlabel('Lc_hb2'); a.label(Lhb); a('s_add_u32 s92, s92, 63'); Lhb = lb
        prog_block(a, r, Lhb, Lhk, S_T3, fail)
    if bx is not None and w == 0:
        a.label(Lbs)
        if stamps and rt is None: a('s_add_u32 s92, s92, 63')
        lb2 = a.newlabel('Lc_bs2'); a.label(lb2)
        for k in range(4):
            a(f'v_cmp_ne_u32 vcc, s{S_GS}, v{r.PG} ; nowaitcheck'); probe(); nops(bg); a(f's_cbranch_vccz {Lbg}')
        spin_or_fail(); a(f's_branch {lb2}')
    if nomax:
        a.label(Lfb)
        a(f's_cmp_lg_u32 s{S_FB}, 0'); a(f's_cbranch_scc1 {Lnofb}')
        a(f's_mov_b32 s{S_FB}, 1'); a('s_waitcnt lgkmcnt(0)')
        submax()
        a(f's_branch {Lexp}')
    a.label(Lsp)
    a(f's_cmp_eq_u32 s{S_STEP}, 63'); a(f's_cbranch_scc1 {Ldone}')
    a(f's_mov_b32 s{S_SP}, 63')
    a('s_waitcnt vmcnt(0)'); a(f's_branch {Lspb}')
    a.label(Lk0)
    if started: started(A+26)
    for i in range(4): kv_load(a, r, i, r.KX, S_HB)
    a(f's_branch {Lk0b}')
    a.label(Ldone)
    if not nohk: pub_k()
    for t, sl in vrest: S('v', t, sl)
    if not nohk:
        for t in range(2):
            add0(Av[t]); add1(Av[t]); cvt(A+30+t, Av[t], Av[t]+1)
        pub_v()
    a('s_waitcnt vmcnt(0)'); a('s_barrier')
    if fused and w == 3:
        a(f'v_mov_b32 v{t0}, 64'); a('s_mov_b64 exec, 1'); a(f'global_store_dword v{r.Z}, v{t0}, s[{S_FW}:{S_FW+1}] sc1'); a(XA)
    a(f's_branch {done}')

def chain_all_waves(a, r, stf, fail, **kw):
    done = a.newlabel('Lc_alldone'); lw = [a.newlabel('Lc_wave') for _ in range(4)]
    a(f'v_mov_b32 v{r.A+29}, 0')
    for w in range(1, 4):
        a(f's_cmp_eq_u32 s{S_W}, {w}'); a(f's_cbranch_scc1 {lw[w]}')
    for w in range(4):
        a.label(lw[w]); chain_wave(a, r, w, stf, fail, done, **kw)
    a.label(done)

def chain_kernel_standalone(half, stamps=False, **kw):
    a = Asm(); a._lbl = 1000 * (half + 1); r = ChainRegs()
    end = a.newlabel('Lc_end')
    a(f's_load_dwordx2 s[{S_WS}:{S_WS+1}], s[0:1], {KA_WS}')
    a(f's_load_dwordx2 s[{S_DBG}:{S_DBG+1}], s[0:1], {KA_DBG}')
    a(f's_getreg_b32 s{S_T}, hwreg(HW_REG_XCC_ID, 0, 4)')
    a('s_waitcnt lgkmcnt(0)')
    a(f's_cmp_lg_u32 s{S_T}, 0'); a(f's_cbranch_scc1 {end}')
    l0 = a.newlabel('Lc')
    a('v_mov_b32 v1, 0'); a('v_mov_b32 v2, 1'); a('v_cmp_eq_u32 vcc, 0, v0')
    a('s_and_saveexec_b64 s[12:13], vcc'); a(f's_cbranch_execz {l0}')
    a(f'global_atomic_add v3, v1, v2, s[{S_DBG}:{S_DBG+1}] sc0 sc1'); a('s_waitcnt vmcnt(0)')
    a('ds_write_b32 v1, v3'); a('s_waitcnt lgkmcnt(0)')
    a.label(l0)
    a('s_mov_b64 exec, s[12:13]'); a('s_barrier')
    a('ds_read_b32 v3, v1'); a('s_waitcnt lgkmcnt(0)'); a(f'v_readfirstlane_b32 s{S_H}, v3'); a('s_barrier')
    a(f's_cmp_ge_u32 s{S_H}, 32'); a(f's_cbranch_scc1 {end}')
    if stamps: a('s_memtime s[98:99]')
    chain_setup(a, r)
    a(f's_mov_b32 s{S_EP}, 0'); a(f's_mov_b32 s{S_EM}, 0'); a(f's_mov_b32 s{S_HALF}, {half}')
    chain_init_comm(a, r, '', True)
    group_arrive(a, r.R, 4); group_wait(a, r.R, 4, 32, end)
    if kw.get('rt') is not None:
        a('s_memrealtime s[60:61]'); a('s_waitcnt lgkmcnt(0)'); a('s_add_u32 s62, s60, 2048'); a('s_and_b32 s62, s62, 0xfffff000'); a('s_add_u32 s62, s62, 4096')
        a('s_mov_b32 s63, 0'); a('s_mov_b32 s99, 0'); a('s_mov_b32 s98, 0')
        a.label('Lcal')
        a('s_memrealtime s[60:61]'); a('s_memtime s[64:65]'); a('s_waitcnt lgkmcnt(0)'); a('s_sub_u32 s61, s60, s62'); a('s_cmp_lt_i32 s61, 0'); a('s_cbranch_scc1 Lcal')
        a('s_cmp_eq_u32 s63, 0'); a('s_cselect_b32 s99, s64, s99'); a('s_sub_u32 s64, s64, s99'); a('s_add_u32 s98, s98, s64')
        a('s_add_u32 s62, s62, 44'); a('s_add_u32 s63, s63, 1'); a('s_cmp_lt_u32 s63, 32'); a('s_cbranch_scc1 Lcal')
        a('s_lshr_b32 s98, s98, 5'); a('s_add_u32 s99, s99, s98'); a('s_mov_b32 s98, s62')
    if stamps: a('s_memtime s[100:101]')
    chain_start(a, r, end, 0)
    chain_all_waves(a, r, '', end, fused=0, stamps=stamps, **kw)
    if stamps:
        a('s_memtime s[60:61]'); a('s_waitcnt lgkmcnt(0)')
        a('s_sub_u32 s96, s100, s98'); a('s_sub_u32 s97, s60, s100')
        for k in range(16): a(f'v_mov_b32 v{k}, s{84+k}')
        a(f's_lshl_b32 s{S_T}, s{S_H}, 2'); a(f's_add_u32 s{S_T}, s{S_T}, s{S_W}'); a(f's_lshl_b32 s{S_T}, s{S_T}, 6')
        a(f's_add_u32 s{S_T}, s{S_T}, {STAMP_OFF}')
        a(f'v_mov_b32 v16, s{S_T}')
        for k in range(4): a(f'global_store_dwordx4 v16, {vr(4*k,4)}, s[{S_WS}:{S_WS+1}] offset:{16*k}')
    a.label(end)
    a('s_waitcnt vmcnt(0)'); a('s_endpgm')
    return a.lines

def autostamp(lines, start, stride, n=9):
    out = []; inb = False; idx = 0; k = 0; names = []; first = True
    for l in lines:
        if l == '; BODY_BEGIN': inb = True; idx = 0; k = 0
        if l == '; BODY_END':
            while k < n:
                out.append(f's_memtime s[{S_STAMP+2*k}:{S_STAMP+2*k+1}]'); k += 1
            inb = False; first = False
        if l.startswith('s_cbranch_vccnz'): l = 's_cbranch_vccnz ' + f'Lnx_{len(out)}\nLnx_{len(out)}:'
        if inb and is_instr(l.split('\n')[0]):
            if k < n and idx == start + k * stride:
                out.append(f's_memtime s[{S_STAMP+2*k}:{S_STAMP+2*k+1}]'); k += 1
            if first: names.append(l.split('\n')[0])
            idx += 1
        out += l.split('\n')
    return out, names

if __name__ == '__main__':
    rep = []
    lines = fix_hazards(chain_kernel_standalone(0, stamps=True), rep)
    for e in check_waits(lines, 'chain'): print(e)
    for x in rep[14:32]: print(x)
    t = assemble_file('', [('chain0_kernel', 256, 256, 163840)], [('chain0_kernel', lines, 512, 256)])
    open('chain_test.s', 'w').write(t)
    print(len(lines))
```

```python
MB = 1 << 20
class WS: pass
W = WS()
off = 0
def _a(n):
    global off
    r = off; off += (n + 4095) // 4096 * 4096
    return r
W.FLAGS = _a(256 * 1024)
W.ST = _a(512 * 1024)
W.STAMPS = _a(256 * 1024)
W.CP = _a(256 * 1024)
W.CM = _a(2 * 72 * 8192)
W.CB = _a(4 * 1024)
W.X0 = _a(2 * MB)
W.H = []
for hf in range(2):
    h = WS()
    h.XNA = _a(2 * MB); h.XNB = _a(2 * MB); h.YA = _a(2 * MB)
    h.QA = _a(2 * MB); h.KA = _a(2 * MB); h.VA = _a(2 * MB); h.OA = _a(2 * MB); h.X1 = _a(2 * MB)
    h.PT = _a(16 * MB)
    h.X2 = _a(2 * MB)
    W.H.append(h)
off = (off + 2 * MB - 1) // (2 * MB) * (2 * MB)
for hf in range(2):
    W.H[hf].HB = _a(64 * MB)
HB_K, HB_V, HB_Q, HB_KM, HB_VM, HB_REC = 0, 8192, 16384, 24576, 26624, 32768
W.END = off
assert off <= 256 * MB
KA_X, KA_WQKV, KA_WOA, KA_BX, KA_MEM0, KA_WQ, KA_WK, KA_WV, KA_WO, KA_SEG, KA_OUT, KA_DBG, KA_WS = [8 * i for i in range(13)]

def FL(half, kind):
    base = W.FLAGS + half * 131072
    return base + {'XNA': 0, 'OA': 8192, 'YA': 16384, 'XNB': 24576, 'PT': 32768, 'HEAD': 40960, 'CHP': 49152, 'EL': 57344, 'QKVA': 65536}[kind]
FLAG_BYTES = 262144
STAMP_OFF = W.STAMPS
```

```python
from asmlib import *
from layout import *
import math
import chain2 as C
from work import *

S_DBG = 44; S_SLOT = 36; S_TK = 37; S_SPIN = 38; S_PF = 39; S_FO = 40; S_N = 41; S_X = 42; S_SO = 43; S_SV = 46; S_PD = 47
L, L16 = 1, 2
VZ = 10; VF = 11
SPIN_MAX = 0x60000

class Mega:
    def __init__(self, stamps=False, chain_kw={}):
        self.a = Asm(); self.stamps = stamps; self.chain_kw = chain_kw
        self.end = 'Lm_end'; self.TO = 128 if stamps == 2 else 0
        self.tbsleep = chain_kw.pop('tbsleep', 8); self.wsleep = chain_kw.pop('wsleep', 2); self.wrd = chain_kw.pop('wrd', 0); self.ahead = chain_kw.pop('ahead', 0); self.pfb = chain_kw.pop('pfb', 0); self.kvpos = chain_kw.pop('kvpos', 26); self.perm = chain_kw.pop('perm', 0x65423170)
    def stamp(self, k, hs=None):
        if not self.stamps: return
        a = self.a; l = a.newlabel('Lst')
        if self.stamps == 2:
            kk = self.dmap.get((self.role, k))
            if kk is None: return
            a(f's_cmp_lg_u32 s{S_W}, 0'); a(f's_cbranch_scc1 {l}')
            a('s_memrealtime s[96:97]'); a(f's_load_dwordx2 s[100:101], s[0:1], {KA_DBG}'); a('s_waitcnt lgkmcnt(0)'); a('s_sub_u32 s96, s96, s99')
            a(f's_mov_b32 s98, {4*kk}')
            if hs is not None: a(f's_mul_i32 s97, s{hs}, 12'); a('s_add_u32 s98, s98, s97')
            a('s_mov_b64 exec, 1'); a(f'v_mov_b32 v{self.sv}, s96'); a(f'v_mov_b32 v{self.sv+1}, s98')
            a(f'global_atomic_umax v{self.sv+1}, v{self.sv}, s[100:101] sc1'); a('s_waitcnt vmcnt(0)'); a('s_mov_b64 exec, -1')
            a.label(l); return
        a(f's_cmp_lg_u32 s{S_W}, 0'); a(f's_cbranch_scc1 {l}')
        a('s_memrealtime s[96:97]'); a(f's_lshl_b32 s98, s99, 7'); a(f's_add_u32 s98, s98, {STAMP_OFF + 4*k}'); a('s_waitcnt lgkmcnt(0)')
        if hs is not None: a(f's_lshl_b32 s97, s{hs}, 5'); a('s_add_u32 s98, s98, s97')
        a('s_mov_b64 exec, 1'); a(f'v_writelane_b32 v{self.sv}, s96, 0'); a(f'v_writelane_b32 v{self.sv+1}, s98, 0')
        a(f'v_mov_b32 v{self.sv+1}, s98')
        a(f'global_store_dword v{self.sv+1}, v{self.sv}, s[{S_WS}:{S_WS+1}]'); a('s_waitcnt vmcnt(0)'); a('s_mov_b64 exec, -1')
        a.label(l)
    def mark(self, k, sgpr, val):
        if self.stamps is not True: return
        a = self.a; l = a.newlabel('Lmk')
        a(f's_cmp_lg_u32 s{sgpr}, {val}'); a(f's_cbranch_scc1 {l}')
        a('s_memrealtime s[96:97]'); a('s_waitcnt lgkmcnt(0)'); a(f's_mov_b32 s{70+k}, s96')
        a.label(l)
    def dump_marks(self):
        if self.stamps is not True: return
        a = self.a
        for k in range(16): a(f'v_mov_b32 v{16+k}, s{70+k}')
        a(f's_lshl_b32 s98, s99, 7'); a(f's_add_u32 s98, s98, {STAMP_OFF + 64}'); a('v_mov_b32 v12, s98')
        l = a.newlabel('Lmk'); a(f's_cmp_lg_u32 s{S_W}, 0'); a(f's_cbranch_scc1 {l}')
        for k in range(4): a(f'global_store_dwordx4 v12, {vr(16+4*k,4)}, s[{S_WS}:{S_WS+1}] offset:{16*k}')
        a.label(l)
    def count_wait(self, off, v, fail, st, sp):
        a = self.a; l1 = a.newlabel('Lcw'); l2 = a.newlabel('Lcw')
        a(f's_mov_b32 s{sp}, 0'); a(f'v_mov_b32 v{v+8}, 0')
        a.label(l1)
        for x in range(8): a(f'global_load_dword v{v+x}, v{v+8}, s[{S_DBG}:{S_DBG+1}] offset:{off+16*x} sc1')
        a('s_waitcnt vmcnt(0)')
        a(f'v_add3_u32 v{v+9}, v{v}, v{v+1}, v{v+2}'); a(f'v_add3_u32 v{v+9}, v{v+9}, v{v+3}, v{v+4}'); a(f'v_add3_u32 v{v+9}, v{v+9}, v{v+5}, v{v+6}'); a(f'v_add_u32 v{v+9}, v{v+9}, v{v+7}')
        a(f'v_readfirstlane_b32 s{st}, v{v+9}'); a(f's_cmp_ge_u32 s{st}, 256'); a(f's_cbranch_scc1 {l2}')
        a('s_sleep 4'); a(f's_add_u32 s{sp}, s{sp}, 1'); a(f's_cmp_lt_u32 s{sp}, {SPIN_MAX}'); a(f's_cbranch_scc1 {l1}')
        a(f's_branch {fail}')
        a.label(l2)
    def flags_ready(self): self.count_wait(132, 12, self.end, S_T, S_SPIN)
    def flag_off(self, base, idx_sgpr, sh=2):
        self.a(f's_lshl_b32 s{S_FO}, s{idx_sgpr}, {sh}'); self.a(f's_add_u32 s{S_FO}, s{S_FO}, {base}')
    def flag_issue(self, n):
        a = self.a
        a(f'v_min_u32 v{VZ}, {n-1}, v{L}'); a(f'v_lshl_add_u32 v{VZ}, v{VZ}, 8, s{S_FO}'); a(f'global_load_dword v{VF}, v{VZ}, s[{S_WS}:{S_WS+1}] sc1')
    def wait(self, n, sleep=None, mask=None, sh=8, thr=None, keep=None):
        a = self.a; l1 = a.newlabel('Lw'); l2 = a.newlabel('Lw')
        a(f's_mov_b32 s{S_SPIN}, 0')
        a(f'v_min_u32 v{VZ}, {n-1}, v{L}'); a(f'v_lshl_add_u32 v{VZ}, v{VZ}, {sh}, s{S_FO}')
        a.label(l1)
        a(f'global_load_dword v{VF}, v{VZ}, s[{S_WS}:{S_WS+1}] sc1'); a('s_waitcnt vmcnt(0)')
        a(f'v_cmp_eq_u32 vcc, 0, v{VF}' if thr is None else f'v_cmp_gt_u32 vcc, {thr}, v{VF}')
        if keep: a('s_cmp_eq_u64 vcc, 0'); a(f's_cselect_b32 s{keep}, 1, 0')
        if mask is None: a(f's_cbranch_vccz {l2}')
        else: a(f's_and_b64 vcc, vcc, s[{mask}:{mask+1}]'); a(f's_cbranch_scc0 {l2}')
        a(f's_sleep {sleep or self.wsleep}')
        a(f's_add_u32 s{S_SPIN}, s{S_SPIN}, 1'); a(f's_cmp_lt_u32 s{S_SPIN}, {SPIN_MAX}'); a(f's_cbranch_scc1 {l1}')
        a(f's_branch {self.end}')
        a.label(l2)
    def set_word(self, base, line_sgpr, word_sgpr, s1=2, s2=8):
        a = self.a
        a(f's_lshl_b32 s{S_SO}, s{line_sgpr}, {s1}'); a(f's_lshl_b32 s{S_X}, s{word_sgpr}, {s2}'); a(f's_add_u32 s{S_SO}, s{S_SO}, s{S_X}'); a(f's_add_u32 s{S_SO}, s{S_SO}, {base}')
    def wsignal(self, val=None):
        a = self.a
        a(f'v_mov_b32 v{VZ}, s{S_SO}'); a(f'v_mov_b32 v{VF}, {"s%d" % val if val else "1"}')
        a('s_mov_b64 exec, 1'); a(f'global_store_dword v{VZ}, v{VF}, s[{S_WS}:{S_WS+1}] sc1'); a('s_mov_b64 exec, -1')
    def signal_wg(self):
        a = self.a; l = a.newlabel('Ls')
        a('s_waitcnt vmcnt(0)'); a('s_barrier'); a(f's_cmp_lg_u32 s{S_W}, 0'); a(f's_cbranch_scc1 {l}')
        self.wsignal(); a.label(l)

    def stream(self, ngr, xsrc, inflag, nin, tiles, epilogue, nst, outflag, store, mk=None, pre=None):
        a = self.a; xa = 9; XR = 12
        lp = a.newlabel('Lg_loop'); have = a.newlabel('Lg_have'); go = a.newlabel('Lg_go'); fetch = a.newlabel('Lg_fetch'); done = a.newlabel('Lg_done')
        a(f's_lshl_b32 s{S_XO}, s{S_B}, 15'); a(f's_add_u32 s{S_XO}, s{S_XO}, {xsrc}'); a(f's_mov_b32 s{S_BUF}, {128*1024}')
        a('s_barrier')
        a.label(fetch)
        a(f's_mov_b32 s{S_PD}, 0')
        if inflag is not None:
            self.flag_off(inflag, S_B); self.wait(nin)
        if mk: self.mark(mk[0], S_B, mk[1])
        dma_x(a, L16, S_XO, S_BUF, 'sc1')
        a('s_waitcnt vmcnt(0)')
        a.label(go)
        a('s_barrier')
        if mk: self.mark(mk[0]+1, S_B, mk[1])
        if pre: pre()
        a(f'v_add_u32 v{xa}, s{S_BUF}, v{L16}')
        a(f's_add_u32 s{S_TK}, s{S_B}, {ngr}'); a(f's_xor_b32 s{S_BUF}, s{S_BUF}, {128*1024}'); a(f's_add_u32 s{S_XO}, s{S_XO}, {ngr*32768}')
        if inflag is not None:
            a(f's_min_u32 s{S_T}, s{S_TK}, 63'); self.flag_off(inflag, S_T); self.flag_issue(nin)
        def pref():
            np_ = a.newlabel('Lg_np')
            a('s_waitcnt vmcnt(0)')
            a(f'v_cmp_eq_u32 s[{S_K0}:{S_K0+1}], 0, v{VF}')
            a(f's_cmp_eq_u32 s{S_PD}, 0'); a(f's_cbranch_scc1 {np_}')
            self.wsignal(S_SV if store else None)
            a.label(np_)
        def pref2():
            sk = a.newlabel('Lg_sk')
            a(f's_mov_b32 s{S_PF}, 0')
            a(f's_cmp_ge_u32 s{S_TK}, 64'); a(f's_cbranch_scc1 {sk}')
            a(f's_cmp_lg_u64 s[{S_K0}:{S_K0+1}], 0'); a(f's_cbranch_scc1 {sk}')
            dma_x(a, L16, S_XO, S_BUF, 'sc1'); a(f's_mov_b32 s{S_PF}, 1')
            a.label(sk)
        gemm_core(a, xa, XR, tiles, {30: pref})
        epilogue(pref2)
        if mk: self.mark(mk[0]+2, S_B, mk[1])
        outflag()
        add64(a, S_OUT, S_OUT, ngr*32768)
        a(f's_mov_b32 s{S_B}, s{S_TK}')
        a(f's_cmp_eq_u32 s{S_PF}, 0'); a(f's_cbranch_scc1 {have}')
        first = a.newlabel('Lg_first')
        a(f's_cmp_lt_u32 s{S_B}, {2*ngr}'); a(f's_cbranch_scc1 {first}')
        a(f's_mov_b32 s{S_PD}, 1'); a(f's_waitcnt vmcnt({nst})'); a(f's_branch {go}')
        a.label(first)
        a('s_waitcnt vmcnt(0)'); self.wsignal(S_SV if store else None)
        if mk: self.mark(mk[0]+3, S_B, mk[1]+ngr)
        a(f's_mov_b32 s{S_PD}, 0'); a(f's_branch {go}')
        a.label(have)
        a('s_waitcnt vmcnt(0)'); self.wsignal(S_SV if store else None)
        if mk: self.mark(mk[0]+3, S_B, mk[1]+ngr)
        a(f's_cmp_lt_u32 s{S_B}, 64'); a(f's_cbranch_scc1 {fetch}')
        a('s_barrier')

    def proj_weights(self, isB, share=None, early=None, sel=(0, 1, 2)):
        a = self.a
        a(f's_lshl_b32 s{S_OFF}, s{S_A}, 8')
        if isB: mats = [(KA_WK, 4*MB, 0, 'a', 128), (KA_WV, 4*MB, 0, 'v', 128), (KA_WQ, 4*MB, 0, 'a', 0)]; stride = 8192
        else: mats = [(KA_WQKV, 1536*1024, 1024, 'a', 128), (KA_WQKV, 1536*1024, 2048, 'v', 128), (KA_WQKV, 1536*1024, 0, 'a', 0)]; stride = 3072
        load_wslices(a, [mats[i] for i in sel], stride, L, 3, 4, 5, share, early)
    def proj_run(self, half, isB, ngr, nowait=False, mode='kvq'):
        a = self.a; H = W.H[half]
        t0, t1, vq, vk, vv = 3, 4, 6, 7, 8; ACC = 28
        ro = (HB_Q, HB_K, HB_V) if isB else (0, H.KA - H.QA, H.VA - H.QA)
        a(f's_lshl_b32 s{S_T}, s{S_W}, 11')
        a(f's_add_u32 s{S_T2}, s{S_T}, {ro[0]}'); a(f'v_add_u32 v{vq}, s{S_T2}, v{L16}')
        a(f's_add_u32 s{S_T2}, s{S_T}, {ro[1]}'); a(f'v_add_u32 v{vk}, s{S_T2}, v{L16}')
        pi_of(a, t0, L, t1); vpos16(a, vv, t0, L, t1)
        a(f's_add_u32 s{S_T2}, s{S_T}, {ro[2]}'); a(f'v_add_u32 v{vv}, s{S_T2}, v{vv}')
        a(f's_lshl_b32 s{S_T}, s{S_A}, {21 if isB else 13}'); a(f's_lshl_b32 s{S_T2}, s{S_B}, 15'); a(f's_add_u32 s{S_T}, s{S_T}, s{S_T2}')
        a(f's_add_u32 s{S_T}, s{S_T}, {H.HB if isB else H.QA}'); add64(a, S_OUT, S_WS, f's{S_T}')
        a(f's_mov_b32 s{S_M}, {f2u(0.25*math.log2(math.e)):#x}')
        xa = 9; XR = 12; inflag = FL(half, 'XNB' if isB else 'XNA'); mk = (0, 0 if isB else 63) if half == 1 else ((8, 0) if isB else None)
        go = a.newlabel('Lp_go'); fetch = a.newlabel('Lp_fetch'); have = a.newlabel('Lp_have')
        a(f's_lshl_b32 s{S_XO}, s{S_B}, 15'); a(f's_add_u32 s{S_XO}, s{S_XO}, {H.XNB if isB else H.XNA}'); a(f's_mov_b32 s{S_BUF}, {128*1024}')
        a(f's_mov_b32 s{S_PD}, 0')
        a('s_barrier')
        if nowait: a(f's_branch {go}')
        a.label(fetch)
        self.flag_off(inflag, S_B); self.wait(16 if isB else 4)
        if mk: self.mark(mk[0], S_B, mk[1])
        dma_x(a, L16, S_XO, S_BUF, 'sc1')
        a('s_waitcnt vmcnt(0)')
        a.label(go)
        a('s_barrier')
        if mk: self.mark(mk[0]+1, S_B, mk[1])
        a(f'v_add_u32 v{xa}, s{S_BUF}, v{L16}')
        a(f's_add_u32 s{S_TK}, s{S_B}, {ngr}'); a(f's_xor_b32 s{S_BUF}, s{S_BUF}, {128*1024}'); a(f's_add_u32 s{S_XO}, s{S_XO}, {ngr*32768}')
        if not nowait: a(f's_min_u32 s{S_T}, s{S_TK}, 63'); self.flag_off(inflag, S_T); self.flag_issue(16 if isB else 4)
        def word():
            if isB:
                a(f's_and_b32 s{S_T}, s{S_B}, 1'); a(f's_lshl_b32 s{S_T}, s{S_T}, 2'); a(f's_add_u32 s{S_T}, s{S_T}, s{S_W}')
                self.set_word(FL(half, "HEAD"), S_A, S_T, 8, 5)
            else:
                a(f's_lshl_b32 s{S_T}, s{S_A}, 2'); a(f's_add_u32 s{S_T}, s{S_T}, s{S_W}'); self.set_word(FL(half, "QKVA"), S_T, S_B, 11, 5)
        def late():
            l = a.newlabel('Lp_q'); a(f's_cmp_eq_u32 s{S_PD}, 0'); a(f's_cbranch_scc1 {l}')
            self.wsignal(); a(f's_mov_b32 s{S_PD}, 0'); a.label(l)
        def pref():
            sk = a.newlabel('Lp_sk')
            a('s_waitcnt vmcnt(0)'); a(f'v_cmp_eq_u32 vcc, 0, v{VF}')
            if not isB: late()
            a(f's_mov_b32 s{S_PF}, 0')
            a(f's_cmp_ge_u32 s{S_TK}, 64'); a(f's_cbranch_scc1 {sk}')
            if not nowait: a(f's_cbranch_vccnz {sk}')
            dma_x(a, L16, S_XO, S_BUF, 'sc1'); a(f's_mov_b32 s{S_PF}, 1')
            a.label(sk)
        def half_store(acc, ad, j):
            for i in range(4): a(f'v_cvt_pk_bf16_f32 v{acc+8*j+i}, v{acc+8*j+2*i}, v{acc+8*j+2*i+1}')
            a(f'global_store_dwordx4 v{ad}, {vr(acc+8*j,4)}, s[{S_OUT}:{S_OUT+1}] offset:{1024*j} sc1')
        def kvsig():
            if mk: self.mark(mk[0]+2, S_B, mk[1])
            word(); a('s_waitcnt vmcnt(0)'); self.wsignal(S_TK if isB else None)
            if mk: self.mark(mk[0]+3, S_B, mk[1])
        kvs = [lambda: half_store(ACC+16, vk, 0), lambda: half_store(ACC+16, vk, 1), lambda: half_store(ACC+32, vv, 0), lambda: half_store(ACC+32, vv, 1)]
        if mode != 'q': gemm_core(a, xa, XR, [(ACC+16, 'a', 128, False), (ACC+32, 'v', 128, True)], {18: pref})
        if mode == 'kvq': gemm_core(a, xa, XR, [(ACC, 'a', 0, False)], {0: kvs[0], 1: kvs[1], 2: kvs[2], 3: kvs[3], self.kvpos: kvsig})
        if mode == 'q':
            def p0():
                sk = a.newlabel('Lp_sk'); a(f's_mov_b32 s{S_PF}, 0'); a(f's_cmp_ge_u32 s{S_TK}, 64'); a(f's_cbranch_scc1 {sk}')
                dma_x(a, L16, S_XO, S_BUF, 'sc1'); a(f's_mov_b32 s{S_PF}, 1'); a.label(sk)
            gemm_core(a, xa, XR, [(ACC, 'a', 0, False)], {0: p0, 30: lambda: (a('s_waitcnt vmcnt(0)'), late())})
        if mode == 'kv':
            for f in kvs: f()
        else: pack_store(a, ACC, vq, S_OUT, 'sc1', scale=None if isB else S_M)
        if not isB:
            if mode != 'kvq': word()
            if mode != 'kv': a(f's_add_u32 s{S_SO}, s{S_SO}, 16')
        add64(a, S_OUT, S_OUT, ngr*32768)
        a(f's_mov_b32 s{S_B}, s{S_TK}'); a(f's_mov_b32 s{S_PD}, 1')
        if mode == 'kv': a('s_waitcnt vmcnt(4)')
        a(f's_cmp_lg_u32 s{S_PF}, 0'); a(f's_cbranch_scc1 {go}')
        if not isB: a('s_waitcnt vmcnt(0)'); late()
        a(f's_cmp_lt_u32 s{S_B}, 64'); a(f's_cbranch_scc1 {fetch}')
        if isB:
            a('s_waitcnt vmcnt(0)'); a(f's_add_u32 s{S_SV}, s{S_B}, 2'); self.wsignal(S_SV)
        a('s_barrier')
    def woa_run(self, half, ngr):
        a = self.a; H = W.H[half]
        t0, t1, sm, vo, vx, vs = 3, 4, 5, 6, 7, 8; ACC = 28; X = 44; G = 52; SP = 68; mu = 70
        a(f's_lshl_b32 s{S_T}, s{S_W}, 11'); a(f's_lshl_b32 s{S_T2}, s{S_A}, 13'); a(f's_add_u32 s{S_T}, s{S_T}, s{S_T2}'); a(f'v_add_u32 v{vo}, s{S_T}, v{L16}')
        if half == 0:
            a(f's_load_dwordx2 s[{S_P}:{S_P+1}], s[0:1], {KA_X}')
            a(f'v_and_b32 v{t0}, 31, v{L}'); a(f'v_lshlrev_b32 v{vx}, 10, v{t0}'); a(f'v_lshrrev_b32 v{t0}, 5, v{L}'); a(f'v_lshl_add_u32 v{vx}, v{t0}, 4, v{vx}')
            a(f's_lshr_b32 s{S_T}, s{S_T}, 5'); a(f'v_add_u32 v{vx}, s{S_T}, v{vx}'); a('s_waitcnt lgkmcnt(0)')
        else:
            add64(a, S_P, S_WS, W.H[0].X2); a(f'v_mov_b32 v{vx}, v{vo}')
        a(f's_lshl_b32 s{S_T2}, s{S_B}, 15'); add64(a, S_P, S_P, f's{S_T2}')
        a(f's_add_u32 s{S_T}, s{S_T2}, {H.X1}'); add64(a, S_OUT, S_WS, f's{S_T}')
        a(f'v_and_b32 v{t0}, 31, v{L}'); a(f'v_lshlrev_b32 v{vs}, 3, v{t0}'); a(f'v_lshrrev_b32 v{t0}, 5, v{L}'); a(f'v_lshl_add_u32 v{vs}, v{t0}, 11, v{vs}')
        a(f's_mov_b32 s{S_M}, 0xffff0000')
        def pre():
            for j in range(2): a(f'global_load_dwordx4 {vr(X+4*j,4)}, v{vx}, s[{S_P}:{S_P+1}] offset:{(32 if half == 0 else 1024)*j} {"" if half == 0 else "sc1"}')
            add64(a, S_P, S_P, ngr*32768)
        def rbf(r): a(f'v_cvt_pk_bf16_f32 v{r}, v{r}, v{r}'); a(f'v_and_b32 v{r}, s{S_M}, v{r}')
        def halves(regs):
            for x, t in zip(regs, (t0, t1)): a(f'v_mov_b32 v{t}, v{x}')
            for x, t in zip(regs, (t0, t1)): a(f'v_permlane32_swap_b32 v{x}, v{t}')
            for x, t in zip(regs, (t0, t1)): a(f'v_add_f32 v{x}, v{x}, v{t}')
        def epi(pref2):
            a(f's_lshl_b32 s{S_T}, s{S_B}, 12'); a(f's_add_u32 s{S_T}, s{S_T}, {W.ST + half*262144}'); add64(a, S_IN, S_WS, f's{S_T}')
            a(f's_lshl_b32 s{S_T}, s{S_A}, 2'); a(f's_add_u32 s{S_T}, s{S_T}, s{S_W}'); a(f's_lshl_b32 s{S_T2}, s{S_T}, 8')
            self.set_word(FL(half, "XNB"), S_B, S_T)
            for d in range(8):
                e = ACC+2*d
                a(f'v_cvt_pk_bf16_f32 v{t1}, v{e}, v{e+1}'); a(f'v_lshlrev_b32 v{e}, 16, v{X+d}'); a(f'v_and_b32 v{e+1}, s{S_M}, v{X+d}')
                a(f'v_lshlrev_b32 v{t0}, 16, v{t1}'); a(f'v_and_b32 v{t1}, s{S_M}, v{t1}')
                a(f'v_add_f32 v{e}, v{e}, v{t0}'); a(f'v_add_f32 v{e+1}, v{e+1}, v{t1}')
                a(f'v_cvt_pk_bf16_f32 v{X+d}, v{e}, v{e+1}')
                a(f'v_lshlrev_b32 v{e}, 16, v{X+d}'); a(f'v_and_b32 v{e+1}, s{S_M}, v{X+d}')
                if d == 0: a(f'v_add_f32 v{SP}, v{e}, v{e+1}'); a(f'v_mul_f32 v{SP+1}, v{e}, v{e}')
                else: a(f'v_add_f32 v{SP}, v{SP}, v{e}'); a(f'v_add_f32 v{SP}, v{SP}, v{e+1}'); a(f'v_fmac_f32 v{SP+1}, v{e}, v{e}')
                a(f'v_fmac_f32 v{SP+1}, v{e+1}, v{e+1}')
            halves((SP, SP+1))
            a(f'v_or_b32 v{SP+1}, 1, v{SP+1}'); a(f'v_add_u32 v{t0}, s{S_T2}, v{vs}')
            a('s_mov_b32 exec_hi, 0'); a(f'global_store_dwordx2 v{t0}, {vr(SP,2)}, s[{S_IN}:{S_IN+1}] sc1'); a('s_mov_b32 exec_hi, -1')
            a('s_waitcnt vmcnt(0)')
            l1 = a.newlabel('Lwr'); l2 = a.newlabel('Lwr')
            a(f's_mov_b32 s{S_SPIN}, 0')
            a.label(l1)
            for p in range(8): a(f'global_load_dwordx2 {vr(G+2*p,2)}, v{vs}, s[{S_IN}:{S_IN+1}] offset:{256*p} sc1')
            a('s_waitcnt vmcnt(0)')
            a(f'v_bitop3_b32 v{t0}, v{G+1}, v{G+3}, v{G+5} bitop3:0x80'); a(f'v_bitop3_b32 v{t1}, v{G+7}, v{G+9}, v{G+11} bitop3:0x80')
            a(f'v_bitop3_b32 v{t0}, v{t0}, v{G+13}, v{G+15} bitop3:0x80'); a(f'v_bitop3_b32 v{t0}, v{t0}, v{t1}, 1 bitop3:0x80')
            a(f'v_cmp_eq_u32 vcc, 0, v{t0}'); a(f's_cbranch_vccz {l2}')
            a(f's_add_u32 s{S_SPIN}, s{S_SPIN}, 1'); a(f's_cmp_lt_u32 s{S_SPIN}, {SPIN_MAX}'); a(f's_cbranch_scc1 {l1}')
            a(f's_branch {self.end}')
            a.label(l2)
            pref2()
            for j in range(2): a(f'global_store_dwordx4 v{vo}, {vr(X+4*j,4)}, s[{S_OUT}:{S_OUT+1}] offset:{1024*j} sc1')
            for st in (8, 4, 2):
                for i in range(0, st, 2): a(f'v_pk_add_f32 {vr(G+i,2)}, {vr(G+i,2)}, {vr(G+i+st,2)}')
            halves((G, G+1))
            a(f'v_mul_f32 v{mu}, {f2u(1/512):#x}, v{G}'); a(f'v_mul_f32 v{sm}, {f2u(1/512):#x}, v{G+1}')
            a(f'v_fma_f32 v{sm}, -v{mu}, v{mu}, v{sm}'); a(f'v_max_f32 v{sm}, 0, v{sm}')
            rbf(sm); a(f'v_add_f32 v{sm}, {f2u(1e-5):#x}, v{sm}'); rbf(sm)
            a(f'v_sqrt_f32 v{sm}, v{sm}'); rbf(sm); a(f'v_rcp_f32 v{sm}, v{sm}'); rbf(mu)
            add64(a, S_IN, S_OUT, H.XNB - H.X1) if H.XNB > H.X1 else (a(f's_sub_u32 s{S_IN}, s{S_OUT}, {H.X1 - H.XNB}'), a(f's_subb_u32 s{S_IN+1}, s{S_OUT+1}, 0'))
            for d in range(8):
                e = ACC+2*d
                a(f'v_sub_f32 v{t0}, v{e}, v{mu}'); a(f'v_sub_f32 v{t1}, v{e+1}, v{mu}'); a(f'v_cvt_pk_bf16_f32 v{t1}, v{t0}, v{t1}')
                a(f'v_lshlrev_b32 v{t0}, 16, v{t1}'); a(f'v_and_b32 v{t1}, s{S_M}, v{t1}')
                a(f'v_mul_f32 v{t0}, v{t0}, v{sm}'); a(f'v_mul_f32 v{t1}, v{t1}, v{sm}'); a(f'v_cvt_pk_bf16_f32 v{G+d}, v{t0}, v{t1}')
                if d % 4 == 3: a(f'global_store_dwordx4 v{vo}, {vr(G+d-3,4)}, s[{S_IN}:{S_IN+1}] offset:{1024*(d//4)} sc1')
        self.stream(ngr, H.OA, FL(half, 'OA'), 32, [(ACC, 'v', 128, False)], epi, 4, lambda: None, False, mk=(0, 0) if half == 1 else (8, 0), pre=pre)
    def rb_run(self, half, kind, ngr):
        a = self.a; H = W.H[half]
        lp = a.newlabel('Lr_loop'); a.label(lp)
        mk = (4, 0) if (kind == 1 and half == 1) else ((4, 63) if (kind == 2 and half == 0) else ((8, 0) if kind == 1 else None))
        def ready():
            self.flag_off(FL(half, 'YA' if kind == 1 else 'PT'), S_A); self.wait(16 if kind == 1 else 32)
            if mk: self.mark(mk[0], S_A, mk[1])
        xprev = KA_X if half == 0 else W.H[0].X2
        if kind == 1: rb_body(a, 1, xprev, half == 0, H.YA, 0, 32768, H.X1, False, H.XNB, 'sc1', 'sc1', ready)
        elif half == 0: rb_body(a, 8, H.X1, False, H.PT, 32768, 8*32768, H.X2, False, W.H[1].XNA, 'sc1', 'sc1', ready)
        else: rb_body(a, 8, H.X1, False, H.PT, 32768, 8*32768, KA_OUT, True, None, 'sc1', 'sc1', ready)
        if kind == 1 or half == 0:
            if mk: self.mark(mk[0]+2, S_A, mk[1])
            self.set_word(FL(half, 'XNB') if kind == 1 else FL(1, 'XNA'), S_A, S_B); self.signal_wg()
            if mk: self.mark(mk[0]+3, S_A, mk[1])
        a(f's_add_u32 s{S_A}, s{S_A}, {ngr}'); a(f's_cmp_lt_u32 s{S_A}, 64'); a(f's_cbranch_scc1 {lp}')

    def att_run(self, half, npg):
        a = self.a; H = W.H[half]
        t0, t1, t2, ak, av, idx, lw = range(3, 10); mx = 204
        Q = 12; QN = 16; K0 = 20; Cc = 24; O = 40; D = [56, 72, 88]; KF = 104; MG = 168
        pi_of(a, t0, L, t1)
        a(f'v_and_b32 v{t1}, 32, v{L}'); a(f'v_add_u32 v{ak}, v{t0}, v{t1}'); a(f'v_lshlrev_b32 v{ak}, 4, v{ak}')
        a(f'v_and_b32 v{t0}, 15, v{t0}'); a(f's_and_b32 s{S_T}, s{S_A}, 1'); a(f's_lshl_b32 s{S_T}, s{S_T}, 4'); a(f'v_add_u32 v{t0}, s{S_T}, v{t0}')
        vpos16(a, av, t0, L, t1)
        a(f'v_mov_b32 v{idx}, 0xdddd')
        a(f's_mul_i32 s{S_T}, s{S_W}, 3072'); a(f'v_add_u32 v{lw}, s{S_T}, v{L16}')
        if half == 0:
            a(f'v_mov_b32 v{t0}, 0x3f803f80')
            for i in range(128): a(f'v_accvgpr_write_b32 a{i}, v{t0}')
        a(f's_lshr_b32 s{S_T}, s{S_A}, 1'); self.flag_off(FL(half, 'QKVA'), S_T, 11)
        a(f's_mov_b32 s{S_N}, 0')
        def qwait(blk):
            l = a.newlabel('La_q'); a(f's_cmp_lg_u32 s{S_N}, 0'); a(f's_cbranch_scc1 {l}')
            a(f's_lshl_b64 s[{S_P}:{S_P+1}], 1, s{blk}'); a(f's_add_u32 s{S_FO}, s{S_FO}, 16'); self.wait(64, mask=S_P, sh=5, keep=S_N); a(f's_sub_u32 s{S_FO}, s{S_FO}, 16')
            a.label(l)
        qwait(S_B); self.wait(56, sh=5)
        self.stamp(2 + 8*half)
        a(f's_lshl_b32 s{S_T}, s{S_A}, 10'); a(f's_lshl_b32 s{S_T2}, s{S_B}, 15'); a(f's_add_u32 s{S_T2}, s{S_T2}, s{S_T}')
        a(f's_add_u32 s{S_T3}, s{S_T2}, {H.QA}'); add64(a, S_IN, S_WS, f's{S_T3}')
        a(f's_add_u32 s{S_T3}, s{S_T2}, {H.OA}'); add64(a, S_OUT, S_WS, f's{S_T3}')
        a(f'global_load_dwordx4 {vr(QN,4)}, v{L16}, s[{S_IN}:{S_IN+1}] sc1')
        a(f's_add_u32 s{S_K0}, s{S_T}, {H.KA}')
        a(f'buffer_load_dwordx4 {vr(K0,4)}, v{ak}, s[{S_WSRD}:{S_WSRD+3}], s{S_K0} offen sc1')
        a(f's_lshl_b32 s{S_T2}, s{S_W}, 15'); a(f's_add_u32 s{S_K0}, s{S_K0}, s{S_T2}')
        a(f's_lshr_b32 s{S_K1}, s{S_A}, 1'); a(f's_lshl_b32 s{S_K1}, s{S_K1}, 11'); a(f's_add_u32 s{S_K1}, s{S_K1}, s{S_T2}'); a(f's_add_u32 s{S_K1}, s{S_K1}, {H.VA}')
        a(f's_mov_b32 s{S_M}, 0x0000ffff'); a(f's_mov_b32 s{S_M+1}, 0x0000ffff')
        def kv_tile(t):
            a(f's_add_u32 s{S_T}, s{S_K0}, {t*131072}')
            a(f'buffer_load_dwordx4 {vr(KF+4*t,4)}, v{ak}, s[{S_WSRD}:{S_WSRD+3}], s{S_T} offen sc1')
            a(f's_add_u32 s{S_T}, s{S_K1}, {t*131072}')
            a(f's_mov_b64 exec, s[{S_M}:{S_M+1}]')
            for b in range(2): a(f'buffer_load_dwordx4 {vr(8*t+4*b,4,"a")}, v{av}, s[{S_WSRD}:{S_WSRD+3}], s{S_T} offen offset:{1024*b} sc1')
            a('s_mov_b64 exec, -1')
        def late_tile(t):
            l = a.newlabel('La_lt'); a(f's_cmp_eq_u32 s{S_PD}, 0'); a(f's_cbranch_scc1 {l}')
            a(f's_add_u32 s{S_T}, s{S_W}, {4*t}'); a(f's_lshl_b64 s[{S_P}:{S_P+1}], 1, s{S_T}')
            self.wait(64, mask=S_P, sh=5)
            if half and t == 15: self.mark(0, S_B, 0)
            kv_tile(t); a('s_waitcnt vmcnt(0)')
            if t == 15: a(f's_mov_b32 s{S_PD}, 0')
            a.label(l)
        for t in range(14): kv_tile(t)
        a(f's_mov_b32 s{S_PD}, 1')
        a(f's_mov_b32 s{S_BUF}, 0'); a(f's_mov_b32 s{S_CNT}, 0'); a(f's_mov_b32 s{S_PF}, 0')
        a('s_barrier')
        lp = a.newlabel('La_loop'); run = a.newlabel('La_run'); slow = a.newlabel('La_slow'); nom = a.newlabel('La_nom'); noq = a.newlabel('La_noq'); out = a.newlabel('La_out')
        def rowmax(src, first):
            if first: a(f'v_max3_f32 v{mx}, v{src}, v{src+1}, v{src+2}'); rest = list(range(3, 16))
            else: rest = list(range(16))
            while len(rest) >= 2:
                a(f'v_max3_f32 v{mx}, v{mx}, v{src+rest[0]}, v{src+rest[1]}'); rest = rest[2:]
            if rest: a(f'v_max_f32 v{mx}, v{mx}, v{src+rest[0]}')
        def halfmax():
            a(f'v_mov_b32 v{t0}, v{mx}'); a(f'v_permlane32_swap_b32 v{mx}, v{t0}'); a(f'v_max_f32 v{mx}, v{mx}, v{t0}')
        def pending():
            l = a.newlabel('La_p'); a(f's_cmp_eq_u32 s{S_PF}, 0'); a(f's_cbranch_scc1 {l}')
            a('s_waitcnt vmcnt(0)'); self.wsignal(); a(f's_mov_b32 s{S_PF}, 0')
            if half: self.mark(3, S_B, 0)
            a.label(l)
        a(f's_waitcnt vmcnt({3*14})')
        self.mark(1 if half else 11, S_B, 0)
        a.label(lp)
        for i in range(4): a(f'v_mov_b32 v{Q+i}, v{QN+i}')
        a(f's_add_u32 s{S_TK}, s{S_B}, {npg}'); add64(a, S_IN, S_IN, npg*32768)
        a(mf(D[0], vr(K0,4), vr(Q,4), 0))
        rowmax(D[0], True); halfmax()
        a(f's_mov_b32 s{S_XO}, 0')
        a.label(run)
        for i in range(16): a(f'v_sub_f32 v{Cc+i}, 0, v{mx}')
        for i in range(16): a(f'v_mov_b32 v{O+i}, 0')
        a(f's_waitcnt vmcnt({3*12})')
        a(mf(D[0], vr(KF,4), vr(Q,4), vr(Cc,16)))
        a(mf(D[1], vr(KF+4,4), vr(Q,4), vr(Cc,16)))
        def pv(t, b): a(f'v_smfmac_f32_32x32x32_bf16 {vr(O,16)}, {vr(8*t+4*b,4,"a")}, {vr(D[t%3]+8*b,8)}, v{idx}')
        for t in range(16):
            d = D[t % 3]
            for i in range(16):
                a(f'v_exp_f32 v{d+i}, v{d+i}')
                if i == 2 and t > 0: pv(t-1, 1)
                if i == 6 and t + 2 >= 14 and t + 2 < 16: late_tile(t+2)
                if i == 6 and t + 2 < 14: a(f's_waitcnt vmcnt({3*(13-(t+2))})')
                if i == 6 and t + 2 < 16: a(mf(D[(t+2)%3], vr(KF+4*(t+2),4), vr(Q,4), vr(Cc,16)))
                if i == 11: pv(t, 0)
            if t == 5: pending()
            if t == 11:
                a(f's_cmp_ge_u32 s{S_TK}, 64'); a(f's_cbranch_scc1 {noq}')
                qwait(S_TK)
                a(f'global_load_dwordx4 {vr(QN,4)}, v{L16}, s[{S_IN}:{S_IN+1}] sc1')
                a.label(noq)
        pv(15, 1)
        a(f'v_add_u32 v{t1}, s{S_BUF}, v{lw}')
        for j in range(3): a(f'ds_write_b128 v{t1}, {vr(O+4*j,4)} offset:{1024*j}')
        a('s_waitcnt vmcnt(0) lgkmcnt(0)'); a('s_barrier')
        a(f'v_add_u32 v{t1}, s{S_BUF}, v{L16}')
        for w in range(4): a(f'ds_read_b32 v{MG+w}, v{t1} offset:{3072*w+2048}')
        a('s_waitcnt lgkmcnt(0)')
        a(f'v_add_f32 v{MG}, v{MG}, v{MG+1}'); a(f'v_add_f32 v{MG+2}, v{MG+2}, v{MG+3}'); a(f'v_add_f32 v{t2}, v{MG}, v{MG+2}')
        a(f's_xor_b32 s{S_BUF}, s{S_BUF}, 16384')
        a(f'v_cmp_nge_f32 vcc, {f2u(2.0**90):#x}, v{t2}')
        a(f's_cbranch_vccnz {slow}')
        fin = a.newlabel('La_fin'); a.label(fin)
        a(f's_and_b32 s{S_T}, s{S_CNT}, 3'); a(f's_add_u32 s{S_CNT}, s{S_CNT}, 1')
        a(f's_cmp_lg_u32 s{S_T}, s{S_W}'); a(f's_cbranch_scc1 {nom}')
        for w in range(4):
            for j in range(2): a(f'ds_read_b128 {vr(MG+8*w+4*j,4)}, v{t1} offset:{3072*w+1024*j}')
        a(f'v_rcp_f32 v{t2}, v{t2}')
        a('s_waitcnt lgkmcnt(0)')
        for i in range(8):
            a(f'v_add_f32 v{MG+i}, v{MG+i}, v{MG+8+i}'); a(f'v_add_f32 v{MG+16+i}, v{MG+16+i}, v{MG+24+i}')
            a(f'v_add_f32 v{MG+i}, v{MG+i}, v{MG+16+i}'); a(f'v_mul_f32 v{MG+i}, v{MG+i}, v{t2}')
        for i in range(4): a(f'v_cvt_pk_bf16_f32 v{MG+i}, v{MG+2*i}, v{MG+2*i+1}')
        a(f'global_store_dwordx4 v{L16}, {vr(MG,4)}, s[{S_OUT}:{S_OUT+1}] sc1')
        self.set_word(FL(half, 'OA'), S_B, S_A); a(f's_mov_b32 s{S_PF}, 1')
        self.mark(2 if half else 12, S_B, 0)
        a(f's_cmp_ge_u32 s{S_B}, {npg}'); a(f's_cbranch_scc1 {nom}')
        pending()
        a.label(nom)
        add64(a, S_OUT, S_OUT, npg*32768)
        a(f's_mov_b32 s{S_B}, s{S_TK}')
        a(f's_cmp_lt_u32 s{S_B}, 64'); a(f's_cbranch_scc1 {lp}')
        pending()
        a(f's_branch {out}')
        a.label(slow)
        a(f's_cmp_lg_u32 s{S_XO}, 0'); a(f's_cbranch_scc1 {fin}')
        a(f's_mov_b32 s{S_XO}, 1')
        for t in range(16):
            a(mf(D[t%2], vr(KF+4*t,4), vr(Q,4), 0))
            rowmax(D[t%2], t == 0)
        halfmax()
        a(f'ds_write_b32 v{lw}, v{mx} offset:32768'); a('s_waitcnt lgkmcnt(0)'); a('s_barrier')
        for w in range(4): a(f'ds_read_b32 v{MG+w}, v{L16} offset:{32768+3072*w}')
        a('s_waitcnt lgkmcnt(0)')
        a(f'v_max3_f32 v{mx}, v{MG}, v{MG+1}, v{MG+2}'); a(f'v_max_f32 v{mx}, v{mx}, v{MG+3}')
        a(f's_branch {run}')
        a.label(out)
        a('s_barrier')

    def tb_weights(self):
        a = self.a
        a(f's_lshr_b32 s{S_T}, s{S_A}, 2'); a(f's_lshl_b32 s{S_T}, s{S_T}, 19'); a(f's_and_b32 s{S_T2}, s{S_A}, 3'); a(f's_lshl_b32 s{S_T2}, s{S_T2}, 8')
        a(f's_add_u32 s{S_OFF}, s{S_T}, s{S_T2}')
        load_wslices(a, [(KA_WO, 4*MB, 0, 'a', 128)], 1024, L, 3, 4, 5)
    def tb_run(self, half, ngr):
        a = self.a; H = W.H[half]
        t0, t1, akm, av, avm, vo, xw = range(3, 10); mx = 240; FG = 244
        XR = 12; CM = 28; SX = 44; SM = 60; Q = 76; K = 108; KM = 140; V = 172; VM = 204; P = 212; PM = 220; ACC = 224
        OT = Q
        a(f'v_and_b32 v{t0}, 7, v{L}'); a(f'v_lshlrev_b32 v{akm}, 4, v{t0}'); a(f'v_lshrrev_b32 v{t0}, 5, v{L}'); a(f'v_lshl_add_u32 v{akm}, v{t0}, 7, v{akm}')
        a(f'v_add_u32 v{akm}, {HB_KM}, v{akm}')
        pi_of(a, t0, L, t1); vpos16(a, av, t0, L, t1); a(f'v_add_u32 v{av}, {HB_V}, v{av}')
        a(f'v_lshlrev_b32 v{avm}, 2, v{t0}'); a(f'v_lshrrev_b32 v{t1}, 5, v{L}'); a(f'v_lshl_add_u32 v{avm}, v{t1}, 8, v{avm}'); a(f'v_add_u32 v{avm}, {HB_VM}, v{avm}')
        a(f's_lshl_b32 s{S_T}, s{S_W}, 11'); a(f'v_add_u32 v{vo}, s{S_T}, v{L16}')
        a(f's_lshl_b32 s{S_T}, s{S_W}, 13'); a(f'v_add_u32 v{xw}, s{S_T}, v{L16}')
        a(f'v_and_b32 v{t0}, 31, v{L}'); a(f'v_lshrrev_b32 v{t1}, 5, v{L}'); a(f'v_lshlrev_b32 v{t1}, 2, v{t1}'); a(f'v_sub_u32 v{t0}, v{t0}, v{t1}')
        a(f'v_mov_b32 v{t1}, {f2u(-1e30):#x}')
        for i in range(16):
            a(f'v_cmp_le_i32 vcc, {8*(i>>2)+(i&3)}, v{t0}'); a(f'v_cndmask_b32 v{CM+i}, v{t1}, 0, vcc')
        a(f's_and_b32 s{S_T}, s{S_A}, 28'); a(f's_add_u32 s{S_T}, s{S_T}, s{S_W}')
        a(f's_lshl_b32 s{S_K0}, s{S_T}, 8'); a(f's_add_u32 s{S_K0}, s{S_K0}, {FL(half, "HEAD")}')
        a(f's_lshl_b32 s{S_T}, s{S_T}, 21')
        a(f's_lshl_b32 s{S_T2}, s{S_B}, 15'); a(f's_add_u32 s{S_XO}, s{S_T}, s{S_T2}'); a(f's_add_u32 s{S_XO}, s{S_XO}, {H.HB}')
        a(f's_lshl_b32 s{S_T}, s{S_B}, 18'); a(f's_lshl_b32 s{S_T2}, s{S_A}, 13'); a(f's_add_u32 s{S_T}, s{S_T}, s{S_T2}'); a(f's_add_u32 s{S_T}, s{S_T}, {H.PT}')
        add64(a, S_OUT, S_WS, f's{S_T}')
        a(f's_mov_b32 s{S_M}, {f2u(math.log2(math.e)/math.sqrt(128.0)):#x}')
        a(f's_mov_b32 s{S_N}, 0'); a(f's_mov_b32 s{S_K1}, 0')
        def bl(n, dst, va, so, off): a(f'buffer_load_dword{n} {vr(dst, 4 if n else 1)}, v{va}, s[{S_WSRD}:{S_WSRD+3}], s{so} offen offset:{off} sc1')
        def poll(which):
            l1 = a.newlabel('Lt_p'); l2 = a.newlabel('Lt_p'); l3 = a.newlabel('Lt_p')
            a(f's_mov_b32 s{S_SPIN}, 0'); a(f's_branch {l3}')
            a.label(l1)
            if which == S_N:
                a(f'v_mov_b32 v{VZ}, s{S_K0}')
                _ = [a(f'global_load_dword v{FG+i}, v{VZ}, s[{S_WS}:{S_WS+1}] offset:{32*i} sc1') for i in range(8)]; a('s_waitcnt vmcnt(0)')
                a(f'v_min3_u32 v{FG}, v{FG}, v{FG+1}, v{FG+2}'); a(f'v_min3_u32 v{FG}, v{FG}, v{FG+3}, v{FG+4}'); a(f'v_min3_u32 v{FG}, v{FG}, v{FG+5}, v{FG+6}'); a(f'v_min_u32 v{FG}, v{FG}, v{FG+7}')
            else:
                a(f's_add_u32 s{S_X}, s{S_K0}, {FL(half, "CHP") - FL(half, "HEAD")}'); a(f'v_mov_b32 v{VZ}, s{S_X}')
                a(f'global_load_dword v{FG}, v{VZ}, s[{S_WS}:{S_WS+1}] sc1'); a('s_waitcnt vmcnt(0)')
            a(f'v_readfirstlane_b32 s{which}, v{FG}')
            if which == S_N: a(f's_max_u32 s{S_N}, s{S_N}, 2'); a(f's_sub_u32 s{S_N}, s{S_N}, 2')
            a(f's_cmp_gt_u32 s{which}, s{S_B}'); a(f's_cbranch_scc1 {l2}')
            a(f's_sleep {self.tbsleep}')
            a(f's_add_u32 s{S_SPIN}, s{S_SPIN}, 1'); a(f's_cmp_ge_u32 s{S_SPIN}, {SPIN_MAX}'); a(f's_cbranch_scc1 {self.end}')
            a.label(l3)
            a(f's_cmp_gt_u32 s{which}, s{S_B}'); a(f's_cbranch_scc0 {l1}')
            a.label(l2)
        lp = a.newlabel('Lt_loop')
        a.label(lp)
        poll(S_N)
        a(f's_add_u32 s{S_T}, s{S_XO}, 4096'); a(f's_add_u32 s{S_T2}, s{S_XO}, {HB_Q}'); a(f's_add_u32 s{S_T3}, s{S_XO}, {HB_Q+4096}')
        for kb in range(8):
            bl('x4', K+4*kb, L16, S_XO if kb < 4 else S_T, (kb%4)*1024)
            bl('x4', Q+4*kb, L16, S_T2 if kb < 4 else S_T3, (kb%4)*1024)
        for f in range(8): bl('x4', V+4*f, av, S_XO if f < 4 else S_T, (f%4)*1024)
        poll(S_K1)
        if half == 0: self.mark(4, S_B, 63)
        for kb in range(8): bl('x4', KM+4*kb, akm, S_XO, kb*256)
        for t in range(4):
            for e in range(2): bl('', VM+2*t+e, avm, S_XO, t*512 + e*128)
        for kb in range(8):
            a(f's_waitcnt vmcnt({24 + 14 - 2*kb})')
            a(mf(SX, vr(K+4*kb,4), vr(Q+4*kb,4), vr(SX,16) if kb else vr(CM,16)))
        a('s_waitcnt vmcnt(8)')
        if half == 0: self.mark(5, S_B, 63)
        for kb in range(8): a(mf(SM, vr(KM+4*kb,4), vr(Q+4*kb,4), vr(SM,16) if kb else 0))
        E = [SX+i for i in range(16)] + [SM+i for i in range(4)]
        a(f'v_max3_f32 v{mx}, v{E[0]}, v{E[1]}, v{E[2]}')
        for i in range(3, 19, 2): a(f'v_max3_f32 v{mx}, v{mx}, v{E[i]}, v{E[i+1]}')
        a(f'v_max_f32 v{mx}, v{mx}, v{E[19]}')
        a(f'v_mov_b32 v{t0}, v{mx}'); a(f'v_permlane32_swap_b32 v{mx}, v{t0}'); a(f'v_max_f32 v{mx}, v{mx}, v{t0}')
        a(f'v_mul_f32 v{mx}, s{S_M}, v{mx}')
        for e in E: a(f'v_fma_f32 v{e}, v{e}, s{S_M}, -v{mx}')
        for e in E: a(f'v_exp_f32 v{e}, v{e}')
        a(f'v_add_f32 v{t1}, v{E[0]}, v{E[1]}')
        for e in E[2:]: a(f'v_add_f32 v{t1}, v{t1}, v{e}')
        a(f'v_mov_b32 v{t0}, v{t1}'); a(f'v_permlane32_swap_b32 v{t1}, v{t0}'); a(f'v_add_f32 v{t1}, v{t1}, v{t0}')
        a(f'v_rcp_f32 v{t1}, v{t1}')
        for e in E: a(f'v_mul_f32 v{e}, v{e}, v{t1}')
        for i in range(8): a(f'v_cvt_pk_bf16_f32 v{P+i}, v{SX+2*i}, v{SX+2*i+1}')
        for i in range(2): a(f'v_cvt_pk_bf16_f32 v{PM+i}, v{SM+2*i}, v{SM+2*i+1}')
        a('s_waitcnt vmcnt(0)')
        for t in range(4):
            o = OT+16*t
            a(f'v_mfma_f32_32x32x8_bf16 {vr(o,16)}, {vr(VM+2*t,2)}, {vr(PM,2)}, 0')
            for j in range(2): a(mf(o, vr(V+8*t+4*j,4), vr(P+4*j,4), vr(o,16)))
        for t in range(4):
            for j in range(2):
                o = OT+16*t+8*j
                for i in range(4): a(f'v_cvt_pk_bf16_f32 v{o+i}, v{o+2*i}, v{o+2*i+1}')
                a(f'ds_write_b128 v{xw}, {vr(o,4)} offset:{(2*t+j)*1024}')
        a('s_waitcnt lgkmcnt(0)'); a('s_barrier')
        gemm_core(a, L16, XR, [(ACC, 'a', 128, False)])
        pack_store(a, ACC, vo, S_OUT, 'sc1')
        if half == 0: self.mark(6, S_B, 63)
        self.set_word(FL(half, 'PT'), S_B, S_A); self.signal_wg()
        if half == 0: self.mark(7, S_B, 63)
        add64(a, S_OUT, S_OUT, ngr*8*32768); a(f's_add_u32 s{S_XO}, s{S_XO}, {ngr*32768}')
        a(f's_add_u32 s{S_B}, s{S_B}, {ngr}'); a(f's_cmp_lt_u32 s{S_B}, 64'); a(f's_cbranch_scc1 {lp}')

    def build(self):
        a = self.a; end = self.end
        a(f's_cmp_ge_u32 s2, 256'); a(f's_cbranch_scc1 {end}')
        if self.stamps == 2: a('s_memrealtime s[96:97]')
        if self.stamps is True: a('s_memrealtime s[94:95]')
        a(f's_load_dwordx2 s[{S_DBG}:{S_DBG+1}], s[0:1], {KA_DBG}')
        common_prologue(a, L, L16)
        lw = a.newlabel('Le'); lo = a.newlabel('Le'); ls = a.newlabel('Le'); lg = a.newlabel('Le'); lz = a.newlabel('Le')
        a(f's_getreg_b32 s{S_X}, hwreg(HW_REG_XCC_ID, 0, 3)')
        a(f's_lshl_b32 s{S_T}, s{S_X}, 4'); a(f'v_mov_b32 v3, s{S_T}'); a('v_mov_b32 v4, 1')
        def xwait():
            l1 = a.newlabel('Le'); l2 = a.newlabel('Le')
            a(f's_mul_i32 s{S_T}, s2, 3072'); a(f's_add_u32 s{S_T}, s{S_T}, {W.FLAGS}'); a('v_mul_u32_u24 v6, 12, v0'); a(f'v_add_u32 v6, s{S_T}, v6'); a('v_mov_b32 v8, 0'); a('v_mov_b32 v9, 0'); a('v_mov_b32 v10, 0')
            a(f'global_store_dwordx3 v6, v[8:10], s[{S_WS}:{S_WS+1}] sc1')
            a(f's_cmp_lg_u32 s{S_W}, 0'); a(f's_cbranch_scc1 {l1}')
            a('s_mov_b64 exec, 1'); a(f'global_atomic_add v5, v3, v4, s[{S_DBG}:{S_DBG+1}] offset:{self.TO} sc0 sc1'); a('s_mov_b64 exec, -1')
            a('s_waitcnt vmcnt(2)'); a(f's_branch {l2}')
            a.label(l1); a('s_waitcnt vmcnt(1)'); a.label(l2)
        a(f's_lshr_b32 s{S_A}, s2, 2'); a(f's_and_b32 s{S_B}, s2, 3')
        rb_body(a, 0, KA_X, True, 0, 0, 0, None, False, W.H[0].XNA, '', 'sc1', ldsoff=1024, vb=20, xwait=xwait)
        a(f's_cmp_lg_u32 s{S_W}, 0'); a(f's_cbranch_scc1 {lw}')
        a('s_mov_b64 exec, 1'); a('s_waitcnt vmcnt(2)')
        a(f'v_readfirstlane_b32 s{S_TK}, v5')
        a(f's_lshl_b32 s{S_SLOT}, s{S_X}, 5'); a(f's_add_u32 s{S_SLOT}, s{S_SLOT}, s{S_TK}')
        a(f's_cmp_lt_u32 s{S_TK}, 32'); a(f's_cbranch_scc1 {lg}')
        a('v_mov_b32 v3, 136'); a(f'global_atomic_add v5, v3, v4, s[{S_DBG}:{S_DBG+1}] sc0 sc1'); a('s_waitcnt vmcnt(0)')
        a(f'v_readfirstlane_b32 s{S_TK}, v5')
        self.count_wait(self.TO, 12, ls, S_T, S_SPIN)
        a.label(ls)
        for x in range(8):
            a(f'v_readfirstlane_b32 s{S_T}, v{12+x}'); a(f's_min_u32 s{S_T}, s{S_T}, 32')
            a(f's_add_u32 s{S_SLOT}, s{S_T}, s{S_TK}'); a(f's_add_u32 s{S_SLOT}, s{S_SLOT}, {32*x}')
            a(f's_sub_u32 s{S_T}, 32, s{S_T}'); a(f's_cmp_lt_u32 s{S_TK}, s{S_T}'); a(f's_cbranch_scc1 {lg}')
            a(f's_sub_u32 s{S_TK}, s{S_TK}, s{S_T}')
        a(f's_mov_b32 s{S_SLOT}, 256')
        a.label(lg)
        a(f'v_mov_b32 v3, 0'); a(f'v_mov_b32 v4, s{S_SLOT}'); a('ds_write_b32 v3, v4'); a('s_waitcnt lgkmcnt(0)')
        a('s_mov_b64 exec, -1')
        a.label(lw)
        a('s_waitcnt vmcnt(0)'); a('s_barrier')
        a(f's_cmp_eq_u32 s{S_W}, 1'); a('s_cselect_b64 exec, 1, 0')
        a(f'global_atomic_add v3, v4, s[{S_DBG}:{S_DBG+1}] offset:132 sc1')
        a('s_mov_b64 exec, -1')
        a('v_mov_b32 v3, 0'); a('ds_read_b32 v4, v3'); a('s_waitcnt lgkmcnt(0)'); a(f'v_readfirstlane_b32 s{S_SLOT}, v4'); a('s_barrier')
        a(f's_lshr_b32 s{S_T}, s{S_SLOT}, 5'); a(f's_lshl_b32 s{S_T2}, s{S_T}, 2'); a(f's_lshr_b32 s{S_T2}, {self.perm:#x}, s{S_T2}'); a(f's_and_b32 s{S_T2}, s{S_T2}, 7')
        a(f's_cmp_lt_u32 s{S_T}, 8'); a(f's_cselect_b32 s{S_T2}, s{S_T2}, 8'); a(f's_and_b32 s{S_SLOT}, s{S_SLOT}, 31'); a(f's_lshl_b32 s{S_T2}, s{S_T2}, 5'); a(f's_add_u32 s{S_SLOT}, s{S_SLOT}, s{S_T2}')
        if self.stamps: a(f's_mov_b32 s99, s{S_SLOT}')
        self.role = 'all'
        self.dmap = {('all',0):0, ('ch',1):1, ('ch',2):2, ('ch',3):3, ('ch',4):4, ('gw',1):8, ('gw',2):9, ('gw',3):10, ('pb',1):11, ('ms',12):12, ('gw',4):13, ('pb',3):14}
        if self.stamps == 2:
            a('s_and_b32 s99, s96, 0xfff00000')
        self.sv = 10
        if self.stamps: _ = [a(f's_mov_b32 s{70+k}, 0') for k in range(16)]
        if self.stamps is True: a('s_mov_b32 s85, s94')
        self.stamp(0)
        Lch, Lpb, Lgw, Lms, Lpa = [a.newlabel(n) for n in ('Lchain', 'Lpb', 'Lgw', 'Lms', 'Lpa')]
        a(f's_cmp_lt_u32 s{S_SLOT}, 32'); a(f's_cbranch_scc0 Lnot_chain')
        self.jump(Lch)
        a.label('Lnot_chain')
        a(f's_cmp_lt_u32 s{S_SLOT}, 96'); a(f's_cbranch_scc1 {Lpb}')
        a(f's_cmp_lt_u32 s{S_SLOT}, 224'); a(f's_cbranch_scc1 {Lgw}')
        a(f's_cmp_lt_u32 s{S_SLOT}, 240'); a(f's_cbranch_scc1 {Lms}')
        a(f's_cmp_lt_u32 s{S_SLOT}, 256'); a(f's_cbranch_scc1 {Lpa}')
        a.label(end); a('s_endpgm')
        a.label(Lms); self.role = 'ms'
        a(f's_and_b32 s{S_A}, s{S_SLOT}, 3'); a(f's_lshl_b32 s{S_OFF}, s{S_A}, 8')
        load_wslices(a, [(KA_WOA, 512*1024, 0, 'v', 128)], 1024, L, 3, 4, 5)
        if self.pfb:
            a(f's_load_dwordx2 s[{S_P}:{S_P+1}], s[0:1], {KA_WO}'); a(f's_and_b32 s{S_T}, s{S_SLOT}, 15'); a(f's_lshl_b32 s{S_T}, s{S_T}, 18')
            a(f'v_lshl_add_u32 v3, v0, 7, s{S_T}'); a('s_waitcnt lgkmcnt(0)')
            for i in range(8):
                a(f'global_load_dword v4, v3, s[{S_P}:{S_P+1}]'); a('v_add_u32 v3, 32768, v3')
        self.flags_ready()
        for half in range(2):
            a(f's_and_b32 s{S_A}, s{S_SLOT}, 3'); a(f's_bfe_u32 s{S_B}, s{S_SLOT}, 0x20002'); self.woa_run(half, 4); self.stamp(3 + 8*half)
            a(f's_bfe_u32 s{S_A}, s{S_SLOT}, 0x20002'); a(f's_and_b32 s{S_B}, s{S_SLOT}, 3')
            self.rb_run(half, 2, 4); self.stamp(4 + 8*half)
        self.dump_marks(); a('s_endpgm')
        a.label(Lpa); self.role = 'pa'
        def first_x():
            self.flags_ready(); self.mark(9, S_W, 0)
            a(f's_lshl_b32 s{S_XO}, s{S_B}, 15'); a(f's_add_u32 s{S_XO}, s{S_XO}, {W.H[0].XNA}'); a(f's_mov_b32 s{S_BUF}, {128*1024}')
            dma_x(a, L16, S_XO, S_BUF, 'sc1')
        a(f's_and_b32 s{S_A}, s{S_SLOT}, 3'); a(f's_bfe_u32 s{S_B}, s{S_SLOT}, 0x20002')
        self.proj_weights(False, (S_B, 4), first_x, (2,)); self.proj_run(0, False, 4, nowait=True, mode='q'); self.stamp(3)
        self.proj_weights(False, None, None, (0, 1))
        a(f's_and_b32 s{S_A}, s{S_SLOT}, 3'); a(f's_bfe_u32 s{S_B}, s{S_SLOT}, 0x20002'); self.proj_run(1, False, 4); self.stamp(4)
        self.dump_marks(); a('s_endpgm')
        a.label(Lpb); self.role = 'pb'
        def pb_ids():
            a(f's_sub_u32 s{S_T}, s{S_SLOT}, 32'); a(f's_lshr_b32 s{S_A}, s{S_T}, 5'); a(f's_lshl_b32 s{S_A}, s{S_A}, 4'); a(f's_and_b32 s{S_T2}, s{S_T}, 15')
            a(f's_add_u32 s{S_A}, s{S_A}, s{S_T2}'); a(f's_bfe_u32 s{S_B}, s{S_T}, 0x10004')
        pb_ids(); self.proj_weights(True, (S_B, 2) if self.pfb else None); self.flags_ready(); self.stamp(1)
        for half in range(2):
            pb_ids(); self.proj_run(half, True, 2); self.stamp(3 + 8*half)
        self.dump_marks(); a('s_endpgm')
        a.label(Lgw); self.role = 'gw'
        self.end = 'Lm_end2'
        def pa_ids(): a(f's_sub_u32 s{S_T}, s{S_SLOT}, 96'); a(f's_lshr_b32 s{S_A}, s{S_T}, 5'); a(f's_and_b32 s{S_B}, s{S_T}, 31')
        pa_ids(); self.proj_weights(False, (S_B, 32), first_x, (0, 1)); self.mark(10, S_W, 0); self.proj_run(0, False, 32, nowait=True, mode='kv'); self.stamp(1)
        def gw_ids():
            a(f's_sub_u32 s{S_T}, s{S_SLOT}, 96'); a(f's_lshr_b32 s{S_A}, s{S_T}, 5'); a(f's_lshl_b32 s{S_A}, s{S_A}, 3'); a(f's_and_b32 s{S_T2}, s{S_T}, 7')
            a(f's_add_u32 s{S_A}, s{S_A}, s{S_T2}'); a(f's_bfe_u32 s{S_B}, s{S_T}, 0x20003')
        for half in range(2):
            gw_ids(); self.att_run(half, 4); self.stamp(3 + 8*half)
            gw_ids()
            if half == 0: self.tb_weights()
            self.tb_run(half, 4); self.stamp(4 + 8*half)
        self.dump_marks()
        a.label('Lm_end2'); a('s_endpgm')
        a.label(Lch); self.role = 'ch'
        self.end = 'Lm_end3'; end = self.end
        r = C.ChainRegs(); self.sv = r.R
        a(f's_mov_b32 s{C.S_H}, s{S_SLOT}')
        lslow = a.newlabel('Lcslow'); lfast = a.newlabel('Lcfast')
        def mid(T):
            l1 = a.newlabel('Lcm'); l2 = a.newlabel('Lcm')
            T = r.WV + 64
            self.count_wait(132, T, end, C.S_T, C.S_SPIN); self.count_wait(self.TO, T, end, C.S_T, C.S_SPIN)
            a(f'v_readfirstlane_b32 s{C.S_T}, v{T}')
            add64(a, S_DBG, S_WS, FL(0, 'EL'))
            if self.chain_kw.get('force_slow'): a(f's_mov_b32 s{C.S_T}, 0')
            a(f's_mov_b32 s{C.S_EP}, 0'); a(f's_mov_b32 s{C.S_EM}, 0'); a(f's_mov_b32 s{C.S_HALF}, 0')
            a(f's_cmp_ge_u32 s{C.S_T}, 32'); a(f's_cselect_b32 s{C.S_FB}, 1, 0'); a(f's_cbranch_scc1 {l1}')
            C.chain_init_comm(a, r, 'sc1', True, T); a(f's_branch {l2}')
            a.label(l1); C.chain_init_comm(a, r, '', True, T)
            a.label(l2); C.group_arrive(a, T, 1280)
        C.chain_setup(a, r, mid, self.ahead)
        self.stamp(1)
        C.group_wait(a, r.R, 1280, 32, end)
        a(f's_cmp_eq_u32 s{C.S_FB}, 1'); a(f's_cbranch_scc1 {lfast}')
        a(f's_branch {lslow}')
        a.label(end); a('s_endpgm')
        kw = {k: v for k, v in self.chain_kw.items() if k != 'force_slow'}
        for lbl, stf in ((lfast, ''), (lslow, 'sc1')):
            a.label(lbl)
            lh = a.newlabel('Lch_half'); a.label(lh)
            self.stamp(2, C.S_HALF)
            C.chain_start(a, r, end, 1)
            def started(sv):
                self.sv = sv; self.stamp(3, C.S_HALF); self.sv = r.R
            kw['started'] = started
            C.chain_all_waves(a, r, stf, end, fused=1, **(dict(kw, ef='sc1') if stf else kw))
            self.stamp(4, C.S_HALF)
            if kw.get('stamps'):
                for k in range(12): a(f'v_mov_b32 v{k}, s{84+k}')
                a(f's_lshl_b32 s{C.S_T}, s{C.S_H}, 2'); a(f's_add_u32 s{C.S_T}, s{C.S_T}, s{C.S_W}'); a(f's_lshl_b32 s{C.S_T}, s{C.S_T}, 6')
                a(f's_lshl_b32 s{C.S_T2}, s{C.S_HALF}, 13'); a(f's_add_u32 s{C.S_T}, s{C.S_T}, s{C.S_T2}')
                a(f's_add_u32 s{C.S_T}, s{C.S_T}, {STAMP_OFF + 32768}'); a(f'v_mov_b32 v16, s{C.S_T}')
                for k in range(3): a(f'global_store_dwordx4 v16, {vr(4*k,4)}, s[{S_WS}:{S_WS+1}] offset:{16*k}')
                a('s_waitcnt vmcnt(0)')
            a(f's_cmp_lg_u32 s{C.S_HALF}, 0'); a(f's_cbranch_scc1 {end}')
            a(f's_mov_b32 s{C.S_HALF}, 1'); C.group_arrive(a, r.R, 1408); C.group_wait(a, r.R, 1408, 32, end)
            a(f's_xor_b32 s{C.S_EM}, s{C.S_EM}, 1'); C.chain_init_comm(a, r, stf, False)
            a(f's_branch {lh}')
        return a.lines
    def jump(self, label):
        a = self.a; l = a.newlabel('Lj')
        a('s_getpc_b64 s[48:49]'); a.label(l)
        a(f's_add_u32 s48, s48, {label}-{l}'); a('s_addc_u32 s49, s49, 0'); a('s_setpc_b64 s[48:49]')

NAME = 'interleave_layers__softmax_full_mha__memory_aug_recurrent_mem_tr__prompt'
def build(stamps=False, chain_kw={}, verbose=False, aslist=True):
    ks = []
    for n, lines, vg, acc in ((NAME + '_kernel', Mega(stamps, chain_kw).build(), 512, 256),):
        rep = []
        l = fix_hazards(lines, rep)
        for e in check_waits(l, n[:8]): print(e)
        if verbose: print(n, len(l), len(rep))
        ks.append((n, l, vg, acc))
    hdr = ''.join(l for l in open(f'cdna_kernels/{NAME}.s.ref').readlines()[:14] if '@launch' not in l)
    t = assemble_file(hdr, [(NAME + '_kernel', 256, 256, 163840)], ks)
    return t if aslist else t.replace(f'@launch kernel={NAME}_kernel ', '@launch ')

if __name__ == '__main__':
    import sys
    kw = eval(sys.argv[2]) if len(sys.argv) > 2 else dict()
    st = (True if sys.argv[3] == '1' else 2) if len(sys.argv) > 3 else False
    t = build(st, kw, True, aslist=(st is True))
    open(sys.argv[1] if len(sys.argv) > 1 else f'cdna_kernels/{NAME}.s', 'w').write(t)
    print(len(t))
```

```python
from asmlib import *
from layout import *
import math
import chain2 as C
from work import *

S_DBG = 44; S_SLOT = 36; S_TK = 37; S_SPIN = 38; S_PF = 39; S_FO = 40; S_N = 41; S_X = 42; S_SO = 43; S_SV = 46; S_PD = 47
L, L16 = 1, 2
VZ = 10; VF = 11
SPIN_MAX = 0x60000

class Mega:
    def __init__(self, stamps=False, chain_kw={}):
        self.a = Asm(); self.stamps = stamps; self.chain_kw = chain_kw
        self.end = 'Lm_end'; self.TO = 128 if stamps == 2 else 0
        self.tbsleep = chain_kw.pop('tbsleep', 8); self.wsleep = chain_kw.pop('wsleep', 2); self.wrd = chain_kw.pop('wrd', 0); self.ahead = chain_kw.pop('ahead', 0); self.fake = chain_kw.pop('fake', None); self.ct = chain_kw.pop('ct', 0); self.pfb = chain_kw.pop('pfb', 0); self.kvpos = chain_kw.pop('kvpos', 26); self.perm = chain_kw.pop('perm', 0x65423170)
    def stamp(self, k, hs=None):
        if not self.stamps: return
        a = self.a; l = a.newlabel('Lst')
        if self.stamps == 2:
            kk = self.dmap.get((self.role, k))
            if kk is None: return
            a(f's_cmp_lg_u32 s{S_W}, 0'); a(f's_cbranch_scc1 {l}')
            a('s_memrealtime s[96:97]'); a(f's_load_dwordx2 s[100:101], s[0:1], {KA_DBG}'); a('s_waitcnt lgkmcnt(0)'); a('s_sub_u32 s96, s96, s99')
            a(f's_mov_b32 s98, {4*kk}')
            if hs is not None: a(f's_mul_i32 s97, s{hs}, 12'); a('s_add_u32 s98, s98, s97')
            a('s_mov_b64 exec, 1'); a(f'v_mov_b32 v{self.sv}, s96'); a(f'v_mov_b32 v{self.sv+1}, s98')
            a(f'global_atomic_umax v{self.sv+1}, v{self.sv}, s[100:101] sc1'); a('s_waitcnt vmcnt(0)'); a('s_mov_b64 exec, -1')
            a.label(l); return
        a(f's_cmp_lg_u32 s{S_W}, 0'); a(f's_cbranch_scc1 {l}')
        a('s_memrealtime s[96:97]'); a(f's_lshl_b32 s98, s99, 7'); a(f's_add_u32 s98, s98, {STAMP_OFF + 4*k}'); a('s_waitcnt lgkmcnt(0)')
        if hs is not None: a(f's_lshl_b32 s97, s{hs}, 5'); a('s_add_u32 s98, s98, s97')
        a('s_mov_b64 exec, 1'); a(f'v_writelane_b32 v{self.sv}, s96, 0'); a(f'v_writelane_b32 v{self.sv+1}, s98, 0')
        a(f'v_mov_b32 v{self.sv+1}, s98')
        a(f'global_store_dword v{self.sv+1}, v{self.sv}, s[{S_WS}:{S_WS+1}]'); a('s_waitcnt vmcnt(0)'); a('s_mov_b64 exec, -1')
        a.label(l)
    def mark(self, k, sgpr, val):
        if self.stamps is not True: return
        a = self.a; l = a.newlabel('Lmk')
        a(f's_cmp_lg_u32 s{sgpr}, {val}'); a(f's_cbranch_scc1 {l}')
        a('s_memrealtime s[96:97]'); a('s_waitcnt lgkmcnt(0)'); a(f's_mov_b32 s{70+k}, s96')
        a.label(l)
    def dump_marks(self):
        if self.stamps is not True: return
        a = self.a
        for k in range(16): a(f'v_mov_b32 v{16+k}, s{70+k}')
        a(f's_lshl_b32 s98, s99, 7'); a(f's_add_u32 s98, s98, {STAMP_OFF + 64}'); a('v_mov_b32 v12, s98')
        l = a.newlabel('Lmk'); a(f's_cmp_lg_u32 s{S_W}, 0'); a(f's_cbranch_scc1 {l}')
        for k in range(4): a(f'global_store_dwordx4 v12, {vr(16+4*k,4)}, s[{S_WS}:{S_WS+1}] offset:{16*k}')
        a.label(l)
    def count_wait(self, off, v, fail, st, sp):
        a = self.a; l1 = a.newlabel('Lcw'); l2 = a.newlabel('Lcw')
        a(f's_mov_b32 s{sp}, 0'); a(f'v_mov_b32 v{v+8}, 0')
        a.label(l1)
        for x in range(8): a(f'global_load_dword v{v+x}, v{v+8}, s[{S_DBG}:{S_DBG+1}] offset:{off+16*x} sc1')
        a('s_waitcnt vmcnt(0)')
        a(f'v_add3_u32 v{v+9}, v{v}, v{v+1}, v{v+2}'); a(f'v_add3_u32 v{v+9}, v{v+9}, v{v+3}, v{v+4}'); a(f'v_add3_u32 v{v+9}, v{v+9}, v{v+5}, v{v+6}'); a(f'v_add_u32 v{v+9}, v{v+9}, v{v+7}')
        a(f'v_readfirstlane_b32 s{st}, v{v+9}'); a(f's_cmp_ge_u32 s{st}, 256'); a(f's_cbranch_scc1 {l2}')
        a('s_sleep 4'); a(f's_add_u32 s{sp}, s{sp}, 1'); a(f's_cmp_lt_u32 s{sp}, {SPIN_MAX}'); a(f's_cbranch_scc1 {l1}')
        a(f's_branch {fail}')
        a.label(l2)
    def code_touch(self, v=VZ, sp=48, sh=6):
        if not self.ct: return
        a = self.a
        a(f's_getpc_b64 s[{sp}:{sp+1}]'); a(f's_lshl_b32 s{S_T}, s{S_W}, {6+sh}'); a(f'v_lshl_add_u32 v{v}, v{L}, {sh}, s{S_T}')
        a(f'global_load_dword v{v+1}, v{v}, s[{sp}:{sp+1}]')
    def flags_ready(self): self.count_wait(132, 12, self.end, S_T, S_SPIN)
    def flag_off(self, base, idx_sgpr, sh=2):
        self.a(f's_lshl_b32 s{S_FO}, s{idx_sgpr}, {sh}'); self.a(f's_add_u32 s{S_FO}, s{S_FO}, {base}')
    def flag_issue(self, n):
        a = self.a
        a(f'v_min_u32 v{VZ}, {n-1}, v{L}'); a(f'v_lshl_add_u32 v{VZ}, v{VZ}, 8, s{S_FO}'); a(f'global_load_dword v{VF}, v{VZ}, s[{S_WS}:{S_WS+1}] sc1')
    def wait(self, n, sleep=None, mask=None, sh=8, thr=None, keep=None):
        a = self.a; l1 = a.newlabel('Lw'); l2 = a.newlabel('Lw')
        a(f's_mov_b32 s{S_SPIN}, 0')
        a(f'v_min_u32 v{VZ}, {n-1}, v{L}'); a(f'v_lshl_add_u32 v{VZ}, v{VZ}, {sh}, s{S_FO}')
        a.label(l1)
        a(f'global_load_dword v{VF}, v{VZ}, s[{S_WS}:{S_WS+1}] sc1'); a('s_waitcnt vmcnt(0)')
        a(f'v_cmp_eq_u32 vcc, 0, v{VF}' if thr is None else f'v_cmp_gt_u32 vcc, {thr}, v{VF}')
        if keep: a('s_cmp_eq_u64 vcc, 0'); a(f's_cselect_b32 s{keep}, 1, 0')
        if mask is None: a(f's_cbranch_vccz {l2}')
        else: a(f's_and_b64 vcc, vcc, s[{mask}:{mask+1}]'); a(f's_cbranch_scc0 {l2}')
        a(f's_sleep {sleep or self.wsleep}')
        a(f's_add_u32 s{S_SPIN}, s{S_SPIN}, 1'); a(f's_cmp_lt_u32 s{S_SPIN}, {SPIN_MAX}'); a(f's_cbranch_scc1 {l1}')
        a(f's_branch {self.end}')
        a.label(l2)
    def set_word(self, base, line_sgpr, word_sgpr, s1=2, s2=8):
        a = self.a
        a(f's_lshl_b32 s{S_SO}, s{line_sgpr}, {s1}'); a(f's_lshl_b32 s{S_X}, s{word_sgpr}, {s2}'); a(f's_add_u32 s{S_SO}, s{S_SO}, s{S_X}'); a(f's_add_u32 s{S_SO}, s{S_SO}, {base}')
    def wsignal(self, val=None):
        a = self.a
        a(f'v_mov_b32 v{VZ}, s{S_SO}'); a(f'v_mov_b32 v{VF}, {"s%d" % val if val else "1"}')
        a('s_mov_b64 exec, 1'); a(f'global_store_dword v{VZ}, v{VF}, s[{S_WS}:{S_WS+1}] sc1'); a('s_mov_b64 exec, -1')
    def signal_wg(self):
        a = self.a; l = a.newlabel('Ls')
        a('s_waitcnt vmcnt(0)'); a('s_barrier'); a(f's_cmp_lg_u32 s{S_W}, 0'); a(f's_cbranch_scc1 {l}')
        self.wsignal(); a.label(l)

    def stream(self, ngr, xsrc, inflag, nin, tiles, epilogue, nst, outflag, store, mk=None, pre=None):
        a = self.a; xa = 9; XR = 12
        lp = a.newlabel('Lg_loop'); have = a.newlabel('Lg_have'); go = a.newlabel('Lg_go'); fetch = a.newlabel('Lg_fetch'); done = a.newlabel('Lg_done')
        a(f's_lshl_b32 s{S_XO}, s{S_B}, 15'); a(f's_add_u32 s{S_XO}, s{S_XO}, {xsrc}'); a(f's_mov_b32 s{S_BUF}, {128*1024}')
        a('s_barrier')
        a.label(fetch)
        a(f's_mov_b32 s{S_PD}, 0')
        if inflag is not None:
            self.flag_off(inflag, S_B); self.wait(nin)
        if mk: self.mark(mk[0], S_B, mk[1])
        dma_x(a, L16, S_XO, S_BUF, 'sc1')
        a('s_waitcnt vmcnt(0)')
        a.label(go)
        a('s_barrier')
        if mk: self.mark(mk[0]+1, S_B, mk[1])
        if pre: pre()
        a(f'v_add_u32 v{xa}, s{S_BUF}, v{L16}')
        a(f's_add_u32 s{S_TK}, s{S_B}, {ngr}'); a(f's_xor_b32 s{S_BUF}, s{S_BUF}, {128*1024}'); a(f's_add_u32 s{S_XO}, s{S_XO}, {ngr*32768}')
        if inflag is not None:
            a(f's_min_u32 s{S_T}, s{S_TK}, 63'); self.flag_off(inflag, S_T); self.flag_issue(nin)
        def pref():
            np_ = a.newlabel('Lg_np')
            a('s_waitcnt vmcnt(0)')
            a(f'v_cmp_eq_u32 s[{S_K0}:{S_K0+1}], 0, v{VF}')
            a(f's_cmp_eq_u32 s{S_PD}, 0'); a(f's_cbranch_scc1 {np_}')
            self.wsignal(S_SV if store else None)
            a.label(np_)
        def pref2():
            sk = a.newlabel('Lg_sk')
            a(f's_mov_b32 s{S_PF}, 0')
            a(f's_cmp_ge_u32 s{S_TK}, 64'); a(f's_cbranch_scc1 {sk}')
            a(f's_cmp_lg_u64 s[{S_K0}:{S_K0+1}], 0'); a(f's_cbranch_scc1 {sk}')
            dma_x(a, L16, S_XO, S_BUF, 'sc1'); a(f's_mov_b32 s{S_PF}, 1')
            a.label(sk)
        gemm_core(a, xa, XR, tiles, {30: pref})
        epilogue(pref2)
        if mk: self.mark(mk[0]+2, S_B, mk[1])
        outflag()
        add64(a, S_OUT, S_OUT, ngr*32768)
        a(f's_mov_b32 s{S_B}, s{S_TK}')
        a(f's_cmp_eq_u32 s{S_PF}, 0'); a(f's_cbranch_scc1 {have}')
        first = a.newlabel('Lg_first')
        a(f's_cmp_lt_u32 s{S_B}, {2*ngr}'); a(f's_cbranch_scc1 {first}')
        a(f's_mov_b32 s{S_PD}, 1'); a(f's_waitcnt vmcnt({nst})'); a(f's_branch {go}')
        a.label(first)
        a('s_waitcnt vmcnt(0)'); self.wsignal(S_SV if store else None)
        if mk: self.mark(mk[0]+3, S_B, mk[1]+ngr)
        a(f's_mov_b32 s{S_PD}, 0'); a(f's_branch {go}')
        a.label(have)
        a('s_waitcnt vmcnt(0)'); self.wsignal(S_SV if store else None)
        if mk: self.mark(mk[0]+3, S_B, mk[1]+ngr)
        a(f's_cmp_lt_u32 s{S_B}, 64'); a(f's_cbranch_scc1 {fetch}')
        a('s_barrier')

    def proj_weights(self, isB, share=None, early=None, sel=(0, 1, 2)):
        a = self.a
        a(f's_lshl_b32 s{S_OFF}, s{S_A}, 8')
        if isB: mats = [(KA_WK, 4*MB, 0, 'a', 128), (KA_WV, 4*MB, 0, 'v', 128), (KA_WQ, 4*MB, 0, 'a', 0)]; stride = 8192
        else: mats = [(KA_WQKV, 1536*1024, 1024, 'a', 128), (KA_WQKV, 1536*1024, 2048, 'v', 128), (KA_WQKV, 1536*1024, 0, 'a', 0)]; stride = 3072
        load_wslices(a, [mats[i] for i in sel], stride, L, 3, 4, 5, share, early)
    def proj_run(self, half, isB, ngr, nowait=False, mode='kvq'):
        a = self.a; H = W.H[half]
        if not nowait: self.code_touch()
        t0, t1, vq, vk, vv = 3, 4, 6, 7, 8; ACC = 28
        ro = (HB_Q, HB_K, HB_V) if isB else (0, H.KA - H.QA, H.VA - H.QA)
        a(f's_lshl_b32 s{S_T}, s{S_W}, 11')
        a(f's_add_u32 s{S_T2}, s{S_T}, {ro[0]}'); a(f'v_add_u32 v{vq}, s{S_T2}, v{L16}')
        a(f's_add_u32 s{S_T2}, s{S_T}, {ro[1]}'); a(f'v_add_u32 v{vk}, s{S_T2}, v{L16}')
        pi_of(a, t0, L, t1); vpos16(a, vv, t0, L, t1)
        a(f's_add_u32 s{S_T2}, s{S_T}, {ro[2]}'); a(f'v_add_u32 v{vv}, s{S_T2}, v{vv}')
        a(f's_lshl_b32 s{S_T}, s{S_A}, {21 if isB else 13}'); a(f's_lshl_b32 s{S_T2}, s{S_B}, 15'); a(f's_add_u32 s{S_T}, s{S_T}, s{S_T2}')
        a(f's_add_u32 s{S_T}, s{S_T}, {H.HB if isB else H.QA}'); add64(a, S_OUT, S_WS, f's{S_T}')
        a(f's_mov_b32 s{S_M}, {f2u(0.25*math.log2(math.e)):#x}')
        xa = 9; XR = 12; inflag = FL(half, 'XNB' if isB else 'XNA'); mk = (0, 0 if isB else 63) if half == 1 else ((8, 0) if isB else None)
        go = a.newlabel('Lp_go'); fetch = a.newlabel('Lp_fetch'); have = a.newlabel('Lp_have')
        a(f's_lshl_b32 s{S_XO}, s{S_B}, 15'); a(f's_add_u32 s{S_XO}, s{S_XO}, {H.XNB if isB else H.XNA}'); a(f's_mov_b32 s{S_BUF}, {128*1024}')
        a(f's_mov_b32 s{S_PD}, 0')
        a('s_barrier')
        if nowait: a(f's_branch {go}')
        a.label(fetch)
        self.flag_off(inflag, S_B); self.wait(16 if isB else 4)
        if mk: self.mark(mk[0], S_B, mk[1])
        dma_x(a, L16, S_XO, S_BUF, 'sc1')
        a('s_waitcnt vmcnt(0)')
        a.label(go)
        a('s_barrier')
        if mk: self.mark(mk[0]+1, S_B, mk[1])
        a(f'v_add_u32 v{xa}, s{S_BUF}, v{L16}')
        a(f's_add_u32 s{S_TK}, s{S_B}, {ngr}'); a(f's_xor_b32 s{S_BUF}, s{S_BUF}, {128*1024}'); a(f's_add_u32 s{S_XO}, s{S_XO}, {ngr*32768}')
        if not nowait: a(f's_min_u32 s{S_T}, s{S_TK}, 63'); self.flag_off(inflag, S_T); self.flag_issue(16 if isB else 4)
        def word():
            if isB:
                a(f's_and_b32 s{S_T}, s{S_B}, 1'); a(f's_lshl_b32 s{S_T}, s{S_T}, 2'); a(f's_add_u32 s{S_T}, s{S_T}, s{S_W}')
                self.set_word(FL(half, "HEAD"), S_A, S_T, 8, 5)
            else:
                a(f's_lshl_b32 s{S_T}, s{S_A}, 2'); a(f's_add_u32 s{S_T}, s{S_T}, s{S_W}'); self.set_word(FL(half, "QKVA"), S_T, S_B, 11, 5)
        def late():
            l = a.newlabel('Lp_q'); a(f's_cmp_eq_u32 s{S_PD}, 0'); a(f's_cbranch_scc1 {l}')
            self.wsignal(); a(f's_mov_b32 s{S_PD}, 0'); a.label(l)
        def pref():
            sk = a.newlabel('Lp_sk')
            a('s_waitcnt vmcnt(0)'); a(f'v_cmp_eq_u32 vcc, 0, v{VF}')
            if not isB: late()
            a(f's_mov_b32 s{S_PF}, 0')
            a(f's_cmp_ge_u32 s{S_TK}, 64'); a(f's_cbranch_scc1 {sk}')
            if not nowait: a(f's_cbranch_vccnz {sk}')
            dma_x(a, L16, S_XO, S_BUF, 'sc1'); a(f's_mov_b32 s{S_PF}, 1')
            a.label(sk)
        def half_store(acc, ad, j):
            for i in range(4): a(f'v_cvt_pk_bf16_f32 v{acc+8*j+i}, v{acc+8*j+2*i}, v{acc+8*j+2*i+1}')
            a(f'global_store_dwordx4 v{ad}, {vr(acc+8*j,4)}, s[{S_OUT}:{S_OUT+1}] offset:{1024*j} sc1')
        def kvsig():
            if mk: self.mark(mk[0]+2, S_B, mk[1])
            word(); a('s_waitcnt vmcnt(0)'); self.wsignal(S_TK if isB else None)
            if mk: self.mark(mk[0]+3, S_B, mk[1])
        kvs = [lambda: half_store(ACC+16, vk, 0), lambda: half_store(ACC+16, vk, 1), lambda: half_store(ACC+32, vv, 0), lambda: half_store(ACC+32, vv, 1)]
        if mode != 'q': gemm_core(a, xa, XR, [(ACC+16, 'a', 128, False), (ACC+32, 'v', 128, True)], {18: pref})
        if mode == 'kvq': gemm_core(a, xa, XR, [(ACC, 'a', 0, False)], {0: kvs[0], 1: kvs[1], 2: kvs[2], 3: kvs[3], self.kvpos: kvsig})
        if mode == 'q':
            def p0():
                sk = a.newlabel('Lp_sk'); a(f's_mov_b32 s{S_PF}, 0'); a(f's_cmp_ge_u32 s{S_TK}, 64'); a(f's_cbranch_scc1 {sk}')
                dma_x(a, L16, S_XO, S_BUF, 'sc1'); a(f's_mov_b32 s{S_PF}, 1'); a.label(sk)
            gemm_core(a, xa, XR, [(ACC, 'a', 0, False)], {0: p0, 30: lambda: (a('s_waitcnt vmcnt(0)'), late())})
        if mode == 'kv':
            for f in kvs: f()
        else: pack_store(a, ACC, vq, S_OUT, 'sc1', scale=None if isB else S_M)
        if not isB:
            if mode != 'kvq': word()
            if mode != 'kv': a(f's_add_u32 s{S_SO}, s{S_SO}, 16')
        add64(a, S_OUT, S_OUT, ngr*32768)
        a(f's_mov_b32 s{S_B}, s{S_TK}'); a(f's_mov_b32 s{S_PD}, 1')
        if mode == 'kv': a('s_waitcnt vmcnt(4)')
        a(f's_cmp_lg_u32 s{S_PF}, 0'); a(f's_cbranch_scc1 {go}')
        if not isB: a('s_waitcnt vmcnt(0)'); late()
        a(f's_cmp_lt_u32 s{S_B}, 64'); a(f's_cbranch_scc1 {fetch}')
        if isB:
            a('s_waitcnt vmcnt(0)'); a(f's_add_u32 s{S_SV}, s{S_B}, 2'); self.wsignal(S_SV)
        a('s_barrier')
    def woa_run(self, half, ngr):
        a = self.a; H = W.H[half]
        self.code_touch()
        t0, t1, sm, vo, vx, vs = 3, 4, 5, 6, 7, 8; ACC = 28; X = 44; G = 52; SP = 68; mu = 70
        a(f's_lshl_b32 s{S_T}, s{S_W}, 11'); a(f's_lshl_b32 s{S_T2}, s{S_A}, 13'); a(f's_add_u32 s{S_T}, s{S_T}, s{S_T2}'); a(f'v_add_u32 v{vo}, s{S_T}, v{L16}')
        if half == 0:
            a(f's_load_dwordx2 s[{S_P}:{S_P+1}], s[0:1], {KA_X}')
            a(f'v_and_b32 v{t0}, 31, v{L}'); a(f'v_lshlrev_b32 v{vx}, 10, v{t0}'); a(f'v_lshrrev_b32 v{t0}, 5, v{L}'); a(f'v_lshl_add_u32 v{vx}, v{t0}, 4, v{vx}')
            a(f's_lshr_b32 s{S_T}, s{S_T}, 5'); a(f'v_add_u32 v{vx}, s{S_T}, v{vx}'); a('s_waitcnt lgkmcnt(0)')
        else:
            add64(a, S_P, S_WS, W.H[0].X2); a(f'v_mov_b32 v{vx}, v{vo}')
        a(f's_lshl_b32 s{S_T2}, s{S_B}, 15'); add64(a, S_P, S_P, f's{S_T2}')
        a(f's_add_u32 s{S_T}, s{S_T2}, {H.X1}'); add64(a, S_OUT, S_WS, f's{S_T}')
        a(f'v_and_b32 v{t0}, 31, v{L}'); a(f'v_lshlrev_b32 v{vs}, 3, v{t0}'); a(f'v_lshrrev_b32 v{t0}, 5, v{L}'); a(f'v_lshl_add_u32 v{vs}, v{t0}, 11, v{vs}')
        a(f's_mov_b32 s{S_M}, 0xffff0000')
        def pre():
            for j in range(2): a(f'global_load_dwordx4 {vr(X+4*j,4)}, v{vx}, s[{S_P}:{S_P+1}] offset:{(32 if half == 0 else 1024)*j} {"" if half == 0 else "sc1"}')
            add64(a, S_P, S_P, ngr*32768)
        def rbf(r): a(f'v_cvt_pk_bf16_f32 v{r}, v{r}, v{r}'); a(f'v_and_b32 v{r}, s{S_M}, v{r}')
        def halves(regs):
            for x, t in zip(regs, (t0, t1)): a(f'v_mov_b32 v{t}, v{x}')
            for x, t in zip(regs, (t0, t1)): a(f'v_permlane32_swap_b32 v{x}, v{t}')
            for x, t in zip(regs, (t0, t1)): a(f'v_add_f32 v{x}, v{x}, v{t}')
        def epi(pref2):
            a(f's_lshl_b32 s{S_T}, s{S_B}, 12'); a(f's_add_u32 s{S_T}, s{S_T}, {W.ST + half*262144}'); add64(a, S_IN, S_WS, f's{S_T}')
            a(f's_lshl_b32 s{S_T}, s{S_A}, 2'); a(f's_add_u32 s{S_T}, s{S_T}, s{S_W}'); a(f's_lshl_b32 s{S_T2}, s{S_T}, 8')
            self.set_word(FL(half, "XNB"), S_B, S_T)
            for d in range(8):
                e = ACC+2*d
                a(f'v_cvt_pk_bf16_f32 v{t1}, v{e}, v{e+1}'); a(f'v_lshlrev_b32 v{e}, 16, v{X+d}'); a(f'v_and_b32 v{e+1}, s{S_M}, v{X+d}')
                a(f'v_lshlrev_b32 v{t0}, 16, v{t1}'); a(f'v_and_b32 v{t1}, s{S_M}, v{t1}')
                a(f'v_add_f32 v{e}, v{e}, v{t0}'); a(f'v_add_f32 v{e+1}, v{e+1}, v{t1}')
                a(f'v_cvt_pk_bf16_f32 v{X+d}, v{e}, v{e+1}')
                a(f'v_lshlrev_b32 v{e}, 16, v{X+d}'); a(f'v_and_b32 v{e+1}, s{S_M}, v{X+d}')
                if d == 0: a(f'v_add_f32 v{SP}, v{e}, v{e+1}'); a(f'v_mul_f32 v{SP+1}, v{e}, v{e}')
                else: a(f'v_add_f32 v{SP}, v{SP}, v{e}'); a(f'v_add_f32 v{SP}, v{SP}, v{e+1}'); a(f'v_fmac_f32 v{SP+1}, v{e}, v{e}')
                a(f'v_fmac_f32 v{SP+1}, v{e+1}, v{e+1}')
            halves((SP, SP+1))
            a(f'v_or_b32 v{SP+1}, 1, v{SP+1}'); a(f'v_add_u32 v{t0}, s{S_T2}, v{vs}')
            a('s_mov_b32 exec_hi, 0'); a(f'global_store_dwordx2 v{t0}, {vr(SP,2)}, s[{S_IN}:{S_IN+1}] sc1'); a('s_mov_b32 exec_hi, -1')
            a('s_waitcnt vmcnt(0)')
            l1 = a.newlabel('Lwr'); l2 = a.newlabel('Lwr')
            a(f's_mov_b32 s{S_SPIN}, 0')
            a.label(l1)
            for p in range(8): a(f'global_load_dwordx2 {vr(G+2*p,2)}, v{vs}, s[{S_IN}:{S_IN+1}] offset:{256*p} sc1')
            a('s_waitcnt vmcnt(0)')
            a(f'v_bitop3_b32 v{t0}, v{G+1}, v{G+3}, v{G+5} bitop3:0x80'); a(f'v_bitop3_b32 v{t1}, v{G+7}, v{G+9}, v{G+11} bitop3:0x80')
            a(f'v_bitop3_b32 v{t0}, v{t0}, v{G+13}, v{G+15} bitop3:0x80'); a(f'v_bitop3_b32 v{t0}, v{t0}, v{t1}, 1 bitop3:0x80')
            a(f'v_cmp_eq_u32 vcc, 0, v{t0}'); a(f's_cbranch_vccz {l2}')
            a(f's_add_u32 s{S_SPIN}, s{S_SPIN}, 1'); a(f's_cmp_lt_u32 s{S_SPIN}, {SPIN_MAX}'); a(f's_cbranch_scc1 {l1}')
            a(f's_branch {self.end}')
            a.label(l2)
            pref2()
            for j in range(2): a(f'global_store_dwordx4 v{vo}, {vr(X+4*j,4)}, s[{S_OUT}:{S_OUT+1}] offset:{1024*j} sc1')
            for st in (8, 4, 2):
                for i in range(0, st, 2): a(f'v_pk_add_f32 {vr(G+i,2)}, {vr(G+i,2)}, {vr(G+i+st,2)}')
            halves((G, G+1))
            a(f'v_mul_f32 v{mu}, {f2u(1/512):#x}, v{G}'); a(f'v_mul_f32 v{sm}, {f2u(1/512):#x}, v{G+1}')
            a(f'v_fma_f32 v{sm}, -v{mu}, v{mu}, v{sm}'); a(f'v_max_f32 v{sm}, 0, v{sm}')
            rbf(sm); a(f'v_add_f32 v{sm}, {f2u(1e-5):#x}, v{sm}'); rbf(sm)
            a(f'v_sqrt_f32 v{sm}, v{sm}'); rbf(sm); a(f'v_rcp_f32 v{sm}, v{sm}'); rbf(mu)
            add64(a, S_IN, S_OUT, H.XNB - H.X1) if H.XNB > H.X1 else (a(f's_sub_u32 s{S_IN}, s{S_OUT}, {H.X1 - H.XNB}'), a(f's_subb_u32 s{S_IN+1}, s{S_OUT+1}, 0'))
            for d in range(8):
                e = ACC+2*d
                a(f'v_sub_f32 v{t0}, v{e}, v{mu}'); a(f'v_sub_f32 v{t1}, v{e+1}, v{mu}'); a(f'v_cvt_pk_bf16_f32 v{t1}, v{t0}, v{t1}')
                a(f'v_lshlrev_b32 v{t0}, 16, v{t1}'); a(f'v_and_b32 v{t1}, s{S_M}, v{t1}')
                a(f'v_mul_f32 v{t0}, v{t0}, v{sm}'); a(f'v_mul_f32 v{t1}, v{t1}, v{sm}'); a(f'v_cvt_pk_bf16_f32 v{G+d}, v{t0}, v{t1}')
                if d % 4 == 3: a(f'global_store_dwordx4 v{vo}, {vr(G+d-3,4)}, s[{S_IN}:{S_IN+1}] offset:{1024*(d//4)} sc1')
        self.stream(ngr, H.OA, FL(half, 'OA'), 32, [(ACC, 'v', 128, False)], epi, 4, lambda: None, False, mk=(0, 0) if half == 1 else (8, 0), pre=pre)
    def rb_run(self, half, kind, ngr):
        a = self.a; H = W.H[half]
        lp = a.newlabel('Lr_loop'); a.label(lp)
        mk = (4, 0) if (kind == 1 and half == 1) else ((4, 63) if (kind == 2 and half == 0) else ((8, 0) if kind == 1 else None))
        def ready():
            self.flag_off(FL(half, 'YA' if kind == 1 else 'PT'), S_A); self.wait(16 if kind == 1 else 32)
            if mk: self.mark(mk[0], S_A, mk[1])
        xprev = KA_X if half == 0 else W.H[0].X2
        if kind == 1: rb_body(a, 1, xprev, half == 0, H.YA, 0, 32768, H.X1, False, H.XNB, 'sc1', 'sc1', ready)
        elif half == 0: rb_body(a, 8, H.X1, False, H.PT, 32768, 8*32768, H.X2, False, W.H[1].XNA, 'sc1', 'sc1', ready)
        else: rb_body(a, 8, H.X1, False, H.PT, 32768, 8*32768, KA_OUT, True, None, 'sc1', 'sc1', ready)
        if kind == 1 or half == 0:
            if mk: self.mark(mk[0]+2, S_A, mk[1])
            self.set_word(FL(half, 'XNB') if kind == 1 else FL(1, 'XNA'), S_A, S_B); self.signal_wg()
            if mk: self.mark(mk[0]+3, S_A, mk[1])
        a(f's_add_u32 s{S_A}, s{S_A}, {ngr}'); a(f's_cmp_lt_u32 s{S_A}, 64'); a(f's_cbranch_scc1 {lp}')

    def att_run(self, half, npg):
        a = self.a; H = W.H[half]
        self.code_touch()
        t0, t1, t2, ak, av, idx, lw = range(3, 10); mx = 204
        Q = 12; QN = 16; K0 = 20; Cc = 24; O = 40; D = [56, 72, 88]; KF = 104; MG = 168
        pi_of(a, t0, L, t1)
        a(f'v_and_b32 v{t1}, 32, v{L}'); a(f'v_add_u32 v{ak}, v{t0}, v{t1}'); a(f'v_lshlrev_b32 v{ak}, 4, v{ak}')
        a(f'v_and_b32 v{t0}, 15, v{t0}'); a(f's_and_b32 s{S_T}, s{S_A}, 1'); a(f's_lshl_b32 s{S_T}, s{S_T}, 4'); a(f'v_add_u32 v{t0}, s{S_T}, v{t0}')
        vpos16(a, av, t0, L, t1)
        a(f'v_mov_b32 v{idx}, 0xdddd')
        a(f's_mul_i32 s{S_T}, s{S_W}, 3072'); a(f'v_add_u32 v{lw}, s{S_T}, v{L16}')
        if half == 0:
            a(f'v_mov_b32 v{t0}, 0x3f803f80')
            for i in range(128): a(f'v_accvgpr_write_b32 a{i}, v{t0}')
        a(f's_lshr_b32 s{S_T}, s{S_A}, 1'); self.flag_off(FL(half, 'QKVA'), S_T, 11)
        a(f's_mov_b32 s{S_N}, 0')
        def qwait(blk):
            l = a.newlabel('La_q'); a(f's_cmp_lg_u32 s{S_N}, 0'); a(f's_cbranch_scc1 {l}')
            a(f's_lshl_b64 s[{S_P}:{S_P+1}], 1, s{blk}'); a(f's_add_u32 s{S_FO}, s{S_FO}, 16'); self.wait(64, mask=S_P, sh=5, keep=S_N); a(f's_sub_u32 s{S_FO}, s{S_FO}, 16')
            a.label(l)
        qwait(S_B); self.wait(56, sh=5)
        self.stamp(2 + 8*half)
        a(f's_lshl_b32 s{S_T}, s{S_A}, 10'); a(f's_lshl_b32 s{S_T2}, s{S_B}, 15'); a(f's_add_u32 s{S_T2}, s{S_T2}, s{S_T}')
        a(f's_add_u32 s{S_T3}, s{S_T2}, {H.QA}'); add64(a, S_IN, S_WS, f's{S_T3}')
        a(f's_add_u32 s{S_T3}, s{S_T2}, {H.OA}'); add64(a, S_OUT, S_WS, f's{S_T3}')
        a(f'global_load_dwordx4 {vr(QN,4)}, v{L16}, s[{S_IN}:{S_IN+1}] sc1')
        a(f's_add_u32 s{S_K0}, s{S_T}, {H.KA}')
        a(f'buffer_load_dwordx4 {vr(K0,4)}, v{ak}, s[{S_WSRD}:{S_WSRD+3}], s{S_K0} offen sc1')
        a(f's_lshl_b32 s{S_T2}, s{S_W}, 15'); a(f's_add_u32 s{S_K0}, s{S_K0}, s{S_T2}')
        a(f's_lshr_b32 s{S_K1}, s{S_A}, 1'); a(f's_lshl_b32 s{S_K1}, s{S_K1}, 11'); a(f's_add_u32 s{S_K1}, s{S_K1}, s{S_T2}'); a(f's_add_u32 s{S_K1}, s{S_K1}, {H.VA}')
        a(f's_mov_b32 s{S_M}, 0x0000ffff'); a(f's_mov_b32 s{S_M+1}, 0x0000ffff')
        def kv_tile(t):
            a(f's_add_u32 s{S_T}, s{S_K0}, {t*131072}')
            a(f'buffer_load_dwordx4 {vr(KF+4*t,4)}, v{ak}, s[{S_WSRD}:{S_WSRD+3}], s{S_T} offen sc1')
            a(f's_add_u32 s{S_T}, s{S_K1}, {t*131072}')
            a(f's_mov_b64 exec, s[{S_M}:{S_M+1}]')
            for b in range(2): a(f'buffer_load_dwordx4 {vr(8*t+4*b,4,"a")}, v{av}, s[{S_WSRD}:{S_WSRD+3}], s{S_T} offen offset:{1024*b} sc1')
            a('s_mov_b64 exec, -1')
        def late_tile(t):
            l = a.newlabel('La_lt'); a(f's_cmp_eq_u32 s{S_PD}, 0'); a(f's_cbranch_scc1 {l}')
            a(f's_add_u32 s{S_T}, s{S_W}, {4*t}'); a(f's_lshl_b64 s[{S_P}:{S_P+1}], 1, s{S_T}')
            self.wait(64, mask=S_P, sh=5)
            if half and t == 15: self.mark(0, S_B, 0)
            kv_tile(t); a('s_waitcnt vmcnt(0)')
            if t == 15: a(f's_mov_b32 s{S_PD}, 0')
            a.label(l)
        for t in range(14): kv_tile(t)
        a(f's_mov_b32 s{S_PD}, 1')
        a(f's_mov_b32 s{S_BUF}, 0'); a(f's_mov_b32 s{S_CNT}, 0'); a(f's_mov_b32 s{S_PF}, 0')
        a('s_barrier')
        lp = a.newlabel('La_loop'); run = a.newlabel('La_run'); slow = a.newlabel('La_slow'); nom = a.newlabel('La_nom'); noq = a.newlabel('La_noq'); out = a.newlabel('La_out')
        def rowmax(src, first):
            if first: a(f'v_max3_f32 v{mx}, v{src}, v{src+1}, v{src+2}'); rest = list(range(3, 16))
            else: rest = list(range(16))
            while len(rest) >= 2:
                a(f'v_max3_f32 v{mx}, v{mx}, v{src+rest[0]}, v{src+rest[1]}'); rest = rest[2:]
            if rest: a(f'v_max_f32 v{mx}, v{mx}, v{src+rest[0]}')
        def halfmax():
            a(f'v_mov_b32 v{t0}, v{mx}'); a(f'v_permlane32_swap_b32 v{mx}, v{t0}'); a(f'v_max_f32 v{mx}, v{mx}, v{t0}')
        def pending():
            l = a.newlabel('La_p'); a(f's_cmp_eq_u32 s{S_PF}, 0'); a(f's_cbranch_scc1 {l}')
            a('s_waitcnt vmcnt(0)'); self.wsignal(); a(f's_mov_b32 s{S_PF}, 0')
            if half: self.mark(3, S_B, 0)
            a.label(l)
        a(f's_waitcnt vmcnt({3*14})')
        self.mark(1 if half else 11, S_B, 0)
        a.label(lp)
        for i in range(4): a(f'v_mov_b32 v{Q+i}, v{QN+i}')
        a(f's_add_u32 s{S_TK}, s{S_B}, {npg}'); add64(a, S_IN, S_IN, npg*32768)
        a(mf(D[0], vr(K0,4), vr(Q,4), 0))
        rowmax(D[0], True); halfmax()
        a(f's_mov_b32 s{S_XO}, 0')
        a.label(run)
        for i in range(16): a(f'v_sub_f32 v{Cc+i}, 0, v{mx}')
        for i in range(16): a(f'v_mov_b32 v{O+i}, 0')
        a(f's_waitcnt vmcnt({3*12})')
        a(mf(D[0], vr(KF,4), vr(Q,4), vr(Cc,16)))
        a(mf(D[1], vr(KF+4,4), vr(Q,4), vr(Cc,16)))
        def pv(t, b): a(f'v_smfmac_f32_32x32x32_bf16 {vr(O,16)}, {vr(8*t+4*b,4,"a")}, {vr(D[t%3]+8*b,8)}, v{idx}')
        for t in range(16):
            d = D[t % 3]
            for i in range(16):
                a(f'v_exp_f32 v{d+i}, v{d+i}')
                if i == 2 and t > 0: pv(t-1, 1)
                if i == 6 and t + 2 >= 14 and t + 2 < 16: late_tile(t+2)
                if i == 6 and t + 2 < 14: a(f's_waitcnt vmcnt({3*(13-(t+2))})')
                if i == 6 and t + 2 < 16: a(mf(D[(t+2)%3], vr(KF+4*(t+2),4), vr(Q,4), vr(Cc,16)))
                if i == 11: pv(t, 0)
            if t == 5: pending()
            if t == 11:
                a(f's_cmp_ge_u32 s{S_TK}, 64'); a(f's_cbranch_scc1 {noq}')
                qwait(S_TK)
                a(f'global_load_dwordx4 {vr(QN,4)}, v{L16}, s[{S_IN}:{S_IN+1}] sc1')
                a.label(noq)
        pv(15, 1)
        a(f'v_add_u32 v{t1}, s{S_BUF}, v{lw}')
        for j in range(3): a(f'ds_write_b128 v{t1}, {vr(O+4*j,4)} offset:{1024*j}')
        a('s_waitcnt vmcnt(0) lgkmcnt(0)'); a('s_barrier')
        a(f'v_add_u32 v{t1}, s{S_BUF}, v{L16}')
        for w in range(4): a(f'ds_read_b32 v{MG+w}, v{t1} offset:{3072*w+2048}')
        a('s_waitcnt lgkmcnt(0)')
        a(f'v_add_f32 v{MG}, v{MG}, v{MG+1}'); a(f'v_add_f32 v{MG+2}, v{MG+2}, v{MG+3}'); a(f'v_add_f32 v{t2}, v{MG}, v{MG+2}')
        a(f's_xor_b32 s{S_BUF}, s{S_BUF}, 16384')
        a(f'v_cmp_nge_f32 vcc, {f2u(2.0**90):#x}, v{t2}')
        a(f's_cbranch_vccnz {slow}')
        fin = a.newlabel('La_fin'); a.label(fin)
        a(f's_and_b32 s{S_T}, s{S_CNT}, 3'); a(f's_add_u32 s{S_CNT}, s{S_CNT}, 1')
        a(f's_cmp_lg_u32 s{S_T}, s{S_W}'); a(f's_cbranch_scc1 {nom}')
        for w in range(4):
            for j in range(2): a(f'ds_read_b128 {vr(MG+8*w+4*j,4)}, v{t1} offset:{3072*w+1024*j}')
        a(f'v_rcp_f32 v{t2}, v{t2}')
        a('s_waitcnt lgkmcnt(0)')
        for i in range(8):
            a(f'v_add_f32 v{MG+i}, v{MG+i}, v{MG+8+i}'); a(f'v_add_f32 v{MG+16+i}, v{MG+16+i}, v{MG+24+i}')
            a(f'v_add_f32 v{MG+i}, v{MG+i}, v{MG+16+i}'); a(f'v_mul_f32 v{MG+i}, v{MG+i}, v{t2}')
        for i in range(4): a(f'v_cvt_pk_bf16_f32 v{MG+i}, v{MG+2*i}, v{MG+2*i+1}')
        a(f'global_store_dwordx4 v{L16}, {vr(MG,4)}, s[{S_OUT}:{S_OUT+1}] sc1')
        self.set_word(FL(half, 'OA'), S_B, S_A); a(f's_mov_b32 s{S_PF}, 1')
        self.mark(2 if half else 12, S_B, 0)
        a(f's_cmp_ge_u32 s{S_B}, {npg}'); a(f's_cbranch_scc1 {nom}')
        pending()
        a.label(nom)
        add64(a, S_OUT, S_OUT, npg*32768)
        a(f's_mov_b32 s{S_B}, s{S_TK}')
        a(f's_cmp_lt_u32 s{S_B}, 64'); a(f's_cbranch_scc1 {lp}')
        pending()
        a(f's_branch {out}')
        a.label(slow)
        a(f's_cmp_lg_u32 s{S_XO}, 0'); a(f's_cbranch_scc1 {fin}')
        a(f's_mov_b32 s{S_XO}, 1')
        for t in range(16):
            a(mf(D[t%2], vr(KF+4*t,4), vr(Q,4), 0))
            rowmax(D[t%2], t == 0)
        halfmax()
        a(f'ds_write_b32 v{lw}, v{mx} offset:32768'); a('s_waitcnt lgkmcnt(0)'); a('s_barrier')
        for w in range(4): a(f'ds_read_b32 v{MG+w}, v{L16} offset:{32768+3072*w}')
        a('s_waitcnt lgkmcnt(0)')
        a(f'v_max3_f32 v{mx}, v{MG}, v{MG+1}, v{MG+2}'); a(f'v_max_f32 v{mx}, v{mx}, v{MG+3}')
        a(f's_branch {run}')
        a.label(out)
        a('s_barrier')

    def tb_weights(self):
        a = self.a
        a(f's_lshr_b32 s{S_T}, s{S_A}, 2'); a(f's_lshl_b32 s{S_T}, s{S_T}, 19'); a(f's_and_b32 s{S_T2}, s{S_A}, 3'); a(f's_lshl_b32 s{S_T2}, s{S_T2}, 8')
        a(f's_add_u32 s{S_OFF}, s{S_T}, s{S_T2}')
        load_wslices(a, [(KA_WO, 4*MB, 0, 'a', 128)], 1024, L, 3, 4, 5)
    def tb_run(self, half, ngr):
        a = self.a; H = W.H[half]
        t0, t1, akm, av, avm, vo, xw = range(3, 10); mx = 240; FG = 244
        XR = 12; CM = 28; SX = 44; SM = 60; Q = 76; K = 108; KM = 140; V = 172; VM = 204; P = 212; PM = 220; ACC = 224
        OT = Q
        a(f'v_and_b32 v{t0}, 7, v{L}'); a(f'v_lshlrev_b32 v{akm}, 4, v{t0}'); a(f'v_lshrrev_b32 v{t0}, 5, v{L}'); a(f'v_lshl_add_u32 v{akm}, v{t0}, 7, v{akm}')
        a(f'v_add_u32 v{akm}, {HB_KM}, v{akm}')
        pi_of(a, t0, L, t1); vpos16(a, av, t0, L, t1); a(f'v_add_u32 v{av}, {HB_V}, v{av}')
        a(f'v_lshlrev_b32 v{avm}, 2, v{t0}'); a(f'v_lshrrev_b32 v{t1}, 5, v{L}'); a(f'v_lshl_add_u32 v{avm}, v{t1}, 8, v{avm}'); a(f'v_add_u32 v{avm}, {HB_VM}, v{avm}')
        a(f's_lshl_b32 s{S_T}, s{S_W}, 11'); a(f'v_add_u32 v{vo}, s{S_T}, v{L16}')
        a(f's_lshl_b32 s{S_T}, s{S_W}, 13'); a(f'v_add_u32 v{xw}, s{S_T}, v{L16}')
        a(f'v_and_b32 v{t0}, 31, v{L}'); a(f'v_lshrrev_b32 v{t1}, 5, v{L}'); a(f'v_lshlrev_b32 v{t1}, 2, v{t1}'); a(f'v_sub_u32 v{t0}, v{t0}, v{t1}')
        a(f'v_mov_b32 v{t1}, {f2u(-1e30):#x}')
        for i in range(16):
            a(f'v_cmp_le_i32 vcc, {8*(i>>2)+(i&3)}, v{t0}'); a(f'v_cndmask_b32 v{CM+i}, v{t1}, 0, vcc')
        a(f's_and_b32 s{S_T}, s{S_A}, 28'); a(f's_add_u32 s{S_T}, s{S_T}, s{S_W}')
        a(f's_lshl_b32 s{S_K0}, s{S_T}, 8'); a(f's_add_u32 s{S_K0}, s{S_K0}, {FL(half, "HEAD")}')
        a(f's_lshl_b32 s{S_T}, s{S_T}, 21')
        a(f's_lshl_b32 s{S_T2}, s{S_B}, 15'); a(f's_add_u32 s{S_XO}, s{S_T}, s{S_T2}'); a(f's_add_u32 s{S_XO}, s{S_XO}, {H.HB}')
        a(f's_lshl_b32 s{S_T}, s{S_B}, 18'); a(f's_lshl_b32 s{S_T2}, s{S_A}, 13'); a(f's_add_u32 s{S_T}, s{S_T}, s{S_T2}'); a(f's_add_u32 s{S_T}, s{S_T}, {H.PT}')
        add64(a, S_OUT, S_WS, f's{S_T}')
        a(f's_mov_b32 s{S_M}, {f2u(math.log2(math.e)/math.sqrt(128.0)):#x}')
        a(f's_mov_b32 s{S_N}, 0'); a(f's_mov_b32 s{S_K1}, 0')
        def bl(n, dst, va, so, off): a(f'buffer_load_dword{n} {vr(dst, 4 if n else 1)}, v{va}, s[{S_WSRD}:{S_WSRD+3}], s{so} offen offset:{off} sc1')
        def poll(which):
            l1 = a.newlabel('Lt_p'); l2 = a.newlabel('Lt_p'); l3 = a.newlabel('Lt_p')
            a(f's_mov_b32 s{S_SPIN}, 0'); a(f's_branch {l3}')
            a.label(l1)
            if which == S_N:
                a(f'v_mov_b32 v{VZ}, s{S_K0}')
                _ = [a(f'global_load_dword v{FG+i}, v{VZ}, s[{S_WS}:{S_WS+1}] offset:{32*i} sc1') for i in range(8)]; a('s_waitcnt vmcnt(0)')
                a(f'v_min3_u32 v{FG}, v{FG}, v{FG+1}, v{FG+2}'); a(f'v_min3_u32 v{FG}, v{FG}, v{FG+3}, v{FG+4}'); a(f'v_min3_u32 v{FG}, v{FG}, v{FG+5}, v{FG+6}'); a(f'v_min_u32 v{FG}, v{FG}, v{FG+7}')
            else:
                a(f's_add_u32 s{S_X}, s{S_K0}, {FL(half, "CHP") - FL(half, "HEAD")}'); a(f'v_mov_b32 v{VZ}, s{S_X}')
                a(f'global_load_dword v{FG}, v{VZ}, s[{S_WS}:{S_WS+1}] sc1'); a('s_waitcnt vmcnt(0)')
            a(f'v_readfirstlane_b32 s{which}, v{FG}')
            if which == S_N: a(f's_max_u32 s{S_N}, s{S_N}, 2'); a(f's_sub_u32 s{S_N}, s{S_N}, 2')
            a(f's_cmp_gt_u32 s{which}, s{S_B}'); a(f's_cbranch_scc1 {l2}')
            a(f's_sleep {self.tbsleep}')
            a(f's_add_u32 s{S_SPIN}, s{S_SPIN}, 1'); a(f's_cmp_ge_u32 s{S_SPIN}, {SPIN_MAX}'); a(f's_cbranch_scc1 {self.end}')
            a.label(l3)
            a(f's_cmp_gt_u32 s{which}, s{S_B}'); a(f's_cbranch_scc0 {l1}')
            a.label(l2)
        lp = a.newlabel('Lt_loop')
        a.label(lp)
        poll(S_N)
        a(f's_add_u32 s{S_T}, s{S_XO}, 4096'); a(f's_add_u32 s{S_T2}, s{S_XO}, {HB_Q}'); a(f's_add_u32 s{S_T3}, s{S_XO}, {HB_Q+4096}')
        for kb in range(8):
            bl('x4', K+4*kb, L16, S_XO if kb < 4 else S_T, (kb%4)*1024)
            bl('x4', Q+4*kb, L16, S_T2 if kb < 4 else S_T3, (kb%4)*1024)
        for f in range(8): bl('x4', V+4*f, av, S_XO if f < 4 else S_T, (f%4)*1024)
        poll(S_K1)
        if half == 0: self.mark(4, S_B, 63)
        for kb in range(8): bl('x4', KM+4*kb, akm, S_XO, kb*256)
        for t in range(4):
            for e in range(2): bl('', VM+2*t+e, avm, S_XO, t*512 + e*128)
        for kb in range(8):
            a(f's_waitcnt vmcnt({24 + 14 - 2*kb})')
            a(mf(SX, vr(K+4*kb,4), vr(Q+4*kb,4), vr(SX,16) if kb else vr(CM,16)))
        a('s_waitcnt vmcnt(8)')
        if half == 0: self.mark(5, S_B, 63)
        for kb in range(8): a(mf(SM, vr(KM+4*kb,4), vr(Q+4*kb,4), vr(SM,16) if kb else 0))
        E = [SX+i for i in range(16)] + [SM+i for i in range(4)]
        a(f'v_max3_f32 v{mx}, v{E[0]}, v{E[1]}, v{E[2]}')
        for i in range(3, 19, 2): a(f'v_max3_f32 v{mx}, v{mx}, v{E[i]}, v{E[i+1]}')
        a(f'v_max_f32 v{mx}, v{mx}, v{E[19]}')
        a(f'v_mov_b32 v{t0}, v{mx}'); a(f'v_permlane32_swap_b32 v{mx}, v{t0}'); a(f'v_max_f32 v{mx}, v{mx}, v{t0}')
        for e in E: a(f'v_sub_f32 v{e}, v{e}, v{mx}')
        for e in E: a(f'v_mul_f32 v{e}, s{S_M}, v{e}')
        for e in E: a(f'v_exp_f32 v{e}, v{e}')
        a(f'v_add_f32 v{t1}, v{E[0]}, v{E[1]}')
        for e in E[2:]: a(f'v_add_f32 v{t1}, v{t1}, v{e}')
        a(f'v_mov_b32 v{t0}, v{t1}'); a(f'v_permlane32_swap_b32 v{t1}, v{t0}'); a(f'v_add_f32 v{t1}, v{t1}, v{t0}')
        a(f'v_rcp_f32 v{t1}, v{t1}')
        for e in E: a(f'v_mul_f32 v{e}, v{e}, v{t1}')
        for i in range(8): a(f'v_cvt_pk_bf16_f32 v{P+i}, v{SX+2*i}, v{SX+2*i+1}')
        for i in range(2): a(f'v_cvt_pk_bf16_f32 v{PM+i}, v{SM+2*i}, v{SM+2*i+1}')
        a('s_waitcnt vmcnt(0)')
        for t in range(4):
            o = OT+16*t
            a(f'v_mfma_f32_32x32x8_bf16 {vr(o,16)}, {vr(VM+2*t,2)}, {vr(PM,2)}, 0')
            for j in range(2): a(mf(o, vr(V+8*t+4*j,4), vr(P+4*j,4), vr(o,16)))
        for t in range(4):
            for j in range(2):
                o = OT+16*t+8*j
                for i in range(4): a(f'v_cvt_pk_bf16_f32 v{o+i}, v{o+2*i}, v{o+2*i+1}')
                a(f'ds_write_b128 v{xw}, {vr(o,4)} offset:{(2*t+j)*1024}')
        a('s_waitcnt lgkmcnt(0)'); a('s_barrier')
        gemm_core(a, L16, XR, [(ACC, 'a', 128, False)])
        pack_store(a, ACC, vo, S_OUT, 'sc1')
        if half == 0: self.mark(6, S_B, 63)
        self.set_word(FL(half, 'PT'), S_B, S_A); self.signal_wg()
        if half == 0: self.mark(7, S_B, 63)
        add64(a, S_OUT, S_OUT, ngr*8*32768); a(f's_add_u32 s{S_XO}, s{S_XO}, {ngr*32768}')
        a(f's_add_u32 s{S_B}, s{S_B}, {ngr}'); a(f's_cmp_lt_u32 s{S_B}, 64'); a(f's_cbranch_scc1 {lp}')

    def build(self):
        a = self.a; end = self.end
        a(f's_cmp_ge_u32 s2, 256'); a(f's_cbranch_scc1 {end}')
        if self.stamps == 2: a('s_memrealtime s[96:97]')
        if self.stamps is True: a('s_memrealtime s[94:95]')
        a(f's_load_dwordx2 s[{S_DBG}:{S_DBG+1}], s[0:1], {KA_DBG}')
        common_prologue(a, L, L16)
        lw = a.newlabel('Le'); lo = a.newlabel('Le'); ls = a.newlabel('Le'); lg = a.newlabel('Le'); lz = a.newlabel('Le')
        a(f's_getreg_b32 s{S_X}, hwreg(HW_REG_XCC_ID, 0, 3)')
        if self.fake: a(self.fake.format(x=S_X))
        a(f's_lshl_b32 s{S_T}, s{S_X}, 4'); a(f'v_mov_b32 v3, s{S_T}'); a('v_mov_b32 v4, 1')
        def xwait():
            l1 = a.newlabel('Le'); l2 = a.newlabel('Le')
            a(f's_mul_i32 s{S_T}, s2, 3072'); a(f's_add_u32 s{S_T}, s{S_T}, {W.FLAGS}'); a('v_mul_u32_u24 v6, 12, v0'); a(f'v_add_u32 v6, s{S_T}, v6'); a('v_mov_b32 v8, 0'); a('v_mov_b32 v9, 0'); a('v_mov_b32 v10, 0')
            a(f'global_store_dwordx3 v6, v[8:10], s[{S_WS}:{S_WS+1}] sc1')
            a(f's_cmp_lg_u32 s{S_W}, 0'); a(f's_cbranch_scc1 {l1}')
            a('s_mov_b64 exec, 1'); a(f'global_atomic_add v5, v3, v4, s[{S_DBG}:{S_DBG+1}] offset:{self.TO} sc0 sc1'); a('s_mov_b64 exec, -1')
            a('s_waitcnt vmcnt(2)'); a(f's_branch {l2}')
            a.label(l1); a('s_waitcnt vmcnt(1)'); a.label(l2)
        a(f's_lshr_b32 s{S_A}, s2, 2'); a(f's_and_b32 s{S_B}, s2, 3')
        rb_body(a, 0, KA_X, True, 0, 0, 0, None, False, W.H[0].XNA, '', 'sc1', ldsoff=1024, vb=20, xwait=xwait)
        a(f's_cmp_lg_u32 s{S_W}, 0'); a(f's_cbranch_scc1 {lw}')
        a('s_mov_b64 exec, 1'); a('s_waitcnt vmcnt(2)')
        a(f'v_readfirstlane_b32 s{S_TK}, v5')
        a(f's_lshl_b32 s{S_SLOT}, s{S_X}, 5'); a(f's_add_u32 s{S_SLOT}, s{S_SLOT}, s{S_TK}')
        a(f's_cmp_lt_u32 s{S_TK}, 32'); a(f's_cbranch_scc1 {lg}')
        a('v_mov_b32 v3, 136'); a(f'global_atomic_add v5, v3, v4, s[{S_DBG}:{S_DBG+1}] sc0 sc1'); a('s_waitcnt vmcnt(0)')
        a(f'v_readfirstlane_b32 s{S_TK}, v5')
        self.count_wait(self.TO, 12, ls, S_T, S_SPIN)
        a.label(ls)
        for x in range(8):
            a(f'v_readfirstlane_b32 s{S_T}, v{12+x}'); a(f's_min_u32 s{S_T}, s{S_T}, 32')
            a(f's_add_u32 s{S_SLOT}, s{S_T}, s{S_TK}'); a(f's_add_u32 s{S_SLOT}, s{S_SLOT}, {32*x}')
            a(f's_sub_u32 s{S_T}, 32, s{S_T}'); a(f's_cmp_lt_u32 s{S_TK}, s{S_T}'); a(f's_cbranch_scc1 {lg}')
            a(f's_sub_u32 s{S_TK}, s{S_TK}, s{S_T}')
        a(f's_mov_b32 s{S_SLOT}, 256')
        a.label(lg)
        a(f'v_mov_b32 v3, 0'); a(f'v_mov_b32 v4, s{S_SLOT}'); a('ds_write_b32 v3, v4'); a('s_waitcnt lgkmcnt(0)')
        a('s_mov_b64 exec, -1')
        a.label(lw)
        a('s_waitcnt vmcnt(0)'); a('s_barrier')
        a(f's_cmp_eq_u32 s{S_W}, 1'); a('s_cselect_b64 exec, 1, 0')
        a(f'global_atomic_add v3, v4, s[{S_DBG}:{S_DBG+1}] offset:132 sc1')
        a('s_mov_b64 exec, -1')
        a('v_mov_b32 v3, 0'); a('ds_read_b32 v4, v3'); a('s_waitcnt lgkmcnt(0)'); a(f'v_readfirstlane_b32 s{S_SLOT}, v4'); a('s_barrier')
        a(f's_lshr_b32 s{S_T}, s{S_SLOT}, 5'); a(f's_lshl_b32 s{S_T2}, s{S_T}, 2'); a(f's_lshr_b32 s{S_T2}, {self.perm:#x}, s{S_T2}'); a(f's_and_b32 s{S_T2}, s{S_T2}, 7')
        a(f's_cmp_lt_u32 s{S_T}, 8'); a(f's_cselect_b32 s{S_T2}, s{S_T2}, 8'); a(f's_and_b32 s{S_SLOT}, s{S_SLOT}, 31'); a(f's_lshl_b32 s{S_T2}, s{S_T2}, 5'); a(f's_add_u32 s{S_SLOT}, s{S_SLOT}, s{S_T2}')
        if self.stamps: a(f's_mov_b32 s99, s{S_SLOT}')
        self.role = 'all'
        self.dmap = {('all',0):0, ('ch',1):1, ('ch',2):2, ('ch',3):3, ('ch',4):4, ('gw',1):8, ('gw',2):9, ('gw',3):10, ('pb',1):11, ('ms',12):12, ('gw',4):13, ('pb',3):14}
        if self.stamps == 2:
            a('s_and_b32 s99, s96, 0xfff00000')
        self.sv = 10
        a(f's_mov_b32 s{S_SO}, {W.STAMPS}')
        if self.stamps: _ = [a(f's_mov_b32 s{70+k}, 0') for k in range(16)]
        if self.stamps is True: a('s_mov_b32 s85, s94')
        self.stamp(0)
        Lch, Lpb, Lgw, Lms, Lpa = [a.newlabel(n) for n in ('Lchain', 'Lpb', 'Lgw', 'Lms', 'Lpa')]
        a(f's_cmp_lt_u32 s{S_SLOT}, 32'); a(f's_cbranch_scc0 Lnot_chain')
        self.jump(Lch)
        a.label('Lnot_chain')
        a(f's_cmp_lt_u32 s{S_SLOT}, 96'); a(f's_cbranch_scc1 {Lpb}')
        a(f's_cmp_lt_u32 s{S_SLOT}, 224'); a(f's_cbranch_scc1 {Lgw}')
        a(f's_cmp_lt_u32 s{S_SLOT}, 240'); a(f's_cbranch_scc1 {Lms}')
        a(f's_cmp_lt_u32 s{S_SLOT}, 256'); a(f's_cbranch_scc1 {Lpa}')
        a.label(end); a('s_endpgm')
        a.label(Lms); self.role = 'ms'; self.code_touch(sh=7)
        a(f's_and_b32 s{S_A}, s{S_SLOT}, 3'); a(f's_lshl_b32 s{S_OFF}, s{S_A}, 8')
        load_wslices(a, [(KA_WOA, 512*1024, 0, 'v', 128)], 1024, L, 3, 4, 5)
        if self.pfb:
            a(f's_load_dwordx2 s[{S_P}:{S_P+1}], s[0:1], {KA_WO}'); a(f's_and_b32 s{S_T}, s{S_SLOT}, 15'); a(f's_lshl_b32 s{S_T}, s{S_T}, 18')
            a(f'v_lshl_add_u32 v3, v0, 7, s{S_T}'); a('s_waitcnt lgkmcnt(0)')
            for i in range(8):
                a(f'global_load_dword v4, v3, s[{S_P}:{S_P+1}]'); a('v_add_u32 v3, 32768, v3')
        self.flags_ready()
        for half in range(2):
            a(f's_and_b32 s{S_A}, s{S_SLOT}, 3'); a(f's_bfe_u32 s{S_B}, s{S_SLOT}, 0x20002'); self.woa_run(half, 4); self.stamp(3 + 8*half)
            a(f's_bfe_u32 s{S_A}, s{S_SLOT}, 0x20002'); a(f's_and_b32 s{S_B}, s{S_SLOT}, 3')
            self.rb_run(half, 2, 4); self.stamp(4 + 8*half)
        self.dump_marks(); a('s_endpgm')
        a.label(Lpa); self.role = 'pa'; self.code_touch(sh=7)
        def first_x():
            self.flags_ready(); self.mark(9, S_W, 0)
            a(f's_lshl_b32 s{S_XO}, s{S_B}, 15'); a(f's_add_u32 s{S_XO}, s{S_XO}, {W.H[0].XNA}'); a(f's_mov_b32 s{S_BUF}, {128*1024}')
            dma_x(a, L16, S_XO, S_BUF, 'sc1')
        a(f's_and_b32 s{S_A}, s{S_SLOT}, 3'); a(f's_bfe_u32 s{S_B}, s{S_SLOT}, 0x20002')
        self.proj_weights(False, (S_B, 4), first_x, (2,)); self.proj_run(0, False, 4, nowait=True, mode='q'); self.stamp(3)
        self.proj_weights(False, None, None, (0, 1))
        a(f's_and_b32 s{S_A}, s{S_SLOT}, 3'); a(f's_bfe_u32 s{S_B}, s{S_SLOT}, 0x20002'); self.proj_run(1, False, 4); self.stamp(4)
        self.dump_marks(); a('s_endpgm')
        a.label(Lpb); self.role = 'pb'; self.code_touch(sh=7)
        def pb_ids():
            a(f's_sub_u32 s{S_T}, s{S_SLOT}, 32'); a(f's_lshr_b32 s{S_A}, s{S_T}, 5'); a(f's_lshl_b32 s{S_A}, s{S_A}, 4'); a(f's_and_b32 s{S_T2}, s{S_T}, 15')
            a(f's_add_u32 s{S_A}, s{S_A}, s{S_T2}'); a(f's_bfe_u32 s{S_B}, s{S_T}, 0x10004')
        pb_ids(); self.proj_weights(True, (S_B, 2) if self.pfb else None); self.flags_ready(); self.stamp(1)
        for half in range(2):
            pb_ids(); self.proj_run(half, True, 2); self.stamp(3 + 8*half)
        self.dump_marks(); a('s_endpgm')
        a.label(Lgw); self.role = 'gw'; self.code_touch(sh=7)
        self.end = 'Lm_end2'
        def pa_ids(): a(f's_sub_u32 s{S_T}, s{S_SLOT}, 96'); a(f's_lshr_b32 s{S_A}, s{S_T}, 5'); a(f's_and_b32 s{S_B}, s{S_T}, 31')
        pa_ids(); self.proj_weights(False, (S_B, 32), first_x, (0, 1)); self.mark(10, S_W, 0); self.proj_run(0, False, 32, nowait=True, mode='kv'); self.stamp(1)
        def gw_ids():
            a(f's_sub_u32 s{S_T}, s{S_SLOT}, 96'); a(f's_lshr_b32 s{S_A}, s{S_T}, 5'); a(f's_lshl_b32 s{S_A}, s{S_A}, 3'); a(f's_and_b32 s{S_T2}, s{S_T}, 7')
            a(f's_add_u32 s{S_A}, s{S_A}, s{S_T2}'); a(f's_bfe_u32 s{S_B}, s{S_T}, 0x20003')
        for half in range(2):
            gw_ids(); self.att_run(half, 4); self.stamp(3 + 8*half)
            gw_ids()
            if half == 0: self.tb_weights()
            self.tb_run(half, 4); self.stamp(4 + 8*half)
        self.dump_marks()
        a.label('Lm_end2'); a('s_endpgm')
        a.label(Lch); self.role = 'ch'
        self.end = 'Lm_end3'; end = self.end
        r = C.ChainRegs(); self.sv = r.R
        a(f's_mov_b32 s{C.S_H}, s{S_SLOT}')
        lslow = a.newlabel('Lcslow'); lfast = a.newlabel('Lcfast')
        def mid(T):
            l1 = a.newlabel('Lcm'); l2 = a.newlabel('Lcm')
            T = r.WV + 64
            self.count_wait(132, T, end, C.S_T, C.S_SPIN); self.count_wait(self.TO, T, end, C.S_T, C.S_SPIN)
            a(f'v_readfirstlane_b32 s{C.S_T}, v{T}')
            add64(a, S_DBG, S_WS, FL(0, 'EL'))
            if self.chain_kw.get('force_slow'): a(f's_mov_b32 s{C.S_T}, 0')
            a(f's_mov_b32 s{C.S_EP}, 0'); a(f's_mov_b32 s{C.S_EM}, 0'); a(f's_mov_b32 s{C.S_HALF}, 0')
            a(f's_cmp_ge_u32 s{C.S_T}, 32'); a(f's_cselect_b32 s{C.S_FB}, 1, 0'); a(f's_cbranch_scc1 {l1}')
            C.chain_init_comm(a, r, 'sc1', True, T); a(f's_branch {l2}')
            a.label(l1); C.chain_init_comm(a, r, '', True, T)
            a.label(l2); C.group_arrive(a, T, 1280)
        C.chain_setup(a, r, mid, self.ahead)
        self.stamp(1)
        C.group_wait(a, r.R, 1280, 32, end)
        a(f's_cmp_eq_u32 s{C.S_FB}, 1'); a(f's_cbranch_scc1 {lfast}')
        a(f's_branch {lslow}')
        a.label(end); a('s_endpgm')
        kw = {k: v for k, v in self.chain_kw.items() if k != 'force_slow'}
        for lbl, stf in ((lfast, ''), (lslow, 'sc1')):
            a.label(lbl)
            lh = a.newlabel('Lch_half'); a.label(lh)
            self.stamp(2, C.S_HALF)
            C.chain_start(a, r, end, 1)
            def started(sv):
                self.sv = sv; self.stamp(3, C.S_HALF); self.sv = r.R
            kw['started'] = started
            C.chain_all_waves(a, r, stf, end, fused=1, **(dict(kw, ef='sc1') if stf else kw))
            self.stamp(4, C.S_HALF)
            if kw.get('stamps'):
                for k in range(12): a(f'v_mov_b32 v{k}, s{84+k}')
                a(f's_lshl_b32 s{C.S_T}, s{C.S_H}, 2'); a(f's_add_u32 s{C.S_T}, s{C.S_T}, s{C.S_W}'); a(f's_lshl_b32 s{C.S_T}, s{C.S_T}, 6')
                a(f's_lshl_b32 s{C.S_T2}, s{C.S_HALF}, 13'); a(f's_add_u32 s{C.S_T}, s{C.S_T}, s{C.S_T2}')
                a(f's_add_u32 s{C.S_T}, s{C.S_T}, {STAMP_OFF + 32768}'); a(f'v_mov_b32 v16, s{C.S_T}')
                for k in range(3): a(f'global_store_dwordx4 v16, {vr(4*k,4)}, s[{S_WS}:{S_WS+1}] offset:{16*k}')
                a('s_waitcnt vmcnt(0)')
            a(f's_cmp_lg_u32 s{C.S_HALF}, 0'); a(f's_cbranch_scc1 {end}')
            a(f's_mov_b32 s{C.S_HALF}, 1'); C.group_arrive(a, r.R, 1408); C.group_wait(a, r.R, 1408, 32, end)
            a(f's_xor_b32 s{C.S_EM}, s{C.S_EM}, 1'); C.chain_init_comm(a, r, stf, False)
            a(f's_branch {lh}')
        return a.lines
    def jump(self, label):
        a = self.a; l = a.newlabel('Lj')
        a('s_getpc_b64 s[48:49]'); a.label(l)
        a(f's_add_u32 s48, s48, {label}-{l}'); a('s_addc_u32 s49, s49, 0'); a('s_setpc_b64 s[48:49]')

NAME = 'interleave_layers__softmax_full_mha__memory_aug_recurrent_mem_tr__prompt'
def build(stamps=False, chain_kw={}, verbose=False, aslist=True):
    ks = []
    for n, lines, vg, acc in ((NAME + '_kernel', Mega(stamps, chain_kw).build(), 512, 256),):
        rep = []
        l = fix_hazards(lines, rep)
        for e in check_waits(l, n[:8]): print(e)
        if verbose: print(n, len(l), len(rep))
        ks.append((n, l, vg, acc))
    hdr = ''.join(l for l in open(f'cdna_kernels/{NAME}.s.ref').readlines()[:14] if '@launch' not in l)
    t = assemble_file(hdr, [(NAME + '_kernel', 256, 256, 163840)], ks)
    return t if aslist else t.replace(f'@launch kernel={NAME}_kernel ', '@launch ')

if __name__ == '__main__':
    import sys
    kw = eval(sys.argv[2]) if len(sys.argv) > 2 else dict()
    st = (True if sys.argv[3] == '1' else 2) if len(sys.argv) > 3 else False
    t = build(st, kw, True, aslist=(st is True))
    open(sys.argv[1] if len(sys.argv) > 1 else f'cdna_kernels/{NAME}.s', 'w').write(t)
    print(len(t))
```

```python
from asmlib import *
from layout import *
import math, struct

def f2u(f): return struct.unpack('<I', struct.pack('<f', f))[0]

LW = 0
LM = 144 * 1024
LS = 148 * 1024
DELTA = [0, 1, 8, 9, 2, 3, 10, 11]
DELTA2 = [0, 1, 32, 33, 8, 9, 40, 41]

class ChainRegs:
    def __init__(self):
        v = RegAlloc('v', 0, 256)
        self.M = v.alloc(32, 4); self.R = v.alloc(32, 4); self.A = v.alloc(32, 4)
        self.KX = v.alloc(8, 4); self.VX = v.alloc(8, 4)
        self.T = v.alloc(4, 4)
        self.VM = v.alloc(4)
        self.idx = self.VM + 1; self.aMst = self.VM + 3
        self.PZ = v.alloc(2)
        self.Z = v.alloc(2)
        self.I = v.alloc(2); self.E = v.alloc(4); self.One = v.alloc(4)
        self.PG = v.alloc(2)
        self.aPst = v.alloc(); self.aOw = v.alloc(); self.aW = v.alloc()
        self.aK = v.alloc(); self.aV = v.alloc(); self.aKm = v.alloc(); self.aVm = v.alloc(); self.aL = v.alloc()
        assert v.next <= 144, v.next
        self.WV = 144
        self.place = {}
        lds = [('q', 1, s) for s in range(8)] + [('q', 0, s) for s in range(4, 8)] + [('o', t, k) for t in (0, 6, 7) for k in range(2)]
        for i, b in enumerate(lds): self.place[b] = ('l', i * 2048)
        rest = [(m, t, s) for m in 'qkv' for t in range(2) for s in range(8)] + [('o', t, k) for t in range(8) for k in range(2)]
        rest = [b for b in rest if b not in self.place]
        assert len(rest) == 46
        for i, b in enumerate(rest):
            self.place[b] = ('a', 8 * i) if i < 32 else ('v', self.WV + 8 * (i - 32))
    def blk(self, b):
        k, r = self.place[b]; assert k != 'l'
        return vr(r, 8, k)

S_WS = 4; S_H = 6; S_W = 7
S_SRD = 8
S_CP = 12
S_HB = 20
S_KV = 22
S_CML = 24
S_XP = 26
S_EP = 28; S_EM = 29; S_STEP = 30; S_C = 31; S_SPIN = 32
S_PLO = 33; S_PHI = 34; S_T = 35; S_T2 = 36; S_T3 = 37
S_XH1 = 38; S_XH0 = 40; S_XR = 42
S_DBG = 44; S_TMP = 46; S_M0 = 48; S_RDY = 49
S_FH = 50; S_FW = 52; S_CPR = 54; S_CM = 56; S_HALF = 58; S_FB = 59
S_STAMP = 60
S_BW = 8
S_BR = 10
S_GS = 49
S_CME = 80
REP = 8192
S_SP = 31

def add64(a, dst, base, off):
    a(f's_add_u32 s{dst}, s{base}, {off}'); a(f's_addc_u32 s{dst+1}, s{base+1}, 0')

def frag_of(w, j): return (j ^ (w & 1)) if j < 4 else 4 + (w ^ (j - 4))

def chain_setup(a, r, mid=None, ahead=0):
    L = r.T; N = r.T+1; G = r.T+2; L16 = r.aL
    T = r.R
    a(f'v_lshrrev_b32 v{T}, 6, v0'); a(f'v_and_b32 v{L}, 63, v0'); a(f'v_readfirstlane_b32 s{S_W}, v{T}')
    a(f'v_and_b32 v{N}, 15, v{L}'); a(f'v_lshrrev_b32 v{G}, 4, v{L}')
    a(f's_mov_b32 s{S_PLO}, 0x05040100'); a(f's_mov_b32 s{S_PHI}, 0x07060302')
    a(f's_mov_b32 s{S_XH1}, 0xcccccccc'); a(f's_mov_b32 s{S_XH1+1}, 0xcccccccc')
    a(f's_mov_b32 s{S_XH0}, 0x33333333'); a(f's_mov_b32 s{S_XH0+1}, 0x33333333')
    a(f's_mov_b32 s{S_XR}, 0x000f000f'); a(f's_mov_b32 s{S_XR+1}, 0')
    a(f's_mov_b32 s{S_C}, {f2u(math.log2(math.e) / math.sqrt(128.0)):#x}')
    a(f'v_lshlrev_b32 v{L16}, 4, v{L}')
    a(f's_mul_i32 s{S_T}, s{S_W}, 36864'); a(f'v_add_u32 v{r.aW}, s{S_T}, v{L16}')
    a(f'v_bfe_u32 v{T}, v{N}, 1, 1')
    a(f'v_mul_u32_u24 v{r.idx}, 0xaaaa, v{T}'); a(f'v_bfe_u32 v{T}, v{N}, 2, 1'); a(f'v_mul_u32_u24 v{T}, 0xaaaa, v{T}'); a(f'v_lshl_add_u32 v{r.idx}, v{T}, 16, v{r.idx}'); a(f'v_add_u32 v{r.idx}, 0x44444444, v{r.idx}')
    a(f'v_lshlrev_b32 v{T}, 2, v{G}'); a(f'v_sub_u32 v{T}, v{N}, v{T}')
    a(f'v_mov_b32 v{T+1}, 0x3f80'); a(f'v_mov_b32 v{T+2}, 0x3f800000')
    def onehot(dst, nregs):
        for i in range(nregs):
            a(f'v_cmp_eq_u32 vcc, {2*i}, v{T}'); a(f'v_cndmask_b32 v{dst+i}, 0, v{T+1}, vcc')
            a(f'v_cmp_eq_u32 vcc, {2*i+1}, v{T}'); a(f'v_cndmask_b32 v{dst+i}, v{dst+i}, v{T+2}, vcc')
    onehot(r.I, 2)
    a(f'v_and_b32 v{T}, 11, v{N}')
    onehot(r.E, 2)
    a(f'v_mov_b32 v{r.E+2}, v{r.E}'); a(f'v_mov_b32 v{r.E+3}, v{r.E+1}')
    for i in range(4): a(f'v_mov_b32 v{r.One+i}, 0x3f803f80')
    a(f'v_mov_b32 v{r.PZ+1}, 0'); a(f'v_mov_b32 v{r.Z}, 0'); a(f'v_mov_b32 v{r.Z+1}, 0')
    a(f'v_lshrrev_b32 v{T}, 3, v{L}'); a(f'v_lshlrev_b32 v{T}, 11, v{T}'); a(f'v_and_b32 v{T+1}, 7, v{L}')
    a(f'v_lshl_add_u32 v{r.aPst}, v{T+1}, 3, v{T}')
    a(f's_lshl_b32 s{S_T}, s{S_W}, 14'); a(f's_lshl_b32 s{S_T2}, s{S_H}, 6'); a(f's_add_u32 s{S_T}, s{S_T}, s{S_T2}')
    a(f's_add_u32 s{S_T}, s{S_T}, {W.CP}'); add64(a, S_CP, S_WS, f's{S_T}')
    for p in range(1, 4): add64(a, S_CP+2*p, S_CP, p * 65536)
    assert W.CP >= LM and W.CM >= LM
    a(f's_lshl_b32 s{S_T}, s{S_W}, 16'); a(f's_lshl_b32 s{S_T2}, s{S_H}, 11'); a(f's_add_u32 s{S_T}, s{S_T}, s{S_T2}')
    a(f's_add_u32 s{S_T}, s{S_T}, {W.CP - LM}'); add64(a, S_CPR, S_WS, f's{S_T}')
    add64(a, S_CM, S_WS, W.CM); add64(a, S_CML, S_WS, W.CM - LM + 4096)
    a(f's_lshl_b32 s{S_T2}, s{S_W}, 11'); a(f's_lshr_b32 s{S_T3}, s{S_H}, 3'); a(f's_lshl_b32 s{S_T3}, s{S_T3}, 9'); a(f's_add_u32 s{S_T2}, s{S_T2}, s{S_T3}')
    a(f's_and_b32 s{S_T3}, s{S_H}, 1'); a(f's_lshl_b32 s{S_T3}, s{S_T3}, 8'); a(f's_add_u32 s{S_T2}, s{S_T2}, s{S_T3}')
    a(f's_bfe_u32 s{S_T3}, s{S_H}, 0x20001'); a(f's_lshl_b32 s{S_T3}, s{S_T3}, 6'); a(f's_add_u32 s{S_T2}, s{S_T2}, s{S_T3}')
    a(f'v_bfe_u32 v{T}, v{L}, 1, 1'); a(f'v_lshlrev_b32 v{T}, 5, v{T}')
    a(f'v_and_b32 v{T+1}, 1, v{L}'); a(f'v_lshl_add_u32 v{T}, v{T+1}, 3, v{T}')
    a(f'v_and_b32 v{T+1}, 1, v{G}'); a(f'v_lshl_add_u32 v{T}, v{T+1}, 4, v{T}')
    a(f'v_add_u32 v{r.aMst}, s{S_T2}, v{T}')
    a(f's_cmp_lt_u32 s{S_W}, 2'); a(f's_cselect_b32 s{S_XR}, -1, s{S_XR}'); a(f's_cselect_b32 s{S_T3}, {REP}, 0')
    a(f'v_bfe_u32 v{T}, v{L}, 2, 2'); a(f'v_mul_lo_u32 v{T}, v{T}, s{S_T3}'); a(f'v_add_u32 v{r.aMst}, v{r.aMst}, v{T}')
    a(f's_mul_i32 s{S_T3}, s{S_W}, {REP}'); add64(a, S_CME, S_CML, f's{S_T3}')
    a(f's_bfe_u32 s{S_T2}, s{S_H}, 0x20001'); a(f's_lshl_b32 s{S_T2}, s{S_T2}, 11')
    a(f's_lshr_b32 s{S_T3}, s{S_H}, 3'); a(f's_lshl_b32 s{S_T3}, s{S_T3}, 8'); a(f's_add_u32 s{S_T2}, s{S_T2}, s{S_T3}')
    a(f's_and_b32 s{S_T3}, s{S_H}, 1'); a(f's_lshl_b32 s{S_T3}, s{S_T3}, 7'); a(f's_add_u32 s{S_T2}, s{S_T2}, s{S_T3}')
    a(f's_lshl_b32 s{S_T3}, s{S_W}, 2'); a(f's_add_u32 s{S_M0}, s{S_T2}, s{S_T3}')
    a(f'v_lshrrev_b32 v{T}, 1, v{G}'); a(f'v_lshlrev_b32 v{T}, 8, v{T}'); a(f'v_and_b32 v{T+1}, 1, v{G}')
    a(f'v_lshl_add_u32 v{T}, v{T+1}, 5, v{T}'); a(f'v_lshl_add_u32 v{T}, v{N}, 4, v{T}')
    a(f's_lshl_b32 s{S_T}, s{S_W}, 9'); a(f's_add_u32 s{S_T}, s{S_T}, {LM}'); a(f'v_add_u32 v{r.aOw}, s{S_T}, v{T}')
    a(f'v_and_b32 v{T}, 2, v{L}'); a(f'v_cmp_eq_u32 vcc, 0, v{T}')
    a(f's_lshl_b32 s{S_T}, s{S_W}, 10'); a(f's_add_u32 s{S_T}, s{S_T}, {LM+12288}'); a(f'v_add_u32 v{T}, s{S_T}, v{L16}')
    a(f'v_and_b32 v{T+1}, 1, v{G}'); a(f'v_lshlrev_b32 v{T+1}, 5, v{T+1}'); a(f'v_xor_b32 v{T}, v{T}, v{T+1}')
    a(f'v_cndmask_b32 v{r.aOw}, v{T}, v{r.aOw}, vcc')
    a(f'v_lshrrev_b32 v{T}, 3, v{N}'); a(f'v_lshlrev_b32 v{T}, 8, v{T}'); a(f'v_and_b32 v{T+1}, 7, v{N}'); a(f'v_lshl_add_u32 v{T}, v{T+1}, 4, v{T}')
    a(f'v_lshl_add_u32 v{T}, v{G}, 9, v{T}')
    a(f's_lshl_b32 s{S_T}, s{S_W}, 11'); a(f's_add_u32 s{S_T2}, s{S_T}, {HB_K}'); a(f'v_add_u32 v{r.aK}, s{S_T2}, v{T}')
    a(f'v_lshlrev_b32 v{T}, 4, v{N}'); a(f'v_lshl_add_u32 v{T}, v{G}, 9, v{T}')
    a(f's_add_u32 s{S_T2}, s{S_T}, {HB_V}'); a(f'v_add_u32 v{r.aV}, s{S_T2}, v{T}')
    a(f'v_lshrrev_b32 v{T}, 2, v{N}'); a(f'v_lshlrev_b32 v{T}, 5, v{T}'); a(f'v_and_b32 v{T+1}, 1, v{N}'); a(f'v_lshl_add_u32 v{T}, v{T+1}, 4, v{T}')
    a(f'v_lshl_add_u32 v{T}, v{G}, 7, v{T}')
    a(f's_lshl_b32 s{S_T}, s{S_W}, 9'); a(f's_add_u32 s{S_T2}, s{S_T}, {HB_KM}'); a(f'v_add_u32 v{r.aKm}, s{S_T2}, v{T}')
    a(f'v_lshlrev_b32 v{T}, 3, v{L}'); a(f's_add_u32 s{S_T2}, s{S_T}, {HB_VM}'); a(f'v_add_u32 v{r.aVm}, s{S_T2}, v{T}')
    a(f'v_add_u32 v{r.aL}, {LM}, v{L16}')
    a(f'v_lshlrev_b32 v{T}, 2, v{L}'); a(f'v_add_u32 v{r.PG+1}, {LS+4096}, v{T}')
    a(f's_mov_b32 s{S_XP}, 0x01010101'); a(f's_mov_b32 s{S_XP+1}, 0x01010101')
    KBG = r.T+3; VO = r.VX
    a(f'v_lshrrev_b32 v{T}, 1, v{G}'); a(f'v_lshlrev_b32 v{T}, 4, v{T}')
    a(f'v_and_b32 v{T+1}, 1, v{G}'); a(f'v_lshl_add_u32 v{KBG}, v{T+1}, 2, v{T}')
    a(f's_lshl_b32 s{S_T}, s{S_H}, 8'); a(f's_lshl_b32 s{S_T2}, s{S_W}, 6'); a(f's_add_u32 s{S_T}, s{S_T}, s{S_T2}')
    a(f'v_lshlrev_b32 v{VO}, 15, v{KBG}'); a(f'v_lshl_add_u32 v{VO}, v{N}, 2, v{VO}'); a(f'v_add_u32 v{VO}, s{S_T}, v{VO}')
    a(f's_mov_b32 s{S_SRD+2}, {4*MB}'); a(f's_mov_b32 s{S_SRD+3}, 0x20000')
    NB = 11; PK = 88; U = 96
    groups = [(m, s, rg) for m in 'kvq' for rg in range(2) for s in range(8)]
    TQ = r.VX+1; TO = r.VX+2; TD_ = r.VX+3
    a(f'v_lshrrev_b32 v{TQ}, 1, v0'); a(f'v_lshlrev_b32 v{TQ}, 13, v{TQ}'); a(f'v_and_b32 v{TO}, 1, v0'); a(f'v_lshl_add_u32 v{TQ}, v{TO}, 7, v{TQ}')
    a(f's_lshl_b32 s{S_T}, s{S_H}, 8'); a(f'v_add_u32 v{TQ}, s{S_T}, v{TQ}')
    a(f's_lshl_b32 s{S_T}, s{S_H}, 17'); a(f'v_lshl_add_u32 v{TO}, v0, 7, s{S_T}')
    for i, ka in enumerate((KA_WK, KA_WV, KA_WQ, KA_WO)): a(f's_load_dwordx2 s[{60+2*i}:{61+2*i}], s[0:1], {ka}')
    a('s_waitcnt lgkmcnt(0)')
    def touch(hm):
        if hm >= 8 or not ahead: return 0
        for i in range(2):
            off = ((128*(hm&1) + 256*i) * 8192) if hm < 6 else (65536*(hm&1) + 32768*i)
            add64(a, S_TMP, 60 + 2*(hm >> 1), off)
            a(f'global_load_dword v{TD_}, v{TQ if hm < 6 else TO}, s[{S_TMP}:{S_TMP+1}]')
        return 2
    def put(block, rg, i, emit, pend):
        k, base = r.place[block]
        if k == 'v': emit(base+4*rg+i)
        elif k == 'a':
            emit(pend+i); a(f'v_accvgpr_write_b32 a{base+4*rg+i}, v{pend+i}')
        else:
            emit(pend+i)
            if i == 3:
                a(f'ds_write_b128 v{r.aW}, {vr(pend,4)} offset:{base+1024*rg}'); a('s_waitcnt lgkmcnt(0)')
    DEPTH = 6
    kaoff = {'q': KA_WQ, 'k': KA_WK, 'v': KA_WV}
    cur = [None]
    def issue(gi):
        m, s, rg = groups[gi]
        if cur[0] != m:
            a(f's_load_dwordx2 s[{S_SRD}:{S_SRD+1}], s[0:1], {kaoff[m]}'); a('s_waitcnt lgkmcnt(0)'); cur[0] = m
        if True:
            if s < 4: a(f's_and_b32 s{S_T2}, s{S_W}, 1'); a(f's_xor_b32 s{S_T2}, s{S_T2}, {s}')
            else: a(f's_xor_b32 s{S_T2}, s{S_W}, {s}')
            a(f's_and_b32 s{S_T3}, s{S_T2}, 1'); a(f's_lshl_b32 s{S_T3}, s{S_T3}, 21'); a(f's_and_b32 s{S_T2}, s{S_T2}, 6'); a(f's_lshl_b32 s{S_T2}, s{S_T2}, 13')
            a(f's_add_u32 s{S_T3}, s{S_T3}, s{S_T2}')
        b = (gi % NB) * 8
        for jj in range(8):
            a(f's_add_u32 s{S_T}, s{S_T3}, {(128*rg+DELTA2[jj])*8192}')
            a(f'buffer_load_dword v{b+jj}, v{VO}, s[{S_SRD}:{S_SRD+3}], s{S_T} offen')
    def consume(gi):
        m, s, rg = groups[gi]; b = (gi % NB) * 8
        for t in range(2):
            for i in range(4):
                lo, hi = b+2*i, b+2*i+1
                if m == 'q':
                    def emit(d, lo=lo, hi=hi, t=t):
                        if t == 0: a(f'v_lshlrev_b32 v{U}, 16, v{lo}'); a(f'v_lshlrev_b32 v{U+1}, 16, v{hi}')
                        else: a(f'v_and_b32 v{U}, 0xffff0000, v{lo}'); a(f'v_and_b32 v{U+1}, 0xffff0000, v{hi}')
                        a(f'v_mul_f32 v{U}, s{S_C}, v{U}'); a(f'v_mul_f32 v{U+1}, s{S_C}, v{U+1}'); a(f'v_cvt_pk_bf16_f32 v{d}, v{U}, v{U+1}')
                else:
                    def emit(d, lo=lo, hi=hi, t=t): a(f'v_perm_b32 v{d}, v{hi}, v{lo}, s{S_PHI if t else S_PLO}')
                put((m, t, s), rg, i, emit, PK + 4*t)
    ops = []
    for hm in range(ahead): touch(hm)
    for gi in range(len(groups) + DEPTH):
        if gi < len(groups):
            n = touch(gi // 8 + ahead) if gi % 8 == 0 else 0
            issue(gi); ops.append(n + 8)
        if gi == 14 and mid: a('s_waitcnt vmcnt(40)'); mid(None)
        if gi >= DEPTH:
            a(f's_waitcnt vmcnt({sum(ops[gi-DEPTH+1:])})'); consume(gi - DEPTH)
    for hm in range(6 + ahead, 8): touch(hm)
    a(f's_load_dwordx2 s[{S_SRD}:{S_SRD+1}], s[0:1], {KA_WO}')
    a(f's_lshl_b32 s{S_T}, s{S_H}, 17'); a(f's_lshl_b32 s{S_T2}, s{S_W}, 8'); a(f's_add_u32 s{S_T}, s{S_T}, s{S_T2}')
    a(f'v_lshlrev_b32 v{VO}, 10, v{KBG}'); a(f'v_lshl_add_u32 v{VO}, v{N}, 4, v{VO}'); a(f'v_add_u32 v{VO}, s{S_T}, v{VO}')
    a('s_waitcnt lgkmcnt(0)')
    og = [(k, rg) for k in range(2) for rg in range(2)]
    def oissue(gi):
        k, rg = og[gi]; b = (gi % 2) * 32
        for jj in range(8):
            a(f's_mov_b32 s{S_T}, {(64*k+32*rg+DELTA[jj])*1024}')
            a(f'buffer_load_dwordx4 {vr(b+4*jj,4)}, v{VO}, s[{S_SRD}:{S_SRD+3}], s{S_T} offen')
    def ocons(gi):
        k, rg = og[gi]; b = (gi % 2) * 32
        for t in range(8):
            for i in range(4):
                def emit(d, hi=b+4*(2*i+1)+(t>>1), lo=b+4*(2*i)+(t>>1), t=t): a(f'v_perm_b32 v{d}, v{hi}, v{lo}, s{S_PHI if t & 1 else S_PLO}')
                put(('o', t, k), rg, i, emit, PK + 4*(t&1))
    oissue(0); oissue(1)
    for gi in range(4):
        a(f's_waitcnt vmcnt({8 if gi < 3 else 0})'); ocons(gi)
        if gi + 2 < 4: oissue(gi + 2)

def board_setup(a, r, stf):
    a(f's_lshl_b32 s{S_T}, s{S_H}, 2'); a(f's_add_u32 s{S_T}, s{S_T}, {W.CB - LM}')
    add64(a, S_BW, S_WS, f's{S_T}'); add64(a, S_BR, S_WS, W.CB - LS - 4096); a(f's_mov_b32 s{S_GS}, 0')
    a('s_mov_b64 exec, 0x101'); a(f'global_store_dword v{r.aL}, v{r.Z}, s[{S_BW}:{S_BW+1}] {stf}'); a('s_mov_b64 exec, -1')

def chain_init_comm(a, r, stf, first, T=None):
    T = r.R if T is None else T
    a(f's_load_dwordx2 s[{S_TMP}:{S_TMP+1}], s[0:1], {KA_MEM0}')
    a(f'v_and_b32 v{T}, 0x30, v{r.aL}'); a(f'v_lshlrev_b32 v{T}, 1, v{T}'); a(f'v_bfe_u32 v{T+1}, v{r.aL}, 8, 1'); a(f'v_lshl_add_u32 v{T}, v{T+1}, 10, v{T}')
    a(f'v_add_u32 v{T}, s{S_M0}, v{T}')
    a(f's_xor_b32 s{S_T}, s{S_EP}, 1')
    for i in range(4): a(f'v_mov_b32 v{T+4+i}, s{S_T}')
    a('s_waitcnt lgkmcnt(0)')
    a(f'global_load_dword v{T+2}, v{T}, s[{S_TMP}:{S_TMP+1}]'); a(f'global_load_dword v{T+3}, v{T}, s[{S_TMP}:{S_TMP+1}] offset:16')
    if first:
        a(f'global_store_dwordx4 v{r.aL}, {vr(T+4,4)}, s[{S_CPR}:{S_CPR+1}] {stf}')
        a(f'global_store_dwordx4 v{r.aL}, {vr(T+4,4)}, s[{S_CPR}:{S_CPR+1}] offset:1024 {stf}')
    a('s_waitcnt vmcnt(0)')
    a(f'v_and_or_b32 v{T+2}, v{T+2}, -2, s{S_EM}')
    a(f's_mov_b64 exec, s[{S_XR}:{S_XR+1}]')
    a(f'global_store_dwordx2 v{r.aMst}, {vr(T+2,2)}, s[{S_CM}:{S_CM+1}] {stf}')
    a('s_mov_b64 exec, -1'); a('s_waitcnt vmcnt(0)')

def group_arrive(a, T, off):
    l1 = a.newlabel('Lgb')
    a('s_barrier')
    a(f'v_mov_b32 v{T}, {off}'); a(f'v_mov_b32 v{T+1}, 1')
    a(f's_cmp_lg_u32 s{S_W}, 0'); a(f's_cbranch_scc1 {l1}')
    a('s_mov_b64 exec, 1'); a(f'global_atomic_add v{T}, v{T+1}, s[{S_DBG}:{S_DBG+1}] sc1'); a('s_waitcnt vmcnt(0)'); a('s_mov_b64 exec, -1')
    a.label(l1)
def group_wait(a, T, off, count, fail):
    l2 = a.newlabel('Lgb'); l3 = a.newlabel('Lgb')
    a(f's_mov_b32 s{S_SPIN}, 0'); a(f'v_mov_b32 v{T}, {off}')
    a.label(l2)
    a(f'global_load_dword v{T+2}, v{T}, s[{S_DBG}:{S_DBG+1}] sc1'); a('s_waitcnt vmcnt(0)')
    a(f'v_readfirstlane_b32 s{S_T}, v{T+2}')
    a(f's_cmp_ge_u32 s{S_T}, {count}'); a(f's_cbranch_scc1 {l3}')
    a('s_sleep 2')
    a(f's_add_u32 s{S_SPIN}, s{S_SPIN}, 1'); a(f's_cmp_lt_u32 s{S_SPIN}, 0x60000'); a(f's_cbranch_scc1 {l2}')
    a(f's_branch {fail}')
    a.label(l3)

DPPQ = 'quad_perm:[2,3,0,1] row_mask:0xf bank_mask:0xf'
XA = 's_mov_b64 exec, -1'

def prog_load(a, r): a(f'global_load_dword v{r.PG}, v{r.PG+1}, s[{S_FH}:{S_FH+1}] sc1')
def prog_block(a, r, lbl, back, need_sgpr, fail):
    a.label(lbl)
    prog_load(a, r); a('s_waitcnt vmcnt(0)')
    a(f'v_cmp_ge_u32 s[{S_TMP}:{S_TMP+1}], s{need_sgpr}, v{r.PG}'); a(f's_and_b64 s[{S_TMP}:{S_TMP+1}], s[{S_TMP}:{S_TMP+1}], s[{S_XP}:{S_XP+1}]'); a(f's_cbranch_scc0 {back}')
    a('s_sleep 1')
    a(f's_add_u32 s{S_SPIN}, s{S_SPIN}, 1'); a(f's_cmp_lt_u32 s{S_SPIN}, 0x60000'); a(f's_cbranch_scc1 {lbl}')
    a(f's_branch {fail}')
def kv_load(a, r, i, dst, base=None):
    base = base or S_KV
    ad, off = ((r.aK, 0), (r.aK, 128), (r.aV, 0), (r.aV, 256))[i]
    a(f'global_load_dwordx4 {vr(dst+4*i,4)}, v{ad}, s[{base}:{base+1}] offset:{off} sc1')

def chain_start(a, r, fail, fused, started=None):
    HS = W.H[1].HB - W.H[0].HB
    a(f's_mul_i32 s{S_T2}, s{S_HALF}, {HS}'); a(f's_lshl_b32 s{S_T}, s{S_H}, 21'); a(f's_add_u32 s{S_T}, s{S_T}, s{S_T2}')
    a(f's_add_u32 s{S_T}, s{S_T}, {W.H[0].HB}'); add64(a, S_KV, S_WS, f's{S_T}'); a(f's_mov_b64 s[{S_HB}:{S_HB+1}], s[{S_KV}:{S_KV+1}]')
    a(f's_mov_b32 s{S_STEP}, 0'); a(f's_mov_b32 s{S_SPIN}, 0')
    a(f's_lshl_b32 s{S_T}, s{S_H}, 8'); a(f's_lshl_b32 s{S_T2}, s{S_HALF}, 17'); a(f's_add_u32 s{S_T}, s{S_T}, s{S_T2}')
    a(f's_add_u32 s{S_T}, s{S_T}, {FL(0, "CHP")}'); add64(a, S_FW, S_WS, f's{S_T}')
    a(f's_sub_u32 s{S_FH}, s{S_FW}, {FL(0, "CHP") - FL(0, "HEAD") + LS + 4096}'); a(f's_subb_u32 s{S_FH+1}, s{S_FW+1}, 0')
    a(f'v_mov_b32 v{r.PG}, 0'); a(f's_mov_b32 s{S_SP}, 0')
    for i in range(2): a(f'global_load_dwordx4 {vr(r.M+24+4*i,4)}, v{r.aL}, s[{S_CPR}:{S_CPR+1}] offset:{1024*i} sc1')
    add64(a, S_KV, S_KV, HB_REC)

def chain_wave(a, r, w, stf, fail, done, fused=1, pat=(13, 16, 16, 16), d1=(100, 140, 280, 320), d2=(220, 120, 0, 0), e23=(100, 80, 60, 60), lpos=3, nb=(2, 2, 1, 2), bk=(120, 100, 100, 120), es=80, eb=None, e3in=1, cp=1, rep=1, vdef=1, wsplit=0, vw=(1, 1, 1, 4), hkw=(0, 1), nowait=0, pkpos=0, pvearly=0, e0e=None, e1g=0, ack1=(None, None, 0, 0), ack2=(0, 0, 0, 0), bx=None, bp=(18, 19, 21, 23, 24, 25), bg=16, c1=(40, 40, 40, 40), ef='sc1', rt=None, started=None,
               nomax=1, stamps=False, stampsel=None, nocomm=0, nohk=0):
    R, A, M, T = r.R, r.A, r.M, r.T
    if isinstance(nb, tuple): nb = nb[w]
    if isinstance(bk, tuple): bk = bk[w]
    Aq = [A, A+4]; Ak = [A+8, A+12]; Av = [A+16, A+20]
    ACC = {'q': Aq, 'k': Ak, 'v': Av}
    ns = [0]; sid = [0]
    def st(name=None):
        if name is None:
            name = sid[0]; sid[0] += 1
        if stamps and ((stampsel is None and isinstance(name, int)) or (stampsel is not None and name in stampsel)):
            a(f's_memtime s[{S_STAMP+2*ns[0]}:{S_STAMP+2*ns[0]+1}]'); ns[0] += 1
    def tr(k):
        if rt is not None: a(f's_memtime s[{(S_STAMP+2*k) if k != 10 else 96}:{((S_STAMP+2*k) if k != 10 else 96)+1}]')
    pos = [None]
    def hook():
        if pos[0] is None or bx is None: return
        if w == 1 and pos[0] == bx: a('s_mov_b64 exec, 0x101'); a(f'global_store_dword v{r.aL}, v{r.PZ}, s[{S_BW}:{S_BW+1}] {stf}'); a(XA)
        if w == 0 and pos[0] in bp: a(f'global_load_dword v{r.PG}, v{r.PG+1}, s[{S_BR}:{S_BR+1}] sc1')
        pos[0] += 1
    def smf(acc, aop, b): a(f'v_smfmac_f32_16x16x64_bf16 {vr(acc,4)}, {vr(aop,4)}, {b}, v{r.idx}'); hook()
    def m32(d, x, y, c): a(f'v_mfma_f32_16x16x32_bf16 {vr(d,4)}, {vr(x,4)}, {vr(y,4)}, {vr(d,4) if c else 0}'); hook()
    def m16(d, x, y, c): a(f'v_mfma_f32_16x16x16_bf16 {vr(d,4)}, {vr(x,2)}, {vr(y,2)}, {vr(d,4) if c else 0}'); hook()
    def ldh(dst, b, hh): a(f'ds_read_b128 {vr(dst+4*hh,4)}, v{r.aW} offset:{r.place[b][1]+1024*hh}')
    def nops(c):
        n = c // 4
        while n > 0:
            k = min(n, 16); a(f's_nop {k-1}'); n -= k
    def add0(c): a(f'v_add_f32 v{c}, v{c}, v{c+2}')
    def add1(c): a(f'v_add_f32 v{c+1}, v{c+1}, v{c+3}')
    def cvt(d, x, y): a(f'v_cvt_pk_bf16_f32 v{d}, v{x}, v{y}')
    def pka(d, x, y): a(f'v_pk_add_f32 {vr(d,2)}, {vr(x,2)}, {vr(y,2)}')
    def e_load(j, f='sc1'):
        b = S_CME if (j < 4 and rep) else S_CML
        a(f'global_load_dwordx4 {vr(M+4*j,4)}, v{r.aL}, s[{b}:{b+1}] offset:{1024*frag_of(w,j)-4096} {f}')
    PL = [M+24, R+24, M+16, R+16]; PD = A+24; t0 = A+28; t1 = A+29
    def p_loads(k=0):
        a(f'global_load_dwordx4 {vr(PL[k],4)}, v{r.aL}, s[{S_CPR}:{S_CPR+1}] sc1')
        a(f'global_load_dwordx4 {vr(PL[k]+4,4)}, v{r.aL}, s[{S_CPR}:{S_CPR+1}] offset:1024 sc1')
    def ring_prefetch():
        for e in range(4):
            for hh in range(2): ldh(R+8*e, ('q', 1, e), hh)
    def zero(base, n):
        for i in range(n): a(f'v_mov_b32 v{base+i}, 0')
    def spin_or_fail():
        a(f's_add_u32 s{S_SPIN}, s{S_SPIN}, 1'); a(f's_cmp_lt_u32 s{S_SPIN}, 0x60000'); a(f's_cbranch_scc0 {fail}')
    LA = a.newlabel('Lc_A'); Ldone = a.newlabel('Lc_done')
    Lr = [a.newlabel('Lc_rE') for _ in range(5)]; Lc = [a.newlabel('Lc_cE') for _ in range(5)]
    Lhk = a.newlabel('Lc_hk'); Lhb = a.newlabel('Lc_hb'); Lexp = a.newlabel('Lc_exp'); Lfb = a.newlabel('Lc_fb'); Lnofb = a.newlabel('Lc_nofb'); Lsp = a.newlabel('Lc_sp'); Lspb = a.newlabel('Lc_spb')
    if stamps: _ = [a(f's_mov_b32 s{84+k}, 0') for k in range(12)]
    zero(A, 24); ring_prefetch()
    a(f's_add_u32 s{S_GS}, s{S_GS}, 1'); a(f'v_mov_b32 v{r.PZ}, s{S_GS}')
    for j in range(4): e_load(j)
    a('s_waitcnt vmcnt(0)')
    a('.p2align 6')
    a.label(LA)
    e3 = False; ex = 1 if eb is not None else 0
    ringof = {('q',1,0):0, ('q',1,1):1, ('q',1,2):2, ('q',1,3):3, ('q',1,4):0, ('q',0,4):1, ('q',1,5):2, ('q',0,5):3, ('q',0,6):0, ('q',0,7):1, ('q',1,6):2, ('q',1,7):3}
    def S(m, t, s):
        b = (m, t, s)
        smf(ACC[m][t], M+4*s, vr(R+8*ringof[b], 8) if b in ringof else r.blk(b))
    def chk(j):
        return [f'v_bitop3_b32 v{t0}, v{M+4*j}, v{M+4*j+2}, s{S_EM} bitop3:0x7e', f'v_and_b32 v{t0}, 1, v{t0}', f'v_cmp_ne_u32 vcc, 0, v{t0}']
    vm0 = ['E0', 'E1'] + (['x'] if ex else []) + ['E2'] + ([] if e3in else ['E3'])
    ee = e0e is not None; eh = ee and d2[w] < e0e
    if ee: vm0 = ['E0'] + (['m'] if eh else []) + ['x', 'E1', 'E2'] + ([] if e3in else ['E3'])
    a(f's_waitcnt vmcnt({len(vm0)-1}) lgkmcnt(0)')
    tr(7)
    for l in chk(0): a(l)
    a.label(Lc[0])
    st()
    tr(8)
    order = (('q',1),('q',0),('k',0),('k',1),('v',0),('v',1))
    dsq = [(R+24, ('q',1,3), 0), (R+24, ('q',1,3), 1), (R, ('q',1,4), 0), (R, ('q',1,4), 1), (R+16, ('q',1,2), 0), (R+16, ('q',1,2), 1),
           None, (R+8, ('q',0,4), 0), (R+8, ('q',0,4), 1), None, None, None,
           None, (R+16, ('q',1,5), 0), (R+16, ('q',1,5), 1), None, None, None]
    cnt = 0
    vm = list(vm0)
    def after_of(n): return len(vm) - 1 - vm.index(n)
    issued_at = {}
    def probe():
        a(f'global_load_dword v{r.PG}, v{r.PG+1}, s[{S_BR}:{S_BR+1}] sc1')
    def extras(cnt):
        if e3in and cnt == 2: e_load(3); vm.append('E3')
        if cnt == lpos: e_load(4); vm.append('E4')
    for sl in range(3):
        c = chk(sl+1)
        for i, (m, t) in enumerate(order):
            S(m, t, sl)
            if dsq[cnt]: ldh(*dsq[cnt])
            extras(cnt)
            if cnt == 0: a(f's_mov_b32 s{S_FB}, 0')
            if cnt == 11: a('s_waitcnt lgkmcnt(2)')
            if cnt == 1: a(f's_cbranch_vccnz {Lr[0]}')
            cnt += 1
            if i == cp: a(f's_waitcnt vmcnt({after_of("E%d" % (sl+1))})')
            if cp <= i < cp + 3: a(c[i-cp])
            if fused and w == hkw[0] and cnt == 7:
                a(f's_add_u32 s{S_T3}, s{S_STEP}, 1'); a(f's_min_u32 s{S_T3}, s{S_T3}, 63'); a(f'v_cmp_ge_u32 s[{S_TMP}:{S_TMP+1}], s{S_T3}, v{r.PG}')
        a(f's_cbranch_vccnz {Lr[sl+1]}')
        issued_at[sl+1] = list(vm)
        a.label(Lc[sl+1])
    assert 2 <= lpos < 14
    c = chk(4)
    a('s_waitcnt lgkmcnt(4)')
    S('q',1,3)
    a(f's_waitcnt vmcnt({after_of("E4")})')
    a(f'ds_write_b128 v{r.aL}, {vr(M+16,4)} offset:{1024*w}')
    a(c[0])
    S('q',0,3); ldh(R+24, ('q',0,5), 0); extras(19); a(c[1])
    S('k',0,3); ldh(R+24, ('q',0,5), 1); extras(20); a(c[2])
    S('k',1,3); extras(21)
    Lbs = a.newlabel('Lc_bs'); Lbg = a.newlabel('Lc_bg')
    if fused and w == hkw[0]:
        a(f's_and_b64 s[{S_TMP}:{S_TMP+1}], s[{S_TMP}:{S_TMP+1}], s[{S_XP}:{S_XP+1}]'); a(f's_cbranch_scc1 {Lhb}'); a.label(Lhk)
    if not vdef: S('v',0,3)
    a(f's_cbranch_vccnz {Lr[4]}')
    a.label(Lc[4])
    tr(9)
    if not nohk and pkpos == 4: a(f's_mov_b64 exec, s[{S_XH0}:{S_XH0+1}]'); a(f'global_store_dwordx4 v{r.aKm}, {vr(T,4)}, s[{S_HB}:{S_HB+1}] sc1'); a(XA)
    a('s_waitcnt lgkmcnt(2)'); a('s_barrier')
    tr(10)
    pos[0] = 0
    def rdm(j): a(f'ds_read_b128 {vr(M+16+4*j,4)}, v{r.aL} offset:{1024*(w^j)}')
    def pub_k(): a(f's_mov_b64 exec, s[{S_XH0}:{S_XH0+1}]'); a(f'global_store_dwordx4 v{r.aKm}, {vr(T,4)}, s[{S_HB}:{S_HB+1}] sc1'); a(XA)
    def pub_v(): a(f'global_store_dwordx2 v{r.aVm}, {vr(A+30,2)}, s[{S_HB}:{S_HB+1}] sc1')
    hk = []
    if not nohk:
        hk = [lambda i=i: kv_load(a, r, i, M) if not (vdef and i == 3) else None for i in range(4)]
        if fused and w == hkw[1]: hk.append(lambda: (a('s_mov_b64 exec, 1'), a(f'global_store_dword v{r.Z}, v{t1}, s[{S_FW}:{S_FW+1}] sc1'), a(XA)))
        if fused and w == hkw[0]: hk.append(lambda: prog_load(a, r))
        if w not in hkw or not fused: hk.append(lambda: None)
    def H():
        if hk: hk.pop(0)()
    rdm(1)
    if not vdef: S('v',1,3)
    rdm(2); rdm(3)
    Lk0 = a.newlabel('Lc_k0'); Lk0b = a.newlabel('Lc_k0b')
    S('q',1,4); a(f's_cmp_eq_u32 s{S_STEP}, 0'); a(f's_cbranch_scc1 {Lk0}'); a.label(Lk0b); H()
    S('q',0,4); ldh(R+0, ('q',0,6), 0); H()
    S('k',0,4); ldh(R+0, ('q',0,6), 1); H()
    S('k',1,4); ldh(R+8, ('q',0,7), 0); H(); a('s_waitcnt lgkmcnt(5)')
    S('q',1,5); ldh(R+8, ('q',0,7), 1)
    if not nohk and pkpos == 3: pub_k()
    S('q',0,5); ldh(R+16, ('q',1,6), 0)
    if not nohk and pvearly: pub_v()
    S('k',0,5); ldh(R+16, ('q',1,6), 1); a('s_waitcnt lgkmcnt(6)')
    S('k',0,6); ldh(R+24, ('q',1,7), 0)
    S('k',0,7); ldh(R+24, ('q',1,7), 1); a('s_waitcnt lgkmcnt(4)')
    S('q',0,6); H()
    TA = [R+0, R+2]; TD = [R+4, R+8]; SX = [R+16, R+20]; SM = R+24
    S('q',0,7); add0(Ak[0])
    S('k',1,5); add1(Ak[0])
    assert not hk
    S('k',1,6); cvt(TA[0], Ak[0], Ak[0]+1)
    S('k',1,7); a('s_waitcnt lgkmcnt(0)'); add0(Aq[0])
    S('q',1,6); a(f's_mov_b64 vcc, s[{S_XH1}:{S_XH1+1}]'); add1(Aq[0])
    S('q',1,7); cvt(TA[0]+1, Aq[0], Aq[0]+1)
    st()
    vq = [(t, s) for s in range(3 if vdef else 4, 8) for t in range(2)]
    def V(n=1):
        for _ in range(n):
            t, s = vq.pop(0); S('v', t, s)
    add0(Ak[1]); add1(Ak[1])
    m16(TD[0], TA[0], r.I, 0)
    cvt(TA[1], Ak[1], Ak[1]+1)
    add0(Aq[1]); add1(Aq[1])
    cvt(TA[1]+1, Aq[1], Aq[1]+1)
    m16(TD[1], TA[1], r.I, 0)
    a(f's_cmp_lg_u32 s{S_STEP}, 0'); a(f's_cselect_b32 s{S_T}, {HB_REC}, 0')
    V(1)
    if not nohk and not pvearly: pub_v()
    V(vw[0]-1)
    add64(a, S_HB, S_HB, f's{S_T}')
    for i in range(4): cvt(T+i, TD[0]+i, TD[1]+i)
    a(f's_cmp_eq_u32 s{S_STEP}, s{S_SP}'); a(f's_cbranch_scc1 {Lsp}')
    a.label(Lspb)
    m32(SX[0], r.KX, T, 0)
    a(f's_cmp_lt_u32 s{S_STEP}, 62'); a(f's_cselect_b32 s{S_T}, {HB_REC}, 0')
    m32(SX[1], r.KX+4, T, 0)
    m32(SM, T, T, 0)
    vrest = list(vq)
    V(vw[1])
    if vdef and not nohk: kv_load(a, r, 3, M)
    add64(a, S_KV, S_KV, f's{S_T}')
    for i in range(4): a(f'v_cndmask_b32_dpp v{SX[1]+i}, v{SX[0]+i}, v{SX[1]+i}, vcc {DPPQ}')
    SO = SX[1]; SMO = SM+1
    a(f'v_cndmask_b32_dpp v{SMO}, v{SM}, v{SM+1}, vcc {DPPQ}')
    V(vw[2])
    a(f'ds_write_b128 v{r.aL}, {vr(SO,4)} offset:{LS-LM+1024*w}')
    if wsplit: V(1)
    a(f'ds_write_b32 v{r.PG+1}, v{SMO} offset:{256*w}')
    V(vw[3]-1)
    if not nohk and pkpos == 1: pub_k()
    if bx is not None and w == 0: a(f'v_cmp_ne_u32 vcc, s{S_GS}, v{r.PG} ; nowaitcheck')
    V(1)
    pos[0] = None
    if bx is not None and w == 0:
        a(f's_cbranch_vccnz {Lbs}'); a.label(Lbg); a('s_waitcnt lgkmcnt(0)'); a('s_barrier')
    elif bx is not None and w == 1: a('s_waitcnt lgkmcnt(0)'); a('s_barrier')
    elif nowait & 1: a('s_barrier')
    else: a(f's_waitcnt vmcnt({0 if nohk else 5 + (1 if pkpos in (1, 3, 4) else 0) + (1 if (fused and w in hkw) else 0)}) lgkmcnt(0)'); a('s_barrier')
    st()
    tr(11)
    RD = [R+0, R+4, R+8]; RM = R+28
    o4 = (LS-LM+4096)//256
    for j in range(3): a(f'ds_read_b128 {vr(RD[j],4)}, v{r.aL} offset:{LS-LM+1024*(w^(j+1))}')
    V(1)
    a(f'ds_read2st64_b32 {vr(RM,2)}, v{r.PG+1} offset0:{w^1} offset1:{w^2}')
    a(f'ds_read_b32 v{RM+2}, v{r.PG+1} offset:{256*(w^3)}')
    V(len(vq))
    if not nohk and pkpos == 0: pub_k()
    assert not vq
    P = R+16; MX = R+26; TM = R+27
    D = [R+8, R+12]; SUM = R+28; X = R+0
    a('s_waitcnt lgkmcnt(2)')
    for i in range(4): a(f'v_add_f32 v{SO+i}, v{SO+i}, v{RD[0]+i}')
    pka(RD[1], RD[1], RD[2]); pka(RD[1]+2, RD[1]+2, RD[2]+2)
    a('s_waitcnt lgkmcnt(0)')
    a(f'v_add_f32 v{SMO}, v{SMO}, v{RM+2}'); a(f'v_add_f32 v{RM}, v{RM}, v{RM+1}')
    pka(SO, SO, RD[1]); pka(SO+2, SO+2, RD[1]+2)
    a(f'v_add_f32 v{SMO}, v{SMO}, v{RM}')
    pka(Av[0], Av[0], Av[0]+2); pka(Av[1], Av[1], Av[1]+2)
    def submax():
        a(f'v_max3_f32 v{MX}, v{SO}, v{SO+1}, v{SO+2}'); a(f'v_max3_f32 v{MX}, v{MX}, v{SO+3}, v{SMO}')
        a(f'v_max_f32_dpp v{MX}, v{MX}, v{MX} {DPPQ}')
        for sw in ('16', '32'):
            a(f'v_mov_b32 v{TM}, v{MX}'); a(f'v_permlane{sw}_swap_b32 v{MX}, v{TM}'); a(f'v_max_f32 v{MX}, v{MX}, v{TM}')
        for e in (SMO, SO, SO+1, SO+2, SO+3): a(f'v_sub_f32 v{e}, v{e}, v{MX}')
    if not nomax: submax()
    a.label(Lexp)
    a(f'v_exp_f32 v{X+4}, v{SMO}')
    cvt(r.VM, Av[0], Av[0]+1)
    a(f'v_exp_f32 v{X}, v{SO}')
    cvt(r.VM+2, Av[1], Av[1]+1)
    a(f'v_mov_b32_dpp v{TM}, v{X+4} {DPPQ}')
    a(f'v_exp_f32 v{X+1}, v{SO+1}')
    cvt(r.PZ, X+4, TM)
    a(f'v_exp_f32 v{X+2}, v{SO+2}')
    cvt(P, X, X+1)
    m16(SUM, r.One, r.PZ, 0); ldh(M+16, ('o',0,0), 0)
    a(f'v_exp_f32 v{X+3}, v{SO+3}')
    m16(D[0], r.VM, r.PZ, 0); ldh(M+16, ('o',0,0), 1)
    a(f'v_mov_b32_dpp v{P+2}, v{P} {DPPQ}')
    cvt(P+1, X+2, X+3)
    m16(D[1], r.VM+2, r.PZ, 0)
    a(f'v_mov_b32_dpp v{P+3}, v{P+1} {DPPQ}')
    st()
    m32(SUM, r.One, P, 1); ldh(M+24, ('o',0,1), 0)
    m32(D[0], r.VX, P, 1); ldh(M+24, ('o',0,1), 1)
    m32(D[1], r.VX+4, P, 1)
    a(f'v_rcp_f32 v{SUM+2}, v{SUM}')
    for i in range(4): a(f'v_mul_f32 v{D[0]+i}, v{D[0]+i}, v{SUM+2}')
    for i in range(2): a(f'v_pk_mul_f32 {vr(D[1]+2*i,2)}, {vr(D[1]+2*i,2)}, {vr(SUM+2,2)} op_sel_hi:[1,0]')
    OP = R+0
    for i in range(4): cvt(OP+i, D[0]+i, D[1]+i)
    a(f'ds_write_b128 v{r.aOw}, {vr(OP,4)}')
    if nowait & 2:
        a('s_barrier'); a(f'ds_read_b128 {vr(R+24,4)}, v{r.aL}')
    a(f'v_mfma_f32_32x32x8_bf16 {vr(A,16)}, {vr(r.Z,2)}, {vr(r.Z,2)}, 0')
    ldh(R+8, ('o',6,0), 0); ldh(R+8, ('o',6,0), 1)
    if nomax and not nowait & 2:
        a(f'v_max_f32 v{SUM}, v{SUM}, v{SUM+2}'); a(f'v_cmp_nge_f32 vcc, {f2u(2.0**60):#x}, v{SUM}')
        a(f's_cbranch_vccnz {Lfb}'); a.label(Lnofb)
    if not nowait & 2: a('s_waitcnt lgkmcnt(2)'); a('s_barrier')
    st()
    if rt is not None:
        lt = a.newlabel('Lc_t'); a('s_waitcnt lgkmcnt(0)'); a(f's_cmp_lg_u32 s{S_STEP}, {rt}'); a(f's_cbranch_scc1 {lt}')
        _ = [a(f's_mov_b32 s{84+k}, s{(S_STAMP+2*k) if k != 10 else 96}') for k in range(12)]
        a.label(lt)
    tr(0)
    O = R+24
    a(f'ds_read_b128 {vr(O,4)}, v{r.aL}'); a(f'ds_read_b128 {vr(O+4,4)}, v{r.aL} offset:1024')
    a(f'v_mfma_f32_32x32x8_bf16 {vr(A+16,16)}, {vr(r.Z,2)}, {vr(r.Z,2)}, 0')
    if not nohk and pkpos == 2: pub_k()
    a(f's_xor_b32 s{S_EM}, s{S_EM}, 1'); a(f's_add_u32 s{S_STEP}, s{S_STEP}, 1'); a(f's_mov_b32 s{S_SPIN}, 0')
    land = {('o',0,0): M+16, ('o',0,1): M+24, ('o',6,0): R+8, ('o',6,1): R+16, ('o',7,0): R, ('o',7,1): M+16}
    def ob(b): return vr(land[b], 8) if b in land else r.blk(b)
    def ad(t, e): c = A+4*t+e; return f'v_add_f32 v{c}, v{c}, v{c+2}'
    def fin(p):
        c = A+8*p
        return [ad(2*p+1, 0), ad(2*p+1, 1), f'v_cvt_pk_bf16_f32 v{c}, v{c}, v{c+4}', f'v_cvt_pk_bf16_f32 v{c+1}, v{c+1}, v{c+5}', f'v_and_or_b32 v{c}, v{c}, -2, s{S_EP}']
    def sto(p): return f'global_store_dwordx2 v{r.aPst}, {vr(A+8*p,2)}, s[{S_CP+2*p}:{S_CP+2*p+1}] {stf}'
    after = {3: [ad(0,0)], 4: [ad(0,1)], 5: fin(0), 6: [sto(0)], 7: [ad(2,0)], 8: [ad(2,1)], 9: fin(1)[:2], 10: fin(1)[2:], 11: [sto(1), ad(4,0), ad(4,1)],
             13: fin(2)[:2], 14: fin(2)[2:], 15: [sto(2), ad(6,0), ad(6,1), f'v_pk_add_f32 {vr(A+28,2)}, {vr(A+28,2)}, {vr(A+30,2)}'] + fin(3)[2:] + [sto(3)]}
    lq = [(R+16, ('o',6,1), 0), (R+16, ('o',6,1), 1), (R, ('o',7,0), 0), (R, ('o',7,0), 1), (M+16, ('o',7,1), 0), (M+16, ('o',7,1), 1)]
    a('s_waitcnt lgkmcnt(1)')
    younger = 0; issued = False; nst = 0
    for t in range(8):
        for k in range(2):
            i = 2*t+k
            smf(A+4*t, O+4*k, ob(('o', t, k)))
            if i == 0: a('s_waitcnt lgkmcnt(0)')
            if i in (1, 2, 3, 4, 5, 7): ldh(*lq.pop(0))
            if i == 12: a('s_waitcnt lgkmcnt(0)')
            if i == pat[w]: p_loads(); issued = True; tr(3)
            for l in after.get(i, []):
                if l.startswith('global_store') and nst == 3 and pat[w] == 15.5: p_loads(); issued = True; tr(3)
                a(l)
                if l.startswith('global_store'):
                    if issued: younger += 1
                    if nst in (0, 3): tr(1 if nst == 0 else 2)
                    nst += 1
    if nocomm: ns[0] = 9
    st()
    chores = []
    chores += [f's_waitcnt vmcnt({4 + (2 if issued else 0) + (0 if nohk else ((0 if pkpos >= 3 else 1) if vdef else (1 if pkpos == 4 else 2) + (1 if (fused and w in hkw) else 0)))})\n' + '\n'.join(f'v_mov_b32 v{PD+i}, 0' for i in (2, 3, 0, 1))] + [f'v_mov_b32 v{r.KX+i}, v{M+i}' for i in range(16)]
    chores += [f'ds_read_b128 {vr(R+8*e+4*hh,4)}, v{r.aW} offset:{r.place[("q",1,e)][1]+1024*hh}' for e in range(2) for hh in range(2)]
    chores += [f'v_mov_b32 v{A+i}, 0' for i in range(24)]
    chores += [f'v_mov_b32 v{A+30}, v{r.VM}', f'v_mov_b32 v{A+31}, v{r.VM+2}', f's_add_u32 s{S_GS}, s{S_GS}, 1', f'v_mov_b32 v{r.PZ}, s{S_GS}']
    nch = len(chores)
    def do_chores(cyc, pad=True):
        n = cyc // 4
        while n > 0 and chores: a(chores.pop(0)); n -= 1
        if pad: nops(4*n)
    def then(cyc, need):
        do_chores(cyc); do_chores(4*max(0, need - (nch - len(chores))))
    if not issued:
        if ack1[w] is not None: do_chores(240, False); a(f's_waitcnt vmcnt({ack1[w]})')
        else: do_chores(max(d1[w], 4))
        p_loads(); tr(3)
    for k in range(1, nb):
        do_chores(bk if (k > 1 or not issued) else max(4, bk - 40)); p_loads(k); younger += 2
    do_chores(max(min(c1[w], 4*len(chores)), 4), False)
    if eh: then(0, 5)
    if stamps and ns[0]:
        a('s_waitcnt lgkmcnt(0)')
        n = ns[0]
        for k in range(1, n):
            a(f's_sub_u32 s{S_T}, s{S_STAMP+2*k}, s{S_STAMP+2*k-2}'); a(f's_add_u32 s{84+k}, s{84+k}, s{S_T}')
        a(f's_sub_u32 s{S_T}, s{S_STAMP}, s83'); a(f's_mov_b32 s83, s{S_STAMP+2*(n-1)}')
        a(f's_cmp_eq_u32 s{S_STEP}, 1'); a(f's_cselect_b32 s{S_T}, 0, s{S_T}'); a(f's_add_u32 s84, s84, s{S_T}')
    def reduce(k, failto, early=None):
        a(f'v_smfmac_f32_16x16x64_bf16 {vr(PD,4)}, {vr(r.E,4)}, {vr(PL[k],8)}, v{r.idx} abid:1')
        if early: early()
        a(f'v_bitop3_b32 v{t0}, v{PL[k]}, v{PL[k]+2}, s{S_EP} bitop3:0x7e')
        a(f'v_bitop3_b32 v{t1}, v{PL[k]+4}, v{PL[k]+6}, s{S_EP} bitop3:0x7e')
        a(f'v_bitop3_b32 v{t0}, v{t0}, v{t1}, 1 bitop3:0xa8')
        a(f'v_cmp_ne_u32 vcc, 0, v{t0}')
        for ror in (8, 4):
            for i in range(4):
                a(f'v_add_f32_dpp v{PD+i}, v{PD+i}, v{PD+i} row_ror:{ror} row_mask:0xf bank_mask:0xf')
                if ror == 8 and i == 2: a(f's_cbranch_vccnz {failto}')
        a(f's_mov_b64 exec, s[{S_XR}:{S_XR+1}]')
        cvt(PD, PD, PD+1); cvt(PD+1, PD+2, PD+3)
        a(f'v_and_or_b32 v{PD}, v{PD}, -2, s{S_EM}')
        a(f'global_store_dwordx2 v{r.aMst}, {vr(PD,2)}, s[{S_CM}:{S_CM+1}] {stf}')
        a(XA)
    assert not e3
    Lok = a.newlabel('Lc_p1'); Lq = [a.newlabel('Lc_r1') for _ in range(nb)]
    a(f's_waitcnt vmcnt({younger})')
    tr(4)
    hookE = (lambda: e_load(0, ef)) if eh else None
    reduce(0, Lq[1 % nb], hookE)
    a.label(Lok)
    tr(5)
    a(f's_xor_b32 s{S_EP}, s{S_EP}, 1')
    EB = M+20
    def e_back():
        b = S_CME if rep else S_CML
        a(f'global_load_dwordx4 {vr(EB,4)}, v{r.aL}, s[{b}:{b+1}] offset:{1024*frag_of(w,0)-4096} sc1')
    if ee:
        if not eh: then(d2[w] - e0e, 5); e_load(0, ef); then(e0e, 5)
        else: then(d2[w], 5)
        e_back(); tr(6); then(e1g, 9); e_load(1, ef)
    else:
        if ack2[w]: do_chores(200, False); a('s_waitcnt vmcnt(0)')
        then(0 if ack2[w] else d2[w], 5); e_load(0, ef); tr(6); then(es, 9); e_load(1, ef)
        if eb is not None: then(eb, 0); e_back()
    if fused and w == hkw[1]: a(f's_sub_u32 s{S_T}, s{S_STEP}, 1'); a(f'v_mov_b32 v{t1}, s{S_T}')
    then(e23[w], 13); e_load(2, ef)
    if not e3in: then(es, 17); e_load(3, ef)
    do_chores(4*len(chores))
    a(f's_branch {LA}')
    for k in list(range(1, nb)) + [0]:
        a.label(Lq[k])
        p_loads((k-1) % nb); zero(PD, 4)
        if stamps and rt is None: a(f's_add_u32 s94, s94, 1')
        if k == 0: spin_or_fail()
        a(f's_waitcnt vmcnt({2*(nb-1) if not eh else (3 if nb == 2 else 0)})')
        reduce(k, Lq[(k+1) % nb], hookE)
        a(f's_branch {Lok}')
    if eb is not None or ee:
        Lr0 = Lr[0]; Lr[0] = a.newlabel('Lc_rE0')
        a.label(Lr0)
        if stamps and rt is None: a('s_add_u32 s92, s92, 63')
        a('s_nop 4'); zero(A, 8)
        a(f's_waitcnt vmcnt({len(vm0) - 1 - vm0.index("x")})')
        for i in range(4): a(f'v_mov_b32 v{M+i}, v{EB+i}')
        for l in chk(0): a(l)
        a(f's_cbranch_vccz {Lc[0]}')
    for j in range(5):
        a.label(Lr[j])
        if stamps and rt is None: a(f's_add_u32 s{95 if j == 0 else 93}, s{95 if j == 0 else 93}, {1 if j == 0 else 63}')
        n = 0
        seq = vm0 if j == 0 else (issued_at[j] if j < 4 else ['E4'])
        for nm in seq[seq.index('E%d' % j):]:
            if nm[0] == 'E': e_load(int(nm[1]))
            else: a(f'global_load_dword v{A+24}, v{r.aL}, s[{S_CPR}:{S_CPR+1}] sc1')
            n += 1
        spin_or_fail()
        if j == 0: a('s_nop 4'); zero(A, 8)
        a(f's_waitcnt vmcnt({n-1})')
        for l in chk(j): a(l)
        if j == 4: a(f'ds_write_b128 v{r.aL}, {vr(M+16,4)} offset:{1024*w}')
        a(f's_cbranch_vccnz {Lr[j]}')
        if j == 4: a('s_waitcnt lgkmcnt(0)')
        a(f's_branch {Lc[j]}')
    if fused and w == hkw[0]:
        if stamps and rt is None:
            lb = a.newlabel('Lc_hb2'); a.label(Lhb); a('s_add_u32 s92, s92, 63'); Lhb = lb
        prog_block(a, r, Lhb, Lhk, S_T3, fail)
    if bx is not None and w == 0:
        a.label(Lbs)
        if stamps and rt is None: a('s_add_u32 s92, s92, 63')
        lb2 = a.newlabel('Lc_bs2'); a.label(lb2)
        for k in range(4):
            a(f'v_cmp_ne_u32 vcc, s{S_GS}, v{r.PG} ; nowaitcheck'); probe(); nops(bg); a(f's_cbranch_vccz {Lbg}')
        spin_or_fail(); a(f's_branch {lb2}')
    if nomax and not nowait & 2:
        a.label(Lfb)
        a(f's_cmp_lg_u32 s{S_FB}, 0'); a(f's_cbranch_scc1 {Lnofb}')
        a(f's_mov_b32 s{S_FB}, 1'); a('s_waitcnt lgkmcnt(0)')
        submax()
        a(f's_branch {Lexp}')
    a.label(Lsp)
    a(f's_cmp_eq_u32 s{S_STEP}, 63'); a(f's_cbranch_scc1 {Ldone}')
    a(f's_mov_b32 s{S_SP}, 63')
    a('s_waitcnt vmcnt(0)'); a(f's_branch {Lspb}')
    a.label(Lk0)
    if started: started(A+26)
    for i in range(4): kv_load(a, r, i, r.KX, S_HB)
    a(f's_branch {Lk0b}')
    a.label(Ldone)
    if not nohk: pub_k()
    for t, sl in vrest: S('v', t, sl)
    if not nohk:
        for t in range(2):
            add0(Av[t]); add1(Av[t]); cvt(A+30+t, Av[t], Av[t]+1)
        pub_v()
    a('s_waitcnt vmcnt(0)'); a('s_barrier')
    if fused and w == hkw[1]:
        a(f'v_mov_b32 v{t0}, 64'); a('s_mov_b64 exec, 1'); a(f'global_store_dword v{r.Z}, v{t0}, s[{S_FW}:{S_FW+1}] sc1'); a(XA)
    a(f's_branch {done}')

def chain_all_waves(a, r, stf, fail, **kw):
    done = a.newlabel('Lc_alldone'); lw = [a.newlabel('Lc_wave') for _ in range(4)]
    a(f'v_mov_b32 v{r.A+29}, 0')
    for w in range(1, 4):
        a(f's_cmp_eq_u32 s{S_W}, {w}'); a(f's_cbranch_scc1 {lw[w]}')
    for w in range(4):
        a.label(lw[w]); chain_wave(a, r, w, stf, fail, done, **kw)
    a.label(done)

def chain_kernel_standalone(half, stamps=False, **kw):
    a = Asm(); a._lbl = 1000 * (half + 1); r = ChainRegs()
    end = a.newlabel('Lc_end')
    a(f's_load_dwordx2 s[{S_WS}:{S_WS+1}], s[0:1], {KA_WS}')
    a(f's_load_dwordx2 s[{S_DBG}:{S_DBG+1}], s[0:1], {KA_DBG}')
    a(f's_getreg_b32 s{S_T}, hwreg(HW_REG_XCC_ID, 0, 4)')
    a('s_waitcnt lgkmcnt(0)')
    a(f's_cmp_lg_u32 s{S_T}, 0'); a(f's_cbranch_scc1 {end}')
    l0 = a.newlabel('Lc')
    a('v_mov_b32 v1, 0'); a('v_mov_b32 v2, 1'); a('v_cmp_eq_u32 vcc, 0, v0')
    a('s_and_saveexec_b64 s[12:13], vcc'); a(f's_cbranch_execz {l0}')
    a(f'global_atomic_add v3, v1, v2, s[{S_DBG}:{S_DBG+1}] sc0 sc1'); a('s_waitcnt vmcnt(0)')
    a('ds_write_b32 v1, v3'); a('s_waitcnt lgkmcnt(0)')
    a.label(l0)
    a('s_mov_b64 exec, s[12:13]'); a('s_barrier')
    a('ds_read_b32 v3, v1'); a('s_waitcnt lgkmcnt(0)'); a(f'v_readfirstlane_b32 s{S_H}, v3'); a('s_barrier')
    a(f's_cmp_ge_u32 s{S_H}, 32'); a(f's_cbranch_scc1 {end}')
    if stamps: a('s_memtime s[98:99]')
    chain_setup(a, r)
    a(f's_mov_b32 s{S_EP}, 0'); a(f's_mov_b32 s{S_EM}, 0'); a(f's_mov_b32 s{S_HALF}, {half}')
    chain_init_comm(a, r, '', True)
    group_arrive(a, r.R, 4); group_wait(a, r.R, 4, 32, end)
    if kw.get('rt') is not None:
        a('s_memrealtime s[60:61]'); a('s_waitcnt lgkmcnt(0)'); a('s_add_u32 s62, s60, 2048'); a('s_and_b32 s62, s62, 0xfffff000'); a('s_add_u32 s62, s62, 4096')
        a('s_mov_b32 s63, 0'); a('s_mov_b32 s99, 0'); a('s_mov_b32 s98, 0')
        a.label('Lcal')
        a('s_memrealtime s[60:61]'); a('s_memtime s[64:65]'); a('s_waitcnt lgkmcnt(0)'); a('s_sub_u32 s61, s60, s62'); a('s_cmp_lt_i32 s61, 0'); a('s_cbranch_scc1 Lcal')
        a('s_cmp_eq_u32 s63, 0'); a('s_cselect_b32 s99, s64, s99'); a('s_sub_u32 s64, s64, s99'); a('s_add_u32 s98, s98, s64')
        a('s_add_u32 s62, s62, 44'); a('s_add_u32 s63, s63, 1'); a('s_cmp_lt_u32 s63, 32'); a('s_cbranch_scc1 Lcal')
        a('s_lshr_b32 s98, s98, 5'); a('s_add_u32 s99, s99, s98'); a('s_mov_b32 s98, s62')
    if stamps: a('s_memtime s[100:101]')
    chain_start(a, r, end, 0)
    chain_all_waves(a, r, '', end, fused=0, stamps=stamps, **kw)
    if stamps:
        a('s_memtime s[60:61]'); a('s_waitcnt lgkmcnt(0)')
        a('s_sub_u32 s96, s100, s98'); a('s_sub_u32 s97, s60, s100')
        for k in range(16): a(f'v_mov_b32 v{k}, s{84+k}')
        a(f's_lshl_b32 s{S_T}, s{S_H}, 2'); a(f's_add_u32 s{S_T}, s{S_T}, s{S_W}'); a(f's_lshl_b32 s{S_T}, s{S_T}, 6')
        a(f's_add_u32 s{S_T}, s{S_T}, {STAMP_OFF}')
        a(f'v_mov_b32 v16, s{S_T}')
        for k in range(4): a(f'global_store_dwordx4 v16, {vr(4*k,4)}, s[{S_WS}:{S_WS+1}] offset:{16*k}')
    a.label(end)
    a('s_waitcnt vmcnt(0)'); a('s_endpgm')
    return a.lines

def autostamp(lines, start, stride, n=9):
    out = []; inb = False; idx = 0; k = 0; names = []; first = True
    for l in lines:
        if l == '; BODY_BEGIN': inb = True; idx = 0; k = 0
        if l == '; BODY_END':
            while k < n:
                out.append(f's_memtime s[{S_STAMP+2*k}:{S_STAMP+2*k+1}]'); k += 1
            inb = False; first = False
        if l.startswith('s_cbranch_vccnz'): l = 's_cbranch_vccnz ' + f'Lnx_{len(out)}\nLnx_{len(out)}:'
        if inb and is_instr(l.split('\n')[0]):
            if k < n and idx == start + k * stride:
                out.append(f's_memtime s[{S_STAMP+2*k}:{S_STAMP+2*k+1}]'); k += 1
            if first: names.append(l.split('\n')[0])
            idx += 1
        out += l.split('\n')
    return out, names

if __name__ == '__main__':
    rep = []
    lines = fix_hazards(chain_kernel_standalone(0, stamps=True), rep)
    for e in check_waits(lines, 'chain'): print(e)
    for x in rep[14:32]: print(x)
    t = assemble_file('', [('chain0_kernel', 256, 256, 163840)], [('chain0_kernel', lines, 512, 256)])
    open('chain_test.s', 'w').write(t)
    print(len(lines))
```

```python
from asmlib import *
from layout import *
import math, struct
def f2u(f): return struct.unpack('<I', struct.pack('<f', f))[0]

S_WS = 4; S_W = 7; S_SRD = 8; S_WSRD = 12
S_T = 16; S_T2 = 17; S_T3 = 18; S_OFF = 19
S_OUT = 20
S_IN = 22
S_TASK = 24; S_A = 25; S_B = 26; S_CNT = 27; S_XO = 28; S_BUF = 29; S_K0 = 30; S_K1 = 31
S_P = 32
S_M = 34

def add64(a, dst, base, off):
    a(f's_add_u32 s{dst}, s{base}, {off}'); a(f's_addc_u32 s{dst+1}, s{base+1}, 0')

def common_prologue(a, L, L16):
    a(f's_load_dwordx2 s[{S_WS}:{S_WS+1}], s[0:1], {KA_WS}')
    a(f'v_lshrrev_b32 v{L16}, 6, v0'); a(f'v_and_b32 v{L}, 63, v0')
    a(f'v_readfirstlane_b32 s{S_W}, v{L16}')
    a(f'v_lshlrev_b32 v{L16}, 4, v{L}')
    a('s_waitcnt lgkmcnt(0)')
    a(f's_mov_b32 s{S_WSRD}, s{S_WS}'); a(f's_mov_b32 s{S_WSRD+1}, s{S_WS+1}'); a(f's_mov_b32 s{S_WSRD+2}, {256*MB}'); a(f's_mov_b32 s{S_WSRD+3}, 0x20000')

def pi_of(a, dst, src, t):
    a(f'v_and_b32 v{dst}, 0x13, v{src}')
    a(f'v_bfe_u32 v{t}, v{src}, 2, 1'); a(f'v_lshl_or_b32 v{dst}, v{t}, 3, v{dst}')
    a(f'v_bfe_u32 v{t}, v{src}, 3, 1'); a(f'v_lshl_or_b32 v{dst}, v{t}, 2, v{dst}')

def vpos16(a, dst, f, hh_src, t):
    a(f'v_and_b32 v{t}, 1, v{f}'); a(f'v_lshrrev_b32 v{dst}, 1, v{f}'); a(f'v_lshl_or_b32 v{dst}, v{t}, 4, v{dst}')
    a(f'v_lshlrev_b32 v{dst}, 4, v{dst}'); a(f'v_lshrrev_b32 v{t}, 5, v{hh_src}'); a(f'v_lshl_or_b32 v{dst}, v{t}, 9, v{dst}')

def load_wslices(a, mats, stride, L, t0, t1, t2, share=None, early=None):
    a(f'v_bfe_u32 v{t0}, v{L}, 2, 2'); a(f's_mov_b32 s{S_T}, {stride}'); a(f'v_mul_lo_u32 v{t0}, v{t0}, s{S_T}')
    a(f'v_lshrrev_b32 v{t2}, 4, v{L}'); a(f'v_lshl_add_u32 v{t0}, v{t2}, 6, v{t0}')
    a(f'v_and_b32 v{t2}, 3, v{L}'); a(f'v_lshl_add_u32 v{t0}, v{t2}, 4, v{t0}')
    a(f'v_lshrrev_b32 v{t1}, 5, v{L}'); a(f'v_lshlrev_b32 v{t1}, 11, v{t1}')
    a(f'v_bfe_u32 v{t2}, v{L}, 2, 2'); a(f'v_lshl_add_u32 v{t1}, v{t2}, 6, v{t1}')
    a(f'v_bfe_u32 v{t2}, v{L}, 4, 1'); a(f'v_lshl_add_u32 v{t1}, v{t2}, 5, v{t1}')
    a(f'v_and_b32 v{t2}, 1, v{L}'); a(f'v_lshl_add_u32 v{t1}, v{t2}, 4, v{t1}')
    a(f'v_bfe_u32 v{t2}, v{L}, 1, 1'); a(f'v_lshl_add_u32 v{t1}, v{t2}, 3, v{t1}')
    a(f's_lshl_b32 s{S_T}, s{S_W}, 8'); a(f'v_add_u32 v{t1}, s{S_T}, v{t1}'); a(f'v_add_u32 v{t2}, 65536, v{t1}')
    a(f's_mul_i32 s{S_K0}, s{S_W}, {64*stride}'); a(f's_add_u32 s{S_K0}, s{S_K0}, s{S_OFF}')
    a(f's_lshl_b32 s{S_K1}, s{S_W}, 14')
    a(f's_mov_b32 s{S_SRD+3}, 0x20000')
    chunks = [(m, c) for m in range(len(mats)) for c in range(2)]
    cur = [None]
    if share is not None:
        rank, n = share; rows = 512 // n; tp = t2 + 1
        a(f's_lshl_b32 s{S_T}, s{S_W}, 6'); a(f'v_add_u32 v{tp}, s{S_T}, v{L}')
        a(f'v_and_b32 v{tp+1}, 1, v{tp}'); a(f'v_lshrrev_b32 v{tp}, 1, v{tp}'); a(f'v_and_b32 v{tp}, {min(rows,128)-1}, v{tp}')
        a(f's_mov_b32 s{S_T}, {stride}'); a(f'v_mul_lo_u32 v{tp}, v{tp}, s{S_T}'); a(f'v_lshl_add_u32 v{tp}, v{tp+1}, 7, v{tp}')
        a(f's_mul_i32 s{S_T2}, s{rank}, {rows*stride}'); a(f's_add_u32 s{S_T2}, s{S_T2}, s{S_OFF}')
        for ka, nb, const, _, _ in mats:
            if cur[0] != ka:
                a(f's_load_dwordx2 s[{S_SRD}:{S_SRD+1}], s[0:1], {ka}'); a(f's_mov_b32 s{S_SRD+2}, {nb}'); a('s_waitcnt lgkmcnt(0)'); cur[0] = ka
            for r0 in range(0, rows, 128):
                a(f's_add_u32 s{S_T}, s{S_T2}, {const + r0*stride}')
                a(f'buffer_load_dword v{tp+1}, v{tp}, s[{S_SRD}:{S_SRD+3}], s{S_T} offen')
    def issue(ci):
        m, c = chunks[ci]; ka, nb, const, _, _ = mats[m]
        if cur[0] != ka:
            a(f's_load_dwordx2 s[{S_SRD}:{S_SRD+1}], s[0:1], {ka}'); a(f's_mov_b32 s{S_SRD+2}, {nb}'); a('s_waitcnt lgkmcnt(0)'); cur[0] = ka
        for i in range(16):
            a(f's_add_u32 m0, s{S_K1}, {(ci&1)*65536 + i*1024}')
            a(f's_add_u32 s{S_T}, s{S_K0}, {const + (256*c + 4*i)*stride}')
            a(f'buffer_load_dwordx4 v{t0}, s[{S_SRD}:{S_SRD+3}], s{S_T} offen lds')
    issue(0)
    for ci in range(len(chunks)):
        if ci == len(chunks) - 2 and early: early()
        if ci + 1 < len(chunks):
            issue(ci + 1)
            a('s_waitcnt vmcnt(16)')
        else: a('s_waitcnt vmcnt(0)')
        a('s_barrier')
        m, c = chunks[ci]; _, _, _, kind, base = mats[m]
        n = 0
        for kb in range(16):
            for half in range(2):
                r = base + 4*(16*c+kb) + 2*half
                a(f'ds_read_b64_tr_b16 {vr(r,2,kind)}, v{t2 if ci&1 else t1} offset:{(4*kb+half)*1024}')
                n += 1
                if n % 12 == 0: a('s_waitcnt lgkmcnt(4)')
        a('s_waitcnt lgkmcnt(0)'); a('s_barrier')

def dma_x(a, L16, soff_sgpr, buf_sgpr, flags=''):
    a(f's_lshl_b32 s{S_T2}, s{S_W}, 13'); a(f's_add_u32 s{S_T3}, s{S_T2}, s{soff_sgpr}'); a(f's_add_u32 s{S_T2}, s{S_T2}, s{buf_sgpr}')
    for i in range(8):
        if i % 4 == 0:
            a(f's_add_u32 m0, s{S_T2}, {i*1024}'); a(f's_add_u32 s{S_T}, s{S_T3}, {i*1024}')
        a(f'buffer_load_dwordx4 v{L16}, s[{S_WSRD}:{S_WSRD+3}], s{S_T} offen offset:{(i%4)*1024} {flags} lds')

def mf(d, x, y, c): return f'v_mfma_f32_32x32x16_bf16 {vr(d,16)}, {x}, {y}, {c}'

def gemm_core(a, xaddr, XR, tiles, hooks={}):
    for kb in range(3): a(f'ds_read_b128 {vr(XR+4*kb,4)}, v{xaddr} offset:{kb*1024}')
    for kb in range(32):
        if kb + 3 < 32: a(f'ds_read_b128 {vr(XR+4*((kb+3)%4),4)}, v{xaddr} offset:{(kb+3)*1024}')
        a(f's_waitcnt lgkmcnt({min(3, 31-kb)})')
        x = vr(XR+4*(kb%4), 4)
        for acc, kind, wb, swap in tiles:
            w = vr(wb+4*kb, 4, kind)
            a(mf(acc, x if swap else w, w if swap else x, vr(acc,16) if kb else 0))
        if kb in hooks: hooks[kb]()

def pack_store(a, acc, addr, base, flags='', scale=None, offs=(0, 1024)):
    for j in range(2):
        if scale is not None:
            for i in range(8): a(f'v_mul_f32 v{acc+8*j+i}, s{scale}, v{acc+8*j+i}')
        for i in range(4): a(f'v_cvt_pk_bf16_f32 v{acc+8*j+i}, v{acc+8*j+2*i}, v{acc+8*j+2*i+1}')
        a(f'global_store_dwordx4 v{addr}, {vr(acc+8*j,4)}, s[{base}:{base+1}] offset:{offs[j]} {flags}')

def proj_kernel(half, isB, nwg=256):
    a = Asm(); a._lbl = 2000 + 100*half + 50*isB
    H = W.H[half]
    L, L16, t0, t1, t2, vq, vk, vv, xa = range(1, 10)
    XR = 12; ACC = 28; WV = 128
    end = a.newlabel('Lp_end')
    a(f's_cmp_ge_u32 s2, {nwg}'); a(f's_cbranch_scc1 {end}')
    common_prologue(a, L, L16)
    nsl = 32 if isB else 4
    ngr = nwg // nsl
    a(f's_and_b32 s{S_A}, s2, {nsl-1}'); a(f's_lshr_b32 s{S_B}, s2, {int(math.log2(nsl))}')
    a(f's_lshl_b32 s{S_OFF}, s{S_A}, 8')
    xn = H.XNB if isB else H.XNA
    a(f's_lshl_b32 s{S_XO}, s{S_B}, 15'); a(f's_add_u32 s{S_XO}, s{S_XO}, {xn}'); a(f's_mov_b32 s{S_BUF}, {128*1024}')
    dma_x(a, L16, S_XO, S_BUF)
    if isB: mats = [(KA_WK, 4*MB, 0, 'a', 128), (KA_WV, 4*MB, 0, 'v', WV), (KA_WQ, 4*MB, 0, 'a', 0)]; stride = 8192
    else: mats = [(KA_WQKV, 1536*1024, 1024, 'a', 128), (KA_WQKV, 1536*1024, 2048, 'v', WV), (KA_WQKV, 1536*1024, 0, 'a', 0)]; stride = 3072
    load_wslices(a, mats, stride, L, t0, t1, t2)
    ro = (HB_Q, HB_K, HB_V) if isB else (0, H.KA - H.QA, H.VA - H.QA)
    a(f's_lshl_b32 s{S_T}, s{S_W}, 11')
    a(f's_add_u32 s{S_T2}, s{S_T}, {ro[0]}'); a(f'v_add_u32 v{vq}, s{S_T2}, v{L16}')
    a(f's_add_u32 s{S_T2}, s{S_T}, {ro[1]}'); a(f'v_add_u32 v{vk}, s{S_T2}, v{L16}')
    pi_of(a, t0, L, t1); vpos16(a, vv, t0, L, t1)
    a(f's_add_u32 s{S_T2}, s{S_T}, {ro[2]}'); a(f'v_add_u32 v{vv}, s{S_T2}, v{vv}')
    a(f's_lshl_b32 s{S_T}, s{S_A}, {21 if isB else 13}'); a(f's_lshl_b32 s{S_T2}, s{S_B}, 15'); a(f's_add_u32 s{S_T}, s{S_T}, s{S_T2}')
    a(f's_add_u32 s{S_T}, s{S_T}, {H.HB if isB else H.QA}'); add64(a, S_OUT, S_WS, f's{S_T}')
    a(f's_mov_b32 s{S_M}, {f2u(0.25*math.log2(math.e)):#x}')
    lp = a.newlabel('Lp_loop'); nod = a.newlabel('Lp_nod')
    a.label(lp)
    a(f'v_add_u32 v{xa}, s{S_BUF}, v{L16}')
    a(f's_add_u32 s{S_B}, s{S_B}, {ngr}'); a(f's_xor_b32 s{S_BUF}, s{S_BUF}, {128*1024}')
    a(f's_add_u32 s{S_XO}, s{S_XO}, {ngr*32768}')
    a(f's_cmp_ge_u32 s{S_B}, 64'); a(f's_cbranch_scc1 {nod}')
    dma_x(a, L16, S_XO, S_BUF)
    a.label(nod)
    gemm_core(a, xa, XR, [(ACC+16, 'a', 128, False), (ACC+32, 'v', WV, True), (ACC, 'a', 0, False)])
    a('s_waitcnt vmcnt(0)'); a('s_barrier')
    pack_store(a, ACC+16, vk, S_OUT); pack_store(a, ACC+32, vv, S_OUT); pack_store(a, ACC, vq, S_OUT, scale=None if isB else S_M)
    add64(a, S_OUT, S_OUT, ngr*32768)
    a(f's_cmp_lt_u32 s{S_B}, 64'); a(f's_cbranch_scc1 {lp}')
    a.label(end); a('s_endpgm')
    return a.lines

def woa_kernel(half, nwg=256):
    a = Asm(); a._lbl = 3000 + 100*half
    H = W.H[half]
    L, L16, t0, t1, t2, vo, xa = range(1, 8)
    XR = 12; ACC = 28; WV = 128
    end = a.newlabel('Lw_end')
    a(f's_cmp_ge_u32 s2, {nwg}'); a(f's_cbranch_scc1 {end}')
    common_prologue(a, L, L16)
    a(f's_and_b32 s{S_A}, s2, 3'); a(f's_lshr_b32 s{S_B}, s2, 2')
    a(f's_lshl_b32 s{S_OFF}, s{S_A}, 8')
    a(f's_lshl_b32 s{S_XO}, s{S_B}, 15'); a(f's_add_u32 s{S_XO}, s{S_XO}, {H.OA}'); a(f's_mov_b32 s{S_BUF}, {128*1024}')
    dma_x(a, L16, S_XO, S_BUF)
    load_wslices(a, [(KA_WOA, 512*1024, 0, 'v', WV)], 1024, L, t0, t1, t2)
    a(f's_lshl_b32 s{S_T}, s{S_W}, 11'); a(f'v_add_u32 v{vo}, s{S_T}, v{L16}')
    a(f's_lshl_b32 s{S_T}, s{S_A}, 13'); a(f's_lshl_b32 s{S_T2}, s{S_B}, 15'); a(f's_add_u32 s{S_T}, s{S_T}, s{S_T2}')
    a(f's_add_u32 s{S_T}, s{S_T}, {H.YA}'); add64(a, S_OUT, S_WS, f's{S_T}')
    a(f'v_add_u32 v{xa}, s{S_BUF}, v{L16}')
    gemm_core(a, xa, XR, [(ACC, 'v', WV, False)])
    pack_store(a, ACC, vo, S_OUT)
    a.label(end); a('s_endpgm')
    return a.lines

def rb_body(a, npart, xin, xin_rm, part, pstride, segstride, xout, xout_rm, xn, ldf='', stf='', ready=None, ldsoff=0, vb=0, xwait=None, dual=None):
    L, L16 = 1, 2; af, ar, t0, t1, t2, t3, sm = range(3+vb, 10+vb); la = 100+vb
    X = 12+vb; F = 20+vb; P = 36+vb
    a(f'v_lshrrev_b32 v{t0}, 3, v{L}'); a(f'v_and_b32 v{t1}, 7, v{L}')
    a(f'v_lshlrev_b32 v{af}, 9, v{t0}'); a(f'v_lshl_add_u32 v{af}, v{t1}, 4, v{af}')
    a(f's_lshl_b32 s{S_T}, s{S_W}, 13'); a(f's_lshl_b32 s{S_T2}, s{S_B}, 7'); a(f's_add_u32 s{S_T}, s{S_T}, s{S_T2}'); a(f's_add_u32 s{S_T}, s{S_T}, 2048')
    a(f'v_add_u32 v{af}, s{S_T}, v{af}')
    a(f'v_lshlrev_b32 v{ar}, 10, v{t1}'); a(f'v_lshl_add_u32 v{ar}, v{t0}, 4, v{ar}')
    a(f's_lshl_b32 s{S_T}, s{S_A}, 15'); a(f's_lshl_b32 s{S_T2}, s{S_B}, 13'); a(f's_add_u32 s{S_T}, s{S_T}, s{S_T2}'); a(f's_lshl_b32 s{S_T2}, s{S_W}, 8'); a(f's_add_u32 s{S_T}, s{S_T}, s{S_T2}')
    a(f'v_add_u32 v{ar}, s{S_T}, v{ar}')
    a(f'v_lshlrev_b32 v{la}, 4, v{t1}')
    if ldsoff: a(f'v_add_u32 v{la}, {ldsoff}, v{la}')
    a(f's_lshl_b32 s{S_T3}, s{S_A}, 15')
    if ready: ready()
    if xin_rm:
        a(f's_load_dwordx2 s[{S_IN}:{S_IN+1}], s[0:1], {xin}'); a('s_waitcnt lgkmcnt(0)')
        for i in range(2): a(f'global_load_dwordx4 {vr(X+4*i,4)}, v{ar}, s[{S_IN}:{S_IN+1}] offset:{128*i}')
    else:
        a(f's_add_u32 s{S_T}, s{S_T3}, {xin}'); add64(a, S_IN, S_WS, f's{S_T}')
        for i in range(2): a(f'global_load_dwordx4 {vr(X+4*i,4)}, v{af}, s[{S_IN}:{S_IN+1}] offset:{4096*i-2048} {ldf}')
    if npart:
        a(f's_mul_i32 s{S_T}, s{S_A}, {segstride}'); a(f's_add_u32 s{S_T}, s{S_T}, {part}'); add64(a, S_P, S_WS, f's{S_T}')
        for p in range(npart):
            for i in range(2): a(f'global_load_dwordx4 {vr(P+8*p+4*i,4)}, v{af}, s[{S_P}:{S_P+1}] offset:{4096*i-2048} {ldf}')
            if p + 1 < npart: add64(a, S_P, S_P, pstride)
        a(f's_mov_b32 s{S_M}, 0xffff0000'); a(f'v_mov_b32 v{t2}, 0x3f80'); a(f'v_mov_b32 v{t3}, 0x3f800000')
        for p in range(npart):
            a(f's_waitcnt vmcnt({2*(npart-1-p)})')
            for d in range(8):
                r = P+8*p+d
                if p == 0:
                    a(f'v_lshlrev_b32 v{F+2*d}, 16, v{r}'); a(f'v_and_b32 v{F+2*d+1}, s{S_M}, v{r}')
                else:
                    a(f'v_dot2c_f32_bf16 v{F+2*d}, v{r}, v{t2}'); a(f'v_dot2c_f32_bf16 v{F+2*d+1}, v{r}, v{t3}')
        a('s_nop 2')
        for d in range(8):
            if npart > 1:
                a(f'v_cvt_pk_bf16_f32 v{t1}, v{F+2*d}, v{F+2*d+1}')
                a(f'v_lshlrev_b32 v{F+2*d}, 16, v{t1}'); a(f'v_and_b32 v{F+2*d+1}, s{S_M}, v{t1}')
            a(f'v_lshlrev_b32 v{t0}, 16, v{X+d}'); a(f'v_and_b32 v{t1}, s{S_M}, v{X+d}')
            a(f'v_add_f32 v{t0}, v{t0}, v{F+2*d}'); a(f'v_add_f32 v{t1}, v{t1}, v{F+2*d+1}')
            a(f'v_cvt_pk_bf16_f32 v{X+d}, v{t0}, v{t1}')
    else:
        a(f's_mov_b32 s{S_M}, 0xffff0000')
        if xwait: xwait()
        else: a('s_waitcnt vmcnt(0)')
    def two(r):
        def em(f):
            for i in range(2): a(f'global_store_dwordx4 v{af}, {vr(r+4*i,4)}, s[{S_OUT}:{S_OUT+1}] offset:{4096*i-2048} {f}')
        if dual: dual(em)
        else: em(stf)
    def store_x():
        if xout is None: return
        if xout_rm:
            a(f's_load_dwordx2 s[{S_OUT}:{S_OUT+1}], s[0:1], {xout}'); a('s_waitcnt lgkmcnt(0)')
            for i in range(2): a(f'global_store_dwordx4 v{ar}, {vr(X+4*i,4)}, s[{S_OUT}:{S_OUT+1}] offset:{128*i}')
        else:
            a(f's_add_u32 s{S_T}, s{S_T3}, {xout}'); add64(a, S_OUT, S_WS, f's{S_T}')
            two(X)
    if xn is None:
        store_x(); return
    for d in range(8):
        a(f'v_lshlrev_b32 v{F+2*d}, 16, v{X+d}'); a(f'v_and_b32 v{F+2*d+1}, s{S_M}, v{X+d}')
    def rbf(r):
        a(f'v_cvt_pk_bf16_f32 v{r}, v{r}, v{r}'); a(f'v_and_b32 v{r}, s{S_M}, v{r}')
    a(f'v_add_f32 v{t3}, v{F}, v{F+1}'); a(f'v_mul_f32 v{sm}, v{F}, v{F}'); a(f'v_fmac_f32 v{sm}, v{F+1}, v{F+1}')
    for i in range(2, 16):
        a(f'v_add_f32 v{t3}, v{t3}, v{F+i}'); a(f'v_fmac_f32 v{sm}, v{F+i}, v{F+i}')
    for x in (t3, sm): a(f'v_add_f32_dpp v{x}, v{x}, v{x} row_ror:8 row_mask:0xf bank_mask:0xf')
    for sw in ('16', '32'):
        a(f'v_mov_b32 v{t0}, v{t3}'); a(f'v_mov_b32 v{t1}, v{sm}')
        a(f'v_permlane{sw}_swap_b32 v{t3}, v{t0}'); a(f'v_permlane{sw}_swap_b32 v{sm}, v{t1}')
        a(f'v_add_f32 v{t3}, v{t3}, v{t0}'); a(f'v_add_f32 v{sm}, v{sm}, v{t1}')
    a(f's_lshl_b32 s{S_T}, s{S_W}, 2'); a(f'v_add_u32 v{t0}, s{S_T}, v{la}')
    a(f'ds_write2_b32 v{t0}, v{t3}, v{sm} offset0:0 offset1:32'); a('s_waitcnt lgkmcnt(0)'); a('s_barrier')
    a(f'ds_read_b128 {vr(P,4)}, v{la}'); a(f'ds_read_b128 {vr(P+4,4)}, v{la} offset:128')
    store_x()
    a('s_waitcnt lgkmcnt(0)')
    for x, b in ((t3, P), (sm, P+4)):
        a(f'v_add_f32 v{b}, v{b}, v{b+1}'); a(f'v_add_f32 v{b+2}, v{b+2}, v{b+3}'); a(f'v_add_f32 v{x}, v{b}, v{b+2}')
        a(f'v_mul_f32 v{x}, {f2u(1/512):#x}, v{x}')
    a(f'v_fma_f32 v{sm}, -v{t3}, v{t3}, v{sm}'); a(f'v_max_f32 v{sm}, 0, v{sm}')
    rbf(sm); a(f'v_add_f32 v{sm}, {f2u(1e-5):#x}, v{sm}'); rbf(sm)
    a(f'v_sqrt_f32 v{sm}, v{sm}'); rbf(sm); a(f'v_rcp_f32 v{sm}, v{sm}')
    rbf(t3)
    for d in range(8):
        a(f'v_sub_f32 v{t0}, v{F+2*d}, v{t3}'); a(f'v_sub_f32 v{t1}, v{F+2*d+1}, v{t3}')
        a(f'v_cvt_pk_bf16_f32 v{t1}, v{t0}, v{t1}')
        a(f'v_lshlrev_b32 v{t0}, 16, v{t1}'); a(f'v_and_b32 v{t1}, s{S_M}, v{t1}')
        a(f'v_mul_f32 v{t0}, v{t0}, v{sm}'); a(f'v_mul_f32 v{t1}, v{t1}, v{sm}')
        a(f'v_cvt_pk_bf16_f32 v{P+d}, v{t0}, v{t1}')
    a(f's_add_u32 s{S_T}, s{S_T3}, {xn}'); add64(a, S_OUT, S_WS, f's{S_T}')
    two(P)

def rb_kernel(kind, half):
    a = Asm(); a._lbl = 4000 + 100*half + 10*kind
    H = W.H[half]
    end = a.newlabel('Lr_end')
    a(f's_cmp_ge_u32 s2, 256'); a(f's_cbranch_scc1 {end}')
    common_prologue(a, 1, 2)
    a(f's_lshr_b32 s{S_A}, s2, 2'); a(f's_and_b32 s{S_B}, s2, 3')
    xprev = W.X0 if half == 0 else W.H[0].X2
    if kind == 0: rb_body(a, 0, KA_X, True, 0, 0, 0, W.X0, False, H.XNA)
    elif kind == 1: rb_body(a, 1, xprev, False, H.YA, 0, 32768, H.X1, False, H.XNB)
    elif half == 0: rb_body(a, 8, H.X1, False, H.PT, 32768, 8*32768, H.X2, False, W.H[1].XNA)
    else: rb_body(a, 8, H.X1, False, H.PT, 32768, 8*32768, KA_OUT, True, None)
    a.label(end); a('s_endpgm')
    return a.lines

def att_kernel(half, nwg=256):
    a = Asm(); a._lbl = 5000 + 100*half
    H = W.H[half]
    L, L16, t0, t1, t2, ak, av, idx, lw, mx = range(1, 11)
    Q = 12; QN = 16; K0 = 20; C = 24; O = 40; D = [56, 72, 88]; KF = 104
    MG = 168
    end = a.newlabel('La_end')
    a(f's_cmp_ge_u32 s2, {nwg}'); a(f's_cbranch_scc1 {end}')
    common_prologue(a, L, L16)
    npg = nwg // 32
    a(f's_and_b32 s{S_A}, s2, 31'); a(f's_lshr_b32 s{S_B}, s2, 5')
    pi_of(a, t0, L, t1)
    a(f'v_and_b32 v{t1}, 32, v{L}'); a(f'v_add_u32 v{ak}, v{t0}, v{t1}'); a(f'v_lshlrev_b32 v{ak}, 4, v{ak}')
    a(f'v_and_b32 v{t0}, 15, v{t0}'); a(f's_and_b32 s{S_T}, s{S_A}, 1'); a(f's_lshl_b32 s{S_T}, s{S_T}, 4'); a(f'v_add_u32 v{t0}, s{S_T}, v{t0}')
    vpos16(a, av, t0, L, t1)
    a(f'v_mov_b32 v{idx}, 0xdddd')
    a(f's_mul_i32 s{S_T}, s{S_W}, 3072'); a(f'v_add_u32 v{lw}, s{S_T}, v{L16}')
    a(f's_lshl_b32 s{S_T}, s{S_A}, 10'); a(f's_lshl_b32 s{S_T2}, s{S_B}, 15'); a(f's_add_u32 s{S_T2}, s{S_T2}, s{S_T}')
    a(f's_add_u32 s{S_T3}, s{S_T2}, {H.QA}'); add64(a, S_IN, S_WS, f's{S_T3}')
    a(f's_add_u32 s{S_T3}, s{S_T2}, {H.OA}'); add64(a, S_OUT, S_WS, f's{S_T3}')
    a(f'global_load_dwordx4 {vr(QN,4)}, v{L16}, s[{S_IN}:{S_IN+1}]')
    a(f's_add_u32 s{S_K0}, s{S_T}, {H.KA}')
    a(f'buffer_load_dwordx4 {vr(K0,4)}, v{ak}, s[{S_WSRD}:{S_WSRD+3}], s{S_K0} offen')
    a(f's_lshl_b32 s{S_T2}, s{S_W}, 19'); a(f's_add_u32 s{S_K0}, s{S_K0}, s{S_T2}')
    a(f's_lshr_b32 s{S_K1}, s{S_A}, 1'); a(f's_lshl_b32 s{S_K1}, s{S_K1}, 11'); a(f's_add_u32 s{S_K1}, s{S_K1}, s{S_T2}'); a(f's_add_u32 s{S_K1}, s{S_K1}, {H.VA}')
    a(f'v_mov_b32 v{t0}, 0x3f803f80')
    for i in range(128): a(f'v_accvgpr_write_b32 a{i}, v{t0}')
    a(f's_mov_b32 s{S_M}, 0x0000ffff'); a(f's_mov_b32 s{S_M+1}, 0x0000ffff')
    for t in range(16):
        a(f's_add_u32 s{S_T}, s{S_K0}, {t*32768}')
        a(f'buffer_load_dwordx4 {vr(KF+4*t,4)}, v{ak}, s[{S_WSRD}:{S_WSRD+3}], s{S_T} offen')
        a(f's_add_u32 s{S_T}, s{S_K1}, {t*32768}')
        a(f's_mov_b64 exec, s[{S_M}:{S_M+1}]')
        for b in range(2): a(f'buffer_load_dwordx4 {vr(8*t+4*b,4,"a")}, v{av}, s[{S_WSRD}:{S_WSRD+3}], s{S_T} offen offset:{1024*b}')
        a('s_mov_b64 exec, -1')
    a(f's_mov_b32 s{S_BUF}, 0'); a(f's_mov_b32 s{S_CNT}, 0')
    lp = a.newlabel('La_loop'); run = a.newlabel('La_run'); slow = a.newlabel('La_slow'); nom = a.newlabel('La_nom'); noq = a.newlabel('La_noq')
    def rowmax(src, first):
        if first: a(f'v_max3_f32 v{mx}, v{src}, v{src+1}, v{src+2}'); rest = list(range(3, 16))
        else: rest = list(range(16))
        while len(rest) >= 2:
            a(f'v_max3_f32 v{mx}, v{mx}, v{src+rest[0]}, v{src+rest[1]}'); rest = rest[2:]
        if rest: a(f'v_max_f32 v{mx}, v{mx}, v{src+rest[0]}')
    def halfmax():
        a(f'v_mov_b32 v{t0}, v{mx}'); a(f'v_permlane32_swap_b32 v{mx}, v{t0}'); a(f'v_max_f32 v{mx}, v{mx}, v{t0}')
    a.label(lp)
    a('s_waitcnt vmcnt(0)')
    for i in range(4): a(f'v_mov_b32 v{Q+i}, v{QN+i}')
    a(f's_add_u32 s{S_B}, s{S_B}, {npg}'); add64(a, S_IN, S_IN, npg*32768)
    a(f's_cmp_ge_u32 s{S_B}, 64'); a(f's_cbranch_scc1 {noq}')
    a(f'global_load_dwordx4 {vr(QN,4)}, v{L16}, s[{S_IN}:{S_IN+1}]')
    a.label(noq)
    a(mf(D[0], vr(K0,4), vr(Q,4), 0))
    rowmax(D[0], True); halfmax()
    a(f's_mov_b32 s{S_XO}, 0')
    a.label(run)
    for i in range(16): a(f'v_sub_f32 v{C+i}, 0, v{mx}')
    for i in range(16): a(f'v_mov_b32 v{O+i}, 0')
    a(mf(D[0], vr(KF,4), vr(Q,4), vr(C,16)))
    a(mf(D[1], vr(KF+4,4), vr(Q,4), vr(C,16)))
    def pv(t, b): a(f'v_smfmac_f32_32x32x32_bf16 {vr(O,16)}, {vr(8*t+4*b,4,"a")}, {vr(D[t%3]+8*b,8)}, v{idx}')
    for t in range(16):
        d = D[t % 3]
        for i in range(16):
            a(f'v_exp_f32 v{d+i}, v{d+i}')
            if i == 2 and t > 0: pv(t-1, 1)
            if i == 6 and t + 2 < 16: a(mf(D[(t+2)%3], vr(KF+4*(t+2),4), vr(Q,4), vr(C,16)))
            if i == 11: pv(t, 0)
    pv(15, 1)
    a(f'v_add_u32 v{t1}, s{S_BUF}, v{lw}')
    for j in range(3): a(f'ds_write_b128 v{t1}, {vr(O+4*j,4)} offset:{1024*j}')
    a('s_waitcnt lgkmcnt(0)'); a('s_barrier')
    a(f'v_add_u32 v{t1}, s{S_BUF}, v{L16}')
    for w in range(4): a(f'ds_read_b32 v{MG+w}, v{t1} offset:{3072*w+2048}')
    a('s_waitcnt lgkmcnt(0)')
    a(f'v_add_f32 v{MG}, v{MG}, v{MG+1}'); a(f'v_add_f32 v{MG+2}, v{MG+2}, v{MG+3}'); a(f'v_add_f32 v{t2}, v{MG}, v{MG+2}')
    a(f's_xor_b32 s{S_BUF}, s{S_BUF}, 16384')
    a(f'v_cmp_nge_f32 vcc, {f2u(2.0**90):#x}, v{t2}')
    a(f's_cbranch_vccnz {slow}')
    fin = a.newlabel('La_fin'); a.label(fin)
    a(f's_and_b32 s{S_T}, s{S_CNT}, 3'); a(f's_add_u32 s{S_CNT}, s{S_CNT}, 1')
    a(f's_cmp_lg_u32 s{S_T}, s{S_W}'); a(f's_cbranch_scc1 {nom}')
    for w in range(4):
        for j in range(2): a(f'ds_read_b128 {vr(MG+8*w+4*j,4)}, v{t1} offset:{3072*w+1024*j}')
    a(f'v_rcp_f32 v{t2}, v{t2}')
    a('s_waitcnt lgkmcnt(0)')
    for i in range(8):
        a(f'v_add_f32 v{MG+i}, v{MG+i}, v{MG+8+i}'); a(f'v_add_f32 v{MG+16+i}, v{MG+16+i}, v{MG+24+i}')
        a(f'v_add_f32 v{MG+i}, v{MG+i}, v{MG+16+i}'); a(f'v_mul_f32 v{MG+i}, v{MG+i}, v{t2}')
    for i in range(4): a(f'v_cvt_pk_bf16_f32 v{MG+i}, v{MG+2*i}, v{MG+2*i+1}')
    a(f'global_store_dwordx4 v{L16}, {vr(MG,4)}, s[{S_OUT}:{S_OUT+1}]')
    a.label(nom)
    add64(a, S_OUT, S_OUT, npg*32768)
    a(f's_cmp_lt_u32 s{S_B}, 64'); a(f's_cbranch_scc1 {lp}')
    a(f's_branch {end}')
    a.label(slow)
    a(f's_cmp_lg_u32 s{S_XO}, 0'); a(f's_cbranch_scc1 {fin}')
    a(f's_mov_b32 s{S_XO}, 1')
    for t in range(16):
        a(mf(D[t%2], vr(KF+4*t,4), vr(Q,4), 0))
        rowmax(D[t%2], t == 0)
    halfmax()
    a(f'ds_write_b32 v{lw}, v{mx} offset:32768'); a('s_waitcnt lgkmcnt(0)'); a('s_barrier')
    for w in range(4): a(f'ds_read_b32 v{MG+w}, v{L16} offset:{32768+3072*w}')
    a('s_waitcnt lgkmcnt(0)')
    a(f'v_max3_f32 v{mx}, v{MG}, v{MG+1}, v{MG+2}'); a(f'v_max_f32 v{mx}, v{mx}, v{MG+3}')
    a(f's_branch {run}')
    a.label(end); a('s_endpgm')
    return a.lines

def tb_kernel(half, nwg=256):
    a = Asm(); a._lbl = 6000 + 100*half
    H = W.H[half]
    L, L16, t0, t1, t2, akm, av, avm, vo, xw, mx = range(1, 12)
    XR = 12; CM = 28; SX = 44; SM = 60; Q = 76; K = 108; KM = 140; V = 172; VM = 204; P = 212; PM = 220; ACC = 224
    OT = Q
    end = a.newlabel('Lt_end')
    a(f's_cmp_ge_u32 s2, {nwg}'); a(f's_cbranch_scc1 {end}')
    common_prologue(a, L, L16)
    ngr = nwg // 32
    a(f's_and_b32 s{S_A}, s2, 31'); a(f's_lshr_b32 s{S_B}, s2, 5')
    a(f's_lshr_b32 s{S_T}, s{S_A}, 2'); a(f's_lshl_b32 s{S_T}, s{S_T}, 19'); a(f's_and_b32 s{S_T2}, s{S_A}, 3'); a(f's_lshl_b32 s{S_T2}, s{S_T2}, 8')
    a(f's_add_u32 s{S_OFF}, s{S_T}, s{S_T2}')
    load_wslices(a, [(KA_WO, 4*MB, 0, 'a', 0)], 1024, L, t0, t1, t2)
    a(f'v_and_b32 v{t0}, 7, v{L}'); a(f'v_lshlrev_b32 v{akm}, 4, v{t0}'); a(f'v_lshrrev_b32 v{t0}, 5, v{L}'); a(f'v_lshl_add_u32 v{akm}, v{t0}, 7, v{akm}')
    a(f'v_add_u32 v{akm}, {HB_KM}, v{akm}')
    pi_of(a, t0, L, t1); vpos16(a, av, t0, L, t1); a(f'v_add_u32 v{av}, {HB_V}, v{av}')
    a(f'v_lshlrev_b32 v{avm}, 2, v{t0}'); a(f'v_lshrrev_b32 v{t1}, 5, v{L}'); a(f'v_lshl_add_u32 v{avm}, v{t1}, 8, v{avm}'); a(f'v_add_u32 v{avm}, {HB_VM}, v{avm}')
    a(f's_lshl_b32 s{S_T}, s{S_W}, 11'); a(f'v_add_u32 v{vo}, s{S_T}, v{L16}')
    a(f's_lshl_b32 s{S_T}, s{S_W}, 13'); a(f'v_add_u32 v{xw}, s{S_T}, v{L16}')
    a(f'v_and_b32 v{t0}, 31, v{L}'); a(f'v_lshrrev_b32 v{t1}, 5, v{L}'); a(f'v_lshlrev_b32 v{t1}, 2, v{t1}'); a(f'v_sub_u32 v{t0}, v{t0}, v{t1}')
    a(f'v_mov_b32 v{t1}, {f2u(-1e30):#x}')
    for i in range(16):
        a(f'v_cmp_le_i32 vcc, {8*(i>>2)+(i&3)}, v{t0}'); a(f'v_cndmask_b32 v{CM+i}, v{t1}, 0, vcc')
    a(f's_and_b32 s{S_T}, s{S_A}, 28'); a(f's_add_u32 s{S_T}, s{S_T}, s{S_W}'); a(f's_lshl_b32 s{S_T}, s{S_T}, 21')
    a(f's_lshl_b32 s{S_T2}, s{S_B}, 15'); a(f's_add_u32 s{S_XO}, s{S_T}, s{S_T2}'); a(f's_add_u32 s{S_XO}, s{S_XO}, {H.HB}')
    a(f's_lshl_b32 s{S_T}, s{S_B}, 18'); a(f's_lshl_b32 s{S_T2}, s{S_A}, 13'); a(f's_add_u32 s{S_T}, s{S_T}, s{S_T2}'); a(f's_add_u32 s{S_T}, s{S_T}, {H.PT}')
    add64(a, S_OUT, S_WS, f's{S_T}')
    a(f's_mov_b32 s{S_M}, {f2u(math.log2(math.e)/math.sqrt(128.0)):#x}')
    lp = a.newlabel('Lt_loop')
    a.label(lp)
    def bl(n, dst, va, so, off): a(f'buffer_load_dword{n} {vr(dst, 4 if n else 1)}, v{va}, s[{S_WSRD}:{S_WSRD+3}], s{so} offen offset:{off}')
    a(f's_add_u32 s{S_T}, s{S_XO}, 4096'); a(f's_add_u32 s{S_T2}, s{S_XO}, {HB_Q}'); a(f's_add_u32 s{S_T3}, s{S_XO}, {HB_Q+4096}')
    for kb in range(8):
        bl('x4', K+4*kb, L16, S_XO if kb < 4 else S_T, (kb%4)*1024)
        bl('x4', Q+4*kb, L16, S_T2 if kb < 4 else S_T3, (kb%4)*1024)
    for kb in range(8): bl('x4', KM+4*kb, akm, S_XO, kb*256)
    for f in range(8): bl('x4', V+4*f, av, S_XO if f < 4 else S_T, (f%4)*1024)
    for t in range(4):
        for e in range(2): bl('', VM+2*t+e, avm, S_XO, t*512 + e*128)
    for kb in range(8):
        a(f's_waitcnt vmcnt({24 + 14 - 2*kb})')
        a(mf(SX, vr(K+4*kb,4), vr(Q+4*kb,4), vr(SX,16) if kb else vr(CM,16)))
    a('s_waitcnt vmcnt(16)')
    for kb in range(8): a(mf(SM, vr(KM+4*kb,4), vr(Q+4*kb,4), vr(SM,16) if kb else 0))
    E = [SX+i for i in range(16)] + [SM+i for i in range(4)]
    a(f'v_max3_f32 v{mx}, v{E[0]}, v{E[1]}, v{E[2]}')
    for i in range(3, 19, 2): a(f'v_max3_f32 v{mx}, v{mx}, v{E[i]}, v{E[i+1]}')
    a(f'v_max_f32 v{mx}, v{mx}, v{E[19]}')
    a(f'v_mov_b32 v{t0}, v{mx}'); a(f'v_permlane32_swap_b32 v{mx}, v{t0}'); a(f'v_max_f32 v{mx}, v{mx}, v{t0}')
    a(f'v_mul_f32 v{mx}, s{S_M}, v{mx}')
    for e in E: a(f'v_fma_f32 v{e}, v{e}, s{S_M}, -v{mx}')
    for e in E: a(f'v_exp_f32 v{e}, v{e}')
    a(f'v_add_f32 v{t1}, v{E[0]}, v{E[1]}')
    for e in E[2:]: a(f'v_add_f32 v{t1}, v{t1}, v{e}')
    a(f'v_mov_b32 v{t0}, v{t1}'); a(f'v_permlane32_swap_b32 v{t1}, v{t0}'); a(f'v_add_f32 v{t1}, v{t1}, v{t0}')
    a(f'v_rcp_f32 v{t1}, v{t1}')
    for e in E: a(f'v_mul_f32 v{e}, v{e}, v{t1}')
    for i in range(8): a(f'v_cvt_pk_bf16_f32 v{P+i}, v{SX+2*i}, v{SX+2*i+1}')
    for i in range(2): a(f'v_cvt_pk_bf16_f32 v{PM+i}, v{SM+2*i}, v{SM+2*i+1}')
    a('s_waitcnt vmcnt(0)')
    for t in range(4):
        o = OT+16*t
        a(f'v_mfma_f32_32x32x8_bf16 {vr(o,16)}, {vr(VM+2*t,2)}, {vr(PM,2)}, 0')
        for j in range(2): a(mf(o, vr(V+8*t+4*j,4), vr(P+4*j,4), vr(o,16)))
    a('s_barrier')
    for t in range(4):
        for j in range(2):
            o = OT+16*t+8*j
            for i in range(4): a(f'v_cvt_pk_bf16_f32 v{o+i}, v{o+2*i}, v{o+2*i+1}')
            a(f'ds_write_b128 v{xw}, {vr(o,4)} offset:{(2*t+j)*1024}')
    a('s_waitcnt lgkmcnt(0)'); a('s_barrier')
    gemm_core(a, L16, XR, [(ACC, 'a', 0, False)])
    pack_store(a, ACC, vo, S_OUT)
    add64(a, S_OUT, S_OUT, ngr*8*32768); a(f's_add_u32 s{S_XO}, s{S_XO}, {ngr*32768}')
    a(f's_add_u32 s{S_B}, s{S_B}, {ngr}'); a(f's_cmp_lt_u32 s{S_B}, 64'); a(f's_cbranch_scc1 {lp}')
    a.label(end); a('s_endpgm')
    return a.lines
```

```python
from asmlib import *
from layout import *
import math
import chain2 as C
from work import *

S_DBG = 44; S_SLOT = 36; S_TK = 37; S_SPIN = 38; S_PF = 39; S_FO = 40; S_N = 41; S_X = 42; S_SO = 43; S_SV = 46; S_PD = 47; S_LOC = 50
L, L16 = 1, 2
VZ = 10; VF = 11
SPIN_MAX = 0x60000

class Mega:
    def __init__(self, stamps=False, chain_kw={}):
        self.a = Asm(); self.stamps = stamps; self.chain_kw = chain_kw
        self.end = 'Lm_end'; self.TO = 128 if stamps == 2 else 0
        self.tbsleep = chain_kw.pop('tbsleep', 8); self.wsleep = chain_kw.pop('wsleep', 2); self.wrd = chain_kw.pop('wrd', 0); self.ahead = chain_kw.pop('ahead', 0); self.fake = chain_kw.pop('fake', None); self.ct = chain_kw.pop('ct', 0); self.loc = chain_kw.pop('loc', 0); self.lazy = chain_kw.pop('lazy', 0); self.pfb = chain_kw.pop('pfb', 0); self.kvpos = chain_kw.pop('kvpos', 20); self.perm = chain_kw.pop('perm', 0x65423170)
    def stamp(self, k, hs=None):
        if not self.stamps: return
        a = self.a; l = a.newlabel('Lst')
        if self.stamps == 2:
            kk = self.dmap.get((self.role, k))
            if kk is None: return
            a(f's_cmp_lg_u32 s{S_W}, 0'); a(f's_cbranch_scc1 {l}')
            a('s_memrealtime s[96:97]'); a(f's_load_dwordx2 s[100:101], s[0:1], {KA_DBG}'); a('s_waitcnt lgkmcnt(0)'); a('s_sub_u32 s96, s96, s99')
            a(f's_mov_b32 s98, {4*kk}')
            if hs is not None: a(f's_mul_i32 s97, s{hs}, 12'); a('s_add_u32 s98, s98, s97')
            a('s_mov_b64 exec, 1'); a(f'v_mov_b32 v{self.sv}, s96'); a(f'v_mov_b32 v{self.sv+1}, s98')
            a(f'global_atomic_umax v{self.sv+1}, v{self.sv}, s[100:101] sc1'); a('s_waitcnt vmcnt(0)'); a('s_mov_b64 exec, -1')
            a.label(l); return
        a(f's_cmp_lg_u32 s{S_W}, 0'); a(f's_cbranch_scc1 {l}')
        a('s_memrealtime s[96:97]'); a(f's_lshl_b32 s98, s99, 7'); a(f's_add_u32 s98, s98, {STAMP_OFF + 4*k}'); a('s_waitcnt lgkmcnt(0)')
        if hs is not None: a(f's_lshl_b32 s97, s{hs}, 5'); a('s_add_u32 s98, s98, s97')
        a('s_mov_b64 exec, 1'); a(f'v_writelane_b32 v{self.sv}, s96, 0'); a(f'v_writelane_b32 v{self.sv+1}, s98, 0')
        a(f'v_mov_b32 v{self.sv+1}, s98')
        a(f'global_store_dword v{self.sv+1}, v{self.sv}, s[{S_WS}:{S_WS+1}]'); a('s_waitcnt vmcnt(0)'); a('s_mov_b64 exec, -1')
        a.label(l)
    def mark(self, k, sgpr, val):
        if self.stamps is not True: return
        a = self.a; l = a.newlabel('Lmk')
        a(f's_cmp_lg_u32 s{sgpr}, {val}'); a(f's_cbranch_scc1 {l}')
        a('s_memrealtime s[96:97]'); a('s_waitcnt lgkmcnt(0)'); a(f's_mov_b32 s{70+k}, s96')
        a.label(l)
    def dump_marks(self):
        if self.stamps is not True: return
        a = self.a
        for k in range(16): a(f'v_mov_b32 v{16+k}, s{70+k}')
        a(f's_lshl_b32 s98, s99, 7'); a(f's_add_u32 s98, s98, {STAMP_OFF + 64}'); a('v_mov_b32 v12, s98')
        l = a.newlabel('Lmk'); a(f's_cmp_lg_u32 s{S_W}, 0'); a(f's_cbranch_scc1 {l}')
        for k in range(4): a(f'global_store_dwordx4 v12, {vr(16+4*k,4)}, s[{S_WS}:{S_WS+1}] offset:{16*k}')
        a.label(l)
    def count_wait(self, off, v, fail, st, sp):
        a = self.a; l1 = a.newlabel('Lcw'); l2 = a.newlabel('Lcw')
        a(f's_mov_b32 s{sp}, 0'); a(f'v_mov_b32 v{v+8}, 0')
        a.label(l1)
        for x in range(8): a(f'global_load_dword v{v+x}, v{v+8}, s[{S_DBG}:{S_DBG+1}] offset:{off+16*x} sc1')
        a('s_waitcnt vmcnt(0)')
        a(f'v_add3_u32 v{v+9}, v{v}, v{v+1}, v{v+2}'); a(f'v_add3_u32 v{v+9}, v{v+9}, v{v+3}, v{v+4}'); a(f'v_add3_u32 v{v+9}, v{v+9}, v{v+5}, v{v+6}'); a(f'v_add_u32 v{v+9}, v{v+9}, v{v+7}')
        a(f'v_readfirstlane_b32 s{st}, v{v+9}'); a(f's_cmp_ge_u32 s{st}, 256'); a(f's_cbranch_scc1 {l2}')
        a('s_sleep 4'); a(f's_add_u32 s{sp}, s{sp}, 1'); a(f's_cmp_lt_u32 s{sp}, {SPIN_MAX}'); a(f's_cbranch_scc1 {l1}')
        a(f's_branch {fail}')
        a.label(l2)
    def code_touch(self, v=VZ, sp=48, sh=6):
        if not self.ct: return
        a = self.a
        a(f's_getpc_b64 s[{sp}:{sp+1}]'); a(f's_lshl_b32 s{S_T}, s{S_W}, {6+sh}'); a(f'v_lshl_add_u32 v{v}, v{L}, {sh}, s{S_T}')
        a(f'global_load_dword v{v+1}, v{v}, s[{sp}:{sp+1}]')
    def local_check(self):
        a = self.a
        x = [i for i in range(8) if (self.perm >> (4*i)) & 7 == 7][0]
        self.count_wait(self.TO, 12, self.end, S_T, S_SPIN)
        a(f'v_readfirstlane_b32 s{S_T}, v{12+x}'); a(f's_cmp_ge_u32 s{S_T}, 32'); a(f's_cselect_b32 s{S_LOC}, {0 if (self.chain_kw.get("force_slow") or not self.loc) else 1}, 0')
    def dual(self, emit):
        a = self.a; l1 = a.newlabel('Ld'); l2 = a.newlabel('Ld')
        a(f's_cmp_eq_u32 s{S_LOC}, 1'); a(f's_cbranch_scc1 {l1}')
        emit('sc1'); a(f's_branch {l2}')
        a.label(l1); emit(''); a.label(l2)
    def flags_ready(self): self.count_wait(132, 12, self.end, S_T, S_SPIN)
    def flag_off(self, base, idx_sgpr, sh=2):
        self.a(f's_lshl_b32 s{S_FO}, s{idx_sgpr}, {sh}'); self.a(f's_add_u32 s{S_FO}, s{S_FO}, {base}')
    def flag_issue(self, n):
        a = self.a
        a(f'v_min_u32 v{VZ}, {n-1}, v{L}'); a(f'v_lshl_add_u32 v{VZ}, v{VZ}, 8, s{S_FO}'); a(f'global_load_dword v{VF}, v{VZ}, s[{S_WS}:{S_WS+1}] sc1')
    def wait(self, n, sleep=None, mask=None, sh=8, thr=None, keep=None, lazy=None):
        a = self.a; l1 = a.newlabel('Lw'); l2 = a.newlabel('Lw')
        a(f's_mov_b32 s{S_SPIN}, 0')
        a(f'v_min_u32 v{VZ}, {n-1}, v{L}'); a(f'v_lshl_add_u32 v{VZ}, v{VZ}, {sh}, s{S_FO}')
        a.label(l1)
        a(f'global_load_dword v{VF}, v{VZ}, s[{S_WS}:{S_WS+1}] sc1'); a('s_waitcnt vmcnt(0)')
        a(f'v_cmp_eq_u32 vcc, 0, v{VF}' if thr is None else f'v_cmp_gt_u32 vcc, {thr}, v{VF}')
        if keep: a('s_cmp_eq_u64 vcc, 0'); a(f's_cselect_b32 s{keep}, 1, 0')
        if mask is None: a(f's_cbranch_vccz {l2}')
        else: a(f's_and_b64 vcc, vcc, s[{mask}:{mask+1}]'); a(f's_cbranch_scc0 {l2}')
        a(f's_sleep {sleep or self.wsleep}')
        if lazy is not None and self.lazy:
            l3 = a.newlabel('Lw'); a(f's_cmp_ge_u32 s{lazy}, 60'); a(f's_cbranch_scc1 {l3}'); a(f's_sleep {self.lazy}'); a.label(l3)
        a(f's_add_u32 s{S_SPIN}, s{S_SPIN}, 1'); a(f's_cmp_lt_u32 s{S_SPIN}, {SPIN_MAX}'); a(f's_cbranch_scc1 {l1}')
        a(f's_branch {self.end}')
        a.label(l2)
    def set_word(self, base, line_sgpr, word_sgpr, s1=2, s2=8):
        a = self.a
        a(f's_lshl_b32 s{S_SO}, s{line_sgpr}, {s1}'); a(f's_lshl_b32 s{S_X}, s{word_sgpr}, {s2}'); a(f's_add_u32 s{S_SO}, s{S_SO}, s{S_X}'); a(f's_add_u32 s{S_SO}, s{S_SO}, {base}')
    def wsignal(self, val=None, loc=False):
        a = self.a
        a(f'v_mov_b32 v{VZ}, s{S_SO}'); a(f'v_mov_b32 v{VF}, {"s%d" % val if val else "1"}')
        st = lambda f: a(f'global_store_dword v{VZ}, v{VF}, s[{S_WS}:{S_WS+1}] {f}')
        a('s_mov_b64 exec, 1')
        if loc: self.dual(st)
        else: st('sc1')
        a('s_mov_b64 exec, -1')
    def signal_wg(self, loc=False):
        a = self.a; l = a.newlabel('Ls')
        a('s_waitcnt vmcnt(0)'); a('s_barrier'); a(f's_cmp_lg_u32 s{S_W}, 0'); a(f's_cbranch_scc1 {l}')
        self.wsignal(loc=loc); a.label(l)

    def stream(self, ngr, xsrc, inflag, nin, tiles, epilogue, nst, outflag, store, mk=None, pre=None):
        a = self.a; xa = 9; XR = 12
        lp = a.newlabel('Lg_loop'); have = a.newlabel('Lg_have'); go = a.newlabel('Lg_go'); fetch = a.newlabel('Lg_fetch'); done = a.newlabel('Lg_done')
        a(f's_lshl_b32 s{S_XO}, s{S_B}, 15'); a(f's_add_u32 s{S_XO}, s{S_XO}, {xsrc}'); a(f's_mov_b32 s{S_BUF}, {128*1024}')
        a('s_barrier')
        a.label(fetch)
        a(f's_mov_b32 s{S_PD}, 0')
        if inflag is not None:
            self.flag_off(inflag, S_B); self.wait(nin)
        if mk: self.mark(mk[0], S_B, mk[1])
        dma_x(a, L16, S_XO, S_BUF, 'sc1')
        a('s_waitcnt vmcnt(0)')
        a.label(go)
        a('s_barrier')
        if mk: self.mark(mk[0]+1, S_B, mk[1])
        if pre: pre()
        a(f'v_add_u32 v{xa}, s{S_BUF}, v{L16}')
        a(f's_add_u32 s{S_TK}, s{S_B}, {ngr}'); a(f's_xor_b32 s{S_BUF}, s{S_BUF}, {128*1024}'); a(f's_add_u32 s{S_XO}, s{S_XO}, {ngr*32768}')
        if inflag is not None:
            a(f's_min_u32 s{S_T}, s{S_TK}, 63'); self.flag_off(inflag, S_T); self.flag_issue(nin)
        def pref():
            np_ = a.newlabel('Lg_np')
            a('s_waitcnt vmcnt(0)')
            a(f'v_cmp_eq_u32 s[{S_K0}:{S_K0+1}], 0, v{VF}')
            a(f's_cmp_eq_u32 s{S_PD}, 0'); a(f's_cbranch_scc1 {np_}')
            self.wsignal(S_SV if store else None)
            a.label(np_)
        def pref2():
            sk = a.newlabel('Lg_sk')
            a(f's_mov_b32 s{S_PF}, 0')
            a(f's_cmp_ge_u32 s{S_TK}, 64'); a(f's_cbranch_scc1 {sk}')
            a(f's_cmp_lg_u64 s[{S_K0}:{S_K0+1}], 0'); a(f's_cbranch_scc1 {sk}')
            dma_x(a, L16, S_XO, S_BUF, 'sc1'); a(f's_mov_b32 s{S_PF}, 1')
            a.label(sk)
        gemm_core(a, xa, XR, tiles, {30: pref})
        epilogue(pref2)
        if mk: self.mark(mk[0]+2, S_B, mk[1])
        outflag()
        add64(a, S_OUT, S_OUT, ngr*32768)
        a(f's_mov_b32 s{S_B}, s{S_TK}')
        a(f's_cmp_eq_u32 s{S_PF}, 0'); a(f's_cbranch_scc1 {have}')
        first = a.newlabel('Lg_first')
        a(f's_cmp_lt_u32 s{S_B}, {2*ngr}'); a(f's_cbranch_scc1 {first}')
        a(f's_mov_b32 s{S_PD}, 1'); a(f's_waitcnt vmcnt({nst})'); a(f's_branch {go}')
        a.label(first)
        a('s_waitcnt vmcnt(0)'); self.wsignal(S_SV if store else None)
        if mk: self.mark(mk[0]+3, S_B, mk[1]+ngr)
        a(f's_mov_b32 s{S_PD}, 0'); a(f's_branch {go}')
        a.label(have)
        a('s_waitcnt vmcnt(0)'); self.wsignal(S_SV if store else None)
        if mk: self.mark(mk[0]+3, S_B, mk[1]+ngr)
        a(f's_cmp_lt_u32 s{S_B}, 64'); a(f's_cbranch_scc1 {fetch}')
        a('s_barrier')

    def proj_weights(self, isB, share=None, early=None, sel=(0, 1, 2)):
        a = self.a
        a(f's_lshl_b32 s{S_OFF}, s{S_A}, 8')
        if isB: mats = [(KA_WK, 4*MB, 0, 'a', 128), (KA_WV, 4*MB, 0, 'v', 128), (KA_WQ, 4*MB, 0, 'a', 0)]; stride = 8192
        else: mats = [(KA_WQKV, 1536*1024, 1024, 'a', 128), (KA_WQKV, 1536*1024, 2048, 'v', 128), (KA_WQKV, 1536*1024, 0, 'a', 0)]; stride = 3072
        load_wslices(a, [mats[i] for i in sel], stride, L, 3, 4, 5, share, early)
    def proj_run(self, half, isB, ngr, nowait=False, mode='kvq'):
        a = self.a; H = W.H[half]
        if not nowait: self.code_touch()
        t0, t1, vq, vk, vv = 3, 4, 6, 7, 8; ACC = 28
        ro = (HB_Q, HB_K, HB_V) if isB else (0, H.KA - H.QA, H.VA - H.QA)
        a(f's_lshl_b32 s{S_T}, s{S_W}, 11')
        a(f's_add_u32 s{S_T2}, s{S_T}, {ro[0]}'); a(f'v_add_u32 v{vq}, s{S_T2}, v{L16}')
        a(f's_add_u32 s{S_T2}, s{S_T}, {ro[1]}'); a(f'v_add_u32 v{vk}, s{S_T2}, v{L16}')
        pi_of(a, t0, L, t1); vpos16(a, vv, t0, L, t1)
        a(f's_add_u32 s{S_T2}, s{S_T}, {ro[2]}'); a(f'v_add_u32 v{vv}, s{S_T2}, v{vv}')
        a(f's_lshl_b32 s{S_T}, s{S_A}, {21 if isB else 13}'); a(f's_lshl_b32 s{S_T2}, s{S_B}, 15'); a(f's_add_u32 s{S_T}, s{S_T}, s{S_T2}')
        a(f's_add_u32 s{S_T}, s{S_T}, {H.HB if isB else H.QA}'); add64(a, S_OUT, S_WS, f's{S_T}')
        a(f's_mov_b32 s{S_M}, {f2u(0.25*math.log2(math.e)):#x}')
        xa = 9; XR = 12; inflag = FL(half, 'XNB' if isB else 'XNA'); mk = (0, 0 if isB else 63) if half == 1 else ((8, 0) if isB else None)
        go = a.newlabel('Lp_go'); fetch = a.newlabel('Lp_fetch'); have = a.newlabel('Lp_have')
        a(f's_lshl_b32 s{S_XO}, s{S_B}, 15'); a(f's_add_u32 s{S_XO}, s{S_XO}, {H.XNB if isB else H.XNA}'); a(f's_mov_b32 s{S_BUF}, {128*1024}')
        a(f's_mov_b32 s{S_PD}, 0')
        a('s_barrier')
        if nowait: a(f's_branch {go}')
        a.label(fetch)
        self.flag_off(inflag, S_B); self.wait(16 if isB else 4, lazy=None if isB else S_B)
        if mk: self.mark(mk[0], S_B, mk[1])
        dma_x(a, L16, S_XO, S_BUF, 'sc1')
        a('s_waitcnt vmcnt(0)')
        a.label(go)
        a('s_barrier')
        if mk: self.mark(mk[0]+1, S_B, mk[1])
        a(f'v_add_u32 v{xa}, s{S_BUF}, v{L16}')
        a(f's_add_u32 s{S_TK}, s{S_B}, {ngr}'); a(f's_xor_b32 s{S_BUF}, s{S_BUF}, {128*1024}'); a(f's_add_u32 s{S_XO}, s{S_XO}, {ngr*32768}')
        if not nowait: a(f's_min_u32 s{S_T}, s{S_TK}, 63'); self.flag_off(inflag, S_T); self.flag_issue(16 if isB else 4)
        def word():
            if isB:
                a(f's_and_b32 s{S_T}, s{S_B}, 1'); a(f's_lshl_b32 s{S_T}, s{S_T}, 2'); a(f's_add_u32 s{S_T}, s{S_T}, s{S_W}')
                self.set_word(FL(half, "HEAD"), S_A, S_T, 8, 5)
            else:
                a(f's_lshl_b32 s{S_T}, s{S_A}, 2'); a(f's_add_u32 s{S_T}, s{S_T}, s{S_W}'); self.set_word(FL(half, "QKVA"), S_T, S_B, 11, 5)
        def late():
            l = a.newlabel('Lp_q'); a(f's_cmp_eq_u32 s{S_PD}, 0'); a(f's_cbranch_scc1 {l}')
            self.wsignal(); a(f's_mov_b32 s{S_PD}, 0'); a.label(l)
        def pref():
            sk = a.newlabel('Lp_sk')
            a('s_waitcnt vmcnt(0)'); a(f'v_cmp_eq_u32 vcc, 0, v{VF}')
            if not isB: late()
            a(f's_mov_b32 s{S_PF}, 0')
            a(f's_cmp_ge_u32 s{S_TK}, 64'); a(f's_cbranch_scc1 {sk}')
            if not nowait: a(f's_cbranch_vccnz {sk}')
            dma_x(a, L16, S_XO, S_BUF, 'sc1'); a(f's_mov_b32 s{S_PF}, 1')
            a.label(sk)
        def half_store(acc, ad, j):
            for i in range(4): a(f'v_cvt_pk_bf16_f32 v{acc+8*j+i}, v{acc+8*j+2*i}, v{acc+8*j+2*i+1}')
            a(f'global_store_dwordx4 v{ad}, {vr(acc+8*j,4)}, s[{S_OUT}:{S_OUT+1}] offset:{1024*j} sc1')
        def kvsig():
            if mk: self.mark(mk[0]+2, S_B, mk[1])
            word(); a('s_waitcnt vmcnt(0)'); self.wsignal(S_TK if isB else None)
            if mk: self.mark(mk[0]+3, S_B, mk[1])
        kvs = [lambda: half_store(ACC+16, vk, 0), lambda: half_store(ACC+16, vk, 1), lambda: half_store(ACC+32, vv, 0), lambda: half_store(ACC+32, vv, 1)]
        if mode != 'q': gemm_core(a, xa, XR, [(ACC+16, 'a', 128, False), (ACC+32, 'v', 128, True)], {18: pref})
        if mode == 'kvq': gemm_core(a, xa, XR, [(ACC, 'a', 0, False)], {0: kvs[0], 1: kvs[1], 2: kvs[2], 3: kvs[3], self.kvpos: kvsig})
        if mode == 'q':
            def p0():
                sk = a.newlabel('Lp_sk'); a(f's_mov_b32 s{S_PF}, 0'); a(f's_cmp_ge_u32 s{S_TK}, 64'); a(f's_cbranch_scc1 {sk}')
                dma_x(a, L16, S_XO, S_BUF, 'sc1'); a(f's_mov_b32 s{S_PF}, 1'); a.label(sk)
            gemm_core(a, xa, XR, [(ACC, 'a', 0, False)], {0: p0, 30: lambda: (a('s_waitcnt vmcnt(0)'), late())})
        if mode == 'kv':
            for f in kvs: f()
        else: pack_store(a, ACC, vq, S_OUT, 'sc1', scale=None if isB else S_M)
        if not isB:
            if mode != 'kvq': word()
            if mode != 'kv': a(f's_add_u32 s{S_SO}, s{S_SO}, 16')
        add64(a, S_OUT, S_OUT, ngr*32768)
        a(f's_mov_b32 s{S_B}, s{S_TK}'); a(f's_mov_b32 s{S_PD}, 1')
        if mode == 'kv': a('s_waitcnt vmcnt(4)')
        a(f's_cmp_lg_u32 s{S_PF}, 0'); a(f's_cbranch_scc1 {go}')
        if not isB: a('s_waitcnt vmcnt(0)'); late()
        a(f's_cmp_lt_u32 s{S_B}, 64'); a(f's_cbranch_scc1 {fetch}')
        if isB:
            a('s_waitcnt vmcnt(0)'); a(f's_add_u32 s{S_SV}, s{S_B}, 2'); self.wsignal(S_SV)
        a('s_barrier')
    def woa_run(self, half, ngr):
        a = self.a; H = W.H[half]
        self.code_touch()
        t0, t1, sm, vo, vx, vs = 3, 4, 5, 6, 7, 8; ACC = 28; X = 44; G = 52; SP = 68; mu = 70
        a(f's_lshl_b32 s{S_T}, s{S_W}, 11'); a(f's_lshl_b32 s{S_T2}, s{S_A}, 13'); a(f's_add_u32 s{S_T}, s{S_T}, s{S_T2}'); a(f'v_add_u32 v{vo}, s{S_T}, v{L16}')
        if half == 0:
            a(f's_load_dwordx2 s[{S_P}:{S_P+1}], s[0:1], {KA_X}')
            a(f'v_and_b32 v{t0}, 31, v{L}'); a(f'v_lshlrev_b32 v{vx}, 10, v{t0}'); a(f'v_lshrrev_b32 v{t0}, 5, v{L}'); a(f'v_lshl_add_u32 v{vx}, v{t0}, 4, v{vx}')
            a(f's_lshr_b32 s{S_T}, s{S_T}, 5'); a(f'v_add_u32 v{vx}, s{S_T}, v{vx}'); a('s_waitcnt lgkmcnt(0)')
        else:
            add64(a, S_P, S_WS, W.H[0].X2); a(f'v_mov_b32 v{vx}, v{vo}')
        a(f's_lshl_b32 s{S_T2}, s{S_B}, 15'); add64(a, S_P, S_P, f's{S_T2}')
        a(f's_add_u32 s{S_T}, s{S_T2}, {H.X1}'); add64(a, S_OUT, S_WS, f's{S_T}')
        a(f'v_and_b32 v{t0}, 31, v{L}'); a(f'v_lshlrev_b32 v{vs}, 3, v{t0}'); a(f'v_lshrrev_b32 v{t0}, 5, v{L}'); a(f'v_lshl_add_u32 v{vs}, v{t0}, 11, v{vs}')
        a(f's_mov_b32 s{S_M}, 0xffff0000')
        def pre():
            for j in range(2): a(f'global_load_dwordx4 {vr(X+4*j,4)}, v{vx}, s[{S_P}:{S_P+1}] offset:{(32 if half == 0 else 1024)*j} {"" if half == 0 else "sc1"}')
            add64(a, S_P, S_P, ngr*32768)
            a(f's_lshl_b32 s{S_T}, s{S_B}, 12'); a(f's_add_u32 s{S_T}, s{S_T}, {W.ST + half*262144}'); add64(a, S_IN, S_WS, f's{S_T}')
            l = a.newlabel('Lwt'); a(f's_cmp_lg_u32 s{S_LOC}, 1'); a(f's_cbranch_scc1 {l}')
            a(f'v_lshlrev_b32 v{t0}, 6, v{L}'); a(f'global_load_dword v{t1}, v{t0}, s[{S_IN}:{S_IN+1}] sc1'); a.label(l)
        def rbf(r): a(f'v_cvt_pk_bf16_f32 v{r}, v{r}, v{r}'); a(f'v_and_b32 v{r}, s{S_M}, v{r}')
        def halves(regs):
            for x, t in zip(regs, (t0, t1)): a(f'v_mov_b32 v{t}, v{x}')
            for x, t in zip(regs, (t0, t1)): a(f'v_permlane32_swap_b32 v{x}, v{t}')
            for x, t in zip(regs, (t0, t1)): a(f'v_add_f32 v{x}, v{x}, v{t}')
        def epi(pref2):
            a(f's_lshl_b32 s{S_T}, s{S_A}, 2'); a(f's_add_u32 s{S_T}, s{S_T}, s{S_W}'); a(f's_lshl_b32 s{S_T2}, s{S_T}, 8')
            self.set_word(FL(half, "XNB"), S_B, S_T)
            for d in range(8):
                e = ACC+2*d
                a(f'v_cvt_pk_bf16_f32 v{t1}, v{e}, v{e+1}'); a(f'v_lshlrev_b32 v{e}, 16, v{X+d}'); a(f'v_and_b32 v{e+1}, s{S_M}, v{X+d}')
                a(f'v_lshlrev_b32 v{t0}, 16, v{t1}'); a(f'v_and_b32 v{t1}, s{S_M}, v{t1}')
                a(f'v_add_f32 v{e}, v{e}, v{t0}'); a(f'v_add_f32 v{e+1}, v{e+1}, v{t1}')
                a(f'v_cvt_pk_bf16_f32 v{X+d}, v{e}, v{e+1}')
                a(f'v_lshlrev_b32 v{e}, 16, v{X+d}'); a(f'v_and_b32 v{e+1}, s{S_M}, v{X+d}')
                if d == 0: a(f'v_add_f32 v{SP}, v{e}, v{e+1}'); a(f'v_mul_f32 v{SP+1}, v{e}, v{e}')
                else: a(f'v_add_f32 v{SP}, v{SP}, v{e}'); a(f'v_add_f32 v{SP}, v{SP}, v{e+1}'); a(f'v_fmac_f32 v{SP+1}, v{e}, v{e}')
                a(f'v_fmac_f32 v{SP+1}, v{e+1}, v{e+1}')
            halves((SP, SP+1))
            a(f'v_or_b32 v{SP+1}, 1, v{SP+1}'); a(f'v_add_u32 v{t0}, s{S_T2}, v{vs}')
            a('s_mov_b32 exec_hi, 0'); self.dual(lambda f: a(f'global_store_dwordx2 v{t0}, {vr(SP,2)}, s[{S_IN}:{S_IN+1}] {f}')); a('s_mov_b32 exec_hi, -1')
            a('s_waitcnt vmcnt(0)')
            l1 = a.newlabel('Lwr'); l2 = a.newlabel('Lwr')
            a(f's_mov_b32 s{S_SPIN}, 0')
            a.label(l1)
            for p in range(8): a(f'global_load_dwordx2 {vr(G+2*p,2)}, v{vs}, s[{S_IN}:{S_IN+1}] offset:{256*p} sc1')
            a('s_waitcnt vmcnt(0)')
            a(f'v_bitop3_b32 v{t0}, v{G+1}, v{G+3}, v{G+5} bitop3:0x80'); a(f'v_bitop3_b32 v{t1}, v{G+7}, v{G+9}, v{G+11} bitop3:0x80')
            a(f'v_bitop3_b32 v{t0}, v{t0}, v{G+13}, v{G+15} bitop3:0x80'); a(f'v_bitop3_b32 v{t0}, v{t0}, v{t1}, 1 bitop3:0x80')
            a(f'v_cmp_eq_u32 vcc, 0, v{t0}'); a(f's_cbranch_vccz {l2}')
            a(f's_add_u32 s{S_SPIN}, s{S_SPIN}, 1'); a(f's_cmp_lt_u32 s{S_SPIN}, {SPIN_MAX}'); a(f's_cbranch_scc1 {l1}')
            a(f's_branch {self.end}')
            a.label(l2)
            pref2()
            for j in range(2): a(f'global_store_dwordx4 v{vo}, {vr(X+4*j,4)}, s[{S_OUT}:{S_OUT+1}] offset:{1024*j} sc1')
            for st in (8, 4, 2):
                for i in range(0, st, 2): a(f'v_pk_add_f32 {vr(G+i,2)}, {vr(G+i,2)}, {vr(G+i+st,2)}')
            halves((G, G+1))
            a(f'v_mul_f32 v{mu}, {f2u(1/512):#x}, v{G}'); a(f'v_mul_f32 v{sm}, {f2u(1/512):#x}, v{G+1}')
            a(f'v_fma_f32 v{sm}, -v{mu}, v{mu}, v{sm}'); a(f'v_max_f32 v{sm}, 0, v{sm}')
            rbf(sm); a(f'v_add_f32 v{sm}, {f2u(1e-5):#x}, v{sm}'); rbf(sm)
            a(f'v_sqrt_f32 v{sm}, v{sm}'); rbf(sm); a(f'v_rcp_f32 v{sm}, v{sm}'); rbf(mu)
            add64(a, S_IN, S_OUT, H.XNB - H.X1) if H.XNB > H.X1 else (a(f's_sub_u32 s{S_IN}, s{S_OUT}, {H.X1 - H.XNB}'), a(f's_subb_u32 s{S_IN+1}, s{S_OUT+1}, 0'))
            for d in range(8):
                e = ACC+2*d
                a(f'v_sub_f32 v{t0}, v{e}, v{mu}'); a(f'v_sub_f32 v{t1}, v{e+1}, v{mu}'); a(f'v_cvt_pk_bf16_f32 v{t1}, v{t0}, v{t1}')
                a(f'v_lshlrev_b32 v{t0}, 16, v{t1}'); a(f'v_and_b32 v{t1}, s{S_M}, v{t1}')
                a(f'v_mul_f32 v{t0}, v{t0}, v{sm}'); a(f'v_mul_f32 v{t1}, v{t1}, v{sm}'); a(f'v_cvt_pk_bf16_f32 v{G+d}, v{t0}, v{t1}')
                if d % 4 == 3: a(f'global_store_dwordx4 v{vo}, {vr(G+d-3,4)}, s[{S_IN}:{S_IN+1}] offset:{1024*(d//4)} sc1')
        self.stream(ngr, H.OA, FL(half, 'OA'), 32, [(ACC, 'v', 128, False)], epi, 4, lambda: None, False, mk=(0, 0) if half == 1 else (8, 0), pre=pre)
    def rb_run(self, half, kind, ngr):
        a = self.a; H = W.H[half]
        lp = a.newlabel('Lr_loop'); a.label(lp)
        mk = (4, 0) if (kind == 1 and half == 1) else ((4, 63) if (kind == 2 and half == 0) else ((8, 0) if kind == 1 else None))
        def ready():
            self.flag_off(FL(half, 'YA' if kind == 1 else 'PT'), S_A); self.wait(16 if kind == 1 else 32, lazy=S_A)
            if mk: self.mark(mk[0], S_A, mk[1])
        xprev = KA_X if half == 0 else W.H[0].X2
        if kind == 1: rb_body(a, 1, xprev, half == 0, H.YA, 0, 32768, H.X1, False, H.XNB, 'sc1', 'sc1', ready)
        elif half == 0: rb_body(a, 8, H.X1, False, H.PT, 32768, 8*32768, H.X2, False, W.H[1].XNA, 'sc1', 'sc1', ready, dual=self.dual)
        else: rb_body(a, 8, H.X1, False, H.PT, 32768, 8*32768, KA_OUT, True, None, 'sc1', 'sc1', ready)
        if kind == 1 or half == 0:
            if mk: self.mark(mk[0]+2, S_A, mk[1])
            self.set_word(FL(half, 'XNB') if kind == 1 else FL(1, 'XNA'), S_A, S_B); self.signal_wg(True)
            if mk: self.mark(mk[0]+3, S_A, mk[1])
        a(f's_add_u32 s{S_A}, s{S_A}, {ngr}'); a(f's_cmp_lt_u32 s{S_A}, 64'); a(f's_cbranch_scc1 {lp}')

    def att_run(self, half, npg):
        a = self.a; H = W.H[half]
        self.code_touch()
        t0, t1, t2, ak, av, idx, lw = range(3, 10); mx = 204
        Q = 12; QN = 16; K0 = 20; Cc = 24; O = 40; D = [56, 72, 88]; KF = 104; MG = 168
        pi_of(a, t0, L, t1)
        a(f'v_and_b32 v{t1}, 32, v{L}'); a(f'v_add_u32 v{ak}, v{t0}, v{t1}'); a(f'v_lshlrev_b32 v{ak}, 4, v{ak}')
        a(f'v_and_b32 v{t0}, 15, v{t0}'); a(f's_and_b32 s{S_T}, s{S_A}, 1'); a(f's_lshl_b32 s{S_T}, s{S_T}, 4'); a(f'v_add_u32 v{t0}, s{S_T}, v{t0}')
        vpos16(a, av, t0, L, t1)
        a(f'v_mov_b32 v{idx}, 0xdddd')
        a(f's_mul_i32 s{S_T}, s{S_W}, 3072'); a(f'v_add_u32 v{lw}, s{S_T}, v{L16}')
        if half == 0:
            a(f'v_mov_b32 v{t0}, 0x3f803f80')
            for i in range(128): a(f'v_accvgpr_write_b32 a{i}, v{t0}')
        a(f's_lshr_b32 s{S_T}, s{S_A}, 1'); self.flag_off(FL(half, 'QKVA'), S_T, 11)
        a(f's_mov_b32 s{S_N}, 0')
        def qwait(blk):
            l = a.newlabel('La_q'); a(f's_cmp_lg_u32 s{S_N}, 0'); a(f's_cbranch_scc1 {l}')
            a(f's_lshl_b64 s[{S_P}:{S_P+1}], 1, s{blk}'); a(f's_add_u32 s{S_FO}, s{S_FO}, 16'); self.wait(64, mask=S_P, sh=5, keep=S_N); a(f's_sub_u32 s{S_FO}, s{S_FO}, 16')
            a.label(l)
        qwait(S_B); self.wait(56, sh=5)
        self.stamp(2 + 8*half)
        a(f's_lshl_b32 s{S_T}, s{S_A}, 10'); a(f's_lshl_b32 s{S_T2}, s{S_B}, 15'); a(f's_add_u32 s{S_T2}, s{S_T2}, s{S_T}')
        a(f's_add_u32 s{S_T3}, s{S_T2}, {H.QA}'); add64(a, S_IN, S_WS, f's{S_T3}')
        a(f's_add_u32 s{S_T3}, s{S_T2}, {H.OA}'); add64(a, S_OUT, S_WS, f's{S_T3}')
        a(f'global_load_dwordx4 {vr(QN,4)}, v{L16}, s[{S_IN}:{S_IN+1}] sc1')
        a(f's_add_u32 s{S_K0}, s{S_T}, {H.KA}')
        a(f'buffer_load_dwordx4 {vr(K0,4)}, v{ak}, s[{S_WSRD}:{S_WSRD+3}], s{S_K0} offen sc1')
        a(f's_lshl_b32 s{S_T2}, s{S_W}, 15'); a(f's_add_u32 s{S_K0}, s{S_K0}, s{S_T2}')
        a(f's_lshr_b32 s{S_K1}, s{S_A}, 1'); a(f's_lshl_b32 s{S_K1}, s{S_K1}, 11'); a(f's_add_u32 s{S_K1}, s{S_K1}, s{S_T2}'); a(f's_add_u32 s{S_K1}, s{S_K1}, {H.VA}')
        a(f's_mov_b32 s{S_M}, 0x0000ffff'); a(f's_mov_b32 s{S_M+1}, 0x0000ffff')
        def kv_tile(t):
            a(f's_add_u32 s{S_T}, s{S_K0}, {t*131072}')
            a(f'buffer_load_dwordx4 {vr(KF+4*t,4)}, v{ak}, s[{S_WSRD}:{S_WSRD+3}], s{S_T} offen sc1')
            a(f's_add_u32 s{S_T}, s{S_K1}, {t*131072}')
            a(f's_mov_b64 exec, s[{S_M}:{S_M+1}]')
            for b in range(2): a(f'buffer_load_dwordx4 {vr(8*t+4*b,4,"a")}, v{av}, s[{S_WSRD}:{S_WSRD+3}], s{S_T} offen offset:{1024*b} sc1')
            a('s_mov_b64 exec, -1')
        def late_tile(t):
            l = a.newlabel('La_lt'); a(f's_cmp_eq_u32 s{S_PD}, 0'); a(f's_cbranch_scc1 {l}')
            a(f's_add_u32 s{S_T}, s{S_W}, {4*t}'); a(f's_lshl_b64 s[{S_P}:{S_P+1}], 1, s{S_T}')
            self.wait(64, mask=S_P, sh=5)
            if half and t == 15: self.mark(0, S_B, 0)
            kv_tile(t); a('s_waitcnt vmcnt(0)')
            if t == 15: a(f's_mov_b32 s{S_PD}, 0')
            a.label(l)
        for t in range(14): kv_tile(t)
        a(f's_mov_b32 s{S_PD}, 1')
        a(f's_mov_b32 s{S_BUF}, 0'); a(f's_mov_b32 s{S_CNT}, 0'); a(f's_mov_b32 s{S_PF}, 0')
        a('s_barrier')
        lp = a.newlabel('La_loop'); run = a.newlabel('La_run'); slow = a.newlabel('La_slow'); nom = a.newlabel('La_nom'); noq = a.newlabel('La_noq'); out = a.newlabel('La_out')
        def rowmax(src, first):
            if first: a(f'v_max3_f32 v{mx}, v{src}, v{src+1}, v{src+2}'); rest = list(range(3, 16))
            else: rest = list(range(16))
            while len(rest) >= 2:
                a(f'v_max3_f32 v{mx}, v{mx}, v{src+rest[0]}, v{src+rest[1]}'); rest = rest[2:]
            if rest: a(f'v_max_f32 v{mx}, v{mx}, v{src+rest[0]}')
        def halfmax():
            a(f'v_mov_b32 v{t0}, v{mx}'); a(f'v_permlane32_swap_b32 v{mx}, v{t0}'); a(f'v_max_f32 v{mx}, v{mx}, v{t0}')
        def pending():
            l = a.newlabel('La_p'); a(f's_cmp_eq_u32 s{S_PF}, 0'); a(f's_cbranch_scc1 {l}')
            a('s_waitcnt vmcnt(0)'); self.wsignal(); a(f's_mov_b32 s{S_PF}, 0')
            if half: self.mark(3, S_B, 0)
            a.label(l)
        a(f's_waitcnt vmcnt({3*14})')
        self.mark(1 if half else 11, S_B, 0)
        a.label(lp)
        for i in range(4): a(f'v_mov_b32 v{Q+i}, v{QN+i}')
        a(f's_add_u32 s{S_TK}, s{S_B}, {npg}'); add64(a, S_IN, S_IN, npg*32768)
        a(mf(D[0], vr(K0,4), vr(Q,4), 0))
        rowmax(D[0], True); halfmax()
        a(f's_mov_b32 s{S_XO}, 0')
        a.label(run)
        for i in range(16): a(f'v_sub_f32 v{Cc+i}, 0, v{mx}')
        for i in range(16): a(f'v_mov_b32 v{O+i}, 0')
        a(f's_waitcnt vmcnt({3*12})')
        a(mf(D[0], vr(KF,4), vr(Q,4), vr(Cc,16)))
        a(mf(D[1], vr(KF+4,4), vr(Q,4), vr(Cc,16)))
        def pv(t, b): a(f'v_smfmac_f32_32x32x32_bf16 {vr(O,16)}, {vr(8*t+4*b,4,"a")}, {vr(D[t%3]+8*b,8)}, v{idx}')
        for t in range(16):
            d = D[t % 3]
            for i in range(16):
                a(f'v_exp_f32 v{d+i}, v{d+i}')
                if i == 2 and t > 0: pv(t-1, 1)
                if i == 6 and t + 2 >= 14 and t + 2 < 16: late_tile(t+2)
                if i == 6 and t + 2 < 14: a(f's_waitcnt vmcnt({3*(13-(t+2))})')
                if i == 6 and t + 2 < 16: a(mf(D[(t+2)%3], vr(KF+4*(t+2),4), vr(Q,4), vr(Cc,16)))
                if i == 11: pv(t, 0)
            if t == 5: pending()
            if t == 11:
                a(f's_cmp_ge_u32 s{S_TK}, 64'); a(f's_cbranch_scc1 {noq}')
                qwait(S_TK)
                a(f'global_load_dwordx4 {vr(QN,4)}, v{L16}, s[{S_IN}:{S_IN+1}] sc1')
                a.label(noq)
        pv(15, 1)
        a(f'v_add_u32 v{t1}, s{S_BUF}, v{lw}')
        for j in range(3): a(f'ds_write_b128 v{t1}, {vr(O+4*j,4)} offset:{1024*j}')
        a('s_waitcnt vmcnt(0) lgkmcnt(0)'); a('s_barrier')
        a(f'v_add_u32 v{t1}, s{S_BUF}, v{L16}')
        for w in range(4): a(f'ds_read_b32 v{MG+w}, v{t1} offset:{3072*w+2048}')
        a('s_waitcnt lgkmcnt(0)')
        a(f'v_add_f32 v{MG}, v{MG}, v{MG+1}'); a(f'v_add_f32 v{MG+2}, v{MG+2}, v{MG+3}'); a(f'v_add_f32 v{t2}, v{MG}, v{MG+2}')
        a(f's_xor_b32 s{S_BUF}, s{S_BUF}, 16384')
        a(f'v_cmp_nge_f32 vcc, {f2u(2.0**90):#x}, v{t2}')
        a(f's_cbranch_vccnz {slow}')
        fin = a.newlabel('La_fin'); a.label(fin)
        a(f's_and_b32 s{S_T}, s{S_CNT}, 3'); a(f's_add_u32 s{S_CNT}, s{S_CNT}, 1')
        a(f's_cmp_lg_u32 s{S_T}, s{S_W}'); a(f's_cbranch_scc1 {nom}')
        for w in range(4):
            for j in range(2): a(f'ds_read_b128 {vr(MG+8*w+4*j,4)}, v{t1} offset:{3072*w+1024*j}')
        a(f'v_rcp_f32 v{t2}, v{t2}')
        a('s_waitcnt lgkmcnt(0)')
        for i in range(8):
            a(f'v_add_f32 v{MG+i}, v{MG+i}, v{MG+8+i}'); a(f'v_add_f32 v{MG+16+i}, v{MG+16+i}, v{MG+24+i}')
            a(f'v_add_f32 v{MG+i}, v{MG+i}, v{MG+16+i}'); a(f'v_mul_f32 v{MG+i}, v{MG+i}, v{t2}')
        for i in range(4): a(f'v_cvt_pk_bf16_f32 v{MG+i}, v{MG+2*i}, v{MG+2*i+1}')
        a(f'global_store_dwordx4 v{L16}, {vr(MG,4)}, s[{S_OUT}:{S_OUT+1}] sc1')
        self.set_word(FL(half, 'OA'), S_B, S_A); a(f's_mov_b32 s{S_PF}, 1')
        self.mark(2 if half else 12, S_B, 0)
        a(f's_cmp_ge_u32 s{S_B}, {npg}'); a(f's_cbranch_scc1 {nom}')
        pending()
        a.label(nom)
        add64(a, S_OUT, S_OUT, npg*32768)
        a(f's_mov_b32 s{S_B}, s{S_TK}')
        a(f's_cmp_lt_u32 s{S_B}, 64'); a(f's_cbranch_scc1 {lp}')
        pending()
        a(f's_branch {out}')
        a.label(slow)
        a(f's_cmp_lg_u32 s{S_XO}, 0'); a(f's_cbranch_scc1 {fin}')
        a(f's_mov_b32 s{S_XO}, 1')
        for t in range(16):
            a(mf(D[t%2], vr(KF+4*t,4), vr(Q,4), 0))
            rowmax(D[t%2], t == 0)
        halfmax()
        a(f'ds_write_b32 v{lw}, v{mx} offset:32768'); a('s_waitcnt lgkmcnt(0)'); a('s_barrier')
        for w in range(4): a(f'ds_read_b32 v{MG+w}, v{L16} offset:{32768+3072*w}')
        a('s_waitcnt lgkmcnt(0)')
        a(f'v_max3_f32 v{mx}, v{MG}, v{MG+1}, v{MG+2}'); a(f'v_max_f32 v{mx}, v{mx}, v{MG+3}')
        a(f's_branch {run}')
        a.label(out)
        a('s_barrier')

    def tb_weights(self):
        a = self.a
        a(f's_lshr_b32 s{S_T}, s{S_A}, 2'); a(f's_lshl_b32 s{S_T}, s{S_T}, 19'); a(f's_and_b32 s{S_T2}, s{S_A}, 3'); a(f's_lshl_b32 s{S_T2}, s{S_T2}, 8')
        a(f's_add_u32 s{S_OFF}, s{S_T}, s{S_T2}')
        load_wslices(a, [(KA_WO, 4*MB, 0, 'a', 128)], 1024, L, 3, 4, 5)
    def tb_run(self, half, ngr):
        a = self.a; H = W.H[half]
        t0, t1, akm, av, avm, vo, xw = range(3, 10); mx = 240; FG = 244
        XR = 12; CM = 28; SX = 44; SM = 60; Q = 76; K = 108; KM = 140; V = 172; VM = 204; P = 212; PM = 220; ACC = 224
        OT = Q
        a(f'v_and_b32 v{t0}, 7, v{L}'); a(f'v_lshlrev_b32 v{akm}, 4, v{t0}'); a(f'v_lshrrev_b32 v{t0}, 5, v{L}'); a(f'v_lshl_add_u32 v{akm}, v{t0}, 7, v{akm}')
        a(f'v_add_u32 v{akm}, {HB_KM}, v{akm}')
        pi_of(a, t0, L, t1); vpos16(a, av, t0, L, t1); a(f'v_add_u32 v{av}, {HB_V}, v{av}')
        a(f'v_lshlrev_b32 v{avm}, 2, v{t0}'); a(f'v_lshrrev_b32 v{t1}, 5, v{L}'); a(f'v_lshl_add_u32 v{avm}, v{t1}, 8, v{avm}'); a(f'v_add_u32 v{avm}, {HB_VM}, v{avm}')
        a(f's_lshl_b32 s{S_T}, s{S_W}, 11'); a(f'v_add_u32 v{vo}, s{S_T}, v{L16}')
        a(f's_lshl_b32 s{S_T}, s{S_W}, 13'); a(f'v_add_u32 v{xw}, s{S_T}, v{L16}')
        a(f'v_and_b32 v{t0}, 31, v{L}'); a(f'v_lshrrev_b32 v{t1}, 5, v{L}'); a(f'v_lshlrev_b32 v{t1}, 2, v{t1}'); a(f'v_sub_u32 v{t0}, v{t0}, v{t1}')
        a(f'v_mov_b32 v{t1}, {f2u(-1e30):#x}')
        for i in range(16):
            a(f'v_cmp_le_i32 vcc, {8*(i>>2)+(i&3)}, v{t0}'); a(f'v_cndmask_b32 v{CM+i}, v{t1}, 0, vcc')
        a(f's_and_b32 s{S_T}, s{S_A}, 28'); a(f's_add_u32 s{S_T}, s{S_T}, s{S_W}')
        a(f's_lshl_b32 s{S_K0}, s{S_T}, 8'); a(f's_add_u32 s{S_K0}, s{S_K0}, {FL(half, "HEAD")}')
        a(f's_lshl_b32 s{S_T}, s{S_T}, 21')
        a(f's_lshl_b32 s{S_T2}, s{S_B}, 15'); a(f's_add_u32 s{S_XO}, s{S_T}, s{S_T2}'); a(f's_add_u32 s{S_XO}, s{S_XO}, {H.HB}')
        a(f's_lshl_b32 s{S_T}, s{S_B}, 18'); a(f's_lshl_b32 s{S_T2}, s{S_A}, 13'); a(f's_add_u32 s{S_T}, s{S_T}, s{S_T2}'); a(f's_add_u32 s{S_T}, s{S_T}, {H.PT}')
        add64(a, S_OUT, S_WS, f's{S_T}')
        a(f's_mov_b32 s{S_M}, {f2u(math.log2(math.e)/math.sqrt(128.0)):#x}')
        a(f's_mov_b32 s{S_N}, 0'); a(f's_mov_b32 s{S_K1}, 0')
        def bl(n, dst, va, so, off): a(f'buffer_load_dword{n} {vr(dst, 4 if n else 1)}, v{va}, s[{S_WSRD}:{S_WSRD+3}], s{so} offen offset:{off} sc1')
        def poll(which):
            l1 = a.newlabel('Lt_p'); l2 = a.newlabel('Lt_p'); l3 = a.newlabel('Lt_p')
            a(f's_mov_b32 s{S_SPIN}, 0'); a(f's_branch {l3}')
            a.label(l1)
            if which == S_N:
                a(f'v_mov_b32 v{VZ}, s{S_K0}')
                _ = [a(f'global_load_dword v{FG+i}, v{VZ}, s[{S_WS}:{S_WS+1}] offset:{32*i} sc1') for i in range(8)]; a('s_waitcnt vmcnt(0)')
                a(f'v_min3_u32 v{FG}, v{FG}, v{FG+1}, v{FG+2}'); a(f'v_min3_u32 v{FG}, v{FG}, v{FG+3}, v{FG+4}'); a(f'v_min3_u32 v{FG}, v{FG}, v{FG+5}, v{FG+6}'); a(f'v_min_u32 v{FG}, v{FG}, v{FG+7}')
            else:
                a(f's_add_u32 s{S_X}, s{S_K0}, {FL(half, "CHP") - FL(half, "HEAD")}'); a(f'v_mov_b32 v{VZ}, s{S_X}')
                a(f'global_load_dword v{FG}, v{VZ}, s[{S_WS}:{S_WS+1}] sc1'); a('s_waitcnt vmcnt(0)')
            a(f'v_readfirstlane_b32 s{which}, v{FG}')
            if which == S_N: a(f's_max_u32 s{S_N}, s{S_N}, 2'); a(f's_sub_u32 s{S_N}, s{S_N}, 2')
            a(f's_cmp_gt_u32 s{which}, s{S_B}'); a(f's_cbranch_scc1 {l2}')
            a(f's_sleep {self.tbsleep}')
            a(f's_add_u32 s{S_SPIN}, s{S_SPIN}, 1'); a(f's_cmp_ge_u32 s{S_SPIN}, {SPIN_MAX}'); a(f's_cbranch_scc1 {self.end}')
            a.label(l3)
            a(f's_cmp_gt_u32 s{which}, s{S_B}'); a(f's_cbranch_scc0 {l1}')
            a.label(l2)
        lp = a.newlabel('Lt_loop')
        a.label(lp)
        poll(S_N)
        a(f's_add_u32 s{S_T}, s{S_XO}, 4096'); a(f's_add_u32 s{S_T2}, s{S_XO}, {HB_Q}'); a(f's_add_u32 s{S_T3}, s{S_XO}, {HB_Q+4096}')
        for kb in range(8):
            bl('x4', K+4*kb, L16, S_XO if kb < 4 else S_T, (kb%4)*1024)
            bl('x4', Q+4*kb, L16, S_T2 if kb < 4 else S_T3, (kb%4)*1024)
        for f in range(8): bl('x4', V+4*f, av, S_XO if f < 4 else S_T, (f%4)*1024)
        poll(S_K1)
        if half == 0: self.mark(4, S_B, 63)
        for kb in range(8): bl('x4', KM+4*kb, akm, S_XO, kb*256)
        for t in range(4):
            for e in range(2): bl('', VM+2*t+e, avm, S_XO, t*512 + e*128)
        for kb in range(8):
            a(f's_waitcnt vmcnt({24 + 14 - 2*kb})')
            a(mf(SX, vr(K+4*kb,4), vr(Q+4*kb,4), vr(SX,16) if kb else vr(CM,16)))
        a('s_waitcnt vmcnt(8)')
        if half == 0: self.mark(5, S_B, 63)
        for kb in range(8): a(mf(SM, vr(KM+4*kb,4), vr(Q+4*kb,4), vr(SM,16) if kb else 0))
        E = [SX+i for i in range(16)] + [SM+i for i in range(4)]
        a(f'v_max3_f32 v{mx}, v{E[0]}, v{E[1]}, v{E[2]}')
        for i in range(3, 19, 2): a(f'v_max3_f32 v{mx}, v{mx}, v{E[i]}, v{E[i+1]}')
        a(f'v_max_f32 v{mx}, v{mx}, v{E[19]}')
        a(f'v_mov_b32 v{t0}, v{mx}'); a(f'v_permlane32_swap_b32 v{mx}, v{t0}'); a(f'v_max_f32 v{mx}, v{mx}, v{t0}')
        for e in E: a(f'v_sub_f32 v{e}, v{e}, v{mx}')
        for e in E: a(f'v_mul_f32 v{e}, s{S_M}, v{e}')
        for e in E: a(f'v_exp_f32 v{e}, v{e}')
        a(f'v_add_f32 v{t1}, v{E[0]}, v{E[1]}')
        for e in E[2:]: a(f'v_add_f32 v{t1}, v{t1}, v{e}')
        a(f'v_mov_b32 v{t0}, v{t1}'); a(f'v_permlane32_swap_b32 v{t1}, v{t0}'); a(f'v_add_f32 v{t1}, v{t1}, v{t0}')
        a(f'v_rcp_f32 v{t1}, v{t1}')
        for e in E: a(f'v_mul_f32 v{e}, v{e}, v{t1}')
        for i in range(8): a(f'v_cvt_pk_bf16_f32 v{P+i}, v{SX+2*i}, v{SX+2*i+1}')
        for i in range(2): a(f'v_cvt_pk_bf16_f32 v{PM+i}, v{SM+2*i}, v{SM+2*i+1}')
        a('s_waitcnt vmcnt(0)')
        for t in range(4):
            o = OT+16*t
            a(f'v_mfma_f32_32x32x8_bf16 {vr(o,16)}, {vr(VM+2*t,2)}, {vr(PM,2)}, 0')
            for j in range(2): a(mf(o, vr(V+8*t+4*j,4), vr(P+4*j,4), vr(o,16)))
        for t in range(4):
            for j in range(2):
                o = OT+16*t+8*j
                for i in range(4): a(f'v_cvt_pk_bf16_f32 v{o+i}, v{o+2*i}, v{o+2*i+1}')
                a(f'ds_write_b128 v{xw}, {vr(o,4)} offset:{(2*t+j)*1024}')
        a('s_waitcnt lgkmcnt(0)'); a('s_barrier')
        gemm_core(a, L16, XR, [(ACC, 'a', 128, False)])
        pack_store(a, ACC, vo, S_OUT, 'sc1')
        if half == 0: self.mark(6, S_B, 63)
        self.set_word(FL(half, 'PT'), S_B, S_A); self.signal_wg()
        if half == 0: self.mark(7, S_B, 63)
        add64(a, S_OUT, S_OUT, ngr*8*32768); a(f's_add_u32 s{S_XO}, s{S_XO}, {ngr*32768}')
        a(f's_add_u32 s{S_B}, s{S_B}, {ngr}'); a(f's_cmp_lt_u32 s{S_B}, 64'); a(f's_cbranch_scc1 {lp}')

    def build(self):
        a = self.a; end = self.end
        a(f's_cmp_ge_u32 s2, 256'); a(f's_cbranch_scc1 {end}')
        if self.stamps == 2: a('s_memrealtime s[96:97]')
        if self.stamps is True: a('s_memrealtime s[94:95]')
        a(f's_load_dwordx2 s[{S_DBG}:{S_DBG+1}], s[0:1], {KA_DBG}')
        common_prologue(a, L, L16)
        lw = a.newlabel('Le'); lo = a.newlabel('Le'); ls = a.newlabel('Le'); lg = a.newlabel('Le'); lz = a.newlabel('Le')
        a(f's_getreg_b32 s{S_X}, hwreg(HW_REG_XCC_ID, 0, 3)')
        if self.fake: a(self.fake.format(x=S_X))
        a(f's_lshl_b32 s{S_T}, s{S_X}, 4'); a(f'v_mov_b32 v3, s{S_T}'); a('v_mov_b32 v4, 1')
        def xwait():
            l1 = a.newlabel('Le'); l2 = a.newlabel('Le')
            a(f's_mul_i32 s{S_T}, s2, 3072'); a(f's_add_u32 s{S_T}, s{S_T}, {W.FLAGS}'); a('v_mul_u32_u24 v6, 12, v0'); a(f'v_add_u32 v6, s{S_T}, v6'); a('v_mov_b32 v8, 0'); a('v_mov_b32 v9, 0'); a('v_mov_b32 v10, 0')
            a(f'global_store_dwordx3 v6, v[8:10], s[{S_WS}:{S_WS+1}] sc1')
            a(f's_cmp_lg_u32 s{S_W}, 0'); a(f's_cbranch_scc1 {l1}')
            a('s_mov_b64 exec, 1'); a(f'global_atomic_add v5, v3, v4, s[{S_DBG}:{S_DBG+1}] offset:{self.TO} sc0 sc1'); a('s_mov_b64 exec, -1')
            a('s_waitcnt vmcnt(2)'); a(f's_branch {l2}')
            a.label(l1); a('s_waitcnt vmcnt(1)'); a.label(l2)
        a(f's_lshr_b32 s{S_A}, s2, 2'); a(f's_and_b32 s{S_B}, s2, 3')
        rb_body(a, 0, KA_X, True, 0, 0, 0, None, False, W.H[0].XNA, '', 'sc1', ldsoff=1024, vb=20, xwait=xwait)
        a(f's_cmp_lg_u32 s{S_W}, 0'); a(f's_cbranch_scc1 {lw}')
        a('s_mov_b64 exec, 1'); a('s_waitcnt vmcnt(2)')
        a(f'v_readfirstlane_b32 s{S_TK}, v5')
        a(f's_lshl_b32 s{S_SLOT}, s{S_X}, 5'); a(f's_add_u32 s{S_SLOT}, s{S_SLOT}, s{S_TK}')
        a(f's_cmp_lt_u32 s{S_TK}, 32'); a(f's_cbranch_scc1 {lg}')
        a('v_mov_b32 v3, 136'); a(f'global_atomic_add v5, v3, v4, s[{S_DBG}:{S_DBG+1}] sc0 sc1'); a('s_waitcnt vmcnt(0)')
        a(f'v_readfirstlane_b32 s{S_TK}, v5')
        self.count_wait(self.TO, 12, ls, S_T, S_SPIN)
        a.label(ls)
        for x in range(8):
            a(f'v_readfirstlane_b32 s{S_T}, v{12+x}'); a(f's_min_u32 s{S_T}, s{S_T}, 32')
            a(f's_add_u32 s{S_SLOT}, s{S_T}, s{S_TK}'); a(f's_add_u32 s{S_SLOT}, s{S_SLOT}, {32*x}')
            a(f's_sub_u32 s{S_T}, 32, s{S_T}'); a(f's_cmp_lt_u32 s{S_TK}, s{S_T}'); a(f's_cbranch_scc1 {lg}')
            a(f's_sub_u32 s{S_TK}, s{S_TK}, s{S_T}')
        a(f's_mov_b32 s{S_SLOT}, 256')
        a.label(lg)
        a(f'v_mov_b32 v3, 0'); a(f'v_mov_b32 v4, s{S_SLOT}'); a('ds_write_b32 v3, v4'); a('s_waitcnt lgkmcnt(0)')
        a('s_mov_b64 exec, -1')
        a.label(lw)
        a('s_waitcnt vmcnt(0)'); a('s_barrier')
        a(f's_cmp_eq_u32 s{S_W}, 1'); a('s_cselect_b64 exec, 1, 0')
        a(f'global_atomic_add v3, v4, s[{S_DBG}:{S_DBG+1}] offset:132 sc1')
        a('s_mov_b64 exec, -1')
        a('v_mov_b32 v3, 0'); a('ds_read_b32 v4, v3'); a('s_waitcnt lgkmcnt(0)'); a(f'v_readfirstlane_b32 s{S_SLOT}, v4'); a('s_barrier')
        a(f's_lshr_b32 s{S_T}, s{S_SLOT}, 5'); a(f's_lshl_b32 s{S_T2}, s{S_T}, 2'); a(f's_lshr_b32 s{S_T2}, {self.perm:#x}, s{S_T2}'); a(f's_and_b32 s{S_T2}, s{S_T2}, 7')
        a(f's_cmp_lt_u32 s{S_T}, 8'); a(f's_cselect_b32 s{S_T2}, s{S_T2}, 8'); a(f's_and_b32 s{S_SLOT}, s{S_SLOT}, 31'); a(f's_lshl_b32 s{S_T2}, s{S_T2}, 5'); a(f's_add_u32 s{S_SLOT}, s{S_SLOT}, s{S_T2}')
        if self.stamps: a(f's_mov_b32 s99, s{S_SLOT}')
        self.role = 'all'
        self.dmap = {('all',0):0, ('ch',1):1, ('ch',2):2, ('ch',3):3, ('ch',4):4, ('gw',1):8, ('gw',2):9, ('gw',3):10, ('pb',1):11, ('ms',12):12, ('gw',4):13, ('pb',3):14}
        if self.stamps == 2:
            a('s_and_b32 s99, s96, 0xfff00000')
        self.sv = 10
        a(f's_mov_b32 s{S_SO}, {W.STAMPS}')
        if self.stamps: _ = [a(f's_mov_b32 s{70+k}, 0') for k in range(16)]
        if self.stamps is True: a('s_mov_b32 s85, s94')
        self.stamp(0)
        Lch, Lpb, Lgw, Lms, Lpa = [a.newlabel(n) for n in ('Lchain', 'Lpb', 'Lgw', 'Lms', 'Lpa')]
        a(f's_cmp_lt_u32 s{S_SLOT}, 32'); a(f's_cbranch_scc0 Lnot_chain')
        self.jump(Lch)
        a.label('Lnot_chain')
        a(f's_cmp_lt_u32 s{S_SLOT}, 96'); a(f's_cbranch_scc1 {Lpb}')
        a(f's_cmp_lt_u32 s{S_SLOT}, 224'); a(f's_cbranch_scc1 {Lgw}')
        a(f's_cmp_lt_u32 s{S_SLOT}, 240'); a(f's_cbranch_scc1 {Lms}')
        a(f's_cmp_lt_u32 s{S_SLOT}, 256'); a(f's_cbranch_scc1 {Lpa}')
        a.label(end); a('s_endpgm')
        a.label(Lms); self.role = 'ms'; self.code_touch(sh=7)
        a(f's_and_b32 s{S_A}, s{S_SLOT}, 3'); a(f's_lshl_b32 s{S_OFF}, s{S_A}, 8')
        load_wslices(a, [(KA_WOA, 512*1024, 0, 'v', 128)], 1024, L, 3, 4, 5)
        if self.pfb:
            a(f's_load_dwordx2 s[{S_P}:{S_P+1}], s[0:1], {KA_WO}'); a(f's_and_b32 s{S_T}, s{S_SLOT}, 15'); a(f's_lshl_b32 s{S_T}, s{S_T}, 18')
            a(f'v_lshl_add_u32 v3, v0, 7, s{S_T}'); a('s_waitcnt lgkmcnt(0)')
            for i in range(8):
                a(f'global_load_dword v4, v3, s[{S_P}:{S_P+1}]'); a('v_add_u32 v3, 32768, v3')
        self.flags_ready(); self.local_check()
        for half in range(2):
            a(f's_and_b32 s{S_A}, s{S_SLOT}, 3'); a(f's_bfe_u32 s{S_B}, s{S_SLOT}, 0x20002'); self.woa_run(half, 4); self.stamp(3 + 8*half)
            a(f's_bfe_u32 s{S_A}, s{S_SLOT}, 0x20002'); a(f's_and_b32 s{S_B}, s{S_SLOT}, 3')
            self.rb_run(half, 2, 4); self.stamp(4 + 8*half)
        self.dump_marks(); a('s_endpgm')
        a.label(Lpa); self.role = 'pa'; self.code_touch(sh=7)
        def first_x():
            self.flags_ready(); self.mark(9, S_W, 0)
            a(f's_lshl_b32 s{S_XO}, s{S_B}, 15'); a(f's_add_u32 s{S_XO}, s{S_XO}, {W.H[0].XNA}'); a(f's_mov_b32 s{S_BUF}, {128*1024}')
            dma_x(a, L16, S_XO, S_BUF, 'sc1')
        a(f's_and_b32 s{S_A}, s{S_SLOT}, 3'); a(f's_bfe_u32 s{S_B}, s{S_SLOT}, 0x20002')
        self.proj_weights(False, (S_B, 4), first_x, (2,)); self.proj_run(0, False, 4, nowait=True, mode='q'); self.stamp(3)
        self.proj_weights(False, None, None, (0, 1))
        a(f's_and_b32 s{S_A}, s{S_SLOT}, 3'); a(f's_bfe_u32 s{S_B}, s{S_SLOT}, 0x20002'); self.proj_run(1, False, 4); self.stamp(4)
        self.dump_marks(); a('s_endpgm')
        a.label(Lpb); self.role = 'pb'; self.code_touch(sh=7)
        def pb_ids():
            a(f's_sub_u32 s{S_T}, s{S_SLOT}, 32'); a(f's_lshr_b32 s{S_A}, s{S_T}, 5'); a(f's_lshl_b32 s{S_A}, s{S_A}, 4'); a(f's_and_b32 s{S_T2}, s{S_T}, 15')
            a(f's_add_u32 s{S_A}, s{S_A}, s{S_T2}'); a(f's_bfe_u32 s{S_B}, s{S_T}, 0x10004')
        pb_ids(); self.proj_weights(True, (S_B, 2) if self.pfb else None); self.flags_ready(); self.stamp(1)
        for half in range(2):
            pb_ids(); self.proj_run(half, True, 2); self.stamp(3 + 8*half)
        self.dump_marks(); a('s_endpgm')
        a.label(Lgw); self.role = 'gw'; self.code_touch(sh=7)
        self.end = 'Lm_end2'
        def pa_ids(): a(f's_sub_u32 s{S_T}, s{S_SLOT}, 96'); a(f's_lshr_b32 s{S_A}, s{S_T}, 5'); a(f's_and_b32 s{S_B}, s{S_T}, 31')
        pa_ids(); self.proj_weights(False, (S_B, 32), first_x, (0, 1)); self.mark(10, S_W, 0); self.proj_run(0, False, 32, nowait=True, mode='kv'); self.stamp(1)
        def gw_ids():
            a(f's_sub_u32 s{S_T}, s{S_SLOT}, 96'); a(f's_lshr_b32 s{S_A}, s{S_T}, 5'); a(f's_lshl_b32 s{S_A}, s{S_A}, 3'); a(f's_and_b32 s{S_T2}, s{S_T}, 7')
            a(f's_add_u32 s{S_A}, s{S_A}, s{S_T2}'); a(f's_bfe_u32 s{S_B}, s{S_T}, 0x20003')
        for half in range(2):
            gw_ids(); self.att_run(half, 4); self.stamp(3 + 8*half)
            gw_ids()
            if half == 0: self.tb_weights()
            self.tb_run(half, 4); self.stamp(4 + 8*half)
        self.dump_marks()
        a.label('Lm_end2'); a('s_endpgm')
        a.label(Lch); self.role = 'ch'
        self.end = 'Lm_end3'; end = self.end
        r = C.ChainRegs(); self.sv = r.R
        a(f's_mov_b32 s{C.S_H}, s{S_SLOT}')
        lslow = a.newlabel('Lcslow'); lfast = a.newlabel('Lcfast')
        def mid(T):
            l1 = a.newlabel('Lcm'); l2 = a.newlabel('Lcm')
            T = r.WV + 64
            self.count_wait(132, T, end, C.S_T, C.S_SPIN); self.count_wait(self.TO, T, end, C.S_T, C.S_SPIN)
            a(f'v_readfirstlane_b32 s{C.S_T}, v{T}')
            add64(a, S_DBG, S_WS, FL(0, 'EL'))
            if self.chain_kw.get('force_slow'): a(f's_mov_b32 s{C.S_T}, 0')
            a(f's_mov_b32 s{C.S_EP}, 0'); a(f's_mov_b32 s{C.S_EM}, 0'); a(f's_mov_b32 s{C.S_HALF}, 0')
            a(f's_cmp_ge_u32 s{C.S_T}, 32'); a(f's_cselect_b32 s{C.S_FB}, 1, 0'); a(f's_cbranch_scc1 {l1}')
            C.chain_init_comm(a, r, 'sc1', True, T); a(f's_branch {l2}')
            a.label(l1); C.chain_init_comm(a, r, '', True, T)
            a.label(l2); C.group_arrive(a, T, 1280)
        C.chain_setup(a, r, mid, self.ahead)
        self.stamp(1)
        C.group_wait(a, r.R, 1280, 32, end)
        a(f's_cmp_eq_u32 s{C.S_FB}, 1'); a(f's_cbranch_scc1 {lfast}')
        a(f's_branch {lslow}')
        a.label(end); a('s_endpgm')
        kw = {k: v for k, v in self.chain_kw.items() if k != 'force_slow'}
        for lbl, stf in ((lfast, ''), (lslow, 'sc1')):
            a.label(lbl)
            lh = a.newlabel('Lch_half'); a.label(lh)
            self.stamp(2, C.S_HALF)
            C.chain_start(a, r, end, 1)
            def started(sv):
                self.sv = sv; self.stamp(3, C.S_HALF); self.sv = r.R
            kw['started'] = started
            C.chain_all_waves(a, r, stf, end, fused=1, **(dict(kw, ef='sc1') if stf else kw))
            self.stamp(4, C.S_HALF)
            if kw.get('stamps'):
                for k in range(12): a(f'v_mov_b32 v{k}, s{84+k}')
                a(f's_lshl_b32 s{C.S_T}, s{C.S_H}, 2'); a(f's_add_u32 s{C.S_T}, s{C.S_T}, s{C.S_W}'); a(f's_lshl_b32 s{C.S_T}, s{C.S_T}, 6')
                a(f's_lshl_b32 s{C.S_T2}, s{C.S_HALF}, 13'); a(f's_add_u32 s{C.S_T}, s{C.S_T}, s{C.S_T2}')
                a(f's_add_u32 s{C.S_T}, s{C.S_T}, {STAMP_OFF + 32768}'); a(f'v_mov_b32 v16, s{C.S_T}')
                for k in range(3): a(f'global_store_dwordx4 v16, {vr(4*k,4)}, s[{S_WS}:{S_WS+1}] offset:{16*k}')
                a('s_waitcnt vmcnt(0)')
            a(f's_cmp_lg_u32 s{C.S_HALF}, 0'); a(f's_cbranch_scc1 {end}')
            a(f's_mov_b32 s{C.S_HALF}, 1'); C.group_arrive(a, r.R, 1408); C.group_wait(a, r.R, 1408, 32, end)
            a(f's_xor_b32 s{C.S_EM}, s{C.S_EM}, 1'); C.chain_init_comm(a, r, stf, False)
            a(f's_branch {lh}')
        return a.lines
    def jump(self, label):
        a = self.a; l = a.newlabel('Lj')
        a('s_getpc_b64 s[48:49]'); a.label(l)
        a(f's_add_u32 s48, s48, {label}-{l}'); a('s_addc_u32 s49, s49, 0'); a('s_setpc_b64 s[48:49]')

NAME = 'interleave_layers__softmax_full_mha__memory_aug_recurrent_mem_tr__prompt'
def build(stamps=False, chain_kw={}, verbose=False, aslist=True):
    ks = []
    for n, lines, vg, acc in ((NAME + '_kernel', Mega(stamps, chain_kw).build(), 512, 256),):
        rep = []
        l = fix_hazards(lines, rep)
        for e in check_waits(l, n[:8]): print(e)
        if verbose: print(n, len(l), len(rep))
        ks.append((n, l, vg, acc))
    hdr = ''.join(l for l in open(f'cdna_kernels/{NAME}.s.ref').readlines()[:14] if '@launch' not in l)
    t = assemble_file(hdr, [(NAME + '_kernel', 256, 256, 163840)], ks)
    return t if aslist else t.replace(f'@launch kernel={NAME}_kernel ', '@launch ')

if __name__ == '__main__':
    import sys
    kw = eval(sys.argv[2]) if len(sys.argv) > 2 else dict()
    st = (True if sys.argv[3] == '1' else 2) if len(sys.argv) > 3 else False
    t = build(st, kw, True, aslist=(st is True))
    open(sys.argv[1] if len(sys.argv) > 1 else f'cdna_kernels/{NAME}.s', 'w').write(t)
    print(len(t))
```

```python
from asmlib import *
from layout import *
import math, struct

def f2u(f): return struct.unpack('<I', struct.pack('<f', f))[0]

LW = 0
LM = 144 * 1024
LS = 148 * 1024
DELTA = [0, 1, 8, 9, 2, 3, 10, 11]
DELTA2 = [0, 1, 32, 33, 8, 9, 40, 41]

class ChainRegs:
    def __init__(self):
        v = RegAlloc('v', 0, 256)
        self.M = v.alloc(32, 4); self.R = v.alloc(32, 4); self.A = v.alloc(32, 4)
        self.KX = v.alloc(8, 4); self.VX = v.alloc(8, 4)
        self.T = v.alloc(4, 4)
        self.VM = v.alloc(4)
        self.idx = self.VM + 1; self.aMst = self.VM + 3
        self.PZ = v.alloc(2)
        self.Z = v.alloc(2)
        self.I = v.alloc(2); self.E = v.alloc(4); self.One = v.alloc(4)
        self.PG = v.alloc(2)
        self.aPst = v.alloc(); self.aOw = v.alloc(); self.aW = v.alloc()
        self.aK = v.alloc(); self.aV = v.alloc(); self.aKm = v.alloc(); self.aVm = v.alloc(); self.aL = v.alloc()
        assert v.next <= 144, v.next
        self.WV = 144
        self.place = {}
        lds = [('q', 1, s) for s in range(8)] + [('q', 0, s) for s in range(4, 8)] + [('o', t, k) for t in (0, 6, 7) for k in range(2)]
        for i, b in enumerate(lds): self.place[b] = ('l', i * 2048)
        rest = [(m, t, s) for m in 'qkv' for t in range(2) for s in range(8)] + [('o', t, k) for t in range(8) for k in range(2)]
        rest = [b for b in rest if b not in self.place]
        assert len(rest) == 46
        for i, b in enumerate(rest):
            self.place[b] = ('a', 8 * i) if i < 32 else ('v', self.WV + 8 * (i - 32))
    def blk(self, b):
        k, r = self.place[b]; assert k != 'l'
        return vr(r, 8, k)

S_WS = 4; S_H = 6; S_W = 7
S_SRD = 8
S_CP = 12
S_HB = 20
S_KV = 22
S_CML = 24
S_XP = 26
S_EP = 28; S_EM = 29; S_STEP = 30; S_C = 31; S_SPIN = 32
S_PLO = 33; S_PHI = 34; S_T = 35; S_T2 = 36; S_T3 = 37
S_XH1 = 38; S_XH0 = 40; S_XR = 42
S_DBG = 44; S_TMP = 46; S_M0 = 48; S_RDY = 49
S_FH = 50; S_FW = 52; S_CPR = 54; S_CM = 56; S_HALF = 58; S_FB = 59
S_STAMP = 60
S_BW = 8
S_BR = 10
S_GS = 49
S_CME = 80
REP = 8192
S_SP = 31

def add64(a, dst, base, off):
    a(f's_add_u32 s{dst}, s{base}, {off}'); a(f's_addc_u32 s{dst+1}, s{base+1}, 0')

ROT = [0]; WF = ['']
def frag_of(w, j): return (j ^ (w & ROT[0])) if j < 4 else 4 + (w ^ (j - 4))

def chain_setup(a, r, mid=None, ahead=0, first=None):
    L = r.T; N = r.T+1; G = r.T+2; L16 = r.aL
    T = r.R
    a(f'v_lshrrev_b32 v{T}, 6, v0'); a(f'v_and_b32 v{L}, 63, v0'); a(f'v_readfirstlane_b32 s{S_W}, v{T}')
    a(f'v_and_b32 v{N}, 15, v{L}'); a(f'v_lshrrev_b32 v{G}, 4, v{L}')
    a(f's_mov_b32 s{S_PLO}, 0x05040100'); a(f's_mov_b32 s{S_PHI}, 0x07060302')
    a(f's_mov_b32 s{S_XH1}, 0xcccccccc'); a(f's_mov_b32 s{S_XH1+1}, 0xcccccccc')
    a(f's_mov_b32 s{S_XH0}, 0x33333333'); a(f's_mov_b32 s{S_XH0+1}, 0x33333333')
    a(f's_mov_b32 s{S_XR}, 0x000f000f'); a(f's_mov_b32 s{S_XR+1}, 0')
    a(f's_mov_b32 s{S_C}, {f2u(math.log2(math.e) / math.sqrt(128.0)):#x}')
    a(f'v_lshlrev_b32 v{L16}, 4, v{L}')
    a(f's_mul_i32 s{S_T}, s{S_W}, 36864'); a(f'v_add_u32 v{r.aW}, s{S_T}, v{L16}')
    a(f'v_bfe_u32 v{T}, v{N}, 1, 1')
    a(f'v_mul_u32_u24 v{r.idx}, 0xaaaa, v{T}'); a(f'v_bfe_u32 v{T}, v{N}, 2, 1'); a(f'v_mul_u32_u24 v{T}, 0xaaaa, v{T}'); a(f'v_lshl_add_u32 v{r.idx}, v{T}, 16, v{r.idx}'); a(f'v_add_u32 v{r.idx}, 0x44444444, v{r.idx}')
    a(f'v_lshlrev_b32 v{T}, 2, v{G}'); a(f'v_sub_u32 v{T}, v{N}, v{T}')
    a(f'v_mov_b32 v{T+1}, 0x3f80'); a(f'v_mov_b32 v{T+2}, 0x3f800000')
    def onehot(dst, nregs):
        for i in range(nregs):
            a(f'v_cmp_eq_u32 vcc, {2*i}, v{T}'); a(f'v_cndmask_b32 v{dst+i}, 0, v{T+1}, vcc')
            a(f'v_cmp_eq_u32 vcc, {2*i+1}, v{T}'); a(f'v_cndmask_b32 v{dst+i}, v{dst+i}, v{T+2}, vcc')
    onehot(r.I, 2)
    a(f'v_and_b32 v{T}, 11, v{N}')
    onehot(r.E, 2)
    a(f'v_mov_b32 v{r.E+2}, v{r.E}'); a(f'v_mov_b32 v{r.E+3}, v{r.E+1}')
    for i in range(4): a(f'v_mov_b32 v{r.One+i}, 0x3f803f80')
    a(f'v_mov_b32 v{r.PZ+1}, 0'); a(f'v_mov_b32 v{r.Z}, 0'); a(f'v_mov_b32 v{r.Z+1}, 0')
    a(f'v_lshrrev_b32 v{T}, 3, v{L}'); a(f'v_lshlrev_b32 v{T}, 11, v{T}'); a(f'v_and_b32 v{T+1}, 7, v{L}')
    a(f'v_lshl_add_u32 v{r.aPst}, v{T+1}, 3, v{T}')
    a(f's_lshl_b32 s{S_T}, s{S_W}, 14'); a(f's_lshl_b32 s{S_T2}, s{S_H}, 6'); a(f's_add_u32 s{S_T}, s{S_T}, s{S_T2}')
    a(f's_add_u32 s{S_T}, s{S_T}, {W.CP}'); add64(a, S_CP, S_WS, f's{S_T}')
    for p in range(1, 4): add64(a, S_CP+2*p, S_CP, p * 65536)
    assert W.CP >= LM and W.CM >= LM
    a(f's_lshl_b32 s{S_T}, s{S_W}, 16'); a(f's_lshl_b32 s{S_T2}, s{S_H}, 11'); a(f's_add_u32 s{S_T}, s{S_T}, s{S_T2}')
    a(f's_add_u32 s{S_T}, s{S_T}, {W.CP - LM}'); add64(a, S_CPR, S_WS, f's{S_T}')
    add64(a, S_CM, S_WS, W.CM); add64(a, S_CML, S_WS, W.CM - LM + 4096)
    a(f's_lshl_b32 s{S_T2}, s{S_W}, 11'); a(f's_lshr_b32 s{S_T3}, s{S_H}, 3'); a(f's_lshl_b32 s{S_T3}, s{S_T3}, 9'); a(f's_add_u32 s{S_T2}, s{S_T2}, s{S_T3}')
    a(f's_and_b32 s{S_T3}, s{S_H}, 1'); a(f's_lshl_b32 s{S_T3}, s{S_T3}, 8'); a(f's_add_u32 s{S_T2}, s{S_T2}, s{S_T3}')
    a(f's_bfe_u32 s{S_T3}, s{S_H}, 0x20001'); a(f's_lshl_b32 s{S_T3}, s{S_T3}, 6'); a(f's_add_u32 s{S_T2}, s{S_T2}, s{S_T3}')
    a(f'v_bfe_u32 v{T}, v{L}, 1, 1'); a(f'v_lshlrev_b32 v{T}, 5, v{T}')
    a(f'v_and_b32 v{T+1}, 1, v{L}'); a(f'v_lshl_add_u32 v{T}, v{T+1}, 3, v{T}')
    a(f'v_and_b32 v{T+1}, 1, v{G}'); a(f'v_lshl_add_u32 v{T}, v{T+1}, 4, v{T}')
    a(f'v_add_u32 v{r.aMst}, s{S_T2}, v{T}')
    a(f's_cmp_lt_u32 s{S_W}, 2'); a(f's_cselect_b32 s{S_XR}, -1, s{S_XR}'); a(f's_cselect_b32 s{S_T3}, {REP}, 0')
    a(f'v_bfe_u32 v{T}, v{L}, 2, 2'); a(f'v_mul_lo_u32 v{T}, v{T}, s{S_T3}'); a(f'v_add_u32 v{r.aMst}, v{r.aMst}, v{T}')
    a(f's_mul_i32 s{S_T3}, s{S_W}, {REP}'); add64(a, S_CME, S_CML, f's{S_T3}')
    a(f's_bfe_u32 s{S_T2}, s{S_H}, 0x20001'); a(f's_lshl_b32 s{S_T2}, s{S_T2}, 11')
    a(f's_lshr_b32 s{S_T3}, s{S_H}, 3'); a(f's_lshl_b32 s{S_T3}, s{S_T3}, 8'); a(f's_add_u32 s{S_T2}, s{S_T2}, s{S_T3}')
    a(f's_and_b32 s{S_T3}, s{S_H}, 1'); a(f's_lshl_b32 s{S_T3}, s{S_T3}, 7'); a(f's_add_u32 s{S_T2}, s{S_T2}, s{S_T3}')
    a(f's_lshl_b32 s{S_T3}, s{S_W}, 2'); a(f's_add_u32 s{S_M0}, s{S_T2}, s{S_T3}')
    a(f'v_lshrrev_b32 v{T}, 1, v{G}'); a(f'v_lshlrev_b32 v{T}, 8, v{T}'); a(f'v_and_b32 v{T+1}, 1, v{G}')
    a(f'v_lshl_add_u32 v{T}, v{T+1}, 5, v{T}'); a(f'v_lshl_add_u32 v{T}, v{N}, 4, v{T}')
    a(f's_lshl_b32 s{S_T}, s{S_W}, 9'); a(f's_add_u32 s{S_T}, s{S_T}, {LM}'); a(f'v_add_u32 v{r.aOw}, s{S_T}, v{T}')
    a(f'v_and_b32 v{T}, 2, v{L}'); a(f'v_cmp_eq_u32 vcc, 0, v{T}')
    a(f's_lshl_b32 s{S_T}, s{S_W}, 10'); a(f's_add_u32 s{S_T}, s{S_T}, {LM+12288}'); a(f'v_add_u32 v{T}, s{S_T}, v{L16}')
    a(f'v_and_b32 v{T+1}, 1, v{G}'); a(f'v_lshlrev_b32 v{T+1}, 5, v{T+1}'); a(f'v_xor_b32 v{T}, v{T}, v{T+1}')
    a(f'v_cndmask_b32 v{r.aOw}, v{T}, v{r.aOw}, vcc')
    a(f'v_lshrrev_b32 v{T}, 3, v{N}'); a(f'v_lshlrev_b32 v{T}, 8, v{T}'); a(f'v_and_b32 v{T+1}, 7, v{N}'); a(f'v_lshl_add_u32 v{T}, v{T+1}, 4, v{T}')
    a(f'v_lshl_add_u32 v{T}, v{G}, 9, v{T}')
    a(f's_lshl_b32 s{S_T}, s{S_W}, 11'); a(f's_add_u32 s{S_T2}, s{S_T}, {HB_K}'); a(f'v_add_u32 v{r.aK}, s{S_T2}, v{T}')
    a(f'v_lshlrev_b32 v{T}, 4, v{N}'); a(f'v_lshl_add_u32 v{T}, v{G}, 9, v{T}')
    a(f's_add_u32 s{S_T2}, s{S_T}, {HB_V}'); a(f'v_add_u32 v{r.aV}, s{S_T2}, v{T}')
    a(f'v_lshrrev_b32 v{T}, 2, v{N}'); a(f'v_lshlrev_b32 v{T}, 5, v{T}'); a(f'v_and_b32 v{T+1}, 1, v{N}'); a(f'v_lshl_add_u32 v{T}, v{T+1}, 4, v{T}')
    a(f'v_lshl_add_u32 v{T}, v{G}, 7, v{T}')
    a(f's_lshl_b32 s{S_T}, s{S_W}, 9'); a(f's_add_u32 s{S_T2}, s{S_T}, {HB_KM}'); a(f'v_add_u32 v{r.aKm}, s{S_T2}, v{T}')
    a(f'v_lshlrev_b32 v{T}, 3, v{L}'); a(f's_add_u32 s{S_T2}, s{S_T}, {HB_VM}'); a(f'v_add_u32 v{r.aVm}, s{S_T2}, v{T}')
    a(f'v_add_u32 v{r.aL}, {LM}, v{L16}')
    a(f'v_lshlrev_b32 v{T}, 2, v{L}'); a(f'v_add_u32 v{r.PG+1}, {LS+4096}, v{T}')
    a(f's_mov_b32 s{S_XP}, 0x01010101'); a(f's_mov_b32 s{S_XP+1}, 0x01010101')
    KBG = r.T+3; VO = r.VX
    a(f'v_lshrrev_b32 v{T}, 1, v{G}'); a(f'v_lshlrev_b32 v{T}, 4, v{T}')
    a(f'v_and_b32 v{T+1}, 1, v{G}'); a(f'v_lshl_add_u32 v{KBG}, v{T+1}, 2, v{T}')
    a(f's_lshl_b32 s{S_T}, s{S_H}, 8'); a(f's_lshl_b32 s{S_T2}, s{S_W}, 6'); a(f's_add_u32 s{S_T}, s{S_T}, s{S_T2}')
    a(f'v_lshlrev_b32 v{VO}, 15, v{KBG}'); a(f'v_lshl_add_u32 v{VO}, v{N}, 2, v{VO}'); a(f'v_add_u32 v{VO}, s{S_T}, v{VO}')
    a(f's_mov_b32 s{S_SRD+2}, {4*MB}'); a(f's_mov_b32 s{S_SRD+3}, 0x20000')
    NB = 11; PK = 88; U = 96
    groups = [(m, s, rg) for m in 'kvq' for rg in range(2) for s in range(8)]
    TQ = r.VX+1; TO = r.VX+2; TD_ = r.VX+3
    a(f'v_lshrrev_b32 v{TQ}, 1, v0'); a(f'v_lshlrev_b32 v{TQ}, 13, v{TQ}'); a(f'v_and_b32 v{TO}, 1, v0'); a(f'v_lshl_add_u32 v{TQ}, v{TO}, 7, v{TQ}')
    a(f's_lshl_b32 s{S_T}, s{S_H}, 8'); a(f'v_add_u32 v{TQ}, s{S_T}, v{TQ}')
    a(f's_lshl_b32 s{S_T}, s{S_H}, 17'); a(f'v_lshl_add_u32 v{TO}, v0, 7, s{S_T}')
    for i, ka in enumerate((KA_WK, KA_WV, KA_WQ, KA_WO)): a(f's_load_dwordx2 s[{60+2*i}:{61+2*i}], s[0:1], {ka}')
    a('s_waitcnt lgkmcnt(0)')
    def touch(hm):
        if hm >= 8 or not ahead: return 0
        for i in range(2):
            off = ((128*(hm&1) + 256*i) * 8192) if hm < 6 else (65536*(hm&1) + 32768*i)
            add64(a, S_TMP, 60 + 2*(hm >> 1), off)
            a(f'global_load_dword v{TD_}, v{TQ if hm < 6 else TO}, s[{S_TMP}:{S_TMP+1}]')
        return 2
    def put(block, rg, i, emit, pend):
        k, base = r.place[block]
        if k == 'v': emit(base+4*rg+i)
        elif k == 'a':
            emit(pend+i); a(f'v_accvgpr_write_b32 a{base+4*rg+i}, v{pend+i}')
        else:
            emit(pend+i)
            if i == 3:
                a(f'ds_write_b128 v{r.aW}, {vr(pend,4)} offset:{base+1024*rg}'); a('s_waitcnt lgkmcnt(0)')
    DEPTH = 6
    wf = WF[0]
    kaoff = {'q': KA_WQ, 'k': KA_WK, 'v': KA_WV}
    cur = [None]
    def issue(gi):
        m, s, rg = groups[gi]
        if cur[0] != m:
            a(f's_load_dwordx2 s[{S_SRD}:{S_SRD+1}], s[0:1], {kaoff[m]}'); a('s_waitcnt lgkmcnt(0)'); cur[0] = m
        if True:
            if s < 4: a(f's_and_b32 s{S_T2}, s{S_W}, {ROT[0]}'); a(f's_xor_b32 s{S_T2}, s{S_T2}, {s}')
            else: a(f's_xor_b32 s{S_T2}, s{S_W}, {s}')
            a(f's_and_b32 s{S_T3}, s{S_T2}, 1'); a(f's_lshl_b32 s{S_T3}, s{S_T3}, 21'); a(f's_and_b32 s{S_T2}, s{S_T2}, 6'); a(f's_lshl_b32 s{S_T2}, s{S_T2}, 13')
            a(f's_add_u32 s{S_T3}, s{S_T3}, s{S_T2}')
        b = (gi % NB) * 8
        for jj in range(8):
            a(f's_add_u32 s{S_T}, s{S_T3}, {(128*rg+DELTA2[jj])*8192}')
            a(f'buffer_load_dword v{b+jj}, v{VO}, s[{S_SRD}:{S_SRD+3}], s{S_T} offen {wf}')
    def consume(gi):
        m, s, rg = groups[gi]; b = (gi % NB) * 8
        for t in range(2):
            for i in range(4):
                lo, hi = b+2*i, b+2*i+1
                if m == 'q':
                    def emit(d, lo=lo, hi=hi, t=t):
                        if t == 0: a(f'v_lshlrev_b32 v{U}, 16, v{lo}'); a(f'v_lshlrev_b32 v{U+1}, 16, v{hi}')
                        else: a(f'v_and_b32 v{U}, 0xffff0000, v{lo}'); a(f'v_and_b32 v{U+1}, 0xffff0000, v{hi}')
                        a(f'v_mul_f32 v{U}, s{S_C}, v{U}'); a(f'v_mul_f32 v{U+1}, s{S_C}, v{U+1}'); a(f'v_cvt_pk_bf16_f32 v{d}, v{U}, v{U+1}')
                else:
                    def emit(d, lo=lo, hi=hi, t=t): a(f'v_perm_b32 v{d}, v{hi}, v{lo}, s{S_PHI if t else S_PLO}')
                put((m, t, s), rg, i, emit, PK + 4*t)
    ops = []
    for hm in range(ahead): touch(hm)
    for gi in range(len(groups) + DEPTH):
        if gi < len(groups):
            n = touch(gi // 8 + ahead) if gi % 8 == 0 else 0
            issue(gi); ops.append(n + 8)
        if gi == DEPTH - 1 and first: a(f's_waitcnt vmcnt({sum(ops)})'); first()
        if gi == 14 and mid: a('s_waitcnt vmcnt(40)'); mid(None)
        if gi >= DEPTH:
            a(f's_waitcnt vmcnt({sum(ops[gi-DEPTH+1:])})')
            consume(gi - DEPTH)
    for hm in range(6 + ahead, 8): touch(hm)
    a(f's_load_dwordx2 s[{S_SRD}:{S_SRD+1}], s[0:1], {KA_WO}')
    a(f's_lshl_b32 s{S_T}, s{S_H}, 17'); a(f's_lshl_b32 s{S_T2}, s{S_W}, 8'); a(f's_add_u32 s{S_T}, s{S_T}, s{S_T2}')
    a(f'v_lshlrev_b32 v{VO}, 10, v{KBG}'); a(f'v_lshl_add_u32 v{VO}, v{N}, 4, v{VO}'); a(f'v_add_u32 v{VO}, s{S_T}, v{VO}')
    a('s_waitcnt lgkmcnt(0)')
    og = [(k, rg) for k in range(2) for rg in range(2)]
    def oissue(gi):
        k, rg = og[gi]; b = (gi % 2) * 32
        for jj in range(8):
            a(f's_mov_b32 s{S_T}, {(64*k+32*rg+DELTA[jj])*1024}')
            a(f'buffer_load_dwordx4 {vr(b+4*jj,4)}, v{VO}, s[{S_SRD}:{S_SRD+3}], s{S_T} offen')
    def ocons(gi):
        k, rg = og[gi]; b = (gi % 2) * 32
        for t in range(8):
            for i in range(4):
                def emit(d, hi=b+4*(2*i+1)+(t>>1), lo=b+4*(2*i)+(t>>1), t=t): a(f'v_perm_b32 v{d}, v{hi}, v{lo}, s{S_PHI if t & 1 else S_PLO}')
                put(('o', t, k), rg, i, emit, PK + 4*(t&1))
    oissue(0); oissue(1)
    for gi in range(4):
        a(f's_waitcnt vmcnt({8 if gi < 3 else 0})'); ocons(gi)
        if gi + 2 < 4: oissue(gi + 2)

def board_setup(a, r, stf):
    a(f's_lshl_b32 s{S_T}, s{S_H}, 2'); a(f's_add_u32 s{S_T}, s{S_T}, {W.CB - LM}')
    add64(a, S_BW, S_WS, f's{S_T}'); add64(a, S_BR, S_WS, W.CB - LS - 4096); a(f's_mov_b32 s{S_GS}, 0')
    a('s_mov_b64 exec, 0x101'); a(f'global_store_dword v{r.aL}, v{r.Z}, s[{S_BW}:{S_BW+1}] {stf}'); a('s_mov_b64 exec, -1')

def chain_init_comm(a, r, stf, first, T=None):
    T = r.R if T is None else T
    a(f's_load_dwordx2 s[{S_TMP}:{S_TMP+1}], s[0:1], {KA_MEM0}')
    a(f'v_and_b32 v{T}, 0x30, v{r.aL}'); a(f'v_lshlrev_b32 v{T}, 1, v{T}'); a(f'v_bfe_u32 v{T+1}, v{r.aL}, 8, 1'); a(f'v_lshl_add_u32 v{T}, v{T+1}, 10, v{T}')
    a(f'v_add_u32 v{T}, s{S_M0}, v{T}')
    a(f's_xor_b32 s{S_T}, s{S_EP}, 1')
    for i in range(4): a(f'v_mov_b32 v{T+4+i}, s{S_T}')
    a('s_waitcnt lgkmcnt(0)')
    a(f'global_load_dword v{T+2}, v{T}, s[{S_TMP}:{S_TMP+1}]'); a(f'global_load_dword v{T+3}, v{T}, s[{S_TMP}:{S_TMP+1}] offset:16')
    if first:
        a(f'global_store_dwordx4 v{r.aL}, {vr(T+4,4)}, s[{S_CPR}:{S_CPR+1}] {stf}')
        a(f'global_store_dwordx4 v{r.aL}, {vr(T+4,4)}, s[{S_CPR}:{S_CPR+1}] offset:1024 {stf}')
    a('s_waitcnt vmcnt(0)')
    a(f'v_and_or_b32 v{T+2}, v{T+2}, -2, s{S_EM}')
    a(f's_mov_b64 exec, s[{S_XR}:{S_XR+1}]')
    a(f'global_store_dwordx2 v{r.aMst}, {vr(T+2,2)}, s[{S_CM}:{S_CM+1}] {stf}')
    a('s_mov_b64 exec, -1'); a('s_waitcnt vmcnt(0)')

def group_arrive(a, T, off):
    l1 = a.newlabel('Lgb')
    a('s_barrier')
    a(f'v_mov_b32 v{T}, {off}'); a(f'v_mov_b32 v{T+1}, 1')
    a(f's_cmp_lg_u32 s{S_W}, 0'); a(f's_cbranch_scc1 {l1}')
    a('s_mov_b64 exec, 1'); a(f'global_atomic_add v{T}, v{T+1}, s[{S_DBG}:{S_DBG+1}] sc1'); a('s_waitcnt vmcnt(0)'); a('s_mov_b64 exec, -1')
    a.label(l1)
def group_wait(a, T, off, count, fail):
    l2 = a.newlabel('Lgb'); l3 = a.newlabel('Lgb')
    a(f's_mov_b32 s{S_SPIN}, 0'); a(f'v_mov_b32 v{T}, {off}')
    a.label(l2)
    a(f'global_load_dword v{T+2}, v{T}, s[{S_DBG}:{S_DBG+1}] sc1'); a('s_waitcnt vmcnt(0)')
    a(f'v_readfirstlane_b32 s{S_T}, v{T+2}')
    a(f's_cmp_ge_u32 s{S_T}, {count}'); a(f's_cbranch_scc1 {l3}')
    a('s_sleep 2')
    a(f's_add_u32 s{S_SPIN}, s{S_SPIN}, 1'); a(f's_cmp_lt_u32 s{S_SPIN}, 0x60000'); a(f's_cbranch_scc1 {l2}')
    a(f's_branch {fail}')
    a.label(l3)

DPPQ = 'quad_perm:[2,3,0,1] row_mask:0xf bank_mask:0xf'
XA = 's_mov_b64 exec, -1'

def prog_load(a, r): a(f'global_load_dword v{r.PG}, v{r.PG+1}, s[{S_FH}:{S_FH+1}] sc1')
def prog_block(a, r, lbl, back, need_sgpr, fail):
    a.label(lbl)
    prog_load(a, r); a('s_waitcnt vmcnt(0)')
    a(f'v_cmp_ge_u32 s[{S_TMP}:{S_TMP+1}], s{need_sgpr}, v{r.PG}'); a(f's_and_b64 s[{S_TMP}:{S_TMP+1}], s[{S_TMP}:{S_TMP+1}], s[{S_XP}:{S_XP+1}]'); a(f's_cbranch_scc0 {back}')
    a('s_sleep 1')
    a(f's_add_u32 s{S_SPIN}, s{S_SPIN}, 1'); a(f's_cmp_lt_u32 s{S_SPIN}, 0x60000'); a(f's_cbranch_scc1 {lbl}')
    a(f's_branch {fail}')
def kv_load(a, r, i, dst, base=None):
    base = base or S_KV
    ad, off = ((r.aK, 0), (r.aK, 128), (r.aV, 0), (r.aV, 256))[i]
    a(f'global_load_dwordx4 {vr(dst+4*i,4)}, v{ad}, s[{base}:{base+1}] offset:{off} sc1')

def chain_start(a, r, fail, fused, started=None):
    HS = W.H[1].HB - W.H[0].HB
    a(f's_mul_i32 s{S_T2}, s{S_HALF}, {HS}'); a(f's_lshl_b32 s{S_T}, s{S_H}, 21'); a(f's_add_u32 s{S_T}, s{S_T}, s{S_T2}')
    a(f's_add_u32 s{S_T}, s{S_T}, {W.H[0].HB}'); add64(a, S_KV, S_WS, f's{S_T}'); a(f's_mov_b64 s[{S_HB}:{S_HB+1}], s[{S_KV}:{S_KV+1}]')
    a(f's_mov_b32 s{S_STEP}, 0'); a(f's_mov_b32 s{S_SPIN}, 0')
    a(f's_lshl_b32 s{S_T}, s{S_H}, 8'); a(f's_lshl_b32 s{S_T2}, s{S_HALF}, 17'); a(f's_add_u32 s{S_T}, s{S_T}, s{S_T2}')
    a(f's_add_u32 s{S_T}, s{S_T}, {FL(0, "CHP")}'); add64(a, S_FW, S_WS, f's{S_T}')
    a(f's_sub_u32 s{S_FH}, s{S_FW}, {FL(0, "CHP") - FL(0, "HEAD") + LS + 4096}'); a(f's_subb_u32 s{S_FH+1}, s{S_FW+1}, 0')
    a(f'v_mov_b32 v{r.PG}, 0'); a(f's_mov_b32 s{S_SP}, 0')
    for i in range(2): a(f'global_load_dwordx4 {vr(r.M+24+4*i,4)}, v{r.aL}, s[{S_CPR}:{S_CPR+1}] offset:{1024*i} sc1')
    add64(a, S_KV, S_KV, HB_REC)

def chain_wave(a, r, w, stf, fail, done, fused=1, pat=(13, 16, 16, 16), d1=(100, 140, 280, 320), d2=(220, 120, 0, 0), e23=(100, 80, 60, 60), lpos=3, nb=(2, 2, 1, 2), bk=(120, 100, 100, 120), es=80, eb=None, e3in=1, cp=1, rep=1, vdef=1, wsplit=0, vw=(1, 1, 1, 4), hkw=(0, 1), nowait=0, pkpos=0, pvearly=0, e0e=None, e1g=0, ack1=(None, None, 0, 0), ack2=(0, 0, 0, 0), bx=None, bp=(18, 19, 21, 23, 24, 25), bg=16, c1=(40, 40, 40, 40), ef='sc1', rt=None, started=None,
               nomax=1, stamps=False, stampsel=None, nocomm=0, nohk=0):
    R, A, M, T = r.R, r.A, r.M, r.T
    if isinstance(nb, tuple): nb = nb[w]
    if isinstance(bk, tuple): bk = bk[w]
    Aq = [A, A+4]; Ak = [A+8, A+12]; Av = [A+16, A+20]
    ACC = {'q': Aq, 'k': Ak, 'v': Av}
    ns = [0]; sid = [0]
    def st(name=None):
        if name is None:
            name = sid[0]; sid[0] += 1
        if stamps and ((stampsel is None and isinstance(name, int)) or (stampsel is not None and name in stampsel)):
            a(f's_memtime s[{S_STAMP+2*ns[0]}:{S_STAMP+2*ns[0]+1}]'); ns[0] += 1
    def tr(k):
        if rt is not None: a(f's_memtime s[{(S_STAMP+2*k) if k != 10 else 96}:{((S_STAMP+2*k) if k != 10 else 96)+1}]')
    pos = [None]
    def hook():
        if pos[0] is None or bx is None: return
        if w == 1 and pos[0] == bx: a('s_mov_b64 exec, 0x101'); a(f'global_store_dword v{r.aL}, v{r.PZ}, s[{S_BW}:{S_BW+1}] {stf}'); a(XA)
        if w == 0 and pos[0] in bp: a(f'global_load_dword v{r.PG}, v{r.PG+1}, s[{S_BR}:{S_BR+1}] sc1')
        pos[0] += 1
    def smf(acc, aop, b): a(f'v_smfmac_f32_16x16x64_bf16 {vr(acc,4)}, {vr(aop,4)}, {b}, v{r.idx}'); hook()
    def m32(d, x, y, c): a(f'v_mfma_f32_16x16x32_bf16 {vr(d,4)}, {vr(x,4)}, {vr(y,4)}, {vr(d,4) if c else 0}'); hook()
    def m16(d, x, y, c): a(f'v_mfma_f32_16x16x16_bf16 {vr(d,4)}, {vr(x,2)}, {vr(y,2)}, {vr(d,4) if c else 0}'); hook()
    def ldh(dst, b, hh): a(f'ds_read_b128 {vr(dst+4*hh,4)}, v{r.aW} offset:{r.place[b][1]+1024*hh}')
    def nops(c):
        n = c // 4
        while n > 0:
            k = min(n, 16); a(f's_nop {k-1}'); n -= k
    def add0(c): a(f'v_add_f32 v{c}, v{c}, v{c+2}')
    def add1(c): a(f'v_add_f32 v{c+1}, v{c+1}, v{c+3}')
    def cvt(d, x, y): a(f'v_cvt_pk_bf16_f32 v{d}, v{x}, v{y}')
    def pka(d, x, y): a(f'v_pk_add_f32 {vr(d,2)}, {vr(x,2)}, {vr(y,2)}')
    def e_load(j, f='sc1'):
        b = S_CME if (j < 4 and rep) else S_CML
        a(f'global_load_dwordx4 {vr(M+4*j,4)}, v{r.aL}, s[{b}:{b+1}] offset:{1024*frag_of(w,j)-4096} {f}')
    PL = [M+24, R+24, M+16, R+16]; PD = A+24; t0 = A+28; t1 = A+29
    def p_loads(k=0):
        a(f'global_load_dwordx4 {vr(PL[k],4)}, v{r.aL}, s[{S_CPR}:{S_CPR+1}] sc1')
        a(f'global_load_dwordx4 {vr(PL[k]+4,4)}, v{r.aL}, s[{S_CPR}:{S_CPR+1}] offset:1024 sc1')
    def ring_prefetch():
        for e in range(4):
            for hh in range(2): ldh(R+8*e, ('q', 1, e), hh)
    def zero(base, n):
        for i in range(n): a(f'v_mov_b32 v{base+i}, 0')
    def spin_or_fail():
        a(f's_add_u32 s{S_SPIN}, s{S_SPIN}, 1'); a(f's_cmp_lt_u32 s{S_SPIN}, 0x60000'); a(f's_cbranch_scc0 {fail}')
    LA = a.newlabel('Lc_A'); Ldone = a.newlabel('Lc_done')
    Lr = [a.newlabel('Lc_rE') for _ in range(5)]; Lc = [a.newlabel('Lc_cE') for _ in range(5)]
    Lhk = a.newlabel('Lc_hk'); Lhb = a.newlabel('Lc_hb'); Lexp = a.newlabel('Lc_exp'); Lfb = a.newlabel('Lc_fb'); Lnofb = a.newlabel('Lc_nofb'); Lsp = a.newlabel('Lc_sp'); Lspb = a.newlabel('Lc_spb')
    if stamps: _ = [a(f's_mov_b32 s{84+k}, 0') for k in range(12)]
    zero(A, 24); ring_prefetch()
    a(f's_add_u32 s{S_GS}, s{S_GS}, 1'); a(f'v_mov_b32 v{r.PZ}, s{S_GS}')
    for j in range(4): e_load(j)
    a('s_waitcnt vmcnt(0)')
    a('.p2align 6')
    a.label(LA)
    e3 = False; ex = 1 if eb is not None else 0
    ringof = {('q',1,0):0, ('q',1,1):1, ('q',1,2):2, ('q',1,3):3, ('q',1,4):0, ('q',0,4):1, ('q',1,5):2, ('q',0,5):3, ('q',0,6):0, ('q',0,7):1, ('q',1,6):2, ('q',1,7):3}
    def S(m, t, s):
        b = (m, t, s)
        smf(ACC[m][t], M+4*s, vr(R+8*ringof[b], 8) if b in ringof else r.blk(b))
    def chk(j):
        return [f'v_bitop3_b32 v{t0}, v{M+4*j}, v{M+4*j+2}, s{S_EM} bitop3:0x7e', f'v_and_b32 v{t0}, 1, v{t0}', f'v_cmp_ne_u32 vcc, 0, v{t0}']
    vm0 = ['E0', 'E1'] + (['x'] if ex else []) + ['E2'] + ([] if e3in else ['E3'])
    ee = e0e is not None; eh = ee and d2[w] < e0e
    if ee: vm0 = ['E0'] + (['m'] if eh else []) + ['x', 'E1', 'E2'] + ([] if e3in else ['E3'])
    a(f's_waitcnt vmcnt({len(vm0)-1}) lgkmcnt(0)')
    tr(7)
    for l in chk(0): a(l)
    a.label(Lc[0])
    st()
    tr(8)
    order = (('q',1),('q',0),('k',0),('k',1),('v',0),('v',1))
    dsq = [(R+24, ('q',1,3), 0), (R+24, ('q',1,3), 1), (R, ('q',1,4), 0), (R, ('q',1,4), 1), (R+16, ('q',1,2), 0), (R+16, ('q',1,2), 1),
           None, (R+8, ('q',0,4), 0), (R+8, ('q',0,4), 1), None, None, None,
           None, (R+16, ('q',1,5), 0), (R+16, ('q',1,5), 1), None, None, None]
    cnt = 0
    vm = list(vm0)
    def after_of(n): return len(vm) - 1 - vm.index(n)
    issued_at = {}
    def probe():
        a(f'global_load_dword v{r.PG}, v{r.PG+1}, s[{S_BR}:{S_BR+1}] sc1')
    def extras(cnt):
        if e3in and cnt == 2: e_load(3); vm.append('E3')
        if cnt == lpos: e_load(4); vm.append('E4')
    for sl in range(3):
        c = chk(sl+1)
        for i, (m, t) in enumerate(order):
            S(m, t, sl)
            if dsq[cnt]: ldh(*dsq[cnt])
            extras(cnt)
            if cnt == 0: a(f's_mov_b32 s{S_FB}, 0')
            if cnt == 11: a('s_waitcnt lgkmcnt(2)')
            if cnt == 1: a(f's_cbranch_vccnz {Lr[0]}')
            cnt += 1
            if i == cp: a(f's_waitcnt vmcnt({after_of("E%d" % (sl+1))})')
            if cp <= i < cp + 3: a(c[i-cp])
            if fused and w == hkw[0] and cnt == 7:
                a(f's_add_u32 s{S_T3}, s{S_STEP}, 1'); a(f's_min_u32 s{S_T3}, s{S_T3}, 63'); a(f'v_cmp_ge_u32 s[{S_TMP}:{S_TMP+1}], s{S_T3}, v{r.PG}')
        a(f's_cbranch_vccnz {Lr[sl+1]}')
        issued_at[sl+1] = list(vm)
        a.label(Lc[sl+1])
    assert 2 <= lpos < 14
    c = chk(4)
    a('s_waitcnt lgkmcnt(4)')
    S('q',1,3)
    a(f's_waitcnt vmcnt({after_of("E4")})')
    a(f'ds_write_b128 v{r.aL}, {vr(M+16,4)} offset:{1024*w}')
    a(c[0])
    S('q',0,3); ldh(R+24, ('q',0,5), 0); extras(19); a(c[1])
    S('k',0,3); ldh(R+24, ('q',0,5), 1); extras(20); a(c[2])
    S('k',1,3); extras(21)
    Lbs = a.newlabel('Lc_bs'); Lbg = a.newlabel('Lc_bg')
    if fused and w == hkw[0]:
        a(f's_and_b64 s[{S_TMP}:{S_TMP+1}], s[{S_TMP}:{S_TMP+1}], s[{S_XP}:{S_XP+1}]'); a(f's_cbranch_scc1 {Lhb}'); a.label(Lhk)
    if not vdef: S('v',0,3)
    a(f's_cbranch_vccnz {Lr[4]}')
    a.label(Lc[4])
    tr(9)
    if not nohk and pkpos == 4: a(f's_mov_b64 exec, s[{S_XH0}:{S_XH0+1}]'); a(f'global_store_dwordx4 v{r.aKm}, {vr(T,4)}, s[{S_HB}:{S_HB+1}] sc1'); a(XA)
    a('s_waitcnt lgkmcnt(2)'); a('s_barrier')
    tr(10)
    pos[0] = 0
    def rdm(j): a(f'ds_read_b128 {vr(M+16+4*j,4)}, v{r.aL} offset:{1024*(w^j)}')
    def pub_k(): a(f's_mov_b64 exec, s[{S_XH0}:{S_XH0+1}]'); a(f'global_store_dwordx4 v{r.aKm}, {vr(T,4)}, s[{S_HB}:{S_HB+1}] sc1'); a(XA)
    def pub_v(): a(f'global_store_dwordx2 v{r.aVm}, {vr(A+30,2)}, s[{S_HB}:{S_HB+1}] sc1')
    hk = []
    if not nohk:
        hk = [lambda i=i: kv_load(a, r, i, M) if not (vdef and i == 3) else None for i in range(4)]
        if fused and w == hkw[1]: hk.append(lambda: (a('s_mov_b64 exec, 1'), a(f'global_store_dword v{r.Z}, v{t1}, s[{S_FW}:{S_FW+1}] sc1'), a(XA)))
        if fused and w == hkw[0]: hk.append(lambda: prog_load(a, r))
        if w not in hkw or not fused: hk.append(lambda: None)
    def H():
        if hk: hk.pop(0)()
    rdm(1)
    if not vdef: S('v',1,3)
    rdm(2); rdm(3)
    Lk0 = a.newlabel('Lc_k0'); Lk0b = a.newlabel('Lc_k0b')
    S('q',1,4); a(f's_cmp_eq_u32 s{S_STEP}, 0'); a(f's_cbranch_scc1 {Lk0}'); a.label(Lk0b); H()
    S('q',0,4); ldh(R+0, ('q',0,6), 0); H()
    S('k',0,4); ldh(R+0, ('q',0,6), 1); H()
    S('k',1,4); ldh(R+8, ('q',0,7), 0); H(); a('s_waitcnt lgkmcnt(5)')
    S('q',1,5); ldh(R+8, ('q',0,7), 1)
    if not nohk and pkpos == 3: pub_k()
    S('q',0,5); ldh(R+16, ('q',1,6), 0)
    if not nohk and pvearly: pub_v()
    S('k',0,5); ldh(R+16, ('q',1,6), 1); a('s_waitcnt lgkmcnt(6)')
    S('k',0,6); ldh(R+24, ('q',1,7), 0)
    S('k',0,7); ldh(R+24, ('q',1,7), 1); a('s_waitcnt lgkmcnt(4)')
    S('q',0,6); H()
    TA = [R+0, R+2]; TD = [R+4, R+8]; SX = [R+16, R+20]; SM = R+24
    S('q',0,7); add0(Ak[0])
    S('k',1,5); add1(Ak[0])
    assert not hk
    S('k',1,6); cvt(TA[0], Ak[0], Ak[0]+1)
    S('k',1,7); a('s_waitcnt lgkmcnt(0)'); add0(Aq[0])
    S('q',1,6); a(f's_mov_b64 vcc, s[{S_XH1}:{S_XH1+1}]'); add1(Aq[0])
    S('q',1,7); cvt(TA[0]+1, Aq[0], Aq[0]+1)
    st()
    vq = [(t, s) for s in range(3 if vdef else 4, 8) for t in range(2)]
    def V(n=1):
        for _ in range(n):
            t, s = vq.pop(0); S('v', t, s)
    add0(Ak[1]); add1(Ak[1])
    m16(TD[0], TA[0], r.I, 0)
    cvt(TA[1], Ak[1], Ak[1]+1)
    add0(Aq[1]); add1(Aq[1])
    cvt(TA[1]+1, Aq[1], Aq[1]+1)
    m16(TD[1], TA[1], r.I, 0)
    a(f's_cmp_lg_u32 s{S_STEP}, 0'); a(f's_cselect_b32 s{S_T}, {HB_REC}, 0')
    V(1)
    if not nohk and not pvearly: pub_v()
    V(vw[0]-1)
    add64(a, S_HB, S_HB, f's{S_T}')
    for i in range(4): cvt(T+i, TD[0]+i, TD[1]+i)
    a(f's_cmp_eq_u32 s{S_STEP}, s{S_SP}'); a(f's_cbranch_scc1 {Lsp}')
    a.label(Lspb)
    m32(SX[0], r.KX, T, 0)
    a(f's_cmp_lt_u32 s{S_STEP}, 62'); a(f's_cselect_b32 s{S_T}, {HB_REC}, 0')
    m32(SX[1], r.KX+4, T, 0)
    m32(SM, T, T, 0)
    vrest = list(vq)
    V(vw[1])
    if vdef and not nohk: kv_load(a, r, 3, M)
    add64(a, S_KV, S_KV, f's{S_T}')
    for i in range(4): a(f'v_cndmask_b32_dpp v{SX[1]+i}, v{SX[0]+i}, v{SX[1]+i}, vcc {DPPQ}')
    SO = SX[1]; SMO = SM+1
    a(f'v_cndmask_b32_dpp v{SMO}, v{SM}, v{SM+1}, vcc {DPPQ}')
    V(vw[2])
    a(f'ds_write_b128 v{r.aL}, {vr(SO,4)} offset:{LS-LM+1024*w}')
    if wsplit: V(1)
    a(f'ds_write_b32 v{r.PG+1}, v{SMO} offset:{256*w}')
    V(vw[3]-1)
    if not nohk and pkpos == 1: pub_k()
    if bx is not None and w == 0: a(f'v_cmp_ne_u32 vcc, s{S_GS}, v{r.PG} ; nowaitcheck')
    V(1)
    pos[0] = None
    if bx is not None and w == 0:
        a(f's_cbranch_vccnz {Lbs}'); a.label(Lbg); a('s_waitcnt lgkmcnt(0)'); a('s_barrier')
    elif bx is not None and w == 1: a('s_waitcnt lgkmcnt(0)'); a('s_barrier')
    elif nowait & 1: a('s_barrier')
    else: a(f's_waitcnt vmcnt({0 if nohk else 5 + (1 if pkpos in (1, 3, 4) else 0) + (1 if (fused and w in hkw) else 0)}) lgkmcnt(0)'); a('s_barrier')
    st()
    tr(11)
    RD = [R+0, R+4, R+8]; RM = R+28
    o4 = (LS-LM+4096)//256
    for j in range(3): a(f'ds_read_b128 {vr(RD[j],4)}, v{r.aL} offset:{LS-LM+1024*(w^(j+1))}')
    V(1)
    a(f'ds_read2st64_b32 {vr(RM,2)}, v{r.PG+1} offset0:{w^1} offset1:{w^2}')
    a(f'ds_read_b32 v{RM+2}, v{r.PG+1} offset:{256*(w^3)}')
    V(len(vq))
    if not nohk and pkpos == 0: pub_k()
    assert not vq
    P = R+16; MX = R+26; TM = R+27
    D = [R+8, R+12]; SUM = R+28; X = R+0
    a('s_waitcnt lgkmcnt(2)')
    for i in range(4): a(f'v_add_f32 v{SO+i}, v{SO+i}, v{RD[0]+i}')
    pka(RD[1], RD[1], RD[2]); pka(RD[1]+2, RD[1]+2, RD[2]+2)
    a('s_waitcnt lgkmcnt(0)')
    a(f'v_add_f32 v{SMO}, v{SMO}, v{RM+2}'); a(f'v_add_f32 v{RM}, v{RM}, v{RM+1}')
    pka(SO, SO, RD[1]); pka(SO+2, SO+2, RD[1]+2)
    a(f'v_add_f32 v{SMO}, v{SMO}, v{RM}')
    pka(Av[0], Av[0], Av[0]+2); pka(Av[1], Av[1], Av[1]+2)
    def submax():
        a(f'v_max3_f32 v{MX}, v{SO}, v{SO+1}, v{SO+2}'); a(f'v_max3_f32 v{MX}, v{MX}, v{SO+3}, v{SMO}')
        a(f'v_max_f32_dpp v{MX}, v{MX}, v{MX} {DPPQ}')
        for sw in ('16', '32'):
            a(f'v_mov_b32 v{TM}, v{MX}'); a(f'v_permlane{sw}_swap_b32 v{MX}, v{TM}'); a(f'v_max_f32 v{MX}, v{MX}, v{TM}')
        for e in (SMO, SO, SO+1, SO+2, SO+3): a(f'v_sub_f32 v{e}, v{e}, v{MX}')
    if not nomax: submax()
    a.label(Lexp)
    a(f'v_exp_f32 v{X+4}, v{SMO}')
    cvt(r.VM, Av[0], Av[0]+1)
    a(f'v_exp_f32 v{X}, v{SO}')
    cvt(r.VM+2, Av[1], Av[1]+1)
    a(f'v_mov_b32_dpp v{TM}, v{X+4} {DPPQ}')
    a(f'v_exp_f32 v{X+1}, v{SO+1}')
    cvt(r.PZ, X+4, TM)
    a(f'v_exp_f32 v{X+2}, v{SO+2}')
    cvt(P, X, X+1)
    m16(SUM, r.One, r.PZ, 0); ldh(M+16, ('o',0,0), 0)
    a(f'v_exp_f32 v{X+3}, v{SO+3}')
    m16(D[0], r.VM, r.PZ, 0); ldh(M+16, ('o',0,0), 1)
    a(f'v_mov_b32_dpp v{P+2}, v{P} {DPPQ}')
    cvt(P+1, X+2, X+3)
    m16(D[1], r.VM+2, r.PZ, 0)
    a(f'v_mov_b32_dpp v{P+3}, v{P+1} {DPPQ}')
    st()
    m32(SUM, r.One, P, 1); ldh(M+24, ('o',0,1), 0)
    m32(D[0], r.VX, P, 1); ldh(M+24, ('o',0,1), 1)
    m32(D[1], r.VX+4, P, 1)
    a(f'v_rcp_f32 v{SUM+2}, v{SUM}')
    for i in range(4): a(f'v_mul_f32 v{D[0]+i}, v{D[0]+i}, v{SUM+2}')
    for i in range(2): a(f'v_pk_mul_f32 {vr(D[1]+2*i,2)}, {vr(D[1]+2*i,2)}, {vr(SUM+2,2)} op_sel_hi:[1,0]')
    OP = R+0
    for i in range(4): cvt(OP+i, D[0]+i, D[1]+i)
    a(f'ds_write_b128 v{r.aOw}, {vr(OP,4)}')
    if nowait & 2:
        a('s_barrier'); a(f'ds_read_b128 {vr(R+24,4)}, v{r.aL}')
    a(f'v_mfma_f32_32x32x8_bf16 {vr(A,16)}, {vr(r.Z,2)}, {vr(r.Z,2)}, 0')
    ldh(R+8, ('o',6,0), 0); ldh(R+8, ('o',6,0), 1)
    if nomax and not nowait & 2:
        a(f'v_max_f32 v{SUM}, v{SUM}, v{SUM+2}'); a(f'v_cmp_nge_f32 vcc, {f2u(2.0**60):#x}, v{SUM}')
        a(f's_cbranch_vccnz {Lfb}'); a.label(Lnofb)
    if not nowait & 2: a('s_waitcnt lgkmcnt(2)'); a('s_barrier')
    st()
    if rt is not None:
        lt = a.newlabel('Lc_t'); a('s_waitcnt lgkmcnt(0)'); a(f's_cmp_lg_u32 s{S_STEP}, {rt}'); a(f's_cbranch_scc1 {lt}')
        _ = [a(f's_mov_b32 s{84+k}, s{(S_STAMP+2*k) if k != 10 else 96}') for k in range(12)]
        a.label(lt)
    tr(0)
    O = R+24
    a(f'ds_read_b128 {vr(O,4)}, v{r.aL}'); a(f'ds_read_b128 {vr(O+4,4)}, v{r.aL} offset:1024')
    a(f'v_mfma_f32_32x32x8_bf16 {vr(A+16,16)}, {vr(r.Z,2)}, {vr(r.Z,2)}, 0')
    if not nohk and pkpos == 2: pub_k()
    a(f's_xor_b32 s{S_EM}, s{S_EM}, 1'); a(f's_add_u32 s{S_STEP}, s{S_STEP}, 1'); a(f's_mov_b32 s{S_SPIN}, 0')
    land = {('o',0,0): M+16, ('o',0,1): M+24, ('o',6,0): R+8, ('o',6,1): R+16, ('o',7,0): R, ('o',7,1): M+16}
    def ob(b): return vr(land[b], 8) if b in land else r.blk(b)
    def ad(t, e): c = A+4*t+e; return f'v_add_f32 v{c}, v{c}, v{c+2}'
    def fin(p):
        c = A+8*p
        return [ad(2*p+1, 0), ad(2*p+1, 1), f'v_cvt_pk_bf16_f32 v{c}, v{c}, v{c+4}', f'v_cvt_pk_bf16_f32 v{c+1}, v{c+1}, v{c+5}', f'v_and_or_b32 v{c}, v{c}, -2, s{S_EP}']
    def sto(p): return f'global_store_dwordx2 v{r.aPst}, {vr(A+8*p,2)}, s[{S_CP+2*p}:{S_CP+2*p+1}] {stf}'
    after = {3: [ad(0,0)], 4: [ad(0,1)], 5: fin(0), 6: [sto(0)], 7: [ad(2,0)], 8: [ad(2,1)], 9: fin(1)[:2], 10: fin(1)[2:], 11: [sto(1), ad(4,0), ad(4,1)],
             13: fin(2)[:2], 14: fin(2)[2:], 15: [sto(2), ad(6,0), ad(6,1), f'v_pk_add_f32 {vr(A+28,2)}, {vr(A+28,2)}, {vr(A+30,2)}'] + fin(3)[2:] + [sto(3)]}
    lq = [(R+16, ('o',6,1), 0), (R+16, ('o',6,1), 1), (R, ('o',7,0), 0), (R, ('o',7,0), 1), (M+16, ('o',7,1), 0), (M+16, ('o',7,1), 1)]
    a('s_waitcnt lgkmcnt(1)')
    younger = 0; issued = False; nst = 0
    for t in range(8):
        for k in range(2):
            i = 2*t+k
            smf(A+4*t, O+4*k, ob(('o', t, k)))
            if i == 0: a('s_waitcnt lgkmcnt(0)')
            if i in (1, 2, 3, 4, 5, 7): ldh(*lq.pop(0))
            if i == 12: a('s_waitcnt lgkmcnt(0)')
            if i == pat[w]: p_loads(); issued = True; tr(3)
            for l in after.get(i, []):
                if l.startswith('global_store') and nst == 3 and pat[w] == 15.5: p_loads(); issued = True; tr(3)
                a(l)
                if l.startswith('global_store'):
                    if issued: younger += 1
                    if nst in (0, 3): tr(1 if nst == 0 else 2)
                    nst += 1
    if nocomm: ns[0] = 9
    st()
    chores = []
    chores += [f's_waitcnt vmcnt({4 + (2 if issued else 0) + (0 if nohk else ((0 if pkpos >= 3 else 1) if vdef else (1 if pkpos == 4 else 2) + (1 if (fused and w in hkw) else 0)))})\n' + '\n'.join(f'v_mov_b32 v{PD+i}, 0' for i in (2, 3, 0, 1))] + [f'v_mov_b32 v{r.KX+i}, v{M+i}' for i in range(16)]
    chores += [f'ds_read_b128 {vr(R+8*e+4*hh,4)}, v{r.aW} offset:{r.place[("q",1,e)][1]+1024*hh}' for e in range(2) for hh in range(2)]
    chores += [f'v_mov_b32 v{A+i}, 0' for i in range(24)]
    chores += [f'v_mov_b32 v{A+30}, v{r.VM}', f'v_mov_b32 v{A+31}, v{r.VM+2}', f's_add_u32 s{S_GS}, s{S_GS}, 1', f'v_mov_b32 v{r.PZ}, s{S_GS}']
    nch = len(chores)
    def do_chores(cyc, pad=True):
        n = cyc // 4
        while n > 0 and chores: a(chores.pop(0)); n -= 1
        if pad: nops(4*n)
    def then(cyc, need):
        do_chores(cyc); do_chores(4*max(0, need - (nch - len(chores))))
    if not issued:
        if ack1[w] is not None: do_chores(240, False); a(f's_waitcnt vmcnt({ack1[w]})')
        else: do_chores(max(d1[w], 4))
        p_loads(); tr(3)
    for k in range(1, nb):
        do_chores(bk if (k > 1 or not issued) else max(4, bk - 40)); p_loads(k); younger += 2
    do_chores(max(min(c1[w], 4*len(chores)), 4), False)
    if eh: then(0, 5)
    if stamps and ns[0]:
        a('s_waitcnt lgkmcnt(0)')
        n = ns[0]
        for k in range(1, n):
            a(f's_sub_u32 s{S_T}, s{S_STAMP+2*k}, s{S_STAMP+2*k-2}'); a(f's_add_u32 s{84+k}, s{84+k}, s{S_T}')
        a(f's_sub_u32 s{S_T}, s{S_STAMP}, s83'); a(f's_mov_b32 s83, s{S_STAMP+2*(n-1)}')
        a(f's_cmp_eq_u32 s{S_STEP}, 1'); a(f's_cselect_b32 s{S_T}, 0, s{S_T}'); a(f's_add_u32 s84, s84, s{S_T}')
    def reduce(k, failto, early=None):
        a(f'v_smfmac_f32_16x16x64_bf16 {vr(PD,4)}, {vr(r.E,4)}, {vr(PL[k],8)}, v{r.idx} abid:1')
        if early: early()
        a(f'v_bitop3_b32 v{t0}, v{PL[k]}, v{PL[k]+2}, s{S_EP} bitop3:0x7e')
        a(f'v_bitop3_b32 v{t1}, v{PL[k]+4}, v{PL[k]+6}, s{S_EP} bitop3:0x7e')
        a(f'v_bitop3_b32 v{t0}, v{t0}, v{t1}, 1 bitop3:0xa8')
        a(f'v_cmp_ne_u32 vcc, 0, v{t0}')
        for ror in (8, 4):
            for i in range(4):
                a(f'v_add_f32_dpp v{PD+i}, v{PD+i}, v{PD+i} row_ror:{ror} row_mask:0xf bank_mask:0xf')
                if ror == 8 and i == 2: a(f's_cbranch_vccnz {failto}')
        a(f's_mov_b64 exec, s[{S_XR}:{S_XR+1}]')
        cvt(PD, PD, PD+1); cvt(PD+1, PD+2, PD+3)
        a(f'v_and_or_b32 v{PD}, v{PD}, -2, s{S_EM}')
        a(f'global_store_dwordx2 v{r.aMst}, {vr(PD,2)}, s[{S_CM}:{S_CM+1}] {stf}')
        a(XA)
    assert not e3
    Lok = a.newlabel('Lc_p1'); Lq = [a.newlabel('Lc_r1') for _ in range(nb)]
    a(f's_waitcnt vmcnt({younger})')
    tr(4)
    hookE = (lambda: e_load(0, ef)) if eh else None
    reduce(0, Lq[1 % nb], hookE)
    a.label(Lok)
    tr(5)
    a(f's_xor_b32 s{S_EP}, s{S_EP}, 1')
    EB = M+20
    def e_back():
        b = S_CME if rep else S_CML
        a(f'global_load_dwordx4 {vr(EB,4)}, v{r.aL}, s[{b}:{b+1}] offset:{1024*frag_of(w,0)-4096} sc1')
    if ee:
        if not eh: then(d2[w] - e0e, 5); e_load(0, ef); then(e0e, 5)
        else: then(d2[w], 5)
        e_back(); tr(6); then(e1g, 9); e_load(1, ef)
    else:
        if ack2[w]: do_chores(200, False); a('s_waitcnt vmcnt(0)')
        then(0 if ack2[w] else d2[w], 5); e_load(0, ef); tr(6); then(es, 9); e_load(1, ef)
        if eb is not None: then(eb, 0); e_back()
    if fused and w == hkw[1]: a(f's_sub_u32 s{S_T}, s{S_STEP}, 1'); a(f'v_mov_b32 v{t1}, s{S_T}')
    then(e23[w], 13); e_load(2, ef)
    if not e3in: then(es, 17); e_load(3, ef)
    do_chores(4*len(chores))
    a(f's_branch {LA}')
    for k in list(range(1, nb)) + [0]:
        a.label(Lq[k])
        p_loads((k-1) % nb); zero(PD, 4)
        if stamps and rt is None: a(f's_add_u32 s94, s94, 1')
        if k == 0: spin_or_fail()
        a(f's_waitcnt vmcnt({2*(nb-1) if not eh else (3 if nb == 2 else 0)})')
        reduce(k, Lq[(k+1) % nb], hookE)
        a(f's_branch {Lok}')
    if eb is not None or ee:
        Lr0 = Lr[0]; Lr[0] = a.newlabel('Lc_rE0')
        a.label(Lr0)
        if stamps and rt is None: a('s_add_u32 s92, s92, 63')
        a('s_nop 4'); zero(A, 8)
        a(f's_waitcnt vmcnt({len(vm0) - 1 - vm0.index("x")})')
        for i in range(4): a(f'v_mov_b32 v{M+i}, v{EB+i}')
        for l in chk(0): a(l)
        a(f's_cbranch_vccz {Lc[0]}')
    for j in range(5):
        a.label(Lr[j])
        if stamps and rt is None: a(f's_add_u32 s{95 if j == 0 else 93}, s{95 if j == 0 else 93}, {1 if j == 0 else 63}')
        n = 0
        seq = vm0 if j == 0 else (issued_at[j] if j < 4 else ['E4'])
        for nm in seq[seq.index('E%d' % j):]:
            if nm[0] == 'E': e_load(int(nm[1]))
            else: a(f'global_load_dword v{A+24}, v{r.aL}, s[{S_CPR}:{S_CPR+1}] sc1')
            n += 1
        spin_or_fail()
        if j == 0: a('s_nop 4'); zero(A, 8)
        a(f's_waitcnt vmcnt({n-1})')
        for l in chk(j): a(l)
        if j == 4: a(f'ds_write_b128 v{r.aL}, {vr(M+16,4)} offset:{1024*w}')
        a(f's_cbranch_vccnz {Lr[j]}')
        if j == 4: a('s_waitcnt lgkmcnt(0)')
        a(f's_branch {Lc[j]}')
    if fused and w == hkw[0]:
        if stamps and rt is None:
            lb = a.newlabel('Lc_hb2'); a.label(Lhb); a('s_add_u32 s92, s92, 63'); Lhb = lb
        prog_block(a, r, Lhb, Lhk, S_T3, fail)
    if bx is not None and w == 0:
        a.label(Lbs)
        if stamps and rt is None: a('s_add_u32 s92, s92, 63')
        lb2 = a.newlabel('Lc_bs2'); a.label(lb2)
        for k in range(4):
            a(f'v_cmp_ne_u32 vcc, s{S_GS}, v{r.PG} ; nowaitcheck'); probe(); nops(bg); a(f's_cbranch_vccz {Lbg}')
        spin_or_fail(); a(f's_branch {lb2}')
    if nomax and not nowait & 2:
        a.label(Lfb)
        a(f's_cmp_lg_u32 s{S_FB}, 0'); a(f's_cbranch_scc1 {Lnofb}')
        a(f's_mov_b32 s{S_FB}, 1'); a('s_waitcnt lgkmcnt(0)')
        submax()
        a(f's_branch {Lexp}')
    a.label(Lsp)
    a(f's_cmp_eq_u32 s{S_STEP}, 63'); a(f's_cbranch_scc1 {Ldone}')
    a(f's_mov_b32 s{S_SP}, 63')
    a('s_waitcnt vmcnt(0)'); a(f's_branch {Lspb}')
    a.label(Lk0)
    if started: started(A+26)
    for i in range(4): kv_load(a, r, i, r.KX, S_HB)
    a(f's_branch {Lk0b}')
    a.label(Ldone)
    if not nohk: pub_k()
    for t, sl in vrest: S('v', t, sl)
    if not nohk:
        for t in range(2):
            add0(Av[t]); add1(Av[t]); cvt(A+30+t, Av[t], Av[t]+1)
        pub_v()
    a('s_waitcnt vmcnt(0)'); a('s_barrier')
    if fused and w == hkw[1]:
        a(f'v_mov_b32 v{t0}, 64'); a('s_mov_b64 exec, 1'); a(f'global_store_dword v{r.Z}, v{t0}, s[{S_FW}:{S_FW+1}] sc1'); a(XA)
    a(f's_branch {done}')

def chain_all_waves(a, r, stf, fail, **kw):
    done = a.newlabel('Lc_alldone'); lw = [a.newlabel('Lc_wave') for _ in range(4)]
    a(f'v_mov_b32 v{r.A+29}, 0')
    for w in range(1, 4):
        a(f's_cmp_eq_u32 s{S_W}, {w}'); a(f's_cbranch_scc1 {lw[w]}')
    for w in range(4):
        a.label(lw[w]); chain_wave(a, r, w, stf, fail, done, **kw)
    a.label(done)

def chain_kernel_standalone(half, stamps=False, **kw):
    a = Asm(); a._lbl = 1000 * (half + 1); r = ChainRegs()
    end = a.newlabel('Lc_end')
    a(f's_load_dwordx2 s[{S_WS}:{S_WS+1}], s[0:1], {KA_WS}')
    a(f's_load_dwordx2 s[{S_DBG}:{S_DBG+1}], s[0:1], {KA_DBG}')
    a(f's_getreg_b32 s{S_T}, hwreg(HW_REG_XCC_ID, 0, 4)')
    a('s_waitcnt lgkmcnt(0)')
    a(f's_cmp_lg_u32 s{S_T}, 0'); a(f's_cbranch_scc1 {end}')
    l0 = a.newlabel('Lc')
    a('v_mov_b32 v1, 0'); a('v_mov_b32 v2, 1'); a('v_cmp_eq_u32 vcc, 0, v0')
    a('s_and_saveexec_b64 s[12:13], vcc'); a(f's_cbranch_execz {l0}')
    a(f'global_atomic_add v3, v1, v2, s[{S_DBG}:{S_DBG+1}] sc0 sc1'); a('s_waitcnt vmcnt(0)')
    a('ds_write_b32 v1, v3'); a('s_waitcnt lgkmcnt(0)')
    a.label(l0)
    a('s_mov_b64 exec, s[12:13]'); a('s_barrier')
    a('ds_read_b32 v3, v1'); a('s_waitcnt lgkmcnt(0)'); a(f'v_readfirstlane_b32 s{S_H}, v3'); a('s_barrier')
    a(f's_cmp_ge_u32 s{S_H}, 32'); a(f's_cbranch_scc1 {end}')
    if stamps: a('s_memtime s[98:99]')
    chain_setup(a, r)
    a(f's_mov_b32 s{S_EP}, 0'); a(f's_mov_b32 s{S_EM}, 0'); a(f's_mov_b32 s{S_HALF}, {half}')
    chain_init_comm(a, r, '', True)
    group_arrive(a, r.R, 4); group_wait(a, r.R, 4, 32, end)
    if kw.get('rt') is not None:
        a('s_memrealtime s[60:61]'); a('s_waitcnt lgkmcnt(0)'); a('s_add_u32 s62, s60, 2048'); a('s_and_b32 s62, s62, 0xfffff000'); a('s_add_u32 s62, s62, 4096')
        a('s_mov_b32 s63, 0'); a('s_mov_b32 s99, 0'); a('s_mov_b32 s98, 0')
        a.label('Lcal')
        a('s_memrealtime s[60:61]'); a('s_memtime s[64:65]'); a('s_waitcnt lgkmcnt(0)'); a('s_sub_u32 s61, s60, s62'); a('s_cmp_lt_i32 s61, 0'); a('s_cbranch_scc1 Lcal')
        a('s_cmp_eq_u32 s63, 0'); a('s_cselect_b32 s99, s64, s99'); a('s_sub_u32 s64, s64, s99'); a('s_add_u32 s98, s98, s64')
        a('s_add_u32 s62, s62, 44'); a('s_add_u32 s63, s63, 1'); a('s_cmp_lt_u32 s63, 32'); a('s_cbranch_scc1 Lcal')
        a('s_lshr_b32 s98, s98, 5'); a('s_add_u32 s99, s99, s98'); a('s_mov_b32 s98, s62')
    if stamps: a('s_memtime s[100:101]')
    chain_start(a, r, end, 0)
    chain_all_waves(a, r, '', end, fused=0, stamps=stamps, **kw)
    if stamps:
        a('s_memtime s[60:61]'); a('s_waitcnt lgkmcnt(0)')
        a('s_sub_u32 s96, s100, s98'); a('s_sub_u32 s97, s60, s100')
        for k in range(16): a(f'v_mov_b32 v{k}, s{84+k}')
        a(f's_lshl_b32 s{S_T}, s{S_H}, 2'); a(f's_add_u32 s{S_T}, s{S_T}, s{S_W}'); a(f's_lshl_b32 s{S_T}, s{S_T}, 6')
        a(f's_add_u32 s{S_T}, s{S_T}, {STAMP_OFF}')
        a(f'v_mov_b32 v16, s{S_T}')
        for k in range(4): a(f'global_store_dwordx4 v16, {vr(4*k,4)}, s[{S_WS}:{S_WS+1}] offset:{16*k}')
    a.label(end)
    a('s_waitcnt vmcnt(0)'); a('s_endpgm')
    return a.lines

def autostamp(lines, start, stride, n=9):
    out = []; inb = False; idx = 0; k = 0; names = []; first = True
    for l in lines:
        if l == '; BODY_BEGIN': inb = True; idx = 0; k = 0
        if l == '; BODY_END':
            while k < n:
                out.append(f's_memtime s[{S_STAMP+2*k}:{S_STAMP+2*k+1}]'); k += 1
            inb = False; first = False
        if l.startswith('s_cbranch_vccnz'): l = 's_cbranch_vccnz ' + f'Lnx_{len(out)}\nLnx_{len(out)}:'
        if inb and is_instr(l.split('\n')[0]):
            if k < n and idx == start + k * stride:
                out.append(f's_memtime s[{S_STAMP+2*k}:{S_STAMP+2*k+1}]'); k += 1
            if first: names.append(l.split('\n')[0])
            idx += 1
        out += l.split('\n')
    return out, names

if __name__ == '__main__':
    rep = []
    lines = fix_hazards(chain_kernel_standalone(0, stamps=True), rep)
    for e in check_waits(lines, 'chain'): print(e)
    for x in rep[14:32]: print(x)
    t = assemble_file('', [('chain0_kernel', 256, 256, 163840)], [('chain0_kernel', lines, 512, 256)])
    open('chain_test.s', 'w').write(t)
    print(len(lines))
```

```python
from asmlib import *
from layout import *
import math, struct
def f2u(f): return struct.unpack('<I', struct.pack('<f', f))[0]

S_WS = 4; S_W = 7; S_SRD = 8; S_WSRD = 12
S_T = 16; S_T2 = 17; S_T3 = 18; S_OFF = 19
S_OUT = 20
S_IN = 22
S_TASK = 24; S_A = 25; S_B = 26; S_CNT = 27; S_XO = 28; S_BUF = 29; S_K0 = 30; S_K1 = 31
S_P = 32
S_M = 34

def add64(a, dst, base, off):
    a(f's_add_u32 s{dst}, s{base}, {off}'); a(f's_addc_u32 s{dst+1}, s{base+1}, 0')

def common_prologue(a, L, L16):
    a(f's_load_dwordx2 s[{S_WS}:{S_WS+1}], s[0:1], {KA_WS}')
    a(f'v_lshrrev_b32 v{L16}, 6, v0'); a(f'v_and_b32 v{L}, 63, v0')
    a(f'v_readfirstlane_b32 s{S_W}, v{L16}')
    a(f'v_lshlrev_b32 v{L16}, 4, v{L}')
    a('s_waitcnt lgkmcnt(0)')
    a(f's_mov_b32 s{S_WSRD}, s{S_WS}'); a(f's_mov_b32 s{S_WSRD+1}, s{S_WS+1}'); a(f's_mov_b32 s{S_WSRD+2}, {256*MB}'); a(f's_mov_b32 s{S_WSRD+3}, 0x20000')

def pi_of(a, dst, src, t):
    a(f'v_and_b32 v{dst}, 0x13, v{src}')
    a(f'v_bfe_u32 v{t}, v{src}, 2, 1'); a(f'v_lshl_or_b32 v{dst}, v{t}, 3, v{dst}')
    a(f'v_bfe_u32 v{t}, v{src}, 3, 1'); a(f'v_lshl_or_b32 v{dst}, v{t}, 2, v{dst}')

def vpos16(a, dst, f, hh_src, t):
    a(f'v_and_b32 v{t}, 1, v{f}'); a(f'v_lshrrev_b32 v{dst}, 1, v{f}'); a(f'v_lshl_or_b32 v{dst}, v{t}, 4, v{dst}')
    a(f'v_lshlrev_b32 v{dst}, 4, v{dst}'); a(f'v_lshrrev_b32 v{t}, 5, v{hh_src}'); a(f'v_lshl_or_b32 v{dst}, v{t}, 9, v{dst}')

def load_wslices(a, mats, stride, L, t0, t1, t2, share=None, early=None, first=None):
    a(f'v_bfe_u32 v{t0}, v{L}, 2, 2'); a(f's_mov_b32 s{S_T}, {stride}'); a(f'v_mul_lo_u32 v{t0}, v{t0}, s{S_T}')
    a(f'v_lshrrev_b32 v{t2}, 4, v{L}'); a(f'v_lshl_add_u32 v{t0}, v{t2}, 6, v{t0}')
    a(f'v_and_b32 v{t2}, 3, v{L}'); a(f'v_lshl_add_u32 v{t0}, v{t2}, 4, v{t0}')
    a(f'v_lshrrev_b32 v{t1}, 5, v{L}'); a(f'v_lshlrev_b32 v{t1}, 11, v{t1}')
    a(f'v_bfe_u32 v{t2}, v{L}, 2, 2'); a(f'v_lshl_add_u32 v{t1}, v{t2}, 6, v{t1}')
    a(f'v_bfe_u32 v{t2}, v{L}, 4, 1'); a(f'v_lshl_add_u32 v{t1}, v{t2}, 5, v{t1}')
    a(f'v_and_b32 v{t2}, 1, v{L}'); a(f'v_lshl_add_u32 v{t1}, v{t2}, 4, v{t1}')
    a(f'v_bfe_u32 v{t2}, v{L}, 1, 1'); a(f'v_lshl_add_u32 v{t1}, v{t2}, 3, v{t1}')
    a(f's_lshl_b32 s{S_T}, s{S_W}, 8'); a(f'v_add_u32 v{t1}, s{S_T}, v{t1}'); a(f'v_add_u32 v{t2}, 65536, v{t1}')
    a(f's_mul_i32 s{S_K0}, s{S_W}, {64*stride}'); a(f's_add_u32 s{S_K0}, s{S_K0}, s{S_OFF}')
    a(f's_lshl_b32 s{S_K1}, s{S_W}, 14')
    a(f's_mov_b32 s{S_SRD+3}, 0x20000')
    chunks = [(m, c) for m in range(len(mats)) for c in range(2)]
    cur = [None]; ntouch = 0
    if share is not None:
        rank, n = share; rows = 512 // n; tp = t2 + 1
        a(f's_lshl_b32 s{S_T}, s{S_W}, 6'); a(f'v_add_u32 v{tp}, s{S_T}, v{L}')
        a(f'v_and_b32 v{tp+1}, 1, v{tp}'); a(f'v_lshrrev_b32 v{tp}, 1, v{tp}'); a(f'v_and_b32 v{tp}, {min(rows,128)-1}, v{tp}')
        a(f's_mov_b32 s{S_T}, {stride}'); a(f'v_mul_lo_u32 v{tp}, v{tp}, s{S_T}'); a(f'v_lshl_add_u32 v{tp}, v{tp+1}, 7, v{tp}')
        a(f's_mul_i32 s{S_T2}, s{rank}, {rows*stride}'); a(f's_add_u32 s{S_T2}, s{S_T2}, s{S_OFF}')
        for ka, nb, const, _, _ in mats:
            if cur[0] != ka:
                a(f's_load_dwordx2 s[{S_SRD}:{S_SRD+1}], s[0:1], {ka}'); a(f's_mov_b32 s{S_SRD+2}, {nb}'); a('s_waitcnt lgkmcnt(0)'); cur[0] = ka
            for r0 in range(0, rows, 128):
                a(f's_add_u32 s{S_T}, s{S_T2}, {const + r0*stride}')
                a(f'buffer_load_dword v{tp+1}, v{tp}, s[{S_SRD}:{S_SRD+3}], s{S_T} offen'); ntouch += 1
    def issue(ci):
        m, c = chunks[ci]; ka, nb, const, _, _ = mats[m]
        if cur[0] != ka:
            a(f's_load_dwordx2 s[{S_SRD}:{S_SRD+1}], s[0:1], {ka}'); a(f's_mov_b32 s{S_SRD+2}, {nb}'); a('s_waitcnt lgkmcnt(0)'); cur[0] = ka
        for i in range(16):
            a(f's_add_u32 m0, s{S_K1}, {(ci&1)*65536 + i*1024}')
            a(f's_add_u32 s{S_T}, s{S_K0}, {const + (256*c + 4*i)*stride}')
            a(f'buffer_load_dwordx4 v{t0}, s[{S_SRD}:{S_SRD+3}], s{S_T} offen lds')
    issue(0)
    for ci in range(len(chunks)):
        if ci == max(len(chunks) - 2, 1) and early: early()
        if ci + 1 < len(chunks):
            issue(ci + 1)
            if ci == 0 and first: first()
            a('s_waitcnt vmcnt(16)')
        else: a('s_waitcnt vmcnt(0)')
        a('s_barrier')
        m, c = chunks[ci]; _, _, _, kind, base = mats[m]
        n = 0
        for kb in range(16):
            for half in range(2):
                r = base + 4*(16*c+kb) + 2*half
                a(f'ds_read_b64_tr_b16 {vr(r,2,kind)}, v{t2 if ci&1 else t1} offset:{(4*kb+half)*1024}')
                n += 1
                if n % 12 == 0: a('s_waitcnt lgkmcnt(4)')
        a('s_waitcnt lgkmcnt(0)'); a('s_barrier')

def dma_x(a, L16, soff_sgpr, buf_sgpr, flags=''):
    a(f's_lshl_b32 s{S_T2}, s{S_W}, 13'); a(f's_add_u32 s{S_T3}, s{S_T2}, s{soff_sgpr}'); a(f's_add_u32 s{S_T2}, s{S_T2}, s{buf_sgpr}')
    for i in range(8):
        if i % 4 == 0:
            a(f's_add_u32 m0, s{S_T2}, {i*1024}'); a(f's_add_u32 s{S_T}, s{S_T3}, {i*1024}')
        a(f'buffer_load_dwordx4 v{L16}, s[{S_WSRD}:{S_WSRD+3}], s{S_T} offen offset:{(i%4)*1024} {flags} lds')

def mf(d, x, y, c): return f'v_mfma_f32_32x32x16_bf16 {vr(d,16)}, {x}, {y}, {c}'

def gemm_core(a, xaddr, XR, tiles, hooks={}):
    for kb in range(3): a(f'ds_read_b128 {vr(XR+4*kb,4)}, v{xaddr} offset:{kb*1024}')
    for kb in range(32):
        if kb + 3 < 32: a(f'ds_read_b128 {vr(XR+4*((kb+3)%4),4)}, v{xaddr} offset:{(kb+3)*1024}')
        a(f's_waitcnt lgkmcnt({min(3, 31-kb)})')
        x = vr(XR+4*(kb%4), 4)
        for acc, kind, wb, swap in tiles:
            w = vr(wb+4*kb, 4, kind)
            a(mf(acc, x if swap else w, w if swap else x, vr(acc,16) if kb else 0))
        if kb in hooks: hooks[kb]()

def pack_store(a, acc, addr, base, flags='', scale=None, offs=(0, 1024)):
    for j in range(2):
        if scale is not None:
            for i in range(8): a(f'v_mul_f32 v{acc+8*j+i}, s{scale}, v{acc+8*j+i}')
        for i in range(4): a(f'v_cvt_pk_bf16_f32 v{acc+8*j+i}, v{acc+8*j+2*i}, v{acc+8*j+2*i+1}')
        a(f'global_store_dwordx4 v{addr}, {vr(acc+8*j,4)}, s[{base}:{base+1}] offset:{offs[j]} {flags}')

def proj_kernel(half, isB, nwg=256):
    a = Asm(); a._lbl = 2000 + 100*half + 50*isB
    H = W.H[half]
    L, L16, t0, t1, t2, vq, vk, vv, xa = range(1, 10)
    XR = 12; ACC = 28; WV = 128
    end = a.newlabel('Lp_end')
    a(f's_cmp_ge_u32 s2, {nwg}'); a(f's_cbranch_scc1 {end}')
    common_prologue(a, L, L16)
    nsl = 32 if isB else 4
    ngr = nwg // nsl
    a(f's_and_b32 s{S_A}, s2, {nsl-1}'); a(f's_lshr_b32 s{S_B}, s2, {int(math.log2(nsl))}')
    a(f's_lshl_b32 s{S_OFF}, s{S_A}, 8')
    xn = H.XNB if isB else H.XNA
    a(f's_lshl_b32 s{S_XO}, s{S_B}, 15'); a(f's_add_u32 s{S_XO}, s{S_XO}, {xn}'); a(f's_mov_b32 s{S_BUF}, {128*1024}')
    dma_x(a, L16, S_XO, S_BUF)
    if isB: mats = [(KA_WK, 4*MB, 0, 'a', 128), (KA_WV, 4*MB, 0, 'v', WV), (KA_WQ, 4*MB, 0, 'a', 0)]; stride = 8192
    else: mats = [(KA_WQKV, 1536*1024, 1024, 'a', 128), (KA_WQKV, 1536*1024, 2048, 'v', WV), (KA_WQKV, 1536*1024, 0, 'a', 0)]; stride = 3072
    load_wslices(a, mats, stride, L, t0, t1, t2)
    ro = (HB_Q, HB_K, HB_V) if isB else (0, H.KA - H.QA, H.VA - H.QA)
    a(f's_lshl_b32 s{S_T}, s{S_W}, 11')
    a(f's_add_u32 s{S_T2}, s{S_T}, {ro[0]}'); a(f'v_add_u32 v{vq}, s{S_T2}, v{L16}')
    a(f's_add_u32 s{S_T2}, s{S_T}, {ro[1]}'); a(f'v_add_u32 v{vk}, s{S_T2}, v{L16}')
    pi_of(a, t0, L, t1); vpos16(a, vv, t0, L, t1)
    a(f's_add_u32 s{S_T2}, s{S_T}, {ro[2]}'); a(f'v_add_u32 v{vv}, s{S_T2}, v{vv}')
    a(f's_lshl_b32 s{S_T}, s{S_A}, {21 if isB else 13}'); a(f's_lshl_b32 s{S_T2}, s{S_B}, 15'); a(f's_add_u32 s{S_T}, s{S_T}, s{S_T2}')
    a(f's_add_u32 s{S_T}, s{S_T}, {H.HB if isB else H.QA}'); add64(a, S_OUT, S_WS, f's{S_T}')
    a(f's_mov_b32 s{S_M}, {f2u(0.25*math.log2(math.e)):#x}')
    lp = a.newlabel('Lp_loop'); nod = a.newlabel('Lp_nod')
    a.label(lp)
    a(f'v_add_u32 v{xa}, s{S_BUF}, v{L16}')
    a(f's_add_u32 s{S_B}, s{S_B}, {ngr}'); a(f's_xor_b32 s{S_BUF}, s{S_BUF}, {128*1024}')
    a(f's_add_u32 s{S_XO}, s{S_XO}, {ngr*32768}')
    a(f's_cmp_ge_u32 s{S_B}, 64'); a(f's_cbranch_scc1 {nod}')
    dma_x(a, L16, S_XO, S_BUF)
    a.label(nod)
    gemm_core(a, xa, XR, [(ACC+16, 'a', 128, False), (ACC+32, 'v', WV, True), (ACC, 'a', 0, False)])
    a('s_waitcnt vmcnt(0)'); a('s_barrier')
    pack_store(a, ACC+16, vk, S_OUT); pack_store(a, ACC+32, vv, S_OUT); pack_store(a, ACC, vq, S_OUT, scale=None if isB else S_M)
    add64(a, S_OUT, S_OUT, ngr*32768)
    a(f's_cmp_lt_u32 s{S_B}, 64'); a(f's_cbranch_scc1 {lp}')
    a.label(end); a('s_endpgm')
    return a.lines

def woa_kernel(half, nwg=256):
    a = Asm(); a._lbl = 3000 + 100*half
    H = W.H[half]
    L, L16, t0, t1, t2, vo, xa = range(1, 8)
    XR = 12; ACC = 28; WV = 128
    end = a.newlabel('Lw_end')
    a(f's_cmp_ge_u32 s2, {nwg}'); a(f's_cbranch_scc1 {end}')
    common_prologue(a, L, L16)
    a(f's_and_b32 s{S_A}, s2, 3'); a(f's_lshr_b32 s{S_B}, s2, 2')
    a(f's_lshl_b32 s{S_OFF}, s{S_A}, 8')
    a(f's_lshl_b32 s{S_XO}, s{S_B}, 15'); a(f's_add_u32 s{S_XO}, s{S_XO}, {H.OA}'); a(f's_mov_b32 s{S_BUF}, {128*1024}')
    dma_x(a, L16, S_XO, S_BUF)
    load_wslices(a, [(KA_WOA, 512*1024, 0, 'v', WV)], 1024, L, t0, t1, t2)
    a(f's_lshl_b32 s{S_T}, s{S_W}, 11'); a(f'v_add_u32 v{vo}, s{S_T}, v{L16}')
    a(f's_lshl_b32 s{S_T}, s{S_A}, 13'); a(f's_lshl_b32 s{S_T2}, s{S_B}, 15'); a(f's_add_u32 s{S_T}, s{S_T}, s{S_T2}')
    a(f's_add_u32 s{S_T}, s{S_T}, {H.YA}'); add64(a, S_OUT, S_WS, f's{S_T}')
    a(f'v_add_u32 v{xa}, s{S_BUF}, v{L16}')
    gemm_core(a, xa, XR, [(ACC, 'v', WV, False)])
    pack_store(a, ACC, vo, S_OUT)
    a.label(end); a('s_endpgm')
    return a.lines

def rb_body(a, npart, xin, xin_rm, part, pstride, segstride, xout, xout_rm, xn, ldf='', stf='', ready=None, ldsoff=0, vb=0, xwait=None, dual=None):
    L, L16 = 1, 2; af, ar, t0, t1, t2, t3, sm = range(3+vb, 10+vb); la = 100+vb
    X = 12+vb; F = 20+vb; P = 36+vb
    a(f'v_lshrrev_b32 v{t0}, 3, v{L}'); a(f'v_and_b32 v{t1}, 7, v{L}')
    a(f'v_lshlrev_b32 v{af}, 9, v{t0}'); a(f'v_lshl_add_u32 v{af}, v{t1}, 4, v{af}')
    a(f's_lshl_b32 s{S_T}, s{S_W}, 13'); a(f's_lshl_b32 s{S_T2}, s{S_B}, 7'); a(f's_add_u32 s{S_T}, s{S_T}, s{S_T2}'); a(f's_add_u32 s{S_T}, s{S_T}, 2048')
    a(f'v_add_u32 v{af}, s{S_T}, v{af}')
    a(f'v_lshlrev_b32 v{ar}, 10, v{t1}'); a(f'v_lshl_add_u32 v{ar}, v{t0}, 4, v{ar}')
    a(f's_lshl_b32 s{S_T}, s{S_A}, 15'); a(f's_lshl_b32 s{S_T2}, s{S_B}, 13'); a(f's_add_u32 s{S_T}, s{S_T}, s{S_T2}'); a(f's_lshl_b32 s{S_T2}, s{S_W}, 8'); a(f's_add_u32 s{S_T}, s{S_T}, s{S_T2}')
    a(f'v_add_u32 v{ar}, s{S_T}, v{ar}')
    a(f'v_lshlrev_b32 v{la}, 4, v{t1}')
    if ldsoff: a(f'v_add_u32 v{la}, {ldsoff}, v{la}')
    a(f's_lshl_b32 s{S_T3}, s{S_A}, 15')
    if ready: ready()
    if xin_rm:
        a(f's_load_dwordx2 s[{S_IN}:{S_IN+1}], s[0:1], {xin}'); a('s_waitcnt lgkmcnt(0)')
        for i in range(2): a(f'global_load_dwordx4 {vr(X+4*i,4)}, v{ar}, s[{S_IN}:{S_IN+1}] offset:{128*i}')
    else:
        a(f's_add_u32 s{S_T}, s{S_T3}, {xin}'); add64(a, S_IN, S_WS, f's{S_T}')
        for i in range(2): a(f'global_load_dwordx4 {vr(X+4*i,4)}, v{af}, s[{S_IN}:{S_IN+1}] offset:{4096*i-2048} {ldf}')
    if npart:
        a(f's_mul_i32 s{S_T}, s{S_A}, {segstride}'); a(f's_add_u32 s{S_T}, s{S_T}, {part}'); add64(a, S_P, S_WS, f's{S_T}')
        for p in range(npart):
            for i in range(2): a(f'global_load_dwordx4 {vr(P+8*p+4*i,4)}, v{af}, s[{S_P}:{S_P+1}] offset:{4096*i-2048} {ldf}')
            if p + 1 < npart: add64(a, S_P, S_P, pstride)
        a(f's_mov_b32 s{S_M}, 0xffff0000'); a(f'v_mov_b32 v{t2}, 0x3f80'); a(f'v_mov_b32 v{t3}, 0x3f800000')
        for p in range(npart):
            a(f's_waitcnt vmcnt({2*(npart-1-p)})')
            for d in range(8):
                r = P+8*p+d
                if p == 0:
                    a(f'v_lshlrev_b32 v{F+2*d}, 16, v{r}'); a(f'v_and_b32 v{F+2*d+1}, s{S_M}, v{r}')
                else:
                    a(f'v_dot2c_f32_bf16 v{F+2*d}, v{r}, v{t2}'); a(f'v_dot2c_f32_bf16 v{F+2*d+1}, v{r}, v{t3}')
        a('s_nop 2')
        for d in range(8):
            if npart > 1:
                a(f'v_cvt_pk_bf16_f32 v{t1}, v{F+2*d}, v{F+2*d+1}')
                a(f'v_lshlrev_b32 v{F+2*d}, 16, v{t1}'); a(f'v_and_b32 v{F+2*d+1}, s{S_M}, v{t1}')
            a(f'v_lshlrev_b32 v{t0}, 16, v{X+d}'); a(f'v_and_b32 v{t1}, s{S_M}, v{X+d}')
            a(f'v_add_f32 v{t0}, v{t0}, v{F+2*d}'); a(f'v_add_f32 v{t1}, v{t1}, v{F+2*d+1}')
            a(f'v_cvt_pk_bf16_f32 v{X+d}, v{t0}, v{t1}')
    else:
        a(f's_mov_b32 s{S_M}, 0xffff0000')
        if xwait: xwait()
        else: a('s_waitcnt vmcnt(0)')
    def two(r):
        def em(f):
            for i in range(2): a(f'global_store_dwordx4 v{af}, {vr(r+4*i,4)}, s[{S_OUT}:{S_OUT+1}] offset:{4096*i-2048} {f}')
        if dual: dual(em)
        else: em(stf)
    def store_x():
        if xout is None: return
        if xout_rm:
            a(f's_load_dwordx2 s[{S_OUT}:{S_OUT+1}], s[0:1], {xout}'); a('s_waitcnt lgkmcnt(0)')
            for i in range(2): a(f'global_store_dwordx4 v{ar}, {vr(X+4*i,4)}, s[{S_OUT}:{S_OUT+1}] offset:{128*i}')
        else:
            a(f's_add_u32 s{S_T}, s{S_T3}, {xout}'); add64(a, S_OUT, S_WS, f's{S_T}')
            two(X)
    if xn is None:
        store_x(); return
    for d in range(8):
        a(f'v_lshlrev_b32 v{F+2*d}, 16, v{X+d}'); a(f'v_and_b32 v{F+2*d+1}, s{S_M}, v{X+d}')
    def rbf(r):
        a(f'v_cvt_pk_bf16_f32 v{r}, v{r}, v{r}'); a(f'v_and_b32 v{r}, s{S_M}, v{r}')
    a(f'v_add_f32 v{t3}, v{F}, v{F+1}'); a(f'v_mul_f32 v{sm}, v{F}, v{F}'); a(f'v_fmac_f32 v{sm}, v{F+1}, v{F+1}')
    for i in range(2, 16):
        a(f'v_add_f32 v{t3}, v{t3}, v{F+i}'); a(f'v_fmac_f32 v{sm}, v{F+i}, v{F+i}')
    for x in (t3, sm): a(f'v_add_f32_dpp v{x}, v{x}, v{x} row_ror:8 row_mask:0xf bank_mask:0xf')
    for sw in ('16', '32'):
        a(f'v_mov_b32 v{t0}, v{t3}'); a(f'v_mov_b32 v{t1}, v{sm}')
        a(f'v_permlane{sw}_swap_b32 v{t3}, v{t0}'); a(f'v_permlane{sw}_swap_b32 v{sm}, v{t1}')
        a(f'v_add_f32 v{t3}, v{t3}, v{t0}'); a(f'v_add_f32 v{sm}, v{sm}, v{t1}')
    a(f's_lshl_b32 s{S_T}, s{S_W}, 2'); a(f'v_add_u32 v{t0}, s{S_T}, v{la}')
    a(f'ds_write2_b32 v{t0}, v{t3}, v{sm} offset0:0 offset1:32'); a('s_waitcnt lgkmcnt(0)'); a('s_barrier')
    a(f'ds_read_b128 {vr(P,4)}, v{la}'); a(f'ds_read_b128 {vr(P+4,4)}, v{la} offset:128')
    store_x()
    a('s_waitcnt lgkmcnt(0)')
    for x, b in ((t3, P), (sm, P+4)):
        a(f'v_add_f32 v{b}, v{b}, v{b+1}'); a(f'v_add_f32 v{b+2}, v{b+2}, v{b+3}'); a(f'v_add_f32 v{x}, v{b}, v{b+2}')
        a(f'v_mul_f32 v{x}, {f2u(1/512):#x}, v{x}')
    a(f'v_fma_f32 v{sm}, -v{t3}, v{t3}, v{sm}'); a(f'v_max_f32 v{sm}, 0, v{sm}')
    rbf(sm); a(f'v_add_f32 v{sm}, {f2u(1e-5):#x}, v{sm}'); rbf(sm)
    a(f'v_sqrt_f32 v{sm}, v{sm}'); rbf(sm); a(f'v_rcp_f32 v{sm}, v{sm}')
    rbf(t3)
    for d in range(8):
        a(f'v_sub_f32 v{t0}, v{F+2*d}, v{t3}'); a(f'v_sub_f32 v{t1}, v{F+2*d+1}, v{t3}')
        a(f'v_cvt_pk_bf16_f32 v{t1}, v{t0}, v{t1}')
        a(f'v_lshlrev_b32 v{t0}, 16, v{t1}'); a(f'v_and_b32 v{t1}, s{S_M}, v{t1}')
        a(f'v_mul_f32 v{t0}, v{t0}, v{sm}'); a(f'v_mul_f32 v{t1}, v{t1}, v{sm}')
        a(f'v_cvt_pk_bf16_f32 v{P+d}, v{t0}, v{t1}')
    a(f's_add_u32 s{S_T}, s{S_T3}, {xn}'); add64(a, S_OUT, S_WS, f's{S_T}')
    two(P)

def rb_kernel(kind, half):
    a = Asm(); a._lbl = 4000 + 100*half + 10*kind
    H = W.H[half]
    end = a.newlabel('Lr_end')
    a(f's_cmp_ge_u32 s2, 256'); a(f's_cbranch_scc1 {end}')
    common_prologue(a, 1, 2)
    a(f's_lshr_b32 s{S_A}, s2, 2'); a(f's_and_b32 s{S_B}, s2, 3')
    xprev = W.X0 if half == 0 else W.H[0].X2
    if kind == 0: rb_body(a, 0, KA_X, True, 0, 0, 0, W.X0, False, H.XNA)
    elif kind == 1: rb_body(a, 1, xprev, False, H.YA, 0, 32768, H.X1, False, H.XNB)
    elif half == 0: rb_body(a, 8, H.X1, False, H.PT, 32768, 8*32768, H.X2, False, W.H[1].XNA)
    else: rb_body(a, 8, H.X1, False, H.PT, 32768, 8*32768, KA_OUT, True, None)
    a.label(end); a('s_endpgm')
    return a.lines

def att_kernel(half, nwg=256):
    a = Asm(); a._lbl = 5000 + 100*half
    H = W.H[half]
    L, L16, t0, t1, t2, ak, av, idx, lw, mx = range(1, 11)
    Q = 12; QN = 16; K0 = 20; C = 24; O = 40; D = [56, 72, 88]; KF = 104
    MG = 168
    end = a.newlabel('La_end')
    a(f's_cmp_ge_u32 s2, {nwg}'); a(f's_cbranch_scc1 {end}')
    common_prologue(a, L, L16)
    npg = nwg // 32
    a(f's_and_b32 s{S_A}, s2, 31'); a(f's_lshr_b32 s{S_B}, s2, 5')
    pi_of(a, t0, L, t1)
    a(f'v_and_b32 v{t1}, 32, v{L}'); a(f'v_add_u32 v{ak}, v{t0}, v{t1}'); a(f'v_lshlrev_b32 v{ak}, 4, v{ak}')
    a(f'v_and_b32 v{t0}, 15, v{t0}'); a(f's_and_b32 s{S_T}, s{S_A}, 1'); a(f's_lshl_b32 s{S_T}, s{S_T}, 4'); a(f'v_add_u32 v{t0}, s{S_T}, v{t0}')
    vpos16(a, av, t0, L, t1)
    a(f'v_mov_b32 v{idx}, 0xdddd')
    a(f's_mul_i32 s{S_T}, s{S_W}, 3072'); a(f'v_add_u32 v{lw}, s{S_T}, v{L16}')
    a(f's_lshl_b32 s{S_T}, s{S_A}, 10'); a(f's_lshl_b32 s{S_T2}, s{S_B}, 15'); a(f's_add_u32 s{S_T2}, s{S_T2}, s{S_T}')
    a(f's_add_u32 s{S_T3}, s{S_T2}, {H.QA}'); add64(a, S_IN, S_WS, f's{S_T3}')
    a(f's_add_u32 s{S_T3}, s{S_T2}, {H.OA}'); add64(a, S_OUT, S_WS, f's{S_T3}')
    a(f'global_load_dwordx4 {vr(QN,4)}, v{L16}, s[{S_IN}:{S_IN+1}]')
    a(f's_add_u32 s{S_K0}, s{S_T}, {H.KA}')
    a(f'buffer_load_dwordx4 {vr(K0,4)}, v{ak}, s[{S_WSRD}:{S_WSRD+3}], s{S_K0} offen')
    a(f's_lshl_b32 s{S_T2}, s{S_W}, 19'); a(f's_add_u32 s{S_K0}, s{S_K0}, s{S_T2}')
    a(f's_lshr_b32 s{S_K1}, s{S_A}, 1'); a(f's_lshl_b32 s{S_K1}, s{S_K1}, 11'); a(f's_add_u32 s{S_K1}, s{S_K1}, s{S_T2}'); a(f's_add_u32 s{S_K1}, s{S_K1}, {H.VA}')
    a(f'v_mov_b32 v{t0}, 0x3f803f80')
    for i in range(128): a(f'v_accvgpr_write_b32 a{i}, v{t0}')
    a(f's_mov_b32 s{S_M}, 0x0000ffff'); a(f's_mov_b32 s{S_M+1}, 0x0000ffff')
    for t in range(16):
        a(f's_add_u32 s{S_T}, s{S_K0}, {t*32768}')
        a(f'buffer_load_dwordx4 {vr(KF+4*t,4)}, v{ak}, s[{S_WSRD}:{S_WSRD+3}], s{S_T} offen')
        a(f's_add_u32 s{S_T}, s{S_K1}, {t*32768}')
        a(f's_mov_b64 exec, s[{S_M}:{S_M+1}]')
        for b in range(2): a(f'buffer_load_dwordx4 {vr(8*t+4*b,4,"a")}, v{av}, s[{S_WSRD}:{S_WSRD+3}], s{S_T} offen offset:{1024*b}')
        a('s_mov_b64 exec, -1')
    a(f's_mov_b32 s{S_BUF}, 0'); a(f's_mov_b32 s{S_CNT}, 0')
    lp = a.newlabel('La_loop'); run = a.newlabel('La_run'); slow = a.newlabel('La_slow'); nom = a.newlabel('La_nom'); noq = a.newlabel('La_noq')
    def rowmax(src, first):
        if first: a(f'v_max3_f32 v{mx}, v{src}, v{src+1}, v{src+2}'); rest = list(range(3, 16))
        else: rest = list(range(16))
        while len(rest) >= 2:
            a(f'v_max3_f32 v{mx}, v{mx}, v{src+rest[0]}, v{src+rest[1]}'); rest = rest[2:]
        if rest: a(f'v_max_f32 v{mx}, v{mx}, v{src+rest[0]}')
    def halfmax():
        a(f'v_mov_b32 v{t0}, v{mx}'); a(f'v_permlane32_swap_b32 v{mx}, v{t0}'); a(f'v_max_f32 v{mx}, v{mx}, v{t0}')
    a.label(lp)
    a('s_waitcnt vmcnt(0)')
    for i in range(4): a(f'v_mov_b32 v{Q+i}, v{QN+i}')
    a(f's_add_u32 s{S_B}, s{S_B}, {npg}'); add64(a, S_IN, S_IN, npg*32768)
    a(f's_cmp_ge_u32 s{S_B}, 64'); a(f's_cbranch_scc1 {noq}')
    a(f'global_load_dwordx4 {vr(QN,4)}, v{L16}, s[{S_IN}:{S_IN+1}]')
    a.label(noq)
    a(mf(D[0], vr(K0,4), vr(Q,4), 0))
    rowmax(D[0], True); halfmax()
    a(f's_mov_b32 s{S_XO}, 0')
    a.label(run)
    for i in range(16): a(f'v_sub_f32 v{C+i}, 0, v{mx}')
    for i in range(16): a(f'v_mov_b32 v{O+i}, 0')
    a(mf(D[0], vr(KF,4), vr(Q,4), vr(C,16)))
    a(mf(D[1], vr(KF+4,4), vr(Q,4), vr(C,16)))
    def pv(t, b): a(f'v_smfmac_f32_32x32x32_bf16 {vr(O,16)}, {vr(8*t+4*b,4,"a")}, {vr(D[t%3]+8*b,8)}, v{idx}')
    for t in range(16):
        d = D[t % 3]
        for i in range(16):
            a(f'v_exp_f32 v{d+i}, v{d+i}')
            if i == 2 and t > 0: pv(t-1, 1)
            if i == 6 and t + 2 < 16: a(mf(D[(t+2)%3], vr(KF+4*(t+2),4), vr(Q,4), vr(C,16)))
            if i == 11: pv(t, 0)
    pv(15, 1)
    a(f'v_add_u32 v{t1}, s{S_BUF}, v{lw}')
    for j in range(3): a(f'ds_write_b128 v{t1}, {vr(O+4*j,4)} offset:{1024*j}')
    a('s_waitcnt lgkmcnt(0)'); a('s_barrier')
    a(f'v_add_u32 v{t1}, s{S_BUF}, v{L16}')
    for w in range(4): a(f'ds_read_b32 v{MG+w}, v{t1} offset:{3072*w+2048}')
    a('s_waitcnt lgkmcnt(0)')
    a(f'v_add_f32 v{MG}, v{MG}, v{MG+1}'); a(f'v_add_f32 v{MG+2}, v{MG+2}, v{MG+3}'); a(f'v_add_f32 v{t2}, v{MG}, v{MG+2}')
    a(f's_xor_b32 s{S_BUF}, s{S_BUF}, 16384')
    a(f'v_cmp_nge_f32 vcc, {f2u(2.0**90):#x}, v{t2}')
    a(f's_cbranch_vccnz {slow}')
    fin = a.newlabel('La_fin'); a.label(fin)
    a(f's_and_b32 s{S_T}, s{S_CNT}, 3'); a(f's_add_u32 s{S_CNT}, s{S_CNT}, 1')
    a(f's_cmp_lg_u32 s{S_T}, s{S_W}'); a(f's_cbranch_scc1 {nom}')
    for w in range(4):
        for j in range(2): a(f'ds_read_b128 {vr(MG+8*w+4*j,4)}, v{t1} offset:{3072*w+1024*j}')
    a(f'v_rcp_f32 v{t2}, v{t2}')
    a('s_waitcnt lgkmcnt(0)')
    for i in range(8):
        a(f'v_add_f32 v{MG+i}, v{MG+i}, v{MG+8+i}'); a(f'v_add_f32 v{MG+16+i}, v{MG+16+i}, v{MG+24+i}')
        a(f'v_add_f32 v{MG+i}, v{MG+i}, v{MG+16+i}'); a(f'v_mul_f32 v{MG+i}, v{MG+i}, v{t2}')
    for i in range(4): a(f'v_cvt_pk_bf16_f32 v{MG+i}, v{MG+2*i}, v{MG+2*i+1}')
    a(f'global_store_dwordx4 v{L16}, {vr(MG,4)}, s[{S_OUT}:{S_OUT+1}]')
    a.label(nom)
    add64(a, S_OUT, S_OUT, npg*32768)
    a(f's_cmp_lt_u32 s{S_B}, 64'); a(f's_cbranch_scc1 {lp}')
    a(f's_branch {end}')
    a.label(slow)
    a(f's_cmp_lg_u32 s{S_XO}, 0'); a(f's_cbranch_scc1 {fin}')
    a(f's_mov_b32 s{S_XO}, 1')
    for t in range(16):
        a(mf(D[t%2], vr(KF+4*t,4), vr(Q,4), 0))
        rowmax(D[t%2], t == 0)
    halfmax()
    a(f'ds_write_b32 v{lw}, v{mx} offset:32768'); a('s_waitcnt lgkmcnt(0)'); a('s_barrier')
    for w in range(4): a(f'ds_read_b32 v{MG+w}, v{L16} offset:{32768+3072*w}')
    a('s_waitcnt lgkmcnt(0)')
    a(f'v_max3_f32 v{mx}, v{MG}, v{MG+1}, v{MG+2}'); a(f'v_max_f32 v{mx}, v{mx}, v{MG+3}')
    a(f's_branch {run}')
    a.label(end); a('s_endpgm')
    return a.lines

def tb_kernel(half, nwg=256):
    a = Asm(); a._lbl = 6000 + 100*half
    H = W.H[half]
    L, L16, t0, t1, t2, akm, av, avm, vo, xw, mx = range(1, 12)
    XR = 12; CM = 28; SX = 44; SM = 60; Q = 76; K = 108; KM = 140; V = 172; VM = 204; P = 212; PM = 220; ACC = 224
    OT = Q
    end = a.newlabel('Lt_end')
    a(f's_cmp_ge_u32 s2, {nwg}'); a(f's_cbranch_scc1 {end}')
    common_prologue(a, L, L16)
    ngr = nwg // 32
    a(f's_and_b32 s{S_A}, s2, 31'); a(f's_lshr_b32 s{S_B}, s2, 5')
    a(f's_lshr_b32 s{S_T}, s{S_A}, 2'); a(f's_lshl_b32 s{S_T}, s{S_T}, 19'); a(f's_and_b32 s{S_T2}, s{S_A}, 3'); a(f's_lshl_b32 s{S_T2}, s{S_T2}, 8')
    a(f's_add_u32 s{S_OFF}, s{S_T}, s{S_T2}')
    load_wslices(a, [(KA_WO, 4*MB, 0, 'a', 0)], 1024, L, t0, t1, t2)
    a(f'v_and_b32 v{t0}, 7, v{L}'); a(f'v_lshlrev_b32 v{akm}, 4, v{t0}'); a(f'v_lshrrev_b32 v{t0}, 5, v{L}'); a(f'v_lshl_add_u32 v{akm}, v{t0}, 7, v{akm}')
    a(f'v_add_u32 v{akm}, {HB_KM}, v{akm}')
    pi_of(a, t0, L, t1); vpos16(a, av, t0, L, t1); a(f'v_add_u32 v{av}, {HB_V}, v{av}')
    a(f'v_lshlrev_b32 v{avm}, 2, v{t0}'); a(f'v_lshrrev_b32 v{t1}, 5, v{L}'); a(f'v_lshl_add_u32 v{avm}, v{t1}, 8, v{avm}'); a(f'v_add_u32 v{avm}, {HB_VM}, v{avm}')
    a(f's_lshl_b32 s{S_T}, s{S_W}, 11'); a(f'v_add_u32 v{vo}, s{S_T}, v{L16}')
    a(f's_lshl_b32 s{S_T}, s{S_W}, 13'); a(f'v_add_u32 v{xw}, s{S_T}, v{L16}')
    a(f'v_and_b32 v{t0}, 31, v{L}'); a(f'v_lshrrev_b32 v{t1}, 5, v{L}'); a(f'v_lshlrev_b32 v{t1}, 2, v{t1}'); a(f'v_sub_u32 v{t0}, v{t0}, v{t1}')
    a(f'v_mov_b32 v{t1}, {f2u(-1e30):#x}')
    for i in range(16):
        a(f'v_cmp_le_i32 vcc, {8*(i>>2)+(i&3)}, v{t0}'); a(f'v_cndmask_b32 v{CM+i}, v{t1}, 0, vcc')
    a(f's_and_b32 s{S_T}, s{S_A}, 28'); a(f's_add_u32 s{S_T}, s{S_T}, s{S_W}'); a(f's_lshl_b32 s{S_T}, s{S_T}, 21')
    a(f's_lshl_b32 s{S_T2}, s{S_B}, 15'); a(f's_add_u32 s{S_XO}, s{S_T}, s{S_T2}'); a(f's_add_u32 s{S_XO}, s{S_XO}, {H.HB}')
    a(f's_lshl_b32 s{S_T}, s{S_B}, 18'); a(f's_lshl_b32 s{S_T2}, s{S_A}, 13'); a(f's_add_u32 s{S_T}, s{S_T}, s{S_T2}'); a(f's_add_u32 s{S_T}, s{S_T}, {H.PT}')
    add64(a, S_OUT, S_WS, f's{S_T}')
    a(f's_mov_b32 s{S_M}, {f2u(math.log2(math.e)/math.sqrt(128.0)):#x}')
    lp = a.newlabel('Lt_loop')
    a.label(lp)
    def bl(n, dst, va, so, off): a(f'buffer_load_dword{n} {vr(dst, 4 if n else 1)}, v{va}, s[{S_WSRD}:{S_WSRD+3}], s{so} offen offset:{off}')
    a(f's_add_u32 s{S_T}, s{S_XO}, 4096'); a(f's_add_u32 s{S_T2}, s{S_XO}, {HB_Q}'); a(f's_add_u32 s{S_T3}, s{S_XO}, {HB_Q+4096}')
    for kb in range(8):
        bl('x4', K+4*kb, L16, S_XO if kb < 4 else S_T, (kb%4)*1024)
        bl('x4', Q+4*kb, L16, S_T2 if kb < 4 else S_T3, (kb%4)*1024)
    for kb in range(8): bl('x4', KM+4*kb, akm, S_XO, kb*256)
    for f in range(8): bl('x4', V+4*f, av, S_XO if f < 4 else S_T, (f%4)*1024)
    for t in range(4):
        for e in range(2): bl('', VM+2*t+e, avm, S_XO, t*512 + e*128)
    for kb in range(8):
        a(f's_waitcnt vmcnt({24 + 14 - 2*kb})')
        a(mf(SX, vr(K+4*kb,4), vr(Q+4*kb,4), vr(SX,16) if kb else vr(CM,16)))
    a('s_waitcnt vmcnt(16)')
    for kb in range(8): a(mf(SM, vr(KM+4*kb,4), vr(Q+4*kb,4), vr(SM,16) if kb else 0))
    E = [SX+i for i in range(16)] + [SM+i for i in range(4)]
    a(f'v_max3_f32 v{mx}, v{E[0]}, v{E[1]}, v{E[2]}')
    for i in range(3, 19, 2): a(f'v_max3_f32 v{mx}, v{mx}, v{E[i]}, v{E[i+1]}')
    a(f'v_max_f32 v{mx}, v{mx}, v{E[19]}')
    a(f'v_mov_b32 v{t0}, v{mx}'); a(f'v_permlane32_swap_b32 v{mx}, v{t0}'); a(f'v_max_f32 v{mx}, v{mx}, v{t0}')
    a(f'v_mul_f32 v{mx}, s{S_M}, v{mx}')
    for e in E: a(f'v_fma_f32 v{e}, v{e}, s{S_M}, -v{mx}')
    for e in E: a(f'v_exp_f32 v{e}, v{e}')
    a(f'v_add_f32 v{t1}, v{E[0]}, v{E[1]}')
    for e in E[2:]: a(f'v_add_f32 v{t1}, v{t1}, v{e}')
    a(f'v_mov_b32 v{t0}, v{t1}'); a(f'v_permlane32_swap_b32 v{t1}, v{t0}'); a(f'v_add_f32 v{t1}, v{t1}, v{t0}')
    a(f'v_rcp_f32 v{t1}, v{t1}')
    for e in E: a(f'v_mul_f32 v{e}, v{e}, v{t1}')
    for i in range(8): a(f'v_cvt_pk_bf16_f32 v{P+i}, v{SX+2*i}, v{SX+2*i+1}')
    for i in range(2): a(f'v_cvt_pk_bf16_f32 v{PM+i}, v{SM+2*i}, v{SM+2*i+1}')
    a('s_waitcnt vmcnt(0)')
    for t in range(4):
        o = OT+16*t
        a(f'v_mfma_f32_32x32x8_bf16 {vr(o,16)}, {vr(VM+2*t,2)}, {vr(PM,2)}, 0')
        for j in range(2): a(mf(o, vr(V+8*t+4*j,4), vr(P+4*j,4), vr(o,16)))
    a('s_barrier')
    for t in range(4):
        for j in range(2):
            o = OT+16*t+8*j
            for i in range(4): a(f'v_cvt_pk_bf16_f32 v{o+i}, v{o+2*i}, v{o+2*i+1}')
            a(f'ds_write_b128 v{xw}, {vr(o,4)} offset:{(2*t+j)*1024}')
    a('s_waitcnt lgkmcnt(0)'); a('s_barrier')
    gemm_core(a, L16, XR, [(ACC, 'a', 0, False)])
    pack_store(a, ACC, vo, S_OUT)
    add64(a, S_OUT, S_OUT, ngr*8*32768); a(f's_add_u32 s{S_XO}, s{S_XO}, {ngr*32768}')
    a(f's_add_u32 s{S_B}, s{S_B}, {ngr}'); a(f's_cmp_lt_u32 s{S_B}, 64'); a(f's_cbranch_scc1 {lp}')
    a.label(end); a('s_endpgm')
    return a.lines
```

```python
from asmlib import *
from layout import *
import math
import chain2 as C
from work import *

S_DBG = 44; S_SLOT = 36; S_TK = 37; S_SPIN = 38; S_PF = 39; S_FO = 40; S_N = 41; S_X = 42; S_SO = 43; S_SV = 46; S_PD = 47; S_LOC = 50; S_DIE = 91
L, L16 = 1, 2
VZ = 10; VF = 11
SPIN_MAX = 0x60000

class Mega:
    def __init__(self, stamps=False, chain_kw={}):
        self.a = Asm(); self.stamps = stamps; self.chain_kw = chain_kw
        self.end = 'Lm_end'; self.TO = 128 if stamps == 2 else 0
        self.tbsleep = chain_kw.pop('tbsleep', 8); self.wsleep = chain_kw.pop('wsleep', 2); self.wrd = chain_kw.pop('wrd', 0); self.ahead = chain_kw.pop('ahead', 0); self.fake = chain_kw.pop('fake', None); self.ct = chain_kw.pop('ct', 0); self.loc = chain_kw.pop('loc', 0); self.lazy = chain_kw.pop('lazy', 0); C.ROT[0] = chain_kw.pop('rot', 0); C.WF[0] = chain_kw.pop('wf', ''); self.attup = chain_kw.pop('attup', 8); self.die = chain_kw.pop('die', 3); self.pfb = chain_kw.pop('pfb', 0); self.kvpos = chain_kw.pop('kvpos', 20); self.perm = chain_kw.pop('perm', 0x65423170)
    def stamp(self, k, hs=None):
        if not self.stamps: return
        a = self.a; l = a.newlabel('Lst')
        if self.stamps == 2:
            kk = self.dmap.get((self.role, k))
            if kk is None: return
            a(f's_cmp_lg_u32 s{S_W}, 0'); a(f's_cbranch_scc1 {l}')
            a('s_memrealtime s[96:97]'); a(f's_load_dwordx2 s[100:101], s[0:1], {KA_DBG}'); a('s_waitcnt lgkmcnt(0)'); a('s_sub_u32 s96, s96, s99')
            a(f's_mov_b32 s98, {4*kk}')
            if hs is not None: a(f's_mul_i32 s97, s{hs}, 12'); a('s_add_u32 s98, s98, s97')
            a('s_mov_b64 exec, 1'); a(f'v_mov_b32 v{self.sv}, s96'); a(f'v_mov_b32 v{self.sv+1}, s98')
            a(f'global_atomic_umax v{self.sv+1}, v{self.sv}, s[100:101] sc1'); a('s_waitcnt vmcnt(0)'); a('s_mov_b64 exec, -1')
            a.label(l); return
        a(f's_cmp_lg_u32 s{S_W}, 0'); a(f's_cbranch_scc1 {l}')
        a('s_memrealtime s[96:97]'); a(f's_lshl_b32 s98, s99, 7'); a(f's_add_u32 s98, s98, {STAMP_OFF + 4*k}'); a('s_waitcnt lgkmcnt(0)')
        if hs is not None: a(f's_lshl_b32 s97, s{hs}, 5'); a('s_add_u32 s98, s98, s97')
        a('s_mov_b64 exec, 1'); a(f'v_writelane_b32 v{self.sv}, s96, 0'); a(f'v_writelane_b32 v{self.sv+1}, s98, 0')
        a(f'v_mov_b32 v{self.sv+1}, s98')
        a(f'global_store_dword v{self.sv+1}, v{self.sv}, s[{S_WS}:{S_WS+1}]'); a('s_waitcnt vmcnt(0)'); a('s_mov_b64 exec, -1')
        a.label(l)
    def mark(self, k, sgpr, val):
        if self.stamps is not True: return
        a = self.a; l = a.newlabel('Lmk')
        a(f's_cmp_lg_u32 s{sgpr}, {val}'); a(f's_cbranch_scc1 {l}')
        a('s_memrealtime s[96:97]'); a('s_waitcnt lgkmcnt(0)'); a(f's_mov_b32 s{70+k}, s96')
        a.label(l)
    def dump_marks(self):
        if self.stamps is not True: return
        a = self.a
        for k in range(16): a(f'v_mov_b32 v{16+k}, s{70+k}')
        a(f's_lshl_b32 s98, s99, 7'); a(f's_add_u32 s98, s98, {STAMP_OFF + 64}'); a('v_mov_b32 v12, s98')
        l = a.newlabel('Lmk'); a(f's_cmp_lg_u32 s{S_W}, 0'); a(f's_cbranch_scc1 {l}')
        for k in range(4): a(f'global_store_dwordx4 v12, {vr(16+4*k,4)}, s[{S_WS}:{S_WS+1}] offset:{16*k}')
        a.label(l)
    def count_wait(self, off, v, fail, st, sp):
        a = self.a; l1 = a.newlabel('Lcw'); l2 = a.newlabel('Lcw')
        a(f's_mov_b32 s{sp}, 0'); a(f'v_mov_b32 v{v+8}, 0')
        a.label(l1)
        for x in range(8): a(f'global_load_dword v{v+x}, v{v+8}, s[{S_DBG}:{S_DBG+1}] offset:{off+16*x} sc1')
        a('s_waitcnt vmcnt(0)')
        a(f'v_add3_u32 v{v+9}, v{v}, v{v+1}, v{v+2}'); a(f'v_add3_u32 v{v+9}, v{v+9}, v{v+3}, v{v+4}'); a(f'v_add3_u32 v{v+9}, v{v+9}, v{v+5}, v{v+6}'); a(f'v_add_u32 v{v+9}, v{v+9}, v{v+7}')
        a(f'v_readfirstlane_b32 s{st}, v{v+9}'); a(f's_cmp_ge_u32 s{st}, 256'); a(f's_cbranch_scc1 {l2}')
        a('s_sleep 4'); a(f's_add_u32 s{sp}, s{sp}, 1'); a(f's_cmp_lt_u32 s{sp}, {SPIN_MAX}'); a(f's_cbranch_scc1 {l1}')
        a(f's_branch {fail}')
        a.label(l2)
    def code_touch(self, v=VZ, sp=48, sh=6):
        if not self.ct: return
        a = self.a
        a(f's_getpc_b64 s[{sp}:{sp+1}]'); a(f's_lshl_b32 s{S_T}, s{S_W}, {6+sh}'); a(f'v_lshl_add_u32 v{v}, v{L}, {sh}, s{S_T}')
        a(f'global_load_dword v{v+1}, v{v}, s[{sp}:{sp+1}]')
    def report(self, v=VZ, st=S_T):
        a = self.a; l = a.newlabel('Lrp')
        a(f's_cmp_lg_u32 s{S_W}, 1'); a(f's_cbranch_scc1 {l}')
        a(f's_lshl_b32 s{st}, s{S_DIE}, 4'); a(f'v_mov_b32 v{v}, s{st}'); a(f'v_mov_b32 v{v+1}, 1')
        a('s_mov_b64 exec, 1'); a(f'global_atomic_add v{v}, v{v+1}, s[{S_DBG}:{S_DBG+1}] offset:132 sc1'); a('s_mov_b64 exec, -1')
        a.label(l)
    def local_check(self):
        a = self.a
        x = [i for i in range(8) if (self.perm >> (4*i)) & 7 == 7][0]
        self.count_wait(self.TO, 12, self.end, S_T, S_SPIN)
        a(f'v_readfirstlane_b32 s{S_T}, v{12+x}'); a(f's_cmp_ge_u32 s{S_T}, 32'); a(f's_cselect_b32 s{S_LOC}, {0 if (self.chain_kw.get("force_slow") or not self.loc) else 1}, 0')
    def dual(self, emit):
        a = self.a; l1 = a.newlabel('Ld'); l2 = a.newlabel('Ld')
        a(f's_cmp_eq_u32 s{S_LOC}, 1'); a(f's_cbranch_scc1 {l1}')
        emit('sc1'); a(f's_branch {l2}')
        a.label(l1); emit(''); a.label(l2)
    def flags_ready(self): self.count_wait(132, 12, self.end, S_T, S_SPIN)
    def flag_off(self, base, idx_sgpr, sh=2):
        self.a(f's_lshl_b32 s{S_FO}, s{idx_sgpr}, {sh}'); self.a(f's_add_u32 s{S_FO}, s{S_FO}, {base}')
    def flag_issue(self, n):
        a = self.a
        a(f'v_min_u32 v{VZ}, {n-1}, v{L}'); a(f'v_lshl_add_u32 v{VZ}, v{VZ}, 8, s{S_FO}'); a(f'global_load_dword v{VF}, v{VZ}, s[{S_WS}:{S_WS+1}] sc1')
    def wait(self, n, sleep=None, mask=None, sh=8, thr=None, keep=None, lazy=None, extra=None):
        a = self.a; l1 = a.newlabel('Lw'); l2 = a.newlabel('Lw')
        a(f's_mov_b32 s{S_SPIN}, 0')
        a(f'v_min_u32 v{VZ}, {n-1}, v{L}'); a(f'v_lshl_add_u32 v{VZ}, v{VZ}, {sh}, s{S_FO}')
        if extra is not None:
            a(f's_lshl_b32 s{S_X}, s{extra}, {sh}'); a(f's_add_u32 s{S_X}, s{S_X}, s{S_FO}'); a(f's_add_u32 s{S_X}, s{S_X}, 16'); a(f'v_writelane_b32 v{VZ}, s{S_X}, 63')
        a.label(l1)
        a(f'global_load_dword v{VF}, v{VZ}, s[{S_WS}:{S_WS+1}] sc1'); a('s_waitcnt vmcnt(0)')
        a(f'v_cmp_eq_u32 vcc, 0, v{VF}' if thr is None else f'v_cmp_gt_u32 vcc, {thr}, v{VF}')
        if keep: a('s_cmp_eq_u64 vcc, 0'); a(f's_cselect_b32 s{keep}, 1, 0')
        if mask is None: a(f's_cbranch_vccz {l2}')
        else: a(f's_and_b64 vcc, vcc, s[{mask}:{mask+1}]'); a(f's_cbranch_scc0 {l2}')
        a(f's_sleep {sleep or self.wsleep}')
        if lazy is not None and self.lazy:
            l3 = a.newlabel('Lw'); a(f's_cmp_ge_u32 s{lazy}, 60'); a(f's_cbranch_scc1 {l3}'); a(f's_sleep {self.lazy}'); a.label(l3)
        a(f's_add_u32 s{S_SPIN}, s{S_SPIN}, 1'); a(f's_cmp_lt_u32 s{S_SPIN}, {SPIN_MAX}'); a(f's_cbranch_scc1 {l1}')
        a(f's_branch {self.end}')
        a.label(l2)
    def set_word(self, base, line_sgpr, word_sgpr, s1=2, s2=8):
        a = self.a
        a(f's_lshl_b32 s{S_SO}, s{line_sgpr}, {s1}'); a(f's_lshl_b32 s{S_X}, s{word_sgpr}, {s2}'); a(f's_add_u32 s{S_SO}, s{S_SO}, s{S_X}'); a(f's_add_u32 s{S_SO}, s{S_SO}, {base}')
    def wsignal(self, val=None, loc=False):
        a = self.a
        a(f'v_mov_b32 v{VZ}, s{S_SO}'); a(f'v_mov_b32 v{VF}, {"s%d" % val if val else "1"}')
        st = lambda f: a(f'global_store_dword v{VZ}, v{VF}, s[{S_WS}:{S_WS+1}] {f}')
        a('s_mov_b64 exec, 1')
        if loc: self.dual(st)
        else: st('sc1')
        a('s_mov_b64 exec, -1')
    def signal_wg(self, loc=False):
        a = self.a; l = a.newlabel('Ls')
        a('s_waitcnt vmcnt(0)'); a('s_barrier'); a(f's_cmp_lg_u32 s{S_W}, 0'); a(f's_cbranch_scc1 {l}')
        self.wsignal(loc=loc); a.label(l)

    def stream(self, ngr, xsrc, inflag, nin, tiles, epilogue, nst, outflag, store, mk=None, pre=None):
        a = self.a; xa = 9; XR = 12
        lp = a.newlabel('Lg_loop'); have = a.newlabel('Lg_have'); go = a.newlabel('Lg_go'); fetch = a.newlabel('Lg_fetch'); done = a.newlabel('Lg_done')
        a(f's_lshl_b32 s{S_XO}, s{S_B}, 15'); a(f's_add_u32 s{S_XO}, s{S_XO}, {xsrc}'); a(f's_mov_b32 s{S_BUF}, {128*1024}')
        a('s_barrier')
        a.label(fetch)
        a(f's_mov_b32 s{S_PD}, 0')
        if inflag is not None:
            self.flag_off(inflag, S_B); self.wait(nin)
        if mk: self.mark(mk[0], S_B, mk[1])
        dma_x(a, L16, S_XO, S_BUF, 'sc1')
        a('s_waitcnt vmcnt(0)')
        a.label(go)
        a('s_barrier')
        if mk: self.mark(mk[0]+1, S_B, mk[1])
        if pre: pre()
        a(f'v_add_u32 v{xa}, s{S_BUF}, v{L16}')
        a(f's_add_u32 s{S_TK}, s{S_B}, {ngr}'); a(f's_xor_b32 s{S_BUF}, s{S_BUF}, {128*1024}'); a(f's_add_u32 s{S_XO}, s{S_XO}, {ngr*32768}')
        if inflag is not None:
            a(f's_min_u32 s{S_T}, s{S_TK}, 63'); self.flag_off(inflag, S_T); self.flag_issue(nin)
        def pref():
            np_ = a.newlabel('Lg_np')
            a('s_waitcnt vmcnt(0)')
            a(f'v_cmp_eq_u32 s[{S_K0}:{S_K0+1}], 0, v{VF}')
            a(f's_cmp_eq_u32 s{S_PD}, 0'); a(f's_cbranch_scc1 {np_}')
            self.wsignal(S_SV if store else None)
            a.label(np_)
        def pref2():
            sk = a.newlabel('Lg_sk')
            a(f's_mov_b32 s{S_PF}, 0')
            a(f's_cmp_ge_u32 s{S_TK}, 64'); a(f's_cbranch_scc1 {sk}')
            a(f's_cmp_lg_u64 s[{S_K0}:{S_K0+1}], 0'); a(f's_cbranch_scc1 {sk}')
            dma_x(a, L16, S_XO, S_BUF, 'sc1'); a(f's_mov_b32 s{S_PF}, 1')
            a.label(sk)
        gemm_core(a, xa, XR, tiles, {30: pref})
        epilogue(pref2)
        if mk: self.mark(mk[0]+2, S_B, mk[1])
        outflag()
        add64(a, S_OUT, S_OUT, ngr*32768)
        a(f's_mov_b32 s{S_B}, s{S_TK}')
        a(f's_cmp_eq_u32 s{S_PF}, 0'); a(f's_cbranch_scc1 {have}')
        first = a.newlabel('Lg_first')
        a(f's_cmp_lt_u32 s{S_B}, {2*ngr}'); a(f's_cbranch_scc1 {first}')
        a(f's_mov_b32 s{S_PD}, 1'); a(f's_waitcnt vmcnt({nst})'); a(f's_branch {go}')
        a.label(first)
        a('s_waitcnt vmcnt(0)'); self.wsignal(S_SV if store else None)
        if mk: self.mark(mk[0]+3, S_B, mk[1]+ngr)
        a(f's_mov_b32 s{S_PD}, 0'); a(f's_branch {go}')
        a.label(have)
        a('s_waitcnt vmcnt(0)'); self.wsignal(S_SV if store else None)
        if mk: self.mark(mk[0]+3, S_B, mk[1]+ngr)
        a(f's_cmp_lt_u32 s{S_B}, 64'); a(f's_cbranch_scc1 {fetch}')
        a('s_barrier')

    def proj_weights(self, isB, share=None, early=None, sel=(0, 1, 2), first=None):
        a = self.a
        a(f's_lshl_b32 s{S_OFF}, s{S_A}, 8')
        if isB: mats = [(KA_WK, 4*MB, 0, 'a', 128), (KA_WV, 4*MB, 0, 'v', 128), (KA_WQ, 4*MB, 0, 'a', 0)]; stride = 8192
        else: mats = [(KA_WQKV, 1536*1024, 1024, 'a', 128), (KA_WQKV, 1536*1024, 2048, 'v', 128), (KA_WQKV, 1536*1024, 0, 'a', 0)]; stride = 3072
        load_wslices(a, [mats[i] for i in sel], stride, L, 3, 4, 5, share, early, first)
    def proj_run(self, half, isB, ngr, nowait=False, mode='kvq'):
        a = self.a; H = W.H[half]
        if not nowait: self.code_touch()
        t0, t1, vq, vk, vv = 3, 4, 6, 7, 8; ACC = 28
        ro = (HB_Q, HB_K, HB_V) if isB else (0, H.KA - H.QA, H.VA - H.QA)
        a(f's_lshl_b32 s{S_T}, s{S_W}, 11')
        a(f's_add_u32 s{S_T2}, s{S_T}, {ro[0]}'); a(f'v_add_u32 v{vq}, s{S_T2}, v{L16}')
        a(f's_add_u32 s{S_T2}, s{S_T}, {ro[1]}'); a(f'v_add_u32 v{vk}, s{S_T2}, v{L16}')
        pi_of(a, t0, L, t1); vpos16(a, vv, t0, L, t1)
        a(f's_add_u32 s{S_T2}, s{S_T}, {ro[2]}'); a(f'v_add_u32 v{vv}, s{S_T2}, v{vv}')
        a(f's_lshl_b32 s{S_T}, s{S_A}, {21 if isB else 13}'); a(f's_lshl_b32 s{S_T2}, s{S_B}, 15'); a(f's_add_u32 s{S_T}, s{S_T}, s{S_T2}')
        a(f's_add_u32 s{S_T}, s{S_T}, {H.HB if isB else H.QA}'); add64(a, S_OUT, S_WS, f's{S_T}')
        a(f's_mov_b32 s{S_M}, {f2u(0.25*math.log2(math.e)):#x}')
        xa = 9; XR = 12; inflag = FL(half, 'XNB' if isB else 'XNA'); mk = (0, 0 if isB else 63) if half == 1 else ((8, 0) if isB else None)
        go = a.newlabel('Lp_go'); fetch = a.newlabel('Lp_fetch'); have = a.newlabel('Lp_have')
        a(f's_lshl_b32 s{S_XO}, s{S_B}, 15'); a(f's_add_u32 s{S_XO}, s{S_XO}, {H.XNB if isB else H.XNA}'); a(f's_mov_b32 s{S_BUF}, {128*1024}')
        a(f's_mov_b32 s{S_PD}, 0')
        a('s_barrier')
        if nowait: a(f's_branch {go}')
        a.label(fetch)
        self.flag_off(inflag, S_B); self.wait(16 if isB else 4, lazy=None if isB else S_B)
        if mk: self.mark(mk[0], S_B, mk[1])
        dma_x(a, L16, S_XO, S_BUF, 'sc1')
        a('s_waitcnt vmcnt(0)')
        a.label(go)
        a('s_barrier')
        if mk: self.mark(mk[0]+1, S_B, mk[1])
        a(f'v_add_u32 v{xa}, s{S_BUF}, v{L16}')
        a(f's_add_u32 s{S_TK}, s{S_B}, {ngr}'); a(f's_xor_b32 s{S_BUF}, s{S_BUF}, {128*1024}'); a(f's_add_u32 s{S_XO}, s{S_XO}, {ngr*32768}')
        if not nowait: a(f's_min_u32 s{S_T}, s{S_TK}, 63'); self.flag_off(inflag, S_T); self.flag_issue(16 if isB else 4)
        def word():
            if isB:
                a(f's_and_b32 s{S_T}, s{S_B}, 1'); a(f's_lshl_b32 s{S_T}, s{S_T}, 2'); a(f's_add_u32 s{S_T}, s{S_T}, s{S_W}')
                self.set_word(FL(half, "HEAD"), S_A, S_T, 8, 5)
            else:
                a(f's_lshl_b32 s{S_T}, s{S_A}, 2'); a(f's_add_u32 s{S_T}, s{S_T}, s{S_W}'); self.set_word(FL(half, "QKVA"), S_T, S_B, 11, 5)
        def late():
            l = a.newlabel('Lp_q'); a(f's_cmp_eq_u32 s{S_PD}, 0'); a(f's_cbranch_scc1 {l}')
            self.wsignal(); a(f's_mov_b32 s{S_PD}, 0'); a.label(l)
        def pref():
            sk = a.newlabel('Lp_sk')
            a('s_waitcnt vmcnt(0)'); a(f'v_cmp_eq_u32 vcc, 0, v{VF}')
            if not isB: late()
            a(f's_mov_b32 s{S_PF}, 0')
            a(f's_cmp_ge_u32 s{S_TK}, 64'); a(f's_cbranch_scc1 {sk}')
            if not nowait: a(f's_cbranch_vccnz {sk}')
            dma_x(a, L16, S_XO, S_BUF, 'sc1'); a(f's_mov_b32 s{S_PF}, 1')
            a.label(sk)
        def half_store(acc, ad, j):
            for i in range(4): a(f'v_cvt_pk_bf16_f32 v{acc+8*j+i}, v{acc+8*j+2*i}, v{acc+8*j+2*i+1}')
            a(f'global_store_dwordx4 v{ad}, {vr(acc+8*j,4)}, s[{S_OUT}:{S_OUT+1}] offset:{1024*j} sc1')
        def kvsig():
            if mk: self.mark(mk[0]+2, S_B, mk[1])
            word(); a('s_waitcnt vmcnt(0)'); self.wsignal(S_TK if isB else None)
            if mk: self.mark(mk[0]+3, S_B, mk[1])
        kvs = [lambda: half_store(ACC+16, vk, 0), lambda: half_store(ACC+16, vk, 1), lambda: half_store(ACC+32, vv, 0), lambda: half_store(ACC+32, vv, 1)]
        if mode != 'q': gemm_core(a, xa, XR, [(ACC+16, 'a', 128, False), (ACC+32, 'v', 128, True)], {18: pref})
        if mode == 'kvq': gemm_core(a, xa, XR, [(ACC, 'a', 0, False)], {0: kvs[0], 1: kvs[1], 2: kvs[2], 3: kvs[3], self.kvpos: kvsig})
        if mode == 'q':
            def p0():
                sk = a.newlabel('Lp_sk'); a(f's_mov_b32 s{S_PF}, 0'); a(f's_cmp_ge_u32 s{S_TK}, 64'); a(f's_cbranch_scc1 {sk}')
                dma_x(a, L16, S_XO, S_BUF, 'sc1'); a(f's_mov_b32 s{S_PF}, 1'); a.label(sk)
            gemm_core(a, xa, XR, [(ACC, 'a', 0, False)], {0: p0, 30: lambda: (a('s_waitcnt vmcnt(0)'), late())})
        if mode == 'kv':
            for f in kvs: f()
        else: pack_store(a, ACC, vq, S_OUT, 'sc1', scale=None if isB else S_M)
        if not isB:
            if mode != 'kvq': word()
            if mode != 'kv': a(f's_add_u32 s{S_SO}, s{S_SO}, 16')
        add64(a, S_OUT, S_OUT, ngr*32768)
        a(f's_mov_b32 s{S_B}, s{S_TK}'); a(f's_mov_b32 s{S_PD}, 1')
        if mode == 'kv': a('s_waitcnt vmcnt(4)')
        a(f's_cmp_lg_u32 s{S_PF}, 0'); a(f's_cbranch_scc1 {go}')
        if not isB: a('s_waitcnt vmcnt(0)'); late()
        a(f's_cmp_lt_u32 s{S_B}, 64'); a(f's_cbranch_scc1 {fetch}')
        if isB:
            a('s_waitcnt vmcnt(0)'); a(f's_add_u32 s{S_SV}, s{S_B}, 2'); self.wsignal(S_SV)
        a('s_barrier')
    def woa_run(self, half, ngr):
        a = self.a; H = W.H[half]
        self.code_touch()
        t0, t1, sm, vo, vx, vs = 3, 4, 5, 6, 7, 8; ACC = 28; X = 44; G = 52; SP = 68; mu = 70
        a(f's_lshl_b32 s{S_T}, s{S_W}, 11'); a(f's_lshl_b32 s{S_T2}, s{S_A}, 13'); a(f's_add_u32 s{S_T}, s{S_T}, s{S_T2}'); a(f'v_add_u32 v{vo}, s{S_T}, v{L16}')
        if half == 0:
            a(f's_load_dwordx2 s[{S_P}:{S_P+1}], s[0:1], {KA_X}')
            a(f'v_and_b32 v{t0}, 31, v{L}'); a(f'v_lshlrev_b32 v{vx}, 10, v{t0}'); a(f'v_lshrrev_b32 v{t0}, 5, v{L}'); a(f'v_lshl_add_u32 v{vx}, v{t0}, 4, v{vx}')
            a(f's_lshr_b32 s{S_T}, s{S_T}, 5'); a(f'v_add_u32 v{vx}, s{S_T}, v{vx}'); a('s_waitcnt lgkmcnt(0)')
        else:
            add64(a, S_P, S_WS, W.H[0].X2); a(f'v_mov_b32 v{vx}, v{vo}')
        a(f's_lshl_b32 s{S_T2}, s{S_B}, 15'); add64(a, S_P, S_P, f's{S_T2}')
        a(f's_add_u32 s{S_T}, s{S_T2}, {H.X1}'); add64(a, S_OUT, S_WS, f's{S_T}')
        a(f'v_and_b32 v{t0}, 31, v{L}'); a(f'v_lshlrev_b32 v{vs}, 3, v{t0}'); a(f'v_lshrrev_b32 v{t0}, 5, v{L}'); a(f'v_lshl_add_u32 v{vs}, v{t0}, 11, v{vs}')
        a(f's_mov_b32 s{S_M}, 0xffff0000')
        def pre():
            for j in range(2): a(f'global_load_dwordx4 {vr(X+4*j,4)}, v{vx}, s[{S_P}:{S_P+1}] offset:{(32 if half == 0 else 1024)*j} {"" if half == 0 else "sc1"}')
            add64(a, S_P, S_P, ngr*32768)
            a(f's_lshl_b32 s{S_T}, s{S_B}, 12'); a(f's_add_u32 s{S_T}, s{S_T}, {W.ST + half*262144}'); add64(a, S_IN, S_WS, f's{S_T}')
            l = a.newlabel('Lwt'); a(f's_cmp_lg_u32 s{S_LOC}, 1'); a(f's_cbranch_scc1 {l}')
            a(f'v_lshlrev_b32 v{t0}, 6, v{L}'); a(f'global_load_dword v{t1}, v{t0}, s[{S_IN}:{S_IN+1}] sc1'); a.label(l)
        def rbf(r): a(f'v_cvt_pk_bf16_f32 v{r}, v{r}, v{r}'); a(f'v_and_b32 v{r}, s{S_M}, v{r}')
        def halves(regs):
            for x, t in zip(regs, (t0, t1)): a(f'v_mov_b32 v{t}, v{x}')
            for x, t in zip(regs, (t0, t1)): a(f'v_permlane32_swap_b32 v{x}, v{t}')
            for x, t in zip(regs, (t0, t1)): a(f'v_add_f32 v{x}, v{x}, v{t}')
        def epi(pref2):
            a(f's_lshl_b32 s{S_T}, s{S_A}, 2'); a(f's_add_u32 s{S_T}, s{S_T}, s{S_W}'); a(f's_lshl_b32 s{S_T2}, s{S_T}, 8')
            self.set_word(FL(half, "XNB"), S_B, S_T)
            for d in range(8):
                e = ACC+2*d
                a(f'v_cvt_pk_bf16_f32 v{t1}, v{e}, v{e+1}'); a(f'v_lshlrev_b32 v{e}, 16, v{X+d}'); a(f'v_and_b32 v{e+1}, s{S_M}, v{X+d}')
                a(f'v_lshlrev_b32 v{t0}, 16, v{t1}'); a(f'v_and_b32 v{t1}, s{S_M}, v{t1}')
                a(f'v_add_f32 v{e}, v{e}, v{t0}'); a(f'v_add_f32 v{e+1}, v{e+1}, v{t1}')
                a(f'v_cvt_pk_bf16_f32 v{X+d}, v{e}, v{e+1}')
                a(f'v_lshlrev_b32 v{e}, 16, v{X+d}'); a(f'v_and_b32 v{e+1}, s{S_M}, v{X+d}')
                if d == 0: a(f'v_add_f32 v{SP}, v{e}, v{e+1}'); a(f'v_mul_f32 v{SP+1}, v{e}, v{e}')
                else: a(f'v_add_f32 v{SP}, v{SP}, v{e}'); a(f'v_add_f32 v{SP}, v{SP}, v{e+1}'); a(f'v_fmac_f32 v{SP+1}, v{e}, v{e}')
                a(f'v_fmac_f32 v{SP+1}, v{e+1}, v{e+1}')
            halves((SP, SP+1))
            a(f'v_or_b32 v{SP+1}, 1, v{SP+1}'); a(f'v_add_u32 v{t0}, s{S_T2}, v{vs}')
            a('s_mov_b32 exec_hi, 0'); self.dual(lambda f: a(f'global_store_dwordx2 v{t0}, {vr(SP,2)}, s[{S_IN}:{S_IN+1}] {f}')); a('s_mov_b32 exec_hi, -1')
            a('s_waitcnt vmcnt(0)')
            l1 = a.newlabel('Lwr'); l2 = a.newlabel('Lwr')
            a(f's_mov_b32 s{S_SPIN}, 0')
            a.label(l1)
            for p in range(8): a(f'global_load_dwordx2 {vr(G+2*p,2)}, v{vs}, s[{S_IN}:{S_IN+1}] offset:{256*p} sc1')
            a('s_waitcnt vmcnt(0)')
            a(f'v_bitop3_b32 v{t0}, v{G+1}, v{G+3}, v{G+5} bitop3:0x80'); a(f'v_bitop3_b32 v{t1}, v{G+7}, v{G+9}, v{G+11} bitop3:0x80')
            a(f'v_bitop3_b32 v{t0}, v{t0}, v{G+13}, v{G+15} bitop3:0x80'); a(f'v_bitop3_b32 v{t0}, v{t0}, v{t1}, 1 bitop3:0x80')
            a(f'v_cmp_eq_u32 vcc, 0, v{t0}'); a(f's_cbranch_vccz {l2}')
            a(f's_add_u32 s{S_SPIN}, s{S_SPIN}, 1'); a(f's_cmp_lt_u32 s{S_SPIN}, {SPIN_MAX}'); a(f's_cbranch_scc1 {l1}')
            a(f's_branch {self.end}')
            a.label(l2)
            pref2()
            for j in range(2): a(f'global_store_dwordx4 v{vo}, {vr(X+4*j,4)}, s[{S_OUT}:{S_OUT+1}] offset:{1024*j} sc1')
            for st in (8, 4, 2):
                for i in range(0, st, 2): a(f'v_pk_add_f32 {vr(G+i,2)}, {vr(G+i,2)}, {vr(G+i+st,2)}')
            halves((G, G+1))
            a(f'v_mul_f32 v{mu}, {f2u(1/512):#x}, v{G}'); a(f'v_mul_f32 v{sm}, {f2u(1/512):#x}, v{G+1}')
            a(f'v_fma_f32 v{sm}, -v{mu}, v{mu}, v{sm}'); a(f'v_max_f32 v{sm}, 0, v{sm}')
            rbf(sm); a(f'v_add_f32 v{sm}, {f2u(1e-5):#x}, v{sm}'); rbf(sm)
            a(f'v_sqrt_f32 v{sm}, v{sm}'); rbf(sm); a(f'v_rcp_f32 v{sm}, v{sm}'); rbf(mu)
            add64(a, S_IN, S_OUT, H.XNB - H.X1) if H.XNB > H.X1 else (a(f's_sub_u32 s{S_IN}, s{S_OUT}, {H.X1 - H.XNB}'), a(f's_subb_u32 s{S_IN+1}, s{S_OUT+1}, 0'))
            for d in range(8):
                e = ACC+2*d
                a(f'v_sub_f32 v{t0}, v{e}, v{mu}'); a(f'v_sub_f32 v{t1}, v{e+1}, v{mu}'); a(f'v_cvt_pk_bf16_f32 v{t1}, v{t0}, v{t1}')
                a(f'v_lshlrev_b32 v{t0}, 16, v{t1}'); a(f'v_and_b32 v{t1}, s{S_M}, v{t1}')
                a(f'v_mul_f32 v{t0}, v{t0}, v{sm}'); a(f'v_mul_f32 v{t1}, v{t1}, v{sm}'); a(f'v_cvt_pk_bf16_f32 v{G+d}, v{t0}, v{t1}')
                if d % 4 == 3: a(f'global_store_dwordx4 v{vo}, {vr(G+d-3,4)}, s[{S_IN}:{S_IN+1}] offset:{1024*(d//4)} sc1')
        self.stream(ngr, H.OA, FL(half, 'OA'), 32, [(ACC, 'v', 128, False)], epi, 4, lambda: None, False, mk=(0, 0) if half == 1 else (8, 0), pre=pre)
    def rb_run(self, half, kind, ngr):
        a = self.a; H = W.H[half]
        lp = a.newlabel('Lr_loop'); a.label(lp)
        mk = (4, 0) if (kind == 1 and half == 1) else ((4, 63) if (kind == 2 and half == 0) else ((8, 0) if kind == 1 else None))
        def ready():
            self.flag_off(FL(half, 'YA' if kind == 1 else 'PT'), S_A); self.wait(16 if kind == 1 else 32, lazy=S_A)
            if mk: self.mark(mk[0], S_A, mk[1])
        xprev = KA_X if half == 0 else W.H[0].X2
        if kind == 1: rb_body(a, 1, xprev, half == 0, H.YA, 0, 32768, H.X1, False, H.XNB, 'sc1', 'sc1', ready)
        elif half == 0: rb_body(a, 8, H.X1, False, H.PT, 32768, 8*32768, H.X2, False, W.H[1].XNA, 'sc1', 'sc1', ready, dual=self.dual)
        else: rb_body(a, 8, H.X1, False, H.PT, 32768, 8*32768, KA_OUT, True, None, 'sc1', 'sc1', ready)
        if kind == 1 or half == 0:
            if mk: self.mark(mk[0]+2, S_A, mk[1])
            self.set_word(FL(half, 'XNB') if kind == 1 else FL(1, 'XNA'), S_A, S_B); self.signal_wg(True)
            if mk: self.mark(mk[0]+3, S_A, mk[1])
        a(f's_add_u32 s{S_A}, s{S_A}, {ngr}'); a(f's_cmp_lt_u32 s{S_A}, 64'); a(f's_cbranch_scc1 {lp}')

    def att_run(self, half, npg):
        a = self.a; H = W.H[half]
        self.code_touch()
        t0, t1, t2, ak, av, idx, lw = range(3, 10); mx = 204
        Q = 12; QN = 16; K0 = 20; Cc = 24; O = 40; D = [56, 72, 88]; KF = 104; MG = 168
        pi_of(a, t0, L, t1)
        a(f'v_and_b32 v{t1}, 32, v{L}'); a(f'v_add_u32 v{ak}, v{t0}, v{t1}'); a(f'v_lshlrev_b32 v{ak}, 4, v{ak}')
        a(f'v_and_b32 v{t0}, 15, v{t0}'); a(f's_and_b32 s{S_T}, s{S_A}, 1'); a(f's_lshl_b32 s{S_T}, s{S_T}, 4'); a(f'v_add_u32 v{t0}, s{S_T}, v{t0}')
        vpos16(a, av, t0, L, t1)
        a(f'v_mov_b32 v{idx}, 0xdddd')
        a(f's_mul_i32 s{S_T}, s{S_W}, 3072'); a(f'v_add_u32 v{lw}, s{S_T}, v{L16}')
        a(f's_lshr_b32 s{S_T}, s{S_A}, 1'); self.flag_off(FL(half, 'QKVA'), S_T, 11)
        KM_, QM_ = 52, 54
        fa = 205
        a(f'v_lshl_add_u32 v{fa}, v{L}, 5, s{S_FO}')
        a(f's_mov_b64 s[{KM_}:{KM_+1}], -1'); a(f's_mov_b64 s[{QM_}:{QM_+1}], -1')
        def need(km, qm):
            l1 = a.newlabel('La_n'); l2 = a.newlabel('La_n'); l3 = a.newlabel('La_n')
            a(f's_mov_b32 s{S_SPIN}, 0')
            a.label(l3)
            tests = [(m, k) for m, k in ((km, KM_), (qm, QM_)) if m is not None]
            for i, (m, k) in enumerate(tests):
                a(f's_and_b64 vcc, s[{m}:{m+1}], s[{k}:{k+1}]'); a(f's_cbranch_scc0 {l2}' if i == len(tests)-1 else f's_cbranch_scc1 {l1}')
            a.label(l1)
            ls = a.newlabel('La_n'); a(f's_cmp_eq_u32 s{S_SPIN}, 0'); a(f's_cbranch_scc1 {ls}'); a(f's_sleep {self.wsleep}'); a.label(ls)
            a(f'global_load_dword v{VZ}, v{fa}, s[{S_WS}:{S_WS+1}] sc1'); a(f'global_load_dword v{VF}, v{fa}, s[{S_WS}:{S_WS+1}] offset:16 sc1'); a('s_waitcnt vmcnt(0)')
            a(f'v_cmp_eq_u32 s[{KM_}:{KM_+1}], 0, v{VZ}'); a(f'v_cmp_eq_u32 s[{QM_}:{QM_+1}], 0, v{VF}')
            a(f's_add_u32 s{S_SPIN}, s{S_SPIN}, 1'); a(f's_cmp_lt_u32 s{S_SPIN}, {SPIN_MAX}'); a(f's_cbranch_scc1 {l3}')
            a(f's_branch {self.end}')
            a.label(l2)
        def qwait(blk): a(f's_lshl_b64 s[{S_P}:{S_P+1}], 1, s{blk}'); need(None, S_P)
        a(f's_mov_b32 s56, -1'); a(f's_mov_b32 s57, {0x00ffffff if half else 0xffffffff:#x}'); a(f's_lshl_b64 s[{S_P}:{S_P+1}], 1, s{S_B}'); need(56, S_P)
        self.stamp(2 + 8*half)
        a(f's_lshl_b32 s{S_T}, s{S_A}, 10'); a(f's_lshl_b32 s{S_T2}, s{S_B}, 15'); a(f's_add_u32 s{S_T2}, s{S_T2}, s{S_T}')
        a(f's_add_u32 s{S_T3}, s{S_T2}, {H.QA}'); add64(a, S_IN, S_WS, f's{S_T3}')
        a(f's_add_u32 s{S_T3}, s{S_T2}, {H.OA}'); add64(a, S_OUT, S_WS, f's{S_T3}')
        a(f'global_load_dwordx4 {vr(QN,4)}, v{L16}, s[{S_IN}:{S_IN+1}] sc1')
        a(f's_add_u32 s{S_K0}, s{S_T}, {H.KA}')
        a(f'buffer_load_dwordx4 {vr(K0,4)}, v{ak}, s[{S_WSRD}:{S_WSRD+3}], s{S_K0} offen sc1')
        a(f's_lshl_b32 s{S_T2}, s{S_W}, 15'); a(f's_add_u32 s{S_K0}, s{S_K0}, s{S_T2}')
        a(f's_lshr_b32 s{S_K1}, s{S_A}, 1'); a(f's_lshl_b32 s{S_K1}, s{S_K1}, 11'); a(f's_add_u32 s{S_K1}, s{S_K1}, s{S_T2}'); a(f's_add_u32 s{S_K1}, s{S_K1}, {H.VA}')
        a(f's_mov_b32 s{S_M}, 0x0000ffff'); a(f's_mov_b32 s{S_M+1}, 0x0000ffff')
        def kv_tile(t):
            a(f's_add_u32 s{S_T}, s{S_K0}, {t*131072}')
            a(f'buffer_load_dwordx4 {vr(KF+4*t,4)}, v{ak}, s[{S_WSRD}:{S_WSRD+3}], s{S_T} offen sc1')
            a(f's_add_u32 s{S_T}, s{S_K1}, {t*131072}')
            a(f's_mov_b64 exec, s[{S_M}:{S_M+1}]')
            for b in range(2): a(f'buffer_load_dwordx4 {vr(8*t+4*b,4,"a")}, v{av}, s[{S_WSRD}:{S_WSRD+3}], s{S_T} offen offset:{1024*b} sc1')
            a('s_mov_b64 exec, -1')
        def late_tile(t):
            if half == 0: return
            l = a.newlabel('La_lt'); a(f's_bitcmp0_b32 s{S_PD}, {t-14}'); a(f's_cbranch_scc1 {l}')
            a(f's_add_u32 s{S_T}, s{S_W}, {4*t}'); a(f's_lshl_b64 s[{S_P}:{S_P+1}], 1, s{S_T}')
            need(S_P, None)
            if t == 15: self.mark(0, S_B, 0)
            kv_tile(t); a('s_waitcnt vmcnt(0)')
            a(f's_bitset0_b32 s{S_PD}, {t-14}')
            a.label(l)
        NT = 14 if half else 16
        a(f's_mov_b32 s{S_PD}, 3')
        if half:
            for t in (14, 15):
                l = a.newlabel('La_et'); a(f's_add_u32 s{S_T}, s{S_W}, {4*t}'); a(f's_bitcmp1_b64 s[{KM_}:{KM_+1}], s{S_T}'); a(f's_cbranch_scc1 {l}')
                kv_tile(t); a(f's_bitset0_b32 s{S_PD}, {t-14}'); a.label(l)
        UP = self.attup
        for t in range(UP): kv_tile(t)
        a(f's_mov_b32 s{S_BUF}, 0'); a(f's_mov_b32 s{S_CNT}, 0'); a(f's_mov_b32 s{S_PF}, 0')
        a('s_barrier')
        lp = a.newlabel('La_loop'); run = a.newlabel('La_run'); slow = a.newlabel('La_slow'); nom = a.newlabel('La_nom'); noq = a.newlabel('La_noq'); out = a.newlabel('La_out')
        def rowmax(src, first):
            if first: a(f'v_max3_f32 v{mx}, v{src}, v{src+1}, v{src+2}'); rest = list(range(3, 16))
            else: rest = list(range(16))
            while len(rest) >= 2:
                a(f'v_max3_f32 v{mx}, v{mx}, v{src+rest[0]}, v{src+rest[1]}'); rest = rest[2:]
            if rest: a(f'v_max_f32 v{mx}, v{mx}, v{src+rest[0]}')
        def halfmax():
            a(f'v_mov_b32 v{t0}, v{mx}'); a(f'v_permlane32_swap_b32 v{mx}, v{t0}'); a(f'v_max_f32 v{mx}, v{mx}, v{t0}')
        def pending():
            l = a.newlabel('La_p'); a(f's_cmp_eq_u32 s{S_PF}, 0'); a(f's_cbranch_scc1 {l}')
            a('s_waitcnt vmcnt(0)'); self.wsignal(); a(f's_mov_b32 s{S_PF}, 0')
            if half: self.mark(3, S_B, 0)
            a.label(l)
        def pv(t, b): a(f'v_smfmac_f32_32x32x32_bf16 {vr(O,16)}, {vr(8*t+4*b,4,"a")}, {vr(D[t%3]+8*b,8)}, v{idx}')
        def nextq():
            noq = a.newlabel('La_noq')
            a(f's_cmp_ge_u32 s{S_TK}, 64'); a(f's_cbranch_scc1 {noq}')
            qwait(S_TK)
            a(f'global_load_dwordx4 {vr(QN,4)}, v{L16}, s[{S_IN}:{S_IN+1}] sc1')
            a.label(noq)
        def block(first):
            for i in range(4): a(f'v_mov_b32 v{Q+i}, v{QN+i}')
            a(f's_add_u32 s{S_TK}, s{S_B}, {npg}'); add64(a, S_IN, S_IN, npg*32768)
            a(mf(D[0], vr(K0,4), vr(Q,4), 0))
            for i in range(16): a(f'v_mov_b32 v{O+i}, 0')
            rowmax(D[0], True); halfmax()
            a(f's_mov_b32 s{S_XO}, 0')
            if not first: a.label(run)
            for i in range(16): a(f'v_sub_f32 v{Cc+i}, 0, v{mx}')
            issued = UP
            if first: a(f's_waitcnt vmcnt({3*(issued-2)})')
            a(mf(D[0], vr(KF,4), vr(Q,4), vr(Cc,16)))
            a(mf(D[1], vr(KF+4,4), vr(Q,4), vr(Cc,16)))
            for t in range(16):
                d = D[t % 3]
                for i in range(16):
                    a(f'v_exp_f32 v{d+i}, v{d+i}')
                    if i == 2 and t > 0: pv(t-1, 1)
                    if first and i == 2 and issued < NT: kv_tile(issued); issued += 1
                    if first and i == 6 and NT <= t + 2 < 16: late_tile(t+2)
                    if first and i == 6 and t + 2 < NT: a(f's_waitcnt vmcnt({3*(issued-1-(t+2))})')
                    if i == 6 and t + 2 < 16: a(mf(D[(t+2)%3], vr(KF+4*(t+2),4), vr(Q,4), vr(Cc,16)))
                    if i == 11: pv(t, 0)
                if t == 5 and not first: pending()
                if t == (NT - 3 if first else 6): nextq()
            pv(15, 1)
        merge = a.newlabel('La_merge')
        a(f's_waitcnt vmcnt({3*UP})')
        self.mark(1 if half else 11, S_B, 0)
        block(True); a(f's_branch {merge}')
        a.label(lp)
        block(False)
        a.label(merge)
        a(f'v_add_u32 v{t1}, s{S_BUF}, v{lw}')
        for j in range(3): a(f'ds_write_b128 v{t1}, {vr(O+4*j,4)} offset:{1024*j}')
        a('s_waitcnt vmcnt(0) lgkmcnt(0)'); a('s_barrier')
        a(f'v_add_u32 v{t1}, s{S_BUF}, v{L16}')
        for w in range(4): a(f'ds_read_b32 v{MG+w}, v{t1} offset:{3072*w+2048}')
        a('s_waitcnt lgkmcnt(0)')
        a(f'v_add_f32 v{MG}, v{MG}, v{MG+1}'); a(f'v_add_f32 v{MG+2}, v{MG+2}, v{MG+3}'); a(f'v_add_f32 v{t2}, v{MG}, v{MG+2}')
        a(f's_xor_b32 s{S_BUF}, s{S_BUF}, 16384')
        a(f'v_cmp_nge_f32 vcc, {f2u(2.0**90):#x}, v{t2}')
        a(f's_cbranch_vccnz {slow}')
        fin = a.newlabel('La_fin'); a.label(fin)
        a(f's_and_b32 s{S_T}, s{S_CNT}, 3'); a(f's_add_u32 s{S_CNT}, s{S_CNT}, 1')
        a(f's_cmp_lg_u32 s{S_T}, s{S_W}'); a(f's_cbranch_scc1 {nom}')
        for w in range(4):
            for j in range(2): a(f'ds_read_b128 {vr(MG+8*w+4*j,4)}, v{t1} offset:{3072*w+1024*j}')
        a(f'v_rcp_f32 v{t2}, v{t2}')
        a('s_waitcnt lgkmcnt(0)')
        for i in range(8):
            a(f'v_add_f32 v{MG+i}, v{MG+i}, v{MG+8+i}'); a(f'v_add_f32 v{MG+16+i}, v{MG+16+i}, v{MG+24+i}')
            a(f'v_add_f32 v{MG+i}, v{MG+i}, v{MG+16+i}'); a(f'v_mul_f32 v{MG+i}, v{MG+i}, v{t2}')
        for i in range(4): a(f'v_cvt_pk_bf16_f32 v{MG+i}, v{MG+2*i}, v{MG+2*i+1}')
        a(f'global_store_dwordx4 v{L16}, {vr(MG,4)}, s[{S_OUT}:{S_OUT+1}] sc1')
        self.set_word(FL(half, 'OA'), S_B, S_A); a(f's_mov_b32 s{S_PF}, 1')
        self.mark(2 if half else 12, S_B, 0)
        a(f's_cmp_ge_u32 s{S_B}, {npg}'); a(f's_cbranch_scc1 {nom}')
        pending()
        a.label(nom)
        add64(a, S_OUT, S_OUT, npg*32768)
        a(f's_mov_b32 s{S_B}, s{S_TK}')
        a(f's_cmp_lt_u32 s{S_B}, 64'); a(f's_cbranch_scc1 {lp}')
        pending()
        a(f's_branch {out}')
        a.label(slow)
        a(f's_cmp_lg_u32 s{S_XO}, 0'); a(f's_cbranch_scc1 {fin}')
        a(f's_mov_b32 s{S_XO}, 1')
        for t in range(16):
            a(mf(D[t%2], vr(KF+4*t,4), vr(Q,4), 0))
            rowmax(D[t%2], t == 0)
        halfmax()
        a(f'ds_write_b32 v{lw}, v{mx} offset:32768'); a('s_waitcnt lgkmcnt(0)'); a('s_barrier')
        for w in range(4): a(f'ds_read_b32 v{MG+w}, v{L16} offset:{32768+3072*w}')
        a('s_waitcnt lgkmcnt(0)')
        a(f'v_max3_f32 v{mx}, v{MG}, v{MG+1}, v{MG+2}'); a(f'v_max_f32 v{mx}, v{mx}, v{MG+3}')
        for i in range(16): a(f'v_mov_b32 v{O+i}, 0')
        a(f's_branch {run}')
        a.label(out)
        a('s_barrier')

    def tb_weights(self):
        a = self.a
        a(f's_lshr_b32 s{S_T}, s{S_A}, 2'); a(f's_lshl_b32 s{S_T}, s{S_T}, 19'); a(f's_and_b32 s{S_T2}, s{S_A}, 3'); a(f's_lshl_b32 s{S_T2}, s{S_T2}, 8')
        a(f's_add_u32 s{S_OFF}, s{S_T}, s{S_T2}')
        load_wslices(a, [(KA_WO, 4*MB, 0, 'a', 128)], 1024, L, 3, 4, 5)
    def tb_run(self, half, ngr):
        a = self.a; H = W.H[half]
        t0, t1, akm, av, avm, vo, xw = range(3, 10); mx = 240; FG = 244
        XR = 12; CM = 28; SX = 44; SM = 60; Q = 76; K = 108; KM = 140; V = 172; VM = 204; P = 212; PM = 220; ACC = 224
        OT = Q
        a(f'v_and_b32 v{t0}, 7, v{L}'); a(f'v_lshlrev_b32 v{akm}, 4, v{t0}'); a(f'v_lshrrev_b32 v{t0}, 5, v{L}'); a(f'v_lshl_add_u32 v{akm}, v{t0}, 7, v{akm}')
        a(f'v_add_u32 v{akm}, {HB_KM}, v{akm}')
        pi_of(a, t0, L, t1); vpos16(a, av, t0, L, t1); a(f'v_add_u32 v{av}, {HB_V}, v{av}')
        a(f'v_lshlrev_b32 v{avm}, 2, v{t0}'); a(f'v_lshrrev_b32 v{t1}, 5, v{L}'); a(f'v_lshl_add_u32 v{avm}, v{t1}, 8, v{avm}'); a(f'v_add_u32 v{avm}, {HB_VM}, v{avm}')
        a(f's_lshl_b32 s{S_T}, s{S_W}, 11'); a(f'v_add_u32 v{vo}, s{S_T}, v{L16}')
        a(f's_lshl_b32 s{S_T}, s{S_W}, 13'); a(f'v_add_u32 v{xw}, s{S_T}, v{L16}')
        a(f'v_and_b32 v{t0}, 31, v{L}'); a(f'v_lshrrev_b32 v{t1}, 5, v{L}'); a(f'v_lshlrev_b32 v{t1}, 2, v{t1}'); a(f'v_sub_u32 v{t0}, v{t0}, v{t1}')
        a(f'v_mov_b32 v{t1}, {f2u(-1e30):#x}')
        for i in range(16):
            a(f'v_cmp_le_i32 vcc, {8*(i>>2)+(i&3)}, v{t0}'); a(f'v_cndmask_b32 v{CM+i}, v{t1}, 0, vcc')
        a(f's_and_b32 s{S_T}, s{S_A}, 28'); a(f's_add_u32 s{S_T}, s{S_T}, s{S_W}')
        a(f's_lshl_b32 s{S_K0}, s{S_T}, 8'); a(f's_add_u32 s{S_K0}, s{S_K0}, {FL(half, "HEAD")}')
        a(f's_lshl_b32 s{S_T}, s{S_T}, 21')
        a(f's_lshl_b32 s{S_T2}, s{S_B}, 15'); a(f's_add_u32 s{S_XO}, s{S_T}, s{S_T2}'); a(f's_add_u32 s{S_XO}, s{S_XO}, {H.HB}')
        a(f's_lshl_b32 s{S_T}, s{S_B}, 18'); a(f's_lshl_b32 s{S_T2}, s{S_A}, 13'); a(f's_add_u32 s{S_T}, s{S_T}, s{S_T2}'); a(f's_add_u32 s{S_T}, s{S_T}, {H.PT}')
        add64(a, S_OUT, S_WS, f's{S_T}')
        a(f's_mov_b32 s{S_M}, {f2u(math.log2(math.e)/math.sqrt(128.0)):#x}')
        a(f's_mov_b32 s{S_N}, 0'); a(f's_mov_b32 s{S_K1}, 0')
        def bl(n, dst, va, so, off): a(f'buffer_load_dword{n} {vr(dst, 4 if n else 1)}, v{va}, s[{S_WSRD}:{S_WSRD+3}], s{so} offen offset:{off} sc1')
        def poll(which):
            l1 = a.newlabel('Lt_p'); l2 = a.newlabel('Lt_p'); l3 = a.newlabel('Lt_p')
            a(f's_mov_b32 s{S_SPIN}, 0'); a(f's_branch {l3}')
            a.label(l1)
            if which == S_N:
                a(f'v_mov_b32 v{VZ}, s{S_K0}')
                _ = [a(f'global_load_dword v{FG+i}, v{VZ}, s[{S_WS}:{S_WS+1}] offset:{32*i} sc1') for i in range(8)]; a('s_waitcnt vmcnt(0)')
                a(f'v_min3_u32 v{FG}, v{FG}, v{FG+1}, v{FG+2}'); a(f'v_min3_u32 v{FG}, v{FG}, v{FG+3}, v{FG+4}'); a(f'v_min3_u32 v{FG}, v{FG}, v{FG+5}, v{FG+6}'); a(f'v_min_u32 v{FG}, v{FG}, v{FG+7}')
            else:
                a(f's_add_u32 s{S_X}, s{S_K0}, {FL(half, "CHP") - FL(half, "HEAD")}'); a(f'v_mov_b32 v{VZ}, s{S_X}')
                a(f'global_load_dword v{FG}, v{VZ}, s[{S_WS}:{S_WS+1}] sc1'); a('s_waitcnt vmcnt(0)')
            a(f'v_readfirstlane_b32 s{which}, v{FG}')
            if which == S_N: a(f's_max_u32 s{S_N}, s{S_N}, 2'); a(f's_sub_u32 s{S_N}, s{S_N}, 2')
            a(f's_cmp_gt_u32 s{which}, s{S_B}'); a(f's_cbranch_scc1 {l2}')
            a(f's_sleep {self.tbsleep}')
            a(f's_add_u32 s{S_SPIN}, s{S_SPIN}, 1'); a(f's_cmp_ge_u32 s{S_SPIN}, {SPIN_MAX}'); a(f's_cbranch_scc1 {self.end}')
            a.label(l3)
            a(f's_cmp_gt_u32 s{which}, s{S_B}'); a(f's_cbranch_scc0 {l1}')
            a.label(l2)
        lp = a.newlabel('Lt_loop')
        a.label(lp)
        poll(S_N)
        a(f's_add_u32 s{S_T}, s{S_XO}, 4096'); a(f's_add_u32 s{S_T2}, s{S_XO}, {HB_Q}'); a(f's_add_u32 s{S_T3}, s{S_XO}, {HB_Q+4096}')
        for kb in range(8):
            bl('x4', K+4*kb, L16, S_XO if kb < 4 else S_T, (kb%4)*1024)
            bl('x4', Q+4*kb, L16, S_T2 if kb < 4 else S_T3, (kb%4)*1024)
        for f in range(8): bl('x4', V+4*f, av, S_XO if f < 4 else S_T, (f%4)*1024)
        poll(S_K1)
        if half == 0: self.mark(4, S_B, 63)
        for kb in range(8): bl('x4', KM+4*kb, akm, S_XO, kb*256)
        for t in range(4):
            for e in range(2): bl('', VM+2*t+e, avm, S_XO, t*512 + e*128)
        for kb in range(8):
            a(f's_waitcnt vmcnt({24 + 14 - 2*kb})')
            a(mf(SX, vr(K+4*kb,4), vr(Q+4*kb,4), vr(SX,16) if kb else vr(CM,16)))
        a('s_waitcnt vmcnt(8)')
        if half == 0: self.mark(5, S_B, 63)
        for kb in range(8): a(mf(SM, vr(KM+4*kb,4), vr(Q+4*kb,4), vr(SM,16) if kb else 0))
        E = [SX+i for i in range(16)] + [SM+i for i in range(4)]
        a(f'v_max3_f32 v{mx}, v{E[0]}, v{E[1]}, v{E[2]}')
        for i in range(3, 19, 2): a(f'v_max3_f32 v{mx}, v{mx}, v{E[i]}, v{E[i+1]}')
        a(f'v_max_f32 v{mx}, v{mx}, v{E[19]}')
        a(f'v_mov_b32 v{t0}, v{mx}'); a(f'v_permlane32_swap_b32 v{mx}, v{t0}'); a(f'v_max_f32 v{mx}, v{mx}, v{t0}')
        for e in E: a(f'v_sub_f32 v{e}, v{e}, v{mx}')
        for e in E: a(f'v_mul_f32 v{e}, s{S_M}, v{e}')
        for e in E: a(f'v_exp_f32 v{e}, v{e}')
        a(f'v_add_f32 v{t1}, v{E[0]}, v{E[1]}')
        for e in E[2:]: a(f'v_add_f32 v{t1}, v{t1}, v{e}')
        a(f'v_mov_b32 v{t0}, v{t1}'); a(f'v_permlane32_swap_b32 v{t1}, v{t0}'); a(f'v_add_f32 v{t1}, v{t1}, v{t0}')
        a(f'v_rcp_f32 v{t1}, v{t1}')
        for e in E: a(f'v_mul_f32 v{e}, v{e}, v{t1}')
        for i in range(8): a(f'v_cvt_pk_bf16_f32 v{P+i}, v{SX+2*i}, v{SX+2*i+1}')
        for i in range(2): a(f'v_cvt_pk_bf16_f32 v{PM+i}, v{SM+2*i}, v{SM+2*i+1}')
        a('s_waitcnt vmcnt(0)')
        for t in range(4):
            o = OT+16*t
            a(f'v_mfma_f32_32x32x8_bf16 {vr(o,16)}, {vr(VM+2*t,2)}, {vr(PM,2)}, 0')
            for j in range(2): a(mf(o, vr(V+8*t+4*j,4), vr(P+4*j,4), vr(o,16)))
        for t in range(4):
            for j in range(2):
                o = OT+16*t+8*j
                for i in range(4): a(f'v_cvt_pk_bf16_f32 v{o+i}, v{o+2*i}, v{o+2*i+1}')
                a(f'ds_write_b128 v{xw}, {vr(o,4)} offset:{(2*t+j)*1024}')
        a('s_waitcnt lgkmcnt(0)'); a('s_barrier')
        gemm_core(a, L16, XR, [(ACC, 'a', 128, False)])
        pack_store(a, ACC, vo, S_OUT, 'sc1')
        if half == 0: self.mark(6, S_B, 63)
        self.set_word(FL(half, 'PT'), S_B, S_A); self.signal_wg()
        if half == 0: self.mark(7, S_B, 63)
        add64(a, S_OUT, S_OUT, ngr*8*32768); a(f's_add_u32 s{S_XO}, s{S_XO}, {ngr*32768}')
        a(f's_add_u32 s{S_B}, s{S_B}, {ngr}'); a(f's_cmp_lt_u32 s{S_B}, 64'); a(f's_cbranch_scc1 {lp}')

    def build(self):
        a = self.a; end = self.end
        a(f's_cmp_ge_u32 s2, 256'); a(f's_cbranch_scc1 {end}')
        if self.stamps == 2: a('s_memrealtime s[96:97]')
        if self.stamps is True: a('s_memrealtime s[94:95]')
        a(f's_load_dwordx2 s[{S_DBG}:{S_DBG+1}], s[0:1], {KA_DBG}')
        common_prologue(a, L, L16)
        lw = a.newlabel('Le'); lo = a.newlabel('Le'); ls = a.newlabel('Le'); lg = a.newlabel('Le'); lz = a.newlabel('Le')
        a(f's_getreg_b32 s{S_X}, hwreg(HW_REG_XCC_ID, 0, 3)')
        a(f's_xor_b32 s{S_X}, s{S_X}, {self.die}')
        if self.fake: a(self.fake.format(x=S_X))
        a(f's_lshl_b32 s{S_T}, s{S_X}, 4'); a(f'v_mov_b32 v3, s{S_T}'); a('v_mov_b32 v4, 1')
        def xwait():
            l1 = a.newlabel('Le'); l2 = a.newlabel('Le')
            a(f's_mul_i32 s{S_T}, s2, 3072'); a(f's_add_u32 s{S_T}, s{S_T}, {W.FLAGS}'); a('v_mul_u32_u24 v6, 12, v0'); a(f'v_add_u32 v6, s{S_T}, v6'); a('v_mov_b32 v8, 0'); a('v_mov_b32 v9, 0'); a('v_mov_b32 v10, 0')
            a(f'global_store_dwordx3 v6, v[8:10], s[{S_WS}:{S_WS+1}] sc1')
            a(f's_cmp_lg_u32 s{S_W}, 0'); a(f's_cbranch_scc1 {l1}')
            a('s_mov_b64 exec, 1'); a(f'global_atomic_add v5, v3, v4, s[{S_DBG}:{S_DBG+1}] offset:{self.TO} sc0 sc1'); a('s_mov_b64 exec, -1')
            a('s_waitcnt vmcnt(2)'); a(f's_branch {l2}')
            a.label(l1); a('s_waitcnt vmcnt(1)'); a.label(l2)
        a(f's_lshr_b32 s{S_A}, s2, 2'); a(f's_and_b32 s{S_B}, s2, 3')
        rb_body(a, 0, KA_X, True, 0, 0, 0, None, False, W.H[0].XNA, '', 'sc1', ldsoff=1024, vb=20, xwait=xwait)
        a(f's_cmp_lg_u32 s{S_W}, 0'); a(f's_cbranch_scc1 {lw}')
        a('s_mov_b64 exec, 1'); a('s_waitcnt vmcnt(2)')
        a(f'v_readfirstlane_b32 s{S_TK}, v5')
        a(f's_lshl_b32 s{S_SLOT}, s{S_X}, 5'); a(f's_add_u32 s{S_SLOT}, s{S_SLOT}, s{S_TK}')
        a(f's_cmp_lt_u32 s{S_TK}, 32'); a(f's_cbranch_scc1 {lg}')
        a('v_mov_b32 v3, 136'); a(f'global_atomic_add v5, v3, v4, s[{S_DBG}:{S_DBG+1}] sc0 sc1'); a('s_waitcnt vmcnt(0)')
        a(f'v_readfirstlane_b32 s{S_TK}, v5')
        self.count_wait(self.TO, 12, ls, S_T, S_SPIN)
        a.label(ls)
        for x in range(8):
            a(f'v_readfirstlane_b32 s{S_T}, v{12+x}'); a(f's_min_u32 s{S_T}, s{S_T}, 32')
            a(f's_add_u32 s{S_SLOT}, s{S_T}, s{S_TK}'); a(f's_add_u32 s{S_SLOT}, s{S_SLOT}, {32*x}')
            a(f's_sub_u32 s{S_T}, 32, s{S_T}'); a(f's_cmp_lt_u32 s{S_TK}, s{S_T}'); a(f's_cbranch_scc1 {lg}')
            a(f's_sub_u32 s{S_TK}, s{S_TK}, s{S_T}')
        a(f's_mov_b32 s{S_SLOT}, 256')
        a.label(lg)
        a(f'v_mov_b32 v3, 0'); a(f'v_mov_b32 v4, s{S_SLOT}'); a('ds_write_b32 v3, v4'); a('s_waitcnt lgkmcnt(0)')
        a('s_mov_b64 exec, -1')
        a.label(lw)
        a('s_waitcnt vmcnt(0)'); a('s_barrier')
        a(f's_mov_b32 s{S_DIE}, s{S_X}'); self.report()
        a('v_mov_b32 v3, 0'); a('ds_read_b32 v4, v3'); a('s_waitcnt lgkmcnt(0)'); a(f'v_readfirstlane_b32 s{S_SLOT}, v4'); a('s_barrier')
        a(f's_lshr_b32 s{S_T}, s{S_SLOT}, 5'); a(f's_lshl_b32 s{S_T2}, s{S_T}, 2'); a(f's_lshr_b32 s{S_T2}, {self.perm:#x}, s{S_T2}'); a(f's_and_b32 s{S_T2}, s{S_T2}, 7')
        a(f's_cmp_lt_u32 s{S_T}, 8'); a(f's_cselect_b32 s{S_T2}, s{S_T2}, 8'); a(f's_and_b32 s{S_SLOT}, s{S_SLOT}, 31'); a(f's_lshl_b32 s{S_T2}, s{S_T2}, 5'); a(f's_add_u32 s{S_SLOT}, s{S_SLOT}, s{S_T2}')
        if self.stamps: a(f's_mov_b32 s99, s{S_SLOT}')
        self.role = 'all'
        self.dmap = {('all',0):0, ('ch',1):1, ('ch',2):2, ('ch',3):3, ('ch',4):4, ('gw',1):8, ('gw',2):9, ('gw',3):10, ('pb',1):11, ('ms',12):12, ('gw',4):13, ('pb',3):14}
        if self.stamps == 2:
            a('s_and_b32 s99, s96, 0xfff00000')
        self.sv = 10
        a(f's_mov_b32 s{S_SO}, {W.STAMPS}')
        if self.stamps: _ = [a(f's_mov_b32 s{70+k}, 0') for k in range(16)]
        if self.stamps is True: a('s_mov_b32 s85, s94')
        self.stamp(0)
        Lch, Lpb, Lgw, Lms, Lpa = [a.newlabel(n) for n in ('Lchain', 'Lpb', 'Lgw', 'Lms', 'Lpa')]
        a(f's_cmp_lt_u32 s{S_SLOT}, 32'); a(f's_cbranch_scc0 Lnot_chain')
        self.jump(Lch)
        a.label('Lnot_chain')
        a(f's_cmp_lt_u32 s{S_SLOT}, 96'); a(f's_cbranch_scc1 {Lpb}')
        a(f's_cmp_lt_u32 s{S_SLOT}, 224'); a(f's_cbranch_scc1 {Lgw}')
        a(f's_cmp_lt_u32 s{S_SLOT}, 240'); a(f's_cbranch_scc1 {Lms}')
        a(f's_cmp_lt_u32 s{S_SLOT}, 256'); a(f's_cbranch_scc1 {Lpa}')
        a.label(end); a('s_endpgm')
        a.label(Lms); self.role = 'ms'; self.code_touch(sh=7)
        a(f's_and_b32 s{S_A}, s{S_SLOT}, 3'); a(f's_lshl_b32 s{S_OFF}, s{S_A}, 8')
        load_wslices(a, [(KA_WOA, 512*1024, 0, 'v', 128)], 1024, L, 3, 4, 5)
        if self.pfb:
            a(f's_load_dwordx2 s[{S_P}:{S_P+1}], s[0:1], {KA_WO}'); a(f's_and_b32 s{S_T}, s{S_SLOT}, 15'); a(f's_lshl_b32 s{S_T}, s{S_T}, 18')
            a(f'v_lshl_add_u32 v3, v0, 7, s{S_T}'); a('s_waitcnt lgkmcnt(0)')
            for i in range(8):
                a(f'global_load_dword v4, v3, s[{S_P}:{S_P+1}]'); a('v_add_u32 v3, 32768, v3')
        self.flags_ready(); self.local_check()
        for half in range(2):
            a(f's_and_b32 s{S_A}, s{S_SLOT}, 3'); a(f's_bfe_u32 s{S_B}, s{S_SLOT}, 0x20002'); self.woa_run(half, 4); self.stamp(3 + 8*half)
            a(f's_bfe_u32 s{S_A}, s{S_SLOT}, 0x20002'); a(f's_and_b32 s{S_B}, s{S_SLOT}, 3')
            self.rb_run(half, 2, 4); self.stamp(4 + 8*half)
        self.dump_marks(); a('s_endpgm')
        a.label(Lpa); self.role = 'pa'; self.code_touch(sh=7)
        def first_x():
            self.flags_ready(); self.mark(9, S_W, 0)
            a(f's_lshl_b32 s{S_XO}, s{S_B}, 15'); a(f's_add_u32 s{S_XO}, s{S_XO}, {W.H[0].XNA}'); a(f's_mov_b32 s{S_BUF}, {128*1024}')
            dma_x(a, L16, S_XO, S_BUF, 'sc1')
        a(f's_and_b32 s{S_A}, s{S_SLOT}, 3'); a(f's_bfe_u32 s{S_B}, s{S_SLOT}, 0x20002')
        self.proj_weights(False, (S_B, 4), first_x, (2,)); self.proj_run(0, False, 4, nowait=True, mode='q'); self.stamp(3)
        self.proj_weights(False, None, None, (0, 1))
        a(f's_and_b32 s{S_A}, s{S_SLOT}, 3'); a(f's_bfe_u32 s{S_B}, s{S_SLOT}, 0x20002'); self.proj_run(1, False, 4); self.stamp(4)
        self.dump_marks(); a('s_endpgm')
        a.label(Lpb); self.role = 'pb'; self.code_touch(sh=7)
        def pb_ids():
            a(f's_sub_u32 s{S_T}, s{S_SLOT}, 32'); a(f's_lshr_b32 s{S_A}, s{S_T}, 5'); a(f's_lshl_b32 s{S_A}, s{S_A}, 4'); a(f's_and_b32 s{S_T2}, s{S_T}, 15')
            a(f's_add_u32 s{S_A}, s{S_A}, s{S_T2}'); a(f's_bfe_u32 s{S_B}, s{S_T}, 0x10004')
        pb_ids(); self.proj_weights(True, (S_B, 2) if self.pfb else None); self.flags_ready(); self.stamp(1)
        for half in range(2):
            pb_ids(); self.proj_run(half, True, 2); self.stamp(3 + 8*half)
        self.dump_marks(); a('s_endpgm')
        a.label(Lgw); self.role = 'gw'; self.code_touch(sh=7)
        self.end = 'Lm_end2'
        def pa_ids(): a(f's_sub_u32 s{S_T}, s{S_SLOT}, 96'); a(f's_lshr_b32 s{S_A}, s{S_T}, 5'); a(f's_and_b32 s{S_B}, s{S_T}, 31')
        pa_ids()
        def gw_first():
            a(f'v_mov_b32 v{VZ}, 0x3f803f80')
            for i in range(128): a(f'v_accvgpr_write_b32 a{i}, v{VZ}')
        self.proj_weights(False, (S_B, 32), first_x, (0, 1), gw_first); self.mark(10, S_W, 0); self.proj_run(0, False, 32, nowait=True, mode='kv'); self.stamp(1)
        def gw_ids():
            a(f's_sub_u32 s{S_T}, s{S_SLOT}, 96'); a(f's_lshr_b32 s{S_A}, s{S_T}, 5'); a(f's_lshl_b32 s{S_A}, s{S_A}, 3'); a(f's_and_b32 s{S_T2}, s{S_T}, 7')
            a(f's_add_u32 s{S_A}, s{S_A}, s{S_T2}'); a(f's_bfe_u32 s{S_B}, s{S_T}, 0x20003')
        for half in range(2):
            gw_ids(); self.att_run(half, 4); self.stamp(3 + 8*half)
            gw_ids()
            if half == 0: self.tb_weights()
            self.tb_run(half, 4); self.stamp(4 + 8*half)
        self.dump_marks()
        a.label('Lm_end2'); a('s_endpgm')
        a.label(Lch); self.role = 'ch'
        self.end = 'Lm_end3'; end = self.end
        r = C.ChainRegs(); self.sv = r.R
        a(f's_mov_b32 s{C.S_H}, s{S_SLOT}')
        lslow = a.newlabel('Lcslow'); lfast = a.newlabel('Lcfast')
        def mid(T):
            l1 = a.newlabel('Lcm'); l2 = a.newlabel('Lcm')
            T = r.WV + 64
            self.count_wait(132, T, end, C.S_T, C.S_SPIN); self.count_wait(self.TO, T, end, C.S_T, C.S_SPIN)
            a(f'v_readfirstlane_b32 s{C.S_T}, v{T}')
            add64(a, S_DBG, S_WS, FL(0, 'EL'))
            if self.chain_kw.get('force_slow'): a(f's_mov_b32 s{C.S_T}, 0')
            a(f's_mov_b32 s{C.S_EP}, 0'); a(f's_mov_b32 s{C.S_EM}, 0'); a(f's_mov_b32 s{C.S_HALF}, 0')
            a(f's_cmp_ge_u32 s{C.S_T}, 32'); a(f's_cselect_b32 s{C.S_FB}, 1, 0'); a(f's_cbranch_scc1 {l1}')
            C.chain_init_comm(a, r, 'sc1', True, T); a(f's_branch {l2}')
            a.label(l1); C.chain_init_comm(a, r, '', True, T)
            a.label(l2); C.group_arrive(a, T, 1280)
        C.chain_setup(a, r, mid, self.ahead)
        self.stamp(1)
        C.group_wait(a, r.R, 1280, 32, end)
        a(f's_cmp_eq_u32 s{C.S_FB}, 1'); a(f's_cbranch_scc1 {lfast}')
        a(f's_branch {lslow}')
        a.label(end); a('s_endpgm')
        kw = {k: v for k, v in self.chain_kw.items() if k != 'force_slow'}
        for lbl, stf in ((lfast, ''), (lslow, 'sc1')):
            a.label(lbl)
            lh = a.newlabel('Lch_half'); a.label(lh)
            self.stamp(2, C.S_HALF)
            C.chain_start(a, r, end, 1)
            def started(sv):
                self.sv = sv; self.stamp(3, C.S_HALF); self.sv = r.R
            kw['started'] = started
            C.chain_all_waves(a, r, stf, end, fused=1, **(dict(kw, ef='sc1') if stf else kw))
            self.stamp(4, C.S_HALF)
            if kw.get('stamps'):
                for k in range(12): a(f'v_mov_b32 v{k}, s{84+k}')
                a(f's_lshl_b32 s{C.S_T}, s{C.S_H}, 2'); a(f's_add_u32 s{C.S_T}, s{C.S_T}, s{C.S_W}'); a(f's_lshl_b32 s{C.S_T}, s{C.S_T}, 6')
                a(f's_lshl_b32 s{C.S_T2}, s{C.S_HALF}, 13'); a(f's_add_u32 s{C.S_T}, s{C.S_T}, s{C.S_T2}')
                a(f's_add_u32 s{C.S_T}, s{C.S_T}, {STAMP_OFF + 32768}'); a(f'v_mov_b32 v16, s{C.S_T}')
                for k in range(3): a(f'global_store_dwordx4 v16, {vr(4*k,4)}, s[{S_WS}:{S_WS+1}] offset:{16*k}')
                a('s_waitcnt vmcnt(0)')
            a(f's_cmp_lg_u32 s{C.S_HALF}, 0'); a(f's_cbranch_scc1 {end}')
            a(f's_mov_b32 s{C.S_HALF}, 1'); C.group_arrive(a, r.R, 1408); C.group_wait(a, r.R, 1408, 32, end)
            a(f's_xor_b32 s{C.S_EM}, s{C.S_EM}, 1'); C.chain_init_comm(a, r, stf, False)
            a(f's_branch {lh}')
        return a.lines
    def jump(self, label):
        a = self.a; l = a.newlabel('Lj')
        a('s_getpc_b64 s[48:49]'); a.label(l)
        a(f's_add_u32 s48, s48, {label}-{l}'); a('s_addc_u32 s49, s49, 0'); a('s_setpc_b64 s[48:49]')

NAME = 'interleave_layers__softmax_full_mha__memory_aug_recurrent_mem_tr__prompt'
def build(stamps=False, chain_kw={}, verbose=False, aslist=True):
    ks = []
    for n, lines, vg, acc in ((NAME + '_kernel', Mega(stamps, chain_kw).build(), 512, 256),):
        rep = []
        l = fix_hazards(lines, rep)
        for e in check_waits(l, n[:8]): print(e)
        if verbose: print(n, len(l), len(rep))
        ks.append((n, l, vg, acc))
    hdr = ''.join(l for l in open(f'cdna_kernels/{NAME}.s.ref').readlines()[:14] if '@launch' not in l)
    t = assemble_file(hdr, [(NAME + '_kernel', 256, 256, 163840)], ks)
    return t if aslist else t.replace(f'@launch kernel={NAME}_kernel ', '@launch ')

if __name__ == '__main__':
    import sys
    kw = eval(sys.argv[2]) if len(sys.argv) > 2 else dict()
    st = (True if sys.argv[3] == '1' else 2) if len(sys.argv) > 3 else False
    t = build(st, kw, True, aslist=(st is True))
    open(sys.argv[1] if len(sys.argv) > 1 else f'cdna_kernels/{NAME}.s', 'w').write(t)
    print(len(t))
```

```python
from asmlib import *
from layout import *
import math, struct

def f2u(f): return struct.unpack('<I', struct.pack('<f', f))[0]

LW = 0
LM = 144 * 1024
LS = 148 * 1024
DELTA = [0, 1, 8, 9, 2, 3, 10, 11]
DELTA2 = [0, 1, 32, 33, 8, 9, 40, 41]

class ChainRegs:
    def __init__(self):
        v = RegAlloc('v', 0, 256)
        self.M = v.alloc(32, 4); self.R = v.alloc(32, 4); self.A = v.alloc(32, 4)
        self.KX = v.alloc(8, 4); self.VX = v.alloc(8, 4)
        self.T = v.alloc(4, 4)
        self.VM = v.alloc(4)
        self.idx = self.VM + 1; self.aMst = self.VM + 3
        self.PZ = v.alloc(2)
        self.Z = v.alloc(2)
        self.I = v.alloc(2); self.E = v.alloc(4); self.One = v.alloc(4)
        self.PG = v.alloc(2)
        self.aPst = v.alloc(); self.aOw = v.alloc(); self.aW = v.alloc()
        self.aK = v.alloc(); self.aV = v.alloc(); self.aKm = v.alloc(); self.aVm = v.alloc(); self.aL = v.alloc()
        assert v.next <= 144, v.next
        self.WV = 144
        self.place = {}
        lds = [('q', 1, s) for s in range(8)] + [('q', 0, s) for s in range(4, 8)] + [('o', t, k) for t in (0, 6, 7) for k in range(2)]
        for i, b in enumerate(lds): self.place[b] = ('l', i * 2048)
        rest = [(m, t, s) for m in 'qkv' for t in range(2) for s in range(8)] + [('o', t, k) for t in range(8) for k in range(2)]
        rest = [b for b in rest if b not in self.place]
        assert len(rest) == 46
        for i, b in enumerate(rest):
            self.place[b] = ('a', 8 * i) if i < 32 else ('v', self.WV + 8 * (i - 32))
    def blk(self, b):
        k, r = self.place[b]; assert k != 'l'
        return vr(r, 8, k)

S_WS = 4; S_H = 6; S_W = 7
S_SRD = 8
S_CP = 12
S_HB = 20
S_KV = 22
S_CML = 24
S_XP = 26
S_EP = 28; S_EM = 29; S_STEP = 30; S_C = 31; S_SPIN = 32
S_PLO = 33; S_PHI = 34; S_T = 35; S_T2 = 36; S_T3 = 37
S_XH1 = 38; S_XH0 = 40; S_XR = 42
S_DBG = 44; S_TMP = 46; S_M0 = 48; S_RDY = 49
S_FH = 50; S_FW = 52; S_CPR = 54; S_CM = 56; S_HALF = 58; S_FB = 59
S_STAMP = 60
S_BW = 8
S_BR = 10
S_GS = 49
S_CME = 80
REP = 8192
S_SP = 31

def add64(a, dst, base, off):
    a(f's_add_u32 s{dst}, s{base}, {off}'); a(f's_addc_u32 s{dst+1}, s{base+1}, 0')

ROT = [0]; WF = ['']
def frag_of(w, j): return (j ^ (w & ROT[0])) if j < 4 else 4 + (w ^ (j - 4))

def chain_setup(a, r, mid=None, ahead=0, first=None):
    L = r.T; N = r.T+1; G = r.T+2; L16 = r.aL
    T = r.R
    a(f'v_lshrrev_b32 v{T}, 6, v0'); a(f'v_and_b32 v{L}, 63, v0'); a(f'v_readfirstlane_b32 s{S_W}, v{T}')
    a(f'v_and_b32 v{N}, 15, v{L}'); a(f'v_lshrrev_b32 v{G}, 4, v{L}')
    a(f's_mov_b32 s{S_PLO}, 0x05040100'); a(f's_mov_b32 s{S_PHI}, 0x07060302')
    a(f's_mov_b32 s{S_XH1}, 0xcccccccc'); a(f's_mov_b32 s{S_XH1+1}, 0xcccccccc')
    a(f's_mov_b32 s{S_XH0}, 0x33333333'); a(f's_mov_b32 s{S_XH0+1}, 0x33333333')
    a(f's_mov_b32 s{S_XR}, 0x000f000f'); a(f's_mov_b32 s{S_XR+1}, 0')
    a(f's_mov_b32 s{S_C}, {f2u(math.log2(math.e) / math.sqrt(128.0)):#x}')
    a(f'v_lshlrev_b32 v{L16}, 4, v{L}')
    a(f's_mul_i32 s{S_T}, s{S_W}, 36864'); a(f'v_add_u32 v{r.aW}, s{S_T}, v{L16}')
    a(f'v_bfe_u32 v{T}, v{N}, 1, 1')
    a(f'v_mul_u32_u24 v{r.idx}, 0xaaaa, v{T}'); a(f'v_bfe_u32 v{T}, v{N}, 2, 1'); a(f'v_mul_u32_u24 v{T}, 0xaaaa, v{T}'); a(f'v_lshl_add_u32 v{r.idx}, v{T}, 16, v{r.idx}'); a(f'v_add_u32 v{r.idx}, 0x44444444, v{r.idx}')
    a(f'v_lshlrev_b32 v{T}, 2, v{G}'); a(f'v_sub_u32 v{T}, v{N}, v{T}')
    a(f'v_mov_b32 v{T+1}, 0x3f80'); a(f'v_mov_b32 v{T+2}, 0x3f800000')
    def onehot(dst, nregs):
        for i in range(nregs):
            a(f'v_cmp_eq_u32 vcc, {2*i}, v{T}'); a(f'v_cndmask_b32 v{dst+i}, 0, v{T+1}, vcc')
            a(f'v_cmp_eq_u32 vcc, {2*i+1}, v{T}'); a(f'v_cndmask_b32 v{dst+i}, v{dst+i}, v{T+2}, vcc')
    onehot(r.I, 2)
    a(f'v_and_b32 v{T}, 11, v{N}')
    onehot(r.E, 2)
    a(f'v_mov_b32 v{r.E+2}, v{r.E}'); a(f'v_mov_b32 v{r.E+3}, v{r.E+1}')
    for i in range(4): a(f'v_mov_b32 v{r.One+i}, 0x3f803f80')
    a(f'v_mov_b32 v{r.PZ+1}, 0'); a(f'v_mov_b32 v{r.Z}, 0'); a(f'v_mov_b32 v{r.Z+1}, 0')
    a(f'v_lshrrev_b32 v{T}, 3, v{L}'); a(f'v_lshlrev_b32 v{T}, 11, v{T}'); a(f'v_and_b32 v{T+1}, 7, v{L}')
    a(f'v_lshl_add_u32 v{r.aPst}, v{T+1}, 3, v{T}')
    a(f's_lshl_b32 s{S_T}, s{S_W}, 14'); a(f's_lshl_b32 s{S_T2}, s{S_H}, 6'); a(f's_add_u32 s{S_T}, s{S_T}, s{S_T2}')
    a(f's_add_u32 s{S_T}, s{S_T}, {W.CP}'); add64(a, S_CP, S_WS, f's{S_T}')
    for p in range(1, 4): add64(a, S_CP+2*p, S_CP, p * 65536)
    assert W.CP >= LM and W.CM >= LM
    a(f's_lshl_b32 s{S_T}, s{S_W}, 16'); a(f's_lshl_b32 s{S_T2}, s{S_H}, 11'); a(f's_add_u32 s{S_T}, s{S_T}, s{S_T2}')
    a(f's_add_u32 s{S_T}, s{S_T}, {W.CP - LM}'); add64(a, S_CPR, S_WS, f's{S_T}')
    add64(a, S_CM, S_WS, W.CM); add64(a, S_CML, S_WS, W.CM - LM + 4096)
    a(f's_lshl_b32 s{S_T2}, s{S_W}, 11'); a(f's_lshr_b32 s{S_T3}, s{S_H}, 3'); a(f's_lshl_b32 s{S_T3}, s{S_T3}, 9'); a(f's_add_u32 s{S_T2}, s{S_T2}, s{S_T3}')
    a(f's_and_b32 s{S_T3}, s{S_H}, 1'); a(f's_lshl_b32 s{S_T3}, s{S_T3}, 8'); a(f's_add_u32 s{S_T2}, s{S_T2}, s{S_T3}')
    a(f's_bfe_u32 s{S_T3}, s{S_H}, 0x20001'); a(f's_lshl_b32 s{S_T3}, s{S_T3}, 6'); a(f's_add_u32 s{S_T2}, s{S_T2}, s{S_T3}')
    a(f'v_bfe_u32 v{T}, v{L}, 1, 1'); a(f'v_lshlrev_b32 v{T}, 5, v{T}')
    a(f'v_and_b32 v{T+1}, 1, v{L}'); a(f'v_lshl_add_u32 v{T}, v{T+1}, 3, v{T}')
    a(f'v_and_b32 v{T+1}, 1, v{G}'); a(f'v_lshl_add_u32 v{T}, v{T+1}, 4, v{T}')
    a(f'v_add_u32 v{r.aMst}, s{S_T2}, v{T}')
    a(f's_cmp_lt_u32 s{S_W}, 2'); a(f's_cselect_b32 s{S_XR}, -1, s{S_XR}'); a(f's_cselect_b32 s{S_T3}, {REP}, 0')
    a(f'v_bfe_u32 v{T}, v{L}, 2, 2'); a(f'v_mul_lo_u32 v{T}, v{T}, s{S_T3}'); a(f'v_add_u32 v{r.aMst}, v{r.aMst}, v{T}')
    a(f's_mul_i32 s{S_T3}, s{S_W}, {REP}'); add64(a, S_CME, S_CML, f's{S_T3}')
    a(f's_bfe_u32 s{S_T2}, s{S_H}, 0x20001'); a(f's_lshl_b32 s{S_T2}, s{S_T2}, 11')
    a(f's_lshr_b32 s{S_T3}, s{S_H}, 3'); a(f's_lshl_b32 s{S_T3}, s{S_T3}, 8'); a(f's_add_u32 s{S_T2}, s{S_T2}, s{S_T3}')
    a(f's_and_b32 s{S_T3}, s{S_H}, 1'); a(f's_lshl_b32 s{S_T3}, s{S_T3}, 7'); a(f's_add_u32 s{S_T2}, s{S_T2}, s{S_T3}')
    a(f's_lshl_b32 s{S_T3}, s{S_W}, 2'); a(f's_add_u32 s{S_M0}, s{S_T2}, s{S_T3}')
    a(f'v_lshrrev_b32 v{T}, 1, v{G}'); a(f'v_lshlrev_b32 v{T}, 8, v{T}'); a(f'v_and_b32 v{T+1}, 1, v{G}')
    a(f'v_lshl_add_u32 v{T}, v{T+1}, 5, v{T}'); a(f'v_lshl_add_u32 v{T}, v{N}, 4, v{T}')
    a(f's_lshl_b32 s{S_T}, s{S_W}, 9'); a(f's_add_u32 s{S_T}, s{S_T}, {LM}'); a(f'v_add_u32 v{r.aOw}, s{S_T}, v{T}')
    a(f'v_and_b32 v{T}, 2, v{L}'); a(f'v_cmp_eq_u32 vcc, 0, v{T}')
    a(f's_lshl_b32 s{S_T}, s{S_W}, 10'); a(f's_add_u32 s{S_T}, s{S_T}, {LM+12288}'); a(f'v_add_u32 v{T}, s{S_T}, v{L16}')
    a(f'v_and_b32 v{T+1}, 1, v{G}'); a(f'v_lshlrev_b32 v{T+1}, 5, v{T+1}'); a(f'v_xor_b32 v{T}, v{T}, v{T+1}')
    a(f'v_cndmask_b32 v{r.aOw}, v{T}, v{r.aOw}, vcc')
    a(f'v_lshrrev_b32 v{T}, 3, v{N}'); a(f'v_lshlrev_b32 v{T}, 8, v{T}'); a(f'v_and_b32 v{T+1}, 7, v{N}'); a(f'v_lshl_add_u32 v{T}, v{T+1}, 4, v{T}')
    a(f'v_lshl_add_u32 v{T}, v{G}, 9, v{T}')
    a(f's_lshl_b32 s{S_T}, s{S_W}, 11'); a(f's_add_u32 s{S_T2}, s{S_T}, {HB_K}'); a(f'v_add_u32 v{r.aK}, s{S_T2}, v{T}')
    a(f'v_lshlrev_b32 v{T}, 4, v{N}'); a(f'v_lshl_add_u32 v{T}, v{G}, 9, v{T}')
    a(f's_add_u32 s{S_T2}, s{S_T}, {HB_V}'); a(f'v_add_u32 v{r.aV}, s{S_T2}, v{T}')
    a(f'v_lshrrev_b32 v{T}, 2, v{N}'); a(f'v_lshlrev_b32 v{T}, 5, v{T}'); a(f'v_and_b32 v{T+1}, 1, v{N}'); a(f'v_lshl_add_u32 v{T}, v{T+1}, 4, v{T}')
    a(f'v_lshl_add_u32 v{T}, v{G}, 7, v{T}')
    a(f's_lshl_b32 s{S_T}, s{S_W}, 9'); a(f's_add_u32 s{S_T2}, s{S_T}, {HB_KM}'); a(f'v_add_u32 v{r.aKm}, s{S_T2}, v{T}')
    a(f'v_lshlrev_b32 v{T}, 3, v{L}'); a(f's_add_u32 s{S_T2}, s{S_T}, {HB_VM}'); a(f'v_add_u32 v{r.aVm}, s{S_T2}, v{T}')
    a(f'v_add_u32 v{r.aL}, {LM}, v{L16}')
    a(f'v_lshlrev_b32 v{T}, 2, v{L}'); a(f'v_add_u32 v{r.PG+1}, {LS+4096}, v{T}')
    a(f's_mov_b32 s{S_XP}, 0x01010101'); a(f's_mov_b32 s{S_XP+1}, 0x01010101')
    KBG = r.T+3; VO = r.VX
    a(f'v_lshrrev_b32 v{T}, 1, v{G}'); a(f'v_lshlrev_b32 v{T}, 4, v{T}')
    a(f'v_and_b32 v{T+1}, 1, v{G}'); a(f'v_lshl_add_u32 v{KBG}, v{T+1}, 2, v{T}')
    a(f's_lshl_b32 s{S_T}, s{S_H}, 8'); a(f's_lshl_b32 s{S_T2}, s{S_W}, 6'); a(f's_add_u32 s{S_T}, s{S_T}, s{S_T2}')
    a(f'v_lshlrev_b32 v{VO}, 15, v{KBG}'); a(f'v_lshl_add_u32 v{VO}, v{N}, 2, v{VO}'); a(f'v_add_u32 v{VO}, s{S_T}, v{VO}')
    a(f's_mov_b32 s{S_SRD+2}, {4*MB}'); a(f's_mov_b32 s{S_SRD+3}, 0x20000')
    NB = 11; PK = 88; U = 96
    groups = [(m, s, rg) for m in 'kvq' for rg in range(2) for s in range(8)]
    TQ = r.VX+1; TO = r.VX+2; TD_ = r.VX+3
    a(f'v_lshrrev_b32 v{TQ}, 1, v0'); a(f'v_lshlrev_b32 v{TQ}, 13, v{TQ}'); a(f'v_and_b32 v{TO}, 1, v0'); a(f'v_lshl_add_u32 v{TQ}, v{TO}, 7, v{TQ}')
    a(f's_lshl_b32 s{S_T}, s{S_H}, 8'); a(f'v_add_u32 v{TQ}, s{S_T}, v{TQ}')
    a(f's_lshl_b32 s{S_T}, s{S_H}, 17'); a(f'v_lshl_add_u32 v{TO}, v0, 7, s{S_T}')
    for i, ka in enumerate((KA_WK, KA_WV, KA_WQ, KA_WO)): a(f's_load_dwordx2 s[{60+2*i}:{61+2*i}], s[0:1], {ka}')
    a('s_waitcnt lgkmcnt(0)')
    def touch(hm):
        if hm >= 8 or not ahead: return 0
        for i in range(2):
            off = ((128*(hm&1) + 256*i) * 8192) if hm < 6 else (65536*(hm&1) + 32768*i)
            add64(a, S_TMP, 60 + 2*(hm >> 1), off)
            a(f'global_load_dword v{TD_}, v{TQ if hm < 6 else TO}, s[{S_TMP}:{S_TMP+1}]')
        return 2
    def put(block, rg, i, emit, pend):
        k, base = r.place[block]
        if k == 'v': emit(base+4*rg+i)
        elif k == 'a':
            emit(pend+i); a(f'v_accvgpr_write_b32 a{base+4*rg+i}, v{pend+i}')
        else:
            emit(pend+i)
            if i == 3:
                a(f'ds_write_b128 v{r.aW}, {vr(pend,4)} offset:{base+1024*rg}'); a('s_waitcnt lgkmcnt(0)')
    DEPTH = 6
    wf = WF[0]
    kaoff = {'q': KA_WQ, 'k': KA_WK, 'v': KA_WV}
    cur = [None]
    def issue(gi):
        m, s, rg = groups[gi]
        if cur[0] != m:
            a(f's_load_dwordx2 s[{S_SRD}:{S_SRD+1}], s[0:1], {kaoff[m]}'); a('s_waitcnt lgkmcnt(0)'); cur[0] = m
        if True:
            if s < 4: a(f's_and_b32 s{S_T2}, s{S_W}, {ROT[0]}'); a(f's_xor_b32 s{S_T2}, s{S_T2}, {s}')
            else: a(f's_xor_b32 s{S_T2}, s{S_W}, {s}')
            a(f's_and_b32 s{S_T3}, s{S_T2}, 1'); a(f's_lshl_b32 s{S_T3}, s{S_T3}, 21'); a(f's_and_b32 s{S_T2}, s{S_T2}, 6'); a(f's_lshl_b32 s{S_T2}, s{S_T2}, 13')
            a(f's_add_u32 s{S_T3}, s{S_T3}, s{S_T2}')
        b = (gi % NB) * 8
        for jj in range(8):
            a(f's_add_u32 s{S_T}, s{S_T3}, {(128*rg+DELTA2[jj])*8192}')
            a(f'buffer_load_dword v{b+jj}, v{VO}, s[{S_SRD}:{S_SRD+3}], s{S_T} offen {wf}')
    def consume(gi):
        m, s, rg = groups[gi]; b = (gi % NB) * 8
        for t in range(2):
            for i in range(4):
                lo, hi = b+2*i, b+2*i+1
                if m == 'q':
                    def emit(d, lo=lo, hi=hi, t=t):
                        if t == 0: a(f'v_lshlrev_b32 v{U}, 16, v{lo}'); a(f'v_lshlrev_b32 v{U+1}, 16, v{hi}')
                        else: a(f'v_and_b32 v{U}, 0xffff0000, v{lo}'); a(f'v_and_b32 v{U+1}, 0xffff0000, v{hi}')
                        a(f'v_mul_f32 v{U}, s{S_C}, v{U}'); a(f'v_mul_f32 v{U+1}, s{S_C}, v{U+1}'); a(f'v_cvt_pk_bf16_f32 v{d}, v{U}, v{U+1}')
                else:
                    def emit(d, lo=lo, hi=hi, t=t): a(f'v_perm_b32 v{d}, v{hi}, v{lo}, s{S_PHI if t else S_PLO}')
                put((m, t, s), rg, i, emit, PK + 4*t)
    ops = []
    for hm in range(ahead): touch(hm)
    for gi in range(len(groups) + DEPTH):
        if gi < len(groups):
            n = touch(gi // 8 + ahead) if gi % 8 == 0 else 0
            issue(gi); ops.append(n + 8)
        if gi == DEPTH - 1 and first: a(f's_waitcnt vmcnt({sum(ops)})'); first()
        if gi == 14 and mid: a('s_waitcnt vmcnt(40)'); mid(None)
        if gi >= DEPTH:
            a(f's_waitcnt vmcnt({sum(ops[gi-DEPTH+1:])})')
            consume(gi - DEPTH)
    for hm in range(6 + ahead, 8): touch(hm)
    a(f's_load_dwordx2 s[{S_SRD}:{S_SRD+1}], s[0:1], {KA_WO}')
    a(f's_lshl_b32 s{S_T}, s{S_H}, 17'); a(f's_lshl_b32 s{S_T2}, s{S_W}, 8'); a(f's_add_u32 s{S_T}, s{S_T}, s{S_T2}')
    a(f'v_lshlrev_b32 v{VO}, 10, v{KBG}'); a(f'v_lshl_add_u32 v{VO}, v{N}, 4, v{VO}'); a(f'v_add_u32 v{VO}, s{S_T}, v{VO}')
    a('s_waitcnt lgkmcnt(0)')
    og = [(k, rg) for k in range(2) for rg in range(2)]
    def oissue(gi):
        k, rg = og[gi]; b = (gi % 2) * 32
        for jj in range(8):
            a(f's_mov_b32 s{S_T}, {(64*k+32*rg+DELTA[jj])*1024}')
            a(f'buffer_load_dwordx4 {vr(b+4*jj,4)}, v{VO}, s[{S_SRD}:{S_SRD+3}], s{S_T} offen')
    def ocons(gi):
        k, rg = og[gi]; b = (gi % 2) * 32
        for t in range(8):
            for i in range(4):
                def emit(d, hi=b+4*(2*i+1)+(t>>1), lo=b+4*(2*i)+(t>>1), t=t): a(f'v_perm_b32 v{d}, v{hi}, v{lo}, s{S_PHI if t & 1 else S_PLO}')
                put(('o', t, k), rg, i, emit, PK + 4*(t&1))
    oissue(0); oissue(1)
    for gi in range(4):
        a(f's_waitcnt vmcnt({8 if gi < 3 else 0})'); ocons(gi)
        if gi + 2 < 4: oissue(gi + 2)

def board_setup(a, r, stf):
    a(f's_lshl_b32 s{S_T}, s{S_H}, 2'); a(f's_add_u32 s{S_T}, s{S_T}, {W.CB - LM}')
    add64(a, S_BW, S_WS, f's{S_T}'); add64(a, S_BR, S_WS, W.CB - LS - 4096); a(f's_mov_b32 s{S_GS}, 0')
    a('s_mov_b64 exec, 0x101'); a(f'global_store_dword v{r.aL}, v{r.Z}, s[{S_BW}:{S_BW+1}] {stf}'); a('s_mov_b64 exec, -1')

def chain_init_comm(a, r, stf, first, T=None):
    T = r.R if T is None else T
    a(f's_load_dwordx2 s[{S_TMP}:{S_TMP+1}], s[0:1], {KA_MEM0}')
    a(f'v_and_b32 v{T}, 0x30, v{r.aL}'); a(f'v_lshlrev_b32 v{T}, 1, v{T}'); a(f'v_bfe_u32 v{T+1}, v{r.aL}, 8, 1'); a(f'v_lshl_add_u32 v{T}, v{T+1}, 10, v{T}')
    a(f'v_add_u32 v{T}, s{S_M0}, v{T}')
    a(f's_xor_b32 s{S_T}, s{S_EP}, 1')
    for i in range(4): a(f'v_mov_b32 v{T+4+i}, s{S_T}')
    a('s_waitcnt lgkmcnt(0)')
    a(f'global_load_dword v{T+2}, v{T}, s[{S_TMP}:{S_TMP+1}]'); a(f'global_load_dword v{T+3}, v{T}, s[{S_TMP}:{S_TMP+1}] offset:16')
    if first:
        a(f'global_store_dwordx4 v{r.aL}, {vr(T+4,4)}, s[{S_CPR}:{S_CPR+1}] {stf}')
        a(f'global_store_dwordx4 v{r.aL}, {vr(T+4,4)}, s[{S_CPR}:{S_CPR+1}] offset:1024 {stf}')
    a('s_waitcnt vmcnt(0)')
    a(f'v_and_or_b32 v{T+2}, v{T+2}, -2, s{S_EM}')
    a(f's_mov_b64 exec, s[{S_XR}:{S_XR+1}]')
    a(f'global_store_dwordx2 v{r.aMst}, {vr(T+2,2)}, s[{S_CM}:{S_CM+1}] {stf}')
    a('s_mov_b64 exec, -1'); a('s_waitcnt vmcnt(0)')

def group_arrive(a, T, off):
    l1 = a.newlabel('Lgb')
    a('s_barrier')
    a(f'v_mov_b32 v{T}, {off}'); a(f'v_mov_b32 v{T+1}, 1')
    a(f's_cmp_lg_u32 s{S_W}, 0'); a(f's_cbranch_scc1 {l1}')
    a('s_mov_b64 exec, 1'); a(f'global_atomic_add v{T}, v{T+1}, s[{S_DBG}:{S_DBG+1}] sc1'); a('s_waitcnt vmcnt(0)'); a('s_mov_b64 exec, -1')
    a.label(l1)
def group_wait(a, T, off, count, fail):
    l2 = a.newlabel('Lgb'); l3 = a.newlabel('Lgb')
    a(f's_mov_b32 s{S_SPIN}, 0'); a(f'v_mov_b32 v{T}, {off}')
    a.label(l2)
    a(f'global_load_dword v{T+2}, v{T}, s[{S_DBG}:{S_DBG+1}] sc1'); a('s_waitcnt vmcnt(0)')
    a(f'v_readfirstlane_b32 s{S_T}, v{T+2}')
    a(f's_cmp_ge_u32 s{S_T}, {count}'); a(f's_cbranch_scc1 {l3}')
    a('s_sleep 2')
    a(f's_add_u32 s{S_SPIN}, s{S_SPIN}, 1'); a(f's_cmp_lt_u32 s{S_SPIN}, 0x60000'); a(f's_cbranch_scc1 {l2}')
    a(f's_branch {fail}')
    a.label(l3)

DPPQ = 'quad_perm:[2,3,0,1] row_mask:0xf bank_mask:0xf'
XA = 's_mov_b64 exec, -1'

def prog_load(a, r): a(f'global_load_dword v{r.PG}, v{r.PG+1}, s[{S_FH}:{S_FH+1}] sc1')
def prog_block(a, r, lbl, back, need_sgpr, fail):
    a.label(lbl)
    prog_load(a, r); a('s_waitcnt vmcnt(0)')
    a(f'v_cmp_ge_u32 s[{S_TMP}:{S_TMP+1}], s{need_sgpr}, v{r.PG}'); a(f's_and_b64 s[{S_TMP}:{S_TMP+1}], s[{S_TMP}:{S_TMP+1}], s[{S_XP}:{S_XP+1}]'); a(f's_cbranch_scc0 {back}')
    a('s_sleep 1')
    a(f's_add_u32 s{S_SPIN}, s{S_SPIN}, 1'); a(f's_cmp_lt_u32 s{S_SPIN}, 0x60000'); a(f's_cbranch_scc1 {lbl}')
    a(f's_branch {fail}')
def kv_load(a, r, i, dst, base=None):
    base = base or S_KV
    ad, off = ((r.aK, 0), (r.aK, 128), (r.aV, 0), (r.aV, 256))[i]
    a(f'global_load_dwordx4 {vr(dst+4*i,4)}, v{ad}, s[{base}:{base+1}] offset:{off} sc1')

def chain_start(a, r, fail, fused, started=None):
    HS = W.H[1].HB - W.H[0].HB
    a(f's_mul_i32 s{S_T2}, s{S_HALF}, {HS}'); a(f's_lshl_b32 s{S_T}, s{S_H}, 21'); a(f's_add_u32 s{S_T}, s{S_T}, s{S_T2}')
    a(f's_add_u32 s{S_T}, s{S_T}, {W.H[0].HB}'); add64(a, S_KV, S_WS, f's{S_T}'); a(f's_mov_b64 s[{S_HB}:{S_HB+1}], s[{S_KV}:{S_KV+1}]')
    a(f's_mov_b32 s{S_STEP}, 0'); a(f's_mov_b32 s{S_SPIN}, 0')
    a(f's_lshl_b32 s{S_T}, s{S_H}, 8'); a(f's_lshl_b32 s{S_T2}, s{S_HALF}, 17'); a(f's_add_u32 s{S_T}, s{S_T}, s{S_T2}')
    a(f's_add_u32 s{S_T}, s{S_T}, {FL(0, "CHP")}'); add64(a, S_FW, S_WS, f's{S_T}')
    a(f's_sub_u32 s{S_FH}, s{S_FW}, {FL(0, "CHP") - FL(0, "HEAD") + LS + 4096}'); a(f's_subb_u32 s{S_FH+1}, s{S_FW+1}, 0')
    a(f'v_mov_b32 v{r.PG}, 0'); a(f's_mov_b32 s{S_SP}, 0')
    for i in range(2): a(f'global_load_dwordx4 {vr(r.M+24+4*i,4)}, v{r.aL}, s[{S_CPR}:{S_CPR+1}] offset:{1024*i} sc1')
    add64(a, S_KV, S_KV, HB_REC)

def chain_wave(a, r, w, stf, fail, done, fused=1, pat=(13, 16, 16, 16), d1=(100, 140, 280, 320), d2=(220, 120, 0, 0), e23=(100, 80, 60, 60), lpos=3, nb=(2, 2, 1, 2), bk=(120, 100, 100, 120), es=80, eb=None, e3in=1, cp=1, rep=1, vdef=1, wsplit=0, vw=(1, 1, 1, 4), hkw=(0, 1), nowait=0, pkpos=0, pvearly=0, clk=0, e0e=None, e1g=0, ack1=(None, None, 0, 0), ack2=(0, 0, 0, 0), bx=None, bp=(18, 19, 21, 23, 24, 25), bg=16, c1=(40, 40, 40, 40), ef='sc1', rt=None, started=None,
               nomax=1, stamps=False, stampsel=None, nocomm=0, nohk=0):
    R, A, M, T = r.R, r.A, r.M, r.T
    if isinstance(nb, tuple): nb = nb[w]
    if isinstance(bk, tuple): bk = bk[w]
    Aq = [A, A+4]; Ak = [A+8, A+12]; Av = [A+16, A+20]
    ACC = {'q': Aq, 'k': Ak, 'v': Av}
    ns = [0]; sid = [0]
    def st(name=None):
        if name is None:
            name = sid[0]; sid[0] += 1
        if stamps and ((stampsel is None and isinstance(name, int)) or (stampsel is not None and name in stampsel)):
            a(f's_memtime s[{S_STAMP+2*ns[0]}:{S_STAMP+2*ns[0]+1}]'); ns[0] += 1
    def tr(k):
        if rt is not None: a(f's_memtime s[{(S_STAMP+2*k) if k != 10 else 96}:{((S_STAMP+2*k) if k != 10 else 96)+1}]')
    pos = [None]
    def hook():
        if pos[0] is None or bx is None: return
        if w == 1 and pos[0] == bx: a('s_mov_b64 exec, 0x101'); a(f'global_store_dword v{r.aL}, v{r.PZ}, s[{S_BW}:{S_BW+1}] {stf}'); a(XA)
        if w == 0 and pos[0] in bp: a(f'global_load_dword v{r.PG}, v{r.PG+1}, s[{S_BR}:{S_BR+1}] sc1')
        pos[0] += 1
    def smf(acc, aop, b): a(f'v_smfmac_f32_16x16x64_bf16 {vr(acc,4)}, {vr(aop,4)}, {b}, v{r.idx}'); hook()
    def m32(d, x, y, c): a(f'v_mfma_f32_16x16x32_bf16 {vr(d,4)}, {vr(x,4)}, {vr(y,4)}, {vr(d,4) if c else 0}'); hook()
    def m16(d, x, y, c): a(f'v_mfma_f32_16x16x16_bf16 {vr(d,4)}, {vr(x,2)}, {vr(y,2)}, {vr(d,4) if c else 0}'); hook()
    def ldh(dst, b, hh): a(f'ds_read_b128 {vr(dst+4*hh,4)}, v{r.aW} offset:{r.place[b][1]+1024*hh}')
    def nops(c):
        n = c // 4
        while n > 0:
            k = min(n, 16); a(f's_nop {k-1}'); n -= k
    def add0(c): a(f'v_add_f32 v{c}, v{c}, v{c+2}')
    def add1(c): a(f'v_add_f32 v{c+1}, v{c+1}, v{c+3}')
    def cvt(d, x, y): a(f'v_cvt_pk_bf16_f32 v{d}, v{x}, v{y}')
    def pka(d, x, y): a(f'v_pk_add_f32 {vr(d,2)}, {vr(x,2)}, {vr(y,2)}')
    def e_load(j, f='sc1'):
        b = S_CME if (j < 4 and rep) else S_CML
        a(f'global_load_dwordx4 {vr(M+4*j,4)}, v{r.aL}, s[{b}:{b+1}] offset:{1024*frag_of(w,j)-4096} {f}')
    PL = [M+24, R+24, M+16, R+16]; PD = A+24; t0 = A+28; t1 = A+29
    def p_loads(k=0):
        a(f'global_load_dwordx4 {vr(PL[k],4)}, v{r.aL}, s[{S_CPR}:{S_CPR+1}] sc1')
        a(f'global_load_dwordx4 {vr(PL[k]+4,4)}, v{r.aL}, s[{S_CPR}:{S_CPR+1}] offset:1024 sc1')
    def ring_prefetch():
        for e in range(4):
            for hh in range(2): ldh(R+8*e, ('q', 1, e), hh)
    def zero(base, n):
        for i in range(n): a(f'v_mov_b32 v{base+i}, 0')
    def spin_or_fail():
        a(f's_add_u32 s{S_SPIN}, s{S_SPIN}, 1'); a(f's_cmp_lt_u32 s{S_SPIN}, 0x60000'); a(f's_cbranch_scc0 {fail}')
    LA = a.newlabel('Lc_A'); Ldone = a.newlabel('Lc_done')
    Lr = [a.newlabel('Lc_rE') for _ in range(5)]; Lc = [a.newlabel('Lc_cE') for _ in range(5)]
    Lhk = a.newlabel('Lc_hk'); Lhb = a.newlabel('Lc_hb'); Lexp = a.newlabel('Lc_exp'); Lfb = a.newlabel('Lc_fb'); Lnofb = a.newlabel('Lc_nofb'); Lsp = a.newlabel('Lc_sp'); Lspb = a.newlabel('Lc_spb')
    if stamps: _ = [a(f's_mov_b32 s{84+k}, 0') for k in range(12)]
    zero(A, 24); ring_prefetch()
    a(f's_add_u32 s{S_GS}, s{S_GS}, 1'); a(f'v_mov_b32 v{r.PZ}, s{S_GS}')
    for j in range(4): e_load(j)
    a('s_waitcnt vmcnt(0)')
    a('.p2align 6')
    a.label(LA)
    e3 = False; ex = 1 if eb is not None else 0
    ringof = {('q',1,0):0, ('q',1,1):1, ('q',1,2):2, ('q',1,3):3, ('q',1,4):0, ('q',0,4):1, ('q',1,5):2, ('q',0,5):3, ('q',0,6):0, ('q',0,7):1, ('q',1,6):2, ('q',1,7):3}
    def S(m, t, s):
        b = (m, t, s)
        smf(ACC[m][t], M+4*s, vr(R+8*ringof[b], 8) if b in ringof else r.blk(b))
    def chk(j):
        return [f'v_bitop3_b32 v{t0}, v{M+4*j}, v{M+4*j+2}, s{S_EM} bitop3:0x7e', f'v_and_b32 v{t0}, 1, v{t0}', f'v_cmp_ne_u32 vcc, 0, v{t0}']
    vm0 = ['E0', 'E1'] + (['x'] if ex else []) + ['E2'] + ([] if e3in else ['E3'])
    ee = e0e is not None; eh = ee and d2[w] < e0e
    if ee: vm0 = ['E0'] + (['m'] if eh else []) + ['x', 'E1', 'E2'] + ([] if e3in else ['E3'])
    a(f's_waitcnt vmcnt({len(vm0)-1}) lgkmcnt(0)')
    tr(7)
    for l in chk(0): a(l)
    a.label(Lc[0])
    st()
    tr(8)
    order = (('q',1),('q',0),('k',0),('k',1),('v',0),('v',1))
    dsq = [(R+24, ('q',1,3), 0), (R+24, ('q',1,3), 1), (R, ('q',1,4), 0), (R, ('q',1,4), 1), (R+16, ('q',1,2), 0), (R+16, ('q',1,2), 1),
           None, (R+8, ('q',0,4), 0), (R+8, ('q',0,4), 1), None, None, None,
           None, (R+16, ('q',1,5), 0), (R+16, ('q',1,5), 1), None, None, None]
    cnt = 0
    vm = list(vm0)
    def after_of(n): return len(vm) - 1 - vm.index(n)
    issued_at = {}
    def probe():
        a(f'global_load_dword v{r.PG}, v{r.PG+1}, s[{S_BR}:{S_BR+1}] sc1')
    def extras(cnt):
        if e3in and cnt == 2: e_load(3); vm.append('E3')
        if cnt == lpos: e_load(4); vm.append('E4')
    for sl in range(3):
        c = chk(sl+1)
        for i, (m, t) in enumerate(order):
            S(m, t, sl)
            if dsq[cnt]: ldh(*dsq[cnt])
            extras(cnt)
            if cnt == 0: a(f's_mov_b32 s{S_FB}, 0')
            if cnt == 11: a('s_waitcnt lgkmcnt(2)')
            if cnt == 1: a(f's_cbranch_vccnz {Lr[0]}')
            cnt += 1
            if i == cp: a(f's_waitcnt vmcnt({after_of("E%d" % (sl+1))})')
            if cp <= i < cp + 3: a(c[i-cp])
            if fused and w == hkw[0] and cnt == 7:
                a(f's_add_u32 s{S_T3}, s{S_STEP}, 1'); a(f's_min_u32 s{S_T3}, s{S_T3}, 63'); a(f'v_cmp_ge_u32 s[{S_TMP}:{S_TMP+1}], s{S_T3}, v{r.PG}')
        a(f's_cbranch_vccnz {Lr[sl+1]}')
        issued_at[sl+1] = list(vm)
        a.label(Lc[sl+1])
    assert 2 <= lpos < 14
    c = chk(4)
    a('s_waitcnt lgkmcnt(4)')
    S('q',1,3)
    a(f's_waitcnt vmcnt({after_of("E4")})')
    a(f'ds_write_b128 v{r.aL}, {vr(M+16,4)} offset:{1024*w}')
    a(c[0])
    S('q',0,3); ldh(R+24, ('q',0,5), 0); extras(19); a(c[1])
    S('k',0,3); ldh(R+24, ('q',0,5), 1); extras(20); a(c[2])
    S('k',1,3); extras(21)
    Lbs = a.newlabel('Lc_bs'); Lbg = a.newlabel('Lc_bg')
    if fused and w == hkw[0]:
        a(f's_and_b64 s[{S_TMP}:{S_TMP+1}], s[{S_TMP}:{S_TMP+1}], s[{S_XP}:{S_XP+1}]'); a(f's_cbranch_scc1 {Lhb}'); a.label(Lhk)
    if not vdef: S('v',0,3)
    a(f's_cbranch_vccnz {Lr[4]}')
    a.label(Lc[4])
    tr(9)
    if not nohk and pkpos == 4: a(f's_mov_b64 exec, s[{S_XH0}:{S_XH0+1}]'); a(f'global_store_dwordx4 v{r.aKm}, {vr(T,4)}, s[{S_HB}:{S_HB+1}] sc1'); a(XA)
    a('s_waitcnt lgkmcnt(2)'); a('s_barrier')
    tr(10)
    pos[0] = 0
    def rdm(j): a(f'ds_read_b128 {vr(M+16+4*j,4)}, v{r.aL} offset:{1024*(w^j)}')
    def pub_k(): a(f's_mov_b64 exec, s[{S_XH0}:{S_XH0+1}]'); a(f'global_store_dwordx4 v{r.aKm}, {vr(T,4)}, s[{S_HB}:{S_HB+1}] sc1'); a(XA)
    def pub_v(): a(f'global_store_dwordx2 v{r.aVm}, {vr(A+30,2)}, s[{S_HB}:{S_HB+1}] sc1')
    hk = []
    if not nohk:
        hk = [lambda i=i: kv_load(a, r, i, M) if not (vdef and i == 3) else None for i in range(4)]
        if fused and w == hkw[1]: hk.append(lambda: (a('s_mov_b64 exec, 1'), a(f'global_store_dword v{r.Z}, v{t1}, s[{S_FW}:{S_FW+1}] sc1'), a(XA)))
        if fused and w == hkw[0]: hk.append(lambda: prog_load(a, r))
        if w not in hkw or not fused: hk.append(lambda: None)
    def H():
        if hk: hk.pop(0)()
    rdm(1)
    if not vdef: S('v',1,3)
    rdm(2); rdm(3)
    Lk0 = a.newlabel('Lc_k0'); Lk0b = a.newlabel('Lc_k0b')
    S('q',1,4); a(f's_cmp_eq_u32 s{S_STEP}, 0'); a(f's_cbranch_scc1 {Lk0}'); a.label(Lk0b); H()
    S('q',0,4); ldh(R+0, ('q',0,6), 0); H()
    S('k',0,4); ldh(R+0, ('q',0,6), 1); H()
    S('k',1,4); ldh(R+8, ('q',0,7), 0); H(); a('s_waitcnt lgkmcnt(5)')
    S('q',1,5); ldh(R+8, ('q',0,7), 1)
    if not nohk and pkpos == 3: pub_k()
    S('q',0,5); ldh(R+16, ('q',1,6), 0)
    if not nohk and pvearly: pub_v()
    S('k',0,5); ldh(R+16, ('q',1,6), 1); a('s_waitcnt lgkmcnt(6)')
    S('k',0,6); ldh(R+24, ('q',1,7), 0)
    S('k',0,7); ldh(R+24, ('q',1,7), 1); a('s_waitcnt lgkmcnt(4)')
    S('q',0,6); H()
    TA = [R+0, R+2]; TD = [R+4, R+8]; SX = [R+16, R+20]; SM = R+24
    S('q',0,7); add0(Ak[0])
    S('k',1,5); add1(Ak[0])
    assert not hk
    S('k',1,6); cvt(TA[0], Ak[0], Ak[0]+1)
    S('k',1,7); a('s_waitcnt lgkmcnt(0)'); add0(Aq[0])
    S('q',1,6); a(f's_mov_b64 vcc, s[{S_XH1}:{S_XH1+1}]'); add1(Aq[0])
    S('q',1,7); cvt(TA[0]+1, Aq[0], Aq[0]+1)
    st()
    vq = [(t, s) for s in range(3 if vdef else 4, 8) for t in range(2)]
    def V(n=1):
        for _ in range(n):
            t, s = vq.pop(0); S('v', t, s)
    add0(Ak[1]); add1(Ak[1])
    m16(TD[0], TA[0], r.I, 0)
    cvt(TA[1], Ak[1], Ak[1]+1)
    add0(Aq[1]); add1(Aq[1])
    cvt(TA[1]+1, Aq[1], Aq[1]+1)
    m16(TD[1], TA[1], r.I, 0)
    a(f's_cmp_lg_u32 s{S_STEP}, 0'); a(f's_cselect_b32 s{S_T}, {HB_REC}, 0')
    V(1)
    if not nohk and not pvearly: pub_v()
    V(vw[0]-1)
    add64(a, S_HB, S_HB, f's{S_T}')
    for i in range(4): cvt(T+i, TD[0]+i, TD[1]+i)
    a(f's_cmp_eq_u32 s{S_STEP}, s{S_SP}'); a(f's_cbranch_scc1 {Lsp}')
    a.label(Lspb)
    m32(SX[0], r.KX, T, 0)
    a(f's_cmp_lt_u32 s{S_STEP}, 62'); a(f's_cselect_b32 s{S_T}, {HB_REC}, 0')
    m32(SX[1], r.KX+4, T, 0)
    m32(SM, T, T, 0)
    vrest = list(vq)
    V(vw[1])
    if vdef and not nohk: kv_load(a, r, 3, M)
    add64(a, S_KV, S_KV, f's{S_T}')
    for i in range(4): a(f'v_cndmask_b32_dpp v{SX[1]+i}, v{SX[0]+i}, v{SX[1]+i}, vcc {DPPQ}')
    SO = SX[1]; SMO = SM+1
    a(f'v_cndmask_b32_dpp v{SMO}, v{SM}, v{SM+1}, vcc {DPPQ}')
    V(vw[2])
    a(f'ds_write_b128 v{r.aL}, {vr(SO,4)} offset:{LS-LM+1024*w}')
    if wsplit: V(1)
    a(f'ds_write_b32 v{r.PG+1}, v{SMO} offset:{256*w}')
    V(vw[3]-1)
    if not nohk and pkpos == 1: pub_k()
    if bx is not None and w == 0: a(f'v_cmp_ne_u32 vcc, s{S_GS}, v{r.PG} ; nowaitcheck')
    V(1)
    pos[0] = None
    if bx is not None and w == 0:
        a(f's_cbranch_vccnz {Lbs}'); a.label(Lbg); a('s_waitcnt lgkmcnt(0)'); a('s_barrier')
    elif bx is not None and w == 1: a('s_waitcnt lgkmcnt(0)'); a('s_barrier')
    elif nowait & 1: a('s_barrier')
    else: a(f's_waitcnt vmcnt({0 if nohk else 5 + (1 if pkpos in (1, 3, 4) else 0) + (1 if (fused and w in hkw) else 0)}) lgkmcnt(0)'); a('s_barrier')
    st()
    tr(11)
    RD = [R+0, R+4, R+8]; RM = R+28
    o4 = (LS-LM+4096)//256
    for j in range(3): a(f'ds_read_b128 {vr(RD[j],4)}, v{r.aL} offset:{LS-LM+1024*(w^(j+1))}')
    V(1)
    a(f'ds_read2st64_b32 {vr(RM,2)}, v{r.PG+1} offset0:{w^1} offset1:{w^2}')
    a(f'ds_read_b32 v{RM+2}, v{r.PG+1} offset:{256*(w^3)}')
    V(len(vq))
    if not nohk and pkpos == 0: pub_k()
    assert not vq
    P = R+16; MX = R+26; TM = R+27
    D = [R+8, R+12]; SUM = R+28; X = R+0
    a('s_waitcnt lgkmcnt(2)')
    for i in range(4): a(f'v_add_f32 v{SO+i}, v{SO+i}, v{RD[0]+i}')
    pka(RD[1], RD[1], RD[2]); pka(RD[1]+2, RD[1]+2, RD[2]+2)
    a('s_waitcnt lgkmcnt(0)')
    a(f'v_add_f32 v{SMO}, v{SMO}, v{RM+2}'); a(f'v_add_f32 v{RM}, v{RM}, v{RM+1}')
    pka(SO, SO, RD[1]); pka(SO+2, SO+2, RD[1]+2)
    a(f'v_add_f32 v{SMO}, v{SMO}, v{RM}')
    pka(Av[0], Av[0], Av[0]+2); pka(Av[1], Av[1], Av[1]+2)
    def submax():
        a(f'v_max3_f32 v{MX}, v{SO}, v{SO+1}, v{SO+2}'); a(f'v_max3_f32 v{MX}, v{MX}, v{SO+3}, v{SMO}')
        a(f'v_max_f32_dpp v{MX}, v{MX}, v{MX} {DPPQ}')
        for sw in ('16', '32'):
            a(f'v_mov_b32 v{TM}, v{MX}'); a(f'v_permlane{sw}_swap_b32 v{MX}, v{TM}'); a(f'v_max_f32 v{MX}, v{MX}, v{TM}')
        for e in (SMO, SO, SO+1, SO+2, SO+3): a(f'v_sub_f32 v{e}, v{e}, v{MX}')
    if not nomax: submax()
    a.label(Lexp)
    a(f'v_exp_f32 v{X+4}, v{SMO}')
    cvt(r.VM, Av[0], Av[0]+1)
    a(f'v_exp_f32 v{X}, v{SO}')
    cvt(r.VM+2, Av[1], Av[1]+1)
    a(f'v_mov_b32_dpp v{TM}, v{X+4} {DPPQ}')
    a(f'v_exp_f32 v{X+1}, v{SO+1}')
    cvt(r.PZ, X+4, TM)
    a(f'v_exp_f32 v{X+2}, v{SO+2}')
    cvt(P, X, X+1)
    m16(SUM, r.One, r.PZ, 0); ldh(M+16, ('o',0,0), 0)
    a(f'v_exp_f32 v{X+3}, v{SO+3}')
    m16(D[0], r.VM, r.PZ, 0); ldh(M+16, ('o',0,0), 1)
    a(f'v_mov_b32_dpp v{P+2}, v{P} {DPPQ}')
    cvt(P+1, X+2, X+3)
    m16(D[1], r.VM+2, r.PZ, 0)
    a(f'v_mov_b32_dpp v{P+3}, v{P+1} {DPPQ}')
    st()
    m32(SUM, r.One, P, 1); ldh(M+24, ('o',0,1), 0)
    m32(D[0], r.VX, P, 1); ldh(M+24, ('o',0,1), 1)
    m32(D[1], r.VX+4, P, 1)
    a(f'v_rcp_f32 v{SUM+2}, v{SUM}')
    for i in range(4): a(f'v_mul_f32 v{D[0]+i}, v{D[0]+i}, v{SUM+2}')
    for i in range(2): a(f'v_pk_mul_f32 {vr(D[1]+2*i,2)}, {vr(D[1]+2*i,2)}, {vr(SUM+2,2)} op_sel_hi:[1,0]')
    OP = R+0
    for i in range(4): cvt(OP+i, D[0]+i, D[1]+i)
    a(f'ds_write_b128 v{r.aOw}, {vr(OP,4)}')
    if nowait & 2:
        a('s_barrier'); a(f'ds_read_b128 {vr(R+24,4)}, v{r.aL}')
    a(f'v_mfma_f32_32x32x8_bf16 {vr(A,16)}, {vr(r.Z,2)}, {vr(r.Z,2)}, 0')
    ldh(R+8, ('o',6,0), 0); ldh(R+8, ('o',6,0), 1)
    if nomax and not nowait & 2:
        a(f'v_max_f32 v{SUM}, v{SUM}, v{SUM+2}'); a(f'v_cmp_nge_f32 vcc, {f2u(2.0**60):#x}, v{SUM}')
        a(f's_cbranch_vccnz {Lfb}'); a.label(Lnofb)
    if not nowait & 2: a('s_waitcnt lgkmcnt(2)'); a('s_barrier')
    st()
    if rt is not None:
        lt = a.newlabel('Lc_t'); a('s_waitcnt lgkmcnt(0)'); a(f's_cmp_lg_u32 s{S_STEP}, {rt}'); a(f's_cbranch_scc1 {lt}')
        _ = [a(f's_mov_b32 s{84+k}, s{(S_STAMP+2*k) if k != 10 else 96}') for k in range(12)]
        a.label(lt)
    tr(0)
    O = R+24
    a(f'ds_read_b128 {vr(O,4)}, v{r.aL}'); a(f'ds_read_b128 {vr(O+4,4)}, v{r.aL} offset:1024')
    a(f'v_mfma_f32_32x32x8_bf16 {vr(A+16,16)}, {vr(r.Z,2)}, {vr(r.Z,2)}, 0')
    if not nohk and pkpos == 2: pub_k()
    a(f's_xor_b32 s{S_EM}, s{S_EM}, 1'); a(f's_add_u32 s{S_STEP}, s{S_STEP}, 1'); a(f's_mov_b32 s{S_SPIN}, 0')
    land = {('o',0,0): M+16, ('o',0,1): M+24, ('o',6,0): R+8, ('o',6,1): R+16, ('o',7,0): R, ('o',7,1): M+16}
    def ob(b): return vr(land[b], 8) if b in land else r.blk(b)
    def ad(t, e): c = A+4*t+e; return f'v_add_f32 v{c}, v{c}, v{c+2}'
    def fin(p):
        c = A+8*p
        return [ad(2*p+1, 0), ad(2*p+1, 1), f'v_cvt_pk_bf16_f32 v{c}, v{c}, v{c+4}', f'v_cvt_pk_bf16_f32 v{c+1}, v{c+1}, v{c+5}', f'v_and_or_b32 v{c}, v{c}, -2, s{S_EP}']
    def sto(p): return f'global_store_dwordx2 v{r.aPst}, {vr(A+8*p,2)}, s[{S_CP+2*p}:{S_CP+2*p+1}] {stf}'
    after = {3: [ad(0,0)], 4: [ad(0,1)], 5: fin(0), 6: [sto(0)], 7: [ad(2,0)], 8: [ad(2,1)], 9: fin(1)[:2], 10: fin(1)[2:], 11: [sto(1), ad(4,0), ad(4,1)],
             13: fin(2)[:2], 14: fin(2)[2:], 15: [sto(2), ad(6,0), ad(6,1), f'v_pk_add_f32 {vr(A+28,2)}, {vr(A+28,2)}, {vr(A+30,2)}'] + fin(3)[2:] + [sto(3)]}
    lq = [(R+16, ('o',6,1), 0), (R+16, ('o',6,1), 1), (R, ('o',7,0), 0), (R, ('o',7,0), 1), (M+16, ('o',7,1), 0), (M+16, ('o',7,1), 1)]
    a('s_waitcnt lgkmcnt(1)')
    younger = 0; issued = False; nst = 0
    for t in range(8):
        for k in range(2):
            i = 2*t+k
            smf(A+4*t, O+4*k, ob(('o', t, k)))
            if i == 0: a('s_waitcnt lgkmcnt(0)')
            if i in (1, 2, 3, 4, 5, 7): ldh(*lq.pop(0))
            if i == 12: a('s_waitcnt lgkmcnt(0)')
            if i == pat[w]: p_loads(); issued = True; tr(3)
            for l in after.get(i, []):
                if l.startswith('global_store') and nst == 3 and pat[w] == 15.5: p_loads(); issued = True; tr(3)
                a(l)
                if l.startswith('global_store'):
                    if issued: younger += 1
                    if nst in (0, 3): tr(1 if nst == 0 else 2)
                    nst += 1
    if nocomm: ns[0] = 9
    st()
    chores = []
    chores += [f's_waitcnt vmcnt({4 + (2 if issued else 0) + (0 if nohk else ((0 if pkpos >= 3 else 1) if vdef else (1 if pkpos == 4 else 2) + (1 if (fused and w in hkw) else 0)))})\n' + '\n'.join(f'v_mov_b32 v{PD+i}, 0' for i in (2, 3, 0, 1))] + [f'v_mov_b32 v{r.KX+i}, v{M+i}' for i in range(16)]
    chores += [f'ds_read_b128 {vr(R+8*e+4*hh,4)}, v{r.aW} offset:{r.place[("q",1,e)][1]+1024*hh}' for e in range(2) for hh in range(2)]
    chores += [f'v_mov_b32 v{A+i}, 0' for i in range(24)]
    chores += [f'v_mov_b32 v{A+30}, v{r.VM}', f'v_mov_b32 v{A+31}, v{r.VM+2}', f's_add_u32 s{S_GS}, s{S_GS}, 1', f'v_mov_b32 v{r.PZ}, s{S_GS}']
    nch = len(chores)
    def do_chores(cyc, pad=True):
        n = cyc // 4
        while n > 0 and chores: a(chores.pop(0)); n -= 1
        if pad: nops(4*n)
    def then(cyc, need):
        do_chores(cyc); do_chores(4*max(0, need - (nch - len(chores))))
    if not issued:
        if ack1[w] is not None: do_chores(240, False); a(f's_waitcnt vmcnt({ack1[w]})')
        else: do_chores(max(d1[w], 4))
        p_loads(); tr(3)
    for k in range(1, nb):
        do_chores(bk if (k > 1 or not issued) else max(4, bk - 40)); p_loads(k); younger += 2
    do_chores(max(min(c1[w], 4*len(chores)), 4), False)
    if eh: then(0, 5)
    if stamps and ns[0]:
        a('s_waitcnt lgkmcnt(0)')
        n = ns[0]
        for k in range(1, n):
            a(f's_sub_u32 s{S_T}, s{S_STAMP+2*k}, s{S_STAMP+2*k-2}'); a(f's_add_u32 s{84+k}, s{84+k}, s{S_T}')
        a(f's_sub_u32 s{S_T}, s{S_STAMP}, s83'); a(f's_mov_b32 s83, s{S_STAMP+2*(n-1)}')
        a(f's_cmp_eq_u32 s{S_STEP}, 1'); a(f's_cselect_b32 s{S_T}, 0, s{S_T}'); a(f's_add_u32 s84, s84, s{S_T}')
    def reduce(k, failto, early=None):
        a(f'v_smfmac_f32_16x16x64_bf16 {vr(PD,4)}, {vr(r.E,4)}, {vr(PL[k],8)}, v{r.idx} abid:1')
        if early: early()
        a(f'v_bitop3_b32 v{t0}, v{PL[k]}, v{PL[k]+2}, s{S_EP} bitop3:0x7e')
        a(f'v_bitop3_b32 v{t1}, v{PL[k]+4}, v{PL[k]+6}, s{S_EP} bitop3:0x7e')
        a(f'v_bitop3_b32 v{t0}, v{t0}, v{t1}, 1 bitop3:0xa8')
        a(f'v_cmp_ne_u32 vcc, 0, v{t0}')
        for ror in (8, 4):
            for i in range(4):
                a(f'v_add_f32_dpp v{PD+i}, v{PD+i}, v{PD+i} row_ror:{ror} row_mask:0xf bank_mask:0xf')
                if ror == 8 and i == 2: a(f's_cbranch_vccnz {failto}')
        a(f's_mov_b64 exec, s[{S_XR}:{S_XR+1}]')
        cvt(PD, PD, PD+1); cvt(PD+1, PD+2, PD+3)
        a(f'v_and_or_b32 v{PD}, v{PD}, -2, s{S_EM}')
        a(f'global_store_dwordx2 v{r.aMst}, {vr(PD,2)}, s[{S_CM}:{S_CM+1}] {stf}')
        a(XA)
    assert not e3
    Lok = a.newlabel('Lc_p1'); Lq = [a.newlabel('Lc_r1') for _ in range(nb)]
    a(f's_waitcnt vmcnt({younger})')
    tr(4)
    hookE = (lambda: e_load(0, ef)) if eh else None
    reduce(0, Lq[1 % nb], hookE)
    a.label(Lok)
    tr(5)
    a(f's_xor_b32 s{S_EP}, s{S_EP}, 1')
    EB = M+20
    def e_back():
        b = S_CME if rep else S_CML
        a(f'global_load_dwordx4 {vr(EB,4)}, v{r.aL}, s[{b}:{b+1}] offset:{1024*frag_of(w,0)-4096} sc1')
    if ee:
        if not eh: then(d2[w] - e0e, 5); e_load(0, ef); then(e0e, 5)
        else: then(d2[w], 5)
        e_back(); tr(6); then(e1g, 9); e_load(1, ef)
    else:
        if ack2[w]: do_chores(200, False); a('s_waitcnt vmcnt(0)')
        then(0 if ack2[w] else d2[w], 5); e_load(0, ef); tr(6); then(es, 9); e_load(1, ef)
        if eb is not None: then(eb, 0); e_back()
    if fused and w == hkw[1]: a(f's_sub_u32 s{S_T}, s{S_STEP}, 1'); a(f'v_mov_b32 v{t1}, s{S_T}')
    then(e23[w], 13); e_load(2, ef)
    if not e3in: then(es, 17); e_load(3, ef)
    do_chores(4*len(chores))
    if clk and w == 0:
        lk = a.newlabel('Lclk'); a(f's_and_b32 s{S_T}, s{S_STEP}, 7'); a(f's_cmp_lg_u32 s{S_T}, 1'); a(f's_cbranch_scc1 {lk}')
        a('s_memtime s[60:61]'); a('s_memrealtime s[62:63]'); a('s_waitcnt lgkmcnt(0)')
        for k in range(11, 1, -1): a(f's_mov_b32 s{84+k}, s{84+k-1}') if k != 6 else None
        a('s_sub_u32 s90, s60, s64'); a('s_sub_u32 s85, s62, s65'); a('s_mov_b32 s64, s60'); a('s_mov_b32 s65, s62')
        a.label(lk)
    a(f's_branch {LA}')
    for k in list(range(1, nb)) + [0]:
        a.label(Lq[k])
        p_loads((k-1) % nb); zero(PD, 4)
        if stamps and rt is None and not clk: a(f's_add_u32 s94, s94, 1')
        if k == 0: spin_or_fail()
        a(f's_waitcnt vmcnt({2*(nb-1) if not eh else (3 if nb == 2 else 0)})')
        reduce(k, Lq[(k+1) % nb], hookE)
        a(f's_branch {Lok}')
    if eb is not None or ee:
        Lr0 = Lr[0]; Lr[0] = a.newlabel('Lc_rE0')
        a.label(Lr0)
        if stamps and rt is None and not clk: a('s_add_u32 s92, s92, 63')
        a('s_nop 4'); zero(A, 8)
        a(f's_waitcnt vmcnt({len(vm0) - 1 - vm0.index("x")})')
        for i in range(4): a(f'v_mov_b32 v{M+i}, v{EB+i}')
        for l in chk(0): a(l)
        a(f's_cbranch_vccz {Lc[0]}')
    for j in range(5):
        a.label(Lr[j])
        if stamps and rt is None and not clk: a(f's_add_u32 s{95 if j == 0 else 93}, s{95 if j == 0 else 93}, {1 if j == 0 else 63}')
        n = 0
        seq = vm0 if j == 0 else (issued_at[j] if j < 4 else ['E4'])
        for nm in seq[seq.index('E%d' % j):]:
            if nm[0] == 'E': e_load(int(nm[1]))
            else: a(f'global_load_dword v{A+24}, v{r.aL}, s[{S_CPR}:{S_CPR+1}] sc1')
            n += 1
        spin_or_fail()
        if j == 0: a('s_nop 4'); zero(A, 8)
        a(f's_waitcnt vmcnt({n-1})')
        for l in chk(j): a(l)
        if j == 4: a(f'ds_write_b128 v{r.aL}, {vr(M+16,4)} offset:{1024*w}')
        a(f's_cbranch_vccnz {Lr[j]}')
        if j == 4: a('s_waitcnt lgkmcnt(0)')
        a(f's_branch {Lc[j]}')
    if fused and w == hkw[0]:
        if stamps and rt is None and not clk:
            lb = a.newlabel('Lc_hb2'); a.label(Lhb); a('s_add_u32 s92, s92, 63'); Lhb = lb
        prog_block(a, r, Lhb, Lhk, S_T3, fail)
    if bx is not None and w == 0:
        a.label(Lbs)
        if stamps and rt is None and not clk: a('s_add_u32 s92, s92, 63')
        lb2 = a.newlabel('Lc_bs2'); a.label(lb2)
        for k in range(4):
            a(f'v_cmp_ne_u32 vcc, s{S_GS}, v{r.PG} ; nowaitcheck'); probe(); nops(bg); a(f's_cbranch_vccz {Lbg}')
        spin_or_fail(); a(f's_branch {lb2}')
    if nomax and not nowait & 2:
        a.label(Lfb)
        a(f's_cmp_lg_u32 s{S_FB}, 0'); a(f's_cbranch_scc1 {Lnofb}')
        a(f's_mov_b32 s{S_FB}, 1'); a('s_waitcnt lgkmcnt(0)')
        submax()
        a(f's_branch {Lexp}')
    a.label(Lsp)
    a(f's_cmp_eq_u32 s{S_STEP}, 63'); a(f's_cbranch_scc1 {Ldone}')
    a(f's_mov_b32 s{S_SP}, 63')
    a('s_waitcnt vmcnt(0)'); a(f's_branch {Lspb}')
    a.label(Lk0)
    if started: started(A+26)
    for i in range(4): kv_load(a, r, i, r.KX, S_HB)
    a(f's_branch {Lk0b}')
    a.label(Ldone)
    if not nohk: pub_k()
    for t, sl in vrest: S('v', t, sl)
    if not nohk:
        for t in range(2):
            add0(Av[t]); add1(Av[t]); cvt(A+30+t, Av[t], Av[t]+1)
        pub_v()
    a('s_waitcnt vmcnt(0)'); a('s_barrier')
    if fused and w == hkw[1]:
        a(f'v_mov_b32 v{t0}, 64'); a('s_mov_b64 exec, 1'); a(f'global_store_dword v{r.Z}, v{t0}, s[{S_FW}:{S_FW+1}] sc1'); a(XA)
    a(f's_branch {done}')

def chain_all_waves(a, r, stf, fail, **kw):
    done = a.newlabel('Lc_alldone'); lw = [a.newlabel('Lc_wave') for _ in range(4)]
    a(f'v_mov_b32 v{r.A+29}, 0')
    for w in range(1, 4):
        a(f's_cmp_eq_u32 s{S_W}, {w}'); a(f's_cbranch_scc1 {lw[w]}')
    for w in range(4):
        a.label(lw[w]); chain_wave(a, r, w, stf, fail, done, **kw)
    a.label(done)

def chain_kernel_standalone(half, stamps=False, **kw):
    a = Asm(); a._lbl = 1000 * (half + 1); r = ChainRegs()
    end = a.newlabel('Lc_end')
    a(f's_load_dwordx2 s[{S_WS}:{S_WS+1}], s[0:1], {KA_WS}')
    a(f's_load_dwordx2 s[{S_DBG}:{S_DBG+1}], s[0:1], {KA_DBG}')
    a(f's_getreg_b32 s{S_T}, hwreg(HW_REG_XCC_ID, 0, 4)')
    a('s_waitcnt lgkmcnt(0)')
    a(f's_cmp_lg_u32 s{S_T}, 0'); a(f's_cbranch_scc1 {end}')
    l0 = a.newlabel('Lc')
    a('v_mov_b32 v1, 0'); a('v_mov_b32 v2, 1'); a('v_cmp_eq_u32 vcc, 0, v0')
    a('s_and_saveexec_b64 s[12:13], vcc'); a(f's_cbranch_execz {l0}')
    a(f'global_atomic_add v3, v1, v2, s[{S_DBG}:{S_DBG+1}] sc0 sc1'); a('s_waitcnt vmcnt(0)')
    a('ds_write_b32 v1, v3'); a('s_waitcnt lgkmcnt(0)')
    a.label(l0)
    a('s_mov_b64 exec, s[12:13]'); a('s_barrier')
    a('ds_read_b32 v3, v1'); a('s_waitcnt lgkmcnt(0)'); a(f'v_readfirstlane_b32 s{S_H}, v3'); a('s_barrier')
    a(f's_cmp_ge_u32 s{S_H}, 32'); a(f's_cbranch_scc1 {end}')
    if stamps: a('s_memtime s[98:99]')
    chain_setup(a, r)
    a(f's_mov_b32 s{S_EP}, 0'); a(f's_mov_b32 s{S_EM}, 0'); a(f's_mov_b32 s{S_HALF}, {half}')
    chain_init_comm(a, r, '', True)
    group_arrive(a, r.R, 4); group_wait(a, r.R, 4, 32, end)
    if kw.get('rt') is not None:
        a('s_memrealtime s[60:61]'); a('s_waitcnt lgkmcnt(0)'); a('s_add_u32 s62, s60, 2048'); a('s_and_b32 s62, s62, 0xfffff000'); a('s_add_u32 s62, s62, 4096')
        a('s_mov_b32 s63, 0'); a('s_mov_b32 s99, 0'); a('s_mov_b32 s98, 0')
        a.label('Lcal')
        a('s_memrealtime s[60:61]'); a('s_memtime s[64:65]'); a('s_waitcnt lgkmcnt(0)'); a('s_sub_u32 s61, s60, s62'); a('s_cmp_lt_i32 s61, 0'); a('s_cbranch_scc1 Lcal')
        a('s_cmp_eq_u32 s63, 0'); a('s_cselect_b32 s99, s64, s99'); a('s_sub_u32 s64, s64, s99'); a('s_add_u32 s98, s98, s64')
        a('s_add_u32 s62, s62, 44'); a('s_add_u32 s63, s63, 1'); a('s_cmp_lt_u32 s63, 32'); a('s_cbranch_scc1 Lcal')
        a('s_lshr_b32 s98, s98, 5'); a('s_add_u32 s99, s99, s98'); a('s_mov_b32 s98, s62')
    if stamps: a('s_memtime s[100:101]')
    chain_start(a, r, end, 0)
    chain_all_waves(a, r, '', end, fused=0, stamps=stamps, **kw)
    if stamps:
        a('s_memtime s[60:61]'); a('s_waitcnt lgkmcnt(0)')
        a('s_sub_u32 s96, s100, s98'); a('s_sub_u32 s97, s60, s100')
        for k in range(16): a(f'v_mov_b32 v{k}, s{84+k}')
        a(f's_lshl_b32 s{S_T}, s{S_H}, 2'); a(f's_add_u32 s{S_T}, s{S_T}, s{S_W}'); a(f's_lshl_b32 s{S_T}, s{S_T}, 6')
        a(f's_add_u32 s{S_T}, s{S_T}, {STAMP_OFF}')
        a(f'v_mov_b32 v16, s{S_T}')
        for k in range(4): a(f'global_store_dwordx4 v16, {vr(4*k,4)}, s[{S_WS}:{S_WS+1}] offset:{16*k}')
    a.label(end)
    a('s_waitcnt vmcnt(0)'); a('s_endpgm')
    return a.lines

def autostamp(lines, start, stride, n=9):
    out = []; inb = False; idx = 0; k = 0; names = []; first = True
    for l in lines:
        if l == '; BODY_BEGIN': inb = True; idx = 0; k = 0
        if l == '; BODY_END':
            while k < n:
                out.append(f's_memtime s[{S_STAMP+2*k}:{S_STAMP+2*k+1}]'); k += 1
            inb = False; first = False
        if l.startswith('s_cbranch_vccnz'): l = 's_cbranch_vccnz ' + f'Lnx_{len(out)}\nLnx_{len(out)}:'
        if inb and is_instr(l.split('\n')[0]):
            if k < n and idx == start + k * stride:
                out.append(f's_memtime s[{S_STAMP+2*k}:{S_STAMP+2*k+1}]'); k += 1
            if first: names.append(l.split('\n')[0])
            idx += 1
        out += l.split('\n')
    return out, names

if __name__ == '__main__':
    rep = []
    lines = fix_hazards(chain_kernel_standalone(0, stamps=True), rep)
    for e in check_waits(lines, 'chain'): print(e)
    for x in rep[14:32]: print(x)
    t = assemble_file('', [('chain0_kernel', 256, 256, 163840)], [('chain0_kernel', lines, 512, 256)])
    open('chain_test.s', 'w').write(t)
    print(len(lines))
```

```python
from asmlib import *
from layout import *
import math, struct
def f2u(f): return struct.unpack('<I', struct.pack('<f', f))[0]

S_WS = 4; S_W = 7; S_SRD = 8; S_WSRD = 12
S_T = 16; S_T2 = 17; S_T3 = 18; S_OFF = 19
S_OUT = 20
S_IN = 22
S_TASK = 24; S_A = 25; S_B = 26; S_CNT = 27; S_XO = 28; S_BUF = 29; S_K0 = 30; S_K1 = 31
S_P = 32
S_M = 34

def add64(a, dst, base, off):
    a(f's_add_u32 s{dst}, s{base}, {off}'); a(f's_addc_u32 s{dst+1}, s{base+1}, 0')

def common_prologue(a, L, L16):
    a(f's_load_dwordx2 s[{S_WS}:{S_WS+1}], s[0:1], {KA_WS}')
    a(f'v_lshrrev_b32 v{L16}, 6, v0'); a(f'v_and_b32 v{L}, 63, v0')
    a(f'v_readfirstlane_b32 s{S_W}, v{L16}')
    a(f'v_lshlrev_b32 v{L16}, 4, v{L}')
    a('s_waitcnt lgkmcnt(0)')
    a(f's_mov_b32 s{S_WSRD}, s{S_WS}'); a(f's_mov_b32 s{S_WSRD+1}, s{S_WS+1}'); a(f's_mov_b32 s{S_WSRD+2}, {256*MB}'); a(f's_mov_b32 s{S_WSRD+3}, 0x20000')

def pi_of(a, dst, src, t):
    a(f'v_and_b32 v{dst}, 0x13, v{src}')
    a(f'v_bfe_u32 v{t}, v{src}, 2, 1'); a(f'v_lshl_or_b32 v{dst}, v{t}, 3, v{dst}')
    a(f'v_bfe_u32 v{t}, v{src}, 3, 1'); a(f'v_lshl_or_b32 v{dst}, v{t}, 2, v{dst}')

def vpos16(a, dst, f, hh_src, t):
    a(f'v_and_b32 v{t}, 1, v{f}'); a(f'v_lshrrev_b32 v{dst}, 1, v{f}'); a(f'v_lshl_or_b32 v{dst}, v{t}, 4, v{dst}')
    a(f'v_lshlrev_b32 v{dst}, 4, v{dst}'); a(f'v_lshrrev_b32 v{t}, 5, v{hh_src}'); a(f'v_lshl_or_b32 v{dst}, v{t}, 9, v{dst}')

def load_wslices(a, mats, stride, L, t0, t1, t2, share=None, early=None, first=None):
    a(f'v_bfe_u32 v{t0}, v{L}, 2, 2'); a(f's_mov_b32 s{S_T}, {stride}'); a(f'v_mul_lo_u32 v{t0}, v{t0}, s{S_T}')
    a(f'v_lshrrev_b32 v{t2}, 4, v{L}'); a(f'v_lshl_add_u32 v{t0}, v{t2}, 6, v{t0}')
    a(f'v_and_b32 v{t2}, 3, v{L}'); a(f'v_lshl_add_u32 v{t0}, v{t2}, 4, v{t0}')
    a(f'v_lshrrev_b32 v{t1}, 5, v{L}'); a(f'v_lshlrev_b32 v{t1}, 11, v{t1}')
    a(f'v_bfe_u32 v{t2}, v{L}, 2, 2'); a(f'v_lshl_add_u32 v{t1}, v{t2}, 6, v{t1}')
    a(f'v_bfe_u32 v{t2}, v{L}, 4, 1'); a(f'v_lshl_add_u32 v{t1}, v{t2}, 5, v{t1}')
    a(f'v_and_b32 v{t2}, 1, v{L}'); a(f'v_lshl_add_u32 v{t1}, v{t2}, 4, v{t1}')
    a(f'v_bfe_u32 v{t2}, v{L}, 1, 1'); a(f'v_lshl_add_u32 v{t1}, v{t2}, 3, v{t1}')
    a(f's_lshl_b32 s{S_T}, s{S_W}, 8'); a(f'v_add_u32 v{t1}, s{S_T}, v{t1}'); a(f'v_add_u32 v{t2}, 65536, v{t1}')
    a(f's_mul_i32 s{S_K0}, s{S_W}, {64*stride}'); a(f's_add_u32 s{S_K0}, s{S_K0}, s{S_OFF}')
    a(f's_lshl_b32 s{S_K1}, s{S_W}, 14')
    a(f's_mov_b32 s{S_SRD+3}, 0x20000')
    chunks = [(m, c) for m in range(len(mats)) for c in range(2)]
    cur = [None]; ntouch = 0
    if share is not None:
        rank, n = share; rows = 512 // n; tp = t2 + 1
        a(f's_lshl_b32 s{S_T}, s{S_W}, 6'); a(f'v_add_u32 v{tp}, s{S_T}, v{L}')
        a(f'v_and_b32 v{tp+1}, 1, v{tp}'); a(f'v_lshrrev_b32 v{tp}, 1, v{tp}'); a(f'v_and_b32 v{tp}, {min(rows,128)-1}, v{tp}')
        a(f's_mov_b32 s{S_T}, {stride}'); a(f'v_mul_lo_u32 v{tp}, v{tp}, s{S_T}'); a(f'v_lshl_add_u32 v{tp}, v{tp+1}, 7, v{tp}')
        a(f's_mul_i32 s{S_T2}, s{rank}, {rows*stride}'); a(f's_add_u32 s{S_T2}, s{S_T2}, s{S_OFF}')
        for ka, nb, const, _, _ in mats:
            if cur[0] != ka:
                a(f's_load_dwordx2 s[{S_SRD}:{S_SRD+1}], s[0:1], {ka}'); a(f's_mov_b32 s{S_SRD+2}, {nb}'); a('s_waitcnt lgkmcnt(0)'); cur[0] = ka
            for r0 in range(0, rows, 128):
                a(f's_add_u32 s{S_T}, s{S_T2}, {const + r0*stride}')
                a(f'buffer_load_dword v{tp+1}, v{tp}, s[{S_SRD}:{S_SRD+3}], s{S_T} offen'); ntouch += 1
    def issue(ci):
        m, c = chunks[ci]; ka, nb, const, _, _ = mats[m]
        if cur[0] != ka:
            a(f's_load_dwordx2 s[{S_SRD}:{S_SRD+1}], s[0:1], {ka}'); a(f's_mov_b32 s{S_SRD+2}, {nb}'); a('s_waitcnt lgkmcnt(0)'); cur[0] = ka
        for i in range(16):
            a(f's_add_u32 m0, s{S_K1}, {(ci&1)*65536 + i*1024}')
            a(f's_add_u32 s{S_T}, s{S_K0}, {const + (256*c + 4*i)*stride}')
            a(f'buffer_load_dwordx4 v{t0}, s[{S_SRD}:{S_SRD+3}], s{S_T} offen lds')
    issue(0)
    for ci in range(len(chunks)):
        if ci == max(len(chunks) - 2, 1) and early: early()
        if ci + 1 < len(chunks):
            issue(ci + 1)
            if ci == 0 and first: first()
            a('s_waitcnt vmcnt(16)')
        else: a('s_waitcnt vmcnt(0)')
        a('s_barrier')
        m, c = chunks[ci]; _, _, _, kind, base = mats[m]
        n = 0
        for kb in range(16):
            for half in range(2):
                r = base + 4*(16*c+kb) + 2*half
                a(f'ds_read_b64_tr_b16 {vr(r,2,kind)}, v{t2 if ci&1 else t1} offset:{(4*kb+half)*1024}')
                n += 1
                if n % 12 == 0: a('s_waitcnt lgkmcnt(4)')
        a('s_waitcnt lgkmcnt(0)'); a('s_barrier')

def dma_x(a, L16, soff_sgpr, buf_sgpr, flags=''):
    a(f's_lshl_b32 s{S_T2}, s{S_W}, 13'); a(f's_add_u32 s{S_T3}, s{S_T2}, s{soff_sgpr}'); a(f's_add_u32 s{S_T2}, s{S_T2}, s{buf_sgpr}')
    for i in range(8):
        if i % 4 == 0:
            a(f's_add_u32 m0, s{S_T2}, {i*1024}'); a(f's_add_u32 s{S_T}, s{S_T3}, {i*1024}')
        a(f'buffer_load_dwordx4 v{L16}, s[{S_WSRD}:{S_WSRD+3}], s{S_T} offen offset:{(i%4)*1024} {flags} lds')

def mf(d, x, y, c): return f'v_mfma_f32_32x32x16_bf16 {vr(d,16)}, {x}, {y}, {c}'

def gemm_core(a, xaddr, XR, tiles, hooks={}):
    for kb in range(3): a(f'ds_read_b128 {vr(XR+4*kb,4)}, v{xaddr} offset:{kb*1024}')
    for kb in range(32):
        if kb + 3 < 32: a(f'ds_read_b128 {vr(XR+4*((kb+3)%4),4)}, v{xaddr} offset:{(kb+3)*1024}')
        a(f's_waitcnt lgkmcnt({min(3, 31-kb)})')
        x = vr(XR+4*(kb%4), 4)
        for acc, kind, wb, swap in tiles:
            w = vr(wb+4*kb, 4, kind)
            a(mf(acc, x if swap else w, w if swap else x, vr(acc,16) if kb else 0))
        if kb in hooks: hooks[kb]()

def pack_store(a, acc, addr, base, flags='', scale=None, offs=(0, 1024)):
    for j in range(2):
        if scale is not None:
            for i in range(8): a(f'v_mul_f32 v{acc+8*j+i}, s{scale}, v{acc+8*j+i}')
        for i in range(4): a(f'v_cvt_pk_bf16_f32 v{acc+8*j+i}, v{acc+8*j+2*i}, v{acc+8*j+2*i+1}')
        a(f'global_store_dwordx4 v{addr}, {vr(acc+8*j,4)}, s[{base}:{base+1}] offset:{offs[j]} {flags}')

def proj_kernel(half, isB, nwg=256):
    a = Asm(); a._lbl = 2000 + 100*half + 50*isB
    H = W.H[half]
    L, L16, t0, t1, t2, vq, vk, vv, xa = range(1, 10)
    XR = 12; ACC = 28; WV = 128
    end = a.newlabel('Lp_end')
    a(f's_cmp_ge_u32 s2, {nwg}'); a(f's_cbranch_scc1 {end}')
    common_prologue(a, L, L16)
    nsl = 32 if isB else 4
    ngr = nwg // nsl
    a(f's_and_b32 s{S_A}, s2, {nsl-1}'); a(f's_lshr_b32 s{S_B}, s2, {int(math.log2(nsl))}')
    a(f's_lshl_b32 s{S_OFF}, s{S_A}, 8')
    xn = H.XNB if isB else H.XNA
    a(f's_lshl_b32 s{S_XO}, s{S_B}, 15'); a(f's_add_u32 s{S_XO}, s{S_XO}, {xn}'); a(f's_mov_b32 s{S_BUF}, {128*1024}')
    dma_x(a, L16, S_XO, S_BUF)
    if isB: mats = [(KA_WK, 4*MB, 0, 'a', 128), (KA_WV, 4*MB, 0, 'v', WV), (KA_WQ, 4*MB, 0, 'a', 0)]; stride = 8192
    else: mats = [(KA_WQKV, 1536*1024, 1024, 'a', 128), (KA_WQKV, 1536*1024, 2048, 'v', WV), (KA_WQKV, 1536*1024, 0, 'a', 0)]; stride = 3072
    load_wslices(a, mats, stride, L, t0, t1, t2)
    ro = (HB_Q, HB_K, HB_V) if isB else (0, H.KA - H.QA, H.VA - H.QA)
    a(f's_lshl_b32 s{S_T}, s{S_W}, 11')
    a(f's_add_u32 s{S_T2}, s{S_T}, {ro[0]}'); a(f'v_add_u32 v{vq}, s{S_T2}, v{L16}')
    a(f's_add_u32 s{S_T2}, s{S_T}, {ro[1]}'); a(f'v_add_u32 v{vk}, s{S_T2}, v{L16}')
    pi_of(a, t0, L, t1); vpos16(a, vv, t0, L, t1)
    a(f's_add_u32 s{S_T2}, s{S_T}, {ro[2]}'); a(f'v_add_u32 v{vv}, s{S_T2}, v{vv}')
    a(f's_lshl_b32 s{S_T}, s{S_A}, {21 if isB else 13}'); a(f's_lshl_b32 s{S_T2}, s{S_B}, 15'); a(f's_add_u32 s{S_T}, s{S_T}, s{S_T2}')
    a(f's_add_u32 s{S_T}, s{S_T}, {H.HB if isB else H.QA}'); add64(a, S_OUT, S_WS, f's{S_T}')
    a(f's_mov_b32 s{S_M}, {f2u(0.25*math.log2(math.e)):#x}')
    lp = a.newlabel('Lp_loop'); nod = a.newlabel('Lp_nod')
    a.label(lp)
    a(f'v_add_u32 v{xa}, s{S_BUF}, v{L16}')
    a(f's_add_u32 s{S_B}, s{S_B}, {ngr}'); a(f's_xor_b32 s{S_BUF}, s{S_BUF}, {128*1024}')
    a(f's_add_u32 s{S_XO}, s{S_XO}, {ngr*32768}')
    a(f's_cmp_ge_u32 s{S_B}, 64'); a(f's_cbranch_scc1 {nod}')
    dma_x(a, L16, S_XO, S_BUF)
    a.label(nod)
    gemm_core(a, xa, XR, [(ACC+16, 'a', 128, False), (ACC+32, 'v', WV, True), (ACC, 'a', 0, False)])
    a('s_waitcnt vmcnt(0)'); a('s_barrier')
    pack_store(a, ACC+16, vk, S_OUT); pack_store(a, ACC+32, vv, S_OUT); pack_store(a, ACC, vq, S_OUT, scale=None if isB else S_M)
    add64(a, S_OUT, S_OUT, ngr*32768)
    a(f's_cmp_lt_u32 s{S_B}, 64'); a(f's_cbranch_scc1 {lp}')
    a.label(end); a('s_endpgm')
    return a.lines

def woa_kernel(half, nwg=256):
    a = Asm(); a._lbl = 3000 + 100*half
    H = W.H[half]
    L, L16, t0, t1, t2, vo, xa = range(1, 8)
    XR = 12; ACC = 28; WV = 128
    end = a.newlabel('Lw_end')
    a(f's_cmp_ge_u32 s2, {nwg}'); a(f's_cbranch_scc1 {end}')
    common_prologue(a, L, L16)
    a(f's_and_b32 s{S_A}, s2, 3'); a(f's_lshr_b32 s{S_B}, s2, 2')
    a(f's_lshl_b32 s{S_OFF}, s{S_A}, 8')
    a(f's_lshl_b32 s{S_XO}, s{S_B}, 15'); a(f's_add_u32 s{S_XO}, s{S_XO}, {H.OA}'); a(f's_mov_b32 s{S_BUF}, {128*1024}')
    dma_x(a, L16, S_XO, S_BUF)
    load_wslices(a, [(KA_WOA, 512*1024, 0, 'v', WV)], 1024, L, t0, t1, t2)
    a(f's_lshl_b32 s{S_T}, s{S_W}, 11'); a(f'v_add_u32 v{vo}, s{S_T}, v{L16}')
    a(f's_lshl_b32 s{S_T}, s{S_A}, 13'); a(f's_lshl_b32 s{S_T2}, s{S_B}, 15'); a(f's_add_u32 s{S_T}, s{S_T}, s{S_T2}')
    a(f's_add_u32 s{S_T}, s{S_T}, {H.YA}'); add64(a, S_OUT, S_WS, f's{S_T}')
    a(f'v_add_u32 v{xa}, s{S_BUF}, v{L16}')
    gemm_core(a, xa, XR, [(ACC, 'v', WV, False)])
    pack_store(a, ACC, vo, S_OUT)
    a.label(end); a('s_endpgm')
    return a.lines

def rb_body(a, npart, xin, xin_rm, part, pstride, segstride, xout, xout_rm, xn, ldf='', stf='', ready=None, ldsoff=0, vb=0, xwait=None, dual=None, nl=2):
    L, L16 = 1, 2; af, ar, t0, t1, t2, t3, sm = range(3+vb, 10+vb); la = 100+vb
    X = 12+vb; F = 20+vb; P = 36+vb
    tb = 1 + nl; ND = 4*nl
    a(f'v_lshrrev_b32 v{t0}, {tb}, v{L}'); a(f'v_and_b32 v{t1}, {4*nl-1}, v{L}')
    a(f'v_lshlrev_b32 v{af}, 9, v{t0}'); a(f'v_lshl_add_u32 v{af}, v{t1}, 4, v{af}')
    a(f's_lshl_b32 s{S_T}, s{S_W}, 13'); a(f's_lshl_b32 s{S_T2}, s{S_B}, {4+tb}'); a(f's_add_u32 s{S_T}, s{S_T}, s{S_T2}'); a(f's_add_u32 s{S_T}, s{S_T}, 2048')
    a(f'v_add_u32 v{af}, s{S_T}, v{af}')
    a(f'v_lshlrev_b32 v{ar}, 10, v{t1}'); a(f'v_lshl_add_u32 v{ar}, v{t0}, 4, v{ar}')
    a(f's_lshl_b32 s{S_T}, s{S_A}, 15'); a(f's_lshl_b32 s{S_T2}, s{S_B}, {10+tb}'); a(f's_add_u32 s{S_T}, s{S_T}, s{S_T2}'); a(f's_lshl_b32 s{S_T2}, s{S_W}, 8'); a(f's_add_u32 s{S_T}, s{S_T}, s{S_T2}')
    a(f'v_add_u32 v{ar}, s{S_T}, v{ar}')
    a(f'v_lshlrev_b32 v{la}, 4, v{t1}')
    if ldsoff: a(f'v_add_u32 v{la}, {ldsoff}, v{la}')
    a(f's_lshl_b32 s{S_T3}, s{S_A}, 15')
    if xout_rm: a(f's_load_dwordx2 s[{S_OUT}:{S_OUT+1}], s[0:1], {xout}'); a('s_waitcnt lgkmcnt(0)')
    if ready: ready()
    if xin_rm:
        a(f's_load_dwordx2 s[{S_IN}:{S_IN+1}], s[0:1], {xin}'); a('s_waitcnt lgkmcnt(0)')
        for i in range(nl): a(f'global_load_dwordx4 {vr(X+4*i,4)}, v{ar}, s[{S_IN}:{S_IN+1}] offset:{128*i}')
    else:
        a(f's_add_u32 s{S_T}, s{S_T3}, {xin}'); add64(a, S_IN, S_WS, f's{S_T}')
        for i in range(nl): a(f'global_load_dwordx4 {vr(X+4*i,4)}, v{af}, s[{S_IN}:{S_IN+1}] offset:{4096*i-2048} {ldf}')
    if npart:
        a(f's_mul_i32 s{S_T}, s{S_A}, {segstride}'); a(f's_add_u32 s{S_T}, s{S_T}, {part}'); add64(a, S_P, S_WS, f's{S_T}')
        for p in range(npart):
            for i in range(nl): a(f'global_load_dwordx4 {vr(P+8*p+4*i,4)}, v{af}, s[{S_P}:{S_P+1}] offset:{4096*i-2048} {ldf}')
            if p + 1 < npart: add64(a, S_P, S_P, pstride)
        a(f's_mov_b32 s{S_M}, 0xffff0000'); a(f'v_mov_b32 v{t2}, 0x3f80'); a(f'v_mov_b32 v{t3}, 0x3f800000')
        for p in range(npart):
            a(f's_waitcnt vmcnt({nl*(npart-1-p)})')
            for d in range(ND):
                r = P+8*p+d
                if p == 0:
                    a(f'v_lshlrev_b32 v{F+2*d}, 16, v{r}'); a(f'v_and_b32 v{F+2*d+1}, s{S_M}, v{r}')
                else:
                    a(f'v_dot2c_f32_bf16 v{F+2*d}, v{r}, v{t2}'); a(f'v_dot2c_f32_bf16 v{F+2*d+1}, v{r}, v{t3}')
        a('s_nop 2')
        for d in range(ND):
            if npart > 1:
                a(f'v_cvt_pk_bf16_f32 v{t1}, v{F+2*d}, v{F+2*d+1}')
                a(f'v_lshlrev_b32 v{F+2*d}, 16, v{t1}'); a(f'v_and_b32 v{F+2*d+1}, s{S_M}, v{t1}')
            a(f'v_lshlrev_b32 v{t0}, 16, v{X+d}'); a(f'v_and_b32 v{t1}, s{S_M}, v{X+d}')
            a(f'v_add_f32 v{t0}, v{t0}, v{F+2*d}'); a(f'v_add_f32 v{t1}, v{t1}, v{F+2*d+1}')
            a(f'v_cvt_pk_bf16_f32 v{X+d}, v{t0}, v{t1}')
    else:
        a(f's_mov_b32 s{S_M}, 0xffff0000')
        if xwait: xwait()
        else: a('s_waitcnt vmcnt(0)')
    def two(r):
        def em(f):
            for i in range(nl): a(f'global_store_dwordx4 v{af}, {vr(r+4*i,4)}, s[{S_OUT}:{S_OUT+1}] offset:{4096*i-2048} {f}')
        if dual: dual(em)
        else: em(stf)
    def store_x():
        if xout is None: return
        if xout_rm:
            for i in range(nl): a(f'global_store_dwordx4 v{ar}, {vr(X+4*i,4)}, s[{S_OUT}:{S_OUT+1}] offset:{128*i}')
        else:
            a(f's_add_u32 s{S_T}, s{S_T3}, {xout}'); add64(a, S_OUT, S_WS, f's{S_T}')
            two(X)
    if xn is None:
        store_x(); return
    for d in range(ND):
        a(f'v_lshlrev_b32 v{F+2*d}, 16, v{X+d}'); a(f'v_and_b32 v{F+2*d+1}, s{S_M}, v{X+d}')
    def rbf(r):
        a(f'v_cvt_pk_bf16_f32 v{r}, v{r}, v{r}'); a(f'v_and_b32 v{r}, s{S_M}, v{r}')
    a(f'v_add_f32 v{t3}, v{F}, v{F+1}'); a(f'v_mul_f32 v{sm}, v{F}, v{F}'); a(f'v_fmac_f32 v{sm}, v{F+1}, v{F+1}')
    for i in range(2, 2*ND):
        a(f'v_add_f32 v{t3}, v{t3}, v{F+i}'); a(f'v_fmac_f32 v{sm}, v{F+i}, v{F+i}')
    for ror in ((8,) if nl == 2 else (8, 4)):
        for x in (t3, sm): a(f'v_add_f32_dpp v{x}, v{x}, v{x} row_ror:{ror} row_mask:0xf bank_mask:0xf')
    for sw in ('16', '32'):
        a(f'v_mov_b32 v{t0}, v{t3}'); a(f'v_mov_b32 v{t1}, v{sm}')
        a(f'v_permlane{sw}_swap_b32 v{t3}, v{t0}'); a(f'v_permlane{sw}_swap_b32 v{sm}, v{t1}')
        a(f'v_add_f32 v{t3}, v{t3}, v{t0}'); a(f'v_add_f32 v{sm}, v{sm}, v{t1}')
    a(f's_lshl_b32 s{S_T}, s{S_W}, 2'); a(f'v_add_u32 v{t0}, s{S_T}, v{la}')
    a(f'ds_write2_b32 v{t0}, v{t3}, v{sm} offset0:0 offset1:32'); a('s_waitcnt lgkmcnt(0)'); a('s_barrier')
    a(f'ds_read_b128 {vr(P,4)}, v{la}'); a(f'ds_read_b128 {vr(P+4,4)}, v{la} offset:128')
    store_x()
    a('s_waitcnt lgkmcnt(0)')
    for x, b in ((t3, P), (sm, P+4)):
        a(f'v_add_f32 v{b}, v{b}, v{b+1}'); a(f'v_add_f32 v{b+2}, v{b+2}, v{b+3}'); a(f'v_add_f32 v{x}, v{b}, v{b+2}')
        a(f'v_mul_f32 v{x}, {f2u(1/512):#x}, v{x}')
    a(f'v_fma_f32 v{sm}, -v{t3}, v{t3}, v{sm}'); a(f'v_max_f32 v{sm}, 0, v{sm}')
    rbf(sm); a(f'v_add_f32 v{sm}, {f2u(1e-5):#x}, v{sm}'); rbf(sm)
    a(f'v_sqrt_f32 v{sm}, v{sm}'); rbf(sm); a(f'v_rcp_f32 v{sm}, v{sm}')
    rbf(t3)
    for d in range(ND):
        a(f'v_sub_f32 v{t0}, v{F+2*d}, v{t3}'); a(f'v_sub_f32 v{t1}, v{F+2*d+1}, v{t3}')
        a(f'v_cvt_pk_bf16_f32 v{t1}, v{t0}, v{t1}')
        a(f'v_lshlrev_b32 v{t0}, 16, v{t1}'); a(f'v_and_b32 v{t1}, s{S_M}, v{t1}')
        a(f'v_mul_f32 v{t0}, v{t0}, v{sm}'); a(f'v_mul_f32 v{t1}, v{t1}, v{sm}')
        a(f'v_cvt_pk_bf16_f32 v{P+d}, v{t0}, v{t1}')
    a(f's_add_u32 s{S_T}, s{S_T3}, {xn}'); add64(a, S_OUT, S_WS, f's{S_T}')
    two(P)

def rb_kernel(kind, half):
    a = Asm(); a._lbl = 4000 + 100*half + 10*kind
    H = W.H[half]
    end = a.newlabel('Lr_end')
    a(f's_cmp_ge_u32 s2, 256'); a(f's_cbranch_scc1 {end}')
    common_prologue(a, 1, 2)
    a(f's_lshr_b32 s{S_A}, s2, 2'); a(f's_and_b32 s{S_B}, s2, 3')
    xprev = W.X0 if half == 0 else W.H[0].X2
    if kind == 0: rb_body(a, 0, KA_X, True, 0, 0, 0, W.X0, False, H.XNA)
    elif kind == 1: rb_body(a, 1, xprev, False, H.YA, 0, 32768, H.X1, False, H.XNB)
    elif half == 0: rb_body(a, 8, H.X1, False, H.PT, 32768, 8*32768, H.X2, False, W.H[1].XNA)
    else: rb_body(a, 8, H.X1, False, H.PT, 32768, 8*32768, KA_OUT, True, None)
    a.label(end); a('s_endpgm')
    return a.lines

def att_kernel(half, nwg=256):
    a = Asm(); a._lbl = 5000 + 100*half
    H = W.H[half]
    L, L16, t0, t1, t2, ak, av, idx, lw, mx = range(1, 11)
    Q = 12; QN = 16; K0 = 20; C = 24; O = 40; D = [56, 72, 88]; KF = 104
    MG = 168
    end = a.newlabel('La_end')
    a(f's_cmp_ge_u32 s2, {nwg}'); a(f's_cbranch_scc1 {end}')
    common_prologue(a, L, L16)
    npg = nwg // 32
    a(f's_and_b32 s{S_A}, s2, 31'); a(f's_lshr_b32 s{S_B}, s2, 5')
    pi_of(a, t0, L, t1)
    a(f'v_and_b32 v{t1}, 32, v{L}'); a(f'v_add_u32 v{ak}, v{t0}, v{t1}'); a(f'v_lshlrev_b32 v{ak}, 4, v{ak}')
    a(f'v_and_b32 v{t0}, 15, v{t0}'); a(f's_and_b32 s{S_T}, s{S_A}, 1'); a(f's_lshl_b32 s{S_T}, s{S_T}, 4'); a(f'v_add_u32 v{t0}, s{S_T}, v{t0}')
    vpos16(a, av, t0, L, t1)
    a(f'v_mov_b32 v{idx}, 0xdddd')
    a(f's_mul_i32 s{S_T}, s{S_W}, 3072'); a(f'v_add_u32 v{lw}, s{S_T}, v{L16}')
    a(f's_lshl_b32 s{S_T}, s{S_A}, 10'); a(f's_lshl_b32 s{S_T2}, s{S_B}, 15'); a(f's_add_u32 s{S_T2}, s{S_T2}, s{S_T}')
    a(f's_add_u32 s{S_T3}, s{S_T2}, {H.QA}'); add64(a, S_IN, S_WS, f's{S_T3}')
    a(f's_add_u32 s{S_T3}, s{S_T2}, {H.OA}'); add64(a, S_OUT, S_WS, f's{S_T3}')
    a(f'global_load_dwordx4 {vr(QN,4)}, v{L16}, s[{S_IN}:{S_IN+1}]')
    a(f's_add_u32 s{S_K0}, s{S_T}, {H.KA}')
    a(f'buffer_load_dwordx4 {vr(K0,4)}, v{ak}, s[{S_WSRD}:{S_WSRD+3}], s{S_K0} offen')
    a(f's_lshl_b32 s{S_T2}, s{S_W}, 19'); a(f's_add_u32 s{S_K0}, s{S_K0}, s{S_T2}')
    a(f's_lshr_b32 s{S_K1}, s{S_A}, 1'); a(f's_lshl_b32 s{S_K1}, s{S_K1}, 11'); a(f's_add_u32 s{S_K1}, s{S_K1}, s{S_T2}'); a(f's_add_u32 s{S_K1}, s{S_K1}, {H.VA}')
    a(f'v_mov_b32 v{t0}, 0x3f803f80')
    for i in range(128): a(f'v_accvgpr_write_b32 a{i}, v{t0}')
    a(f's_mov_b32 s{S_M}, 0x0000ffff'); a(f's_mov_b32 s{S_M+1}, 0x0000ffff')
    for t in range(16):
        a(f's_add_u32 s{S_T}, s{S_K0}, {t*32768}')
        a(f'buffer_load_dwordx4 {vr(KF+4*t,4)}, v{ak}, s[{S_WSRD}:{S_WSRD+3}], s{S_T} offen')
        a(f's_add_u32 s{S_T}, s{S_K1}, {t*32768}')
        a(f's_mov_b64 exec, s[{S_M}:{S_M+1}]')
        for b in range(2): a(f'buffer_load_dwordx4 {vr(8*t+4*b,4,"a")}, v{av}, s[{S_WSRD}:{S_WSRD+3}], s{S_T} offen offset:{1024*b}')
        a('s_mov_b64 exec, -1')
    a(f's_mov_b32 s{S_BUF}, 0'); a(f's_mov_b32 s{S_CNT}, 0')
    lp = a.newlabel('La_loop'); run = a.newlabel('La_run'); slow = a.newlabel('La_slow'); nom = a.newlabel('La_nom'); noq = a.newlabel('La_noq')
    def rowmax(src, first):
        if first: a(f'v_max3_f32 v{mx}, v{src}, v{src+1}, v{src+2}'); rest = list(range(3, 16))
        else: rest = list(range(16))
        while len(rest) >= 2:
            a(f'v_max3_f32 v{mx}, v{mx}, v{src+rest[0]}, v{src+rest[1]}'); rest = rest[2:]
        if rest: a(f'v_max_f32 v{mx}, v{mx}, v{src+rest[0]}')
    def halfmax():
        a(f'v_mov_b32 v{t0}, v{mx}'); a(f'v_permlane32_swap_b32 v{mx}, v{t0}'); a(f'v_max_f32 v{mx}, v{mx}, v{t0}')
    a.label(lp)
    a('s_waitcnt vmcnt(0)')
    for i in range(4): a(f'v_mov_b32 v{Q+i}, v{QN+i}')
    a(f's_add_u32 s{S_B}, s{S_B}, {npg}'); add64(a, S_IN, S_IN, npg*32768)
    a(f's_cmp_ge_u32 s{S_B}, 64'); a(f's_cbranch_scc1 {noq}')
    a(f'global_load_dwordx4 {vr(QN,4)}, v{L16}, s[{S_IN}:{S_IN+1}]')
    a.label(noq)
    a(mf(D[0], vr(K0,4), vr(Q,4), 0))
    rowmax(D[0], True); halfmax()
    a(f's_mov_b32 s{S_XO}, 0')
    a.label(run)
    for i in range(16): a(f'v_sub_f32 v{C+i}, 0, v{mx}')
    for i in range(16): a(f'v_mov_b32 v{O+i}, 0')
    a(mf(D[0], vr(KF,4), vr(Q,4), vr(C,16)))
    a(mf(D[1], vr(KF+4,4), vr(Q,4), vr(C,16)))
    def pv(t, b): a(f'v_smfmac_f32_32x32x32_bf16 {vr(O,16)}, {vr(8*t+4*b,4,"a")}, {vr(D[t%3]+8*b,8)}, v{idx}')
    for t in range(16):
        d = D[t % 3]
        for i in range(16):
            a(f'v_exp_f32 v{d+i}, v{d+i}')
            if i == 2 and t > 0: pv(t-1, 1)
            if i == 6 and t + 2 < 16: a(mf(D[(t+2)%3], vr(KF+4*(t+2),4), vr(Q,4), vr(C,16)))
            if i == 11: pv(t, 0)
    pv(15, 1)
    a(f'v_add_u32 v{t1}, s{S_BUF}, v{lw}')
    for j in range(3): a(f'ds_write_b128 v{t1}, {vr(O+4*j,4)} offset:{1024*j}')
    a('s_waitcnt lgkmcnt(0)'); a('s_barrier')
    a(f'v_add_u32 v{t1}, s{S_BUF}, v{L16}')
    for w in range(4): a(f'ds_read_b32 v{MG+w}, v{t1} offset:{3072*w+2048}')
    a('s_waitcnt lgkmcnt(0)')
    a(f'v_add_f32 v{MG}, v{MG}, v{MG+1}'); a(f'v_add_f32 v{MG+2}, v{MG+2}, v{MG+3}'); a(f'v_add_f32 v{t2}, v{MG}, v{MG+2}')
    a(f's_xor_b32 s{S_BUF}, s{S_BUF}, 16384')
    a(f'v_cmp_nge_f32 vcc, {f2u(2.0**90):#x}, v{t2}')
    a(f's_cbranch_vccnz {slow}')
    fin = a.newlabel('La_fin'); a.label(fin)
    a(f's_and_b32 s{S_T}, s{S_CNT}, 3'); a(f's_add_u32 s{S_CNT}, s{S_CNT}, 1')
    a(f's_cmp_lg_u32 s{S_T}, s{S_W}'); a(f's_cbranch_scc1 {nom}')
    for w in range(4):
        for j in range(2): a(f'ds_read_b128 {vr(MG+8*w+4*j,4)}, v{t1} offset:{3072*w+1024*j}')
    a(f'v_rcp_f32 v{t2}, v{t2}')
    a('s_waitcnt lgkmcnt(0)')
    for i in range(8):
        a(f'v_add_f32 v{MG+i}, v{MG+i}, v{MG+8+i}'); a(f'v_add_f32 v{MG+16+i}, v{MG+16+i}, v{MG+24+i}')
        a(f'v_add_f32 v{MG+i}, v{MG+i}, v{MG+16+i}'); a(f'v_mul_f32 v{MG+i}, v{MG+i}, v{t2}')
    for i in range(4): a(f'v_cvt_pk_bf16_f32 v{MG+i}, v{MG+2*i}, v{MG+2*i+1}')
    a(f'global_store_dwordx4 v{L16}, {vr(MG,4)}, s[{S_OUT}:{S_OUT+1}]')
    a.label(nom)
    add64(a, S_OUT, S_OUT, npg*32768)
    a(f's_cmp_lt_u32 s{S_B}, 64'); a(f's_cbranch_scc1 {lp}')
    a(f's_branch {end}')
    a.label(slow)
    a(f's_cmp_lg_u32 s{S_XO}, 0'); a(f's_cbranch_scc1 {fin}')
    a(f's_mov_b32 s{S_XO}, 1')
    for t in range(16):
        a(mf(D[t%2], vr(KF+4*t,4), vr(Q,4), 0))
        rowmax(D[t%2], t == 0)
    halfmax()
    a(f'ds_write_b32 v{lw}, v{mx} offset:32768'); a('s_waitcnt lgkmcnt(0)'); a('s_barrier')
    for w in range(4): a(f'ds_read_b32 v{MG+w}, v{L16} offset:{32768+3072*w}')
    a('s_waitcnt lgkmcnt(0)')
    a(f'v_max3_f32 v{mx}, v{MG}, v{MG+1}, v{MG+2}'); a(f'v_max_f32 v{mx}, v{mx}, v{MG+3}')
    a(f's_branch {run}')
    a.label(end); a('s_endpgm')
    return a.lines

def tb_kernel(half, nwg=256):
    a = Asm(); a._lbl = 6000 + 100*half
    H = W.H[half]
    L, L16, t0, t1, t2, akm, av, avm, vo, xw, mx = range(1, 12)
    XR = 12; CM = 28; SX = 44; SM = 60; Q = 76; K = 108; KM = 140; V = 172; VM = 204; P = 212; PM = 220; ACC = 224
    OT = Q
    end = a.newlabel('Lt_end')
    a(f's_cmp_ge_u32 s2, {nwg}'); a(f's_cbranch_scc1 {end}')
    common_prologue(a, L, L16)
    ngr = nwg // 32
    a(f's_and_b32 s{S_A}, s2, 31'); a(f's_lshr_b32 s{S_B}, s2, 5')
    a(f's_lshr_b32 s{S_T}, s{S_A}, 2'); a(f's_lshl_b32 s{S_T}, s{S_T}, 19'); a(f's_and_b32 s{S_T2}, s{S_A}, 3'); a(f's_lshl_b32 s{S_T2}, s{S_T2}, 8')
    a(f's_add_u32 s{S_OFF}, s{S_T}, s{S_T2}')
    load_wslices(a, [(KA_WO, 4*MB, 0, 'a', 0)], 1024, L, t0, t1, t2)
    a(f'v_and_b32 v{t0}, 7, v{L}'); a(f'v_lshlrev_b32 v{akm}, 4, v{t0}'); a(f'v_lshrrev_b32 v{t0}, 5, v{L}'); a(f'v_lshl_add_u32 v{akm}, v{t0}, 7, v{akm}')
    a(f'v_add_u32 v{akm}, {HB_KM}, v{akm}')
    pi_of(a, t0, L, t1); vpos16(a, av, t0, L, t1); a(f'v_add_u32 v{av}, {HB_V}, v{av}')
    a(f'v_lshlrev_b32 v{avm}, 2, v{t0}'); a(f'v_lshrrev_b32 v{t1}, 5, v{L}'); a(f'v_lshl_add_u32 v{avm}, v{t1}, 8, v{avm}'); a(f'v_add_u32 v{avm}, {HB_VM}, v{avm}')
    a(f's_lshl_b32 s{S_T}, s{S_W}, 11'); a(f'v_add_u32 v{vo}, s{S_T}, v{L16}')
    a(f's_lshl_b32 s{S_T}, s{S_W}, 13'); a(f'v_add_u32 v{xw}, s{S_T}, v{L16}')
    a(f'v_and_b32 v{t0}, 31, v{L}'); a(f'v_lshrrev_b32 v{t1}, 5, v{L}'); a(f'v_lshlrev_b32 v{t1}, 2, v{t1}'); a(f'v_sub_u32 v{t0}, v{t0}, v{t1}')
    a(f'v_mov_b32 v{t1}, {f2u(-1e30):#x}')
    for i in range(16):
        a(f'v_cmp_le_i32 vcc, {8*(i>>2)+(i&3)}, v{t0}'); a(f'v_cndmask_b32 v{CM+i}, v{t1}, 0, vcc')
    a(f's_and_b32 s{S_T}, s{S_A}, 28'); a(f's_add_u32 s{S_T}, s{S_T}, s{S_W}'); a(f's_lshl_b32 s{S_T}, s{S_T}, 21')
    a(f's_lshl_b32 s{S_T2}, s{S_B}, 15'); a(f's_add_u32 s{S_XO}, s{S_T}, s{S_T2}'); a(f's_add_u32 s{S_XO}, s{S_XO}, {H.HB}')
    a(f's_lshl_b32 s{S_T}, s{S_B}, 18'); a(f's_lshl_b32 s{S_T2}, s{S_A}, 13'); a(f's_add_u32 s{S_T}, s{S_T}, s{S_T2}'); a(f's_add_u32 s{S_T}, s{S_T}, {H.PT}')
    add64(a, S_OUT, S_WS, f's{S_T}')
    a(f's_mov_b32 s{S_M}, {f2u(math.log2(math.e)/math.sqrt(128.0)):#x}')
    lp = a.newlabel('Lt_loop')
    a.label(lp)
    def bl(n, dst, va, so, off): a(f'buffer_load_dword{n} {vr(dst, 4 if n else 1)}, v{va}, s[{S_WSRD}:{S_WSRD+3}], s{so} offen offset:{off}')
    a(f's_add_u32 s{S_T}, s{S_XO}, 4096'); a(f's_add_u32 s{S_T2}, s{S_XO}, {HB_Q}'); a(f's_add_u32 s{S_T3}, s{S_XO}, {HB_Q+4096}')
    for kb in range(8):
        bl('x4', K+4*kb, L16, S_XO if kb < 4 else S_T, (kb%4)*1024)
        bl('x4', Q+4*kb, L16, S_T2 if kb < 4 else S_T3, (kb%4)*1024)
    for kb in range(8): bl('x4', KM+4*kb, akm, S_XO, kb*256)
    for f in range(8): bl('x4', V+4*f, av, S_XO if f < 4 else S_T, (f%4)*1024)
    for t in range(4):
        for e in range(2): bl('', VM+2*t+e, avm, S_XO, t*512 + e*128)
    for kb in range(8):
        a(f's_waitcnt vmcnt({24 + 14 - 2*kb})')
        a(mf(SX, vr(K+4*kb,4), vr(Q+4*kb,4), vr(SX,16) if kb else vr(CM,16)))
    a('s_waitcnt vmcnt(16)')
    for kb in range(8): a(mf(SM, vr(KM+4*kb,4), vr(Q+4*kb,4), vr(SM,16) if kb else 0))
    E = [SX+i for i in range(16)] + [SM+i for i in range(4)]
    a(f'v_max3_f32 v{mx}, v{E[0]}, v{E[1]}, v{E[2]}')
    for i in range(3, 19, 2): a(f'v_max3_f32 v{mx}, v{mx}, v{E[i]}, v{E[i+1]}')
    a(f'v_max_f32 v{mx}, v{mx}, v{E[19]}')
    a(f'v_mov_b32 v{t0}, v{mx}'); a(f'v_permlane32_swap_b32 v{mx}, v{t0}'); a(f'v_max_f32 v{mx}, v{mx}, v{t0}')
    a(f'v_mul_f32 v{mx}, s{S_M}, v{mx}')
    for e in E: a(f'v_fma_f32 v{e}, v{e}, s{S_M}, -v{mx}')
    for e in E: a(f'v_exp_f32 v{e}, v{e}')
    a(f'v_add_f32 v{t1}, v{E[0]}, v{E[1]}')
    for e in E[2:]: a(f'v_add_f32 v{t1}, v{t1}, v{e}')
    a(f'v_mov_b32 v{t0}, v{t1}'); a(f'v_permlane32_swap_b32 v{t1}, v{t0}'); a(f'v_add_f32 v{t1}, v{t1}, v{t0}')
    a(f'v_rcp_f32 v{t1}, v{t1}')
    for e in E: a(f'v_mul_f32 v{e}, v{e}, v{t1}')
    for i in range(8): a(f'v_cvt_pk_bf16_f32 v{P+i}, v{SX+2*i}, v{SX+2*i+1}')
    for i in range(2): a(f'v_cvt_pk_bf16_f32 v{PM+i}, v{SM+2*i}, v{SM+2*i+1}')
    a('s_waitcnt vmcnt(0)')
    for t in range(4):
        o = OT+16*t
        a(f'v_mfma_f32_32x32x8_bf16 {vr(o,16)}, {vr(VM+2*t,2)}, {vr(PM,2)}, 0')
        for j in range(2): a(mf(o, vr(V+8*t+4*j,4), vr(P+4*j,4), vr(o,16)))
    a('s_barrier')
    for t in range(4):
        for j in range(2):
            o = OT+16*t+8*j
            for i in range(4): a(f'v_cvt_pk_bf16_f32 v{o+i}, v{o+2*i}, v{o+2*i+1}')
            a(f'ds_write_b128 v{xw}, {vr(o,4)} offset:{(2*t+j)*1024}')
    a('s_waitcnt lgkmcnt(0)'); a('s_barrier')
    gemm_core(a, L16, XR, [(ACC, 'a', 0, False)])
    pack_store(a, ACC, vo, S_OUT)
    add64(a, S_OUT, S_OUT, ngr*8*32768); a(f's_add_u32 s{S_XO}, s{S_XO}, {ngr*32768}')
    a(f's_add_u32 s{S_B}, s{S_B}, {ngr}'); a(f's_cmp_lt_u32 s{S_B}, 64'); a(f's_cbranch_scc1 {lp}')
    a.label(end); a('s_endpgm')
    return a.lines
```

```python
from asmlib import *
from layout import *
import math
import chain2 as C
from work import *

S_DBG = 44; S_SLOT = 36; S_TK = 37; S_SPIN = 38; S_PF = 39; S_FO = 40; S_N = 41; S_X = 42; S_SO = 43; S_SV = 46; S_PD = 47; S_LOC = 50; S_DIE = 91
L, L16 = 1, 2
VZ = 10; VF = 11
SPIN_MAX = 0x60000

class Mega:
    def __init__(self, stamps=False, chain_kw={}):
        self.a = Asm(); self.stamps = stamps; self.chain_kw = chain_kw
        self.end = 'Lm_end'; self.TO = 128 if stamps == 2 else 0
        self.tbsleep = chain_kw.pop('tbsleep', 8); self.wsleep = chain_kw.pop('wsleep', 2); self.wrd = chain_kw.pop('wrd', 0); self.ahead = chain_kw.pop('ahead', 0); self.fake = chain_kw.pop('fake', None); self.ct = chain_kw.pop('ct', 0); self.loc = chain_kw.pop('loc', 0); self.lazy = chain_kw.pop('lazy', 0); C.ROT[0] = chain_kw.pop('rot', 0); C.WF[0] = chain_kw.pop('wf', ''); self.attup = chain_kw.pop('attup', 8); self.die = chain_kw.pop('die', 3); self.pasplit = chain_kw.pop('pasplit', 52); self.pfb = chain_kw.pop('pfb', 0); self.kvpos = chain_kw.pop('kvpos', 20); self.perm = chain_kw.pop('perm', 0x65241370)
    def stamp(self, k, hs=None):
        if not self.stamps: return
        a = self.a; l = a.newlabel('Lst')
        if self.stamps == 2:
            kk = self.dmap.get((self.role, k))
            if kk is None: return
            a(f's_cmp_lg_u32 s{S_W}, 0'); a(f's_cbranch_scc1 {l}')
            a('s_memrealtime s[96:97]'); a(f's_load_dwordx2 s[100:101], s[0:1], {KA_DBG}'); a('s_waitcnt lgkmcnt(0)'); a('s_sub_u32 s96, s96, s99')
            a(f's_mov_b32 s98, {4*kk}')
            if hs is not None: a(f's_mul_i32 s97, s{hs}, 12'); a('s_add_u32 s98, s98, s97')
            a('s_mov_b64 exec, 1'); a(f'v_mov_b32 v{self.sv}, s96'); a(f'v_mov_b32 v{self.sv+1}, s98')
            a(f'global_atomic_umax v{self.sv+1}, v{self.sv}, s[100:101] sc1'); a('s_waitcnt vmcnt(0)'); a('s_mov_b64 exec, -1')
            a.label(l); return
        a(f's_cmp_lg_u32 s{S_W}, 0'); a(f's_cbranch_scc1 {l}')
        a('s_memrealtime s[96:97]'); a(f's_lshl_b32 s98, s99, 7'); a(f's_add_u32 s98, s98, {STAMP_OFF + 4*k}'); a('s_waitcnt lgkmcnt(0)')
        if hs is not None: a(f's_lshl_b32 s97, s{hs}, 5'); a('s_add_u32 s98, s98, s97')
        a('s_mov_b64 exec, 1'); a(f'v_writelane_b32 v{self.sv}, s96, 0'); a(f'v_writelane_b32 v{self.sv+1}, s98, 0')
        a(f'v_mov_b32 v{self.sv+1}, s98')
        a(f'global_store_dword v{self.sv+1}, v{self.sv}, s[{S_WS}:{S_WS+1}]'); a('s_waitcnt vmcnt(0)'); a('s_mov_b64 exec, -1')
        a.label(l)
    def mark(self, k, sgpr, val):
        if self.stamps is not True: return
        a = self.a; l = a.newlabel('Lmk')
        a(f's_cmp_lg_u32 s{sgpr}, {val}'); a(f's_cbranch_scc1 {l}')
        a('s_memrealtime s[96:97]'); a('s_waitcnt lgkmcnt(0)'); a(f's_mov_b32 s{70+k}, s96')
        a.label(l)
    def dump_marks(self):
        if self.stamps is not True: return
        a = self.a
        for k in range(16): a(f'v_mov_b32 v{16+k}, s{70+k}')
        a(f's_lshl_b32 s98, s99, 7'); a(f's_add_u32 s98, s98, {STAMP_OFF + 64}'); a('v_mov_b32 v12, s98')
        l = a.newlabel('Lmk'); a(f's_cmp_lg_u32 s{S_W}, 0'); a(f's_cbranch_scc1 {l}')
        for k in range(4): a(f'global_store_dwordx4 v12, {vr(16+4*k,4)}, s[{S_WS}:{S_WS+1}] offset:{16*k}')
        a.label(l)
    def count_wait(self, off, v, fail, st, sp):
        a = self.a; l1 = a.newlabel('Lcw'); l2 = a.newlabel('Lcw')
        a(f's_mov_b32 s{sp}, 0'); a(f'v_mov_b32 v{v+8}, 0')
        a.label(l1)
        for x in range(8): a(f'global_load_dword v{v+x}, v{v+8}, s[{S_DBG}:{S_DBG+1}] offset:{off+16*x} sc1')
        a('s_waitcnt vmcnt(0)')
        a(f'v_add3_u32 v{v+9}, v{v}, v{v+1}, v{v+2}'); a(f'v_add3_u32 v{v+9}, v{v+9}, v{v+3}, v{v+4}'); a(f'v_add3_u32 v{v+9}, v{v+9}, v{v+5}, v{v+6}'); a(f'v_add_u32 v{v+9}, v{v+9}, v{v+7}')
        a(f'v_readfirstlane_b32 s{st}, v{v+9}'); a(f's_cmp_ge_u32 s{st}, 256'); a(f's_cbranch_scc1 {l2}')
        a('s_sleep 4'); a(f's_add_u32 s{sp}, s{sp}, 1'); a(f's_cmp_lt_u32 s{sp}, {SPIN_MAX}'); a(f's_cbranch_scc1 {l1}')
        a(f's_branch {fail}')
        a.label(l2)
    def code_touch(self, v=VZ, sp=48, sh=6):
        if not self.ct: return
        a = self.a
        a(f's_getpc_b64 s[{sp}:{sp+1}]'); a(f's_lshl_b32 s{S_T}, s{S_W}, {6+sh}'); a(f'v_lshl_add_u32 v{v}, v{L}, {sh}, s{S_T}')
        a(f'global_load_dword v{v+1}, v{v}, s[{sp}:{sp+1}]')
    def report(self, v=VZ, st=S_T):
        a = self.a; l = a.newlabel('Lrp')
        a(f's_cmp_lg_u32 s{S_W}, 1'); a(f's_cbranch_scc1 {l}')
        a(f's_lshl_b32 s{st}, s{S_DIE}, 4'); a(f'v_mov_b32 v{v}, s{st}'); a(f'v_mov_b32 v{v+1}, 1')
        a('s_mov_b64 exec, 1'); a(f'global_atomic_add v{v}, v{v+1}, s[{S_DBG}:{S_DBG+1}] offset:132 sc1'); a('s_mov_b64 exec, -1')
        a.label(l)
    def local_check(self):
        a = self.a
        x = [i for i in range(8) if (self.perm >> (4*i)) & 7 == 7][0]
        self.count_wait(self.TO, 12, self.end, S_T, S_SPIN)
        a(f'v_readfirstlane_b32 s{S_T}, v{12+x}'); a(f's_cmp_ge_u32 s{S_T}, 32'); a(f's_cselect_b32 s{S_LOC}, {0 if (self.chain_kw.get("force_slow") or not self.loc) else 1}, 0')
    def dual(self, emit):
        a = self.a; l1 = a.newlabel('Ld'); l2 = a.newlabel('Ld')
        a(f's_cmp_eq_u32 s{S_LOC}, 1'); a(f's_cbranch_scc1 {l1}')
        emit('sc1'); a(f's_branch {l2}')
        a.label(l1); emit(''); a.label(l2)
    def flags_ready(self): self.count_wait(132, 12, self.end, S_T, S_SPIN)
    def flag_off(self, base, idx_sgpr, sh=2):
        self.a(f's_lshl_b32 s{S_FO}, s{idx_sgpr}, {sh}'); self.a(f's_add_u32 s{S_FO}, s{S_FO}, {base}')
    def flag_issue(self, n):
        a = self.a
        a(f'v_min_u32 v{VZ}, {n-1}, v{L}'); a(f'v_lshl_add_u32 v{VZ}, v{VZ}, 8, s{S_FO}'); a(f'global_load_dword v{VF}, v{VZ}, s[{S_WS}:{S_WS+1}] sc1')
    def wait(self, n, sleep=None, mask=None, sh=8, thr=None, keep=None, lazy=None, extra=None):
        a = self.a; l1 = a.newlabel('Lw'); l2 = a.newlabel('Lw')
        a(f's_mov_b32 s{S_SPIN}, 0')
        a(f'v_min_u32 v{VZ}, {n-1}, v{L}'); a(f'v_lshl_add_u32 v{VZ}, v{VZ}, {sh}, s{S_FO}')
        if extra is not None:
            a(f's_lshl_b32 s{S_X}, s{extra}, {sh}'); a(f's_add_u32 s{S_X}, s{S_X}, s{S_FO}'); a(f's_add_u32 s{S_X}, s{S_X}, 16'); a(f'v_writelane_b32 v{VZ}, s{S_X}, 63')
        a.label(l1)
        a(f'global_load_dword v{VF}, v{VZ}, s[{S_WS}:{S_WS+1}] sc1'); a('s_waitcnt vmcnt(0)')
        a(f'v_cmp_eq_u32 vcc, 0, v{VF}' if thr is None else f'v_cmp_gt_u32 vcc, {thr}, v{VF}')
        if keep: a('s_cmp_eq_u64 vcc, 0'); a(f's_cselect_b32 s{keep}, 1, 0')
        if mask is None: a(f's_cbranch_vccz {l2}')
        else: a(f's_and_b64 vcc, vcc, s[{mask}:{mask+1}]'); a(f's_cbranch_scc0 {l2}')
        a(f's_sleep {sleep or self.wsleep}')
        if lazy is not None and self.lazy:
            l3 = a.newlabel('Lw'); a(f's_cmp_ge_u32 s{lazy}, 60'); a(f's_cbranch_scc1 {l3}'); a(f's_sleep {self.lazy}'); a.label(l3)
        a(f's_add_u32 s{S_SPIN}, s{S_SPIN}, 1'); a(f's_cmp_lt_u32 s{S_SPIN}, {SPIN_MAX}'); a(f's_cbranch_scc1 {l1}')
        a(f's_branch {self.end}')
        a.label(l2)
    def set_word(self, base, line_sgpr, word_sgpr, s1=2, s2=8):
        a = self.a
        a(f's_lshl_b32 s{S_SO}, s{line_sgpr}, {s1}'); a(f's_lshl_b32 s{S_X}, s{word_sgpr}, {s2}'); a(f's_add_u32 s{S_SO}, s{S_SO}, s{S_X}'); a(f's_add_u32 s{S_SO}, s{S_SO}, {base}')
    def wsignal(self, val=None, loc=False):
        a = self.a
        a(f'v_mov_b32 v{VZ}, s{S_SO}'); a(f'v_mov_b32 v{VF}, {"s%d" % val if val else "1"}')
        st = lambda f: a(f'global_store_dword v{VZ}, v{VF}, s[{S_WS}:{S_WS+1}] {f}')
        a('s_mov_b64 exec, 1')
        if loc: self.dual(st)
        else: st('sc1')
        a('s_mov_b64 exec, -1')
    def signal_wg(self, loc=False):
        a = self.a; l = a.newlabel('Ls')
        a('s_waitcnt vmcnt(0)'); a('s_barrier'); a(f's_cmp_lg_u32 s{S_W}, 0'); a(f's_cbranch_scc1 {l}')
        self.wsignal(loc=loc); a.label(l)

    def stream(self, ngr, xsrc, inflag, nin, tiles, epilogue, nst, outflag, store, mk=None, pre=None):
        a = self.a; xa = 9; XR = 12
        lp = a.newlabel('Lg_loop'); have = a.newlabel('Lg_have'); go = a.newlabel('Lg_go'); fetch = a.newlabel('Lg_fetch'); done = a.newlabel('Lg_done')
        a(f's_lshl_b32 s{S_XO}, s{S_B}, 15'); a(f's_add_u32 s{S_XO}, s{S_XO}, {xsrc}'); a(f's_mov_b32 s{S_BUF}, {128*1024}')
        a('s_barrier')
        a.label(fetch)
        a(f's_mov_b32 s{S_PD}, 0')
        if inflag is not None:
            self.flag_off(inflag, S_B); self.wait(nin)
        if mk: self.mark(mk[0], S_B, mk[1])
        dma_x(a, L16, S_XO, S_BUF, 'sc1')
        a('s_waitcnt vmcnt(0)')
        a.label(go)
        a('s_barrier')
        if mk: self.mark(mk[0]+1, S_B, mk[1])
        if pre: pre()
        a(f'v_add_u32 v{xa}, s{S_BUF}, v{L16}')
        a(f's_add_u32 s{S_TK}, s{S_B}, {ngr}'); a(f's_xor_b32 s{S_BUF}, s{S_BUF}, {128*1024}'); a(f's_add_u32 s{S_XO}, s{S_XO}, {ngr*32768}')
        if inflag is not None:
            a(f's_min_u32 s{S_T}, s{S_TK}, 63'); self.flag_off(inflag, S_T); self.flag_issue(nin)
        def pref():
            np_ = a.newlabel('Lg_np')
            a('s_waitcnt vmcnt(0)')
            a(f'v_cmp_eq_u32 s[{S_K0}:{S_K0+1}], 0, v{VF}')
            a(f's_cmp_eq_u32 s{S_PD}, 0'); a(f's_cbranch_scc1 {np_}')
            self.wsignal(S_SV if store else None)
            a.label(np_)
        def pref2():
            sk = a.newlabel('Lg_sk')
            a(f's_mov_b32 s{S_PF}, 0')
            a(f's_cmp_ge_u32 s{S_TK}, 64'); a(f's_cbranch_scc1 {sk}')
            a(f's_cmp_lg_u64 s[{S_K0}:{S_K0+1}], 0'); a(f's_cbranch_scc1 {sk}')
            dma_x(a, L16, S_XO, S_BUF, 'sc1'); a(f's_mov_b32 s{S_PF}, 1')
            a.label(sk)
        gemm_core(a, xa, XR, tiles, {30: pref})
        epilogue(pref2)
        if mk: self.mark(mk[0]+2, S_B, mk[1])
        outflag()
        add64(a, S_OUT, S_OUT, ngr*32768)
        a(f's_mov_b32 s{S_B}, s{S_TK}')
        a(f's_cmp_eq_u32 s{S_PF}, 0'); a(f's_cbranch_scc1 {have}')
        first = a.newlabel('Lg_first')
        a(f's_cmp_lt_u32 s{S_B}, {2*ngr}'); a(f's_cbranch_scc1 {first}')
        a(f's_mov_b32 s{S_PD}, 1'); a(f's_waitcnt vmcnt({nst})'); a(f's_branch {go}')
        a.label(first)
        a('s_waitcnt vmcnt(0)'); self.wsignal(S_SV if store else None)
        if mk: self.mark(mk[0]+3, S_B, mk[1]+ngr)
        a(f's_mov_b32 s{S_PD}, 0'); a(f's_branch {go}')
        a.label(have)
        a('s_waitcnt vmcnt(0)'); self.wsignal(S_SV if store else None)
        if mk: self.mark(mk[0]+3, S_B, mk[1]+ngr)
        a(f's_cmp_lt_u32 s{S_B}, 64'); a(f's_cbranch_scc1 {fetch}')
        a('s_barrier')

    def proj_weights(self, isB, share=None, early=None, sel=(0, 1, 2), first=None):
        a = self.a
        a(f's_lshl_b32 s{S_OFF}, s{S_A}, 8')
        if isB: mats = [(KA_WK, 4*MB, 0, 'a', 128), (KA_WV, 4*MB, 0, 'v', 128), (KA_WQ, 4*MB, 0, 'a', 0)]; stride = 8192
        else: mats = [(KA_WQKV, 1536*1024, 1024, 'a', 128), (KA_WQKV, 1536*1024, 2048, 'v', 128), (KA_WQKV, 1536*1024, 0, 'a', 0)]; stride = 3072
        load_wslices(a, [mats[i] for i in sel], stride, L, 3, 4, 5, share, early, first)
    def proj_run(self, half, isB, ngr, nowait=False, mode='kvq'):
        a = self.a; H = W.H[half]
        if not nowait: self.code_touch()
        t0, t1, vq, vk, vv = 3, 4, 6, 7, 8; ACC = 28
        ro = (HB_Q, HB_K, HB_V) if isB else (0, H.KA - H.QA, H.VA - H.QA)
        a(f's_lshl_b32 s{S_T}, s{S_W}, 11')
        a(f's_add_u32 s{S_T2}, s{S_T}, {ro[0]}'); a(f'v_add_u32 v{vq}, s{S_T2}, v{L16}')
        a(f's_add_u32 s{S_T2}, s{S_T}, {ro[1]}'); a(f'v_add_u32 v{vk}, s{S_T2}, v{L16}')
        pi_of(a, t0, L, t1); vpos16(a, vv, t0, L, t1)
        a(f's_add_u32 s{S_T2}, s{S_T}, {ro[2]}'); a(f'v_add_u32 v{vv}, s{S_T2}, v{vv}')
        a(f's_lshl_b32 s{S_T}, s{S_A}, {21 if isB else 13}'); a(f's_lshl_b32 s{S_T2}, s{S_B}, 15'); a(f's_add_u32 s{S_T}, s{S_T}, s{S_T2}')
        a(f's_add_u32 s{S_T}, s{S_T}, {H.HB if isB else H.QA}'); add64(a, S_OUT, S_WS, f's{S_T}')
        a(f's_mov_b32 s{S_M}, {f2u(0.25*math.log2(math.e)):#x}')
        xa = 9; XR = 12; inflag = FL(half, 'XNB' if isB else 'XNA'); mk = (0, 0 if isB else 63) if half == 1 else ((8, 0) if isB else None)
        go = a.newlabel('Lp_go'); fetch = a.newlabel('Lp_fetch'); have = a.newlabel('Lp_have')
        a(f's_lshl_b32 s{S_XO}, s{S_B}, 15'); a(f's_add_u32 s{S_XO}, s{S_XO}, {H.XNB if isB else H.XNA}'); a(f's_mov_b32 s{S_BUF}, {128*1024}')
        a(f's_mov_b32 s{S_PD}, 0')
        a('s_barrier')
        if nowait: a(f's_branch {go}')
        a.label(fetch)
        self.flag_off(inflag, S_B); self.wait(16 if isB else 8, lazy=None if isB else S_B)
        if mk: self.mark(mk[0], S_B, mk[1])
        dma_x(a, L16, S_XO, S_BUF, 'sc1')
        a('s_waitcnt vmcnt(0)')
        a.label(go)
        a('s_barrier')
        if mk: self.mark(mk[0]+1, S_B, mk[1])
        a(f'v_add_u32 v{xa}, s{S_BUF}, v{L16}')
        a(f's_add_u32 s{S_TK}, s{S_B}, {ngr}'); a(f's_xor_b32 s{S_BUF}, s{S_BUF}, {128*1024}'); a(f's_add_u32 s{S_XO}, s{S_XO}, {ngr*32768}')
        if not nowait: a(f's_min_u32 s{S_T}, s{S_TK}, 63'); self.flag_off(inflag, S_T); self.flag_issue(16 if isB else 8)
        def word():
            if isB:
                a(f's_and_b32 s{S_T}, s{S_B}, 1'); a(f's_lshl_b32 s{S_T}, s{S_T}, 2'); a(f's_add_u32 s{S_T}, s{S_T}, s{S_W}')
                self.set_word(FL(half, "HEAD"), S_A, S_T, 8, 5)
            else:
                a(f's_lshl_b32 s{S_T}, s{S_A}, 2'); a(f's_add_u32 s{S_T}, s{S_T}, s{S_W}'); self.set_word(FL(half, "QKVA"), S_T, S_B, 11, 5)
        def late():
            l = a.newlabel('Lp_q'); a(f's_cmp_eq_u32 s{S_PD}, 0'); a(f's_cbranch_scc1 {l}')
            self.wsignal(); a(f's_mov_b32 s{S_PD}, 0'); a.label(l)
        def pref():
            sk = a.newlabel('Lp_sk')
            a('s_waitcnt vmcnt(0)'); a(f'v_cmp_eq_u32 vcc, 0, v{VF}')
            if not isB: late()
            a(f's_mov_b32 s{S_PF}, 0')
            a(f's_cmp_ge_u32 s{S_TK}, 64'); a(f's_cbranch_scc1 {sk}')
            if not nowait: a(f's_cbranch_vccnz {sk}')
            dma_x(a, L16, S_XO, S_BUF, 'sc1'); a(f's_mov_b32 s{S_PF}, 1')
            a.label(sk)
        def half_store(acc, ad, j):
            for i in range(4): a(f'v_cvt_pk_bf16_f32 v{acc+8*j+i}, v{acc+8*j+2*i}, v{acc+8*j+2*i+1}')
            a(f'global_store_dwordx4 v{ad}, {vr(acc+8*j,4)}, s[{S_OUT}:{S_OUT+1}] offset:{1024*j} sc1')
        def kvsig():
            if mk: self.mark(mk[0]+2, S_B, mk[1])
            word(); a('s_waitcnt vmcnt(0)'); self.wsignal(S_TK if isB else None)
            if not isB: a('s_mov_b64 exec, 1'); a(f'global_store_dword v{VZ}, v{VF}, s[{S_WS}:{S_WS+1}] offset:8 sc1'); a('s_mov_b64 exec, -1')
            if mk: self.mark(mk[0]+3, S_B, mk[1])
        kvs = [lambda: half_store(ACC+16, vk, 0), lambda: half_store(ACC+16, vk, 1), lambda: half_store(ACC+32, vv, 0), lambda: half_store(ACC+32, vv, 1)]
        if mode != 'q': gemm_core(a, xa, XR, [(ACC+16, 'a', 128, False), (ACC+32, 'v', 128, True)], {18: pref})
        if mode == 'kvq': gemm_core(a, xa, XR, [(ACC, 'a', 0, False)], {0: kvs[0], 1: kvs[1], 2: kvs[2], 3: kvs[3], self.kvpos: kvsig})
        if mode == 'q':
            def p0():
                sk = a.newlabel('Lp_sk'); a(f's_mov_b32 s{S_PF}, 0'); a(f's_cmp_ge_u32 s{S_TK}, 64'); a(f's_cbranch_scc1 {sk}')
                dma_x(a, L16, S_XO, S_BUF, 'sc1'); a(f's_mov_b32 s{S_PF}, 1'); a.label(sk)
            gemm_core(a, xa, XR, [(ACC, 'a', 0, False)], {0: p0, 30: lambda: (a('s_waitcnt vmcnt(0)'), late())})
        if mode == 'kv':
            for f in kvs: f()
        else: pack_store(a, ACC, vq, S_OUT, 'sc1', scale=None if isB else S_M)
        if not isB:
            if mode != 'kvq': word()
            if mode != 'kv': a(f's_add_u32 s{S_SO}, s{S_SO}, 16')
        add64(a, S_OUT, S_OUT, ngr*32768)
        a(f's_mov_b32 s{S_B}, s{S_TK}'); a(f's_mov_b32 s{S_PD}, 1')
        if mode == 'kv': a('s_waitcnt vmcnt(4)')
        a(f's_cmp_lg_u32 s{S_PF}, 0'); a(f's_cbranch_scc1 {go}')
        if not isB: a('s_waitcnt vmcnt(0)'); late()
        a(f's_cmp_lt_u32 s{S_B}, 64'); a(f's_cbranch_scc1 {fetch}')
        if isB:
            a('s_waitcnt vmcnt(0)'); a(f's_add_u32 s{S_SV}, s{S_B}, 2'); self.wsignal(S_SV)
        a('s_barrier')
    def woa_run(self, half, ngr):
        a = self.a; H = W.H[half]
        self.code_touch()
        t0, t1, sm, vo, vx, vs = 3, 4, 5, 6, 7, 8; ACC = 28; X = 44; G = 52; SP = 68; mu = 70
        a(f's_lshl_b32 s{S_T}, s{S_W}, 11'); a(f's_lshl_b32 s{S_T2}, s{S_A}, 13'); a(f's_add_u32 s{S_T}, s{S_T}, s{S_T2}'); a(f'v_add_u32 v{vo}, s{S_T}, v{L16}')
        if half == 0:
            a(f's_load_dwordx2 s[{S_P}:{S_P+1}], s[0:1], {KA_X}')
            a(f'v_and_b32 v{t0}, 31, v{L}'); a(f'v_lshlrev_b32 v{vx}, 10, v{t0}'); a(f'v_lshrrev_b32 v{t0}, 5, v{L}'); a(f'v_lshl_add_u32 v{vx}, v{t0}, 4, v{vx}')
            a(f's_lshr_b32 s{S_T}, s{S_T}, 5'); a(f'v_add_u32 v{vx}, s{S_T}, v{vx}'); a('s_waitcnt lgkmcnt(0)')
        else:
            add64(a, S_P, S_WS, W.H[0].X2); a(f'v_mov_b32 v{vx}, v{vo}')
        a(f's_lshl_b32 s{S_T2}, s{S_B}, 15'); add64(a, S_P, S_P, f's{S_T2}')
        a(f's_add_u32 s{S_T}, s{S_T2}, {H.X1}'); add64(a, S_OUT, S_WS, f's{S_T}')
        a(f'v_and_b32 v{t0}, 31, v{L}'); a(f'v_lshlrev_b32 v{vs}, 3, v{t0}'); a(f'v_lshrrev_b32 v{t0}, 5, v{L}'); a(f'v_lshl_add_u32 v{vs}, v{t0}, 11, v{vs}')
        a(f's_mov_b32 s{S_M}, 0xffff0000')
        def pre():
            for j in range(2): a(f'global_load_dwordx4 {vr(X+4*j,4)}, v{vx}, s[{S_P}:{S_P+1}] offset:{(32 if half == 0 else 1024)*j} {"" if half == 0 else "sc1"}')
            add64(a, S_P, S_P, ngr*32768)
            a(f's_lshl_b32 s{S_T}, s{S_B}, 12'); a(f's_add_u32 s{S_T}, s{S_T}, {W.ST + half*262144}'); add64(a, S_IN, S_WS, f's{S_T}')
            l = a.newlabel('Lwt'); a(f's_cmp_lg_u32 s{S_LOC}, 1'); a(f's_cbranch_scc1 {l}')
            a(f'v_lshlrev_b32 v{t0}, 6, v{L}'); a(f'global_load_dword v{t1}, v{t0}, s[{S_IN}:{S_IN+1}] sc1'); a.label(l)
        def rbf(r): a(f'v_cvt_pk_bf16_f32 v{r}, v{r}, v{r}'); a(f'v_and_b32 v{r}, s{S_M}, v{r}')
        def halves(regs):
            for x, t in zip(regs, (t0, t1)): a(f'v_mov_b32 v{t}, v{x}')
            for x, t in zip(regs, (t0, t1)): a(f'v_permlane32_swap_b32 v{x}, v{t}')
            for x, t in zip(regs, (t0, t1)): a(f'v_add_f32 v{x}, v{x}, v{t}')
        def epi(pref2):
            a(f's_lshl_b32 s{S_T}, s{S_A}, 2'); a(f's_add_u32 s{S_T}, s{S_T}, s{S_W}'); a(f's_lshl_b32 s{S_T2}, s{S_T}, 8')
            self.set_word(FL(half, "XNB"), S_B, S_T)
            for d in range(8):
                e = ACC+2*d
                a(f'v_cvt_pk_bf16_f32 v{t1}, v{e}, v{e+1}'); a(f'v_lshlrev_b32 v{e}, 16, v{X+d}'); a(f'v_and_b32 v{e+1}, s{S_M}, v{X+d}')
                a(f'v_lshlrev_b32 v{t0}, 16, v{t1}'); a(f'v_and_b32 v{t1}, s{S_M}, v{t1}')
                a(f'v_add_f32 v{e}, v{e}, v{t0}'); a(f'v_add_f32 v{e+1}, v{e+1}, v{t1}')
                a(f'v_cvt_pk_bf16_f32 v{X+d}, v{e}, v{e+1}')
                a(f'v_lshlrev_b32 v{e}, 16, v{X+d}'); a(f'v_and_b32 v{e+1}, s{S_M}, v{X+d}')
                if d == 0: a(f'v_add_f32 v{SP}, v{e}, v{e+1}'); a(f'v_mul_f32 v{SP+1}, v{e}, v{e}')
                else: a(f'v_add_f32 v{SP}, v{SP}, v{e}'); a(f'v_add_f32 v{SP}, v{SP}, v{e+1}'); a(f'v_fmac_f32 v{SP+1}, v{e}, v{e}')
                a(f'v_fmac_f32 v{SP+1}, v{e+1}, v{e+1}')
            halves((SP, SP+1))
            a(f'v_or_b32 v{SP+1}, 1, v{SP+1}'); a(f'v_add_u32 v{t0}, s{S_T2}, v{vs}')
            a('s_mov_b32 exec_hi, 0'); self.dual(lambda f: a(f'global_store_dwordx2 v{t0}, {vr(SP,2)}, s[{S_IN}:{S_IN+1}] {f}')); a('s_mov_b32 exec_hi, -1')
            a('s_waitcnt vmcnt(0)')
            l1 = a.newlabel('Lwr'); l2 = a.newlabel('Lwr')
            a(f's_mov_b32 s{S_SPIN}, 0')
            a.label(l1)
            for p in range(8): a(f'global_load_dwordx2 {vr(G+2*p,2)}, v{vs}, s[{S_IN}:{S_IN+1}] offset:{256*p} sc1')
            a('s_waitcnt vmcnt(0)')
            a(f'v_bitop3_b32 v{t0}, v{G+1}, v{G+3}, v{G+5} bitop3:0x80'); a(f'v_bitop3_b32 v{t1}, v{G+7}, v{G+9}, v{G+11} bitop3:0x80')
            a(f'v_bitop3_b32 v{t0}, v{t0}, v{G+13}, v{G+15} bitop3:0x80'); a(f'v_bitop3_b32 v{t0}, v{t0}, v{t1}, 1 bitop3:0x80')
            a(f'v_cmp_eq_u32 vcc, 0, v{t0}'); a(f's_cbranch_vccz {l2}')
            a(f's_add_u32 s{S_SPIN}, s{S_SPIN}, 1'); a(f's_cmp_lt_u32 s{S_SPIN}, {SPIN_MAX}'); a(f's_cbranch_scc1 {l1}')
            a(f's_branch {self.end}')
            a.label(l2)
            pref2()
            for j in range(2): a(f'global_store_dwordx4 v{vo}, {vr(X+4*j,4)}, s[{S_OUT}:{S_OUT+1}] offset:{1024*j} sc1')
            for st in (8, 4, 2):
                for i in range(0, st, 2): a(f'v_pk_add_f32 {vr(G+i,2)}, {vr(G+i,2)}, {vr(G+i+st,2)}')
            halves((G, G+1))
            a(f'v_mul_f32 v{mu}, {f2u(1/512):#x}, v{G}'); a(f'v_mul_f32 v{sm}, {f2u(1/512):#x}, v{G+1}')
            a(f'v_fma_f32 v{sm}, -v{mu}, v{mu}, v{sm}'); a(f'v_max_f32 v{sm}, 0, v{sm}')
            rbf(sm); a(f'v_add_f32 v{sm}, {f2u(1e-5):#x}, v{sm}'); rbf(sm)
            a(f'v_sqrt_f32 v{sm}, v{sm}'); rbf(sm); a(f'v_rcp_f32 v{sm}, v{sm}'); rbf(mu)
            add64(a, S_IN, S_OUT, H.XNB - H.X1) if H.XNB > H.X1 else (a(f's_sub_u32 s{S_IN}, s{S_OUT}, {H.X1 - H.XNB}'), a(f's_subb_u32 s{S_IN+1}, s{S_OUT+1}, 0'))
            for d in range(8):
                e = ACC+2*d
                a(f'v_sub_f32 v{t0}, v{e}, v{mu}'); a(f'v_sub_f32 v{t1}, v{e+1}, v{mu}'); a(f'v_cvt_pk_bf16_f32 v{t1}, v{t0}, v{t1}')
                a(f'v_lshlrev_b32 v{t0}, 16, v{t1}'); a(f'v_and_b32 v{t1}, s{S_M}, v{t1}')
                a(f'v_mul_f32 v{t0}, v{t0}, v{sm}'); a(f'v_mul_f32 v{t1}, v{t1}, v{sm}'); a(f'v_cvt_pk_bf16_f32 v{G+d}, v{t0}, v{t1}')
                if d % 4 == 3: a(f'global_store_dwordx4 v{vo}, {vr(G+d-3,4)}, s[{S_IN}:{S_IN+1}] offset:{1024*(d//4)} sc1')
        self.stream(ngr, H.OA, FL(half, 'OA'), 32, [(ACC, 'v', 128, False)], epi, 4, lambda: None, False, mk=(0, 0) if half == 1 else (8, 0), pre=pre)
    def rb_run(self, half, ngr):
        a = self.a; H = W.H[half]
        mk = (4, 63) if half == 0 else None
        def task(nl):
            def ready():
                self.flag_off(FL(half, 'PT'), S_A); self.wait(32, lazy=S_A)
                if mk: self.mark(mk[0], S_A, mk[1])
            if half == 0: rb_body(a, 8, H.X1, False, H.PT, 32768, 8*32768, H.X2, False, W.H[1].XNA, 'sc1', 'sc1', ready, nl=nl)
            else: rb_body(a, 8, H.X1, False, H.PT, 32768, 8*32768, KA_OUT, True, None, 'sc1', 'sc1', ready, nl=nl)
            if half == 0:
                if mk: self.mark(mk[0]+2, S_A, mk[1])
                l = a.newlabel('Ls')
                a('s_waitcnt vmcnt(0)'); a('s_barrier'); a(f's_cmp_ge_u32 s{S_W}, {nl}'); a(f's_cbranch_scc1 {l}')
                a(f's_mul_i32 s{S_T}, s{S_B}, {nl}'); a(f's_add_u32 s{S_T}, s{S_T}, s{S_W}'); self.set_word(FL(1, 'XNA'), S_A, S_T); self.wsignal()
                a.label(l)
                if mk: self.mark(mk[0]+3, S_A, mk[1])
        lp = a.newlabel('Lr_loop'); done = a.newlabel('Lr_done'); a.label(lp)
        task(2)
        a(f's_add_u32 s{S_A}, s{S_A}, {ngr}'); a(f's_cmp_lt_u32 s{S_A}, 63'); a(f's_cbranch_scc1 {lp}')
        a(f's_cmp_gt_u32 s{S_A}, 64'); a(f's_cbranch_scc1 {done}')
        a(f's_lshl_b32 s{S_B}, s{S_B}, 1'); a(f's_sub_u32 s{S_T}, s{S_A}, 63'); a(f's_add_u32 s{S_B}, s{S_B}, s{S_T}'); a(f's_mov_b32 s{S_A}, 63')
        task(1)
        a.label(done)

    def att_run(self, half, npg):
        a = self.a; H = W.H[half]
        self.code_touch()
        t0, t1, t2, ak, av, idx, lw = range(3, 10); mx = 204
        Q = 12; QN = 16; K0 = 20; Cc = 24; O = 40; D = [56, 72, 88]; KF = 104; MG = 168
        pi_of(a, t0, L, t1)
        a(f'v_and_b32 v{t1}, 32, v{L}'); a(f'v_add_u32 v{ak}, v{t0}, v{t1}'); a(f'v_lshlrev_b32 v{ak}, 4, v{ak}')
        a(f'v_and_b32 v{t0}, 15, v{t0}'); a(f's_and_b32 s{S_T}, s{S_A}, 1'); a(f's_lshl_b32 s{S_T}, s{S_T}, 4'); a(f'v_add_u32 v{t0}, s{S_T}, v{t0}')
        vpos16(a, av, t0, L, t1)
        a(f'v_mov_b32 v{idx}, 0xdddd')
        a(f's_mul_i32 s{S_T}, s{S_W}, 3072'); a(f'v_add_u32 v{lw}, s{S_T}, v{L16}')
        a(f's_lshr_b32 s{S_T}, s{S_A}, 1'); self.flag_off(FL(half, 'QKVA'), S_T, 11)
        KM_, QM_ = 52, 54
        fa = 205
        a(f'v_lshl_add_u32 v{fa}, v{L}, 5, s{S_FO}')
        a(f's_mov_b64 s[{KM_}:{KM_+1}], -1'); a(f's_mov_b64 s[{QM_}:{QM_+1}], -1')
        def need(km, qm):
            l1 = a.newlabel('La_n'); l2 = a.newlabel('La_n'); l3 = a.newlabel('La_n')
            a(f's_mov_b32 s{S_SPIN}, 0')
            a.label(l3)
            tests = [(m, k) for m, k in ((km, KM_), (qm, QM_)) if m is not None]
            for i, (m, k) in enumerate(tests):
                a(f's_and_b64 vcc, s[{m}:{m+1}], s[{k}:{k+1}]'); a(f's_cbranch_scc0 {l2}' if i == len(tests)-1 else f's_cbranch_scc1 {l1}')
            a.label(l1)
            ls = a.newlabel('La_n'); a(f's_cmp_eq_u32 s{S_SPIN}, 0'); a(f's_cbranch_scc1 {ls}'); a(f's_sleep {self.wsleep}'); a.label(ls)
            a(f'global_load_dword v{VZ}, v{fa}, s[{S_WS}:{S_WS+1}] sc1'); a(f'global_load_dword v{VF}, v{fa}, s[{S_WS}:{S_WS+1}] offset:16 sc1')
            if half: a(f'global_load_dword v{fa+1}, v{fa}, s[{S_WS}:{S_WS+1}] offset:8 sc1')
            a('s_waitcnt vmcnt(0)')
            if half: a(f'v_and_b32 v{VZ}, v{VZ}, v{fa+1}')
            a(f'v_cmp_eq_u32 s[{KM_}:{KM_+1}], 0, v{VZ}'); a(f'v_cmp_eq_u32 s[{QM_}:{QM_+1}], 0, v{VF}')
            a(f's_add_u32 s{S_SPIN}, s{S_SPIN}, 1'); a(f's_cmp_lt_u32 s{S_SPIN}, {SPIN_MAX}'); a(f's_cbranch_scc1 {l3}')
            a(f's_branch {self.end}')
            a.label(l2)
        def qwait(blk): a(f's_lshl_b64 s[{S_P}:{S_P+1}], 1, s{blk}'); need(None, S_P)
        a(f's_mov_b32 s56, -1'); a(f's_mov_b32 s57, {0x00ffffff if half else 0xffffffff:#x}'); a(f's_lshl_b64 s[{S_P}:{S_P+1}], 1, s{S_B}'); need(56, S_P)
        self.stamp(2 + 8*half)
        a(f's_lshl_b32 s{S_T}, s{S_A}, 10'); a(f's_lshl_b32 s{S_T2}, s{S_B}, 15'); a(f's_add_u32 s{S_T2}, s{S_T2}, s{S_T}')
        a(f's_add_u32 s{S_T3}, s{S_T2}, {H.QA}'); add64(a, S_IN, S_WS, f's{S_T3}')
        a(f's_add_u32 s{S_T3}, s{S_T2}, {H.OA}'); add64(a, S_OUT, S_WS, f's{S_T3}')
        a(f'global_load_dwordx4 {vr(QN,4)}, v{L16}, s[{S_IN}:{S_IN+1}] sc1')
        a(f's_add_u32 s{S_K0}, s{S_T}, {H.KA}')
        a(f'buffer_load_dwordx4 {vr(K0,4)}, v{ak}, s[{S_WSRD}:{S_WSRD+3}], s{S_K0} offen sc1')
        a(f's_lshl_b32 s{S_T2}, s{S_W}, 15'); a(f's_add_u32 s{S_K0}, s{S_K0}, s{S_T2}')
        a(f's_lshr_b32 s{S_K1}, s{S_A}, 1'); a(f's_lshl_b32 s{S_K1}, s{S_K1}, 11'); a(f's_add_u32 s{S_K1}, s{S_K1}, s{S_T2}'); a(f's_add_u32 s{S_K1}, s{S_K1}, {H.VA}')
        a(f's_mov_b32 s{S_M}, 0x0000ffff'); a(f's_mov_b32 s{S_M+1}, 0x0000ffff')
        def kv_tile(t):
            a(f's_add_u32 s{S_T}, s{S_K0}, {t*131072}')
            a(f'buffer_load_dwordx4 {vr(KF+4*t,4)}, v{ak}, s[{S_WSRD}:{S_WSRD+3}], s{S_T} offen sc1')
            a(f's_add_u32 s{S_T}, s{S_K1}, {t*131072}')
            a(f's_mov_b64 exec, s[{S_M}:{S_M+1}]')
            for b in range(2): a(f'buffer_load_dwordx4 {vr(8*t+4*b,4,"a")}, v{av}, s[{S_WSRD}:{S_WSRD+3}], s{S_T} offen offset:{1024*b} sc1')
            a('s_mov_b64 exec, -1')
        def late_tile(t):
            if half == 0: return
            l = a.newlabel('La_lt'); a(f's_bitcmp0_b32 s{S_PD}, {t-14}'); a(f's_cbranch_scc1 {l}')
            a(f's_add_u32 s{S_T}, s{S_W}, {4*t}'); a(f's_lshl_b64 s[{S_P}:{S_P+1}], 1, s{S_T}')
            need(S_P, None)
            if t == 15: self.mark(0, S_B, 0)
            kv_tile(t); a('s_waitcnt vmcnt(0)')
            a(f's_bitset0_b32 s{S_PD}, {t-14}')
            a.label(l)
        NT = 14 if half else 16
        a(f's_mov_b32 s{S_PD}, 3')
        if half:
            for t in (14, 15):
                l = a.newlabel('La_et'); a(f's_add_u32 s{S_T}, s{S_W}, {4*t}'); a(f's_bitcmp1_b64 s[{KM_}:{KM_+1}], s{S_T}'); a(f's_cbranch_scc1 {l}')
                kv_tile(t); a(f's_bitset0_b32 s{S_PD}, {t-14}'); a.label(l)
        UP = self.attup
        for t in range(UP): kv_tile(t)
        a(f's_mov_b32 s{S_BUF}, 0'); a(f's_mov_b32 s{S_CNT}, 0'); a(f's_mov_b32 s{S_PF}, 0')
        a('s_barrier')
        lp = a.newlabel('La_loop'); run = a.newlabel('La_run'); slow = a.newlabel('La_slow'); nom = a.newlabel('La_nom'); noq = a.newlabel('La_noq'); out = a.newlabel('La_out')
        def rowmax(src, first):
            if first: a(f'v_max3_f32 v{mx}, v{src}, v{src+1}, v{src+2}'); rest = list(range(3, 16))
            else: rest = list(range(16))
            while len(rest) >= 2:
                a(f'v_max3_f32 v{mx}, v{mx}, v{src+rest[0]}, v{src+rest[1]}'); rest = rest[2:]
            if rest: a(f'v_max_f32 v{mx}, v{mx}, v{src+rest[0]}')
        def halfmax():
            a(f'v_mov_b32 v{t0}, v{mx}'); a(f'v_permlane32_swap_b32 v{mx}, v{t0}'); a(f'v_max_f32 v{mx}, v{mx}, v{t0}')
        def pending():
            l = a.newlabel('La_p'); a(f's_cmp_eq_u32 s{S_PF}, 0'); a(f's_cbranch_scc1 {l}')
            a('s_waitcnt vmcnt(0)'); self.wsignal(); a(f's_mov_b32 s{S_PF}, 0')
            if half: self.mark(3, S_B, 0)
            a.label(l)
        def pv(t, b): a(f'v_smfmac_f32_32x32x32_bf16 {vr(O,16)}, {vr(8*t+4*b,4,"a")}, {vr(D[t%3]+8*b,8)}, v{idx}')
        def nextq():
            noq = a.newlabel('La_noq')
            a(f's_cmp_ge_u32 s{S_TK}, 64'); a(f's_cbranch_scc1 {noq}')
            qwait(S_TK)
            a(f'global_load_dwordx4 {vr(QN,4)}, v{L16}, s[{S_IN}:{S_IN+1}] sc1')
            a.label(noq)
        def block(first):
            for i in range(4): a(f'v_mov_b32 v{Q+i}, v{QN+i}')
            a(f's_add_u32 s{S_TK}, s{S_B}, {npg}'); add64(a, S_IN, S_IN, npg*32768)
            a(mf(D[0], vr(K0,4), vr(Q,4), 0))
            for i in range(16): a(f'v_mov_b32 v{O+i}, 0')
            rowmax(D[0], True); halfmax()
            a(f's_mov_b32 s{S_XO}, 0')
            if not first: a.label(run)
            for i in range(16): a(f'v_sub_f32 v{Cc+i}, 0, v{mx}')
            issued = UP
            if first: a(f's_waitcnt vmcnt({3*(issued-2)})')
            a(mf(D[0], vr(KF,4), vr(Q,4), vr(Cc,16)))
            a(mf(D[1], vr(KF+4,4), vr(Q,4), vr(Cc,16)))
            for t in range(16):
                d = D[t % 3]
                for i in range(16):
                    a(f'v_exp_f32 v{d+i}, v{d+i}')
                    if i == 2 and t > 0: pv(t-1, 1)
                    if first and i == 2 and issued < NT: kv_tile(issued); issued += 1
                    if first and i == 6 and NT <= t + 2 < 16: late_tile(t+2)
                    if first and i == 6 and t + 2 < NT: a(f's_waitcnt vmcnt({3*(issued-1-(t+2))})')
                    if i == 6 and t + 2 < 16: a(mf(D[(t+2)%3], vr(KF+4*(t+2),4), vr(Q,4), vr(Cc,16)))
                    if i == 11: pv(t, 0)
                if t == 5 and not first: pending()
                if t == (NT - 3 if first else 6): nextq()
            pv(15, 1)
        merge = a.newlabel('La_merge')
        a(f's_waitcnt vmcnt({3*UP})')
        self.mark(1 if half else 11, S_B, 0)
        block(True); a(f's_branch {merge}')
        a.label(lp)
        block(False)
        a.label(merge)
        a(f'v_add_u32 v{t1}, s{S_BUF}, v{lw}')
        for j in range(3): a(f'ds_write_b128 v{t1}, {vr(O+4*j,4)} offset:{1024*j}')
        a('s_waitcnt vmcnt(0) lgkmcnt(0)'); a('s_barrier')
        a(f'v_add_u32 v{t1}, s{S_BUF}, v{L16}')
        for w in range(4): a(f'ds_read_b32 v{MG+w}, v{t1} offset:{3072*w+2048}')
        a('s_waitcnt lgkmcnt(0)')
        a(f'v_add_f32 v{MG}, v{MG}, v{MG+1}'); a(f'v_add_f32 v{MG+2}, v{MG+2}, v{MG+3}'); a(f'v_add_f32 v{t2}, v{MG}, v{MG+2}')
        a(f's_xor_b32 s{S_BUF}, s{S_BUF}, 16384')
        a(f'v_cmp_nge_f32 vcc, {f2u(2.0**90):#x}, v{t2}')
        a(f's_cbranch_vccnz {slow}')
        fin = a.newlabel('La_fin'); a.label(fin)
        a(f's_and_b32 s{S_T}, s{S_CNT}, 3'); a(f's_add_u32 s{S_CNT}, s{S_CNT}, 1')
        a(f's_cmp_lg_u32 s{S_T}, s{S_W}'); a(f's_cbranch_scc1 {nom}')
        for w in range(4):
            for j in range(2): a(f'ds_read_b128 {vr(MG+8*w+4*j,4)}, v{t1} offset:{3072*w+1024*j}')
        a(f'v_rcp_f32 v{t2}, v{t2}')
        a('s_waitcnt lgkmcnt(0)')
        for i in range(8):
            a(f'v_add_f32 v{MG+i}, v{MG+i}, v{MG+8+i}'); a(f'v_add_f32 v{MG+16+i}, v{MG+16+i}, v{MG+24+i}')
            a(f'v_add_f32 v{MG+i}, v{MG+i}, v{MG+16+i}'); a(f'v_mul_f32 v{MG+i}, v{MG+i}, v{t2}')
        for i in range(4): a(f'v_cvt_pk_bf16_f32 v{MG+i}, v{MG+2*i}, v{MG+2*i+1}')
        a(f'global_store_dwordx4 v{L16}, {vr(MG,4)}, s[{S_OUT}:{S_OUT+1}] sc1')
        self.set_word(FL(half, 'OA'), S_B, S_A); a(f's_mov_b32 s{S_PF}, 1')
        self.mark(2 if half else 12, S_B, 0)
        a(f's_cmp_ge_u32 s{S_B}, {npg}'); a(f's_cbranch_scc1 {nom}')
        pending()
        a.label(nom)
        add64(a, S_OUT, S_OUT, npg*32768)
        a(f's_mov_b32 s{S_B}, s{S_TK}')
        a(f's_cmp_lt_u32 s{S_B}, 64'); a(f's_cbranch_scc1 {lp}')
        pending()
        a(f's_branch {out}')
        a.label(slow)
        a(f's_cmp_lg_u32 s{S_XO}, 0'); a(f's_cbranch_scc1 {fin}')
        a(f's_mov_b32 s{S_XO}, 1')
        for t in range(16):
            a(mf(D[t%2], vr(KF+4*t,4), vr(Q,4), 0))
            rowmax(D[t%2], t == 0)
        halfmax()
        a(f'ds_write_b32 v{lw}, v{mx} offset:32768'); a('s_waitcnt lgkmcnt(0)'); a('s_barrier')
        for w in range(4): a(f'ds_read_b32 v{MG+w}, v{L16} offset:{32768+3072*w}')
        a('s_waitcnt lgkmcnt(0)')
        a(f'v_max3_f32 v{mx}, v{MG}, v{MG+1}, v{MG+2}'); a(f'v_max_f32 v{mx}, v{mx}, v{MG+3}')
        for i in range(16): a(f'v_mov_b32 v{O+i}, 0')
        a(f's_branch {run}')
        a.label(out)
        a('s_barrier')

    def tb_weights(self):
        a = self.a
        a(f's_lshr_b32 s{S_T}, s{S_A}, 2'); a(f's_lshl_b32 s{S_T}, s{S_T}, 19'); a(f's_and_b32 s{S_T2}, s{S_A}, 3'); a(f's_lshl_b32 s{S_T2}, s{S_T2}, 8')
        a(f's_add_u32 s{S_OFF}, s{S_T}, s{S_T2}')
        load_wslices(a, [(KA_WO, 4*MB, 0, 'a', 128)], 1024, L, 3, 4, 5)
        l = a.newlabel('Lt_nw')
        a(f's_and_b32 s{S_T}, s{S_A}, 3'); a(f's_cmp_ge_u32 s{S_T}, 3'); a(f's_cbranch_scc1 {l}')
        a(f's_add_u32 s{S_T}, s{S_T}, 1'); a(f's_cmp_eq_u32 s{S_T}, 3'); a(f's_cselect_b32 s{S_T}, 0, s{S_T}'); a(f's_lshl_b32 s{S_T}, s{S_T}, 10')
        a(f's_lshr_b32 s{S_T2}, s{S_A}, 3'); a(f's_lshl_b32 s{S_T2}, s{S_T2}, 8'); a(f's_add_u32 s{S_OFF}, s{S_T}, s{S_T2}')
        load_wslices(a, [(KA_WQKV, 1536*1024, 0, 'a', 0)], 3072, L, 3, 4, 5)
        a.label(l)
    def pa_task(self, vo, av):
        a = self.a; H = W.H[1]; XR = 12; ACC = 224; xa = 3; t1 = 4
        lv = a.newlabel('Lq_v'); le = a.newlabel('Lq_e')
        self.flag_off(FL(1, 'XNA'), S_TK); self.wait(8)
        self.mark(13, S_TK, 63)
        a(f's_lshl_b32 s{S_PF}, s{S_TK}, 15'); a(f's_add_u32 s{S_CNT}, s{S_PF}, {H.XNA}'); a(f's_mov_b32 s{S_BUF}, 32768')
        dma_x(a, L16, S_CNT, S_BUF, 'sc1')
        a(f's_and_b32 s{S_PD}, s{S_A}, 3')
        a(f's_add_u32 s{S_T}, s{S_PD}, 1'); a(f's_cmp_eq_u32 s{S_T}, 3'); a(f's_cselect_b32 s{S_T}, 0, s{S_T}'); a(f's_cselect_b32 s{S_SV}, {f2u(0.25*math.log2(math.e)):#x}, 1.0')
        a(f's_lshl_b32 s{S_T}, s{S_T}, 21'); a(f's_add_u32 s{S_PF}, s{S_PF}, s{S_T}'); a(f's_lshr_b32 s{S_T}, s{S_A}, 3'); a(f's_lshl_b32 s{S_T2}, s{S_T}, 13'); a(f's_add_u32 s{S_PF}, s{S_PF}, s{S_T2}')
        a(f's_add_u32 s{S_PF}, s{S_PF}, {H.QA}'); add64(a, S_IN, S_WS, f's{S_PF}')
        a(f's_lshl_b32 s{S_T}, s{S_T}, 2'); a(f's_add_u32 s{S_T}, s{S_T}, s{S_W}'); self.set_word(FL(1, "QKVA"), S_T, S_TK, 11, 5)
        a(f's_lshl_b32 s{S_T}, s{S_PD}, 3'); a(f's_add_u32 s{S_SO}, s{S_SO}, s{S_T}')
        a(f'v_add_u32 v{xa}, 32768, v{L16}')
        a(f's_lshl_b32 s{S_T}, s{S_W}, 11'); a(f's_sub_u32 s{S_T}, s{S_T}, {HB_V}'); a(f'v_add_u32 v{t1}, s{S_T}, v{av}')
        a('s_waitcnt vmcnt(0)'); a('s_barrier')
        a(f's_cmp_eq_u32 s{S_PD}, 1'); a(f's_cbranch_scc1 {lv}')
        gemm_core(a, xa, XR, [(ACC, 'a', 0, False)]); pack_store(a, ACC, vo, S_IN, 'sc1', scale=S_SV); a(f's_branch {le}')
        a.label(lv)
        gemm_core(a, xa, XR, [(ACC, 'a', 0, True)]); pack_store(a, ACC, t1, S_IN, 'sc1')
        a.label(le)
        a('s_waitcnt vmcnt(0)'); self.wsignal(); a('s_barrier')
        self.mark(14, S_TK, 63)
    def tb_run(self, half, ngr):
        a = self.a; H = W.H[half]
        t0, t1, akm, av, avm, vo, xw = range(3, 10); mx = 240; FG = 244
        XR = 12; CM = 28; SX = 44; SM = 60; Q = 76; K = 108; KM = 140; V = 172; VM = 204; P = 212; PM = 220; ACC = 224
        OT = Q
        a(f'v_and_b32 v{t0}, 7, v{L}'); a(f'v_lshlrev_b32 v{akm}, 4, v{t0}'); a(f'v_lshrrev_b32 v{t0}, 5, v{L}'); a(f'v_lshl_add_u32 v{akm}, v{t0}, 7, v{akm}')
        a(f'v_add_u32 v{akm}, {HB_KM}, v{akm}')
        pi_of(a, t0, L, t1); vpos16(a, av, t0, L, t1); a(f'v_add_u32 v{av}, {HB_V}, v{av}')
        a(f'v_lshlrev_b32 v{avm}, 2, v{t0}'); a(f'v_lshrrev_b32 v{t1}, 5, v{L}'); a(f'v_lshl_add_u32 v{avm}, v{t1}, 8, v{avm}'); a(f'v_add_u32 v{avm}, {HB_VM}, v{avm}')
        a(f's_lshl_b32 s{S_T}, s{S_W}, 11'); a(f'v_add_u32 v{vo}, s{S_T}, v{L16}')
        a(f's_lshl_b32 s{S_T}, s{S_W}, 13'); a(f'v_add_u32 v{xw}, s{S_T}, v{L16}')
        a(f'v_and_b32 v{t0}, 31, v{L}'); a(f'v_lshrrev_b32 v{t1}, 5, v{L}'); a(f'v_lshlrev_b32 v{t1}, 2, v{t1}'); a(f'v_sub_u32 v{t0}, v{t0}, v{t1}')
        a(f'v_mov_b32 v{t1}, {f2u(-1e30):#x}')
        for i in range(16):
            a(f'v_cmp_le_i32 vcc, {8*(i>>2)+(i&3)}, v{t0}'); a(f'v_cndmask_b32 v{CM+i}, v{t1}, 0, vcc')
        a(f's_and_b32 s{S_T}, s{S_A}, 28'); a(f's_add_u32 s{S_T}, s{S_T}, s{S_W}')
        a(f's_lshl_b32 s{S_K0}, s{S_T}, 8'); a(f's_add_u32 s{S_K0}, s{S_K0}, {FL(half, "HEAD")}')
        a(f's_lshl_b32 s{S_T}, s{S_T}, 21')
        a(f's_lshl_b32 s{S_T2}, s{S_B}, 15'); a(f's_add_u32 s{S_XO}, s{S_T}, s{S_T2}'); a(f's_add_u32 s{S_XO}, s{S_XO}, {H.HB}')
        a(f's_lshl_b32 s{S_T}, s{S_B}, 18'); a(f's_lshl_b32 s{S_T2}, s{S_A}, 13'); a(f's_add_u32 s{S_T}, s{S_T}, s{S_T2}'); a(f's_add_u32 s{S_T}, s{S_T}, {H.PT}')
        add64(a, S_OUT, S_WS, f's{S_T}')
        a(f's_mov_b32 s{S_M}, {f2u(math.log2(math.e)/math.sqrt(128.0)):#x}')
        a(f's_mov_b32 s{S_N}, 0'); a(f's_mov_b32 s{S_K1}, 0')
        def bl(n, dst, va, so, off): a(f'buffer_load_dword{n} {vr(dst, 4 if n else 1)}, v{va}, s[{S_WSRD}:{S_WSRD+3}], s{so} offen offset:{off} sc1')
        def poll(which):
            l1 = a.newlabel('Lt_p'); l2 = a.newlabel('Lt_p'); l3 = a.newlabel('Lt_p')
            a(f's_mov_b32 s{S_SPIN}, 0'); a(f's_branch {l3}')
            a.label(l1)
            if which == S_N:
                a(f'v_mov_b32 v{VZ}, s{S_K0}')
                _ = [a(f'global_load_dword v{FG+i}, v{VZ}, s[{S_WS}:{S_WS+1}] offset:{32*i} sc1') for i in range(8)]; a('s_waitcnt vmcnt(0)')
                a(f'v_min3_u32 v{FG}, v{FG}, v{FG+1}, v{FG+2}'); a(f'v_min3_u32 v{FG}, v{FG}, v{FG+3}, v{FG+4}'); a(f'v_min3_u32 v{FG}, v{FG}, v{FG+5}, v{FG+6}'); a(f'v_min_u32 v{FG}, v{FG}, v{FG+7}')
            else:
                a(f's_add_u32 s{S_X}, s{S_K0}, {FL(half, "CHP") - FL(half, "HEAD")}'); a(f'v_mov_b32 v{VZ}, s{S_X}')
                a(f'global_load_dword v{FG}, v{VZ}, s[{S_WS}:{S_WS+1}] sc1'); a('s_waitcnt vmcnt(0)')
            a(f'v_readfirstlane_b32 s{which}, v{FG}')
            if which == S_N: a(f's_max_u32 s{S_N}, s{S_N}, 2'); a(f's_sub_u32 s{S_N}, s{S_N}, 2')
            a(f's_cmp_gt_u32 s{which}, s{S_B}'); a(f's_cbranch_scc1 {l2}')
            a('s_sleep 1')
            lz = a.newlabel('Lt_z'); a(f's_cmp_eq_u32 s{S_B}, 63'); a(f's_cbranch_scc1 {lz}'); a(f's_sleep {self.tbsleep}'); a.label(lz)
            a(f's_add_u32 s{S_SPIN}, s{S_SPIN}, 1'); a(f's_cmp_ge_u32 s{S_SPIN}, {SPIN_MAX}'); a(f's_cbranch_scc1 {self.end}')
            a.label(l3)
            a(f's_cmp_gt_u32 s{which}, s{S_B}'); a(f's_cbranch_scc0 {l1}')
            a.label(l2)
        lp = a.newlabel('Lt_loop')
        PFX = 58
        def x_loads(d):
            a(f's_add_u32 s{S_X}, s{S_XO}, {d}'); a(f's_add_u32 s{S_T}, s{S_XO}, {d+4096}'); a(f's_add_u32 s{S_T2}, s{S_XO}, {d+HB_Q}'); a(f's_add_u32 s{S_T3}, s{S_XO}, {d+HB_Q+4096}')
            for kb in range(8):
                bl('x4', K+4*kb, L16, S_X if kb < 4 else S_T, (kb%4)*1024)
                bl('x4', Q+4*kb, L16, S_T2 if kb < 4 else S_T3, (kb%4)*1024)
            for f in range(8): bl('x4', V+4*f, av, S_X if f < 4 else S_T, (f%4)*1024)
        a(f's_mov_b32 s{PFX}, 0'); a(f's_and_b32 s{S_TK}, s{S_A}, 4'); a(f's_add_u32 s{S_TK}, s{S_TK}, s{S_B}')
        a.label(lp)
        lh = a.newlabel('Lt_h'); a(f's_cmp_lg_u32 s{PFX}, 0'); a(f's_cbranch_scc1 {lh}')
        poll(S_N); x_loads(0)
        a.label(lh)
        def mem_loads():
            for kb in range(8): bl('x4', KM+4*kb, akm, S_XO, kb*256)
            for t in range(4):
                for e in range(2): bl('', VM+2*t+e, avm, S_XO, t*512 + e*128)
        def both(r, op):
            a(f'v_mov_b32 v{t0}, v{r}'); a(f'v_permlane32_swap_b32 v{r}, v{t0}'); a(f'{op} v{r}, v{r}, v{t0}')
        lx = mx + 1; al = mx + 2; m2 = mx + 3
        def xpart(extra):
            for kb in range(8):
                a(f's_waitcnt vmcnt({extra + 8 + 14 - 2*kb})')
                a(mf(SX, vr(K+4*kb,4), vr(Q+4*kb,4), vr(SX,16) if kb else vr(CM,16)))
            a(f'v_max3_f32 v{mx}, v{SX}, v{SX+1}, v{SX+2}')
            for i in range(3, 15, 2): a(f'v_max3_f32 v{mx}, v{mx}, v{SX+i}, v{SX+i+1}')
            a(f'v_max_f32 v{mx}, v{mx}, v{SX+15}'); both(mx, 'v_max_f32')
            for i in range(16): a(f'v_sub_f32 v{SX+i}, v{SX+i}, v{mx}')
            for i in range(16): a(f'v_mul_f32 v{SX+i}, s{S_M}, v{SX+i}')
            for i in range(16): a(f'v_exp_f32 v{SX+i}, v{SX+i}')
            a(f'v_add_f32 v{lx}, v{SX}, v{SX+1}')
            for i in range(2, 16): a(f'v_add_f32 v{lx}, v{lx}, v{SX+i}')
        lw_ = a.newlabel('Lt_w'); lj = a.newlabel('Lt_j')
        a(f's_cmp_gt_u32 s{S_K1}, s{S_B}'); a(f's_cbranch_scc0 {lw_}')
        mem_loads(); xpart(16); a(f's_branch {lj}')
        a.label(lw_)
        xpart(0); poll(S_K1)
        if half == 0: self.mark(4, S_B, 63)
        mem_loads()
        a.label(lj)
        for kb in range(8):
            a(f's_waitcnt vmcnt({8 + 7 - kb})')
            a(mf(SM, vr(KM+4*kb,4), vr(Q+4*kb,4), vr(SM,16) if kb else 0))
        if half == 0: self.mark(5, S_B, 63)
        a(f'v_max3_f32 v{m2}, v{SM}, v{SM+1}, v{mx}'); a(f'v_max3_f32 v{m2}, v{m2}, v{SM+2}, v{SM+3}'); both(m2, 'v_max_f32')
        a(f'v_sub_f32 v{al}, v{mx}, v{m2}')
        for i in range(4): a(f'v_sub_f32 v{SM+i}, v{SM+i}, v{m2}')
        for e in [al] + [SM+i for i in range(4)]: a(f'v_mul_f32 v{e}, s{S_M}, v{e}')
        for e in [al] + [SM+i for i in range(4)]: a(f'v_exp_f32 v{e}, v{e}')
        a(f'v_fma_f32 v{t1}, v{lx}, v{al}, v{SM}')
        for i in range(1, 4): a(f'v_add_f32 v{t1}, v{t1}, v{SM+i}')
        both(t1, 'v_add_f32')
        a(f'v_rcp_f32 v{t1}, v{t1}')
        a(f'v_mul_f32 v{al}, v{al}, v{t1}')
        for i in range(4): a(f'v_mul_f32 v{SM+i}, v{SM+i}, v{t1}')
        for i in range(2): a(f'v_cvt_pk_bf16_f32 v{PM+i}, v{SM+2*i}, v{SM+2*i+1}')
        a('s_waitcnt vmcnt(0)')
        for t in range(4):
            a(f'v_mfma_f32_32x32x8_bf16 {vr(OT+16*t,16)}, {vr(VM+2*t,2)}, {vr(PM,2)}, 0')
            for i in range(4*t, 4*t+4): a(f'v_mul_f32 v{SX+i}, v{SX+i}, v{al}')
            for i in range(2*t, 2*t+2): a(f'v_cvt_pk_bf16_f32 v{P+i}, v{SX+2*i}, v{SX+2*i+1}')
        def cv(t, j):
            o = OT+16*t+8*j
            for i in range(4): a(f'v_cvt_pk_bf16_f32 v{o+i}, v{o+2*i}, v{o+2*i+1}')
        def wr(t, j): a(f'ds_write_b128 v{xw}, {vr(OT+16*t+8*j,4)} offset:{(2*t+j)*1024}')
        todo = [(t, j) for t in range(4) for j in range(2)]; conv = []
        for n, (t, j) in enumerate(list(todo)):
            a(mf(OT+16*t, vr(V+8*t+4*j,4), vr(P+4*j,4), vr(OT+16*t,16)))
            if conv: wr(*conv.pop(0))
            if n >= 3: x = todo.pop(0); cv(*x); conv.append(x)
        for x in conv: wr(*x)
        for x in todo: cv(*x); wr(*x)
        a('s_waitcnt lgkmcnt(0)'); a('s_barrier')
        def pfx():
            l = a.newlabel('Lt_x'); a(f's_add_u32 s{S_T}, s{S_B}, {ngr}'); a(f's_mov_b32 s{PFX}, 0')
            a(f's_cmp_gt_u32 s{S_N}, s{S_T}'); a(f's_cbranch_scc0 {l}')
            x_loads(ngr*32768); a(f's_mov_b32 s{PFX}, 1'); a.label(l)
        gemm_core(a, L16, XR, [(ACC, 'a', 128, False)], {1: pfx})
        pack_store(a, ACC, vo, S_OUT, 'sc1')
        if half == 0: self.mark(6, S_B, 63)
        self.set_word(FL(half, 'PT'), S_B, S_A); self.signal_wg()
        if half == 0: self.mark(7, S_B, 63)
        add64(a, S_OUT, S_OUT, ngr*8*32768); a(f's_add_u32 s{S_XO}, s{S_XO}, {ngr*32768}')
        a(f's_add_u32 s{S_B}, s{S_B}, {ngr}')
        if half == 0:
            nxt = a.newlabel('Lt_n'); pa = a.newlabel('Lt_pa'); fin = a.newlabel('Lt_f')
            a(f's_and_b32 s{S_T}, s{S_A}, 3'); a(f's_cmp_ge_u32 s{S_T}, 3'); a(f's_cbranch_scc1 {nxt}')
            a(f's_cmp_ge_u32 s{S_TK}, {self.pasplit}'); a(f's_cbranch_scc1 {nxt}')
            a(f's_add_u32 s{S_T}, s{S_TK}, {2*ngr}'); a(f's_cmp_gt_u32 s{S_T}, s{S_B}'); a(f's_cbranch_scc1 {nxt}')
            self.pa_task(vo, av)
            a(f's_add_u32 s{S_TK}, s{S_TK}, {2*ngr}')
            a(f's_cmp_lt_u32 s{S_TK}, {self.pasplit}'); a(f's_cbranch_scc1 {nxt}')
            a(f'v_mov_b32 v{VZ}, 0x3f803f80')
            for i in range(128): a(f'v_accvgpr_write_b32 a{i}, v{VZ}')
            a.label(nxt)
        a(f's_cmp_lt_u32 s{S_B}, 64'); a(f's_cbranch_scc1 {lp}')

    def build(self):
        a = self.a; end = self.end
        a(f's_cmp_ge_u32 s2, 256'); a(f's_cbranch_scc1 {end}')
        if self.stamps == 2: a('s_memrealtime s[96:97]')
        if self.stamps is True: a('s_memrealtime s[94:95]')
        a(f's_load_dwordx2 s[{S_DBG}:{S_DBG+1}], s[0:1], {KA_DBG}')
        common_prologue(a, L, L16)
        lw = a.newlabel('Le'); lo = a.newlabel('Le'); ls = a.newlabel('Le'); lg = a.newlabel('Le'); lz = a.newlabel('Le')
        a(f's_getreg_b32 s{S_X}, hwreg(HW_REG_XCC_ID, 0, 3)')
        a(f's_xor_b32 s{S_X}, s{S_X}, {self.die}')
        if self.fake: a(self.fake.format(x=S_X))
        a(f's_lshl_b32 s{S_T}, s{S_X}, 4'); a(f'v_mov_b32 v3, s{S_T}'); a('v_mov_b32 v4, 1')
        def xwait():
            l1 = a.newlabel('Le'); l2 = a.newlabel('Le')
            a(f's_mul_i32 s{S_T}, s2, 3072'); a(f's_add_u32 s{S_T}, s{S_T}, {W.FLAGS}'); a('v_mul_u32_u24 v6, 12, v0'); a(f'v_add_u32 v6, s{S_T}, v6'); a('v_mov_b32 v8, 0'); a('v_mov_b32 v9, 0'); a('v_mov_b32 v10, 0')
            a(f'global_store_dwordx3 v6, v[8:10], s[{S_WS}:{S_WS+1}] sc1')
            a(f's_cmp_lg_u32 s{S_W}, 0'); a(f's_cbranch_scc1 {l1}')
            a('s_mov_b64 exec, 1'); a(f'global_atomic_add v5, v3, v4, s[{S_DBG}:{S_DBG+1}] offset:{self.TO} sc0 sc1'); a('s_mov_b64 exec, -1')
            a('s_waitcnt vmcnt(2)'); a(f's_branch {l2}')
            a.label(l1); a('s_waitcnt vmcnt(1)'); a.label(l2)
        a(f's_lshr_b32 s{S_A}, s2, 2'); a(f's_and_b32 s{S_B}, s2, 3')
        rb_body(a, 0, KA_X, True, 0, 0, 0, None, False, W.H[0].XNA, '', 'sc1', ldsoff=1024, vb=20, xwait=xwait)
        a(f's_cmp_lg_u32 s{S_W}, 0'); a(f's_cbranch_scc1 {lw}')
        a('s_mov_b64 exec, 1'); a('s_waitcnt vmcnt(2)')
        a(f'v_readfirstlane_b32 s{S_TK}, v5')
        a(f's_lshl_b32 s{S_SLOT}, s{S_X}, 5'); a(f's_add_u32 s{S_SLOT}, s{S_SLOT}, s{S_TK}')
        a(f's_cmp_lt_u32 s{S_TK}, 32'); a(f's_cbranch_scc1 {lg}')
        a('v_mov_b32 v3, 136'); a(f'global_atomic_add v5, v3, v4, s[{S_DBG}:{S_DBG+1}] sc0 sc1'); a('s_waitcnt vmcnt(0)')
        a(f'v_readfirstlane_b32 s{S_TK}, v5')
        self.count_wait(self.TO, 12, ls, S_T, S_SPIN)
        a.label(ls)
        for x in range(8):
            a(f'v_readfirstlane_b32 s{S_T}, v{12+x}'); a(f's_min_u32 s{S_T}, s{S_T}, 32')
            a(f's_add_u32 s{S_SLOT}, s{S_T}, s{S_TK}'); a(f's_add_u32 s{S_SLOT}, s{S_SLOT}, {32*x}')
            a(f's_sub_u32 s{S_T}, 32, s{S_T}'); a(f's_cmp_lt_u32 s{S_TK}, s{S_T}'); a(f's_cbranch_scc1 {lg}')
            a(f's_sub_u32 s{S_TK}, s{S_TK}, s{S_T}')
        a(f's_mov_b32 s{S_SLOT}, 256')
        a.label(lg)
        a(f'v_mov_b32 v3, 0'); a(f'v_mov_b32 v4, s{S_SLOT}'); a('ds_write_b32 v3, v4'); a('s_waitcnt lgkmcnt(0)')
        a('s_mov_b64 exec, -1')
        a.label(lw)
        a('s_waitcnt vmcnt(0)'); a('s_barrier')
        a(f's_mov_b32 s{S_DIE}, s{S_X}'); self.report()
        a('v_mov_b32 v3, 0'); a('ds_read_b32 v4, v3'); a('s_waitcnt lgkmcnt(0)'); a(f'v_readfirstlane_b32 s{S_SLOT}, v4'); a('s_barrier')
        a(f's_lshr_b32 s{S_T}, s{S_SLOT}, 5'); a(f's_lshl_b32 s{S_T2}, s{S_T}, 2'); a(f's_lshr_b32 s{S_T2}, {self.perm:#x}, s{S_T2}'); a(f's_and_b32 s{S_T2}, s{S_T2}, 7')
        a(f's_cmp_lt_u32 s{S_T}, 8'); a(f's_cselect_b32 s{S_T2}, s{S_T2}, 8'); a(f's_and_b32 s{S_SLOT}, s{S_SLOT}, 31'); a(f's_lshl_b32 s{S_T2}, s{S_T2}, 5'); a(f's_add_u32 s{S_SLOT}, s{S_SLOT}, s{S_T2}')
        if self.stamps: a(f's_mov_b32 s99, s{S_SLOT}')
        self.role = 'all'
        self.dmap = {('all',0):0, ('ch',1):1, ('ch',2):2, ('ch',3):3, ('ch',4):4, ('gw',1):8, ('gw',2):9, ('gw',3):10, ('pb',1):11, ('ms',12):12, ('gw',4):13, ('pb',3):14}
        if self.stamps == 2:
            a('s_and_b32 s99, s96, 0xfff00000')
        self.sv = 10
        a(f's_mov_b32 s{S_SO}, {W.STAMPS}')
        if self.stamps: _ = [a(f's_mov_b32 s{70+k}, 0') for k in range(16)]
        if self.stamps is True: a('s_mov_b32 s85, s94')
        self.stamp(0)
        Lch, Lpb, Lgw, Lms, Lpa = [a.newlabel(n) for n in ('Lchain', 'Lpb', 'Lgw', 'Lms', 'Lpa')]
        a(f's_cmp_lt_u32 s{S_SLOT}, 32'); a(f's_cbranch_scc0 Lnot_chain')
        self.jump(Lch)
        a.label('Lnot_chain')
        a(f's_cmp_lt_u32 s{S_SLOT}, 96'); a(f's_cbranch_scc1 {Lpb}')
        a(f's_cmp_lt_u32 s{S_SLOT}, 224'); a(f's_cbranch_scc1 {Lgw}')
        a(f's_cmp_lt_u32 s{S_SLOT}, 240'); a(f's_cbranch_scc1 {Lms}')
        a(f's_cmp_lt_u32 s{S_SLOT}, 256'); a(f's_cbranch_scc1 {Lpa}')
        a.label(end); a('s_endpgm')
        a.label(Lms); self.role = 'ms'; self.code_touch(sh=7)
        a(f's_and_b32 s{S_A}, s{S_SLOT}, 3'); a(f's_lshl_b32 s{S_OFF}, s{S_A}, 8')
        load_wslices(a, [(KA_WOA, 512*1024, 0, 'v', 128)], 1024, L, 3, 4, 5)
        if self.pfb:
            a(f's_load_dwordx2 s[{S_P}:{S_P+1}], s[0:1], {KA_WO}'); a(f's_and_b32 s{S_T}, s{S_SLOT}, 15'); a(f's_lshl_b32 s{S_T}, s{S_T}, 18')
            a(f'v_lshl_add_u32 v3, v0, 7, s{S_T}'); a('s_waitcnt lgkmcnt(0)')
            for i in range(8):
                a(f'global_load_dword v4, v3, s[{S_P}:{S_P+1}]'); a('v_add_u32 v3, 32768, v3')
        self.flags_ready(); self.local_check()
        for half in range(2):
            a(f's_and_b32 s{S_A}, s{S_SLOT}, 3'); a(f's_bfe_u32 s{S_B}, s{S_SLOT}, 0x20002'); self.woa_run(half, 4); self.stamp(3 + 8*half)
            a(f's_bfe_u32 s{S_A}, s{S_SLOT}, 0x20002'); a(f's_and_b32 s{S_B}, s{S_SLOT}, 3')
            self.rb_run(half, 4); self.stamp(4 + 8*half)
        self.dump_marks(); a('s_endpgm')
        a.label(Lpa); self.role = 'pa'; self.code_touch(sh=7)
        def first_x():
            self.flags_ready(); self.mark(9, S_W, 0)
            a(f's_lshl_b32 s{S_XO}, s{S_B}, 15'); a(f's_add_u32 s{S_XO}, s{S_XO}, {W.H[0].XNA}'); a(f's_mov_b32 s{S_BUF}, {128*1024}')
            dma_x(a, L16, S_XO, S_BUF, 'sc1')
        a(f's_and_b32 s{S_A}, s{S_SLOT}, 3'); a(f's_bfe_u32 s{S_B}, s{S_SLOT}, 0x20002')
        self.proj_weights(False, (S_B, 4), first_x, (2,)); self.proj_run(0, False, 4, nowait=True, mode='q'); self.stamp(3)
        self.proj_weights(False, None, None, (0, 1))
        a(f's_bfe_u32 s{S_B}, s{S_SLOT}, 0x20002'); a(f's_add_u32 s{S_B}, s{S_B}, {self.pasplit}'); self.proj_run(1, False, 4); self.stamp(4)
        self.dump_marks(); a('s_endpgm')
        a.label(Lpb); self.role = 'pb'; self.code_touch(sh=7)
        def pb_ids():
            a(f's_sub_u32 s{S_T}, s{S_SLOT}, 32'); a(f's_lshr_b32 s{S_A}, s{S_T}, 5'); a(f's_lshl_b32 s{S_A}, s{S_A}, 4'); a(f's_and_b32 s{S_T2}, s{S_T}, 15')
            a(f's_add_u32 s{S_A}, s{S_A}, s{S_T2}'); a(f's_bfe_u32 s{S_B}, s{S_T}, 0x10004')
        pb_ids(); self.proj_weights(True, (S_B, 2) if self.pfb else None); self.flags_ready(); self.stamp(1)
        for half in range(2):
            pb_ids(); self.proj_run(half, True, 2); self.stamp(3 + 8*half)
        self.dump_marks(); a('s_endpgm')
        a.label(Lgw); self.role = 'gw'; self.code_touch(sh=7)
        self.end = 'Lm_end2'
        def pa_ids(): a(f's_sub_u32 s{S_T}, s{S_SLOT}, 96'); a(f's_lshr_b32 s{S_A}, s{S_T}, 5'); a(f's_and_b32 s{S_B}, s{S_T}, 31')
        pa_ids()
        def gw_first():
            a(f'v_mov_b32 v{VZ}, 0x3f803f80')
            for i in range(128): a(f'v_accvgpr_write_b32 a{i}, v{VZ}')
        self.proj_weights(False, (S_B, 32), first_x, (0, 1), gw_first); self.mark(10, S_W, 0); self.proj_run(0, False, 32, nowait=True, mode='kv'); self.stamp(1)
        def gw_ids():
            a(f's_sub_u32 s{S_T}, s{S_SLOT}, 96'); a(f's_lshr_b32 s{S_A}, s{S_T}, 5'); a(f's_lshl_b32 s{S_A}, s{S_A}, 3'); a(f's_and_b32 s{S_T2}, s{S_T}, 7')
            a(f's_add_u32 s{S_A}, s{S_A}, s{S_T2}'); a(f's_bfe_u32 s{S_B}, s{S_T}, 0x20003')
        for half in range(2):
            gw_ids(); self.att_run(half, 4); self.stamp(3 + 8*half)
            gw_ids()
            if half == 0: self.tb_weights()
            self.tb_run(half, 4); self.stamp(4 + 8*half)
        self.dump_marks()
        a.label('Lm_end2'); a('s_endpgm')
        a.label(Lch); self.role = 'ch'
        self.end = 'Lm_end3'; end = self.end
        r = C.ChainRegs(); self.sv = r.R
        a(f's_mov_b32 s{C.S_H}, s{S_SLOT}')
        lslow = a.newlabel('Lcslow'); lfast = a.newlabel('Lcfast')
        def mid(T):
            l1 = a.newlabel('Lcm'); l2 = a.newlabel('Lcm')
            T = r.WV + 64
            self.count_wait(132, T, end, C.S_T, C.S_SPIN); self.count_wait(self.TO, T, end, C.S_T, C.S_SPIN)
            a(f'v_readfirstlane_b32 s{C.S_T}, v{T}')
            add64(a, S_DBG, S_WS, FL(0, 'EL'))
            if self.chain_kw.get('force_slow'): a(f's_mov_b32 s{C.S_T}, 0')
            a(f's_mov_b32 s{C.S_EP}, 0'); a(f's_mov_b32 s{C.S_EM}, 0'); a(f's_mov_b32 s{C.S_HALF}, 0')
            a(f's_cmp_ge_u32 s{C.S_T}, 32'); a(f's_cselect_b32 s{C.S_FB}, 1, 0'); a(f's_cbranch_scc1 {l1}')
            C.chain_init_comm(a, r, 'sc1', True, T); a(f's_branch {l2}')
            a.label(l1); C.chain_init_comm(a, r, '', True, T)
            a.label(l2); C.group_arrive(a, T, 1280)
        C.chain_setup(a, r, mid, self.ahead)
        self.stamp(1)
        C.group_wait(a, r.R, 1280, 32, end)
        a(f's_cmp_eq_u32 s{C.S_FB}, 1'); a(f's_cbranch_scc1 {lfast}')
        a(f's_branch {lslow}')
        a.label(end); a('s_endpgm')
        kw = {k: v for k, v in self.chain_kw.items() if k != 'force_slow'}
        for lbl, stf in ((lfast, ''), (lslow, 'sc1')):
            a.label(lbl)
            lh = a.newlabel('Lch_half'); a.label(lh)
            self.stamp(2, C.S_HALF)
            C.chain_start(a, r, end, 1)
            def started(sv):
                self.sv = sv; self.stamp(3, C.S_HALF); self.sv = r.R
            kw['started'] = started
            C.chain_all_waves(a, r, stf, end, fused=1, **(dict(kw, ef='sc1') if stf else kw))
            self.stamp(4, C.S_HALF)
            if kw.get('stamps'):
                for k in range(12): a(f'v_mov_b32 v{k}, s{84+k}')
                a(f's_lshl_b32 s{C.S_T}, s{C.S_H}, 2'); a(f's_add_u32 s{C.S_T}, s{C.S_T}, s{C.S_W}'); a(f's_lshl_b32 s{C.S_T}, s{C.S_T}, 6')
                a(f's_lshl_b32 s{C.S_T2}, s{C.S_HALF}, 13'); a(f's_add_u32 s{C.S_T}, s{C.S_T}, s{C.S_T2}')
                a(f's_add_u32 s{C.S_T}, s{C.S_T}, {STAMP_OFF + 32768}'); a(f'v_mov_b32 v16, s{C.S_T}')
                for k in range(3): a(f'global_store_dwordx4 v16, {vr(4*k,4)}, s[{S_WS}:{S_WS+1}] offset:{16*k}')
                a('s_waitcnt vmcnt(0)')
            a(f's_cmp_lg_u32 s{C.S_HALF}, 0'); a(f's_cbranch_scc1 {end}')
            a(f's_mov_b32 s{C.S_HALF}, 1'); C.group_arrive(a, r.R, 1408); C.group_wait(a, r.R, 1408, 32, end)
            a(f's_xor_b32 s{C.S_EM}, s{C.S_EM}, 1'); C.chain_init_comm(a, r, stf, False)
            a(f's_branch {lh}')
        return a.lines
    def jump(self, label):
        a = self.a; l = a.newlabel('Lj')
        a('s_getpc_b64 s[48:49]'); a.label(l)
        a(f's_add_u32 s48, s48, {label}-{l}'); a('s_addc_u32 s49, s49, 0'); a('s_setpc_b64 s[48:49]')

NAME = 'interleave_layers__softmax_full_mha__memory_aug_recurrent_mem_tr__prompt'
def build(stamps=False, chain_kw={}, verbose=False, aslist=True):
    ks = []
    for n, lines, vg, acc in ((NAME + '_kernel', Mega(stamps, chain_kw).build(), 512, 256),):
        rep = []
        l = fix_hazards(lines, rep)
        for e in check_waits(l, n[:8]): print(e)
        if verbose: print(n, len(l), len(rep))
        ks.append((n, l, vg, acc))
    hdr = ''.join(l for l in open(f'cdna_kernels/{NAME}.s.ref').readlines()[:14] if '@launch' not in l)
    t = assemble_file(hdr, [(NAME + '_kernel', 256, 256, 163840)], ks)
    return t if aslist else t.replace(f'@launch kernel={NAME}_kernel ', '@launch ')

if __name__ == '__main__':
    import sys
    kw = eval(sys.argv[2]) if len(sys.argv) > 2 else dict()
    st = (True if sys.argv[3] == '1' else 2) if len(sys.argv) > 3 else False
    t = build(st, kw, True, aslist=(st is True))
    open(sys.argv[1] if len(sys.argv) > 1 else f'cdna_kernels/{NAME}.s', 'w').write(t)
    print(len(t))
```

```python
from asmlib import *
from layout import *
import math, struct

def f2u(f): return struct.unpack('<I', struct.pack('<f', f))[0]

LW = 0
LM = 144 * 1024
LS = 148 * 1024
DELTA = [0, 1, 8, 9, 2, 3, 10, 11]
DELTA2 = [0, 1, 32, 33, 8, 9, 40, 41]

class ChainRegs:
    def __init__(self):
        v = RegAlloc('v', 0, 256)
        self.M = v.alloc(32, 4); self.R = v.alloc(32, 4); self.A = v.alloc(32, 4)
        self.KX = v.alloc(8, 4); self.VX = v.alloc(8, 4)
        self.T = v.alloc(4, 4)
        self.VM = v.alloc(4)
        self.idx = self.VM + 1; self.aMst = self.VM + 3
        self.PZ = v.alloc(2)
        self.Z = v.alloc(2)
        self.I = v.alloc(2); self.E = v.alloc(4); self.One = v.alloc(4)
        self.PG = v.alloc(2)
        self.aPst = v.alloc(); self.aOw = v.alloc(); self.aW = v.alloc()
        self.aK = v.alloc(); self.aV = v.alloc(); self.aKm = v.alloc(); self.aVm = v.alloc(); self.aL = v.alloc()
        assert v.next <= 144, v.next
        self.WV = 144
        self.place = {}
        lds = [('q', 1, s) for s in range(8)] + [('q', 0, s) for s in range(4, 8)] + [('o', t, k) for t in (0, 6, 7) for k in range(2)]
        for i, b in enumerate(lds): self.place[b] = ('l', i * 2048)
        rest = [(m, t, s) for m in 'qkv' for t in range(2) for s in range(8)] + [('o', t, k) for t in range(8) for k in range(2)]
        rest = [b for b in rest if b not in self.place]
        assert len(rest) == 46
        for i, b in enumerate(rest):
            self.place[b] = ('a', 8 * i) if i < 32 else ('v', self.WV + 8 * (i - 32))
    def blk(self, b):
        k, r = self.place[b]; assert k != 'l'
        return vr(r, 8, k)

S_WS = 4; S_H = 6; S_W = 7
S_SRD = 8
S_CP = 12
S_HB = 20
S_KV = 22
S_CML = 24
S_XP = 26
S_EP = 28; S_EM = 29; S_STEP = 30; S_C = 31; S_SPIN = 32
S_PLO = 33; S_PHI = 34; S_T = 35; S_T2 = 36; S_T3 = 37
S_XH1 = 38; S_XH0 = 40; S_XR = 42
S_DBG = 44; S_TMP = 46; S_M0 = 48; S_RDY = 49
S_FH = 50; S_FW = 52; S_CPR = 54; S_CM = 56; S_HALF = 58; S_FB = 59
S_STAMP = 60
S_BW = 8
S_BR = 10
S_GS = 49
S_CME = 80
REP = 8192
S_SP = 31

def add64(a, dst, base, off):
    a(f's_add_u32 s{dst}, s{base}, {off}'); a(f's_addc_u32 s{dst+1}, s{base+1}, 0')

ROT = [0]; WF = ['']
def frag_of(w, j): return (j ^ (w & ROT[0])) if j < 4 else 4 + (w ^ (j - 4))

def chain_setup(a, r, mid=None, ahead=0, first=None):
    L = r.T; N = r.T+1; G = r.T+2; L16 = r.aL
    T = r.R
    a(f'v_lshrrev_b32 v{T}, 6, v0'); a(f'v_and_b32 v{L}, 63, v0'); a(f'v_readfirstlane_b32 s{S_W}, v{T}')
    a(f'v_and_b32 v{N}, 15, v{L}'); a(f'v_lshrrev_b32 v{G}, 4, v{L}')
    a(f's_mov_b32 s{S_PLO}, 0x05040100'); a(f's_mov_b32 s{S_PHI}, 0x07060302')
    a(f's_mov_b32 s{S_XH1}, 0xcccccccc'); a(f's_mov_b32 s{S_XH1+1}, 0xcccccccc')
    a(f's_mov_b32 s{S_XH0}, 0x33333333'); a(f's_mov_b32 s{S_XH0+1}, 0x33333333')
    a(f's_mov_b32 s{S_XR}, 0x000f000f'); a(f's_mov_b32 s{S_XR+1}, 0')
    a(f's_mov_b32 s{S_C}, {f2u(math.log2(math.e) / math.sqrt(128.0)):#x}')
    a(f'v_lshlrev_b32 v{L16}, 4, v{L}')
    a(f's_mul_i32 s{S_T}, s{S_W}, 36864'); a(f'v_add_u32 v{r.aW}, s{S_T}, v{L16}')
    a(f'v_bfe_u32 v{T}, v{N}, 1, 1')
    a(f'v_mul_u32_u24 v{r.idx}, 0xaaaa, v{T}'); a(f'v_bfe_u32 v{T}, v{N}, 2, 1'); a(f'v_mul_u32_u24 v{T}, 0xaaaa, v{T}'); a(f'v_lshl_add_u32 v{r.idx}, v{T}, 16, v{r.idx}'); a(f'v_add_u32 v{r.idx}, 0x44444444, v{r.idx}')
    a(f'v_lshlrev_b32 v{T}, 2, v{G}'); a(f'v_sub_u32 v{T}, v{N}, v{T}')
    a(f'v_mov_b32 v{T+1}, 0x3f80'); a(f'v_mov_b32 v{T+2}, 0x3f800000')
    def onehot(dst, nregs):
        for i in range(nregs):
            a(f'v_cmp_eq_u32 vcc, {2*i}, v{T}'); a(f'v_cndmask_b32 v{dst+i}, 0, v{T+1}, vcc')
            a(f'v_cmp_eq_u32 vcc, {2*i+1}, v{T}'); a(f'v_cndmask_b32 v{dst+i}, v{dst+i}, v{T+2}, vcc')
    onehot(r.I, 2)
    a(f'v_and_b32 v{T}, 11, v{N}')
    onehot(r.E, 2)
    a(f'v_mov_b32 v{r.E+2}, v{r.E}'); a(f'v_mov_b32 v{r.E+3}, v{r.E+1}')
    for i in range(4): a(f'v_mov_b32 v{r.One+i}, 0x3f803f80')
    a(f'v_mov_b32 v{r.PZ+1}, 0'); a(f'v_mov_b32 v{r.Z}, 0'); a(f'v_mov_b32 v{r.Z+1}, 0')
    a(f'v_lshrrev_b32 v{T}, 3, v{L}'); a(f'v_lshlrev_b32 v{T}, 11, v{T}'); a(f'v_and_b32 v{T+1}, 7, v{L}')
    a(f'v_lshl_add_u32 v{r.aPst}, v{T+1}, 3, v{T}')
    a(f's_lshl_b32 s{S_T}, s{S_W}, 14'); a(f's_lshl_b32 s{S_T2}, s{S_H}, 6'); a(f's_add_u32 s{S_T}, s{S_T}, s{S_T2}')
    a(f's_add_u32 s{S_T}, s{S_T}, {W.CP}'); add64(a, S_CP, S_WS, f's{S_T}')
    for p in range(1, 4): add64(a, S_CP+2*p, S_CP, p * 65536)
    assert W.CP >= LM and W.CM >= LM
    a(f's_lshl_b32 s{S_T}, s{S_W}, 16'); a(f's_lshl_b32 s{S_T2}, s{S_H}, 11'); a(f's_add_u32 s{S_T}, s{S_T}, s{S_T2}')
    a(f's_add_u32 s{S_T}, s{S_T}, {W.CP - LM}'); add64(a, S_CPR, S_WS, f's{S_T}')
    add64(a, S_CM, S_WS, W.CM); add64(a, S_CML, S_WS, W.CM - LM + 4096)
    a(f's_lshl_b32 s{S_T2}, s{S_W}, 11'); a(f's_lshr_b32 s{S_T3}, s{S_H}, 3'); a(f's_lshl_b32 s{S_T3}, s{S_T3}, 9'); a(f's_add_u32 s{S_T2}, s{S_T2}, s{S_T3}')
    a(f's_and_b32 s{S_T3}, s{S_H}, 1'); a(f's_lshl_b32 s{S_T3}, s{S_T3}, 8'); a(f's_add_u32 s{S_T2}, s{S_T2}, s{S_T3}')
    a(f's_bfe_u32 s{S_T3}, s{S_H}, 0x20001'); a(f's_lshl_b32 s{S_T3}, s{S_T3}, 6'); a(f's_add_u32 s{S_T2}, s{S_T2}, s{S_T3}')
    a(f'v_bfe_u32 v{T}, v{L}, 1, 1'); a(f'v_lshlrev_b32 v{T}, 5, v{T}')
    a(f'v_and_b32 v{T+1}, 1, v{L}'); a(f'v_lshl_add_u32 v{T}, v{T+1}, 3, v{T}')
    a(f'v_and_b32 v{T+1}, 1, v{G}'); a(f'v_lshl_add_u32 v{T}, v{T+1}, 4, v{T}')
    a(f'v_add_u32 v{r.aMst}, s{S_T2}, v{T}')
    a(f's_cmp_lt_u32 s{S_W}, 2'); a(f's_cselect_b32 s{S_XR}, -1, s{S_XR}'); a(f's_cselect_b32 s{S_T3}, {REP}, 0')
    a(f'v_bfe_u32 v{T}, v{L}, 2, 2'); a(f'v_mul_lo_u32 v{T}, v{T}, s{S_T3}'); a(f'v_add_u32 v{r.aMst}, v{r.aMst}, v{T}')
    a(f's_mul_i32 s{S_T3}, s{S_W}, {REP}'); add64(a, S_CME, S_CML, f's{S_T3}')
    a(f's_bfe_u32 s{S_T2}, s{S_H}, 0x20001'); a(f's_lshl_b32 s{S_T2}, s{S_T2}, 11')
    a(f's_lshr_b32 s{S_T3}, s{S_H}, 3'); a(f's_lshl_b32 s{S_T3}, s{S_T3}, 8'); a(f's_add_u32 s{S_T2}, s{S_T2}, s{S_T3}')
    a(f's_and_b32 s{S_T3}, s{S_H}, 1'); a(f's_lshl_b32 s{S_T3}, s{S_T3}, 7'); a(f's_add_u32 s{S_T2}, s{S_T2}, s{S_T3}')
    a(f's_lshl_b32 s{S_T3}, s{S_W}, 2'); a(f's_add_u32 s{S_M0}, s{S_T2}, s{S_T3}')
    a(f'v_lshrrev_b32 v{T}, 1, v{G}'); a(f'v_lshlrev_b32 v{T}, 8, v{T}'); a(f'v_and_b32 v{T+1}, 1, v{G}')
    a(f'v_lshl_add_u32 v{T}, v{T+1}, 5, v{T}'); a(f'v_lshl_add_u32 v{T}, v{N}, 4, v{T}')
    a(f's_lshl_b32 s{S_T}, s{S_W}, 9'); a(f's_add_u32 s{S_T}, s{S_T}, {LM}'); a(f'v_add_u32 v{r.aOw}, s{S_T}, v{T}')
    a(f'v_and_b32 v{T}, 2, v{L}'); a(f'v_cmp_eq_u32 vcc, 0, v{T}')
    a(f's_lshl_b32 s{S_T}, s{S_W}, 10'); a(f's_add_u32 s{S_T}, s{S_T}, {LM+12288}'); a(f'v_add_u32 v{T}, s{S_T}, v{L16}')
    a(f'v_and_b32 v{T+1}, 1, v{G}'); a(f'v_lshlrev_b32 v{T+1}, 5, v{T+1}'); a(f'v_xor_b32 v{T}, v{T}, v{T+1}')
    a(f'v_cndmask_b32 v{r.aOw}, v{T}, v{r.aOw}, vcc')
    a(f'v_lshrrev_b32 v{T}, 3, v{N}'); a(f'v_lshlrev_b32 v{T}, 8, v{T}'); a(f'v_and_b32 v{T+1}, 7, v{N}'); a(f'v_lshl_add_u32 v{T}, v{T+1}, 4, v{T}')
    a(f'v_lshl_add_u32 v{T}, v{G}, 9, v{T}')
    a(f's_lshl_b32 s{S_T}, s{S_W}, 11'); a(f's_add_u32 s{S_T2}, s{S_T}, {HB_K}'); a(f'v_add_u32 v{r.aK}, s{S_T2}, v{T}')
    a(f'v_lshlrev_b32 v{T}, 4, v{N}'); a(f'v_lshl_add_u32 v{T}, v{G}, 9, v{T}')
    a(f's_add_u32 s{S_T2}, s{S_T}, {HB_V}'); a(f'v_add_u32 v{r.aV}, s{S_T2}, v{T}')
    a(f'v_lshrrev_b32 v{T}, 2, v{N}'); a(f'v_lshlrev_b32 v{T}, 5, v{T}'); a(f'v_and_b32 v{T+1}, 1, v{N}'); a(f'v_lshl_add_u32 v{T}, v{T+1}, 4, v{T}')
    a(f'v_lshl_add_u32 v{T}, v{G}, 7, v{T}')
    a(f's_lshl_b32 s{S_T}, s{S_W}, 9'); a(f's_add_u32 s{S_T2}, s{S_T}, {HB_KM}'); a(f'v_add_u32 v{r.aKm}, s{S_T2}, v{T}')
    a(f'v_lshlrev_b32 v{T}, 3, v{L}'); a(f's_add_u32 s{S_T2}, s{S_T}, {HB_VM}'); a(f'v_add_u32 v{r.aVm}, s{S_T2}, v{T}')
    a(f'v_add_u32 v{r.aL}, {LM}, v{L16}')
    a(f'v_lshlrev_b32 v{T}, 2, v{L}'); a(f'v_add_u32 v{r.PG+1}, {LS+4096}, v{T}')
    a(f's_mov_b32 s{S_XP}, 0x01010101'); a(f's_mov_b32 s{S_XP+1}, 0x01010101')
    KBG = r.T+3; VO = r.VX
    a(f'v_lshrrev_b32 v{T}, 1, v{G}'); a(f'v_lshlrev_b32 v{T}, 4, v{T}')
    a(f'v_and_b32 v{T+1}, 1, v{G}'); a(f'v_lshl_add_u32 v{KBG}, v{T+1}, 2, v{T}')
    a(f's_lshl_b32 s{S_T}, s{S_H}, 8'); a(f's_lshl_b32 s{S_T2}, s{S_W}, 6'); a(f's_add_u32 s{S_T}, s{S_T}, s{S_T2}')
    a(f'v_lshlrev_b32 v{VO}, 15, v{KBG}'); a(f'v_lshl_add_u32 v{VO}, v{N}, 2, v{VO}'); a(f'v_add_u32 v{VO}, s{S_T}, v{VO}')
    a(f's_mov_b32 s{S_SRD+2}, {4*MB}'); a(f's_mov_b32 s{S_SRD+3}, 0x20000')
    NB = 11; PK = 88; U = 96
    groups = [(m, s, rg) for m in 'kvq' for rg in range(2) for s in range(8)]
    TQ = r.VX+1; TO = r.VX+2; TD_ = r.VX+3
    a(f'v_lshrrev_b32 v{TQ}, 1, v0'); a(f'v_lshlrev_b32 v{TQ}, 13, v{TQ}'); a(f'v_and_b32 v{TO}, 1, v0'); a(f'v_lshl_add_u32 v{TQ}, v{TO}, 7, v{TQ}')
    a(f's_lshl_b32 s{S_T}, s{S_H}, 8'); a(f'v_add_u32 v{TQ}, s{S_T}, v{TQ}')
    a(f's_lshl_b32 s{S_T}, s{S_H}, 17'); a(f'v_lshl_add_u32 v{TO}, v0, 7, s{S_T}')
    for i, ka in enumerate((KA_WK, KA_WV, KA_WQ, KA_WO)): a(f's_load_dwordx2 s[{60+2*i}:{61+2*i}], s[0:1], {ka}')
    a('s_waitcnt lgkmcnt(0)')
    def touch(hm):
        if hm >= 8 or not ahead: return 0
        for i in range(2):
            off = ((128*(hm&1) + 256*i) * 8192) if hm < 6 else (65536*(hm&1) + 32768*i)
            add64(a, S_TMP, 60 + 2*(hm >> 1), off)
            a(f'global_load_dword v{TD_}, v{TQ if hm < 6 else TO}, s[{S_TMP}:{S_TMP+1}]')
        return 2
    def put(block, rg, i, emit, pend):
        k, base = r.place[block]
        if k == 'v': emit(base+4*rg+i)
        elif k == 'a':
            emit(pend+i); a(f'v_accvgpr_write_b32 a{base+4*rg+i}, v{pend+i}')
        else:
            emit(pend+i)
            if i == 3:
                a(f'ds_write_b128 v{r.aW}, {vr(pend,4)} offset:{base+1024*rg}'); a('s_waitcnt lgkmcnt(0)')
    DEPTH = 6
    wf = WF[0]
    kaoff = {'q': KA_WQ, 'k': KA_WK, 'v': KA_WV}
    cur = [None]
    def issue(gi):
        m, s, rg = groups[gi]
        if cur[0] != m:
            a(f's_load_dwordx2 s[{S_SRD}:{S_SRD+1}], s[0:1], {kaoff[m]}'); a('s_waitcnt lgkmcnt(0)'); cur[0] = m
        if True:
            if s < 4: a(f's_and_b32 s{S_T2}, s{S_W}, {ROT[0]}'); a(f's_xor_b32 s{S_T2}, s{S_T2}, {s}')
            else: a(f's_xor_b32 s{S_T2}, s{S_W}, {s}')
            a(f's_and_b32 s{S_T3}, s{S_T2}, 1'); a(f's_lshl_b32 s{S_T3}, s{S_T3}, 21'); a(f's_and_b32 s{S_T2}, s{S_T2}, 6'); a(f's_lshl_b32 s{S_T2}, s{S_T2}, 13')
            a(f's_add_u32 s{S_T3}, s{S_T3}, s{S_T2}')
        b = (gi % NB) * 8
        for jj in range(8):
            a(f's_add_u32 s{S_T}, s{S_T3}, {(128*rg+DELTA2[jj])*8192}')
            a(f'buffer_load_dword v{b+jj}, v{VO}, s[{S_SRD}:{S_SRD+3}], s{S_T} offen {wf}')
    def consume(gi):
        m, s, rg = groups[gi]; b = (gi % NB) * 8
        for t in range(2):
            for i in range(4):
                lo, hi = b+2*i, b+2*i+1
                if m == 'q':
                    def emit(d, lo=lo, hi=hi, t=t):
                        if t == 0: a(f'v_lshlrev_b32 v{U}, 16, v{lo}'); a(f'v_lshlrev_b32 v{U+1}, 16, v{hi}')
                        else: a(f'v_and_b32 v{U}, 0xffff0000, v{lo}'); a(f'v_and_b32 v{U+1}, 0xffff0000, v{hi}')
                        a(f'v_mul_f32 v{U}, s{S_C}, v{U}'); a(f'v_mul_f32 v{U+1}, s{S_C}, v{U+1}'); a(f'v_cvt_pk_bf16_f32 v{d}, v{U}, v{U+1}')
                else:
                    def emit(d, lo=lo, hi=hi, t=t): a(f'v_perm_b32 v{d}, v{hi}, v{lo}, s{S_PHI if t else S_PLO}')
                put((m, t, s), rg, i, emit, PK + 4*t)
    ops = []
    for hm in range(ahead): touch(hm)
    for gi in range(len(groups) + DEPTH):
        if gi < len(groups):
            n = touch(gi // 8 + ahead) if gi % 8 == 0 else 0
            issue(gi); ops.append(n + 8)
        if gi == DEPTH - 1 and first: a(f's_waitcnt vmcnt({sum(ops)})'); first()
        if gi == 14 and mid: a('s_waitcnt vmcnt(40)'); mid(None)
        if gi >= DEPTH:
            a(f's_waitcnt vmcnt({sum(ops[gi-DEPTH+1:])})')
            consume(gi - DEPTH)
    for hm in range(6 + ahead, 8): touch(hm)
    a(f's_load_dwordx2 s[{S_SRD}:{S_SRD+1}], s[0:1], {KA_WO}')
    a(f's_lshl_b32 s{S_T}, s{S_H}, 17'); a(f's_lshl_b32 s{S_T2}, s{S_W}, 8'); a(f's_add_u32 s{S_T}, s{S_T}, s{S_T2}')
    a(f'v_lshlrev_b32 v{VO}, 10, v{KBG}'); a(f'v_lshl_add_u32 v{VO}, v{N}, 4, v{VO}'); a(f'v_add_u32 v{VO}, s{S_T}, v{VO}')
    a('s_waitcnt lgkmcnt(0)')
    og = [(k, rg) for k in range(2) for rg in range(2)]
    def oissue(gi):
        k, rg = og[gi]; b = (gi % 2) * 32
        for jj in range(8):
            a(f's_mov_b32 s{S_T}, {(64*k+32*rg+DELTA[jj])*1024}')
            a(f'buffer_load_dwordx4 {vr(b+4*jj,4)}, v{VO}, s[{S_SRD}:{S_SRD+3}], s{S_T} offen')
    def ocons(gi):
        k, rg = og[gi]; b = (gi % 2) * 32
        for t in range(8):
            for i in range(4):
                def emit(d, hi=b+4*(2*i+1)+(t>>1), lo=b+4*(2*i)+(t>>1), t=t): a(f'v_perm_b32 v{d}, v{hi}, v{lo}, s{S_PHI if t & 1 else S_PLO}')
                put(('o', t, k), rg, i, emit, PK + 4*(t&1))
    oissue(0); oissue(1)
    for gi in range(4):
        a(f's_waitcnt vmcnt({8 if gi < 3 else 0})'); ocons(gi)
        if gi + 2 < 4: oissue(gi + 2)

def board_setup(a, r, stf):
    a(f's_lshl_b32 s{S_T}, s{S_H}, 2'); a(f's_add_u32 s{S_T}, s{S_T}, {W.CB - LM}')
    add64(a, S_BW, S_WS, f's{S_T}'); add64(a, S_BR, S_WS, W.CB - LS - 4096); a(f's_mov_b32 s{S_GS}, 0')
    a('s_mov_b64 exec, 0x101'); a(f'global_store_dword v{r.aL}, v{r.Z}, s[{S_BW}:{S_BW+1}] {stf}'); a('s_mov_b64 exec, -1')

def chain_init_comm(a, r, stf, first, T=None):
    T = r.R if T is None else T
    a(f's_load_dwordx2 s[{S_TMP}:{S_TMP+1}], s[0:1], {KA_MEM0}')
    a(f'v_and_b32 v{T}, 0x30, v{r.aL}'); a(f'v_lshlrev_b32 v{T}, 1, v{T}'); a(f'v_bfe_u32 v{T+1}, v{r.aL}, 8, 1'); a(f'v_lshl_add_u32 v{T}, v{T+1}, 10, v{T}')
    a(f'v_add_u32 v{T}, s{S_M0}, v{T}')
    a(f's_xor_b32 s{S_T}, s{S_EP}, 1')
    for i in range(4): a(f'v_mov_b32 v{T+4+i}, s{S_T}')
    a('s_waitcnt lgkmcnt(0)')
    a(f'global_load_dword v{T+2}, v{T}, s[{S_TMP}:{S_TMP+1}]'); a(f'global_load_dword v{T+3}, v{T}, s[{S_TMP}:{S_TMP+1}] offset:16')
    if first:
        a(f'global_store_dwordx4 v{r.aL}, {vr(T+4,4)}, s[{S_CPR}:{S_CPR+1}] {stf}')
        a(f'global_store_dwordx4 v{r.aL}, {vr(T+4,4)}, s[{S_CPR}:{S_CPR+1}] offset:1024 {stf}')
    a('s_waitcnt vmcnt(0)')
    a(f'v_and_or_b32 v{T+2}, v{T+2}, -2, s{S_EM}')
    a(f's_mov_b64 exec, s[{S_XR}:{S_XR+1}]')
    a(f'global_store_dwordx2 v{r.aMst}, {vr(T+2,2)}, s[{S_CM}:{S_CM+1}] {stf}')
    a('s_mov_b64 exec, -1'); a('s_waitcnt vmcnt(0)')

def group_arrive(a, T, off):
    l1 = a.newlabel('Lgb')
    a('s_barrier')
    a(f'v_mov_b32 v{T}, {off}'); a(f'v_mov_b32 v{T+1}, 1')
    a(f's_cmp_lg_u32 s{S_W}, 0'); a(f's_cbranch_scc1 {l1}')
    a('s_mov_b64 exec, 1'); a(f'global_atomic_add v{T}, v{T+1}, s[{S_DBG}:{S_DBG+1}] sc1'); a('s_waitcnt vmcnt(0)'); a('s_mov_b64 exec, -1')
    a.label(l1)
def group_wait(a, T, off, count, fail):
    l2 = a.newlabel('Lgb'); l3 = a.newlabel('Lgb')
    a(f's_mov_b32 s{S_SPIN}, 0'); a(f'v_mov_b32 v{T}, {off}')
    a.label(l2)
    a(f'global_load_dword v{T+2}, v{T}, s[{S_DBG}:{S_DBG+1}] sc1'); a('s_waitcnt vmcnt(0)')
    a(f'v_readfirstlane_b32 s{S_T}, v{T+2}')
    a(f's_cmp_ge_u32 s{S_T}, {count}'); a(f's_cbranch_scc1 {l3}')
    a('s_sleep 2')
    a(f's_add_u32 s{S_SPIN}, s{S_SPIN}, 1'); a(f's_cmp_lt_u32 s{S_SPIN}, 0x60000'); a(f's_cbranch_scc1 {l2}')
    a(f's_branch {fail}')
    a.label(l3)

DPPQ = 'quad_perm:[2,3,0,1] row_mask:0xf bank_mask:0xf'
XA = 's_mov_b64 exec, -1'

def prog_load(a, r): a(f'global_load_dword v{r.PG}, v{r.PG+1}, s[{S_FH}:{S_FH+1}] sc1')
def prog_block(a, r, lbl, back, need_sgpr, fail):
    a.label(lbl)
    prog_load(a, r); a('s_waitcnt vmcnt(0)')
    a(f'v_cmp_ge_u32 s[{S_TMP}:{S_TMP+1}], s{need_sgpr}, v{r.PG}'); a(f's_and_b64 s[{S_TMP}:{S_TMP+1}], s[{S_TMP}:{S_TMP+1}], s[{S_XP}:{S_XP+1}]'); a(f's_cbranch_scc0 {back}')
    a('s_sleep 1')
    a(f's_add_u32 s{S_SPIN}, s{S_SPIN}, 1'); a(f's_cmp_lt_u32 s{S_SPIN}, 0x60000'); a(f's_cbranch_scc1 {lbl}')
    a(f's_branch {fail}')
def kv_load(a, r, i, dst, base=None):
    base = base or S_KV
    ad, off = ((r.aK, 0), (r.aK, 128), (r.aV, 0), (r.aV, 256))[i]
    a(f'global_load_dwordx4 {vr(dst+4*i,4)}, v{ad}, s[{base}:{base+1}] offset:{off} sc1')

def chain_start(a, r, fail, fused, started=None):
    HS = W.H[1].HB - W.H[0].HB
    a(f's_mul_i32 s{S_T2}, s{S_HALF}, {HS}'); a(f's_lshl_b32 s{S_T}, s{S_H}, 21'); a(f's_add_u32 s{S_T}, s{S_T}, s{S_T2}')
    a(f's_add_u32 s{S_T}, s{S_T}, {W.H[0].HB}'); add64(a, S_KV, S_WS, f's{S_T}'); a(f's_mov_b64 s[{S_HB}:{S_HB+1}], s[{S_KV}:{S_KV+1}]')
    a(f's_mov_b32 s{S_STEP}, 0'); a(f's_mov_b32 s{S_SPIN}, 0')
    a(f's_lshl_b32 s{S_T}, s{S_H}, 8'); a(f's_lshl_b32 s{S_T2}, s{S_HALF}, 17'); a(f's_add_u32 s{S_T}, s{S_T}, s{S_T2}')
    a(f's_add_u32 s{S_T}, s{S_T}, {FL(0, "CHP")}'); add64(a, S_FW, S_WS, f's{S_T}')
    a(f's_sub_u32 s{S_FH}, s{S_FW}, {FL(0, "CHP") - FL(0, "HEAD") + LS + 4096}'); a(f's_subb_u32 s{S_FH+1}, s{S_FW+1}, 0')
    a(f'v_mov_b32 v{r.PG}, 0'); a(f's_mov_b32 s{S_SP}, 0')
    for i in range(2): a(f'global_load_dwordx4 {vr(r.M+24+4*i,4)}, v{r.aL}, s[{S_CPR}:{S_CPR+1}] offset:{1024*i} sc1')
    add64(a, S_KV, S_KV, HB_REC)

def chain_wave(a, r, w, stf, fail, done, fused=1, pat=(13, 16, 16, 16), d1=(100, 140, 280, 320), d2=(220, 120, 0, 0), e23=(100, 80, 60, 60), lpos=3, nb=(2, 2, 1, 2), bk=(120, 100, 100, 120), es=80, eb=None, e3in=1, cp=1, rep=1, vdef=1, wsplit=0, vw=(1, 1, 1, 4), hkw=(0, 1), nowait=0, pkpos=0, pvearly=0, clk=0, e0e=None, e1g=0, ack1=(None, None, 0, 0), ack2=(0, 0, 0, 0), bx=None, bp=(18, 19, 21, 23, 24, 25), bg=16, c1=(40, 40, 40, 40), ef='sc1', rt=None, started=None,
               nomax=1, stamps=False, stampsel=None, nocomm=0, nohk=0):
    R, A, M, T = r.R, r.A, r.M, r.T
    if isinstance(nb, tuple): nb = nb[w]
    if isinstance(bk, tuple): bk = bk[w]
    Aq = [A, A+4]; Ak = [A+8, A+12]; Av = [A+16, A+20]
    ACC = {'q': Aq, 'k': Ak, 'v': Av}
    ns = [0]; sid = [0]
    def st(name=None):
        if name is None:
            name = sid[0]; sid[0] += 1
        if stamps and ((stampsel is None and isinstance(name, int)) or (stampsel is not None and name in stampsel)):
            a(f's_memtime s[{S_STAMP+2*ns[0]}:{S_STAMP+2*ns[0]+1}]'); ns[0] += 1
    def tr(k):
        if rt is not None: a(f's_memtime s[{(S_STAMP+2*k) if k != 10 else 96}:{((S_STAMP+2*k) if k != 10 else 96)+1}]')
    pos = [None]
    def hook():
        if pos[0] is None or bx is None: return
        if w == 1 and pos[0] == bx: a('s_mov_b64 exec, 0x101'); a(f'global_store_dword v{r.aL}, v{r.PZ}, s[{S_BW}:{S_BW+1}] {stf}'); a(XA)
        if w == 0 and pos[0] in bp: a(f'global_load_dword v{r.PG}, v{r.PG+1}, s[{S_BR}:{S_BR+1}] sc1')
        pos[0] += 1
    def smf(acc, aop, b): a(f'v_smfmac_f32_16x16x64_bf16 {vr(acc,4)}, {vr(aop,4)}, {b}, v{r.idx}'); hook()
    def m32(d, x, y, c): a(f'v_mfma_f32_16x16x32_bf16 {vr(d,4)}, {vr(x,4)}, {vr(y,4)}, {vr(d,4) if c else 0}'); hook()
    def m16(d, x, y, c): a(f'v_mfma_f32_16x16x16_bf16 {vr(d,4)}, {vr(x,2)}, {vr(y,2)}, {vr(d,4) if c else 0}'); hook()
    def ldh(dst, b, hh): a(f'ds_read_b128 {vr(dst+4*hh,4)}, v{r.aW} offset:{r.place[b][1]+1024*hh}')
    def nops(c):
        n = c // 4
        while n > 0:
            k = min(n, 16); a(f's_nop {k-1}'); n -= k
    def add0(c): a(f'v_add_f32 v{c}, v{c}, v{c+2}')
    def add1(c): a(f'v_add_f32 v{c+1}, v{c+1}, v{c+3}')
    def cvt(d, x, y): a(f'v_cvt_pk_bf16_f32 v{d}, v{x}, v{y}')
    def pka(d, x, y): a(f'v_pk_add_f32 {vr(d,2)}, {vr(x,2)}, {vr(y,2)}')
    def e_load(j, f='sc1'):
        b = S_CME if (j < 4 and rep) else S_CML
        a(f'global_load_dwordx4 {vr(M+4*j,4)}, v{r.aL}, s[{b}:{b+1}] offset:{1024*frag_of(w,j)-4096} {f}')
    PL = [M+24, R+24, M+16, R+16]; PD = A+24; t0 = A+28; t1 = A+29
    def p_loads(k=0):
        a(f'global_load_dwordx4 {vr(PL[k],4)}, v{r.aL}, s[{S_CPR}:{S_CPR+1}] sc1')
        a(f'global_load_dwordx4 {vr(PL[k]+4,4)}, v{r.aL}, s[{S_CPR}:{S_CPR+1}] offset:1024 sc1')
    def ring_prefetch():
        for e in range(4):
            for hh in range(2): ldh(R+8*e, ('q', 1, e), hh)
    def zero(base, n):
        for i in range(n): a(f'v_mov_b32 v{base+i}, 0')
    def spin_or_fail():
        a(f's_add_u32 s{S_SPIN}, s{S_SPIN}, 1'); a(f's_cmp_lt_u32 s{S_SPIN}, 0x60000'); a(f's_cbranch_scc0 {fail}')
    LA = a.newlabel('Lc_A'); Ldone = a.newlabel('Lc_done')
    Lr = [a.newlabel('Lc_rE') for _ in range(5)]; Lc = [a.newlabel('Lc_cE') for _ in range(5)]
    Lhk = a.newlabel('Lc_hk'); Lhb = a.newlabel('Lc_hb'); Lexp = a.newlabel('Lc_exp'); Lfb = a.newlabel('Lc_fb'); Lnofb = a.newlabel('Lc_nofb'); Lsp = a.newlabel('Lc_sp'); Lspb = a.newlabel('Lc_spb')
    if stamps: _ = [a(f's_mov_b32 s{84+k}, 0') for k in range(12)]
    zero(A, 24); ring_prefetch()
    a(f's_add_u32 s{S_GS}, s{S_GS}, 1'); a(f'v_mov_b32 v{r.PZ}, s{S_GS}')
    for j in range(4): e_load(j)
    a('s_waitcnt vmcnt(0)')
    a('.p2align 6')
    a.label(LA)
    e3 = False; ex = 1 if eb is not None else 0
    ringof = {('q',1,0):0, ('q',1,1):1, ('q',1,2):2, ('q',1,3):3, ('q',1,4):0, ('q',0,4):1, ('q',1,5):2, ('q',0,5):3, ('q',0,6):0, ('q',0,7):1, ('q',1,6):2, ('q',1,7):3}
    def S(m, t, s):
        b = (m, t, s)
        smf(ACC[m][t], M+4*s, vr(R+8*ringof[b], 8) if b in ringof else r.blk(b))
    def chk(j):
        return [f'v_bitop3_b32 v{t0}, v{M+4*j}, v{M+4*j+2}, s{S_EM} bitop3:0x7e', f'v_and_b32 v{t0}, 1, v{t0}', f'v_cmp_ne_u32 vcc, 0, v{t0}']
    vm0 = ['E0', 'E1'] + (['x'] if ex else []) + ['E2'] + ([] if e3in else ['E3'])
    ee = e0e is not None; eh = ee and d2[w] < e0e
    if ee: vm0 = ['E0'] + (['m'] if eh else []) + ['x', 'E1', 'E2'] + ([] if e3in else ['E3'])
    a(f's_waitcnt vmcnt({len(vm0)-1}) lgkmcnt(0)')
    tr(7)
    for l in chk(0): a(l)
    a.label(Lc[0])
    st()
    tr(8)
    order = (('q',1),('q',0),('k',0),('k',1),('v',0),('v',1))
    dsq = [(R+24, ('q',1,3), 0), (R+24, ('q',1,3), 1), (R, ('q',1,4), 0), (R, ('q',1,4), 1), (R+16, ('q',1,2), 0), (R+16, ('q',1,2), 1),
           None, (R+8, ('q',0,4), 0), (R+8, ('q',0,4), 1), None, None, None,
           None, (R+16, ('q',1,5), 0), (R+16, ('q',1,5), 1), None, None, None]
    cnt = 0
    vm = list(vm0)
    def after_of(n): return len(vm) - 1 - vm.index(n)
    issued_at = {}
    def probe():
        a(f'global_load_dword v{r.PG}, v{r.PG+1}, s[{S_BR}:{S_BR+1}] sc1')
    def extras(cnt):
        if e3in and cnt == 2: e_load(3); vm.append('E3')
        if cnt == lpos: e_load(4); vm.append('E4')
    for sl in range(3):
        c = chk(sl+1)
        for i, (m, t) in enumerate(order):
            S(m, t, sl)
            if dsq[cnt]: ldh(*dsq[cnt])
            extras(cnt)
            if cnt == 0: a(f's_mov_b32 s{S_FB}, 0')
            if cnt == 11: a('s_waitcnt lgkmcnt(2)')
            if cnt == 1: a(f's_cbranch_vccnz {Lr[0]}')
            cnt += 1
            if i == cp: a(f's_waitcnt vmcnt({after_of("E%d" % (sl+1))})')
            if cp <= i < cp + 3: a(c[i-cp])
            if fused and w == hkw[0] and cnt == 7:
                a(f's_add_u32 s{S_T3}, s{S_STEP}, 1'); a(f's_min_u32 s{S_T3}, s{S_T3}, 63'); a(f'v_cmp_ge_u32 s[{S_TMP}:{S_TMP+1}], s{S_T3}, v{r.PG}')
        a(f's_cbranch_vccnz {Lr[sl+1]}')
        issued_at[sl+1] = list(vm)
        a.label(Lc[sl+1])
    assert 2 <= lpos < 14
    c = chk(4)
    a('s_waitcnt lgkmcnt(4)')
    S('q',1,3)
    a(f's_waitcnt vmcnt({after_of("E4")})')
    a(f'ds_write_b128 v{r.aL}, {vr(M+16,4)} offset:{1024*w}')
    a(c[0])
    S('q',0,3); ldh(R+24, ('q',0,5), 0); extras(19); a(c[1])
    S('k',0,3); ldh(R+24, ('q',0,5), 1); extras(20); a(c[2])
    S('k',1,3); extras(21)
    Lbs = a.newlabel('Lc_bs'); Lbg = a.newlabel('Lc_bg')
    if fused and w == hkw[0]:
        a(f's_and_b64 s[{S_TMP}:{S_TMP+1}], s[{S_TMP}:{S_TMP+1}], s[{S_XP}:{S_XP+1}]'); a(f's_cbranch_scc1 {Lhb}'); a.label(Lhk)
    if not vdef: S('v',0,3)
    a(f's_cbranch_vccnz {Lr[4]}')
    a.label(Lc[4])
    tr(9)
    if not nohk and pkpos == 4: a(f's_mov_b64 exec, s[{S_XH0}:{S_XH0+1}]'); a(f'global_store_dwordx4 v{r.aKm}, {vr(T,4)}, s[{S_HB}:{S_HB+1}] sc1'); a(XA)
    a('s_waitcnt lgkmcnt(2)'); a('s_barrier')
    tr(10)
    pos[0] = 0
    def rdm(j): a(f'ds_read_b128 {vr(M+16+4*j,4)}, v{r.aL} offset:{1024*(w^j)}')
    def pub_k(): a(f's_mov_b64 exec, s[{S_XH0}:{S_XH0+1}]'); a(f'global_store_dwordx4 v{r.aKm}, {vr(T,4)}, s[{S_HB}:{S_HB+1}] sc1'); a(XA)
    def pub_v(): a(f'global_store_dwordx2 v{r.aVm}, {vr(A+30,2)}, s[{S_HB}:{S_HB+1}] sc1')
    hk = []
    if not nohk:
        hk = [lambda i=i: kv_load(a, r, i, M) if not (vdef and i == 3) else None for i in range(4)]
        if fused and w == hkw[1]: hk.append(lambda: (a('s_mov_b64 exec, 1'), a(f'global_store_dword v{r.Z}, v{t1}, s[{S_FW}:{S_FW+1}] sc1'), a(XA)))
        if fused and w == hkw[0]: hk.append(lambda: prog_load(a, r))
        if w not in hkw or not fused: hk.append(lambda: None)
    def H():
        if hk: hk.pop(0)()
    rdm(1)
    if not vdef: S('v',1,3)
    rdm(2); rdm(3)
    Lk0 = a.newlabel('Lc_k0'); Lk0b = a.newlabel('Lc_k0b')
    S('q',1,4); a(f's_cmp_eq_u32 s{S_STEP}, 0'); a(f's_cbranch_scc1 {Lk0}'); a.label(Lk0b); H()
    S('q',0,4); ldh(R+0, ('q',0,6), 0); H()
    S('k',0,4); ldh(R+0, ('q',0,6), 1); H()
    S('k',1,4); ldh(R+8, ('q',0,7), 0); H(); a('s_waitcnt lgkmcnt(5)')
    S('q',1,5); ldh(R+8, ('q',0,7), 1)
    if not nohk and pkpos == 3: pub_k()
    S('q',0,5); ldh(R+16, ('q',1,6), 0)
    if not nohk and pvearly: pub_v()
    S('k',0,5); ldh(R+16, ('q',1,6), 1); a('s_waitcnt lgkmcnt(6)')
    S('k',0,6); ldh(R+24, ('q',1,7), 0)
    S('k',0,7); ldh(R+24, ('q',1,7), 1); a('s_waitcnt lgkmcnt(4)')
    S('q',0,6); H()
    TA = [R+0, R+2]; TD = [R+4, R+8]; SX = [R+16, R+20]; SM = R+24
    S('q',0,7); add0(Ak[0])
    S('k',1,5); add1(Ak[0])
    assert not hk
    S('k',1,6); cvt(TA[0], Ak[0], Ak[0]+1)
    S('k',1,7); a('s_waitcnt lgkmcnt(0)'); add0(Aq[0])
    S('q',1,6); a(f's_mov_b64 vcc, s[{S_XH1}:{S_XH1+1}]'); add1(Aq[0])
    S('q',1,7); cvt(TA[0]+1, Aq[0], Aq[0]+1)
    st()
    vq = [(t, s) for s in range(3 if vdef else 4, 8) for t in range(2)]
    def V(n=1):
        for _ in range(n):
            t, s = vq.pop(0); S('v', t, s)
    add0(Ak[1]); add1(Ak[1])
    m16(TD[0], TA[0], r.I, 0)
    cvt(TA[1], Ak[1], Ak[1]+1)
    add0(Aq[1]); add1(Aq[1])
    cvt(TA[1]+1, Aq[1], Aq[1]+1)
    m16(TD[1], TA[1], r.I, 0)
    a(f's_cmp_lg_u32 s{S_STEP}, 0'); a(f's_cselect_b32 s{S_T}, {HB_REC}, 0')
    V(1)
    if not nohk and not pvearly: pub_v()
    V(vw[0]-1)
    add64(a, S_HB, S_HB, f's{S_T}')
    for i in range(4): cvt(T+i, TD[0]+i, TD[1]+i)
    a(f's_cmp_eq_u32 s{S_STEP}, s{S_SP}'); a(f's_cbranch_scc1 {Lsp}')
    a.label(Lspb)
    m32(SX[0], r.KX, T, 0)
    a(f's_cmp_lt_u32 s{S_STEP}, 62'); a(f's_cselect_b32 s{S_T}, {HB_REC}, 0')
    m32(SX[1], r.KX+4, T, 0)
    m32(SM, T, T, 0)
    vrest = list(vq)
    V(vw[1])
    if vdef and not nohk: kv_load(a, r, 3, M)
    add64(a, S_KV, S_KV, f's{S_T}')
    for i in range(4): a(f'v_cndmask_b32_dpp v{SX[1]+i}, v{SX[0]+i}, v{SX[1]+i}, vcc {DPPQ}')
    SO = SX[1]; SMO = SM+1
    a(f'v_cndmask_b32_dpp v{SMO}, v{SM}, v{SM+1}, vcc {DPPQ}')
    V(vw[2])
    a(f'ds_write_b128 v{r.aL}, {vr(SO,4)} offset:{LS-LM+1024*w}')
    if wsplit: V(1)
    a(f'ds_write_b32 v{r.PG+1}, v{SMO} offset:{256*w}')
    V(vw[3]-1)
    if not nohk and pkpos == 1: pub_k()
    if bx is not None and w == 0: a(f'v_cmp_ne_u32 vcc, s{S_GS}, v{r.PG} ; nowaitcheck')
    V(1)
    pos[0] = None
    if bx is not None and w == 0:
        a(f's_cbranch_vccnz {Lbs}'); a.label(Lbg); a('s_waitcnt lgkmcnt(0)'); a('s_barrier')
    elif bx is not None and w == 1: a('s_waitcnt lgkmcnt(0)'); a('s_barrier')
    elif nowait & 1: a('s_barrier')
    else: a(f's_waitcnt vmcnt({0 if nohk else 5 + (1 if pkpos in (1, 3, 4) else 0) + (1 if (fused and w in hkw) else 0)}) lgkmcnt(0)'); a('s_barrier')
    st()
    tr(11)
    RD = [R+0, R+4, R+8]; RM = R+28
    o4 = (LS-LM+4096)//256
    for j in range(3): a(f'ds_read_b128 {vr(RD[j],4)}, v{r.aL} offset:{LS-LM+1024*(w^(j+1))}')
    V(1)
    a(f'ds_read2st64_b32 {vr(RM,2)}, v{r.PG+1} offset0:{w^1} offset1:{w^2}')
    a(f'ds_read_b32 v{RM+2}, v{r.PG+1} offset:{256*(w^3)}')
    V(len(vq))
    if not nohk and pkpos == 0: pub_k()
    assert not vq
    P = R+16; MX = R+26; TM = R+27
    D = [R+8, R+12]; SUM = R+28; X = R+0
    a('s_waitcnt lgkmcnt(2)')
    for i in range(4): a(f'v_add_f32 v{SO+i}, v{SO+i}, v{RD[0]+i}')
    pka(RD[1], RD[1], RD[2]); pka(RD[1]+2, RD[1]+2, RD[2]+2)
    a('s_waitcnt lgkmcnt(0)')
    a(f'v_add_f32 v{SMO}, v{SMO}, v{RM+2}'); a(f'v_add_f32 v{RM}, v{RM}, v{RM+1}')
    pka(SO, SO, RD[1]); pka(SO+2, SO+2, RD[1]+2)
    a(f'v_add_f32 v{SMO}, v{SMO}, v{RM}')
    pka(Av[0], Av[0], Av[0]+2); pka(Av[1], Av[1], Av[1]+2)
    def submax():
        a(f'v_max3_f32 v{MX}, v{SO}, v{SO+1}, v{SO+2}'); a(f'v_max3_f32 v{MX}, v{MX}, v{SO+3}, v{SMO}')
        a(f'v_max_f32_dpp v{MX}, v{MX}, v{MX} {DPPQ}')
        for sw in ('16', '32'):
            a(f'v_mov_b32 v{TM}, v{MX}'); a(f'v_permlane{sw}_swap_b32 v{MX}, v{TM}'); a(f'v_max_f32 v{MX}, v{MX}, v{TM}')
        for e in (SMO, SO, SO+1, SO+2, SO+3): a(f'v_sub_f32 v{e}, v{e}, v{MX}')
    if not nomax: submax()
    a.label(Lexp)
    a(f'v_exp_f32 v{X+4}, v{SMO}')
    cvt(r.VM, Av[0], Av[0]+1)
    a(f'v_exp_f32 v{X}, v{SO}')
    cvt(r.VM+2, Av[1], Av[1]+1)
    a(f'v_mov_b32_dpp v{TM}, v{X+4} {DPPQ}')
    a(f'v_exp_f32 v{X+1}, v{SO+1}')
    cvt(r.PZ, X+4, TM)
    a(f'v_exp_f32 v{X+2}, v{SO+2}')
    cvt(P, X, X+1)
    m16(SUM, r.One, r.PZ, 0); ldh(M+16, ('o',0,0), 0)
    a(f'v_exp_f32 v{X+3}, v{SO+3}')
    m16(D[0], r.VM, r.PZ, 0); ldh(M+16, ('o',0,0), 1)
    a(f'v_mov_b32_dpp v{P+2}, v{P} {DPPQ}')
    cvt(P+1, X+2, X+3)
    m16(D[1], r.VM+2, r.PZ, 0)
    a(f'v_mov_b32_dpp v{P+3}, v{P+1} {DPPQ}')
    st()
    m32(SUM, r.One, P, 1); ldh(M+24, ('o',0,1), 0)
    m32(D[0], r.VX, P, 1); ldh(M+24, ('o',0,1), 1)
    m32(D[1], r.VX+4, P, 1)
    a(f'v_rcp_f32 v{SUM+2}, v{SUM}')
    for i in range(4): a(f'v_mul_f32 v{D[0]+i}, v{D[0]+i}, v{SUM+2}')
    for i in range(2): a(f'v_pk_mul_f32 {vr(D[1]+2*i,2)}, {vr(D[1]+2*i,2)}, {vr(SUM+2,2)} op_sel_hi:[1,0]')
    OP = R+0
    for i in range(4): cvt(OP+i, D[0]+i, D[1]+i)
    a(f'ds_write_b128 v{r.aOw}, {vr(OP,4)}')
    if nowait & 2:
        a('s_barrier'); a(f'ds_read_b128 {vr(R+24,4)}, v{r.aL}')
    a(f'v_mfma_f32_32x32x8_bf16 {vr(A,16)}, {vr(r.Z,2)}, {vr(r.Z,2)}, 0')
    ldh(R+8, ('o',6,0), 0); ldh(R+8, ('o',6,0), 1)
    if nomax and not nowait & 2:
        a(f'v_max_f32 v{SUM}, v{SUM}, v{SUM+2}'); a(f'v_cmp_nge_f32 vcc, {f2u(2.0**60):#x}, v{SUM}')
        a(f's_cbranch_vccnz {Lfb}'); a.label(Lnofb)
    if not nowait & 2: a('s_waitcnt lgkmcnt(2)'); a('s_barrier')
    st()
    if rt is not None:
        lt = a.newlabel('Lc_t'); a('s_waitcnt lgkmcnt(0)'); a(f's_cmp_lg_u32 s{S_STEP}, {rt}'); a(f's_cbranch_scc1 {lt}')
        _ = [a(f's_mov_b32 s{84+k}, s{(S_STAMP+2*k) if k != 10 else 96}') for k in range(12)]
        a.label(lt)
    tr(0)
    O = R+24
    a(f'ds_read_b128 {vr(O,4)}, v{r.aL}'); a(f'ds_read_b128 {vr(O+4,4)}, v{r.aL} offset:1024')
    a(f'v_mfma_f32_32x32x8_bf16 {vr(A+16,16)}, {vr(r.Z,2)}, {vr(r.Z,2)}, 0')
    if not nohk and pkpos == 2: pub_k()
    a(f's_xor_b32 s{S_EM}, s{S_EM}, 1'); a(f's_add_u32 s{S_STEP}, s{S_STEP}, 1'); a(f's_mov_b32 s{S_SPIN}, 0')
    land = {('o',0,0): M+16, ('o',0,1): M+24, ('o',6,0): R+8, ('o',6,1): R+16, ('o',7,0): R, ('o',7,1): M+16}
    def ob(b): return vr(land[b], 8) if b in land else r.blk(b)
    def ad(t, e): c = A+4*t+e; return f'v_add_f32 v{c}, v{c}, v{c+2}'
    def fin(p):
        c = A+8*p
        return [ad(2*p+1, 0), ad(2*p+1, 1), f'v_cvt_pk_bf16_f32 v{c}, v{c}, v{c+4}', f'v_cvt_pk_bf16_f32 v{c+1}, v{c+1}, v{c+5}', f'v_and_or_b32 v{c}, v{c}, -2, s{S_EP}']
    def sto(p): return f'global_store_dwordx2 v{r.aPst}, {vr(A+8*p,2)}, s[{S_CP+2*p}:{S_CP+2*p+1}] {stf}'
    after = {3: [ad(0,0)], 4: [ad(0,1)], 5: fin(0), 6: [sto(0)], 7: [ad(2,0)], 8: [ad(2,1)], 9: fin(1)[:2], 10: fin(1)[2:], 11: [sto(1), ad(4,0), ad(4,1)],
             13: fin(2)[:2], 14: fin(2)[2:], 15: [sto(2), ad(6,0), ad(6,1), f'v_pk_add_f32 {vr(A+28,2)}, {vr(A+28,2)}, {vr(A+30,2)}'] + fin(3)[2:] + [sto(3)]}
    lq = [(R+16, ('o',6,1), 0), (R+16, ('o',6,1), 1), (R, ('o',7,0), 0), (R, ('o',7,0), 1), (M+16, ('o',7,1), 0), (M+16, ('o',7,1), 1)]
    a('s_waitcnt lgkmcnt(1)')
    younger = 0; issued = False; nst = 0
    for t in range(8):
        for k in range(2):
            i = 2*t+k
            smf(A+4*t, O+4*k, ob(('o', t, k)))
            if i == 0: a('s_waitcnt lgkmcnt(0)')
            if i in (1, 2, 3, 4, 5, 7): ldh(*lq.pop(0))
            if i == 12: a('s_waitcnt lgkmcnt(0)')
            if i == pat[w]: p_loads(); issued = True; tr(3)
            for l in after.get(i, []):
                if l.startswith('global_store') and nst == 3 and pat[w] == 15.5: p_loads(); issued = True; tr(3)
                a(l)
                if l.startswith('global_store'):
                    if issued: younger += 1
                    if nst in (0, 3): tr(1 if nst == 0 else 2)
                    nst += 1
    if nocomm: ns[0] = 9
    st()
    chores = []
    chores += [f's_waitcnt vmcnt({4 + (2 if issued else 0) + (0 if nohk else ((0 if pkpos >= 3 else 1) if vdef else (1 if pkpos == 4 else 2) + (1 if (fused and w in hkw) else 0)))})\n' + '\n'.join(f'v_mov_b32 v{PD+i}, 0' for i in (2, 3, 0, 1))] + [f'v_mov_b32 v{r.KX+i}, v{M+i}' for i in range(16)]
    chores += [f'ds_read_b128 {vr(R+8*e+4*hh,4)}, v{r.aW} offset:{r.place[("q",1,e)][1]+1024*hh}' for e in range(2) for hh in range(2)]
    chores += [f'v_mov_b32 v{A+i}, 0' for i in range(24)]
    chores += [f'v_mov_b32 v{A+30}, v{r.VM}', f'v_mov_b32 v{A+31}, v{r.VM+2}', f's_add_u32 s{S_GS}, s{S_GS}, 1', f'v_mov_b32 v{r.PZ}, s{S_GS}']
    nch = len(chores)
    def do_chores(cyc, pad=True):
        n = cyc // 4
        while n > 0 and chores: a(chores.pop(0)); n -= 1
        if pad: nops(4*n)
    def then(cyc, need):
        do_chores(cyc); do_chores(4*max(0, need - (nch - len(chores))))
    if not issued:
        if ack1[w] is not None: do_chores(240, False); a(f's_waitcnt vmcnt({ack1[w]})')
        else: do_chores(max(d1[w], 4))
        p_loads(); tr(3)
    for k in range(1, nb):
        do_chores(bk if (k > 1 or not issued) else max(4, bk - 40)); p_loads(k); younger += 2
    do_chores(max(min(c1[w], 4*len(chores)), 4), False)
    if eh: then(0, 5)
    if stamps and ns[0]:
        a('s_waitcnt lgkmcnt(0)')
        n = ns[0]
        for k in range(1, n):
            a(f's_sub_u32 s{S_T}, s{S_STAMP+2*k}, s{S_STAMP+2*k-2}'); a(f's_add_u32 s{84+k}, s{84+k}, s{S_T}')
        a(f's_sub_u32 s{S_T}, s{S_STAMP}, s83'); a(f's_mov_b32 s83, s{S_STAMP+2*(n-1)}')
        a(f's_cmp_eq_u32 s{S_STEP}, 1'); a(f's_cselect_b32 s{S_T}, 0, s{S_T}'); a(f's_add_u32 s84, s84, s{S_T}')
    def reduce(k, failto, early=None):
        a(f'v_smfmac_f32_16x16x64_bf16 {vr(PD,4)}, {vr(r.E,4)}, {vr(PL[k],8)}, v{r.idx} abid:1')
        if early: early()
        a(f'v_bitop3_b32 v{t0}, v{PL[k]}, v{PL[k]+2}, s{S_EP} bitop3:0x7e')
        a(f'v_bitop3_b32 v{t1}, v{PL[k]+4}, v{PL[k]+6}, s{S_EP} bitop3:0x7e')
        a(f'v_bitop3_b32 v{t0}, v{t0}, v{t1}, 1 bitop3:0xa8')
        a(f'v_cmp_ne_u32 vcc, 0, v{t0}')
        for ror in (8, 4):
            for i in range(4):
                a(f'v_add_f32_dpp v{PD+i}, v{PD+i}, v{PD+i} row_ror:{ror} row_mask:0xf bank_mask:0xf')
                if ror == 8 and i == 2: a(f's_cbranch_vccnz {failto}')
        a(f's_mov_b64 exec, s[{S_XR}:{S_XR+1}]')
        cvt(PD, PD, PD+1); cvt(PD+1, PD+2, PD+3)
        a(f'v_and_or_b32 v{PD}, v{PD}, -2, s{S_EM}')
        a(f'global_store_dwordx2 v{r.aMst}, {vr(PD,2)}, s[{S_CM}:{S_CM+1}] {stf}')
        a(XA)
    assert not e3
    Lok = a.newlabel('Lc_p1'); Lq = [a.newlabel('Lc_r1') for _ in range(nb)]
    a(f's_waitcnt vmcnt({younger})')
    tr(4)
    hookE = (lambda: e_load(0, ef)) if eh else None
    reduce(0, Lq[1 % nb], hookE)
    a.label(Lok)
    tr(5)
    a(f's_xor_b32 s{S_EP}, s{S_EP}, 1')
    EB = M+20
    def e_back():
        b = S_CME if rep else S_CML
        a(f'global_load_dwordx4 {vr(EB,4)}, v{r.aL}, s[{b}:{b+1}] offset:{1024*frag_of(w,0)-4096} sc1')
    if ee:
        if not eh: then(d2[w] - e0e, 5); e_load(0, ef); then(e0e, 5)
        else: then(d2[w], 5)
        e_back(); tr(6); then(e1g, 9); e_load(1, ef)
    else:
        if ack2[w]: do_chores(200, False); a('s_waitcnt vmcnt(0)')
        then(0 if ack2[w] else d2[w], 5); e_load(0, ef); tr(6); then(es, 9); e_load(1, ef)
        if eb is not None: then(eb, 0); e_back()
    if fused and w == hkw[1]: a(f's_sub_u32 s{S_T}, s{S_STEP}, 1'); a(f'v_mov_b32 v{t1}, s{S_T}')
    then(e23[w], 13); e_load(2, ef)
    if not e3in: then(es, 17); e_load(3, ef)
    do_chores(4*len(chores))
    if clk and w == 0:
        lk = a.newlabel('Lclk')
        if clk == 1: a(f's_and_b32 s{S_T}, s{S_STEP}, 7'); a(f's_cmp_lg_u32 s{S_T}, 1')
        else: a(f's_cmp_gt_u32 s{S_STEP}, {clk}')
        a(f's_cbranch_scc1 {lk}')
        a('s_memtime s[60:61]'); a('s_memrealtime s[62:63]'); a('s_waitcnt lgkmcnt(0)')
        for k in range(11, 1, -1): a(f's_mov_b32 s{84+k}, s{84+k-1}') if k != 6 else None
        a('s_sub_u32 s90, s60, s64'); a('s_sub_u32 s85, s62, s65'); a('s_mov_b32 s64, s60'); a('s_mov_b32 s65, s62')
        a.label(lk)
    a(f's_branch {LA}')
    for k in list(range(1, nb)) + [0]:
        a.label(Lq[k])
        p_loads((k-1) % nb); zero(PD, 4)
        if stamps and rt is None and not clk: a(f's_add_u32 s94, s94, 1')
        if k == 0: spin_or_fail()
        a(f's_waitcnt vmcnt({2*(nb-1) if not eh else (3 if nb == 2 else 0)})')
        reduce(k, Lq[(k+1) % nb], hookE)
        a(f's_branch {Lok}')
    if eb is not None or ee:
        Lr0 = Lr[0]; Lr[0] = a.newlabel('Lc_rE0')
        a.label(Lr0)
        if stamps and rt is None and not clk: a('s_add_u32 s92, s92, 63')
        a('s_nop 4'); zero(A, 8)
        a(f's_waitcnt vmcnt({len(vm0) - 1 - vm0.index("x")})')
        for i in range(4): a(f'v_mov_b32 v{M+i}, v{EB+i}')
        for l in chk(0): a(l)
        a(f's_cbranch_vccz {Lc[0]}')
    for j in range(5):
        a.label(Lr[j])
        if stamps and rt is None and not clk: a(f's_add_u32 s{95 if j == 0 else 93}, s{95 if j == 0 else 93}, {1 if j == 0 else 63}')
        n = 0
        seq = vm0 if j == 0 else (issued_at[j] if j < 4 else ['E4'])
        for nm in seq[seq.index('E%d' % j):]:
            if nm[0] == 'E': e_load(int(nm[1]))
            else: a(f'global_load_dword v{A+24}, v{r.aL}, s[{S_CPR}:{S_CPR+1}] sc1')
            n += 1
        spin_or_fail()
        if j == 0: a('s_nop 4'); zero(A, 8)
        a(f's_waitcnt vmcnt({n-1})')
        for l in chk(j): a(l)
        if j == 4: a(f'ds_write_b128 v{r.aL}, {vr(M+16,4)} offset:{1024*w}')
        a(f's_cbranch_vccnz {Lr[j]}')
        if j == 4: a('s_waitcnt lgkmcnt(0)')
        a(f's_branch {Lc[j]}')
    if fused and w == hkw[0]:
        if stamps and rt is None and not clk:
            lb = a.newlabel('Lc_hb2'); a.label(Lhb); a('s_add_u32 s92, s92, 63'); Lhb = lb
        prog_block(a, r, Lhb, Lhk, S_T3, fail)
    if bx is not None and w == 0:
        a.label(Lbs)
        if stamps and rt is None and not clk: a('s_add_u32 s92, s92, 63')
        lb2 = a.newlabel('Lc_bs2'); a.label(lb2)
        for k in range(4):
            a(f'v_cmp_ne_u32 vcc, s{S_GS}, v{r.PG} ; nowaitcheck'); probe(); nops(bg); a(f's_cbranch_vccz {Lbg}')
        spin_or_fail(); a(f's_branch {lb2}')
    if nomax and not nowait & 2:
        a.label(Lfb)
        a(f's_cmp_lg_u32 s{S_FB}, 0'); a(f's_cbranch_scc1 {Lnofb}')
        a(f's_mov_b32 s{S_FB}, 1'); a('s_waitcnt lgkmcnt(0)')
        submax()
        a(f's_branch {Lexp}')
    a.label(Lsp)
    a(f's_cmp_eq_u32 s{S_STEP}, 63'); a(f's_cbranch_scc1 {Ldone}')
    a(f's_mov_b32 s{S_SP}, 63')
    a(f's_waitcnt vmcnt({0 if nohk else (3 if vdef else 4) + 1 + (1 if (fused and w in hkw) else 0) + (1 if pkpos == 3 else 0)})'); a(f's_branch {Lspb}')
    a.label(Lk0)
    if started: started(A+26)
    if clk > 1: a('s_memtime s[64:65]'); a('s_memrealtime s[62:63]'); a('s_waitcnt lgkmcnt(0)'); a('s_mov_b32 s65, s62')
    for i in range(4): kv_load(a, r, i, r.KX, S_HB)
    a(f's_branch {Lk0b}')
    a.label(Ldone)
    if not nohk: pub_k()
    for t, sl in vrest: S('v', t, sl)
    if not nohk:
        for t in range(2):
            add0(Av[t]); add1(Av[t]); cvt(A+30+t, Av[t], Av[t]+1)
        pub_v()
    a('s_waitcnt vmcnt(0)'); a('s_barrier')
    if fused and w == hkw[1]:
        a(f'v_mov_b32 v{t0}, 64'); a('s_mov_b64 exec, 1'); a(f'global_store_dword v{r.Z}, v{t0}, s[{S_FW}:{S_FW+1}] sc1'); a(XA)
    a(f's_branch {done}')

def chain_all_waves(a, r, stf, fail, **kw):
    done = a.newlabel('Lc_alldone'); lw = [a.newlabel('Lc_wave') for _ in range(4)]
    a(f'v_mov_b32 v{r.A+29}, 0')
    for w in range(1, 4):
        a(f's_cmp_eq_u32 s{S_W}, {w}'); a(f's_cbranch_scc1 {lw[w]}')
    for w in range(4):
        a.label(lw[w]); chain_wave(a, r, w, stf, fail, done, **kw)
    a.label(done)

def chain_kernel_standalone(half, stamps=False, **kw):
    a = Asm(); a._lbl = 1000 * (half + 1); r = ChainRegs()
    end = a.newlabel('Lc_end')
    a(f's_load_dwordx2 s[{S_WS}:{S_WS+1}], s[0:1], {KA_WS}')
    a(f's_load_dwordx2 s[{S_DBG}:{S_DBG+1}], s[0:1], {KA_DBG}')
    a(f's_getreg_b32 s{S_T}, hwreg(HW_REG_XCC_ID, 0, 4)')
    a('s_waitcnt lgkmcnt(0)')
    a(f's_cmp_lg_u32 s{S_T}, 0'); a(f's_cbranch_scc1 {end}')
    l0 = a.newlabel('Lc')
    a('v_mov_b32 v1, 0'); a('v_mov_b32 v2, 1'); a('v_cmp_eq_u32 vcc, 0, v0')
    a('s_and_saveexec_b64 s[12:13], vcc'); a(f's_cbranch_execz {l0}')
    a(f'global_atomic_add v3, v1, v2, s[{S_DBG}:{S_DBG+1}] sc0 sc1'); a('s_waitcnt vmcnt(0)')
    a('ds_write_b32 v1, v3'); a('s_waitcnt lgkmcnt(0)')
    a.label(l0)
    a('s_mov_b64 exec, s[12:13]'); a('s_barrier')
    a('ds_read_b32 v3, v1'); a('s_waitcnt lgkmcnt(0)'); a(f'v_readfirstlane_b32 s{S_H}, v3'); a('s_barrier')
    a(f's_cmp_ge_u32 s{S_H}, 32'); a(f's_cbranch_scc1 {end}')
    if stamps: a('s_memtime s[98:99]')
    chain_setup(a, r)
    a(f's_mov_b32 s{S_EP}, 0'); a(f's_mov_b32 s{S_EM}, 0'); a(f's_mov_b32 s{S_HALF}, {half}')
    chain_init_comm(a, r, '', True)
    group_arrive(a, r.R, 4); group_wait(a, r.R, 4, 32, end)
    if kw.get('rt') is not None:
        a('s_memrealtime s[60:61]'); a('s_waitcnt lgkmcnt(0)'); a('s_add_u32 s62, s60, 2048'); a('s_and_b32 s62, s62, 0xfffff000'); a('s_add_u32 s62, s62, 4096')
        a('s_mov_b32 s63, 0'); a('s_mov_b32 s99, 0'); a('s_mov_b32 s98, 0')
        a.label('Lcal')
        a('s_memrealtime s[60:61]'); a('s_memtime s[64:65]'); a('s_waitcnt lgkmcnt(0)'); a('s_sub_u32 s61, s60, s62'); a('s_cmp_lt_i32 s61, 0'); a('s_cbranch_scc1 Lcal')
        a('s_cmp_eq_u32 s63, 0'); a('s_cselect_b32 s99, s64, s99'); a('s_sub_u32 s64, s64, s99'); a('s_add_u32 s98, s98, s64')
        a('s_add_u32 s62, s62, 44'); a('s_add_u32 s63, s63, 1'); a('s_cmp_lt_u32 s63, 32'); a('s_cbranch_scc1 Lcal')
        a('s_lshr_b32 s98, s98, 5'); a('s_add_u32 s99, s99, s98'); a('s_mov_b32 s98, s62')
    if stamps: a('s_memtime s[100:101]')
    chain_start(a, r, end, 0)
    chain_all_waves(a, r, '', end, fused=0, stamps=stamps, **kw)
    if stamps:
        a('s_memtime s[60:61]'); a('s_waitcnt lgkmcnt(0)')
        a('s_sub_u32 s96, s100, s98'); a('s_sub_u32 s97, s60, s100')
        for k in range(16): a(f'v_mov_b32 v{k}, s{84+k}')
        a(f's_lshl_b32 s{S_T}, s{S_H}, 2'); a(f's_add_u32 s{S_T}, s{S_T}, s{S_W}'); a(f's_lshl_b32 s{S_T}, s{S_T}, 6')
        a(f's_add_u32 s{S_T}, s{S_T}, {STAMP_OFF}')
        a(f'v_mov_b32 v16, s{S_T}')
        for k in range(4): a(f'global_store_dwordx4 v16, {vr(4*k,4)}, s[{S_WS}:{S_WS+1}] offset:{16*k}')
    a.label(end)
    a('s_waitcnt vmcnt(0)'); a('s_endpgm')
    return a.lines

def autostamp(lines, start, stride, n=9):
    out = []; inb = False; idx = 0; k = 0; names = []; first = True
    for l in lines:
        if l == '; BODY_BEGIN': inb = True; idx = 0; k = 0
        if l == '; BODY_END':
            while k < n:
                out.append(f's_memtime s[{S_STAMP+2*k}:{S_STAMP+2*k+1}]'); k += 1
            inb = False; first = False
        if l.startswith('s_cbranch_vccnz'): l = 's_cbranch_vccnz ' + f'Lnx_{len(out)}\nLnx_{len(out)}:'
        if inb and is_instr(l.split('\n')[0]):
            if k < n and idx == start + k * stride:
                out.append(f's_memtime s[{S_STAMP+2*k}:{S_STAMP+2*k+1}]'); k += 1
            if first: names.append(l.split('\n')[0])
            idx += 1
        out += l.split('\n')
    return out, names

if __name__ == '__main__':
    rep = []
    lines = fix_hazards(chain_kernel_standalone(0, stamps=True), rep)
    for e in check_waits(lines, 'chain'): print(e)
    for x in rep[14:32]: print(x)
    t = assemble_file('', [('chain0_kernel', 256, 256, 163840)], [('chain0_kernel', lines, 512, 256)])
    open('chain_test.s', 'w').write(t)
    print(len(lines))
```

```python
from asmlib import *
from layout import *
import math
import chain2 as C
from work import *

S_DBG = 44; S_SLOT = 36; S_TK = 37; S_SPIN = 38; S_PF = 39; S_FO = 40; S_N = 41; S_X = 42; S_SO = 43; S_SV = 46; S_PD = 47; S_LOC = 50; S_DIE = 91
L, L16 = 1, 2
VZ = 10; VF = 11
SPIN_MAX = 0x60000

class Mega:
    def __init__(self, stamps=False, chain_kw={}):
        self.a = Asm(); self.stamps = stamps; self.chain_kw = chain_kw
        self.end = 'Lm_end'; self.TO = 128 if stamps == 2 else 0
        self.tbsleep = chain_kw.pop('tbsleep', 8); self.wsleep = chain_kw.pop('wsleep', 2); self.wrd = chain_kw.pop('wrd', 0); self.ahead = chain_kw.pop('ahead', 0); self.fake = chain_kw.pop('fake', None); self.ct = chain_kw.pop('ct', 0); self.loc = chain_kw.pop('loc', 0); self.lazy = chain_kw.pop('lazy', 0); C.ROT[0] = chain_kw.pop('rot', 0); C.WF[0] = chain_kw.pop('wf', ''); self.attup = chain_kw.pop('attup', 8); self.die = chain_kw.pop('die', 3); self.palag = chain_kw.pop('palag', 3); self.pasplit = chain_kw.pop('pasplit', 48); self.pfb = chain_kw.pop('pfb', 0); self.kvpos = chain_kw.pop('kvpos', 20); self.perm = chain_kw.pop('perm', 0x65241370)
    def stamp(self, k, hs=None):
        if not self.stamps: return
        a = self.a; l = a.newlabel('Lst')
        if self.stamps == 2:
            kk = self.dmap.get((self.role, k))
            if kk is None: return
            a(f's_cmp_lg_u32 s{S_W}, 0'); a(f's_cbranch_scc1 {l}')
            a('s_memrealtime s[96:97]'); a(f's_load_dwordx2 s[100:101], s[0:1], {KA_DBG}'); a('s_waitcnt lgkmcnt(0)'); a('s_sub_u32 s96, s96, s99')
            a(f's_mov_b32 s98, {4*kk}')
            if hs is not None: a(f's_mul_i32 s97, s{hs}, 12'); a('s_add_u32 s98, s98, s97')
            a('s_mov_b64 exec, 1'); a(f'v_mov_b32 v{self.sv}, s96'); a(f'v_mov_b32 v{self.sv+1}, s98')
            a(f'global_atomic_umax v{self.sv+1}, v{self.sv}, s[100:101] sc1'); a('s_waitcnt vmcnt(0)'); a('s_mov_b64 exec, -1')
            a.label(l); return
        a(f's_cmp_lg_u32 s{S_W}, 0'); a(f's_cbranch_scc1 {l}')
        a('s_memrealtime s[96:97]'); a(f's_lshl_b32 s98, s99, 7'); a(f's_add_u32 s98, s98, {STAMP_OFF + 4*k}'); a('s_waitcnt lgkmcnt(0)')
        if hs is not None: a(f's_lshl_b32 s97, s{hs}, 5'); a('s_add_u32 s98, s98, s97')
        a('s_mov_b64 exec, 1'); a(f'v_writelane_b32 v{self.sv}, s96, 0'); a(f'v_writelane_b32 v{self.sv+1}, s98, 0')
        a(f'v_mov_b32 v{self.sv+1}, s98')
        a(f'global_store_dword v{self.sv+1}, v{self.sv}, s[{S_WS}:{S_WS+1}]'); a('s_waitcnt vmcnt(0)'); a('s_mov_b64 exec, -1')
        a.label(l)
    def mark(self, k, sgpr, val):
        if self.stamps is not True: return
        a = self.a; l = a.newlabel('Lmk')
        a(f's_cmp_lg_u32 s{sgpr}, {val}'); a(f's_cbranch_scc1 {l}')
        a('s_memrealtime s[96:97]'); a('s_waitcnt lgkmcnt(0)'); a(f's_mov_b32 s{70+k}, s96')
        a.label(l)
    def dump_marks(self):
        if self.stamps is not True: return
        a = self.a
        for k in range(16): a(f'v_mov_b32 v{16+k}, s{70+k}')
        a(f's_lshl_b32 s98, s99, 7'); a(f's_add_u32 s98, s98, {STAMP_OFF + 64}'); a('v_mov_b32 v12, s98')
        l = a.newlabel('Lmk'); a(f's_cmp_lg_u32 s{S_W}, 0'); a(f's_cbranch_scc1 {l}')
        for k in range(4): a(f'global_store_dwordx4 v12, {vr(16+4*k,4)}, s[{S_WS}:{S_WS+1}] offset:{16*k}')
        a.label(l)
    def count_wait(self, off, v, fail, st, sp):
        a = self.a; l1 = a.newlabel('Lcw'); l2 = a.newlabel('Lcw')
        a(f's_mov_b32 s{sp}, 0'); a(f'v_mov_b32 v{v+8}, 0')
        a.label(l1)
        for x in range(8): a(f'global_load_dword v{v+x}, v{v+8}, s[{S_DBG}:{S_DBG+1}] offset:{off+16*x} sc1')
        a('s_waitcnt vmcnt(0)')
        a(f'v_add3_u32 v{v+9}, v{v}, v{v+1}, v{v+2}'); a(f'v_add3_u32 v{v+9}, v{v+9}, v{v+3}, v{v+4}'); a(f'v_add3_u32 v{v+9}, v{v+9}, v{v+5}, v{v+6}'); a(f'v_add_u32 v{v+9}, v{v+9}, v{v+7}')
        a(f'v_readfirstlane_b32 s{st}, v{v+9}'); a(f's_cmp_ge_u32 s{st}, 256'); a(f's_cbranch_scc1 {l2}')
        a('s_sleep 4'); a(f's_add_u32 s{sp}, s{sp}, 1'); a(f's_cmp_lt_u32 s{sp}, {SPIN_MAX}'); a(f's_cbranch_scc1 {l1}')
        a(f's_branch {fail}')
        a.label(l2)
    def code_touch(self, v=VZ, sp=48, sh=6):
        if not self.ct: return
        a = self.a
        a(f's_getpc_b64 s[{sp}:{sp+1}]'); a(f's_lshl_b32 s{S_T}, s{S_W}, {6+sh}'); a(f'v_lshl_add_u32 v{v}, v{L}, {sh}, s{S_T}')
        a(f'global_load_dword v{v+1}, v{v}, s[{sp}:{sp+1}]')
    def report(self, v=VZ, st=S_T):
        a = self.a; l = a.newlabel('Lrp')
        a(f's_cmp_lg_u32 s{S_W}, 1'); a(f's_cbranch_scc1 {l}')
        a(f's_lshl_b32 s{st}, s{S_DIE}, 4'); a(f'v_mov_b32 v{v}, s{st}'); a(f'v_mov_b32 v{v+1}, 1')
        a('s_mov_b64 exec, 1'); a(f'global_atomic_add v{v}, v{v+1}, s[{S_DBG}:{S_DBG+1}] offset:132 sc1'); a('s_mov_b64 exec, -1')
        a.label(l)
    def local_check(self):
        a = self.a
        x = [i for i in range(8) if (self.perm >> (4*i)) & 7 == 7][0]
        self.count_wait(self.TO, 12, self.end, S_T, S_SPIN)
        a(f'v_readfirstlane_b32 s{S_T}, v{12+x}'); a(f's_cmp_ge_u32 s{S_T}, 32'); a(f's_cselect_b32 s{S_LOC}, {0 if (self.chain_kw.get("force_slow") or not self.loc) else 1}, 0')
    def dual(self, emit):
        a = self.a; l1 = a.newlabel('Ld'); l2 = a.newlabel('Ld')
        a(f's_cmp_eq_u32 s{S_LOC}, 1'); a(f's_cbranch_scc1 {l1}')
        emit('sc1'); a(f's_branch {l2}')
        a.label(l1); emit(''); a.label(l2)
    def flags_ready(self): self.count_wait(132, 12, self.end, S_T, S_SPIN)
    def flag_off(self, base, idx_sgpr, sh=2):
        self.a(f's_lshl_b32 s{S_FO}, s{idx_sgpr}, {sh}'); self.a(f's_add_u32 s{S_FO}, s{S_FO}, {base}')
    def flag_issue(self, n):
        a = self.a
        a(f'v_min_u32 v{VZ}, {n-1}, v{L}'); a(f'v_lshl_add_u32 v{VZ}, v{VZ}, 8, s{S_FO}'); a(f'global_load_dword v{VF}, v{VZ}, s[{S_WS}:{S_WS+1}] sc1')
    def wait(self, n, sleep=None, mask=None, sh=8, thr=None, keep=None, lazy=None, extra=None):
        a = self.a; l1 = a.newlabel('Lw'); l2 = a.newlabel('Lw')
        a(f's_mov_b32 s{S_SPIN}, 0')
        a(f'v_min_u32 v{VZ}, {n-1}, v{L}'); a(f'v_lshl_add_u32 v{VZ}, v{VZ}, {sh}, s{S_FO}')
        if extra is not None:
            a(f's_lshl_b32 s{S_X}, s{extra}, {sh}'); a(f's_add_u32 s{S_X}, s{S_X}, s{S_FO}'); a(f's_add_u32 s{S_X}, s{S_X}, 16'); a(f'v_writelane_b32 v{VZ}, s{S_X}, 63')
        a.label(l1)
        a(f'global_load_dword v{VF}, v{VZ}, s[{S_WS}:{S_WS+1}] sc1'); a('s_waitcnt vmcnt(0)')
        a(f'v_cmp_eq_u32 vcc, 0, v{VF}' if thr is None else f'v_cmp_gt_u32 vcc, {thr}, v{VF}')
        if keep: a('s_cmp_eq_u64 vcc, 0'); a(f's_cselect_b32 s{keep}, 1, 0')
        if mask is None: a(f's_cbranch_vccz {l2}')
        else: a(f's_and_b64 vcc, vcc, s[{mask}:{mask+1}]'); a(f's_cbranch_scc0 {l2}')
        a(f's_sleep {sleep or self.wsleep}')
        if lazy is not None and self.lazy:
            l3 = a.newlabel('Lw'); a(f's_cmp_ge_u32 s{lazy}, 60'); a(f's_cbranch_scc1 {l3}'); a(f's_sleep {self.lazy}'); a.label(l3)
        a(f's_add_u32 s{S_SPIN}, s{S_SPIN}, 1'); a(f's_cmp_lt_u32 s{S_SPIN}, {SPIN_MAX}'); a(f's_cbranch_scc1 {l1}')
        a(f's_branch {self.end}')
        a.label(l2)
    def set_word(self, base, line_sgpr, word_sgpr, s1=2, s2=8):
        a = self.a
        a(f's_lshl_b32 s{S_SO}, s{line_sgpr}, {s1}'); a(f's_lshl_b32 s{S_X}, s{word_sgpr}, {s2}'); a(f's_add_u32 s{S_SO}, s{S_SO}, s{S_X}'); a(f's_add_u32 s{S_SO}, s{S_SO}, {base}')
    def wsignal(self, val=None, loc=False):
        a = self.a
        a(f'v_mov_b32 v{VZ}, s{S_SO}'); a(f'v_mov_b32 v{VF}, {"s%d" % val if val else "1"}')
        st = lambda f: a(f'global_store_dword v{VZ}, v{VF}, s[{S_WS}:{S_WS+1}] {f}')
        a('s_mov_b64 exec, 1')
        if loc: self.dual(st)
        else: st('sc1')
        a('s_mov_b64 exec, -1')
    def signal_wg(self, loc=False):
        a = self.a; l = a.newlabel('Ls')
        a('s_waitcnt vmcnt(0)'); a('s_barrier'); a(f's_cmp_lg_u32 s{S_W}, 0'); a(f's_cbranch_scc1 {l}')
        self.wsignal(loc=loc); a.label(l)

    def stream(self, ngr, xsrc, inflag, nin, tiles, epilogue, nst, outflag, store, mk=None, pre=None):
        a = self.a; xa = 9; XR = 12
        lp = a.newlabel('Lg_loop'); have = a.newlabel('Lg_have'); go = a.newlabel('Lg_go'); fetch = a.newlabel('Lg_fetch'); done = a.newlabel('Lg_done')
        a(f's_lshl_b32 s{S_XO}, s{S_B}, 15'); a(f's_add_u32 s{S_XO}, s{S_XO}, {xsrc}'); a(f's_mov_b32 s{S_BUF}, {128*1024}')
        a('s_barrier')
        a.label(fetch)
        a(f's_mov_b32 s{S_PD}, 0')
        if inflag is not None:
            self.flag_off(inflag, S_B); self.wait(nin)
        if mk: self.mark(mk[0], S_B, mk[1])
        dma_x(a, L16, S_XO, S_BUF, 'sc1')
        a('s_waitcnt vmcnt(0)')
        a.label(go)
        a('s_barrier')
        if mk: self.mark(mk[0]+1, S_B, mk[1])
        if pre: pre()
        a(f'v_add_u32 v{xa}, s{S_BUF}, v{L16}')
        a(f's_add_u32 s{S_TK}, s{S_B}, {ngr}'); a(f's_xor_b32 s{S_BUF}, s{S_BUF}, {128*1024}'); a(f's_add_u32 s{S_XO}, s{S_XO}, {ngr*32768}')
        if inflag is not None:
            a(f's_min_u32 s{S_T}, s{S_TK}, 63'); self.flag_off(inflag, S_T); self.flag_issue(nin)
        def pref():
            np_ = a.newlabel('Lg_np')
            a('s_waitcnt vmcnt(0)')
            a(f'v_cmp_eq_u32 s[{S_K0}:{S_K0+1}], 0, v{VF}')
            a(f's_cmp_eq_u32 s{S_PD}, 0'); a(f's_cbranch_scc1 {np_}')
            self.wsignal(S_SV if store else None)
            a.label(np_)
        def pref2():
            sk = a.newlabel('Lg_sk')
            a(f's_mov_b32 s{S_PF}, 0')
            a(f's_cmp_ge_u32 s{S_TK}, 64'); a(f's_cbranch_scc1 {sk}')
            a(f's_cmp_lg_u64 s[{S_K0}:{S_K0+1}], 0'); a(f's_cbranch_scc1 {sk}')
            dma_x(a, L16, S_XO, S_BUF, 'sc1'); a(f's_mov_b32 s{S_PF}, 1')
            a.label(sk)
        gemm_core(a, xa, XR, tiles, {30: pref})
        epilogue(pref2)
        if mk: self.mark(mk[0]+2, S_B, mk[1])
        outflag()
        add64(a, S_OUT, S_OUT, ngr*32768)
        a(f's_mov_b32 s{S_B}, s{S_TK}')
        a(f's_cmp_eq_u32 s{S_PF}, 0'); a(f's_cbranch_scc1 {have}')
        first = a.newlabel('Lg_first')
        a(f's_cmp_lt_u32 s{S_B}, {2*ngr}'); a(f's_cbranch_scc1 {first}')
        a(f's_mov_b32 s{S_PD}, 1'); a(f's_waitcnt vmcnt({nst})'); a(f's_branch {go}')
        a.label(first)
        a('s_waitcnt vmcnt(0)'); self.wsignal(S_SV if store else None)
        if mk: self.mark(mk[0]+3, S_B, mk[1]+ngr)
        a(f's_mov_b32 s{S_PD}, 0'); a(f's_branch {go}')
        a.label(have)
        a('s_waitcnt vmcnt(0)'); self.wsignal(S_SV if store else None)
        if mk: self.mark(mk[0]+3, S_B, mk[1]+ngr)
        a(f's_cmp_lt_u32 s{S_B}, 64'); a(f's_cbranch_scc1 {fetch}')
        a('s_barrier')

    def proj_weights(self, isB, share=None, early=None, sel=(0, 1, 2), first=None):
        a = self.a
        a(f's_lshl_b32 s{S_OFF}, s{S_A}, 8')
        if isB: mats = [(KA_WK, 4*MB, 0, 'a', 128), (KA_WV, 4*MB, 0, 'v', 128), (KA_WQ, 4*MB, 0, 'a', 0)]; stride = 8192
        else: mats = [(KA_WQKV, 1536*1024, 1024, 'a', 128), (KA_WQKV, 1536*1024, 2048, 'v', 128), (KA_WQKV, 1536*1024, 0, 'a', 0)]; stride = 3072
        load_wslices(a, [mats[i] for i in sel], stride, L, 3, 4, 5, share, early, first)
    def proj_run(self, half, isB, ngr, nowait=False, mode='kvq'):
        a = self.a; H = W.H[half]
        if not nowait: self.code_touch()
        t0, t1, vq, vk, vv = 3, 4, 6, 7, 8; ACC = 28
        ro = (HB_Q, HB_K, HB_V) if isB else (0, H.KA - H.QA, H.VA - H.QA)
        a(f's_lshl_b32 s{S_T}, s{S_W}, 11')
        a(f's_add_u32 s{S_T2}, s{S_T}, {ro[0]}'); a(f'v_add_u32 v{vq}, s{S_T2}, v{L16}')
        a(f's_add_u32 s{S_T2}, s{S_T}, {ro[1]}'); a(f'v_add_u32 v{vk}, s{S_T2}, v{L16}')
        pi_of(a, t0, L, t1); vpos16(a, vv, t0, L, t1)
        a(f's_add_u32 s{S_T2}, s{S_T}, {ro[2]}'); a(f'v_add_u32 v{vv}, s{S_T2}, v{vv}')
        a(f's_lshl_b32 s{S_T}, s{S_A}, {21 if isB else 13}'); a(f's_lshl_b32 s{S_T2}, s{S_B}, 15'); a(f's_add_u32 s{S_T}, s{S_T}, s{S_T2}')
        a(f's_add_u32 s{S_T}, s{S_T}, {H.HB if isB else H.QA}'); add64(a, S_OUT, S_WS, f's{S_T}')
        a(f's_mov_b32 s{S_M}, {f2u(0.25*math.log2(math.e)):#x}')
        xa = 9; XR = 12; inflag = FL(half, 'XNB' if isB else 'XNA'); mk = (0, 0 if isB else 63) if half == 1 else ((8, 0) if isB else None)
        go = a.newlabel('Lp_go'); fetch = a.newlabel('Lp_fetch'); have = a.newlabel('Lp_have')
        a(f's_lshl_b32 s{S_XO}, s{S_B}, 15'); a(f's_add_u32 s{S_XO}, s{S_XO}, {H.XNB if isB else H.XNA}'); a(f's_mov_b32 s{S_BUF}, {128*1024}')
        a(f's_mov_b32 s{S_PD}, 0')
        a('s_barrier')
        if nowait: a(f's_branch {go}')
        a.label(fetch)
        self.flag_off(inflag, S_B); self.wait(16 if isB else 8, lazy=None if isB else S_B)
        if mk: self.mark(mk[0], S_B, mk[1])
        dma_x(a, L16, S_XO, S_BUF, 'sc1')
        a('s_waitcnt vmcnt(0)')
        a.label(go)
        a('s_barrier')
        if mk: self.mark(mk[0]+1, S_B, mk[1])
        a(f'v_add_u32 v{xa}, s{S_BUF}, v{L16}')
        a(f's_add_u32 s{S_TK}, s{S_B}, {ngr}'); a(f's_xor_b32 s{S_BUF}, s{S_BUF}, {128*1024}'); a(f's_add_u32 s{S_XO}, s{S_XO}, {ngr*32768}')
        if not nowait: a(f's_min_u32 s{S_T}, s{S_TK}, 63'); self.flag_off(inflag, S_T); self.flag_issue(16 if isB else 8)
        def word():
            if isB:
                a(f's_and_b32 s{S_T}, s{S_B}, 1'); a(f's_lshl_b32 s{S_T}, s{S_T}, 2'); a(f's_add_u32 s{S_T}, s{S_T}, s{S_W}')
                self.set_word(FL(half, "HEAD"), S_A, S_T, 8, 5)
            else:
                a(f's_lshl_b32 s{S_T}, s{S_A}, 2'); a(f's_add_u32 s{S_T}, s{S_T}, s{S_W}'); self.set_word(FL(half, "QKVA"), S_T, S_B, 11, 5)
        def late():
            l = a.newlabel('Lp_q'); a(f's_cmp_eq_u32 s{S_PD}, 0'); a(f's_cbranch_scc1 {l}')
            self.wsignal(); a(f's_mov_b32 s{S_PD}, 0'); a.label(l)
        def pref():
            sk = a.newlabel('Lp_sk')
            a('s_waitcnt vmcnt(0)'); a(f'v_cmp_eq_u32 vcc, 0, v{VF}')
            if not isB: late()
            a(f's_mov_b32 s{S_PF}, 0')
            a(f's_cmp_ge_u32 s{S_TK}, 64'); a(f's_cbranch_scc1 {sk}')
            if not nowait: a(f's_cbranch_vccnz {sk}')
            dma_x(a, L16, S_XO, S_BUF, 'sc1'); a(f's_mov_b32 s{S_PF}, 1')
            a.label(sk)
        def half_store(acc, ad, j):
            for i in range(4): a(f'v_cvt_pk_bf16_f32 v{acc+8*j+i}, v{acc+8*j+2*i}, v{acc+8*j+2*i+1}')
            a(f'global_store_dwordx4 v{ad}, {vr(acc+8*j,4)}, s[{S_OUT}:{S_OUT+1}] offset:{1024*j} sc1')
        def kvsig():
            if mk: self.mark(mk[0]+2, S_B, mk[1])
            word(); a('s_waitcnt vmcnt(0)'); self.wsignal(S_TK if isB else None)
            if not isB: a('s_mov_b64 exec, 1'); a(f'global_store_dword v{VZ}, v{VF}, s[{S_WS}:{S_WS+1}] offset:8 sc1'); a('s_mov_b64 exec, -1')
            if mk: self.mark(mk[0]+3, S_B, mk[1])
        kvs = [lambda: half_store(ACC+16, vk, 0), lambda: half_store(ACC+16, vk, 1), lambda: half_store(ACC+32, vv, 0), lambda: half_store(ACC+32, vv, 1)]
        if mode != 'q': gemm_core(a, xa, XR, [(ACC+16, 'a', 128, False), (ACC+32, 'v', 128, True)], {18: pref})
        if mode == 'kvq': gemm_core(a, xa, XR, [(ACC, 'a', 0, False)], {0: kvs[0], 1: kvs[1], 2: kvs[2], 3: kvs[3], self.kvpos: kvsig})
        if mode == 'q':
            def p0():
                sk = a.newlabel('Lp_sk'); a(f's_mov_b32 s{S_PF}, 0'); a(f's_cmp_ge_u32 s{S_TK}, 64'); a(f's_cbranch_scc1 {sk}')
                dma_x(a, L16, S_XO, S_BUF, 'sc1'); a(f's_mov_b32 s{S_PF}, 1'); a.label(sk)
            gemm_core(a, xa, XR, [(ACC, 'a', 0, False)], {0: p0, 30: lambda: (a('s_waitcnt vmcnt(0)'), late())})
        if mode == 'kv':
            for f in kvs: f()
        else: pack_store(a, ACC, vq, S_OUT, 'sc1', scale=None if isB else S_M)
        if not isB:
            if mode != 'kvq': word()
            if mode != 'kv': a(f's_add_u32 s{S_SO}, s{S_SO}, 16')
        add64(a, S_OUT, S_OUT, ngr*32768)
        a(f's_mov_b32 s{S_B}, s{S_TK}'); a(f's_mov_b32 s{S_PD}, 1')
        if mode == 'kv': a('s_waitcnt vmcnt(4)')
        a(f's_cmp_lg_u32 s{S_PF}, 0'); a(f's_cbranch_scc1 {go}')
        if not isB: a('s_waitcnt vmcnt(0)'); late()
        a(f's_cmp_lt_u32 s{S_B}, 64'); a(f's_cbranch_scc1 {fetch}')
        if isB:
            a('s_waitcnt vmcnt(0)'); a(f's_add_u32 s{S_SV}, s{S_B}, 2'); self.wsignal(S_SV)
        a('s_barrier')
    def woa_run(self, half, ngr):
        a = self.a; H = W.H[half]
        self.code_touch()
        t0, t1, sm, vo, vx, vs = 3, 4, 5, 6, 7, 8; ACC = 28; X = 44; G = 52; SP = 68; mu = 70
        a(f's_lshl_b32 s{S_T}, s{S_W}, 11'); a(f's_lshl_b32 s{S_T2}, s{S_A}, 13'); a(f's_add_u32 s{S_T}, s{S_T}, s{S_T2}'); a(f'v_add_u32 v{vo}, s{S_T}, v{L16}')
        if half == 0:
            a(f's_load_dwordx2 s[{S_P}:{S_P+1}], s[0:1], {KA_X}')
            a(f'v_and_b32 v{t0}, 31, v{L}'); a(f'v_lshlrev_b32 v{vx}, 10, v{t0}'); a(f'v_lshrrev_b32 v{t0}, 5, v{L}'); a(f'v_lshl_add_u32 v{vx}, v{t0}, 4, v{vx}')
            a(f's_lshr_b32 s{S_T}, s{S_T}, 5'); a(f'v_add_u32 v{vx}, s{S_T}, v{vx}'); a('s_waitcnt lgkmcnt(0)')
        else:
            add64(a, S_P, S_WS, W.H[0].X2); a(f'v_mov_b32 v{vx}, v{vo}')
        a(f's_lshl_b32 s{S_T2}, s{S_B}, 15'); add64(a, S_P, S_P, f's{S_T2}')
        a(f's_add_u32 s{S_T}, s{S_T2}, {H.X1}'); add64(a, S_OUT, S_WS, f's{S_T}')
        a(f'v_and_b32 v{t0}, 31, v{L}'); a(f'v_lshlrev_b32 v{vs}, 3, v{t0}'); a(f'v_lshrrev_b32 v{t0}, 5, v{L}'); a(f'v_lshl_add_u32 v{vs}, v{t0}, 11, v{vs}')
        a(f's_mov_b32 s{S_M}, 0xffff0000')
        def pre():
            for j in range(2): a(f'global_load_dwordx4 {vr(X+4*j,4)}, v{vx}, s[{S_P}:{S_P+1}] offset:{(32 if half == 0 else 1024)*j} {"" if half == 0 else "sc1"}')
            add64(a, S_P, S_P, ngr*32768)
            a(f's_lshl_b32 s{S_T}, s{S_B}, 12'); a(f's_add_u32 s{S_T}, s{S_T}, {W.ST + half*262144}'); add64(a, S_IN, S_WS, f's{S_T}')
            l = a.newlabel('Lwt'); a(f's_cmp_lg_u32 s{S_LOC}, 1'); a(f's_cbranch_scc1 {l}')
            a(f'v_lshlrev_b32 v{t0}, 6, v{L}'); a(f'global_load_dword v{t1}, v{t0}, s[{S_IN}:{S_IN+1}] sc1'); a.label(l)
        def rbf(r): a(f'v_cvt_pk_bf16_f32 v{r}, v{r}, v{r}'); a(f'v_and_b32 v{r}, s{S_M}, v{r}')
        def halves(regs):
            for x, t in zip(regs, (t0, t1)): a(f'v_mov_b32 v{t}, v{x}')
            for x, t in zip(regs, (t0, t1)): a(f'v_permlane32_swap_b32 v{x}, v{t}')
            for x, t in zip(regs, (t0, t1)): a(f'v_add_f32 v{x}, v{x}, v{t}')
        def epi(pref2):
            a(f's_lshl_b32 s{S_T}, s{S_A}, 2'); a(f's_add_u32 s{S_T}, s{S_T}, s{S_W}'); a(f's_lshl_b32 s{S_T2}, s{S_T}, 8')
            self.set_word(FL(half, "XNB"), S_B, S_T)
            for d in range(8):
                e = ACC+2*d
                a(f'v_cvt_pk_bf16_f32 v{t1}, v{e}, v{e+1}'); a(f'v_lshlrev_b32 v{e}, 16, v{X+d}'); a(f'v_and_b32 v{e+1}, s{S_M}, v{X+d}')
                a(f'v_lshlrev_b32 v{t0}, 16, v{t1}'); a(f'v_and_b32 v{t1}, s{S_M}, v{t1}')
                a(f'v_add_f32 v{e}, v{e}, v{t0}'); a(f'v_add_f32 v{e+1}, v{e+1}, v{t1}')
                a(f'v_cvt_pk_bf16_f32 v{X+d}, v{e}, v{e+1}')
                a(f'v_lshlrev_b32 v{e}, 16, v{X+d}'); a(f'v_and_b32 v{e+1}, s{S_M}, v{X+d}')
                if d == 0: a(f'v_add_f32 v{SP}, v{e}, v{e+1}'); a(f'v_mul_f32 v{SP+1}, v{e}, v{e}')
                else: a(f'v_add_f32 v{SP}, v{SP}, v{e}'); a(f'v_add_f32 v{SP}, v{SP}, v{e+1}'); a(f'v_fmac_f32 v{SP+1}, v{e}, v{e}')
                a(f'v_fmac_f32 v{SP+1}, v{e+1}, v{e+1}')
            halves((SP, SP+1))
            a(f'v_or_b32 v{SP+1}, 1, v{SP+1}'); a(f'v_add_u32 v{t0}, s{S_T2}, v{vs}')
            a('s_mov_b32 exec_hi, 0'); self.dual(lambda f: a(f'global_store_dwordx2 v{t0}, {vr(SP,2)}, s[{S_IN}:{S_IN+1}] {f}')); a('s_mov_b32 exec_hi, -1')
            a('s_waitcnt vmcnt(0)')
            l1 = a.newlabel('Lwr'); l2 = a.newlabel('Lwr')
            a(f's_mov_b32 s{S_SPIN}, 0')
            a.label(l1)
            for p in range(8): a(f'global_load_dwordx2 {vr(G+2*p,2)}, v{vs}, s[{S_IN}:{S_IN+1}] offset:{256*p} sc1')
            a('s_waitcnt vmcnt(0)')
            a(f'v_bitop3_b32 v{t0}, v{G+1}, v{G+3}, v{G+5} bitop3:0x80'); a(f'v_bitop3_b32 v{t1}, v{G+7}, v{G+9}, v{G+11} bitop3:0x80')
            a(f'v_bitop3_b32 v{t0}, v{t0}, v{G+13}, v{G+15} bitop3:0x80'); a(f'v_bitop3_b32 v{t0}, v{t0}, v{t1}, 1 bitop3:0x80')
            a(f'v_cmp_eq_u32 vcc, 0, v{t0}'); a(f's_cbranch_vccz {l2}')
            a(f's_add_u32 s{S_SPIN}, s{S_SPIN}, 1'); a(f's_cmp_lt_u32 s{S_SPIN}, {SPIN_MAX}'); a(f's_cbranch_scc1 {l1}')
            a(f's_branch {self.end}')
            a.label(l2)
            pref2()
            for j in range(2): a(f'global_store_dwordx4 v{vo}, {vr(X+4*j,4)}, s[{S_OUT}:{S_OUT+1}] offset:{1024*j} sc1')
            for st in (8, 4, 2):
                for i in range(0, st, 2): a(f'v_pk_add_f32 {vr(G+i,2)}, {vr(G+i,2)}, {vr(G+i+st,2)}')
            halves((G, G+1))
            a(f'v_mul_f32 v{mu}, {f2u(1/512):#x}, v{G}'); a(f'v_mul_f32 v{sm}, {f2u(1/512):#x}, v{G+1}')
            a(f'v_fma_f32 v{sm}, -v{mu}, v{mu}, v{sm}'); a(f'v_max_f32 v{sm}, 0, v{sm}')
            rbf(sm); a(f'v_add_f32 v{sm}, {f2u(1e-5):#x}, v{sm}'); rbf(sm)
            a(f'v_sqrt_f32 v{sm}, v{sm}'); rbf(sm); a(f'v_rcp_f32 v{sm}, v{sm}'); rbf(mu)
            add64(a, S_IN, S_OUT, H.XNB - H.X1) if H.XNB > H.X1 else (a(f's_sub_u32 s{S_IN}, s{S_OUT}, {H.X1 - H.XNB}'), a(f's_subb_u32 s{S_IN+1}, s{S_OUT+1}, 0'))
            for d in range(8):
                e = ACC+2*d
                a(f'v_sub_f32 v{t0}, v{e}, v{mu}'); a(f'v_sub_f32 v{t1}, v{e+1}, v{mu}'); a(f'v_cvt_pk_bf16_f32 v{t1}, v{t0}, v{t1}')
                a(f'v_lshlrev_b32 v{t0}, 16, v{t1}'); a(f'v_and_b32 v{t1}, s{S_M}, v{t1}')
                a(f'v_mul_f32 v{t0}, v{t0}, v{sm}'); a(f'v_mul_f32 v{t1}, v{t1}, v{sm}'); a(f'v_cvt_pk_bf16_f32 v{G+d}, v{t0}, v{t1}')
                if d % 4 == 3: a(f'global_store_dwordx4 v{vo}, {vr(G+d-3,4)}, s[{S_IN}:{S_IN+1}] offset:{1024*(d//4)} sc1')
        self.stream(ngr, H.OA, FL(half, 'OA'), 32, [(ACC, 'v', 128, False)], epi, 4, lambda: None, False, mk=(0, 0) if half == 1 else (8, 0), pre=pre)
    def rb_run(self, half, ngr):
        a = self.a; H = W.H[half]
        mk = (4, 63) if half == 0 else None
        def task(nl):
            def ready():
                self.flag_off(FL(half, 'PT'), S_A); self.wait(32, lazy=S_A)
                if mk: self.mark(mk[0], S_A, mk[1])
            if half == 0: rb_body(a, 8, H.X1, False, H.PT, 32768, 8*32768, H.X2, False, W.H[1].XNA, 'sc1', 'sc1', ready, nl=nl)
            else: rb_body(a, 8, H.X1, False, H.PT, 32768, 8*32768, KA_OUT, True, None, 'sc1', 'sc1', ready, nl=nl)
            if half == 0:
                if mk: self.mark(mk[0]+2, S_A, mk[1])
                l = a.newlabel('Ls')
                a('s_waitcnt vmcnt(0)'); a('s_barrier'); a(f's_cmp_ge_u32 s{S_W}, {nl}'); a(f's_cbranch_scc1 {l}')
                a(f's_mul_i32 s{S_T}, s{S_B}, {nl}'); a(f's_add_u32 s{S_T}, s{S_T}, s{S_W}'); self.set_word(FL(1, 'XNA'), S_A, S_T); self.wsignal()
                a.label(l)
                if mk: self.mark(mk[0]+3, S_A, mk[1])
        lp = a.newlabel('Lr_loop'); done = a.newlabel('Lr_done'); a.label(lp)
        task(2)
        a(f's_add_u32 s{S_A}, s{S_A}, {ngr}'); a(f's_cmp_lt_u32 s{S_A}, 63'); a(f's_cbranch_scc1 {lp}')
        a(f's_cmp_gt_u32 s{S_A}, 64'); a(f's_cbranch_scc1 {done}')
        a(f's_lshl_b32 s{S_B}, s{S_B}, 1'); a(f's_sub_u32 s{S_T}, s{S_A}, 63'); a(f's_add_u32 s{S_B}, s{S_B}, s{S_T}'); a(f's_mov_b32 s{S_A}, 63')
        task(1)
        a.label(done)

    def att_run(self, half, npg):
        a = self.a; H = W.H[half]
        self.code_touch()
        t0, t1, t2, ak, av, idx, lw = range(3, 10); mx = 204
        Q = 12; QN = 16; K0 = 20; Cc = 24; O = 40; D = [56, 72, 88]; KF = 104; MG = 168
        pi_of(a, t0, L, t1)
        a(f'v_and_b32 v{t1}, 32, v{L}'); a(f'v_add_u32 v{ak}, v{t0}, v{t1}'); a(f'v_lshlrev_b32 v{ak}, 4, v{ak}')
        a(f'v_and_b32 v{t0}, 15, v{t0}'); a(f's_and_b32 s{S_T}, s{S_A}, 1'); a(f's_lshl_b32 s{S_T}, s{S_T}, 4'); a(f'v_add_u32 v{t0}, s{S_T}, v{t0}')
        vpos16(a, av, t0, L, t1)
        a(f'v_mov_b32 v{idx}, 0xdddd')
        a(f's_mul_i32 s{S_T}, s{S_W}, 3072'); a(f'v_add_u32 v{lw}, s{S_T}, v{L16}')
        a(f's_lshr_b32 s{S_T}, s{S_A}, 1'); self.flag_off(FL(half, 'QKVA'), S_T, 11)
        KM_, QM_ = 52, 54
        fa = 205
        a(f'v_lshl_add_u32 v{fa}, v{L}, 5, s{S_FO}')
        a(f's_mov_b64 s[{KM_}:{KM_+1}], -1'); a(f's_mov_b64 s[{QM_}:{QM_+1}], -1')
        def need(km, qm):
            l1 = a.newlabel('La_n'); l2 = a.newlabel('La_n'); l3 = a.newlabel('La_n')
            a(f's_mov_b32 s{S_SPIN}, 0')
            a.label(l3)
            tests = [(m, k) for m, k in ((km, KM_), (qm, QM_)) if m is not None]
            for i, (m, k) in enumerate(tests):
                a(f's_and_b64 vcc, s[{m}:{m+1}], s[{k}:{k+1}]'); a(f's_cbranch_scc0 {l2}' if i == len(tests)-1 else f's_cbranch_scc1 {l1}')
            a.label(l1)
            ls = a.newlabel('La_n'); a(f's_cmp_eq_u32 s{S_SPIN}, 0'); a(f's_cbranch_scc1 {ls}'); a(f's_sleep {self.wsleep}'); a.label(ls)
            a(f'global_load_dword v{VZ}, v{fa}, s[{S_WS}:{S_WS+1}] sc1'); a(f'global_load_dword v{VF}, v{fa}, s[{S_WS}:{S_WS+1}] offset:16 sc1')
            if half: a(f'global_load_dword v{fa+1}, v{fa}, s[{S_WS}:{S_WS+1}] offset:8 sc1')
            a('s_waitcnt vmcnt(0)')
            if half: a(f'v_and_b32 v{VZ}, v{VZ}, v{fa+1}')
            a(f'v_cmp_eq_u32 s[{KM_}:{KM_+1}], 0, v{VZ}'); a(f'v_cmp_eq_u32 s[{QM_}:{QM_+1}], 0, v{VF}')
            a(f's_add_u32 s{S_SPIN}, s{S_SPIN}, 1'); a(f's_cmp_lt_u32 s{S_SPIN}, {SPIN_MAX}'); a(f's_cbranch_scc1 {l3}')
            a(f's_branch {self.end}')
            a.label(l2)
        def qwait(blk): a(f's_lshl_b64 s[{S_P}:{S_P+1}], 1, s{blk}'); need(None, S_P)
        a(f's_mov_b32 s56, -1'); a(f's_mov_b32 s57, {0x00ffffff if half else 0xffffffff:#x}'); a(f's_lshl_b64 s[{S_P}:{S_P+1}], 1, s{S_B}'); need(56, S_P)
        self.stamp(2 + 8*half)
        a(f's_lshl_b32 s{S_T}, s{S_A}, 10'); a(f's_lshl_b32 s{S_T2}, s{S_B}, 15'); a(f's_add_u32 s{S_T2}, s{S_T2}, s{S_T}')
        a(f's_add_u32 s{S_T3}, s{S_T2}, {H.QA}'); add64(a, S_IN, S_WS, f's{S_T3}')
        a(f's_add_u32 s{S_T3}, s{S_T2}, {H.OA}'); add64(a, S_OUT, S_WS, f's{S_T3}')
        a(f'global_load_dwordx4 {vr(QN,4)}, v{L16}, s[{S_IN}:{S_IN+1}] sc1')
        a(f's_add_u32 s{S_K0}, s{S_T}, {H.KA}')
        a(f'buffer_load_dwordx4 {vr(K0,4)}, v{ak}, s[{S_WSRD}:{S_WSRD+3}], s{S_K0} offen sc1')
        a(f's_lshl_b32 s{S_T2}, s{S_W}, 15'); a(f's_add_u32 s{S_K0}, s{S_K0}, s{S_T2}')
        a(f's_lshr_b32 s{S_K1}, s{S_A}, 1'); a(f's_lshl_b32 s{S_K1}, s{S_K1}, 11'); a(f's_add_u32 s{S_K1}, s{S_K1}, s{S_T2}'); a(f's_add_u32 s{S_K1}, s{S_K1}, {H.VA}')
        a(f's_mov_b32 s{S_M}, 0x0000ffff'); a(f's_mov_b32 s{S_M+1}, 0x0000ffff')
        def kv_tile(t):
            a(f's_add_u32 s{S_T}, s{S_K0}, {t*131072}')
            a(f'buffer_load_dwordx4 {vr(KF+4*t,4)}, v{ak}, s[{S_WSRD}:{S_WSRD+3}], s{S_T} offen sc1')
            a(f's_add_u32 s{S_T}, s{S_K1}, {t*131072}')
            a(f's_mov_b64 exec, s[{S_M}:{S_M+1}]')
            for b in range(2): a(f'buffer_load_dwordx4 {vr(8*t+4*b,4,"a")}, v{av}, s[{S_WSRD}:{S_WSRD+3}], s{S_T} offen offset:{1024*b} sc1')
            a('s_mov_b64 exec, -1')
        def late_tile(t):
            if half == 0: return
            l = a.newlabel('La_lt'); a(f's_bitcmp0_b32 s{S_PD}, {t-14}'); a(f's_cbranch_scc1 {l}')
            a(f's_add_u32 s{S_T}, s{S_W}, {4*t}'); a(f's_lshl_b64 s[{S_P}:{S_P+1}], 1, s{S_T}')
            need(S_P, None)
            if t == 15: self.mark(0, S_B, 0)
            kv_tile(t); a('s_waitcnt vmcnt(0)')
            a(f's_bitset0_b32 s{S_PD}, {t-14}')
            a.label(l)
        NT = 14 if half else 16
        a(f's_mov_b32 s{S_PD}, 3')
        if half:
            for t in (14, 15):
                l = a.newlabel('La_et'); a(f's_add_u32 s{S_T}, s{S_W}, {4*t}'); a(f's_bitcmp1_b64 s[{KM_}:{KM_+1}], s{S_T}'); a(f's_cbranch_scc1 {l}')
                kv_tile(t); a(f's_bitset0_b32 s{S_PD}, {t-14}'); a.label(l)
        UP = self.attup
        for t in range(UP): kv_tile(t)
        a(f's_mov_b32 s{S_BUF}, 0'); a(f's_mov_b32 s{S_CNT}, 0'); a(f's_mov_b32 s{S_PF}, 0')
        a('s_barrier')
        lp = a.newlabel('La_loop'); run = a.newlabel('La_run'); slow = a.newlabel('La_slow'); nom = a.newlabel('La_nom'); noq = a.newlabel('La_noq'); out = a.newlabel('La_out')
        def rowmax(src, first):
            if first: a(f'v_max3_f32 v{mx}, v{src}, v{src+1}, v{src+2}'); rest = list(range(3, 16))
            else: rest = list(range(16))
            while len(rest) >= 2:
                a(f'v_max3_f32 v{mx}, v{mx}, v{src+rest[0]}, v{src+rest[1]}'); rest = rest[2:]
            if rest: a(f'v_max_f32 v{mx}, v{mx}, v{src+rest[0]}')
        def halfmax():
            a(f'v_mov_b32 v{t0}, v{mx}'); a(f'v_permlane32_swap_b32 v{mx}, v{t0}'); a(f'v_max_f32 v{mx}, v{mx}, v{t0}')
        def pending():
            l = a.newlabel('La_p'); a(f's_cmp_eq_u32 s{S_PF}, 0'); a(f's_cbranch_scc1 {l}')
            a('s_waitcnt vmcnt(0)'); self.wsignal(); a(f's_mov_b32 s{S_PF}, 0')
            if half: self.mark(3, S_B, 0)
            a.label(l)
        def pv(t, b): a(f'v_smfmac_f32_32x32x32_bf16 {vr(O,16)}, {vr(8*t+4*b,4,"a")}, {vr(D[t%3]+8*b,8)}, v{idx}')
        def nextq():
            noq = a.newlabel('La_noq')
            a(f's_cmp_ge_u32 s{S_TK}, 64'); a(f's_cbranch_scc1 {noq}')
            qwait(S_TK)
            a(f'global_load_dwordx4 {vr(QN,4)}, v{L16}, s[{S_IN}:{S_IN+1}] sc1')
            a.label(noq)
        def block(first):
            for i in range(4): a(f'v_mov_b32 v{Q+i}, v{QN+i}')
            a(f's_add_u32 s{S_TK}, s{S_B}, {npg}'); add64(a, S_IN, S_IN, npg*32768)
            a(mf(D[0], vr(K0,4), vr(Q,4), 0))
            for i in range(16): a(f'v_mov_b32 v{O+i}, 0')
            rowmax(D[0], True); halfmax()
            a(f's_mov_b32 s{S_XO}, 0')
            if not first: a.label(run)
            for i in range(16): a(f'v_sub_f32 v{Cc+i}, 0, v{mx}')
            issued = UP
            if first: a(f's_waitcnt vmcnt({3*(issued-2)})')
            a(mf(D[0], vr(KF,4), vr(Q,4), vr(Cc,16)))
            a(mf(D[1], vr(KF+4,4), vr(Q,4), vr(Cc,16)))
            for t in range(16):
                d = D[t % 3]
                for i in range(16):
                    a(f'v_exp_f32 v{d+i}, v{d+i}')
                    if i == 2 and t > 0: pv(t-1, 1)
                    if first and i == 2 and issued < NT: kv_tile(issued); issued += 1
                    if first and i == 6 and NT <= t + 2 < 16: late_tile(t+2)
                    if first and i == 6 and t + 2 < NT: a(f's_waitcnt vmcnt({3*(issued-1-(t+2))})')
                    if i == 6 and t + 2 < 16: a(mf(D[(t+2)%3], vr(KF+4*(t+2),4), vr(Q,4), vr(Cc,16)))
                    if i == 11: pv(t, 0)
                if t == 5 and not first: pending()
                if t == (NT - 3 if first else 6): nextq()
            pv(15, 1)
        merge = a.newlabel('La_merge')
        a(f's_waitcnt vmcnt({3*UP})')
        self.mark(1 if half else 11, S_B, 0)
        block(True); a(f's_branch {merge}')
        a.label(lp)
        block(False)
        a.label(merge)
        a(f'v_add_u32 v{t1}, s{S_BUF}, v{lw}')
        for j in range(3): a(f'ds_write_b128 v{t1}, {vr(O+4*j,4)} offset:{1024*j}')
        a('s_waitcnt vmcnt(0) lgkmcnt(0)'); a('s_barrier')
        a(f'v_add_u32 v{t1}, s{S_BUF}, v{L16}')
        for w in range(4): a(f'ds_read_b32 v{MG+w}, v{t1} offset:{3072*w+2048}')
        a('s_waitcnt lgkmcnt(0)')
        a(f'v_add_f32 v{MG}, v{MG}, v{MG+1}'); a(f'v_add_f32 v{MG+2}, v{MG+2}, v{MG+3}'); a(f'v_add_f32 v{t2}, v{MG}, v{MG+2}')
        a(f's_xor_b32 s{S_BUF}, s{S_BUF}, 16384')
        a(f'v_cmp_nge_f32 vcc, {f2u(2.0**90):#x}, v{t2}')
        a(f's_cbranch_vccnz {slow}')
        fin = a.newlabel('La_fin'); a.label(fin)
        a(f's_and_b32 s{S_T}, s{S_CNT}, 3'); a(f's_add_u32 s{S_CNT}, s{S_CNT}, 1')
        a(f's_cmp_lg_u32 s{S_T}, s{S_W}'); a(f's_cbranch_scc1 {nom}')
        for w in range(4):
            for j in range(2): a(f'ds_read_b128 {vr(MG+8*w+4*j,4)}, v{t1} offset:{3072*w+1024*j}')
        a(f'v_rcp_f32 v{t2}, v{t2}')
        a('s_waitcnt lgkmcnt(0)')
        for i in range(8):
            a(f'v_add_f32 v{MG+i}, v{MG+i}, v{MG+8+i}'); a(f'v_add_f32 v{MG+16+i}, v{MG+16+i}, v{MG+24+i}')
            a(f'v_add_f32 v{MG+i}, v{MG+i}, v{MG+16+i}'); a(f'v_mul_f32 v{MG+i}, v{MG+i}, v{t2}')
        for i in range(4): a(f'v_cvt_pk_bf16_f32 v{MG+i}, v{MG+2*i}, v{MG+2*i+1}')
        a(f'global_store_dwordx4 v{L16}, {vr(MG,4)}, s[{S_OUT}:{S_OUT+1}] sc1')
        self.set_word(FL(half, 'OA'), S_B, S_A); a(f's_mov_b32 s{S_PF}, 1')
        self.mark(2 if half else 12, S_B, 0)
        a(f's_cmp_ge_u32 s{S_B}, {npg}'); a(f's_cbranch_scc1 {nom}')
        pending()
        a.label(nom)
        add64(a, S_OUT, S_OUT, npg*32768)
        a(f's_mov_b32 s{S_B}, s{S_TK}')
        a(f's_cmp_lt_u32 s{S_B}, 64'); a(f's_cbranch_scc1 {lp}')
        pending()
        a(f's_branch {out}')
        a.label(slow)
        a(f's_cmp_lg_u32 s{S_XO}, 0'); a(f's_cbranch_scc1 {fin}')
        a(f's_mov_b32 s{S_XO}, 1')
        for t in range(16):
            a(mf(D[t%2], vr(KF+4*t,4), vr(Q,4), 0))
            rowmax(D[t%2], t == 0)
        halfmax()
        a(f'ds_write_b32 v{lw}, v{mx} offset:32768'); a('s_waitcnt lgkmcnt(0)'); a('s_barrier')
        for w in range(4): a(f'ds_read_b32 v{MG+w}, v{L16} offset:{32768+3072*w}')
        a('s_waitcnt lgkmcnt(0)')
        a(f'v_max3_f32 v{mx}, v{MG}, v{MG+1}, v{MG+2}'); a(f'v_max_f32 v{mx}, v{mx}, v{MG+3}')
        for i in range(16): a(f'v_mov_b32 v{O+i}, 0')
        a(f's_branch {run}')
        a.label(out)
        a('s_barrier')

    def tb_weights(self):
        a = self.a
        a(f's_lshr_b32 s{S_T}, s{S_A}, 2'); a(f's_lshl_b32 s{S_T}, s{S_T}, 19'); a(f's_and_b32 s{S_T2}, s{S_A}, 3'); a(f's_lshl_b32 s{S_T2}, s{S_T2}, 8')
        a(f's_add_u32 s{S_OFF}, s{S_T}, s{S_T2}')
        load_wslices(a, [(KA_WO, 4*MB, 0, 'a', 128)], 1024, L, 3, 4, 5)
        l = a.newlabel('Lt_nw')
        a(f's_and_b32 s{S_T}, s{S_A}, 3'); a(f's_cmp_ge_u32 s{S_T}, 3'); a(f's_cbranch_scc1 {l}')
        a(f's_add_u32 s{S_T}, s{S_T}, 1'); a(f's_cmp_eq_u32 s{S_T}, 3'); a(f's_cselect_b32 s{S_T}, 0, s{S_T}'); a(f's_lshl_b32 s{S_T}, s{S_T}, 10')
        a(f's_lshr_b32 s{S_T2}, s{S_A}, 3'); a(f's_lshl_b32 s{S_T2}, s{S_T2}, 8'); a(f's_add_u32 s{S_OFF}, s{S_T}, s{S_T2}')
        load_wslices(a, [(KA_WQKV, 1536*1024, 0, 'a', 0)], 3072, L, 3, 4, 5)
        a.label(l)
    def pa_task(self, vo, av):
        a = self.a; H = W.H[1]; XR = 12; ACC = 224; xa = 3; t1 = 4
        lv = a.newlabel('Lq_v'); le = a.newlabel('Lq_e')
        self.flag_off(FL(1, 'XNA'), S_TK); self.wait(8)
        a(f's_lshl_b32 s{S_PF}, s{S_TK}, 15'); a(f's_add_u32 s{S_CNT}, s{S_PF}, {H.XNA}'); a(f's_mov_b32 s{S_BUF}, 32768')
        dma_x(a, L16, S_CNT, S_BUF, 'sc1')
        a(f's_and_b32 s{S_PD}, s{S_A}, 3')
        a(f's_add_u32 s{S_T}, s{S_PD}, 1'); a(f's_cmp_eq_u32 s{S_T}, 3'); a(f's_cselect_b32 s{S_T}, 0, s{S_T}'); a(f's_cselect_b32 s{S_SV}, {f2u(0.25*math.log2(math.e)):#x}, 1.0')
        a(f's_lshl_b32 s{S_T}, s{S_T}, 21'); a(f's_add_u32 s{S_PF}, s{S_PF}, s{S_T}'); a(f's_lshr_b32 s{S_T}, s{S_A}, 3'); a(f's_lshl_b32 s{S_T2}, s{S_T}, 13'); a(f's_add_u32 s{S_PF}, s{S_PF}, s{S_T2}')
        a(f's_add_u32 s{S_PF}, s{S_PF}, {H.QA}'); add64(a, S_IN, S_WS, f's{S_PF}')
        a(f's_lshl_b32 s{S_T}, s{S_T}, 2'); a(f's_add_u32 s{S_T}, s{S_T}, s{S_W}'); self.set_word(FL(1, "QKVA"), S_T, S_TK, 11, 5)
        a(f's_lshl_b32 s{S_T}, s{S_PD}, 3'); a(f's_add_u32 s{S_SO}, s{S_SO}, s{S_T}')
        a(f'v_add_u32 v{xa}, 32768, v{L16}')
        a(f's_lshl_b32 s{S_T}, s{S_W}, 11'); a(f's_sub_u32 s{S_T}, s{S_T}, {HB_V}'); a(f'v_add_u32 v{t1}, s{S_T}, v{av}')
        a('s_waitcnt vmcnt(0)'); a('s_barrier')
        a(f's_cmp_eq_u32 s{S_PD}, 1'); a(f's_cbranch_scc1 {lv}')
        gemm_core(a, xa, XR, [(ACC, 'a', 0, False)]); pack_store(a, ACC, vo, S_IN, 'sc1', scale=S_SV); a(f's_branch {le}')
        a.label(lv)
        gemm_core(a, xa, XR, [(ACC, 'a', 0, True)]); pack_store(a, ACC, t1, S_IN, 'sc1')
        a.label(le)
        a('s_waitcnt vmcnt(0)'); self.wsignal(); a('s_barrier')
    def tb_run(self, half, ngr):
        a = self.a; H = W.H[half]
        t0, t1, akm, av, avm, vo, xw = range(3, 10); mx = 240; FG = 244
        XR = 12; CM = 28; SX = 44; SM = 60; Q = 76; K = 108; KM = 140; V = 172; VM = 204; P = 212; PM = 220; ACC = 224
        OT = Q
        a(f'v_and_b32 v{t0}, 7, v{L}'); a(f'v_lshlrev_b32 v{akm}, 4, v{t0}'); a(f'v_lshrrev_b32 v{t0}, 5, v{L}'); a(f'v_lshl_add_u32 v{akm}, v{t0}, 7, v{akm}')
        a(f'v_add_u32 v{akm}, {HB_KM}, v{akm}')
        pi_of(a, t0, L, t1); vpos16(a, av, t0, L, t1); a(f'v_add_u32 v{av}, {HB_V}, v{av}')
        a(f'v_lshlrev_b32 v{avm}, 2, v{t0}'); a(f'v_lshrrev_b32 v{t1}, 5, v{L}'); a(f'v_lshl_add_u32 v{avm}, v{t1}, 8, v{avm}'); a(f'v_add_u32 v{avm}, {HB_VM}, v{avm}')
        a(f's_lshl_b32 s{S_T}, s{S_W}, 11'); a(f'v_add_u32 v{vo}, s{S_T}, v{L16}')
        a(f's_lshl_b32 s{S_T}, s{S_W}, 13'); a(f'v_add_u32 v{xw}, s{S_T}, v{L16}')
        a(f'v_and_b32 v{t0}, 31, v{L}'); a(f'v_lshrrev_b32 v{t1}, 5, v{L}'); a(f'v_lshlrev_b32 v{t1}, 2, v{t1}'); a(f'v_sub_u32 v{t0}, v{t0}, v{t1}')
        a(f'v_mov_b32 v{t1}, {f2u(-1e30):#x}')
        for i in range(16):
            a(f'v_cmp_le_i32 vcc, {8*(i>>2)+(i&3)}, v{t0}'); a(f'v_cndmask_b32 v{CM+i}, v{t1}, 0, vcc')
        a(f's_and_b32 s{S_T}, s{S_A}, 28'); a(f's_add_u32 s{S_T}, s{S_T}, s{S_W}')
        a(f's_lshl_b32 s{S_K0}, s{S_T}, 8'); a(f's_add_u32 s{S_K0}, s{S_K0}, {FL(half, "HEAD")}')
        a(f's_lshl_b32 s{S_T}, s{S_T}, 21')
        a(f's_lshl_b32 s{S_T2}, s{S_B}, 15'); a(f's_add_u32 s{S_XO}, s{S_T}, s{S_T2}'); a(f's_add_u32 s{S_XO}, s{S_XO}, {H.HB}')
        a(f's_lshl_b32 s{S_T}, s{S_B}, 18'); a(f's_lshl_b32 s{S_T2}, s{S_A}, 13'); a(f's_add_u32 s{S_T}, s{S_T}, s{S_T2}'); a(f's_add_u32 s{S_T}, s{S_T}, {H.PT}')
        add64(a, S_OUT, S_WS, f's{S_T}')
        a(f's_mov_b32 s{S_M}, {f2u(math.log2(math.e)/math.sqrt(128.0)):#x}')
        a(f's_mov_b32 s{S_N}, 0'); a(f's_mov_b32 s{S_K1}, 0')
        def bl(n, dst, va, so, off): a(f'buffer_load_dword{n} {vr(dst, 4 if n else 1)}, v{va}, s[{S_WSRD}:{S_WSRD+3}], s{so} offen offset:{off} sc1')
        def poll(which):
            l1 = a.newlabel('Lt_p'); l2 = a.newlabel('Lt_p'); l3 = a.newlabel('Lt_p')
            a(f's_mov_b32 s{S_SPIN}, 0'); a(f's_branch {l3}')
            a.label(l1)
            if which == S_N:
                a(f'v_mov_b32 v{VZ}, s{S_K0}')
                _ = [a(f'global_load_dword v{FG+i}, v{VZ}, s[{S_WS}:{S_WS+1}] offset:{32*i} sc1') for i in range(8)]; a('s_waitcnt vmcnt(0)')
                a(f'v_min3_u32 v{FG}, v{FG}, v{FG+1}, v{FG+2}'); a(f'v_min3_u32 v{FG}, v{FG}, v{FG+3}, v{FG+4}'); a(f'v_min3_u32 v{FG}, v{FG}, v{FG+5}, v{FG+6}'); a(f'v_min_u32 v{FG}, v{FG}, v{FG+7}')
            else:
                a(f's_add_u32 s{S_X}, s{S_K0}, {FL(half, "CHP") - FL(half, "HEAD")}'); a(f'v_mov_b32 v{VZ}, s{S_X}')
                a(f'global_load_dword v{FG}, v{VZ}, s[{S_WS}:{S_WS+1}] sc1'); a('s_waitcnt vmcnt(0)')
            a(f'v_readfirstlane_b32 s{which}, v{FG}')
            if which == S_N: a(f's_max_u32 s{S_N}, s{S_N}, 2'); a(f's_sub_u32 s{S_N}, s{S_N}, 2')
            a(f's_cmp_gt_u32 s{which}, s{S_B}'); a(f's_cbranch_scc1 {l2}')
            a('s_sleep 1')
            lz = a.newlabel('Lt_z'); a(f's_cmp_eq_u32 s{S_B}, 63'); a(f's_cbranch_scc1 {lz}'); a(f's_sleep {self.tbsleep}'); a.label(lz)
            a(f's_add_u32 s{S_SPIN}, s{S_SPIN}, 1'); a(f's_cmp_ge_u32 s{S_SPIN}, {SPIN_MAX}'); a(f's_cbranch_scc1 {self.end}')
            a.label(l3)
            a(f's_cmp_gt_u32 s{which}, s{S_B}'); a(f's_cbranch_scc0 {l1}')
            a.label(l2)
        lp = a.newlabel('Lt_loop')
        PFX = 58
        def x_loads(d):
            a(f's_add_u32 s{S_X}, s{S_XO}, {d}'); a(f's_add_u32 s{S_T}, s{S_XO}, {d+4096}'); a(f's_add_u32 s{S_T2}, s{S_XO}, {d+HB_Q}'); a(f's_add_u32 s{S_T3}, s{S_XO}, {d+HB_Q+4096}')
            for kb in range(8):
                bl('x4', K+4*kb, L16, S_X if kb < 4 else S_T, (kb%4)*1024)
                bl('x4', Q+4*kb, L16, S_T2 if kb < 4 else S_T3, (kb%4)*1024)
            for f in range(8): bl('x4', V+4*f, av, S_X if f < 4 else S_T, (f%4)*1024)
        a(f's_mov_b32 s{PFX}, 0'); a(f's_and_b32 s{S_TK}, s{S_A}, 4'); a(f's_add_u32 s{S_TK}, s{S_TK}, s{S_B}')
        a.label(lp)
        lh = a.newlabel('Lt_h'); a(f's_cmp_lg_u32 s{PFX}, 0'); a(f's_cbranch_scc1 {lh}')
        poll(S_N); x_loads(0)
        a.label(lh)
        def mem_loads():
            for kb in range(8): bl('x4', KM+4*kb, akm, S_XO, kb*256)
            for t in range(4):
                for e in range(2): bl('', VM+2*t+e, avm, S_XO, t*512 + e*128)
        def both(r, op):
            a(f'v_mov_b32 v{t0}, v{r}'); a(f'v_permlane32_swap_b32 v{r}, v{t0}'); a(f'{op} v{r}, v{r}, v{t0}')
        lx = mx + 1; al = mx + 2; m2 = mx + 3
        def xpart(extra):
            for kb in range(8):
                a(f's_waitcnt vmcnt({extra + 8 + 14 - 2*kb})')
                a(mf(SX, vr(K+4*kb,4), vr(Q+4*kb,4), vr(SX,16) if kb else vr(CM,16)))
            a(f'v_max3_f32 v{mx}, v{SX}, v{SX+1}, v{SX+2}')
            for i in range(3, 15, 2): a(f'v_max3_f32 v{mx}, v{mx}, v{SX+i}, v{SX+i+1}')
            a(f'v_max_f32 v{mx}, v{mx}, v{SX+15}'); both(mx, 'v_max_f32')
            for i in range(16): a(f'v_sub_f32 v{SX+i}, v{SX+i}, v{mx}')
            for i in range(16): a(f'v_mul_f32 v{SX+i}, s{S_M}, v{SX+i}')
            for i in range(16): a(f'v_exp_f32 v{SX+i}, v{SX+i}')
            a(f'v_add_f32 v{lx}, v{SX}, v{SX+1}')
            for i in range(2, 16): a(f'v_add_f32 v{lx}, v{lx}, v{SX+i}')
        lw_ = a.newlabel('Lt_w'); lj = a.newlabel('Lt_j')
        a(f's_cmp_gt_u32 s{S_K1}, s{S_B}'); a(f's_cbranch_scc0 {lw_}')
        mem_loads(); xpart(16); a(f's_branch {lj}')
        a.label(lw_)
        xpart(0); poll(S_K1)
        if half == 0: self.mark(4, S_B, 63)
        mem_loads()
        a.label(lj)
        for kb in range(8):
            a(f's_waitcnt vmcnt({8 + 7 - kb})')
            a(mf(SM, vr(KM+4*kb,4), vr(Q+4*kb,4), vr(SM,16) if kb else 0))
        if half == 0: self.mark(5, S_B, 63)
        a(f'v_max3_f32 v{m2}, v{SM}, v{SM+1}, v{mx}'); a(f'v_max3_f32 v{m2}, v{m2}, v{SM+2}, v{SM+3}'); both(m2, 'v_max_f32')
        a(f'v_sub_f32 v{al}, v{mx}, v{m2}')
        for i in range(4): a(f'v_sub_f32 v{SM+i}, v{SM+i}, v{m2}')
        for e in [al] + [SM+i for i in range(4)]: a(f'v_mul_f32 v{e}, s{S_M}, v{e}')
        for e in [al] + [SM+i for i in range(4)]: a(f'v_exp_f32 v{e}, v{e}')
        a(f'v_fma_f32 v{t1}, v{lx}, v{al}, v{SM}')
        for i in range(1, 4): a(f'v_add_f32 v{t1}, v{t1}, v{SM+i}')
        both(t1, 'v_add_f32')
        a(f'v_rcp_f32 v{t1}, v{t1}')
        a(f'v_mul_f32 v{al}, v{al}, v{t1}')
        for i in range(4): a(f'v_mul_f32 v{SM+i}, v{SM+i}, v{t1}')
        for i in range(2): a(f'v_cvt_pk_bf16_f32 v{PM+i}, v{SM+2*i}, v{SM+2*i+1}')
        a('s_waitcnt vmcnt(0)')
        for t in range(4):
            a(f'v_mfma_f32_32x32x8_bf16 {vr(OT+16*t,16)}, {vr(VM+2*t,2)}, {vr(PM,2)}, 0')
            for i in range(4*t, 4*t+4): a(f'v_mul_f32 v{SX+i}, v{SX+i}, v{al}')
            for i in range(2*t, 2*t+2): a(f'v_cvt_pk_bf16_f32 v{P+i}, v{SX+2*i}, v{SX+2*i+1}')
        def cv(t, j):
            o = OT+16*t+8*j
            for i in range(4): a(f'v_cvt_pk_bf16_f32 v{o+i}, v{o+2*i}, v{o+2*i+1}')
        def wr(t, j): a(f'ds_write_b128 v{xw}, {vr(OT+16*t+8*j,4)} offset:{(2*t+j)*1024}')
        todo = [(t, j) for t in range(4) for j in range(2)]; conv = []
        for n, (t, j) in enumerate(list(todo)):
            a(mf(OT+16*t, vr(V+8*t+4*j,4), vr(P+4*j,4), vr(OT+16*t,16)))
            if conv: wr(*conv.pop(0))
            if n >= 3: x = todo.pop(0); cv(*x); conv.append(x)
        for x in conv: wr(*x)
        for x in todo: cv(*x); wr(*x)
        a('s_waitcnt lgkmcnt(0)'); a('s_barrier')
        def pfx():
            l = a.newlabel('Lt_x'); a(f's_add_u32 s{S_T}, s{S_B}, {ngr}'); a(f's_mov_b32 s{PFX}, 0')
            a(f's_cmp_gt_u32 s{S_N}, s{S_T}'); a(f's_cbranch_scc0 {l}')
            x_loads(ngr*32768); a(f's_mov_b32 s{PFX}, 1'); a.label(l)
        gemm_core(a, L16, XR, [(ACC, 'a', 128, False)], {1: pfx})
        pack_store(a, ACC, vo, S_OUT, 'sc1')
        if half == 0: self.mark(6, S_B, 63)
        self.set_word(FL(half, 'PT'), S_B, S_A); self.signal_wg()
        if half == 0: self.mark(7, S_B, 63); self.mark(13, S_B, 35); self.mark(14, S_B, 51)
        add64(a, S_OUT, S_OUT, ngr*8*32768); a(f's_add_u32 s{S_XO}, s{S_XO}, {ngr*32768}')
        a(f's_add_u32 s{S_B}, s{S_B}, {ngr}')
        if half == 0:
            nxt = a.newlabel('Lt_n'); pa = a.newlabel('Lt_pa'); fin = a.newlabel('Lt_f')
            a(f's_and_b32 s{S_T}, s{S_A}, 3'); a(f's_cmp_ge_u32 s{S_T}, 3'); a(f's_cbranch_scc1 {nxt}')
            a(f's_cmp_ge_u32 s{S_TK}, {self.pasplit}'); a(f's_cbranch_scc1 {nxt}')
            a(f's_add_u32 s{S_T}, s{S_TK}, {self.palag*ngr}'); a(f's_cmp_gt_u32 s{S_T}, s{S_B}'); a(f's_cbranch_scc1 {nxt}')
            self.pa_task(vo, av)
            a(f's_add_u32 s{S_TK}, s{S_TK}, {2*ngr}')
            a(f's_cmp_lt_u32 s{S_TK}, {self.pasplit}'); a(f's_cbranch_scc1 {nxt}')
            a(f'v_mov_b32 v{VZ}, 0x3f803f80')
            for i in range(128): a(f'v_accvgpr_write_b32 a{i}, v{VZ}')
            a.label(nxt)
        a(f's_cmp_lt_u32 s{S_B}, 64'); a(f's_cbranch_scc1 {lp}')

    def build(self):
        a = self.a; end = self.end
        a(f's_cmp_ge_u32 s2, 256'); a(f's_cbranch_scc1 {end}')
        if self.stamps == 2: a('s_memrealtime s[96:97]')
        if self.stamps is True: a('s_memrealtime s[94:95]')
        a(f's_load_dwordx2 s[{S_DBG}:{S_DBG+1}], s[0:1], {KA_DBG}')
        common_prologue(a, L, L16)
        lw = a.newlabel('Le'); lo = a.newlabel('Le'); ls = a.newlabel('Le'); lg = a.newlabel('Le'); lz = a.newlabel('Le')
        a(f's_getreg_b32 s{S_X}, hwreg(HW_REG_XCC_ID, 0, 3)')
        a(f's_xor_b32 s{S_X}, s{S_X}, {self.die}')
        if self.fake: a(self.fake.format(x=S_X))
        a(f's_lshl_b32 s{S_T}, s{S_X}, 4'); a(f'v_mov_b32 v3, s{S_T}'); a('v_mov_b32 v4, 1')
        def xwait():
            l1 = a.newlabel('Le'); l2 = a.newlabel('Le')
            a(f's_mul_i32 s{S_T}, s2, 3072'); a(f's_add_u32 s{S_T}, s{S_T}, {W.FLAGS}'); a('v_mul_u32_u24 v6, 12, v0'); a(f'v_add_u32 v6, s{S_T}, v6'); a('v_mov_b32 v8, 0'); a('v_mov_b32 v9, 0'); a('v_mov_b32 v10, 0')
            a(f'global_store_dwordx3 v6, v[8:10], s[{S_WS}:{S_WS+1}] sc1')
            a(f's_cmp_lg_u32 s{S_W}, 0'); a(f's_cbranch_scc1 {l1}')
            a('s_mov_b64 exec, 1'); a(f'global_atomic_add v5, v3, v4, s[{S_DBG}:{S_DBG+1}] offset:{self.TO} sc0 sc1'); a('s_mov_b64 exec, -1')
            a('s_waitcnt vmcnt(2)'); a(f's_branch {l2}')
            a.label(l1); a('s_waitcnt vmcnt(1)'); a.label(l2)
        a(f's_lshr_b32 s{S_A}, s2, 2'); a(f's_and_b32 s{S_B}, s2, 3')
        rb_body(a, 0, KA_X, True, 0, 0, 0, None, False, W.H[0].XNA, '', 'sc1', ldsoff=1024, vb=20, xwait=xwait)
        a(f's_cmp_lg_u32 s{S_W}, 0'); a(f's_cbranch_scc1 {lw}')
        a('s_mov_b64 exec, 1'); a('s_waitcnt vmcnt(2)')
        a(f'v_readfirstlane_b32 s{S_TK}, v5')
        a(f's_lshl_b32 s{S_SLOT}, s{S_X}, 5'); a(f's_add_u32 s{S_SLOT}, s{S_SLOT}, s{S_TK}')
        a(f's_cmp_lt_u32 s{S_TK}, 32'); a(f's_cbranch_scc1 {lg}')
        a('v_mov_b32 v3, 136'); a(f'global_atomic_add v5, v3, v4, s[{S_DBG}:{S_DBG+1}] sc0 sc1'); a('s_waitcnt vmcnt(0)')
        a(f'v_readfirstlane_b32 s{S_TK}, v5')
        self.count_wait(self.TO, 12, ls, S_T, S_SPIN)
        a.label(ls)
        for x in range(8):
            a(f'v_readfirstlane_b32 s{S_T}, v{12+x}'); a(f's_min_u32 s{S_T}, s{S_T}, 32')
            a(f's_add_u32 s{S_SLOT}, s{S_T}, s{S_TK}'); a(f's_add_u32 s{S_SLOT}, s{S_SLOT}, {32*x}')
            a(f's_sub_u32 s{S_T}, 32, s{S_T}'); a(f's_cmp_lt_u32 s{S_TK}, s{S_T}'); a(f's_cbranch_scc1 {lg}')
            a(f's_sub_u32 s{S_TK}, s{S_TK}, s{S_T}')
        a(f's_mov_b32 s{S_SLOT}, 256')
        a.label(lg)
        a(f'v_mov_b32 v3, 0'); a(f'v_mov_b32 v4, s{S_SLOT}'); a('ds_write_b32 v3, v4'); a('s_waitcnt lgkmcnt(0)')
        a('s_mov_b64 exec, -1')
        a.label(lw)
        a('s_waitcnt vmcnt(0)'); a('s_barrier')
        a(f's_mov_b32 s{S_DIE}, s{S_X}'); self.report()
        a('v_mov_b32 v3, 0'); a('ds_read_b32 v4, v3'); a('s_waitcnt lgkmcnt(0)'); a(f'v_readfirstlane_b32 s{S_SLOT}, v4'); a('s_barrier')
        a(f's_lshr_b32 s{S_T}, s{S_SLOT}, 5'); a(f's_lshl_b32 s{S_T2}, s{S_T}, 2'); a(f's_lshr_b32 s{S_T2}, {self.perm:#x}, s{S_T2}'); a(f's_and_b32 s{S_T2}, s{S_T2}, 7')
        a(f's_cmp_lt_u32 s{S_T}, 8'); a(f's_cselect_b32 s{S_T2}, s{S_T2}, 8'); a(f's_and_b32 s{S_SLOT}, s{S_SLOT}, 31'); a(f's_lshl_b32 s{S_T2}, s{S_T2}, 5'); a(f's_add_u32 s{S_SLOT}, s{S_SLOT}, s{S_T2}')
        if self.stamps: a(f's_mov_b32 s99, s{S_SLOT}')
        self.role = 'all'
        self.dmap = {('all',0):0, ('ch',1):1, ('ch',2):2, ('ch',3):3, ('ch',4):4, ('gw',1):8, ('gw',2):9, ('gw',3):10, ('pb',1):11, ('ms',12):12, ('gw',4):13, ('pb',3):14}
        if self.stamps == 2:
            a('s_and_b32 s99, s96, 0xfff00000')
        self.sv = 10
        a(f's_mov_b32 s{S_SO}, {W.STAMPS}')
        if self.stamps: _ = [a(f's_mov_b32 s{70+k}, 0') for k in range(16)]
        if self.stamps is True: a('s_mov_b32 s85, s94')
        self.stamp(0)
        Lch, Lpb, Lgw, Lms, Lpa = [a.newlabel(n) for n in ('Lchain', 'Lpb', 'Lgw', 'Lms', 'Lpa')]
        a(f's_cmp_lt_u32 s{S_SLOT}, 32'); a(f's_cbranch_scc0 Lnot_chain')
        self.jump(Lch)
        a.label('Lnot_chain')
        a(f's_cmp_lt_u32 s{S_SLOT}, 96'); a(f's_cbranch_scc1 {Lpb}')
        a(f's_cmp_lt_u32 s{S_SLOT}, 224'); a(f's_cbranch_scc1 {Lgw}')
        a(f's_cmp_lt_u32 s{S_SLOT}, 240'); a(f's_cbranch_scc1 {Lms}')
        a(f's_cmp_lt_u32 s{S_SLOT}, 256'); a(f's_cbranch_scc1 {Lpa}')
        a.label(end); a('s_endpgm')
        a.label(Lms); self.role = 'ms'; self.code_touch(sh=7)
        a(f's_and_b32 s{S_A}, s{S_SLOT}, 3'); a(f's_lshl_b32 s{S_OFF}, s{S_A}, 8')
        load_wslices(a, [(KA_WOA, 512*1024, 0, 'v', 128)], 1024, L, 3, 4, 5)
        if self.pfb:
            a(f's_load_dwordx2 s[{S_P}:{S_P+1}], s[0:1], {KA_WO}'); a(f's_and_b32 s{S_T}, s{S_SLOT}, 15'); a(f's_lshl_b32 s{S_T}, s{S_T}, 18')
            a(f'v_lshl_add_u32 v3, v0, 7, s{S_T}'); a('s_waitcnt lgkmcnt(0)')
            for i in range(8):
                a(f'global_load_dword v4, v3, s[{S_P}:{S_P+1}]'); a('v_add_u32 v3, 32768, v3')
        self.flags_ready(); self.local_check()
        for half in range(2):
            a(f's_and_b32 s{S_A}, s{S_SLOT}, 3'); a(f's_bfe_u32 s{S_B}, s{S_SLOT}, 0x20002'); self.woa_run(half, 4); self.stamp(3 + 8*half)
            a(f's_bfe_u32 s{S_A}, s{S_SLOT}, 0x20002'); a(f's_and_b32 s{S_B}, s{S_SLOT}, 3')
            self.rb_run(half, 4); self.stamp(4 + 8*half)
        self.dump_marks(); a('s_endpgm')
        a.label(Lpa); self.role = 'pa'; self.code_touch(sh=7)
        def first_x():
            self.flags_ready(); self.mark(9, S_W, 0)
            a(f's_lshl_b32 s{S_XO}, s{S_B}, 15'); a(f's_add_u32 s{S_XO}, s{S_XO}, {W.H[0].XNA}'); a(f's_mov_b32 s{S_BUF}, {128*1024}')
            dma_x(a, L16, S_XO, S_BUF, 'sc1')
        a(f's_and_b32 s{S_A}, s{S_SLOT}, 3'); a(f's_bfe_u32 s{S_B}, s{S_SLOT}, 0x20002')
        self.proj_weights(False, (S_B, 4), first_x, (2,)); self.proj_run(0, False, 4, nowait=True, mode='q'); self.stamp(3)
        self.proj_weights(False, None, None, (0, 1))
        a(f's_bfe_u32 s{S_B}, s{S_SLOT}, 0x20002'); a(f's_add_u32 s{S_B}, s{S_B}, {self.pasplit}'); self.proj_run(1, False, 4); self.stamp(4)
        self.dump_marks(); a('s_endpgm')
        a.label(Lpb); self.role = 'pb'; self.code_touch(sh=7)
        def pb_ids():
            a(f's_sub_u32 s{S_T}, s{S_SLOT}, 32'); a(f's_lshr_b32 s{S_A}, s{S_T}, 5'); a(f's_lshl_b32 s{S_A}, s{S_A}, 4'); a(f's_and_b32 s{S_T2}, s{S_T}, 15')
            a(f's_add_u32 s{S_A}, s{S_A}, s{S_T2}'); a(f's_bfe_u32 s{S_B}, s{S_T}, 0x10004')
        pb_ids(); self.proj_weights(True, (S_B, 2) if self.pfb else None); self.flags_ready(); self.stamp(1)
        for half in range(2):
            pb_ids(); self.proj_run(half, True, 2); self.stamp(3 + 8*half)
        self.dump_marks(); a('s_endpgm')
        a.label(Lgw); self.role = 'gw'; self.code_touch(sh=7)
        self.end = 'Lm_end2'
        def pa_ids(): a(f's_sub_u32 s{S_T}, s{S_SLOT}, 96'); a(f's_lshr_b32 s{S_A}, s{S_T}, 5'); a(f's_and_b32 s{S_B}, s{S_T}, 31')
        pa_ids()
        def gw_first():
            a(f'v_mov_b32 v{VZ}, 0x3f803f80')
            for i in range(128): a(f'v_accvgpr_write_b32 a{i}, v{VZ}')
        self.proj_weights(False, (S_B, 32), first_x, (0, 1), gw_first); self.mark(10, S_W, 0); self.proj_run(0, False, 32, nowait=True, mode='kv'); self.stamp(1)
        def gw_ids():
            a(f's_sub_u32 s{S_T}, s{S_SLOT}, 96'); a(f's_lshr_b32 s{S_A}, s{S_T}, 5'); a(f's_lshl_b32 s{S_A}, s{S_A}, 3'); a(f's_and_b32 s{S_T2}, s{S_T}, 7')
            a(f's_add_u32 s{S_A}, s{S_A}, s{S_T2}'); a(f's_bfe_u32 s{S_B}, s{S_T}, 0x20003')
        for half in range(2):
            gw_ids(); self.att_run(half, 4); self.stamp(3 + 8*half)
            gw_ids()
            if half == 0: self.tb_weights()
            self.tb_run(half, 4); self.stamp(4 + 8*half)
        self.dump_marks()
        a.label('Lm_end2'); a('s_endpgm')
        a.label(Lch); self.role = 'ch'
        self.end = 'Lm_end3'; end = self.end
        r = C.ChainRegs(); self.sv = r.R
        a(f's_mov_b32 s{C.S_H}, s{S_SLOT}')
        lslow = a.newlabel('Lcslow'); lfast = a.newlabel('Lcfast')
        def mid(T):
            l1 = a.newlabel('Lcm'); l2 = a.newlabel('Lcm')
            T = r.WV + 64
            self.count_wait(132, T, end, C.S_T, C.S_SPIN); self.count_wait(self.TO, T, end, C.S_T, C.S_SPIN)
            a(f'v_readfirstlane_b32 s{C.S_T}, v{T}')
            add64(a, S_DBG, S_WS, FL(0, 'EL'))
            if self.chain_kw.get('force_slow'): a(f's_mov_b32 s{C.S_T}, 0')
            a(f's_mov_b32 s{C.S_EP}, 0'); a(f's_mov_b32 s{C.S_EM}, 0'); a(f's_mov_b32 s{C.S_HALF}, 0')
            a(f's_cmp_ge_u32 s{C.S_T}, 32'); a(f's_cselect_b32 s{C.S_FB}, 1, 0'); a(f's_cbranch_scc1 {l1}')
            C.chain_init_comm(a, r, 'sc1', True, T); a(f's_branch {l2}')
            a.label(l1); C.chain_init_comm(a, r, '', True, T)
            a.label(l2); C.group_arrive(a, T, 1280)
        C.chain_setup(a, r, mid, self.ahead)
        self.stamp(1)
        C.group_wait(a, r.R, 1280, 32, end)
        a(f's_cmp_eq_u32 s{C.S_FB}, 1'); a(f's_cbranch_scc1 {lfast}')
        a(f's_branch {lslow}')
        a.label(end); a('s_endpgm')
        kw = {k: v for k, v in self.chain_kw.items() if k != 'force_slow'}
        for lbl, stf in ((lfast, ''), (lslow, 'sc1')):
            a.label(lbl)
            lh = a.newlabel('Lch_half'); a.label(lh)
            self.stamp(2, C.S_HALF)
            C.chain_start(a, r, end, 1)
            def started(sv):
                self.sv = sv; self.stamp(3, C.S_HALF); self.sv = r.R
            kw['started'] = started
            C.chain_all_waves(a, r, stf, end, fused=1, **(dict(kw, ef='sc1') if stf else kw))
            self.stamp(4, C.S_HALF)
            if kw.get('stamps'):
                for k in range(12): a(f'v_mov_b32 v{k}, s{84+k}')
                a(f's_lshl_b32 s{C.S_T}, s{C.S_H}, 2'); a(f's_add_u32 s{C.S_T}, s{C.S_T}, s{C.S_W}'); a(f's_lshl_b32 s{C.S_T}, s{C.S_T}, 6')
                a(f's_lshl_b32 s{C.S_T2}, s{C.S_HALF}, 13'); a(f's_add_u32 s{C.S_T}, s{C.S_T}, s{C.S_T2}')
                a(f's_add_u32 s{C.S_T}, s{C.S_T}, {STAMP_OFF + 32768}'); a(f'v_mov_b32 v16, s{C.S_T}')
                for k in range(3): a(f'global_store_dwordx4 v16, {vr(4*k,4)}, s[{S_WS}:{S_WS+1}] offset:{16*k}')
                a('s_waitcnt vmcnt(0)')
            a(f's_cmp_lg_u32 s{C.S_HALF}, 0'); a(f's_cbranch_scc1 {end}')
            a(f's_mov_b32 s{C.S_HALF}, 1'); C.group_arrive(a, r.R, 1408); C.group_wait(a, r.R, 1408, 32, end)
            a(f's_xor_b32 s{C.S_EM}, s{C.S_EM}, 1'); C.chain_init_comm(a, r, stf, False)
            a(f's_branch {lh}')
        return a.lines
    def jump(self, label):
        a = self.a; l = a.newlabel('Lj')
        a('s_getpc_b64 s[48:49]'); a.label(l)
        a(f's_add_u32 s48, s48, {label}-{l}'); a('s_addc_u32 s49, s49, 0'); a('s_setpc_b64 s[48:49]')

NAME = 'interleave_layers__softmax_full_mha__memory_aug_recurrent_mem_tr__prompt'
def build(stamps=False, chain_kw={}, verbose=False, aslist=True):
    ks = []
    for n, lines, vg, acc in ((NAME + '_kernel', Mega(stamps, chain_kw).build(), 512, 256),):
        rep = []
        l = fix_hazards(lines, rep)
        for e in check_waits(l, n[:8]): print(e)
        if verbose: print(n, len(l), len(rep))
        ks.append((n, l, vg, acc))
    hdr = ''.join(l for l in open(f'cdna_kernels/{NAME}.s.ref').readlines()[:14] if '@launch' not in l)
    t = assemble_file(hdr, [(NAME + '_kernel', 256, 256, 163840)], ks)
    return t if aslist else t.replace(f'@launch kernel={NAME}_kernel ', '@launch ')

if __name__ == '__main__':
    import sys
    kw = eval(sys.argv[2]) if len(sys.argv) > 2 else dict()
    st = (True if sys.argv[3] == '1' else 2) if len(sys.argv) > 3 else False
    t = build(st, kw, True, aslist=(st is True))
    open(sys.argv[1] if len(sys.argv) > 1 else f'cdna_kernels/{NAME}.s', 'w').write(t)
    print(len(t))
```

```python
from asmlib import *
from layout import *
import math, struct

def f2u(f): return struct.unpack('<I', struct.pack('<f', f))[0]

LW = 0
LM = 144 * 1024
LS = 148 * 1024
DELTA = [0, 1, 8, 9, 2, 3, 10, 11]
DELTA2 = [0, 1, 32, 33, 8, 9, 40, 41]

class ChainRegs:
    def __init__(self):
        v = RegAlloc('v', 0, 256)
        self.M = v.alloc(32, 4); self.R = v.alloc(32, 4); self.A = v.alloc(32, 4)
        self.KX = v.alloc(8, 4); self.VX = v.alloc(8, 4)
        self.T = v.alloc(4, 4)
        self.VM = v.alloc(4)
        self.idx = self.VM + 1; self.aMst = self.VM + 3
        self.PZ = v.alloc(2)
        self.Z = v.alloc(2)
        self.I = v.alloc(2); self.E = v.alloc(4); self.One = v.alloc(4)
        self.PG = v.alloc(2)
        self.aPst = v.alloc(); self.aOw = v.alloc(); self.aW = v.alloc()
        self.aK = v.alloc(); self.aV = v.alloc(); self.aKm = v.alloc(); self.aVm = v.alloc(); self.aL = v.alloc()
        assert v.next <= 144, v.next
        self.WV = 144
        self.place = {}
        lds = [('q', 1, s) for s in range(8)] + [('q', 0, s) for s in range(4, 8)] + [('o', t, k) for t in (0, 6, 7) for k in range(2)]
        for i, b in enumerate(lds): self.place[b] = ('l', i * 2048)
        rest = [(m, t, s) for m in 'qkv' for t in range(2) for s in range(8)] + [('o', t, k) for t in range(8) for k in range(2)]
        rest = [b for b in rest if b not in self.place]
        assert len(rest) == 46
        for i, b in enumerate(rest):
            self.place[b] = ('a', 8 * i) if i < 32 else ('v', self.WV + 8 * (i - 32))
    def blk(self, b):
        k, r = self.place[b]; assert k != 'l'
        return vr(r, 8, k)

S_WS = 4; S_H = 6; S_W = 7
S_SRD = 8
S_CP = 12
S_HB = 20
S_KV = 22
S_CML = 24
S_XP = 26
S_EP = 28; S_EM = 29; S_STEP = 30; S_C = 31; S_SPIN = 32
S_PLO = 33; S_PHI = 34; S_T = 35; S_T2 = 36; S_T3 = 37
S_XH1 = 38; S_XH0 = 40; S_XR = 42
S_DBG = 44; S_TMP = 46; S_M0 = 48; S_RDY = 49
S_FH = 50; S_FW = 52; S_CPR = 54; S_CM = 56; S_HALF = 58; S_FB = 59
S_STAMP = 60
S_BW = 8
S_BR = 10
S_GS = 49
S_CME = 80
REP = 8192
S_SP = 31

def add64(a, dst, base, off):
    a(f's_add_u32 s{dst}, s{base}, {off}'); a(f's_addc_u32 s{dst+1}, s{base+1}, 0')

ROT = [0]; WF = ['']
def frag_of(w, j): return (j ^ (w & ROT[0])) if j < 4 else 4 + (w ^ (j - 4))

def chain_setup(a, r, mid=None, ahead=0, first=None):
    L = r.T; N = r.T+1; G = r.T+2; L16 = r.aL
    T = r.R
    a(f'v_lshrrev_b32 v{T}, 6, v0'); a(f'v_and_b32 v{L}, 63, v0'); a(f'v_readfirstlane_b32 s{S_W}, v{T}')
    a(f'v_and_b32 v{N}, 15, v{L}'); a(f'v_lshrrev_b32 v{G}, 4, v{L}')
    a(f's_mov_b32 s{S_PLO}, 0x05040100'); a(f's_mov_b32 s{S_PHI}, 0x07060302')
    a(f's_mov_b32 s{S_XH1}, 0xcccccccc'); a(f's_mov_b32 s{S_XH1+1}, 0xcccccccc')
    a(f's_mov_b32 s{S_XH0}, 0x33333333'); a(f's_mov_b32 s{S_XH0+1}, 0x33333333')
    a(f's_mov_b32 s{S_XR}, 0x000f000f'); a(f's_mov_b32 s{S_XR+1}, 0')
    a(f's_mov_b32 s{S_C}, {f2u(math.log2(math.e) / math.sqrt(128.0)):#x}')
    a(f'v_lshlrev_b32 v{L16}, 4, v{L}')
    a(f's_mul_i32 s{S_T}, s{S_W}, 36864'); a(f'v_add_u32 v{r.aW}, s{S_T}, v{L16}')
    a(f'v_bfe_u32 v{T}, v{N}, 1, 1')
    a(f'v_mul_u32_u24 v{r.idx}, 0xaaaa, v{T}'); a(f'v_bfe_u32 v{T}, v{N}, 2, 1'); a(f'v_mul_u32_u24 v{T}, 0xaaaa, v{T}'); a(f'v_lshl_add_u32 v{r.idx}, v{T}, 16, v{r.idx}'); a(f'v_add_u32 v{r.idx}, 0x44444444, v{r.idx}')
    a(f'v_lshlrev_b32 v{T}, 2, v{G}'); a(f'v_sub_u32 v{T}, v{N}, v{T}')
    a(f'v_mov_b32 v{T+1}, 0x3f80'); a(f'v_mov_b32 v{T+2}, 0x3f800000')
    def onehot(dst, nregs):
        for i in range(nregs):
            a(f'v_cmp_eq_u32 vcc, {2*i}, v{T}'); a(f'v_cndmask_b32 v{dst+i}, 0, v{T+1}, vcc')
            a(f'v_cmp_eq_u32 vcc, {2*i+1}, v{T}'); a(f'v_cndmask_b32 v{dst+i}, v{dst+i}, v{T+2}, vcc')
    onehot(r.I, 2)
    a(f'v_and_b32 v{T}, 11, v{N}')
    onehot(r.E, 2)
    a(f'v_mov_b32 v{r.E+2}, v{r.E}'); a(f'v_mov_b32 v{r.E+3}, v{r.E+1}')
    for i in range(4): a(f'v_mov_b32 v{r.One+i}, 0x3f803f80')
    a(f'v_mov_b32 v{r.PZ+1}, 0'); a(f'v_mov_b32 v{r.Z}, 0'); a(f'v_mov_b32 v{r.Z+1}, 0')
    a(f'v_lshrrev_b32 v{T}, 3, v{L}'); a(f'v_lshlrev_b32 v{T}, 11, v{T}'); a(f'v_and_b32 v{T+1}, 7, v{L}')
    a(f'v_lshl_add_u32 v{r.aPst}, v{T+1}, 3, v{T}')
    a(f's_lshl_b32 s{S_T}, s{S_W}, 14'); a(f's_lshl_b32 s{S_T2}, s{S_H}, 6'); a(f's_add_u32 s{S_T}, s{S_T}, s{S_T2}')
    a(f's_add_u32 s{S_T}, s{S_T}, {W.CP}'); add64(a, S_CP, S_WS, f's{S_T}')
    for p in range(1, 4): add64(a, S_CP+2*p, S_CP, p * 65536)
    assert W.CP >= LM and W.CM >= LM
    a(f's_lshl_b32 s{S_T}, s{S_W}, 16'); a(f's_lshl_b32 s{S_T2}, s{S_H}, 11'); a(f's_add_u32 s{S_T}, s{S_T}, s{S_T2}')
    a(f's_add_u32 s{S_T}, s{S_T}, {W.CP - LM}'); add64(a, S_CPR, S_WS, f's{S_T}')
    add64(a, S_CM, S_WS, W.CM); add64(a, S_CML, S_WS, W.CM - LM + 4096)
    a(f's_lshl_b32 s{S_T2}, s{S_W}, 11'); a(f's_lshr_b32 s{S_T3}, s{S_H}, 3'); a(f's_lshl_b32 s{S_T3}, s{S_T3}, 9'); a(f's_add_u32 s{S_T2}, s{S_T2}, s{S_T3}')
    a(f's_and_b32 s{S_T3}, s{S_H}, 1'); a(f's_lshl_b32 s{S_T3}, s{S_T3}, 8'); a(f's_add_u32 s{S_T2}, s{S_T2}, s{S_T3}')
    a(f's_bfe_u32 s{S_T3}, s{S_H}, 0x20001'); a(f's_lshl_b32 s{S_T3}, s{S_T3}, 6'); a(f's_add_u32 s{S_T2}, s{S_T2}, s{S_T3}')
    a(f'v_bfe_u32 v{T}, v{L}, 1, 1'); a(f'v_lshlrev_b32 v{T}, 5, v{T}')
    a(f'v_and_b32 v{T+1}, 1, v{L}'); a(f'v_lshl_add_u32 v{T}, v{T+1}, 3, v{T}')
    a(f'v_and_b32 v{T+1}, 1, v{G}'); a(f'v_lshl_add_u32 v{T}, v{T+1}, 4, v{T}')
    a(f'v_add_u32 v{r.aMst}, s{S_T2}, v{T}')
    a(f's_cmp_lt_u32 s{S_W}, 2'); a(f's_cselect_b32 s{S_XR}, -1, s{S_XR}'); a(f's_cselect_b32 s{S_T3}, {REP}, 0')
    a(f'v_bfe_u32 v{T}, v{L}, 2, 2'); a(f'v_mul_lo_u32 v{T}, v{T}, s{S_T3}'); a(f'v_add_u32 v{r.aMst}, v{r.aMst}, v{T}')
    a(f's_mul_i32 s{S_T3}, s{S_W}, {REP}'); add64(a, S_CME, S_CML, f's{S_T3}')
    a(f's_bfe_u32 s{S_T2}, s{S_H}, 0x20001'); a(f's_lshl_b32 s{S_T2}, s{S_T2}, 11')
    a(f's_lshr_b32 s{S_T3}, s{S_H}, 3'); a(f's_lshl_b32 s{S_T3}, s{S_T3}, 8'); a(f's_add_u32 s{S_T2}, s{S_T2}, s{S_T3}')
    a(f's_and_b32 s{S_T3}, s{S_H}, 1'); a(f's_lshl_b32 s{S_T3}, s{S_T3}, 7'); a(f's_add_u32 s{S_T2}, s{S_T2}, s{S_T3}')
    a(f's_lshl_b32 s{S_T3}, s{S_W}, 2'); a(f's_add_u32 s{S_M0}, s{S_T2}, s{S_T3}')
    a(f'v_lshrrev_b32 v{T}, 1, v{G}'); a(f'v_lshlrev_b32 v{T}, 8, v{T}'); a(f'v_and_b32 v{T+1}, 1, v{G}')
    a(f'v_lshl_add_u32 v{T}, v{T+1}, 5, v{T}'); a(f'v_lshl_add_u32 v{T}, v{N}, 4, v{T}')
    a(f's_lshl_b32 s{S_T}, s{S_W}, 9'); a(f's_add_u32 s{S_T}, s{S_T}, {LM}'); a(f'v_add_u32 v{r.aOw}, s{S_T}, v{T}')
    a(f'v_and_b32 v{T}, 2, v{L}'); a(f'v_cmp_eq_u32 vcc, 0, v{T}')
    a(f's_lshl_b32 s{S_T}, s{S_W}, 10'); a(f's_add_u32 s{S_T}, s{S_T}, {LM+12288}'); a(f'v_add_u32 v{T}, s{S_T}, v{L16}')
    a(f'v_and_b32 v{T+1}, 1, v{G}'); a(f'v_lshlrev_b32 v{T+1}, 5, v{T+1}'); a(f'v_xor_b32 v{T}, v{T}, v{T+1}')
    a(f'v_cndmask_b32 v{r.aOw}, v{T}, v{r.aOw}, vcc')
    a(f'v_lshrrev_b32 v{T}, 3, v{N}'); a(f'v_lshlrev_b32 v{T}, 8, v{T}'); a(f'v_and_b32 v{T+1}, 7, v{N}'); a(f'v_lshl_add_u32 v{T}, v{T+1}, 4, v{T}')
    a(f'v_lshl_add_u32 v{T}, v{G}, 9, v{T}')
    a(f's_lshl_b32 s{S_T}, s{S_W}, 11'); a(f's_add_u32 s{S_T2}, s{S_T}, {HB_K}'); a(f'v_add_u32 v{r.aK}, s{S_T2}, v{T}')
    a(f'v_lshlrev_b32 v{T}, 4, v{N}'); a(f'v_lshl_add_u32 v{T}, v{G}, 9, v{T}')
    a(f's_add_u32 s{S_T2}, s{S_T}, {HB_V}'); a(f'v_add_u32 v{r.aV}, s{S_T2}, v{T}')
    a(f'v_lshrrev_b32 v{T}, 2, v{N}'); a(f'v_lshlrev_b32 v{T}, 5, v{T}'); a(f'v_and_b32 v{T+1}, 1, v{N}'); a(f'v_lshl_add_u32 v{T}, v{T+1}, 4, v{T}')
    a(f'v_lshl_add_u32 v{T}, v{G}, 7, v{T}')
    a(f's_lshl_b32 s{S_T}, s{S_W}, 9'); a(f's_add_u32 s{S_T2}, s{S_T}, {HB_KM}'); a(f'v_add_u32 v{r.aKm}, s{S_T2}, v{T}')
    a(f'v_lshlrev_b32 v{T}, 3, v{L}'); a(f's_add_u32 s{S_T2}, s{S_T}, {HB_VM}'); a(f'v_add_u32 v{r.aVm}, s{S_T2}, v{T}')
    a(f'v_add_u32 v{r.aL}, {LM}, v{L16}')
    a(f'v_lshlrev_b32 v{T}, 2, v{L}'); a(f'v_add_u32 v{r.PG+1}, {LS+4096}, v{T}')
    a(f's_mov_b32 s{S_XP}, 0x01010101'); a(f's_mov_b32 s{S_XP+1}, 0x01010101')
    KBG = r.T+3; VO = r.VX
    a(f'v_lshrrev_b32 v{T}, 1, v{G}'); a(f'v_lshlrev_b32 v{T}, 4, v{T}')
    a(f'v_and_b32 v{T+1}, 1, v{G}'); a(f'v_lshl_add_u32 v{KBG}, v{T+1}, 2, v{T}')
    a(f's_lshl_b32 s{S_T}, s{S_H}, 8'); a(f's_lshl_b32 s{S_T2}, s{S_W}, 6'); a(f's_add_u32 s{S_T}, s{S_T}, s{S_T2}')
    a(f'v_lshlrev_b32 v{VO}, 15, v{KBG}'); a(f'v_lshl_add_u32 v{VO}, v{N}, 2, v{VO}'); a(f'v_add_u32 v{VO}, s{S_T}, v{VO}')
    a(f's_mov_b32 s{S_SRD+2}, {4*MB}'); a(f's_mov_b32 s{S_SRD+3}, 0x20000')
    NB = 11; PK = 88; U = 96
    groups = [(m, s, rg) for m in 'kvq' for rg in range(2) for s in range(8)]
    TQ = r.VX+1; TO = r.VX+2; TD_ = r.VX+3
    a(f'v_lshrrev_b32 v{TQ}, 1, v0'); a(f'v_lshlrev_b32 v{TQ}, 13, v{TQ}'); a(f'v_and_b32 v{TO}, 1, v0'); a(f'v_lshl_add_u32 v{TQ}, v{TO}, 7, v{TQ}')
    a(f's_lshl_b32 s{S_T}, s{S_H}, 8'); a(f'v_add_u32 v{TQ}, s{S_T}, v{TQ}')
    a(f's_lshl_b32 s{S_T}, s{S_H}, 17'); a(f'v_lshl_add_u32 v{TO}, v0, 7, s{S_T}')
    for i, ka in enumerate((KA_WK, KA_WV, KA_WQ, KA_WO)): a(f's_load_dwordx2 s[{60+2*i}:{61+2*i}], s[0:1], {ka}')
    a('s_waitcnt lgkmcnt(0)')
    def touch(hm):
        if hm >= 8 or not ahead: return 0
        for i in range(2):
            off = ((128*(hm&1) + 256*i) * 8192) if hm < 6 else (65536*(hm&1) + 32768*i)
            add64(a, S_TMP, 60 + 2*(hm >> 1), off)
            a(f'global_load_dword v{TD_}, v{TQ if hm < 6 else TO}, s[{S_TMP}:{S_TMP+1}]')
        return 2
    def put(block, rg, i, emit, pend):
        k, base = r.place[block]
        if k == 'v': emit(base+4*rg+i)
        elif k == 'a':
            emit(pend+i); a(f'v_accvgpr_write_b32 a{base+4*rg+i}, v{pend+i}')
        else:
            emit(pend+i)
            if i == 3:
                a(f'ds_write_b128 v{r.aW}, {vr(pend,4)} offset:{base+1024*rg}'); a('s_waitcnt lgkmcnt(0)')
    DEPTH = 6
    wf = WF[0]
    kaoff = {'q': KA_WQ, 'k': KA_WK, 'v': KA_WV}
    cur = [None]
    def issue(gi):
        m, s, rg = groups[gi]
        if cur[0] != m:
            a(f's_load_dwordx2 s[{S_SRD}:{S_SRD+1}], s[0:1], {kaoff[m]}'); a('s_waitcnt lgkmcnt(0)'); cur[0] = m
        if True:
            if s < 4: a(f's_and_b32 s{S_T2}, s{S_W}, {ROT[0]}'); a(f's_xor_b32 s{S_T2}, s{S_T2}, {s}')
            else: a(f's_xor_b32 s{S_T2}, s{S_W}, {s}')
            a(f's_and_b32 s{S_T3}, s{S_T2}, 1'); a(f's_lshl_b32 s{S_T3}, s{S_T3}, 21'); a(f's_and_b32 s{S_T2}, s{S_T2}, 6'); a(f's_lshl_b32 s{S_T2}, s{S_T2}, 13')
            a(f's_add_u32 s{S_T3}, s{S_T3}, s{S_T2}')
        b = (gi % NB) * 8
        for jj in range(8):
            a(f's_add_u32 s{S_T}, s{S_T3}, {(128*rg+DELTA2[jj])*8192}')
            a(f'buffer_load_dword v{b+jj}, v{VO}, s[{S_SRD}:{S_SRD+3}], s{S_T} offen {wf}')
    def consume(gi):
        m, s, rg = groups[gi]; b = (gi % NB) * 8
        for t in range(2):
            for i in range(4):
                lo, hi = b+2*i, b+2*i+1
                if m == 'q':
                    def emit(d, lo=lo, hi=hi, t=t):
                        if t == 0: a(f'v_lshlrev_b32 v{U}, 16, v{lo}'); a(f'v_lshlrev_b32 v{U+1}, 16, v{hi}')
                        else: a(f'v_and_b32 v{U}, 0xffff0000, v{lo}'); a(f'v_and_b32 v{U+1}, 0xffff0000, v{hi}')
                        a(f'v_mul_f32 v{U}, s{S_C}, v{U}'); a(f'v_mul_f32 v{U+1}, s{S_C}, v{U+1}'); a(f'v_cvt_pk_bf16_f32 v{d}, v{U}, v{U+1}')
                else:
                    def emit(d, lo=lo, hi=hi, t=t): a(f'v_perm_b32 v{d}, v{hi}, v{lo}, s{S_PHI if t else S_PLO}')
                put((m, t, s), rg, i, emit, PK + 4*t)
    ops = []
    for hm in range(ahead): touch(hm)
    for gi in range(len(groups) + DEPTH):
        if gi < len(groups):
            n = touch(gi // 8 + ahead) if gi % 8 == 0 else 0
            issue(gi); ops.append(n + 8)
        if gi == DEPTH - 1 and first: a(f's_waitcnt vmcnt({sum(ops)})'); first()
        if gi == 14 and mid: a('s_waitcnt vmcnt(40)'); mid(None)
        if gi >= DEPTH:
            a(f's_waitcnt vmcnt({sum(ops[gi-DEPTH+1:])})')
            consume(gi - DEPTH)
    for hm in range(6 + ahead, 8): touch(hm)
    a(f's_load_dwordx2 s[{S_SRD}:{S_SRD+1}], s[0:1], {KA_WO}')
    a(f's_lshl_b32 s{S_T}, s{S_H}, 17'); a(f's_lshl_b32 s{S_T2}, s{S_W}, 8'); a(f's_add_u32 s{S_T}, s{S_T}, s{S_T2}')
    a(f'v_lshlrev_b32 v{VO}, 10, v{KBG}'); a(f'v_lshl_add_u32 v{VO}, v{N}, 4, v{VO}'); a(f'v_add_u32 v{VO}, s{S_T}, v{VO}')
    a('s_waitcnt lgkmcnt(0)')
    og = [(k, rg) for k in range(2) for rg in range(2)]
    def oissue(gi):
        k, rg = og[gi]; b = (gi % 2) * 32
        for jj in range(8):
            a(f's_mov_b32 s{S_T}, {(64*k+32*rg+DELTA[jj])*1024}')
            a(f'buffer_load_dwordx4 {vr(b+4*jj,4)}, v{VO}, s[{S_SRD}:{S_SRD+3}], s{S_T} offen')
    def ocons(gi):
        k, rg = og[gi]; b = (gi % 2) * 32
        for t in range(8):
            for i in range(4):
                def emit(d, hi=b+4*(2*i+1)+(t>>1), lo=b+4*(2*i)+(t>>1), t=t): a(f'v_perm_b32 v{d}, v{hi}, v{lo}, s{S_PHI if t & 1 else S_PLO}')
                put(('o', t, k), rg, i, emit, PK + 4*(t&1))
    oissue(0); oissue(1)
    for gi in range(4):
        a(f's_waitcnt vmcnt({8 if gi < 3 else 0})'); ocons(gi)
        if gi + 2 < 4: oissue(gi + 2)

def board_setup(a, r, stf):
    a(f's_lshl_b32 s{S_T}, s{S_H}, 2'); a(f's_add_u32 s{S_T}, s{S_T}, {W.CB - LM}')
    add64(a, S_BW, S_WS, f's{S_T}'); add64(a, S_BR, S_WS, W.CB - LS - 4096); a(f's_mov_b32 s{S_GS}, 0')
    a('s_mov_b64 exec, 0x101'); a(f'global_store_dword v{r.aL}, v{r.Z}, s[{S_BW}:{S_BW+1}] {stf}'); a('s_mov_b64 exec, -1')

def chain_init_comm(a, r, stf, first, T=None):
    T = r.R if T is None else T
    a(f's_load_dwordx2 s[{S_TMP}:{S_TMP+1}], s[0:1], {KA_MEM0}')
    a(f'v_and_b32 v{T}, 0x30, v{r.aL}'); a(f'v_lshlrev_b32 v{T}, 1, v{T}'); a(f'v_bfe_u32 v{T+1}, v{r.aL}, 8, 1'); a(f'v_lshl_add_u32 v{T}, v{T+1}, 10, v{T}')
    a(f'v_add_u32 v{T}, s{S_M0}, v{T}')
    a(f's_xor_b32 s{S_T}, s{S_EP}, 1')
    for i in range(4): a(f'v_mov_b32 v{T+4+i}, s{S_T}')
    a('s_waitcnt lgkmcnt(0)')
    a(f'global_load_dword v{T+2}, v{T}, s[{S_TMP}:{S_TMP+1}]'); a(f'global_load_dword v{T+3}, v{T}, s[{S_TMP}:{S_TMP+1}] offset:16')
    if first:
        a(f'global_store_dwordx4 v{r.aL}, {vr(T+4,4)}, s[{S_CPR}:{S_CPR+1}] {stf}')
        a(f'global_store_dwordx4 v{r.aL}, {vr(T+4,4)}, s[{S_CPR}:{S_CPR+1}] offset:1024 {stf}')
    a('s_waitcnt vmcnt(0)')
    a(f'v_and_or_b32 v{T+2}, v{T+2}, -2, s{S_EM}')
    a(f's_mov_b64 exec, s[{S_XR}:{S_XR+1}]')
    a(f'global_store_dwordx2 v{r.aMst}, {vr(T+2,2)}, s[{S_CM}:{S_CM+1}] {stf}')
    a('s_mov_b64 exec, -1'); a('s_waitcnt vmcnt(0)')

def group_arrive(a, T, off):
    l1 = a.newlabel('Lgb')
    a('s_barrier')
    a(f'v_mov_b32 v{T}, {off}'); a(f'v_mov_b32 v{T+1}, 1')
    a(f's_cmp_lg_u32 s{S_W}, 0'); a(f's_cbranch_scc1 {l1}')
    a('s_mov_b64 exec, 1'); a(f'global_atomic_add v{T}, v{T+1}, s[{S_DBG}:{S_DBG+1}] sc1'); a('s_waitcnt vmcnt(0)'); a('s_mov_b64 exec, -1')
    a.label(l1)
def group_wait(a, T, off, count, fail):
    l2 = a.newlabel('Lgb'); l3 = a.newlabel('Lgb')
    a(f's_mov_b32 s{S_SPIN}, 0'); a(f'v_mov_b32 v{T}, {off}')
    a.label(l2)
    a(f'global_load_dword v{T+2}, v{T}, s[{S_DBG}:{S_DBG+1}] sc1'); a('s_waitcnt vmcnt(0)')
    a(f'v_readfirstlane_b32 s{S_T}, v{T+2}')
    a(f's_cmp_ge_u32 s{S_T}, {count}'); a(f's_cbranch_scc1 {l3}')
    a('s_sleep 2')
    a(f's_add_u32 s{S_SPIN}, s{S_SPIN}, 1'); a(f's_cmp_lt_u32 s{S_SPIN}, 0x60000'); a(f's_cbranch_scc1 {l2}')
    a(f's_branch {fail}')
    a.label(l3)

DPPQ = 'quad_perm:[2,3,0,1] row_mask:0xf bank_mask:0xf'
XA = 's_mov_b64 exec, -1'

def prog_load(a, r): a(f'global_load_dword v{r.PG}, v{r.PG+1}, s[{S_FH}:{S_FH+1}] sc1')
def prog_block(a, r, lbl, back, need_sgpr, fail):
    a.label(lbl)
    prog_load(a, r); a('s_waitcnt vmcnt(0)')
    a(f'v_cmp_ge_u32 s[{S_TMP}:{S_TMP+1}], s{need_sgpr}, v{r.PG}'); a(f's_and_b64 s[{S_TMP}:{S_TMP+1}], s[{S_TMP}:{S_TMP+1}], s[{S_XP}:{S_XP+1}]'); a(f's_cbranch_scc0 {back}')
    a('s_sleep 1')
    a(f's_add_u32 s{S_SPIN}, s{S_SPIN}, 1'); a(f's_cmp_lt_u32 s{S_SPIN}, 0x60000'); a(f's_cbranch_scc1 {lbl}')
    a(f's_branch {fail}')
def kv_load(a, r, i, dst, base=None):
    base = base or S_KV
    ad, off = ((r.aK, 0), (r.aK, 128), (r.aV, 0), (r.aV, 256))[i]
    a(f'global_load_dwordx4 {vr(dst+4*i,4)}, v{ad}, s[{base}:{base+1}] offset:{off} sc1')

def chain_start(a, r, fail, fused, started=None):
    HS = W.H[1].HB - W.H[0].HB
    a(f's_mul_i32 s{S_T2}, s{S_HALF}, {HS}'); a(f's_lshl_b32 s{S_T}, s{S_H}, 21'); a(f's_add_u32 s{S_T}, s{S_T}, s{S_T2}')
    a(f's_add_u32 s{S_T}, s{S_T}, {W.H[0].HB}'); add64(a, S_KV, S_WS, f's{S_T}'); a(f's_mov_b64 s[{S_HB}:{S_HB+1}], s[{S_KV}:{S_KV+1}]')
    a(f's_mov_b32 s{S_STEP}, 0'); a(f's_mov_b32 s{S_SPIN}, 0')
    a(f's_lshl_b32 s{S_T}, s{S_H}, 8'); a(f's_lshl_b32 s{S_T2}, s{S_HALF}, 17'); a(f's_add_u32 s{S_T}, s{S_T}, s{S_T2}')
    a(f's_add_u32 s{S_T}, s{S_T}, {FL(0, "CHP")}'); add64(a, S_FW, S_WS, f's{S_T}')
    a(f's_sub_u32 s{S_FH}, s{S_FW}, {FL(0, "CHP") - FL(0, "HEAD") + LS + 4096}'); a(f's_subb_u32 s{S_FH+1}, s{S_FW+1}, 0')
    a(f'v_mov_b32 v{r.PG}, 0'); a(f's_mov_b32 s{S_SP}, 0')
    for i in range(2): a(f'global_load_dwordx4 {vr(r.M+24+4*i,4)}, v{r.aL}, s[{S_CPR}:{S_CPR+1}] offset:{1024*i} sc1')
    add64(a, S_KV, S_KV, HB_REC)

def chain_wave(a, r, w, stf, fail, done, fused=1, pat=(13, 16, 16, 16), d1=(100, 140, 280, 320), d2=(0, 80, 20, 20), e23=(60, 40, 80, 60), lpos=4, nb=(2, 2, 1, 2), bk=(120, 60, 100, 60), es=16, eb=None, e3in=1, cp=1, rep=1, vdef=1, wsplit=0, vw=(1, 1, 1, 4), hkw=(0, 1), nowait=0, pkpos=0, pvearly=0, clk=0, comb=0, plate=0, nopad=1, pre1=24, pre2=4, e0e=None, e1g=0, ack1=(None, 2, 0, 0), ack2=(1, 0, 0, 0), bx=None, bp=(18, 19, 21, 23, 24, 25), bg=16, c1=(4, 4, 4, 4), ef='sc1', rt=None, started=None,
               nomax=1, stamps=False, stampsel=None, nocomm=0, nohk=0):
    R, A, M, T = r.R, r.A, r.M, r.T
    if isinstance(nb, tuple): nb = nb[w]
    if isinstance(bk, tuple): bk = bk[w]
    if isinstance(es, tuple): es = es[w]
    Aq = [A, A+4]; Ak = [A+8, A+12]; Av = [A+16, A+20]
    ACC = {'q': Aq, 'k': Ak, 'v': Av}
    ns = [0]; sid = [0]
    def st(name=None):
        if name is None:
            name = sid[0]; sid[0] += 1
        if stamps and ((stampsel is None and isinstance(name, int)) or (stampsel is not None and name in stampsel)):
            a(f's_memtime s[{S_STAMP+2*ns[0]}:{S_STAMP+2*ns[0]+1}]'); ns[0] += 1
    def tr(k):
        if rt is not None: a(f's_memtime s[{(S_STAMP+2*k) if k != 10 else 96}:{((S_STAMP+2*k) if k != 10 else 96)+1}]')
    pos = [None]
    def hook():
        if pos[0] is None or bx is None: return
        if w == 1 and pos[0] == bx: a('s_mov_b64 exec, 0x101'); a(f'global_store_dword v{r.aL}, v{r.PZ}, s[{S_BW}:{S_BW+1}] {stf}'); a(XA)
        if w == 0 and pos[0] in bp: a(f'global_load_dword v{r.PG}, v{r.PG+1}, s[{S_BR}:{S_BR+1}] sc1')
        pos[0] += 1
    def smf(acc, aop, b): a(f'v_smfmac_f32_16x16x64_bf16 {vr(acc,4)}, {vr(aop,4)}, {b}, v{r.idx}'); hook()
    def m32(d, x, y, c): a(f'v_mfma_f32_16x16x32_bf16 {vr(d,4)}, {vr(x,4)}, {vr(y,4)}, {vr(d,4) if c else 0}'); hook()
    def m16(d, x, y, c): a(f'v_mfma_f32_16x16x16_bf16 {vr(d,4)}, {vr(x,2)}, {vr(y,2)}, {vr(d,4) if c else 0}'); hook()
    def ldh(dst, b, hh): a(f'ds_read_b128 {vr(dst+4*hh,4)}, v{r.aW} offset:{r.place[b][1]+1024*hh}')
    def nops(c):
        n = c // 4
        if n > 0: a.comment('back-off: a request issued before the data have reached L2 only costs a retry')
        while n > 0:
            k = min(n, 16); a(f's_nop {k-1}'); n -= k
    def add0(c): a(f'v_add_f32 v{c}, v{c}, v{c+2}')
    def add1(c): a(f'v_add_f32 v{c+1}, v{c+1}, v{c+3}')
    def cvt(d, x, y): a(f'v_cvt_pk_bf16_f32 v{d}, v{x}, v{y}')
    def pka(d, x, y): a(f'v_pk_add_f32 {vr(d,2)}, {vr(x,2)}, {vr(y,2)}')
    def e_load(j, f='sc1'):
        b = S_CME if (j < 4 and rep) else S_CML
        a(f'global_load_dwordx4 {vr(M+4*j,4)}, v{r.aL}, s[{b}:{b+1}] offset:{1024*frag_of(w,j)-4096} {f}')
    PL = [M+24, R+24, M+16, R+16]; PD = A+24; t0 = A+28; t1 = A+29
    def p_loads(k=0):
        a(f'global_load_dwordx4 {vr(PL[k],4)}, v{r.aL}, s[{S_CPR}:{S_CPR+1}] sc1')
        a(f'global_load_dwordx4 {vr(PL[k]+4,4)}, v{r.aL}, s[{S_CPR}:{S_CPR+1}] offset:1024 sc1')
    def ring_prefetch():
        for e in range(4):
            for hh in range(2): ldh(R+8*e, ('q', 1, e), hh)
    def zero(base, n):
        for i in range(n): a(f'v_mov_b32 v{base+i}, 0')
    def spin_or_fail():
        a(f's_add_u32 s{S_SPIN}, s{S_SPIN}, 1'); a(f's_cmp_lt_u32 s{S_SPIN}, 0x60000'); a(f's_cbranch_scc0 {fail}')
    LA = a.newlabel('Lc_A'); Ldone = a.newlabel('Lc_done')
    Lr = [a.newlabel('Lc_rE') for _ in range(5)]; Lc = [a.newlabel('Lc_cE') for _ in range(5)]
    Lhk = a.newlabel('Lc_hk'); Lhb = a.newlabel('Lc_hb'); Lexp = a.newlabel('Lc_exp'); Lfb = a.newlabel('Lc_fb'); Lnofb = a.newlabel('Lc_nofb'); Lsp = a.newlabel('Lc_sp'); Lspb = a.newlabel('Lc_spb')
    if stamps: _ = [a(f's_mov_b32 s{84+k}, 0') for k in range(12)]
    zero(A, 24); ring_prefetch()
    a(f's_add_u32 s{S_GS}, s{S_GS}, 1'); a(f'v_mov_b32 v{r.PZ}, s{S_GS}')
    for j in range(4): e_load(j)
    a('s_waitcnt vmcnt(0)')
    a('.p2align 6')
    a.label(LA)
    e3 = False; ex = 1 if eb is not None else 0
    ringof = {('q',1,0):0, ('q',1,1):1, ('q',1,2):2, ('q',1,3):3, ('q',1,4):0, ('q',0,4):1, ('q',1,5):2, ('q',0,5):3, ('q',0,6):0, ('q',0,7):1, ('q',1,6):2, ('q',1,7):3}
    def S(m, t, s):
        b = (m, t, s)
        smf(ACC[m][t], M+4*s, vr(R+8*ringof[b], 8) if b in ringof else r.blk(b))
    def tagx(d, j): return f'v_bitop3_b32 v{d}, v{M+4*j}, v{M+4*j+2}, s{S_EM} bitop3:0x7e'
    def chk(j):
        return [f'v_bitop3_b32 v{t0}, v{M+4*j}, v{M+4*j+2}, s{S_EM} bitop3:0x7e', f'v_and_b32 v{t0}, 1, v{t0}', f'v_cmp_ne_u32 vcc, 0, v{t0}']
    vm0 = ['E0', 'E1'] + (['x'] if ex else []) + ['E2'] + ([] if e3in else ['E3'])
    ee = e0e is not None; eh = ee and d2[w] < e0e
    if ee: vm0 = ['E0'] + (['m'] if eh else []) + ['x', 'E1', 'E2'] + ([] if e3in else ['E3'])
    a(f's_waitcnt vmcnt({len(vm0)-1}) lgkmcnt(0)')
    tr(7)
    for l in chk(0): a(l)
    a.label(Lc[0])
    st()
    tr(8)
    order = (('q',1),('q',0),('k',0),('k',1),('v',0),('v',1))
    dsq = [(R+24, ('q',1,3), 0), (R+24, ('q',1,3), 1), (R, ('q',1,4), 0), (R, ('q',1,4), 1), (R+16, ('q',1,2), 0), (R+16, ('q',1,2), 1),
           None, (R+8, ('q',0,4), 0), (R+8, ('q',0,4), 1), None, None, None,
           None, (R+16, ('q',1,5), 0), (R+16, ('q',1,5), 1), None, None, None]
    cnt = 0
    vm = list(vm0)
    def after_of(n): return len(vm) - 1 - vm.index(n)
    issued_at = {}
    def probe():
        a(f'global_load_dword v{r.PG}, v{r.PG+1}, s[{S_BR}:{S_BR+1}] sc1')
    def extras(cnt):
        if e3in and cnt == 2: e_load(3); vm.append('E3')
        if cnt == lpos: e_load(4); vm.append('E4')
    for sl in range(3):
        c = chk(sl+1)
        for i, (m, t) in enumerate(order):
            S(m, t, sl)
            if dsq[cnt]: ldh(*dsq[cnt])
            extras(cnt)
            if cnt == 0: a(f's_mov_b32 s{S_FB}, 0')
            if cnt == 11: a('s_waitcnt lgkmcnt(2)')
            if cnt == 1: a(f's_cbranch_vccnz {Lr[0]}')
            cnt += 1
            if comb:
                if i == 5: a(f's_waitcnt vmcnt({after_of("E%d" % (sl+1))})')
                if i == 0 and sl > 0: a(tagx(PD+sl-1, sl))
            else:
                if i == cp: a(f's_waitcnt vmcnt({after_of("E%d" % (sl+1))})')
                if cp <= i < cp + 3: a(c[i-cp])
            if fused and w == hkw[0] and cnt == (9 if comb else 7):
                a(f's_add_u32 s{S_T3}, s{S_STEP}, 1'); a(f's_min_u32 s{S_T3}, s{S_T3}, 63'); a(f'v_cmp_ge_u32 s[{S_TMP}:{S_TMP+1}], s{S_T3}, v{r.PG}')
        if not comb: a(f's_cbranch_vccnz {Lr[sl+1]}')
        issued_at[sl+1] = list(vm)
        a.label(Lc[sl+1])
    assert 2 <= lpos < 14
    c = chk(4)
    if comb: c = [tagx(PD+2, 3) + '\n' + tagx(t0, 4), f'v_or3_b32 v{PD}, v{PD}, v{PD+1}, v{PD+2}\nv_bitop3_b32 v{t0}, v{t0}, v{PD}, 1 bitop3:0xa8', f'v_cmp_ne_u32 vcc, 0, v{t0}']
    a('s_waitcnt lgkmcnt(4)')
    S('q',1,3)
    a(f's_waitcnt vmcnt({after_of("E4")})')
    a(f'ds_write_b128 v{r.aL}, {vr(M+16,4)} offset:{1024*w}')
    a(c[0])
    S('q',0,3); ldh(R+24, ('q',0,5), 0); extras(19); a(c[1])
    S('k',0,3); ldh(R+24, ('q',0,5), 1); extras(20); a(c[2])
    S('k',1,3); extras(21)
    Lbs = a.newlabel('Lc_bs'); Lbg = a.newlabel('Lc_bg')
    if fused and w == hkw[0]:
        a(f's_and_b64 s[{S_TMP}:{S_TMP+1}], s[{S_TMP}:{S_TMP+1}], s[{S_XP}:{S_XP+1}]'); a(f's_cbranch_scc1 {Lhb}'); a.label(Lhk)
    if not vdef: S('v',0,3)
    a(f's_cbranch_vccnz {Lr[4]}')
    a.label(Lc[4])
    tr(9)
    if not nohk and pkpos == 4: a(f's_mov_b64 exec, s[{S_XH0}:{S_XH0+1}]'); a(f'global_store_dwordx4 v{r.aKm}, {vr(T,4)}, s[{S_HB}:{S_HB+1}] sc1'); a(XA)
    a('s_waitcnt lgkmcnt(2)'); a('s_barrier')
    tr(10)
    pos[0] = 0
    def rdm(j): a(f'ds_read_b128 {vr(M+16+4*j,4)}, v{r.aL} offset:{1024*(w^j)}')
    def pub_k(): a(f's_mov_b64 exec, s[{S_XH0}:{S_XH0+1}]'); a(f'global_store_dwordx4 v{r.aKm}, {vr(T,4)}, s[{S_HB}:{S_HB+1}] sc1'); a(XA)
    def pub_v(): a(f'global_store_dwordx2 v{r.aVm}, {vr(A+30,2)}, s[{S_HB}:{S_HB+1}] sc1')
    hk = []
    if not nohk:
        hk = [lambda i=i: kv_load(a, r, i, M) if not (vdef and i == 3) else None for i in range(4)]
        if fused and w == hkw[1]: hk.append(lambda: (a('s_mov_b64 exec, 1'), a(f'global_store_dword v{r.Z}, v{t1}, s[{S_FW}:{S_FW+1}] sc1'), a(XA)))
        if fused and w == hkw[0]: hk.append(lambda: prog_load(a, r))
        if w not in hkw or not fused: hk.append(lambda: None)
    def H():
        if hk: hk.pop(0)()
    rdm(1)
    if not vdef: S('v',1,3)
    rdm(2); rdm(3)
    Lk0 = a.newlabel('Lc_k0'); Lk0b = a.newlabel('Lc_k0b')
    S('q',1,4); a(f's_cmp_eq_u32 s{S_STEP}, 0'); a(f's_cbranch_scc1 {Lk0}'); a.label(Lk0b); H()
    S('q',0,4); ldh(R+0, ('q',0,6), 0); H()
    S('k',0,4); ldh(R+0, ('q',0,6), 1); H()
    S('k',1,4); ldh(R+8, ('q',0,7), 0); H(); a('s_waitcnt lgkmcnt(5)')
    S('q',1,5); ldh(R+8, ('q',0,7), 1)
    if not nohk and pkpos == 3: pub_k()
    S('q',0,5); ldh(R+16, ('q',1,6), 0)
    if not nohk and pvearly: pub_v()
    S('k',0,5); ldh(R+16, ('q',1,6), 1); a('s_waitcnt lgkmcnt(6)')
    S('k',0,6); ldh(R+24, ('q',1,7), 0)
    S('k',0,7); ldh(R+24, ('q',1,7), 1); a('s_waitcnt lgkmcnt(4)')
    S('q',0,6); H()
    TA = [R+0, R+2]; TD = [R+4, R+8]; SX = [R+16, R+20]; SM = R+24
    S('q',0,7); add0(Ak[0])
    S('k',1,5); add1(Ak[0])
    assert not hk
    S('k',1,6); cvt(TA[0], Ak[0], Ak[0]+1)
    S('k',1,7); a('s_waitcnt lgkmcnt(0)'); add0(Aq[0])
    S('q',1,6); a(f's_mov_b64 vcc, s[{S_XH1}:{S_XH1+1}]'); add1(Aq[0])
    S('q',1,7); cvt(TA[0]+1, Aq[0], Aq[0]+1)
    st()
    vq = [(t, s) for s in range(3 if vdef else 4, 8) for t in range(2)]
    def V(n=1):
        for _ in range(n):
            t, s = vq.pop(0); S('v', t, s)
    add0(Ak[1]); add1(Ak[1])
    m16(TD[0], TA[0], r.I, 0)
    cvt(TA[1], Ak[1], Ak[1]+1)
    add0(Aq[1]); add1(Aq[1])
    cvt(TA[1]+1, Aq[1], Aq[1]+1)
    m16(TD[1], TA[1], r.I, 0)
    a(f's_cmp_lg_u32 s{S_STEP}, 0'); a(f's_cselect_b32 s{S_T}, {HB_REC}, 0')
    V(1)
    if not nohk and not pvearly: pub_v()
    V(vw[0]-1)
    add64(a, S_HB, S_HB, f's{S_T}')
    for i in range(4): cvt(T+i, TD[0]+i, TD[1]+i)
    a(f's_cmp_eq_u32 s{S_STEP}, s{S_SP}'); a(f's_cbranch_scc1 {Lsp}')
    a.label(Lspb)
    m32(SX[0], r.KX, T, 0)
    a(f's_cmp_lt_u32 s{S_STEP}, 62'); a(f's_cselect_b32 s{S_T}, {HB_REC}, 0')
    m32(SX[1], r.KX+4, T, 0)
    m32(SM, T, T, 0)
    vrest = list(vq)
    V(vw[1])
    if vdef and not nohk: kv_load(a, r, 3, M)
    add64(a, S_KV, S_KV, f's{S_T}')
    for i in range(4): a(f'v_cndmask_b32_dpp v{SX[1]+i}, v{SX[0]+i}, v{SX[1]+i}, vcc {DPPQ}')
    SO = SX[1]; SMO = SM+1
    a(f'v_cndmask_b32_dpp v{SMO}, v{SM}, v{SM+1}, vcc {DPPQ}')
    V(vw[2])
    a(f'ds_write_b128 v{r.aL}, {vr(SO,4)} offset:{LS-LM+1024*w}')
    if wsplit: V(1)
    a(f'ds_write_b32 v{r.PG+1}, v{SMO} offset:{256*w}')
    V(vw[3]-1)
    if not nohk and pkpos == 1: pub_k()
    if bx is not None and w == 0: a(f'v_cmp_ne_u32 vcc, s{S_GS}, v{r.PG} ; nowaitcheck')
    V(1)
    pos[0] = None
    if bx is not None and w == 0:
        a(f's_cbranch_vccnz {Lbs}'); a.label(Lbg); a('s_waitcnt lgkmcnt(0)'); a('s_barrier')
    elif bx is not None and w == 1: a('s_waitcnt lgkmcnt(0)'); a('s_barrier')
    elif nowait & 1: a('s_barrier')
    else: a(f's_waitcnt vmcnt({0 if nohk else 5 + (1 if pkpos in (1, 3, 4) else 0) + (1 if (fused and w in hkw) else 0)}) lgkmcnt(0)'); a('s_barrier')
    st()
    tr(11)
    RD = [R+0, R+4, R+8]; RM = R+28
    o4 = (LS-LM+4096)//256
    for j in range(3): a(f'ds_read_b128 {vr(RD[j],4)}, v{r.aL} offset:{LS-LM+1024*(w^(j+1))}')
    V(1)
    a(f'ds_read2st64_b32 {vr(RM,2)}, v{r.PG+1} offset0:{w^1} offset1:{w^2}')
    a(f'ds_read_b32 v{RM+2}, v{r.PG+1} offset:{256*(w^3)}')
    V(len(vq))
    if not nohk and pkpos == 0: pub_k()
    if plate and fused and w == hkw[0]: prog_load(a, r)
    assert not vq
    P = R+16; MX = R+26; TM = R+27
    D = [R+8, R+12]; SUM = R+28; X = R+0
    a('s_waitcnt lgkmcnt(2)')
    for i in range(4): a(f'v_add_f32 v{SO+i}, v{SO+i}, v{RD[0]+i}')
    pka(RD[1], RD[1], RD[2]); pka(RD[1]+2, RD[1]+2, RD[2]+2)
    a('s_waitcnt lgkmcnt(0)')
    a(f'v_add_f32 v{SMO}, v{SMO}, v{RM+2}'); a(f'v_add_f32 v{RM}, v{RM}, v{RM+1}')
    pka(SO, SO, RD[1]); pka(SO+2, SO+2, RD[1]+2)
    a(f'v_add_f32 v{SMO}, v{SMO}, v{RM}')
    pka(Av[0], Av[0], Av[0]+2); pka(Av[1], Av[1], Av[1]+2)
    def submax():
        a(f'v_max3_f32 v{MX}, v{SO}, v{SO+1}, v{SO+2}'); a(f'v_max3_f32 v{MX}, v{MX}, v{SO+3}, v{SMO}')
        a(f'v_max_f32_dpp v{MX}, v{MX}, v{MX} {DPPQ}')
        for sw in ('16', '32'):
            a(f'v_mov_b32 v{TM}, v{MX}'); a(f'v_permlane{sw}_swap_b32 v{MX}, v{TM}'); a(f'v_max_f32 v{MX}, v{MX}, v{TM}')
        for e in (SMO, SO, SO+1, SO+2, SO+3): a(f'v_sub_f32 v{e}, v{e}, v{MX}')
    if not nomax: submax()
    a.label(Lexp)
    a(f'v_exp_f32 v{X+4}, v{SMO}')
    cvt(r.VM, Av[0], Av[0]+1)
    a(f'v_exp_f32 v{X}, v{SO}')
    cvt(r.VM+2, Av[1], Av[1]+1)
    a(f'v_mov_b32_dpp v{TM}, v{X+4} {DPPQ}')
    a(f'v_exp_f32 v{X+1}, v{SO+1}')
    cvt(r.PZ, X+4, TM)
    a(f'v_exp_f32 v{X+2}, v{SO+2}')
    cvt(P, X, X+1)
    m16(SUM, r.One, r.PZ, 0); ldh(M+16, ('o',0,0), 0)
    a(f'v_exp_f32 v{X+3}, v{SO+3}')
    m16(D[0], r.VM, r.PZ, 0); ldh(M+16, ('o',0,0), 1)
    a(f'v_mov_b32_dpp v{P+2}, v{P} {DPPQ}')
    cvt(P+1, X+2, X+3)
    m16(D[1], r.VM+2, r.PZ, 0)
    a(f'v_mov_b32_dpp v{P+3}, v{P+1} {DPPQ}')
    st()
    m32(SUM, r.One, P, 1); ldh(M+24, ('o',0,1), 0)
    m32(D[0], r.VX, P, 1); ldh(M+24, ('o',0,1), 1)
    m32(D[1], r.VX+4, P, 1)
    a(f'v_rcp_f32 v{SUM+2}, v{SUM}')
    for i in range(4): a(f'v_mul_f32 v{D[0]+i}, v{D[0]+i}, v{SUM+2}')
    for i in range(2): a(f'v_pk_mul_f32 {vr(D[1]+2*i,2)}, {vr(D[1]+2*i,2)}, {vr(SUM+2,2)} op_sel_hi:[1,0]')
    OP = R+0
    for i in range(4): cvt(OP+i, D[0]+i, D[1]+i)
    a(f'ds_write_b128 v{r.aOw}, {vr(OP,4)}')
    if nowait & 2:
        a('s_barrier'); a(f'ds_read_b128 {vr(R+24,4)}, v{r.aL}')
    a(f'v_mfma_f32_32x32x8_bf16 {vr(A,16)}, {vr(r.Z,2)}, {vr(r.Z,2)}, 0')
    ldh(R+8, ('o',6,0), 0); ldh(R+8, ('o',6,0), 1)
    if nomax and not nowait & 2:
        a(f'v_max_f32 v{SUM}, v{SUM}, v{SUM+2}'); a(f'v_cmp_nge_f32 vcc, {f2u(2.0**60):#x}, v{SUM}')
        a(f's_cbranch_vccnz {Lfb}'); a.label(Lnofb)
    if not nowait & 2: a('s_waitcnt lgkmcnt(2)'); a('s_barrier')
    st()
    if rt is not None:
        lt = a.newlabel('Lc_t'); a('s_waitcnt lgkmcnt(0)'); a(f's_cmp_lg_u32 s{S_STEP}, {rt}'); a(f's_cbranch_scc1 {lt}')
        _ = [a(f's_mov_b32 s{84+k}, s{(S_STAMP+2*k) if k != 10 else 96}') for k in range(12)]
        a.label(lt)
    tr(0)
    O = R+24
    a(f'ds_read_b128 {vr(O,4)}, v{r.aL}'); a(f'ds_read_b128 {vr(O+4,4)}, v{r.aL} offset:1024')
    a(f'v_mfma_f32_32x32x8_bf16 {vr(A+16,16)}, {vr(r.Z,2)}, {vr(r.Z,2)}, 0')
    if not nohk and pkpos == 2: pub_k()
    a(f's_xor_b32 s{S_EM}, s{S_EM}, 1'); a(f's_add_u32 s{S_STEP}, s{S_STEP}, 1'); a(f's_mov_b32 s{S_SPIN}, 0')
    land = {('o',0,0): M+16, ('o',0,1): M+24, ('o',6,0): R+8, ('o',6,1): R+16, ('o',7,0): R, ('o',7,1): M+16}
    def ob(b): return vr(land[b], 8) if b in land else r.blk(b)
    def ad(t, e): c = A+4*t+e; return f'v_add_f32 v{c}, v{c}, v{c+2}'
    def fin(p):
        c = A+8*p
        return [ad(2*p+1, 0), ad(2*p+1, 1), f'v_cvt_pk_bf16_f32 v{c}, v{c}, v{c+4}', f'v_cvt_pk_bf16_f32 v{c+1}, v{c+1}, v{c+5}', f'v_and_or_b32 v{c}, v{c}, -2, s{S_EP}']
    def sto(p): return f'global_store_dwordx2 v{r.aPst}, {vr(A+8*p,2)}, s[{S_CP+2*p}:{S_CP+2*p+1}] {stf}'
    after = {3: [ad(0,0)], 4: [ad(0,1)], 5: fin(0), 6: [sto(0)], 7: [ad(2,0)], 8: [ad(2,1)], 9: fin(1)[:2], 10: fin(1)[2:], 11: [sto(1), ad(4,0), ad(4,1)],
             13: fin(2)[:2], 14: fin(2)[2:], 15: [sto(2), ad(6,0), ad(6,1), f'v_pk_add_f32 {vr(A+28,2)}, {vr(A+28,2)}, {vr(A+30,2)}'] + fin(3)[2:] + [sto(3)]}
    lq = [(R+16, ('o',6,1), 0), (R+16, ('o',6,1), 1), (R, ('o',7,0), 0), (R, ('o',7,0), 1), (M+16, ('o',7,1), 0), (M+16, ('o',7,1), 1)]
    a('s_waitcnt lgkmcnt(1)')
    younger = 0; issued = False; nst = 0
    for t in range(8):
        for k in range(2):
            i = 2*t+k
            smf(A+4*t, O+4*k, ob(('o', t, k)))
            if i == 0: a('s_waitcnt lgkmcnt(0)')
            if i in (1, 2, 3, 4, 5, 7): ldh(*lq.pop(0))
            if i == 12: a('s_waitcnt lgkmcnt(0)')
            if i == pat[w]: p_loads(); issued = True; tr(3)
            for l in after.get(i, []):
                if l.startswith('global_store') and nst == 3 and pat[w] == 15.5: p_loads(); issued = True; tr(3)
                a(l)
                if l.startswith('global_store'):
                    if issued: younger += 1
                    if nst in (0, 3): tr(1 if nst == 0 else 2)
                    nst += 1
    if nocomm: ns[0] = 9
    st()
    chores = []
    chores += [f's_waitcnt vmcnt({4 + (2 if issued else 0) + (1 if (plate and fused and w == hkw[0]) else 0) + (0 if nohk else ((0 if pkpos >= 3 else 1) if vdef else (1 if pkpos == 4 else 2) + (1 if (fused and w in hkw) else 0)))})\n' + '\n'.join(f'v_mov_b32 v{PD+i}, 0' for i in (2, 3, 0, 1))] + [f'v_mov_b32 v{r.KX+i}, v{M+i}' for i in range(16)]
    chores += [f'ds_read_b128 {vr(R+8*e+4*hh,4)}, v{r.aW} offset:{r.place[("q",1,e)][1]+1024*hh}' for e in range(2) for hh in range(2)]
    chores += [f'v_mov_b32 v{A+i}, 0' for i in range(24)]
    chores += [f'v_mov_b32 v{A+30}, v{r.VM}', f'v_mov_b32 v{A+31}, v{r.VM+2}', f's_add_u32 s{S_GS}, s{S_GS}, 1', f'v_mov_b32 v{r.PZ}, s{S_GS}']
    nch = len(chores)
    def do_chores(cyc, pad=True):
        n = cyc // 4
        while n > 0 and chores: a(chores.pop(0)); n -= 1
        if pad and not nopad: nops(4*n)
    def then(cyc, need):
        do_chores(cyc); do_chores(4*max(0, need - (nch - len(chores))))
    if not issued:
        if ack1[w] is not None: do_chores(pre1, False); a(f's_waitcnt vmcnt({ack1[w]})')
        else: do_chores(max(d1[w], 4))
        p_loads(); tr(3)
    for k in range(1, nb):
        do_chores(bk if (k > 1 or not issued) else max(4, bk - 40)); p_loads(k); younger += 2
    do_chores(max(min(c1[w], 4*len(chores)), 4), False)
    if eh: then(0, 5)
    if stamps and ns[0]:
        a('s_waitcnt lgkmcnt(0)')
        n = ns[0]
        for k in range(1, n):
            a(f's_sub_u32 s{S_T}, s{S_STAMP+2*k}, s{S_STAMP+2*k-2}'); a(f's_add_u32 s{84+k}, s{84+k}, s{S_T}')
        a(f's_sub_u32 s{S_T}, s{S_STAMP}, s83'); a(f's_mov_b32 s83, s{S_STAMP+2*(n-1)}')
        a(f's_cmp_eq_u32 s{S_STEP}, 1'); a(f's_cselect_b32 s{S_T}, 0, s{S_T}'); a(f's_add_u32 s84, s84, s{S_T}')
    def reduce(k, failto, early=None):
        a(f'v_smfmac_f32_16x16x64_bf16 {vr(PD,4)}, {vr(r.E,4)}, {vr(PL[k],8)}, v{r.idx} abid:1')
        if early: early()
        a(f'v_bitop3_b32 v{t0}, v{PL[k]}, v{PL[k]+2}, s{S_EP} bitop3:0x7e')
        a(f'v_bitop3_b32 v{t1}, v{PL[k]+4}, v{PL[k]+6}, s{S_EP} bitop3:0x7e')
        a(f'v_bitop3_b32 v{t0}, v{t0}, v{t1}, 1 bitop3:0xa8')
        a(f'v_cmp_ne_u32 vcc, 0, v{t0}')
        for ror in (8, 4):
            for i in range(4):
                a(f'v_add_f32_dpp v{PD+i}, v{PD+i}, v{PD+i} row_ror:{ror} row_mask:0xf bank_mask:0xf')
                if ror == 8 and i == 2: a(f's_cbranch_vccnz {failto}')
        a(f's_mov_b64 exec, s[{S_XR}:{S_XR+1}]')
        cvt(PD, PD, PD+1); cvt(PD+1, PD+2, PD+3)
        a(f'v_and_or_b32 v{PD}, v{PD}, -2, s{S_EM}')
        a(f'global_store_dwordx2 v{r.aMst}, {vr(PD,2)}, s[{S_CM}:{S_CM+1}] {stf}')
        a(XA)
    assert not e3
    Lok = a.newlabel('Lc_p1'); Lq = [a.newlabel('Lc_r1') for _ in range(nb)]
    a(f's_waitcnt vmcnt({younger})')
    tr(4)
    hookE = (lambda: e_load(0, ef)) if eh else None
    reduce(0, Lq[1 % nb], hookE)
    a.label(Lok)
    tr(5)
    a(f's_xor_b32 s{S_EP}, s{S_EP}, 1')
    EB = M+20
    def e_back():
        b = S_CME if rep else S_CML
        a(f'global_load_dwordx4 {vr(EB,4)}, v{r.aL}, s[{b}:{b+1}] offset:{1024*frag_of(w,0)-4096} sc1')
    if ee:
        if not eh: then(d2[w] - e0e, 5); e_load(0, ef); then(e0e, 5)
        else: then(d2[w], 5)
        e_back(); tr(6); then(e1g, 9); e_load(1, ef)
    else:
        if ack2[w]: do_chores(pre2, False); a('s_waitcnt vmcnt(0)')
        then(0 if ack2[w] else d2[w], 5); e_load(0, ef); tr(6); then(es, 9); e_load(1, ef)
        if eb is not None: then(eb, 0); e_back()
    if fused and w == hkw[1]: a(f's_sub_u32 s{S_T}, s{S_STEP}, 1'); a(f'v_mov_b32 v{t1}, s{S_T}')
    then(e23[w], 13); e_load(2, ef)
    if not e3in: then(es, 17); e_load(3, ef)
    do_chores(4*len(chores))
    if clk and w == 0:
        lk = a.newlabel('Lclk')
        if clk == 1: a(f's_and_b32 s{S_T}, s{S_STEP}, 7'); a(f's_cmp_lg_u32 s{S_T}, 1')
        else: a(f's_cmp_gt_u32 s{S_STEP}, {clk}')
        a(f's_cbranch_scc1 {lk}')
        a('s_memtime s[60:61]'); a('s_memrealtime s[62:63]'); a('s_waitcnt lgkmcnt(0)')
        for k in range(11, 1, -1): a(f's_mov_b32 s{84+k}, s{84+k-1}') if k != 6 else None
        a('s_sub_u32 s90, s60, s64'); a('s_sub_u32 s85, s62, s65'); a('s_mov_b32 s64, s60'); a('s_mov_b32 s65, s62')
        a.label(lk)
    a(f's_branch {LA}')
    for k in list(range(1, nb)) + [0]:
        a.label(Lq[k])
        p_loads((k-1) % nb); zero(PD, 4)
        if stamps and rt is None and not clk: a(f's_add_u32 s94, s94, 1')
        if k == 0: spin_or_fail()
        a(f's_waitcnt vmcnt({2*(nb-1) if not eh else (3 if nb == 2 else 0)})')
        reduce(k, Lq[(k+1) % nb], hookE)
        a(f's_branch {Lok}')
    if eb is not None or ee:
        Lr0 = Lr[0]; Lr[0] = a.newlabel('Lc_rE0')
        a.label(Lr0)
        if stamps and rt is None and not clk: a('s_add_u32 s92, s92, 63')
        a('s_nop 4'); zero(A, 8)
        a(f's_waitcnt vmcnt({len(vm0) - 1 - vm0.index("x")})')
        for i in range(4): a(f'v_mov_b32 v{M+i}, v{EB+i}')
        for l in chk(0): a(l)
        a(f's_cbranch_vccz {Lc[0]}')
    if comb:
        a.label(Lr[4])
        if stamps and rt is None and not clk: a('s_add_u32 s93, s93, 63')
        for nm in vm0:
            if nm[0] == 'E': e_load(int(nm[1]))
            else: a(f'global_load_dword v{A+24}, v{r.aL}, s[{S_CPR}:{S_CPR+1}] sc1')
        spin_or_fail()
        a('s_waitcnt lgkmcnt(0)'); a('s_nop 4'); zero(A, 24)
        for e in range(2):
            for hh in range(2): ldh(R+8*e, ('q', 1, e), hh)
        a(f's_branch {LA}')
    for j in range(1 if comb else 5):
        a.label(Lr[j])
        if stamps and rt is None and not clk: a(f's_add_u32 s{95 if j == 0 else 93}, s{95 if j == 0 else 93}, {1 if j == 0 else 63}')
        n = 0
        seq = vm0 if j == 0 else (issued_at[j] if j < 4 else ['E4'])
        for nm in seq[seq.index('E%d' % j):]:
            if nm[0] == 'E': e_load(int(nm[1]))
            else: a(f'global_load_dword v{A+24}, v{r.aL}, s[{S_CPR}:{S_CPR+1}] sc1')
            n += 1
        spin_or_fail()
        if j == 0: a('s_nop 4'); zero(A, 8)
        a(f's_waitcnt vmcnt({n-1})')
        for l in chk(j): a(l)
        if j == 4: a(f'ds_write_b128 v{r.aL}, {vr(M+16,4)} offset:{1024*w}')
        a(f's_cbranch_vccnz {Lr[j]}')
        if j == 4: a('s_waitcnt lgkmcnt(0)')
        a(f's_branch {Lc[j]}')
    if fused and w == hkw[0]:
        if stamps and rt is None and not clk:
            lb = a.newlabel('Lc_hb2'); a.label(Lhb); a('s_add_u32 s92, s92, 63'); Lhb = lb
        prog_block(a, r, Lhb, Lhk, S_T3, fail)
    if bx is not None and w == 0:
        a.label(Lbs)
        if stamps and rt is None and not clk: a('s_add_u32 s92, s92, 63')
        lb2 = a.newlabel('Lc_bs2'); a.label(lb2)
        for k in range(4):
            a(f'v_cmp_ne_u32 vcc, s{S_GS}, v{r.PG} ; nowaitcheck'); probe(); nops(bg); a(f's_cbranch_vccz {Lbg}')
        spin_or_fail(); a(f's_branch {lb2}')
    if nomax and not nowait & 2:
        a.label(Lfb)
        a(f's_cmp_lg_u32 s{S_FB}, 0'); a(f's_cbranch_scc1 {Lnofb}')
        a(f's_mov_b32 s{S_FB}, 1'); a('s_waitcnt lgkmcnt(0)')
        submax()
        a(f's_branch {Lexp}')
    a.label(Lsp)
    a(f's_cmp_eq_u32 s{S_STEP}, 63'); a(f's_cbranch_scc1 {Ldone}')
    a(f's_mov_b32 s{S_SP}, 63')
    a(f's_waitcnt vmcnt({0 if nohk else (3 if vdef else 4) + 1 + (1 if (fused and w in hkw) else 0) + (1 if pkpos == 3 else 0)})'); a(f's_branch {Lspb}')
    a.label(Lk0)
    if started: started(A+26)
    if clk > 1: a('s_memtime s[64:65]'); a('s_memrealtime s[62:63]'); a('s_waitcnt lgkmcnt(0)'); a('s_mov_b32 s65, s62')
    for i in range(4): kv_load(a, r, i, r.KX, S_HB)
    a(f's_branch {Lk0b}')
    a.label(Ldone)
    if not nohk: pub_k()
    for t, sl in vrest: S('v', t, sl)
    if not nohk:
        for t in range(2):
            add0(Av[t]); add1(Av[t]); cvt(A+30+t, Av[t], Av[t]+1)
        pub_v()
    a('s_waitcnt vmcnt(0)'); a('s_barrier')
    if fused and w == hkw[1]:
        a(f'v_mov_b32 v{t0}, 64'); a('s_mov_b64 exec, 1'); a(f'global_store_dword v{r.Z}, v{t0}, s[{S_FW}:{S_FW+1}] sc1'); a(XA)
    a(f's_branch {done}')

def chain_all_waves(a, r, stf, fail, **kw):
    done = a.newlabel('Lc_alldone'); lw = [a.newlabel('Lc_wave') for _ in range(4)]
    a(f'v_mov_b32 v{r.A+29}, 0')
    for w in range(1, 4):
        a(f's_cmp_eq_u32 s{S_W}, {w}'); a(f's_cbranch_scc1 {lw[w]}')
    for w in range(4):
        a.label(lw[w]); chain_wave(a, r, w, stf, fail, done, **kw)
    a.label(done)

def chain_kernel_standalone(half, stamps=False, **kw):
    a = Asm(); a._lbl = 1000 * (half + 1); r = ChainRegs()
    end = a.newlabel('Lc_end')
    a(f's_load_dwordx2 s[{S_WS}:{S_WS+1}], s[0:1], {KA_WS}')
    a(f's_load_dwordx2 s[{S_DBG}:{S_DBG+1}], s[0:1], {KA_DBG}')
    a(f's_getreg_b32 s{S_T}, hwreg(HW_REG_XCC_ID, 0, 4)')
    a('s_waitcnt lgkmcnt(0)')
    a(f's_cmp_lg_u32 s{S_T}, 0'); a(f's_cbranch_scc1 {end}')
    l0 = a.newlabel('Lc')
    a('v_mov_b32 v1, 0'); a('v_mov_b32 v2, 1'); a('v_cmp_eq_u32 vcc, 0, v0')
    a('s_and_saveexec_b64 s[12:13], vcc'); a(f's_cbranch_execz {l0}')
    a(f'global_atomic_add v3, v1, v2, s[{S_DBG}:{S_DBG+1}] sc0 sc1'); a('s_waitcnt vmcnt(0)')
    a('ds_write_b32 v1, v3'); a('s_waitcnt lgkmcnt(0)')
    a.label(l0)
    a('s_mov_b64 exec, s[12:13]'); a('s_barrier')
    a('ds_read_b32 v3, v1'); a('s_waitcnt lgkmcnt(0)'); a(f'v_readfirstlane_b32 s{S_H}, v3'); a('s_barrier')
    a(f's_cmp_ge_u32 s{S_H}, 32'); a(f's_cbranch_scc1 {end}')
    if stamps: a('s_memtime s[98:99]')
    chain_setup(a, r)
    a(f's_mov_b32 s{S_EP}, 0'); a(f's_mov_b32 s{S_EM}, 0'); a(f's_mov_b32 s{S_HALF}, {half}')
    chain_init_comm(a, r, '', True)
    group_arrive(a, r.R, 4); group_wait(a, r.R, 4, 32, end)
    if kw.get('rt') is not None:
        a('s_memrealtime s[60:61]'); a('s_waitcnt lgkmcnt(0)'); a('s_add_u32 s62, s60, 2048'); a('s_and_b32 s62, s62, 0xfffff000'); a('s_add_u32 s62, s62, 4096')
        a('s_mov_b32 s63, 0'); a('s_mov_b32 s99, 0'); a('s_mov_b32 s98, 0')
        a.label('Lcal')
        a('s_memrealtime s[60:61]'); a('s_memtime s[64:65]'); a('s_waitcnt lgkmcnt(0)'); a('s_sub_u32 s61, s60, s62'); a('s_cmp_lt_i32 s61, 0'); a('s_cbranch_scc1 Lcal')
        a('s_cmp_eq_u32 s63, 0'); a('s_cselect_b32 s99, s64, s99'); a('s_sub_u32 s64, s64, s99'); a('s_add_u32 s98, s98, s64')
        a('s_add_u32 s62, s62, 44'); a('s_add_u32 s63, s63, 1'); a('s_cmp_lt_u32 s63, 32'); a('s_cbranch_scc1 Lcal')
        a('s_lshr_b32 s98, s98, 5'); a('s_add_u32 s99, s99, s98'); a('s_mov_b32 s98, s62')
    if stamps: a('s_memtime s[100:101]')
    chain_start(a, r, end, 0)
    chain_all_waves(a, r, '', end, fused=0, stamps=stamps, **kw)
    if stamps:
        a('s_memtime s[60:61]'); a('s_waitcnt lgkmcnt(0)')
        a('s_sub_u32 s96, s100, s98'); a('s_sub_u32 s97, s60, s100')
        for k in range(16): a(f'v_mov_b32 v{k}, s{84+k}')
        a(f's_lshl_b32 s{S_T}, s{S_H}, 2'); a(f's_add_u32 s{S_T}, s{S_T}, s{S_W}'); a(f's_lshl_b32 s{S_T}, s{S_T}, 6')
        a(f's_add_u32 s{S_T}, s{S_T}, {STAMP_OFF}')
        a(f'v_mov_b32 v16, s{S_T}')
        for k in range(4): a(f'global_store_dwordx4 v16, {vr(4*k,4)}, s[{S_WS}:{S_WS+1}] offset:{16*k}')
    a.label(end)
    a('s_waitcnt vmcnt(0)'); a('s_endpgm')
    return a.lines

def autostamp(lines, start, stride, n=9):
    out = []; inb = False; idx = 0; k = 0; names = []; first = True
    for l in lines:
        if l == '; BODY_BEGIN': inb = True; idx = 0; k = 0
        if l == '; BODY_END':
            while k < n:
                out.append(f's_memtime s[{S_STAMP+2*k}:{S_STAMP+2*k+1}]'); k += 1
            inb = False; first = False
        if l.startswith('s_cbranch_vccnz'): l = 's_cbranch_vccnz ' + f'Lnx_{len(out)}\nLnx_{len(out)}:'
        if inb and is_instr(l.split('\n')[0]):
            if k < n and idx == start + k * stride:
                out.append(f's_memtime s[{S_STAMP+2*k}:{S_STAMP+2*k+1}]'); k += 1
            if first: names.append(l.split('\n')[0])
            idx += 1
        out += l.split('\n')
    return out, names

if __name__ == '__main__':
    rep = []
    lines = fix_hazards(chain_kernel_standalone(0, stamps=True), rep)
    for e in check_waits(lines, 'chain'): print(e)
    for x in rep[14:32]: print(x)
    t = assemble_file('', [('chain0_kernel', 256, 256, 163840)], [('chain0_kernel', lines, 512, 256)])
    open('chain_test.s', 'w').write(t)
    print(len(lines))
```

```python
from asmlib import *
from layout import *
import math
import chain2 as C
from work import *

S_DBG = 44; S_SLOT = 36; S_TK = 37; S_SPIN = 38; S_PF = 39; S_FO = 40; S_N = 41; S_X = 42; S_SO = 43; S_SV = 46; S_PD = 47; S_LOC = 50; S_DIE = 91
L, L16 = 1, 2
VZ = 10; VF = 11
SPIN_MAX = 0x60000

class Mega:
    def __init__(self, stamps=False, chain_kw={}):
        self.a = Asm(); self.stamps = stamps; self.chain_kw = chain_kw
        self.end = 'Lm_end'; self.TO = 128 if stamps == 2 else 0
        self.tbsleep = chain_kw.pop('tbsleep', 8); self.wsleep = chain_kw.pop('wsleep', 2); self.wrd = chain_kw.pop('wrd', 0); self.ahead = chain_kw.pop('ahead', 0); self.fake = chain_kw.pop('fake', None); self.ct = chain_kw.pop('ct', 0); self.loc = chain_kw.pop('loc', 0); self.lazy = chain_kw.pop('lazy', 0); C.ROT[0] = chain_kw.pop('rot', 0); C.WF[0] = chain_kw.pop('wf', ''); self.attup = chain_kw.pop('attup', 8); self.die = chain_kw.pop('die', 3); self.palag = chain_kw.pop('palag', 3); self.pasplit = chain_kw.pop('pasplit', 48); self.qdef = chain_kw.pop('qdef', 1); self.pfb = chain_kw.pop('pfb', 0); self.kvpos = chain_kw.pop('kvpos', 20); self.perm = chain_kw.pop('perm', 0x65241370)
    def stamp(self, k, hs=None):
        if not self.stamps: return
        a = self.a; l = a.newlabel('Lst')
        if self.stamps == 2:
            kk = self.dmap.get((self.role, k))
            if kk is None: return
            a(f's_cmp_lg_u32 s{S_W}, 0'); a(f's_cbranch_scc1 {l}')
            a('s_memrealtime s[96:97]'); a(f's_load_dwordx2 s[100:101], s[0:1], {KA_DBG}'); a('s_waitcnt lgkmcnt(0)'); a('s_sub_u32 s96, s96, s99')
            a(f's_mov_b32 s98, {4*kk}')
            if hs is not None: a(f's_mul_i32 s97, s{hs}, 12'); a('s_add_u32 s98, s98, s97')
            a('s_mov_b64 exec, 1'); a(f'v_mov_b32 v{self.sv}, s96'); a(f'v_mov_b32 v{self.sv+1}, s98')
            a(f'global_atomic_umax v{self.sv+1}, v{self.sv}, s[100:101] sc1'); a('s_waitcnt vmcnt(0)'); a('s_mov_b64 exec, -1')
            a.label(l); return
        a(f's_cmp_lg_u32 s{S_W}, 0'); a(f's_cbranch_scc1 {l}')
        a('s_memrealtime s[96:97]'); a(f's_lshl_b32 s98, s99, 7'); a(f's_add_u32 s98, s98, {STAMP_OFF + 4*k}'); a('s_waitcnt lgkmcnt(0)')
        if hs is not None: a(f's_lshl_b32 s97, s{hs}, 5'); a('s_add_u32 s98, s98, s97')
        a('s_mov_b64 exec, 1'); a(f'v_writelane_b32 v{self.sv}, s96, 0'); a(f'v_writelane_b32 v{self.sv+1}, s98, 0')
        a(f'v_mov_b32 v{self.sv+1}, s98')
        a(f'global_store_dword v{self.sv+1}, v{self.sv}, s[{S_WS}:{S_WS+1}]'); a('s_waitcnt vmcnt(0)'); a('s_mov_b64 exec, -1')
        a.label(l)
    def mark(self, k, sgpr, val):
        if self.stamps is not True: return
        a = self.a; l = a.newlabel('Lmk')
        a(f's_cmp_lg_u32 s{sgpr}, {val}'); a(f's_cbranch_scc1 {l}')
        a('s_memrealtime s[96:97]'); a('s_waitcnt lgkmcnt(0)'); a(f's_mov_b32 s{70+k}, s96')
        a.label(l)
    def dump_marks(self):
        if self.stamps is not True: return
        a = self.a
        for k in range(16): a(f'v_mov_b32 v{16+k}, s{70+k}')
        a(f's_lshl_b32 s98, s99, 7'); a(f's_add_u32 s98, s98, {STAMP_OFF + 64}'); a('v_mov_b32 v12, s98')
        l = a.newlabel('Lmk'); a(f's_cmp_lg_u32 s{S_W}, 0'); a(f's_cbranch_scc1 {l}')
        for k in range(4): a(f'global_store_dwordx4 v12, {vr(16+4*k,4)}, s[{S_WS}:{S_WS+1}] offset:{16*k}')
        a.label(l)
    def count_wait(self, off, v, fail, st, sp):
        a = self.a; l1 = a.newlabel('Lcw'); l2 = a.newlabel('Lcw')
        a(f's_mov_b32 s{sp}, 0'); a(f'v_mov_b32 v{v+8}, 0')
        a.label(l1)
        for x in range(8): a(f'global_load_dword v{v+x}, v{v+8}, s[{S_DBG}:{S_DBG+1}] offset:{off+16*x} sc1')
        a('s_waitcnt vmcnt(0)')
        a(f'v_add3_u32 v{v+9}, v{v}, v{v+1}, v{v+2}'); a(f'v_add3_u32 v{v+9}, v{v+9}, v{v+3}, v{v+4}'); a(f'v_add3_u32 v{v+9}, v{v+9}, v{v+5}, v{v+6}'); a(f'v_add_u32 v{v+9}, v{v+9}, v{v+7}')
        a(f'v_readfirstlane_b32 s{st}, v{v+9}'); a(f's_cmp_ge_u32 s{st}, 256'); a(f's_cbranch_scc1 {l2}')
        a('s_sleep 4'); a(f's_add_u32 s{sp}, s{sp}, 1'); a(f's_cmp_lt_u32 s{sp}, {SPIN_MAX}'); a(f's_cbranch_scc1 {l1}')
        a(f's_branch {fail}')
        a.label(l2)
    def code_touch(self, v=VZ, sp=48, sh=6):
        if not self.ct: return
        a = self.a
        a(f's_getpc_b64 s[{sp}:{sp+1}]'); a(f's_lshl_b32 s{S_T}, s{S_W}, {6+sh}'); a(f'v_lshl_add_u32 v{v}, v{L}, {sh}, s{S_T}')
        a(f'global_load_dword v{v+1}, v{v}, s[{sp}:{sp+1}]')
    def report(self, v=VZ, st=S_T):
        a = self.a; l = a.newlabel('Lrp')
        a(f's_cmp_lg_u32 s{S_W}, 1'); a(f's_cbranch_scc1 {l}')
        a(f's_lshl_b32 s{st}, s{S_DIE}, 4'); a(f'v_mov_b32 v{v}, s{st}'); a(f'v_mov_b32 v{v+1}, 1')
        a('s_mov_b64 exec, 1'); a(f'global_atomic_add v{v}, v{v+1}, s[{S_DBG}:{S_DBG+1}] offset:132 sc1'); a('s_mov_b64 exec, -1')
        a.label(l)
    def local_check(self):
        a = self.a
        x = [i for i in range(8) if (self.perm >> (4*i)) & 7 == 7][0]
        self.count_wait(self.TO, 12, self.end, S_T, S_SPIN)
        a(f'v_readfirstlane_b32 s{S_T}, v{12+x}'); a(f's_cmp_ge_u32 s{S_T}, 32'); a(f's_cselect_b32 s{S_LOC}, {0 if (self.chain_kw.get("force_slow") or not self.loc) else 1}, 0')
    def dual(self, emit):
        a = self.a; l1 = a.newlabel('Ld'); l2 = a.newlabel('Ld')
        a(f's_cmp_eq_u32 s{S_LOC}, 1'); a(f's_cbranch_scc1 {l1}')
        emit('sc1'); a(f's_branch {l2}')
        a.label(l1); emit(''); a.label(l2)
    def flags_ready(self): self.count_wait(132, 12, self.end, S_T, S_SPIN)
    def flag_off(self, base, idx_sgpr, sh=2):
        self.a(f's_lshl_b32 s{S_FO}, s{idx_sgpr}, {sh}'); self.a(f's_add_u32 s{S_FO}, s{S_FO}, {base}')
    def flag_issue(self, n):
        a = self.a
        a(f'v_min_u32 v{VZ}, {n-1}, v{L}'); a(f'v_lshl_add_u32 v{VZ}, v{VZ}, 8, s{S_FO}'); a(f'global_load_dword v{VF}, v{VZ}, s[{S_WS}:{S_WS+1}] sc1')
    def wait(self, n, sleep=None, mask=None, sh=8, thr=None, keep=None, lazy=None, extra=None):
        a = self.a; l1 = a.newlabel('Lw'); l2 = a.newlabel('Lw')
        a(f's_mov_b32 s{S_SPIN}, 0')
        a(f'v_min_u32 v{VZ}, {n-1}, v{L}'); a(f'v_lshl_add_u32 v{VZ}, v{VZ}, {sh}, s{S_FO}')
        if extra is not None:
            a(f's_lshl_b32 s{S_X}, s{extra}, {sh}'); a(f's_add_u32 s{S_X}, s{S_X}, s{S_FO}'); a(f's_add_u32 s{S_X}, s{S_X}, 16'); a(f'v_writelane_b32 v{VZ}, s{S_X}, 63')
        a.label(l1)
        a(f'global_load_dword v{VF}, v{VZ}, s[{S_WS}:{S_WS+1}] sc1'); a('s_waitcnt vmcnt(0)')
        a(f'v_cmp_eq_u32 vcc, 0, v{VF}' if thr is None else f'v_cmp_gt_u32 vcc, {thr}, v{VF}')
        if keep: a('s_cmp_eq_u64 vcc, 0'); a(f's_cselect_b32 s{keep}, 1, 0')
        if mask is None: a(f's_cbranch_vccz {l2}')
        else: a(f's_and_b64 vcc, vcc, s[{mask}:{mask+1}]'); a(f's_cbranch_scc0 {l2}')
        a(f's_sleep {sleep or self.wsleep}')
        if lazy is not None and self.lazy:
            l3 = a.newlabel('Lw'); a(f's_cmp_ge_u32 s{lazy}, 60'); a(f's_cbranch_scc1 {l3}'); a(f's_sleep {self.lazy}'); a.label(l3)
        a(f's_add_u32 s{S_SPIN}, s{S_SPIN}, 1'); a(f's_cmp_lt_u32 s{S_SPIN}, {SPIN_MAX}'); a(f's_cbranch_scc1 {l1}')
        a(f's_branch {self.end}')
        a.label(l2)
    def set_word(self, base, line_sgpr, word_sgpr, s1=2, s2=8):
        a = self.a
        a(f's_lshl_b32 s{S_SO}, s{line_sgpr}, {s1}'); a(f's_lshl_b32 s{S_X}, s{word_sgpr}, {s2}'); a(f's_add_u32 s{S_SO}, s{S_SO}, s{S_X}'); a(f's_add_u32 s{S_SO}, s{S_SO}, {base}')
    def wsignal(self, val=None, loc=False):
        a = self.a
        a(f'v_mov_b32 v{VZ}, s{S_SO}'); a(f'v_mov_b32 v{VF}, {"s%d" % val if val else "1"}')
        st = lambda f: a(f'global_store_dword v{VZ}, v{VF}, s[{S_WS}:{S_WS+1}] {f}')
        a('s_mov_b64 exec, 1')
        if loc: self.dual(st)
        else: st('sc1')
        a('s_mov_b64 exec, -1')
    def signal_wg(self, loc=False):
        a = self.a; l = a.newlabel('Ls')
        a('s_waitcnt vmcnt(0)'); a('s_barrier'); a(f's_cmp_lg_u32 s{S_W}, 0'); a(f's_cbranch_scc1 {l}')
        self.wsignal(loc=loc); a.label(l)

    def stream(self, ngr, xsrc, inflag, nin, tiles, epilogue, nst, outflag, store, mk=None, pre=None):
        a = self.a; xa = 9; XR = 12
        lp = a.newlabel('Lg_loop'); have = a.newlabel('Lg_have'); go = a.newlabel('Lg_go'); fetch = a.newlabel('Lg_fetch'); done = a.newlabel('Lg_done')
        a(f's_lshl_b32 s{S_XO}, s{S_B}, 15'); a(f's_add_u32 s{S_XO}, s{S_XO}, {xsrc}'); a(f's_mov_b32 s{S_BUF}, {128*1024}')
        a('s_barrier')
        a.label(fetch)
        a(f's_mov_b32 s{S_PD}, 0')
        if inflag is not None:
            self.flag_off(inflag, S_B); self.wait(nin)
        if mk: self.mark(mk[0], S_B, mk[1])
        dma_x(a, L16, S_XO, S_BUF, 'sc1')
        a('s_waitcnt vmcnt(0)')
        a.label(go)
        a('s_barrier')
        if mk: self.mark(mk[0]+1, S_B, mk[1])
        if pre: pre()
        a(f'v_add_u32 v{xa}, s{S_BUF}, v{L16}')
        a(f's_add_u32 s{S_TK}, s{S_B}, {ngr}'); a(f's_xor_b32 s{S_BUF}, s{S_BUF}, {128*1024}'); a(f's_add_u32 s{S_XO}, s{S_XO}, {ngr*32768}')
        if inflag is not None:
            a(f's_min_u32 s{S_T}, s{S_TK}, 63'); self.flag_off(inflag, S_T); self.flag_issue(nin)
        def pref():
            np_ = a.newlabel('Lg_np')
            a('s_waitcnt vmcnt(0)')
            a(f'v_cmp_eq_u32 s[{S_K0}:{S_K0+1}], 0, v{VF}')
            a(f's_cmp_eq_u32 s{S_PD}, 0'); a(f's_cbranch_scc1 {np_}')
            self.wsignal(S_SV if store else None)
            a.label(np_)
        def pref2():
            sk = a.newlabel('Lg_sk')
            a(f's_mov_b32 s{S_PF}, 0')
            a(f's_cmp_ge_u32 s{S_TK}, 64'); a(f's_cbranch_scc1 {sk}')
            a(f's_cmp_lg_u64 s[{S_K0}:{S_K0+1}], 0'); a(f's_cbranch_scc1 {sk}')
            dma_x(a, L16, S_XO, S_BUF, 'sc1'); a(f's_mov_b32 s{S_PF}, 1')
            a.label(sk)
        gemm_core(a, xa, XR, tiles, {30: pref})
        epilogue(pref2)
        if mk: self.mark(mk[0]+2, S_B, mk[1])
        outflag()
        add64(a, S_OUT, S_OUT, ngr*32768)
        a(f's_mov_b32 s{S_B}, s{S_TK}')
        a(f's_cmp_eq_u32 s{S_PF}, 0'); a(f's_cbranch_scc1 {have}')
        first = a.newlabel('Lg_first')
        a(f's_cmp_lt_u32 s{S_B}, {2*ngr}'); a(f's_cbranch_scc1 {first}')
        a(f's_mov_b32 s{S_PD}, 1'); a(f's_waitcnt vmcnt({nst})'); a(f's_branch {go}')
        a.label(first)
        a('s_waitcnt vmcnt(0)'); self.wsignal(S_SV if store else None)
        if mk: self.mark(mk[0]+3, S_B, mk[1]+ngr)
        a(f's_mov_b32 s{S_PD}, 0'); a(f's_branch {go}')
        a.label(have)
        a('s_waitcnt vmcnt(0)'); self.wsignal(S_SV if store else None)
        if mk: self.mark(mk[0]+3, S_B, mk[1]+ngr)
        a(f's_cmp_lt_u32 s{S_B}, 64'); a(f's_cbranch_scc1 {fetch}')
        a('s_barrier')

    def proj_weights(self, isB, share=None, early=None, sel=(0, 1, 2), first=None):
        a = self.a
        a(f's_lshl_b32 s{S_OFF}, s{S_A}, 8')
        if isB: mats = [(KA_WK, 4*MB, 0, 'a', 128), (KA_WV, 4*MB, 0, 'v', 128), (KA_WQ, 4*MB, 0, 'a', 0)]; stride = 8192
        else: mats = [(KA_WQKV, 1536*1024, 1024, 'a', 128), (KA_WQKV, 1536*1024, 2048, 'v', 128), (KA_WQKV, 1536*1024, 0, 'a', 0)]; stride = 3072
        load_wslices(a, [mats[i] for i in sel], stride, L, 3, 4, 5, share, early, first)
    def proj_run(self, half, isB, ngr, nowait=False, mode='kvq'):
        a = self.a; H = W.H[half]
        if not nowait: self.code_touch()
        t0, t1, vq, vk, vv = 3, 4, 6, 7, 8; ACC = 28
        ro = (HB_Q, HB_K, HB_V) if isB else (0, H.KA - H.QA, H.VA - H.QA)
        a(f's_lshl_b32 s{S_T}, s{S_W}, 11')
        a(f's_add_u32 s{S_T2}, s{S_T}, {ro[0]}'); a(f'v_add_u32 v{vq}, s{S_T2}, v{L16}')
        a(f's_add_u32 s{S_T2}, s{S_T}, {ro[1]}'); a(f'v_add_u32 v{vk}, s{S_T2}, v{L16}')
        pi_of(a, t0, L, t1); vpos16(a, vv, t0, L, t1)
        a(f's_add_u32 s{S_T2}, s{S_T}, {ro[2]}'); a(f'v_add_u32 v{vv}, s{S_T2}, v{vv}')
        a(f's_lshl_b32 s{S_T}, s{S_A}, {21 if isB else 13}'); a(f's_lshl_b32 s{S_T2}, s{S_B}, 15'); a(f's_add_u32 s{S_T}, s{S_T}, s{S_T2}')
        a(f's_add_u32 s{S_T}, s{S_T}, {H.HB if isB else H.QA}'); add64(a, S_OUT, S_WS, f's{S_T}')
        a(f's_mov_b32 s{S_M}, {f2u(0.25*math.log2(math.e)):#x}')
        xa = 9; XR = 12; inflag = FL(half, 'XNB' if isB else 'XNA'); mk = (0, 0 if isB else 63) if half == 1 else ((8, 0) if isB else None)
        go = a.newlabel('Lp_go'); fetch = a.newlabel('Lp_fetch'); have = a.newlabel('Lp_have')
        a(f's_lshl_b32 s{S_XO}, s{S_B}, 15'); a(f's_add_u32 s{S_XO}, s{S_XO}, {H.XNB if isB else H.XNA}'); a(f's_mov_b32 s{S_BUF}, {64*1024 if (isB and self.qdef) else 128*1024}')
        a(f's_mov_b32 s{S_PD}, 0')
        a('s_barrier')
        if nowait: a(f's_branch {go}')
        a.label(fetch)
        self.flag_off(inflag, S_B); self.wait(16 if isB else 8, lazy=None if isB else S_B)
        if mk: self.mark(mk[0], S_B, mk[1])
        dma_x(a, L16, S_XO, S_BUF, 'sc1')
        a('s_waitcnt vmcnt(0)')
        a.label(go)
        a('s_barrier')
        if mk: self.mark(mk[0]+1, S_B, mk[1])
        a(f'v_add_u32 v{xa}, s{S_BUF}, v{L16}')
        a(f's_add_u32 s{S_TK}, s{S_B}, {ngr}'); a(f's_xor_b32 s{S_BUF}, s{S_BUF}, {128*1024}'); a(f's_and_b32 s{S_BUF}, s{S_BUF}, {128*1024}'); a(f's_add_u32 s{S_XO}, s{S_XO}, {ngr*32768}')
        if not nowait: a(f's_min_u32 s{S_T}, s{S_TK}, 63'); self.flag_off(inflag, S_T); self.flag_issue(16 if isB else 8)
        def word():
            if isB:
                a(f's_and_b32 s{S_T}, s{S_B}, 1'); a(f's_lshl_b32 s{S_T}, s{S_T}, 2'); a(f's_add_u32 s{S_T}, s{S_T}, s{S_W}')
                self.set_word(FL(half, "HEAD"), S_A, S_T, 8, 5)
            else:
                a(f's_lshl_b32 s{S_T}, s{S_A}, 2'); a(f's_add_u32 s{S_T}, s{S_T}, s{S_W}'); self.set_word(FL(half, "QKVA"), S_T, S_B, 11, 5)
        def late():
            l = a.newlabel('Lp_q'); a(f's_cmp_eq_u32 s{S_PD}, 0'); a(f's_cbranch_scc1 {l}')
            self.wsignal(); a(f's_mov_b32 s{S_PD}, 0'); a.label(l)
        def pref():
            sk = a.newlabel('Lp_sk')
            a('s_waitcnt vmcnt(0)'); a(f'v_cmp_eq_u32 vcc, 0, v{VF}')
            if not isB: late()
            a(f's_mov_b32 s{S_PF}, 0')
            a(f's_cmp_ge_u32 s{S_TK}, 64'); a(f's_cbranch_scc1 {sk}')
            if not nowait: a(f's_cbranch_vccnz {sk}')
            dma_x(a, L16, S_XO, S_BUF, 'sc1'); a(f's_mov_b32 s{S_PF}, 1')
            a.label(sk)
        def half_store(acc, ad, j):
            for i in range(4): a(f'v_cvt_pk_bf16_f32 v{acc+8*j+i}, v{acc+8*j+2*i}, v{acc+8*j+2*i+1}')
            a(f'global_store_dwordx4 v{ad}, {vr(acc+8*j,4)}, s[{S_OUT}:{S_OUT+1}] offset:{1024*j} sc1')
        def kvsig():
            if mk: self.mark(mk[0]+2, S_B, mk[1])
            word(); a('s_waitcnt vmcnt(0)'); self.wsignal(S_TK if isB else None)
            if not isB: a('s_mov_b64 exec, 1'); a(f'global_store_dword v{VZ}, v{VF}, s[{S_WS}:{S_WS+1}] offset:8 sc1'); a('s_mov_b64 exec, -1')
            if mk: self.mark(mk[0]+3, S_B, mk[1])
        kvs = [lambda: half_store(ACC+16, vk, 0), lambda: half_store(ACC+16, vk, 1), lambda: half_store(ACC+32, vv, 0), lambda: half_store(ACC+32, vv, 1)]
        if mode != 'q': gemm_core(a, xa, XR, [(ACC+16, 'a', 128, False), (ACC+32, 'v', 128, True)], {18: pref})
        tail = a.newlabel('Lp_tail')
        if isB and self.qdef:
            l = a.newlabel('Lp_n'); a(f's_cmp_ge_u32 s{S_B}, {ngr}'); a(f's_cbranch_scc1 {l}')
            for f in kvs: f()
            kvsig(); a(f's_branch {tail}')
            a.label(l)
        if mode == 'kvq': gemm_core(a, xa, XR, [(ACC, 'a', 0, False)], {0: kvs[0], 1: kvs[1], 2: kvs[2], 3: kvs[3], self.kvpos: kvsig})
        if mode == 'q':
            def p0():
                sk = a.newlabel('Lp_sk'); a(f's_mov_b32 s{S_PF}, 0'); a(f's_cmp_ge_u32 s{S_TK}, 64'); a(f's_cbranch_scc1 {sk}')
                dma_x(a, L16, S_XO, S_BUF, 'sc1'); a(f's_mov_b32 s{S_PF}, 1'); a.label(sk)
            gemm_core(a, xa, XR, [(ACC, 'a', 0, False)], {0: p0, 30: lambda: (a('s_waitcnt vmcnt(0)'), late())})
        if mode == 'kv':
            for f in kvs: f()
        else: pack_store(a, ACC, vq, S_OUT, 'sc1', scale=None if isB else S_M)
        if isB and self.qdef:
            a(f's_cmp_ge_u32 s{S_B}, {2*ngr}'); a(f's_cbranch_scc1 {tail}')
            a(f'v_add_u32 v{xa}, {64*1024}, v{L16}'); a(f's_sub_u32 s{S_IN}, s{S_OUT}, {ngr*32768}'); a(f's_subb_u32 s{S_IN+1}, s{S_OUT+1}, 0')
            gemm_core(a, xa, XR, [(ACC, 'a', 0, False)]); pack_store(a, ACC, vq, S_IN, 'sc1')
        a.label(tail)
        if not isB:
            if mode != 'kvq': word()
            if mode != 'kv': a(f's_add_u32 s{S_SO}, s{S_SO}, 16')
        add64(a, S_OUT, S_OUT, ngr*32768)
        a(f's_mov_b32 s{S_B}, s{S_TK}'); a(f's_mov_b32 s{S_PD}, 1')
        if mode == 'kv': a('s_waitcnt vmcnt(4)')
        a(f's_cmp_lg_u32 s{S_PF}, 0'); a(f's_cbranch_scc1 {go}')
        if not isB: a('s_waitcnt vmcnt(0)'); late()
        a(f's_cmp_lt_u32 s{S_B}, 64'); a(f's_cbranch_scc1 {fetch}')
        if isB:
            a('s_waitcnt vmcnt(0)'); a(f's_add_u32 s{S_SV}, s{S_B}, 4'); self.wsignal(S_SV)
        a('s_barrier')
    def woa_run(self, half, ngr):
        a = self.a; H = W.H[half]
        self.code_touch()
        t0, t1, sm, vo, vx, vs = 3, 4, 5, 6, 7, 8; ACC = 28; X = 44; G = 52; SP = 68; mu = 70
        a(f's_lshl_b32 s{S_T}, s{S_W}, 11'); a(f's_lshl_b32 s{S_T2}, s{S_A}, 13'); a(f's_add_u32 s{S_T}, s{S_T}, s{S_T2}'); a(f'v_add_u32 v{vo}, s{S_T}, v{L16}')
        if half == 0:
            a(f's_load_dwordx2 s[{S_P}:{S_P+1}], s[0:1], {KA_X}')
            a(f'v_and_b32 v{t0}, 31, v{L}'); a(f'v_lshlrev_b32 v{vx}, 10, v{t0}'); a(f'v_lshrrev_b32 v{t0}, 5, v{L}'); a(f'v_lshl_add_u32 v{vx}, v{t0}, 4, v{vx}')
            a(f's_lshr_b32 s{S_T}, s{S_T}, 5'); a(f'v_add_u32 v{vx}, s{S_T}, v{vx}'); a('s_waitcnt lgkmcnt(0)')
        else:
            add64(a, S_P, S_WS, W.H[0].X2); a(f'v_mov_b32 v{vx}, v{vo}')
        a(f's_lshl_b32 s{S_T2}, s{S_B}, 15'); add64(a, S_P, S_P, f's{S_T2}')
        a(f's_add_u32 s{S_T}, s{S_T2}, {H.X1}'); add64(a, S_OUT, S_WS, f's{S_T}')
        a(f'v_and_b32 v{t0}, 31, v{L}'); a(f'v_lshlrev_b32 v{vs}, 3, v{t0}'); a(f'v_lshrrev_b32 v{t0}, 5, v{L}'); a(f'v_lshl_add_u32 v{vs}, v{t0}, 11, v{vs}')
        a(f's_mov_b32 s{S_M}, 0xffff0000')
        def pre():
            for j in range(2): a(f'global_load_dwordx4 {vr(X+4*j,4)}, v{vx}, s[{S_P}:{S_P+1}] offset:{(32 if half == 0 else 1024)*j} {"" if half == 0 else "sc1"}')
            add64(a, S_P, S_P, ngr*32768)
            a(f's_lshl_b32 s{S_T}, s{S_B}, 12'); a(f's_add_u32 s{S_T}, s{S_T}, {W.ST + half*262144}'); add64(a, S_IN, S_WS, f's{S_T}')
            l = a.newlabel('Lwt'); a(f's_cmp_lg_u32 s{S_LOC}, 1'); a(f's_cbranch_scc1 {l}')
            a(f'v_lshlrev_b32 v{t0}, 6, v{L}'); a(f'global_load_dword v{t1}, v{t0}, s[{S_IN}:{S_IN+1}] sc1'); a.label(l)
        def rbf(r): a(f'v_cvt_pk_bf16_f32 v{r}, v{r}, v{r}'); a(f'v_and_b32 v{r}, s{S_M}, v{r}')
        def halves(regs):
            for x, t in zip(regs, (t0, t1)): a(f'v_mov_b32 v{t}, v{x}')
            for x, t in zip(regs, (t0, t1)): a(f'v_permlane32_swap_b32 v{x}, v{t}')
            for x, t in zip(regs, (t0, t1)): a(f'v_add_f32 v{x}, v{x}, v{t}')
        def epi(pref2):
            a(f's_lshl_b32 s{S_T}, s{S_A}, 2'); a(f's_add_u32 s{S_T}, s{S_T}, s{S_W}'); a(f's_lshl_b32 s{S_T2}, s{S_T}, 8')
            self.set_word(FL(half, "XNB"), S_B, S_T)
            for d in range(8):
                e = ACC+2*d
                a(f'v_cvt_pk_bf16_f32 v{t1}, v{e}, v{e+1}'); a(f'v_lshlrev_b32 v{e}, 16, v{X+d}'); a(f'v_and_b32 v{e+1}, s{S_M}, v{X+d}')
                a(f'v_lshlrev_b32 v{t0}, 16, v{t1}'); a(f'v_and_b32 v{t1}, s{S_M}, v{t1}')
                a(f'v_add_f32 v{e}, v{e}, v{t0}'); a(f'v_add_f32 v{e+1}, v{e+1}, v{t1}')
                a(f'v_cvt_pk_bf16_f32 v{X+d}, v{e}, v{e+1}')
                a(f'v_lshlrev_b32 v{e}, 16, v{X+d}'); a(f'v_and_b32 v{e+1}, s{S_M}, v{X+d}')
                if d == 0: a(f'v_add_f32 v{SP}, v{e}, v{e+1}'); a(f'v_mul_f32 v{SP+1}, v{e}, v{e}')
                else: a(f'v_add_f32 v{SP}, v{SP}, v{e}'); a(f'v_add_f32 v{SP}, v{SP}, v{e+1}'); a(f'v_fmac_f32 v{SP+1}, v{e}, v{e}')
                a(f'v_fmac_f32 v{SP+1}, v{e+1}, v{e+1}')
            halves((SP, SP+1))
            a(f'v_or_b32 v{SP+1}, 1, v{SP+1}'); a(f'v_add_u32 v{t0}, s{S_T2}, v{vs}')
            a('s_mov_b32 exec_hi, 0'); self.dual(lambda f: a(f'global_store_dwordx2 v{t0}, {vr(SP,2)}, s[{S_IN}:{S_IN+1}] {f}')); a('s_mov_b32 exec_hi, -1')
            a('s_waitcnt vmcnt(0)')
            l1 = a.newlabel('Lwr'); l2 = a.newlabel('Lwr')
            a(f's_mov_b32 s{S_SPIN}, 0')
            a.label(l1)
            for p in range(8): a(f'global_load_dwordx2 {vr(G+2*p,2)}, v{vs}, s[{S_IN}:{S_IN+1}] offset:{256*p} sc1')
            a('s_waitcnt vmcnt(0)')
            a(f'v_bitop3_b32 v{t0}, v{G+1}, v{G+3}, v{G+5} bitop3:0x80'); a(f'v_bitop3_b32 v{t1}, v{G+7}, v{G+9}, v{G+11} bitop3:0x80')
            a(f'v_bitop3_b32 v{t0}, v{t0}, v{G+13}, v{G+15} bitop3:0x80'); a(f'v_bitop3_b32 v{t0}, v{t0}, v{t1}, 1 bitop3:0x80')
            a(f'v_cmp_eq_u32 vcc, 0, v{t0}'); a(f's_cbranch_vccz {l2}')
            a(f's_add_u32 s{S_SPIN}, s{S_SPIN}, 1'); a(f's_cmp_lt_u32 s{S_SPIN}, {SPIN_MAX}'); a(f's_cbranch_scc1 {l1}')
            a(f's_branch {self.end}')
            a.label(l2)
            pref2()
            for j in range(2): a(f'global_store_dwordx4 v{vo}, {vr(X+4*j,4)}, s[{S_OUT}:{S_OUT+1}] offset:{1024*j} sc1')
            for st in (8, 4, 2):
                for i in range(0, st, 2): a(f'v_pk_add_f32 {vr(G+i,2)}, {vr(G+i,2)}, {vr(G+i+st,2)}')
            halves((G, G+1))
            a(f'v_mul_f32 v{mu}, {f2u(1/512):#x}, v{G}'); a(f'v_mul_f32 v{sm}, {f2u(1/512):#x}, v{G+1}')
            a(f'v_fma_f32 v{sm}, -v{mu}, v{mu}, v{sm}'); a(f'v_max_f32 v{sm}, 0, v{sm}')
            rbf(sm); a(f'v_add_f32 v{sm}, {f2u(1e-5):#x}, v{sm}'); rbf(sm)
            a(f'v_sqrt_f32 v{sm}, v{sm}'); rbf(sm); a(f'v_rcp_f32 v{sm}, v{sm}'); rbf(mu)
            add64(a, S_IN, S_OUT, H.XNB - H.X1) if H.XNB > H.X1 else (a(f's_sub_u32 s{S_IN}, s{S_OUT}, {H.X1 - H.XNB}'), a(f's_subb_u32 s{S_IN+1}, s{S_OUT+1}, 0'))
            for d in range(8):
                e = ACC+2*d
                a(f'v_sub_f32 v{t0}, v{e}, v{mu}'); a(f'v_sub_f32 v{t1}, v{e+1}, v{mu}'); a(f'v_cvt_pk_bf16_f32 v{t1}, v{t0}, v{t1}')
                a(f'v_lshlrev_b32 v{t0}, 16, v{t1}'); a(f'v_and_b32 v{t1}, s{S_M}, v{t1}')
                a(f'v_mul_f32 v{t0}, v{t0}, v{sm}'); a(f'v_mul_f32 v{t1}, v{t1}, v{sm}'); a(f'v_cvt_pk_bf16_f32 v{G+d}, v{t0}, v{t1}')
                if d % 4 == 3: a(f'global_store_dwordx4 v{vo}, {vr(G+d-3,4)}, s[{S_IN}:{S_IN+1}] offset:{1024*(d//4)} sc1')
        self.stream(ngr, H.OA, FL(half, 'OA'), 32, [(ACC, 'v', 128, False)], epi, 4, lambda: None, False, mk=(0, 0) if half == 1 else (8, 0), pre=pre)
    def rb_run(self, half, ngr):
        a = self.a; H = W.H[half]
        mk = (4, 63) if half == 0 else None
        def task(nl):
            def ready():
                self.flag_off(FL(half, 'PT'), S_A); self.wait(32, lazy=S_A)
                if mk: self.mark(mk[0], S_A, mk[1])
            if half == 0: rb_body(a, 8, H.X1, False, H.PT, 32768, 8*32768, H.X2, False, W.H[1].XNA, 'sc1', 'sc1', ready, nl=nl)
            else: rb_body(a, 8, H.X1, False, H.PT, 32768, 8*32768, KA_OUT, True, None, 'sc1', 'sc1', ready, nl=nl)
            if half == 0:
                if mk: self.mark(mk[0]+2, S_A, mk[1])
                l = a.newlabel('Ls')
                a('s_waitcnt vmcnt(0)'); a('s_barrier'); a(f's_cmp_ge_u32 s{S_W}, {nl}'); a(f's_cbranch_scc1 {l}')
                a(f's_mul_i32 s{S_T}, s{S_B}, {nl}'); a(f's_add_u32 s{S_T}, s{S_T}, s{S_W}'); self.set_word(FL(1, 'XNA'), S_A, S_T); self.wsignal()
                a.label(l)
                if mk: self.mark(mk[0]+3, S_A, mk[1])
        lp = a.newlabel('Lr_loop'); done = a.newlabel('Lr_done'); a.label(lp)
        task(2)
        a(f's_add_u32 s{S_A}, s{S_A}, {ngr}'); a(f's_cmp_lt_u32 s{S_A}, 63'); a(f's_cbranch_scc1 {lp}')
        a(f's_cmp_gt_u32 s{S_A}, 64'); a(f's_cbranch_scc1 {done}')
        a(f's_lshl_b32 s{S_B}, s{S_B}, 1'); a(f's_sub_u32 s{S_T}, s{S_A}, 63'); a(f's_add_u32 s{S_B}, s{S_B}, s{S_T}'); a(f's_mov_b32 s{S_A}, 63')
        task(1)
        a.label(done)

    def att_run(self, half, npg):
        a = self.a; H = W.H[half]
        self.code_touch()
        t0, t1, t2, ak, av, idx, lw = range(3, 10); mx = 204
        Q = 12; QN = 16; K0 = 20; Cc = 24; O = 40; D = [56, 72, 88]; KF = 104; MG = 168
        pi_of(a, t0, L, t1)
        a(f'v_and_b32 v{t1}, 32, v{L}'); a(f'v_add_u32 v{ak}, v{t0}, v{t1}'); a(f'v_lshlrev_b32 v{ak}, 4, v{ak}')
        a(f'v_and_b32 v{t0}, 15, v{t0}'); a(f's_and_b32 s{S_T}, s{S_A}, 1'); a(f's_lshl_b32 s{S_T}, s{S_T}, 4'); a(f'v_add_u32 v{t0}, s{S_T}, v{t0}')
        vpos16(a, av, t0, L, t1)
        a(f'v_mov_b32 v{idx}, 0xdddd')
        a(f's_mul_i32 s{S_T}, s{S_W}, 3072'); a(f'v_add_u32 v{lw}, s{S_T}, v{L16}')
        a(f's_lshr_b32 s{S_T}, s{S_A}, 1'); self.flag_off(FL(half, 'QKVA'), S_T, 11)
        KM_, QM_ = 52, 54
        fa = 205
        a(f'v_lshl_add_u32 v{fa}, v{L}, 5, s{S_FO}')
        a(f's_mov_b64 s[{KM_}:{KM_+1}], -1'); a(f's_mov_b64 s[{QM_}:{QM_+1}], -1')
        def need(km, qm):
            l1 = a.newlabel('La_n'); l2 = a.newlabel('La_n'); l3 = a.newlabel('La_n')
            a(f's_mov_b32 s{S_SPIN}, 0')
            a.label(l3)
            tests = [(m, k) for m, k in ((km, KM_), (qm, QM_)) if m is not None]
            for i, (m, k) in enumerate(tests):
                a(f's_and_b64 vcc, s[{m}:{m+1}], s[{k}:{k+1}]'); a(f's_cbranch_scc0 {l2}' if i == len(tests)-1 else f's_cbranch_scc1 {l1}')
            a.label(l1)
            ls = a.newlabel('La_n'); a(f's_cmp_eq_u32 s{S_SPIN}, 0'); a(f's_cbranch_scc1 {ls}'); a(f's_sleep {self.wsleep}'); a.label(ls)
            a(f'global_load_dword v{VZ}, v{fa}, s[{S_WS}:{S_WS+1}] sc1'); a(f'global_load_dword v{VF}, v{fa}, s[{S_WS}:{S_WS+1}] offset:16 sc1')
            if half: a(f'global_load_dword v{fa+1}, v{fa}, s[{S_WS}:{S_WS+1}] offset:8 sc1')
            a('s_waitcnt vmcnt(0)')
            if half: a(f'v_and_b32 v{VZ}, v{VZ}, v{fa+1}')
            a(f'v_cmp_eq_u32 s[{KM_}:{KM_+1}], 0, v{VZ}'); a(f'v_cmp_eq_u32 s[{QM_}:{QM_+1}], 0, v{VF}')
            a(f's_add_u32 s{S_SPIN}, s{S_SPIN}, 1'); a(f's_cmp_lt_u32 s{S_SPIN}, {SPIN_MAX}'); a(f's_cbranch_scc1 {l3}')
            a(f's_branch {self.end}')
            a.label(l2)
        def qwait(blk): a(f's_lshl_b64 s[{S_P}:{S_P+1}], 1, s{blk}'); need(None, S_P)
        a(f's_mov_b32 s56, -1'); a(f's_mov_b32 s57, {0x00ffffff if half else 0xffffffff:#x}'); a(f's_lshl_b64 s[{S_P}:{S_P+1}], 1, s{S_B}'); need(56, S_P)
        self.stamp(2 + 8*half)
        a(f's_lshl_b32 s{S_T}, s{S_A}, 10'); a(f's_lshl_b32 s{S_T2}, s{S_B}, 15'); a(f's_add_u32 s{S_T2}, s{S_T2}, s{S_T}')
        a(f's_add_u32 s{S_T3}, s{S_T2}, {H.QA}'); add64(a, S_IN, S_WS, f's{S_T3}')
        a(f's_add_u32 s{S_T3}, s{S_T2}, {H.OA}'); add64(a, S_OUT, S_WS, f's{S_T3}')
        a(f'global_load_dwordx4 {vr(QN,4)}, v{L16}, s[{S_IN}:{S_IN+1}] sc1')
        a(f's_add_u32 s{S_K0}, s{S_T}, {H.KA}')
        a(f'buffer_load_dwordx4 {vr(K0,4)}, v{ak}, s[{S_WSRD}:{S_WSRD+3}], s{S_K0} offen sc1')
        a(f's_lshl_b32 s{S_T2}, s{S_W}, 15'); a(f's_add_u32 s{S_K0}, s{S_K0}, s{S_T2}')
        a(f's_lshr_b32 s{S_K1}, s{S_A}, 1'); a(f's_lshl_b32 s{S_K1}, s{S_K1}, 11'); a(f's_add_u32 s{S_K1}, s{S_K1}, s{S_T2}'); a(f's_add_u32 s{S_K1}, s{S_K1}, {H.VA}')
        a(f's_mov_b32 s{S_M}, 0x0000ffff'); a(f's_mov_b32 s{S_M+1}, 0x0000ffff')
        def kv_tile(t):
            a(f's_add_u32 s{S_T}, s{S_K0}, {t*131072}')
            a(f'buffer_load_dwordx4 {vr(KF+4*t,4)}, v{ak}, s[{S_WSRD}:{S_WSRD+3}], s{S_T} offen sc1')
            a(f's_add_u32 s{S_T}, s{S_K1}, {t*131072}')
            a(f's_mov_b64 exec, s[{S_M}:{S_M+1}]')
            for b in range(2): a(f'buffer_load_dwordx4 {vr(8*t+4*b,4,"a")}, v{av}, s[{S_WSRD}:{S_WSRD+3}], s{S_T} offen offset:{1024*b} sc1')
            a('s_mov_b64 exec, -1')
        def late_tile(t):
            if half == 0: return
            l = a.newlabel('La_lt'); a(f's_bitcmp0_b32 s{S_PD}, {t-14}'); a(f's_cbranch_scc1 {l}')
            a(f's_add_u32 s{S_T}, s{S_W}, {4*t}'); a(f's_lshl_b64 s[{S_P}:{S_P+1}], 1, s{S_T}')
            need(S_P, None)
            if t == 15: self.mark(0, S_B, 0)
            kv_tile(t); a('s_waitcnt vmcnt(0)')
            a(f's_bitset0_b32 s{S_PD}, {t-14}')
            a.label(l)
        NT = 14 if half else 16
        a(f's_mov_b32 s{S_PD}, 3')
        if half:
            for t in (14, 15):
                l = a.newlabel('La_et'); a(f's_add_u32 s{S_T}, s{S_W}, {4*t}'); a(f's_bitcmp1_b64 s[{KM_}:{KM_+1}], s{S_T}'); a(f's_cbranch_scc1 {l}')
                kv_tile(t); a(f's_bitset0_b32 s{S_PD}, {t-14}'); a.label(l)
        UP = self.attup
        for t in range(UP): kv_tile(t)
        a(f's_mov_b32 s{S_BUF}, 0'); a(f's_mov_b32 s{S_CNT}, 0'); a(f's_mov_b32 s{S_PF}, 0')
        a('s_barrier')
        lp = a.newlabel('La_loop'); run = a.newlabel('La_run'); slow = a.newlabel('La_slow'); nom = a.newlabel('La_nom'); noq = a.newlabel('La_noq'); out = a.newlabel('La_out')
        def rowmax(src, first):
            if first: a(f'v_max3_f32 v{mx}, v{src}, v{src+1}, v{src+2}'); rest = list(range(3, 16))
            else: rest = list(range(16))
            while len(rest) >= 2:
                a(f'v_max3_f32 v{mx}, v{mx}, v{src+rest[0]}, v{src+rest[1]}'); rest = rest[2:]
            if rest: a(f'v_max_f32 v{mx}, v{mx}, v{src+rest[0]}')
        def halfmax():
            a(f'v_mov_b32 v{t0}, v{mx}'); a(f'v_permlane32_swap_b32 v{mx}, v{t0}'); a(f'v_max_f32 v{mx}, v{mx}, v{t0}')
        def pending():
            l = a.newlabel('La_p'); a(f's_cmp_eq_u32 s{S_PF}, 0'); a(f's_cbranch_scc1 {l}')
            a('s_waitcnt vmcnt(0)'); self.wsignal(); a(f's_mov_b32 s{S_PF}, 0')
            if half: self.mark(3, S_B, 0)
            a.label(l)
        def pv(t, b): a(f'v_smfmac_f32_32x32x32_bf16 {vr(O,16)}, {vr(8*t+4*b,4,"a")}, {vr(D[t%3]+8*b,8)}, v{idx}')
        def nextq():
            noq = a.newlabel('La_noq')
            a(f's_cmp_ge_u32 s{S_TK}, 64'); a(f's_cbranch_scc1 {noq}')
            qwait(S_TK)
            a(f'global_load_dwordx4 {vr(QN,4)}, v{L16}, s[{S_IN}:{S_IN+1}] sc1')
            a.label(noq)
        def block(first):
            for i in range(4): a(f'v_mov_b32 v{Q+i}, v{QN+i}')
            a(f's_add_u32 s{S_TK}, s{S_B}, {npg}'); add64(a, S_IN, S_IN, npg*32768)
            a(mf(D[0], vr(K0,4), vr(Q,4), 0))
            for i in range(16): a(f'v_mov_b32 v{O+i}, 0')
            rowmax(D[0], True); halfmax()
            a(f's_mov_b32 s{S_XO}, 0')
            if not first: a.label(run)
            for i in range(16): a(f'v_sub_f32 v{Cc+i}, 0, v{mx}')
            issued = UP
            if first: a(f's_waitcnt vmcnt({3*(issued-2)})')
            a(mf(D[0], vr(KF,4), vr(Q,4), vr(Cc,16)))
            a(mf(D[1], vr(KF+4,4), vr(Q,4), vr(Cc,16)))
            for t in range(16):
                d = D[t % 3]
                for i in range(16):
                    a(f'v_exp_f32 v{d+i}, v{d+i}')
                    if i == 2 and t > 0: pv(t-1, 1)
                    if first and i == 2 and issued < NT: kv_tile(issued); issued += 1
                    if first and i == 6 and NT <= t + 2 < 16: late_tile(t+2)
                    if first and i == 6 and t + 2 < NT: a(f's_waitcnt vmcnt({3*(issued-1-(t+2))})')
                    if i == 6 and t + 2 < 16: a(mf(D[(t+2)%3], vr(KF+4*(t+2),4), vr(Q,4), vr(Cc,16)))
                    if i == 11: pv(t, 0)
                if t == 5 and not first: pending()
                if t == (NT - 3 if first else 6): nextq()
            pv(15, 1)
        merge = a.newlabel('La_merge')
        a(f's_waitcnt vmcnt({3*UP})')
        self.mark(1 if half else 11, S_B, 0)
        block(True); a(f's_branch {merge}')
        a.label(lp)
        block(False)
        a.label(merge)
        a(f'v_add_u32 v{t1}, s{S_BUF}, v{lw}')
        for j in range(3): a(f'ds_write_b128 v{t1}, {vr(O+4*j,4)} offset:{1024*j}')
        a('s_waitcnt vmcnt(0) lgkmcnt(0)'); a('s_barrier')
        a(f'v_add_u32 v{t1}, s{S_BUF}, v{L16}')
        for w in range(4): a(f'ds_read_b32 v{MG+w}, v{t1} offset:{3072*w+2048}')
        a('s_waitcnt lgkmcnt(0)')
        a(f'v_add_f32 v{MG}, v{MG}, v{MG+1}'); a(f'v_add_f32 v{MG+2}, v{MG+2}, v{MG+3}'); a(f'v_add_f32 v{t2}, v{MG}, v{MG+2}')
        a(f's_xor_b32 s{S_BUF}, s{S_BUF}, 16384')
        a(f'v_cmp_nge_f32 vcc, {f2u(2.0**90):#x}, v{t2}')
        a(f's_cbranch_vccnz {slow}')
        fin = a.newlabel('La_fin'); a.label(fin)
        a(f's_and_b32 s{S_T}, s{S_CNT}, 3'); a(f's_add_u32 s{S_CNT}, s{S_CNT}, 1')
        a(f's_cmp_lg_u32 s{S_T}, s{S_W}'); a(f's_cbranch_scc1 {nom}')
        for w in range(4):
            for j in range(2): a(f'ds_read_b128 {vr(MG+8*w+4*j,4)}, v{t1} offset:{3072*w+1024*j}')
        a(f'v_rcp_f32 v{t2}, v{t2}')
        a('s_waitcnt lgkmcnt(0)')
        for i in range(8):
            a(f'v_add_f32 v{MG+i}, v{MG+i}, v{MG+8+i}'); a(f'v_add_f32 v{MG+16+i}, v{MG+16+i}, v{MG+24+i}')
            a(f'v_add_f32 v{MG+i}, v{MG+i}, v{MG+16+i}'); a(f'v_mul_f32 v{MG+i}, v{MG+i}, v{t2}')
        for i in range(4): a(f'v_cvt_pk_bf16_f32 v{MG+i}, v{MG+2*i}, v{MG+2*i+1}')
        a(f'global_store_dwordx4 v{L16}, {vr(MG,4)}, s[{S_OUT}:{S_OUT+1}] sc1')
        self.set_word(FL(half, 'OA'), S_B, S_A); a(f's_mov_b32 s{S_PF}, 1')
        self.mark(2 if half else 12, S_B, 0)
        a(f's_cmp_ge_u32 s{S_B}, {npg}'); a(f's_cbranch_scc1 {nom}')
        pending()
        a.label(nom)
        add64(a, S_OUT, S_OUT, npg*32768)
        a(f's_mov_b32 s{S_B}, s{S_TK}')
        a(f's_cmp_lt_u32 s{S_B}, 64'); a(f's_cbranch_scc1 {lp}')
        pending()
        a(f's_branch {out}')
        a.label(slow)
        a(f's_cmp_lg_u32 s{S_XO}, 0'); a(f's_cbranch_scc1 {fin}')
        a(f's_mov_b32 s{S_XO}, 1')
        for t in range(16):
            a(mf(D[t%2], vr(KF+4*t,4), vr(Q,4), 0))
            rowmax(D[t%2], t == 0)
        halfmax()
        a(f'ds_write_b32 v{lw}, v{mx} offset:32768'); a('s_waitcnt lgkmcnt(0)'); a('s_barrier')
        for w in range(4): a(f'ds_read_b32 v{MG+w}, v{L16} offset:{32768+3072*w}')
        a('s_waitcnt lgkmcnt(0)')
        a(f'v_max3_f32 v{mx}, v{MG}, v{MG+1}, v{MG+2}'); a(f'v_max_f32 v{mx}, v{mx}, v{MG+3}')
        for i in range(16): a(f'v_mov_b32 v{O+i}, 0')
        a(f's_branch {run}')
        a.label(out)
        a('s_barrier')

    def tb_weights(self):
        a = self.a
        a(f's_lshr_b32 s{S_T}, s{S_A}, 2'); a(f's_lshl_b32 s{S_T}, s{S_T}, 19'); a(f's_and_b32 s{S_T2}, s{S_A}, 3'); a(f's_lshl_b32 s{S_T2}, s{S_T2}, 8')
        a(f's_add_u32 s{S_OFF}, s{S_T}, s{S_T2}')
        load_wslices(a, [(KA_WO, 4*MB, 0, 'a', 128)], 1024, L, 3, 4, 5)
        l = a.newlabel('Lt_nw')
        a(f's_and_b32 s{S_T}, s{S_A}, 3'); a(f's_cmp_ge_u32 s{S_T}, 3'); a(f's_cbranch_scc1 {l}')
        a(f's_add_u32 s{S_T}, s{S_T}, 1'); a(f's_cmp_eq_u32 s{S_T}, 3'); a(f's_cselect_b32 s{S_T}, 0, s{S_T}'); a(f's_lshl_b32 s{S_T}, s{S_T}, 10')
        a(f's_lshr_b32 s{S_T2}, s{S_A}, 3'); a(f's_lshl_b32 s{S_T2}, s{S_T2}, 8'); a(f's_add_u32 s{S_OFF}, s{S_T}, s{S_T2}')
        load_wslices(a, [(KA_WQKV, 1536*1024, 0, 'a', 0)], 3072, L, 3, 4, 5)
        a.label(l)
    def pa_task(self, vo, av):
        a = self.a; H = W.H[1]; XR = 12; ACC = 224; xa = 3; t1 = 4
        lv = a.newlabel('Lq_v'); le = a.newlabel('Lq_e')
        self.flag_off(FL(1, 'XNA'), S_TK); self.wait(8)
        a(f's_lshl_b32 s{S_PF}, s{S_TK}, 15'); a(f's_add_u32 s{S_CNT}, s{S_PF}, {H.XNA}'); a(f's_mov_b32 s{S_BUF}, 32768')
        dma_x(a, L16, S_CNT, S_BUF, 'sc1')
        a(f's_and_b32 s{S_PD}, s{S_A}, 3')
        a(f's_add_u32 s{S_T}, s{S_PD}, 1'); a(f's_cmp_eq_u32 s{S_T}, 3'); a(f's_cselect_b32 s{S_T}, 0, s{S_T}'); a(f's_cselect_b32 s{S_SV}, {f2u(0.25*math.log2(math.e)):#x}, 1.0')
        a(f's_lshl_b32 s{S_T}, s{S_T}, 21'); a(f's_add_u32 s{S_PF}, s{S_PF}, s{S_T}'); a(f's_lshr_b32 s{S_T}, s{S_A}, 3'); a(f's_lshl_b32 s{S_T2}, s{S_T}, 13'); a(f's_add_u32 s{S_PF}, s{S_PF}, s{S_T2}')
        a(f's_add_u32 s{S_PF}, s{S_PF}, {H.QA}'); add64(a, S_IN, S_WS, f's{S_PF}')
        a(f's_lshl_b32 s{S_T}, s{S_T}, 2'); a(f's_add_u32 s{S_T}, s{S_T}, s{S_W}'); self.set_word(FL(1, "QKVA"), S_T, S_TK, 11, 5)
        a(f's_lshl_b32 s{S_T}, s{S_PD}, 3'); a(f's_add_u32 s{S_SO}, s{S_SO}, s{S_T}')
        a(f'v_add_u32 v{xa}, 32768, v{L16}')
        a(f's_lshl_b32 s{S_T}, s{S_W}, 11'); a(f's_sub_u32 s{S_T}, s{S_T}, {HB_V}'); a(f'v_add_u32 v{t1}, s{S_T}, v{av}')
        a('s_waitcnt vmcnt(0)'); a('s_barrier')
        a(f's_cmp_eq_u32 s{S_PD}, 1'); a(f's_cbranch_scc1 {lv}')
        gemm_core(a, xa, XR, [(ACC, 'a', 0, False)]); pack_store(a, ACC, vo, S_IN, 'sc1', scale=S_SV); a(f's_branch {le}')
        a.label(lv)
        gemm_core(a, xa, XR, [(ACC, 'a', 0, True)]); pack_store(a, ACC, t1, S_IN, 'sc1')
        a.label(le)
        a('s_waitcnt vmcnt(0)'); self.wsignal(); a('s_barrier')
    def tb_run(self, half, ngr):
        a = self.a; H = W.H[half]
        t0, t1, akm, av, avm, vo, xw = range(3, 10); mx = 240; FG = 244
        XR = 12; CM = 28; SX = 44; SM = 60; Q = 76; K = 108; KM = 140; V = 172; VM = 204; P = 212; PM = 220; ACC = 224
        OT = Q
        a(f'v_and_b32 v{t0}, 7, v{L}'); a(f'v_lshlrev_b32 v{akm}, 4, v{t0}'); a(f'v_lshrrev_b32 v{t0}, 5, v{L}'); a(f'v_lshl_add_u32 v{akm}, v{t0}, 7, v{akm}')
        a(f'v_add_u32 v{akm}, {HB_KM}, v{akm}')
        pi_of(a, t0, L, t1); vpos16(a, av, t0, L, t1); a(f'v_add_u32 v{av}, {HB_V}, v{av}')
        a(f'v_lshlrev_b32 v{avm}, 2, v{t0}'); a(f'v_lshrrev_b32 v{t1}, 5, v{L}'); a(f'v_lshl_add_u32 v{avm}, v{t1}, 8, v{avm}'); a(f'v_add_u32 v{avm}, {HB_VM}, v{avm}')
        a(f's_lshl_b32 s{S_T}, s{S_W}, 11'); a(f'v_add_u32 v{vo}, s{S_T}, v{L16}')
        a(f's_lshl_b32 s{S_T}, s{S_W}, 13'); a(f'v_add_u32 v{xw}, s{S_T}, v{L16}')
        a(f'v_and_b32 v{t0}, 31, v{L}'); a(f'v_lshrrev_b32 v{t1}, 5, v{L}'); a(f'v_lshlrev_b32 v{t1}, 2, v{t1}'); a(f'v_sub_u32 v{t0}, v{t0}, v{t1}')
        a(f'v_mov_b32 v{t1}, {f2u(-1e30):#x}')
        for i in range(16):
            a(f'v_cmp_le_i32 vcc, {8*(i>>2)+(i&3)}, v{t0}'); a(f'v_cndmask_b32 v{CM+i}, v{t1}, 0, vcc')
        a(f's_and_b32 s{S_T}, s{S_A}, 28'); a(f's_add_u32 s{S_T}, s{S_T}, s{S_W}')
        a(f's_lshl_b32 s{S_K0}, s{S_T}, 8'); a(f's_add_u32 s{S_K0}, s{S_K0}, {FL(half, "HEAD")}')
        a(f's_lshl_b32 s{S_T}, s{S_T}, 21')
        a(f's_lshl_b32 s{S_T2}, s{S_B}, 15'); a(f's_add_u32 s{S_XO}, s{S_T}, s{S_T2}'); a(f's_add_u32 s{S_XO}, s{S_XO}, {H.HB}')
        a(f's_lshl_b32 s{S_T}, s{S_B}, 18'); a(f's_lshl_b32 s{S_T2}, s{S_A}, 13'); a(f's_add_u32 s{S_T}, s{S_T}, s{S_T2}'); a(f's_add_u32 s{S_T}, s{S_T}, {H.PT}')
        add64(a, S_OUT, S_WS, f's{S_T}')
        a(f's_mov_b32 s{S_M}, {f2u(math.log2(math.e)/math.sqrt(128.0)):#x}')
        a(f's_mov_b32 s{S_N}, 0'); a(f's_mov_b32 s{S_K1}, 0')
        def bl(n, dst, va, so, off): a(f'buffer_load_dword{n} {vr(dst, 4 if n else 1)}, v{va}, s[{S_WSRD}:{S_WSRD+3}], s{so} offen offset:{off} sc1')
        def poll(which):
            l1 = a.newlabel('Lt_p'); l2 = a.newlabel('Lt_p'); l3 = a.newlabel('Lt_p')
            a(f's_mov_b32 s{S_SPIN}, 0'); a(f's_branch {l3}')
            a.label(l1)
            if which == S_N:
                a(f'v_mov_b32 v{VZ}, s{S_K0}')
                _ = [a(f'global_load_dword v{FG+i}, v{VZ}, s[{S_WS}:{S_WS+1}] offset:{32*i} sc1') for i in range(8)]; a('s_waitcnt vmcnt(0)')
                a(f'v_min3_u32 v{FG}, v{FG}, v{FG+1}, v{FG+2}'); a(f'v_min3_u32 v{FG}, v{FG}, v{FG+3}, v{FG+4}'); a(f'v_min3_u32 v{FG}, v{FG}, v{FG+5}, v{FG+6}'); a(f'v_min_u32 v{FG}, v{FG}, v{FG+7}')
            else:
                a(f's_add_u32 s{S_X}, s{S_K0}, {FL(half, "CHP") - FL(half, "HEAD")}'); a(f'v_mov_b32 v{VZ}, s{S_X}')
                a(f'global_load_dword v{FG}, v{VZ}, s[{S_WS}:{S_WS+1}] sc1'); a('s_waitcnt vmcnt(0)')
            a(f'v_readfirstlane_b32 s{which}, v{FG}')
            if which == S_N: a(f's_max_u32 s{S_N}, s{S_N}, 4'); a(f's_sub_u32 s{S_N}, s{S_N}, 4')
            a(f's_cmp_gt_u32 s{which}, s{S_B}'); a(f's_cbranch_scc1 {l2}')
            a('s_sleep 1')
            lz = a.newlabel('Lt_z'); a(f's_cmp_eq_u32 s{S_B}, 63'); a(f's_cbranch_scc1 {lz}'); a(f's_sleep {self.tbsleep}'); a.label(lz)
            a(f's_add_u32 s{S_SPIN}, s{S_SPIN}, 1'); a(f's_cmp_ge_u32 s{S_SPIN}, {SPIN_MAX}'); a(f's_cbranch_scc1 {self.end}')
            a.label(l3)
            a(f's_cmp_gt_u32 s{which}, s{S_B}'); a(f's_cbranch_scc0 {l1}')
            a.label(l2)
        lp = a.newlabel('Lt_loop')
        PFX = 58
        def x_loads(d):
            a(f's_add_u32 s{S_X}, s{S_XO}, {d}'); a(f's_add_u32 s{S_T}, s{S_XO}, {d+4096}'); a(f's_add_u32 s{S_T2}, s{S_XO}, {d+HB_Q}'); a(f's_add_u32 s{S_T3}, s{S_XO}, {d+HB_Q+4096}')
            for kb in range(8):
                bl('x4', K+4*kb, L16, S_X if kb < 4 else S_T, (kb%4)*1024)
                bl('x4', Q+4*kb, L16, S_T2 if kb < 4 else S_T3, (kb%4)*1024)
            for f in range(8): bl('x4', V+4*f, av, S_X if f < 4 else S_T, (f%4)*1024)
        a(f's_mov_b32 s{PFX}, 0'); a(f's_and_b32 s{S_TK}, s{S_A}, 4'); a(f's_add_u32 s{S_TK}, s{S_TK}, s{S_B}')
        a.label(lp)
        lh = a.newlabel('Lt_h'); a(f's_cmp_lg_u32 s{PFX}, 0'); a(f's_cbranch_scc1 {lh}')
        poll(S_N); x_loads(0)
        a.label(lh)
        def mem_loads():
            for kb in range(8): bl('x4', KM+4*kb, akm, S_XO, kb*256)
            for t in range(4):
                for e in range(2): bl('', VM+2*t+e, avm, S_XO, t*512 + e*128)
        def both(r, op):
            a(f'v_mov_b32 v{t0}, v{r}'); a(f'v_permlane32_swap_b32 v{r}, v{t0}'); a(f'{op} v{r}, v{r}, v{t0}')
        lx = mx + 1; al = mx + 2; m2 = mx + 3
        def xpart(extra):
            for kb in range(8):
                a(f's_waitcnt vmcnt({extra + 8 + 14 - 2*kb})')
                a(mf(SX, vr(K+4*kb,4), vr(Q+4*kb,4), vr(SX,16) if kb else vr(CM,16)))
            a(f'v_max3_f32 v{mx}, v{SX}, v{SX+1}, v{SX+2}')
            for i in range(3, 15, 2): a(f'v_max3_f32 v{mx}, v{mx}, v{SX+i}, v{SX+i+1}')
            a(f'v_max_f32 v{mx}, v{mx}, v{SX+15}'); both(mx, 'v_max_f32')
            for i in range(16): a(f'v_sub_f32 v{SX+i}, v{SX+i}, v{mx}')
            for i in range(16): a(f'v_mul_f32 v{SX+i}, s{S_M}, v{SX+i}')
            for i in range(16): a(f'v_exp_f32 v{SX+i}, v{SX+i}')
            a(f'v_add_f32 v{lx}, v{SX}, v{SX+1}')
            for i in range(2, 16): a(f'v_add_f32 v{lx}, v{lx}, v{SX+i}')
        lw_ = a.newlabel('Lt_w'); lj = a.newlabel('Lt_j')
        a(f's_cmp_gt_u32 s{S_K1}, s{S_B}'); a(f's_cbranch_scc0 {lw_}')
        mem_loads(); xpart(16); a(f's_branch {lj}')
        a.label(lw_)
        xpart(0); poll(S_K1)
        if half == 0: self.mark(4, S_B, 63)
        mem_loads()
        a.label(lj)
        for kb in range(8):
            a(f's_waitcnt vmcnt({8 + 7 - kb})')
            a(mf(SM, vr(KM+4*kb,4), vr(Q+4*kb,4), vr(SM,16) if kb else 0))
        if half == 0: self.mark(5, S_B, 63)
        a(f'v_max3_f32 v{m2}, v{SM}, v{SM+1}, v{mx}'); a(f'v_max3_f32 v{m2}, v{m2}, v{SM+2}, v{SM+3}'); both(m2, 'v_max_f32')
        a(f'v_sub_f32 v{al}, v{mx}, v{m2}')
        for i in range(4): a(f'v_sub_f32 v{SM+i}, v{SM+i}, v{m2}')
        for e in [al] + [SM+i for i in range(4)]: a(f'v_mul_f32 v{e}, s{S_M}, v{e}')
        for e in [al] + [SM+i for i in range(4)]: a(f'v_exp_f32 v{e}, v{e}')
        a(f'v_fma_f32 v{t1}, v{lx}, v{al}, v{SM}')
        for i in range(1, 4): a(f'v_add_f32 v{t1}, v{t1}, v{SM+i}')
        both(t1, 'v_add_f32')
        a(f'v_rcp_f32 v{t1}, v{t1}')
        a(f'v_mul_f32 v{al}, v{al}, v{t1}')
        for i in range(4): a(f'v_mul_f32 v{SM+i}, v{SM+i}, v{t1}')
        for i in range(2): a(f'v_cvt_pk_bf16_f32 v{PM+i}, v{SM+2*i}, v{SM+2*i+1}')
        a('s_waitcnt vmcnt(0)')
        for t in range(4):
            a(f'v_mfma_f32_32x32x8_bf16 {vr(OT+16*t,16)}, {vr(VM+2*t,2)}, {vr(PM,2)}, 0')
            for i in range(4*t, 4*t+4): a(f'v_mul_f32 v{SX+i}, v{SX+i}, v{al}')
            for i in range(2*t, 2*t+2): a(f'v_cvt_pk_bf16_f32 v{P+i}, v{SX+2*i}, v{SX+2*i+1}')
        def cv(t, j):
            o = OT+16*t+8*j
            for i in range(4): a(f'v_cvt_pk_bf16_f32 v{o+i}, v{o+2*i}, v{o+2*i+1}')
        def wr(t, j): a(f'ds_write_b128 v{xw}, {vr(OT+16*t+8*j,4)} offset:{(2*t+j)*1024}')
        todo = [(t, j) for t in range(4) for j in range(2)]; conv = []
        for n, (t, j) in enumerate(list(todo)):
            a(mf(OT+16*t, vr(V+8*t+4*j,4), vr(P+4*j,4), vr(OT+16*t,16)))
            if conv: wr(*conv.pop(0))
            if n >= 3: x = todo.pop(0); cv(*x); conv.append(x)
        for x in conv: wr(*x)
        for x in todo: cv(*x); wr(*x)
        a('s_waitcnt lgkmcnt(0)'); a('s_barrier')
        def pfx():
            l = a.newlabel('Lt_x'); a(f's_add_u32 s{S_T}, s{S_B}, {ngr}'); a(f's_mov_b32 s{PFX}, 0')
            a(f's_cmp_gt_u32 s{S_N}, s{S_T}'); a(f's_cbranch_scc0 {l}')
            x_loads(ngr*32768); a(f's_mov_b32 s{PFX}, 1'); a.label(l)
        gemm_core(a, L16, XR, [(ACC, 'a', 128, False)], {1: pfx})
        pack_store(a, ACC, vo, S_OUT, 'sc1')
        if half == 0: self.mark(6, S_B, 63)
        self.set_word(FL(half, 'PT'), S_B, S_A); self.signal_wg()
        if half == 0: self.mark(7, S_B, 63); self.mark(13, S_B, 35); self.mark(14, S_B, 51)
        add64(a, S_OUT, S_OUT, ngr*8*32768); a(f's_add_u32 s{S_XO}, s{S_XO}, {ngr*32768}')
        a(f's_add_u32 s{S_B}, s{S_B}, {ngr}')
        if half == 0:
            nxt = a.newlabel('Lt_n'); pa = a.newlabel('Lt_pa'); fin = a.newlabel('Lt_f')
            a(f's_and_b32 s{S_T}, s{S_A}, 3'); a(f's_cmp_ge_u32 s{S_T}, 3'); a(f's_cbranch_scc1 {nxt}')
            a(f's_cmp_ge_u32 s{S_TK}, {self.pasplit}'); a(f's_cbranch_scc1 {nxt}')
            a(f's_add_u32 s{S_T}, s{S_TK}, {self.palag*ngr}'); a(f's_cmp_gt_u32 s{S_T}, s{S_B}'); a(f's_cbranch_scc1 {nxt}')
            self.pa_task(vo, av)
            a(f's_add_u32 s{S_TK}, s{S_TK}, {2*ngr}')
            a(f's_cmp_lt_u32 s{S_TK}, {self.pasplit}'); a(f's_cbranch_scc1 {nxt}')
            a(f'v_mov_b32 v{VZ}, 0x3f803f80')
            for i in range(128): a(f'v_accvgpr_write_b32 a{i}, v{VZ}')
            a.label(nxt)
        a(f's_cmp_lt_u32 s{S_B}, 64'); a(f's_cbranch_scc1 {lp}')

    def build(self):
        a = self.a; end = self.end
        a(f's_cmp_ge_u32 s2, 256'); a(f's_cbranch_scc1 {end}')
        if self.stamps == 2: a('s_memrealtime s[96:97]')
        if self.stamps is True: a('s_memrealtime s[94:95]')
        a(f's_load_dwordx2 s[{S_DBG}:{S_DBG+1}], s[0:1], {KA_DBG}')
        common_prologue(a, L, L16)
        lw = a.newlabel('Le'); lo = a.newlabel('Le'); ls = a.newlabel('Le'); lg = a.newlabel('Le'); lz = a.newlabel('Le')
        a(f's_getreg_b32 s{S_X}, hwreg(HW_REG_XCC_ID, 0, 3)')
        a(f's_xor_b32 s{S_X}, s{S_X}, {self.die}')
        if self.fake: a(self.fake.format(x=S_X))
        a(f's_lshl_b32 s{S_T}, s{S_X}, 4'); a(f'v_mov_b32 v3, s{S_T}'); a('v_mov_b32 v4, 1')
        def xwait():
            l1 = a.newlabel('Le'); l2 = a.newlabel('Le')
            a(f's_mul_i32 s{S_T}, s2, 3072'); a(f's_add_u32 s{S_T}, s{S_T}, {W.FLAGS}'); a('v_mul_u32_u24 v6, 12, v0'); a(f'v_add_u32 v6, s{S_T}, v6'); a('v_mov_b32 v8, 0'); a('v_mov_b32 v9, 0'); a('v_mov_b32 v10, 0')
            a(f'global_store_dwordx3 v6, v[8:10], s[{S_WS}:{S_WS+1}] sc1')
            a(f's_cmp_lg_u32 s{S_W}, 0'); a(f's_cbranch_scc1 {l1}')
            a('s_mov_b64 exec, 1'); a(f'global_atomic_add v5, v3, v4, s[{S_DBG}:{S_DBG+1}] offset:{self.TO} sc0 sc1'); a('s_mov_b64 exec, -1')
            a('s_waitcnt vmcnt(2)'); a(f's_branch {l2}')
            a.label(l1); a('s_waitcnt vmcnt(1)'); a.label(l2)
        a(f's_lshr_b32 s{S_A}, s2, 2'); a(f's_and_b32 s{S_B}, s2, 3')
        rb_body(a, 0, KA_X, True, 0, 0, 0, None, False, W.H[0].XNA, '', 'sc1', ldsoff=1024, vb=20, xwait=xwait)
        a(f's_cmp_lg_u32 s{S_W}, 0'); a(f's_cbranch_scc1 {lw}')
        a('s_mov_b64 exec, 1'); a('s_waitcnt vmcnt(2)')
        a(f'v_readfirstlane_b32 s{S_TK}, v5')
        a(f's_lshl_b32 s{S_SLOT}, s{S_X}, 5'); a(f's_add_u32 s{S_SLOT}, s{S_SLOT}, s{S_TK}')
        a(f's_cmp_lt_u32 s{S_TK}, 32'); a(f's_cbranch_scc1 {lg}')
        a('v_mov_b32 v3, 136'); a(f'global_atomic_add v5, v3, v4, s[{S_DBG}:{S_DBG+1}] sc0 sc1'); a('s_waitcnt vmcnt(0)')
        a(f'v_readfirstlane_b32 s{S_TK}, v5')
        self.count_wait(self.TO, 12, ls, S_T, S_SPIN)
        a.label(ls)
        for x in range(8):
            a(f'v_readfirstlane_b32 s{S_T}, v{12+x}'); a(f's_min_u32 s{S_T}, s{S_T}, 32')
            a(f's_add_u32 s{S_SLOT}, s{S_T}, s{S_TK}'); a(f's_add_u32 s{S_SLOT}, s{S_SLOT}, {32*x}')
            a(f's_sub_u32 s{S_T}, 32, s{S_T}'); a(f's_cmp_lt_u32 s{S_TK}, s{S_T}'); a(f's_cbranch_scc1 {lg}')
            a(f's_sub_u32 s{S_TK}, s{S_TK}, s{S_T}')
        a(f's_mov_b32 s{S_SLOT}, 256')
        a.label(lg)
        a(f'v_mov_b32 v3, 0'); a(f'v_mov_b32 v4, s{S_SLOT}'); a('ds_write_b32 v3, v4'); a('s_waitcnt lgkmcnt(0)')
        a('s_mov_b64 exec, -1')
        a.label(lw)
        a('s_waitcnt vmcnt(0)'); a('s_barrier')
        a(f's_mov_b32 s{S_DIE}, s{S_X}'); self.report()
        a('v_mov_b32 v3, 0'); a('ds_read_b32 v4, v3'); a('s_waitcnt lgkmcnt(0)'); a(f'v_readfirstlane_b32 s{S_SLOT}, v4'); a('s_barrier')
        a(f's_lshr_b32 s{S_T}, s{S_SLOT}, 5'); a(f's_lshl_b32 s{S_T2}, s{S_T}, 2'); a(f's_lshr_b32 s{S_T2}, {self.perm:#x}, s{S_T2}'); a(f's_and_b32 s{S_T2}, s{S_T2}, 7')
        a(f's_cmp_lt_u32 s{S_T}, 8'); a(f's_cselect_b32 s{S_T2}, s{S_T2}, 8'); a(f's_and_b32 s{S_SLOT}, s{S_SLOT}, 31'); a(f's_lshl_b32 s{S_T2}, s{S_T2}, 5'); a(f's_add_u32 s{S_SLOT}, s{S_SLOT}, s{S_T2}')
        if self.stamps: a(f's_mov_b32 s99, s{S_SLOT}')
        self.role = 'all'
        self.dmap = {('all',0):0, ('ch',1):1, ('ch',2):2, ('ch',3):3, ('ch',4):4, ('gw',1):8, ('gw',2):9, ('gw',3):10, ('pb',1):11, ('ms',12):12, ('gw',4):13, ('pb',3):14}
        if self.stamps == 2:
            a('s_and_b32 s99, s96, 0xfff00000')
        self.sv = 10
        a(f's_mov_b32 s{S_SO}, {W.STAMPS}')
        if self.stamps: _ = [a(f's_mov_b32 s{70+k}, 0') for k in range(16)]
        if self.stamps is True: a('s_mov_b32 s85, s94')
        self.stamp(0)
        Lch, Lpb, Lgw, Lms, Lpa = [a.newlabel(n) for n in ('Lchain', 'Lpb', 'Lgw', 'Lms', 'Lpa')]
        a(f's_cmp_lt_u32 s{S_SLOT}, 32'); a(f's_cbranch_scc0 Lnot_chain')
        self.jump(Lch)
        a.label('Lnot_chain')
        a(f's_cmp_lt_u32 s{S_SLOT}, 96'); a(f's_cbranch_scc1 {Lpb}')
        a(f's_cmp_lt_u32 s{S_SLOT}, 224'); a(f's_cbranch_scc1 {Lgw}')
        a(f's_cmp_lt_u32 s{S_SLOT}, 240'); a(f's_cbranch_scc1 {Lms}')
        a(f's_cmp_lt_u32 s{S_SLOT}, 256'); a(f's_cbranch_scc1 {Lpa}')
        a.label(end); a('s_endpgm')
        a.label(Lms); self.role = 'ms'; self.code_touch(sh=7)
        a(f's_and_b32 s{S_A}, s{S_SLOT}, 3'); a(f's_lshl_b32 s{S_OFF}, s{S_A}, 8')
        load_wslices(a, [(KA_WOA, 512*1024, 0, 'v', 128)], 1024, L, 3, 4, 5)
        if self.pfb:
            a(f's_load_dwordx2 s[{S_P}:{S_P+1}], s[0:1], {KA_WO}'); a(f's_and_b32 s{S_T}, s{S_SLOT}, 15'); a(f's_lshl_b32 s{S_T}, s{S_T}, 18')
            a(f'v_lshl_add_u32 v3, v0, 7, s{S_T}'); a('s_waitcnt lgkmcnt(0)')
            for i in range(8):
                a(f'global_load_dword v4, v3, s[{S_P}:{S_P+1}]'); a('v_add_u32 v3, 32768, v3')
        self.flags_ready(); self.local_check()
        for half in range(2):
            a(f's_and_b32 s{S_A}, s{S_SLOT}, 3'); a(f's_bfe_u32 s{S_B}, s{S_SLOT}, 0x20002'); self.woa_run(half, 4); self.stamp(3 + 8*half)
            a(f's_bfe_u32 s{S_A}, s{S_SLOT}, 0x20002'); a(f's_and_b32 s{S_B}, s{S_SLOT}, 3')
            self.rb_run(half, 4); self.stamp(4 + 8*half)
        self.dump_marks(); a('s_endpgm')
        a.label(Lpa); self.role = 'pa'; self.code_touch(sh=7)
        def first_x():
            self.flags_ready(); self.mark(9, S_W, 0)
            a(f's_lshl_b32 s{S_XO}, s{S_B}, 15'); a(f's_add_u32 s{S_XO}, s{S_XO}, {W.H[0].XNA}'); a(f's_mov_b32 s{S_BUF}, {128*1024}')
            dma_x(a, L16, S_XO, S_BUF, 'sc1')
        a(f's_and_b32 s{S_A}, s{S_SLOT}, 3'); a(f's_bfe_u32 s{S_B}, s{S_SLOT}, 0x20002')
        self.proj_weights(False, (S_B, 4), first_x, (2,)); self.proj_run(0, False, 4, nowait=True, mode='q'); self.stamp(3)
        self.proj_weights(False, None, None, (0, 1))
        a(f's_bfe_u32 s{S_B}, s{S_SLOT}, 0x20002'); a(f's_add_u32 s{S_B}, s{S_B}, {self.pasplit}'); self.proj_run(1, False, 4); self.stamp(4)
        self.dump_marks(); a('s_endpgm')
        a.label(Lpb); self.role = 'pb'; self.code_touch(sh=7)
        def pb_ids():
            a(f's_sub_u32 s{S_T}, s{S_SLOT}, 32'); a(f's_lshr_b32 s{S_A}, s{S_T}, 5'); a(f's_lshl_b32 s{S_A}, s{S_A}, 4'); a(f's_and_b32 s{S_T2}, s{S_T}, 15')
            a(f's_add_u32 s{S_A}, s{S_A}, s{S_T2}'); a(f's_bfe_u32 s{S_B}, s{S_T}, 0x10004')
        pb_ids(); self.proj_weights(True, (S_B, 2) if self.pfb else None); self.flags_ready(); self.stamp(1)
        for half in range(2):
            pb_ids(); self.proj_run(half, True, 2); self.stamp(3 + 8*half)
        self.dump_marks(); a('s_endpgm')
        a.label(Lgw); self.role = 'gw'; self.code_touch(sh=7)
        self.end = 'Lm_end2'
        def pa_ids(): a(f's_sub_u32 s{S_T}, s{S_SLOT}, 96'); a(f's_lshr_b32 s{S_A}, s{S_T}, 5'); a(f's_and_b32 s{S_B}, s{S_T}, 31')
        pa_ids()
        def gw_first():
            a(f'v_mov_b32 v{VZ}, 0x3f803f80')
            for i in range(128): a(f'v_accvgpr_write_b32 a{i}, v{VZ}')
        self.proj_weights(False, (S_B, 32), first_x, (0, 1), gw_first); self.mark(10, S_W, 0); self.proj_run(0, False, 32, nowait=True, mode='kv'); self.stamp(1)
        def gw_ids():
            a(f's_sub_u32 s{S_T}, s{S_SLOT}, 96'); a(f's_lshr_b32 s{S_A}, s{S_T}, 5'); a(f's_lshl_b32 s{S_A}, s{S_A}, 3'); a(f's_and_b32 s{S_T2}, s{S_T}, 7')
            a(f's_add_u32 s{S_A}, s{S_A}, s{S_T2}'); a(f's_bfe_u32 s{S_B}, s{S_T}, 0x20003')
        for half in range(2):
            gw_ids(); self.att_run(half, 4); self.stamp(3 + 8*half)
            gw_ids()
            if half == 0: self.tb_weights()
            self.tb_run(half, 4); self.stamp(4 + 8*half)
        self.dump_marks()
        a.label('Lm_end2'); a('s_endpgm')
        a.label(Lch); self.role = 'ch'
        self.end = 'Lm_end3'; end = self.end
        r = C.ChainRegs(); self.sv = r.R
        a(f's_mov_b32 s{C.S_H}, s{S_SLOT}')
        lslow = a.newlabel('Lcslow'); lfast = a.newlabel('Lcfast')
        def mid(T):
            l1 = a.newlabel('Lcm'); l2 = a.newlabel('Lcm')
            T = r.WV + 64
            self.count_wait(132, T, end, C.S_T, C.S_SPIN); self.count_wait(self.TO, T, end, C.S_T, C.S_SPIN)
            a(f'v_readfirstlane_b32 s{C.S_T}, v{T}')
            add64(a, S_DBG, S_WS, FL(0, 'EL'))
            if self.chain_kw.get('force_slow'): a(f's_mov_b32 s{C.S_T}, 0')
            a(f's_mov_b32 s{C.S_EP}, 0'); a(f's_mov_b32 s{C.S_EM}, 0'); a(f's_mov_b32 s{C.S_HALF}, 0')
            a(f's_cmp_ge_u32 s{C.S_T}, 32'); a(f's_cselect_b32 s{C.S_FB}, 1, 0'); a(f's_cbranch_scc1 {l1}')
            C.chain_init_comm(a, r, 'sc1', True, T); a(f's_branch {l2}')
            a.label(l1); C.chain_init_comm(a, r, '', True, T)
            a.label(l2); C.group_arrive(a, T, 1280)
        C.chain_setup(a, r, mid, self.ahead)
        self.stamp(1)
        C.group_wait(a, r.R, 1280, 32, end)
        a(f's_cmp_eq_u32 s{C.S_FB}, 1'); a(f's_cbranch_scc1 {lfast}')
        a(f's_branch {lslow}')
        a.label(end); a('s_endpgm')
        kw = {k: v for k, v in self.chain_kw.items() if k != 'force_slow'}
        for lbl, stf in ((lfast, ''), (lslow, 'sc1')):
            a.label(lbl)
            lh = a.newlabel('Lch_half'); a.label(lh)
            self.stamp(2, C.S_HALF)
            C.chain_start(a, r, end, 1)
            def started(sv):
                self.sv = sv; self.stamp(3, C.S_HALF); self.sv = r.R
            kw['started'] = started
            C.chain_all_waves(a, r, stf, end, fused=1, **(dict(kw, ef='sc1') if stf else kw))
            self.stamp(4, C.S_HALF)
            if kw.get('stamps'):
                for k in range(12): a(f'v_mov_b32 v{k}, s{84+k}')
                a(f's_lshl_b32 s{C.S_T}, s{C.S_H}, 2'); a(f's_add_u32 s{C.S_T}, s{C.S_T}, s{C.S_W}'); a(f's_lshl_b32 s{C.S_T}, s{C.S_T}, 6')
                a(f's_lshl_b32 s{C.S_T2}, s{C.S_HALF}, 13'); a(f's_add_u32 s{C.S_T}, s{C.S_T}, s{C.S_T2}')
                a(f's_add_u32 s{C.S_T}, s{C.S_T}, {STAMP_OFF + 32768}'); a(f'v_mov_b32 v16, s{C.S_T}')
                for k in range(3): a(f'global_store_dwordx4 v16, {vr(4*k,4)}, s[{S_WS}:{S_WS+1}] offset:{16*k}')
                a('s_waitcnt vmcnt(0)')
            a(f's_cmp_lg_u32 s{C.S_HALF}, 0'); a(f's_cbranch_scc1 {end}')
            a(f's_mov_b32 s{C.S_HALF}, 1'); C.group_arrive(a, r.R, 1408); C.group_wait(a, r.R, 1408, 32, end)
            a(f's_xor_b32 s{C.S_EM}, s{C.S_EM}, 1'); C.chain_init_comm(a, r, stf, False)
            a(f's_branch {lh}')
        return a.lines
    def jump(self, label):
        a = self.a; l = a.newlabel('Lj')
        a('s_getpc_b64 s[48:49]'); a.label(l)
        a(f's_add_u32 s48, s48, {label}-{l}'); a('s_addc_u32 s49, s49, 0'); a('s_setpc_b64 s[48:49]')

DOC = """;
;
"""
NAME = 'interleave_layers__softmax_full_mha__memory_aug_recurrent_mem_tr__prompt'
def build(stamps=False, chain_kw={}, verbose=False, aslist=True):
    ks = []
    for n, lines, vg, acc in ((NAME + '_kernel', Mega(stamps, chain_kw).build(), 512, 256),):
        rep = []
        l = fix_hazards(lines, rep)
        for e in check_waits(l, n[:8]): print(e)
        if verbose: print(n, len(l), len(rep))
        ks.append((n, l, vg, acc))
    hdr = ''.join(l for l in open(f'cdna_kernels/{NAME}.s.ref').readlines()[:14] if '@launch' not in l)
    hdr += DOC
    t = assemble_file(hdr, [(NAME + '_kernel', 256, 256, 163840)], ks)
    return t if aslist else t.replace(f'@launch kernel={NAME}_kernel ', '@launch ')

if __name__ == '__main__':
    import sys
    kw = eval(sys.argv[2]) if len(sys.argv) > 2 else dict()
    st = (True if sys.argv[3] == '1' else 2) if len(sys.argv) > 3 else False
    t = build(st, kw, True, aslist=(st is True))
    open(sys.argv[1] if len(sys.argv) > 1 else f'cdna_kernels/{NAME}.s', 'w').write(t)
    print(len(t))
```

```python
from asmlib import *
from layout import *
import math
import chain2 as C
from work import *

S_DBG = 44; S_SLOT = 36; S_TK = 37; S_SPIN = 38; S_PF = 39; S_FO = 40; S_N = 41; S_X = 42; S_SO = 43; S_SV = 46; S_PD = 47; S_LOC = 50; S_DIE = 91
L, L16 = 1, 2
VZ = 10; VF = 11
SPIN_MAX = 0x60000

class Mega:
    def __init__(self, stamps=False, chain_kw={}):
        self.a = Asm(); self.stamps = stamps; self.chain_kw = chain_kw
        self.end = 'Lm_end'; self.TO = 128 if stamps == 2 else 0
        self.tbsleep = chain_kw.pop('tbsleep', 8); self.wsleep = chain_kw.pop('wsleep', 1); self.wrd = chain_kw.pop('wrd', 0); self.ahead = chain_kw.pop('ahead', 0); self.fake = chain_kw.pop('fake', None); self.ct = chain_kw.pop('ct', 0); self.loc = chain_kw.pop('loc', 0); self.lazy = chain_kw.pop('lazy', 0); C.ROT[0] = chain_kw.pop('rot', 0); C.WF[0] = chain_kw.pop('wf', ''); self.attup = chain_kw.pop('attup', 8); self.die = chain_kw.pop('die', 3); self.palag = chain_kw.pop('palag', 3); self.pasplit = chain_kw.pop('pasplit', 48); self.qdef = chain_kw.pop('qdef', 0); self.one = chain_kw.pop('one', 1); self.pfb = chain_kw.pop('pfb', 2); self.kvpos = chain_kw.pop('kvpos', 20); self.perm = chain_kw.pop('perm', 0x65241370)
    def stamp(self, k, hs=None):
        if not self.stamps: return
        a = self.a; l = a.newlabel('Lst')
        if self.stamps == 2:
            kk = self.dmap.get((self.role, k))
            if kk is None: return
            a(f's_cmp_lg_u32 s{S_W}, 0'); a(f's_cbranch_scc1 {l}')
            a('s_memrealtime s[96:97]'); a(f's_load_dwordx2 s[100:101], s[0:1], {KA_DBG}'); a('s_waitcnt lgkmcnt(0)'); a('s_sub_u32 s96, s96, s99')
            a(f's_mov_b32 s98, {4*kk}')
            if hs is not None: a(f's_mul_i32 s97, s{hs}, 12'); a('s_add_u32 s98, s98, s97')
            a('s_mov_b64 exec, 1'); a(f'v_mov_b32 v{self.sv}, s96'); a(f'v_mov_b32 v{self.sv+1}, s98')
            a(f'global_atomic_umax v{self.sv+1}, v{self.sv}, s[100:101] sc1'); a('s_waitcnt vmcnt(0)'); a('s_mov_b64 exec, -1')
            a.label(l); return
        a(f's_cmp_lg_u32 s{S_W}, 0'); a(f's_cbranch_scc1 {l}')
        a('s_memrealtime s[96:97]'); a(f's_lshl_b32 s98, s99, 7'); a(f's_add_u32 s98, s98, {STAMP_OFF + 4*k}'); a('s_waitcnt lgkmcnt(0)')
        if hs is not None: a(f's_lshl_b32 s97, s{hs}, 5'); a('s_add_u32 s98, s98, s97')
        a('s_mov_b64 exec, 1'); a(f'v_writelane_b32 v{self.sv}, s96, 0'); a(f'v_writelane_b32 v{self.sv+1}, s98, 0')
        a(f'v_mov_b32 v{self.sv+1}, s98')
        a(f'global_store_dword v{self.sv+1}, v{self.sv}, s[{S_WS}:{S_WS+1}]'); a('s_waitcnt vmcnt(0)'); a('s_mov_b64 exec, -1')
        a.label(l)
    def mark(self, k, sgpr, val):
        if self.stamps is not True: return
        a = self.a; l = a.newlabel('Lmk')
        a(f's_cmp_lg_u32 s{sgpr}, {val}'); a(f's_cbranch_scc1 {l}')
        a('s_memrealtime s[96:97]'); a('s_waitcnt lgkmcnt(0)'); a(f's_mov_b32 s{70+k}, s96')
        a.label(l)
    def dump_marks(self):
        if self.stamps is not True: return
        a = self.a
        for k in range(16): a(f'v_mov_b32 v{16+k}, s{70+k}')
        a(f's_lshl_b32 s98, s99, 7'); a(f's_add_u32 s98, s98, {STAMP_OFF + 64}'); a('v_mov_b32 v12, s98')
        l = a.newlabel('Lmk'); a(f's_cmp_lg_u32 s{S_W}, 0'); a(f's_cbranch_scc1 {l}')
        for k in range(4): a(f'global_store_dwordx4 v12, {vr(16+4*k,4)}, s[{S_WS}:{S_WS+1}] offset:{16*k}')
        a.label(l)
    def count_wait(self, off, v, fail, st, sp):
        a = self.a; l1 = a.newlabel('Lcw'); l2 = a.newlabel('Lcw')
        a(f's_mov_b32 s{sp}, 0'); a(f'v_mov_b32 v{v+8}, 0')
        a.label(l1)
        for x in range(8): a(f'global_load_dword v{v+x}, v{v+8}, s[{S_DBG}:{S_DBG+1}] offset:{off+16*x} sc1')
        a('s_waitcnt vmcnt(0)')
        a(f'v_add3_u32 v{v+9}, v{v}, v{v+1}, v{v+2}'); a(f'v_add3_u32 v{v+9}, v{v+9}, v{v+3}, v{v+4}'); a(f'v_add3_u32 v{v+9}, v{v+9}, v{v+5}, v{v+6}'); a(f'v_add_u32 v{v+9}, v{v+9}, v{v+7}')
        a(f'v_readfirstlane_b32 s{st}, v{v+9}'); a(f's_cmp_ge_u32 s{st}, 256'); a(f's_cbranch_scc1 {l2}')
        a('s_sleep 4'); a(f's_add_u32 s{sp}, s{sp}, 1'); a(f's_cmp_lt_u32 s{sp}, {SPIN_MAX}'); a(f's_cbranch_scc1 {l1}')
        a(f's_branch {fail}')
        a.label(l2)
    def code_touch(self, v=VZ, sp=48, sh=6):
        if not self.ct: return
        a = self.a
        a(f's_getpc_b64 s[{sp}:{sp+1}]'); a(f's_lshl_b32 s{S_T}, s{S_W}, {6+sh}'); a(f'v_lshl_add_u32 v{v}, v{L}, {sh}, s{S_T}')
        a(f'global_load_dword v{v+1}, v{v}, s[{sp}:{sp+1}]')
    def report(self, v=VZ, st=S_T):
        a = self.a; l = a.newlabel('Lrp')
        a(f's_cmp_lg_u32 s{S_W}, 1'); a(f's_cbranch_scc1 {l}')
        a(f's_lshl_b32 s{st}, s{S_DIE}, 4'); a(f'v_mov_b32 v{v}, s{st}'); a(f'v_mov_b32 v{v+1}, 1')
        a('s_mov_b64 exec, 1'); a(f'global_atomic_add v{v}, v{v+1}, s[{S_DBG}:{S_DBG+1}] offset:132 sc1'); a('s_mov_b64 exec, -1')
        a.label(l)
    def local_check(self):
        a = self.a
        x = [i for i in range(8) if (self.perm >> (4*i)) & 7 == 7][0]
        self.count_wait(self.TO, 12, self.end, S_T, S_SPIN)
        a(f'v_readfirstlane_b32 s{S_T}, v{12+x}'); a(f's_cmp_ge_u32 s{S_T}, 32'); a(f's_cselect_b32 s{S_LOC}, {0 if (self.chain_kw.get("force_slow") or not self.loc) else 1}, 0')
    def dual(self, emit):
        a = self.a; l1 = a.newlabel('Ld'); l2 = a.newlabel('Ld')
        a(f's_cmp_eq_u32 s{S_LOC}, 1'); a(f's_cbranch_scc1 {l1}')
        emit('sc1'); a(f's_branch {l2}')
        a.label(l1); emit(''); a.label(l2)
    def flags_ready(self): self.count_wait(132, 12, self.end, S_T, S_SPIN)
    def flag_off(self, base, idx_sgpr, sh=2):
        self.a(f's_lshl_b32 s{S_FO}, s{idx_sgpr}, {sh}'); self.a(f's_add_u32 s{S_FO}, s{S_FO}, {base}')
    def flag_issue(self, n):
        a = self.a
        a(f'v_min_u32 v{VZ}, {n-1}, v{L}'); a(f'v_lshl_add_u32 v{VZ}, v{VZ}, 8, s{S_FO}'); a(f'global_load_dword v{VF}, v{VZ}, s[{S_WS}:{S_WS+1}] sc1')
    def wait(self, n, sleep=None, mask=None, sh=8, thr=None, keep=None, lazy=None, extra=None):
        a = self.a; l1 = a.newlabel('Lw'); l2 = a.newlabel('Lw')
        a(f's_mov_b32 s{S_SPIN}, 0')
        a(f'v_min_u32 v{VZ}, {n-1}, v{L}'); a(f'v_lshl_add_u32 v{VZ}, v{VZ}, {sh}, s{S_FO}')
        if extra is not None:
            a(f's_lshl_b32 s{S_X}, s{extra}, {sh}'); a(f's_add_u32 s{S_X}, s{S_X}, s{S_FO}'); a(f's_add_u32 s{S_X}, s{S_X}, 16'); a(f'v_writelane_b32 v{VZ}, s{S_X}, 63')
        a.label(l1)
        a(f'global_load_dword v{VF}, v{VZ}, s[{S_WS}:{S_WS+1}] sc1'); a('s_waitcnt vmcnt(0)')
        a(f'v_cmp_eq_u32 vcc, 0, v{VF}' if thr is None else f'v_cmp_gt_u32 vcc, {thr}, v{VF}')
        if keep: a('s_cmp_eq_u64 vcc, 0'); a(f's_cselect_b32 s{keep}, 1, 0')
        if mask is None: a(f's_cbranch_vccz {l2}')
        else: a(f's_and_b64 vcc, vcc, s[{mask}:{mask+1}]'); a(f's_cbranch_scc0 {l2}')
        a(f's_sleep {sleep or self.wsleep}')
        if lazy is not None and self.lazy:
            l3 = a.newlabel('Lw'); a(f's_cmp_ge_u32 s{lazy}, 60'); a(f's_cbranch_scc1 {l3}'); a(f's_sleep {self.lazy}'); a.label(l3)
        a(f's_add_u32 s{S_SPIN}, s{S_SPIN}, 1'); a(f's_cmp_lt_u32 s{S_SPIN}, {SPIN_MAX}'); a(f's_cbranch_scc1 {l1}')
        a(f's_branch {self.end}')
        a.label(l2)
    def set_word(self, base, line_sgpr, word_sgpr, s1=2, s2=8):
        a = self.a
        a(f's_lshl_b32 s{S_SO}, s{line_sgpr}, {s1}'); a(f's_lshl_b32 s{S_X}, s{word_sgpr}, {s2}'); a(f's_add_u32 s{S_SO}, s{S_SO}, s{S_X}'); a(f's_add_u32 s{S_SO}, s{S_SO}, {base}')
    def wsignal(self, val=None, loc=False):
        a = self.a
        a(f'v_mov_b32 v{VZ}, s{S_SO}'); a(f'v_mov_b32 v{VF}, {"s%d" % val if val else "1"}')
        st = lambda f: a(f'global_store_dword v{VZ}, v{VF}, s[{S_WS}:{S_WS+1}] {f}')
        a('s_mov_b64 exec, 1')
        if loc: self.dual(st)
        else: st('sc1')
        a('s_mov_b64 exec, -1')
    def signal_wg(self, loc=False):
        a = self.a; l = a.newlabel('Ls')
        a('s_waitcnt vmcnt(0)'); a('s_barrier'); a(f's_cmp_lg_u32 s{S_W}, 0'); a(f's_cbranch_scc1 {l}')
        self.wsignal(loc=loc); a.label(l)

    def stream(self, ngr, xsrc, inflag, nin, tiles, epilogue, nst, outflag, store, mk=None, pre=None):
        a = self.a; xa = 9; XR = 12
        lp = a.newlabel('Lg_loop'); have = a.newlabel('Lg_have'); go = a.newlabel('Lg_go'); fetch = a.newlabel('Lg_fetch'); done = a.newlabel('Lg_done')
        a(f's_lshl_b32 s{S_XO}, s{S_B}, 15'); a(f's_add_u32 s{S_XO}, s{S_XO}, {xsrc}'); a(f's_mov_b32 s{S_BUF}, {128*1024}')
        got = a.newlabel('Lg_got')
        a(f's_mov_b32 s{S_PD}, 0')
        if self.one:
            l = a.newlabel('Lg_o'); a(f's_cmp_lg_u32 s{S_W}, 0'); a(f's_cbranch_scc1 {l}')
            self.flag_off(inflag, S_B); self.wait(nin); a.label(l); a('s_barrier'); a(f's_branch {got}')
        else: a('s_barrier')
        a.label(fetch)
        a(f's_mov_b32 s{S_PD}, 0')
        if inflag is not None:
            self.flag_off(inflag, S_B); self.wait(nin)
        a.label(got)
        if mk: self.mark(mk[0], S_B, mk[1])
        dma_x(a, L16, S_XO, S_BUF, 'sc1')
        a('s_waitcnt vmcnt(0)')
        a.label(go)
        a('s_barrier')
        if mk: self.mark(mk[0]+1, S_B, mk[1])
        if pre: pre()
        a(f'v_add_u32 v{xa}, s{S_BUF}, v{L16}')
        a(f's_add_u32 s{S_TK}, s{S_B}, {ngr}'); a(f's_xor_b32 s{S_BUF}, s{S_BUF}, {128*1024}'); a(f's_add_u32 s{S_XO}, s{S_XO}, {ngr*32768}')
        if inflag is not None:
            a(f's_min_u32 s{S_T}, s{S_TK}, 63'); self.flag_off(inflag, S_T); self.flag_issue(nin)
        def pref():
            np_ = a.newlabel('Lg_np')
            a('s_waitcnt vmcnt(0)')
            a(f'v_cmp_eq_u32 s[{S_K0}:{S_K0+1}], 0, v{VF}')
            a(f's_cmp_eq_u32 s{S_PD}, 0'); a(f's_cbranch_scc1 {np_}')
            self.wsignal(S_SV if store else None)
            a.label(np_)
        def pref2():
            sk = a.newlabel('Lg_sk')
            a(f's_mov_b32 s{S_PF}, 0')
            a(f's_cmp_ge_u32 s{S_TK}, 64'); a(f's_cbranch_scc1 {sk}')
            a(f's_cmp_lg_u64 s[{S_K0}:{S_K0+1}], 0'); a(f's_cbranch_scc1 {sk}')
            dma_x(a, L16, S_XO, S_BUF, 'sc1'); a(f's_mov_b32 s{S_PF}, 1')
            a.label(sk)
        gemm_core(a, xa, XR, tiles, {30: pref})
        epilogue(pref2)
        if mk: self.mark(mk[0]+2, S_B, mk[1])
        outflag()
        add64(a, S_OUT, S_OUT, ngr*32768)
        a(f's_mov_b32 s{S_B}, s{S_TK}')
        a(f's_cmp_eq_u32 s{S_PF}, 0'); a(f's_cbranch_scc1 {have}')
        first = a.newlabel('Lg_first')
        a(f's_cmp_lt_u32 s{S_B}, {2*ngr}'); a(f's_cbranch_scc1 {first}')
        a(f's_mov_b32 s{S_PD}, 1'); a(f's_waitcnt vmcnt({nst})'); a(f's_branch {go}')
        a.label(first)
        a('s_waitcnt vmcnt(0)'); self.wsignal(S_SV if store else None)
        if mk: self.mark(mk[0]+3, S_B, mk[1]+ngr)
        a(f's_mov_b32 s{S_PD}, 0'); a(f's_branch {go}')
        a.label(have)
        a('s_waitcnt vmcnt(0)'); self.wsignal(S_SV if store else None)
        if mk: self.mark(mk[0]+3, S_B, mk[1]+ngr)
        a(f's_cmp_lt_u32 s{S_B}, 64'); a(f's_cbranch_scc1 {fetch}')
        a('s_barrier')

    def proj_weights(self, isB, share=None, early=None, sel=(0, 1, 2), first=None):
        a = self.a
        a(f's_lshl_b32 s{S_OFF}, s{S_A}, 8')
        if isB: mats = [(KA_WK, 4*MB, 0, 'a', 128), (KA_WV, 4*MB, 0, 'v', 128), (KA_WQ, 4*MB, 0, 'a', 0)]; stride = 8192
        else: mats = [(KA_WQKV, 1536*1024, 1024, 'a', 128), (KA_WQKV, 1536*1024, 2048, 'v', 128), (KA_WQKV, 1536*1024, 0, 'a', 0)]; stride = 3072
        load_wslices(a, [mats[i] for i in sel], stride, L, 3, 4, 5, share, early, first)
    def proj_run(self, half, isB, ngr, nowait=False, mode='kvq'):
        a = self.a; H = W.H[half]
        if not nowait: self.code_touch()
        t0, t1, vq, vk, vv = 3, 4, 6, 7, 8; ACC = 28
        ro = (HB_Q, HB_K, HB_V) if isB else (0, H.KA - H.QA, H.VA - H.QA)
        a(f's_lshl_b32 s{S_T}, s{S_W}, 11')
        a(f's_add_u32 s{S_T2}, s{S_T}, {ro[0]}'); a(f'v_add_u32 v{vq}, s{S_T2}, v{L16}')
        a(f's_add_u32 s{S_T2}, s{S_T}, {ro[1]}'); a(f'v_add_u32 v{vk}, s{S_T2}, v{L16}')
        pi_of(a, t0, L, t1); vpos16(a, vv, t0, L, t1)
        a(f's_add_u32 s{S_T2}, s{S_T}, {ro[2]}'); a(f'v_add_u32 v{vv}, s{S_T2}, v{vv}')
        a(f's_lshl_b32 s{S_T}, s{S_A}, {21 if isB else 13}'); a(f's_lshl_b32 s{S_T2}, s{S_B}, 15'); a(f's_add_u32 s{S_T}, s{S_T}, s{S_T2}')
        a(f's_add_u32 s{S_T}, s{S_T}, {H.HB if isB else H.QA}'); add64(a, S_OUT, S_WS, f's{S_T}')
        a(f's_mov_b32 s{S_M}, {f2u(0.25*math.log2(math.e)):#x}')
        xa = 9; XR = 12; inflag = FL(half, 'XNB' if isB else 'XNA'); mk = (0, 0 if isB else 63) if half == 1 else ((8, 0) if isB else None)
        go = a.newlabel('Lp_go'); fetch = a.newlabel('Lp_fetch'); have = a.newlabel('Lp_have')
        a(f's_lshl_b32 s{S_XO}, s{S_B}, 15'); a(f's_add_u32 s{S_XO}, s{S_XO}, {H.XNB if isB else H.XNA}'); a(f's_mov_b32 s{S_BUF}, {64*1024 if (isB and self.qdef) else 128*1024}')
        a(f's_mov_b32 s{S_PD}, 0')
        a('s_barrier')
        if nowait: a(f's_branch {go}')
        got = a.newlabel('Lp_got')
        if isB and self.one:
            l = a.newlabel('Lp_o'); a(f's_cmp_lg_u32 s{S_W}, 0'); a(f's_cbranch_scc1 {l}')
            self.flag_off(inflag, S_B); self.wait(16); a.label(l); a('s_barrier'); a(f's_branch {got}')
        a.label(fetch)
        self.flag_off(inflag, S_B); self.wait(16 if isB else 8, lazy=None if isB else S_B)
        a.label(got)
        if mk: self.mark(mk[0], S_B, mk[1])
        dma_x(a, L16, S_XO, S_BUF, 'sc1')
        a('s_waitcnt vmcnt(0)')
        a.label(go)
        a('s_barrier')
        if mk: self.mark(mk[0]+1, S_B, mk[1])
        a(f'v_add_u32 v{xa}, s{S_BUF}, v{L16}')
        a(f's_add_u32 s{S_TK}, s{S_B}, {ngr}'); a(f's_xor_b32 s{S_BUF}, s{S_BUF}, {128*1024}'); a(f's_and_b32 s{S_BUF}, s{S_BUF}, {128*1024}'); a(f's_add_u32 s{S_XO}, s{S_XO}, {ngr*32768}')
        if not nowait: a(f's_min_u32 s{S_T}, s{S_TK}, 63'); self.flag_off(inflag, S_T); self.flag_issue(16 if isB else 8)
        def word():
            if isB:
                a(f's_and_b32 s{S_T}, s{S_B}, 1'); a(f's_lshl_b32 s{S_T}, s{S_T}, 2'); a(f's_add_u32 s{S_T}, s{S_T}, s{S_W}')
                self.set_word(FL(half, "HEAD"), S_A, S_T, 8, 5)
            else:
                a(f's_lshl_b32 s{S_T}, s{S_A}, 2'); a(f's_add_u32 s{S_T}, s{S_T}, s{S_W}'); self.set_word(FL(half, "QKVA"), S_T, S_B, 11, 5)
        def late():
            l = a.newlabel('Lp_q'); a(f's_cmp_eq_u32 s{S_PD}, 0'); a(f's_cbranch_scc1 {l}')
            self.wsignal(); a(f's_mov_b32 s{S_PD}, 0'); a.label(l)
        def pref():
            sk = a.newlabel('Lp_sk')
            a('s_waitcnt vmcnt(0)'); a(f'v_cmp_eq_u32 vcc, 0, v{VF}')
            if not isB: late()
            a(f's_mov_b32 s{S_PF}, 0')
            a(f's_cmp_ge_u32 s{S_TK}, 64'); a(f's_cbranch_scc1 {sk}')
            if not nowait: a(f's_cbranch_vccnz {sk}')
            dma_x(a, L16, S_XO, S_BUF, 'sc1'); a(f's_mov_b32 s{S_PF}, 1')
            a.label(sk)
        def half_store(acc, ad, j):
            for i in range(4): a(f'v_cvt_pk_bf16_f32 v{acc+8*j+i}, v{acc+8*j+2*i}, v{acc+8*j+2*i+1}')
            a(f'global_store_dwordx4 v{ad}, {vr(acc+8*j,4)}, s[{S_OUT}:{S_OUT+1}] offset:{1024*j} sc1')
        def kvsig():
            if mk: self.mark(mk[0]+2, S_B, mk[1])
            word(); a('s_waitcnt vmcnt(0)'); self.wsignal(S_TK if isB else None)
            if not isB: a('s_mov_b64 exec, 1'); a(f'global_store_dword v{VZ}, v{VF}, s[{S_WS}:{S_WS+1}] offset:8 sc1'); a('s_mov_b64 exec, -1')
            if mk: self.mark(mk[0]+3, S_B, mk[1])
        kvs = [lambda: half_store(ACC+16, vk, 0), lambda: half_store(ACC+16, vk, 1), lambda: half_store(ACC+32, vv, 0), lambda: half_store(ACC+32, vv, 1)]
        if len(mode) > 1: gemm_core(a, xa, XR, [(ACC+16, 'a', 128, False), (ACC+32, 'v', 128, True)], {18: pref})
        tail = a.newlabel('Lp_tail')
        if isB and self.qdef:
            l = a.newlabel('Lp_n'); a(f's_cmp_ge_u32 s{S_B}, {ngr}'); a(f's_cbranch_scc1 {l}')
            for f in kvs: f()
            kvsig(); a(f's_branch {tail}')
            a.label(l)
        if mode == 'kvq': gemm_core(a, xa, XR, [(ACC, 'a', 0, False)], {0: kvs[0], 1: kvs[1], 2: kvs[2], 3: kvs[3], self.kvpos: kvsig})
        if len(mode) == 1:
            def p0():
                sk = a.newlabel('Lp_sk'); a(f's_mov_b32 s{S_PF}, 0'); a(f's_cmp_ge_u32 s{S_TK}, 64'); a(f's_cbranch_scc1 {sk}')
                dma_x(a, L16, S_XO, S_BUF, 'sc1'); a(f's_mov_b32 s{S_PF}, 1'); a.label(sk)
            gemm_core(a, xa, XR, [{'q': (ACC, 'a', 0, False), 'k': (ACC, 'a', 128, False), 'v': (ACC, 'v', 128, True)}[mode]], {0: p0, 30: lambda: (a('s_waitcnt vmcnt(0)'), late())})
        if mode == 'kv':
            for f in kvs: f()
        elif mode in 'kv': pack_store(a, ACC, vk if mode == 'k' else vv, S_OUT, 'sc1')
        else: pack_store(a, ACC, vq, S_OUT, 'sc1', scale=None if isB else S_M)
        if isB and self.qdef:
            a(f's_cmp_ge_u32 s{S_B}, {2*ngr}'); a(f's_cbranch_scc1 {tail}')
            a(f'v_add_u32 v{xa}, {64*1024}, v{L16}'); a(f's_sub_u32 s{S_IN}, s{S_OUT}, {ngr*32768}'); a(f's_subb_u32 s{S_IN+1}, s{S_OUT+1}, 0')
            gemm_core(a, xa, XR, [(ACC, 'a', 0, False)]); pack_store(a, ACC, vq, S_IN, 'sc1')
        a.label(tail)
        if not isB:
            if mode != 'kvq': word()
            if mode == 'v': a(f's_add_u32 s{S_SO}, s{S_SO}, 8')
            if 'q' in mode: a(f's_add_u32 s{S_SO}, s{S_SO}, 16')
        add64(a, S_OUT, S_OUT, ngr*32768)
        a(f's_mov_b32 s{S_B}, s{S_TK}'); a(f's_mov_b32 s{S_PD}, 1')
        if mode == 'kv': a('s_waitcnt vmcnt(4)')
        a(f's_cmp_lg_u32 s{S_PF}, 0'); a(f's_cbranch_scc1 {go}')
        if not isB: a('s_waitcnt vmcnt(0)'); late()
        a(f's_cmp_lt_u32 s{S_B}, 64'); a(f's_cbranch_scc1 {fetch}')
        if isB:
            a('s_waitcnt vmcnt(0)'); a(f's_add_u32 s{S_SV}, s{S_B}, 4'); self.wsignal(S_SV)
        a('s_barrier')
    def woa_run(self, half, ngr):
        a = self.a; H = W.H[half]
        self.code_touch()
        t0, t1, sm, vo, vx, vs = 3, 4, 5, 6, 7, 8; ACC = 28; X = 44; G = 52; SP = 68; mu = 70
        a(f's_lshl_b32 s{S_T}, s{S_W}, 11'); a(f's_lshl_b32 s{S_T2}, s{S_A}, 13'); a(f's_add_u32 s{S_T}, s{S_T}, s{S_T2}'); a(f'v_add_u32 v{vo}, s{S_T}, v{L16}')
        if half == 0:
            a(f's_load_dwordx2 s[{S_P}:{S_P+1}], s[0:1], {KA_X}')
            a(f'v_and_b32 v{t0}, 31, v{L}'); a(f'v_lshlrev_b32 v{vx}, 10, v{t0}'); a(f'v_lshrrev_b32 v{t0}, 5, v{L}'); a(f'v_lshl_add_u32 v{vx}, v{t0}, 4, v{vx}')
            a(f's_lshr_b32 s{S_T}, s{S_T}, 5'); a(f'v_add_u32 v{vx}, s{S_T}, v{vx}'); a('s_waitcnt lgkmcnt(0)')
        else:
            add64(a, S_P, S_WS, W.H[0].X2); a(f'v_mov_b32 v{vx}, v{vo}')
        a(f's_lshl_b32 s{S_T2}, s{S_B}, 15'); add64(a, S_P, S_P, f's{S_T2}')
        a(f's_add_u32 s{S_T}, s{S_T2}, {H.X1}'); add64(a, S_OUT, S_WS, f's{S_T}')
        a(f'v_and_b32 v{t0}, 31, v{L}'); a(f'v_lshlrev_b32 v{vs}, 3, v{t0}'); a(f'v_lshrrev_b32 v{t0}, 5, v{L}'); a(f'v_lshl_add_u32 v{vs}, v{t0}, 11, v{vs}')
        a(f's_mov_b32 s{S_M}, 0xffff0000')
        def pre():
            for j in range(2): a(f'global_load_dwordx4 {vr(X+4*j,4)}, v{vx}, s[{S_P}:{S_P+1}] offset:{(32 if half == 0 else 1024)*j} {"" if half == 0 else "sc1"}')
            add64(a, S_P, S_P, ngr*32768)
            a(f's_lshl_b32 s{S_T}, s{S_B}, 12'); a(f's_add_u32 s{S_T}, s{S_T}, {W.ST + half*262144}'); add64(a, S_IN, S_WS, f's{S_T}')
            l = a.newlabel('Lwt'); a(f's_cmp_lg_u32 s{S_LOC}, 1'); a(f's_cbranch_scc1 {l}')
            a(f'v_lshlrev_b32 v{t0}, 6, v{L}'); a(f'global_load_dword v{t1}, v{t0}, s[{S_IN}:{S_IN+1}] sc1'); a.label(l)
        def rbf(r): a(f'v_cvt_pk_bf16_f32 v{r}, v{r}, v{r}'); a(f'v_and_b32 v{r}, s{S_M}, v{r}')
        def halves(regs):
            for x, t in zip(regs, (t0, t1)): a(f'v_mov_b32 v{t}, v{x}')
            for x, t in zip(regs, (t0, t1)): a(f'v_permlane32_swap_b32 v{x}, v{t}')
            for x, t in zip(regs, (t0, t1)): a(f'v_add_f32 v{x}, v{x}, v{t}')
        def epi(pref2):
            a(f's_lshl_b32 s{S_T}, s{S_A}, 2'); a(f's_add_u32 s{S_T}, s{S_T}, s{S_W}'); a(f's_lshl_b32 s{S_T2}, s{S_T}, 8')
            self.set_word(FL(half, "XNB"), S_B, S_T)
            for d in range(8):
                e = ACC+2*d
                a(f'v_cvt_pk_bf16_f32 v{t1}, v{e}, v{e+1}'); a(f'v_lshlrev_b32 v{e}, 16, v{X+d}'); a(f'v_and_b32 v{e+1}, s{S_M}, v{X+d}')
                a(f'v_lshlrev_b32 v{t0}, 16, v{t1}'); a(f'v_and_b32 v{t1}, s{S_M}, v{t1}')
                a(f'v_add_f32 v{e}, v{e}, v{t0}'); a(f'v_add_f32 v{e+1}, v{e+1}, v{t1}')
                a(f'v_cvt_pk_bf16_f32 v{X+d}, v{e}, v{e+1}')
                a(f'v_lshlrev_b32 v{e}, 16, v{X+d}'); a(f'v_and_b32 v{e+1}, s{S_M}, v{X+d}')
                if d == 0: a(f'v_add_f32 v{SP}, v{e}, v{e+1}'); a(f'v_mul_f32 v{SP+1}, v{e}, v{e}')
                else: a(f'v_add_f32 v{SP}, v{SP}, v{e}'); a(f'v_add_f32 v{SP}, v{SP}, v{e+1}'); a(f'v_fmac_f32 v{SP+1}, v{e}, v{e}')
                a(f'v_fmac_f32 v{SP+1}, v{e+1}, v{e+1}')
            halves((SP, SP+1))
            a(f'v_or_b32 v{SP+1}, 1, v{SP+1}'); a(f'v_add_u32 v{t0}, s{S_T2}, v{vs}')
            a('s_mov_b32 exec_hi, 0'); self.dual(lambda f: a(f'global_store_dwordx2 v{t0}, {vr(SP,2)}, s[{S_IN}:{S_IN+1}] {f}')); a('s_mov_b32 exec_hi, -1')
            a('s_waitcnt vmcnt(0)')
            l1 = a.newlabel('Lwr'); l2 = a.newlabel('Lwr')
            a(f's_mov_b32 s{S_SPIN}, 0')
            a.label(l1)
            for p in range(8): a(f'global_load_dwordx2 {vr(G+2*p,2)}, v{vs}, s[{S_IN}:{S_IN+1}] offset:{256*p} sc1')
            a('s_waitcnt vmcnt(0)')
            a(f'v_bitop3_b32 v{t0}, v{G+1}, v{G+3}, v{G+5} bitop3:0x80'); a(f'v_bitop3_b32 v{t1}, v{G+7}, v{G+9}, v{G+11} bitop3:0x80')
            a(f'v_bitop3_b32 v{t0}, v{t0}, v{G+13}, v{G+15} bitop3:0x80'); a(f'v_bitop3_b32 v{t0}, v{t0}, v{t1}, 1 bitop3:0x80')
            a(f'v_cmp_eq_u32 vcc, 0, v{t0}'); a(f's_cbranch_vccz {l2}')
            a(f's_add_u32 s{S_SPIN}, s{S_SPIN}, 1'); a(f's_cmp_lt_u32 s{S_SPIN}, {SPIN_MAX}'); a(f's_cbranch_scc1 {l1}')
            a(f's_branch {self.end}')
            a.label(l2)
            pref2()
            for j in range(2): a(f'global_store_dwordx4 v{vo}, {vr(X+4*j,4)}, s[{S_OUT}:{S_OUT+1}] offset:{1024*j} sc1')
            for st in (8, 4, 2):
                for i in range(0, st, 2): a(f'v_pk_add_f32 {vr(G+i,2)}, {vr(G+i,2)}, {vr(G+i+st,2)}')
            halves((G, G+1))
            a(f'v_mul_f32 v{mu}, {f2u(1/512):#x}, v{G}'); a(f'v_mul_f32 v{sm}, {f2u(1/512):#x}, v{G+1}')
            a(f'v_fma_f32 v{sm}, -v{mu}, v{mu}, v{sm}'); a(f'v_max_f32 v{sm}, 0, v{sm}')
            rbf(sm); a(f'v_add_f32 v{sm}, {f2u(1e-5):#x}, v{sm}'); rbf(sm)
            a(f'v_sqrt_f32 v{sm}, v{sm}'); rbf(sm); a(f'v_rcp_f32 v{sm}, v{sm}'); rbf(mu)
            add64(a, S_IN, S_OUT, H.XNB - H.X1) if H.XNB > H.X1 else (a(f's_sub_u32 s{S_IN}, s{S_OUT}, {H.X1 - H.XNB}'), a(f's_subb_u32 s{S_IN+1}, s{S_OUT+1}, 0'))
            for d in range(8):
                e = ACC+2*d
                a(f'v_sub_f32 v{t0}, v{e}, v{mu}'); a(f'v_sub_f32 v{t1}, v{e+1}, v{mu}'); a(f'v_cvt_pk_bf16_f32 v{t1}, v{t0}, v{t1}')
                a(f'v_lshlrev_b32 v{t0}, 16, v{t1}'); a(f'v_and_b32 v{t1}, s{S_M}, v{t1}')
                a(f'v_mul_f32 v{t0}, v{t0}, v{sm}'); a(f'v_mul_f32 v{t1}, v{t1}, v{sm}'); a(f'v_cvt_pk_bf16_f32 v{G+d}, v{t0}, v{t1}')
                if d % 4 == 3: a(f'global_store_dwordx4 v{vo}, {vr(G+d-3,4)}, s[{S_IN}:{S_IN+1}] offset:{1024*(d//4)} sc1')
        self.stream(ngr, H.OA, FL(half, 'OA'), 32, [(ACC, 'v', 128, False)], epi, 4, lambda: None, False, mk=(0, 0) if half == 1 else (8, 0), pre=pre)
    def rb_run(self, half, ngr):
        a = self.a; H = W.H[half]
        mk = (4, 63) if half == 0 else None
        def task(nl):
            def ready():
                l = a.newlabel('Lr_o')
                if self.one: a(f's_cmp_lg_u32 s{S_W}, 0'); a(f's_cbranch_scc1 {l}')
                self.flag_off(FL(half, 'PT'), S_A); self.wait(32, lazy=S_A)
                if self.one: a.label(l); a('s_barrier')
                if mk: self.mark(mk[0], S_A, mk[1])
            if half == 0: rb_body(a, 8, H.X1, False, H.PT, 32768, 8*32768, H.X2, False, W.H[1].XNA, 'sc1', 'sc1', ready, nl=nl)
            else: rb_body(a, 8, H.X1, False, H.PT, 32768, 8*32768, KA_OUT, True, None, 'sc1', 'sc1', ready, nl=nl)
            if half == 0:
                if mk: self.mark(mk[0]+2, S_A, mk[1])
                l = a.newlabel('Ls')
                a('s_waitcnt vmcnt(0)'); a('s_barrier'); a(f's_cmp_ge_u32 s{S_W}, {nl}'); a(f's_cbranch_scc1 {l}')
                a(f's_mul_i32 s{S_T}, s{S_B}, {nl}'); a(f's_add_u32 s{S_T}, s{S_T}, s{S_W}'); self.set_word(FL(1, 'XNA'), S_A, S_T); self.wsignal()
                a.label(l)
                if mk: self.mark(mk[0]+3, S_A, mk[1])
        lp = a.newlabel('Lr_loop'); done = a.newlabel('Lr_done'); a.label(lp)
        task(2)
        a(f's_add_u32 s{S_A}, s{S_A}, {ngr}'); a(f's_cmp_lt_u32 s{S_A}, 63'); a(f's_cbranch_scc1 {lp}')
        a(f's_cmp_gt_u32 s{S_A}, 64'); a(f's_cbranch_scc1 {done}')
        a(f's_lshl_b32 s{S_B}, s{S_B}, 1'); a(f's_sub_u32 s{S_T}, s{S_A}, 63'); a(f's_add_u32 s{S_B}, s{S_B}, s{S_T}'); a(f's_mov_b32 s{S_A}, 63')
        task(1)
        a.label(done)

    def att_run(self, half, npg):
        a = self.a; H = W.H[half]
        self.code_touch()
        t0, t1, t2, ak, av, idx, lw = range(3, 10); mx = 204
        Q = 12; QN = 16; K0 = 20; Cc = 24; O = 40; D = [56, 72, 88]; KF = 104; MG = 168
        pi_of(a, t0, L, t1)
        a(f'v_and_b32 v{t1}, 32, v{L}'); a(f'v_add_u32 v{ak}, v{t0}, v{t1}'); a(f'v_lshlrev_b32 v{ak}, 4, v{ak}')
        a(f'v_and_b32 v{t0}, 15, v{t0}'); a(f's_and_b32 s{S_T}, s{S_A}, 1'); a(f's_lshl_b32 s{S_T}, s{S_T}, 4'); a(f'v_add_u32 v{t0}, s{S_T}, v{t0}')
        vpos16(a, av, t0, L, t1)
        a(f'v_mov_b32 v{idx}, 0xdddd')
        a(f's_mul_i32 s{S_T}, s{S_W}, 3072'); a(f'v_add_u32 v{lw}, s{S_T}, v{L16}')
        a(f's_lshr_b32 s{S_T}, s{S_A}, 1'); self.flag_off(FL(half, 'QKVA'), S_T, 11)
        KM_, QM_ = 52, 54
        fa = 205
        a(f'v_lshl_add_u32 v{fa}, v{L}, 5, s{S_FO}')
        a(f's_mov_b64 s[{KM_}:{KM_+1}], -1'); a(f's_mov_b64 s[{QM_}:{QM_+1}], -1')
        def need(km, qm):
            l1 = a.newlabel('La_n'); l2 = a.newlabel('La_n'); l3 = a.newlabel('La_n')
            a(f's_mov_b32 s{S_SPIN}, 0')
            a.label(l3)
            tests = [(m, k) for m, k in ((km, KM_), (qm, QM_)) if m is not None]
            for i, (m, k) in enumerate(tests):
                a(f's_and_b64 vcc, s[{m}:{m+1}], s[{k}:{k+1}]'); a(f's_cbranch_scc0 {l2}' if i == len(tests)-1 else f's_cbranch_scc1 {l1}')
            a.label(l1)
            ls = a.newlabel('La_n'); a(f's_cmp_eq_u32 s{S_SPIN}, 0'); a(f's_cbranch_scc1 {ls}'); a(f's_sleep {self.wsleep}'); a.label(ls)
            a(f'global_load_dword v{VZ}, v{fa}, s[{S_WS}:{S_WS+1}] sc1'); a(f'global_load_dword v{VF}, v{fa}, s[{S_WS}:{S_WS+1}] offset:16 sc1')
            a(f'global_load_dword v{fa+1}, v{fa}, s[{S_WS}:{S_WS+1}] offset:8 sc1')
            a('s_waitcnt vmcnt(0)')
            a(f'v_and_b32 v{VZ}, v{VZ}, v{fa+1}')
            a(f'v_cmp_eq_u32 s[{KM_}:{KM_+1}], 0, v{VZ}'); a(f'v_cmp_eq_u32 s[{QM_}:{QM_+1}], 0, v{VF}')
            a(f's_add_u32 s{S_SPIN}, s{S_SPIN}, 1'); a(f's_cmp_lt_u32 s{S_SPIN}, {SPIN_MAX}'); a(f's_cbranch_scc1 {l3}')
            a(f's_branch {self.end}')
            a.label(l2)
        def qwait(blk): a(f's_lshl_b64 s[{S_P}:{S_P+1}], 1, s{blk}'); need(None, S_P)
        a(f's_mov_b32 s56, -1'); a(f's_mov_b32 s57, {0x00ffffff if half else 0xffffffff:#x}'); a(f's_lshl_b64 s[{S_P}:{S_P+1}], 1, s{S_B}')
        if half: need(56, S_P)
        else:
            l = a.newlabel('La_o'); a(f's_cmp_lg_u32 s{S_W}, 0'); a(f's_cbranch_scc1 {l}'); need(56, S_P); a.label(l); a('s_barrier')
        self.stamp(2 + 8*half)
        a(f's_lshl_b32 s{S_T}, s{S_A}, 10'); a(f's_lshl_b32 s{S_T2}, s{S_B}, 15'); a(f's_add_u32 s{S_T2}, s{S_T2}, s{S_T}')
        a(f's_add_u32 s{S_T3}, s{S_T2}, {H.QA}'); add64(a, S_IN, S_WS, f's{S_T3}')
        a(f's_add_u32 s{S_T3}, s{S_T2}, {H.OA}'); add64(a, S_OUT, S_WS, f's{S_T3}')
        a(f'global_load_dwordx4 {vr(QN,4)}, v{L16}, s[{S_IN}:{S_IN+1}] sc1')
        a(f's_add_u32 s{S_K0}, s{S_T}, {H.KA}')
        a(f'buffer_load_dwordx4 {vr(K0,4)}, v{ak}, s[{S_WSRD}:{S_WSRD+3}], s{S_K0} offen sc1')
        a(f's_lshl_b32 s{S_T2}, s{S_W}, 15'); a(f's_add_u32 s{S_K0}, s{S_K0}, s{S_T2}')
        a(f's_lshr_b32 s{S_K1}, s{S_A}, 1'); a(f's_lshl_b32 s{S_K1}, s{S_K1}, 11'); a(f's_add_u32 s{S_K1}, s{S_K1}, s{S_T2}'); a(f's_add_u32 s{S_K1}, s{S_K1}, {H.VA}')
        a(f's_mov_b32 s{S_M}, 0x0000ffff'); a(f's_mov_b32 s{S_M+1}, 0x0000ffff')
        def kv_tile(t):
            a(f's_add_u32 s{S_T}, s{S_K0}, {t*131072}')
            a(f'buffer_load_dwordx4 {vr(KF+4*t,4)}, v{ak}, s[{S_WSRD}:{S_WSRD+3}], s{S_T} offen sc1')
            a(f's_add_u32 s{S_T}, s{S_K1}, {t*131072}')
            a(f's_mov_b64 exec, s[{S_M}:{S_M+1}]')
            for b in range(2): a(f'buffer_load_dwordx4 {vr(8*t+4*b,4,"a")}, v{av}, s[{S_WSRD}:{S_WSRD+3}], s{S_T} offen offset:{1024*b} sc1')
            a('s_mov_b64 exec, -1')
        def late_tile(t):
            if half == 0: return
            l = a.newlabel('La_lt'); a(f's_bitcmp0_b32 s{S_PD}, {t-14}'); a(f's_cbranch_scc1 {l}')
            a(f's_add_u32 s{S_T}, s{S_W}, {4*t}'); a(f's_lshl_b64 s[{S_P}:{S_P+1}], 1, s{S_T}')
            need(S_P, None)
            if t == 15: self.mark(0, S_B, 0)
            kv_tile(t); a('s_waitcnt vmcnt(0)')
            a(f's_bitset0_b32 s{S_PD}, {t-14}')
            a.label(l)
        NT = 14 if half else 16
        a(f's_mov_b32 s{S_PD}, 3')
        if half:
            for t in (14, 15):
                l = a.newlabel('La_et'); a(f's_add_u32 s{S_T}, s{S_W}, {4*t}'); a(f's_bitcmp1_b64 s[{KM_}:{KM_+1}], s{S_T}'); a(f's_cbranch_scc1 {l}')
                kv_tile(t); a(f's_bitset0_b32 s{S_PD}, {t-14}'); a.label(l)
        UP = self.attup
        for t in range(UP): kv_tile(t)
        a(f's_mov_b32 s{S_BUF}, 0'); a(f's_mov_b32 s{S_CNT}, 0'); a(f's_mov_b32 s{S_PF}, 0')
        a('s_barrier')
        lp = a.newlabel('La_loop'); run = a.newlabel('La_run'); slow = a.newlabel('La_slow'); nom = a.newlabel('La_nom'); noq = a.newlabel('La_noq'); out = a.newlabel('La_out')
        def rowmax(src, first):
            if first: a(f'v_max3_f32 v{mx}, v{src}, v{src+1}, v{src+2}'); rest = list(range(3, 16))
            else: rest = list(range(16))
            while len(rest) >= 2:
                a(f'v_max3_f32 v{mx}, v{mx}, v{src+rest[0]}, v{src+rest[1]}'); rest = rest[2:]
            if rest: a(f'v_max_f32 v{mx}, v{mx}, v{src+rest[0]}')
        def halfmax():
            a(f'v_mov_b32 v{t0}, v{mx}'); a(f'v_permlane32_swap_b32 v{mx}, v{t0}'); a(f'v_max_f32 v{mx}, v{mx}, v{t0}')
        def pending():
            l = a.newlabel('La_p'); a(f's_cmp_eq_u32 s{S_PF}, 0'); a(f's_cbranch_scc1 {l}')
            a('s_waitcnt vmcnt(0)'); self.wsignal(); a(f's_mov_b32 s{S_PF}, 0')
            if half: self.mark(3, S_B, 0)
            a.label(l)
        def pv(t, b): a(f'v_smfmac_f32_32x32x32_bf16 {vr(O,16)}, {vr(8*t+4*b,4,"a")}, {vr(D[t%3]+8*b,8)}, v{idx}')
        def nextq():
            noq = a.newlabel('La_noq')
            a(f's_cmp_ge_u32 s{S_TK}, 64'); a(f's_cbranch_scc1 {noq}')
            qwait(S_TK)
            a(f'global_load_dwordx4 {vr(QN,4)}, v{L16}, s[{S_IN}:{S_IN+1}] sc1')
            a.label(noq)
        def block(first):
            for i in range(4): a(f'v_mov_b32 v{Q+i}, v{QN+i}')
            a(f's_add_u32 s{S_TK}, s{S_B}, {npg}'); add64(a, S_IN, S_IN, npg*32768)
            a(mf(D[0], vr(K0,4), vr(Q,4), 0))
            for i in range(16): a(f'v_mov_b32 v{O+i}, 0')
            rowmax(D[0], True); halfmax()
            a(f's_mov_b32 s{S_XO}, 0')
            if not first: a.label(run)
            for i in range(16): a(f'v_sub_f32 v{Cc+i}, 0, v{mx}')
            issued = UP
            if first: a(f's_waitcnt vmcnt({3*(issued-2)})')
            a(mf(D[0], vr(KF,4), vr(Q,4), vr(Cc,16)))
            a(mf(D[1], vr(KF+4,4), vr(Q,4), vr(Cc,16)))
            for t in range(16):
                d = D[t % 3]
                for i in range(16):
                    a(f'v_exp_f32 v{d+i}, v{d+i}')
                    if i == 2 and t > 0: pv(t-1, 1)
                    if first and i == 2 and issued < NT: kv_tile(issued); issued += 1
                    if first and i == 6 and NT <= t + 2 < 16: late_tile(t+2)
                    if first and i == 6 and t + 2 < NT: a(f's_waitcnt vmcnt({3*(issued-1-(t+2))})')
                    if i == 6 and t + 2 < 16: a(mf(D[(t+2)%3], vr(KF+4*(t+2),4), vr(Q,4), vr(Cc,16)))
                    if i == 11: pv(t, 0)
                if t == 5 and not first: pending()
                if t == (NT - 3 if first else 6): nextq()
            pv(15, 1)
        merge = a.newlabel('La_merge')
        a(f's_waitcnt vmcnt({3*UP})')
        self.mark(1 if half else 11, S_B, 0)
        block(True); a(f's_branch {merge}')
        a.label(lp)
        block(False)
        a.label(merge)
        a(f'v_add_u32 v{t1}, s{S_BUF}, v{lw}')
        for j in range(3): a(f'ds_write_b128 v{t1}, {vr(O+4*j,4)} offset:{1024*j}')
        a('s_waitcnt vmcnt(0) lgkmcnt(0)'); a('s_barrier')
        a(f'v_add_u32 v{t1}, s{S_BUF}, v{L16}')
        for w in range(4): a(f'ds_read_b32 v{MG+w}, v{t1} offset:{3072*w+2048}')
        a('s_waitcnt lgkmcnt(0)')
        a(f'v_add_f32 v{MG}, v{MG}, v{MG+1}'); a(f'v_add_f32 v{MG+2}, v{MG+2}, v{MG+3}'); a(f'v_add_f32 v{t2}, v{MG}, v{MG+2}')
        a(f's_xor_b32 s{S_BUF}, s{S_BUF}, 16384')
        a(f'v_cmp_nge_f32 vcc, {f2u(2.0**90):#x}, v{t2}')
        a(f's_cbranch_vccnz {slow}')
        fin = a.newlabel('La_fin'); a.label(fin)
        a(f's_and_b32 s{S_T}, s{S_CNT}, 3'); a(f's_add_u32 s{S_CNT}, s{S_CNT}, 1')
        a(f's_cmp_lg_u32 s{S_T}, s{S_W}'); a(f's_cbranch_scc1 {nom}')
        for w in range(4):
            for j in range(2): a(f'ds_read_b128 {vr(MG+8*w+4*j,4)}, v{t1} offset:{3072*w+1024*j}')
        a(f'v_rcp_f32 v{t2}, v{t2}')
        a('s_waitcnt lgkmcnt(0)')
        for i in range(8):
            a(f'v_add_f32 v{MG+i}, v{MG+i}, v{MG+8+i}'); a(f'v_add_f32 v{MG+16+i}, v{MG+16+i}, v{MG+24+i}')
            a(f'v_add_f32 v{MG+i}, v{MG+i}, v{MG+16+i}'); a(f'v_mul_f32 v{MG+i}, v{MG+i}, v{t2}')
        for i in range(4): a(f'v_cvt_pk_bf16_f32 v{MG+i}, v{MG+2*i}, v{MG+2*i+1}')
        a(f'global_store_dwordx4 v{L16}, {vr(MG,4)}, s[{S_OUT}:{S_OUT+1}] sc1')
        self.set_word(FL(half, 'OA'), S_B, S_A); a(f's_mov_b32 s{S_PF}, 1')
        self.mark(2 if half else 12, S_B, 0)
        a(f's_cmp_ge_u32 s{S_B}, {npg}'); a(f's_cbranch_scc1 {nom}')
        pending()
        a.label(nom)
        add64(a, S_OUT, S_OUT, npg*32768)
        a(f's_mov_b32 s{S_B}, s{S_TK}')
        a(f's_cmp_lt_u32 s{S_B}, 64'); a(f's_cbranch_scc1 {lp}')
        pending()
        a(f's_branch {out}')
        a.label(slow)
        a(f's_cmp_lg_u32 s{S_XO}, 0'); a(f's_cbranch_scc1 {fin}')
        a(f's_mov_b32 s{S_XO}, 1')
        for t in range(16):
            a(mf(D[t%2], vr(KF+4*t,4), vr(Q,4), 0))
            rowmax(D[t%2], t == 0)
        halfmax()
        a(f'ds_write_b32 v{lw}, v{mx} offset:32768'); a('s_waitcnt lgkmcnt(0)'); a('s_barrier')
        for w in range(4): a(f'ds_read_b32 v{MG+w}, v{L16} offset:{32768+3072*w}')
        a('s_waitcnt lgkmcnt(0)')
        a(f'v_max3_f32 v{mx}, v{MG}, v{MG+1}, v{MG+2}'); a(f'v_max_f32 v{mx}, v{mx}, v{MG+3}')
        for i in range(16): a(f'v_mov_b32 v{O+i}, 0')
        a(f's_branch {run}')
        a.label(out)
        a('s_barrier')

    def tb_weights(self):
        a = self.a
        a(f's_lshr_b32 s{S_T}, s{S_A}, 2'); a(f's_lshl_b32 s{S_T}, s{S_T}, 19'); a(f's_and_b32 s{S_T2}, s{S_A}, 3'); a(f's_lshl_b32 s{S_T2}, s{S_T2}, 8')
        a(f's_add_u32 s{S_OFF}, s{S_T}, s{S_T2}')
        load_wslices(a, [(KA_WO, 4*MB, 0, 'a', 128)], 1024, L, 3, 4, 5)
        l = a.newlabel('Lt_nw')
        a(f's_and_b32 s{S_T}, s{S_A}, 3'); a(f's_cmp_ge_u32 s{S_T}, 3'); a(f's_cbranch_scc1 {l}')
        a(f's_add_u32 s{S_T}, s{S_T}, 1'); a(f's_cmp_eq_u32 s{S_T}, 3'); a(f's_cselect_b32 s{S_T}, 0, s{S_T}'); a(f's_lshl_b32 s{S_T}, s{S_T}, 10')
        a(f's_lshr_b32 s{S_T2}, s{S_A}, 3'); a(f's_lshl_b32 s{S_T2}, s{S_T2}, 8'); a(f's_add_u32 s{S_OFF}, s{S_T}, s{S_T2}')
        load_wslices(a, [(KA_WQKV, 1536*1024, 0, 'a', 0)], 3072, L, 3, 4, 5)
        a.label(l)
    def pa_task(self, vo, av):
        a = self.a; H = W.H[1]; XR = 12; ACC = 224; xa = 3; t1 = 4
        lv = a.newlabel('Lq_v'); le = a.newlabel('Lq_e')
        self.flag_off(FL(1, 'XNA'), S_TK); self.wait(8)
        a(f's_lshl_b32 s{S_PF}, s{S_TK}, 15'); a(f's_add_u32 s{S_CNT}, s{S_PF}, {H.XNA}'); a(f's_mov_b32 s{S_BUF}, 32768')
        dma_x(a, L16, S_CNT, S_BUF, 'sc1')
        a(f's_and_b32 s{S_PD}, s{S_A}, 3')
        a(f's_add_u32 s{S_T}, s{S_PD}, 1'); a(f's_cmp_eq_u32 s{S_T}, 3'); a(f's_cselect_b32 s{S_T}, 0, s{S_T}'); a(f's_cselect_b32 s{S_SV}, {f2u(0.25*math.log2(math.e)):#x}, 1.0')
        a(f's_lshl_b32 s{S_T}, s{S_T}, 21'); a(f's_add_u32 s{S_PF}, s{S_PF}, s{S_T}'); a(f's_lshr_b32 s{S_T}, s{S_A}, 3'); a(f's_lshl_b32 s{S_T2}, s{S_T}, 13'); a(f's_add_u32 s{S_PF}, s{S_PF}, s{S_T2}')
        a(f's_add_u32 s{S_PF}, s{S_PF}, {H.QA}'); add64(a, S_IN, S_WS, f's{S_PF}')
        a(f's_lshl_b32 s{S_T}, s{S_T}, 2'); a(f's_add_u32 s{S_T}, s{S_T}, s{S_W}'); self.set_word(FL(1, "QKVA"), S_T, S_TK, 11, 5)
        a(f's_lshl_b32 s{S_T}, s{S_PD}, 3'); a(f's_add_u32 s{S_SO}, s{S_SO}, s{S_T}')
        a(f'v_add_u32 v{xa}, 32768, v{L16}')
        a(f's_lshl_b32 s{S_T}, s{S_W}, 11'); a(f's_sub_u32 s{S_T}, s{S_T}, {HB_V}'); a(f'v_add_u32 v{t1}, s{S_T}, v{av}')
        a('s_waitcnt vmcnt(0)'); a('s_barrier')
        a(f's_cmp_eq_u32 s{S_PD}, 1'); a(f's_cbranch_scc1 {lv}')
        gemm_core(a, xa, XR, [(ACC, 'a', 0, False)]); pack_store(a, ACC, vo, S_IN, 'sc1', scale=S_SV); a(f's_branch {le}')
        a.label(lv)
        gemm_core(a, xa, XR, [(ACC, 'a', 0, True)]); pack_store(a, ACC, t1, S_IN, 'sc1')
        a.label(le)
        a('s_waitcnt vmcnt(0)'); self.wsignal(); a('s_barrier')
    def tb_run(self, half, ngr):
        a = self.a; H = W.H[half]
        t0, t1, akm, av, avm, vo, xw = range(3, 10); mx = 240; FG = 244
        XR = 12; CM = 28; SX = 44; SM = 60; Q = 76; K = 108; KM = 140; V = 172; VM = 204; P = 212; PM = 220; ACC = 224
        OT = Q
        a(f'v_and_b32 v{t0}, 7, v{L}'); a(f'v_lshlrev_b32 v{akm}, 4, v{t0}'); a(f'v_lshrrev_b32 v{t0}, 5, v{L}'); a(f'v_lshl_add_u32 v{akm}, v{t0}, 7, v{akm}')
        a(f'v_add_u32 v{akm}, {HB_KM}, v{akm}')
        pi_of(a, t0, L, t1); vpos16(a, av, t0, L, t1); a(f'v_add_u32 v{av}, {HB_V}, v{av}')
        a(f'v_lshlrev_b32 v{avm}, 2, v{t0}'); a(f'v_lshrrev_b32 v{t1}, 5, v{L}'); a(f'v_lshl_add_u32 v{avm}, v{t1}, 8, v{avm}'); a(f'v_add_u32 v{avm}, {HB_VM}, v{avm}')
        a(f's_lshl_b32 s{S_T}, s{S_W}, 11'); a(f'v_add_u32 v{vo}, s{S_T}, v{L16}')
        a(f's_lshl_b32 s{S_T}, s{S_W}, 13'); a(f'v_add_u32 v{xw}, s{S_T}, v{L16}')
        a(f'v_and_b32 v{t0}, 31, v{L}'); a(f'v_lshrrev_b32 v{t1}, 5, v{L}'); a(f'v_lshlrev_b32 v{t1}, 2, v{t1}'); a(f'v_sub_u32 v{t0}, v{t0}, v{t1}')
        a(f'v_mov_b32 v{t1}, {f2u(-1e30):#x}')
        for i in range(16):
            a(f'v_cmp_le_i32 vcc, {8*(i>>2)+(i&3)}, v{t0}'); a(f'v_cndmask_b32 v{CM+i}, v{t1}, 0, vcc')
        a(f's_and_b32 s{S_T}, s{S_A}, 28'); a(f's_add_u32 s{S_T}, s{S_T}, s{S_W}')
        a(f's_lshl_b32 s{S_K0}, s{S_T}, 8'); a(f's_add_u32 s{S_K0}, s{S_K0}, {FL(half, "HEAD")}')
        a(f's_lshl_b32 s{S_T}, s{S_T}, 21')
        a(f's_lshl_b32 s{S_T2}, s{S_B}, 15'); a(f's_add_u32 s{S_XO}, s{S_T}, s{S_T2}'); a(f's_add_u32 s{S_XO}, s{S_XO}, {H.HB}')
        a(f's_lshl_b32 s{S_T}, s{S_B}, 18'); a(f's_lshl_b32 s{S_T2}, s{S_A}, 13'); a(f's_add_u32 s{S_T}, s{S_T}, s{S_T2}'); a(f's_add_u32 s{S_T}, s{S_T}, {H.PT}')
        add64(a, S_OUT, S_WS, f's{S_T}')
        a(f's_mov_b32 s{S_M}, {f2u(math.log2(math.e)/math.sqrt(128.0)):#x}')
        a(f's_mov_b32 s{S_N}, 0'); a(f's_mov_b32 s{S_K1}, 0')
        def bl(n, dst, va, so, off): a(f'buffer_load_dword{n} {vr(dst, 4 if n else 1)}, v{va}, s[{S_WSRD}:{S_WSRD+3}], s{so} offen offset:{off} sc1')
        def poll(which):
            l1 = a.newlabel('Lt_p'); l2 = a.newlabel('Lt_p'); l3 = a.newlabel('Lt_p')
            a(f's_mov_b32 s{S_SPIN}, 0'); a(f's_branch {l3}')
            a.label(l1)
            if which == S_N:
                a(f'v_mov_b32 v{VZ}, s{S_K0}')
                _ = [a(f'global_load_dword v{FG+i}, v{VZ}, s[{S_WS}:{S_WS+1}] offset:{32*i} sc1') for i in range(8)]; a('s_waitcnt vmcnt(0)')
                a(f'v_min3_u32 v{FG}, v{FG}, v{FG+1}, v{FG+2}'); a(f'v_min3_u32 v{FG}, v{FG}, v{FG+3}, v{FG+4}'); a(f'v_min3_u32 v{FG}, v{FG}, v{FG+5}, v{FG+6}'); a(f'v_min_u32 v{FG}, v{FG}, v{FG+7}')
            else:
                a(f's_add_u32 s{S_X}, s{S_K0}, {FL(half, "CHP") - FL(half, "HEAD")}'); a(f'v_mov_b32 v{VZ}, s{S_X}')
                a(f'global_load_dword v{FG}, v{VZ}, s[{S_WS}:{S_WS+1}] sc1'); a('s_waitcnt vmcnt(0)')
            a(f'v_readfirstlane_b32 s{which}, v{FG}')
            if which == S_N: a(f's_max_u32 s{S_N}, s{S_N}, 4'); a(f's_sub_u32 s{S_N}, s{S_N}, 4')
            a(f's_cmp_gt_u32 s{which}, s{S_B}'); a(f's_cbranch_scc1 {l2}')
            a('s_sleep 1')
            lz = a.newlabel('Lt_z'); a(f's_cmp_eq_u32 s{S_B}, 63'); a(f's_cbranch_scc1 {lz}'); a(f's_sleep {self.tbsleep}'); a.label(lz)
            a(f's_add_u32 s{S_SPIN}, s{S_SPIN}, 1'); a(f's_cmp_ge_u32 s{S_SPIN}, {SPIN_MAX}'); a(f's_cbranch_scc1 {self.end}')
            a.label(l3)
            a(f's_cmp_gt_u32 s{which}, s{S_B}'); a(f's_cbranch_scc0 {l1}')
            a.label(l2)
        lp = a.newlabel('Lt_loop')
        PFX = 58
        def x_loads(d):
            a(f's_add_u32 s{S_X}, s{S_XO}, {d}'); a(f's_add_u32 s{S_T}, s{S_XO}, {d+4096}'); a(f's_add_u32 s{S_T2}, s{S_XO}, {d+HB_Q}'); a(f's_add_u32 s{S_T3}, s{S_XO}, {d+HB_Q+4096}')
            for kb in range(8):
                bl('x4', K+4*kb, L16, S_X if kb < 4 else S_T, (kb%4)*1024)
                bl('x4', Q+4*kb, L16, S_T2 if kb < 4 else S_T3, (kb%4)*1024)
            for f in range(8): bl('x4', V+4*f, av, S_X if f < 4 else S_T, (f%4)*1024)
        a(f's_mov_b32 s{PFX}, 0'); a(f's_and_b32 s{S_TK}, s{S_A}, 4'); a(f's_add_u32 s{S_TK}, s{S_TK}, s{S_B}')
        a.label(lp)
        lh = a.newlabel('Lt_h'); a(f's_cmp_lg_u32 s{PFX}, 0'); a(f's_cbranch_scc1 {lh}')
        poll(S_N); x_loads(0)
        a.label(lh)
        def mem_loads():
            for kb in range(8): bl('x4', KM+4*kb, akm, S_XO, kb*256)
            for t in range(4):
                for e in range(2): bl('', VM+2*t+e, avm, S_XO, t*512 + e*128)
        def both(r, op):
            a(f'v_mov_b32 v{t0}, v{r}'); a(f'v_permlane32_swap_b32 v{r}, v{t0}'); a(f'{op} v{r}, v{r}, v{t0}')
        lx = mx + 1; al = mx + 2; m2 = mx + 3
        def xpart(extra):
            for kb in range(8):
                a(f's_waitcnt vmcnt({extra + 8 + 14 - 2*kb})')
                a(mf(SX, vr(K+4*kb,4), vr(Q+4*kb,4), vr(SX,16) if kb else vr(CM,16)))
            a(f'v_max3_f32 v{mx}, v{SX}, v{SX+1}, v{SX+2}')
            for i in range(3, 15, 2): a(f'v_max3_f32 v{mx}, v{mx}, v{SX+i}, v{SX+i+1}')
            a(f'v_max_f32 v{mx}, v{mx}, v{SX+15}'); both(mx, 'v_max_f32')
            for i in range(16): a(f'v_sub_f32 v{SX+i}, v{SX+i}, v{mx}')
            for i in range(16): a(f'v_mul_f32 v{SX+i}, s{S_M}, v{SX+i}')
            for i in range(16): a(f'v_exp_f32 v{SX+i}, v{SX+i}')
            a(f'v_add_f32 v{lx}, v{SX}, v{SX+1}')
            for i in range(2, 16): a(f'v_add_f32 v{lx}, v{lx}, v{SX+i}')
        lw_ = a.newlabel('Lt_w'); lj = a.newlabel('Lt_j')
        a(f's_cmp_gt_u32 s{S_K1}, s{S_B}'); a(f's_cbranch_scc0 {lw_}')
        mem_loads(); xpart(16); a(f's_branch {lj}')
        a.label(lw_)
        xpart(0); poll(S_K1)
        if half == 0: self.mark(4, S_B, 63)
        mem_loads()
        a.label(lj)
        for kb in range(8):
            a(f's_waitcnt vmcnt({8 + 7 - kb})')
            a(mf(SM, vr(KM+4*kb,4), vr(Q+4*kb,4), vr(SM,16) if kb else 0))
        if half == 0: self.mark(5, S_B, 63)
        a(f'v_max3_f32 v{m2}, v{SM}, v{SM+1}, v{mx}'); a(f'v_max3_f32 v{m2}, v{m2}, v{SM+2}, v{SM+3}'); both(m2, 'v_max_f32')
        a(f'v_sub_f32 v{al}, v{mx}, v{m2}')
        for i in range(4): a(f'v_sub_f32 v{SM+i}, v{SM+i}, v{m2}')
        for e in [al] + [SM+i for i in range(4)]: a(f'v_mul_f32 v{e}, s{S_M}, v{e}')
        for e in [al] + [SM+i for i in range(4)]: a(f'v_exp_f32 v{e}, v{e}')
        a(f'v_fma_f32 v{t1}, v{lx}, v{al}, v{SM}')
        for i in range(1, 4): a(f'v_add_f32 v{t1}, v{t1}, v{SM+i}')
        both(t1, 'v_add_f32')
        a(f'v_rcp_f32 v{t1}, v{t1}')
        a(f'v_mul_f32 v{al}, v{al}, v{t1}')
        for i in range(4): a(f'v_mul_f32 v{SM+i}, v{SM+i}, v{t1}')
        for i in range(2): a(f'v_cvt_pk_bf16_f32 v{PM+i}, v{SM+2*i}, v{SM+2*i+1}')
        a('s_waitcnt vmcnt(0)')
        for t in range(4):
            a(f'v_mfma_f32_32x32x8_bf16 {vr(OT+16*t,16)}, {vr(VM+2*t,2)}, {vr(PM,2)}, 0')
            for i in range(4*t, 4*t+4): a(f'v_mul_f32 v{SX+i}, v{SX+i}, v{al}')
            for i in range(2*t, 2*t+2): a(f'v_cvt_pk_bf16_f32 v{P+i}, v{SX+2*i}, v{SX+2*i+1}')
        def cv(t, j):
            o = OT+16*t+8*j
            for i in range(4): a(f'v_cvt_pk_bf16_f32 v{o+i}, v{o+2*i}, v{o+2*i+1}')
        def wr(t, j): a(f'ds_write_b128 v{xw}, {vr(OT+16*t+8*j,4)} offset:{(2*t+j)*1024}')
        todo = [(t, j) for t in range(4) for j in range(2)]; conv = []
        for n, (t, j) in enumerate(list(todo)):
            a(mf(OT+16*t, vr(V+8*t+4*j,4), vr(P+4*j,4), vr(OT+16*t,16)))
            if conv: wr(*conv.pop(0))
            if n >= 3: x = todo.pop(0); cv(*x); conv.append(x)
        for x in conv: wr(*x)
        for x in todo: cv(*x); wr(*x)
        a('s_waitcnt lgkmcnt(0)'); a('s_barrier')
        def pfx():
            l = a.newlabel('Lt_x'); a(f's_add_u32 s{S_T}, s{S_B}, {ngr}'); a(f's_mov_b32 s{PFX}, 0')
            a(f's_cmp_gt_u32 s{S_N}, s{S_T}'); a(f's_cbranch_scc0 {l}')
            x_loads(ngr*32768); a(f's_mov_b32 s{PFX}, 1'); a.label(l)
        gemm_core(a, L16, XR, [(ACC, 'a', 128, False)], {1: pfx})
        pack_store(a, ACC, vo, S_OUT, 'sc1')
        if half == 0: self.mark(6, S_B, 63)
        self.set_word(FL(half, 'PT'), S_B, S_A); self.signal_wg()
        if half == 0: self.mark(7, S_B, 63); self.mark(13, S_B, 35); self.mark(14, S_B, 51)
        add64(a, S_OUT, S_OUT, ngr*8*32768); a(f's_add_u32 s{S_XO}, s{S_XO}, {ngr*32768}')
        a(f's_add_u32 s{S_B}, s{S_B}, {ngr}')
        if half == 0:
            nxt = a.newlabel('Lt_n'); pa = a.newlabel('Lt_pa'); fin = a.newlabel('Lt_f')
            a(f's_and_b32 s{S_T}, s{S_A}, 3'); a(f's_cmp_ge_u32 s{S_T}, 3'); a(f's_cbranch_scc1 {nxt}')
            a(f's_cmp_ge_u32 s{S_TK}, {self.pasplit}'); a(f's_cbranch_scc1 {nxt}')
            a(f's_add_u32 s{S_T}, s{S_TK}, {self.palag*ngr}'); a(f's_cmp_gt_u32 s{S_T}, s{S_B}'); a(f's_cbranch_scc1 {nxt}')
            self.pa_task(vo, av)
            a(f's_add_u32 s{S_TK}, s{S_TK}, {2*ngr}')
            a(f's_cmp_lt_u32 s{S_TK}, {self.pasplit}'); a(f's_cbranch_scc1 {nxt}')
            a(f'v_mov_b32 v{VZ}, 0x3f803f80')
            for i in range(128): a(f'v_accvgpr_write_b32 a{i}, v{VZ}')
            a.label(nxt)
        a(f's_cmp_lt_u32 s{S_B}, 64'); a(f's_cbranch_scc1 {lp}')

    def build(self):
        a = self.a; end = self.end
        a(f's_cmp_ge_u32 s2, 256'); a(f's_cbranch_scc1 {end}')
        if self.stamps == 2: a('s_memrealtime s[96:97]')
        if self.stamps is True: a('s_memrealtime s[94:95]')
        a(f's_load_dwordx2 s[{S_DBG}:{S_DBG+1}], s[0:1], {KA_DBG}')
        common_prologue(a, L, L16)
        lw = a.newlabel('Le'); lo = a.newlabel('Le'); ls = a.newlabel('Le'); lg = a.newlabel('Le'); lz = a.newlabel('Le')
        a(f's_getreg_b32 s{S_X}, hwreg(HW_REG_XCC_ID, 0, 3)')
        a(f's_xor_b32 s{S_X}, s{S_X}, {self.die}')
        if self.fake: a(self.fake.format(x=S_X))
        a(f's_lshl_b32 s{S_T}, s{S_X}, 4'); a(f'v_mov_b32 v3, s{S_T}'); a('v_mov_b32 v4, 1')
        def xwait():
            l1 = a.newlabel('Le'); l2 = a.newlabel('Le')
            a(f's_mul_i32 s{S_T}, s2, 3072'); a(f's_add_u32 s{S_T}, s{S_T}, {W.FLAGS}'); a('v_mul_u32_u24 v6, 12, v0'); a(f'v_add_u32 v6, s{S_T}, v6'); a('v_mov_b32 v8, 0'); a('v_mov_b32 v9, 0'); a('v_mov_b32 v10, 0')
            a(f'global_store_dwordx3 v6, v[8:10], s[{S_WS}:{S_WS+1}] sc1')
            a(f's_cmp_lg_u32 s{S_W}, 0'); a(f's_cbranch_scc1 {l1}')
            a('s_mov_b64 exec, 1'); a(f'global_atomic_add v5, v3, v4, s[{S_DBG}:{S_DBG+1}] offset:{self.TO} sc0 sc1'); a('s_mov_b64 exec, -1')
            a('s_waitcnt vmcnt(2)'); a(f's_branch {l2}')
            a.label(l1); a('s_waitcnt vmcnt(1)'); a.label(l2)
        a(f's_lshr_b32 s{S_A}, s2, 2'); a(f's_and_b32 s{S_B}, s2, 3')
        rb_body(a, 0, KA_X, True, 0, 0, 0, None, False, W.H[0].XNA, '', 'sc1', ldsoff=1024, vb=20, xwait=xwait)
        a(f's_cmp_lg_u32 s{S_W}, 0'); a(f's_cbranch_scc1 {lw}')
        a('s_mov_b64 exec, 1'); a('s_waitcnt vmcnt(2)')
        a(f'v_readfirstlane_b32 s{S_TK}, v5')
        a(f's_lshl_b32 s{S_SLOT}, s{S_X}, 5'); a(f's_add_u32 s{S_SLOT}, s{S_SLOT}, s{S_TK}')
        a(f's_cmp_lt_u32 s{S_TK}, 32'); a(f's_cbranch_scc1 {lg}')
        a('v_mov_b32 v3, 136'); a(f'global_atomic_add v5, v3, v4, s[{S_DBG}:{S_DBG+1}] sc0 sc1'); a('s_waitcnt vmcnt(0)')
        a(f'v_readfirstlane_b32 s{S_TK}, v5')
        self.count_wait(self.TO, 12, ls, S_T, S_SPIN)
        a.label(ls)
        for x in range(8):
            a(f'v_readfirstlane_b32 s{S_T}, v{12+x}'); a(f's_min_u32 s{S_T}, s{S_T}, 32')
            a(f's_add_u32 s{S_SLOT}, s{S_T}, s{S_TK}'); a(f's_add_u32 s{S_SLOT}, s{S_SLOT}, {32*x}')
            a(f's_sub_u32 s{S_T}, 32, s{S_T}'); a(f's_cmp_lt_u32 s{S_TK}, s{S_T}'); a(f's_cbranch_scc1 {lg}')
            a(f's_sub_u32 s{S_TK}, s{S_TK}, s{S_T}')
        a(f's_mov_b32 s{S_SLOT}, 256')
        a.label(lg)
        a(f'v_mov_b32 v3, 0'); a(f'v_mov_b32 v4, s{S_SLOT}'); a('ds_write_b32 v3, v4'); a('s_waitcnt lgkmcnt(0)')
        a('s_mov_b64 exec, -1')
        a.label(lw)
        a('s_waitcnt vmcnt(0)'); a('s_barrier')
        a(f's_mov_b32 s{S_DIE}, s{S_X}'); self.report()
        a('v_mov_b32 v3, 0'); a('ds_read_b32 v4, v3'); a('s_waitcnt lgkmcnt(0)'); a(f'v_readfirstlane_b32 s{S_SLOT}, v4'); a('s_barrier')
        a(f's_lshr_b32 s{S_T}, s{S_SLOT}, 5'); a(f's_lshl_b32 s{S_T2}, s{S_T}, 2'); a(f's_lshr_b32 s{S_T2}, {self.perm:#x}, s{S_T2}'); a(f's_and_b32 s{S_T2}, s{S_T2}, 7')
        a(f's_cmp_lt_u32 s{S_T}, 8'); a(f's_cselect_b32 s{S_T2}, s{S_T2}, 8'); a(f's_and_b32 s{S_SLOT}, s{S_SLOT}, 31'); a(f's_lshl_b32 s{S_T2}, s{S_T2}, 5'); a(f's_add_u32 s{S_SLOT}, s{S_SLOT}, s{S_T2}')
        if self.stamps: a(f's_mov_b32 s99, s{S_SLOT}')
        self.role = 'all'
        self.dmap = {('all',0):0, ('ch',1):1, ('ch',2):2, ('ch',3):3, ('ch',4):4, ('gw',1):8, ('gw',2):9, ('gw',3):10, ('pb',1):11, ('ms',12):12, ('gw',4):13, ('pb',3):14}
        if self.stamps == 2:
            a('s_and_b32 s99, s96, 0xfff00000')
        self.sv = 10
        a(f's_mov_b32 s{S_SO}, {W.STAMPS}')
        if self.stamps: _ = [a(f's_mov_b32 s{70+k}, 0') for k in range(16)]
        if self.stamps is True: a('s_mov_b32 s85, s94')
        self.stamp(0)
        Lch, Lpb, Lgw, Lms, Lpa = [a.newlabel(n) for n in ('Lchain', 'Lpb', 'Lgw', 'Lms', 'Lpa')]
        a(f's_cmp_lt_u32 s{S_SLOT}, 32'); a(f's_cbranch_scc0 Lnot_chain')
        self.jump(Lch)
        a.label('Lnot_chain')
        a(f's_cmp_lt_u32 s{S_SLOT}, 96'); a(f's_cbranch_scc1 {Lpb}')
        a(f's_cmp_lt_u32 s{S_SLOT}, 224'); a(f's_cbranch_scc1 {Lgw}')
        a(f's_cmp_lt_u32 s{S_SLOT}, 240'); a(f's_cbranch_scc1 {Lms}')
        a(f's_cmp_lt_u32 s{S_SLOT}, 256'); a(f's_cbranch_scc1 {Lpa}')
        a.label(end); a('s_endpgm')
        a.label(Lms); self.role = 'ms'; self.code_touch(sh=7)
        a(f's_and_b32 s{S_A}, s{S_SLOT}, 3'); a(f's_lshl_b32 s{S_OFF}, s{S_A}, 8')
        load_wslices(a, [(KA_WOA, 512*1024, 0, 'v', 128)], 1024, L, 3, 4, 5)
        if self.pfb & 2:
            a(f's_load_dwordx2 s[{S_P}:{S_P+1}], s[0:1], {KA_WO}'); a(f's_and_b32 s{S_T}, s{S_SLOT}, 15'); a(f's_lshl_b32 s{S_T}, s{S_T}, 18')
            a(f'v_lshl_add_u32 v3, v0, 7, s{S_T}'); a('s_waitcnt lgkmcnt(0)')
            for i in range(8):
                a(f'global_load_dword v4, v3, s[{S_P}:{S_P+1}]'); a('v_add_u32 v3, 32768, v3')
        self.flags_ready(); self.local_check()
        for half in range(2):
            a(f's_and_b32 s{S_A}, s{S_SLOT}, 3'); a(f's_bfe_u32 s{S_B}, s{S_SLOT}, 0x20002'); self.woa_run(half, 4); self.stamp(3 + 8*half)
            a(f's_bfe_u32 s{S_A}, s{S_SLOT}, 0x20002'); a(f's_and_b32 s{S_B}, s{S_SLOT}, 3')
            self.rb_run(half, 4); self.stamp(4 + 8*half)
        self.dump_marks(); a('s_endpgm')
        a.label(Lpa); self.role = 'pa'; self.code_touch(sh=7)
        def first_x():
            self.flags_ready(); self.mark(9, S_W, 0)
            a(f's_lshl_b32 s{S_XO}, s{S_B}, 15'); a(f's_add_u32 s{S_XO}, s{S_XO}, {W.H[0].XNA}'); a(f's_mov_b32 s{S_BUF}, {128*1024}')
            dma_x(a, L16, S_XO, S_BUF, 'sc1')
        a(f's_and_b32 s{S_A}, s{S_SLOT}, 3'); a(f's_bfe_u32 s{S_B}, s{S_SLOT}, 0x20002')
        self.proj_weights(False, (S_B, 4), first_x, (2,)); self.proj_run(0, False, 4, nowait=True, mode='q'); self.stamp(3)
        self.proj_weights(False, None, None, (0, 1))
        a(f's_bfe_u32 s{S_B}, s{S_SLOT}, 0x20002'); a(f's_add_u32 s{S_B}, s{S_B}, {self.pasplit}'); self.proj_run(1, False, 4); self.stamp(4)
        self.dump_marks(); a('s_endpgm')
        a.label(Lpb); self.role = 'pb'; self.code_touch(sh=7)
        def pb_ids():
            a(f's_sub_u32 s{S_T}, s{S_SLOT}, 32'); a(f's_lshr_b32 s{S_A}, s{S_T}, 5'); a(f's_lshl_b32 s{S_A}, s{S_A}, 4'); a(f's_and_b32 s{S_T2}, s{S_T}, 15')
            a(f's_add_u32 s{S_A}, s{S_A}, s{S_T2}'); a(f's_bfe_u32 s{S_B}, s{S_T}, 0x10004')
        pb_ids(); self.proj_weights(True, (S_B, 2) if self.pfb & 1 else None); self.flags_ready(); self.stamp(1)
        for half in range(2):
            pb_ids(); self.proj_run(half, True, 2); self.stamp(3 + 8*half)
        self.dump_marks(); a('s_endpgm')
        a.label(Lgw); self.role = 'gw'; self.code_touch(sh=7)
        self.end = 'Lm_end2'
        def pa_ids(): a(f's_sub_u32 s{S_T}, s{S_SLOT}, 96'); a(f's_lshr_b32 s{S_A}, s{S_T}, 5'); a(f's_and_b32 s{S_B}, s{S_T}, 31')
        pa_ids()
        def gw_first():
            a(f'v_mov_b32 v{VZ}, 0x3f803f80')
            for i in range(128): a(f'v_accvgpr_write_b32 a{i}, v{VZ}')
        lv = a.newlabel('Lgw_v'); lj = a.newlabel('Lgw_j')
        a(f's_lshr_b32 s{S_B}, s{S_B}, 1')
        BUFS = (128*1024, 0, 32768, 65536)
        def xblk(k):
            a(f's_lshl_b32 s{S_XO}, s{S_B}, 15'); a(f's_add_u32 s{S_XO}, s{S_XO}, {W.H[0].XNA + k*16*32768}'); a(f's_mov_b32 s{S_BUF}, {BUFS[k]}')
            dma_x(a, L16, S_XO, S_BUF, 'sc1')
        def early3():
            self.flags_ready(); self.mark(9, S_W, 0)
            for k in range(3): xblk(k)
        def start_proj(isv):
            H = W.H[0]; vo = 6; xa = 9; XR = 12; ACC = (28, 44)
            self.proj_weights(False, (S_B, 16), early3, (isv,), gw_first); self.mark(10, S_W, 0)
            xblk(3)
            if isv: pi_of(a, 3, L, 4); vpos16(a, vo, 3, L, 4)
            else: a(f'v_mov_b32 v{vo}, v{L16}')
            a(f's_lshl_b32 s{S_T}, s{S_W}, 11'); a(f'v_add_u32 v{vo}, s{S_T}, v{vo}')
            a(f's_lshl_b32 s{S_T}, s{S_A}, 13'); a(f's_lshl_b32 s{S_T2}, s{S_B}, 15'); a(f's_add_u32 s{S_T}, s{S_T}, s{S_T2}')
            a(f's_add_u32 s{S_T}, s{S_T}, {H.VA if isv else H.KA}'); add64(a, S_OUT, S_WS, f's{S_T}')
            def hs(acc, j):
                for i in range(4): a(f'v_cvt_pk_bf16_f32 v{acc+8*j+i}, v{acc+8*j+2*i}, v{acc+8*j+2*i+1}')
                a(f'global_store_dwordx4 v{vo}, {vr(acc+8*j,4)}, s[{S_OUT}:{S_OUT+1}] offset:{1024*j} sc1')
                if j: add64(a, S_OUT, S_OUT, 16*32768)
            for k in range(4):
                if k == 3: a('s_waitcnt vmcnt(4)'); a('s_barrier')
                a(f'v_add_u32 v{xa}, {BUFS[k]}, v{L16}')
                prev = ACC[(k+1) % 2]
                gemm_core(a, xa, XR, [(ACC[k%2], 'v' if isv else 'a', 128, bool(isv))], {1: (lambda p=prev: hs(p, 0)), 3: (lambda p=prev: hs(p, 1))} if k else {})
            hs(ACC[1], 0); hs(ACC[1], 1)
            a(f's_lshl_b32 s{S_T}, s{S_A}, 2'); a(f's_add_u32 s{S_T}, s{S_T}, s{S_W}'); self.set_word(FL(0, "QKVA") + 8*isv, S_T, S_B, 11, 5)
        a(f's_and_b32 s{S_T}, s{S_SLOT}, 1'); a(f's_cmp_eq_u32 s{S_T}, 1'); a(f's_cbranch_scc1 {lv}')
        start_proj(0); a(f's_branch {lj}')
        a.label(lv); start_proj(1)
        a.label(lj)
        a(f'v_lshl_add_u32 v{VZ}, v{L}, 9, s{S_SO}'); a(f'v_mov_b32 v{VF}, 1'); a('s_waitcnt vmcnt(0)')
        a('s_mov_b64 exec, 15'); a(f'global_store_dword v{VZ}, v{VF}, s[{S_WS}:{S_WS+1}] sc1'); a('s_mov_b64 exec, -1')
        a('s_waitcnt vmcnt(0)')
        self.stamp(1)
        def gw_ids():
            a(f's_sub_u32 s{S_T}, s{S_SLOT}, 96'); a(f's_lshr_b32 s{S_A}, s{S_T}, 5'); a(f's_lshl_b32 s{S_A}, s{S_A}, 3'); a(f's_and_b32 s{S_T2}, s{S_T}, 7')
            a(f's_add_u32 s{S_A}, s{S_A}, s{S_T2}'); a(f's_bfe_u32 s{S_B}, s{S_T}, 0x20003')
        for half in range(2):
            gw_ids(); self.att_run(half, 4); self.stamp(3 + 8*half)
            gw_ids()
            if half == 0: self.tb_weights()
            self.tb_run(half, 4); self.stamp(4 + 8*half)
        self.dump_marks()
        a.label('Lm_end2'); a('s_endpgm')
        a.label(Lch); self.role = 'ch'
        self.end = 'Lm_end3'; end = self.end
        r = C.ChainRegs(); self.sv = r.R
        a(f's_mov_b32 s{C.S_H}, s{S_SLOT}')
        lslow = a.newlabel('Lcslow'); lfast = a.newlabel('Lcfast')
        def mid(T):
            l1 = a.newlabel('Lcm'); l2 = a.newlabel('Lcm')
            T = r.WV + 64
            self.count_wait(132, T, end, C.S_T, C.S_SPIN); self.count_wait(self.TO, T, end, C.S_T, C.S_SPIN)
            a(f'v_readfirstlane_b32 s{C.S_T}, v{T}')
            add64(a, S_DBG, S_WS, FL(0, 'EL'))
            if self.chain_kw.get('force_slow'): a(f's_mov_b32 s{C.S_T}, 0')
            a(f's_mov_b32 s{C.S_EP}, 0'); a(f's_mov_b32 s{C.S_EM}, 0'); a(f's_mov_b32 s{C.S_HALF}, 0')
            a(f's_cmp_ge_u32 s{C.S_T}, 32'); a(f's_cselect_b32 s{C.S_FB}, 1, 0'); a(f's_cbranch_scc1 {l1}')
            C.chain_init_comm(a, r, 'sc1', True, T); a(f's_branch {l2}')
            a.label(l1); C.chain_init_comm(a, r, '', True, T)
            a.label(l2); C.group_arrive(a, T, 1280)
        C.chain_setup(a, r, mid, self.ahead)
        self.stamp(1)
        C.group_wait(a, r.R, 1280, 32, end)
        a(f's_cmp_eq_u32 s{C.S_FB}, 1'); a(f's_cbranch_scc1 {lfast}')
        a(f's_branch {lslow}')
        a.label(end); a('s_endpgm')
        kw = {k: v for k, v in self.chain_kw.items() if k != 'force_slow'}
        for lbl, stf in ((lfast, ''), (lslow, 'sc1')):
            a.label(lbl)
            lh = a.newlabel('Lch_half'); a.label(lh)
            self.stamp(2, C.S_HALF)
            C.chain_start(a, r, end, 1)
            def started(sv):
                self.sv = sv; self.stamp(3, C.S_HALF); self.sv = r.R
            kw['started'] = started
            C.chain_all_waves(a, r, stf, end, fused=1, **(dict(kw, ef='sc1') if stf else kw))
            self.stamp(4, C.S_HALF)
            if kw.get('stamps'):
                for k in range(12): a(f'v_mov_b32 v{k}, s{84+k}')
                a(f's_lshl_b32 s{C.S_T}, s{C.S_H}, 2'); a(f's_add_u32 s{C.S_T}, s{C.S_T}, s{C.S_W}'); a(f's_lshl_b32 s{C.S_T}, s{C.S_T}, 6')
                a(f's_lshl_b32 s{C.S_T2}, s{C.S_HALF}, 13'); a(f's_add_u32 s{C.S_T}, s{C.S_T}, s{C.S_T2}')
                a(f's_add_u32 s{C.S_T}, s{C.S_T}, {STAMP_OFF + 32768}'); a(f'v_mov_b32 v16, s{C.S_T}')
                for k in range(3): a(f'global_store_dwordx4 v16, {vr(4*k,4)}, s[{S_WS}:{S_WS+1}] offset:{16*k}')
                a('s_waitcnt vmcnt(0)')
            a(f's_cmp_lg_u32 s{C.S_HALF}, 0'); a(f's_cbranch_scc1 {end}')
            a(f's_mov_b32 s{C.S_HALF}, 1'); C.group_arrive(a, r.R, 1408); C.group_wait(a, r.R, 1408, 32, end)
            a(f's_xor_b32 s{C.S_EM}, s{C.S_EM}, 1'); C.chain_init_comm(a, r, stf, False)
            a(f's_branch {lh}')
        return a.lines
    def jump(self, label):
        a = self.a; l = a.newlabel('Lj')
        a('s_getpc_b64 s[48:49]'); a.label(l)
        a(f's_add_u32 s48, s48, {label}-{l}'); a('s_addc_u32 s49, s49, 0'); a('s_setpc_b64 s[48:49]')

DOC = """;
;
"""
NAME = 'interleave_layers__softmax_full_mha__memory_aug_recurrent_mem_tr__prompt'
def build(stamps=False, chain_kw={}, verbose=False, aslist=True):
    ks = []
    for n, lines, vg, acc in ((NAME + '_kernel', Mega(stamps, chain_kw).build(), 512, 256),):
        rep = []
        l = fix_hazards(lines, rep)
        for e in check_waits(l, n[:8]): print(e)
        if verbose: print(n, len(l), len(rep))
        ks.append((n, l, vg, acc))
    hdr = ''.join(l for l in open(f'cdna_kernels/{NAME}.s.ref').readlines()[:14] if '@launch' not in l)
    hdr += DOC
    t = assemble_file(hdr, [(NAME + '_kernel', 256, 256, 163840)], ks)
    return t if aslist else t.replace(f'@launch kernel={NAME}_kernel ', '@launch ')

if __name__ == '__main__':
    import sys
    kw = eval(sys.argv[2]) if len(sys.argv) > 2 else dict()
    st = (True if sys.argv[3] == '1' else 2) if len(sys.argv) > 3 else False
    t = build(st, kw, True, aslist=(st is True))
    open(sys.argv[1] if len(sys.argv) > 1 else f'cdna_kernels/{NAME}.s', 'w').write(t)
    print(len(t))
```

```python
import re

REG_RE = re.compile(r'^(-|\|)?(abs\()?([vas])(\d+|\[(\d+):(\d+)\])\)?\|?$')

def regs_of(op):
    op = op.strip()
    if op in ('vcc',): return {('s', 'vcc')}
    if op in ('exec',): return {('s', 'exec')}
    if op in ('m0',): return {('s', 'm0')}
    if op in ('vcc_lo', 'vcc_hi'): return {('s', 'vcc')}
    if op in ('exec_lo', 'exec_hi'): return {('s', 'exec')}
    m = REG_RE.match(op)
    if not m: return set()
    k = m.group(3)
    if m.group(5) is not None:
        return {(k, i) for i in range(int(m.group(5)), int(m.group(6)) + 1)}
    return {(k, int(m.group(4)))}

TRANS = ('v_exp_f32', 'v_log_f32', 'v_rcp_f32', 'v_rsq_f32', 'v_sqrt_f32', 'v_sin_f32', 'v_cos_f32')

class Ins:
    __slots__ = ('text', 'mn', 'ops', 'defs', 'uses', 'cls', 'passes', 'srcc', 'ab', 'mods', 'wide_store', 'dpp')
    def __init__(self, text):
        self.text = text
        t = text.split(';')[0].strip()
        parts = t.split(None, 1)
        self.mn = mn = parts[0]
        rest = parts[1] if len(parts) > 1 else ''
        ops = []; cur = ''; depth = 0
        for ch in rest:
            if ch in '[(': depth += 1
            if ch in '])': depth -= 1
            if ch == ',' and depth == 0: ops.append(cur.strip()); cur = ''
            else: cur += ch
        if cur.strip(): ops.append(cur.strip())
        mods = ''
        if ops:
            l = ops[-1].split(None, 1)
            ops[-1] = l[0]
            mods = l[1] if len(l) > 1 else ''
        self.ops = ops; self.mods = mods
        self.passes = 0; self.srcc = set(); self.ab = set(); self.wide_store = False
        self.dpp = ('dpp' in mn) or ('quad_perm' in mods) or ('row_' in mods)
        R = [regs_of(o) for o in ops]
        U = lambda l: set().union(*l) if l else set()
        if mn.startswith('v_mfma') or mn.startswith('v_smfmac'):
            self.cls = 'mfma'
            self.passes = 8 if '32x32' in mn else 4
            self.defs = R[0]
            if mn.startswith('v_smfmac'):
                self.srcc = set(R[0]); self.ab = R[1] | R[2] | R[3]
            else:
                self.srcc = set(R[3]); self.ab = R[1] | R[2]
            self.uses = self.srcc | self.ab
        elif mn.startswith('v_'):
            self.cls = 'valu'
            if mn.startswith('v_cmp'):
                self.defs = R[0]; self.uses = U(R[1:])
            elif mn.startswith('v_permlane') and 'swap' in mn:
                self.defs = R[0] | R[1]; self.uses = R[0] | R[1]
            elif mn.startswith(('v_add_co', 'v_sub_co', 'v_addc_co', 'v_subb_co', 'v_mad_u64', 'v_div_scale')):
                self.defs = R[0] | R[1]; self.uses = U(R[2:])
            elif mn.startswith(('v_fmac', 'v_pk_fmac', 'v_dot2c', 'v_writelane')):
                self.defs = R[0]; self.uses = U(R)
            elif mn == 'v_nop':
                self.defs = set(); self.uses = set()
            else:
                self.defs = R[0]; self.uses = U(R[1:])
                if self.dpp: self.uses |= R[0]
        elif mn.startswith(('global_', 'buffer_', 'flat_')):
            self.cls = 'vmem'
            if 'store' in mn:
                self.defs = set(); self.uses = U(R)
                self.wide_store = mn.endswith(('x3', 'x4'))
            elif 'atomic' in mn:
                if 'sc0' in mods and mn.startswith('global_'):
                    self.defs = R[0]; self.uses = U(R[1:])
                elif 'sc0' in mods:
                    self.defs = R[0]; self.uses = U(R)
                else:
                    self.defs = set(); self.uses = U(R)
            elif mn in ('buffer_wbl2', 'buffer_inv'):
                self.defs = set(); self.uses = set()
            elif ' lds' in (' ' + mods) or '_lds_' in mn:
                self.defs = set(); self.uses = U(R) | {('s', 'm0')}
            else:
                self.defs = R[0]; self.uses = U(R[1:])
                if 'd16' in mn: self.uses |= R[0]
        elif mn.startswith('ds_'):
            self.cls = 'ds'
            if mn.startswith(('ds_write', 'ds_add', 'ds_max', 'ds_min')) and 'rtn' not in mn:
                self.defs = set(); self.uses = U(R)
            else:
                self.defs = R[0]; self.uses = U(R[1:])
        elif mn.startswith('s_'):
            if mn.startswith(('s_load', 's_memtime', 's_memrealtime', 's_buffer_load', 's_atomic')):
                self.cls = 'smem'; self.defs = R[0]; self.uses = U(R[1:])
            else:
                self.cls = 'salu'
                if mn.startswith(('s_cmp', 's_cbranch', 's_branch', 's_waitcnt', 's_nop', 's_barrier', 's_endpgm', 's_sleep', 's_setprio', 's_bitcmp', 's_setpc')):
                    self.defs = set(); self.uses = U(R)
                else:
                    self.defs = R[0] if R else set(); self.uses = U(R[1:])
                    if mn.startswith('s_bitset'): self.uses = U(R)
                    if 'saveexec' in mn: self.defs = self.defs | {('s', 'exec')}
        else:
            raise ValueError('unknown instr ' + text)

    def states(self):
        if self.mn == 's_nop': return int(self.ops[0], 0) + 1
        return 1

def isv(rs): return {r for r in rs if r[0] in 'va'}
def iss(rs): return {r for r in rs if r[0] == 's'}

def need(p, c):
    n = 0
    if p.cls == 'valu':
        pv = isv(p.defs); ps = iss(p.defs)
        if c.cls == 'mfma' and pv & c.uses: n = max(n, 2)
        if c.cls == 'valu':
            if c.dpp and pv & c.uses: n = max(n, 2)
            if c.mn.startswith('v_permlane') and pv & c.uses: n = max(n, 2)
            if c.mn.startswith(('v_readlane', 'v_readfirstlane')) and pv & c.uses: n = max(n, 1)
            if p.mn.startswith(TRANS) and (pv & c.uses) : n = max(n, 1)
            if ps & c.uses: n = max(n, 4 if c.mn.startswith(('v_readlane', 'v_writelane', 'v_div_fmas')) else 2)
            if ('s', 'vcc') in ps and c.mn.startswith('v_div_fmas'): n = max(n, 4)
            if ('sdwa' in p.mn or ('op_sel' in p.mods and not p.mn.startswith('v_pk_'))) and pv & (c.uses | c.defs): n = max(n, 1)
        if c.cls == 'vmem' and ps & c.uses: n = max(n, 5)
        if c.cls in ('salu', 'smem') and ps & c.uses and not c.mn.startswith('s_cbranch'): n = max(n, 1)
    if p.cls == 'mfma':
        big = {4: 8, 8: 12}[p.passes]; mid = {4: 6, 8: 10}[p.passes]; war = {4: 3, 8: 7}[p.passes]
        if c.cls == 'mfma':
            if p.defs & c.ab: n = max(n, big)
            if p.defs & c.srcc and not (p.defs == c.srcc and p.passes == c.passes): n = max(n, mid)
            if p.defs & c.defs and not (p.defs == c.srcc and p.passes == c.passes): n = max(n, mid)
        elif c.cls == 'valu':
            if p.defs & (c.uses | c.defs): n = max(n, big)
            if p.srcc & c.defs: n = max(n, war)
        elif c.cls in ('vmem', 'ds'):
            if p.defs & (c.uses | c.defs): n = max(n, big)
            if p.srcc & c.defs: n = max(n, war)
    if p.cls == 'vmem' and p.wide_store:
        data = regs_of(p.ops[1]) if p.mn.startswith('global') else regs_of(p.ops[0])
        if data & c.defs: n = max(n, 2 if c.cls in ('valu', 'mfma') else 1)
    if p.cls == 'salu' and ('s', 'm0') in p.defs and ('s', 'm0') in c.uses and c.cls != 'salu': n = max(n, 1)
    return n

class Asm:
    def __init__(self):
        self.lines = []
        self._lbl = 0
    def __call__(self, text):
        for l in text.split('\n'):
            l = l.strip()
            if l: self.lines.append(l)
    def label(self, name): self.lines.append(name + ':')
    def newlabel(self, p='L'):
        self._lbl += 1
        return f'{p}_{self._lbl}'
    def comment(self, t): self.lines.append('; ' + t)

def is_instr(l):
    return not (l.startswith(';') or l.startswith('.') or l.endswith(':') or re.match(r'^[\w.$]+:\s*(;.*)?$', l))

def _gap(seq):
    t = 0; free = 0
    for i, x in enumerate(seq):
        if x.cls == 'mfma':
            t = max(t, free); free = t + x.passes
        t += x.states()
    return t, free

def _required(win, c):
    req = 0
    n = len(win)
    for i in range(n - 1, max(-1, n - 22), -1):
        p = win[i]
        k = need(p, c)
        if k:
            t, free = _gap(win[i:])
            tc = max(t, free) if c.cls == 'mfma' else t
            if tc < k + 1:
                req = max(req, k + 1 - t)
    return req

def fix_hazards(lines, report=None):
    out = []
    win = []
    for l in lines:
        if not is_instr(l):
            out.append((None, l)); continue
        c = Ins(l)
        req = _required(win, c)
        if req > 0:
            if report is not None: report.append((req, l))
            nop = Ins(f's_nop {req-1}')
            out.append((nop, nop.text)); win.append(nop)
        out.append((c, l)); win.append(c)
        if c.mn in ('s_branch', 's_endpgm', 's_setpc_b64'): win = []
        if len(win) > 48: win = win[-24:]
    labels = {}
    for i, (c, l) in enumerate(out):
        if c is None and re.match(r'^[\w.$]+:', l): labels[l.split(':')[0]] = i
    fixes = []
    for i, (c, l) in enumerate(out):
        if c is not None and c.mn.startswith(('s_cbranch', 's_branch')) and c.ops and c.ops[0] in labels:
            pre = []; j = i
            while j >= 0 and len(pre) < 22:
                if out[j][0] is not None:
                    if j != i and out[j][0].mn in ('s_branch', 's_endpgm'): break
                    pre.insert(0, out[j][0])
                j -= 1
            j = labels[c.ops[0]]; cnt = 0; worst = 0
            while j < len(out) and cnt < 14:
                cc = out[j][0]
                if cc is not None:
                    worst = max(worst, _required(pre, cc))
                    pre = pre + [cc]; cnt += 1
                    if cc.mn in ('s_branch', 's_endpgm'): break
                j += 1
            if worst > 0: fixes.append((i, worst))
    for i, w in reversed(fixes):
        if report is not None: report.append((w, 'branch edge: ' + out[i][1]))
        out.insert(i, (Ins(f's_nop {w-1}'), f's_nop {w-1}'))
    return [l for _, l in out]

def check_waits(lines, name=''):
    vm = []; lg = []
    errs = []
    for l in lines:
        if not is_instr(l): continue
        c = Ins(l)
        if c.mn == 's_waitcnt':
            t = l
            m = re.search(r'vmcnt\((\d+)\)', t)
            if m:
                n = int(m.group(1)); vm = vm[len(vm)-n:] if n < len(vm) and n > 0 else ([] if n == 0 else vm)
            m = re.search(r'lgkmcnt\((\d+)\)', t)
            if m:
                n = int(m.group(1))
                if n == 0: lg = []
                else:
                    sm = [x for x in lg if x[2]]; dl = [x for x in lg if not x[2]]
                    lg = sm + (dl[len(dl)-n:] if n < len(dl) else dl)
            continue
        if c.mn in ('s_branch', 's_endpgm'):
            vm = []; lg = []; continue
        touch = c.uses | c.defs
        if 'nowaitcheck' not in l:
            for d, t, _ in vm + lg:
                if d & touch and not (c.cls in ('vmem','ds') and not (d & c.uses) and ((c.cls=='vmem') == (t.startswith(('global','buffer'))))):
                    errs.append(f'{name}: "{l}" touches regs of outstanding "{t}"')
        if c.cls == 'vmem': vm.append((c.defs, l, False))
        elif c.cls == 'ds': lg.append((c.defs, l, False))
        elif c.cls == 'smem': lg.append((c.defs, l, True))
        if len(vm) > 63: errs.append(f'{name}: vmcnt overflow at "{l}"'); vm = vm[1:]
    return errs

class RegAlloc:
    def __init__(self, kind='v', start=0, limit=256):
        self.kind = kind; self.next = start; self.limit = limit; self.names = {}
    def alloc(self, n=1, align=1, name=None):
        if n > 1 and align == 1: align = 2
        self.next = (self.next + align - 1) // align * align
        r = self.next; self.next += n
        assert self.next <= self.limit, f'out of {self.kind} regs ({name})'
        if name: self.names[name] = (r, n)
        return r

def vr(r, n=1, k='v'):
    return f'{k}{r}' if n == 1 else f'{k}[{r}:{r+n-1}]'
def sr(r, n=1): return vr(r, n, 's')
def ar(r, n=1): return vr(r, n, 'a')

KHDR = """.globl {name}
.p2align 8
.type {name},@function
{name}:
"""
KDESC = """.p2align 6
.amdhsa_kernel {name}
  .amdhsa_next_free_vgpr {vgpr}
  .amdhsa_next_free_sgpr 102
  .amdhsa_accum_offset {acc}
  .amdhsa_group_segment_fixed_size 0
  .amdhsa_kernarg_size 104
  .amdhsa_user_sgpr_count 2
  .amdhsa_user_sgpr_kernarg_segment_ptr 1
  .amdhsa_system_sgpr_workgroup_id_x 1
.end_amdhsa_kernel
"""
def assemble_file(header_comments, launches, kernels):
    t = header_comments
    for name, g, b, lds in launches:
        t += f'; @launch kernel={name} grid=({g},1,1) block=({b},1,1) lds={lds}\n'
    t += '.amdgcn_target "amdgcn-amd-amdhsa--gfx950"\n.text\n'
    for name, lines, vg, acc in kernels:
        t += KHDR.format(name=name)
        t += '\n'.join(lines) + '\n'
    t += '.section .rodata,"a"\n'
    for name, lines, vg, acc in kernels:
        t += KDESC.format(name=name, vgpr=vg, acc=acc)
    return t

E32 = ('v_add_f32', 'v_mul_f32', 'v_sub_f32', 'v_max_f32', 'v_mov_b32', 'v_and_b32', 'v_or_b32', 'v_exp_f32', 'v_rcp_f32', 'v_cmp_ne_u32', 'v_cmp_eq_u32', 'v_lshlrev_b32', 'v_add_u32')
def isize(c):
    lit = any(re.match(r'^-?(0x[0-9a-f]+|\d+)$', o) and not (-16 <= int(o, 0) <= 64) for o in c.ops)
    if c.cls in ('mfma', 'vmem', 'ds', 'smem'): return 8
    if c.cls == 'salu': return 4 if c.mn.startswith(('s_waitcnt', 's_nop', 's_cbranch', 's_branch', 's_barrier', 's_sleep', 's_endpgm')) else (8 if lit else 4)
    if c.dpp or c.mn.endswith('_e64'): return 8
    if c.mn.startswith('v_cmp'): return (8 if lit else 4) if c.ops[0] == 'vcc' else 8
    if c.mn in E32 or c.mn.startswith(('v_permlane', 'v_readfirstlane')): return 8 if lit else 4
    return 8
def align8(lines, begin='; BODY_BEGIN', end='; BODY_END2'):
    out = list(lines); inb = False; off = 0; cand = None; nfix = nbad = 0
    for i, l in enumerate(out):
        if l == begin: inb = True; off = 0; cand = None; continue
        if l == end: inb = False
        if not inb or not is_instr(l): continue
        c = Ins(l); sz = isize(c)
        if sz == 8:
            if off % 8 == 4:
                if cand is not None:
                    p = out[cand].split(None, 1); out[cand] = p[0] + '_e64 ' + p[1]; off += 4; nfix += 1
                else: nbad += 1
            cand = None
        elif c.cls == 'valu' and c.mn in E32: cand = i
        off += sz
    return out, nfix, nbad
```

```python
from asmlib import *
from layout import *
import math, struct

def f2u(f): return struct.unpack('<I', struct.pack('<f', f))[0]

LW = 0
LM = 144 * 1024
LS = 148 * 1024
DELTA = [0, 1, 8, 9, 2, 3, 10, 11]
DELTA2 = [0, 1, 32, 33, 8, 9, 40, 41]

class ChainRegs:
    def __init__(self):
        v = RegAlloc('v', 0, 256)
        self.M = v.alloc(32, 4); self.R = v.alloc(32, 4); self.A = v.alloc(32, 4)
        self.KX = v.alloc(8, 4); self.VX = v.alloc(8, 4)
        self.T = v.alloc(4, 4)
        self.VM = v.alloc(4)
        self.idx = self.VM + 1; self.aMst = self.VM + 3
        self.PZ = v.alloc(2)
        self.Z = v.alloc(2)
        self.I = v.alloc(2); self.E = v.alloc(4); self.One = v.alloc(4)
        self.PG = v.alloc(2)
        self.aPst = v.alloc(); self.aOw = v.alloc(); self.aW = v.alloc()
        self.aK = v.alloc(); self.aV = v.alloc(); self.aKm = v.alloc(); self.aVm = v.alloc(); self.aL = v.alloc()
        assert v.next <= 144, v.next
        self.WV = 144
        self.place = {}
        lds = [('q', 1, s) for s in range(8)] + [('q', 0, s) for s in range(4, 8)] + [('o', t, k) for t in (0, 6, 7) for k in range(2)]
        for i, b in enumerate(lds): self.place[b] = ('l', i * 2048)
        rest = [(m, t, s) for m in 'qkv' for t in range(2) for s in range(8)] + [('o', t, k) for t in range(8) for k in range(2)]
        rest = [b for b in rest if b not in self.place]
        assert len(rest) == 46
        for i, b in enumerate(rest):
            self.place[b] = ('a', 8 * i) if i < 32 else ('v', self.WV + 8 * (i - 32))
    def blk(self, b):
        k, r = self.place[b]; assert k != 'l'
        return vr(r, 8, k)

S_WS = 4; S_H = 6; S_W = 7
S_SRD = 8
S_CP = 12
S_HB = 20
S_KV = 22
S_CML = 24
S_XP = 26
S_EP = 28; S_EM = 29; S_STEP = 30; S_C = 31; S_SPIN = 32
S_PLO = 33; S_PHI = 34; S_T = 35; S_T2 = 36; S_T3 = 37
S_XH1 = 38; S_XH0 = 40; S_XR = 42
S_DBG = 44; S_TMP = 46; S_M0 = 48; S_RDY = 49
S_FH = 50; S_FW = 52; S_CPR = 54; S_CM = 56; S_HALF = 58; S_FB = 59
S_STAMP = 60
S_BW = 8
S_BR = 10
S_GS = 49
S_CME = 80
REP = 8192
S_SP = 31

def add64(a, dst, base, off):
    a(f's_add_u32 s{dst}, s{base}, {off}'); a(f's_addc_u32 s{dst+1}, s{base+1}, 0')

ROT = [0, 3]; WF = ['']
def frag_of(w, j): return (j ^ (w & ROT[0])) if j < 4 else 4 + ((w & ROT[1]) ^ (j - 4))

def chain_setup(a, r, mid=None, ahead=0, first=None):
    L = r.T; N = r.T+1; G = r.T+2; L16 = r.aL
    T = r.R
    a(f'v_lshrrev_b32 v{T}, 6, v0'); a(f'v_and_b32 v{L}, 63, v0'); a(f'v_readfirstlane_b32 s{S_W}, v{T}')
    a(f'v_and_b32 v{N}, 15, v{L}'); a(f'v_lshrrev_b32 v{G}, 4, v{L}')
    a(f's_mov_b32 s{S_PLO}, 0x05040100'); a(f's_mov_b32 s{S_PHI}, 0x07060302')
    a(f's_mov_b32 s{S_XH1}, 0xcccccccc'); a(f's_mov_b32 s{S_XH1+1}, 0xcccccccc')
    a(f's_mov_b32 s{S_XH0}, 0x33333333'); a(f's_mov_b32 s{S_XH0+1}, 0x33333333')
    a(f's_mov_b32 s{S_XR}, 0x000f000f'); a(f's_mov_b32 s{S_XR+1}, 0')
    a(f's_mov_b32 s{S_C}, {f2u(math.log2(math.e) / math.sqrt(128.0)):#x}')
    a(f'v_lshlrev_b32 v{L16}, 4, v{L}')
    a(f's_mul_i32 s{S_T}, s{S_W}, 36864'); a(f'v_add_u32 v{r.aW}, s{S_T}, v{L16}')
    a(f'v_bfe_u32 v{T}, v{N}, 1, 1')
    a(f'v_mul_u32_u24 v{r.idx}, 0xaaaa, v{T}'); a(f'v_bfe_u32 v{T}, v{N}, 2, 1'); a(f'v_mul_u32_u24 v{T}, 0xaaaa, v{T}'); a(f'v_lshl_add_u32 v{r.idx}, v{T}, 16, v{r.idx}'); a(f'v_add_u32 v{r.idx}, 0x44444444, v{r.idx}')
    a(f'v_lshlrev_b32 v{T}, 2, v{G}'); a(f'v_sub_u32 v{T}, v{N}, v{T}')
    a(f'v_mov_b32 v{T+1}, 0x3f80'); a(f'v_mov_b32 v{T+2}, 0x3f800000')
    def onehot(dst, nregs):
        for i in range(nregs):
            a(f'v_cmp_eq_u32 vcc, {2*i}, v{T}'); a(f'v_cndmask_b32 v{dst+i}, 0, v{T+1}, vcc')
            a(f'v_cmp_eq_u32 vcc, {2*i+1}, v{T}'); a(f'v_cndmask_b32 v{dst+i}, v{dst+i}, v{T+2}, vcc')
    onehot(r.I, 2)
    a(f'v_and_b32 v{T}, 11, v{N}')
    onehot(r.E, 2)
    a(f'v_mov_b32 v{r.E+2}, v{r.E}'); a(f'v_mov_b32 v{r.E+3}, v{r.E+1}')
    for i in range(4): a(f'v_mov_b32 v{r.One+i}, 0x3f803f80')
    a(f'v_mov_b32 v{r.PZ+1}, 0'); a(f'v_mov_b32 v{r.Z}, 0'); a(f'v_mov_b32 v{r.Z+1}, 0')
    a(f'v_lshrrev_b32 v{T}, 3, v{L}'); a(f'v_lshlrev_b32 v{T}, 11, v{T}'); a(f'v_and_b32 v{T+1}, 7, v{L}')
    a(f'v_lshl_add_u32 v{r.aPst}, v{T+1}, 3, v{T}')
    a(f's_lshl_b32 s{S_T}, s{S_W}, 14'); a(f's_lshl_b32 s{S_T2}, s{S_H}, 6'); a(f's_add_u32 s{S_T}, s{S_T}, s{S_T2}')
    a(f's_add_u32 s{S_T}, s{S_T}, {W.CP}'); add64(a, S_CP, S_WS, f's{S_T}')
    for p in range(1, 4): add64(a, S_CP+2*p, S_CP, p * 65536)
    assert W.CP >= LM and W.CM >= LM
    a(f's_lshl_b32 s{S_T}, s{S_W}, 16'); a(f's_lshl_b32 s{S_T2}, s{S_H}, 11'); a(f's_add_u32 s{S_T}, s{S_T}, s{S_T2}')
    a(f's_add_u32 s{S_T}, s{S_T}, {W.CP - LM}'); add64(a, S_CPR, S_WS, f's{S_T}')
    add64(a, S_CM, S_WS, W.CM); add64(a, S_CML, S_WS, W.CM - LM + 4096)
    a(f's_lshl_b32 s{S_T2}, s{S_W}, 11'); a(f's_lshr_b32 s{S_T3}, s{S_H}, 3'); a(f's_lshl_b32 s{S_T3}, s{S_T3}, 9'); a(f's_add_u32 s{S_T2}, s{S_T2}, s{S_T3}')
    a(f's_and_b32 s{S_T3}, s{S_H}, 1'); a(f's_lshl_b32 s{S_T3}, s{S_T3}, 8'); a(f's_add_u32 s{S_T2}, s{S_T2}, s{S_T3}')
    a(f's_bfe_u32 s{S_T3}, s{S_H}, 0x20001'); a(f's_lshl_b32 s{S_T3}, s{S_T3}, 6'); a(f's_add_u32 s{S_T2}, s{S_T2}, s{S_T3}')
    a(f'v_bfe_u32 v{T}, v{L}, 1, 1'); a(f'v_lshlrev_b32 v{T}, 5, v{T}')
    a(f'v_and_b32 v{T+1}, 1, v{L}'); a(f'v_lshl_add_u32 v{T}, v{T+1}, 3, v{T}')
    a(f'v_and_b32 v{T+1}, 1, v{G}'); a(f'v_lshl_add_u32 v{T}, v{T+1}, 4, v{T}')
    a(f'v_add_u32 v{r.aMst}, s{S_T2}, v{T}')
    a(f's_cmp_lt_u32 s{S_W}, 2'); a(f's_cselect_b32 s{S_XR}, -1, s{S_XR}'); a(f's_cselect_b32 s{S_T3}, {REP}, 0')
    a(f'v_bfe_u32 v{T}, v{L}, 2, 2'); a(f'v_mul_lo_u32 v{T}, v{T}, s{S_T3}'); a(f'v_add_u32 v{r.aMst}, v{r.aMst}, v{T}')
    a(f's_mul_i32 s{S_T3}, s{S_W}, {REP}'); add64(a, S_CME, S_CML, f's{S_T3}')
    a(f's_bfe_u32 s{S_T2}, s{S_H}, 0x20001'); a(f's_lshl_b32 s{S_T2}, s{S_T2}, 11')
    a(f's_lshr_b32 s{S_T3}, s{S_H}, 3'); a(f's_lshl_b32 s{S_T3}, s{S_T3}, 8'); a(f's_add_u32 s{S_T2}, s{S_T2}, s{S_T3}')
    a(f's_and_b32 s{S_T3}, s{S_H}, 1'); a(f's_lshl_b32 s{S_T3}, s{S_T3}, 7'); a(f's_add_u32 s{S_T2}, s{S_T2}, s{S_T3}')
    a(f's_lshl_b32 s{S_T3}, s{S_W}, 2'); a(f's_add_u32 s{S_M0}, s{S_T2}, s{S_T3}')
    a(f'v_lshrrev_b32 v{T}, 1, v{G}'); a(f'v_lshlrev_b32 v{T}, 8, v{T}'); a(f'v_and_b32 v{T+1}, 1, v{G}')
    a(f'v_lshl_add_u32 v{T}, v{T+1}, 5, v{T}'); a(f'v_lshl_add_u32 v{T}, v{N}, 4, v{T}')
    a(f's_lshl_b32 s{S_T}, s{S_W}, 9'); a(f's_add_u32 s{S_T}, s{S_T}, {LM}'); a(f'v_add_u32 v{r.aOw}, s{S_T}, v{T}')
    a(f'v_and_b32 v{T}, 2, v{L}'); a(f'v_cmp_eq_u32 vcc, 0, v{T}')
    a(f's_lshl_b32 s{S_T}, s{S_W}, 10'); a(f's_add_u32 s{S_T}, s{S_T}, {LM+12288}'); a(f'v_add_u32 v{T}, s{S_T}, v{L16}')
    a(f'v_and_b32 v{T+1}, 1, v{G}'); a(f'v_lshlrev_b32 v{T+1}, 5, v{T+1}'); a(f'v_xor_b32 v{T}, v{T}, v{T+1}')
    a(f'v_cndmask_b32 v{r.aOw}, v{T}, v{r.aOw}, vcc')
    a(f'v_lshrrev_b32 v{T}, 3, v{N}'); a(f'v_lshlrev_b32 v{T}, 8, v{T}'); a(f'v_and_b32 v{T+1}, 7, v{N}'); a(f'v_lshl_add_u32 v{T}, v{T+1}, 4, v{T}')
    a(f'v_lshl_add_u32 v{T}, v{G}, 9, v{T}')
    a(f's_lshl_b32 s{S_T}, s{S_W}, 11'); a(f's_add_u32 s{S_T2}, s{S_T}, {HB_K}'); a(f'v_add_u32 v{r.aK}, s{S_T2}, v{T}')
    a(f'v_lshlrev_b32 v{T}, 4, v{N}'); a(f'v_lshl_add_u32 v{T}, v{G}, 9, v{T}')
    a(f's_add_u32 s{S_T2}, s{S_T}, {HB_V}'); a(f'v_add_u32 v{r.aV}, s{S_T2}, v{T}')
    a(f'v_lshrrev_b32 v{T}, 2, v{N}'); a(f'v_lshlrev_b32 v{T}, 5, v{T}'); a(f'v_and_b32 v{T+1}, 1, v{N}'); a(f'v_lshl_add_u32 v{T}, v{T+1}, 4, v{T}')
    a(f'v_lshl_add_u32 v{T}, v{G}, 7, v{T}')
    a(f's_lshl_b32 s{S_T}, s{S_W}, 9'); a(f's_add_u32 s{S_T2}, s{S_T}, {HB_KM}'); a(f'v_add_u32 v{r.aKm}, s{S_T2}, v{T}')
    a(f'v_lshlrev_b32 v{T}, 3, v{L}'); a(f's_add_u32 s{S_T2}, s{S_T}, {HB_VM}'); a(f'v_add_u32 v{r.aVm}, s{S_T2}, v{T}')
    a(f'v_add_u32 v{r.aL}, {LM}, v{L16}')
    a(f'v_lshlrev_b32 v{T}, 2, v{L}'); a(f'v_add_u32 v{r.PG+1}, {LS+4096}, v{T}')
    a(f's_mov_b32 s{S_XP}, 0x01010101'); a(f's_mov_b32 s{S_XP+1}, 0x01010101')
    KBG = r.T+3; VO = r.VX
    a(f'v_lshrrev_b32 v{T}, 1, v{G}'); a(f'v_lshlrev_b32 v{T}, 4, v{T}')
    a(f'v_and_b32 v{T+1}, 1, v{G}'); a(f'v_lshl_add_u32 v{KBG}, v{T+1}, 2, v{T}')
    a(f's_lshl_b32 s{S_T}, s{S_H}, 8'); a(f's_lshl_b32 s{S_T2}, s{S_W}, 6'); a(f's_add_u32 s{S_T}, s{S_T}, s{S_T2}')
    a(f'v_lshlrev_b32 v{VO}, 15, v{KBG}'); a(f'v_lshl_add_u32 v{VO}, v{N}, 2, v{VO}'); a(f'v_add_u32 v{VO}, s{S_T}, v{VO}')
    a(f's_mov_b32 s{S_SRD+2}, {4*MB}'); a(f's_mov_b32 s{S_SRD+3}, 0x20000')
    NB = 11; PK = 88; U = 96
    groups = [(m, s, rg) for m in 'kvq' for rg in range(2) for s in range(8)]
    TQ = r.VX+1; TO = r.VX+2; TD_ = r.VX+3
    a(f'v_lshrrev_b32 v{TQ}, 1, v0'); a(f'v_lshlrev_b32 v{TQ}, 13, v{TQ}'); a(f'v_and_b32 v{TO}, 1, v0'); a(f'v_lshl_add_u32 v{TQ}, v{TO}, 7, v{TQ}')
    a(f's_lshl_b32 s{S_T}, s{S_H}, 8'); a(f'v_add_u32 v{TQ}, s{S_T}, v{TQ}')
    a(f's_lshl_b32 s{S_T}, s{S_H}, 17'); a(f'v_lshl_add_u32 v{TO}, v0, 7, s{S_T}')
    for i, ka in enumerate((KA_WK, KA_WV, KA_WQ, KA_WO)): a(f's_load_dwordx2 s[{60+2*i}:{61+2*i}], s[0:1], {ka}')
    a('s_waitcnt lgkmcnt(0)')
    def touch(hm):
        if hm >= 8 or not ahead: return 0
        for i in range(2):
            off = ((128*(hm&1) + 256*i) * 8192) if hm < 6 else (65536*(hm&1) + 32768*i)
            add64(a, S_TMP, 60 + 2*(hm >> 1), off)
            a(f'global_load_dword v{TD_}, v{TQ if hm < 6 else TO}, s[{S_TMP}:{S_TMP+1}]')
        return 2
    def put(block, rg, i, emit, pend):
        k, base = r.place[block]
        if k == 'v': emit(base+4*rg+i)
        elif k == 'a':
            emit(pend+i); a(f'v_accvgpr_write_b32 a{base+4*rg+i}, v{pend+i}')
        else:
            emit(pend+i)
            if i == 3:
                a(f'ds_write_b128 v{r.aW}, {vr(pend,4)} offset:{base+1024*rg}'); a('s_waitcnt lgkmcnt(0)')
    DEPTH = 6
    wf = WF[0]
    kaoff = {'q': KA_WQ, 'k': KA_WK, 'v': KA_WV}
    cur = [None]
    def issue(gi):
        m, s, rg = groups[gi]
        if cur[0] != m:
            a(f's_load_dwordx2 s[{S_SRD}:{S_SRD+1}], s[0:1], {kaoff[m]}'); a('s_waitcnt lgkmcnt(0)'); cur[0] = m
        if True:
            if s < 4: a(f's_and_b32 s{S_T2}, s{S_W}, {ROT[0]}'); a(f's_xor_b32 s{S_T2}, s{S_T2}, {s}')
            else: a(f's_and_b32 s{S_T2}, s{S_W}, {ROT[1]}'); a(f's_xor_b32 s{S_T2}, s{S_T2}, {s}')
            a(f's_and_b32 s{S_T3}, s{S_T2}, 1'); a(f's_lshl_b32 s{S_T3}, s{S_T3}, 21'); a(f's_and_b32 s{S_T2}, s{S_T2}, 6'); a(f's_lshl_b32 s{S_T2}, s{S_T2}, 13')
            a(f's_add_u32 s{S_T3}, s{S_T3}, s{S_T2}')
        b = (gi % NB) * 8
        for jj in range(8):
            a(f's_add_u32 s{S_T}, s{S_T3}, {(128*rg+DELTA2[jj])*8192}')
            a(f'buffer_load_dword v{b+jj}, v{VO}, s[{S_SRD}:{S_SRD+3}], s{S_T} offen {wf}')
    def consume(gi):
        m, s, rg = groups[gi]; b = (gi % NB) * 8
        for t in range(2):
            for i in range(4):
                lo, hi = b+2*i, b+2*i+1
                if m == 'q':
                    def emit(d, lo=lo, hi=hi, t=t):
                        if t == 0: a(f'v_lshlrev_b32 v{U}, 16, v{lo}'); a(f'v_lshlrev_b32 v{U+1}, 16, v{hi}')
                        else: a(f'v_and_b32 v{U}, 0xffff0000, v{lo}'); a(f'v_and_b32 v{U+1}, 0xffff0000, v{hi}')
                        a(f'v_mul_f32 v{U}, s{S_C}, v{U}'); a(f'v_mul_f32 v{U+1}, s{S_C}, v{U+1}'); a(f'v_cvt_pk_bf16_f32 v{d}, v{U}, v{U+1}')
                else:
                    def emit(d, lo=lo, hi=hi, t=t): a(f'v_perm_b32 v{d}, v{hi}, v{lo}, s{S_PHI if t else S_PLO}')
                put((m, t, s), rg, i, emit, PK + 4*t)
    ops = []
    for hm in range(ahead): touch(hm)
    for gi in range(len(groups) + DEPTH):
        if gi < len(groups):
            n = touch(gi // 8 + ahead) if gi % 8 == 0 else 0
            issue(gi); ops.append(n + 8)
        if gi == DEPTH - 1 and first: a(f's_waitcnt vmcnt({sum(ops)})'); first()
        if gi == 14 and mid: a('s_waitcnt vmcnt(40)'); mid(None)
        if gi >= DEPTH:
            a(f's_waitcnt vmcnt({sum(ops[gi-DEPTH+1:])})')
            consume(gi - DEPTH)
    for hm in range(6 + ahead, 8): touch(hm)
    a(f's_load_dwordx2 s[{S_SRD}:{S_SRD+1}], s[0:1], {KA_WO}')
    a(f's_lshl_b32 s{S_T}, s{S_H}, 17'); a(f's_lshl_b32 s{S_T2}, s{S_W}, 8'); a(f's_add_u32 s{S_T}, s{S_T}, s{S_T2}')
    a(f'v_lshlrev_b32 v{VO}, 10, v{KBG}'); a(f'v_lshl_add_u32 v{VO}, v{N}, 4, v{VO}'); a(f'v_add_u32 v{VO}, s{S_T}, v{VO}')
    a('s_waitcnt lgkmcnt(0)')
    og = [(k, rg) for k in range(2) for rg in range(2)]
    def oissue(gi):
        k, rg = og[gi]; b = (gi % 2) * 32
        for jj in range(8):
            a(f's_mov_b32 s{S_T}, {(64*k+32*rg+DELTA[jj])*1024}')
            a(f'buffer_load_dwordx4 {vr(b+4*jj,4)}, v{VO}, s[{S_SRD}:{S_SRD+3}], s{S_T} offen')
    def ocons(gi):
        k, rg = og[gi]; b = (gi % 2) * 32
        for t in range(8):
            for i in range(4):
                def emit(d, hi=b+4*(2*i+1)+(t>>1), lo=b+4*(2*i)+(t>>1), t=t): a(f'v_perm_b32 v{d}, v{hi}, v{lo}, s{S_PHI if t & 1 else S_PLO}')
                put(('o', t, k), rg, i, emit, PK + 4*(t&1))
    oissue(0); oissue(1)
    for gi in range(4):
        a(f's_waitcnt vmcnt({8 if gi < 3 else 0})'); ocons(gi)
        if gi + 2 < 4: oissue(gi + 2)

def board_setup(a, r, stf):
    a(f's_lshl_b32 s{S_T}, s{S_H}, 2'); a(f's_add_u32 s{S_T}, s{S_T}, {W.CB - LM}')
    add64(a, S_BW, S_WS, f's{S_T}'); add64(a, S_BR, S_WS, W.CB - LS - 4096); a(f's_mov_b32 s{S_GS}, 0')
    a('s_mov_b64 exec, 0x101'); a(f'global_store_dword v{r.aL}, v{r.Z}, s[{S_BW}:{S_BW+1}] {stf}'); a('s_mov_b64 exec, -1')

def chain_init_comm(a, r, stf, first, T=None):
    T = r.R if T is None else T
    a(f's_load_dwordx2 s[{S_TMP}:{S_TMP+1}], s[0:1], {KA_MEM0}')
    a(f'v_and_b32 v{T}, 0x30, v{r.aL}'); a(f'v_lshlrev_b32 v{T}, 1, v{T}'); a(f'v_bfe_u32 v{T+1}, v{r.aL}, 8, 1'); a(f'v_lshl_add_u32 v{T}, v{T+1}, 10, v{T}')
    a(f'v_add_u32 v{T}, s{S_M0}, v{T}')
    a(f's_xor_b32 s{S_T}, s{S_EP}, 1')
    for i in range(4): a(f'v_mov_b32 v{T+4+i}, s{S_T}')
    a('s_waitcnt lgkmcnt(0)')
    a(f'global_load_dword v{T+2}, v{T}, s[{S_TMP}:{S_TMP+1}]'); a(f'global_load_dword v{T+3}, v{T}, s[{S_TMP}:{S_TMP+1}] offset:16')
    if first:
        a(f'global_store_dwordx4 v{r.aL}, {vr(T+4,4)}, s[{S_CPR}:{S_CPR+1}] {stf}')
        a(f'global_store_dwordx4 v{r.aL}, {vr(T+4,4)}, s[{S_CPR}:{S_CPR+1}] offset:1024 {stf}')
    a('s_waitcnt vmcnt(0)')
    a(f'v_and_or_b32 v{T+2}, v{T+2}, -2, s{S_EM}')
    a(f's_mov_b64 exec, s[{S_XR}:{S_XR+1}]')
    a(f'global_store_dwordx2 v{r.aMst}, {vr(T+2,2)}, s[{S_CM}:{S_CM+1}] {stf}')
    a('s_mov_b64 exec, -1'); a('s_waitcnt vmcnt(0)')

def group_arrive(a, T, off):
    l1 = a.newlabel('Lgb')
    a('s_barrier')
    a(f'v_mov_b32 v{T}, {off}'); a(f'v_mov_b32 v{T+1}, 1')
    a(f's_cmp_lg_u32 s{S_W}, 0'); a(f's_cbranch_scc1 {l1}')
    a('s_mov_b64 exec, 1'); a(f'global_atomic_add v{T}, v{T+1}, s[{S_DBG}:{S_DBG+1}] sc1'); a('s_waitcnt vmcnt(0)'); a('s_mov_b64 exec, -1')
    a.label(l1)
def group_wait(a, T, off, count, fail):
    l2 = a.newlabel('Lgb'); l3 = a.newlabel('Lgb')
    a(f's_mov_b32 s{S_SPIN}, 0'); a(f'v_mov_b32 v{T}, {off}')
    a.label(l2)
    a(f'global_load_dword v{T+2}, v{T}, s[{S_DBG}:{S_DBG+1}] sc1'); a('s_waitcnt vmcnt(0)')
    a(f'v_readfirstlane_b32 s{S_T}, v{T+2}')
    a(f's_cmp_ge_u32 s{S_T}, {count}'); a(f's_cbranch_scc1 {l3}')
    a('s_sleep 2')
    a(f's_add_u32 s{S_SPIN}, s{S_SPIN}, 1'); a(f's_cmp_lt_u32 s{S_SPIN}, 0x60000'); a(f's_cbranch_scc1 {l2}')
    a(f's_branch {fail}')
    a.label(l3)

DPPQ = 'quad_perm:[2,3,0,1] row_mask:0xf bank_mask:0xf'
XA = 's_mov_b64 exec, -1'

def prog_load(a, r): a(f'global_load_dword v{r.PG}, v{r.PG+1}, s[{S_FH}:{S_FH+1}] sc1')
def prog_block(a, r, lbl, back, need_sgpr, fail):
    a.label(lbl)
    prog_load(a, r); a('s_waitcnt vmcnt(0)')
    a(f'v_cmp_ge_u32 s[{S_TMP}:{S_TMP+1}], s{need_sgpr}, v{r.PG}'); a(f's_and_b64 s[{S_TMP}:{S_TMP+1}], s[{S_TMP}:{S_TMP+1}], s[{S_XP}:{S_XP+1}]'); a(f's_cbranch_scc0 {back}')
    a('s_sleep 1')
    a(f's_add_u32 s{S_SPIN}, s{S_SPIN}, 1'); a(f's_cmp_lt_u32 s{S_SPIN}, 0x60000'); a(f's_cbranch_scc1 {lbl}')
    a(f's_branch {fail}')
def kv_load(a, r, i, dst, base=None):
    base = base or S_KV
    ad, off = ((r.aK, 0), (r.aK, 128), (r.aV, 0), (r.aV, 256))[i]
    a(f'global_load_dwordx4 {vr(dst+4*i,4)}, v{ad}, s[{base}:{base+1}] offset:{off} sc1')

def chain_start(a, r, fail, fused, started=None):
    HS = W.H[1].HB - W.H[0].HB
    a(f's_mul_i32 s{S_T2}, s{S_HALF}, {HS}'); a(f's_lshl_b32 s{S_T}, s{S_H}, 21'); a(f's_add_u32 s{S_T}, s{S_T}, s{S_T2}')
    a(f's_add_u32 s{S_T}, s{S_T}, {W.H[0].HB}'); add64(a, S_KV, S_WS, f's{S_T}'); a(f's_mov_b64 s[{S_HB}:{S_HB+1}], s[{S_KV}:{S_KV+1}]')
    a(f's_mov_b32 s{S_STEP}, 0'); a(f's_mov_b32 s{S_SPIN}, 0')
    a(f's_lshl_b32 s{S_T}, s{S_H}, 8'); a(f's_lshl_b32 s{S_T2}, s{S_HALF}, 17'); a(f's_add_u32 s{S_T}, s{S_T}, s{S_T2}')
    a(f's_add_u32 s{S_T}, s{S_T}, {FL(0, "CHP")}'); add64(a, S_FW, S_WS, f's{S_T}')
    a(f's_sub_u32 s{S_FH}, s{S_FW}, {FL(0, "CHP") - FL(0, "HEAD") + LS + 4096}'); a(f's_subb_u32 s{S_FH+1}, s{S_FW+1}, 0')
    a(f'v_mov_b32 v{r.PG}, 0'); a(f's_mov_b32 s{S_SP}, 0')
    for i in range(2): a(f'global_load_dwordx4 {vr(r.M+24+4*i,4)}, v{r.aL}, s[{S_CPR}:{S_CPR+1}] offset:{1024*i} sc1')
    add64(a, S_KV, S_KV, HB_REC)

def chain_wave(a, r, w, stf, fail, done, fused=1, pat=(13, 16, 16, 16), d1=(100, 140, 280, 320), d2=(0, 80, 20, 20), e23=(60, 40, 80, 60), lpos=4, nb=(2, 2, 1, 2), bk=(120, 60, 100, 60), es=16, eb=None, e3in=1, cp=1, rep=1, vdef=1, wsplit=0, vw=(1, 1, 1, 4), hkw=(0, 1), nowait=0, pkpos=0, pvearly=0, clk=0, comb=0, plate=0, direct=0, hkfirst=0, lp=(4, 8, 12, 16), nopad=1, pre1=24, pre2=4, e0e=None, e1g=0, ack1=(None, 2, 0, 0), ack2=(1, 0, 0, 0), bx=None, bp=(18, 19, 21, 23, 24, 25), bg=16, c1=(4, 4, 4, 4), ef='sc1', rt=None, started=None,
               nomax=1, stamps=False, stampsel=None, nocomm=0, nohk=0):
    R, A, M, T = r.R, r.A, r.M, r.T
    if isinstance(nb, tuple): nb = nb[w]
    if isinstance(bk, tuple): bk = bk[w]
    if isinstance(es, tuple): es = es[w]
    Aq = [A, A+4]; Ak = [A+8, A+12]; Av = [A+16, A+20]
    ACC = {'q': Aq, 'k': Ak, 'v': Av}
    ns = [0]; sid = [0]
    def st(name=None):
        if name is None:
            name = sid[0]; sid[0] += 1
        if stamps and ((stampsel is None and isinstance(name, int)) or (stampsel is not None and name in stampsel)):
            a(f's_memtime s[{S_STAMP+2*ns[0]}:{S_STAMP+2*ns[0]+1}]'); ns[0] += 1
    def tr(k):
        if rt is not None: a(f's_memtime s[{(S_STAMP+2*k) if k != 10 else 96}:{((S_STAMP+2*k) if k != 10 else 96)+1}]')
    pos = [None]
    def hook():
        if pos[0] is None or bx is None: return
        if w == 1 and pos[0] == bx: a('s_mov_b64 exec, 0x101'); a(f'global_store_dword v{r.aL}, v{r.PZ}, s[{S_BW}:{S_BW+1}] {stf}'); a(XA)
        if w == 0 and pos[0] in bp: a(f'global_load_dword v{r.PG}, v{r.PG+1}, s[{S_BR}:{S_BR+1}] sc1')
        pos[0] += 1
    def smf(acc, aop, b): a(f'v_smfmac_f32_16x16x64_bf16 {vr(acc,4)}, {vr(aop,4)}, {b}, v{r.idx}'); hook()
    def m32(d, x, y, c): a(f'v_mfma_f32_16x16x32_bf16 {vr(d,4)}, {vr(x,4)}, {vr(y,4)}, {vr(d,4) if c else 0}'); hook()
    def m16(d, x, y, c): a(f'v_mfma_f32_16x16x16_bf16 {vr(d,4)}, {vr(x,2)}, {vr(y,2)}, {vr(d,4) if c else 0}'); hook()
    def ldh(dst, b, hh): a(f'ds_read_b128 {vr(dst+4*hh,4)}, v{r.aW} offset:{r.place[b][1]+1024*hh}')
    def nops(c):
        n = c // 4
        if n > 0: a.comment('back-off: a request issued before the data have reached L2 only costs a retry')
        while n > 0:
            k = min(n, 16); a(f's_nop {k-1}'); n -= k
    def add0(c): a(f'v_add_f32 v{c}, v{c}, v{c+2}')
    def add1(c): a(f'v_add_f32 v{c+1}, v{c+1}, v{c+3}')
    def cvt(d, x, y): a(f'v_cvt_pk_bf16_f32 v{d}, v{x}, v{y}')
    def pka(d, x, y): a(f'v_pk_add_f32 {vr(d,2)}, {vr(x,2)}, {vr(y,2)}')
    def e_load(j, f='sc1'):
        b = S_CME if (j < 4 and rep) else S_CML
        a(f'global_load_dwordx4 {vr(M+4*j,4)}, v{r.aL}, s[{b}:{b+1}] offset:{1024*frag_of(w,j)-4096} {f}')
    PL = [M+24, R+24, M+16, R+16]; PD = A+24; t0 = A+28; t1 = A+29
    def p_loads(k=0):
        a(f'global_load_dwordx4 {vr(PL[k],4)}, v{r.aL}, s[{S_CPR}:{S_CPR+1}] sc1')
        a(f'global_load_dwordx4 {vr(PL[k]+4,4)}, v{r.aL}, s[{S_CPR}:{S_CPR+1}] offset:1024 sc1')
    def ring_prefetch():
        for e in range(4):
            for hh in range(2): ldh(R+8*e, ('q', 1, e), hh)
    def zero(base, n):
        for i in range(n): a(f'v_mov_b32 v{base+i}, 0')
    def spin_or_fail():
        a(f's_add_u32 s{S_SPIN}, s{S_SPIN}, 1'); a(f's_cmp_lt_u32 s{S_SPIN}, 0x60000'); a(f's_cbranch_scc0 {fail}')
    LA = a.newlabel('Lc_A'); Ldone = a.newlabel('Lc_done')
    Lr = [a.newlabel('Lc_rE') for _ in range(8)]; Lc = [a.newlabel('Lc_cE') for _ in range(8)]
    Lhk = a.newlabel('Lc_hk'); Lhb = a.newlabel('Lc_hb'); Lexp = a.newlabel('Lc_exp'); Lfb = a.newlabel('Lc_fb'); Lnofb = a.newlabel('Lc_nofb'); Lsp = a.newlabel('Lc_sp'); Lspb = a.newlabel('Lc_spb')
    if stamps: _ = [a(f's_mov_b32 s{84+k}, 0') for k in range(12)]
    zero(A, 24); ring_prefetch()
    a(f's_add_u32 s{S_GS}, s{S_GS}, 1'); a(f'v_mov_b32 v{r.PZ}, s{S_GS}')
    for j in range(4): e_load(j)
    a('s_waitcnt vmcnt(0)')
    a('.p2align 6')
    a.label(LA)
    e3 = False; ex = 1 if eb is not None else 0
    ringof = {('q',1,0):0, ('q',1,1):1, ('q',1,2):2, ('q',1,3):3, ('q',1,4):0, ('q',0,4):1, ('q',1,5):2, ('q',0,5):3, ('q',0,6):0, ('q',0,7):1, ('q',1,6):2, ('q',1,7):3}
    def S(m, t, s):
        b = (m, t, s)
        smf(ACC[m][t], M+4*s, vr(R+8*ringof[b], 8) if b in ringof else r.blk(b))
    def tagx(d, j): return f'v_bitop3_b32 v{d}, v{M+4*j}, v{M+4*j+2}, s{S_EM} bitop3:0x7e'
    def chk(j):
        return [f'v_bitop3_b32 v{t0}, v{M+4*j}, v{M+4*j+2}, s{S_EM} bitop3:0x7e', f'v_and_b32 v{t0}, 1, v{t0}', f'v_cmp_ne_u32 vcc, 0, v{t0}']
    vm0 = ['E0', 'E1'] + (['x'] if ex else []) + ['E2'] + ([] if e3in else ['E3'])
    ee = e0e is not None; eh = ee and d2[w] < e0e
    if ee: vm0 = ['E0'] + (['m'] if eh else []) + ['x', 'E1', 'E2'] + ([] if e3in else ['E3'])
    a(f's_waitcnt vmcnt({len(vm0)-1}) lgkmcnt(0)')
    tr(7)
    for l in chk(0): a(l)
    a.label(Lc[0])
    st()
    tr(8)
    order = (('q',1),('q',0),('k',0),('k',1),('v',0),('v',1))
    dsq = [(R+24, ('q',1,3), 0), (R+24, ('q',1,3), 1), (R, ('q',1,4), 0), (R, ('q',1,4), 1), (R+16, ('q',1,2), 0), (R+16, ('q',1,2), 1),
           None, (R+8, ('q',0,4), 0), (R+8, ('q',0,4), 1), None, None, None,
           None, (R+16, ('q',1,5), 0), (R+16, ('q',1,5), 1), None, None, None]
    cnt = 0
    vm = list(vm0)
    def after_of(n): return len(vm) - 1 - vm.index(n)
    issued_at = {}
    def probe():
        a(f'global_load_dword v{r.PG}, v{r.PG+1}, s[{S_BR}:{S_BR+1}] sc1')
    def extras(cnt):
        if e3in and cnt == 2: e_load(3); vm.append('E3')
        if not direct and cnt == lpos: e_load(4); vm.append('E4')
        if direct and cnt in lp: j = 4 + lp.index(cnt); e_load(j); vm.append('E%d' % j)
    for sl in range(3):
        c = chk(sl+1)
        for i, (m, t) in enumerate(order):
            S(m, t, sl)
            if dsq[cnt]: ldh(*dsq[cnt])
            extras(cnt)
            if cnt == 0: a(f's_mov_b32 s{S_FB}, 0')
            if cnt == 11: a('s_waitcnt lgkmcnt(2)')
            if cnt == 1: a(f's_cbranch_vccnz {Lr[0]}')
            cnt += 1
            if comb:
                if i == 5: a(f's_waitcnt vmcnt({after_of("E%d" % (sl+1))})')
                if i == 0 and sl > 0: a(tagx(PD+sl-1, sl))
            else:
                if i == cp: a(f's_waitcnt vmcnt({after_of("E%d" % (sl+1))})')
                if cp <= i < cp + 3: a(c[i-cp])
            if fused and (w == hkw[0] or direct) and cnt == (9 if comb else 7):
                a(f's_add_u32 s{S_T3}, s{S_STEP}, 1'); a(f's_min_u32 s{S_T3}, s{S_T3}, 63'); a(f'v_cmp_ge_u32 s[{S_TMP}:{S_TMP+1}], s{S_T3}, v{r.PG}')
        if not comb: a(f's_cbranch_vccnz {Lr[sl+1]}')
        issued_at[sl+1] = list(vm)
        a.label(Lc[sl+1])
    def pub_k(): a(f's_mov_b64 exec, s[{S_XH0}:{S_XH0+1}]'); a(f'global_store_dwordx4 v{r.aKm}, {vr(T,4)}, s[{S_HB}:{S_HB+1}] sc1'); a(XA)
    def pub_v(): a(f'global_store_dwordx2 v{r.aVm}, {vr(A+30,2)}, s[{S_HB}:{S_HB+1}] sc1')
    TA = [R+0, R+2]; TD = [R+4, R+8]; SX = [R+16, R+20]; SM = R+24
    Lk0 = a.newlabel('Lc_k0'); Lk0b = a.newlabel('Lc_k0b'); Lbs = a.newlabel('Lc_bs'); Lbg = a.newlabel('Lc_bg')
    nhk = 0 if nohk else 5 + (1 if pkpos in (1, 3, 4) else 0) + (1 if (fused and w in hkw) else 0)
    if direct:
        assert vdef and pkpos == 0 and max(lp) < 18 and not comb
        def W(j): a(f's_waitcnt vmcnt({after_of("E%d" % j)})')
        def B(j): a(f's_cbranch_vccnz {Lr[j]}'); issued_at[j] = list(vm); a.label(Lc[j])
        c = chk(4)
        a('s_waitcnt lgkmcnt(4)')
        S('q',1,3); W(4); a(c[0])
        S('q',0,3); ldh(R+24, ('q',0,5), 0); a(c[1])
        S('k',0,3); ldh(R+24, ('q',0,5), 1); a(c[2])
        S('k',1,3)
        if fused:
            a(f's_and_b64 s[{S_TMP}:{S_TMP+1}], s[{S_TMP}:{S_TMP+1}], s[{S_XP}:{S_XP+1}]'); a(f's_cbranch_scc1 {Lhb}'); a.label(Lhk)
        a('s_waitcnt lgkmcnt(4)'); B(4)
        c = chk(5)
        S('q',1,4); W(5); a(c[0])
        S('q',0,4); ldh(R+0, ('q',0,6), 0); a(c[1])
        S('k',0,4); ldh(R+0, ('q',0,6), 1); a(c[2])
        S('k',1,4); ldh(R+8, ('q',0,7), 0); a('s_waitcnt lgkmcnt(3)'); B(5)
        c = chk(6)
        S('q',1,5); ldh(R+8, ('q',0,7), 1); W(6); a(c[0])
        S('q',0,5); ldh(R+16, ('q',1,6), 0); a(c[1])
        S('k',0,5); ldh(R+16, ('q',1,6), 1); a(c[2])
        S('k',1,5); ldh(R+24, ('q',1,7), 0); B(6)
        c = chk(7)
        S('k',0,6); ldh(R+24, ('q',1,7), 1); W(7); a('s_waitcnt lgkmcnt(4)'); a(c[0])
        S('q',0,6); a(c[1]); a(c[2])
        S('k',1,6); a(f's_cmp_eq_u32 s{S_STEP}, 0'); a('s_waitcnt lgkmcnt(2)')
        S('q',1,6); B(7); a(f's_cbranch_scc1 {Lk0}'); a.label(Lk0b)
        S('k',0,7)
        if not nohk: kv_load(a, r, 0, M); kv_load(a, r, 1, M)
        S('q',0,7)
        if not nohk: kv_load(a, r, 2, M)
        if fused: prog_load(a, r)
        S('k',1,7)
        if fused and w == hkw[1]: a('s_mov_b64 exec, 1'); a(f'global_store_dword v{r.Z}, v{t1}, s[{S_FW}:{S_FW+1}] sc1'); a(XA)
        a('s_waitcnt lgkmcnt(0)'); add0(Ak[0])
        S('q',1,7); a(f's_mov_b64 vcc, s[{S_XH1}:{S_XH1+1}]'); add1(Ak[0]); cvt(TA[0], Ak[0], Ak[0]+1); add0(Aq[0]); add1(Aq[0]); cvt(TA[0]+1, Aq[0], Aq[0]+1)
        nhk = 0 if nohk else 5 + (1 if fused else 0) + (1 if (fused and w == hkw[1]) else 0)
    else:
        assert 2 <= lpos < 14
        c = chk(4)
        if comb: c = [tagx(PD+2, 3) + '\n' + tagx(t0, 4), f'v_or3_b32 v{PD}, v{PD}, v{PD+1}, v{PD+2}\nv_bitop3_b32 v{t0}, v{t0}, v{PD}, 1 bitop3:0xa8', f'v_cmp_ne_u32 vcc, 0, v{t0}']
        a('s_waitcnt lgkmcnt(4)')
        S('q',1,3)
        a(f's_waitcnt vmcnt({after_of("E4")})')
        a(f'ds_write_b128 v{r.aL}, {vr(M+16,4)} offset:{1024*w}')
        a(c[0])
        S('q',0,3); ldh(R+24, ('q',0,5), 0); extras(19); a(c[1])
        S('k',0,3); ldh(R+24, ('q',0,5), 1); extras(20); a(c[2])
        S('k',1,3); extras(21)
        if fused and w == hkw[0]:
            a(f's_and_b64 s[{S_TMP}:{S_TMP+1}], s[{S_TMP}:{S_TMP+1}], s[{S_XP}:{S_XP+1}]'); a(f's_cbranch_scc1 {Lhb}'); a.label(Lhk)
        if not vdef: S('v',0,3)
        a(f's_cbranch_vccnz {Lr[4]}')
        a.label(Lc[4])
        tr(9)
        if not nohk and pkpos == 4: a(f's_mov_b64 exec, s[{S_XH0}:{S_XH0+1}]'); a(f'global_store_dwordx4 v{r.aKm}, {vr(T,4)}, s[{S_HB}:{S_HB+1}] sc1'); a(XA)
        a('s_waitcnt lgkmcnt(2)'); a('s_barrier')
        tr(10)
        pos[0] = 0
        def rdm(j): a(f'ds_read_b128 {vr(M+16+4*j,4)}, v{r.aL} offset:{1024*(w^j)}')
        def pub_k(): a(f's_mov_b64 exec, s[{S_XH0}:{S_XH0+1}]'); a(f'global_store_dwordx4 v{r.aKm}, {vr(T,4)}, s[{S_HB}:{S_HB+1}] sc1'); a(XA)
        def pub_v(): a(f'global_store_dwordx2 v{r.aVm}, {vr(A+30,2)}, s[{S_HB}:{S_HB+1}] sc1')
        hk = []
        if not nohk:
            hk = [lambda i=i: kv_load(a, r, i, M) if not (vdef and i == 3) else None for i in range(4)]
            if fused and w == hkw[1]: hk.append(lambda: (a('s_mov_b64 exec, 1'), a(f'global_store_dword v{r.Z}, v{t1}, s[{S_FW}:{S_FW+1}] sc1'), a(XA)))
            if fused and w == hkw[0]: hk.append(lambda: prog_load(a, r))
            if w not in hkw or not fused: hk.append(lambda: None)
        if hkfirst and hk: hk = [hk[4]] + hk[:4]
        def H():
            if hk: hk.pop(0)()
        rdm(1)
        if not vdef: S('v',1,3)
        rdm(2); rdm(3)
        S('q',1,4); a(f's_cmp_eq_u32 s{S_STEP}, 0'); a(f's_cbranch_scc1 {Lk0}'); a.label(Lk0b); H()
        S('q',0,4); ldh(R+0, ('q',0,6), 0); H()
        S('k',0,4); ldh(R+0, ('q',0,6), 1); H()
        S('k',1,4); ldh(R+8, ('q',0,7), 0); H(); a('s_waitcnt lgkmcnt(5)')
        S('q',1,5); ldh(R+8, ('q',0,7), 1)
        if not nohk and pkpos == 3: pub_k()
        S('q',0,5); ldh(R+16, ('q',1,6), 0)
        if not nohk and pvearly: pub_v()
        S('k',0,5); ldh(R+16, ('q',1,6), 1); a('s_waitcnt lgkmcnt(6)')
        S('k',0,6); ldh(R+24, ('q',1,7), 0)
        S('k',0,7); ldh(R+24, ('q',1,7), 1); a('s_waitcnt lgkmcnt(4)')
        S('q',0,6); H()
        TA = [R+0, R+2]; TD = [R+4, R+8]; SX = [R+16, R+20]; SM = R+24
        S('q',0,7); add0(Ak[0])
        S('k',1,5); add1(Ak[0])
        assert not hk
        S('k',1,6); cvt(TA[0], Ak[0], Ak[0]+1)
        S('k',1,7); a('s_waitcnt lgkmcnt(0)'); add0(Aq[0])
        S('q',1,6); a(f's_mov_b64 vcc, s[{S_XH1}:{S_XH1+1}]'); add1(Aq[0])
        S('q',1,7); cvt(TA[0]+1, Aq[0], Aq[0]+1)
    st()
    vq = [(t, s) for s in range(3 if vdef else 4, 8) for t in range(2)]
    def V(n=1):
        for _ in range(n):
            t, s = vq.pop(0); S('v', t, s)
    add0(Ak[1]); add1(Ak[1])
    m16(TD[0], TA[0], r.I, 0)
    cvt(TA[1], Ak[1], Ak[1]+1)
    add0(Aq[1]); add1(Aq[1])
    cvt(TA[1]+1, Aq[1], Aq[1]+1)
    m16(TD[1], TA[1], r.I, 0)
    a(f's_cmp_lg_u32 s{S_STEP}, 0'); a(f's_cselect_b32 s{S_T}, {HB_REC}, 0')
    V(1)
    if not nohk and not pvearly: pub_v()
    V(vw[0]-1)
    add64(a, S_HB, S_HB, f's{S_T}')
    for i in range(4): cvt(T+i, TD[0]+i, TD[1]+i)
    a(f's_cmp_eq_u32 s{S_STEP}, s{S_SP}'); a(f's_cbranch_scc1 {Lsp}')
    a.label(Lspb)
    m32(SX[0], r.KX, T, 0)
    a(f's_cmp_lt_u32 s{S_STEP}, 62'); a(f's_cselect_b32 s{S_T}, {HB_REC}, 0')
    m32(SX[1], r.KX+4, T, 0)
    m32(SM, T, T, 0)
    vrest = list(vq)
    V(vw[1])
    if vdef and not nohk: kv_load(a, r, 3, M)
    add64(a, S_KV, S_KV, f's{S_T}')
    for i in range(4): a(f'v_cndmask_b32_dpp v{SX[1]+i}, v{SX[0]+i}, v{SX[1]+i}, vcc {DPPQ}')
    SO = SX[1]; SMO = SM+1
    a(f'v_cndmask_b32_dpp v{SMO}, v{SM}, v{SM+1}, vcc {DPPQ}')
    V(vw[2])
    a(f'ds_write_b128 v{r.aL}, {vr(SO,4)} offset:{LS-LM+1024*w}')
    if wsplit: V(1)
    a(f'ds_write_b32 v{r.PG+1}, v{SMO} offset:{256*w}')
    V(vw[3]-1)
    if not nohk and pkpos == 1: pub_k()
    if bx is not None and w == 0: a(f'v_cmp_ne_u32 vcc, s{S_GS}, v{r.PG} ; nowaitcheck')
    V(1)
    pos[0] = None
    if bx is not None and w == 0:
        a(f's_cbranch_vccnz {Lbs}'); a.label(Lbg); a('s_waitcnt lgkmcnt(0)'); a('s_barrier')
    elif bx is not None and w == 1: a('s_waitcnt lgkmcnt(0)'); a('s_barrier')
    elif nowait & 1: a('s_barrier')
    else: a(f's_waitcnt vmcnt({nhk}) lgkmcnt(0)'); a('s_barrier')
    st()
    tr(11)
    RD = [R+0, R+4, R+8]; RM = R+28
    o4 = (LS-LM+4096)//256
    for j in range(3): a(f'ds_read_b128 {vr(RD[j],4)}, v{r.aL} offset:{LS-LM+1024*(w^(j+1))}')
    V(1)
    a(f'ds_read2st64_b32 {vr(RM,2)}, v{r.PG+1} offset0:{w^1} offset1:{w^2}')
    a(f'ds_read_b32 v{RM+2}, v{r.PG+1} offset:{256*(w^3)}')
    V(len(vq))
    if not nohk and pkpos == 0: pub_k()
    if plate and fused and w == hkw[0]: prog_load(a, r)
    assert not vq
    P = R+16; MX = R+26; TM = R+27
    D = [R+8, R+12]; SUM = R+28; X = R+0
    a('s_waitcnt lgkmcnt(2)')
    for i in range(4): a(f'v_add_f32 v{SO+i}, v{SO+i}, v{RD[0]+i}')
    pka(RD[1], RD[1], RD[2]); pka(RD[1]+2, RD[1]+2, RD[2]+2)
    a('s_waitcnt lgkmcnt(0)')
    a(f'v_add_f32 v{SMO}, v{SMO}, v{RM+2}'); a(f'v_add_f32 v{RM}, v{RM}, v{RM+1}')
    pka(SO, SO, RD[1]); pka(SO+2, SO+2, RD[1]+2)
    a(f'v_add_f32 v{SMO}, v{SMO}, v{RM}')
    pka(Av[0], Av[0], Av[0]+2); pka(Av[1], Av[1], Av[1]+2)
    def submax():
        a(f'v_max3_f32 v{MX}, v{SO}, v{SO+1}, v{SO+2}'); a(f'v_max3_f32 v{MX}, v{MX}, v{SO+3}, v{SMO}')
        a(f'v_max_f32_dpp v{MX}, v{MX}, v{MX} {DPPQ}')
        for sw in ('16', '32'):
            a(f'v_mov_b32 v{TM}, v{MX}'); a(f'v_permlane{sw}_swap_b32 v{MX}, v{TM}'); a(f'v_max_f32 v{MX}, v{MX}, v{TM}')
        for e in (SMO, SO, SO+1, SO+2, SO+3): a(f'v_sub_f32 v{e}, v{e}, v{MX}')
    if not nomax: submax()
    a.label(Lexp)
    a(f'v_exp_f32 v{X+4}, v{SMO}')
    cvt(r.VM, Av[0], Av[0]+1)
    a(f'v_exp_f32 v{X}, v{SO}')
    cvt(r.VM+2, Av[1], Av[1]+1)
    a(f'v_mov_b32_dpp v{TM}, v{X+4} {DPPQ}')
    a(f'v_exp_f32 v{X+1}, v{SO+1}')
    cvt(r.PZ, X+4, TM)
    a(f'v_exp_f32 v{X+2}, v{SO+2}')
    cvt(P, X, X+1)
    m16(SUM, r.One, r.PZ, 0); ldh(M+16, ('o',0,0), 0)
    a(f'v_exp_f32 v{X+3}, v{SO+3}')
    m16(D[0], r.VM, r.PZ, 0); ldh(M+16, ('o',0,0), 1)
    a(f'v_mov_b32_dpp v{P+2}, v{P} {DPPQ}')
    cvt(P+1, X+2, X+3)
    m16(D[1], r.VM+2, r.PZ, 0)
    a(f'v_mov_b32_dpp v{P+3}, v{P+1} {DPPQ}')
    st()
    m32(SUM, r.One, P, 1); ldh(M+24, ('o',0,1), 0)
    m32(D[0], r.VX, P, 1); ldh(M+24, ('o',0,1), 1)
    m32(D[1], r.VX+4, P, 1)
    a(f'v_rcp_f32 v{SUM+2}, v{SUM}')
    for i in range(4): a(f'v_mul_f32 v{D[0]+i}, v{D[0]+i}, v{SUM+2}')
    for i in range(2): a(f'v_pk_mul_f32 {vr(D[1]+2*i,2)}, {vr(D[1]+2*i,2)}, {vr(SUM+2,2)} op_sel_hi:[1,0]')
    OP = R+0
    for i in range(4): cvt(OP+i, D[0]+i, D[1]+i)
    a(f'ds_write_b128 v{r.aOw}, {vr(OP,4)}')
    if nowait & 2:
        a('s_barrier'); a(f'ds_read_b128 {vr(R+24,4)}, v{r.aL}')
    a(f'v_mfma_f32_32x32x8_bf16 {vr(A,16)}, {vr(r.Z,2)}, {vr(r.Z,2)}, 0')
    ldh(R+8, ('o',6,0), 0); ldh(R+8, ('o',6,0), 1)
    if nomax and not nowait & 2:
        a(f'v_max_f32 v{SUM}, v{SUM}, v{SUM+2}'); a(f'v_cmp_nge_f32 vcc, {f2u(2.0**60):#x}, v{SUM}')
        a(f's_cbranch_vccnz {Lfb}'); a.label(Lnofb)
    if not nowait & 2: a('s_waitcnt lgkmcnt(2)'); a('s_barrier')
    st()
    if rt is not None:
        lt = a.newlabel('Lc_t'); a('s_waitcnt lgkmcnt(0)'); a(f's_cmp_lg_u32 s{S_STEP}, {rt}'); a(f's_cbranch_scc1 {lt}')
        _ = [a(f's_mov_b32 s{84+k}, s{(S_STAMP+2*k) if k != 10 else 96}') for k in range(12)]
        a.label(lt)
    tr(0)
    O = R+24
    a(f'ds_read_b128 {vr(O,4)}, v{r.aL}'); a(f'ds_read_b128 {vr(O+4,4)}, v{r.aL} offset:1024')
    a(f'v_mfma_f32_32x32x8_bf16 {vr(A+16,16)}, {vr(r.Z,2)}, {vr(r.Z,2)}, 0')
    if not nohk and pkpos == 2: pub_k()
    a(f's_xor_b32 s{S_EM}, s{S_EM}, 1'); a(f's_add_u32 s{S_STEP}, s{S_STEP}, 1'); a(f's_mov_b32 s{S_SPIN}, 0')
    land = {('o',0,0): M+16, ('o',0,1): M+24, ('o',6,0): R+8, ('o',6,1): R+16, ('o',7,0): R, ('o',7,1): M+16}
    def ob(b): return vr(land[b], 8) if b in land else r.blk(b)
    def ad(t, e): c = A+4*t+e; return f'v_add_f32 v{c}, v{c}, v{c+2}'
    def fin(p):
        c = A+8*p
        return [ad(2*p+1, 0), ad(2*p+1, 1), f'v_cvt_pk_bf16_f32 v{c}, v{c}, v{c+4}', f'v_cvt_pk_bf16_f32 v{c+1}, v{c+1}, v{c+5}', f'v_and_or_b32 v{c}, v{c}, -2, s{S_EP}']
    def sto(p): return f'global_store_dwordx2 v{r.aPst}, {vr(A+8*p,2)}, s[{S_CP+2*p}:{S_CP+2*p+1}] {stf}'
    after = {3: [ad(0,0)], 4: [ad(0,1)], 5: fin(0), 6: [sto(0)], 7: [ad(2,0)], 8: [ad(2,1)], 9: fin(1)[:2], 10: fin(1)[2:], 11: [sto(1), ad(4,0), ad(4,1)],
             13: fin(2)[:2], 14: fin(2)[2:], 15: [sto(2), ad(6,0), ad(6,1), f'v_pk_add_f32 {vr(A+28,2)}, {vr(A+28,2)}, {vr(A+30,2)}'] + fin(3)[2:] + [sto(3)]}
    lq = [(R+16, ('o',6,1), 0), (R+16, ('o',6,1), 1), (R, ('o',7,0), 0), (R, ('o',7,0), 1), (M+16, ('o',7,1), 0), (M+16, ('o',7,1), 1)]
    a('s_waitcnt lgkmcnt(1)')
    younger = 0; issued = False; nst = 0
    for t in range(8):
        for k in range(2):
            i = 2*t+k
            smf(A+4*t, O+4*k, ob(('o', t, k)))
            if i == 0: a('s_waitcnt lgkmcnt(0)')
            if i in (1, 2, 3, 4, 5, 7): ldh(*lq.pop(0))
            if i == 12: a('s_waitcnt lgkmcnt(0)')
            if i == pat[w]: p_loads(); issued = True; tr(3)
            for l in after.get(i, []):
                if l.startswith('global_store') and nst == 3 and pat[w] == 15.5: p_loads(); issued = True; tr(3)
                a(l)
                if l.startswith('global_store'):
                    if issued: younger += 1
                    if nst in (0, 3): tr(1 if nst == 0 else 2)
                    nst += 1
    if nocomm: ns[0] = 9
    st()
    chores = []
    chores += [f's_waitcnt vmcnt({4 + (2 if issued else 0) + (1 if (plate and fused and w == hkw[0]) else 0) + (0 if nohk else ((0 if pkpos >= 3 else 1) if vdef else (1 if pkpos == 4 else 2) + (1 if (fused and w in hkw) else 0)))})\n' + '\n'.join(f'v_mov_b32 v{PD+i}, 0' for i in (2, 3, 0, 1))] + [f'v_mov_b32 v{r.KX+i}, v{M+i}' for i in range(16)]
    chores += [f'ds_read_b128 {vr(R+8*e+4*hh,4)}, v{r.aW} offset:{r.place[("q",1,e)][1]+1024*hh}' for e in range(2) for hh in range(2)]
    chores += [f'v_mov_b32 v{A+i}, 0' for i in range(24)]
    chores += [f'v_mov_b32 v{A+30}, v{r.VM}', f'v_mov_b32 v{A+31}, v{r.VM+2}', f's_add_u32 s{S_GS}, s{S_GS}, 1', f'v_mov_b32 v{r.PZ}, s{S_GS}']
    nch = len(chores)
    def do_chores(cyc, pad=True):
        n = cyc // 4
        while n > 0 and chores: a(chores.pop(0)); n -= 1
        if pad and not nopad: nops(4*n)
    def then(cyc, need):
        do_chores(cyc); do_chores(4*max(0, need - (nch - len(chores))))
    if not issued:
        if ack1[w] is not None: do_chores(pre1, False); a(f's_waitcnt vmcnt({ack1[w]})')
        else: do_chores(max(d1[w], 4))
        p_loads(); tr(3)
    for k in range(1, nb):
        do_chores(bk if (k > 1 or not issued) else max(4, bk - 40)); p_loads(k); younger += 2
    do_chores(max(min(c1[w], 4*len(chores)), 4), False)
    if eh: then(0, 5)
    if stamps and ns[0]:
        a('s_waitcnt lgkmcnt(0)')
        n = ns[0]
        for k in range(1, n):
            a(f's_sub_u32 s{S_T}, s{S_STAMP+2*k}, s{S_STAMP+2*k-2}'); a(f's_add_u32 s{84+k}, s{84+k}, s{S_T}')
        a(f's_sub_u32 s{S_T}, s{S_STAMP}, s83'); a(f's_mov_b32 s83, s{S_STAMP+2*(n-1)}')
        a(f's_cmp_eq_u32 s{S_STEP}, 1'); a(f's_cselect_b32 s{S_T}, 0, s{S_T}'); a(f's_add_u32 s84, s84, s{S_T}')
    def reduce(k, failto, early=None):
        a(f'v_smfmac_f32_16x16x64_bf16 {vr(PD,4)}, {vr(r.E,4)}, {vr(PL[k],8)}, v{r.idx} abid:1')
        if early: early()
        a(f'v_bitop3_b32 v{t0}, v{PL[k]}, v{PL[k]+2}, s{S_EP} bitop3:0x7e')
        a(f'v_bitop3_b32 v{t1}, v{PL[k]+4}, v{PL[k]+6}, s{S_EP} bitop3:0x7e')
        a(f'v_bitop3_b32 v{t0}, v{t0}, v{t1}, 1 bitop3:0xa8')
        a(f'v_cmp_ne_u32 vcc, 0, v{t0}')
        for ror in (8, 4):
            for i in range(4):
                a(f'v_add_f32_dpp v{PD+i}, v{PD+i}, v{PD+i} row_ror:{ror} row_mask:0xf bank_mask:0xf')
                if ror == 8 and i == 2: a(f's_cbranch_vccnz {failto}')
        a(f's_mov_b64 exec, s[{S_XR}:{S_XR+1}]')
        cvt(PD, PD, PD+1); cvt(PD+1, PD+2, PD+3)
        a(f'v_and_or_b32 v{PD}, v{PD}, -2, s{S_EM}')
        a(f'global_store_dwordx2 v{r.aMst}, {vr(PD,2)}, s[{S_CM}:{S_CM+1}] {stf}')
        a(XA)
    assert not e3
    Lok = a.newlabel('Lc_p1'); Lq = [a.newlabel('Lc_r1') for _ in range(nb)]
    a(f's_waitcnt vmcnt({younger})')
    tr(4)
    hookE = (lambda: e_load(0, ef)) if eh else None
    reduce(0, Lq[1 % nb], hookE)
    a.label(Lok)
    tr(5)
    a(f's_xor_b32 s{S_EP}, s{S_EP}, 1')
    EB = M+20
    def e_back():
        b = S_CME if rep else S_CML
        a(f'global_load_dwordx4 {vr(EB,4)}, v{r.aL}, s[{b}:{b+1}] offset:{1024*frag_of(w,0)-4096} sc1')
    if ee:
        if not eh: then(d2[w] - e0e, 5); e_load(0, ef); then(e0e, 5)
        else: then(d2[w], 5)
        e_back(); tr(6); then(e1g, 9); e_load(1, ef)
    else:
        if ack2[w]: do_chores(pre2, False); a('s_waitcnt vmcnt(0)')
        then(0 if ack2[w] else d2[w], 5); e_load(0, ef); tr(6); then(es, 9); e_load(1, ef)
        if eb is not None: then(eb, 0); e_back()
    if fused and w == hkw[1]: a(f's_sub_u32 s{S_T}, s{S_STEP}, 1'); a(f'v_mov_b32 v{t1}, s{S_T}')
    then(e23[w], 13); e_load(2, ef)
    if not e3in: then(es, 17); e_load(3, ef)
    do_chores(4*len(chores))
    if clk and w == 0:
        lk = a.newlabel('Lclk')
        if clk == 1: a(f's_and_b32 s{S_T}, s{S_STEP}, 7'); a(f's_cmp_lg_u32 s{S_T}, 1')
        else: a(f's_cmp_gt_u32 s{S_STEP}, {clk}')
        a(f's_cbranch_scc1 {lk}')
        a('s_memtime s[60:61]'); a('s_memrealtime s[62:63]'); a('s_waitcnt lgkmcnt(0)')
        for k in range(11, 1, -1): a(f's_mov_b32 s{84+k}, s{84+k-1}') if k != 6 else None
        a('s_sub_u32 s90, s60, s64'); a('s_sub_u32 s85, s62, s65'); a('s_mov_b32 s64, s60'); a('s_mov_b32 s65, s62')
        a.label(lk)
    a(f's_branch {LA}')
    for k in list(range(1, nb)) + [0]:
        a.label(Lq[k])
        p_loads((k-1) % nb); zero(PD, 4)
        if stamps and rt is None and not clk: a(f's_add_u32 s94, s94, 1')
        if k == 0: spin_or_fail()
        a(f's_waitcnt vmcnt({2*(nb-1) if not eh else (3 if nb == 2 else 0)})')
        reduce(k, Lq[(k+1) % nb], hookE)
        a(f's_branch {Lok}')
    if eb is not None or ee:
        Lr0 = Lr[0]; Lr[0] = a.newlabel('Lc_rE0')
        a.label(Lr0)
        if stamps and rt is None and not clk: a('s_add_u32 s92, s92, 63')
        a('s_nop 4'); zero(A, 8)
        a(f's_waitcnt vmcnt({len(vm0) - 1 - vm0.index("x")})')
        for i in range(4): a(f'v_mov_b32 v{M+i}, v{EB+i}')
        for l in chk(0): a(l)
        a(f's_cbranch_vccz {Lc[0]}')
    if comb:
        a.label(Lr[4])
        if stamps and rt is None and not clk: a('s_add_u32 s93, s93, 63')
        for nm in vm0:
            if nm[0] == 'E': e_load(int(nm[1]))
            else: a(f'global_load_dword v{A+24}, v{r.aL}, s[{S_CPR}:{S_CPR+1}] sc1')
        spin_or_fail()
        a('s_waitcnt lgkmcnt(0)'); a('s_nop 4'); zero(A, 24)
        for e in range(2):
            for hh in range(2): ldh(R+8*e, ('q', 1, e), hh)
        a(f's_branch {LA}')
    for j in range(8 if direct else (1 if comb else 5)):
        a.label(Lr[j])
        if stamps and rt is None and not clk: a(f's_add_u32 s{95 if j == 0 else 93}, s{95 if j == 0 else 93}, {1 if j == 0 else 63}')
        n = 0
        seq = vm0 if j == 0 else (issued_at[j] if (j < 4 or direct) else ['E4'])
        for nm in seq[seq.index('E%d' % j):]:
            if nm[0] == 'E': e_load(int(nm[1]))
            else: a(f'global_load_dword v{A+24}, v{r.aL}, s[{S_CPR}:{S_CPR+1}] sc1')
            n += 1
        spin_or_fail()
        if j == 0: a('s_nop 4'); zero(A, 8)
        a(f's_waitcnt vmcnt({n-1})')
        for l in chk(j): a(l)
        if j == 4 and not direct: a(f'ds_write_b128 v{r.aL}, {vr(M+16,4)} offset:{1024*w}')
        a(f's_cbranch_vccnz {Lr[j]}')
        if j == 4 and not direct: a('s_waitcnt lgkmcnt(0)')
        if j == 7: a(f's_cmp_eq_u32 s{S_STEP}, 0')
        a(f's_branch {Lc[j]}')
    if fused and (w == hkw[0] or direct):
        if stamps and rt is None and not clk:
            lb = a.newlabel('Lc_hb2'); a.label(Lhb); a('s_add_u32 s92, s92, 63'); Lhb = lb
        prog_block(a, r, Lhb, Lhk, S_T3, fail)
    if bx is not None and w == 0:
        a.label(Lbs)
        if stamps and rt is None and not clk: a('s_add_u32 s92, s92, 63')
        lb2 = a.newlabel('Lc_bs2'); a.label(lb2)
        for k in range(4):
            a(f'v_cmp_ne_u32 vcc, s{S_GS}, v{r.PG} ; nowaitcheck'); probe(); nops(bg); a(f's_cbranch_vccz {Lbg}')
        spin_or_fail(); a(f's_branch {lb2}')
    if nomax and not nowait & 2:
        a.label(Lfb)
        a(f's_cmp_lg_u32 s{S_FB}, 0'); a(f's_cbranch_scc1 {Lnofb}')
        a(f's_mov_b32 s{S_FB}, 1'); a('s_waitcnt lgkmcnt(0)')
        submax()
        a(f's_branch {Lexp}')
    a.label(Lsp)
    a(f's_cmp_eq_u32 s{S_STEP}, 63'); a(f's_cbranch_scc1 {Ldone}')
    a(f's_mov_b32 s{S_SP}, 63')
    a(f's_waitcnt vmcnt({max(nhk - 1, 0) if direct else (0 if nohk else (3 if vdef else 4) + 1 + (1 if (fused and w in hkw) else 0) + (1 if pkpos == 3 else 0))})'); a(f's_branch {Lspb}')
    a.label(Lk0)
    if started: started(A+26)
    if clk > 1: a('s_memtime s[64:65]'); a('s_memrealtime s[62:63]'); a('s_waitcnt lgkmcnt(0)'); a('s_mov_b32 s65, s62')
    for i in range(4): kv_load(a, r, i, r.KX, S_HB)
    a(f's_branch {Lk0b}')
    a.label(Ldone)
    if not nohk: pub_k()
    for t, sl in vrest: S('v', t, sl)
    if not nohk:
        for t in range(2):
            add0(Av[t]); add1(Av[t]); cvt(A+30+t, Av[t], Av[t]+1)
        pub_v()
    a('s_waitcnt vmcnt(0)'); a('s_barrier')
    if fused and w == hkw[1]:
        a(f'v_mov_b32 v{t0}, 64'); a('s_mov_b64 exec, 1'); a(f'global_store_dword v{r.Z}, v{t0}, s[{S_FW}:{S_FW+1}] sc1'); a(XA)
    a(f's_branch {done}')

def chain_all_waves(a, r, stf, fail, **kw):
    done = a.newlabel('Lc_alldone'); lw = [a.newlabel('Lc_wave') for _ in range(4)]
    a(f'v_mov_b32 v{r.A+29}, 0')
    for w in range(1, 4):
        a(f's_cmp_eq_u32 s{S_W}, {w}'); a(f's_cbranch_scc1 {lw[w]}')
    for w in range(4):
        a.label(lw[w]); chain_wave(a, r, w, stf, fail, done, **kw)
    a.label(done)

def chain_kernel_standalone(half, stamps=False, **kw):
    a = Asm(); a._lbl = 1000 * (half + 1); r = ChainRegs()
    end = a.newlabel('Lc_end')
    a(f's_load_dwordx2 s[{S_WS}:{S_WS+1}], s[0:1], {KA_WS}')
    a(f's_load_dwordx2 s[{S_DBG}:{S_DBG+1}], s[0:1], {KA_DBG}')
    a(f's_getreg_b32 s{S_T}, hwreg(HW_REG_XCC_ID, 0, 4)')
    a('s_waitcnt lgkmcnt(0)')
    a(f's_cmp_lg_u32 s{S_T}, 0'); a(f's_cbranch_scc1 {end}')
    l0 = a.newlabel('Lc')
    a('v_mov_b32 v1, 0'); a('v_mov_b32 v2, 1'); a('v_cmp_eq_u32 vcc, 0, v0')
    a('s_and_saveexec_b64 s[12:13], vcc'); a(f's_cbranch_execz {l0}')
    a(f'global_atomic_add v3, v1, v2, s[{S_DBG}:{S_DBG+1}] sc0 sc1'); a('s_waitcnt vmcnt(0)')
    a('ds_write_b32 v1, v3'); a('s_waitcnt lgkmcnt(0)')
    a.label(l0)
    a('s_mov_b64 exec, s[12:13]'); a('s_barrier')
    a('ds_read_b32 v3, v1'); a('s_waitcnt lgkmcnt(0)'); a(f'v_readfirstlane_b32 s{S_H}, v3'); a('s_barrier')
    a(f's_cmp_ge_u32 s{S_H}, 32'); a(f's_cbranch_scc1 {end}')
    if stamps: a('s_memtime s[98:99]')
    chain_setup(a, r)
    a(f's_mov_b32 s{S_EP}, 0'); a(f's_mov_b32 s{S_EM}, 0'); a(f's_mov_b32 s{S_HALF}, {half}')
    chain_init_comm(a, r, '', True)
    group_arrive(a, r.R, 4); group_wait(a, r.R, 4, 32, end)
    if kw.get('rt') is not None:
        a('s_memrealtime s[60:61]'); a('s_waitcnt lgkmcnt(0)'); a('s_add_u32 s62, s60, 2048'); a('s_and_b32 s62, s62, 0xfffff000'); a('s_add_u32 s62, s62, 4096')
        a('s_mov_b32 s63, 0'); a('s_mov_b32 s99, 0'); a('s_mov_b32 s98, 0')
        a.label('Lcal')
        a('s_memrealtime s[60:61]'); a('s_memtime s[64:65]'); a('s_waitcnt lgkmcnt(0)'); a('s_sub_u32 s61, s60, s62'); a('s_cmp_lt_i32 s61, 0'); a('s_cbranch_scc1 Lcal')
        a('s_cmp_eq_u32 s63, 0'); a('s_cselect_b32 s99, s64, s99'); a('s_sub_u32 s64, s64, s99'); a('s_add_u32 s98, s98, s64')
        a('s_add_u32 s62, s62, 44'); a('s_add_u32 s63, s63, 1'); a('s_cmp_lt_u32 s63, 32'); a('s_cbranch_scc1 Lcal')
        a('s_lshr_b32 s98, s98, 5'); a('s_add_u32 s99, s99, s98'); a('s_mov_b32 s98, s62')
    if stamps: a('s_memtime s[100:101]')
    chain_start(a, r, end, 0)
    chain_all_waves(a, r, '', end, fused=0, stamps=stamps, **kw)
    if stamps:
        a('s_memtime s[60:61]'); a('s_waitcnt lgkmcnt(0)')
        a('s_sub_u32 s96, s100, s98'); a('s_sub_u32 s97, s60, s100')
        for k in range(16): a(f'v_mov_b32 v{k}, s{84+k}')
        a(f's_lshl_b32 s{S_T}, s{S_H}, 2'); a(f's_add_u32 s{S_T}, s{S_T}, s{S_W}'); a(f's_lshl_b32 s{S_T}, s{S_T}, 6')
        a(f's_add_u32 s{S_T}, s{S_T}, {STAMP_OFF}')
        a(f'v_mov_b32 v16, s{S_T}')
        for k in range(4): a(f'global_store_dwordx4 v16, {vr(4*k,4)}, s[{S_WS}:{S_WS+1}] offset:{16*k}')
    a.label(end)
    a('s_waitcnt vmcnt(0)'); a('s_endpgm')
    return a.lines

def autostamp(lines, start, stride, n=9):
    out = []; inb = False; idx = 0; k = 0; names = []; first = True
    for l in lines:
        if l == '; BODY_BEGIN': inb = True; idx = 0; k = 0
        if l == '; BODY_END':
            while k < n:
                out.append(f's_memtime s[{S_STAMP+2*k}:{S_STAMP+2*k+1}]'); k += 1
            inb = False; first = False
        if l.startswith('s_cbranch_vccnz'): l = 's_cbranch_vccnz ' + f'Lnx_{len(out)}\nLnx_{len(out)}:'
        if inb and is_instr(l.split('\n')[0]):
            if k < n and idx == start + k * stride:
                out.append(f's_memtime s[{S_STAMP+2*k}:{S_STAMP+2*k+1}]'); k += 1
            if first: names.append(l.split('\n')[0])
            idx += 1
        out += l.split('\n')
    return out, names

if __name__ == '__main__':
    rep = []
    lines = fix_hazards(chain_kernel_standalone(0, stamps=True), rep)
    for e in check_waits(lines, 'chain'): print(e)
    for x in rep[14:32]: print(x)
    t = assemble_file('', [('chain0_kernel', 256, 256, 163840)], [('chain0_kernel', lines, 512, 256)])
    open('chain_test.s', 'w').write(t)
    print(len(lines))
```

```python
from asmlib import *
from layout import *
import math
import chain2 as C
from work import *

S_DBG = 44; S_SLOT = 36; S_TK = 37; S_SPIN = 38; S_PF = 39; S_FO = 40; S_N = 41; S_X = 42; S_SO = 43; S_SV = 46; S_PD = 47; S_LOC = 50; S_DIE = 91
L, L16 = 1, 2
VZ = 10; VF = 11
SPIN_MAX = 0x60000

class Mega:
    def __init__(self, stamps=False, chain_kw={}):
        self.a = Asm(); self.stamps = stamps; self.chain_kw = chain_kw
        self.end = 'Lm_end'; self.TO = 128 if stamps == 2 else 0
        self.tbsleep = chain_kw.pop('tbsleep', 8); self.wsleep = chain_kw.pop('wsleep', 1); self.wrd = chain_kw.pop('wrd', 0); self.ahead = chain_kw.pop('ahead', 0); self.fake = chain_kw.pop('fake', None); self.ct = chain_kw.pop('ct', 0); self.loc = chain_kw.pop('loc', 0); self.lazy = chain_kw.pop('lazy', 0); C.ROT[0] = chain_kw.pop('rot', 0); C.ROT[1] = (chain_kw.pop('rot2', 1) if chain_kw.get('direct') else 3); C.WF[0] = chain_kw.pop('wf', ''); self.attup = chain_kw.pop('attup', 8); self.die = chain_kw.pop('die', 3); self.palag = chain_kw.pop('palag', 3); self.pasplit = chain_kw.pop('pasplit', 48); self.qdef = chain_kw.pop('qdef', 0); self.one = chain_kw.pop('one', 1); self.rsplit = chain_kw.pop('rsplit', 0); self.tbt = chain_kw.pop('tbt', 62); self.pfb = chain_kw.pop('pfb', 2); self.kvpos = chain_kw.pop('kvpos', 20); self.perm = chain_kw.pop('perm', 0x65241370)
    def stamp(self, k, hs=None):
        if not self.stamps: return
        a = self.a; l = a.newlabel('Lst')
        if self.stamps == 2:
            kk = self.dmap.get((self.role, k))
            if kk is None: return
            a(f's_cmp_lg_u32 s{S_W}, 0'); a(f's_cbranch_scc1 {l}')
            a('s_memrealtime s[96:97]'); a(f's_load_dwordx2 s[100:101], s[0:1], {KA_DBG}'); a('s_waitcnt lgkmcnt(0)'); a('s_sub_u32 s96, s96, s99')
            a(f's_mov_b32 s98, {4*kk}')
            if hs is not None: a(f's_mul_i32 s97, s{hs}, 12'); a('s_add_u32 s98, s98, s97')
            a('s_mov_b64 exec, 1'); a(f'v_mov_b32 v{self.sv}, s96'); a(f'v_mov_b32 v{self.sv+1}, s98')
            a(f'global_atomic_umax v{self.sv+1}, v{self.sv}, s[100:101] sc1'); a('s_waitcnt vmcnt(0)'); a('s_mov_b64 exec, -1')
            a.label(l); return
        a(f's_cmp_lg_u32 s{S_W}, 0'); a(f's_cbranch_scc1 {l}')
        a('s_memrealtime s[96:97]'); a(f's_lshl_b32 s98, s99, 7'); a(f's_add_u32 s98, s98, {STAMP_OFF + 4*k}'); a('s_waitcnt lgkmcnt(0)')
        if hs is not None: a(f's_lshl_b32 s97, s{hs}, 5'); a('s_add_u32 s98, s98, s97')
        a('s_mov_b64 exec, 1'); a(f'v_writelane_b32 v{self.sv}, s96, 0'); a(f'v_writelane_b32 v{self.sv+1}, s98, 0')
        a(f'v_mov_b32 v{self.sv+1}, s98')
        a(f'global_store_dword v{self.sv+1}, v{self.sv}, s[{S_WS}:{S_WS+1}]'); a('s_waitcnt vmcnt(0)'); a('s_mov_b64 exec, -1')
        a.label(l)
    def mark(self, k, sgpr, val):
        if self.stamps is not True: return
        a = self.a; l = a.newlabel('Lmk')
        a(f's_cmp_lg_u32 s{sgpr}, {val}'); a(f's_cbranch_scc1 {l}')
        a('s_memrealtime s[96:97]'); a('s_waitcnt lgkmcnt(0)'); a(f's_mov_b32 s{70+k}, s96')
        a.label(l)
    def dump_marks(self):
        if self.stamps is not True: return
        a = self.a
        for k in range(16): a(f'v_mov_b32 v{16+k}, s{70+k}')
        a(f's_lshl_b32 s98, s99, 7'); a(f's_add_u32 s98, s98, {STAMP_OFF + 64}'); a('v_mov_b32 v12, s98')
        l = a.newlabel('Lmk'); a(f's_cmp_lg_u32 s{S_W}, 0'); a(f's_cbranch_scc1 {l}')
        for k in range(4): a(f'global_store_dwordx4 v12, {vr(16+4*k,4)}, s[{S_WS}:{S_WS+1}] offset:{16*k}')
        a.label(l)
    def count_wait(self, off, v, fail, st, sp):
        a = self.a; l1 = a.newlabel('Lcw'); l2 = a.newlabel('Lcw')
        a(f's_mov_b32 s{sp}, 0'); a(f'v_mov_b32 v{v+8}, 0')
        a.label(l1)
        for x in range(8): a(f'global_load_dword v{v+x}, v{v+8}, s[{S_DBG}:{S_DBG+1}] offset:{off+16*x} sc1')
        a('s_waitcnt vmcnt(0)')
        a(f'v_add3_u32 v{v+9}, v{v}, v{v+1}, v{v+2}'); a(f'v_add3_u32 v{v+9}, v{v+9}, v{v+3}, v{v+4}'); a(f'v_add3_u32 v{v+9}, v{v+9}, v{v+5}, v{v+6}'); a(f'v_add_u32 v{v+9}, v{v+9}, v{v+7}')
        a(f'v_readfirstlane_b32 s{st}, v{v+9}'); a(f's_cmp_ge_u32 s{st}, 256'); a(f's_cbranch_scc1 {l2}')
        a('s_sleep 4'); a(f's_add_u32 s{sp}, s{sp}, 1'); a(f's_cmp_lt_u32 s{sp}, {SPIN_MAX}'); a(f's_cbranch_scc1 {l1}')
        a(f's_branch {fail}')
        a.label(l2)
    def code_touch(self, v=VZ, sp=48, sh=6):
        if not self.ct: return
        a = self.a
        a(f's_getpc_b64 s[{sp}:{sp+1}]'); a(f's_lshl_b32 s{S_T}, s{S_W}, {6+sh}'); a(f'v_lshl_add_u32 v{v}, v{L}, {sh}, s{S_T}')
        a(f'global_load_dword v{v+1}, v{v}, s[{sp}:{sp+1}]')
    def report(self, v=VZ, st=S_T):
        a = self.a; l = a.newlabel('Lrp')
        a(f's_cmp_lg_u32 s{S_W}, 1'); a(f's_cbranch_scc1 {l}')
        a(f's_lshl_b32 s{st}, s{S_DIE}, 4'); a(f'v_mov_b32 v{v}, s{st}'); a(f'v_mov_b32 v{v+1}, 1')
        a('s_mov_b64 exec, 1'); a(f'global_atomic_add v{v}, v{v+1}, s[{S_DBG}:{S_DBG+1}] offset:132 sc1'); a('s_mov_b64 exec, -1')
        a.label(l)
    def local_check(self):
        a = self.a
        x = [i for i in range(8) if (self.perm >> (4*i)) & 7 == 7][0]
        self.count_wait(self.TO, 12, self.end, S_T, S_SPIN)
        a(f'v_readfirstlane_b32 s{S_T}, v{12+x}'); a(f's_cmp_ge_u32 s{S_T}, 32'); a(f's_cselect_b32 s{S_LOC}, {0 if (self.chain_kw.get("force_slow") or not self.loc) else 1}, 0')
    def dual(self, emit):
        a = self.a; l1 = a.newlabel('Ld'); l2 = a.newlabel('Ld')
        a(f's_cmp_eq_u32 s{S_LOC}, 1'); a(f's_cbranch_scc1 {l1}')
        emit('sc1'); a(f's_branch {l2}')
        a.label(l1); emit(''); a.label(l2)
    def flags_ready(self): self.count_wait(132, 12, self.end, S_T, S_SPIN)
    def flag_off(self, base, idx_sgpr, sh=2):
        self.a(f's_lshl_b32 s{S_FO}, s{idx_sgpr}, {sh}'); self.a(f's_add_u32 s{S_FO}, s{S_FO}, {base}')
    def flag_issue(self, n):
        a = self.a
        a(f'v_min_u32 v{VZ}, {n-1}, v{L}'); a(f'v_lshl_add_u32 v{VZ}, v{VZ}, 8, s{S_FO}'); a(f'global_load_dword v{VF}, v{VZ}, s[{S_WS}:{S_WS+1}] sc1')
    def wait(self, n, sleep=None, mask=None, sh=8, thr=None, keep=None, lazy=None, extra=None):
        a = self.a; l1 = a.newlabel('Lw'); l2 = a.newlabel('Lw')
        a(f's_mov_b32 s{S_SPIN}, 0')
        a(f'v_min_u32 v{VZ}, {n-1}, v{L}'); a(f'v_lshl_add_u32 v{VZ}, v{VZ}, {sh}, s{S_FO}')
        if extra is not None:
            a(f's_lshl_b32 s{S_X}, s{extra}, {sh}'); a(f's_add_u32 s{S_X}, s{S_X}, s{S_FO}'); a(f's_add_u32 s{S_X}, s{S_X}, 16'); a(f'v_writelane_b32 v{VZ}, s{S_X}, 63')
        a.label(l1)
        a(f'global_load_dword v{VF}, v{VZ}, s[{S_WS}:{S_WS+1}] sc1'); a('s_waitcnt vmcnt(0)')
        a(f'v_cmp_eq_u32 vcc, 0, v{VF}' if thr is None else f'v_cmp_gt_u32 vcc, {thr}, v{VF}')
        if keep: a('s_cmp_eq_u64 vcc, 0'); a(f's_cselect_b32 s{keep}, 1, 0')
        if mask is None: a(f's_cbranch_vccz {l2}')
        else: a(f's_and_b64 vcc, vcc, s[{mask}:{mask+1}]'); a(f's_cbranch_scc0 {l2}')
        a(f's_sleep {sleep or self.wsleep}')
        if lazy is not None and self.lazy:
            l3 = a.newlabel('Lw'); a(f's_cmp_ge_u32 s{lazy}, 60'); a(f's_cbranch_scc1 {l3}'); a(f's_sleep {self.lazy}'); a.label(l3)
        a(f's_add_u32 s{S_SPIN}, s{S_SPIN}, 1'); a(f's_cmp_lt_u32 s{S_SPIN}, {SPIN_MAX}'); a(f's_cbranch_scc1 {l1}')
        a(f's_branch {self.end}')
        a.label(l2)
    def set_word(self, base, line_sgpr, word_sgpr, s1=2, s2=8):
        a = self.a
        a(f's_lshl_b32 s{S_SO}, s{line_sgpr}, {s1}'); a(f's_lshl_b32 s{S_X}, s{word_sgpr}, {s2}'); a(f's_add_u32 s{S_SO}, s{S_SO}, s{S_X}'); a(f's_add_u32 s{S_SO}, s{S_SO}, {base}')
    def wsignal(self, val=None, loc=False):
        a = self.a
        a(f'v_mov_b32 v{VZ}, s{S_SO}'); a(f'v_mov_b32 v{VF}, {"s%d" % val if val else "1"}')
        st = lambda f: a(f'global_store_dword v{VZ}, v{VF}, s[{S_WS}:{S_WS+1}] {f}')
        a('s_mov_b64 exec, 1')
        if loc: self.dual(st)
        else: st('sc1')
        a('s_mov_b64 exec, -1')
    def signal_wg(self, loc=False):
        a = self.a; l = a.newlabel('Ls')
        a('s_waitcnt vmcnt(0)'); a('s_barrier'); a(f's_cmp_lg_u32 s{S_W}, 0'); a(f's_cbranch_scc1 {l}')
        self.wsignal(loc=loc); a.label(l)

    def stream(self, ngr, xsrc, inflag, nin, tiles, epilogue, nst, outflag, store, mk=None, pre=None):
        a = self.a; xa = 9; XR = 12
        lp = a.newlabel('Lg_loop'); have = a.newlabel('Lg_have'); go = a.newlabel('Lg_go'); fetch = a.newlabel('Lg_fetch'); done = a.newlabel('Lg_done')
        a(f's_lshl_b32 s{S_XO}, s{S_B}, 15'); a(f's_add_u32 s{S_XO}, s{S_XO}, {xsrc}'); a(f's_mov_b32 s{S_BUF}, {128*1024}')
        got = a.newlabel('Lg_got')
        a(f's_mov_b32 s{S_PD}, 0')
        if self.one:
            l = a.newlabel('Lg_o'); a(f's_cmp_lg_u32 s{S_W}, 0'); a(f's_cbranch_scc1 {l}')
            self.flag_off(inflag, S_B); self.wait(nin); a.label(l); a('s_barrier'); a(f's_branch {got}')
        else: a('s_barrier')
        a.label(fetch)
        a(f's_mov_b32 s{S_PD}, 0')
        if inflag is not None:
            self.flag_off(inflag, S_B); self.wait(nin)
        a.label(got)
        if mk: self.mark(mk[0], S_B, mk[1])
        dma_x(a, L16, S_XO, S_BUF, 'sc1')
        a('s_waitcnt vmcnt(0)')
        a.label(go)
        a('s_barrier')
        if mk: self.mark(mk[0]+1, S_B, mk[1])
        if pre: pre()
        a(f'v_add_u32 v{xa}, s{S_BUF}, v{L16}')
        a(f's_add_u32 s{S_TK}, s{S_B}, {ngr}'); a(f's_xor_b32 s{S_BUF}, s{S_BUF}, {128*1024}'); a(f's_add_u32 s{S_XO}, s{S_XO}, {ngr*32768}')
        if inflag is not None:
            a(f's_min_u32 s{S_T}, s{S_TK}, 63'); self.flag_off(inflag, S_T); self.flag_issue(nin)
        def pref():
            np_ = a.newlabel('Lg_np')
            a('s_waitcnt vmcnt(0)')
            a(f'v_cmp_eq_u32 s[{S_K0}:{S_K0+1}], 0, v{VF}')
            a(f's_cmp_eq_u32 s{S_PD}, 0'); a(f's_cbranch_scc1 {np_}')
            self.wsignal(S_SV if store else None)
            a.label(np_)
        def pref2():
            sk = a.newlabel('Lg_sk')
            a(f's_mov_b32 s{S_PF}, 0')
            a(f's_cmp_ge_u32 s{S_TK}, 64'); a(f's_cbranch_scc1 {sk}')
            a(f's_cmp_lg_u64 s[{S_K0}:{S_K0+1}], 0'); a(f's_cbranch_scc1 {sk}')
            dma_x(a, L16, S_XO, S_BUF, 'sc1'); a(f's_mov_b32 s{S_PF}, 1')
            a.label(sk)
        gemm_core(a, xa, XR, tiles, {30: pref})
        epilogue(pref2)
        if mk: self.mark(mk[0]+2, S_B, mk[1])
        outflag()
        add64(a, S_OUT, S_OUT, ngr*32768)
        a(f's_mov_b32 s{S_B}, s{S_TK}')
        a(f's_cmp_eq_u32 s{S_PF}, 0'); a(f's_cbranch_scc1 {have}')
        first = a.newlabel('Lg_first')
        a(f's_cmp_lt_u32 s{S_B}, {2*ngr}'); a(f's_cbranch_scc1 {first}')
        a(f's_mov_b32 s{S_PD}, 1'); a(f's_waitcnt vmcnt({nst})'); a(f's_branch {go}')
        a.label(first)
        a('s_waitcnt vmcnt(0)'); self.wsignal(S_SV if store else None)
        if mk: self.mark(mk[0]+3, S_B, mk[1]+ngr)
        a(f's_mov_b32 s{S_PD}, 0'); a(f's_branch {go}')
        a.label(have)
        a('s_waitcnt vmcnt(0)'); self.wsignal(S_SV if store else None)
        if mk: self.mark(mk[0]+3, S_B, mk[1]+ngr)
        a(f's_cmp_lt_u32 s{S_B}, 64'); a(f's_cbranch_scc1 {fetch}')
        a('s_barrier')

    def proj_weights(self, isB, share=None, early=None, sel=(0, 1, 2), first=None):
        a = self.a
        a(f's_lshl_b32 s{S_OFF}, s{S_A}, 8')
        if isB: mats = [(KA_WK, 4*MB, 0, 'a', 128), (KA_WV, 4*MB, 0, 'v', 128), (KA_WQ, 4*MB, 0, 'a', 0)]; stride = 8192
        else: mats = [(KA_WQKV, 1536*1024, 1024, 'a', 128), (KA_WQKV, 1536*1024, 2048, 'v', 128), (KA_WQKV, 1536*1024, 0, 'a', 0)]; stride = 3072
        load_wslices(a, [mats[i] for i in sel], stride, L, 3, 4, 5, share, early, first)
    def proj_run(self, half, isB, ngr, nowait=False, mode='kvq', lim='64'):
        a = self.a; H = W.H[half]
        if not nowait: self.code_touch()
        t0, t1, vq, vk, vv = 3, 4, 6, 7, 8; ACC = 28
        ro = (HB_Q, HB_K, HB_V) if isB else (0, H.KA - H.QA, H.VA - H.QA)
        a(f's_lshl_b32 s{S_T}, s{S_W}, 11')
        a(f's_add_u32 s{S_T2}, s{S_T}, {ro[0]}'); a(f'v_add_u32 v{vq}, s{S_T2}, v{L16}')
        a(f's_add_u32 s{S_T2}, s{S_T}, {ro[1]}'); a(f'v_add_u32 v{vk}, s{S_T2}, v{L16}')
        pi_of(a, t0, L, t1); vpos16(a, vv, t0, L, t1)
        a(f's_add_u32 s{S_T2}, s{S_T}, {ro[2]}'); a(f'v_add_u32 v{vv}, s{S_T2}, v{vv}')
        a(f's_lshl_b32 s{S_T}, s{S_A}, {21 if isB else 13}'); a(f's_lshl_b32 s{S_T2}, s{S_B}, 15'); a(f's_add_u32 s{S_T}, s{S_T}, s{S_T2}')
        a(f's_add_u32 s{S_T}, s{S_T}, {H.HB if isB else H.QA}'); add64(a, S_OUT, S_WS, f's{S_T}')
        a(f's_mov_b32 s{S_M}, {f2u(0.25*math.log2(math.e)):#x}')
        xa = 9; XR = 12; inflag = FL(half, 'XNB' if isB else 'XNA'); mk = (0, 0 if isB else 63) if half == 1 else ((8, 0) if isB else None)
        go = a.newlabel('Lp_go'); fetch = a.newlabel('Lp_fetch'); have = a.newlabel('Lp_have')
        a(f's_lshl_b32 s{S_XO}, s{S_B}, 15'); a(f's_add_u32 s{S_XO}, s{S_XO}, {H.XNB if isB else H.XNA}'); a(f's_mov_b32 s{S_BUF}, {64*1024 if (isB and self.qdef) else 128*1024}')
        a(f's_mov_b32 s{S_PD}, 0')
        a('s_barrier')
        if nowait: a(f's_branch {go}')
        got = a.newlabel('Lp_got')
        if isB and self.one:
            l = a.newlabel('Lp_o'); a(f's_cmp_lg_u32 s{S_W}, 0'); a(f's_cbranch_scc1 {l}')
            self.flag_off(inflag, S_B); self.wait(16); a.label(l); a('s_barrier'); a(f's_branch {got}')
        a.label(fetch)
        self.flag_off(inflag, S_B); self.wait(16 if isB else 8, lazy=None if isB else S_B)
        a.label(got)
        if mk: self.mark(mk[0], S_B, mk[1])
        dma_x(a, L16, S_XO, S_BUF, 'sc1')
        a('s_waitcnt vmcnt(0)')
        a.label(go)
        a('s_barrier')
        if mk: self.mark(mk[0]+1, S_B, mk[1])
        a(f'v_add_u32 v{xa}, s{S_BUF}, v{L16}')
        a(f's_add_u32 s{S_TK}, s{S_B}, {ngr}'); a(f's_xor_b32 s{S_BUF}, s{S_BUF}, {128*1024}'); a(f's_and_b32 s{S_BUF}, s{S_BUF}, {128*1024}'); a(f's_add_u32 s{S_XO}, s{S_XO}, {ngr*32768}')
        if not nowait: a(f's_min_u32 s{S_T}, s{S_TK}, 63'); self.flag_off(inflag, S_T); self.flag_issue(16 if isB else 8)
        def word():
            if isB:
                a(f's_and_b32 s{S_T}, s{S_B}, 1'); a(f's_lshl_b32 s{S_T}, s{S_T}, 2'); a(f's_add_u32 s{S_T}, s{S_T}, s{S_W}')
                self.set_word(FL(half, "HEAD"), S_A, S_T, 8, 5)
            else:
                a(f's_lshl_b32 s{S_T}, s{S_A}, 2'); a(f's_add_u32 s{S_T}, s{S_T}, s{S_W}'); self.set_word(FL(half, "QKVA"), S_T, S_B, 11, 5)
        def late():
            l = a.newlabel('Lp_q'); a(f's_cmp_eq_u32 s{S_PD}, 0'); a(f's_cbranch_scc1 {l}')
            self.wsignal(); a(f's_mov_b32 s{S_PD}, 0'); a.label(l)
        def pref():
            sk = a.newlabel('Lp_sk')
            a('s_waitcnt vmcnt(0)'); a(f'v_cmp_eq_u32 vcc, 0, v{VF}')
            if not isB: late()
            a(f's_mov_b32 s{S_PF}, 0')
            a(f's_cmp_ge_u32 s{S_TK}, {lim}'); a(f's_cbranch_scc1 {sk}')
            if not nowait: a(f's_cbranch_vccnz {sk}')
            dma_x(a, L16, S_XO, S_BUF, 'sc1'); a(f's_mov_b32 s{S_PF}, 1')
            a.label(sk)
        def half_store(acc, ad, j):
            for i in range(4): a(f'v_cvt_pk_bf16_f32 v{acc+8*j+i}, v{acc+8*j+2*i}, v{acc+8*j+2*i+1}')
            a(f'global_store_dwordx4 v{ad}, {vr(acc+8*j,4)}, s[{S_OUT}:{S_OUT+1}] offset:{1024*j} sc1')
        def kvsig():
            if mk: self.mark(mk[0]+2, S_B, mk[1])
            word(); a('s_waitcnt vmcnt(0)'); self.wsignal(S_TK if isB else None)
            if not isB: a('s_mov_b64 exec, 1'); a(f'global_store_dword v{VZ}, v{VF}, s[{S_WS}:{S_WS+1}] offset:8 sc1'); a('s_mov_b64 exec, -1')
            if mk: self.mark(mk[0]+3, S_B, mk[1])
        kvs = [lambda: half_store(ACC+16, vk, 0), lambda: half_store(ACC+16, vk, 1), lambda: half_store(ACC+32, vv, 0), lambda: half_store(ACC+32, vv, 1)]
        if len(mode) > 1: gemm_core(a, xa, XR, [(ACC+16, 'a', 128, False), (ACC+32, 'v', 128, True)], {18: pref})
        tail = a.newlabel('Lp_tail')
        if isB and self.qdef:
            l = a.newlabel('Lp_n'); a(f's_cmp_ge_u32 s{S_B}, {ngr}'); a(f's_cbranch_scc1 {l}')
            for f in kvs: f()
            kvsig(); a(f's_branch {tail}')
            a.label(l)
        if mode == 'kvq': gemm_core(a, xa, XR, [(ACC, 'a', 0, False)], {0: kvs[0], 1: kvs[1], 2: kvs[2], 3: kvs[3], self.kvpos: kvsig})
        if len(mode) == 1:
            def p0():
                sk = a.newlabel('Lp_sk'); a(f's_mov_b32 s{S_PF}, 0'); a(f's_cmp_ge_u32 s{S_TK}, {lim}'); a(f's_cbranch_scc1 {sk}')
                dma_x(a, L16, S_XO, S_BUF, 'sc1'); a(f's_mov_b32 s{S_PF}, 1'); a.label(sk)
            gemm_core(a, xa, XR, [{'q': (ACC, 'a', 0, False), 'k': (ACC, 'a', 128, False), 'v': (ACC, 'v', 128, True)}[mode]], {0: p0, 30: lambda: (a('s_waitcnt vmcnt(0)'), late())})
        if mode == 'kv':
            for f in kvs: f()
        elif mode in 'kv': pack_store(a, ACC, vk if mode == 'k' else vv, S_OUT, 'sc1')
        else: pack_store(a, ACC, vq, S_OUT, 'sc1', scale=None if isB else S_M)
        if isB and self.qdef:
            a(f's_cmp_ge_u32 s{S_B}, {2*ngr}'); a(f's_cbranch_scc1 {tail}')
            a(f'v_add_u32 v{xa}, {64*1024}, v{L16}'); a(f's_sub_u32 s{S_IN}, s{S_OUT}, {ngr*32768}'); a(f's_subb_u32 s{S_IN+1}, s{S_OUT+1}, 0')
            gemm_core(a, xa, XR, [(ACC, 'a', 0, False)]); pack_store(a, ACC, vq, S_IN, 'sc1')
        a.label(tail)
        if not isB:
            if mode != 'kvq': word()
            if mode == 'v': a(f's_add_u32 s{S_SO}, s{S_SO}, 8')
            if 'q' in mode: a(f's_add_u32 s{S_SO}, s{S_SO}, 16')
        add64(a, S_OUT, S_OUT, ngr*32768)
        a(f's_mov_b32 s{S_B}, s{S_TK}'); a(f's_mov_b32 s{S_PD}, 1')
        if mode == 'kv': a('s_waitcnt vmcnt(4)')
        a(f's_cmp_lg_u32 s{S_PF}, 0'); a(f's_cbranch_scc1 {go}')
        if not isB: a('s_waitcnt vmcnt(0)'); late()
        a(f's_cmp_lt_u32 s{S_B}, {lim}'); a(f's_cbranch_scc1 {fetch}')
        if isB:
            a('s_waitcnt vmcnt(0)'); a(f's_add_u32 s{S_SV}, s{S_B}, 4'); self.wsignal(S_SV)
        a('s_barrier')
    def woa_run(self, half, ngr):
        a = self.a; H = W.H[half]
        self.code_touch()
        t0, t1, sm, vo, vx, vs = 3, 4, 5, 6, 7, 8; ACC = 28; X = 44; G = 52; SP = 68; mu = 70
        a(f's_lshl_b32 s{S_T}, s{S_W}, 11'); a(f's_lshl_b32 s{S_T2}, s{S_A}, 13'); a(f's_add_u32 s{S_T}, s{S_T}, s{S_T2}'); a(f'v_add_u32 v{vo}, s{S_T}, v{L16}')
        if half == 0:
            a(f's_load_dwordx2 s[{S_P}:{S_P+1}], s[0:1], {KA_X}')
            a(f'v_and_b32 v{t0}, 31, v{L}'); a(f'v_lshlrev_b32 v{vx}, 10, v{t0}'); a(f'v_lshrrev_b32 v{t0}, 5, v{L}'); a(f'v_lshl_add_u32 v{vx}, v{t0}, 4, v{vx}')
            a(f's_lshr_b32 s{S_T}, s{S_T}, 5'); a(f'v_add_u32 v{vx}, s{S_T}, v{vx}'); a('s_waitcnt lgkmcnt(0)')
        else:
            add64(a, S_P, S_WS, W.H[0].X2); a(f'v_mov_b32 v{vx}, v{vo}')
        a(f's_lshl_b32 s{S_T2}, s{S_B}, 15'); add64(a, S_P, S_P, f's{S_T2}')
        a(f's_add_u32 s{S_T}, s{S_T2}, {H.X1}'); add64(a, S_OUT, S_WS, f's{S_T}')
        a(f'v_and_b32 v{t0}, 31, v{L}'); a(f'v_lshlrev_b32 v{vs}, 3, v{t0}'); a(f'v_lshrrev_b32 v{t0}, 5, v{L}'); a(f'v_lshl_add_u32 v{vs}, v{t0}, 11, v{vs}')
        a(f's_mov_b32 s{S_M}, 0xffff0000')
        def pre():
            for j in range(2): a(f'global_load_dwordx4 {vr(X+4*j,4)}, v{vx}, s[{S_P}:{S_P+1}] offset:{(32 if half == 0 else 1024)*j} {"" if half == 0 else "sc1"}')
            add64(a, S_P, S_P, ngr*32768)
            a(f's_lshl_b32 s{S_T}, s{S_B}, 12'); a(f's_add_u32 s{S_T}, s{S_T}, {W.ST + half*262144}'); add64(a, S_IN, S_WS, f's{S_T}')
            l = a.newlabel('Lwt'); a(f's_cmp_lg_u32 s{S_LOC}, 1'); a(f's_cbranch_scc1 {l}')
            a(f'v_lshlrev_b32 v{t0}, 6, v{L}'); a(f'global_load_dword v{t1}, v{t0}, s[{S_IN}:{S_IN+1}] sc1'); a.label(l)
        def rbf(r): a(f'v_cvt_pk_bf16_f32 v{r}, v{r}, v{r}'); a(f'v_and_b32 v{r}, s{S_M}, v{r}')
        def halves(regs):
            for x, t in zip(regs, (t0, t1)): a(f'v_mov_b32 v{t}, v{x}')
            for x, t in zip(regs, (t0, t1)): a(f'v_permlane32_swap_b32 v{x}, v{t}')
            for x, t in zip(regs, (t0, t1)): a(f'v_add_f32 v{x}, v{x}, v{t}')
        def epi(pref2):
            a(f's_lshl_b32 s{S_T}, s{S_A}, 2'); a(f's_add_u32 s{S_T}, s{S_T}, s{S_W}'); a(f's_lshl_b32 s{S_T2}, s{S_T}, 8')
            self.set_word(FL(half, "XNB"), S_B, S_T)
            for d in range(8):
                e = ACC+2*d
                a(f'v_cvt_pk_bf16_f32 v{t1}, v{e}, v{e+1}'); a(f'v_lshlrev_b32 v{e}, 16, v{X+d}'); a(f'v_and_b32 v{e+1}, s{S_M}, v{X+d}')
                a(f'v_lshlrev_b32 v{t0}, 16, v{t1}'); a(f'v_and_b32 v{t1}, s{S_M}, v{t1}')
                a(f'v_add_f32 v{e}, v{e}, v{t0}'); a(f'v_add_f32 v{e+1}, v{e+1}, v{t1}')
                a(f'v_cvt_pk_bf16_f32 v{X+d}, v{e}, v{e+1}')
                a(f'v_lshlrev_b32 v{e}, 16, v{X+d}'); a(f'v_and_b32 v{e+1}, s{S_M}, v{X+d}')
                if d == 0: a(f'v_add_f32 v{SP}, v{e}, v{e+1}'); a(f'v_mul_f32 v{SP+1}, v{e}, v{e}')
                else: a(f'v_add_f32 v{SP}, v{SP}, v{e}'); a(f'v_add_f32 v{SP}, v{SP}, v{e+1}'); a(f'v_fmac_f32 v{SP+1}, v{e}, v{e}')
                a(f'v_fmac_f32 v{SP+1}, v{e+1}, v{e+1}')
            halves((SP, SP+1))
            a(f'v_or_b32 v{SP+1}, 1, v{SP+1}'); a(f'v_add_u32 v{t0}, s{S_T2}, v{vs}')
            a('s_mov_b32 exec_hi, 0'); self.dual(lambda f: a(f'global_store_dwordx2 v{t0}, {vr(SP,2)}, s[{S_IN}:{S_IN+1}] {f}')); a('s_mov_b32 exec_hi, -1')
            a('s_waitcnt vmcnt(0)')
            l1 = a.newlabel('Lwr'); l2 = a.newlabel('Lwr')
            a(f's_mov_b32 s{S_SPIN}, 0')
            a.label(l1)
            for p in range(8): a(f'global_load_dwordx2 {vr(G+2*p,2)}, v{vs}, s[{S_IN}:{S_IN+1}] offset:{256*p} sc1')
            a('s_waitcnt vmcnt(0)')
            a(f'v_bitop3_b32 v{t0}, v{G+1}, v{G+3}, v{G+5} bitop3:0x80'); a(f'v_bitop3_b32 v{t1}, v{G+7}, v{G+9}, v{G+11} bitop3:0x80')
            a(f'v_bitop3_b32 v{t0}, v{t0}, v{G+13}, v{G+15} bitop3:0x80'); a(f'v_bitop3_b32 v{t0}, v{t0}, v{t1}, 1 bitop3:0x80')
            a(f'v_cmp_eq_u32 vcc, 0, v{t0}'); a(f's_cbranch_vccz {l2}')
            a(f's_add_u32 s{S_SPIN}, s{S_SPIN}, 1'); a(f's_cmp_lt_u32 s{S_SPIN}, {SPIN_MAX}'); a(f's_cbranch_scc1 {l1}')
            a(f's_branch {self.end}')
            a.label(l2)
            pref2()
            for j in range(2): a(f'global_store_dwordx4 v{vo}, {vr(X+4*j,4)}, s[{S_OUT}:{S_OUT+1}] offset:{1024*j} sc1')
            for st in (8, 4, 2):
                for i in range(0, st, 2): a(f'v_pk_add_f32 {vr(G+i,2)}, {vr(G+i,2)}, {vr(G+i+st,2)}')
            halves((G, G+1))
            a(f'v_mul_f32 v{mu}, {f2u(1/512):#x}, v{G}'); a(f'v_mul_f32 v{sm}, {f2u(1/512):#x}, v{G+1}')
            a(f'v_fma_f32 v{sm}, -v{mu}, v{mu}, v{sm}'); a(f'v_max_f32 v{sm}, 0, v{sm}')
            rbf(sm); a(f'v_add_f32 v{sm}, {f2u(1e-5):#x}, v{sm}'); rbf(sm)
            a(f'v_sqrt_f32 v{sm}, v{sm}'); rbf(sm); a(f'v_rcp_f32 v{sm}, v{sm}'); rbf(mu)
            add64(a, S_IN, S_OUT, H.XNB - H.X1) if H.XNB > H.X1 else (a(f's_sub_u32 s{S_IN}, s{S_OUT}, {H.X1 - H.XNB}'), a(f's_subb_u32 s{S_IN+1}, s{S_OUT+1}, 0'))
            for d in range(8):
                e = ACC+2*d
                a(f'v_sub_f32 v{t0}, v{e}, v{mu}'); a(f'v_sub_f32 v{t1}, v{e+1}, v{mu}'); a(f'v_cvt_pk_bf16_f32 v{t1}, v{t0}, v{t1}')
                a(f'v_lshlrev_b32 v{t0}, 16, v{t1}'); a(f'v_and_b32 v{t1}, s{S_M}, v{t1}')
                a(f'v_mul_f32 v{t0}, v{t0}, v{sm}'); a(f'v_mul_f32 v{t1}, v{t1}, v{sm}'); a(f'v_cvt_pk_bf16_f32 v{G+d}, v{t0}, v{t1}')
                if d % 4 == 3: a(f'global_store_dwordx4 v{vo}, {vr(G+d-3,4)}, s[{S_IN}:{S_IN+1}] offset:{1024*(d//4)} sc1')
        self.stream(ngr, H.OA, FL(half, 'OA'), 32, [(ACC, 'v', 128, False)], epi, 4, lambda: None, False, mk=(0, 0) if half == 1 else (8, 0), pre=pre)
    def rb_run(self, half, ngr, helper=False):
        a = self.a; H = W.H[half]
        mk = (4, 63) if half == 0 else None
        def task(nl):
            def ready():
                l = a.newlabel('Lr_o')
                if self.one: a(f's_cmp_lg_u32 s{S_W}, 0'); a(f's_cbranch_scc1 {l}')
                self.flag_off(FL(half, 'PT'), S_A); self.wait(32, lazy=S_A)
                if self.one: a.label(l); a('s_barrier')
                if mk: self.mark(mk[0], S_A, mk[1])
            if half == 0: rb_body(a, 8, H.X1, False, H.PT, 32768, 8*32768, H.X2, False, W.H[1].XNA, 'sc1', 'sc1', ready, nl=nl)
            else: rb_body(a, 8, H.X1, False, H.PT, 32768, 8*32768, KA_OUT, True, None, 'sc1', 'sc1', ready, nl=nl)
            if half == 0:
                if mk: self.mark(mk[0]+2, S_A, mk[1])
                l = a.newlabel('Ls')
                a('s_waitcnt vmcnt(0)'); a('s_barrier'); a(f's_cmp_ge_u32 s{S_W}, {nl}'); a(f's_cbranch_scc1 {l}')
                a(f's_mul_i32 s{S_T}, s{S_B}, {nl}'); a(f's_add_u32 s{S_T}, s{S_T}, s{S_W}'); self.set_word(FL(1, 'XNA'), S_A, S_T); self.wsignal()
                a.label(l)
                if mk: self.mark(mk[0]+3, S_A, mk[1])
        if helper:
            a(f's_mov_b32 s{S_A}, 63'); a(f's_and_b32 s{S_B}, s{S_SLOT}, 3'); a(f's_lshl_b32 s{S_B}, s{S_B}, 1'); a(f's_add_u32 s{S_B}, s{S_B}, 1'); task(1); return
        lp = a.newlabel('Lr_loop'); done = a.newlabel('Lr_done'); a.label(lp)
        task(2)
        a(f's_add_u32 s{S_A}, s{S_A}, {ngr}'); a(f's_cmp_lt_u32 s{S_A}, {63 if self.rsplit else 64}'); a(f's_cbranch_scc1 {lp}')
        if not self.rsplit: return
        a(f's_cmp_gt_u32 s{S_A}, 64'); a(f's_cbranch_scc1 {done}')
        a(f's_lshl_b32 s{S_B}, s{S_B}, 1'); a(f's_sub_u32 s{S_T}, s{S_A}, 63'); a(f's_add_u32 s{S_B}, s{S_B}, s{S_T}'); a(f's_mov_b32 s{S_A}, 63')
        task(1)
        a.label(done)

    def att_run(self, half, npg):
        a = self.a; H = W.H[half]
        self.code_touch()
        t0, t1, t2, ak, av, idx, lw = range(3, 10); mx = 204
        Q = 12; QN = 16; K0 = 20; Cc = 24; O = 40; D = [56, 72, 88]; KF = 104; MG = 168
        pi_of(a, t0, L, t1)
        a(f'v_and_b32 v{t1}, 32, v{L}'); a(f'v_add_u32 v{ak}, v{t0}, v{t1}'); a(f'v_lshlrev_b32 v{ak}, 4, v{ak}')
        a(f'v_and_b32 v{t0}, 15, v{t0}'); a(f's_and_b32 s{S_T}, s{S_A}, 1'); a(f's_lshl_b32 s{S_T}, s{S_T}, 4'); a(f'v_add_u32 v{t0}, s{S_T}, v{t0}')
        vpos16(a, av, t0, L, t1)
        a(f'v_mov_b32 v{idx}, 0xdddd')
        a(f's_mul_i32 s{S_T}, s{S_W}, 3072'); a(f'v_add_u32 v{lw}, s{S_T}, v{L16}')
        a(f's_lshr_b32 s{S_T}, s{S_A}, 1'); self.flag_off(FL(half, 'QKVA'), S_T, 11)
        KM_, QM_ = 52, 54
        fa = 205
        a(f'v_lshl_add_u32 v{fa}, v{L}, 5, s{S_FO}')
        a(f's_mov_b64 s[{KM_}:{KM_+1}], -1'); a(f's_mov_b64 s[{QM_}:{QM_+1}], -1')
        def need(km, qm):
            l1 = a.newlabel('La_n'); l2 = a.newlabel('La_n'); l3 = a.newlabel('La_n')
            a(f's_mov_b32 s{S_SPIN}, 0')
            a.label(l3)
            tests = [(m, k) for m, k in ((km, KM_), (qm, QM_)) if m is not None]
            for i, (m, k) in enumerate(tests):
                a(f's_and_b64 vcc, s[{m}:{m+1}], s[{k}:{k+1}]'); a(f's_cbranch_scc0 {l2}' if i == len(tests)-1 else f's_cbranch_scc1 {l1}')
            a.label(l1)
            ls = a.newlabel('La_n'); a(f's_cmp_eq_u32 s{S_SPIN}, 0'); a(f's_cbranch_scc1 {ls}'); a(f's_sleep {self.wsleep}'); a.label(ls)
            a(f'global_load_dword v{VZ}, v{fa}, s[{S_WS}:{S_WS+1}] sc1'); a(f'global_load_dword v{VF}, v{fa}, s[{S_WS}:{S_WS+1}] offset:16 sc1')
            a(f'global_load_dword v{fa+1}, v{fa}, s[{S_WS}:{S_WS+1}] offset:8 sc1')
            a('s_waitcnt vmcnt(0)')
            a(f'v_and_b32 v{VZ}, v{VZ}, v{fa+1}')
            a(f'v_cmp_eq_u32 s[{KM_}:{KM_+1}], 0, v{VZ}'); a(f'v_cmp_eq_u32 s[{QM_}:{QM_+1}], 0, v{VF}')
            a(f's_add_u32 s{S_SPIN}, s{S_SPIN}, 1'); a(f's_cmp_lt_u32 s{S_SPIN}, {SPIN_MAX}'); a(f's_cbranch_scc1 {l3}')
            a(f's_branch {self.end}')
            a.label(l2)
        def qwait(blk): a(f's_lshl_b64 s[{S_P}:{S_P+1}], 1, s{blk}'); need(None, S_P)
        a(f's_mov_b32 s56, -1'); a(f's_mov_b32 s57, {0x00ffffff if half else 0xffffffff:#x}'); a(f's_lshl_b64 s[{S_P}:{S_P+1}], 1, s{S_B}')
        if half: need(56, S_P)
        else:
            l = a.newlabel('La_o'); a(f's_cmp_lg_u32 s{S_W}, 0'); a(f's_cbranch_scc1 {l}'); need(56, S_P); a.label(l); a('s_barrier')
        self.stamp(2 + 8*half)
        a(f's_lshl_b32 s{S_T}, s{S_A}, 10'); a(f's_lshl_b32 s{S_T2}, s{S_B}, 15'); a(f's_add_u32 s{S_T2}, s{S_T2}, s{S_T}')
        a(f's_add_u32 s{S_T3}, s{S_T2}, {H.QA}'); add64(a, S_IN, S_WS, f's{S_T3}')
        a(f's_add_u32 s{S_T3}, s{S_T2}, {H.OA}'); add64(a, S_OUT, S_WS, f's{S_T3}')
        a(f'global_load_dwordx4 {vr(QN,4)}, v{L16}, s[{S_IN}:{S_IN+1}] sc1')
        a(f's_add_u32 s{S_K0}, s{S_T}, {H.KA}')
        a(f'buffer_load_dwordx4 {vr(K0,4)}, v{ak}, s[{S_WSRD}:{S_WSRD+3}], s{S_K0} offen sc1')
        a(f's_lshl_b32 s{S_T2}, s{S_W}, 15'); a(f's_add_u32 s{S_K0}, s{S_K0}, s{S_T2}')
        a(f's_lshr_b32 s{S_K1}, s{S_A}, 1'); a(f's_lshl_b32 s{S_K1}, s{S_K1}, 11'); a(f's_add_u32 s{S_K1}, s{S_K1}, s{S_T2}'); a(f's_add_u32 s{S_K1}, s{S_K1}, {H.VA}')
        a(f's_mov_b32 s{S_M}, 0x0000ffff'); a(f's_mov_b32 s{S_M+1}, 0x0000ffff')
        def kv_tile(t):
            a(f's_add_u32 s{S_T}, s{S_K0}, {t*131072}')
            a(f'buffer_load_dwordx4 {vr(KF+4*t,4)}, v{ak}, s[{S_WSRD}:{S_WSRD+3}], s{S_T} offen sc1')
            a(f's_add_u32 s{S_T}, s{S_K1}, {t*131072}')
            a(f's_mov_b64 exec, s[{S_M}:{S_M+1}]')
            for b in range(2): a(f'buffer_load_dwordx4 {vr(8*t+4*b,4,"a")}, v{av}, s[{S_WSRD}:{S_WSRD+3}], s{S_T} offen offset:{1024*b} sc1')
            a('s_mov_b64 exec, -1')
        def late_tile(t):
            if half == 0: return
            l = a.newlabel('La_lt'); a(f's_bitcmp0_b32 s{S_PD}, {t-14}'); a(f's_cbranch_scc1 {l}')
            a(f's_add_u32 s{S_T}, s{S_W}, {4*t}'); a(f's_lshl_b64 s[{S_P}:{S_P+1}], 1, s{S_T}')
            need(S_P, None)
            if t == 15: self.mark(0, S_B, 0)
            kv_tile(t); a('s_waitcnt vmcnt(0)')
            a(f's_bitset0_b32 s{S_PD}, {t-14}')
            a.label(l)
        NT = 14 if half else 16
        a(f's_mov_b32 s{S_PD}, 3')
        if half:
            for t in (14, 15):
                l = a.newlabel('La_et'); a(f's_add_u32 s{S_T}, s{S_W}, {4*t}'); a(f's_bitcmp1_b64 s[{KM_}:{KM_+1}], s{S_T}'); a(f's_cbranch_scc1 {l}')
                kv_tile(t); a(f's_bitset0_b32 s{S_PD}, {t-14}'); a.label(l)
        UP = self.attup
        for t in range(UP): kv_tile(t)
        a(f's_mov_b32 s{S_BUF}, 0'); a(f's_mov_b32 s{S_CNT}, 0'); a(f's_mov_b32 s{S_PF}, 0')
        a('s_barrier')
        lp = a.newlabel('La_loop'); run = a.newlabel('La_run'); slow = a.newlabel('La_slow'); nom = a.newlabel('La_nom'); noq = a.newlabel('La_noq'); out = a.newlabel('La_out')
        def rowmax(src, first):
            if first: a(f'v_max3_f32 v{mx}, v{src}, v{src+1}, v{src+2}'); rest = list(range(3, 16))
            else: rest = list(range(16))
            while len(rest) >= 2:
                a(f'v_max3_f32 v{mx}, v{mx}, v{src+rest[0]}, v{src+rest[1]}'); rest = rest[2:]
            if rest: a(f'v_max_f32 v{mx}, v{mx}, v{src+rest[0]}')
        def halfmax():
            a(f'v_mov_b32 v{t0}, v{mx}'); a(f'v_permlane32_swap_b32 v{mx}, v{t0}'); a(f'v_max_f32 v{mx}, v{mx}, v{t0}')
        def pending():
            l = a.newlabel('La_p'); a(f's_cmp_eq_u32 s{S_PF}, 0'); a(f's_cbranch_scc1 {l}')
            a('s_waitcnt vmcnt(0)'); self.wsignal(); a(f's_mov_b32 s{S_PF}, 0')
            if half: self.mark(3, S_B, 0)
            a.label(l)
        def pv(t, b): a(f'v_smfmac_f32_32x32x32_bf16 {vr(O,16)}, {vr(8*t+4*b,4,"a")}, {vr(D[t%3]+8*b,8)}, v{idx}')
        def nextq():
            noq = a.newlabel('La_noq')
            a(f's_cmp_ge_u32 s{S_TK}, 64'); a(f's_cbranch_scc1 {noq}')
            qwait(S_TK)
            a(f'global_load_dwordx4 {vr(QN,4)}, v{L16}, s[{S_IN}:{S_IN+1}] sc1')
            a.label(noq)
        def block(first):
            for i in range(4): a(f'v_mov_b32 v{Q+i}, v{QN+i}')
            a(f's_add_u32 s{S_TK}, s{S_B}, {npg}'); add64(a, S_IN, S_IN, npg*32768)
            a(mf(D[0], vr(K0,4), vr(Q,4), 0))
            for i in range(16): a(f'v_mov_b32 v{O+i}, 0')
            rowmax(D[0], True); halfmax()
            a(f's_mov_b32 s{S_XO}, 0')
            if not first: a.label(run)
            for i in range(16): a(f'v_sub_f32 v{Cc+i}, 0, v{mx}')
            issued = UP
            if first: a(f's_waitcnt vmcnt({3*(issued-2)})')
            a(mf(D[0], vr(KF,4), vr(Q,4), vr(Cc,16)))
            a(mf(D[1], vr(KF+4,4), vr(Q,4), vr(Cc,16)))
            for t in range(16):
                d = D[t % 3]
                for i in range(16):
                    a(f'v_exp_f32 v{d+i}, v{d+i}')
                    if i == 2 and t > 0: pv(t-1, 1)
                    if first and i == 2 and issued < NT: kv_tile(issued); issued += 1
                    if first and i == 6 and NT <= t + 2 < 16: late_tile(t+2)
                    if first and i == 6 and t + 2 < NT: a(f's_waitcnt vmcnt({3*(issued-1-(t+2))})')
                    if i == 6 and t + 2 < 16: a(mf(D[(t+2)%3], vr(KF+4*(t+2),4), vr(Q,4), vr(Cc,16)))
                    if i == 11: pv(t, 0)
                if t == 5 and not first: pending()
                if t == (NT - 3 if first else 6): nextq()
            pv(15, 1)
        merge = a.newlabel('La_merge')
        a(f's_waitcnt vmcnt({3*UP})')
        self.mark(1 if half else 11, S_B, 0)
        block(True); a(f's_branch {merge}')
        a.label(lp)
        block(False)
        a.label(merge)
        a(f'v_add_u32 v{t1}, s{S_BUF}, v{lw}')
        for j in range(3): a(f'ds_write_b128 v{t1}, {vr(O+4*j,4)} offset:{1024*j}')
        a('s_waitcnt vmcnt(0) lgkmcnt(0)'); a('s_barrier')
        a(f'v_add_u32 v{t1}, s{S_BUF}, v{L16}')
        for w in range(4): a(f'ds_read_b32 v{MG+w}, v{t1} offset:{3072*w+2048}')
        a('s_waitcnt lgkmcnt(0)')
        a(f'v_add_f32 v{MG}, v{MG}, v{MG+1}'); a(f'v_add_f32 v{MG+2}, v{MG+2}, v{MG+3}'); a(f'v_add_f32 v{t2}, v{MG}, v{MG+2}')
        a(f's_xor_b32 s{S_BUF}, s{S_BUF}, 16384')
        a(f'v_cmp_nge_f32 vcc, {f2u(2.0**90):#x}, v{t2}')
        a(f's_cbranch_vccnz {slow}')
        fin = a.newlabel('La_fin'); a.label(fin)
        a(f's_and_b32 s{S_T}, s{S_CNT}, 3'); a(f's_add_u32 s{S_CNT}, s{S_CNT}, 1')
        a(f's_cmp_lg_u32 s{S_T}, s{S_W}'); a(f's_cbranch_scc1 {nom}')
        for w in range(4):
            for j in range(2): a(f'ds_read_b128 {vr(MG+8*w+4*j,4)}, v{t1} offset:{3072*w+1024*j}')
        a(f'v_rcp_f32 v{t2}, v{t2}')
        a('s_waitcnt lgkmcnt(0)')
        for i in range(8):
            a(f'v_add_f32 v{MG+i}, v{MG+i}, v{MG+8+i}'); a(f'v_add_f32 v{MG+16+i}, v{MG+16+i}, v{MG+24+i}')
            a(f'v_add_f32 v{MG+i}, v{MG+i}, v{MG+16+i}'); a(f'v_mul_f32 v{MG+i}, v{MG+i}, v{t2}')
        for i in range(4): a(f'v_cvt_pk_bf16_f32 v{MG+i}, v{MG+2*i}, v{MG+2*i+1}')
        a(f'global_store_dwordx4 v{L16}, {vr(MG,4)}, s[{S_OUT}:{S_OUT+1}] sc1')
        self.set_word(FL(half, 'OA'), S_B, S_A); a(f's_mov_b32 s{S_PF}, 1')
        self.mark(2 if half else 12, S_B, 0)
        a(f's_cmp_ge_u32 s{S_B}, {npg}'); a(f's_cbranch_scc1 {nom}')
        pending()
        a.label(nom)
        add64(a, S_OUT, S_OUT, npg*32768)
        a(f's_mov_b32 s{S_B}, s{S_TK}')
        a(f's_cmp_lt_u32 s{S_B}, 64'); a(f's_cbranch_scc1 {lp}')
        pending()
        a(f's_branch {out}')
        a.label(slow)
        a(f's_cmp_lg_u32 s{S_XO}, 0'); a(f's_cbranch_scc1 {fin}')
        a(f's_mov_b32 s{S_XO}, 1')
        for t in range(16):
            a(mf(D[t%2], vr(KF+4*t,4), vr(Q,4), 0))
            rowmax(D[t%2], t == 0)
        halfmax()
        a(f'ds_write_b32 v{lw}, v{mx} offset:32768'); a('s_waitcnt lgkmcnt(0)'); a('s_barrier')
        for w in range(4): a(f'ds_read_b32 v{MG+w}, v{L16} offset:{32768+3072*w}')
        a('s_waitcnt lgkmcnt(0)')
        a(f'v_max3_f32 v{mx}, v{MG}, v{MG+1}, v{MG+2}'); a(f'v_max_f32 v{mx}, v{mx}, v{MG+3}')
        for i in range(16): a(f'v_mov_b32 v{O+i}, 0')
        a(f's_branch {run}')
        a.label(out)
        a('s_barrier')

    def tb_weights(self):
        a = self.a
        a(f's_lshr_b32 s{S_T}, s{S_A}, 2'); a(f's_lshl_b32 s{S_T}, s{S_T}, 19'); a(f's_and_b32 s{S_T2}, s{S_A}, 3'); a(f's_lshl_b32 s{S_T2}, s{S_T2}, 8')
        a(f's_add_u32 s{S_OFF}, s{S_T}, s{S_T2}')
        load_wslices(a, [(KA_WO, 4*MB, 0, 'a', 128)], 1024, L, 3, 4, 5)
        l = a.newlabel('Lt_nw')
        a(f's_and_b32 s{S_T}, s{S_A}, 3'); a(f's_cmp_ge_u32 s{S_T}, 3'); a(f's_cbranch_scc1 {l}')
        a(f's_add_u32 s{S_T}, s{S_T}, 1'); a(f's_cmp_eq_u32 s{S_T}, 3'); a(f's_cselect_b32 s{S_T}, 0, s{S_T}'); a(f's_lshl_b32 s{S_T}, s{S_T}, 10')
        a(f's_lshr_b32 s{S_T2}, s{S_A}, 3'); a(f's_lshl_b32 s{S_T2}, s{S_T2}, 8'); a(f's_add_u32 s{S_OFF}, s{S_T}, s{S_T2}')
        load_wslices(a, [(KA_WQKV, 1536*1024, 0, 'a', 0)], 3072, L, 3, 4, 5)
        a.label(l)
    def pa_task(self, vo, av):
        a = self.a; H = W.H[1]; XR = 12; ACC = 224; xa = 3; t1 = 4
        lv = a.newlabel('Lq_v'); le = a.newlabel('Lq_e')
        self.flag_off(FL(1, 'XNA'), S_TK); self.wait(8)
        a(f's_lshl_b32 s{S_PF}, s{S_TK}, 15'); a(f's_add_u32 s{S_CNT}, s{S_PF}, {H.XNA}'); a(f's_mov_b32 s{S_BUF}, 32768')
        dma_x(a, L16, S_CNT, S_BUF, 'sc1')
        a(f's_and_b32 s{S_PD}, s{S_A}, 3')
        a(f's_add_u32 s{S_T}, s{S_PD}, 1'); a(f's_cmp_eq_u32 s{S_T}, 3'); a(f's_cselect_b32 s{S_T}, 0, s{S_T}'); a(f's_cselect_b32 s{S_SV}, {f2u(0.25*math.log2(math.e)):#x}, 1.0')
        a(f's_lshl_b32 s{S_T}, s{S_T}, 21'); a(f's_add_u32 s{S_PF}, s{S_PF}, s{S_T}'); a(f's_lshr_b32 s{S_T}, s{S_A}, 3'); a(f's_lshl_b32 s{S_T2}, s{S_T}, 13'); a(f's_add_u32 s{S_PF}, s{S_PF}, s{S_T2}')
        a(f's_add_u32 s{S_PF}, s{S_PF}, {H.QA}'); add64(a, S_IN, S_WS, f's{S_PF}')
        a(f's_lshl_b32 s{S_T}, s{S_T}, 2'); a(f's_add_u32 s{S_T}, s{S_T}, s{S_W}'); self.set_word(FL(1, "QKVA"), S_T, S_TK, 11, 5)
        a(f's_lshl_b32 s{S_T}, s{S_PD}, 3'); a(f's_add_u32 s{S_SO}, s{S_SO}, s{S_T}')
        a(f'v_add_u32 v{xa}, 32768, v{L16}')
        a(f's_lshl_b32 s{S_T}, s{S_W}, 11'); a(f's_sub_u32 s{S_T}, s{S_T}, {HB_V}'); a(f'v_add_u32 v{t1}, s{S_T}, v{av}')
        a('s_waitcnt vmcnt(0)'); a('s_barrier')
        a(f's_cmp_eq_u32 s{S_PD}, 1'); a(f's_cbranch_scc1 {lv}')
        gemm_core(a, xa, XR, [(ACC, 'a', 0, False)]); pack_store(a, ACC, vo, S_IN, 'sc1', scale=S_SV); a(f's_branch {le}')
        a.label(lv)
        gemm_core(a, xa, XR, [(ACC, 'a', 0, True)]); pack_store(a, ACC, t1, S_IN, 'sc1')
        a.label(le)
        a('s_waitcnt vmcnt(0)'); self.wsignal(); a('s_barrier')
    def tb_run(self, half, ngr):
        a = self.a; H = W.H[half]
        t0, t1, akm, av, avm, vo, xw = range(3, 10); mx = 240; FG = 244
        XR = 12; CM = 28; SX = 44; SM = 60; Q = 76; K = 108; KM = 140; V = 172; VM = 204; P = 212; PM = 220; ACC = 224
        OT = Q
        a(f'v_and_b32 v{t0}, 7, v{L}'); a(f'v_lshlrev_b32 v{akm}, 4, v{t0}'); a(f'v_lshrrev_b32 v{t0}, 5, v{L}'); a(f'v_lshl_add_u32 v{akm}, v{t0}, 7, v{akm}')
        a(f'v_add_u32 v{akm}, {HB_KM}, v{akm}')
        pi_of(a, t0, L, t1); vpos16(a, av, t0, L, t1); a(f'v_add_u32 v{av}, {HB_V}, v{av}')
        a(f'v_lshlrev_b32 v{avm}, 2, v{t0}'); a(f'v_lshrrev_b32 v{t1}, 5, v{L}'); a(f'v_lshl_add_u32 v{avm}, v{t1}, 8, v{avm}'); a(f'v_add_u32 v{avm}, {HB_VM}, v{avm}')
        a(f's_lshl_b32 s{S_T}, s{S_W}, 11'); a(f'v_add_u32 v{vo}, s{S_T}, v{L16}')
        a(f's_lshl_b32 s{S_T}, s{S_W}, 13'); a(f'v_add_u32 v{xw}, s{S_T}, v{L16}')
        a(f'v_and_b32 v{t0}, 31, v{L}'); a(f'v_lshrrev_b32 v{t1}, 5, v{L}'); a(f'v_lshlrev_b32 v{t1}, 2, v{t1}'); a(f'v_sub_u32 v{t0}, v{t0}, v{t1}')
        a(f'v_mov_b32 v{t1}, {f2u(-1e30):#x}')
        for i in range(16):
            a(f'v_cmp_le_i32 vcc, {8*(i>>2)+(i&3)}, v{t0}'); a(f'v_cndmask_b32 v{CM+i}, v{t1}, 0, vcc')
        a(f's_and_b32 s{S_T}, s{S_A}, 28'); a(f's_add_u32 s{S_T}, s{S_T}, s{S_W}')
        a(f's_lshl_b32 s{S_K0}, s{S_T}, 8'); a(f's_add_u32 s{S_K0}, s{S_K0}, {FL(half, "HEAD")}')
        a(f's_lshl_b32 s{S_T}, s{S_T}, 21')
        a(f's_lshl_b32 s{S_T2}, s{S_B}, 15'); a(f's_add_u32 s{S_XO}, s{S_T}, s{S_T2}'); a(f's_add_u32 s{S_XO}, s{S_XO}, {H.HB}')
        a(f's_lshl_b32 s{S_T}, s{S_B}, 18'); a(f's_lshl_b32 s{S_T2}, s{S_A}, 13'); a(f's_add_u32 s{S_T}, s{S_T}, s{S_T2}'); a(f's_add_u32 s{S_T}, s{S_T}, {H.PT}')
        add64(a, S_OUT, S_WS, f's{S_T}')
        a(f's_mov_b32 s{S_M}, {f2u(math.log2(math.e)/math.sqrt(128.0)):#x}')
        a(f's_mov_b32 s{S_N}, 0'); a(f's_mov_b32 s{S_K1}, 0')
        def bl(n, dst, va, so, off): a(f'buffer_load_dword{n} {vr(dst, 4 if n else 1)}, v{va}, s[{S_WSRD}:{S_WSRD+3}], s{so} offen offset:{off} sc1')
        def poll(which):
            l1 = a.newlabel('Lt_p'); l2 = a.newlabel('Lt_p'); l3 = a.newlabel('Lt_p')
            a(f's_mov_b32 s{S_SPIN}, 0'); a(f's_branch {l3}')
            a.label(l1)
            if which == S_N:
                a(f'v_mov_b32 v{VZ}, s{S_K0}')
                _ = [a(f'global_load_dword v{FG+i}, v{VZ}, s[{S_WS}:{S_WS+1}] offset:{32*i} sc1') for i in range(8)]; a('s_waitcnt vmcnt(0)')
                a(f'v_min3_u32 v{FG}, v{FG}, v{FG+1}, v{FG+2}'); a(f'v_min3_u32 v{FG}, v{FG}, v{FG+3}, v{FG+4}'); a(f'v_min3_u32 v{FG}, v{FG}, v{FG+5}, v{FG+6}'); a(f'v_min_u32 v{FG}, v{FG}, v{FG+7}')
            else:
                a(f's_add_u32 s{S_X}, s{S_K0}, {FL(half, "CHP") - FL(half, "HEAD")}'); a(f'v_mov_b32 v{VZ}, s{S_X}')
                a(f'global_load_dword v{FG}, v{VZ}, s[{S_WS}:{S_WS+1}] sc1'); a('s_waitcnt vmcnt(0)')
            a(f'v_readfirstlane_b32 s{which}, v{FG}')
            if which == S_N: a(f's_max_u32 s{S_N}, s{S_N}, 4'); a(f's_sub_u32 s{S_N}, s{S_N}, 4')
            a(f's_cmp_gt_u32 s{which}, s{S_B}'); a(f's_cbranch_scc1 {l2}')
            a('s_sleep 1')
            lz = a.newlabel('Lt_z'); a(f's_cmp_ge_u32 s{S_B}, {self.tbt}'); a(f's_cbranch_scc1 {lz}'); a(f's_sleep {self.tbsleep}'); a.label(lz)
            a(f's_add_u32 s{S_SPIN}, s{S_SPIN}, 1'); a(f's_cmp_ge_u32 s{S_SPIN}, {SPIN_MAX}'); a(f's_cbranch_scc1 {self.end}')
            a.label(l3)
            a(f's_cmp_gt_u32 s{which}, s{S_B}'); a(f's_cbranch_scc0 {l1}')
            a.label(l2)
        lp = a.newlabel('Lt_loop')
        PFX = 58
        def x_loads(d):
            a(f's_add_u32 s{S_X}, s{S_XO}, {d}'); a(f's_add_u32 s{S_T}, s{S_XO}, {d+4096}'); a(f's_add_u32 s{S_T2}, s{S_XO}, {d+HB_Q}'); a(f's_add_u32 s{S_T3}, s{S_XO}, {d+HB_Q+4096}')
            for kb in range(8):
                bl('x4', K+4*kb, L16, S_X if kb < 4 else S_T, (kb%4)*1024)
                bl('x4', Q+4*kb, L16, S_T2 if kb < 4 else S_T3, (kb%4)*1024)
            for f in range(8): bl('x4', V+4*f, av, S_X if f < 4 else S_T, (f%4)*1024)
        a(f's_mov_b32 s{PFX}, 0'); a(f's_and_b32 s{S_TK}, s{S_A}, 4'); a(f's_add_u32 s{S_TK}, s{S_TK}, s{S_B}')
        a.label(lp)
        lh = a.newlabel('Lt_h'); a(f's_cmp_lg_u32 s{PFX}, 0'); a(f's_cbranch_scc1 {lh}')
        poll(S_N); x_loads(0)
        a.label(lh)
        def mem_loads():
            for kb in range(8): bl('x4', KM+4*kb, akm, S_XO, kb*256)
            for t in range(4):
                for e in range(2): bl('', VM+2*t+e, avm, S_XO, t*512 + e*128)
        def both(r, op):
            a(f'v_mov_b32 v{t0}, v{r}'); a(f'v_permlane32_swap_b32 v{r}, v{t0}'); a(f'{op} v{r}, v{r}, v{t0}')
        lx = mx + 1; al = mx + 2; m2 = mx + 3
        def xpart(extra):
            for kb in range(8):
                a(f's_waitcnt vmcnt({extra + 8 + 14 - 2*kb})')
                a(mf(SX, vr(K+4*kb,4), vr(Q+4*kb,4), vr(SX,16) if kb else vr(CM,16)))
            a(f'v_max3_f32 v{mx}, v{SX}, v{SX+1}, v{SX+2}')
            for i in range(3, 15, 2): a(f'v_max3_f32 v{mx}, v{mx}, v{SX+i}, v{SX+i+1}')
            a(f'v_max_f32 v{mx}, v{mx}, v{SX+15}'); both(mx, 'v_max_f32')
            for i in range(16): a(f'v_sub_f32 v{SX+i}, v{SX+i}, v{mx}')
            for i in range(16): a(f'v_mul_f32 v{SX+i}, s{S_M}, v{SX+i}')
            for i in range(16): a(f'v_exp_f32 v{SX+i}, v{SX+i}')
            a(f'v_add_f32 v{lx}, v{SX}, v{SX+1}')
            for i in range(2, 16): a(f'v_add_f32 v{lx}, v{lx}, v{SX+i}')
        lw_ = a.newlabel('Lt_w'); lj = a.newlabel('Lt_j')
        a(f's_cmp_gt_u32 s{S_K1}, s{S_B}'); a(f's_cbranch_scc0 {lw_}')
        mem_loads(); xpart(16); a(f's_branch {lj}')
        a.label(lw_)
        xpart(0); poll(S_K1)
        if half == 0: self.mark(4, S_B, 63)
        mem_loads()
        a.label(lj)
        for kb in range(8):
            a(f's_waitcnt vmcnt({8 + 7 - kb})')
            a(mf(SM, vr(KM+4*kb,4), vr(Q+4*kb,4), vr(SM,16) if kb else 0))
        if half == 0: self.mark(5, S_B, 63)
        a(f'v_max3_f32 v{m2}, v{SM}, v{SM+1}, v{mx}'); a(f'v_max3_f32 v{m2}, v{m2}, v{SM+2}, v{SM+3}'); both(m2, 'v_max_f32')
        a(f'v_sub_f32 v{al}, v{mx}, v{m2}')
        for i in range(4): a(f'v_sub_f32 v{SM+i}, v{SM+i}, v{m2}')
        for e in [al] + [SM+i for i in range(4)]: a(f'v_mul_f32 v{e}, s{S_M}, v{e}')
        for e in [al] + [SM+i for i in range(4)]: a(f'v_exp_f32 v{e}, v{e}')
        a(f'v_fma_f32 v{t1}, v{lx}, v{al}, v{SM}')
        for i in range(1, 4): a(f'v_add_f32 v{t1}, v{t1}, v{SM+i}')
        both(t1, 'v_add_f32')
        a(f'v_rcp_f32 v{t1}, v{t1}')
        a(f'v_mul_f32 v{al}, v{al}, v{t1}')
        for i in range(4): a(f'v_mul_f32 v{SM+i}, v{SM+i}, v{t1}')
        for i in range(2): a(f'v_cvt_pk_bf16_f32 v{PM+i}, v{SM+2*i}, v{SM+2*i+1}')
        a('s_waitcnt vmcnt(0)')
        for t in range(4):
            a(f'v_mfma_f32_32x32x8_bf16 {vr(OT+16*t,16)}, {vr(VM+2*t,2)}, {vr(PM,2)}, 0')
            for i in range(4*t, 4*t+4): a(f'v_mul_f32 v{SX+i}, v{SX+i}, v{al}')
            for i in range(2*t, 2*t+2): a(f'v_cvt_pk_bf16_f32 v{P+i}, v{SX+2*i}, v{SX+2*i+1}')
        def cv(t, j):
            o = OT+16*t+8*j
            for i in range(4): a(f'v_cvt_pk_bf16_f32 v{o+i}, v{o+2*i}, v{o+2*i+1}')
        def wr(t, j): a(f'ds_write_b128 v{xw}, {vr(OT+16*t+8*j,4)} offset:{(2*t+j)*1024}')
        todo = [(t, j) for t in range(4) for j in range(2)]; conv = []
        for n, (t, j) in enumerate(list(todo)):
            a(mf(OT+16*t, vr(V+8*t+4*j,4), vr(P+4*j,4), vr(OT+16*t,16)))
            if conv: wr(*conv.pop(0))
            if n >= 3: x = todo.pop(0); cv(*x); conv.append(x)
        for x in conv: wr(*x)
        for x in todo: cv(*x); wr(*x)
        a('s_waitcnt lgkmcnt(0)'); a('s_barrier')
        def pfx():
            l = a.newlabel('Lt_x'); a(f's_add_u32 s{S_T}, s{S_B}, {ngr}'); a(f's_mov_b32 s{PFX}, 0')
            a(f's_cmp_gt_u32 s{S_N}, s{S_T}'); a(f's_cbranch_scc0 {l}')
            x_loads(ngr*32768); a(f's_mov_b32 s{PFX}, 1'); a.label(l)
        gemm_core(a, L16, XR, [(ACC, 'a', 128, False)], {1: pfx})
        pack_store(a, ACC, vo, S_OUT, 'sc1')
        if half == 0: self.mark(6, S_B, 63)
        self.set_word(FL(half, 'PT'), S_B, S_A); self.signal_wg()
        if half == 0: self.mark(7, S_B, 63); self.mark(13, S_B, 35); self.mark(14, S_B, 51)
        add64(a, S_OUT, S_OUT, ngr*8*32768); a(f's_add_u32 s{S_XO}, s{S_XO}, {ngr*32768}')
        a(f's_add_u32 s{S_B}, s{S_B}, {ngr}')
        if half == 0:
            nxt = a.newlabel('Lt_n'); pa = a.newlabel('Lt_pa'); fin = a.newlabel('Lt_f')
            a(f's_and_b32 s{S_T}, s{S_A}, 3'); a(f's_cmp_ge_u32 s{S_T}, 3'); a(f's_cbranch_scc1 {nxt}')
            a(f's_cmp_ge_u32 s{S_TK}, {self.pasplit}'); a(f's_cbranch_scc1 {nxt}')
            a(f's_add_u32 s{S_T}, s{S_TK}, {self.palag*ngr}'); a(f's_cmp_gt_u32 s{S_T}, s{S_B}'); a(f's_cbranch_scc1 {nxt}')
            self.pa_task(vo, av)
            a(f's_add_u32 s{S_TK}, s{S_TK}, {2*ngr}')
            a(f's_cmp_lt_u32 s{S_TK}, {self.pasplit}'); a(f's_cbranch_scc1 {nxt}')
            a(f'v_mov_b32 v{VZ}, 0x3f803f80')
            for i in range(128): a(f'v_accvgpr_write_b32 a{i}, v{VZ}')
            a.label(nxt)
        a(f's_cmp_lt_u32 s{S_B}, 64'); a(f's_cbranch_scc1 {lp}')

    def build(self):
        a = self.a; end = self.end
        a(f's_cmp_ge_u32 s2, 256'); a(f's_cbranch_scc1 {end}')
        if self.stamps == 2: a('s_memrealtime s[96:97]')
        if self.stamps is True: a('s_memrealtime s[94:95]')
        a(f's_load_dwordx2 s[{S_DBG}:{S_DBG+1}], s[0:1], {KA_DBG}')
        common_prologue(a, L, L16)
        lw = a.newlabel('Le'); lo = a.newlabel('Le'); ls = a.newlabel('Le'); lg = a.newlabel('Le'); lz = a.newlabel('Le')
        a(f's_getreg_b32 s{S_X}, hwreg(HW_REG_XCC_ID, 0, 3)')
        a(f's_xor_b32 s{S_X}, s{S_X}, {self.die}')
        if self.fake: a(self.fake.format(x=S_X))
        a(f's_lshl_b32 s{S_T}, s{S_X}, 4'); a(f'v_mov_b32 v3, s{S_T}'); a('v_mov_b32 v4, 1')
        def xwait():
            l1 = a.newlabel('Le'); l2 = a.newlabel('Le')
            a(f's_mul_i32 s{S_T}, s2, 3072'); a(f's_add_u32 s{S_T}, s{S_T}, {W.FLAGS}'); a('v_mul_u32_u24 v6, 12, v0'); a(f'v_add_u32 v6, s{S_T}, v6'); a('v_mov_b32 v8, 0'); a('v_mov_b32 v9, 0'); a('v_mov_b32 v10, 0')
            a(f'global_store_dwordx3 v6, v[8:10], s[{S_WS}:{S_WS+1}] sc1')
            a(f's_cmp_lg_u32 s{S_W}, 0'); a(f's_cbranch_scc1 {l1}')
            a('s_mov_b64 exec, 1'); a(f'global_atomic_add v5, v3, v4, s[{S_DBG}:{S_DBG+1}] offset:{self.TO} sc0 sc1'); a('s_mov_b64 exec, -1')
            a('s_waitcnt vmcnt(2)'); a(f's_branch {l2}')
            a.label(l1); a('s_waitcnt vmcnt(1)'); a.label(l2)
        a(f's_lshr_b32 s{S_A}, s2, 2'); a(f's_and_b32 s{S_B}, s2, 3')
        rb_body(a, 0, KA_X, True, 0, 0, 0, None, False, W.H[0].XNA, '', 'sc1', ldsoff=1024, vb=20, xwait=xwait)
        a(f's_cmp_lg_u32 s{S_W}, 0'); a(f's_cbranch_scc1 {lw}')
        a('s_mov_b64 exec, 1'); a('s_waitcnt vmcnt(2)')
        a(f'v_readfirstlane_b32 s{S_TK}, v5')
        a(f's_lshl_b32 s{S_SLOT}, s{S_X}, 5'); a(f's_add_u32 s{S_SLOT}, s{S_SLOT}, s{S_TK}')
        a(f's_cmp_lt_u32 s{S_TK}, 32'); a(f's_cbranch_scc1 {lg}')
        a('v_mov_b32 v3, 136'); a(f'global_atomic_add v5, v3, v4, s[{S_DBG}:{S_DBG+1}] sc0 sc1'); a('s_waitcnt vmcnt(0)')
        a(f'v_readfirstlane_b32 s{S_TK}, v5')
        self.count_wait(self.TO, 12, ls, S_T, S_SPIN)
        a.label(ls)
        for x in range(8):
            a(f'v_readfirstlane_b32 s{S_T}, v{12+x}'); a(f's_min_u32 s{S_T}, s{S_T}, 32')
            a(f's_add_u32 s{S_SLOT}, s{S_T}, s{S_TK}'); a(f's_add_u32 s{S_SLOT}, s{S_SLOT}, {32*x}')
            a(f's_sub_u32 s{S_T}, 32, s{S_T}'); a(f's_cmp_lt_u32 s{S_TK}, s{S_T}'); a(f's_cbranch_scc1 {lg}')
            a(f's_sub_u32 s{S_TK}, s{S_TK}, s{S_T}')
        a(f's_mov_b32 s{S_SLOT}, 256')
        a.label(lg)
        a(f'v_mov_b32 v3, 0'); a(f'v_mov_b32 v4, s{S_SLOT}'); a('ds_write_b32 v3, v4'); a('s_waitcnt lgkmcnt(0)')
        a('s_mov_b64 exec, -1')
        a.label(lw)
        a('s_waitcnt vmcnt(0)'); a('s_barrier')
        a(f's_mov_b32 s{S_DIE}, s{S_X}'); self.report()
        a('v_mov_b32 v3, 0'); a('ds_read_b32 v4, v3'); a('s_waitcnt lgkmcnt(0)'); a(f'v_readfirstlane_b32 s{S_SLOT}, v4'); a('s_barrier')
        a(f's_lshr_b32 s{S_T}, s{S_SLOT}, 5'); a(f's_lshl_b32 s{S_T2}, s{S_T}, 2'); a(f's_lshr_b32 s{S_T2}, {self.perm:#x}, s{S_T2}'); a(f's_and_b32 s{S_T2}, s{S_T2}, 7')
        a(f's_cmp_lt_u32 s{S_T}, 8'); a(f's_cselect_b32 s{S_T2}, s{S_T2}, 8'); a(f's_and_b32 s{S_SLOT}, s{S_SLOT}, 31'); a(f's_lshl_b32 s{S_T2}, s{S_T2}, 5'); a(f's_add_u32 s{S_SLOT}, s{S_SLOT}, s{S_T2}')
        if self.stamps: a(f's_mov_b32 s99, s{S_SLOT}')
        self.role = 'all'
        self.dmap = {('all',0):0, ('ch',1):1, ('ch',2):2, ('ch',3):3, ('ch',4):4, ('gw',1):8, ('gw',2):9, ('gw',3):10, ('pb',1):11, ('ms',12):12, ('gw',4):13, ('pb',3):14}
        if self.stamps == 2:
            a('s_and_b32 s99, s96, 0xfff00000')
        self.sv = 10
        a(f's_mov_b32 s{S_SO}, {W.STAMPS}')
        if self.stamps: _ = [a(f's_mov_b32 s{70+k}, 0') for k in range(16)]
        if self.stamps is True: a('s_mov_b32 s85, s94')
        self.stamp(0)
        Lch, Lpb, Lgw, Lms, Lpa = [a.newlabel(n) for n in ('Lchain', 'Lpb', 'Lgw', 'Lms', 'Lpa')]
        a(f's_cmp_lt_u32 s{S_SLOT}, 32'); a(f's_cbranch_scc0 Lnot_chain')
        self.jump(Lch)
        a.label('Lnot_chain')
        a(f's_cmp_lt_u32 s{S_SLOT}, 96'); a(f's_cbranch_scc1 {Lpb}')
        a(f's_cmp_lt_u32 s{S_SLOT}, 224'); a(f's_cbranch_scc1 {Lgw}')
        a(f's_cmp_lt_u32 s{S_SLOT}, 240'); a(f's_cbranch_scc1 {Lms}')
        a(f's_cmp_lt_u32 s{S_SLOT}, 256'); a(f's_cbranch_scc1 {Lpa}')
        a.label(end); a('s_endpgm')
        a.label(Lms); self.role = 'ms'; self.code_touch(sh=7)
        a(f's_and_b32 s{S_A}, s{S_SLOT}, 3'); a(f's_lshl_b32 s{S_OFF}, s{S_A}, 8')
        load_wslices(a, [(KA_WOA, 512*1024, 0, 'v', 128)], 1024, L, 3, 4, 5)
        if self.pfb & 2:
            a(f's_load_dwordx2 s[{S_P}:{S_P+1}], s[0:1], {KA_WO}'); a(f's_and_b32 s{S_T}, s{S_SLOT}, 15'); a(f's_lshl_b32 s{S_T}, s{S_T}, 18')
            a(f'v_lshl_add_u32 v3, v0, 7, s{S_T}'); a('s_waitcnt lgkmcnt(0)')
            for i in range(8):
                a(f'global_load_dword v4, v3, s[{S_P}:{S_P+1}]'); a('v_add_u32 v3, 32768, v3')
        self.flags_ready(); self.local_check()
        for half in range(2):
            a(f's_and_b32 s{S_A}, s{S_SLOT}, 3'); a(f's_bfe_u32 s{S_B}, s{S_SLOT}, 0x20002'); self.woa_run(half, 4); self.stamp(3 + 8*half)
            a(f's_bfe_u32 s{S_A}, s{S_SLOT}, 0x20002'); a(f's_and_b32 s{S_B}, s{S_SLOT}, 3')
            self.rb_run(half, 4); self.stamp(4 + 8*half)
        self.dump_marks(); a('s_endpgm')
        a.label(Lpa); self.role = 'pa'; self.code_touch(sh=7)
        def first_x():
            self.flags_ready(); self.mark(9, S_W, 0)
            a(f's_lshl_b32 s{S_XO}, s{S_B}, 15'); a(f's_add_u32 s{S_XO}, s{S_XO}, {W.H[0].XNA}'); a(f's_mov_b32 s{S_BUF}, {128*1024}')
            dma_x(a, L16, S_XO, S_BUF, 'sc1')
        a(f's_and_b32 s{S_A}, s{S_SLOT}, 3'); a(f's_bfe_u32 s{S_B}, s{S_SLOT}, 0x20002')
        self.proj_weights(False, (S_B, 4), first_x, (2,)); self.proj_run(0, False, 4, nowait=True, mode='q'); self.stamp(3)
        self.proj_weights(False, None, None, (0, 1))
        a(f's_bfe_u32 s{S_B}, s{S_SLOT}, 0x20002'); a(f's_add_u32 s{S_B}, s{S_B}, {self.pasplit}'); self.proj_run(1, False, 4); self.stamp(4)
        self.dump_marks(); a('s_endpgm')
        a.label(Lpb); self.role = 'pb'; self.code_touch(sh=7)
        def pb_ids():
            a(f's_sub_u32 s{S_T}, s{S_SLOT}, 32'); a(f's_lshr_b32 s{S_A}, s{S_T}, 5'); a(f's_lshl_b32 s{S_A}, s{S_A}, 4'); a(f's_and_b32 s{S_T2}, s{S_T}, 15')
            a(f's_add_u32 s{S_A}, s{S_A}, s{S_T2}'); a(f's_bfe_u32 s{S_B}, s{S_T}, 0x10004')
        pb_ids(); self.proj_weights(True, (S_B, 2) if self.pfb & 1 else None); self.flags_ready(); self.stamp(1)
        for half in range(2):
            pb_ids(); self.proj_run(half, True, 2); self.stamp(3 + 8*half)
        self.dump_marks(); a('s_endpgm')
        a.label(Lgw); self.role = 'gw'; self.code_touch(sh=7)
        self.end = 'Lm_end2'
        def pa_ids(): a(f's_sub_u32 s{S_T}, s{S_SLOT}, 96'); a(f's_lshr_b32 s{S_A}, s{S_T}, 5'); a(f's_and_b32 s{S_B}, s{S_T}, 31')
        pa_ids()
        def gw_first():
            a(f'v_mov_b32 v{VZ}, 0x3f803f80')
            for i in range(128): a(f'v_accvgpr_write_b32 a{i}, v{VZ}')
        lv = a.newlabel('Lgw_v'); lj = a.newlabel('Lgw_j')
        a(f's_lshr_b32 s{S_B}, s{S_B}, 1')
        BUFS = (128*1024, 0, 32768, 65536)
        def xblk(k):
            a(f's_lshl_b32 s{S_XO}, s{S_B}, 15'); a(f's_add_u32 s{S_XO}, s{S_XO}, {W.H[0].XNA + k*16*32768}'); a(f's_mov_b32 s{S_BUF}, {BUFS[k]}')
            dma_x(a, L16, S_XO, S_BUF, 'sc1')
        def early3():
            self.flags_ready(); self.mark(9, S_W, 0)
            for k in range(3): xblk(k)
        def start_proj(isv):
            H = W.H[0]; vo = 6; xa = 9; XR = 12; ACC = (28, 44)
            self.proj_weights(False, (S_B, 16), early3, (isv,), gw_first); self.mark(10, S_W, 0)
            xblk(3)
            if isv: pi_of(a, 3, L, 4); vpos16(a, vo, 3, L, 4)
            else: a(f'v_mov_b32 v{vo}, v{L16}')
            a(f's_lshl_b32 s{S_T}, s{S_W}, 11'); a(f'v_add_u32 v{vo}, s{S_T}, v{vo}')
            a(f's_lshl_b32 s{S_T}, s{S_A}, 13'); a(f's_lshl_b32 s{S_T2}, s{S_B}, 15'); a(f's_add_u32 s{S_T}, s{S_T}, s{S_T2}')
            a(f's_add_u32 s{S_T}, s{S_T}, {H.VA if isv else H.KA}'); add64(a, S_OUT, S_WS, f's{S_T}')
            def hs(acc, j):
                for i in range(4): a(f'v_cvt_pk_bf16_f32 v{acc+8*j+i}, v{acc+8*j+2*i}, v{acc+8*j+2*i+1}')
                a(f'global_store_dwordx4 v{vo}, {vr(acc+8*j,4)}, s[{S_OUT}:{S_OUT+1}] offset:{1024*j} sc1')
                if j: add64(a, S_OUT, S_OUT, 16*32768)
            for k in range(4):
                if k == 3: a('s_waitcnt vmcnt(4)'); a('s_barrier')
                a(f'v_add_u32 v{xa}, {BUFS[k]}, v{L16}')
                prev = ACC[(k+1) % 2]
                gemm_core(a, xa, XR, [(ACC[k%2], 'v' if isv else 'a', 128, bool(isv))], {1: (lambda p=prev: hs(p, 0)), 3: (lambda p=prev: hs(p, 1))} if k else {})
            hs(ACC[1], 0); hs(ACC[1], 1)
            a(f's_lshl_b32 s{S_T}, s{S_A}, 2'); a(f's_add_u32 s{S_T}, s{S_T}, s{S_W}'); self.set_word(FL(0, "QKVA") + 8*isv, S_T, S_B, 11, 5)
        a(f's_and_b32 s{S_T}, s{S_SLOT}, 1'); a(f's_cmp_eq_u32 s{S_T}, 1'); a(f's_cbranch_scc1 {lv}')
        start_proj(0); a(f's_branch {lj}')
        a.label(lv); start_proj(1)
        a.label(lj)
        a(f'v_lshl_add_u32 v{VZ}, v{L}, 9, s{S_SO}'); a(f'v_mov_b32 v{VF}, 1'); a('s_waitcnt vmcnt(0)')
        a('s_mov_b64 exec, 15'); a(f'global_store_dword v{VZ}, v{VF}, s[{S_WS}:{S_WS+1}] sc1'); a('s_mov_b64 exec, -1')
        a('s_waitcnt vmcnt(0)')
        self.stamp(1)
        def gw_ids():
            a(f's_sub_u32 s{S_T}, s{S_SLOT}, 96'); a(f's_lshr_b32 s{S_A}, s{S_T}, 5'); a(f's_lshl_b32 s{S_A}, s{S_A}, 3'); a(f's_and_b32 s{S_T2}, s{S_T}, 7')
            a(f's_add_u32 s{S_A}, s{S_A}, s{S_T2}'); a(f's_bfe_u32 s{S_B}, s{S_T}, 0x20003')
        for half in range(2):
            gw_ids(); self.att_run(half, 4); self.stamp(3 + 8*half)
            gw_ids()
            if half == 0: self.tb_weights()
            self.tb_run(half, 4); self.stamp(4 + 8*half)
        self.dump_marks()
        a.label('Lm_end2'); a('s_endpgm')
        a.label(Lch); self.role = 'ch'
        self.end = 'Lm_end3'; end = self.end
        r = C.ChainRegs(); self.sv = r.R
        a(f's_mov_b32 s{C.S_H}, s{S_SLOT}')
        lslow = a.newlabel('Lcslow'); lfast = a.newlabel('Lcfast')
        def mid(T):
            l1 = a.newlabel('Lcm'); l2 = a.newlabel('Lcm')
            T = r.WV + 64
            self.count_wait(132, T, end, C.S_T, C.S_SPIN); self.count_wait(self.TO, T, end, C.S_T, C.S_SPIN)
            a(f'v_readfirstlane_b32 s{C.S_T}, v{T}')
            add64(a, S_DBG, S_WS, FL(0, 'EL'))
            if self.chain_kw.get('force_slow'): a(f's_mov_b32 s{C.S_T}, 0')
            a(f's_mov_b32 s{C.S_EP}, 0'); a(f's_mov_b32 s{C.S_EM}, 0'); a(f's_mov_b32 s{C.S_HALF}, 0')
            a(f's_cmp_ge_u32 s{C.S_T}, 32'); a(f's_cselect_b32 s{C.S_FB}, 1, 0'); a(f's_cbranch_scc1 {l1}')
            C.chain_init_comm(a, r, 'sc1', True, T); a(f's_branch {l2}')
            a.label(l1); C.chain_init_comm(a, r, '', True, T)
            a.label(l2); C.group_arrive(a, T, 1280)
        C.chain_setup(a, r, mid, self.ahead)
        self.stamp(1)
        C.group_wait(a, r.R, 1280, 32, end)
        a(f's_cmp_eq_u32 s{C.S_FB}, 1'); a(f's_cbranch_scc1 {lfast}')
        a(f's_branch {lslow}')
        a.label(end); a('s_endpgm')
        kw = {k: v for k, v in self.chain_kw.items() if k != 'force_slow'}
        for lbl, stf in ((lfast, ''), (lslow, 'sc1')):
            a.label(lbl)
            lh = a.newlabel('Lch_half'); a.label(lh)
            self.stamp(2, C.S_HALF)
            C.chain_start(a, r, end, 1)
            def started(sv):
                self.sv = sv; self.stamp(3, C.S_HALF); self.sv = r.R
            kw['started'] = started
            C.chain_all_waves(a, r, stf, end, fused=1, **(dict(kw, ef='sc1') if stf else kw))
            self.stamp(4, C.S_HALF)
            if kw.get('stamps'):
                for k in range(12): a(f'v_mov_b32 v{k}, s{84+k}')
                a(f's_lshl_b32 s{C.S_T}, s{C.S_H}, 2'); a(f's_add_u32 s{C.S_T}, s{C.S_T}, s{C.S_W}'); a(f's_lshl_b32 s{C.S_T}, s{C.S_T}, 6')
                a(f's_lshl_b32 s{C.S_T2}, s{C.S_HALF}, 13'); a(f's_add_u32 s{C.S_T}, s{C.S_T}, s{C.S_T2}')
                a(f's_add_u32 s{C.S_T}, s{C.S_T}, {STAMP_OFF + 32768}'); a(f'v_mov_b32 v16, s{C.S_T}')
                for k in range(3): a(f'global_store_dwordx4 v16, {vr(4*k,4)}, s[{S_WS}:{S_WS+1}] offset:{16*k}')
                a('s_waitcnt vmcnt(0)')
            a(f's_cmp_lg_u32 s{C.S_HALF}, 0'); a(f's_cbranch_scc1 {end}')
            a(f's_mov_b32 s{C.S_HALF}, 1'); C.group_arrive(a, r.R, 1408); C.group_wait(a, r.R, 1408, 32, end)
            a(f's_xor_b32 s{C.S_EM}, s{C.S_EM}, 1'); C.chain_init_comm(a, r, stf, False)
            a(f's_branch {lh}')
        return a.lines
    def jump(self, label):
        a = self.a; l = a.newlabel('Lj')
        a('s_getpc_b64 s[48:49]'); a.label(l)
        a(f's_add_u32 s48, s48, {label}-{l}'); a('s_addc_u32 s49, s49, 0'); a('s_setpc_b64 s[48:49]')

DOC = """;
;
"""
NAME = 'interleave_layers__softmax_full_mha__memory_aug_recurrent_mem_tr__prompt'
def build(stamps=False, chain_kw={}, verbose=False, aslist=True):
    ks = []; al8 = chain_kw.pop('al8', 0)
    for n, lines, vg, acc in ((NAME + '_kernel', Mega(stamps, chain_kw).build(), 512, 256),):
        rep = []
        l = fix_hazards(lines, rep)
        if al8:
            l, nf, nbad = align8(l)
            if verbose: print('align8', nf, nbad)
        for e in check_waits(l, n[:8]): print(e)
        if verbose: print(n, len(l), len(rep))
        ks.append((n, l, vg, acc))
    hdr = ''.join(l for l in open(f'cdna_kernels/{NAME}.s.ref').readlines()[:14] if '@launch' not in l)
    hdr += DOC
    t = assemble_file(hdr, [(NAME + '_kernel', 256, 256, 163840)], ks)
    return t if aslist else t.replace(f'@launch kernel={NAME}_kernel ', '@launch ')

if __name__ == '__main__':
    import sys
    kw = eval(sys.argv[2]) if len(sys.argv) > 2 else dict()
    st = (True if sys.argv[3] == '1' else 2) if len(sys.argv) > 3 else False
    t = build(st, kw, True, aslist=(st is True))
    open(sys.argv[1] if len(sys.argv) > 1 else f'cdna_kernels/{NAME}.s', 'w').write(t)
    print(len(t))
```

```python
from asmlib import *
from layout import *
import math
import chain2 as C
from work import *

S_DBG = 44; S_SLOT = 36; S_TK = 37; S_SPIN = 38; S_PF = 39; S_FO = 40; S_N = 41; S_X = 42; S_SO = 43; S_SV = 46; S_PD = 47; S_LOC = 50; S_DIE = 91
L, L16 = 1, 2
VZ = 10; VF = 11
SPIN_MAX = 0x60000

class Mega:
    def __init__(self, stamps=False, chain_kw={}):
        self.a = Asm(); self.stamps = stamps; self.chain_kw = chain_kw
        self.end = 'Lm_end'; self.TO = 128 if stamps == 2 else 0
        self.tbsleep = chain_kw.pop('tbsleep', 8); self.wsleep = chain_kw.pop('wsleep', 1); self.wrd = chain_kw.pop('wrd', 0); self.ahead = chain_kw.pop('ahead', 0); self.fake = chain_kw.pop('fake', None); self.ct = chain_kw.pop('ct', 0); self.loc = chain_kw.pop('loc', 0); self.lazy = chain_kw.pop('lazy', 0); C.ROT[0] = chain_kw.pop('rot', 0); C.ROT[1] = (chain_kw.pop('rot2', 1) if chain_kw.get('direct') else 3); C.WF[0] = chain_kw.pop('wf', ''); self.attup = chain_kw.pop('attup', 8); self.die = chain_kw.pop('die', 3); self.palag = chain_kw.pop('palag', 3); self.pasplit = chain_kw.pop('pasplit', 48); self.qdef = chain_kw.pop('qdef', 0); self.one = chain_kw.pop('one', 1); self.rsplit = chain_kw.pop('rsplit', 0); self.tbt = chain_kw.pop('tbt', 62); self.tlb = chain_kw.pop('tlb', 0); self.pfb = chain_kw.pop('pfb', 2); self.kvpos = chain_kw.pop('kvpos', 20); self.perm = chain_kw.pop('perm', 0x65241370)
    def stamp(self, k, hs=None):
        if not self.stamps: return
        a = self.a; l = a.newlabel('Lst')
        if self.stamps == 2:
            kk = self.dmap.get((self.role, k))
            if kk is None: return
            a(f's_cmp_lg_u32 s{S_W}, 0'); a(f's_cbranch_scc1 {l}')
            a('s_memrealtime s[96:97]'); a(f's_load_dwordx2 s[100:101], s[0:1], {KA_DBG}'); a('s_waitcnt lgkmcnt(0)'); a('s_sub_u32 s96, s96, s99')
            a(f's_mov_b32 s98, {4*kk}')
            if hs is not None: a(f's_mul_i32 s97, s{hs}, 12'); a('s_add_u32 s98, s98, s97')
            a('s_mov_b64 exec, 1'); a(f'v_mov_b32 v{self.sv}, s96'); a(f'v_mov_b32 v{self.sv+1}, s98')
            a(f'global_atomic_umax v{self.sv+1}, v{self.sv}, s[100:101] sc1'); a('s_waitcnt vmcnt(0)'); a('s_mov_b64 exec, -1')
            a.label(l); return
        a(f's_cmp_lg_u32 s{S_W}, 0'); a(f's_cbranch_scc1 {l}')
        a('s_memrealtime s[96:97]'); a(f's_lshl_b32 s98, s99, 7'); a(f's_add_u32 s98, s98, {STAMP_OFF + 4*k}'); a('s_waitcnt lgkmcnt(0)')
        if hs is not None: a(f's_lshl_b32 s97, s{hs}, 5'); a('s_add_u32 s98, s98, s97')
        a('s_mov_b64 exec, 1'); a(f'v_writelane_b32 v{self.sv}, s96, 0'); a(f'v_writelane_b32 v{self.sv+1}, s98, 0')
        a(f'v_mov_b32 v{self.sv+1}, s98')
        a(f'global_store_dword v{self.sv+1}, v{self.sv}, s[{S_WS}:{S_WS+1}]'); a('s_waitcnt vmcnt(0)'); a('s_mov_b64 exec, -1')
        a.label(l)
    def mark(self, k, sgpr, val):
        if self.stamps is not True: return
        a = self.a; l = a.newlabel('Lmk')
        a(f's_cmp_lg_u32 s{sgpr}, {val}'); a(f's_cbranch_scc1 {l}')
        a('s_memrealtime s[96:97]'); a('s_waitcnt lgkmcnt(0)'); a(f's_mov_b32 s{70+k}, s96')
        a.label(l)
    def dump_marks(self):
        if self.stamps is not True: return
        a = self.a
        for k in range(16): a(f'v_mov_b32 v{16+k}, s{70+k}')
        a(f's_lshl_b32 s98, s99, 7'); a(f's_add_u32 s98, s98, {STAMP_OFF + 64}'); a('v_mov_b32 v12, s98')
        l = a.newlabel('Lmk'); a(f's_cmp_lg_u32 s{S_W}, 0'); a(f's_cbranch_scc1 {l}')
        for k in range(4): a(f'global_store_dwordx4 v12, {vr(16+4*k,4)}, s[{S_WS}:{S_WS+1}] offset:{16*k}')
        a.label(l)
    def count_wait(self, off, v, fail, st, sp):
        a = self.a; l1 = a.newlabel('Lcw'); l2 = a.newlabel('Lcw')
        a(f's_mov_b32 s{sp}, 0'); a(f'v_mov_b32 v{v+8}, 0')
        a.label(l1)
        for x in range(8): a(f'global_load_dword v{v+x}, v{v+8}, s[{S_DBG}:{S_DBG+1}] offset:{off+16*x} sc1')
        a('s_waitcnt vmcnt(0)')
        a(f'v_add3_u32 v{v+9}, v{v}, v{v+1}, v{v+2}'); a(f'v_add3_u32 v{v+9}, v{v+9}, v{v+3}, v{v+4}'); a(f'v_add3_u32 v{v+9}, v{v+9}, v{v+5}, v{v+6}'); a(f'v_add_u32 v{v+9}, v{v+9}, v{v+7}')
        a(f'v_readfirstlane_b32 s{st}, v{v+9}'); a(f's_cmp_ge_u32 s{st}, 256'); a(f's_cbranch_scc1 {l2}')
        a('s_sleep 4'); a(f's_add_u32 s{sp}, s{sp}, 1'); a(f's_cmp_lt_u32 s{sp}, {SPIN_MAX}'); a(f's_cbranch_scc1 {l1}')
        a(f's_branch {fail}')
        a.label(l2)
    def code_touch(self, v=VZ, sp=48, sh=6):
        if not self.ct: return
        a = self.a
        a(f's_getpc_b64 s[{sp}:{sp+1}]'); a(f's_lshl_b32 s{S_T}, s{S_W}, {6+sh}'); a(f'v_lshl_add_u32 v{v}, v{L}, {sh}, s{S_T}')
        a(f'global_load_dword v{v+1}, v{v}, s[{sp}:{sp+1}]')
    def report(self, v=VZ, st=S_T):
        a = self.a; l = a.newlabel('Lrp')
        a(f's_cmp_lg_u32 s{S_W}, 1'); a(f's_cbranch_scc1 {l}')
        a(f's_lshl_b32 s{st}, s{S_DIE}, 4'); a(f'v_mov_b32 v{v}, s{st}'); a(f'v_mov_b32 v{v+1}, 1')
        a('s_mov_b64 exec, 1'); a(f'global_atomic_add v{v}, v{v+1}, s[{S_DBG}:{S_DBG+1}] offset:132 sc1'); a('s_mov_b64 exec, -1')
        a.label(l)
    def local_check(self):
        a = self.a
        x = [i for i in range(8) if (self.perm >> (4*i)) & 7 == 7][0]
        self.count_wait(self.TO, 12, self.end, S_T, S_SPIN)
        a(f'v_readfirstlane_b32 s{S_T}, v{12+x}'); a(f's_cmp_ge_u32 s{S_T}, 32'); a(f's_cselect_b32 s{S_LOC}, {0 if (self.chain_kw.get("force_slow") or not self.loc) else 1}, 0')
    def dual(self, emit):
        a = self.a; l1 = a.newlabel('Ld'); l2 = a.newlabel('Ld')
        a(f's_cmp_eq_u32 s{S_LOC}, 1'); a(f's_cbranch_scc1 {l1}')
        emit('sc1'); a(f's_branch {l2}')
        a.label(l1); emit(''); a.label(l2)
    def flags_ready(self): self.count_wait(132, 12, self.end, S_T, S_SPIN)
    def flag_off(self, base, idx_sgpr, sh=2):
        self.a(f's_lshl_b32 s{S_FO}, s{idx_sgpr}, {sh}'); self.a(f's_add_u32 s{S_FO}, s{S_FO}, {base}')
    def flag_issue(self, n):
        a = self.a
        a(f'v_min_u32 v{VZ}, {n-1}, v{L}'); a(f'v_lshl_add_u32 v{VZ}, v{VZ}, 8, s{S_FO}'); a(f'global_load_dword v{VF}, v{VZ}, s[{S_WS}:{S_WS+1}] sc1')
    def wait(self, n, sleep=None, mask=None, sh=8, thr=None, keep=None, lazy=None, extra=None):
        a = self.a; l1 = a.newlabel('Lw'); l2 = a.newlabel('Lw')
        a(f's_mov_b32 s{S_SPIN}, 0')
        a(f'v_min_u32 v{VZ}, {n-1}, v{L}'); a(f'v_lshl_add_u32 v{VZ}, v{VZ}, {sh}, s{S_FO}')
        if extra is not None:
            a(f's_lshl_b32 s{S_X}, s{extra}, {sh}'); a(f's_add_u32 s{S_X}, s{S_X}, s{S_FO}'); a(f's_add_u32 s{S_X}, s{S_X}, 16'); a(f'v_writelane_b32 v{VZ}, s{S_X}, 63')
        a.label(l1)
        a(f'global_load_dword v{VF}, v{VZ}, s[{S_WS}:{S_WS+1}] sc1'); a('s_waitcnt vmcnt(0)')
        a(f'v_cmp_eq_u32 vcc, 0, v{VF}' if thr is None else f'v_cmp_gt_u32 vcc, {thr}, v{VF}')
        if keep: a('s_cmp_eq_u64 vcc, 0'); a(f's_cselect_b32 s{keep}, 1, 0')
        if mask is None: a(f's_cbranch_vccz {l2}')
        else: a(f's_and_b64 vcc, vcc, s[{mask}:{mask+1}]'); a(f's_cbranch_scc0 {l2}')
        a(f's_sleep {sleep or self.wsleep}')
        if lazy is not None and self.lazy:
            l3 = a.newlabel('Lw'); a(f's_cmp_ge_u32 s{lazy}, 60'); a(f's_cbranch_scc1 {l3}'); a(f's_sleep {self.lazy}'); a.label(l3)
        a(f's_add_u32 s{S_SPIN}, s{S_SPIN}, 1'); a(f's_cmp_lt_u32 s{S_SPIN}, {SPIN_MAX}'); a(f's_cbranch_scc1 {l1}')
        a(f's_branch {self.end}')
        a.label(l2)
    def set_word(self, base, line_sgpr, word_sgpr, s1=2, s2=8):
        a = self.a
        a(f's_lshl_b32 s{S_SO}, s{line_sgpr}, {s1}'); a(f's_lshl_b32 s{S_X}, s{word_sgpr}, {s2}'); a(f's_add_u32 s{S_SO}, s{S_SO}, s{S_X}'); a(f's_add_u32 s{S_SO}, s{S_SO}, {base}')
    def wsignal(self, val=None, loc=False):
        a = self.a
        a(f'v_mov_b32 v{VZ}, s{S_SO}'); a(f'v_mov_b32 v{VF}, {"s%d" % val if val else "1"}')
        st = lambda f: a(f'global_store_dword v{VZ}, v{VF}, s[{S_WS}:{S_WS+1}] {f}')
        a('s_mov_b64 exec, 1')
        if loc: self.dual(st)
        else: st('sc1')
        a('s_mov_b64 exec, -1')
    def signal_wg(self, loc=False):
        a = self.a; l = a.newlabel('Ls')
        a('s_waitcnt vmcnt(0)'); a('s_barrier'); a(f's_cmp_lg_u32 s{S_W}, 0'); a(f's_cbranch_scc1 {l}')
        self.wsignal(loc=loc); a.label(l)

    def stream(self, ngr, xsrc, inflag, nin, tiles, epilogue, nst, outflag, store, mk=None, pre=None):
        a = self.a; xa = 9; XR = 12
        lp = a.newlabel('Lg_loop'); have = a.newlabel('Lg_have'); go = a.newlabel('Lg_go'); fetch = a.newlabel('Lg_fetch'); done = a.newlabel('Lg_done')
        a(f's_lshl_b32 s{S_XO}, s{S_B}, 15'); a(f's_add_u32 s{S_XO}, s{S_XO}, {xsrc}'); a(f's_mov_b32 s{S_BUF}, {128*1024}')
        got = a.newlabel('Lg_got')
        a(f's_mov_b32 s{S_PD}, 0')
        if self.one:
            l = a.newlabel('Lg_o'); a(f's_cmp_lg_u32 s{S_W}, 0'); a(f's_cbranch_scc1 {l}')
            self.flag_off(inflag, S_B); self.wait(nin); a.label(l); a('s_barrier'); a(f's_branch {got}')
        else: a('s_barrier')
        a.label(fetch)
        a(f's_mov_b32 s{S_PD}, 0')
        if inflag is not None:
            self.flag_off(inflag, S_B); self.wait(nin)
        a.label(got)
        if mk: self.mark(mk[0], S_B, mk[1])
        dma_x(a, L16, S_XO, S_BUF, 'sc1')
        a('s_waitcnt vmcnt(0)')
        a.label(go)
        a('s_barrier')
        if mk: self.mark(mk[0]+1, S_B, mk[1])
        if pre: pre()
        a(f'v_add_u32 v{xa}, s{S_BUF}, v{L16}')
        a(f's_add_u32 s{S_TK}, s{S_B}, {ngr}'); a(f's_xor_b32 s{S_BUF}, s{S_BUF}, {128*1024}'); a(f's_add_u32 s{S_XO}, s{S_XO}, {ngr*32768}')
        if inflag is not None:
            a(f's_min_u32 s{S_T}, s{S_TK}, 63'); self.flag_off(inflag, S_T); self.flag_issue(nin)
        def pref():
            np_ = a.newlabel('Lg_np')
            a('s_waitcnt vmcnt(0)')
            a(f'v_cmp_eq_u32 s[{S_K0}:{S_K0+1}], 0, v{VF}')
            a(f's_cmp_eq_u32 s{S_PD}, 0'); a(f's_cbranch_scc1 {np_}')
            self.wsignal(S_SV if store else None)
            a.label(np_)
        def pref2():
            sk = a.newlabel('Lg_sk')
            a(f's_mov_b32 s{S_PF}, 0')
            a(f's_cmp_ge_u32 s{S_TK}, 64'); a(f's_cbranch_scc1 {sk}')
            a(f's_cmp_lg_u64 s[{S_K0}:{S_K0+1}], 0'); a(f's_cbranch_scc1 {sk}')
            dma_x(a, L16, S_XO, S_BUF, 'sc1'); a(f's_mov_b32 s{S_PF}, 1')
            a.label(sk)
        gemm_core(a, xa, XR, tiles, {30: pref})
        epilogue(pref2)
        if mk: self.mark(mk[0]+2, S_B, mk[1])
        outflag()
        add64(a, S_OUT, S_OUT, ngr*32768)
        a(f's_mov_b32 s{S_B}, s{S_TK}')
        a(f's_cmp_eq_u32 s{S_PF}, 0'); a(f's_cbranch_scc1 {have}')
        first = a.newlabel('Lg_first')
        a(f's_cmp_lt_u32 s{S_B}, {2*ngr}'); a(f's_cbranch_scc1 {first}')
        a(f's_mov_b32 s{S_PD}, 1'); a(f's_waitcnt vmcnt({nst})'); a(f's_branch {go}')
        a.label(first)
        a('s_waitcnt vmcnt(0)'); self.wsignal(S_SV if store else None)
        if mk: self.mark(mk[0]+3, S_B, mk[1]+ngr)
        a(f's_mov_b32 s{S_PD}, 0'); a(f's_branch {go}')
        a.label(have)
        a('s_waitcnt vmcnt(0)'); self.wsignal(S_SV if store else None)
        if mk: self.mark(mk[0]+3, S_B, mk[1]+ngr)
        a(f's_cmp_lt_u32 s{S_B}, 64'); a(f's_cbranch_scc1 {fetch}')
        a('s_barrier')

    def proj_weights(self, isB, share=None, early=None, sel=(0, 1, 2), first=None):
        a = self.a
        a(f's_lshl_b32 s{S_OFF}, s{S_A}, 8')
        if isB: mats = [(KA_WK, 4*MB, 0, 'a', 128), (KA_WV, 4*MB, 0, 'v', 128), (KA_WQ, 4*MB, 0, 'a', 0)]; stride = 8192
        else: mats = [(KA_WQKV, 1536*1024, 1024, 'a', 128), (KA_WQKV, 1536*1024, 2048, 'v', 128), (KA_WQKV, 1536*1024, 0, 'a', 0)]; stride = 3072
        load_wslices(a, [mats[i] for i in sel], stride, L, 3, 4, 5, share, early, first)
    def proj_run(self, half, isB, ngr, nowait=False, mode='kvq', lim='64'):
        a = self.a; H = W.H[half]
        if not nowait: self.code_touch()
        t0, t1, vq, vk, vv = 3, 4, 6, 7, 8; ACC = 28
        ro = (HB_Q, HB_K, HB_V) if isB else (0, H.KA - H.QA, H.VA - H.QA)
        a(f's_lshl_b32 s{S_T}, s{S_W}, 11')
        a(f's_add_u32 s{S_T2}, s{S_T}, {ro[0]}'); a(f'v_add_u32 v{vq}, s{S_T2}, v{L16}')
        a(f's_add_u32 s{S_T2}, s{S_T}, {ro[1]}'); a(f'v_add_u32 v{vk}, s{S_T2}, v{L16}')
        pi_of(a, t0, L, t1); vpos16(a, vv, t0, L, t1)
        a(f's_add_u32 s{S_T2}, s{S_T}, {ro[2]}'); a(f'v_add_u32 v{vv}, s{S_T2}, v{vv}')
        a(f's_lshl_b32 s{S_T}, s{S_A}, {21 if isB else 13}'); a(f's_lshl_b32 s{S_T2}, s{S_B}, 15'); a(f's_add_u32 s{S_T}, s{S_T}, s{S_T2}')
        a(f's_add_u32 s{S_T}, s{S_T}, {H.HB if isB else H.QA}'); add64(a, S_OUT, S_WS, f's{S_T}')
        a(f's_mov_b32 s{S_M}, {f2u(0.25*math.log2(math.e)):#x}')
        xa = 9; XR = 12; inflag = FL(half, 'XNB' if isB else 'XNA'); mk = (0, 0 if isB else 63) if half == 1 else ((8, 0) if isB else None)
        go = a.newlabel('Lp_go'); fetch = a.newlabel('Lp_fetch'); have = a.newlabel('Lp_have')
        a(f's_lshl_b32 s{S_XO}, s{S_B}, 15'); a(f's_add_u32 s{S_XO}, s{S_XO}, {H.XNB if isB else H.XNA}'); a(f's_mov_b32 s{S_BUF}, {64*1024 if (isB and self.qdef) else 128*1024}')
        a(f's_mov_b32 s{S_PD}, 0')
        a('s_barrier')
        if nowait: a(f's_branch {go}')
        got = a.newlabel('Lp_got')
        if isB and self.one:
            l = a.newlabel('Lp_o'); a(f's_cmp_lg_u32 s{S_W}, 0'); a(f's_cbranch_scc1 {l}')
            self.flag_off(inflag, S_B); self.wait(16); a.label(l); a('s_barrier'); a(f's_branch {got}')
        a.label(fetch)
        self.flag_off(inflag, S_B); self.wait(16 if isB else 8, lazy=None if isB else S_B)
        a.label(got)
        if mk: self.mark(mk[0], S_B, mk[1])
        dma_x(a, L16, S_XO, S_BUF, 'sc1')
        a('s_waitcnt vmcnt(0)')
        a.label(go)
        a('s_barrier')
        if mk: self.mark(mk[0]+1, S_B, mk[1])
        a(f'v_add_u32 v{xa}, s{S_BUF}, v{L16}')
        a(f's_add_u32 s{S_TK}, s{S_B}, {ngr}'); a(f's_xor_b32 s{S_BUF}, s{S_BUF}, {128*1024}'); a(f's_and_b32 s{S_BUF}, s{S_BUF}, {128*1024}'); a(f's_add_u32 s{S_XO}, s{S_XO}, {ngr*32768}')
        if not nowait: a(f's_min_u32 s{S_T}, s{S_TK}, 63'); self.flag_off(inflag, S_T); self.flag_issue(16 if isB else 8)
        def word():
            if isB:
                a(f's_and_b32 s{S_T}, s{S_B}, 1'); a(f's_lshl_b32 s{S_T}, s{S_T}, 2'); a(f's_add_u32 s{S_T}, s{S_T}, s{S_W}')
                self.set_word(FL(half, "HEAD"), S_A, S_T, 8, 5)
            else:
                a(f's_lshl_b32 s{S_T}, s{S_A}, 2'); a(f's_add_u32 s{S_T}, s{S_T}, s{S_W}'); self.set_word(FL(half, "QKVA"), S_T, S_B, 11, 5)
        def late():
            l = a.newlabel('Lp_q'); a(f's_cmp_eq_u32 s{S_PD}, 0'); a(f's_cbranch_scc1 {l}')
            self.wsignal(); a(f's_mov_b32 s{S_PD}, 0'); a.label(l)
        def pref():
            sk = a.newlabel('Lp_sk')
            a('s_waitcnt vmcnt(0)'); a(f'v_cmp_eq_u32 vcc, 0, v{VF}')
            if not isB: late()
            a(f's_mov_b32 s{S_PF}, 0')
            a(f's_cmp_ge_u32 s{S_TK}, {lim}'); a(f's_cbranch_scc1 {sk}')
            if not nowait: a(f's_cbranch_vccnz {sk}')
            dma_x(a, L16, S_XO, S_BUF, 'sc1'); a(f's_mov_b32 s{S_PF}, 1')
            a.label(sk)
        def half_store(acc, ad, j):
            for i in range(4): a(f'v_cvt_pk_bf16_f32 v{acc+8*j+i}, v{acc+8*j+2*i}, v{acc+8*j+2*i+1}')
            a(f'global_store_dwordx4 v{ad}, {vr(acc+8*j,4)}, s[{S_OUT}:{S_OUT+1}] offset:{1024*j} sc1')
        def kvsig():
            if mk: self.mark(mk[0]+2, S_B, mk[1])
            word(); a('s_waitcnt vmcnt(0)'); self.wsignal(S_TK if isB else None)
            if not isB: a('s_mov_b64 exec, 1'); a(f'global_store_dword v{VZ}, v{VF}, s[{S_WS}:{S_WS+1}] offset:8 sc1'); a('s_mov_b64 exec, -1')
            if mk: self.mark(mk[0]+3, S_B, mk[1])
        kvs = [lambda: half_store(ACC+16, vk, 0), lambda: half_store(ACC+16, vk, 1), lambda: half_store(ACC+32, vv, 0), lambda: half_store(ACC+32, vv, 1)]
        if len(mode) > 1: gemm_core(a, xa, XR, [(ACC+16, 'a', 128, False), (ACC+32, 'v', 128, True)], {18: pref})
        tail = a.newlabel('Lp_tail')
        if isB and self.qdef:
            l = a.newlabel('Lp_n'); a(f's_cmp_ge_u32 s{S_B}, {ngr}'); a(f's_cbranch_scc1 {l}')
            for f in kvs: f()
            kvsig(); a(f's_branch {tail}')
            a.label(l)
        if mode == 'kvq': gemm_core(a, xa, XR, [(ACC, 'a', 0, False)], {0: kvs[0], 1: kvs[1], 2: kvs[2], 3: kvs[3], self.kvpos: kvsig})
        if len(mode) == 1:
            def p0():
                sk = a.newlabel('Lp_sk'); a(f's_mov_b32 s{S_PF}, 0'); a(f's_cmp_ge_u32 s{S_TK}, {lim}'); a(f's_cbranch_scc1 {sk}')
                dma_x(a, L16, S_XO, S_BUF, 'sc1'); a(f's_mov_b32 s{S_PF}, 1'); a.label(sk)
            gemm_core(a, xa, XR, [{'q': (ACC, 'a', 0, False), 'k': (ACC, 'a', 128, False), 'v': (ACC, 'v', 128, True)}[mode]], {0: p0, 30: lambda: (a('s_waitcnt vmcnt(0)'), late())})
        if mode == 'kv':
            for f in kvs: f()
        elif mode in 'kv': pack_store(a, ACC, vk if mode == 'k' else vv, S_OUT, 'sc1')
        else: pack_store(a, ACC, vq, S_OUT, 'sc1', scale=None if isB else S_M)
        if isB and self.qdef:
            a(f's_cmp_ge_u32 s{S_B}, {2*ngr}'); a(f's_cbranch_scc1 {tail}')
            a(f'v_add_u32 v{xa}, {64*1024}, v{L16}'); a(f's_sub_u32 s{S_IN}, s{S_OUT}, {ngr*32768}'); a(f's_subb_u32 s{S_IN+1}, s{S_OUT+1}, 0')
            gemm_core(a, xa, XR, [(ACC, 'a', 0, False)]); pack_store(a, ACC, vq, S_IN, 'sc1')
        a.label(tail)
        if not isB:
            if mode != 'kvq': word()
            if mode == 'v': a(f's_add_u32 s{S_SO}, s{S_SO}, 8')
            if 'q' in mode: a(f's_add_u32 s{S_SO}, s{S_SO}, 16')
        add64(a, S_OUT, S_OUT, ngr*32768)
        a(f's_mov_b32 s{S_B}, s{S_TK}'); a(f's_mov_b32 s{S_PD}, 1')
        if mode == 'kv': a('s_waitcnt vmcnt(4)')
        a(f's_cmp_lg_u32 s{S_PF}, 0'); a(f's_cbranch_scc1 {go}')
        if not isB: a('s_waitcnt vmcnt(0)'); late()
        a(f's_cmp_lt_u32 s{S_B}, {lim}'); a(f's_cbranch_scc1 {fetch}')
        if isB:
            a('s_waitcnt vmcnt(0)'); a(f's_add_u32 s{S_SV}, s{S_B}, 4'); self.wsignal(S_SV)
        a('s_barrier')
    def woa_run(self, half, ngr):
        a = self.a; H = W.H[half]
        self.code_touch()
        t0, t1, sm, vo, vx, vs = 3, 4, 5, 6, 7, 8; ACC = 28; X = 44; G = 52; SP = 68; mu = 70
        a(f's_lshl_b32 s{S_T}, s{S_W}, 11'); a(f's_lshl_b32 s{S_T2}, s{S_A}, 13'); a(f's_add_u32 s{S_T}, s{S_T}, s{S_T2}'); a(f'v_add_u32 v{vo}, s{S_T}, v{L16}')
        if half == 0:
            a(f's_load_dwordx2 s[{S_P}:{S_P+1}], s[0:1], {KA_X}')
            a(f'v_and_b32 v{t0}, 31, v{L}'); a(f'v_lshlrev_b32 v{vx}, 10, v{t0}'); a(f'v_lshrrev_b32 v{t0}, 5, v{L}'); a(f'v_lshl_add_u32 v{vx}, v{t0}, 4, v{vx}')
            a(f's_lshr_b32 s{S_T}, s{S_T}, 5'); a(f'v_add_u32 v{vx}, s{S_T}, v{vx}'); a('s_waitcnt lgkmcnt(0)')
        else:
            add64(a, S_P, S_WS, W.H[0].X2); a(f'v_mov_b32 v{vx}, v{vo}')
        a(f's_lshl_b32 s{S_T2}, s{S_B}, 15'); add64(a, S_P, S_P, f's{S_T2}')
        a(f's_add_u32 s{S_T}, s{S_T2}, {H.X1}'); add64(a, S_OUT, S_WS, f's{S_T}')
        a(f'v_and_b32 v{t0}, 31, v{L}'); a(f'v_lshlrev_b32 v{vs}, 3, v{t0}'); a(f'v_lshrrev_b32 v{t0}, 5, v{L}'); a(f'v_lshl_add_u32 v{vs}, v{t0}, 11, v{vs}')
        a(f's_mov_b32 s{S_M}, 0xffff0000')
        def pre():
            for j in range(2): a(f'global_load_dwordx4 {vr(X+4*j,4)}, v{vx}, s[{S_P}:{S_P+1}] offset:{(32 if half == 0 else 1024)*j} {"" if half == 0 else "sc1"}')
            add64(a, S_P, S_P, ngr*32768)
            a(f's_lshl_b32 s{S_T}, s{S_B}, 12'); a(f's_add_u32 s{S_T}, s{S_T}, {W.ST + half*262144}'); add64(a, S_IN, S_WS, f's{S_T}')
            l = a.newlabel('Lwt'); a(f's_cmp_lg_u32 s{S_LOC}, 1'); a(f's_cbranch_scc1 {l}')
            a(f'v_lshlrev_b32 v{t0}, 6, v{L}'); a(f'global_load_dword v{t1}, v{t0}, s[{S_IN}:{S_IN+1}] sc1'); a.label(l)
        def rbf(r): a(f'v_cvt_pk_bf16_f32 v{r}, v{r}, v{r}'); a(f'v_and_b32 v{r}, s{S_M}, v{r}')
        def halves(regs):
            for x, t in zip(regs, (t0, t1)): a(f'v_mov_b32 v{t}, v{x}')
            for x, t in zip(regs, (t0, t1)): a(f'v_permlane32_swap_b32 v{x}, v{t}')
            for x, t in zip(regs, (t0, t1)): a(f'v_add_f32 v{x}, v{x}, v{t}')
        def epi(pref2):
            a(f's_lshl_b32 s{S_T}, s{S_A}, 2'); a(f's_add_u32 s{S_T}, s{S_T}, s{S_W}'); a(f's_lshl_b32 s{S_T2}, s{S_T}, 8')
            self.set_word(FL(half, "XNB"), S_B, S_T)
            for d in range(8):
                e = ACC+2*d
                a(f'v_cvt_pk_bf16_f32 v{t1}, v{e}, v{e+1}'); a(f'v_lshlrev_b32 v{e}, 16, v{X+d}'); a(f'v_and_b32 v{e+1}, s{S_M}, v{X+d}')
                a(f'v_lshlrev_b32 v{t0}, 16, v{t1}'); a(f'v_and_b32 v{t1}, s{S_M}, v{t1}')
                a(f'v_add_f32 v{e}, v{e}, v{t0}'); a(f'v_add_f32 v{e+1}, v{e+1}, v{t1}')
                a(f'v_cvt_pk_bf16_f32 v{X+d}, v{e}, v{e+1}')
                a(f'v_lshlrev_b32 v{e}, 16, v{X+d}'); a(f'v_and_b32 v{e+1}, s{S_M}, v{X+d}')
                if d == 0: a(f'v_add_f32 v{SP}, v{e}, v{e+1}'); a(f'v_mul_f32 v{SP+1}, v{e}, v{e}')
                else: a(f'v_add_f32 v{SP}, v{SP}, v{e}'); a(f'v_add_f32 v{SP}, v{SP}, v{e+1}'); a(f'v_fmac_f32 v{SP+1}, v{e}, v{e}')
                a(f'v_fmac_f32 v{SP+1}, v{e+1}, v{e+1}')
            halves((SP, SP+1))
            a(f'v_or_b32 v{SP+1}, 1, v{SP+1}'); a(f'v_add_u32 v{t0}, s{S_T2}, v{vs}')
            a('s_mov_b32 exec_hi, 0'); self.dual(lambda f: a(f'global_store_dwordx2 v{t0}, {vr(SP,2)}, s[{S_IN}:{S_IN+1}] {f}')); a('s_mov_b32 exec_hi, -1')
            a('s_waitcnt vmcnt(0)')
            l1 = a.newlabel('Lwr'); l2 = a.newlabel('Lwr')
            a(f's_mov_b32 s{S_SPIN}, 0')
            a.label(l1)
            for p in range(8): a(f'global_load_dwordx2 {vr(G+2*p,2)}, v{vs}, s[{S_IN}:{S_IN+1}] offset:{256*p} sc1')
            a('s_waitcnt vmcnt(0)')
            a(f'v_bitop3_b32 v{t0}, v{G+1}, v{G+3}, v{G+5} bitop3:0x80'); a(f'v_bitop3_b32 v{t1}, v{G+7}, v{G+9}, v{G+11} bitop3:0x80')
            a(f'v_bitop3_b32 v{t0}, v{t0}, v{G+13}, v{G+15} bitop3:0x80'); a(f'v_bitop3_b32 v{t0}, v{t0}, v{t1}, 1 bitop3:0x80')
            a(f'v_cmp_eq_u32 vcc, 0, v{t0}'); a(f's_cbranch_vccz {l2}')
            a(f's_add_u32 s{S_SPIN}, s{S_SPIN}, 1'); a(f's_cmp_lt_u32 s{S_SPIN}, {SPIN_MAX}'); a(f's_cbranch_scc1 {l1}')
            a(f's_branch {self.end}')
            a.label(l2)
            pref2()
            for j in range(2): a(f'global_store_dwordx4 v{vo}, {vr(X+4*j,4)}, s[{S_OUT}:{S_OUT+1}] offset:{1024*j} sc1')
            for st in (8, 4, 2):
                for i in range(0, st, 2): a(f'v_pk_add_f32 {vr(G+i,2)}, {vr(G+i,2)}, {vr(G+i+st,2)}')
            halves((G, G+1))
            a(f'v_mul_f32 v{mu}, {f2u(1/512):#x}, v{G}'); a(f'v_mul_f32 v{sm}, {f2u(1/512):#x}, v{G+1}')
            a(f'v_fma_f32 v{sm}, -v{mu}, v{mu}, v{sm}'); a(f'v_max_f32 v{sm}, 0, v{sm}')
            rbf(sm); a(f'v_add_f32 v{sm}, {f2u(1e-5):#x}, v{sm}'); rbf(sm)
            a(f'v_sqrt_f32 v{sm}, v{sm}'); rbf(sm); a(f'v_rcp_f32 v{sm}, v{sm}'); rbf(mu)
            add64(a, S_IN, S_OUT, H.XNB - H.X1) if H.XNB > H.X1 else (a(f's_sub_u32 s{S_IN}, s{S_OUT}, {H.X1 - H.XNB}'), a(f's_subb_u32 s{S_IN+1}, s{S_OUT+1}, 0'))
            for d in range(8):
                e = ACC+2*d
                a(f'v_sub_f32 v{t0}, v{e}, v{mu}'); a(f'v_sub_f32 v{t1}, v{e+1}, v{mu}'); a(f'v_cvt_pk_bf16_f32 v{t1}, v{t0}, v{t1}')
                a(f'v_lshlrev_b32 v{t0}, 16, v{t1}'); a(f'v_and_b32 v{t1}, s{S_M}, v{t1}')
                a(f'v_mul_f32 v{t0}, v{t0}, v{sm}'); a(f'v_mul_f32 v{t1}, v{t1}, v{sm}'); a(f'v_cvt_pk_bf16_f32 v{G+d}, v{t0}, v{t1}')
                if d % 4 == 3: a(f'global_store_dwordx4 v{vo}, {vr(G+d-3,4)}, s[{S_IN}:{S_IN+1}] offset:{1024*(d//4)} sc1')
        self.stream(ngr, H.OA, FL(half, 'OA'), 32, [(ACC, 'v', 128, False)], epi, 4, lambda: None, False, mk=(0, 0) if half == 1 else (8, 0), pre=pre)
    def rb_run(self, half, ngr, helper=False):
        a = self.a; H = W.H[half]
        mk = (4, 63) if half == 0 else None
        def task(nl):
            def ready():
                l = a.newlabel('Lr_o')
                if self.one: a(f's_cmp_lg_u32 s{S_W}, 0'); a(f's_cbranch_scc1 {l}')
                self.flag_off(FL(half, 'PT'), S_A); self.wait(32, lazy=S_A)
                if self.one: a.label(l); a('s_barrier')
                if mk: self.mark(mk[0], S_A, mk[1])
            if half == 0: rb_body(a, 8, H.X1, False, H.PT, 32768, 8*32768, H.X2, False, W.H[1].XNA, 'sc1', 'sc1', ready, nl=nl)
            else: rb_body(a, 8, H.X1, False, H.PT, 32768, 8*32768, KA_OUT, True, None, 'sc1', 'sc1', ready, nl=nl)
            if half == 0:
                if mk: self.mark(mk[0]+2, S_A, mk[1])
                l = a.newlabel('Ls')
                a('s_waitcnt vmcnt(0)'); a('s_barrier'); a(f's_cmp_ge_u32 s{S_W}, {nl}'); a(f's_cbranch_scc1 {l}')
                a(f's_mul_i32 s{S_T}, s{S_B}, {nl}'); a(f's_add_u32 s{S_T}, s{S_T}, s{S_W}'); self.set_word(FL(1, 'XNA'), S_A, S_T); self.wsignal()
                a.label(l)
                if mk: self.mark(mk[0]+3, S_A, mk[1])
        if helper:
            a(f's_mov_b32 s{S_A}, 63'); a(f's_and_b32 s{S_B}, s{S_SLOT}, 3'); a(f's_lshl_b32 s{S_B}, s{S_B}, 1'); a(f's_add_u32 s{S_B}, s{S_B}, 1'); task(1); return
        lp = a.newlabel('Lr_loop'); done = a.newlabel('Lr_done'); a.label(lp)
        task(2)
        a(f's_add_u32 s{S_A}, s{S_A}, {ngr}'); a(f's_cmp_lt_u32 s{S_A}, {63 if self.rsplit else 64}'); a(f's_cbranch_scc1 {lp}')
        if not self.rsplit: return
        a(f's_cmp_gt_u32 s{S_A}, 64'); a(f's_cbranch_scc1 {done}')
        a(f's_lshl_b32 s{S_B}, s{S_B}, 1'); a(f's_sub_u32 s{S_T}, s{S_A}, 63'); a(f's_add_u32 s{S_B}, s{S_B}, s{S_T}'); a(f's_mov_b32 s{S_A}, 63')
        task(1)
        a.label(done)

    def att_run(self, half, npg):
        a = self.a; H = W.H[half]
        self.code_touch()
        t0, t1, t2, ak, av, idx, lw = range(3, 10); mx = 204
        Q = 12; QN = 16; K0 = 20; Cc = 24; O = 40; D = [56, 72, 88]; KF = 104; MG = 168
        pi_of(a, t0, L, t1)
        a(f'v_and_b32 v{t1}, 32, v{L}'); a(f'v_add_u32 v{ak}, v{t0}, v{t1}'); a(f'v_lshlrev_b32 v{ak}, 4, v{ak}')
        a(f'v_and_b32 v{t0}, 15, v{t0}'); a(f's_and_b32 s{S_T}, s{S_A}, 1'); a(f's_lshl_b32 s{S_T}, s{S_T}, 4'); a(f'v_add_u32 v{t0}, s{S_T}, v{t0}')
        vpos16(a, av, t0, L, t1)
        a(f'v_mov_b32 v{idx}, 0xdddd')
        a(f's_mul_i32 s{S_T}, s{S_W}, 3072'); a(f'v_add_u32 v{lw}, s{S_T}, v{L16}')
        a(f's_lshr_b32 s{S_T}, s{S_A}, 1'); self.flag_off(FL(half, 'QKVA'), S_T, 11)
        KM_, QM_ = 52, 54
        fa = 205
        a(f'v_lshl_add_u32 v{fa}, v{L}, 5, s{S_FO}')
        a(f's_mov_b64 s[{KM_}:{KM_+1}], -1'); a(f's_mov_b64 s[{QM_}:{QM_+1}], -1')
        def need(km, qm):
            l1 = a.newlabel('La_n'); l2 = a.newlabel('La_n'); l3 = a.newlabel('La_n')
            a(f's_mov_b32 s{S_SPIN}, 0')
            a.label(l3)
            tests = [(m, k) for m, k in ((km, KM_), (qm, QM_)) if m is not None]
            for i, (m, k) in enumerate(tests):
                a(f's_and_b64 vcc, s[{m}:{m+1}], s[{k}:{k+1}]'); a(f's_cbranch_scc0 {l2}' if i == len(tests)-1 else f's_cbranch_scc1 {l1}')
            a.label(l1)
            ls = a.newlabel('La_n'); a(f's_cmp_eq_u32 s{S_SPIN}, 0'); a(f's_cbranch_scc1 {ls}'); a(f's_sleep {self.wsleep}'); a.label(ls)
            a(f'global_load_dword v{VZ}, v{fa}, s[{S_WS}:{S_WS+1}] sc1'); a(f'global_load_dword v{VF}, v{fa}, s[{S_WS}:{S_WS+1}] offset:16 sc1')
            a(f'global_load_dword v{fa+1}, v{fa}, s[{S_WS}:{S_WS+1}] offset:8 sc1')
            a('s_waitcnt vmcnt(0)')
            a(f'v_and_b32 v{VZ}, v{VZ}, v{fa+1}')
            a(f'v_cmp_eq_u32 s[{KM_}:{KM_+1}], 0, v{VZ}'); a(f'v_cmp_eq_u32 s[{QM_}:{QM_+1}], 0, v{VF}')
            a(f's_add_u32 s{S_SPIN}, s{S_SPIN}, 1'); a(f's_cmp_lt_u32 s{S_SPIN}, {SPIN_MAX}'); a(f's_cbranch_scc1 {l3}')
            a(f's_branch {self.end}')
            a.label(l2)
        def qwait(blk): a(f's_lshl_b64 s[{S_P}:{S_P+1}], 1, s{blk}'); need(None, S_P)
        a(f's_mov_b32 s56, -1'); a(f's_mov_b32 s57, {0x00ffffff if half else 0xffffffff:#x}'); a(f's_lshl_b64 s[{S_P}:{S_P+1}], 1, s{S_B}')
        if half: need(56, S_P)
        else:
            l = a.newlabel('La_o'); a(f's_cmp_lg_u32 s{S_W}, 0'); a(f's_cbranch_scc1 {l}'); need(56, S_P); a.label(l); a('s_barrier')
        self.stamp(2 + 8*half)
        a(f's_lshl_b32 s{S_T}, s{S_A}, 10'); a(f's_lshl_b32 s{S_T2}, s{S_B}, 15'); a(f's_add_u32 s{S_T2}, s{S_T2}, s{S_T}')
        a(f's_add_u32 s{S_T3}, s{S_T2}, {H.QA}'); add64(a, S_IN, S_WS, f's{S_T3}')
        a(f's_add_u32 s{S_T3}, s{S_T2}, {H.OA}'); add64(a, S_OUT, S_WS, f's{S_T3}')
        a(f'global_load_dwordx4 {vr(QN,4)}, v{L16}, s[{S_IN}:{S_IN+1}] sc1')
        a(f's_add_u32 s{S_K0}, s{S_T}, {H.KA}')
        a(f'buffer_load_dwordx4 {vr(K0,4)}, v{ak}, s[{S_WSRD}:{S_WSRD+3}], s{S_K0} offen sc1')
        a(f's_lshl_b32 s{S_T2}, s{S_W}, 15'); a(f's_add_u32 s{S_K0}, s{S_K0}, s{S_T2}')
        a(f's_lshr_b32 s{S_K1}, s{S_A}, 1'); a(f's_lshl_b32 s{S_K1}, s{S_K1}, 11'); a(f's_add_u32 s{S_K1}, s{S_K1}, s{S_T2}'); a(f's_add_u32 s{S_K1}, s{S_K1}, {H.VA}')
        a(f's_mov_b32 s{S_M}, 0x0000ffff'); a(f's_mov_b32 s{S_M+1}, 0x0000ffff')
        def kv_tile(t):
            a(f's_add_u32 s{S_T}, s{S_K0}, {t*131072}')
            a(f'buffer_load_dwordx4 {vr(KF+4*t,4)}, v{ak}, s[{S_WSRD}:{S_WSRD+3}], s{S_T} offen sc1')
            a(f's_add_u32 s{S_T}, s{S_K1}, {t*131072}')
            a(f's_mov_b64 exec, s[{S_M}:{S_M+1}]')
            for b in range(2): a(f'buffer_load_dwordx4 {vr(8*t+4*b,4,"a")}, v{av}, s[{S_WSRD}:{S_WSRD+3}], s{S_T} offen offset:{1024*b} sc1')
            a('s_mov_b64 exec, -1')
        def late_tile(t):
            if half == 0: return
            l = a.newlabel('La_lt'); a(f's_bitcmp0_b32 s{S_PD}, {t-14}'); a(f's_cbranch_scc1 {l}')
            a(f's_add_u32 s{S_T}, s{S_W}, {4*t}'); a(f's_lshl_b64 s[{S_P}:{S_P+1}], 1, s{S_T}')
            need(S_P, None)
            if t == 15: self.mark(0, S_B, 0)
            kv_tile(t); a('s_waitcnt vmcnt(0)')
            a(f's_bitset0_b32 s{S_PD}, {t-14}')
            a.label(l)
        NT = 14 if half else 16
        a(f's_mov_b32 s{S_PD}, 3')
        if half:
            for t in (14, 15):
                l = a.newlabel('La_et'); a(f's_add_u32 s{S_T}, s{S_W}, {4*t}'); a(f's_bitcmp1_b64 s[{KM_}:{KM_+1}], s{S_T}'); a(f's_cbranch_scc1 {l}')
                kv_tile(t); a(f's_bitset0_b32 s{S_PD}, {t-14}'); a.label(l)
        UP = self.attup
        for t in range(UP): kv_tile(t)
        a(f's_mov_b32 s{S_BUF}, 0'); a(f's_mov_b32 s{S_CNT}, 0'); a(f's_mov_b32 s{S_PF}, 0')
        a('s_barrier')
        lp = a.newlabel('La_loop'); run = a.newlabel('La_run'); slow = a.newlabel('La_slow'); nom = a.newlabel('La_nom'); noq = a.newlabel('La_noq'); out = a.newlabel('La_out')
        def rowmax(src, first):
            if first: a(f'v_max3_f32 v{mx}, v{src}, v{src+1}, v{src+2}'); rest = list(range(3, 16))
            else: rest = list(range(16))
            while len(rest) >= 2:
                a(f'v_max3_f32 v{mx}, v{mx}, v{src+rest[0]}, v{src+rest[1]}'); rest = rest[2:]
            if rest: a(f'v_max_f32 v{mx}, v{mx}, v{src+rest[0]}')
        def halfmax():
            a(f'v_mov_b32 v{t0}, v{mx}'); a(f'v_permlane32_swap_b32 v{mx}, v{t0}'); a(f'v_max_f32 v{mx}, v{mx}, v{t0}')
        def pending():
            l = a.newlabel('La_p'); a(f's_cmp_eq_u32 s{S_PF}, 0'); a(f's_cbranch_scc1 {l}')
            a('s_waitcnt vmcnt(0)'); self.wsignal(); a(f's_mov_b32 s{S_PF}, 0')
            if half: self.mark(3, S_B, 0)
            a.label(l)
        def pv(t, b): a(f'v_smfmac_f32_32x32x32_bf16 {vr(O,16)}, {vr(8*t+4*b,4,"a")}, {vr(D[t%3]+8*b,8)}, v{idx}')
        def nextq():
            noq = a.newlabel('La_noq')
            a(f's_cmp_ge_u32 s{S_TK}, 64'); a(f's_cbranch_scc1 {noq}')
            qwait(S_TK)
            a(f'global_load_dwordx4 {vr(QN,4)}, v{L16}, s[{S_IN}:{S_IN+1}] sc1')
            a.label(noq)
        def block(first):
            for i in range(4): a(f'v_mov_b32 v{Q+i}, v{QN+i}')
            a(f's_add_u32 s{S_TK}, s{S_B}, {npg}'); add64(a, S_IN, S_IN, npg*32768)
            a(mf(D[0], vr(K0,4), vr(Q,4), 0))
            for i in range(16): a(f'v_mov_b32 v{O+i}, 0')
            rowmax(D[0], True); halfmax()
            a(f's_mov_b32 s{S_XO}, 0')
            if not first: a.label(run)
            for i in range(16): a(f'v_sub_f32 v{Cc+i}, 0, v{mx}')
            issued = UP
            if first: a(f's_waitcnt vmcnt({3*(issued-2)})')
            a(mf(D[0], vr(KF,4), vr(Q,4), vr(Cc,16)))
            a(mf(D[1], vr(KF+4,4), vr(Q,4), vr(Cc,16)))
            for t in range(16):
                d = D[t % 3]
                for i in range(16):
                    a(f'v_exp_f32 v{d+i}, v{d+i}')
                    if i == 2 and t > 0: pv(t-1, 1)
                    if first and i == 2 and issued < NT: kv_tile(issued); issued += 1
                    if first and i == 6 and NT <= t + 2 < 16: late_tile(t+2)
                    if first and i == 6 and t + 2 < NT: a(f's_waitcnt vmcnt({3*(issued-1-(t+2))})')
                    if i == 6 and t + 2 < 16: a(mf(D[(t+2)%3], vr(KF+4*(t+2),4), vr(Q,4), vr(Cc,16)))
                    if i == 11: pv(t, 0)
                if t == 5 and not first: pending()
                if t == (NT - 3 if first else 6): nextq()
            pv(15, 1)
        merge = a.newlabel('La_merge')
        a(f's_waitcnt vmcnt({3*UP})')
        self.mark(1 if half else 11, S_B, 0)
        block(True); a(f's_branch {merge}')
        a.label(lp)
        block(False)
        a.label(merge)
        a(f'v_add_u32 v{t1}, s{S_BUF}, v{lw}')
        for j in range(3): a(f'ds_write_b128 v{t1}, {vr(O+4*j,4)} offset:{1024*j}')
        a('s_waitcnt vmcnt(0) lgkmcnt(0)'); a('s_barrier')
        a(f'v_add_u32 v{t1}, s{S_BUF}, v{L16}')
        for w in range(4): a(f'ds_read_b32 v{MG+w}, v{t1} offset:{3072*w+2048}')
        a('s_waitcnt lgkmcnt(0)')
        a(f'v_add_f32 v{MG}, v{MG}, v{MG+1}'); a(f'v_add_f32 v{MG+2}, v{MG+2}, v{MG+3}'); a(f'v_add_f32 v{t2}, v{MG}, v{MG+2}')
        a(f's_xor_b32 s{S_BUF}, s{S_BUF}, 16384')
        a(f'v_cmp_nge_f32 vcc, {f2u(2.0**90):#x}, v{t2}')
        a(f's_cbranch_vccnz {slow}')
        fin = a.newlabel('La_fin'); a.label(fin)
        a(f's_and_b32 s{S_T}, s{S_CNT}, 3'); a(f's_add_u32 s{S_CNT}, s{S_CNT}, 1')
        a(f's_cmp_lg_u32 s{S_T}, s{S_W}'); a(f's_cbranch_scc1 {nom}')
        for w in range(4):
            for j in range(2): a(f'ds_read_b128 {vr(MG+8*w+4*j,4)}, v{t1} offset:{3072*w+1024*j}')
        a(f'v_rcp_f32 v{t2}, v{t2}')
        a('s_waitcnt lgkmcnt(0)')
        for i in range(8):
            a(f'v_add_f32 v{MG+i}, v{MG+i}, v{MG+8+i}'); a(f'v_add_f32 v{MG+16+i}, v{MG+16+i}, v{MG+24+i}')
            a(f'v_add_f32 v{MG+i}, v{MG+i}, v{MG+16+i}'); a(f'v_mul_f32 v{MG+i}, v{MG+i}, v{t2}')
        for i in range(4): a(f'v_cvt_pk_bf16_f32 v{MG+i}, v{MG+2*i}, v{MG+2*i+1}')
        a(f'global_store_dwordx4 v{L16}, {vr(MG,4)}, s[{S_OUT}:{S_OUT+1}] sc1')
        self.set_word(FL(half, 'OA'), S_B, S_A); a(f's_mov_b32 s{S_PF}, 1')
        self.mark(2 if half else 12, S_B, 0)
        a(f's_cmp_ge_u32 s{S_B}, {npg}'); a(f's_cbranch_scc1 {nom}')
        pending()
        a.label(nom)
        add64(a, S_OUT, S_OUT, npg*32768)
        a(f's_mov_b32 s{S_B}, s{S_TK}')
        a(f's_cmp_lt_u32 s{S_B}, 64'); a(f's_cbranch_scc1 {lp}')
        pending()
        a(f's_branch {out}')
        a.label(slow)
        a(f's_cmp_lg_u32 s{S_XO}, 0'); a(f's_cbranch_scc1 {fin}')
        a(f's_mov_b32 s{S_XO}, 1')
        for t in range(16):
            a(mf(D[t%2], vr(KF+4*t,4), vr(Q,4), 0))
            rowmax(D[t%2], t == 0)
        halfmax()
        a(f'ds_write_b32 v{lw}, v{mx} offset:32768'); a('s_waitcnt lgkmcnt(0)'); a('s_barrier')
        for w in range(4): a(f'ds_read_b32 v{MG+w}, v{L16} offset:{32768+3072*w}')
        a('s_waitcnt lgkmcnt(0)')
        a(f'v_max3_f32 v{mx}, v{MG}, v{MG+1}, v{MG+2}'); a(f'v_max_f32 v{mx}, v{mx}, v{MG+3}')
        for i in range(16): a(f'v_mov_b32 v{O+i}, 0')
        a(f's_branch {run}')
        a.label(out)
        a('s_barrier')

    def tb_weights(self):
        a = self.a
        a(f's_lshr_b32 s{S_T}, s{S_A}, 2'); a(f's_lshl_b32 s{S_T}, s{S_T}, 19'); a(f's_and_b32 s{S_T2}, s{S_A}, 3'); a(f's_lshl_b32 s{S_T2}, s{S_T2}, 8')
        a(f's_add_u32 s{S_OFF}, s{S_T}, s{S_T2}')
        load_wslices(a, [(KA_WO, 4*MB, 0, 'a', 128)], 1024, L, 3, 4, 5)
        l = a.newlabel('Lt_nw')
        a(f's_and_b32 s{S_T}, s{S_A}, 3'); a(f's_cmp_ge_u32 s{S_T}, 3'); a(f's_cbranch_scc1 {l}')
        a(f's_add_u32 s{S_T}, s{S_T}, 1'); a(f's_cmp_eq_u32 s{S_T}, 3'); a(f's_cselect_b32 s{S_T}, 0, s{S_T}'); a(f's_lshl_b32 s{S_T}, s{S_T}, 10')
        a(f's_lshr_b32 s{S_T2}, s{S_A}, 3'); a(f's_lshl_b32 s{S_T2}, s{S_T2}, 8'); a(f's_add_u32 s{S_OFF}, s{S_T}, s{S_T2}')
        load_wslices(a, [(KA_WQKV, 1536*1024, 0, 'a', 0)], 3072, L, 3, 4, 5)
        a.label(l)
    def pa_task(self, vo, av):
        a = self.a; H = W.H[1]; XR = 12; ACC = 224; xa = 3; t1 = 4
        lv = a.newlabel('Lq_v'); le = a.newlabel('Lq_e')
        self.flag_off(FL(1, 'XNA'), S_TK); self.wait(8)
        a(f's_lshl_b32 s{S_PF}, s{S_TK}, 15'); a(f's_add_u32 s{S_CNT}, s{S_PF}, {H.XNA}'); a(f's_mov_b32 s{S_BUF}, 32768')
        dma_x(a, L16, S_CNT, S_BUF, 'sc1')
        a(f's_and_b32 s{S_PD}, s{S_A}, 3')
        a(f's_add_u32 s{S_T}, s{S_PD}, 1'); a(f's_cmp_eq_u32 s{S_T}, 3'); a(f's_cselect_b32 s{S_T}, 0, s{S_T}'); a(f's_cselect_b32 s{S_SV}, {f2u(0.25*math.log2(math.e)):#x}, 1.0')
        a(f's_lshl_b32 s{S_T}, s{S_T}, 21'); a(f's_add_u32 s{S_PF}, s{S_PF}, s{S_T}'); a(f's_lshr_b32 s{S_T}, s{S_A}, 3'); a(f's_lshl_b32 s{S_T2}, s{S_T}, 13'); a(f's_add_u32 s{S_PF}, s{S_PF}, s{S_T2}')
        a(f's_add_u32 s{S_PF}, s{S_PF}, {H.QA}'); add64(a, S_IN, S_WS, f's{S_PF}')
        a(f's_lshl_b32 s{S_T}, s{S_T}, 2'); a(f's_add_u32 s{S_T}, s{S_T}, s{S_W}'); self.set_word(FL(1, "QKVA"), S_T, S_TK, 11, 5)
        a(f's_lshl_b32 s{S_T}, s{S_PD}, 3'); a(f's_add_u32 s{S_SO}, s{S_SO}, s{S_T}')
        a(f'v_add_u32 v{xa}, 32768, v{L16}')
        a(f's_lshl_b32 s{S_T}, s{S_W}, 11'); a(f's_sub_u32 s{S_T}, s{S_T}, {HB_V}'); a(f'v_add_u32 v{t1}, s{S_T}, v{av}')
        a('s_waitcnt vmcnt(0)'); a('s_barrier')
        a(f's_cmp_eq_u32 s{S_PD}, 1'); a(f's_cbranch_scc1 {lv}')
        gemm_core(a, xa, XR, [(ACC, 'a', 0, False)]); pack_store(a, ACC, vo, S_IN, 'sc1', scale=S_SV); a(f's_branch {le}')
        a.label(lv)
        gemm_core(a, xa, XR, [(ACC, 'a', 0, True)]); pack_store(a, ACC, t1, S_IN, 'sc1')
        a.label(le)
        a('s_waitcnt vmcnt(0)'); self.wsignal(); a('s_barrier')
    def tb_run(self, half, ngr):
        a = self.a; H = W.H[half]
        t0, t1, akm, av, avm, vo, xw = range(3, 10); mx = 240; FG = 244
        XR = 12; CM = 28; SX = 44; SM = 60; Q = 76; K = 108; KM = 140; V = 172; VM = 204; P = 212; PM = 220; ACC = 224
        OT = Q
        a(f'v_and_b32 v{t0}, 7, v{L}'); a(f'v_lshlrev_b32 v{akm}, 4, v{t0}'); a(f'v_lshrrev_b32 v{t0}, 5, v{L}'); a(f'v_lshl_add_u32 v{akm}, v{t0}, 7, v{akm}')
        a(f'v_add_u32 v{akm}, {HB_KM}, v{akm}')
        pi_of(a, t0, L, t1); vpos16(a, av, t0, L, t1); a(f'v_add_u32 v{av}, {HB_V}, v{av}')
        a(f'v_lshlrev_b32 v{avm}, 2, v{t0}'); a(f'v_lshrrev_b32 v{t1}, 5, v{L}'); a(f'v_lshl_add_u32 v{avm}, v{t1}, 8, v{avm}'); a(f'v_add_u32 v{avm}, {HB_VM}, v{avm}')
        a(f's_lshl_b32 s{S_T}, s{S_W}, 11'); a(f'v_add_u32 v{vo}, s{S_T}, v{L16}')
        a(f's_lshl_b32 s{S_T}, s{S_W}, 13'); a(f'v_add_u32 v{xw}, s{S_T}, v{L16}')
        a(f'v_and_b32 v{t0}, 31, v{L}'); a(f'v_lshrrev_b32 v{t1}, 5, v{L}'); a(f'v_lshlrev_b32 v{t1}, 2, v{t1}'); a(f'v_sub_u32 v{t0}, v{t0}, v{t1}')
        a(f'v_mov_b32 v{t1}, {f2u(-1e30):#x}')
        for i in range(16):
            a(f'v_cmp_le_i32 vcc, {8*(i>>2)+(i&3)}, v{t0}'); a(f'v_cndmask_b32 v{CM+i}, v{t1}, 0, vcc')
        a(f's_and_b32 s{S_T}, s{S_A}, 28'); a(f's_add_u32 s{S_T}, s{S_T}, s{S_W}')
        a(f's_lshl_b32 s{S_K0}, s{S_T}, 8'); a(f's_add_u32 s{S_K0}, s{S_K0}, {FL(half, "HEAD")}')
        a(f's_lshl_b32 s{S_T}, s{S_T}, 21')
        a(f's_lshl_b32 s{S_T2}, s{S_B}, 15'); a(f's_add_u32 s{S_XO}, s{S_T}, s{S_T2}'); a(f's_add_u32 s{S_XO}, s{S_XO}, {H.HB}')
        a(f's_lshl_b32 s{S_T}, s{S_B}, 18'); a(f's_lshl_b32 s{S_T2}, s{S_A}, 13'); a(f's_add_u32 s{S_T}, s{S_T}, s{S_T2}'); a(f's_add_u32 s{S_T}, s{S_T}, {H.PT}')
        add64(a, S_OUT, S_WS, f's{S_T}')
        a(f's_mov_b32 s{S_M}, {f2u(math.log2(math.e)/math.sqrt(128.0)):#x}')
        a(f's_mov_b32 s{S_N}, 0'); a(f's_mov_b32 s{S_K1}, 0')
        def bl(n, dst, va, so, off): a(f'buffer_load_dword{n} {vr(dst, 4 if n else 1)}, v{va}, s[{S_WSRD}:{S_WSRD+3}], s{so} offen offset:{off} sc1')
        def poll(which):
            l1 = a.newlabel('Lt_p'); l2 = a.newlabel('Lt_p'); l3 = a.newlabel('Lt_p')
            a(f's_mov_b32 s{S_SPIN}, 0'); a(f's_branch {l3}')
            a.label(l1)
            if which == S_N:
                a(f'v_mov_b32 v{VZ}, s{S_K0}')
                _ = [a(f'global_load_dword v{FG+i}, v{VZ}, s[{S_WS}:{S_WS+1}] offset:{32*i} sc1') for i in range(8)]; a('s_waitcnt vmcnt(0)')
                a(f'v_min3_u32 v{FG}, v{FG}, v{FG+1}, v{FG+2}'); a(f'v_min3_u32 v{FG}, v{FG}, v{FG+3}, v{FG+4}'); a(f'v_min3_u32 v{FG}, v{FG}, v{FG+5}, v{FG+6}'); a(f'v_min_u32 v{FG}, v{FG}, v{FG+7}')
            else:
                a(f's_add_u32 s{S_X}, s{S_K0}, {FL(half, "CHP") - FL(half, "HEAD")}'); a(f'v_mov_b32 v{VZ}, s{S_X}')
                a(f'global_load_dword v{FG}, v{VZ}, s[{S_WS}:{S_WS+1}] sc1'); a('s_waitcnt vmcnt(0)')
            a(f'v_readfirstlane_b32 s{which}, v{FG}')
            if which == S_N: a(f's_max_u32 s{S_N}, s{S_N}, 4'); a(f's_sub_u32 s{S_N}, s{S_N}, 4')
            a(f's_cmp_gt_u32 s{which}, s{S_B}'); a(f's_cbranch_scc1 {l2}')
            a('s_sleep 1')
            lz = a.newlabel('Lt_z'); a(f's_cmp_ge_u32 s{S_B}, {self.tbt}'); a(f's_cbranch_scc1 {lz}'); a(f's_sleep {self.tbsleep}'); a.label(lz)
            a(f's_add_u32 s{S_SPIN}, s{S_SPIN}, 1'); a(f's_cmp_ge_u32 s{S_SPIN}, {SPIN_MAX}'); a(f's_cbranch_scc1 {self.end}')
            a.label(l3)
            a(f's_cmp_gt_u32 s{which}, s{S_B}'); a(f's_cbranch_scc0 {l1}')
            a.label(l2)
        lp = a.newlabel('Lt_loop')
        PFX = 58
        def x_loads(d):
            a(f's_add_u32 s{S_X}, s{S_XO}, {d}'); a(f's_add_u32 s{S_T}, s{S_XO}, {d+4096}'); a(f's_add_u32 s{S_T2}, s{S_XO}, {d+HB_Q}'); a(f's_add_u32 s{S_T3}, s{S_XO}, {d+HB_Q+4096}')
            for kb in range(8):
                bl('x4', K+4*kb, L16, S_X if kb < 4 else S_T, (kb%4)*1024)
                bl('x4', Q+4*kb, L16, S_T2 if kb < 4 else S_T3, (kb%4)*1024)
            for f in range(8): bl('x4', V+4*f, av, S_X if f < 4 else S_T, (f%4)*1024)
        a(f's_mov_b32 s{PFX}, 0'); a(f's_and_b32 s{S_TK}, s{S_A}, 4'); a(f's_add_u32 s{S_TK}, s{S_TK}, s{S_B}')
        a.label(lp)
        lh = a.newlabel('Lt_h'); a(f's_cmp_lg_u32 s{PFX}, 0'); a(f's_cbranch_scc1 {lh}')
        poll(S_N); x_loads(0)
        a.label(lh)
        def mem_loads():
            for kb in range(8): bl('x4', KM+4*kb, akm, S_XO, kb*256)
            for t in range(4):
                for e in range(2): bl('', VM+2*t+e, avm, S_XO, t*512 + e*128)
        def both(r, op):
            a(f'v_mov_b32 v{t0}, v{r}'); a(f'v_permlane32_swap_b32 v{r}, v{t0}'); a(f'{op} v{r}, v{r}, v{t0}')
        lx = mx + 1; al = mx + 2; m2 = mx + 3
        def xpart(extra):
            for kb in range(8):
                a(f's_waitcnt vmcnt({extra + 8 + 14 - 2*kb})')
                a(mf(SX, vr(K+4*kb,4), vr(Q+4*kb,4), vr(SX,16) if kb else vr(CM,16)))
            a(f'v_max3_f32 v{mx}, v{SX}, v{SX+1}, v{SX+2}')
            for i in range(3, 15, 2): a(f'v_max3_f32 v{mx}, v{mx}, v{SX+i}, v{SX+i+1}')
            a(f'v_max_f32 v{mx}, v{mx}, v{SX+15}'); both(mx, 'v_max_f32')
            for i in range(16): a(f'v_sub_f32 v{SX+i}, v{SX+i}, v{mx}')
            for i in range(16): a(f'v_mul_f32 v{SX+i}, s{S_M}, v{SX+i}')
            for i in range(16): a(f'v_exp_f32 v{SX+i}, v{SX+i}')
            a(f'v_add_f32 v{lx}, v{SX}, v{SX+1}')
            for i in range(2, 16): a(f'v_add_f32 v{lx}, v{lx}, v{SX+i}')
        lw_ = a.newlabel('Lt_w'); lj = a.newlabel('Lt_j')
        a(f's_cmp_gt_u32 s{S_K1}, s{S_B}'); a(f's_cbranch_scc0 {lw_}')
        mem_loads(); xpart(16); a(f's_branch {lj}')
        a.label(lw_)
        xpart(0); poll(S_K1)
        if half == 0: self.mark(4, S_B, 63)
        mem_loads()
        a.label(lj)
        for kb in range(8):
            a(f's_waitcnt vmcnt({8 + 7 - kb})')
            a(mf(SM, vr(KM+4*kb,4), vr(Q+4*kb,4), vr(SM,16) if kb else 0))
        if half == 0: self.mark(5, S_B, 63)
        a(f'v_max3_f32 v{m2}, v{SM}, v{SM+1}, v{mx}'); a(f'v_max3_f32 v{m2}, v{m2}, v{SM+2}, v{SM+3}'); both(m2, 'v_max_f32')
        a(f'v_sub_f32 v{al}, v{mx}, v{m2}')
        for i in range(4): a(f'v_sub_f32 v{SM+i}, v{SM+i}, v{m2}')
        for e in [al] + [SM+i for i in range(4)]: a(f'v_mul_f32 v{e}, s{S_M}, v{e}')
        for e in [al] + [SM+i for i in range(4)]: a(f'v_exp_f32 v{e}, v{e}')
        a(f'v_fma_f32 v{t1}, v{lx}, v{al}, v{SM}')
        for i in range(1, 4): a(f'v_add_f32 v{t1}, v{t1}, v{SM+i}')
        both(t1, 'v_add_f32')
        a(f'v_rcp_f32 v{t1}, v{t1}')
        a(f'v_mul_f32 v{al}, v{al}, v{t1}')
        for i in range(4): a(f'v_mul_f32 v{SM+i}, v{SM+i}, v{t1}')
        for i in range(2): a(f'v_cvt_pk_bf16_f32 v{PM+i}, v{SM+2*i}, v{SM+2*i+1}')
        a('s_waitcnt vmcnt(0)')
        for t in range(4):
            a(f'v_mfma_f32_32x32x8_bf16 {vr(OT+16*t,16)}, {vr(VM+2*t,2)}, {vr(PM,2)}, 0')
            for i in range(4*t, 4*t+4): a(f'v_mul_f32 v{SX+i}, v{SX+i}, v{al}')
            for i in range(2*t, 2*t+2): a(f'v_cvt_pk_bf16_f32 v{P+i}, v{SX+2*i}, v{SX+2*i+1}')
        def cv(t, j):
            o = OT+16*t+8*j
            for i in range(4): a(f'v_cvt_pk_bf16_f32 v{o+i}, v{o+2*i}, v{o+2*i+1}')
        def wr(t, j): a(f'ds_write_b128 v{xw}, {vr(OT+16*t+8*j,4)} offset:{(2*t+j)*1024}')
        todo = [(t, j) for t in range(4) for j in range(2)]; conv = []
        for n, (t, j) in enumerate(list(todo)):
            a(mf(OT+16*t, vr(V+8*t+4*j,4), vr(P+4*j,4), vr(OT+16*t,16)))
            if conv: wr(*conv.pop(0))
            if n >= 3: x = todo.pop(0); cv(*x); conv.append(x)
        for x in conv: wr(*x)
        for x in todo: cv(*x); wr(*x)
        a('s_waitcnt lgkmcnt(0)'); a('s_barrier')
        def pfx():
            l = a.newlabel('Lt_x'); a(f's_add_u32 s{S_T}, s{S_B}, {ngr}'); a(f's_mov_b32 s{PFX}, 0')
            a(f's_cmp_gt_u32 s{S_N}, s{S_T}'); a(f's_cbranch_scc0 {l}')
            x_loads(ngr*32768); a(f's_mov_b32 s{PFX}, 1'); a.label(l)
        gemm_core(a, L16, XR, [(ACC, 'a', 128, False)], {1: pfx})
        pack_store(a, ACC, vo, S_OUT, 'sc1')
        if half == 0: self.mark(6, S_B, 63)
        self.set_word(FL(half, 'PT'), S_B, S_A); self.signal_wg()
        if half == 0: self.mark(7, S_B, 63); self.mark(13, S_B, 35); self.mark(14, S_B, 51)
        add64(a, S_OUT, S_OUT, ngr*8*32768); a(f's_add_u32 s{S_XO}, s{S_XO}, {ngr*32768}')
        a(f's_add_u32 s{S_B}, s{S_B}, {ngr}')
        if half == 0:
            nxt = a.newlabel('Lt_n'); pa = a.newlabel('Lt_pa'); fin = a.newlabel('Lt_f')
            a(f's_and_b32 s{S_T}, s{S_A}, 3'); a(f's_cmp_ge_u32 s{S_T}, 3'); a(f's_cbranch_scc1 {nxt}')
            a(f's_cmp_ge_u32 s{S_TK}, {self.pasplit}'); a(f's_cbranch_scc1 {nxt}')
            a(f's_add_u32 s{S_T}, s{S_TK}, {self.palag*ngr}'); a(f's_cmp_gt_u32 s{S_T}, s{S_B}'); a(f's_cbranch_scc1 {nxt}')
            self.pa_task(vo, av)
            a(f's_add_u32 s{S_TK}, s{S_TK}, {2*ngr}')
            a(f's_cmp_lt_u32 s{S_TK}, {self.pasplit}'); a(f's_cbranch_scc1 {nxt}')
            a(f'v_mov_b32 v{VZ}, 0x3f803f80')
            for i in range(128): a(f'v_accvgpr_write_b32 a{i}, v{VZ}')
            a.label(nxt)
        a(f's_cmp_lt_u32 s{S_B}, 64'); a(f's_cbranch_scc1 {lp}')

    def build(self):
        a = self.a; end = self.end
        a(f's_cmp_ge_u32 s2, 256'); a(f's_cbranch_scc1 {end}')
        if self.stamps == 2: a('s_memrealtime s[96:97]')
        if self.stamps is True: a('s_memrealtime s[94:95]')
        a(f's_load_dwordx2 s[{S_DBG}:{S_DBG+1}], s[0:1], {KA_DBG}')
        common_prologue(a, L, L16)
        lw = a.newlabel('Le'); lo = a.newlabel('Le'); ls = a.newlabel('Le'); lg = a.newlabel('Le'); lz = a.newlabel('Le')
        a(f's_getreg_b32 s{S_X}, hwreg(HW_REG_XCC_ID, 0, 3)')
        a(f's_xor_b32 s{S_X}, s{S_X}, {self.die}')
        if self.fake: a(self.fake.format(x=S_X))
        a(f's_lshl_b32 s{S_T}, s{S_X}, 4'); a(f'v_mov_b32 v3, s{S_T}'); a('v_mov_b32 v4, 1')
        def xwait():
            l1 = a.newlabel('Le'); l2 = a.newlabel('Le')
            a(f's_mul_i32 s{S_T}, s2, 3072'); a(f's_add_u32 s{S_T}, s{S_T}, {W.FLAGS}'); a('v_mul_u32_u24 v6, 12, v0'); a(f'v_add_u32 v6, s{S_T}, v6'); a('v_mov_b32 v8, 0'); a('v_mov_b32 v9, 0'); a('v_mov_b32 v10, 0')
            a(f'global_store_dwordx3 v6, v[8:10], s[{S_WS}:{S_WS+1}] sc1')
            a(f's_cmp_lg_u32 s{S_W}, 0'); a(f's_cbranch_scc1 {l1}')
            a('s_mov_b64 exec, 1'); a(f'global_atomic_add v5, v3, v4, s[{S_DBG}:{S_DBG+1}] offset:{self.TO} sc0 sc1'); a('s_mov_b64 exec, -1')
            a('s_waitcnt vmcnt(2)'); a(f's_branch {l2}')
            a.label(l1); a('s_waitcnt vmcnt(1)'); a.label(l2)
        a(f's_lshr_b32 s{S_A}, s2, 2'); a(f's_and_b32 s{S_B}, s2, 3')
        rb_body(a, 0, KA_X, True, 0, 0, 0, None, False, W.H[0].XNA, '', 'sc1', ldsoff=1024, vb=20, xwait=xwait)
        a(f's_cmp_lg_u32 s{S_W}, 0'); a(f's_cbranch_scc1 {lw}')
        a('s_mov_b64 exec, 1'); a('s_waitcnt vmcnt(2)')
        a(f'v_readfirstlane_b32 s{S_TK}, v5')
        a(f's_lshl_b32 s{S_SLOT}, s{S_X}, 5'); a(f's_add_u32 s{S_SLOT}, s{S_SLOT}, s{S_TK}')
        a(f's_cmp_lt_u32 s{S_TK}, 32'); a(f's_cbranch_scc1 {lg}')
        a('v_mov_b32 v3, 136'); a(f'global_atomic_add v5, v3, v4, s[{S_DBG}:{S_DBG+1}] sc0 sc1'); a('s_waitcnt vmcnt(0)')
        a(f'v_readfirstlane_b32 s{S_TK}, v5')
        self.count_wait(self.TO, 12, ls, S_T, S_SPIN)
        a.label(ls)
        for x in range(8):
            a(f'v_readfirstlane_b32 s{S_T}, v{12+x}'); a(f's_min_u32 s{S_T}, s{S_T}, 32')
            a(f's_add_u32 s{S_SLOT}, s{S_T}, s{S_TK}'); a(f's_add_u32 s{S_SLOT}, s{S_SLOT}, {32*x}')
            a(f's_sub_u32 s{S_T}, 32, s{S_T}'); a(f's_cmp_lt_u32 s{S_TK}, s{S_T}'); a(f's_cbranch_scc1 {lg}')
            a(f's_sub_u32 s{S_TK}, s{S_TK}, s{S_T}')
        a(f's_mov_b32 s{S_SLOT}, 256')
        a.label(lg)
        a(f'v_mov_b32 v3, 0'); a(f'v_mov_b32 v4, s{S_SLOT}'); a('ds_write_b32 v3, v4'); a('s_waitcnt lgkmcnt(0)')
        a('s_mov_b64 exec, -1')
        a.label(lw)
        a('s_waitcnt vmcnt(0)'); a('s_barrier')
        a(f's_mov_b32 s{S_DIE}, s{S_X}'); self.report()
        a('v_mov_b32 v3, 0'); a('ds_read_b32 v4, v3'); a('s_waitcnt lgkmcnt(0)'); a(f'v_readfirstlane_b32 s{S_SLOT}, v4'); a('s_barrier')
        a(f's_lshr_b32 s{S_T}, s{S_SLOT}, 5'); a(f's_lshl_b32 s{S_T2}, s{S_T}, 2'); a(f's_lshr_b32 s{S_T2}, {self.perm:#x}, s{S_T2}'); a(f's_and_b32 s{S_T2}, s{S_T2}, 7')
        a(f's_cmp_lt_u32 s{S_T}, 8'); a(f's_cselect_b32 s{S_T2}, s{S_T2}, 8'); a(f's_and_b32 s{S_SLOT}, s{S_SLOT}, 31'); a(f's_lshl_b32 s{S_T2}, s{S_T2}, 5'); a(f's_add_u32 s{S_SLOT}, s{S_SLOT}, s{S_T2}')
        if self.stamps: a(f's_mov_b32 s99, s{S_SLOT}')
        self.role = 'all'
        self.dmap = {('all',0):0, ('ch',1):1, ('ch',2):2, ('ch',3):3, ('ch',4):4, ('gw',1):8, ('gw',2):9, ('gw',3):10, ('pb',1):11, ('ms',12):12, ('gw',4):13, ('pb',3):14}
        if self.stamps == 2:
            a('s_and_b32 s99, s96, 0xfff00000')
        self.sv = 10
        a(f's_mov_b32 s{S_SO}, {W.STAMPS}')
        if self.stamps: _ = [a(f's_mov_b32 s{70+k}, 0') for k in range(16)]
        if self.stamps is True: a('s_mov_b32 s85, s94')
        self.stamp(0)
        if self.tlb:
            l = a.newlabel('Ltlb'); a(f's_and_b32 s{S_T}, s{S_SLOT}, 31'); a(f's_cmp_ge_u32 s{S_T}, 2'); a(f's_cbranch_scc1 {l}')
            a(f's_cmp_lg_u32 s{S_W}, 3'); a(f's_cbranch_scc1 {l}')
            a(f's_lshl_b32 s{S_T}, s{S_T}, 27'); a(f's_add_u32 s{S_T}, s{S_T}, {2*MB - 128}'); a(f'v_lshl_add_u32 v{VZ}, v{L}, 21, s{S_T}')
            a(f'global_load_dword v{VF}, v{VZ}, s[{S_WS}:{S_WS+1}] sc1')
            if self.tlb == 2: a('s_waitcnt vmcnt(0)')
            a.label(l)
        Lch, Lpb, Lgw, Lms, Lpa = [a.newlabel(n) for n in ('Lchain', 'Lpb', 'Lgw', 'Lms', 'Lpa')]
        a(f's_cmp_lt_u32 s{S_SLOT}, 32'); a(f's_cbranch_scc0 Lnot_chain')
        self.jump(Lch)
        a.label('Lnot_chain')
        a(f's_cmp_lt_u32 s{S_SLOT}, 96'); a(f's_cbranch_scc1 {Lpb}')
        a(f's_cmp_lt_u32 s{S_SLOT}, 224'); a(f's_cbranch_scc1 {Lgw}')
        a(f's_cmp_lt_u32 s{S_SLOT}, 240'); a(f's_cbranch_scc1 {Lms}')
        a(f's_cmp_lt_u32 s{S_SLOT}, 256'); a(f's_cbranch_scc1 {Lpa}')
        a.label(end); a('s_endpgm')
        a.label(Lms); self.role = 'ms'; self.code_touch(sh=7)
        a(f's_and_b32 s{S_A}, s{S_SLOT}, 3'); a(f's_lshl_b32 s{S_OFF}, s{S_A}, 8')
        load_wslices(a, [(KA_WOA, 512*1024, 0, 'v', 128)], 1024, L, 3, 4, 5)
        if self.pfb & 2:
            a(f's_load_dwordx2 s[{S_P}:{S_P+1}], s[0:1], {KA_WO}'); a(f's_and_b32 s{S_T}, s{S_SLOT}, 15'); a(f's_lshl_b32 s{S_T}, s{S_T}, 18')
            a(f'v_lshl_add_u32 v3, v0, 7, s{S_T}'); a('s_waitcnt lgkmcnt(0)')
            for i in range(8):
                a(f'global_load_dword v4, v3, s[{S_P}:{S_P+1}]'); a('v_add_u32 v3, 32768, v3')
        self.flags_ready(); self.local_check()
        for half in range(2):
            a(f's_and_b32 s{S_A}, s{S_SLOT}, 3'); a(f's_bfe_u32 s{S_B}, s{S_SLOT}, 0x20002'); self.woa_run(half, 4); self.stamp(3 + 8*half)
            a(f's_bfe_u32 s{S_A}, s{S_SLOT}, 0x20002'); a(f's_and_b32 s{S_B}, s{S_SLOT}, 3')
            self.rb_run(half, 4); self.stamp(4 + 8*half)
        self.dump_marks(); a('s_endpgm')
        a.label(Lpa); self.role = 'pa'; self.code_touch(sh=7)
        def first_x():
            self.flags_ready(); self.mark(9, S_W, 0)
            a(f's_lshl_b32 s{S_XO}, s{S_B}, 15'); a(f's_add_u32 s{S_XO}, s{S_XO}, {W.H[0].XNA}'); a(f's_mov_b32 s{S_BUF}, {128*1024}')
            dma_x(a, L16, S_XO, S_BUF, 'sc1')
        a(f's_and_b32 s{S_A}, s{S_SLOT}, 3'); a(f's_bfe_u32 s{S_B}, s{S_SLOT}, 0x20002')
        self.proj_weights(False, (S_B, 4), first_x, (2,)); self.proj_run(0, False, 4, nowait=True, mode='q'); self.stamp(3)
        self.proj_weights(False, None, None, (0, 1))
        a(f's_bfe_u32 s{S_B}, s{S_SLOT}, 0x20002'); a(f's_add_u32 s{S_B}, s{S_B}, {self.pasplit}'); self.proj_run(1, False, 4); self.stamp(4)
        self.dump_marks(); a('s_endpgm')
        a.label(Lpb); self.role = 'pb'; self.code_touch(sh=7)
        def pb_ids():
            a(f's_sub_u32 s{S_T}, s{S_SLOT}, 32'); a(f's_lshr_b32 s{S_A}, s{S_T}, 5'); a(f's_lshl_b32 s{S_A}, s{S_A}, 4'); a(f's_and_b32 s{S_T2}, s{S_T}, 15')
            a(f's_add_u32 s{S_A}, s{S_A}, s{S_T2}'); a(f's_bfe_u32 s{S_B}, s{S_T}, 0x10004')
        pb_ids(); self.proj_weights(True, (S_B, 2) if self.pfb & 1 else None); self.flags_ready(); self.stamp(1)
        for half in range(2):
            pb_ids(); self.proj_run(half, True, 2); self.stamp(3 + 8*half)
        self.dump_marks(); a('s_endpgm')
        a.label(Lgw); self.role = 'gw'; self.code_touch(sh=7)
        self.end = 'Lm_end2'
        def pa_ids(): a(f's_sub_u32 s{S_T}, s{S_SLOT}, 96'); a(f's_lshr_b32 s{S_A}, s{S_T}, 5'); a(f's_and_b32 s{S_B}, s{S_T}, 31')
        pa_ids()
        def gw_first():
            a(f'v_mov_b32 v{VZ}, 0x3f803f80')
            for i in range(128): a(f'v_accvgpr_write_b32 a{i}, v{VZ}')
        lv = a.newlabel('Lgw_v'); lj = a.newlabel('Lgw_j')
        a(f's_lshr_b32 s{S_B}, s{S_B}, 1')
        BUFS = (128*1024, 0, 32768, 65536)
        def xblk(k):
            a(f's_lshl_b32 s{S_XO}, s{S_B}, 15'); a(f's_add_u32 s{S_XO}, s{S_XO}, {W.H[0].XNA + k*16*32768}'); a(f's_mov_b32 s{S_BUF}, {BUFS[k]}')
            dma_x(a, L16, S_XO, S_BUF, 'sc1')
        def early3():
            self.flags_ready(); self.mark(9, S_W, 0)
            for k in range(3): xblk(k)
        def start_proj(isv):
            H = W.H[0]; vo = 6; xa = 9; XR = 12; ACC = (28, 44)
            self.proj_weights(False, (S_B, 16), early3, (isv,), gw_first); self.mark(10, S_W, 0)
            xblk(3)
            if isv: pi_of(a, 3, L, 4); vpos16(a, vo, 3, L, 4)
            else: a(f'v_mov_b32 v{vo}, v{L16}')
            a(f's_lshl_b32 s{S_T}, s{S_W}, 11'); a(f'v_add_u32 v{vo}, s{S_T}, v{vo}')
            a(f's_lshl_b32 s{S_T}, s{S_A}, 13'); a(f's_lshl_b32 s{S_T2}, s{S_B}, 15'); a(f's_add_u32 s{S_T}, s{S_T}, s{S_T2}')
            a(f's_add_u32 s{S_T}, s{S_T}, {H.VA if isv else H.KA}'); add64(a, S_OUT, S_WS, f's{S_T}')
            def hs(acc, j):
                for i in range(4): a(f'v_cvt_pk_bf16_f32 v{acc+8*j+i}, v{acc+8*j+2*i}, v{acc+8*j+2*i+1}')
                a(f'global_store_dwordx4 v{vo}, {vr(acc+8*j,4)}, s[{S_OUT}:{S_OUT+1}] offset:{1024*j} sc1')
                if j: add64(a, S_OUT, S_OUT, 16*32768)
            for k in range(4):
                if k == 3: a('s_waitcnt vmcnt(4)'); a('s_barrier')
                a(f'v_add_u32 v{xa}, {BUFS[k]}, v{L16}')
                prev = ACC[(k+1) % 2]
                gemm_core(a, xa, XR, [(ACC[k%2], 'v' if isv else 'a', 128, bool(isv))], {1: (lambda p=prev: hs(p, 0)), 3: (lambda p=prev: hs(p, 1))} if k else {})
            hs(ACC[1], 0); hs(ACC[1], 1)
            a(f's_lshl_b32 s{S_T}, s{S_A}, 2'); a(f's_add_u32 s{S_T}, s{S_T}, s{S_W}'); self.set_word(FL(0, "QKVA") + 8*isv, S_T, S_B, 11, 5)
        a(f's_and_b32 s{S_T}, s{S_SLOT}, 1'); a(f's_cmp_eq_u32 s{S_T}, 1'); a(f's_cbranch_scc1 {lv}')
        start_proj(0); a(f's_branch {lj}')
        a.label(lv); start_proj(1)
        a.label(lj)
        a(f'v_lshl_add_u32 v{VZ}, v{L}, 9, s{S_SO}'); a(f'v_mov_b32 v{VF}, 1'); a('s_waitcnt vmcnt(0)')
        a('s_mov_b64 exec, 15'); a(f'global_store_dword v{VZ}, v{VF}, s[{S_WS}:{S_WS+1}] sc1'); a('s_mov_b64 exec, -1')
        a('s_waitcnt vmcnt(0)')
        self.stamp(1)
        def gw_ids():
            a(f's_sub_u32 s{S_T}, s{S_SLOT}, 96'); a(f's_lshr_b32 s{S_A}, s{S_T}, 5'); a(f's_lshl_b32 s{S_A}, s{S_A}, 3'); a(f's_and_b32 s{S_T2}, s{S_T}, 7')
            a(f's_add_u32 s{S_A}, s{S_A}, s{S_T2}'); a(f's_bfe_u32 s{S_B}, s{S_T}, 0x20003')
        for half in range(2):
            gw_ids(); self.att_run(half, 4); self.stamp(3 + 8*half)
            gw_ids()
            if half == 0: self.tb_weights()
            self.tb_run(half, 4); self.stamp(4 + 8*half)
        self.dump_marks()
        a.label('Lm_end2'); a('s_endpgm')
        a.label(Lch); self.role = 'ch'
        self.end = 'Lm_end3'; end = self.end
        r = C.ChainRegs(); self.sv = r.R
        a(f's_mov_b32 s{C.S_H}, s{S_SLOT}')
        lslow = a.newlabel('Lcslow'); lfast = a.newlabel('Lcfast')
        def mid(T):
            l1 = a.newlabel('Lcm'); l2 = a.newlabel('Lcm')
            T = r.WV + 64
            self.count_wait(132, T, end, C.S_T, C.S_SPIN); self.count_wait(self.TO, T, end, C.S_T, C.S_SPIN)
            a(f'v_readfirstlane_b32 s{C.S_T}, v{T}')
            add64(a, S_DBG, S_WS, FL(0, 'EL'))
            if self.chain_kw.get('force_slow'): a(f's_mov_b32 s{C.S_T}, 0')
            a(f's_mov_b32 s{C.S_EP}, 0'); a(f's_mov_b32 s{C.S_EM}, 0'); a(f's_mov_b32 s{C.S_HALF}, 0')
            a(f's_cmp_ge_u32 s{C.S_T}, 32'); a(f's_cselect_b32 s{C.S_FB}, 1, 0'); a(f's_cbranch_scc1 {l1}')
            C.chain_init_comm(a, r, 'sc1', True, T); a(f's_branch {l2}')
            a.label(l1); C.chain_init_comm(a, r, '', True, T)
            a.label(l2); C.group_arrive(a, T, 1280)
        C.chain_setup(a, r, mid, self.ahead)
        self.stamp(1)
        C.group_wait(a, r.R, 1280, 32, end)
        a(f's_cmp_eq_u32 s{C.S_FB}, 1'); a(f's_cbranch_scc1 {lfast}')
        a(f's_branch {lslow}')
        a.label(end); a('s_endpgm')
        kw = {k: v for k, v in self.chain_kw.items() if k != 'force_slow'}
        for lbl, stf in ((lfast, ''), (lslow, 'sc1')):
            a.label(lbl)
            lh = a.newlabel('Lch_half'); a.label(lh)
            self.stamp(2, C.S_HALF)
            C.chain_start(a, r, end, 1)
            def started(sv):
                self.sv = sv; self.stamp(3, C.S_HALF); self.sv = r.R
            kw['started'] = started
            C.chain_all_waves(a, r, stf, end, fused=1, **(dict(kw, ef='sc1') if stf else kw))
            self.stamp(4, C.S_HALF)
            if kw.get('stamps'):
                for k in range(12): a(f'v_mov_b32 v{k}, s{84+k}')
                a(f's_lshl_b32 s{C.S_T}, s{C.S_H}, 2'); a(f's_add_u32 s{C.S_T}, s{C.S_T}, s{C.S_W}'); a(f's_lshl_b32 s{C.S_T}, s{C.S_T}, 6')
                a(f's_lshl_b32 s{C.S_T2}, s{C.S_HALF}, 13'); a(f's_add_u32 s{C.S_T}, s{C.S_T}, s{C.S_T2}')
                a(f's_add_u32 s{C.S_T}, s{C.S_T}, {STAMP_OFF + 32768}'); a(f'v_mov_b32 v16, s{C.S_T}')
                for k in range(3): a(f'global_store_dwordx4 v16, {vr(4*k,4)}, s[{S_WS}:{S_WS+1}] offset:{16*k}')
                a('s_waitcnt vmcnt(0)')
            a(f's_cmp_lg_u32 s{C.S_HALF}, 0'); a(f's_cbranch_scc1 {end}')
            a(f's_mov_b32 s{C.S_HALF}, 1'); C.group_arrive(a, r.R, 1408); C.group_wait(a, r.R, 1408, 32, end)
            a(f's_xor_b32 s{C.S_EM}, s{C.S_EM}, 1'); C.chain_init_comm(a, r, stf, False)
            a(f's_branch {lh}')
        return a.lines
    def jump(self, label):
        a = self.a; l = a.newlabel('Lj')
        a('s_getpc_b64 s[48:49]'); a.label(l)
        a(f's_add_u32 s48, s48, {label}-{l}'); a('s_addc_u32 s49, s49, 0'); a('s_setpc_b64 s[48:49]')

DOC = """;
;
"""
NAME = 'interleave_layers__softmax_full_mha__memory_aug_recurrent_mem_tr__prompt'
def build(stamps=False, chain_kw={}, verbose=False, aslist=True):
    ks = []; al8 = chain_kw.pop('al8', 0)
    for n, lines, vg, acc in ((NAME + '_kernel', Mega(stamps, chain_kw).build(), 512, 256),):
        rep = []
        l = fix_hazards(lines, rep)
        if al8:
            l, nf, nbad = align8(l)
            if verbose: print('align8', nf, nbad)
        for e in check_waits(l, n[:8]): print(e)
        if verbose: print(n, len(l), len(rep))
        ks.append((n, l, vg, acc))
    hdr = ''.join(l for l in open(f'cdna_kernels/{NAME}.s.ref').readlines()[:14] if '@launch' not in l)
    hdr += DOC
    t = assemble_file(hdr, [(NAME + '_kernel', 256, 256, 163840)], ks)
    return t if aslist else t.replace(f'@launch kernel={NAME}_kernel ', '@launch ')

if __name__ == '__main__':
    import sys
    kw = eval(sys.argv[2]) if len(sys.argv) > 2 else dict()
    st = (True if sys.argv[3] == '1' else 2) if len(sys.argv) > 3 else False
    t = build(st, kw, True, aslist=(st is True))
    open(sys.argv[1] if len(sys.argv) > 1 else f'cdna_kernels/{NAME}.s', 'w').write(t)
    print(len(t))
```

```python
from asmlib import *
from layout import *
import math, struct

def f2u(f): return struct.unpack('<I', struct.pack('<f', f))[0]

LW = 0
LM = 144 * 1024
LS = 148 * 1024
DELTA = [0, 1, 8, 9, 2, 3, 10, 11]
DELTA2 = [0, 1, 32, 33, 8, 9, 40, 41]

class ChainRegs:
    def __init__(self):
        v = RegAlloc('v', 0, 256)
        self.M = v.alloc(32, 4); self.R = v.alloc(32, 4); self.A = v.alloc(32, 4)
        self.KX = v.alloc(8, 4); self.VX = v.alloc(8, 4)
        self.T = v.alloc(4, 4)
        self.VM = v.alloc(4)
        self.idx = self.VM + 1; self.aMst = self.VM + 3
        self.PZ = v.alloc(2)
        self.Z = v.alloc(2)
        self.I = v.alloc(2); self.E = v.alloc(4); self.One = v.alloc(4)
        self.PG = v.alloc(2)
        self.aPst = v.alloc(); self.aOw = v.alloc(); self.aW = v.alloc()
        self.aK = v.alloc(); self.aV = v.alloc(); self.aKm = v.alloc(); self.aVm = v.alloc(); self.aL = v.alloc()
        assert v.next <= 144, v.next
        self.WV = 144
        self.place = {}
        lds = [('q', 1, s) for s in range(8)] + [('q', 0, s) for s in range(4, 8)] + [('o', t, k) for t in (0, 6, 7) for k in range(2)]
        for i, b in enumerate(lds): self.place[b] = ('l', i * 2048)
        rest = [(m, t, s) for m in 'qkv' for t in range(2) for s in range(8)] + [('o', t, k) for t in range(8) for k in range(2)]
        rest = [b for b in rest if b not in self.place]
        assert len(rest) == 46
        for i, b in enumerate(rest):
            self.place[b] = ('a', 8 * i) if i < 32 else ('v', self.WV + 8 * (i - 32))
    def blk(self, b):
        k, r = self.place[b]; assert k != 'l'
        return vr(r, 8, k)

S_WS = 4; S_H = 6; S_W = 7
S_SRD = 8
S_CP = 12
S_HB = 20
S_KV = 22
S_CML = 24
S_XP = 26
S_EP = 28; S_EM = 29; S_STEP = 30; S_C = 31; S_SPIN = 32
S_PLO = 33; S_PHI = 34; S_T = 35; S_T2 = 36; S_T3 = 37
S_XH1 = 38; S_XH0 = 40; S_XR = 42
S_DBG = 44; S_TMP = 46; S_M0 = 48; S_RDY = 49
S_FH = 50; S_FW = 52; S_CPR = 54; S_CM = 56; S_HALF = 58; S_FB = 59
S_STAMP = 60
S_BW = 8
S_BR = 10
S_GS = 49
S_CME = 80
REP = 8192
S_SP = 31

def add64(a, dst, base, off):
    a(f's_add_u32 s{dst}, s{base}, {off}'); a(f's_addc_u32 s{dst+1}, s{base+1}, 0')

ROT = [0, 3]; WF = ['']
def frag_of(w, j): return (j ^ (w & ROT[0])) if j < 4 else 4 + ((w & ROT[1]) ^ (j - 4))

def chain_setup(a, r, mid=None, ahead=0, first=None):
    L = r.T; N = r.T+1; G = r.T+2; L16 = r.aL
    T = r.R
    a(f'v_lshrrev_b32 v{T}, 6, v0'); a(f'v_and_b32 v{L}, 63, v0'); a(f'v_readfirstlane_b32 s{S_W}, v{T}')
    a(f'v_and_b32 v{N}, 15, v{L}'); a(f'v_lshrrev_b32 v{G}, 4, v{L}')
    a(f's_mov_b32 s{S_PLO}, 0x05040100'); a(f's_mov_b32 s{S_PHI}, 0x07060302')
    a(f's_mov_b32 s{S_XH1}, 0xcccccccc'); a(f's_mov_b32 s{S_XH1+1}, 0xcccccccc')
    a(f's_mov_b32 s{S_XH0}, 0x33333333'); a(f's_mov_b32 s{S_XH0+1}, 0x33333333')
    a(f's_mov_b32 s{S_XR}, 0x000f000f'); a(f's_mov_b32 s{S_XR+1}, 0')
    a(f's_mov_b32 s{S_C}, {f2u(math.log2(math.e) / math.sqrt(128.0)):#x}')
    a(f'v_lshlrev_b32 v{L16}, 4, v{L}')
    a(f's_mul_i32 s{S_T}, s{S_W}, 36864'); a(f'v_add_u32 v{r.aW}, s{S_T}, v{L16}')
    a(f'v_bfe_u32 v{T}, v{N}, 1, 1')
    a(f'v_mul_u32_u24 v{r.idx}, 0xaaaa, v{T}'); a(f'v_bfe_u32 v{T}, v{N}, 2, 1'); a(f'v_mul_u32_u24 v{T}, 0xaaaa, v{T}'); a(f'v_lshl_add_u32 v{r.idx}, v{T}, 16, v{r.idx}'); a(f'v_add_u32 v{r.idx}, 0x44444444, v{r.idx}')
    a(f'v_lshlrev_b32 v{T}, 2, v{G}'); a(f'v_sub_u32 v{T}, v{N}, v{T}')
    a(f'v_mov_b32 v{T+1}, 0x3f80'); a(f'v_mov_b32 v{T+2}, 0x3f800000')
    def onehot(dst, nregs):
        for i in range(nregs):
            a(f'v_cmp_eq_u32 vcc, {2*i}, v{T}'); a(f'v_cndmask_b32 v{dst+i}, 0, v{T+1}, vcc')
            a(f'v_cmp_eq_u32 vcc, {2*i+1}, v{T}'); a(f'v_cndmask_b32 v{dst+i}, v{dst+i}, v{T+2}, vcc')
    onehot(r.I, 2)
    a(f'v_and_b32 v{T}, 11, v{N}')
    onehot(r.E, 2)
    a(f'v_mov_b32 v{r.E+2}, v{r.E}'); a(f'v_mov_b32 v{r.E+3}, v{r.E+1}')
    for i in range(4): a(f'v_mov_b32 v{r.One+i}, 0x3f803f80')
    a(f'v_mov_b32 v{r.PZ+1}, 0'); a(f'v_mov_b32 v{r.Z}, 0'); a(f'v_mov_b32 v{r.Z+1}, 0')
    a(f'v_lshrrev_b32 v{T}, 3, v{L}'); a(f'v_lshlrev_b32 v{T}, 11, v{T}'); a(f'v_and_b32 v{T+1}, 7, v{L}')
    a(f'v_lshl_add_u32 v{r.aPst}, v{T+1}, 3, v{T}')
    a(f's_lshl_b32 s{S_T}, s{S_W}, 14'); a(f's_lshl_b32 s{S_T2}, s{S_H}, 6'); a(f's_add_u32 s{S_T}, s{S_T}, s{S_T2}')
    a(f's_add_u32 s{S_T}, s{S_T}, {W.CP}'); add64(a, S_CP, S_WS, f's{S_T}')
    for p in range(1, 4): add64(a, S_CP+2*p, S_CP, p * 65536)
    assert W.CP >= LM and W.CM >= LM
    a(f's_lshl_b32 s{S_T}, s{S_W}, 16'); a(f's_lshl_b32 s{S_T2}, s{S_H}, 11'); a(f's_add_u32 s{S_T}, s{S_T}, s{S_T2}')
    a(f's_add_u32 s{S_T}, s{S_T}, {W.CP - LM}'); add64(a, S_CPR, S_WS, f's{S_T}')
    add64(a, S_CM, S_WS, W.CM); add64(a, S_CML, S_WS, W.CM - LM + 4096)
    a(f's_lshl_b32 s{S_T2}, s{S_W}, 11'); a(f's_lshr_b32 s{S_T3}, s{S_H}, 3'); a(f's_lshl_b32 s{S_T3}, s{S_T3}, 9'); a(f's_add_u32 s{S_T2}, s{S_T2}, s{S_T3}')
    a(f's_and_b32 s{S_T3}, s{S_H}, 1'); a(f's_lshl_b32 s{S_T3}, s{S_T3}, 8'); a(f's_add_u32 s{S_T2}, s{S_T2}, s{S_T3}')
    a(f's_bfe_u32 s{S_T3}, s{S_H}, 0x20001'); a(f's_lshl_b32 s{S_T3}, s{S_T3}, 6'); a(f's_add_u32 s{S_T2}, s{S_T2}, s{S_T3}')
    a(f'v_bfe_u32 v{T}, v{L}, 1, 1'); a(f'v_lshlrev_b32 v{T}, 5, v{T}')
    a(f'v_and_b32 v{T+1}, 1, v{L}'); a(f'v_lshl_add_u32 v{T}, v{T+1}, 3, v{T}')
    a(f'v_and_b32 v{T+1}, 1, v{G}'); a(f'v_lshl_add_u32 v{T}, v{T+1}, 4, v{T}')
    a(f'v_add_u32 v{r.aMst}, s{S_T2}, v{T}')
    a(f's_cmp_lt_u32 s{S_W}, 2'); a(f's_cselect_b32 s{S_XR}, -1, s{S_XR}'); a(f's_cselect_b32 s{S_T3}, {REP}, 0')
    a(f'v_bfe_u32 v{T}, v{L}, 2, 2'); a(f'v_mul_lo_u32 v{T}, v{T}, s{S_T3}'); a(f'v_add_u32 v{r.aMst}, v{r.aMst}, v{T}')
    a(f's_mul_i32 s{S_T3}, s{S_W}, {REP}'); add64(a, S_CME, S_CML, f's{S_T3}')
    a(f's_bfe_u32 s{S_T2}, s{S_H}, 0x20001'); a(f's_lshl_b32 s{S_T2}, s{S_T2}, 11')
    a(f's_lshr_b32 s{S_T3}, s{S_H}, 3'); a(f's_lshl_b32 s{S_T3}, s{S_T3}, 8'); a(f's_add_u32 s{S_T2}, s{S_T2}, s{S_T3}')
    a(f's_and_b32 s{S_T3}, s{S_H}, 1'); a(f's_lshl_b32 s{S_T3}, s{S_T3}, 7'); a(f's_add_u32 s{S_T2}, s{S_T2}, s{S_T3}')
    a(f's_lshl_b32 s{S_T3}, s{S_W}, 2'); a(f's_add_u32 s{S_M0}, s{S_T2}, s{S_T3}')
    a(f'v_lshrrev_b32 v{T}, 1, v{G}'); a(f'v_lshlrev_b32 v{T}, 8, v{T}'); a(f'v_and_b32 v{T+1}, 1, v{G}')
    a(f'v_lshl_add_u32 v{T}, v{T+1}, 5, v{T}'); a(f'v_lshl_add_u32 v{T}, v{N}, 4, v{T}')
    a(f's_lshl_b32 s{S_T}, s{S_W}, 9'); a(f's_add_u32 s{S_T}, s{S_T}, {LM}'); a(f'v_add_u32 v{r.aOw}, s{S_T}, v{T}')
    a(f'v_and_b32 v{T}, 2, v{L}'); a(f'v_cmp_eq_u32 vcc, 0, v{T}')
    a(f's_lshl_b32 s{S_T}, s{S_W}, 10'); a(f's_add_u32 s{S_T}, s{S_T}, {LM+12288}'); a(f'v_add_u32 v{T}, s{S_T}, v{L16}')
    a(f'v_and_b32 v{T+1}, 1, v{G}'); a(f'v_lshlrev_b32 v{T+1}, 5, v{T+1}'); a(f'v_xor_b32 v{T}, v{T}, v{T+1}')
    a(f'v_cndmask_b32 v{r.aOw}, v{T}, v{r.aOw}, vcc')
    a(f'v_lshrrev_b32 v{T}, 3, v{N}'); a(f'v_lshlrev_b32 v{T}, 8, v{T}'); a(f'v_and_b32 v{T+1}, 7, v{N}'); a(f'v_lshl_add_u32 v{T}, v{T+1}, 4, v{T}')
    a(f'v_lshl_add_u32 v{T}, v{G}, 9, v{T}')
    a(f's_lshl_b32 s{S_T}, s{S_W}, 11'); a(f's_add_u32 s{S_T2}, s{S_T}, {HB_K}'); a(f'v_add_u32 v{r.aK}, s{S_T2}, v{T}')
    a(f'v_lshlrev_b32 v{T}, 4, v{N}'); a(f'v_lshl_add_u32 v{T}, v{G}, 9, v{T}')
    a(f's_add_u32 s{S_T2}, s{S_T}, {HB_V}'); a(f'v_add_u32 v{r.aV}, s{S_T2}, v{T}')
    a(f'v_lshrrev_b32 v{T}, 2, v{N}'); a(f'v_lshlrev_b32 v{T}, 5, v{T}'); a(f'v_and_b32 v{T+1}, 1, v{N}'); a(f'v_lshl_add_u32 v{T}, v{T+1}, 4, v{T}')
    a(f'v_lshl_add_u32 v{T}, v{G}, 7, v{T}')
    a(f's_lshl_b32 s{S_T}, s{S_W}, 9'); a(f's_add_u32 s{S_T2}, s{S_T}, {HB_KM}'); a(f'v_add_u32 v{r.aKm}, s{S_T2}, v{T}')
    a(f'v_lshlrev_b32 v{T}, 3, v{L}'); a(f's_add_u32 s{S_T2}, s{S_T}, {HB_VM}'); a(f'v_add_u32 v{r.aVm}, s{S_T2}, v{T}')
    a(f'v_add_u32 v{r.aL}, {LM}, v{L16}')
    a(f'v_lshlrev_b32 v{T}, 2, v{L}'); a(f'v_add_u32 v{r.PG+1}, {LS+4096}, v{T}')
    a(f's_mov_b32 s{S_XP}, 0x01010101'); a(f's_mov_b32 s{S_XP+1}, 0x01010101')
    KBG = r.T+3; VO = r.VX
    a(f'v_lshrrev_b32 v{T}, 1, v{G}'); a(f'v_lshlrev_b32 v{T}, 4, v{T}')
    a(f'v_and_b32 v{T+1}, 1, v{G}'); a(f'v_lshl_add_u32 v{KBG}, v{T+1}, 2, v{T}')
    a(f's_lshl_b32 s{S_T}, s{S_H}, 8'); a(f's_lshl_b32 s{S_T2}, s{S_W}, 6'); a(f's_add_u32 s{S_T}, s{S_T}, s{S_T2}')
    a(f'v_lshlrev_b32 v{VO}, 15, v{KBG}'); a(f'v_lshl_add_u32 v{VO}, v{N}, 2, v{VO}'); a(f'v_add_u32 v{VO}, s{S_T}, v{VO}')
    a(f's_mov_b32 s{S_SRD+2}, {4*MB}'); a(f's_mov_b32 s{S_SRD+3}, 0x20000')
    NB = 11; PK = 88; U = 96
    groups = [(m, s, rg) for m in 'kvq' for rg in range(2) for s in range(8)]
    TQ = r.VX+1; TO = r.VX+2; TD_ = r.VX+3
    if ahead:
        a(f'v_lshrrev_b32 v{TQ}, 1, v0'); a(f'v_lshlrev_b32 v{TQ}, 13, v{TQ}'); a(f'v_and_b32 v{TO}, 1, v0'); a(f'v_lshl_add_u32 v{TQ}, v{TO}, 7, v{TQ}')
        a(f's_lshl_b32 s{S_T}, s{S_H}, 8'); a(f'v_add_u32 v{TQ}, s{S_T}, v{TQ}')
        a(f's_lshl_b32 s{S_T}, s{S_H}, 17'); a(f'v_lshl_add_u32 v{TO}, v0, 7, s{S_T}')
        for i, ka in enumerate((KA_WK, KA_WV, KA_WQ, KA_WO)): a(f's_load_dwordx2 s[{60+2*i}:{61+2*i}], s[0:1], {ka}')
        a('s_waitcnt lgkmcnt(0)')
    def touch(hm):
        if hm >= 8 or not ahead: return 0
        for i in range(2):
            off = ((128*(hm&1) + 256*i) * 8192) if hm < 6 else (65536*(hm&1) + 32768*i)
            add64(a, S_TMP, 60 + 2*(hm >> 1), off)
            a(f'global_load_dword v{TD_}, v{TQ if hm < 6 else TO}, s[{S_TMP}:{S_TMP+1}]')
        return 2
    def put(block, rg, i, emit, pend):
        k, base = r.place[block]
        if k == 'v': emit(base+4*rg+i)
        elif k == 'a':
            emit(pend+i); a(f'v_accvgpr_write_b32 a{base+4*rg+i}, v{pend+i}')
        else:
            emit(pend+i)
            if i == 3:
                a(f'ds_write_b128 v{r.aW}, {vr(pend,4)} offset:{base+1024*rg}'); a('s_waitcnt lgkmcnt(0)')
    DEPTH = 6
    wf = WF[0]
    kaoff = {'q': KA_WQ, 'k': KA_WK, 'v': KA_WV}
    cur = [None]
    def issue(gi):
        m, s, rg = groups[gi]
        if cur[0] != m:
            a(f's_load_dwordx2 s[{S_SRD}:{S_SRD+1}], s[0:1], {kaoff[m]}'); a('s_waitcnt lgkmcnt(0)'); cur[0] = m
        if True:
            if s < 4: a(f's_and_b32 s{S_T2}, s{S_W}, {ROT[0]}'); a(f's_xor_b32 s{S_T2}, s{S_T2}, {s}')
            else: a(f's_and_b32 s{S_T2}, s{S_W}, {ROT[1]}'); a(f's_xor_b32 s{S_T2}, s{S_T2}, {s}')
            a(f's_and_b32 s{S_T3}, s{S_T2}, 1'); a(f's_lshl_b32 s{S_T3}, s{S_T3}, 21'); a(f's_and_b32 s{S_T2}, s{S_T2}, 6'); a(f's_lshl_b32 s{S_T2}, s{S_T2}, 13')
            a(f's_add_u32 s{S_T3}, s{S_T3}, s{S_T2}')
        b = (gi % NB) * 8
        for jj in range(8):
            a(f's_add_u32 s{S_T}, s{S_T3}, {(128*rg+DELTA2[jj])*8192}')
            a(f'buffer_load_dword v{b+jj}, v{VO}, s[{S_SRD}:{S_SRD+3}], s{S_T} offen {wf}')
    def consume(gi):
        m, s, rg = groups[gi]; b = (gi % NB) * 8
        for t in range(2):
            for i in range(4):
                lo, hi = b+2*i, b+2*i+1
                if m == 'q':
                    def emit(d, lo=lo, hi=hi, t=t):
                        if t == 0: a(f'v_lshlrev_b32 v{U}, 16, v{lo}'); a(f'v_lshlrev_b32 v{U+1}, 16, v{hi}')
                        else: a(f'v_and_b32 v{U}, 0xffff0000, v{lo}'); a(f'v_and_b32 v{U+1}, 0xffff0000, v{hi}')
                        a(f'v_mul_f32 v{U}, s{S_C}, v{U}'); a(f'v_mul_f32 v{U+1}, s{S_C}, v{U+1}'); a(f'v_cvt_pk_bf16_f32 v{d}, v{U}, v{U+1}')
                else:
                    def emit(d, lo=lo, hi=hi, t=t): a(f'v_perm_b32 v{d}, v{hi}, v{lo}, s{S_PHI if t else S_PLO}')
                put((m, t, s), rg, i, emit, PK + 4*t)
    ops = []
    for hm in range(ahead): touch(hm)
    for gi in range(len(groups) + DEPTH):
        if gi < len(groups):
            n = touch(gi // 8 + ahead) if gi % 8 == 0 else 0
            issue(gi); ops.append(n + 8)
        if gi == DEPTH - 1 and first: a(f's_waitcnt vmcnt({sum(ops)})'); first()
        if gi == 14 and mid: a('s_waitcnt vmcnt(40)'); mid(None)
        if gi >= DEPTH:
            a(f's_waitcnt vmcnt({sum(ops[gi-DEPTH+1:])})')
            consume(gi - DEPTH)
    for hm in range(6 + ahead, 8): touch(hm)
    a(f's_load_dwordx2 s[{S_SRD}:{S_SRD+1}], s[0:1], {KA_WO}')
    a(f's_lshl_b32 s{S_T}, s{S_H}, 17'); a(f's_lshl_b32 s{S_T2}, s{S_W}, 8'); a(f's_add_u32 s{S_T}, s{S_T}, s{S_T2}')
    a(f'v_lshlrev_b32 v{VO}, 10, v{KBG}'); a(f'v_lshl_add_u32 v{VO}, v{N}, 4, v{VO}'); a(f'v_add_u32 v{VO}, s{S_T}, v{VO}')
    a('s_waitcnt lgkmcnt(0)')
    og = [(k, rg) for k in range(2) for rg in range(2)]
    def oissue(gi):
        k, rg = og[gi]; b = (gi % 2) * 32
        for jj in range(8):
            a(f's_mov_b32 s{S_T}, {(64*k+32*rg+DELTA[jj])*1024}')
            a(f'buffer_load_dwordx4 {vr(b+4*jj,4)}, v{VO}, s[{S_SRD}:{S_SRD+3}], s{S_T} offen')
    def ocons(gi):
        k, rg = og[gi]; b = (gi % 2) * 32
        for t in range(8):
            for i in range(4):
                def emit(d, hi=b+4*(2*i+1)+(t>>1), lo=b+4*(2*i)+(t>>1), t=t): a(f'v_perm_b32 v{d}, v{hi}, v{lo}, s{S_PHI if t & 1 else S_PLO}')
                put(('o', t, k), rg, i, emit, PK + 4*(t&1))
    oissue(0); oissue(1)
    for gi in range(4):
        a(f's_waitcnt vmcnt({8 if gi < 3 else 0})'); ocons(gi)
        if gi + 2 < 4: oissue(gi + 2)

def board_setup(a, r, stf):
    a(f's_lshl_b32 s{S_T}, s{S_H}, 2'); a(f's_add_u32 s{S_T}, s{S_T}, {W.CB - LM}')
    add64(a, S_BW, S_WS, f's{S_T}'); add64(a, S_BR, S_WS, W.CB - LS - 4096); a(f's_mov_b32 s{S_GS}, 0')
    a('s_mov_b64 exec, 0x101'); a(f'global_store_dword v{r.aL}, v{r.Z}, s[{S_BW}:{S_BW+1}] {stf}'); a('s_mov_b64 exec, -1')

def chain_init_comm(a, r, stf, first, T=None):
    T = r.R if T is None else T
    a(f's_load_dwordx2 s[{S_TMP}:{S_TMP+1}], s[0:1], {KA_MEM0}')
    a(f'v_and_b32 v{T}, 0x30, v{r.aL}'); a(f'v_lshlrev_b32 v{T}, 1, v{T}'); a(f'v_bfe_u32 v{T+1}, v{r.aL}, 8, 1'); a(f'v_lshl_add_u32 v{T}, v{T+1}, 10, v{T}')
    a(f'v_add_u32 v{T}, s{S_M0}, v{T}')
    a(f's_xor_b32 s{S_T}, s{S_EP}, 1')
    for i in range(4): a(f'v_mov_b32 v{T+4+i}, s{S_T}')
    a('s_waitcnt lgkmcnt(0)')
    a(f'global_load_dword v{T+2}, v{T}, s[{S_TMP}:{S_TMP+1}]'); a(f'global_load_dword v{T+3}, v{T}, s[{S_TMP}:{S_TMP+1}] offset:16')
    if first:
        a(f'global_store_dwordx4 v{r.aL}, {vr(T+4,4)}, s[{S_CPR}:{S_CPR+1}] {stf}')
        a(f'global_store_dwordx4 v{r.aL}, {vr(T+4,4)}, s[{S_CPR}:{S_CPR+1}] offset:1024 {stf}')
    a('s_waitcnt vmcnt(0)')
    a(f'v_and_or_b32 v{T+2}, v{T+2}, -2, s{S_EM}')
    a(f's_mov_b64 exec, s[{S_XR}:{S_XR+1}]')
    a(f'global_store_dwordx2 v{r.aMst}, {vr(T+2,2)}, s[{S_CM}:{S_CM+1}] {stf}')
    a('s_mov_b64 exec, -1'); a('s_waitcnt vmcnt(0)')

def group_arrive(a, T, off):
    l1 = a.newlabel('Lgb')
    a('s_barrier')
    a(f'v_mov_b32 v{T}, {off}'); a(f'v_mov_b32 v{T+1}, 1')
    a(f's_cmp_lg_u32 s{S_W}, 0'); a(f's_cbranch_scc1 {l1}')
    a('s_mov_b64 exec, 1'); a(f'global_atomic_add v{T}, v{T+1}, s[{S_DBG}:{S_DBG+1}] sc1'); a('s_waitcnt vmcnt(0)'); a('s_mov_b64 exec, -1')
    a.label(l1)
def group_wait(a, T, off, count, fail):
    l2 = a.newlabel('Lgb'); l3 = a.newlabel('Lgb')
    a(f's_mov_b32 s{S_SPIN}, 0'); a(f'v_mov_b32 v{T}, {off}')
    a.label(l2)
    a(f'global_load_dword v{T+2}, v{T}, s[{S_DBG}:{S_DBG+1}] sc1'); a('s_waitcnt vmcnt(0)')
    a(f'v_readfirstlane_b32 s{S_T}, v{T+2}')
    a(f's_cmp_ge_u32 s{S_T}, {count}'); a(f's_cbranch_scc1 {l3}')
    a('s_sleep 2')
    a(f's_add_u32 s{S_SPIN}, s{S_SPIN}, 1'); a(f's_cmp_lt_u32 s{S_SPIN}, 0x60000'); a(f's_cbranch_scc1 {l2}')
    a(f's_branch {fail}')
    a.label(l3)

DPPQ = 'quad_perm:[2,3,0,1] row_mask:0xf bank_mask:0xf'
XA = 's_mov_b64 exec, -1'

def prog_load(a, r): a(f'global_load_dword v{r.PG}, v{r.PG+1}, s[{S_FH}:{S_FH+1}] sc1')
def prog_block(a, r, lbl, back, need_sgpr, fail):
    a.label(lbl)
    prog_load(a, r); a('s_waitcnt vmcnt(0)')
    a(f'v_cmp_ge_u32 s[{S_TMP}:{S_TMP+1}], s{need_sgpr}, v{r.PG}'); a(f's_and_b64 s[{S_TMP}:{S_TMP+1}], s[{S_TMP}:{S_TMP+1}], s[{S_XP}:{S_XP+1}]'); a(f's_cbranch_scc0 {back}')
    a('s_sleep 1')
    a(f's_add_u32 s{S_SPIN}, s{S_SPIN}, 1'); a(f's_cmp_lt_u32 s{S_SPIN}, 0x60000'); a(f's_cbranch_scc1 {lbl}')
    a(f's_branch {fail}')
def kv_load(a, r, i, dst, base=None):
    base = base or S_KV
    ad, off = ((r.aK, 0), (r.aK, 128), (r.aV, 0), (r.aV, 256))[i]
    a(f'global_load_dwordx4 {vr(dst+4*i,4)}, v{ad}, s[{base}:{base+1}] offset:{off} sc1')

def chain_start(a, r, fail, fused, started=None):
    HS = W.H[1].HB - W.H[0].HB
    a(f's_mul_i32 s{S_T2}, s{S_HALF}, {HS}'); a(f's_lshl_b32 s{S_T}, s{S_H}, 21'); a(f's_add_u32 s{S_T}, s{S_T}, s{S_T2}')
    a(f's_add_u32 s{S_T}, s{S_T}, {W.H[0].HB}'); add64(a, S_KV, S_WS, f's{S_T}'); a(f's_mov_b64 s[{S_HB}:{S_HB+1}], s[{S_KV}:{S_KV+1}]')
    a(f's_mov_b32 s{S_STEP}, 0'); a(f's_mov_b32 s{S_SPIN}, 0')
    a(f's_lshl_b32 s{S_T}, s{S_H}, 8'); a(f's_lshl_b32 s{S_T2}, s{S_HALF}, 17'); a(f's_add_u32 s{S_T}, s{S_T}, s{S_T2}')
    a(f's_add_u32 s{S_T}, s{S_T}, {FL(0, "CHP")}'); add64(a, S_FW, S_WS, f's{S_T}')
    a(f's_sub_u32 s{S_FH}, s{S_FW}, {FL(0, "CHP") - FL(0, "HEAD") + LS + 4096}'); a(f's_subb_u32 s{S_FH+1}, s{S_FW+1}, 0')
    a(f'v_mov_b32 v{r.PG}, 0'); a(f's_mov_b32 s{S_SP}, 0')
    for i in range(2): a(f'global_load_dwordx4 {vr(r.M+24+4*i,4)}, v{r.aL}, s[{S_CPR}:{S_CPR+1}] offset:{1024*i} sc1')
    add64(a, S_KV, S_KV, HB_REC)

def chain_wave(a, r, w, stf, fail, done, fused=1, pat=(13, 16, 16, 16), d1=(100, 140, 280, 320), d2=(0, 80, 20, 20), e23=(60, 40, 80, 60), lpos=4, nb=(2, 2, 1, 2), bk=(120, 60, 100, 60), es=16, eb=None, e3in=1, cp=1, rep=1, vdef=1, wsplit=0, vw=(1, 1, 1, 4), hkw=(0, 1), nowait=0, pkpos=0, pvearly=0, clk=0, comb=0, plate=0, direct=0, hkfirst=0, lp=(4, 8, 12, 16), nopad=1, pre1=24, pre2=4, e0e=None, e1g=0, ack1=(None, 2, 0, 0), ack2=(1, 0, 0, 0), bx=None, bp=(18, 19, 21, 23, 24, 25), bg=16, c1=(4, 4, 4, 4), ef='sc1', rt=None, started=None,
               nomax=1, stamps=False, stampsel=None, nocomm=0, nohk=0):
    R, A, M, T = r.R, r.A, r.M, r.T
    if isinstance(nb, tuple): nb = nb[w]
    if isinstance(bk, tuple): bk = bk[w]
    if isinstance(es, tuple): es = es[w]
    Aq = [A, A+4]; Ak = [A+8, A+12]; Av = [A+16, A+20]
    ACC = {'q': Aq, 'k': Ak, 'v': Av}
    ns = [0]; sid = [0]
    def st(name=None):
        if name is None:
            name = sid[0]; sid[0] += 1
        if stamps and ((stampsel is None and isinstance(name, int)) or (stampsel is not None and name in stampsel)):
            a(f's_memtime s[{S_STAMP+2*ns[0]}:{S_STAMP+2*ns[0]+1}]'); ns[0] += 1
    def tr(k):
        if rt is not None: a(f's_memtime s[{(S_STAMP+2*k) if k != 10 else 96}:{((S_STAMP+2*k) if k != 10 else 96)+1}]')
    pos = [None]
    def hook():
        if pos[0] is None or bx is None: return
        if w == 1 and pos[0] == bx: a('s_mov_b64 exec, 0x101'); a(f'global_store_dword v{r.aL}, v{r.PZ}, s[{S_BW}:{S_BW+1}] {stf}'); a(XA)
        if w == 0 and pos[0] in bp: a(f'global_load_dword v{r.PG}, v{r.PG+1}, s[{S_BR}:{S_BR+1}] sc1')
        pos[0] += 1
    def smf(acc, aop, b): a(f'v_smfmac_f32_16x16x64_bf16 {vr(acc,4)}, {vr(aop,4)}, {b}, v{r.idx}'); hook()
    def m32(d, x, y, c): a(f'v_mfma_f32_16x16x32_bf16 {vr(d,4)}, {vr(x,4)}, {vr(y,4)}, {vr(d,4) if c else 0}'); hook()
    def m16(d, x, y, c): a(f'v_mfma_f32_16x16x16_bf16 {vr(d,4)}, {vr(x,2)}, {vr(y,2)}, {vr(d,4) if c else 0}'); hook()
    def ldh(dst, b, hh): a(f'ds_read_b128 {vr(dst+4*hh,4)}, v{r.aW} offset:{r.place[b][1]+1024*hh}')
    def nops(c):
        n = c // 4
        if n > 0: a.comment('back-off: a request issued before the data have reached L2 only costs a retry')
        while n > 0:
            k = min(n, 16); a(f's_nop {k-1}'); n -= k
    def add0(c): a(f'v_add_f32 v{c}, v{c}, v{c+2}')
    def add1(c): a(f'v_add_f32 v{c+1}, v{c+1}, v{c+3}')
    def cvt(d, x, y): a(f'v_cvt_pk_bf16_f32 v{d}, v{x}, v{y}')
    def pka(d, x, y): a(f'v_pk_add_f32 {vr(d,2)}, {vr(x,2)}, {vr(y,2)}')
    def e_load(j, f='sc1'):
        b = S_CME if (j < 4 and rep) else S_CML
        a(f'global_load_dwordx4 {vr(M+4*j,4)}, v{r.aL}, s[{b}:{b+1}] offset:{1024*frag_of(w,j)-4096} {f}')
    PL = [M+24, R+24, M+16, R+16]; PD = A+24; t0 = A+28; t1 = A+29
    def p_loads(k=0):
        a(f'global_load_dwordx4 {vr(PL[k],4)}, v{r.aL}, s[{S_CPR}:{S_CPR+1}] sc1')
        a(f'global_load_dwordx4 {vr(PL[k]+4,4)}, v{r.aL}, s[{S_CPR}:{S_CPR+1}] offset:1024 sc1')
    def ring_prefetch():
        for e in range(4):
            for hh in range(2): ldh(R+8*e, ('q', 1, e), hh)
    def zero(base, n):
        for i in range(n): a(f'v_mov_b32 v{base+i}, 0')
    def spin_or_fail():
        a(f's_add_u32 s{S_SPIN}, s{S_SPIN}, 1'); a(f's_cmp_lt_u32 s{S_SPIN}, 0x60000'); a(f's_cbranch_scc0 {fail}')
    LA = a.newlabel('Lc_A'); Ldone = a.newlabel('Lc_done')
    Lr = [a.newlabel('Lc_rE') for _ in range(8)]; Lc = [a.newlabel('Lc_cE') for _ in range(8)]
    Lhk = a.newlabel('Lc_hk'); Lhb = a.newlabel('Lc_hb'); Lexp = a.newlabel('Lc_exp'); Lfb = a.newlabel('Lc_fb'); Lnofb = a.newlabel('Lc_nofb'); Lsp = a.newlabel('Lc_sp'); Lspb = a.newlabel('Lc_spb')
    if stamps: _ = [a(f's_mov_b32 s{84+k}, 0') for k in range(12)]
    zero(A, 24); ring_prefetch()
    if bx is not None: a(f's_add_u32 s{S_GS}, s{S_GS}, 1'); a(f'v_mov_b32 v{r.PZ}, s{S_GS}')
    for j in range(4): e_load(j)
    a('s_waitcnt vmcnt(0)')
    a('.p2align 6')
    a.label(LA)
    e3 = False; ex = 1 if eb is not None else 0
    ringof = {('q',1,0):0, ('q',1,1):1, ('q',1,2):2, ('q',1,3):3, ('q',1,4):0, ('q',0,4):1, ('q',1,5):2, ('q',0,5):3, ('q',0,6):0, ('q',0,7):1, ('q',1,6):2, ('q',1,7):3}
    def S(m, t, s):
        b = (m, t, s)
        smf(ACC[m][t], M+4*s, vr(R+8*ringof[b], 8) if b in ringof else r.blk(b))
    def tagx(d, j): return f'v_bitop3_b32 v{d}, v{M+4*j}, v{M+4*j+2}, s{S_EM} bitop3:0x7e'
    def chk(j):
        return [f'v_bitop3_b32 v{t0}, v{M+4*j}, v{M+4*j+2}, s{S_EM} bitop3:0x7e', f'v_and_b32 v{t0}, 1, v{t0}', f'v_cmp_ne_u32 vcc, 0, v{t0}']
    vm0 = ['E0', 'E1'] + (['x'] if ex else []) + ['E2'] + ([] if e3in else ['E3'])
    ee = e0e is not None; eh = ee and d2[w] < e0e
    if ee: vm0 = ['E0'] + (['m'] if eh else []) + ['x', 'E1', 'E2'] + ([] if e3in else ['E3'])
    a(f's_waitcnt vmcnt({len(vm0)-1}) lgkmcnt(0)')
    tr(7)
    for l in chk(0): a(l)
    a.label(Lc[0])
    st()
    tr(8)
    order = (('q',1),('q',0),('k',0),('k',1),('v',0),('v',1))
    dsq = [(R+24, ('q',1,3), 0), (R+24, ('q',1,3), 1), (R, ('q',1,4), 0), (R, ('q',1,4), 1), (R+16, ('q',1,2), 0), (R+16, ('q',1,2), 1),
           None, (R+8, ('q',0,4), 0), (R+8, ('q',0,4), 1), None, None, None,
           None, (R+16, ('q',1,5), 0), (R+16, ('q',1,5), 1), None, None, None]
    cnt = 0
    vm = list(vm0)
    def after_of(n): return len(vm) - 1 - vm.index(n)
    issued_at = {}
    def probe():
        a(f'global_load_dword v{r.PG}, v{r.PG+1}, s[{S_BR}:{S_BR+1}] sc1')
    def extras(cnt):
        if e3in and cnt == 2: e_load(3); vm.append('E3')
        if not direct and cnt == lpos: e_load(4); vm.append('E4')
        if direct and cnt in lp: j = 4 + lp.index(cnt); e_load(j); vm.append('E%d' % j)
    for sl in range(3):
        c = chk(sl+1)
        for i, (m, t) in enumerate(order):
            S(m, t, sl)
            if dsq[cnt]: ldh(*dsq[cnt])
            extras(cnt)
            if cnt == 0: a(f's_mov_b32 s{S_FB}, 0')
            if cnt == 11: a('s_waitcnt lgkmcnt(2)')
            if cnt == 1: a(f's_cbranch_vccnz {Lr[0]}')
            cnt += 1
            if comb:
                if i == 5: a(f's_waitcnt vmcnt({after_of("E%d" % (sl+1))})')
                if i == 0 and sl > 0: a(tagx(PD+sl-1, sl))
            else:
                if i == cp: a(f's_waitcnt vmcnt({after_of("E%d" % (sl+1))})')
                if cp <= i < cp + 3: a(c[i-cp])
            if fused and (w == hkw[0] or direct) and cnt == (9 if comb else 7):
                a(f's_add_u32 s{S_T3}, s{S_STEP}, 1'); a(f's_min_u32 s{S_T3}, s{S_T3}, 63'); a(f'v_cmp_ge_u32 s[{S_TMP}:{S_TMP+1}], s{S_T3}, v{r.PG}')
        if not comb: a(f's_cbranch_vccnz {Lr[sl+1]}')
        issued_at[sl+1] = list(vm)
        a.label(Lc[sl+1])
    def pub_k(): a(f's_mov_b64 exec, s[{S_XH0}:{S_XH0+1}]'); a(f'global_store_dwordx4 v{r.aKm}, {vr(T,4)}, s[{S_HB}:{S_HB+1}] sc1'); a(XA)
    def pub_v(): a(f'global_store_dwordx2 v{r.aVm}, {vr(A+30,2)}, s[{S_HB}:{S_HB+1}] sc1')
    TA = [R+0, R+2]; TD = [R+4, R+8]; SX = [R+16, R+20]; SM = R+24
    Lk0 = a.newlabel('Lc_k0'); Lk0b = a.newlabel('Lc_k0b'); Lbs = a.newlabel('Lc_bs'); Lbg = a.newlabel('Lc_bg')
    nhk = 0 if nohk else 5 + (1 if pkpos in (1, 3, 4) else 0) + (1 if (fused and w in hkw) else 0)
    if direct:
        assert vdef and pkpos == 0 and max(lp) < 18 and not comb
        def W(j): a(f's_waitcnt vmcnt({after_of("E%d" % j)})')
        def B(j): a(f's_cbranch_vccnz {Lr[j]}'); issued_at[j] = list(vm); a.label(Lc[j])
        c = chk(4)
        a('s_waitcnt lgkmcnt(4)')
        S('q',1,3); W(4); a(c[0])
        S('q',0,3); ldh(R+24, ('q',0,5), 0); a(c[1])
        S('k',0,3); ldh(R+24, ('q',0,5), 1); a(c[2])
        S('k',1,3)
        if fused:
            a(f's_and_b64 s[{S_TMP}:{S_TMP+1}], s[{S_TMP}:{S_TMP+1}], s[{S_XP}:{S_XP+1}]'); a(f's_cbranch_scc1 {Lhb}'); a.label(Lhk)
        a('s_waitcnt lgkmcnt(4)'); B(4)
        c = chk(5)
        S('q',1,4); W(5); a(c[0])
        S('q',0,4); ldh(R+0, ('q',0,6), 0); a(c[1])
        S('k',0,4); ldh(R+0, ('q',0,6), 1); a(c[2])
        S('k',1,4); ldh(R+8, ('q',0,7), 0); a('s_waitcnt lgkmcnt(3)'); B(5)
        c = chk(6)
        S('q',1,5); ldh(R+8, ('q',0,7), 1); W(6); a(c[0])
        S('q',0,5); ldh(R+16, ('q',1,6), 0); a(c[1])
        S('k',0,5); ldh(R+16, ('q',1,6), 1); a(c[2])
        S('k',1,5); ldh(R+24, ('q',1,7), 0); B(6)
        c = chk(7)
        S('k',0,6); ldh(R+24, ('q',1,7), 1); W(7); a('s_waitcnt lgkmcnt(4)'); a(c[0])
        S('q',0,6); a(c[1]); a(c[2])
        S('k',1,6); a(f's_cmp_eq_u32 s{S_STEP}, 0'); a('s_waitcnt lgkmcnt(2)')
        S('q',1,6); B(7); a(f's_cbranch_scc1 {Lk0}'); a.label(Lk0b)
        S('k',0,7)
        if not nohk: kv_load(a, r, 0, M); kv_load(a, r, 1, M)
        S('q',0,7)
        if not nohk: kv_load(a, r, 2, M)
        if fused: prog_load(a, r)
        S('k',1,7)
        if fused and w == hkw[1]: a('s_mov_b64 exec, 1'); a(f'global_store_dword v{r.Z}, v{t1}, s[{S_FW}:{S_FW+1}] sc1'); a(XA)
        a('s_waitcnt lgkmcnt(0)'); add0(Ak[0])
        S('q',1,7); a(f's_mov_b64 vcc, s[{S_XH1}:{S_XH1+1}]'); add1(Ak[0]); cvt(TA[0], Ak[0], Ak[0]+1); add0(Aq[0]); add1(Aq[0]); cvt(TA[0]+1, Aq[0], Aq[0]+1)
        nhk = 0 if nohk else 5 + (1 if fused else 0) + (1 if (fused and w == hkw[1]) else 0)
    else:
        assert 2 <= lpos < 14
        c = chk(4)
        if comb: c = [tagx(PD+2, 3) + '\n' + tagx(t0, 4), f'v_or3_b32 v{PD}, v{PD}, v{PD+1}, v{PD+2}\nv_bitop3_b32 v{t0}, v{t0}, v{PD}, 1 bitop3:0xa8', f'v_cmp_ne_u32 vcc, 0, v{t0}']
        a('s_waitcnt lgkmcnt(4)')
        S('q',1,3)
        a(f's_waitcnt vmcnt({after_of("E4")})')
        a(f'ds_write_b128 v{r.aL}, {vr(M+16,4)} offset:{1024*w}')
        a(c[0])
        S('q',0,3); ldh(R+24, ('q',0,5), 0); extras(19); a(c[1])
        S('k',0,3); ldh(R+24, ('q',0,5), 1); extras(20); a(c[2])
        S('k',1,3); extras(21)
        if fused and w == hkw[0]:
            a(f's_and_b64 s[{S_TMP}:{S_TMP+1}], s[{S_TMP}:{S_TMP+1}], s[{S_XP}:{S_XP+1}]'); a(f's_cbranch_scc1 {Lhb}'); a.label(Lhk)
        if not vdef: S('v',0,3)
        a(f's_cbranch_vccnz {Lr[4]}')
        a.label(Lc[4])
        tr(9)
        if not nohk and pkpos == 4: a(f's_mov_b64 exec, s[{S_XH0}:{S_XH0+1}]'); a(f'global_store_dwordx4 v{r.aKm}, {vr(T,4)}, s[{S_HB}:{S_HB+1}] sc1'); a(XA)
        a('s_waitcnt lgkmcnt(2)'); a('s_barrier')
        tr(10)
        pos[0] = 0
        def rdm(j): a(f'ds_read_b128 {vr(M+16+4*j,4)}, v{r.aL} offset:{1024*(w^j)}')
        def pub_k(): a(f's_mov_b64 exec, s[{S_XH0}:{S_XH0+1}]'); a(f'global_store_dwordx4 v{r.aKm}, {vr(T,4)}, s[{S_HB}:{S_HB+1}] sc1'); a(XA)
        def pub_v(): a(f'global_store_dwordx2 v{r.aVm}, {vr(A+30,2)}, s[{S_HB}:{S_HB+1}] sc1')
        hk = []
        if not nohk:
            hk = [lambda i=i: kv_load(a, r, i, M) if not (vdef and i == 3) else None for i in range(4)]
            if fused and w == hkw[1]: hk.append(lambda: (a('s_mov_b64 exec, 1'), a(f'global_store_dword v{r.Z}, v{t1}, s[{S_FW}:{S_FW+1}] sc1'), a(XA)))
            if fused and w == hkw[0]: hk.append(lambda: prog_load(a, r))
            if w not in hkw or not fused: hk.append(lambda: None)
        if hkfirst and hk: hk = [hk[4]] + hk[:4]
        def H():
            if hk: hk.pop(0)()
        rdm(1)
        if not vdef: S('v',1,3)
        rdm(2); rdm(3)
        S('q',1,4); a(f's_cmp_eq_u32 s{S_STEP}, 0'); a(f's_cbranch_scc1 {Lk0}'); a.label(Lk0b); H()
        S('q',0,4); ldh(R+0, ('q',0,6), 0); H()
        S('k',0,4); ldh(R+0, ('q',0,6), 1); H()
        S('k',1,4); ldh(R+8, ('q',0,7), 0); H(); a('s_waitcnt lgkmcnt(5)')
        S('q',1,5); ldh(R+8, ('q',0,7), 1)
        if not nohk and pkpos == 3: pub_k()
        S('q',0,5); ldh(R+16, ('q',1,6), 0)
        if not nohk and pvearly: pub_v()
        S('k',0,5); ldh(R+16, ('q',1,6), 1); a('s_waitcnt lgkmcnt(6)')
        S('k',0,6); ldh(R+24, ('q',1,7), 0)
        S('k',0,7); ldh(R+24, ('q',1,7), 1); a('s_waitcnt lgkmcnt(4)')
        S('q',0,6); H()
        TA = [R+0, R+2]; TD = [R+4, R+8]; SX = [R+16, R+20]; SM = R+24
        S('q',0,7); add0(Ak[0])
        S('k',1,5); add1(Ak[0])
        assert not hk
        S('k',1,6); cvt(TA[0], Ak[0], Ak[0]+1)
        S('k',1,7); a('s_waitcnt lgkmcnt(0)'); add0(Aq[0])
        S('q',1,6); a(f's_mov_b64 vcc, s[{S_XH1}:{S_XH1+1}]'); add1(Aq[0])
        S('q',1,7); cvt(TA[0]+1, Aq[0], Aq[0]+1)
    st()
    vq = [(t, s) for s in range(3 if vdef else 4, 8) for t in range(2)]
    def V(n=1):
        for _ in range(n):
            t, s = vq.pop(0); S('v', t, s)
    add0(Ak[1]); add1(Ak[1])
    m16(TD[0], TA[0], r.I, 0)
    cvt(TA[1], Ak[1], Ak[1]+1)
    add0(Aq[1]); add1(Aq[1])
    cvt(TA[1]+1, Aq[1], Aq[1]+1)
    m16(TD[1], TA[1], r.I, 0)
    a(f's_cmp_lg_u32 s{S_STEP}, 0'); a(f's_cselect_b32 s{S_T}, {HB_REC}, 0')
    V(1)
    if not nohk and not pvearly: pub_v()
    V(vw[0]-1)
    add64(a, S_HB, S_HB, f's{S_T}')
    for i in range(4): cvt(T+i, TD[0]+i, TD[1]+i)
    a(f's_cmp_eq_u32 s{S_STEP}, s{S_SP}'); a(f's_cbranch_scc1 {Lsp}')
    a.label(Lspb)
    m32(SX[0], r.KX, T, 0)
    a(f's_cmp_lt_u32 s{S_STEP}, 62'); a(f's_cselect_b32 s{S_T}, {HB_REC}, 0')
    m32(SX[1], r.KX+4, T, 0)
    m32(SM, T, T, 0)
    vrest = list(vq)
    V(vw[1])
    if vdef and not nohk: kv_load(a, r, 3, M)
    add64(a, S_KV, S_KV, f's{S_T}')
    for i in range(4): a(f'v_cndmask_b32_dpp v{SX[1]+i}, v{SX[0]+i}, v{SX[1]+i}, vcc {DPPQ}')
    SO = SX[1]; SMO = SM+1
    a(f'v_cndmask_b32_dpp v{SMO}, v{SM}, v{SM+1}, vcc {DPPQ}')
    V(vw[2])
    a(f'ds_write_b128 v{r.aL}, {vr(SO,4)} offset:{LS-LM+1024*w}')
    if wsplit: V(1)
    a(f'ds_write_b32 v{r.PG+1}, v{SMO} offset:{256*w}')
    V(vw[3]-1)
    if not nohk and pkpos == 1: pub_k()
    if bx is not None and w == 0: a(f'v_cmp_ne_u32 vcc, s{S_GS}, v{r.PG} ; nowaitcheck')
    V(1)
    pos[0] = None
    if bx is not None and w == 0:
        a(f's_cbranch_vccnz {Lbs}'); a.label(Lbg); a('s_waitcnt lgkmcnt(0)'); a('s_barrier')
    elif bx is not None and w == 1: a('s_waitcnt lgkmcnt(0)'); a('s_barrier')
    elif nowait & 1: a('s_barrier')
    else: a(f's_waitcnt vmcnt({nhk}) lgkmcnt(0)'); a('s_barrier')
    st()
    tr(11)
    RD = [R+0, R+4, R+8]; RM = R+28
    o4 = (LS-LM+4096)//256
    for j in range(3): a(f'ds_read_b128 {vr(RD[j],4)}, v{r.aL} offset:{LS-LM+1024*(w^(j+1))}')
    V(1)
    a(f'ds_read2st64_b32 {vr(RM,2)}, v{r.PG+1} offset0:{w^1} offset1:{w^2}')
    a(f'ds_read_b32 v{RM+2}, v{r.PG+1} offset:{256*(w^3)}')
    V(len(vq))
    if not nohk and pkpos == 0: pub_k()
    if plate and fused and w == hkw[0]: prog_load(a, r)
    assert not vq
    P = R+16; MX = R+26; TM = R+27
    D = [R+8, R+12]; SUM = R+28; X = R+0
    a('s_waitcnt lgkmcnt(2)')
    for i in range(4): a(f'v_add_f32 v{SO+i}, v{SO+i}, v{RD[0]+i}')
    pka(RD[1], RD[1], RD[2]); pka(RD[1]+2, RD[1]+2, RD[2]+2)
    a('s_waitcnt lgkmcnt(0)')
    a(f'v_add_f32 v{SMO}, v{SMO}, v{RM+2}'); a(f'v_add_f32 v{RM}, v{RM}, v{RM+1}')
    pka(SO, SO, RD[1]); pka(SO+2, SO+2, RD[1]+2)
    a(f'v_add_f32 v{SMO}, v{SMO}, v{RM}')
    pka(Av[0], Av[0], Av[0]+2); pka(Av[1], Av[1], Av[1]+2)
    def submax():
        a(f'v_max3_f32 v{MX}, v{SO}, v{SO+1}, v{SO+2}'); a(f'v_max3_f32 v{MX}, v{MX}, v{SO+3}, v{SMO}')
        a(f'v_max_f32_dpp v{MX}, v{MX}, v{MX} {DPPQ}')
        for sw in ('16', '32'):
            a(f'v_mov_b32 v{TM}, v{MX}'); a(f'v_permlane{sw}_swap_b32 v{MX}, v{TM}'); a(f'v_max_f32 v{MX}, v{MX}, v{TM}')
        for e in (SMO, SO, SO+1, SO+2, SO+3): a(f'v_sub_f32 v{e}, v{e}, v{MX}')
    if not nomax: submax()
    a.label(Lexp)
    a(f'v_exp_f32 v{X+4}, v{SMO}')
    cvt(r.VM, Av[0], Av[0]+1)
    a(f'v_exp_f32 v{X}, v{SO}')
    cvt(r.VM+2, Av[1], Av[1]+1)
    a(f'v_mov_b32_dpp v{TM}, v{X+4} {DPPQ}')
    a(f'v_exp_f32 v{X+1}, v{SO+1}')
    cvt(r.PZ, X+4, TM)
    a(f'v_exp_f32 v{X+2}, v{SO+2}')
    cvt(P, X, X+1)
    m16(SUM, r.One, r.PZ, 0); ldh(M+16, ('o',0,0), 0)
    a(f'v_exp_f32 v{X+3}, v{SO+3}')
    m16(D[0], r.VM, r.PZ, 0); ldh(M+16, ('o',0,0), 1)
    a(f'v_mov_b32_dpp v{P+2}, v{P} {DPPQ}')
    cvt(P+1, X+2, X+3)
    m16(D[1], r.VM+2, r.PZ, 0)
    a(f'v_mov_b32_dpp v{P+3}, v{P+1} {DPPQ}')
    st()
    m32(SUM, r.One, P, 1); ldh(M+24, ('o',0,1), 0)
    m32(D[0], r.VX, P, 1); ldh(M+24, ('o',0,1), 1)
    m32(D[1], r.VX+4, P, 1)
    a(f'v_rcp_f32 v{SUM+2}, v{SUM}')
    for i in range(4): a(f'v_mul_f32 v{D[0]+i}, v{D[0]+i}, v{SUM+2}')
    for i in range(2): a(f'v_pk_mul_f32 {vr(D[1]+2*i,2)}, {vr(D[1]+2*i,2)}, {vr(SUM+2,2)} op_sel_hi:[1,0]')
    OP = R+0
    for i in range(4): cvt(OP+i, D[0]+i, D[1]+i)
    a(f'ds_write_b128 v{r.aOw}, {vr(OP,4)}')
    if nowait & 2:
        a('s_barrier'); a(f'ds_read_b128 {vr(R+24,4)}, v{r.aL}')
    a(f'v_mfma_f32_32x32x8_bf16 {vr(A,16)}, {vr(r.Z,2)}, {vr(r.Z,2)}, 0')
    ldh(R+8, ('o',6,0), 0); ldh(R+8, ('o',6,0), 1)
    if nomax and not nowait & 2:
        a(f'v_max_f32 v{SUM}, v{SUM}, v{SUM+2}'); a(f'v_cmp_nge_f32 vcc, {f2u(2.0**60):#x}, v{SUM}')
        a(f's_cbranch_vccnz {Lfb}'); a.label(Lnofb)
    if not nowait & 2: a('s_waitcnt lgkmcnt(2)'); a('s_barrier')
    st()
    if rt is not None:
        lt = a.newlabel('Lc_t'); a('s_waitcnt lgkmcnt(0)'); a(f's_cmp_lg_u32 s{S_STEP}, {rt}'); a(f's_cbranch_scc1 {lt}')
        _ = [a(f's_mov_b32 s{84+k}, s{(S_STAMP+2*k) if k != 10 else 96}') for k in range(12)]
        a.label(lt)
    tr(0)
    O = R+24
    a(f'ds_read_b128 {vr(O,4)}, v{r.aL}'); a(f'ds_read_b128 {vr(O+4,4)}, v{r.aL} offset:1024')
    a(f'v_mfma_f32_32x32x8_bf16 {vr(A+16,16)}, {vr(r.Z,2)}, {vr(r.Z,2)}, 0')
    if not nohk and pkpos == 2: pub_k()
    a(f's_xor_b32 s{S_EM}, s{S_EM}, 1'); a(f's_add_u32 s{S_STEP}, s{S_STEP}, 1'); a(f's_mov_b32 s{S_SPIN}, 0')
    land = {('o',0,0): M+16, ('o',0,1): M+24, ('o',6,0): R+8, ('o',6,1): R+16, ('o',7,0): R, ('o',7,1): M+16}
    def ob(b): return vr(land[b], 8) if b in land else r.blk(b)
    def ad(t, e): c = A+4*t+e; return f'v_add_f32 v{c}, v{c}, v{c+2}'
    def fin(p):
        c = A+8*p
        return [ad(2*p+1, 0), ad(2*p+1, 1), f'v_cvt_pk_bf16_f32 v{c}, v{c}, v{c+4}', f'v_cvt_pk_bf16_f32 v{c+1}, v{c+1}, v{c+5}', f'v_and_or_b32 v{c}, v{c}, -2, s{S_EP}']
    def sto(p): return f'global_store_dwordx2 v{r.aPst}, {vr(A+8*p,2)}, s[{S_CP+2*p}:{S_CP+2*p+1}] {stf}'
    after = {3: [ad(0,0)], 4: [ad(0,1)], 5: fin(0), 6: [sto(0)], 7: [ad(2,0)], 8: [ad(2,1)], 9: fin(1)[:2], 10: fin(1)[2:], 11: [sto(1), ad(4,0), ad(4,1)],
             13: fin(2)[:2], 14: fin(2)[2:], 15: [sto(2), ad(6,0), ad(6,1), f'v_pk_add_f32 {vr(A+28,2)}, {vr(A+28,2)}, {vr(A+30,2)}'] + fin(3)[2:] + [sto(3)]}
    lq = [(R+16, ('o',6,1), 0), (R+16, ('o',6,1), 1), (R, ('o',7,0), 0), (R, ('o',7,0), 1), (M+16, ('o',7,1), 0), (M+16, ('o',7,1), 1)]
    a('s_waitcnt lgkmcnt(1)')
    younger = 0; issued = False; nst = 0
    for t in range(8):
        for k in range(2):
            i = 2*t+k
            smf(A+4*t, O+4*k, ob(('o', t, k)))
            if i == 0: a('s_waitcnt lgkmcnt(0)')
            if i in (1, 2, 3, 4, 5, 7): ldh(*lq.pop(0))
            if i == 12: a('s_waitcnt lgkmcnt(0)')
            if i == pat[w]: p_loads(); issued = True; tr(3)
            for l in after.get(i, []):
                if l.startswith('global_store') and nst == 3 and pat[w] == 15.5: p_loads(); issued = True; tr(3)
                a(l)
                if l.startswith('global_store'):
                    if issued: younger += 1
                    if nst in (0, 3): tr(1 if nst == 0 else 2)
                    nst += 1
    if nocomm: ns[0] = 9
    st()
    chores = []
    chores += [f's_waitcnt vmcnt({4 + (2 if issued else 0) + (1 if (plate and fused and w == hkw[0]) else 0) + (0 if nohk else ((0 if pkpos >= 3 else 1) if vdef else (1 if pkpos == 4 else 2) + (1 if (fused and w in hkw) else 0)))})\n' + '\n'.join(f'v_mov_b32 v{PD+i}, 0' for i in (2, 3, 0, 1))] + [f'v_mov_b32 v{r.KX+i}, v{M+i}' for i in range(16)]
    chores += [f'ds_read_b128 {vr(R+8*e+4*hh,4)}, v{r.aW} offset:{r.place[("q",1,e)][1]+1024*hh}' for e in range(2) for hh in range(2)]
    chores += [f'v_mov_b32 v{A+i}, 0' for i in range(24)]
    chores += [f'v_mov_b32 v{A+30}, v{r.VM}', f'v_mov_b32 v{A+31}, v{r.VM+2}'] + ([f's_add_u32 s{S_GS}, s{S_GS}, 1', f'v_mov_b32 v{r.PZ}, s{S_GS}'] if bx is not None else [])
    nch = len(chores)
    def do_chores(cyc, pad=True):
        n = cyc // 4
        while n > 0 and chores: a(chores.pop(0)); n -= 1
        if pad and not nopad: nops(4*n)
    def then(cyc, need):
        do_chores(cyc); do_chores(4*max(0, need - (nch - len(chores))))
    if not issued:
        if ack1[w] is not None: do_chores(pre1, False); a(f's_waitcnt vmcnt({ack1[w]})')
        else: do_chores(max(d1[w], 4))
        p_loads(); tr(3)
    for k in range(1, nb):
        do_chores(bk if (k > 1 or not issued) else max(4, bk - 40)); p_loads(k); younger += 2
    do_chores(max(min(c1[w], 4*len(chores)), 4), False)
    if eh: then(0, 5)
    if stamps and ns[0]:
        a('s_waitcnt lgkmcnt(0)')
        n = ns[0]
        for k in range(1, n):
            a(f's_sub_u32 s{S_T}, s{S_STAMP+2*k}, s{S_STAMP+2*k-2}'); a(f's_add_u32 s{84+k}, s{84+k}, s{S_T}')
        a(f's_sub_u32 s{S_T}, s{S_STAMP}, s83'); a(f's_mov_b32 s83, s{S_STAMP+2*(n-1)}')
        a(f's_cmp_eq_u32 s{S_STEP}, 1'); a(f's_cselect_b32 s{S_T}, 0, s{S_T}'); a(f's_add_u32 s84, s84, s{S_T}')
    def reduce(k, failto, early=None):
        a(f'v_smfmac_f32_16x16x64_bf16 {vr(PD,4)}, {vr(r.E,4)}, {vr(PL[k],8)}, v{r.idx} abid:1')
        if early: early()
        a(f'v_bitop3_b32 v{t0}, v{PL[k]}, v{PL[k]+2}, s{S_EP} bitop3:0x7e')
        a(f'v_bitop3_b32 v{t1}, v{PL[k]+4}, v{PL[k]+6}, s{S_EP} bitop3:0x7e')
        a(f'v_bitop3_b32 v{t0}, v{t0}, v{t1}, 1 bitop3:0xa8')
        a(f'v_cmp_ne_u32 vcc, 0, v{t0}')
        for ror in (8, 4):
            for i in range(4):
                a(f'v_add_f32_dpp v{PD+i}, v{PD+i}, v{PD+i} row_ror:{ror} row_mask:0xf bank_mask:0xf')
                if ror == 8 and i == 2: a(f's_cbranch_vccnz {failto}')
        a(f's_mov_b64 exec, s[{S_XR}:{S_XR+1}]')
        cvt(PD, PD, PD+1); cvt(PD+1, PD+2, PD+3)
        a(f'v_and_or_b32 v{PD}, v{PD}, -2, s{S_EM}')
        a(f'global_store_dwordx2 v{r.aMst}, {vr(PD,2)}, s[{S_CM}:{S_CM+1}] {stf}')
        a(XA)
    assert not e3
    Lok = a.newlabel('Lc_p1'); Lq = [a.newlabel('Lc_r1') for _ in range(nb)]
    a(f's_waitcnt vmcnt({younger})')
    tr(4)
    hookE = (lambda: e_load(0, ef)) if eh else None
    reduce(0, Lq[1 % nb], hookE)
    a.label(Lok)
    tr(5)
    a(f's_xor_b32 s{S_EP}, s{S_EP}, 1')
    EB = M+20
    def e_back():
        b = S_CME if rep else S_CML
        a(f'global_load_dwordx4 {vr(EB,4)}, v{r.aL}, s[{b}:{b+1}] offset:{1024*frag_of(w,0)-4096} sc1')
    if ee:
        if not eh: then(d2[w] - e0e, 5); e_load(0, ef); then(e0e, 5)
        else: then(d2[w], 5)
        e_back(); tr(6); then(e1g, 9); e_load(1, ef)
    else:
        if ack2[w]: do_chores(pre2, False); a('s_waitcnt vmcnt(0)')
        then(0 if ack2[w] else d2[w], 5); e_load(0, ef); tr(6); then(es, 9); e_load(1, ef)
        if eb is not None: then(eb, 0); e_back()
    if fused and w == hkw[1]: a(f's_sub_u32 s{S_T}, s{S_STEP}, 1'); a(f'v_mov_b32 v{t1}, s{S_T}')
    then(e23[w], 13); e_load(2, ef)
    if not e3in: then(es, 17); e_load(3, ef)
    do_chores(4*len(chores))
    if clk and w == 0:
        lk = a.newlabel('Lclk')
        if clk == 1: a(f's_and_b32 s{S_T}, s{S_STEP}, 7'); a(f's_cmp_lg_u32 s{S_T}, 1')
        else: a(f's_cmp_gt_u32 s{S_STEP}, {clk}')
        a(f's_cbranch_scc1 {lk}')
        a('s_memtime s[60:61]'); a('s_memrealtime s[62:63]'); a('s_waitcnt lgkmcnt(0)')
        for k in range(11, 1, -1): a(f's_mov_b32 s{84+k}, s{84+k-1}') if k != 6 else None
        a('s_sub_u32 s90, s60, s64'); a('s_sub_u32 s85, s62, s65'); a('s_mov_b32 s64, s60'); a('s_mov_b32 s65, s62')
        a.label(lk)
    a(f's_branch {LA}')
    for k in list(range(1, nb)) + [0]:
        a.label(Lq[k])
        p_loads((k-1) % nb); zero(PD, 4)
        if stamps and rt is None and not clk: a(f's_add_u32 s94, s94, 1')
        if k == 0: spin_or_fail()
        a(f's_waitcnt vmcnt({2*(nb-1) if not eh else (3 if nb == 2 else 0)})')
        reduce(k, Lq[(k+1) % nb], hookE)
        a(f's_branch {Lok}')
    if eb is not None or ee:
        Lr0 = Lr[0]; Lr[0] = a.newlabel('Lc_rE0')
        a.label(Lr0)
        if stamps and rt is None and not clk: a('s_add_u32 s92, s92, 63')
        a('s_nop 4'); zero(A, 8)
        a(f's_waitcnt vmcnt({len(vm0) - 1 - vm0.index("x")})')
        for i in range(4): a(f'v_mov_b32 v{M+i}, v{EB+i}')
        for l in chk(0): a(l)
        a(f's_cbranch_vccz {Lc[0]}')
    if comb:
        a.label(Lr[4])
        if stamps and rt is None and not clk: a('s_add_u32 s93, s93, 63')
        for nm in vm0:
            if nm[0] == 'E': e_load(int(nm[1]))
            else: a(f'global_load_dword v{A+24}, v{r.aL}, s[{S_CPR}:{S_CPR+1}] sc1')
        spin_or_fail()
        a('s_waitcnt lgkmcnt(0)'); a('s_nop 4'); zero(A, 24)
        for e in range(2):
            for hh in range(2): ldh(R+8*e, ('q', 1, e), hh)
        a(f's_branch {LA}')
    for j in range(8 if direct else (1 if comb else 5)):
        a.label(Lr[j])
        if stamps and rt is None and not clk: a(f's_add_u32 s{95 if j == 0 else 93}, s{95 if j == 0 else 93}, {1 if j == 0 else 63}')
        n = 0
        seq = vm0 if j == 0 else (issued_at[j] if (j < 4 or direct) else ['E4'])
        for nm in seq[seq.index('E%d' % j):]:
            if nm[0] == 'E': e_load(int(nm[1]))
            else: a(f'global_load_dword v{A+24}, v{r.aL}, s[{S_CPR}:{S_CPR+1}] sc1')
            n += 1
        spin_or_fail()
        if j == 0: a('s_nop 4'); zero(A, 8)
        a(f's_waitcnt vmcnt({n-1})')
        for l in chk(j): a(l)
        if j == 4 and not direct: a(f'ds_write_b128 v{r.aL}, {vr(M+16,4)} offset:{1024*w}')
        a(f's_cbranch_vccnz {Lr[j]}')
        if j == 4 and not direct: a('s_waitcnt lgkmcnt(0)')
        if j == 7: a(f's_cmp_eq_u32 s{S_STEP}, 0')
        a(f's_branch {Lc[j]}')
    if fused and (w == hkw[0] or direct):
        if stamps and rt is None and not clk:
            lb = a.newlabel('Lc_hb2'); a.label(Lhb); a('s_add_u32 s92, s92, 63'); Lhb = lb
        prog_block(a, r, Lhb, Lhk, S_T3, fail)
    if bx is not None and w == 0:
        a.label(Lbs)
        if stamps and rt is None and not clk: a('s_add_u32 s92, s92, 63')
        lb2 = a.newlabel('Lc_bs2'); a.label(lb2)
        for k in range(4):
            a(f'v_cmp_ne_u32 vcc, s{S_GS}, v{r.PG} ; nowaitcheck'); probe(); nops(bg); a(f's_cbranch_vccz {Lbg}')
        spin_or_fail(); a(f's_branch {lb2}')
    if nomax and not nowait & 2:
        a.label(Lfb)
        a(f's_cmp_lg_u32 s{S_FB}, 0'); a(f's_cbranch_scc1 {Lnofb}')
        a(f's_mov_b32 s{S_FB}, 1'); a('s_waitcnt lgkmcnt(0)')
        submax()
        a(f's_branch {Lexp}')
    a.label(Lsp)
    a(f's_cmp_eq_u32 s{S_STEP}, 63'); a(f's_cbranch_scc1 {Ldone}')
    a(f's_mov_b32 s{S_SP}, 63')
    a(f's_waitcnt vmcnt({max(nhk - 1, 0) if direct else (0 if nohk else (3 if vdef else 4) + 1 + (1 if (fused and w in hkw) else 0) + (1 if pkpos == 3 else 0))})'); a(f's_branch {Lspb}')
    a.label(Lk0)
    if started: started(A+26)
    if clk > 1: a('s_memtime s[64:65]'); a('s_memrealtime s[62:63]'); a('s_waitcnt lgkmcnt(0)'); a('s_mov_b32 s65, s62')
    for i in range(4): kv_load(a, r, i, r.KX, S_HB)
    a(f's_branch {Lk0b}')
    a.label(Ldone)
    if not nohk: pub_k()
    for t, sl in vrest: S('v', t, sl)
    if not nohk:
        for t in range(2):
            add0(Av[t]); add1(Av[t]); cvt(A+30+t, Av[t], Av[t]+1)
        pub_v()
    a('s_waitcnt vmcnt(0)'); a('s_barrier')
    if fused and w == hkw[1]:
        a(f'v_mov_b32 v{t0}, 64'); a('s_mov_b64 exec, 1'); a(f'global_store_dword v{r.Z}, v{t0}, s[{S_FW}:{S_FW+1}] sc1'); a(XA)
    a(f's_branch {done}')

def chain_all_waves(a, r, stf, fail, **kw):
    done = a.newlabel('Lc_alldone'); lw = [a.newlabel('Lc_wave') for _ in range(4)]
    a(f'v_mov_b32 v{r.A+29}, 0')
    for w in range(1, 4):
        a(f's_cmp_eq_u32 s{S_W}, {w}'); a(f's_cbranch_scc1 {lw[w]}')
    for w in range(4):
        a.label(lw[w]); chain_wave(a, r, w, stf, fail, done, **kw)
    a.label(done)

def chain_kernel_standalone(half, stamps=False, **kw):
    a = Asm(); a._lbl = 1000 * (half + 1); r = ChainRegs()
    end = a.newlabel('Lc_end')
    a(f's_load_dwordx2 s[{S_WS}:{S_WS+1}], s[0:1], {KA_WS}')
    a(f's_load_dwordx2 s[{S_DBG}:{S_DBG+1}], s[0:1], {KA_DBG}')
    a(f's_getreg_b32 s{S_T}, hwreg(HW_REG_XCC_ID, 0, 4)')
    a('s_waitcnt lgkmcnt(0)')
    a(f's_cmp_lg_u32 s{S_T}, 0'); a(f's_cbranch_scc1 {end}')
    l0 = a.newlabel('Lc')
    a('v_mov_b32 v1, 0'); a('v_mov_b32 v2, 1'); a('v_cmp_eq_u32 vcc, 0, v0')
    a('s_and_saveexec_b64 s[12:13], vcc'); a(f's_cbranch_execz {l0}')
    a(f'global_atomic_add v3, v1, v2, s[{S_DBG}:{S_DBG+1}] sc0 sc1'); a('s_waitcnt vmcnt(0)')
    a('ds_write_b32 v1, v3'); a('s_waitcnt lgkmcnt(0)')
    a.label(l0)
    a('s_mov_b64 exec, s[12:13]'); a('s_barrier')
    a('ds_read_b32 v3, v1'); a('s_waitcnt lgkmcnt(0)'); a(f'v_readfirstlane_b32 s{S_H}, v3'); a('s_barrier')
    a(f's_cmp_ge_u32 s{S_H}, 32'); a(f's_cbranch_scc1 {end}')
    if stamps: a('s_memtime s[98:99]')
    chain_setup(a, r)
    a(f's_mov_b32 s{S_EP}, 0'); a(f's_mov_b32 s{S_EM}, 0'); a(f's_mov_b32 s{S_HALF}, {half}')
    chain_init_comm(a, r, '', True)
    group_arrive(a, r.R, 4); group_wait(a, r.R, 4, 32, end)
    if kw.get('rt') is not None:
        a('s_memrealtime s[60:61]'); a('s_waitcnt lgkmcnt(0)'); a('s_add_u32 s62, s60, 2048'); a('s_and_b32 s62, s62, 0xfffff000'); a('s_add_u32 s62, s62, 4096')
        a('s_mov_b32 s63, 0'); a('s_mov_b32 s99, 0'); a('s_mov_b32 s98, 0')
        a.label('Lcal')
        a('s_memrealtime s[60:61]'); a('s_memtime s[64:65]'); a('s_waitcnt lgkmcnt(0)'); a('s_sub_u32 s61, s60, s62'); a('s_cmp_lt_i32 s61, 0'); a('s_cbranch_scc1 Lcal')
        a('s_cmp_eq_u32 s63, 0'); a('s_cselect_b32 s99, s64, s99'); a('s_sub_u32 s64, s64, s99'); a('s_add_u32 s98, s98, s64')
        a('s_add_u32 s62, s62, 44'); a('s_add_u32 s63, s63, 1'); a('s_cmp_lt_u32 s63, 32'); a('s_cbranch_scc1 Lcal')
        a('s_lshr_b32 s98, s98, 5'); a('s_add_u32 s99, s99, s98'); a('s_mov_b32 s98, s62')
    if stamps: a('s_memtime s[100:101]')
    chain_start(a, r, end, 0)
    chain_all_waves(a, r, '', end, fused=0, stamps=stamps, **kw)
    if stamps:
        a('s_memtime s[60:61]'); a('s_waitcnt lgkmcnt(0)')
        a('s_sub_u32 s96, s100, s98'); a('s_sub_u32 s97, s60, s100')
        for k in range(16): a(f'v_mov_b32 v{k}, s{84+k}')
        a(f's_lshl_b32 s{S_T}, s{S_H}, 2'); a(f's_add_u32 s{S_T}, s{S_T}, s{S_W}'); a(f's_lshl_b32 s{S_T}, s{S_T}, 6')
        a(f's_add_u32 s{S_T}, s{S_T}, {STAMP_OFF}')
        a(f'v_mov_b32 v16, s{S_T}')
        for k in range(4): a(f'global_store_dwordx4 v16, {vr(4*k,4)}, s[{S_WS}:{S_WS+1}] offset:{16*k}')
    a.label(end)
    a('s_waitcnt vmcnt(0)'); a('s_endpgm')
    return a.lines

def autostamp(lines, start, stride, n=9):
    out = []; inb = False; idx = 0; k = 0; names = []; first = True
    for l in lines:
        if l == '; BODY_BEGIN': inb = True; idx = 0; k = 0
        if l == '; BODY_END':
            while k < n:
                out.append(f's_memtime s[{S_STAMP+2*k}:{S_STAMP+2*k+1}]'); k += 1
            inb = False; first = False
        if l.startswith('s_cbranch_vccnz'): l = 's_cbranch_vccnz ' + f'Lnx_{len(out)}\nLnx_{len(out)}:'
        if inb and is_instr(l.split('\n')[0]):
            if k < n and idx == start + k * stride:
                out.append(f's_memtime s[{S_STAMP+2*k}:{S_STAMP+2*k+1}]'); k += 1
            if first: names.append(l.split('\n')[0])
            idx += 1
        out += l.split('\n')
    return out, names

if __name__ == '__main__':
    rep = []
    lines = fix_hazards(chain_kernel_standalone(0, stamps=True), rep)
    for e in check_waits(lines, 'chain'): print(e)
    for x in rep[14:32]: print(x)
    t = assemble_file('', [('chain0_kernel', 256, 256, 163840)], [('chain0_kernel', lines, 512, 256)])
    open('chain_test.s', 'w').write(t)
    print(len(lines))
```

```python
from asmlib import *
from layout import *
import math
import chain2 as C
from work import *

S_DBG = 44; S_SLOT = 36; S_TK = 37; S_SPIN = 38; S_PF = 39; S_FO = 40; S_N = 41; S_X = 42; S_SO = 43; S_SV = 46; S_PD = 47; S_LOC = 50; S_DIE = 91
L, L16 = 1, 2
VZ = 10; VF = 11
SPIN_MAX = 0x60000

class Mega:
    def __init__(self, stamps=False, chain_kw={}):
        self.a = Asm(); self.stamps = stamps; self.chain_kw = chain_kw
        self.end = 'Lm_end'; self.TO = 128 if stamps == 2 else 0
        self.tbsleep = chain_kw.pop('tbsleep', 8); self.wsleep = chain_kw.pop('wsleep', 1); self.wrd = chain_kw.pop('wrd', 0); self.ahead = chain_kw.pop('ahead', 0); self.fake = chain_kw.pop('fake', None); self.ct = chain_kw.pop('ct', 0); self.loc = chain_kw.pop('loc', 0); self.lazy = chain_kw.pop('lazy', 0); C.ROT[0] = chain_kw.pop('rot', 0); C.ROT[1] = (chain_kw.pop('rot2', 1) if chain_kw.get('direct') else 3); C.WF[0] = chain_kw.pop('wf', ''); self.attup = chain_kw.pop('attup', 8); self.die = chain_kw.pop('die', 3); self.palag = chain_kw.pop('palag', 3); self.pasplit = chain_kw.pop('pasplit', 48); self.qdef = chain_kw.pop('qdef', 0); self.one = chain_kw.pop('one', 1); self.rsplit = chain_kw.pop('rsplit', 0); self.tbt = chain_kw.pop('tbt', 62); self.tlb = chain_kw.pop('tlb', 0); self.pfb = chain_kw.pop('pfb', 2); self.kvpos = chain_kw.pop('kvpos', 20); self.perm = chain_kw.pop('perm', 0x65241370)
    def stamp(self, k, hs=None):
        if not self.stamps: return
        a = self.a; l = a.newlabel('Lst')
        if self.stamps == 2:
            kk = self.dmap.get((self.role, k))
            if kk is None: return
            a(f's_cmp_lg_u32 s{S_W}, 0'); a(f's_cbranch_scc1 {l}')
            a('s_memrealtime s[96:97]'); a(f's_load_dwordx2 s[100:101], s[0:1], {KA_DBG}'); a('s_waitcnt lgkmcnt(0)'); a('s_sub_u32 s96, s96, s99')
            a(f's_mov_b32 s98, {4*kk}')
            if hs is not None: a(f's_mul_i32 s97, s{hs}, 12'); a('s_add_u32 s98, s98, s97')
            a('s_mov_b64 exec, 1'); a(f'v_mov_b32 v{self.sv}, s96'); a(f'v_mov_b32 v{self.sv+1}, s98')
            a(f'global_atomic_umax v{self.sv+1}, v{self.sv}, s[100:101] sc1'); a('s_waitcnt vmcnt(0)'); a('s_mov_b64 exec, -1')
            a.label(l); return
        a(f's_cmp_lg_u32 s{S_W}, 0'); a(f's_cbranch_scc1 {l}')
        a('s_memrealtime s[96:97]'); a(f's_lshl_b32 s98, s99, 7'); a(f's_add_u32 s98, s98, {STAMP_OFF + 4*k}'); a('s_waitcnt lgkmcnt(0)')
        if hs is not None: a(f's_lshl_b32 s97, s{hs}, 5'); a('s_add_u32 s98, s98, s97')
        a('s_mov_b64 exec, 1'); a(f'v_writelane_b32 v{self.sv}, s96, 0'); a(f'v_writelane_b32 v{self.sv+1}, s98, 0')
        a(f'v_mov_b32 v{self.sv+1}, s98')
        a(f'global_store_dword v{self.sv+1}, v{self.sv}, s[{S_WS}:{S_WS+1}]'); a('s_waitcnt vmcnt(0)'); a('s_mov_b64 exec, -1')
        a.label(l)
    def mark(self, k, sgpr, val):
        if self.stamps is not True: return
        a = self.a; l = a.newlabel('Lmk')
        a(f's_cmp_lg_u32 s{sgpr}, {val}'); a(f's_cbranch_scc1 {l}')
        a('s_memrealtime s[96:97]'); a('s_waitcnt lgkmcnt(0)'); a(f's_mov_b32 s{70+k}, s96')
        a.label(l)
    def dump_marks(self):
        if self.stamps is not True: return
        a = self.a
        for k in range(16): a(f'v_mov_b32 v{16+k}, s{70+k}')
        a(f's_lshl_b32 s98, s99, 7'); a(f's_add_u32 s98, s98, {STAMP_OFF + 64}'); a('v_mov_b32 v12, s98')
        l = a.newlabel('Lmk'); a(f's_cmp_lg_u32 s{S_W}, 0'); a(f's_cbranch_scc1 {l}')
        for k in range(4): a(f'global_store_dwordx4 v12, {vr(16+4*k,4)}, s[{S_WS}:{S_WS+1}] offset:{16*k}')
        a.label(l)
    def count_wait(self, off, v, fail, st, sp):
        a = self.a; l1 = a.newlabel('Lcw'); l2 = a.newlabel('Lcw')
        a(f's_mov_b32 s{sp}, 0'); a(f'v_mov_b32 v{v+8}, 0')
        a.label(l1)
        for x in range(8): a(f'global_load_dword v{v+x}, v{v+8}, s[{S_DBG}:{S_DBG+1}] offset:{off+16*x} sc1')
        a('s_waitcnt vmcnt(0)')
        a(f'v_add3_u32 v{v+9}, v{v}, v{v+1}, v{v+2}'); a(f'v_add3_u32 v{v+9}, v{v+9}, v{v+3}, v{v+4}'); a(f'v_add3_u32 v{v+9}, v{v+9}, v{v+5}, v{v+6}'); a(f'v_add_u32 v{v+9}, v{v+9}, v{v+7}')
        a(f'v_readfirstlane_b32 s{st}, v{v+9}'); a(f's_cmp_ge_u32 s{st}, 256'); a(f's_cbranch_scc1 {l2}')
        a('s_sleep 4'); a(f's_add_u32 s{sp}, s{sp}, 1'); a(f's_cmp_lt_u32 s{sp}, {SPIN_MAX}'); a(f's_cbranch_scc1 {l1}')
        a(f's_branch {fail}')
        a.label(l2)
    def code_touch(self, v=VZ, sp=48, sh=6):
        if not self.ct: return
        a = self.a
        a(f's_getpc_b64 s[{sp}:{sp+1}]'); a(f's_lshl_b32 s{S_T}, s{S_W}, {6+sh}'); a(f'v_lshl_add_u32 v{v}, v{L}, {sh}, s{S_T}')
        a(f'global_load_dword v{v+1}, v{v}, s[{sp}:{sp+1}]')
    def report(self, v=VZ, st=S_T):
        a = self.a; l = a.newlabel('Lrp')
        a(f's_cmp_lg_u32 s{S_W}, 1'); a(f's_cbranch_scc1 {l}')
        a(f's_lshl_b32 s{st}, s{S_DIE}, 4'); a(f'v_mov_b32 v{v}, s{st}'); a(f'v_mov_b32 v{v+1}, 1')
        a('s_mov_b64 exec, 1'); a(f'global_atomic_add v{v}, v{v+1}, s[{S_DBG}:{S_DBG+1}] offset:132 sc1'); a('s_mov_b64 exec, -1')
        a.label(l)
    def local_check(self):
        if not self.loc: return
        a = self.a
        x = [i for i in range(8) if (self.perm >> (4*i)) & 7 == 7][0]
        self.count_wait(self.TO, 12, self.end, S_T, S_SPIN)
        a(f'v_readfirstlane_b32 s{S_T}, v{12+x}'); a(f's_cmp_ge_u32 s{S_T}, 32'); a(f's_cselect_b32 s{S_LOC}, {0 if (self.chain_kw.get("force_slow") or not self.loc) else 1}, 0')
    def dual(self, emit):
        if not self.loc: emit('sc1'); return
        a = self.a; l1 = a.newlabel('Ld'); l2 = a.newlabel('Ld')
        a(f's_cmp_eq_u32 s{S_LOC}, 1'); a(f's_cbranch_scc1 {l1}')
        emit('sc1'); a(f's_branch {l2}')
        a.label(l1); emit(''); a.label(l2)
    def flags_ready(self): self.count_wait(132, 12, self.end, S_T, S_SPIN)
    def flag_off(self, base, idx_sgpr, sh=2):
        self.a(f's_lshl_b32 s{S_FO}, s{idx_sgpr}, {sh}'); self.a(f's_add_u32 s{S_FO}, s{S_FO}, {base}')
    def flag_issue(self, n):
        a = self.a
        a(f'v_min_u32 v{VZ}, {n-1}, v{L}'); a(f'v_lshl_add_u32 v{VZ}, v{VZ}, 8, s{S_FO}'); a(f'global_load_dword v{VF}, v{VZ}, s[{S_WS}:{S_WS+1}] sc1')
    def wait(self, n, sleep=None, mask=None, sh=8, thr=None, keep=None, lazy=None, extra=None):
        a = self.a; l1 = a.newlabel('Lw'); l2 = a.newlabel('Lw')
        a(f's_mov_b32 s{S_SPIN}, 0')
        a(f'v_min_u32 v{VZ}, {n-1}, v{L}'); a(f'v_lshl_add_u32 v{VZ}, v{VZ}, {sh}, s{S_FO}')
        if extra is not None:
            a(f's_lshl_b32 s{S_X}, s{extra}, {sh}'); a(f's_add_u32 s{S_X}, s{S_X}, s{S_FO}'); a(f's_add_u32 s{S_X}, s{S_X}, 16'); a(f'v_writelane_b32 v{VZ}, s{S_X}, 63')
        a.label(l1)
        a(f'global_load_dword v{VF}, v{VZ}, s[{S_WS}:{S_WS+1}] sc1'); a('s_waitcnt vmcnt(0)')
        a(f'v_cmp_eq_u32 vcc, 0, v{VF}' if thr is None else f'v_cmp_gt_u32 vcc, {thr}, v{VF}')
        if keep: a('s_cmp_eq_u64 vcc, 0'); a(f's_cselect_b32 s{keep}, 1, 0')
        if mask is None: a(f's_cbranch_vccz {l2}')
        else: a(f's_and_b64 vcc, vcc, s[{mask}:{mask+1}]'); a(f's_cbranch_scc0 {l2}')
        a(f's_sleep {sleep or self.wsleep}')
        if lazy is not None and self.lazy:
            l3 = a.newlabel('Lw'); a(f's_cmp_ge_u32 s{lazy}, 60'); a(f's_cbranch_scc1 {l3}'); a(f's_sleep {self.lazy}'); a.label(l3)
        a(f's_add_u32 s{S_SPIN}, s{S_SPIN}, 1'); a(f's_cmp_lt_u32 s{S_SPIN}, {SPIN_MAX}'); a(f's_cbranch_scc1 {l1}')
        a(f's_branch {self.end}')
        a.label(l2)
    def set_word(self, base, line_sgpr, word_sgpr, s1=2, s2=8):
        a = self.a
        a(f's_lshl_b32 s{S_SO}, s{line_sgpr}, {s1}'); a(f's_lshl_b32 s{S_X}, s{word_sgpr}, {s2}'); a(f's_add_u32 s{S_SO}, s{S_SO}, s{S_X}'); a(f's_add_u32 s{S_SO}, s{S_SO}, {base}')
    def wsignal(self, val=None, loc=False):
        a = self.a
        a(f'v_mov_b32 v{VZ}, s{S_SO}'); a(f'v_mov_b32 v{VF}, {"s%d" % val if val else "1"}')
        st = lambda f: a(f'global_store_dword v{VZ}, v{VF}, s[{S_WS}:{S_WS+1}] {f}')
        a('s_mov_b64 exec, 1')
        if loc: self.dual(st)
        else: st('sc1')
        a('s_mov_b64 exec, -1')
    def signal_wg(self, loc=False):
        a = self.a; l = a.newlabel('Ls')
        a('s_waitcnt vmcnt(0)'); a('s_barrier'); a(f's_cmp_lg_u32 s{S_W}, 0'); a(f's_cbranch_scc1 {l}')
        self.wsignal(loc=loc); a.label(l)

    def stream(self, ngr, xsrc, inflag, nin, tiles, epilogue, nst, outflag, store, mk=None, pre=None):
        a = self.a; xa = 9; XR = 12
        lp = a.newlabel('Lg_loop'); have = a.newlabel('Lg_have'); go = a.newlabel('Lg_go'); fetch = a.newlabel('Lg_fetch'); done = a.newlabel('Lg_done')
        a(f's_lshl_b32 s{S_XO}, s{S_B}, 15'); a(f's_add_u32 s{S_XO}, s{S_XO}, {xsrc}'); a(f's_mov_b32 s{S_BUF}, {128*1024}')
        got = a.newlabel('Lg_got')
        a(f's_mov_b32 s{S_PD}, 0')
        if self.one:
            l = a.newlabel('Lg_o'); a(f's_cmp_lg_u32 s{S_W}, 0'); a(f's_cbranch_scc1 {l}')
            self.flag_off(inflag, S_B); self.wait(nin); a.label(l); a('s_barrier'); a(f's_branch {got}')
        else: a('s_barrier')
        a.label(fetch)
        a(f's_mov_b32 s{S_PD}, 0')
        if inflag is not None:
            self.flag_off(inflag, S_B); self.wait(nin)
        a.label(got)
        if mk: self.mark(mk[0], S_B, mk[1])
        dma_x(a, L16, S_XO, S_BUF, 'sc1')
        a('s_waitcnt vmcnt(0)')
        a.label(go)
        a('s_barrier')
        if mk: self.mark(mk[0]+1, S_B, mk[1])
        if pre: pre()
        a(f'v_add_u32 v{xa}, s{S_BUF}, v{L16}')
        a(f's_add_u32 s{S_TK}, s{S_B}, {ngr}'); a(f's_xor_b32 s{S_BUF}, s{S_BUF}, {128*1024}'); a(f's_add_u32 s{S_XO}, s{S_XO}, {ngr*32768}')
        if inflag is not None:
            a(f's_min_u32 s{S_T}, s{S_TK}, 63'); self.flag_off(inflag, S_T); self.flag_issue(nin)
        def pref():
            np_ = a.newlabel('Lg_np')
            a('s_waitcnt vmcnt(0)')
            a(f'v_cmp_eq_u32 s[{S_K0}:{S_K0+1}], 0, v{VF}')
            a(f's_cmp_eq_u32 s{S_PD}, 0'); a(f's_cbranch_scc1 {np_}')
            self.wsignal(S_SV if store else None)
            a.label(np_)
        def pref2():
            sk = a.newlabel('Lg_sk')
            a(f's_mov_b32 s{S_PF}, 0')
            a(f's_cmp_ge_u32 s{S_TK}, 64'); a(f's_cbranch_scc1 {sk}')
            a(f's_cmp_lg_u64 s[{S_K0}:{S_K0+1}], 0'); a(f's_cbranch_scc1 {sk}')
            dma_x(a, L16, S_XO, S_BUF, 'sc1'); a(f's_mov_b32 s{S_PF}, 1')
            a.label(sk)
        gemm_core(a, xa, XR, tiles, {30: pref})
        epilogue(pref2)
        if mk: self.mark(mk[0]+2, S_B, mk[1])
        outflag()
        add64(a, S_OUT, S_OUT, ngr*32768)
        a(f's_mov_b32 s{S_B}, s{S_TK}')
        a(f's_cmp_eq_u32 s{S_PF}, 0'); a(f's_cbranch_scc1 {have}')
        first = a.newlabel('Lg_first')
        a(f's_cmp_lt_u32 s{S_B}, {2*ngr}'); a(f's_cbranch_scc1 {first}')
        a(f's_mov_b32 s{S_PD}, 1'); a(f's_waitcnt vmcnt({nst})'); a(f's_branch {go}')
        a.label(first)
        a('s_waitcnt vmcnt(0)'); self.wsignal(S_SV if store else None)
        if mk: self.mark(mk[0]+3, S_B, mk[1]+ngr)
        a(f's_mov_b32 s{S_PD}, 0'); a(f's_branch {go}')
        a.label(have)
        a('s_waitcnt vmcnt(0)'); self.wsignal(S_SV if store else None)
        if mk: self.mark(mk[0]+3, S_B, mk[1]+ngr)
        a(f's_cmp_lt_u32 s{S_B}, 64'); a(f's_cbranch_scc1 {fetch}')
        a('s_barrier')

    def proj_weights(self, isB, share=None, early=None, sel=(0, 1, 2), first=None):
        a = self.a
        a(f's_lshl_b32 s{S_OFF}, s{S_A}, 8')
        if isB: mats = [(KA_WK, 4*MB, 0, 'a', 128), (KA_WV, 4*MB, 0, 'v', 128), (KA_WQ, 4*MB, 0, 'a', 0)]; stride = 8192
        else: mats = [(KA_WQKV, 1536*1024, 1024, 'a', 128), (KA_WQKV, 1536*1024, 2048, 'v', 128), (KA_WQKV, 1536*1024, 0, 'a', 0)]; stride = 3072
        load_wslices(a, [mats[i] for i in sel], stride, L, 3, 4, 5, share, early, first)
    def proj_run(self, half, isB, ngr, nowait=False, mode='kvq', lim='64'):
        a = self.a; H = W.H[half]
        if not nowait: self.code_touch()
        t0, t1, vq, vk, vv = 3, 4, 6, 7, 8; ACC = 28
        ro = (HB_Q, HB_K, HB_V) if isB else (0, H.KA - H.QA, H.VA - H.QA)
        a(f's_lshl_b32 s{S_T}, s{S_W}, 11')
        a(f's_add_u32 s{S_T2}, s{S_T}, {ro[0]}'); a(f'v_add_u32 v{vq}, s{S_T2}, v{L16}')
        a(f's_add_u32 s{S_T2}, s{S_T}, {ro[1]}'); a(f'v_add_u32 v{vk}, s{S_T2}, v{L16}')
        pi_of(a, t0, L, t1); vpos16(a, vv, t0, L, t1)
        a(f's_add_u32 s{S_T2}, s{S_T}, {ro[2]}'); a(f'v_add_u32 v{vv}, s{S_T2}, v{vv}')
        a(f's_lshl_b32 s{S_T}, s{S_A}, {21 if isB else 13}'); a(f's_lshl_b32 s{S_T2}, s{S_B}, 15'); a(f's_add_u32 s{S_T}, s{S_T}, s{S_T2}')
        a(f's_add_u32 s{S_T}, s{S_T}, {H.HB if isB else H.QA}'); add64(a, S_OUT, S_WS, f's{S_T}')
        a(f's_mov_b32 s{S_M}, {f2u(0.25*math.log2(math.e)):#x}')
        xa = 9; XR = 12; inflag = FL(half, 'XNB' if isB else 'XNA'); mk = (0, 0 if isB else 63) if half == 1 else ((8, 0) if isB else None)
        go = a.newlabel('Lp_go'); fetch = a.newlabel('Lp_fetch'); have = a.newlabel('Lp_have')
        a(f's_lshl_b32 s{S_XO}, s{S_B}, 15'); a(f's_add_u32 s{S_XO}, s{S_XO}, {H.XNB if isB else H.XNA}'); a(f's_mov_b32 s{S_BUF}, {64*1024 if (isB and self.qdef) else 128*1024}')
        a(f's_mov_b32 s{S_PD}, 0')
        a('s_barrier')
        if nowait: a(f's_branch {go}')
        got = a.newlabel('Lp_got')
        if isB and self.one:
            l = a.newlabel('Lp_o'); a(f's_cmp_lg_u32 s{S_W}, 0'); a(f's_cbranch_scc1 {l}')
            self.flag_off(inflag, S_B); self.wait(16); a.label(l); a('s_barrier'); a(f's_branch {got}')
        a.label(fetch)
        self.flag_off(inflag, S_B); self.wait(16 if isB else 8, lazy=None if isB else S_B)
        a.label(got)
        if mk: self.mark(mk[0], S_B, mk[1])
        dma_x(a, L16, S_XO, S_BUF, 'sc1')
        a('s_waitcnt vmcnt(0)')
        a.label(go)
        a('s_barrier')
        if mk: self.mark(mk[0]+1, S_B, mk[1])
        a(f'v_add_u32 v{xa}, s{S_BUF}, v{L16}')
        a(f's_add_u32 s{S_TK}, s{S_B}, {ngr}'); a(f's_xor_b32 s{S_BUF}, s{S_BUF}, {128*1024}'); a(f's_and_b32 s{S_BUF}, s{S_BUF}, {128*1024}'); a(f's_add_u32 s{S_XO}, s{S_XO}, {ngr*32768}')
        if not nowait: a(f's_min_u32 s{S_T}, s{S_TK}, 63'); self.flag_off(inflag, S_T); self.flag_issue(16 if isB else 8)
        def word():
            if isB:
                a(f's_and_b32 s{S_T}, s{S_B}, 1'); a(f's_lshl_b32 s{S_T}, s{S_T}, 2'); a(f's_add_u32 s{S_T}, s{S_T}, s{S_W}')
                self.set_word(FL(half, "HEAD"), S_A, S_T, 8, 5)
            else:
                a(f's_lshl_b32 s{S_T}, s{S_A}, 2'); a(f's_add_u32 s{S_T}, s{S_T}, s{S_W}'); self.set_word(FL(half, "QKVA"), S_T, S_B, 11, 5)
        def late():
            l = a.newlabel('Lp_q'); a(f's_cmp_eq_u32 s{S_PD}, 0'); a(f's_cbranch_scc1 {l}')
            self.wsignal(); a(f's_mov_b32 s{S_PD}, 0'); a.label(l)
        def pref():
            sk = a.newlabel('Lp_sk')
            a('s_waitcnt vmcnt(0)'); a(f'v_cmp_eq_u32 vcc, 0, v{VF}')
            if not isB: late()
            a(f's_mov_b32 s{S_PF}, 0')
            a(f's_cmp_ge_u32 s{S_TK}, {lim}'); a(f's_cbranch_scc1 {sk}')
            if not nowait: a(f's_cbranch_vccnz {sk}')
            dma_x(a, L16, S_XO, S_BUF, 'sc1'); a(f's_mov_b32 s{S_PF}, 1')
            a.label(sk)
        def half_store(acc, ad, j):
            for i in range(4): a(f'v_cvt_pk_bf16_f32 v{acc+8*j+i}, v{acc+8*j+2*i}, v{acc+8*j+2*i+1}')
            a(f'global_store_dwordx4 v{ad}, {vr(acc+8*j,4)}, s[{S_OUT}:{S_OUT+1}] offset:{1024*j} sc1')
        def kvsig():
            if mk: self.mark(mk[0]+2, S_B, mk[1])
            word(); a('s_waitcnt vmcnt(0)'); self.wsignal(S_TK if isB else None)
            if not isB: a('s_mov_b64 exec, 1'); a(f'global_store_dword v{VZ}, v{VF}, s[{S_WS}:{S_WS+1}] offset:8 sc1'); a('s_mov_b64 exec, -1')
            if mk: self.mark(mk[0]+3, S_B, mk[1])
        kvs = [lambda: half_store(ACC+16, vk, 0), lambda: half_store(ACC+16, vk, 1), lambda: half_store(ACC+32, vv, 0), lambda: half_store(ACC+32, vv, 1)]
        if len(mode) > 1: gemm_core(a, xa, XR, [(ACC+16, 'a', 128, False), (ACC+32, 'v', 128, True)], {18: pref})
        tail = a.newlabel('Lp_tail')
        if isB and self.qdef:
            l = a.newlabel('Lp_n'); a(f's_cmp_ge_u32 s{S_B}, {ngr}'); a(f's_cbranch_scc1 {l}')
            for f in kvs: f()
            kvsig(); a(f's_branch {tail}')
            a.label(l)
        if mode == 'kvq': gemm_core(a, xa, XR, [(ACC, 'a', 0, False)], {0: kvs[0], 1: kvs[1], 2: kvs[2], 3: kvs[3], self.kvpos: kvsig})
        if len(mode) == 1:
            def p0():
                sk = a.newlabel('Lp_sk'); a(f's_mov_b32 s{S_PF}, 0'); a(f's_cmp_ge_u32 s{S_TK}, {lim}'); a(f's_cbranch_scc1 {sk}')
                dma_x(a, L16, S_XO, S_BUF, 'sc1'); a(f's_mov_b32 s{S_PF}, 1'); a.label(sk)
            gemm_core(a, xa, XR, [{'q': (ACC, 'a', 0, False), 'k': (ACC, 'a', 128, False), 'v': (ACC, 'v', 128, True)}[mode]], {0: p0, 30: lambda: (a('s_waitcnt vmcnt(0)'), late())})
        if mode == 'kv':
            for f in kvs: f()
        elif mode in 'kv': pack_store(a, ACC, vk if mode == 'k' else vv, S_OUT, 'sc1')
        else: pack_store(a, ACC, vq, S_OUT, 'sc1', scale=None if isB else S_M)
        if isB and self.qdef:
            a(f's_cmp_ge_u32 s{S_B}, {2*ngr}'); a(f's_cbranch_scc1 {tail}')
            a(f'v_add_u32 v{xa}, {64*1024}, v{L16}'); a(f's_sub_u32 s{S_IN}, s{S_OUT}, {ngr*32768}'); a(f's_subb_u32 s{S_IN+1}, s{S_OUT+1}, 0')
            gemm_core(a, xa, XR, [(ACC, 'a', 0, False)]); pack_store(a, ACC, vq, S_IN, 'sc1')
        a.label(tail)
        if not isB:
            if mode != 'kvq': word()
            if mode == 'v': a(f's_add_u32 s{S_SO}, s{S_SO}, 8')
            if 'q' in mode: a(f's_add_u32 s{S_SO}, s{S_SO}, 16')
        add64(a, S_OUT, S_OUT, ngr*32768)
        a(f's_mov_b32 s{S_B}, s{S_TK}'); a(f's_mov_b32 s{S_PD}, 1')
        if mode == 'kv': a('s_waitcnt vmcnt(4)')
        a(f's_cmp_lg_u32 s{S_PF}, 0'); a(f's_cbranch_scc1 {go}')
        if not isB: a('s_waitcnt vmcnt(0)'); late()
        a(f's_cmp_lt_u32 s{S_B}, {lim}'); a(f's_cbranch_scc1 {fetch}')
        if isB:
            a('s_waitcnt vmcnt(0)'); a(f's_add_u32 s{S_SV}, s{S_B}, 4'); self.wsignal(S_SV)
        a('s_barrier')
    def woa_run(self, half, ngr):
        a = self.a; H = W.H[half]
        self.code_touch()
        t0, t1, sm, vo, vx, vs = 3, 4, 5, 6, 7, 8; ACC = 28; X = 44; G = 52; SP = 68; mu = 70
        a(f's_lshl_b32 s{S_T}, s{S_W}, 11'); a(f's_lshl_b32 s{S_T2}, s{S_A}, 13'); a(f's_add_u32 s{S_T}, s{S_T}, s{S_T2}'); a(f'v_add_u32 v{vo}, s{S_T}, v{L16}')
        if half == 0:
            a(f's_load_dwordx2 s[{S_P}:{S_P+1}], s[0:1], {KA_X}')
            a(f'v_and_b32 v{t0}, 31, v{L}'); a(f'v_lshlrev_b32 v{vx}, 10, v{t0}'); a(f'v_lshrrev_b32 v{t0}, 5, v{L}'); a(f'v_lshl_add_u32 v{vx}, v{t0}, 4, v{vx}')
            a(f's_lshr_b32 s{S_T}, s{S_T}, 5'); a(f'v_add_u32 v{vx}, s{S_T}, v{vx}'); a('s_waitcnt lgkmcnt(0)')
        else:
            add64(a, S_P, S_WS, W.H[0].X2); a(f'v_mov_b32 v{vx}, v{vo}')
        a(f's_lshl_b32 s{S_T2}, s{S_B}, 15'); add64(a, S_P, S_P, f's{S_T2}')
        a(f's_add_u32 s{S_T}, s{S_T2}, {H.X1}'); add64(a, S_OUT, S_WS, f's{S_T}')
        a(f'v_and_b32 v{t0}, 31, v{L}'); a(f'v_lshlrev_b32 v{vs}, 3, v{t0}'); a(f'v_lshrrev_b32 v{t0}, 5, v{L}'); a(f'v_lshl_add_u32 v{vs}, v{t0}, 11, v{vs}')
        a(f's_mov_b32 s{S_M}, 0xffff0000')
        def pre():
            for j in range(2): a(f'global_load_dwordx4 {vr(X+4*j,4)}, v{vx}, s[{S_P}:{S_P+1}] offset:{(32 if half == 0 else 1024)*j} {"" if half == 0 else "sc1"}')
            add64(a, S_P, S_P, ngr*32768)
            a(f's_lshl_b32 s{S_T}, s{S_B}, 12'); a(f's_add_u32 s{S_T}, s{S_T}, {W.ST + half*262144}'); add64(a, S_IN, S_WS, f's{S_T}')
            if self.loc:
                l = a.newlabel('Lwt'); a(f's_cmp_lg_u32 s{S_LOC}, 1'); a(f's_cbranch_scc1 {l}')
                a(f'v_lshlrev_b32 v{t0}, 6, v{L}'); a(f'global_load_dword v{t1}, v{t0}, s[{S_IN}:{S_IN+1}] sc1'); a.label(l)
        def rbf(r): a(f'v_cvt_pk_bf16_f32 v{r}, v{r}, v{r}'); a(f'v_and_b32 v{r}, s{S_M}, v{r}')
        def halves(regs):
            for x, t in zip(regs, (t0, t1)): a(f'v_mov_b32 v{t}, v{x}')
            for x, t in zip(regs, (t0, t1)): a(f'v_permlane32_swap_b32 v{x}, v{t}')
            for x, t in zip(regs, (t0, t1)): a(f'v_add_f32 v{x}, v{x}, v{t}')
        def epi(pref2):
            a(f's_lshl_b32 s{S_T}, s{S_A}, 2'); a(f's_add_u32 s{S_T}, s{S_T}, s{S_W}'); a(f's_lshl_b32 s{S_T2}, s{S_T}, 8')
            self.set_word(FL(half, "XNB"), S_B, S_T)
            for d in range(8):
                e = ACC+2*d
                a(f'v_cvt_pk_bf16_f32 v{t1}, v{e}, v{e+1}'); a(f'v_lshlrev_b32 v{e}, 16, v{X+d}'); a(f'v_and_b32 v{e+1}, s{S_M}, v{X+d}')
                a(f'v_lshlrev_b32 v{t0}, 16, v{t1}'); a(f'v_and_b32 v{t1}, s{S_M}, v{t1}')
                a(f'v_add_f32 v{e}, v{e}, v{t0}'); a(f'v_add_f32 v{e+1}, v{e+1}, v{t1}')
                a(f'v_cvt_pk_bf16_f32 v{X+d}, v{e}, v{e+1}')
                a(f'v_lshlrev_b32 v{e}, 16, v{X+d}'); a(f'v_and_b32 v{e+1}, s{S_M}, v{X+d}')
                if d == 0: a(f'v_add_f32 v{SP}, v{e}, v{e+1}'); a(f'v_mul_f32 v{SP+1}, v{e}, v{e}')
                else: a(f'v_add_f32 v{SP}, v{SP}, v{e}'); a(f'v_add_f32 v{SP}, v{SP}, v{e+1}'); a(f'v_fmac_f32 v{SP+1}, v{e}, v{e}')
                a(f'v_fmac_f32 v{SP+1}, v{e+1}, v{e+1}')
            halves((SP, SP+1))
            a(f'v_or_b32 v{SP+1}, 1, v{SP+1}'); a(f'v_add_u32 v{t0}, s{S_T2}, v{vs}')
            a('s_mov_b32 exec_hi, 0'); self.dual(lambda f: a(f'global_store_dwordx2 v{t0}, {vr(SP,2)}, s[{S_IN}:{S_IN+1}] {f}')); a('s_mov_b32 exec_hi, -1')
            a('s_waitcnt vmcnt(0)')
            l1 = a.newlabel('Lwr'); l2 = a.newlabel('Lwr')
            a(f's_mov_b32 s{S_SPIN}, 0')
            a.label(l1)
            for p in range(8): a(f'global_load_dwordx2 {vr(G+2*p,2)}, v{vs}, s[{S_IN}:{S_IN+1}] offset:{256*p} sc1')
            a('s_waitcnt vmcnt(0)')
            a(f'v_bitop3_b32 v{t0}, v{G+1}, v{G+3}, v{G+5} bitop3:0x80'); a(f'v_bitop3_b32 v{t1}, v{G+7}, v{G+9}, v{G+11} bitop3:0x80')
            a(f'v_bitop3_b32 v{t0}, v{t0}, v{G+13}, v{G+15} bitop3:0x80'); a(f'v_bitop3_b32 v{t0}, v{t0}, v{t1}, 1 bitop3:0x80')
            a(f'v_cmp_eq_u32 vcc, 0, v{t0}'); a(f's_cbranch_vccz {l2}')
            a(f's_add_u32 s{S_SPIN}, s{S_SPIN}, 1'); a(f's_cmp_lt_u32 s{S_SPIN}, {SPIN_MAX}'); a(f's_cbranch_scc1 {l1}')
            a(f's_branch {self.end}')
            a.label(l2)
            pref2()
            for j in range(2): a(f'global_store_dwordx4 v{vo}, {vr(X+4*j,4)}, s[{S_OUT}:{S_OUT+1}] offset:{1024*j} sc1')
            for st in (8, 4, 2):
                for i in range(0, st, 2): a(f'v_pk_add_f32 {vr(G+i,2)}, {vr(G+i,2)}, {vr(G+i+st,2)}')
            halves((G, G+1))
            a(f'v_mul_f32 v{mu}, {f2u(1/512):#x}, v{G}'); a(f'v_mul_f32 v{sm}, {f2u(1/512):#x}, v{G+1}')
            a(f'v_fma_f32 v{sm}, -v{mu}, v{mu}, v{sm}'); a(f'v_max_f32 v{sm}, 0, v{sm}')
            rbf(sm); a(f'v_add_f32 v{sm}, {f2u(1e-5):#x}, v{sm}'); rbf(sm)
            a(f'v_sqrt_f32 v{sm}, v{sm}'); rbf(sm); a(f'v_rcp_f32 v{sm}, v{sm}'); rbf(mu)
            add64(a, S_IN, S_OUT, H.XNB - H.X1) if H.XNB > H.X1 else (a(f's_sub_u32 s{S_IN}, s{S_OUT}, {H.X1 - H.XNB}'), a(f's_subb_u32 s{S_IN+1}, s{S_OUT+1}, 0'))
            for d in range(8):
                e = ACC+2*d
                a(f'v_sub_f32 v{t0}, v{e}, v{mu}'); a(f'v_sub_f32 v{t1}, v{e+1}, v{mu}'); a(f'v_cvt_pk_bf16_f32 v{t1}, v{t0}, v{t1}')
                a(f'v_lshlrev_b32 v{t0}, 16, v{t1}'); a(f'v_and_b32 v{t1}, s{S_M}, v{t1}')
                a(f'v_mul_f32 v{t0}, v{t0}, v{sm}'); a(f'v_mul_f32 v{t1}, v{t1}, v{sm}'); a(f'v_cvt_pk_bf16_f32 v{G+d}, v{t0}, v{t1}')
                if d % 4 == 3: a(f'global_store_dwordx4 v{vo}, {vr(G+d-3,4)}, s[{S_IN}:{S_IN+1}] offset:{1024*(d//4)} sc1')
        self.stream(ngr, H.OA, FL(half, 'OA'), 32, [(ACC, 'v', 128, False)], epi, 4, lambda: None, False, mk=(0, 0) if half == 1 else (8, 0), pre=pre)
    def rb_run(self, half, ngr, helper=False):
        a = self.a; H = W.H[half]
        mk = (4, 63) if half == 0 else None
        def task(nl):
            def ready():
                l = a.newlabel('Lr_o')
                if self.one: a(f's_cmp_lg_u32 s{S_W}, 0'); a(f's_cbranch_scc1 {l}')
                self.flag_off(FL(half, 'PT'), S_A); self.wait(32, lazy=S_A)
                if self.one: a.label(l); a('s_barrier')
                if mk: self.mark(mk[0], S_A, mk[1])
            if half == 0: rb_body(a, 8, H.X1, False, H.PT, 32768, 8*32768, H.X2, False, W.H[1].XNA, 'sc1', 'sc1', ready, nl=nl)
            else: rb_body(a, 8, H.X1, False, H.PT, 32768, 8*32768, KA_OUT, True, None, 'sc1', 'sc1', ready, nl=nl)
            if half == 0:
                if mk: self.mark(mk[0]+2, S_A, mk[1])
                l = a.newlabel('Ls')
                a('s_waitcnt vmcnt(0)'); a('s_barrier'); a(f's_cmp_ge_u32 s{S_W}, {nl}'); a(f's_cbranch_scc1 {l}')
                a(f's_mul_i32 s{S_T}, s{S_B}, {nl}'); a(f's_add_u32 s{S_T}, s{S_T}, s{S_W}'); self.set_word(FL(1, 'XNA'), S_A, S_T); self.wsignal()
                a.label(l)
                if mk: self.mark(mk[0]+3, S_A, mk[1])
        if helper:
            a(f's_mov_b32 s{S_A}, 63'); a(f's_and_b32 s{S_B}, s{S_SLOT}, 3'); a(f's_lshl_b32 s{S_B}, s{S_B}, 1'); a(f's_add_u32 s{S_B}, s{S_B}, 1'); task(1); return
        lp = a.newlabel('Lr_loop'); done = a.newlabel('Lr_done'); a.label(lp)
        task(2)
        a(f's_add_u32 s{S_A}, s{S_A}, {ngr}'); a(f's_cmp_lt_u32 s{S_A}, {63 if self.rsplit else 64}'); a(f's_cbranch_scc1 {lp}')
        if not self.rsplit: return
        a(f's_cmp_gt_u32 s{S_A}, 64'); a(f's_cbranch_scc1 {done}')
        a(f's_lshl_b32 s{S_B}, s{S_B}, 1'); a(f's_sub_u32 s{S_T}, s{S_A}, 63'); a(f's_add_u32 s{S_B}, s{S_B}, s{S_T}'); a(f's_mov_b32 s{S_A}, 63')
        task(1)
        a.label(done)

    def att_run(self, half, npg):
        a = self.a; H = W.H[half]
        self.code_touch()
        t0, t1, t2, ak, av, idx, lw = range(3, 10); mx = 204
        Q = 12; QN = 16; K0 = 20; Cc = 24; O = 40; D = [56, 72, 88]; KF = 104; MG = 168
        pi_of(a, t0, L, t1)
        a(f'v_and_b32 v{t1}, 32, v{L}'); a(f'v_add_u32 v{ak}, v{t0}, v{t1}'); a(f'v_lshlrev_b32 v{ak}, 4, v{ak}')
        a(f'v_and_b32 v{t0}, 15, v{t0}'); a(f's_and_b32 s{S_T}, s{S_A}, 1'); a(f's_lshl_b32 s{S_T}, s{S_T}, 4'); a(f'v_add_u32 v{t0}, s{S_T}, v{t0}')
        vpos16(a, av, t0, L, t1)
        a(f'v_mov_b32 v{idx}, 0xdddd')
        a(f's_mul_i32 s{S_T}, s{S_W}, 3072'); a(f'v_add_u32 v{lw}, s{S_T}, v{L16}')
        a(f's_lshr_b32 s{S_T}, s{S_A}, 1'); self.flag_off(FL(half, 'QKVA'), S_T, 11)
        KM_, QM_ = 52, 54
        fa = 205
        a(f'v_lshl_add_u32 v{fa}, v{L}, 5, s{S_FO}')
        a(f's_mov_b64 s[{KM_}:{KM_+1}], -1'); a(f's_mov_b64 s[{QM_}:{QM_+1}], -1')
        def need(km, qm):
            l1 = a.newlabel('La_n'); l2 = a.newlabel('La_n'); l3 = a.newlabel('La_n')
            a(f's_mov_b32 s{S_SPIN}, 0')
            a.label(l3)
            tests = [(m, k) for m, k in ((km, KM_), (qm, QM_)) if m is not None]
            for i, (m, k) in enumerate(tests):
                a(f's_and_b64 vcc, s[{m}:{m+1}], s[{k}:{k+1}]'); a(f's_cbranch_scc0 {l2}' if i == len(tests)-1 else f's_cbranch_scc1 {l1}')
            a.label(l1)
            ls = a.newlabel('La_n'); a(f's_cmp_eq_u32 s{S_SPIN}, 0'); a(f's_cbranch_scc1 {ls}'); a(f's_sleep {self.wsleep}'); a.label(ls)
            a(f'global_load_dword v{VZ}, v{fa}, s[{S_WS}:{S_WS+1}] sc1'); a(f'global_load_dword v{VF}, v{fa}, s[{S_WS}:{S_WS+1}] offset:16 sc1')
            a(f'global_load_dword v{fa+1}, v{fa}, s[{S_WS}:{S_WS+1}] offset:8 sc1')
            a('s_waitcnt vmcnt(0)')
            a(f'v_and_b32 v{VZ}, v{VZ}, v{fa+1}')
            a(f'v_cmp_eq_u32 s[{KM_}:{KM_+1}], 0, v{VZ}'); a(f'v_cmp_eq_u32 s[{QM_}:{QM_+1}], 0, v{VF}')
            a(f's_add_u32 s{S_SPIN}, s{S_SPIN}, 1'); a(f's_cmp_lt_u32 s{S_SPIN}, {SPIN_MAX}'); a(f's_cbranch_scc1 {l3}')
            a(f's_branch {self.end}')
            a.label(l2)
        def qwait(blk): a(f's_lshl_b64 s[{S_P}:{S_P+1}], 1, s{blk}'); need(None, S_P)
        a(f's_mov_b32 s56, -1'); a(f's_mov_b32 s57, {0x00ffffff if half else 0xffffffff:#x}'); a(f's_lshl_b64 s[{S_P}:{S_P+1}], 1, s{S_B}')
        if half: need(56, S_P)
        else:
            l = a.newlabel('La_o'); a(f's_cmp_lg_u32 s{S_W}, 0'); a(f's_cbranch_scc1 {l}'); need(56, S_P); a.label(l); a('s_barrier')
        self.stamp(2 + 8*half)
        a(f's_lshl_b32 s{S_T}, s{S_A}, 10'); a(f's_lshl_b32 s{S_T2}, s{S_B}, 15'); a(f's_add_u32 s{S_T2}, s{S_T2}, s{S_T}')
        a(f's_add_u32 s{S_T3}, s{S_T2}, {H.QA}'); add64(a, S_IN, S_WS, f's{S_T3}')
        a(f's_add_u32 s{S_T3}, s{S_T2}, {H.OA}'); add64(a, S_OUT, S_WS, f's{S_T3}')
        a(f'global_load_dwordx4 {vr(QN,4)}, v{L16}, s[{S_IN}:{S_IN+1}] sc1')
        a(f's_add_u32 s{S_K0}, s{S_T}, {H.KA}')
        a(f'buffer_load_dwordx4 {vr(K0,4)}, v{ak}, s[{S_WSRD}:{S_WSRD+3}], s{S_K0} offen sc1')
        a(f's_lshl_b32 s{S_T2}, s{S_W}, 15'); a(f's_add_u32 s{S_K0}, s{S_K0}, s{S_T2}')
        a(f's_lshr_b32 s{S_K1}, s{S_A}, 1'); a(f's_lshl_b32 s{S_K1}, s{S_K1}, 11'); a(f's_add_u32 s{S_K1}, s{S_K1}, s{S_T2}'); a(f's_add_u32 s{S_K1}, s{S_K1}, {H.VA}')
        a(f's_mov_b32 s{S_M}, 0x0000ffff'); a(f's_mov_b32 s{S_M+1}, 0x0000ffff')
        def kv_tile(t):
            a(f's_add_u32 s{S_T}, s{S_K0}, {t*131072}')
            a(f'buffer_load_dwordx4 {vr(KF+4*t,4)}, v{ak}, s[{S_WSRD}:{S_WSRD+3}], s{S_T} offen sc1')
            a(f's_add_u32 s{S_T}, s{S_K1}, {t*131072}')
            a(f's_mov_b64 exec, s[{S_M}:{S_M+1}]')
            for b in range(2): a(f'buffer_load_dwordx4 {vr(8*t+4*b,4,"a")}, v{av}, s[{S_WSRD}:{S_WSRD+3}], s{S_T} offen offset:{1024*b} sc1')
            a('s_mov_b64 exec, -1')
        def late_tile(t):
            if half == 0: return
            l = a.newlabel('La_lt'); a(f's_bitcmp0_b32 s{S_PD}, {t-14}'); a(f's_cbranch_scc1 {l}')
            a(f's_add_u32 s{S_T}, s{S_W}, {4*t}'); a(f's_lshl_b64 s[{S_P}:{S_P+1}], 1, s{S_T}')
            need(S_P, None)
            if t == 15: self.mark(0, S_B, 0)
            kv_tile(t); a('s_waitcnt vmcnt(0)')
            a(f's_bitset0_b32 s{S_PD}, {t-14}')
            a.label(l)
        NT = 14 if half else 16
        a(f's_mov_b32 s{S_PD}, 3')
        if half:
            for t in (14, 15):
                l = a.newlabel('La_et'); a(f's_add_u32 s{S_T}, s{S_W}, {4*t}'); a(f's_bitcmp1_b64 s[{KM_}:{KM_+1}], s{S_T}'); a(f's_cbranch_scc1 {l}')
                kv_tile(t); a(f's_bitset0_b32 s{S_PD}, {t-14}'); a.label(l)
        UP = self.attup
        for t in range(UP): kv_tile(t)
        a(f's_mov_b32 s{S_BUF}, 0'); a(f's_mov_b32 s{S_CNT}, 0'); a(f's_mov_b32 s{S_PF}, 0')
        a('s_barrier')
        lp = a.newlabel('La_loop'); run = a.newlabel('La_run'); slow = a.newlabel('La_slow'); nom = a.newlabel('La_nom'); noq = a.newlabel('La_noq'); out = a.newlabel('La_out')
        def rowmax(src, first):
            if first: a(f'v_max3_f32 v{mx}, v{src}, v{src+1}, v{src+2}'); rest = list(range(3, 16))
            else: rest = list(range(16))
            while len(rest) >= 2:
                a(f'v_max3_f32 v{mx}, v{mx}, v{src+rest[0]}, v{src+rest[1]}'); rest = rest[2:]
            if rest: a(f'v_max_f32 v{mx}, v{mx}, v{src+rest[0]}')
        def halfmax():
            a(f'v_mov_b32 v{t0}, v{mx}'); a(f'v_permlane32_swap_b32 v{mx}, v{t0}'); a(f'v_max_f32 v{mx}, v{mx}, v{t0}')
        def pending():
            l = a.newlabel('La_p'); a(f's_cmp_eq_u32 s{S_PF}, 0'); a(f's_cbranch_scc1 {l}')
            a('s_waitcnt vmcnt(0)'); self.wsignal(); a(f's_mov_b32 s{S_PF}, 0')
            if half: self.mark(3, S_B, 0)
            a.label(l)
        def pv(t, b): a(f'v_smfmac_f32_32x32x32_bf16 {vr(O,16)}, {vr(8*t+4*b,4,"a")}, {vr(D[t%3]+8*b,8)}, v{idx}')
        def nextq():
            noq = a.newlabel('La_noq')
            a(f's_cmp_ge_u32 s{S_TK}, 64'); a(f's_cbranch_scc1 {noq}')
            qwait(S_TK)
            a(f'global_load_dwordx4 {vr(QN,4)}, v{L16}, s[{S_IN}:{S_IN+1}] sc1')
            a.label(noq)
        def block(first):
            for i in range(4): a(f'v_mov_b32 v{Q+i}, v{QN+i}')
            a(f's_add_u32 s{S_TK}, s{S_B}, {npg}'); add64(a, S_IN, S_IN, npg*32768)
            a(mf(D[0], vr(K0,4), vr(Q,4), 0))
            for i in range(16): a(f'v_mov_b32 v{O+i}, 0')
            rowmax(D[0], True); halfmax()
            a(f's_mov_b32 s{S_XO}, 0')
            if not first: a.label(run)
            for i in range(16): a(f'v_sub_f32 v{Cc+i}, 0, v{mx}')
            issued = UP
            if first: a(f's_waitcnt vmcnt({3*(issued-2)})')
            a(mf(D[0], vr(KF,4), vr(Q,4), vr(Cc,16)))
            a(mf(D[1], vr(KF+4,4), vr(Q,4), vr(Cc,16)))
            for t in range(16):
                d = D[t % 3]
                for i in range(16):
                    a(f'v_exp_f32 v{d+i}, v{d+i}')
                    if i == 2 and t > 0: pv(t-1, 1)
                    if first and i == 2 and issued < NT: kv_tile(issued); issued += 1
                    if first and i == 6 and NT <= t + 2 < 16: late_tile(t+2)
                    if first and i == 6 and t + 2 < NT: a(f's_waitcnt vmcnt({3*(issued-1-(t+2))})')
                    if i == 6 and t + 2 < 16: a(mf(D[(t+2)%3], vr(KF+4*(t+2),4), vr(Q,4), vr(Cc,16)))
                    if i == 11: pv(t, 0)
                if t == 5 and not first: pending()
                if t == (NT - 3 if first else 6): nextq()
            pv(15, 1)
        merge = a.newlabel('La_merge')
        a(f's_waitcnt vmcnt({3*UP})')
        self.mark(1 if half else 11, S_B, 0)
        block(True); a(f's_branch {merge}')
        a.label(lp)
        block(False)
        a.label(merge)
        a(f'v_add_u32 v{t1}, s{S_BUF}, v{lw}')
        for j in range(3): a(f'ds_write_b128 v{t1}, {vr(O+4*j,4)} offset:{1024*j}')
        a('s_waitcnt vmcnt(0) lgkmcnt(0)'); a('s_barrier')
        a(f'v_add_u32 v{t1}, s{S_BUF}, v{L16}')
        for w in range(4): a(f'ds_read_b32 v{MG+w}, v{t1} offset:{3072*w+2048}')
        a('s_waitcnt lgkmcnt(0)')
        a(f'v_add_f32 v{MG}, v{MG}, v{MG+1}'); a(f'v_add_f32 v{MG+2}, v{MG+2}, v{MG+3}'); a(f'v_add_f32 v{t2}, v{MG}, v{MG+2}')
        a(f's_xor_b32 s{S_BUF}, s{S_BUF}, 16384')
        a(f'v_cmp_nge_f32 vcc, {f2u(2.0**90):#x}, v{t2}')
        a(f's_cbranch_vccnz {slow}')
        fin = a.newlabel('La_fin'); a.label(fin)
        a(f's_and_b32 s{S_T}, s{S_CNT}, 3'); a(f's_add_u32 s{S_CNT}, s{S_CNT}, 1')
        a(f's_cmp_lg_u32 s{S_T}, s{S_W}'); a(f's_cbranch_scc1 {nom}')
        for w in range(4):
            for j in range(2): a(f'ds_read_b128 {vr(MG+8*w+4*j,4)}, v{t1} offset:{3072*w+1024*j}')
        a(f'v_rcp_f32 v{t2}, v{t2}')
        a('s_waitcnt lgkmcnt(0)')
        for i in range(8):
            a(f'v_add_f32 v{MG+i}, v{MG+i}, v{MG+8+i}'); a(f'v_add_f32 v{MG+16+i}, v{MG+16+i}, v{MG+24+i}')
            a(f'v_add_f32 v{MG+i}, v{MG+i}, v{MG+16+i}'); a(f'v_mul_f32 v{MG+i}, v{MG+i}, v{t2}')
        for i in range(4): a(f'v_cvt_pk_bf16_f32 v{MG+i}, v{MG+2*i}, v{MG+2*i+1}')
        a(f'global_store_dwordx4 v{L16}, {vr(MG,4)}, s[{S_OUT}:{S_OUT+1}] sc1')
        self.set_word(FL(half, 'OA'), S_B, S_A); a(f's_mov_b32 s{S_PF}, 1')
        self.mark(2 if half else 12, S_B, 0)
        a(f's_cmp_ge_u32 s{S_B}, {npg}'); a(f's_cbranch_scc1 {nom}')
        pending()
        a.label(nom)
        add64(a, S_OUT, S_OUT, npg*32768)
        a(f's_mov_b32 s{S_B}, s{S_TK}')
        a(f's_cmp_lt_u32 s{S_B}, 64'); a(f's_cbranch_scc1 {lp}')
        pending()
        a(f's_branch {out}')
        a.label(slow)
        a(f's_cmp_lg_u32 s{S_XO}, 0'); a(f's_cbranch_scc1 {fin}')
        a(f's_mov_b32 s{S_XO}, 1')
        for t in range(16):
            a(mf(D[t%2], vr(KF+4*t,4), vr(Q,4), 0))
            rowmax(D[t%2], t == 0)
        halfmax()
        a(f'ds_write_b32 v{lw}, v{mx} offset:32768'); a('s_waitcnt lgkmcnt(0)'); a('s_barrier')
        for w in range(4): a(f'ds_read_b32 v{MG+w}, v{L16} offset:{32768+3072*w}')
        a('s_waitcnt lgkmcnt(0)')
        a(f'v_max3_f32 v{mx}, v{MG}, v{MG+1}, v{MG+2}'); a(f'v_max_f32 v{mx}, v{mx}, v{MG+3}')
        for i in range(16): a(f'v_mov_b32 v{O+i}, 0')
        a(f's_branch {run}')
        a.label(out)
        a('s_barrier')

    def tb_weights(self):
        a = self.a
        a(f's_lshr_b32 s{S_T}, s{S_A}, 2'); a(f's_lshl_b32 s{S_T}, s{S_T}, 19'); a(f's_and_b32 s{S_T2}, s{S_A}, 3'); a(f's_lshl_b32 s{S_T2}, s{S_T2}, 8')
        a(f's_add_u32 s{S_OFF}, s{S_T}, s{S_T2}')
        load_wslices(a, [(KA_WO, 4*MB, 0, 'a', 128)], 1024, L, 3, 4, 5)
        l = a.newlabel('Lt_nw')
        a(f's_and_b32 s{S_T}, s{S_A}, 3'); a(f's_cmp_ge_u32 s{S_T}, 3'); a(f's_cbranch_scc1 {l}')
        a(f's_add_u32 s{S_T}, s{S_T}, 1'); a(f's_cmp_eq_u32 s{S_T}, 3'); a(f's_cselect_b32 s{S_T}, 0, s{S_T}'); a(f's_lshl_b32 s{S_T}, s{S_T}, 10')
        a(f's_lshr_b32 s{S_T2}, s{S_A}, 3'); a(f's_lshl_b32 s{S_T2}, s{S_T2}, 8'); a(f's_add_u32 s{S_OFF}, s{S_T}, s{S_T2}')
        load_wslices(a, [(KA_WQKV, 1536*1024, 0, 'a', 0)], 3072, L, 3, 4, 5)
        a.label(l)
    def pa_task(self, vo, av):
        a = self.a; H = W.H[1]; XR = 12; ACC = 224; xa = 3; t1 = 4
        lv = a.newlabel('Lq_v'); le = a.newlabel('Lq_e')
        self.flag_off(FL(1, 'XNA'), S_TK); self.wait(8)
        a(f's_lshl_b32 s{S_PF}, s{S_TK}, 15'); a(f's_add_u32 s{S_CNT}, s{S_PF}, {H.XNA}'); a(f's_mov_b32 s{S_BUF}, 32768')
        dma_x(a, L16, S_CNT, S_BUF, 'sc1')
        a(f's_and_b32 s{S_PD}, s{S_A}, 3')
        a(f's_add_u32 s{S_T}, s{S_PD}, 1'); a(f's_cmp_eq_u32 s{S_T}, 3'); a(f's_cselect_b32 s{S_T}, 0, s{S_T}'); a(f's_cselect_b32 s{S_SV}, {f2u(0.25*math.log2(math.e)):#x}, 1.0')
        a(f's_lshl_b32 s{S_T}, s{S_T}, 21'); a(f's_add_u32 s{S_PF}, s{S_PF}, s{S_T}'); a(f's_lshr_b32 s{S_T}, s{S_A}, 3'); a(f's_lshl_b32 s{S_T2}, s{S_T}, 13'); a(f's_add_u32 s{S_PF}, s{S_PF}, s{S_T2}')
        a(f's_add_u32 s{S_PF}, s{S_PF}, {H.QA}'); add64(a, S_IN, S_WS, f's{S_PF}')
        a(f's_lshl_b32 s{S_T}, s{S_T}, 2'); a(f's_add_u32 s{S_T}, s{S_T}, s{S_W}'); self.set_word(FL(1, "QKVA"), S_T, S_TK, 11, 5)
        a(f's_lshl_b32 s{S_T}, s{S_PD}, 3'); a(f's_add_u32 s{S_SO}, s{S_SO}, s{S_T}')
        a(f'v_add_u32 v{xa}, 32768, v{L16}')
        a(f's_lshl_b32 s{S_T}, s{S_W}, 11'); a(f's_sub_u32 s{S_T}, s{S_T}, {HB_V}'); a(f'v_add_u32 v{t1}, s{S_T}, v{av}')
        a('s_waitcnt vmcnt(0)'); a('s_barrier')
        a(f's_cmp_eq_u32 s{S_PD}, 1'); a(f's_cbranch_scc1 {lv}')
        gemm_core(a, xa, XR, [(ACC, 'a', 0, False)]); pack_store(a, ACC, vo, S_IN, 'sc1', scale=S_SV); a(f's_branch {le}')
        a.label(lv)
        gemm_core(a, xa, XR, [(ACC, 'a', 0, True)]); pack_store(a, ACC, t1, S_IN, 'sc1')
        a.label(le)
        a('s_waitcnt vmcnt(0)'); self.wsignal(); a('s_barrier')
    def tb_run(self, half, ngr):
        a = self.a; H = W.H[half]
        t0, t1, akm, av, avm, vo, xw = range(3, 10); mx = 240; FG = 244
        XR = 12; CM = 28; SX = 44; SM = 60; Q = 76; K = 108; KM = 140; V = 172; VM = 204; P = 212; PM = 220; ACC = 224
        OT = Q
        a(f'v_and_b32 v{t0}, 7, v{L}'); a(f'v_lshlrev_b32 v{akm}, 4, v{t0}'); a(f'v_lshrrev_b32 v{t0}, 5, v{L}'); a(f'v_lshl_add_u32 v{akm}, v{t0}, 7, v{akm}')
        a(f'v_add_u32 v{akm}, {HB_KM}, v{akm}')
        pi_of(a, t0, L, t1); vpos16(a, av, t0, L, t1); a(f'v_add_u32 v{av}, {HB_V}, v{av}')
        a(f'v_lshlrev_b32 v{avm}, 2, v{t0}'); a(f'v_lshrrev_b32 v{t1}, 5, v{L}'); a(f'v_lshl_add_u32 v{avm}, v{t1}, 8, v{avm}'); a(f'v_add_u32 v{avm}, {HB_VM}, v{avm}')
        a(f's_lshl_b32 s{S_T}, s{S_W}, 11'); a(f'v_add_u32 v{vo}, s{S_T}, v{L16}')
        a(f's_lshl_b32 s{S_T}, s{S_W}, 13'); a(f'v_add_u32 v{xw}, s{S_T}, v{L16}')
        a(f'v_and_b32 v{t0}, 31, v{L}'); a(f'v_lshrrev_b32 v{t1}, 5, v{L}'); a(f'v_lshlrev_b32 v{t1}, 2, v{t1}'); a(f'v_sub_u32 v{t0}, v{t0}, v{t1}')
        a(f'v_mov_b32 v{t1}, {f2u(-1e30):#x}')
        for i in range(16):
            a(f'v_cmp_le_i32 vcc, {8*(i>>2)+(i&3)}, v{t0}'); a(f'v_cndmask_b32 v{CM+i}, v{t1}, 0, vcc')
        a(f's_and_b32 s{S_T}, s{S_A}, 28'); a(f's_add_u32 s{S_T}, s{S_T}, s{S_W}')
        a(f's_lshl_b32 s{S_K0}, s{S_T}, 8'); a(f's_add_u32 s{S_K0}, s{S_K0}, {FL(half, "HEAD")}')
        a(f's_lshl_b32 s{S_T}, s{S_T}, 21')
        a(f's_lshl_b32 s{S_T2}, s{S_B}, 15'); a(f's_add_u32 s{S_XO}, s{S_T}, s{S_T2}'); a(f's_add_u32 s{S_XO}, s{S_XO}, {H.HB}')
        a(f's_lshl_b32 s{S_T}, s{S_B}, 18'); a(f's_lshl_b32 s{S_T2}, s{S_A}, 13'); a(f's_add_u32 s{S_T}, s{S_T}, s{S_T2}'); a(f's_add_u32 s{S_T}, s{S_T}, {H.PT}')
        add64(a, S_OUT, S_WS, f's{S_T}')
        a(f's_mov_b32 s{S_M}, {f2u(math.log2(math.e)/math.sqrt(128.0)):#x}')
        a(f's_mov_b32 s{S_N}, 0'); a(f's_mov_b32 s{S_K1}, 0')
        def bl(n, dst, va, so, off): a(f'buffer_load_dword{n} {vr(dst, 4 if n else 1)}, v{va}, s[{S_WSRD}:{S_WSRD+3}], s{so} offen offset:{off} sc1')
        def poll(which):
            l1 = a.newlabel('Lt_p'); l2 = a.newlabel('Lt_p'); l3 = a.newlabel('Lt_p')
            a(f's_mov_b32 s{S_SPIN}, 0'); a(f's_branch {l3}')
            a.label(l1)
            if which == S_N:
                a(f'v_mov_b32 v{VZ}, s{S_K0}')
                _ = [a(f'global_load_dword v{FG+i}, v{VZ}, s[{S_WS}:{S_WS+1}] offset:{32*i} sc1') for i in range(8)]; a('s_waitcnt vmcnt(0)')
                a(f'v_min3_u32 v{FG}, v{FG}, v{FG+1}, v{FG+2}'); a(f'v_min3_u32 v{FG}, v{FG}, v{FG+3}, v{FG+4}'); a(f'v_min3_u32 v{FG}, v{FG}, v{FG+5}, v{FG+6}'); a(f'v_min_u32 v{FG}, v{FG}, v{FG+7}')
            else:
                a(f's_add_u32 s{S_X}, s{S_K0}, {FL(half, "CHP") - FL(half, "HEAD")}'); a(f'v_mov_b32 v{VZ}, s{S_X}')
                a(f'global_load_dword v{FG}, v{VZ}, s[{S_WS}:{S_WS+1}] sc1'); a('s_waitcnt vmcnt(0)')
            a(f'v_readfirstlane_b32 s{which}, v{FG}')
            if which == S_N: a(f's_max_u32 s{S_N}, s{S_N}, 4'); a(f's_sub_u32 s{S_N}, s{S_N}, 4')
            a(f's_cmp_gt_u32 s{which}, s{S_B}'); a(f's_cbranch_scc1 {l2}')
            a('s_sleep 1')
            lz = a.newlabel('Lt_z'); a(f's_cmp_ge_u32 s{S_B}, {self.tbt}'); a(f's_cbranch_scc1 {lz}'); a(f's_sleep {self.tbsleep}'); a.label(lz)
            a(f's_add_u32 s{S_SPIN}, s{S_SPIN}, 1'); a(f's_cmp_ge_u32 s{S_SPIN}, {SPIN_MAX}'); a(f's_cbranch_scc1 {self.end}')
            a.label(l3)
            a(f's_cmp_gt_u32 s{which}, s{S_B}'); a(f's_cbranch_scc0 {l1}')
            a.label(l2)
        lp = a.newlabel('Lt_loop')
        PFX = 58
        def x_loads(d):
            a(f's_add_u32 s{S_X}, s{S_XO}, {d}'); a(f's_add_u32 s{S_T}, s{S_XO}, {d+4096}'); a(f's_add_u32 s{S_T2}, s{S_XO}, {d+HB_Q}'); a(f's_add_u32 s{S_T3}, s{S_XO}, {d+HB_Q+4096}')
            for kb in range(8):
                bl('x4', K+4*kb, L16, S_X if kb < 4 else S_T, (kb%4)*1024)
                bl('x4', Q+4*kb, L16, S_T2 if kb < 4 else S_T3, (kb%4)*1024)
            for f in range(8): bl('x4', V+4*f, av, S_X if f < 4 else S_T, (f%4)*1024)
        a(f's_mov_b32 s{PFX}, 0'); a(f's_and_b32 s{S_TK}, s{S_A}, 4'); a(f's_add_u32 s{S_TK}, s{S_TK}, s{S_B}')
        a.label(lp)
        lh = a.newlabel('Lt_h'); a(f's_cmp_lg_u32 s{PFX}, 0'); a(f's_cbranch_scc1 {lh}')
        poll(S_N); x_loads(0)
        a.label(lh)
        def mem_loads():
            for kb in range(8): bl('x4', KM+4*kb, akm, S_XO, kb*256)
            for t in range(4):
                for e in range(2): bl('', VM+2*t+e, avm, S_XO, t*512 + e*128)
        def both(r, op):
            a(f'v_mov_b32 v{t0}, v{r}'); a(f'v_permlane32_swap_b32 v{r}, v{t0}'); a(f'{op} v{r}, v{r}, v{t0}')
        lx = mx + 1; al = mx + 2; m2 = mx + 3
        def xpart(extra):
            for kb in range(8):
                a(f's_waitcnt vmcnt({extra + 8 + 14 - 2*kb})')
                a(mf(SX, vr(K+4*kb,4), vr(Q+4*kb,4), vr(SX,16) if kb else vr(CM,16)))
            a(f'v_max3_f32 v{mx}, v{SX}, v{SX+1}, v{SX+2}')
            for i in range(3, 15, 2): a(f'v_max3_f32 v{mx}, v{mx}, v{SX+i}, v{SX+i+1}')
            a(f'v_max_f32 v{mx}, v{mx}, v{SX+15}'); both(mx, 'v_max_f32')
            for i in range(16): a(f'v_sub_f32 v{SX+i}, v{SX+i}, v{mx}')
            for i in range(16): a(f'v_mul_f32 v{SX+i}, s{S_M}, v{SX+i}')
            for i in range(16): a(f'v_exp_f32 v{SX+i}, v{SX+i}')
            a(f'v_add_f32 v{lx}, v{SX}, v{SX+1}')
            for i in range(2, 16): a(f'v_add_f32 v{lx}, v{lx}, v{SX+i}')
        lw_ = a.newlabel('Lt_w'); lj = a.newlabel('Lt_j')
        a(f's_cmp_gt_u32 s{S_K1}, s{S_B}'); a(f's_cbranch_scc0 {lw_}')
        mem_loads(); xpart(16); a(f's_branch {lj}')
        a.label(lw_)
        xpart(0); poll(S_K1)
        if half == 0: self.mark(4, S_B, 63)
        mem_loads()
        a.label(lj)
        for kb in range(8):
            a(f's_waitcnt vmcnt({8 + 7 - kb})')
            a(mf(SM, vr(KM+4*kb,4), vr(Q+4*kb,4), vr(SM,16) if kb else 0))
        if half == 0: self.mark(5, S_B, 63)
        a(f'v_max3_f32 v{m2}, v{SM}, v{SM+1}, v{mx}'); a(f'v_max3_f32 v{m2}, v{m2}, v{SM+2}, v{SM+3}'); both(m2, 'v_max_f32')
        a(f'v_sub_f32 v{al}, v{mx}, v{m2}')
        for i in range(4): a(f'v_sub_f32 v{SM+i}, v{SM+i}, v{m2}')
        for e in [al] + [SM+i for i in range(4)]: a(f'v_mul_f32 v{e}, s{S_M}, v{e}')
        for e in [al] + [SM+i for i in range(4)]: a(f'v_exp_f32 v{e}, v{e}')
        a(f'v_fma_f32 v{t1}, v{lx}, v{al}, v{SM}')
        for i in range(1, 4): a(f'v_add_f32 v{t1}, v{t1}, v{SM+i}')
        both(t1, 'v_add_f32')
        a(f'v_rcp_f32 v{t1}, v{t1}')
        a(f'v_mul_f32 v{al}, v{al}, v{t1}')
        for i in range(4): a(f'v_mul_f32 v{SM+i}, v{SM+i}, v{t1}')
        for i in range(2): a(f'v_cvt_pk_bf16_f32 v{PM+i}, v{SM+2*i}, v{SM+2*i+1}')
        a('s_waitcnt vmcnt(0)')
        for t in range(4):
            a(f'v_mfma_f32_32x32x8_bf16 {vr(OT+16*t,16)}, {vr(VM+2*t,2)}, {vr(PM,2)}, 0')
            for i in range(4*t, 4*t+4): a(f'v_mul_f32 v{SX+i}, v{SX+i}, v{al}')
            for i in range(2*t, 2*t+2): a(f'v_cvt_pk_bf16_f32 v{P+i}, v{SX+2*i}, v{SX+2*i+1}')
        def cv(t, j):
            o = OT+16*t+8*j
            for i in range(4): a(f'v_cvt_pk_bf16_f32 v{o+i}, v{o+2*i}, v{o+2*i+1}')
        def wr(t, j): a(f'ds_write_b128 v{xw}, {vr(OT+16*t+8*j,4)} offset:{(2*t+j)*1024}')
        todo = [(t, j) for t in range(4) for j in range(2)]; conv = []
        for n, (t, j) in enumerate(list(todo)):
            a(mf(OT+16*t, vr(V+8*t+4*j,4), vr(P+4*j,4), vr(OT+16*t,16)))
            if conv: wr(*conv.pop(0))
            if n >= 3: x = todo.pop(0); cv(*x); conv.append(x)
        for x in conv: wr(*x)
        for x in todo: cv(*x); wr(*x)
        a('s_waitcnt lgkmcnt(0)'); a('s_barrier')
        def pfx():
            l = a.newlabel('Lt_x'); a(f's_add_u32 s{S_T}, s{S_B}, {ngr}'); a(f's_mov_b32 s{PFX}, 0')
            a(f's_cmp_gt_u32 s{S_N}, s{S_T}'); a(f's_cbranch_scc0 {l}')
            x_loads(ngr*32768); a(f's_mov_b32 s{PFX}, 1'); a.label(l)
        gemm_core(a, L16, XR, [(ACC, 'a', 128, False)], {1: pfx})
        pack_store(a, ACC, vo, S_OUT, 'sc1')
        if half == 0: self.mark(6, S_B, 63)
        self.set_word(FL(half, 'PT'), S_B, S_A); self.signal_wg()
        if half == 0: self.mark(7, S_B, 63); self.mark(13, S_B, 35); self.mark(14, S_B, 51)
        add64(a, S_OUT, S_OUT, ngr*8*32768); a(f's_add_u32 s{S_XO}, s{S_XO}, {ngr*32768}')
        a(f's_add_u32 s{S_B}, s{S_B}, {ngr}')
        if half == 0:
            nxt = a.newlabel('Lt_n'); pa = a.newlabel('Lt_pa'); fin = a.newlabel('Lt_f')
            a(f's_and_b32 s{S_T}, s{S_A}, 3'); a(f's_cmp_ge_u32 s{S_T}, 3'); a(f's_cbranch_scc1 {nxt}')
            a(f's_cmp_ge_u32 s{S_TK}, {self.pasplit}'); a(f's_cbranch_scc1 {nxt}')
            a(f's_add_u32 s{S_T}, s{S_TK}, {self.palag*ngr}'); a(f's_cmp_gt_u32 s{S_T}, s{S_B}'); a(f's_cbranch_scc1 {nxt}')
            self.pa_task(vo, av)
            a(f's_add_u32 s{S_TK}, s{S_TK}, {2*ngr}')
            a(f's_cmp_lt_u32 s{S_TK}, {self.pasplit}'); a(f's_cbranch_scc1 {nxt}')
            a(f'v_mov_b32 v{VZ}, 0x3f803f80')
            for i in range(128): a(f'v_accvgpr_write_b32 a{i}, v{VZ}')
            a.label(nxt)
        a(f's_cmp_lt_u32 s{S_B}, 64'); a(f's_cbranch_scc1 {lp}')

    def build(self):
        a = self.a; end = self.end
        a(f's_cmp_ge_u32 s2, 256'); a(f's_cbranch_scc1 {end}')
        if self.stamps == 2: a('s_memrealtime s[96:97]')
        if self.stamps is True: a('s_memrealtime s[94:95]')
        a(f's_load_dwordx2 s[{S_DBG}:{S_DBG+1}], s[0:1], {KA_DBG}')
        common_prologue(a, L, L16)
        lw = a.newlabel('Le'); lo = a.newlabel('Le'); ls = a.newlabel('Le'); lg = a.newlabel('Le'); lz = a.newlabel('Le')
        a(f's_getreg_b32 s{S_X}, hwreg(HW_REG_XCC_ID, 0, 3)')
        a(f's_xor_b32 s{S_X}, s{S_X}, {self.die}')
        if self.fake: a(self.fake.format(x=S_X))
        a(f's_lshl_b32 s{S_T}, s{S_X}, 4'); a(f'v_mov_b32 v3, s{S_T}'); a('v_mov_b32 v4, 1')
        def xwait():
            l1 = a.newlabel('Le'); l2 = a.newlabel('Le')
            a(f's_mul_i32 s{S_T}, s2, 3072'); a(f's_add_u32 s{S_T}, s{S_T}, {W.FLAGS}'); a('v_mul_u32_u24 v6, 12, v0'); a(f'v_add_u32 v6, s{S_T}, v6'); a('v_mov_b32 v8, 0'); a('v_mov_b32 v9, 0'); a('v_mov_b32 v10, 0')
            a(f'global_store_dwordx3 v6, v[8:10], s[{S_WS}:{S_WS+1}] sc1')
            a(f's_cmp_lg_u32 s{S_W}, 0'); a(f's_cbranch_scc1 {l1}')
            a('s_mov_b64 exec, 1'); a(f'global_atomic_add v5, v3, v4, s[{S_DBG}:{S_DBG+1}] offset:{self.TO} sc0 sc1'); a('s_mov_b64 exec, -1')
            a('s_waitcnt vmcnt(2)'); a(f's_branch {l2}')
            a.label(l1); a('s_waitcnt vmcnt(1)'); a.label(l2)
        a(f's_lshr_b32 s{S_A}, s2, 2'); a(f's_and_b32 s{S_B}, s2, 3')
        rb_body(a, 0, KA_X, True, 0, 0, 0, None, False, W.H[0].XNA, '', 'sc1', ldsoff=1024, vb=20, xwait=xwait)
        a(f's_cmp_lg_u32 s{S_W}, 0'); a(f's_cbranch_scc1 {lw}')
        a('s_mov_b64 exec, 1'); a('s_waitcnt vmcnt(2)')
        a(f'v_readfirstlane_b32 s{S_TK}, v5')
        a(f's_lshl_b32 s{S_SLOT}, s{S_X}, 5'); a(f's_add_u32 s{S_SLOT}, s{S_SLOT}, s{S_TK}')
        a(f's_cmp_lt_u32 s{S_TK}, 32'); a(f's_cbranch_scc1 {lg}')
        a('v_mov_b32 v3, 136'); a(f'global_atomic_add v5, v3, v4, s[{S_DBG}:{S_DBG+1}] sc0 sc1'); a('s_waitcnt vmcnt(0)')
        a(f'v_readfirstlane_b32 s{S_TK}, v5')
        self.count_wait(self.TO, 12, ls, S_T, S_SPIN)
        a.label(ls)
        for x in range(8):
            a(f'v_readfirstlane_b32 s{S_T}, v{12+x}'); a(f's_min_u32 s{S_T}, s{S_T}, 32')
            a(f's_add_u32 s{S_SLOT}, s{S_T}, s{S_TK}'); a(f's_add_u32 s{S_SLOT}, s{S_SLOT}, {32*x}')
            a(f's_sub_u32 s{S_T}, 32, s{S_T}'); a(f's_cmp_lt_u32 s{S_TK}, s{S_T}'); a(f's_cbranch_scc1 {lg}')
            a(f's_sub_u32 s{S_TK}, s{S_TK}, s{S_T}')
        a(f's_mov_b32 s{S_SLOT}, 256')
        a.label(lg)
        a(f'v_mov_b32 v3, 0'); a(f'v_mov_b32 v4, s{S_SLOT}'); a('ds_write_b32 v3, v4'); a('s_waitcnt lgkmcnt(0)')
        a('s_mov_b64 exec, -1')
        a.label(lw)
        a('s_waitcnt vmcnt(0)'); a('s_barrier')
        a(f's_mov_b32 s{S_DIE}, s{S_X}'); self.report()
        a('v_mov_b32 v3, 0'); a('ds_read_b32 v4, v3'); a('s_waitcnt lgkmcnt(0)'); a(f'v_readfirstlane_b32 s{S_SLOT}, v4'); a('s_barrier')
        a(f's_lshr_b32 s{S_T}, s{S_SLOT}, 5'); a(f's_lshl_b32 s{S_T2}, s{S_T}, 2'); a(f's_lshr_b32 s{S_T2}, {self.perm:#x}, s{S_T2}'); a(f's_and_b32 s{S_T2}, s{S_T2}, 7')
        a(f's_cmp_lt_u32 s{S_T}, 8'); a(f's_cselect_b32 s{S_T2}, s{S_T2}, 8'); a(f's_and_b32 s{S_SLOT}, s{S_SLOT}, 31'); a(f's_lshl_b32 s{S_T2}, s{S_T2}, 5'); a(f's_add_u32 s{S_SLOT}, s{S_SLOT}, s{S_T2}')
        if self.stamps: a(f's_mov_b32 s99, s{S_SLOT}')
        self.role = 'all'
        self.dmap = {('all',0):0, ('ch',1):1, ('ch',2):2, ('ch',3):3, ('ch',4):4, ('gw',1):8, ('gw',2):9, ('gw',3):10, ('pb',1):11, ('ms',12):12, ('gw',4):13, ('pb',3):14}
        if self.stamps == 2:
            a('s_and_b32 s99, s96, 0xfff00000')
        self.sv = 10
        a(f's_mov_b32 s{S_SO}, {W.STAMPS}')
        if self.stamps: _ = [a(f's_mov_b32 s{70+k}, 0') for k in range(16)]
        if self.stamps is True: a('s_mov_b32 s85, s94')
        self.stamp(0)
        if self.tlb:
            l = a.newlabel('Ltlb'); a(f's_and_b32 s{S_T}, s{S_SLOT}, 31'); a(f's_cmp_ge_u32 s{S_T}, 2'); a(f's_cbranch_scc1 {l}')
            a(f's_cmp_lg_u32 s{S_W}, 3'); a(f's_cbranch_scc1 {l}')
            a(f's_lshl_b32 s{S_T}, s{S_T}, 27'); a(f's_add_u32 s{S_T}, s{S_T}, {2*MB - 128}'); a(f'v_lshl_add_u32 v{VZ}, v{L}, 21, s{S_T}')
            a(f'global_load_dword v{VF}, v{VZ}, s[{S_WS}:{S_WS+1}] sc1')
            if self.tlb == 2: a('s_waitcnt vmcnt(0)')
            a.label(l)
        Lch, Lpb, Lgw, Lms, Lpa = [a.newlabel(n) for n in ('Lchain', 'Lpb', 'Lgw', 'Lms', 'Lpa')]
        a(f's_cmp_lt_u32 s{S_SLOT}, 32'); a(f's_cbranch_scc0 Lnot_chain')
        self.jump(Lch)
        a.label('Lnot_chain')
        a(f's_cmp_lt_u32 s{S_SLOT}, 96'); a(f's_cbranch_scc1 {Lpb}')
        a(f's_cmp_lt_u32 s{S_SLOT}, 224'); a(f's_cbranch_scc1 {Lgw}')
        a(f's_cmp_lt_u32 s{S_SLOT}, 240'); a(f's_cbranch_scc1 {Lms}')
        a(f's_cmp_lt_u32 s{S_SLOT}, 256'); a(f's_cbranch_scc1 {Lpa}')
        a.label(end); a('s_endpgm')
        a.label(Lms); self.role = 'ms'; a.comment('role wr: out-projection A + residual + LayerNorm, then reduction of the layer-B partials'); self.code_touch(sh=7)
        a(f's_and_b32 s{S_A}, s{S_SLOT}, 3'); a(f's_lshl_b32 s{S_OFF}, s{S_A}, 8')
        load_wslices(a, [(KA_WOA, 512*1024, 0, 'v', 128)], 1024, L, 3, 4, 5)
        if self.pfb & 2:
            a(f's_load_dwordx2 s[{S_P}:{S_P+1}], s[0:1], {KA_WO}'); a(f's_and_b32 s{S_T}, s{S_SLOT}, 15'); a(f's_lshl_b32 s{S_T}, s{S_T}, 18')
            a(f'v_lshl_add_u32 v3, v0, 7, s{S_T}'); a('s_waitcnt lgkmcnt(0)')
            for i in range(8):
                a(f'global_load_dword v4, v3, s[{S_P}:{S_P+1}]'); a('v_add_u32 v3, 32768, v3')
        self.flags_ready(); self.local_check()
        for half in range(2):
            a(f's_and_b32 s{S_A}, s{S_SLOT}, 3'); a(f's_bfe_u32 s{S_B}, s{S_SLOT}, 0x20002'); self.woa_run(half, 4); self.stamp(3 + 8*half)
            a(f's_bfe_u32 s{S_A}, s{S_SLOT}, 0x20002'); a(f's_and_b32 s{S_B}, s{S_SLOT}, 3')
            self.rb_run(half, 4); self.stamp(4 + 8*half)
        self.dump_marks(); a('s_endpgm')
        a.label(Lpa); self.role = 'pa'; a.comment('role pa: q projection at start, later q,k,v of the last row blocks'); self.code_touch(sh=7)
        def first_x():
            self.flags_ready(); self.mark(9, S_W, 0)
            a(f's_lshl_b32 s{S_XO}, s{S_B}, 15'); a(f's_add_u32 s{S_XO}, s{S_XO}, {W.H[0].XNA}'); a(f's_mov_b32 s{S_BUF}, {128*1024}')
            dma_x(a, L16, S_XO, S_BUF, 'sc1')
        a(f's_and_b32 s{S_A}, s{S_SLOT}, 3'); a(f's_bfe_u32 s{S_B}, s{S_SLOT}, 0x20002')
        self.proj_weights(False, (S_B, 4), first_x, (2,)); self.proj_run(0, False, 4, nowait=True, mode='q'); self.stamp(3)
        self.proj_weights(False, None, None, (0, 1))
        a(f's_bfe_u32 s{S_B}, s{S_SLOT}, 0x20002'); a(f's_add_u32 s{S_B}, s{S_B}, {self.pasplit}'); self.proj_run(1, False, 4); self.stamp(4)
        self.dump_marks(); a('s_endpgm')
        a.label(Lpb); self.role = 'pb'; a.comment('role pb: q,k,v projection of layer B'); self.code_touch(sh=7)
        def pb_ids():
            a(f's_sub_u32 s{S_T}, s{S_SLOT}, 32'); a(f's_lshr_b32 s{S_A}, s{S_T}, 5'); a(f's_lshl_b32 s{S_A}, s{S_A}, 4'); a(f's_and_b32 s{S_T2}, s{S_T}, 15')
            a(f's_add_u32 s{S_A}, s{S_A}, s{S_T2}'); a(f's_bfe_u32 s{S_B}, s{S_T}, 0x10004')
        pb_ids(); self.proj_weights(True, (S_B, 2) if self.pfb & 1 else None); self.flags_ready(); self.stamp(1)
        for half in range(2):
            pb_ids(); self.proj_run(half, True, 2); self.stamp(3 + 8*half)
        self.dump_marks(); a('s_endpgm')
        a.label(Lgw); self.role = 'gw'; a.comment('role gw: k,v projection, attention A, token attention B + out-projection'); self.code_touch(sh=7)
        self.end = 'Lm_end2'
        def pa_ids(): a(f's_sub_u32 s{S_T}, s{S_SLOT}, 96'); a(f's_lshr_b32 s{S_A}, s{S_T}, 5'); a(f's_and_b32 s{S_B}, s{S_T}, 31')
        pa_ids()
        def gw_first():
            a(f'v_mov_b32 v{VZ}, 0x3f803f80')
            for i in range(128): a(f'v_accvgpr_write_b32 a{i}, v{VZ}')
        lv = a.newlabel('Lgw_v'); lj = a.newlabel('Lgw_j')
        a(f's_lshr_b32 s{S_B}, s{S_B}, 1')
        BUFS = (128*1024, 0, 32768, 65536)
        def xblk(k):
            a(f's_lshl_b32 s{S_XO}, s{S_B}, 15'); a(f's_add_u32 s{S_XO}, s{S_XO}, {W.H[0].XNA + k*16*32768}'); a(f's_mov_b32 s{S_BUF}, {BUFS[k]}')
            dma_x(a, L16, S_XO, S_BUF, 'sc1')
        def early3():
            self.flags_ready(); self.mark(9, S_W, 0)
            for k in range(3): xblk(k)
        def start_proj(isv):
            H = W.H[0]; vo = 6; xa = 9; XR = 12; ACC = (28, 44)
            self.proj_weights(False, (S_B, 16), early3, (isv,), gw_first); self.mark(10, S_W, 0)
            xblk(3)
            if isv: pi_of(a, 3, L, 4); vpos16(a, vo, 3, L, 4)
            else: a(f'v_mov_b32 v{vo}, v{L16}')
            a(f's_lshl_b32 s{S_T}, s{S_W}, 11'); a(f'v_add_u32 v{vo}, s{S_T}, v{vo}')
            a(f's_lshl_b32 s{S_T}, s{S_A}, 13'); a(f's_lshl_b32 s{S_T2}, s{S_B}, 15'); a(f's_add_u32 s{S_T}, s{S_T}, s{S_T2}')
            a(f's_add_u32 s{S_T}, s{S_T}, {H.VA if isv else H.KA}'); add64(a, S_OUT, S_WS, f's{S_T}')
            def hs(acc, j):
                for i in range(4): a(f'v_cvt_pk_bf16_f32 v{acc+8*j+i}, v{acc+8*j+2*i}, v{acc+8*j+2*i+1}')
                a(f'global_store_dwordx4 v{vo}, {vr(acc+8*j,4)}, s[{S_OUT}:{S_OUT+1}] offset:{1024*j} sc1')
                if j: add64(a, S_OUT, S_OUT, 16*32768)
            for k in range(4):
                if k == 3: a('s_waitcnt vmcnt(4)'); a('s_barrier')
                a(f'v_add_u32 v{xa}, {BUFS[k]}, v{L16}')
                prev = ACC[(k+1) % 2]
                gemm_core(a, xa, XR, [(ACC[k%2], 'v' if isv else 'a', 128, bool(isv))], {1: (lambda p=prev: hs(p, 0)), 3: (lambda p=prev: hs(p, 1))} if k else {})
            hs(ACC[1], 0); hs(ACC[1], 1)
            a(f's_lshl_b32 s{S_T}, s{S_A}, 2'); a(f's_add_u32 s{S_T}, s{S_T}, s{S_W}'); self.set_word(FL(0, "QKVA") + 8*isv, S_T, S_B, 11, 5)
        a(f's_and_b32 s{S_T}, s{S_SLOT}, 1'); a(f's_cmp_eq_u32 s{S_T}, 1'); a(f's_cbranch_scc1 {lv}')
        start_proj(0); a(f's_branch {lj}')
        a.label(lv); start_proj(1)
        a.label(lj)
        a(f'v_lshl_add_u32 v{VZ}, v{L}, 9, s{S_SO}'); a(f'v_mov_b32 v{VF}, 1'); a('s_waitcnt vmcnt(0)')
        a('s_mov_b64 exec, 15'); a(f'global_store_dword v{VZ}, v{VF}, s[{S_WS}:{S_WS+1}] sc1'); a('s_mov_b64 exec, -1')
        a('s_waitcnt vmcnt(0)')
        self.stamp(1)
        def gw_ids():
            a(f's_sub_u32 s{S_T}, s{S_SLOT}, 96'); a(f's_lshr_b32 s{S_A}, s{S_T}, 5'); a(f's_lshl_b32 s{S_A}, s{S_A}, 3'); a(f's_and_b32 s{S_T2}, s{S_T}, 7')
            a(f's_add_u32 s{S_A}, s{S_A}, s{S_T2}'); a(f's_bfe_u32 s{S_B}, s{S_T}, 0x20003')
        for half in range(2):
            gw_ids(); self.att_run(half, 4); self.stamp(3 + 8*half)
            gw_ids()
            if half == 0: self.tb_weights()
            self.tb_run(half, 4); self.stamp(4 + 8*half)
        self.dump_marks()
        a.label('Lm_end2'); a('s_endpgm')
        a.label(Lch); self.role = 'ch'; a.comment('role chain: recurrent memory')
        self.end = 'Lm_end3'; end = self.end
        r = C.ChainRegs(); self.sv = r.R
        a(f's_mov_b32 s{C.S_H}, s{S_SLOT}')
        lslow = a.newlabel('Lcslow'); lfast = a.newlabel('Lcfast')
        def mid(T):
            l1 = a.newlabel('Lcm'); l2 = a.newlabel('Lcm')
            T = r.WV + 64
            self.count_wait(132, T, end, C.S_T, C.S_SPIN); self.count_wait(self.TO, T, end, C.S_T, C.S_SPIN)
            a(f'v_readfirstlane_b32 s{C.S_T}, v{T}')
            add64(a, S_DBG, S_WS, FL(0, 'EL'))
            if self.chain_kw.get('force_slow'): a(f's_mov_b32 s{C.S_T}, 0')
            a(f's_mov_b32 s{C.S_EP}, 0'); a(f's_mov_b32 s{C.S_EM}, 0'); a(f's_mov_b32 s{C.S_HALF}, 0')
            a(f's_cmp_ge_u32 s{C.S_T}, 32'); a(f's_cselect_b32 s{C.S_FB}, 1, 0'); a(f's_cbranch_scc1 {l1}')
            C.chain_init_comm(a, r, 'sc1', True, T); a(f's_branch {l2}')
            a.label(l1); C.chain_init_comm(a, r, '', True, T)
            a.label(l2); C.group_arrive(a, T, 1280)
        C.chain_setup(a, r, mid, self.ahead)
        self.stamp(1)
        C.group_wait(a, r.R, 1280, 32, end)
        a(f's_cmp_eq_u32 s{C.S_FB}, 1'); a(f's_cbranch_scc1 {lfast}')
        a(f's_branch {lslow}')
        a.label(end); a('s_endpgm')
        kw = {k: v for k, v in self.chain_kw.items() if k != 'force_slow'}
        for lbl, stf in ((lfast, ''), (lslow, 'sc1')):
            a.label(lbl)
            lh = a.newlabel('Lch_half'); a.label(lh)
            self.stamp(2, C.S_HALF)
            C.chain_start(a, r, end, 1)
            def started(sv):
                self.sv = sv; self.stamp(3, C.S_HALF); self.sv = r.R
            kw['started'] = started
            C.chain_all_waves(a, r, stf, end, fused=1, **(dict(kw, ef='sc1') if stf else kw))
            self.stamp(4, C.S_HALF)
            if kw.get('stamps'):
                for k in range(12): a(f'v_mov_b32 v{k}, s{84+k}')
                a(f's_lshl_b32 s{C.S_T}, s{C.S_H}, 2'); a(f's_add_u32 s{C.S_T}, s{C.S_T}, s{C.S_W}'); a(f's_lshl_b32 s{C.S_T}, s{C.S_T}, 6')
                a(f's_lshl_b32 s{C.S_T2}, s{C.S_HALF}, 13'); a(f's_add_u32 s{C.S_T}, s{C.S_T}, s{C.S_T2}')
                a(f's_add_u32 s{C.S_T}, s{C.S_T}, {STAMP_OFF + 32768}'); a(f'v_mov_b32 v16, s{C.S_T}')
                for k in range(3): a(f'global_store_dwordx4 v16, {vr(4*k,4)}, s[{S_WS}:{S_WS+1}] offset:{16*k}')
                a('s_waitcnt vmcnt(0)')
            a(f's_cmp_lg_u32 s{C.S_HALF}, 0'); a(f's_cbranch_scc1 {end}')
            a(f's_mov_b32 s{C.S_HALF}, 1'); C.group_arrive(a, r.R, 1408); C.group_wait(a, r.R, 1408, 32, end)
            a(f's_xor_b32 s{C.S_EM}, s{C.S_EM}, 1'); C.chain_init_comm(a, r, stf, False)
            a(f's_branch {lh}')
        return a.lines
    def jump(self, label):
        a = self.a; l = a.newlabel('Lj')
        a('s_getpc_b64 s[48:49]'); a.label(l)
        a(f's_add_u32 s48, s48, {label}-{l}'); a('s_addc_u32 s49, s49, 0'); a('s_setpc_b64 s[48:49]')

DOC = """;
;
"""
NAME = 'interleave_layers__softmax_full_mha__memory_aug_recurrent_mem_tr__prompt'
def build(stamps=False, chain_kw={}, verbose=False, aslist=True):
    ks = []; al8 = chain_kw.pop('al8', 0)
    for n, lines, vg, acc in ((NAME + '_kernel', Mega(stamps, chain_kw).build(), 512, 256),):
        rep = []
        l = fix_hazards(lines, rep)
        if al8:
            l, nf, nbad = align8(l)
            if verbose: print('align8', nf, nbad)
        for e in check_waits(l, n[:8]): print(e)
        if verbose: print(n, len(l), len(rep))
        ks.append((n, l, vg, acc))
    hdr = ''.join(l for l in open(f'cdna_kernels/{NAME}.s.ref').readlines()[:14] if '@launch' not in l)
    hdr += DOC
    t = assemble_file(hdr, [(NAME + '_kernel', 256, 256, 163840)], ks)
    return t if aslist else t.replace(f'@launch kernel={NAME}_kernel ', '@launch ')

if __name__ == '__main__':
    import sys
    kw = eval(sys.argv[2]) if len(sys.argv) > 2 else dict()
    st = (True if sys.argv[3] == '1' else 2) if len(sys.argv) > 3 else False
    t = build(st, kw, True, aslist=(st is True))
    open(sys.argv[1] if len(sys.argv) > 1 else f'cdna_kernels/{NAME}.s', 'w').write(t)
    print(len(t))
```
